```python
import torch

def _softmax(x, axis=-1):
    return torch.softmax(x, dim=axis)
def _gelu(x):
    return torch.nn.functional.gelu(x, approximate="tanh")
def _silu(x):
    return torch.nn.functional.silu(x)
def _sigmoid(x):
    return torch.sigmoid(x)
def _layernorm(x, axis=-1, eps=1e-5):
    m = x.mean(dim=axis, keepdim=True)
    v = x.var(dim=axis, keepdim=True, unbiased=False)
    return (x - m) / torch.sqrt(v + eps)
def _scatter_add(tgt, idx, src, axis=0):
    return tgt.clone().index_add_(axis, idx, src)
def _segment_sum(src, seg, n):
    out = torch.zeros((n,) + src.shape[1:], dtype=src.dtype)
    return out.index_add_(0, seg, src)
def _pad(x, pw):
    flat = tuple(v for pair in reversed(pw) for v in pair)
    return torch.nn.functional.pad(x, flat)

kernel_name = 'recurrent_scan__gqa_block_cached__glu_gated_geglu__prompt'

def setup_inputs():

    _w = (lambda a: (lambda t: t.to(torch.bfloat16) if t.is_floating_point() else t)(torch.as_tensor(a)))
    def _A_setup():
        B, Sq, D = 1, 2048, 576
        Hq, Hkv, Sk, Dh = 32, 16, 2048, 128
        assert Hq % Hkv == 0, (Hq, Hkv)
        return {
            "x": _w((lambda *s: torch.randn(*s, dtype=torch.bfloat16) * 0.05)(B, Sq, D)),
            "k_cache": _w((lambda *s: torch.randn(*s, dtype=torch.bfloat16) * 3.2)(B, Hkv, Sk, Dh)),
            "v_cache": _w((lambda *s: torch.randn(*s, dtype=torch.bfloat16) * 3.2)(B, Hkv, Sk, Dh)),
            "wq": _w((lambda *s: torch.randn(*s, dtype=torch.bfloat16) * 3.2)(D, Hq * Dh) * (D ** -0.5)),
            "wo": _w((lambda *s: torch.randn(*s, dtype=torch.bfloat16) * 3.2)(Hq * Dh, D) * ((Hq * Dh) ** -0.5)),
        }
    _A_in = _A_setup()

    def _B_setup():
        B, S, Dm, Df = 1, 2048, 576, 4608
        return {
            "x": _w((lambda *s: torch.randn(*s, dtype=torch.bfloat16) * 0.05)(B, S, Dm)),
            "w_gate": _w((lambda *s: torch.randn(*s, dtype=torch.bfloat16) * 0.4)(Dm, Df) * (Dm ** -0.5)),
            "w_up": _w((lambda *s: torch.randn(*s, dtype=torch.bfloat16) * 0.4)(Dm, Df) * (Dm ** -0.5)),
            "w_down": _w((lambda *s: torch.randn(*s, dtype=torch.bfloat16) * 0.4)(Df, Dm) * (Df ** -0.5)),
        }
    _B_in = _B_setup()

    return {
        "A_x": _A_in["x"],
        "A_k_cache": _A_in["k_cache"],
        "A_v_cache": _A_in["v_cache"],
        "A_wq": _A_in["wq"],
        "A_wo": _A_in["wo"],
        "B_x": _B_in["x"],
        "B_w_gate": _B_in["w_gate"],
        "B_w_up": _B_in["w_up"],
        "B_w_down": _B_in["w_down"],
    }

def reference(A_x, A_k_cache, A_v_cache, A_wq, A_wo, B_x, B_w_gate, B_w_up, B_w_down):
    def _A_ref(x, k_cache, v_cache, wq, wo):
        B, Sq, D = x.shape
        Hq, Dh = 32, 128
        Hkv = k_cache.shape[1]
        rep = Hq // Hkv
        q = (lambda x, *d: x.permute(*d))((x @ wq).reshape(B, Sq, Hq, Dh), 0, 2, 1, 3)
        k = (lambda x, n, axis: torch.repeat_interleave(x, n, dim=axis))(k_cache, rep, axis=1)
        v = (lambda x, n, axis: torch.repeat_interleave(x, n, dim=axis))(v_cache, rep, axis=1)
        scores = torch.einsum("bhqd,bhkd->bhqk", q, k) * (Dh ** -0.5)
        p = _softmax(scores, axis=-1)
        o = torch.einsum("bhqk,bhkd->bhqd", p, v)
        return (lambda x, *d: x.permute(*d))(o, 0, 2, 1, 3).reshape(B, Sq, Hq * Dh) @ wo

    def _B_ref(x, w_gate, w_up, w_down):
        g = torch.einsum("bsd,df->bsf", x, w_gate)
        u = torch.einsum("bsd,df->bsf", x, w_up)
        h = _gelu(g) * u
        return torch.einsum("bsf,fd->bsd", h, w_down)

    x = A_x
    xn = _layernorm(x, axis=-1)
    s = _A_ref(xn, A_k_cache, A_v_cache, A_wq, A_wo)
    g = _silu(_B_ref(xn, B_w_gate, B_w_up, B_w_down))
    return x + s * g
```

```python
import re

TRANS = ("v_exp_f32", "v_log_f32", "v_rcp_f32", "v_rsq_f32", "v_sqrt_f32", "v_sin_f32", "v_cos_f32", "v_rcp_iflag_f32")

def parse_regs(tok):
    tok = tok.strip()
    neg = tok.lstrip("-")
    if neg.startswith("abs(") and neg.endswith(")"): neg = neg[4:-1]
    if neg.startswith("|") and neg.endswith("|"): neg = neg[1:-1]
    m = re.fullmatch(r"([vas])(\d+)", neg)
    if m: return [(m.group(1), int(m.group(2)))]
    m = re.fullmatch(r"([vas])\[(\d+):(\d+)\]", neg)
    if m: return [(m.group(1), i) for i in range(int(m.group(2)), int(m.group(3)) + 1)]
    if neg == "vcc": return [("s", 106), ("s", 107)]
    if neg == "vcc_lo": return [("s", 106)]
    if neg == "vcc_hi": return [("s", 107)]
    if neg == "exec": return [("s", 126), ("s", 127)]
    if neg == "m0": return [("s", 124)]
    return []

class Ins:
    __slots__ = ("text", "op", "kind", "rd", "wr", "srcA", "srcB", "srcC", "passes", "nops", "lds_dma", "wide_store", "dpp", "tag", "waitvm", "waitlgkm", "sdata")
    def __init__(self, text, tag=None):
        self.text = text; self.tag = tag
        body = text.split(";")[0].strip()
        parts = body.split(None, 1)
        self.op = parts[0]
        rest = parts[1] if len(parts) > 1 else ""
        ops = []
        if rest:
            depth = 0; cur = ""
            for ch in rest:
                if ch in "[(": depth += 1
                if ch in "])": depth -= 1
                if ch == "," and depth == 0:
                    ops.append(cur.strip()); cur = ""
                else: cur += ch
            ops.append(cur.strip())
        mods = ""
        if ops:
            last = ops[-1].split(None, 1)
            ops[-1] = last[0]
            if len(last) > 1: mods = last[1]
        self.rd = []; self.wr = []; self.srcA = self.srcB = self.srcC = None
        self.passes = 0; self.nops = 1; self.lds_dma = False; self.wide_store = False
        self.dpp = ("quad_perm" in mods or "row_" in mods or "wave_" in mods); self.waitvm = None; self.waitlgkm = None; self.sdata = []
        op = self.op
        R = lambda i: parse_regs(ops[i]) if i < len(ops) else []
        if op.startswith("v_mfma"):
            self.kind = "mfma"
            self.wr = R(0); self.srcA = R(1); self.srcB = R(2); self.srcC = R(3)
            self.rd = self.srcA + self.srcB + self.srcC
            self.passes = 8 if "32x32x16" in op else 4
        elif op.startswith("v_"):
            self.kind = "trans" if op.replace("_e32", "").replace("_e64", "") in TRANS else "valu"
            if op.startswith("v_permlane") and "swap" in op:
                self.wr = R(0) + R(1); self.rd = R(0) + R(1)
            elif op.startswith("v_cmp"):
                self.wr = R(0); self.rd = sum((R(i) for i in range(1, len(ops))), [])
                if op.startswith("v_cmpx"): self.wr += parse_regs("exec")
            elif op.startswith(("v_add_co", "v_sub_co", "v_addc_co", "v_subb_co", "v_subrev_co")):
                self.wr = R(0) + R(1); self.rd = sum((R(i) for i in range(2, len(ops))), [])
            elif op == "v_nop":
                pass
            else:
                self.wr = R(0); self.rd = sum((R(i) for i in range(1, len(ops))), [])
                if op.startswith(("v_fmac", "v_dot2c", "v_mac", "v_writelane")) or self.dpp: self.rd += R(0)
        elif op.startswith("ds_read") or op.startswith("ds_bpermute") or op.startswith("ds_swizzle") or op.startswith("ds_permute"):
            self.kind = "ds"; self.wr = R(0); self.rd = sum((R(i) for i in range(1, len(ops))), [])
        elif op.startswith("ds_"):
            self.kind = "ds"; self.rd = sum((R(i) for i in range(0, len(ops))), [])
        elif op.startswith("buffer_load") or op.startswith("global_load"):
            self.kind = "vmem"
            if re.search(r"\blds\b", mods) or "_lds_" in op:
                self.lds_dma = True; self.rd = sum((R(i) for i in range(0, len(ops))), []) + parse_regs("m0")
            else:
                self.wr = R(0); self.rd = sum((R(i) for i in range(1, len(ops))), [])
        elif op.startswith("buffer_store") or op.startswith("global_store") or op.startswith("buffer_atomic") or op.startswith("global_atomic"):
            self.kind = "vmem"; self.rd = sum((R(i) for i in range(0, len(ops))), [])
            if op.startswith("buffer_atomic") and "sc0" in mods: self.wr = R(0)
            if "x3" in op or "x4" in op:
                self.wide_store = True; self.sdata = R(0) if op.startswith("buffer") else R(1)
        elif op in ("buffer_wbl2", "buffer_inv"):
            self.kind = "vmem"
        elif op == "s_nop":
            self.kind = "salu"; self.nops = int(ops[0], 0) + 1
        elif op == "s_waitcnt":
            self.kind = "wait"
            m = re.search(r"vmcnt\((\d+)\)", body); self.waitvm = int(m.group(1)) if m else None
            m = re.search(r"lgkmcnt\((\d+)\)", body); self.waitlgkm = int(m.group(1)) if m else None
        elif op.startswith("s_load") or op.startswith("s_memtime") or op.startswith("s_memrealtime") or op.startswith("s_buffer_load"):
            self.kind = "smem"; self.wr = R(0); self.rd = sum((R(i) for i in range(1, len(ops))), [])
        elif op.startswith("s_cbranch") or op == "s_branch" or op == "s_endpgm" or op == "s_barrier" or op == "s_setprio" or op == "s_sleep" or op == "s_call_b64" or op == "s_setpc_b64":
            self.kind = "ctl"
        elif op.startswith("s_cmp"):
            self.kind = "salu"; self.rd = R(0) + R(1)
        elif op.startswith("s_"):
            self.kind = "salu"; self.wr = R(0); self.rd = sum((R(i) for i in range(1, len(ops))), [])
            if "saveexec" in op: self.wr += parse_regs("exec")
        else:
            raise ValueError("unknown op: " + text)

class Label:
    def __init__(self, name, align=None): self.name = name; self.align = align
class Raw:
    def __init__(self, text): self.text = text

def need_states(p, c):
    n = 0
    pw = set(p.wr);
    crd = set(c.rd); cwr = set(c.wr)
    isvalu = lambda x: x.kind in ("valu", "trans")
    if p.kind == "mfma":
        big = {4: 8, 8: 12}[p.passes]
        if c.kind == "mfma":
            if pw & (set(c.srcA) | set(c.srcB)): n = max(n, big)
            if pw & set(c.srcC):
                if not (c.srcC == p.wr and c.passes == p.passes): n = max(n, {4: 6, 8: 10}[p.passes])
            elif pw & cwr: n = max(n, big)
        elif isvalu(c) or c.kind in ("ds", "vmem"):
            if pw & (crd | cwr): n = max(n, big)
        if isvalu(c) and (set(p.srcC) & cwr): n = max(n, {4: 3, 8: 7}[p.passes])
    if isvalu(p):
        vw = {r for r in pw if r[0] in "va"}
        sw = {r for r in pw if r[0] == "s"}
        if c.kind == "mfma" and (vw & crd): n = max(n, 2)
        if c.kind == "mfma" and (("s", 126) in sw): n = max(n, 4)
        if p.kind == "trans" and isvalu(c) and c.kind != "trans" and (vw & crd): n = max(n, 1)
        if p.kind == "trans" and c.kind in ("mfma",) and (vw & crd): n = max(n, 2)
        if isvalu(c):
            if c.op.startswith(("v_readfirstlane", "v_readlane")) and (vw & crd): n = max(n, 1)
            if c.op.startswith("v_permlane") and (vw & crd): n = max(n, 2)
            if c.dpp and (vw & crd): n = max(n, 2)
            if c.dpp and (("s", 126) in sw): n = max(n, 5)
            if sw & crd:
                n = max(n, 4 if c.op.startswith(("v_readlane", "v_writelane")) else 2)
            if ("s", 126) in sw and c.op.startswith(("v_readlane", "v_readfirstlane", "v_writelane", "v_permlane")): n = max(n, 4)
        if c.kind == "vmem" and (sw & crd): n = max(n, 5)
        if c.kind in ("salu", "smem") and (sw & crd): n = max(n, 1)
    if p.kind == "salu" and ("s", 124) in pw and c.lds_dma: n = max(n, 1)
    if p.wide_store and (set(p.sdata) & cwr): n = max(n, 2 if isvalu(c) else 1)
    return n

class Prog:
    def __init__(self):
        self.items = []
    def __call__(self, text, tag=None):
        for line in text.split("\n"):
            line = line.strip()
            if not line or line.startswith(";"): continue
            self.items.append(Ins(line, tag))
    def label(self, name, align=None): self.items.append(Label(name, align))
    def raw(self, text): self.items.append(Raw(text))
    def extend(self, other): self.items.extend(other.items)

def fix_hazards(seq, prev=None, verbose=False, name=""):
    out = []
    hist = [i for i in (prev or []) if isinstance(i, Ins)][-24:]
    added = 0
    for it in seq:
        if not isinstance(it, Ins):
            out.append(it); continue
        dist = 0; need = 0
        for p in reversed(hist):
            n = need_states(p, it)
            if n > dist: need = max(need, n - dist)
            dist += p.nops
            if dist >= 20: break
        if need > 0:
            nop = Ins(f"s_nop {need-1}")
            out.append(nop); hist.append(nop); added += need
            if verbose: print(f"[{name}] inserted s_nop {need-1} before: {it.text}")
        out.append(it); hist.append(it)
        hist = hist[-24:]
    return out, added

class WaitChecker:
    def __init__(self):
        self.vm = []
        self.lg = []
        self.errors = []
    def run(self, seq):
        for it in seq:
            if not isinstance(it, Ins): continue
            if it.kind == "wait":
                if it.waitvm is not None:
                    while len(self.vm) > it.waitvm: self.vm.pop(0)
                if it.waitlgkm is not None:
                    if any(p.kind == "smem" for p in self.lg):
                        if it.waitlgkm == 0: self.lg = []
                    else:
                        while len(self.lg) > it.waitlgkm: self.lg.pop(0)
                continue
            touched = set(it.rd) | set(it.wr)
            for p in self.vm + self.lg:
                if set(p.wr) & touched and not (p.tag == "TCH" and it.tag == "TCH"):
                    self.errors.append(f"pending load [{p.text}] touched by [{it.text}]")
            if it.kind == "vmem":
                self.vm.append(it)
                if len(self.vm) > 63: self.errors.append(f"vmcnt overflow at {it.text}")
            elif it.kind in ("ds", "smem"):
                self.lg.append(it)
                if len(self.lg) > 24 and it.kind == "ds": self.errors.append(f"lgkmcnt>15 at {it.text}")

def render(items):
    L = []
    for it in items:
        if isinstance(it, Ins): L.append("    " + it.text)
        elif isinstance(it, Label):
            if it.align: L.append(f".p2align {it.align}")
            L.append(it.name + ":")
        else: L.append(it.text)
    return "\n".join(L) + "\n"

def kernel_text(name, items, vgpr, agpr_off, sgpr=102):
    s = f".text\n.globl {name}\n.p2align 8\n.type {name},@function\n{name}:\n" + render(items)
    return s

def kd_text(name, nfv, accum, sgpr=102):
    return (f".amdhsa_kernel {name}\n  .amdhsa_next_free_vgpr {nfv}\n  .amdhsa_next_free_sgpr {sgpr}\n  .amdhsa_accum_offset {accum}\n"
            "  .amdhsa_group_segment_fixed_size 0\n  .amdhsa_kernarg_size 96\n  .amdhsa_user_sgpr_count 2\n"
            "  .amdhsa_user_sgpr_kernarg_segment_ptr 1\n  .amdhsa_system_sgpr_workgroup_id_x 1\n.end_amdhsa_kernel\n")

class WaitFor:
    def __init__(self, lg=(), vm=(), lg0=False):
        self.lg = tuple(lg); self.vm = tuple(vm); self.lg0 = lg0
        self.nlg = None; self.nvm = None

def resolve_waits(linear):
    lgq = []; vmq = []
    for it in linear:
        if isinstance(it, Ins):
            if it.kind == "ds": lgq.append(it.tag)
            elif it.kind == "vmem": vmq.append(it.tag)
        elif isinstance(it, WaitFor):
            for tags, q, attr in ((it.lg, lgq, "nlg"), (it.vm, vmq, "nvm")):
                if not tags: continue
                n = None
                for t in tags:
                    idx = [i for i, x in enumerate(q) if x == t]
                    if not idx: continue
                    k = len(q) - 1 - idx[-1]
                    n = k if n is None else min(n, k)
                if n is None: continue
                cur = getattr(it, attr)
                setattr(it, attr, n if cur is None else min(cur, n))

def lower_waits(items):
    out = []
    for it in items:
        if isinstance(it, WaitFor):
            parts = []
            if it.nvm is not None and it.nvm < 63: parts.append(f"vmcnt({it.nvm})")
            nlg = 0 if it.lg0 else it.nlg
            if nlg is not None and nlg <= 15: parts.append(f"lgkmcnt({min(nlg,15)})")
            if parts: out.append(Ins("s_waitcnt " + " ".join(parts)))
        else: out.append(it)
    return out
```

```python
from asmlib import *
NAME = "recurrent_scan__gqa_block_cached__glu_gated_geglu__prompt"
XN_OFF = 0
XN_BYTES = 2048 * 576 * 2
H_OFF = 4 << 20
H_BYTES = 2048 * 4608 * 2
O_OFF = 24 << 20
O_BYTES = 2048 * 4096 * 2
PART_OFF = 48 << 20
PART_BYTES = 4 * 2048 * 576 * 4
ARG = dict(x=0, k=8, v=16, wq=24, wo=32, bx=40, wg=48, wu=56, wd=64, out=72, dbg=80, ws=88)

def srd(p, d, base, nbytes, off=0):
    if off:
        p(f"s_add_u32 s{d}, s{base}, {off}")
        p(f"s_addc_u32 s{d+1}, s{base+1}, 0")
    else:
        p(f"s_mov_b32 s{d}, s{base}")
        p(f"s_mov_b32 s{d+1}, s{base+1}")
    p(f"s_mov_b32 s{d+2}, {nbytes}")
    p(f"s_mov_b32 s{d+3}, 0x20000")

def f2u(x):
    import struct
    return "0x%08x" % struct.unpack("<I", struct.pack("<f", x))[0]

def finish(p, name, verbose=False):
    items, added = fix_hazards(p.items, verbose=verbose, name=name)
    wc = WaitChecker(); wc.run(items)
    for e in wc.errors[:20]: print(f"[{name}] WAITCHECK:", e)
    return items
```

```python
from common import *
def gen_k0():
    p = Prog()
    p("s_cmp_ge_u32 s2, 256"); p("s_cbranch_scc1 L_k0_done")
    p(f"s_load_dwordx2 s[4:5], s[0:1], {ARG['x']}"); p(f"s_load_dwordx2 s[6:7], s[0:1], {ARG['ws']}")
    p("v_lshrrev_b32 v1, 3, v0")
    p("v_and_b32 v2, 7, v0")
    p("s_lshl_b32 s3, s2, 3")
    p("v_add_u32 v3, s3, v1")
    p("v_mul_u32_u24 v3, 1152, v3")
    p("v_lshl_add_u32 v3, v2, 4, v3")
    p("s_waitcnt lgkmcnt(0)")
    srd(p, 8, 4, XN_BYTES); srd(p, 12, 6, XN_BYTES, XN_OFF)
    for i in range(9):
        p(f"buffer_load_dwordx4 v[{8+4*i}:{11+4*i}], v3, s[8:11], 0 offen offset:{i*128}")
    p("s_and_b32 s16, s2, 1"); p("s_lshl_b32 s16, s16, 3")
    p("v_add_u32 v4, s16, v1")
    p("v_and_b32 v5, 3, v2"); p("v_lshl_add_u32 v4, v5, 4, v4"); p("v_lshlrev_b32 v4, 4, v4")
    p("v_lshrrev_b32 v5, 2, v2"); p("v_lshl_add_u32 v4, v5, 10, v4")
    p("s_lshr_b32 s17, s2, 1"); p("s_mul_i32 s17, s17, 18432")
    p("s_mov_b32 s18, 0xffff0000")
    F = 48
    for i in range(9):
        p(f"s_waitcnt vmcnt({8-i})")
        for j in range(4):
            p(f"v_lshlrev_b32 v{F+8*i+2*j}, 16, v{8+4*i+j}")
            p(f"v_and_b32 v{F+8*i+2*j+1}, s18, v{8+4*i+j}")
        for j in range(8):
            if i == 0 and j < 4: p(f"v_mov_b32 v{120+j}, v{F+j}")
            else: p(f"v_add_f32 v{120+j%4}, v{120+j%4}, v{F+8*i+j}")
    def reduce8(r):
        p(f"v_add_f32 v{r}, v{r}, v{r+1}"); p(f"v_add_f32 v{r+2}, v{r+2}, v{r+3}"); p(f"v_add_f32 v{r}, v{r}, v{r+2}")
        p(f"v_add_f32_dpp v{r}, v{r}, v{r} quad_perm:[1,0,3,2] row_mask:0xf bank_mask:0xf")
        p(f"v_add_f32_dpp v{r}, v{r}, v{r} quad_perm:[2,3,0,1] row_mask:0xf bank_mask:0xf")
        p(f"v_add_f32_dpp v{r}, v{r}, v{r} row_half_mirror row_mask:0xf bank_mask:0xf")
    reduce8(120)
    p(f"v_mul_f32 v124, {f2u(1.0/576)}, v120")
    for e in range(72):
        t = 126 + (e % 4)
        p(f"v_sub_f32 v{t}, v{F+e}, v124")
        if e < 4: p(f"v_mul_f32 v{120+e}, v{t}, v{t}")
        else: p(f"v_fmac_f32 v{120+e%4}, v{t}, v{t}")
    reduce8(120)
    p(f"v_mul_f32 v120, {f2u(1.0/576)}, v120")
    def rnd(r):
        p(f"v_cvt_pk_bf16_f32 v{r}, v{r}, v{r}"); p(f"v_and_b32 v{r}, s18, v{r}")
    rnd(120); rnd(124)
    p(f"v_add_f32 v120, {f2u(1e-5)}, v120"); rnd(120)
    p("v_sqrt_f32 v120, v120"); rnd(120)
    p("v_rcp_f32 v121, v120")
    p("v_fma_f32 v122, -v120, v121, 1.0"); p("v_fmac_f32 v121, v122, v121")
    for i in range(9):
        for j in range(4):
            a, b = F+8*i+2*j, F+8*i+2*j+1
            p(f"v_sub_f32 v{a}, v{a}, v124"); p(f"v_sub_f32 v{b}, v{b}, v124")
        for j in range(4):
            a, b = F+8*i+2*j, F+8*i+2*j+1
            p(f"v_cvt_pk_bf16_f32 v{b}, v{a}, v{b}")
        for j in range(4):
            a, b = F+8*i+2*j, F+8*i+2*j+1
            p(f"v_lshlrev_b32 v{a}, 16, v{b}"); p(f"v_and_b32 v{b}, s18, v{b}")
        for j in range(4):
            a, b = F+8*i+2*j, F+8*i+2*j+1
            p(f"v_mul_f32 v{a}, v{a}, v121"); p(f"v_mul_f32 v{b}, v{b}, v121")
        for j in range(4):
            a, b = F+8*i+2*j, F+8*i+2*j+1
            p(f"v_cvt_pk_bf16_f32 v{8+4*i+j}, v{a}, v{b}")
        p(f"s_add_u32 s19, s17, {i*2048}")
        p(f"buffer_store_dwordx4 v[{8+4*i}:{11+4*i}], v4, s[12:15], s19 offen")
    p.label("L_k0_done"); p("s_endpgm")
    return finish(p, "k0"), 132, 132
```

```python
from common import *
import math
K12_LDS = 160 * 1024
LOG2E = 1.4426950408889634
QSCALE = LOG2E / math.sqrt(128.0)
GC1 = -2.0 * math.sqrt(2.0 / math.pi) * LOG2E
GC2 = GC1 * 0.044715
THRESH = 2.0 ** 40

S_WG, S_WU, S_WQ, S_K, S_V, S_XN, S_H, S_O = 8, 12, 16, 20, 24, 28, 32, 36
S_WAVE, S_RB, S_J = 40, 41, 42
S_WOFF = 43
S_T0, S_T1, S_T2 = 44, 45, 46
S_KOFF, S_VOFF = 47, 48
S_W1K = 49
S_RET = 50
S_CNT = 52
S_W3K = 53
S_FCOL = 54
S_HCOL = 55
S_QCOL = 56
S_WROWF = 57
S_WROWQ = 58
S_HBASE = 59
S_HHALF = 60
S_THR = 61
S_OBASE = 62
S_XB = 63

V_L16 = 1
V_WF = 2
V_WQ = 3
V_RA = 4
V_RH = 8
V_RQ = 10
V_C1, V_C2 = 12, 13
V_KD, V_VD = 14, 15
V_AF = 16
V_T = 52
V_HO = 68
V_KA = 76
V_VA = 80
V_ACC = 96
V_X = 224
WSLOT = [128 * 1024, 80 * 1024, 40 * 1024, 104 * 1024]
def wbase(slot):
    b = WSLOT[slot]
    return (0, b - 40 * 1024) if b < 104 * 1024 else (1, b - 104 * 1024)

def xreg(ks, mt):
    f = ks * 4 + mt
    return f"a[{4*f}:{4*f+3}]" if f < 64 else f"v[{V_X+4*(f-64)}:{V_X+4*(f-64)+3}]"

A_Q, A_KF, A_VF, A_O = 0, 64, 96, 128
V_S = 96
V_P0 = 224
V_P1 = 16
V_NM = 32
V_LS = 48
V_E = 56
V_CK = 64
V_R = 65
SHIFT = 2

class Gap:
    def __init__(self, mfma):
        self.mfma = mfma; self.sh = []; self.mem = []; self.valu = []; self.post = []

def emit_gaps(p, gaps):
    for g in gaps:
        if g.mfma: p(g.mfma)
        for it in g.sh + g.mem + g.valu + g.post:
            if isinstance(it, tuple): p(it[0], it[1])
            elif isinstance(it, str): p(it)
            else: p.items.append(it)

def slots_of(text):
    return 2 if text.split()[0] in TRANS else 1

def fill_valu(gaps, start, queue, cap=2, window=40):
    class Q: pass
    items = []
    for op in queue:
        q = Q(); q.op = op; q.mem = isinstance(op, tuple)
        ins = Ins(op[2][0]) if q.mem else Ins(op)
        q.rd = set(ins.rd); q.wr = set(ins.wr); q.slots = 1 if q.mem else slots_of(op); q.trans = (q.slots == 2)
        items.append(q)
    ready_at = {}
    pend = list(items)
    for gi in range(start, len(gaps)):
        g = gaps[gi]
        used = len(g.mem) + sum(slots_of(v) for v in g.valu)
        while pend and used < cap:
            best = None
            blocked_w = set(); blocked_r = set()
            cands = []
            for q in pend[:window]:
                dep = (q.rd & blocked_w) or (q.wr & blocked_w) or (q.wr & blocked_r)
                if not dep and all(ready_at.get(r, -1) <= gi for r in q.rd):
                    if q.mem:
                        if not g.valu and len(g.sh) <= 1: cands.append(q)
                    elif used + q.slots <= cap: cands.append(q)
                blocked_w |= q.wr; blocked_r |= q.rd
            if not cands: break
            mems = [q for q in cands if q.mem]; tr = [q for q in cands if q.trans]
            if mems and used == 1: best = mems[0]
            elif tr: best = tr[0]
            else: best = cands[0]
            if best.mem:
                g.sh += best.op[1]; g.mem.append(best.op[2])
            else:
                g.valu.append(best.op)
                for r in best.wr: ready_at[r] = gi + 1
            used += best.slots
            pend.remove(best)
        if not pend: break
    return [q.op for q in pend]

def gen_k12(dbg_stop=None):
    pro = Prog(); p = pro
    p("s_cmp_ge_u32 s2, 256"); p("s_cbranch_scc1 L_k12_done")
    p(f"s_load_dwordx4 s[64:67], s[0:1], {ARG['k']}")
    p(f"s_load_dwordx2 s[68:69], s[0:1], {ARG['wq']}")
    p(f"s_load_dwordx4 s[72:75], s[0:1], {ARG['wg']}")
    p(f"s_load_dwordx2 s[70:71], s[0:1], {ARG['ws']}")
    p("v_lshrrev_b32 v16, 6, v0"); p("v_and_b32 v17, 63, v0")
    p(f"v_readfirstlane_b32 s{S_WAVE}, v16")
    p(f"s_and_b32 s{S_T0}, s2, 7"); p(f"s_lshr_b32 s{S_T1}, s2, 3")
    p(f"s_and_b32 s{S_RB}, s{S_T1}, 7"); p(f"s_lshr_b32 s{S_T1}, s{S_T1}, 3"); p(f"s_lshl_b32 s{S_J}, s{S_T0}, 2"); p(f"s_add_u32 s{S_J}, s{S_J}, s{S_T1}")
    p(f"v_lshlrev_b32 v{V_L16}, 4, v17")
    p("v_lshrrev_b32 v18, 2, v17"); p("v_and_b32 v19, 3, v17"); p("v_lshrrev_b32 v20, 4, v17"); p("v_and_b32 v21, 3, v18"); p("v_and_b32 v22, 15, v17")
    p("v_lshrrev_b32 v23, 5, v17"); p("v_lshlrev_b32 v23, 1, v23"); p("v_xor_b32 v23, v23, v19")
    p(f"v_mul_u32_u24 v24, 9216, v18"); p(f"v_lshl_add_u32 v{V_WF}, v23, 4, v24")
    p(f"v_lshlrev_b32 v24, 13, v18"); p(f"v_lshl_add_u32 v{V_WQ}, v19, 4, v24")
    p(f"s_lshl_b32 s{S_W1K}, s{S_WAVE}, 10"); p(f"s_mul_i32 s{S_W3K}, s{S_WAVE}, 3072")
    p(f"s_mul_i32 s{S_WROWF}, s{S_WAVE}, {48*9216}"); p(f"s_mul_i32 s{S_WROWQ}, s{S_WAVE}, {48*8192}")
    p(f"s_and_b32 s{S_T2}, s{S_J}, 1")
    p(f"s_mul_i32 s{S_FCOL}, s{S_J}, 288"); p(f"s_lshl_b32 s{S_T0}, s{S_T2}, 5"); p(f"s_add_u32 s{S_FCOL}, s{S_FCOL}, s{S_T0}")
    p(f"s_lshr_b32 s{S_T0}, s{S_J}, 1"); p(f"s_mul_i32 s{S_HCOL}, s{S_T0}, 576"); p(f"s_add_u32 s{S_HCOL}, s{S_HCOL}, 256")
    p(f"s_lshl_b32 s{S_QCOL}, s{S_J}, 8")
    p("s_waitcnt lgkmcnt(0)")
    srd(p, S_WG, 72, 576 * 9216); srd(p, S_WU, 74, 576 * 9216); srd(p, S_XN, 70, XN_BYTES, XN_OFF)
    p(f"s_lshl_b32 s{S_T0}, s{S_RB}, 4"); p(f"s_lshl_b32 s{S_T1}, s{S_WAVE}, 2"); p(f"s_add_u32 s{S_T0}, s{S_T0}, s{S_T1}")
    p(f"s_mul_i32 s{S_XB}, s{S_T0}, 18432")
    p(f"s_mul_i32 s{S_HBASE}, s{S_T0}, {144*1024}"); p(f"s_lshl_b32 s{S_OBASE}, s{S_T0}, 17")

    steps = [("h", 0)] + [("f", t) for t in range(4)] + [("q", t) for t in range(2)]
    NST = len(steps) * 3
    def w_dma(st):
        kind, t = steps[st // 3]; sub = st % 3; slot = st % 4
        ops = []
        for reg in range(2):
            for i in range(3):
                if kind == "q":
                    col, srow, stride, srdn, vo = S_QCOL, S_WROWQ, 8192, S_WQ, V_WQ
                    cadd = t * 128 + reg * 64
                else:
                    col, srow, stride, srdn, vo = (S_HCOL if kind == "h" else S_FCOL), S_WROWF, 9216, (S_WG, S_WU)[reg], V_WF
                    cadd = t * 64
                imm = (sub * 192 + 16 * i) * stride + cadd
                tmp = (S_T0, S_T1)[len(ops) % 2]
                sal = [f"s_add_u32 s{tmp}, s{srow}, s{col}", f"s_add_u32 s{tmp}, s{tmp}, {imm}",
                       f"s_add_u32 m0, s{S_W3K}, {WSLOT[slot] + reg*12288 + i*1024}"]
                ops.append((sal, (f"buffer_load_dwordx4 v{vo}, s[{srdn}:{srdn+3}], s{tmp} offen lds", f"W{st}")))
        return ops
    def x_loads(k0, k1):
        ops = []
        for ks in range(k0, k1):
            for mt in range(4):
                tmp = (S_T0, S_T1)[len(ops) % 2]
                ops.append(([f"s_add_u32 s{tmp}, s{S_XB}, {mt*18432 + ks*1024}"],
                            (f"buffer_load_dwordx4 {xreg(ks, mt)}, v{V_L16}, s[{S_XN}:{S_XN+3}], s{tmp} offen", f"X{ks//3}")))
        return ops
    def kv_dma(which, tile_slot, soff, add):
        ops = []
        for t in range(4):
            tmp = (S_T0, S_T1)[t % 2]
            base = (0 if which == "K" else 65536) + tile_slot * 16384 + t * 4096
            srdn = S_K if which == "K" else S_V
            if soff is None: sal = [f"s_mov_b32 s{tmp}, {add + t*4096}"]
            else: sal = [f"s_add_u32 s{tmp}, s{soff}, {add + t*4096}"]
            sal.append(f"s_add_u32 m0, s{S_W1K}, {base}")
            ops.append((sal, (f"buffer_load_dwordx4 v{V_KD if which == 'K' else V_VD}, s[{srdn}:{srdn+3}], s{tmp} offen lds", f"{which}{tile_slot}")))
        return ops
    def issue(ops):
        for sal, op in ops:
            for s in sal: p(s)
            p("s_nop 0"); p(op[0], op[1])
    issue(w_dma(0)); issue(x_loads(0, 6)); issue(w_dma(1)); issue(x_loads(6, 12))
    srd(p, S_WQ, 68, 576 * 8192); srd(p, S_H, 70, H_BYTES, H_OFF); srd(p, S_O, 70, O_BYTES, O_OFF)
    p(f"s_lshr_b32 s{S_T0}, s{S_J}, 1"); p(f"s_lshl_b32 s{S_T0}, s{S_T0}, 19")
    for d, b in ((S_K, 64), (S_V, 66)):
        p(f"s_add_u32 s{d}, s{b}, s{S_T0}"); p(f"s_addc_u32 s{d+1}, s{b+1}, 0"); p(f"s_mov_b32 s{d+2}, 524288"); p(f"s_mov_b32 s{d+3}, 0x20000")
    p(f"s_lshl_b32 s{S_T0}, s{S_HCOL}, 4"); p(f"s_add_u32 s{S_HHALF}, s{S_HBASE}, s{S_T0}"); p(f"s_lshl_b32 s{S_T0}, s{S_T2}, 3"); p(f"s_add_u32 s{S_HHALF}, s{S_HHALF}, s{S_T0}")
    p(f"s_lshl_b32 s{S_T0}, s{S_FCOL}, 4"); p(f"s_add_u32 s{S_HBASE}, s{S_HBASE}, s{S_T0}")
    p(f"s_lshl_b32 s{S_T0}, s{S_J}, 12"); p(f"s_add_u32 s{S_OBASE}, s{S_OBASE}, s{S_T0}")
    p(f"s_mov_b32 s{S_THR}, {f2u(THRESH)}")
    p("v_lshl_add_u32 v23, v20, 3, v21"); p("v_lshlrev_b32 v23, 6, v23")
    p("v_and_b32 v24, 1, v20"); p("v_lshlrev_b32 v24, 5, v24")
    p("v_lshl_add_u32 v25, v19, 3, v23")
    p(f"v_add_u32 v{V_RA}, v25, v24"); p(f"v_add_u32 v{V_RA}, {40*1024}, v{V_RA}")
    p(f"v_xor_b32 v{V_RA+1}, 32, v{V_RA}")
    p(f"v_add_u32 v{V_RA+2}, {64*1024}, v{V_RA}"); p(f"v_add_u32 v{V_RA+3}, {64*1024}, v{V_RA+1}")
    p(f"s_lshl_b32 s{S_T0}, s{S_T2}, 5")
    p(f"v_xor_b32 v{V_RH}, s{S_T0}, v{V_RA}"); p(f"v_add_u32 v{V_RH+1}, {64*1024}, v{V_RH}")
    p(f"v_lshl_add_u32 v{V_RQ}, v19, 4, v23"); p(f"v_add_u32 v{V_RQ}, {40*1024}, v{V_RQ}"); p(f"v_add_u32 v{V_RQ+1}, {64*1024}, v{V_RQ}")
    p(f"v_mov_b32 v{V_C1}, {f2u(GC1)}"); p(f"v_mov_b32 v{V_C2}, {f2u(GC2)}")
    p(f"s_lshl_b32 s{S_T0}, s{S_WAVE}, 2"); p(f"v_add_u32 v23, s{S_T0}, v20")
    p(f"v_xor_b32 v24, v22, v23"); p(f"v_lshlrev_b32 v24, 4, v24"); p(f"v_lshl_add_u32 v{V_KD}, v23, 8, v24")
    p(f"v_and_b32 v24, 7, v23"); p(f"v_lshlrev_b32 v24, 1, v24"); p(f"v_xor_b32 v24, v22, v24"); p(f"v_lshlrev_b32 v24, 4, v24"); p(f"v_lshl_add_u32 v{V_VD}, v23, 8, v24")
    for ks in range(4):
        p(f"v_add_u32 v23, {4*ks}, v20"); p("v_xor_b32 v23, v23, v22"); p("v_lshlrev_b32 v23, 4, v23"); p(f"v_lshl_add_u32 v{V_KA+ks}, v22, 8, v23")
    p("v_and_b32 v24, 7, v18"); p("v_lshlrev_b32 v25, 8, v18"); p("v_lshl_add_u32 v25, v19, 3, v25"); p("v_add_u32 v25, 0x10000, v25")
    for dt in range(8):
        p(f"v_xor_b32 v23, {dt}, v24"); p(f"v_lshl_add_u32 v{V_VA+dt}, v23, 5, v25")

    groups = []
    for st in range(NST):
        kind, t = steps[st // 3]
        nts = [0, 2] if kind == "h" else [0, 1, 2, 3]
        for c0 in (0, 3):
            for nt in nts: groups.append((st, nt, c0))
    def a_reads(gi):
        st, nt, c0 = groups[gi]; kind, t = steps[st // 3]
        hb, off = wbase(st % 4)
        reg = nt >> 1
        if kind == "f": addr, extra = V_RA + 2 * hb + (nt & 1), 0
        elif kind == "h": addr, extra = V_RH + hb, 0
        else: addr, extra = V_RQ + hb, 8 * (nt & 1)
        out = []
        for c in range(3):
            for tt in range(2):
                d = V_AF + (gi % 3) * 12 + c * 4 + 2 * tt
                out.append((f"ds_read_b64_tr_b16 v[{d}:{d+1}], v{addr} offset:{off + reg*12288 + (c0+c)*2048 + tt*256 + extra}", f"A{gi%3}"))
        return out
    acc = lambda buf, nt, mt: V_ACC + buf * 64 + (nt * 4 + mt) * 4
    gaps = []; gstart = []
    for gi, (st, nt, c0) in enumerate(groups):
        gstart.append(len(gaps))
        buf = (st // 3) % 2; sub = st % 3
        for mt in range(4):
            for c in range(3):
                a = acc(buf, nt, mt); af = V_AF + (gi % 3) * 12 + c * 4
                C = "0" if (sub == 0 and c0 == 0 and c == 0) else f"v[{a}:{a+3}]"
                gaps.append(Gap(f"v_mfma_f32_16x16x32_bf16 v[{a}:{a+3}], v[{af}:{af+3}], {xreg(sub*6+c0+c, mt)}, {C}"))
    NG = len(groups)
    first_of_stage = {}
    for gi, (st, nt, c0) in enumerate(groups): first_of_stage.setdefault(st, gi)
    bar_gap = {}
    for gi in range(2, NG):
        st = groups[gi][0]; f = first_of_stage[st]
        rd = a_reads(gi)
        if gi == f:
            g0 = gstart[gi - 1]
            bar_gap[st] = g0 - 1
            for n, r in enumerate(rd): gaps[g0 + n].mem.append(r)
        elif gi == f + 1:
            g0 = gstart[gi - 2]
            for n, r in enumerate(rd): gaps[g0 + 6 + n].mem.append(r)
        else:
            g0 = gstart[gi - 2]
            for n, r in enumerate(rd): gaps[g0 + 2 * n].mem.append(r)
    for gi in range(1, NG):
        g = gaps[gstart[gi] - 1]
        st, nt, c0 = groups[gi]
        vm = []
        if st < 3: vm.append(f"X{(st*6+c0)//3}")
        nxt = groups[gi + 1][0] if gi + 1 < NG else None
        if nxt is not None and nxt != st:
            g.sh.append(WaitFor(vm=vm + [f"W{nxt}"], lg0=True)); g.sh.append("s_barrier")
        else:
            g.sh.append(WaitFor(lg=(f"A{gi%3}",), vm=vm))
    def place_mem(ops, g0, g1):
        cand = []
        for g in range(g0 + 2, g1):
            if len(gaps[g].mem) == 1 and len(gaps[g-1].sh) == 0 and len(gaps[g].sh) == 0 and (not cand or g - cand[-1] >= 2): cand.append(g)
        if len(cand) >= len(ops):
            stepf = len(cand) / len(ops)
            for n, (sal, op) in enumerate(ops):
                g = cand[int(n * stepf)]
                gaps[g - 1].sh += sal; gaps[g].mem.append(op)
        else:
            cand = list(range(g0 + 1, g1)); stepf = len(cand) / len(ops); assert stepf >= 1
            for n, (sal, op) in enumerate(ops):
                g = cand[int(n * stepf)]
                gaps[g].post += sal + ["s_nop 0", op]
    for st in range(NST):
        g0 = gstart[first_of_stage[st]]
        g1 = bar_gap[st + 1] if st + 1 < NST else len(gaps)
        ops = []
        if st == 0: ops = w_dma(2) + x_loads(12, 15)
        elif st == 1: ops = x_loads(15, 18) + w_dma(3) + w_dma(4)
        elif st + 3 < NST: ops = w_dma(st + 3)
        if st == 14: ops += kv_dma("K", 0, None, 0)
        if st == 15: ops += kv_dma("V", 0, None, 0)
        if st == 16: ops += kv_dma("K", 1, None, 16384)
        if st == 18: ops += kv_dma("V", 1, None, 16384)
        if st == 19: ops += kv_dma("K", 2, None, 32768)
        if ops: place_mem(ops, g0, g1)
    def ffn_epi(si):
        kind, t = steps[si]; buf = si % 2
        q = []
        for mt in range(4):
            if kind == "f": el = [(acc(buf, n, mt) + r, acc(buf, 2 + n, mt) + r) for n in range(2) for r in range(4)]
            else: el = [(acc(buf, 0, mt) + r, acc(buf, 2, mt) + r) for r in range(4)]
            T = V_T + 8 * (mt % 2)
            for e, (g, u) in enumerate(el): q.append(f"v_mul_f32 v{T+e}, v{g}, v{g}")
            for e, (g, u) in enumerate(el): q.append(f"v_fma_f32 v{T+e}, v{T+e}, v{V_C2}, v{V_C1}")
            for e, (g, u) in enumerate(el): q.append(f"v_mul_f32 v{T+e}, v{T+e}, v{g}")
            for e, (g, u) in enumerate(el):
                q.append(f"v_exp_f32 v{T+e}, v{T+e}"); q.append(f"v_mul_f32 v{g}, v{g}, v{u}")
            for e, (g, u) in enumerate(el): q.append(f"v_add_f32 v{T+e}, 1.0, v{T+e}")
            for e, (g, u) in enumerate(el):
                q.append(f"v_rcp_f32 v{T+e}, v{T+e}")
                if e >= 1: q.append(f"v_mul_f32 v{el[e-1][0]}, v{el[e-1][0]}, v{T+e-1}")
            e = len(el) - 1
            o = V_HO + 4 * (mt % 2)
            q.append(f"v_cvt_pk_bf16_f32 v{o}, v{el[0][0]}, v{el[1][0]}")
            q.append(f"v_mul_f32 v{el[e][0]}, v{el[e][0]}, v{T+e}")
            for i in range(1, len(el) // 2): q.append(f"v_cvt_pk_bf16_f32 v{o+i}, v{el[2*i][0]}, v{el[2*i+1][0]}")
            if kind == "f":
                q.append(("MEM", [f"s_add_u32 s{S_T2}, s{S_HBASE}, {mt*144*1024 + t*1024}"], (f"buffer_store_dwordx4 v[{o}:{o+3}], v{V_L16}, s[{S_H}:{S_H+3}], s{S_T2} offen", None)))
            else:
                q.append(("MEM", [f"s_add_u32 s{S_T2}, s{S_HHALF}, {mt*144*1024}"], (f"buffer_store_dwordx2 v[{o}:{o+1}], v{V_L16}, s[{S_H}:{S_H+3}], s{S_T2} offen", None)))
        return q
    def q_epi(si):
        kind, t = steps[si]; buf = si % 2
        q1 = []; q2 = []
        for mt in range(4):
            for reg in range(2):
                rs = [acc(buf, 2 * reg, mt) + r for r in range(4)] + [acc(buf, 2 * reg + 1, mt) + r for r in range(4)]
                for r in rs: q1.append(f"v_mul_f32 v{r}, {f2u(QSCALE)}, v{r}")
                for i in range(4): q1.append(f"v_cvt_pk_bf16_f32 v{rs[2*i]}, v{rs[2*i]}, v{rs[2*i+1]}")
                for i in range(4): q2.append(f"v_accvgpr_write_b32 a{A_Q + (mt*4 + 2*t + reg)*4 + i}, v{rs[2*i]}")
        return q1, q2
    for si in range(5):
        g0 = gstart[first_of_stage[3 * (si + 1)]] + 3
        g1 = gstart[first_of_stage[3 * (si + 2)]] - 3 if 3 * (si + 2) < NST else len(gaps)
        left = fill_valu(gaps[:g1], g0, ffn_epi(si))
        assert not left, (si, len(left))
    q1, q2 = q_epi(5)
    left = fill_valu(gaps, gstart[first_of_stage[18]] + 3, q1); assert not left
    left = fill_valu(gaps, gstart[first_of_stage[19]] + 3, q2); assert not left
    left = fill_valu(gaps, gstart[first_of_stage[20]] + 3, [f"v_accvgpr_write_b32 a{A_O+i}, 0" for i in range(64)]); assert not left
    p.items.append(WaitFor(vm=("W0", "X0"))); p("s_barrier")
    for t, tag in a_reads(0) + a_reads(1): p(t, tag)
    p.items.append(WaitFor(lg=("A0",)))
    emit_gaps(p, gaps)

    Sreg = lambda par, kt, qt: V_S + par * 64 + (kt * 4 + qt) * 4
    Preg = lambda par, kb, qt: (V_P0 + par * 16 + qt * 4) if kb == 0 else (V_P1 + qt * 4)
    Kf = lambda kt, ks: A_KF + (kt % 2) * 16 + ks * 4
    Vf = lambda dt, kb: A_VF + (dt % 4) * 8 + kb * 4
    def k_reads(slot, kt):
        return [(f"ds_read_b128 a[{Kf(kt,ks)}:{Kf(kt,ks)+3}], v{V_KA+ks} offset:{slot*16384 + kt*4096}", f"KF{kt%2}") for ks in range(4)]
    def v_reads(slot, dt):
        return [(f"ds_read_b64_tr_b16 a[{Vf(dt,kb)+2*t}:{Vf(dt,kb)+2*t+1}], v{V_VA+dt} offset:{slot*16384 + kb*8192 + t*4096}", f"VF{dt%4}") for kb in range(2) for t in range(2)]
    def qk_mfma(par, kt, qt, ks, zero=False):
        s = Sreg(par, kt, qt)
        C = f"v[{s}:{s+3}]" if ks else ("0" if zero else f"v[{V_NM+4*qt}:{V_NM+4*qt+3}]")
        qf = A_Q + (qt * 4 + ks) * 4
        return f"v_mfma_f32_16x16x32_bf16 v[{s}:{s+3}], a[{Kf(kt,ks)}:{Kf(kt,ks)+3}], a[{qf}:{qf+3}], {C}"
    def pv_mfma(par, dt, qt, kb):
        o = A_O + (dt * 4 + qt) * 4; pr = Preg(par, kb, qt)
        return f"v_mfma_f32_16x16x32_bf16 a[{o}:{o+3}], a[{Vf(dt,kb)}:{Vf(dt,kb)+3}], v[{pr}:{pr+3}], a[{o}:{o+3}]"
    def elem(par, tau):
        kb = tau // 32; qt = (tau % 32) // 8; j = tau % 8
        return Sreg(par, 2 * kb + (j >> 2), qt) + (j & 3), kb, qt, j
    def op_exp(par, tau): return f"v_exp_f32 v{V_E + tau % 8}, v{elem(par, tau)[0]}"
    def op_add(par, tau):
        s, kb, qt, j = elem(par, tau)
        src = V_LS + (1 - par) * 4 + qt if (kb == 0 and j == 0) else V_LS + par * 4 + qt
        return f"v_add_f32 v{V_LS + par*4 + qt}, v{src}, v{V_E + tau % 8}"
    def op_cvt(par, tau):
        s, kb, qt, j = elem(par, tau)
        return f"v_cvt_pk_bf16_f32 v{Preg(par, kb, qt) + j//2}, v{V_E + (tau-1) % 8}, v{V_E + tau % 8}"
    def rowmax(p, par, qt, dst, t1):
        regs = [Sreg(par, kt, qt) + r for kt in range(4) for r in range(4)]
        p(f"v_max3_f32 v{dst}, v{regs[0]}, v{regs[1]}, v{regs[2]}")
        for i in range(3, 15, 2): p(f"v_max3_f32 v{dst}, v{dst}, v{regs[i]}, v{regs[i+1]}")
        p(f"v_max_f32 v{dst}, v{dst}, v{regs[15]}")
    def xlane(p, op, dst, t1):
        p(f"v_mov_b32 v{t1}, v{dst}"); p(f"v_permlane32_swap_b32 v{dst}, v{t1}"); p(f"{op} v{dst}, v{dst}, v{t1}")
        p(f"v_mov_b32 v{t1}, v{dst}"); p(f"v_permlane16_swap_b32 v{dst}, v{t1}"); p(f"{op} v{dst}, v{dst}, v{t1}")

    p.items.append(WaitFor(vm=("K0", "K1", "V0"), lg0=True)); p("s_barrier")
    for t, tag in k_reads(0, 0) + k_reads(0, 1): p(t, tag)
    for sal, op in kv_dma("K", 3, None, 3 * 16384) + kv_dma("V", 2, None, 2 * 16384):
        for s in sal: p(s)
        p("s_nop 0"); p(op[0], op[1])
    q1, q2 = q_epi(6)
    for t in q1 + q2: p(t)
    p(f"s_mov_b32 s{S_KOFF}, {4*16384}"); p(f"s_mov_b32 s{S_VOFF}, {3*16384}"); p(f"s_mov_b32 s{S_CNT}, 8")
    g0 = []
    for kt in range(4):
        for qt in range(4):
            for ks in range(4): g0.append(Gap(qk_mfma(0, kt, qt, ks, zero=True)))
    for n, r in enumerate(k_reads(0, 2)): g0[16 + 2 * n].mem.append(r)
    for n, r in enumerate(k_reads(0, 3)): g0[32 + 2 * n].mem.append(r)
    for n, r in enumerate(k_reads(1, 0)): g0[48 + 2 * n].mem.append(r)
    g0[31].sh.append(WaitFor(lg=("KF0",))); g0[47].sh.append(WaitFor(lg=("KF1",)))
    left = fill_valu(g0, 0, [f"v_accvgpr_write_b32 a{A_O+64+i}, 0" for i in range(64)] + [f"v_mov_b32 v{V_LS+4+q}, 0" for q in range(4)]); assert not left
    p.items.append(WaitFor(lg=("KF0", "KF1")))
    emit_gaps(p, g0)
    for t, tag in k_reads(1, 1): p(t, tag)
    for qt in range(4):
        rowmax(p, 0, qt, V_R + qt, V_R + 4)
    for qt in range(4):
        xlane(p, "v_max_f32", V_R + qt, V_R + 4 + qt)
    for qt in range(4):
        for r in range(4): p(f"v_sub_f32 v{V_NM+4*qt+r}, 0, v{V_R+qt}")
        for kt in range(4):
            for r in range(4): p(f"v_sub_f32 v{Sreg(0,kt,qt)+r}, v{Sreg(0,kt,qt)+r}, v{V_R+qt}")
    for tau in range(32 + SHIFT):
        p(op_exp(0, tau))
        if tau >= 1:
            p(op_add(0, tau - 1))
            if (tau - 1) % 2 == 1: p(op_cvt(0, tau - 1))
    tau = 32 + SHIFT - 1
    p("s_nop 0"); p(op_add(0, tau))
    if tau % 2 == 1: p(op_cvt(0, tau))
    p.items.append(WaitFor(lg=("KF0",)))

    body = Prog(); p = body
    p.label("L_att_loop", 6)
    for it in range(4):
        par = it % 2
        G = []
        for kt in range(4):
            for qt in range(4):
                for ks in range(4): G.append(Gap(qk_mfma(1 - par, kt, qt, ks)))
        for dt in range(8):
            for qt in range(4):
                for kb in range(2): G.append(Gap(pv_mfma(par, dt, qt, kb)))
        for b in range(64):
            if b < 32 - SHIFT: sp, tau = par, 32 + SHIFT + b
            else: sp, tau = 1 - par, b - (32 - SHIFT)
            G[2 * b].valu.append(op_exp(sp, tau))
            if 32 - SHIFT <= b < 32:
                tgt = G[2 * (b + SHIFT) + 1]
                tgt.valu.append(op_add(sp, tau))
                if tau % 2 == 1: tgt.valu.append(op_cvt(sp, tau))
        for b in range(64):
            if b < 32 - SHIFT: sp, tau = par, 32 + SHIFT + b
            else: sp, tau = 1 - par, b - (32 - SHIFT)
            if 32 - SHIFT <= b < 32: continue
            G[2 * b + 1].valu.append(op_add(sp, tau))
            if tau % 2 == 1: G[2 * b + 1].valu.append(op_cvt(sp, tau))
        L = V_LS + par * 4
        G[2 * (32 - SHIFT) + 1].valu += [f"v_max3_f32 v{V_CK}, v{L}, v{L+1}, v{L+2}", f"v_max_f32 v{V_CK}, v{V_CK}, v{L+3}"]
        G[63].valu += [f"v_cmp_lt_f32 vcc, s{S_THR}, v{V_CK}"] if SHIFT == 2 else []
        G[63].post += [f"s_cbranch_vccnz L_rare_stub{it}", Label(f"L_rare_ret{it}")]
        kslot1, kslot2, vslot = (it + 1) % 4, (it + 2) % 4, it % 4
        def put(b0, ops):
            for n, r in enumerate(ops): G[2 * (b0 + n) + 1].mem.append(r)
        put(0, v_reads(vslot, 0)); put(4, v_reads(vslot, 1)); put(8, k_reads(kslot1, 2)); put(12, v_reads(vslot, 2))
        put(16, k_reads(kslot1, 3)); put(20, v_reads(vslot, 3))
        put(36, v_reads(vslot, 4)); put(40, v_reads(vslot, 5)); put(44, v_reads(vslot, 6)); put(48, v_reads(vslot, 7))
        put(52, k_reads(kslot2, 0)); put(56, k_reads(kslot2, 1))
        G[64].sh += [WaitFor(vm=(f"K{kslot2}", f"V{(it+1)%4}")), "s_barrier"]
        dv = kv_dma("V", (it + 3) % 4, S_VOFF, 0); dk = kv_dma("K", it % 4, S_KOFF, 0)
        for n, (sal, op) in enumerate(dk + dv):
            b = (34, 35, 60, 61, 62, 63)[n] if n < 6 else None
            if b is None: continue
            G[2 * b].sh += sal; G[2 * b + 1].mem.append(op)
        dvp = kv_dma("V", (it + 2) % 4, S_VOFF, -16384)
        for n, b in ((2, 24), (3, 26)):
            sal, op = dvp[n]
            G[2 * b].sh += sal; G[2 * b + 1].mem.append(op)
        G[127].sh += [f"s_add_u32 s{S_KOFF}, s{S_KOFF}, 16384", f"s_add_u32 s{S_VOFF}, s{S_VOFF}, 16384"]
        G[15].sh.append(WaitFor(lg=("KF1",))); G[31].sh.append(WaitFor(lg=("KF0",))); G[47].sh.append(WaitFor(lg=("KF1",)))
        G[62].sh.append(WaitFor(lg=("VF0", "VF1", "VF2", "VF3")))
        for dt in range(4, 8): G[64 + 8 * dt - 1].sh.append(WaitFor(lg=(f"VF{dt%4}",)))
        G[125].sh.append(WaitFor(lg=("KF0",)))
        if it == 3:
            G[126].sh.append(f"s_sub_u32 s{S_CNT}, s{S_CNT}, 1")
            G[127].post += [f"s_cmp_lg_u32 s{S_CNT}, 0", "s_cbranch_scc1 L_att_loop"]
        emit_gaps(p, G)

    epi = Prog(); p = epi
    for qt in range(4): xlane(p, "v_add_f32", V_LS + 4 + qt, V_R + qt)
    for qt in range(4): p(f"v_rcp_f32 v{V_LS+4+qt}, v{V_LS+4+qt}")
    n = 0
    for qt in range(4):
        for s in range(4):
            T = V_S + (n % 4) * 8
            for h in range(2):
                o = A_O + ((2 * s + h) * 4 + qt) * 4
                for r in range(4): p(f"v_accvgpr_read_b32 v{T+4*h+r}, a{o+r}")
            for i in range(8): p(f"v_mul_f32 v{T+i}, v{T+i}, v{V_LS+4+qt}")
            D = V_S + 32 + (n % 4) * 4
            for i in range(4): p(f"v_cvt_pk_bf16_f32 v{D+i}, v{T+2*i}, v{T+2*i+1}")
            if s == 0: p(f"s_add_u32 s{S_T0}, s{S_OBASE}, {qt*131072}")
            p(f"buffer_store_dwordx4 v[{D}:{D+3}], v{V_L16}, s[{S_O}:{S_O+3}], s{S_T0} offen offset:{s*1024}")
            n += 1
    p.label("L_k12_done"); p("s_endpgm")

    rare = Prog(); p = rare
    for it in range(4):
        p.label(f"L_rare_stub{it}")
        p(f"s_call_b64 s[{S_RET}:{S_RET+1}], L_rare{it%2}")
        p(f"s_branch L_rare_ret{it}")
    rare_items = fix_hazards(rare.items)[0]
    for par in range(2):
        rp = Prog(); p = rp
        p.label(f"L_rare{par}")
        p("s_nop 15")
        Lold = V_LS + (1 - par) * 4
        for qt in range(4):
            rowmax(p, par, qt, V_R + qt, V_R + 4)
            p(f"v_log_f32 v{V_R+4}, v{Lold+qt}")
            p(f"v_max3_f32 v{V_R+qt}, v{V_R+qt}, v{V_R+4}, 0")
        for qt in range(4): xlane(p, "v_max_f32", V_R + qt, V_R + 4 + qt)
        for qt in range(4):
            p(f"v_sub_f32 v{V_R+4+qt}, 0, v{V_R+qt}"); p(f"v_exp_f32 v{V_R+4+qt}, v{V_R+4+qt}")
        for qt in range(4):
            p(f"v_mul_f32 v{Lold+qt}, v{Lold+qt}, v{V_R+4+qt}")
            for r in range(4): p(f"v_sub_f32 v{V_NM+4*qt+r}, v{V_NM+4*qt+r}, v{V_R+qt}")
            for pp in range(2):
                for kt in range(4):
                    for r in range(4): p(f"v_sub_f32 v{Sreg(pp,kt,qt)+r}, v{Sreg(pp,kt,qt)+r}, v{V_R+qt}")
            for dt in range(8):
                o = A_O + (dt * 4 + qt) * 4
                for r in range(4): p(f"v_accvgpr_read_b32 v{V_E+r}, a{o+r}")
                for r in range(4): p(f"v_mul_f32 v{V_E+r}, v{V_E+r}, v{V_R+4+qt}")
                for r in range(4): p(f"v_accvgpr_write_b32 a{o+r}, v{V_E+r}")
        for tau in range(64):
            p(op_exp(par, tau)); p(op_add(par, tau))
            if tau % 2 == 1: p(op_cvt(par, tau))
        for tau in range(SHIFT): p(op_exp(1 - par, tau))
        p("s_nop 3")
        p(f"s_setpc_b64 s[{S_RET}:{S_RET+1}]")
        rare_items += fix_hazards(rp.items)[0]

    resolve_waits(pro.items + body.items + body.items)
    pi = lower_waits(pro.items); bi = lower_waits(body.items)
    pi, a1 = fix_hazards(pi, verbose=True, name="k12pro")
    bi2, a2 = fix_hazards(bi, prev=bi, verbose=True, name="k12body")
    bi3, a3 = fix_hazards(bi2, prev=pi, verbose=True, name="k12body-entry")
    wc = WaitChecker(); wc.run(pi + bi3 + bi3 + epi.items)
    for e in wc.errors[:10]: print("K12 WAITCHECK", e)
    ei, _ = fix_hazards(epi.items, prev=bi3, name="k12epi")
    return pi + bi3 + ei + rare_items, 512, 256
```

```python
from common import *
K3_LDS = 4 * 36864
def gen_k3():
    pro = Prog(); p = pro
    p("s_cmp_ge_u32 s2, 256"); p("s_cbranch_scc1 L_k3_done")
    p(f"s_load_dwordx2 s[4:5], s[0:1], {ARG['wo']}"); p(f"s_load_dwordx2 s[32:33], s[0:1], {ARG['wd']}"); p(f"s_load_dwordx2 s[6:7], s[0:1], {ARG['ws']}")
    p("v_lshrrev_b32 v15, 6, v0"); p("v_and_b32 v1, 63, v0")
    p("v_readfirstlane_b32 s20, v15")
    p("s_and_b32 s34, s2, 7"); p("s_lshr_b32 s35, s2, 3")
    p("s_lshr_b32 s21, s34, 1")
    p("s_and_b32 s22, s34, 1"); p("s_lshl_b32 s22, s22, 3"); p("s_lshr_b32 s36, s35, 2"); p("s_add_u32 s22, s22, s36")
    p("s_and_b32 s23, s35, 3")
    p("s_mov_b32 s37, 3641")
    p("s_movk_i32 s38, 1152")
    for i in range(9):
        p(f"v_add_u32 v16, {64*i}, v1")
        p("v_mul_u32_u24 v17, s37, v16"); p("v_lshrrev_b32 v17, 16, v17")
        p("v_mul_u32_u24 v18, 18, v17"); p("v_sub_u32 v18, v16, v18")
        p("v_mul_u32_u24 v17, s38, v17")
        p(f"v_lshl_add_u32 v{2+i}, v18, 4, v17")
    p("v_lshrrev_b32 v16, 2, v1"); p("s_movk_i32 s38, 288"); p("v_mul_u32_u24 v16, s38, v16")
    p("v_and_b32 v17, 3, v1"); p("v_lshl_add_u32 v11, v17, 3, v16")
    for s in range(1, 4): p(f"v_add_u32 v{11+s}, {s*36864}, v11")
    p("v_lshlrev_b32 v1, 4, v1")
    p("s_waitcnt lgkmcnt(0)")
    p("s_cmp_lt_u32 s21, 2")
    p("s_cselect_b32 s8, s4, s32"); p("s_cselect_b32 s9, s5, s33")
    p(f"s_cselect_b32 s10, {4096*1152}, s10"); p(f"s_mov_b32 s39, {4608*1152}"); p("s_cselect_b32 s10, s10, s39"); p("s_mov_b32 s11, 0x20000")
    p(f"s_mov_b32 s39, {H_OFF}"); p(f"s_cselect_b32 s39, {O_OFF}, s39")
    p(f"s_mov_b32 s14, {H_BYTES}"); p(f"s_cselect_b32 s14, {O_BYTES}, s14")
    p("s_cselect_b32 s24, 16, 18")
    p("s_add_u32 s12, s6, s39"); p("s_addc_u32 s13, s7, 0"); p("s_mov_b32 s15, 0x20000")
    srd(p, 16, 6, PART_BYTES, PART_OFF)
    p("s_and_b32 s39, s21, 1"); p("s_mul_i32 s40, s39, s24"); p("s_lshl_b32 s40, s40, 2")
    p("s_lshl_b32 s41, s24, 13")
    p("s_lshl_b32 s42, s22, 3"); p("s_lshl_b32 s43, s20, 1"); p("s_add_u32 s42, s42, s43")
    p("s_mul_i32 s27, s42, s41"); p("s_lshl_b32 s43, s40, 10"); p("s_add_u32 s27, s27, s43"); p("s_add_u32 s28, s27, s41")
    p("s_add_u32 s43, s40, s20"); p(f"s_mul_i32 s26, s43, {32*1152}"); p("s_mul_i32 s43, s23, 288"); p("s_add_u32 s26, s26, s43")
    p("s_mul_i32 s30, s20, 9216")
    p("s_mov_b32 s25, s24"); p("s_mov_b32 s29, 3")
    Breg = lambda slot, ks, mt: 64 + ((slot * 4 + ks) * 2 + mt) * 4
    def vmem_ops(slot):
        ops = []
        for i in range(9):
            ops.append([(f"s_add_u32 m0, s30, {slot*36864 + i*1024}", None), (f"buffer_load_dwordx4 v{2+i}, s[8:11], s26 offen lds", f"W{slot}")])
        bl = []
        for ks in range(4):
            for mt in range(2):
                r = Breg(slot, ks, mt)
                bl.append([(f"buffer_load_dwordx4 v[{r}:{r+3}], v1, s[12:15], s{27+mt} offen offset:{ks*1024}", f"B{slot}")])
        out = []
        for i in range(9):
            out.append(ops[i])
            if i < 8: out.append(bl[i])
        return out
    adv = [f"s_add_u32 s26, s26, {128*1152}", "s_add_u32 s27, s27, 4096", "s_add_u32 s28, s28, 4096"]
    for s in range(3):
        for grp in vmem_ops(s):
            for t, tag in grp: p(t, tag)
        for t in adv: p(t)
    for i in range(72): p(f"v_accvgpr_write_b32 a{i}, 0")
    p.items.append(WaitFor(vm=("W0", "B0"))); p("s_barrier")
    def reads(gi):
        gi %= 72
        slot = gi // 18; i = gi % 18; kp = i // 9; nt = i % 9
        base = 16 + (gi % 4) * 8
        out = []
        for q in range(2):
            for t in range(2):
                d = base + q * 4 + 2 * t
                out.append((f"ds_read_b64_tr_b16 v[{d}:{d+1}], v{11+slot} offset:{(2*kp+q)*9216 + t*4608 + nt*32}", f"A{gi%4}"))
        return out
    for g in range(3):
        for t, tag in reads(g): p(t, tag)
    p.items.append(WaitFor(lg=("A0",)))
    body = Prog(); p = body
    p.label("L_k3_loop", 6)
    for s in range(4):
        vm = vmem_ops((s + 3) % 4)
        for i in range(18):
            gi = s * 18 + i; kp = i // 9; nt = i % 9
            if i < 15: rd = reads(gi + 3)
            elif i == 15: rd = []
            elif i == 16: rd = reads(gi + 2) + reads(gi + 3)
            else: rd = reads(gi + 3)
            per = (len(rd) + 3) // 4
            base = 16 + (gi % 4) * 8
            n = 0
            for mt in range(2):
                for q in range(2):
                    a = (nt * 2 + mt) * 4; b = Breg(s, 2 * kp + q, mt)
                    p(f"v_mfma_f32_16x16x32_bf16 a[{a}:{a+3}], v[{base+4*q}:{base+4*q+3}], v[{b}:{b+3}], a[{a}:{a+3}]")
                    if i == 0 and n == 0:
                        p("s_cmp_lt_u32 s29, s24"); p("s_cselect_b32 s10, s10, 0"); p("s_cselect_b32 s14, s14, 0")
                    if i == 0 and n == 1: p("s_add_u32 s29, s29, 1")
                    if i == 15 and n == 3:
                        p.items.append(WaitFor(vm=(f"W{(s+1)%4}", f"B{(s+1)%4}"), lg0=True)); p("s_barrier")
                    elif n == 3:
                        p.items.append(WaitFor(lg=(f"A{(gi+1)%4}",)))
                    if i == 17 and n < 3: p(adv[n])
                    if i == 17 and n == 3: p("s_sub_u32 s25, s25, 1")
                    vmops = []
                    if n == 2 and i < 15: vmops = vm[i]
                    if i == 15 and n in (0, 2): vmops = vm[15 + n // 2]
                    for t, tag in vmops[:-1]: p(t, tag)
                    for t, tag in rd[n*per:(n+1)*per]: p(t, tag)
                    for t, tag in vmops[-1:]: p(t, tag)
                    n += 1
        p("s_cmp_eq_u32 s25, 0")
        if s < 3: p("s_cbranch_scc1 L_k3_epi")
        else: p("s_cbranch_scc0 L_k3_loop")
    epi = Prog(); p = epi
    p.label("L_k3_epi")
    p("s_lshl_b32 s40, s21, 6"); p("s_lshl_b32 s41, s22, 2"); p("s_add_u32 s40, s40, s41"); p("s_add_u32 s40, s40, s23")
    p("s_lshl_b32 s40, s40, 2"); p("s_add_u32 s40, s40, s20"); p("s_mul_i32 s40, s40, 18432")
    p("s_nop 7")
    for j in range(18):
        if j % 4 == 0 and j: p("s_add_u32 s40, s40, 4096")
        p(f"buffer_store_dwordx4 a[{4*j}:{4*j+3}], v1, s[16:19], s40 offen offset:{(j%4)*1024}")
    p.label("L_k3_done"); p("s_endpgm")
    resolve_waits(pro.items + body.items + body.items)
    pi = lower_waits(pro.items); bi = lower_waits(body.items)
    pi, _ = fix_hazards(pi, name="k3pro")
    bi2, added = fix_hazards(bi, prev=bi, verbose=True, name="k3body")
    wc = WaitChecker(); wc.run(pi + bi2 + bi2)
    for e in wc.errors[:10]: print("K3 WAITCHECK", e)
    ei, _ = fix_hazards(epi.items, prev=bi2, name="k3epi")
    return pi + bi2 + ei, 192 + 72, 192

def gen_k4():
    p = Prog()
    p("s_cmp_ge_u32 s2, 256"); p("s_cbranch_scc1 L_k4_done")
    p(f"s_load_dwordx2 s[4:5], s[0:1], {ARG['x']}"); p(f"s_load_dwordx2 s[6:7], s[0:1], {ARG['ws']}"); p(f"s_load_dwordx2 s[20:21], s[0:1], {ARG['out']}")
    p("v_lshrrev_b32 v1, 6, v0")
    p("v_and_b32 v2, 63, v0")
    p("v_lshlrev_b32 v3, 11, v1"); p("v_lshl_add_u32 v3, v2, 4, v3")
    p("s_mul_i32 s22, s2, 18432")
    p("s_lshr_b32 s23, s2, 4"); p("s_lshl_b32 s23, s23, 7"); p("s_and_b32 s24, s2, 3"); p("s_lshl_b32 s24, s24, 5"); p("s_add_u32 s23, s23, s24")
    p("s_mul_i32 s23, s23, 1152")
    p("s_lshr_b32 s24, s2, 2"); p("s_and_b32 s24, s24, 3"); p("s_mul_i32 s24, s24, 288"); p("s_add_u32 s23, s23, s24")
    p("v_and_b32 v4, 15, v2"); p("v_mul_u32_u24 v4, 1152, v4")
    p("v_lshl_add_u32 v4, v1, 5, v4"); p("v_lshrrev_b32 v5, 4, v2"); p("v_lshl_add_u32 v4, v5, 3, v4")
    p(f"s_add_u32 s25, s23, {16*1152}")
    p("s_waitcnt lgkmcnt(0)")
    srd(p, 8, 4, XN_BYTES); srd(p, 12, 6, PART_BYTES, PART_OFF); srd(p, 16, 20, XN_BYTES)
    for mt in range(2):
        for sp in range(4):
            p(f"s_add_u32 s26, s22, {sp*64*4*18432}")
            r = 8 + (mt * 4 + sp) * 4
            p(f"buffer_load_dwordx4 v[{r}:{r+3}], v3, s[12:15], s26 offen offset:{mt*1024}")
        p(f"buffer_load_dwordx2 v[{40+2*mt}:{41+2*mt}], v4, s[8:11], s{23 if mt == 0 else 25} offen")
    p("s_mov_b32 s27, 0xffff0000")
    LOG2E = 1.4426950408889634
    def rnd2(a, b):
        p(f"v_cvt_pk_bf16_f32 v{b}, v{a}, v{b}"); p(f"v_lshlrev_b32 v{a}, 16, v{b}"); p(f"v_and_b32 v{b}, s27, v{b}")
    for mt in range(2):
        p(f"s_waitcnt vmcnt({5 if mt == 0 else 1})" if mt == 0 else "s_waitcnt vmcnt(1)")
        b = 8 + mt * 16
        for r in range(4):
            p(f"v_add_f32 v{b+r}, v{b+r}, v{b+4+r}")
            p(f"v_add_f32 v{b+8+r}, v{b+8+r}, v{b+12+r}")
        rnd2(b, b+1); rnd2(b+2, b+3); rnd2(b+8, b+9); rnd2(b+10, b+11)
        for r in range(4): p(f"v_mul_f32 v{b+4+r}, {f2u(-LOG2E)}, v{b+8+r}")
        for r in range(4): p(f"v_exp_f32 v{b+4+r}, v{b+4+r}")
        for r in range(4): p(f"v_add_f32 v{b+4+r}, 1.0, v{b+4+r}")
        for r in range(4): p(f"v_rcp_f32 v{b+4+r}, v{b+4+r}")
        for r in range(4): p(f"v_mul_f32 v{b+8+r}, v{b+8+r}, v{b+4+r}")
        rnd2(b+8, b+9); rnd2(b+10, b+11)
        for r in range(4): p(f"v_mul_f32 v{b+r}, v{b+r}, v{b+8+r}")
        rnd2(b, b+1); rnd2(b+2, b+3)
        x = 40 + 2 * mt
        p(f"v_lshlrev_b32 v{b+4}, 16, v{x}"); p(f"v_and_b32 v{b+5}, s27, v{x}")
        p(f"v_lshlrev_b32 v{b+6}, 16, v{x+1}"); p(f"v_and_b32 v{b+7}, s27, v{x+1}")
        for r in range(4): p(f"v_add_f32 v{b+r}, v{b+r}, v{b+4+r}")
        p(f"v_cvt_pk_bf16_f32 v{b}, v{b}, v{b+1}"); p(f"v_cvt_pk_bf16_f32 v{b+1}, v{b+2}, v{b+3}")
        p(f"buffer_store_dwordx2 v[{b}:{b+1}], v4, s[16:19], s{23 if mt == 0 else 25} offen")
    p.label("L_k4_done"); p("s_endpgm")
    return finish(p, "k4"), 48, 48
```

```python
import sys
from common import *
import k0, k3
HEADER = open("cdna_kernels/" + NAME + ".s.ref").read().split("; Override")[0]
def build(kernels, path):
    s = HEADER
    for (label, items, nfv, acc, grid, block, lds) in kernels:
        s += f"; @launch kernel={label} grid=({grid},1,1) block=({block},1,1) lds={lds}\n"
    s += '.amdgcn_target "amdgcn-amd-amdhsa--gfx950"\n'
    for (label, items, nfv, acc, grid, block, lds) in kernels:
        s += kernel_text(label, items, nfv, acc)
    s += "L_code_end:\n    s_endpgm\n"
    s += '.section .rodata,"a"\n'
    for (label, items, nfv, acc, grid, block, lds) in kernels:
        s += ".p2align 6\n" + kd_text(label, nfv, (acc + 3) // 4 * 4)
    open(path, "w").write(s)
if __name__ == "__main__":
    which = sys.argv[2].split(",")
    ks = []
    if "0" in which: ks.append(("k0_kernel", *k0.gen_k0(), 256, 256 if os.environ.get("K0PF", "cqk") else 64, 0))
    if "1" in which:
        import k12
        ks.append(("k12_kernel", *k12.gen_k12(), 256, 256, k12.K12_LDS))
    if "3" in which: ks.append(("k3_kernel", *k3.gen_k3(), 256, 256, k3.K3_LDS))
    if "4" in which: ks.append(("k4_kernel", *k3.gen_k4(), 256, 576, 0))
    build(ks, sys.argv[1])
```

```python
from asmlib import *
NAME = "recurrent_scan__gqa_block_cached__glu_gated_geglu__prompt"
XN_OFF = 0
XN_BYTES = 2048 * 576 * 2
H_OFF = 4 << 20
H_BYTES = 2048 * 4608 * 2
O_OFF = 24 << 20
O_BYTES = 2048 * 4096 * 2
PART_OFF = 48 << 20
PART_BYTES = 4 * 2048 * 576 * 4
WP_OFF = 72 << 20
ARG = dict(x=0, k=8, v=16, wq=24, wo=32, bx=40, wg=48, wu=56, wd=64, out=72, dbg=80, ws=88)

def srd(p, d, base, nbytes, off=0):
    if off:
        p(f"s_add_u32 s{d}, s{base}, {off}")
        p(f"s_addc_u32 s{d+1}, s{base+1}, 0")
    else:
        p(f"s_mov_b32 s{d}, s{base}")
        p(f"s_mov_b32 s{d+1}, s{base+1}")
    p(f"s_mov_b32 s{d+2}, {nbytes}")
    p(f"s_mov_b32 s{d+3}, 0x20000")

def f2u(x):
    import struct
    return "0x%08x" % struct.unpack("<I", struct.pack("<f", x))[0]

def finish(p, name, verbose=False):
    items, added = fix_hazards(p.items, verbose=verbose, name=name)
    wc = WaitChecker(); wc.run(items)
    for e in wc.errors[:20]: print(f"[{name}] WAITCHECK:", e)
    return items

import os
STAMP = int(os.environ.get("STAMP", "0"))
DBG_OFF = (200 << 20) if 'hiws' not in os.environ.get('ABL', '') else (110 << 20)
def stamp_ops(i):
    if not STAMP: return []
    return ["s_memtime s[76:77]", "s_waitcnt lgkmcnt(0)", f"s_mov_b32 s{80+i}, s76"]
def stamp(p, i):
    for t in stamp_ops(i): p(t)
def stamp_rt(p, i):
    if not STAMP: return
    p("s_memrealtime s[76:77]"); p("s_waitcnt lgkmcnt(0)"); p(f"s_mov_b32 s{80+i}, s76")
def stamp_dump(p, wsreg, wave_sreg, kidx, n=22):
    if not STAMP: return
    p("s_waitcnt vmcnt(0) lgkmcnt(0)")
    srd(p, 72, wsreg, 1 << 24, DBG_OFF)
    p(f"s_lshl_b32 s78, s2, 4"); p(f"s_add_u32 s78, s78, s{wave_sreg}"); p("s_lshl_b32 s78, s78, 7"); p(f"s_add_u32 s78, s78, {kidx << 20}")
    p("v_mov_b32 v1, 0")
    for i in range(n):
        p(f"v_mov_b32 v2, s{80+i}")
        p(f"buffer_store_dword v2, v1, s[72:75], s78 offen offset:{4*i}")
```

```python
from common import *
def gen_k0():
    p = Prog()
    p("s_cmp_ge_u32 s2, 256"); p("s_cbranch_scc1 L_k0_done")
    p(f"s_load_dwordx2 s[4:5], s[0:1], {ARG['x']}"); p(f"s_load_dwordx2 s[6:7], s[0:1], {ARG['ws']}")
    p("v_lshrrev_b32 v1, 3, v0")
    p("v_and_b32 v2, 7, v0")
    p("s_lshl_b32 s3, s2, 3")
    p("v_add_u32 v3, s3, v1")
    p("v_mul_u32_u24 v3, 1152, v3")
    p("v_lshl_add_u32 v3, v2, 4, v3")
    p("s_waitcnt lgkmcnt(0)")
    srd(p, 8, 4, XN_BYTES); srd(p, 12, 6, XN_BYTES, XN_OFF)
    for i in range(9):
        p(f"buffer_load_dwordx4 v[{8+4*i}:{11+4*i}], v3, s[8:11], 0 offen offset:{i*128}")
    p("s_and_b32 s16, s2, 1"); p("s_lshl_b32 s16, s16, 3")
    p("v_add_u32 v4, s16, v1")
    p("v_and_b32 v5, 3, v2"); p("v_lshl_add_u32 v4, v5, 4, v4"); p("v_lshlrev_b32 v4, 4, v4")
    p("v_lshrrev_b32 v5, 2, v2"); p("v_lshl_add_u32 v4, v5, 12, v4")
    p("s_lshr_b32 s17, s2, 3"); p("s_mul_i32 s17, s17, 73728"); p("s_lshr_b32 s19, s2, 1"); p("s_and_b32 s19, s19, 3"); p("s_lshl_b32 s19, s19, 10"); p("s_add_u32 s17, s17, s19")
    p("s_mov_b32 s18, 0xffff0000")
    F = 48
    for i in range(9):
        p(f"s_waitcnt vmcnt({8-i})")
        for j in range(4):
            p(f"v_lshlrev_b32 v{F+8*i+2*j}, 16, v{8+4*i+j}")
            p(f"v_and_b32 v{F+8*i+2*j+1}, s18, v{8+4*i+j}")
        for j in range(8):
            if i == 0 and j < 4: p(f"v_mov_b32 v{120+j}, v{F+j}")
            else: p(f"v_add_f32 v{120+j%4}, v{120+j%4}, v{F+8*i+j}")
    def reduce8(r):
        p(f"v_add_f32 v{r}, v{r}, v{r+1}"); p(f"v_add_f32 v{r+2}, v{r+2}, v{r+3}"); p(f"v_add_f32 v{r}, v{r}, v{r+2}")
        p(f"v_add_f32_dpp v{r}, v{r}, v{r} quad_perm:[1,0,3,2] row_mask:0xf bank_mask:0xf")
        p(f"v_add_f32_dpp v{r}, v{r}, v{r} quad_perm:[2,3,0,1] row_mask:0xf bank_mask:0xf")
        p(f"v_add_f32_dpp v{r}, v{r}, v{r} row_half_mirror row_mask:0xf bank_mask:0xf")
    reduce8(120)
    p(f"v_mul_f32 v124, {f2u(1.0/576)}, v120")
    for e in range(72):
        t = 126 + (e % 4)
        p(f"v_sub_f32 v{t}, v{F+e}, v124")
        if e < 4: p(f"v_mul_f32 v{120+e}, v{t}, v{t}")
        else: p(f"v_fmac_f32 v{120+e%4}, v{t}, v{t}")
    reduce8(120)
    p(f"v_mul_f32 v120, {f2u(1.0/576)}, v120")
    def rnd(r):
        p(f"v_cvt_pk_bf16_f32 v{r}, v{r}, v{r}"); p(f"v_and_b32 v{r}, s18, v{r}")
    rnd(120); rnd(124)
    p(f"v_add_f32 v120, {f2u(1e-5)}, v120"); rnd(120)
    p("v_sqrt_f32 v120, v120"); rnd(120)
    p("v_rcp_f32 v121, v120")
    p("v_fma_f32 v122, -v120, v121, 1.0"); p("v_fmac_f32 v121, v122, v121")
    for i in range(9):
        for j in range(4):
            a, b = F+8*i+2*j, F+8*i+2*j+1
            p(f"v_sub_f32 v{a}, v{a}, v124"); p(f"v_sub_f32 v{b}, v{b}, v124")
        for j in range(4):
            a, b = F+8*i+2*j, F+8*i+2*j+1
            p(f"v_cvt_pk_bf16_f32 v{b}, v{a}, v{b}")
        for j in range(4):
            a, b = F+8*i+2*j, F+8*i+2*j+1
            p(f"v_lshlrev_b32 v{a}, 16, v{b}"); p(f"v_and_b32 v{b}, s18, v{b}")
        for j in range(4):
            a, b = F+8*i+2*j, F+8*i+2*j+1
            p(f"v_mul_f32 v{a}, v{a}, v121"); p(f"v_mul_f32 v{b}, v{b}, v121")
        for j in range(4):
            a, b = F+8*i+2*j, F+8*i+2*j+1
            p(f"v_cvt_pk_bf16_f32 v{8+4*i+j}, v{a}, v{b}")
        p(f"s_add_u32 s19, s17, {i*8192}")
        p(f"buffer_store_dwordx4 v[{8+4*i}:{11+4*i}], v4, s[12:15], s19 offen sc1")
    p.label("L_k0_done"); p("s_endpgm")
    return finish(p, "k0"), 132, 132
```

```python
from common import *
import math
K12_LDS = 160 * 1024
LOG2E = 1.4426950408889634
QSCALE = LOG2E / math.sqrt(128.0)
GC1 = -2.0 * math.sqrt(2.0 / math.pi) * LOG2E
GC2 = GC1 * 0.044715
THRESH = 2.0 ** 64
ABL = os.environ.get('ABL', '')
NTW = "" if "nontw" in ABL else " nt"
NTKV = " nt" if 'ntkv' in ABL else ""
SCH = "" if 'nosch' in ABL else " sc1"
SCO = "" if 'nosco' in ABL else " sc1"

S_HF = 4
S_WG, S_WU, S_WQ, S_K, S_V, S_XN, S_H, S_O = 8, 12, 16, 20, 24, 28, 32, 36
S_WAVE, S_RB, S_J = 40, 41, 42
S_RCNT = 43
S_T0, S_T1, S_T2 = 44, 45, 46
S_KOFF, S_VOFF = 47, 48
S_W1K = 49
S_RET = 50
S_CNT = 52
S_W3K = 53
S_BF = 54
S_BH = 55
S_BQ = 56
S_RS = 57
S_RD = 58
S_HBASE = 59
S_HHALF = 60
S_THR = 61
S_OBASE = 62
S_XB = 63
S_W6K = 79

V_L16 = 1
V_WF = 2
V_WQ = 3
V_RA = 4
V_RH = 8
V_RQ = 88
V_QP = 10
V_C1, V_C2 = 12, 13
V_KD, V_VD = 14, 15
V_AF = 16
V_T = 52
V_HO = 68
V_KA = 76
V_VA = 80
V_RPD = 0
V_ACC = 96
V_X = 224
WSLOT = [128 * 1024, 80 * 1024, 40 * 1024, 104 * 1024]
def wbase(slot):
    b = WSLOT[slot]
    return (0, b - 40 * 1024) if b < 104 * 1024 else (1, b - 104 * 1024)

def xreg(ks, mt):
    f = ks * 4 + mt
    return f"a[{4*f}:{4*f+3}]" if f < 64 else f"v[{V_X+4*(f-64)}:{V_X+4*(f-64)+3}]"

A_Q, A_KF, A_VF, A_O = 0, 64, 96, 128
V_S = 96
V_P0 = 224
V_P1 = 16
V_NM = 32
V_LS = 48
V_E = 56
V_CK = 64
V_R = 65
V_RP = [88, 92, 4, 8]
SHIFT = 2

class Gap:
    def __init__(self, mfma):
        self.mfma = mfma; self.sh = []; self.mem = []; self.valu = []; self.post = []

def emit_gaps(p, gaps):
    for g in gaps:
        if g.mfma: p(g.mfma)
        for it in g.sh + g.mem + g.valu + g.post:
            if isinstance(it, tuple): p(it[0], it[1])
            elif isinstance(it, str): p(it)
            else: p.items.append(it)

def slots_of(text):
    return 2 if text.split()[0] in TRANS else 1

def fill_valu(gaps, start, queue, cap=2, window=40):
    class Q: pass
    items = []
    for op in queue:
        q = Q(); q.op = op; q.mem = isinstance(op, tuple)
        ins = Ins(op[2][0]) if q.mem else Ins(op)
        q.rd = set(ins.rd); q.wr = set(ins.wr); q.slots = 1 if q.mem else slots_of(op); q.trans = (q.slots == 2)
        items.append(q)
    ready_at = {}
    pend = list(items)
    for gi in range(start, len(gaps)):
        g = gaps[gi]
        used = len(g.mem) + sum(slots_of(v) for v in g.valu) + max(0, len(g.sh) - 1)
        while pend and used < cap:
            blocked_w = set(); blocked_r = set()
            cands = []
            for q in pend[:window]:
                dep = (q.rd & blocked_w) or (q.wr & blocked_w) or (q.wr & blocked_r)
                if not dep and all(ready_at.get(r, -1) <= gi for r in q.rd):
                    if q.mem:
                        if not g.valu and len(g.sh) == 0: cands.append(q)
                    elif used + q.slots <= cap: cands.append(q)
                blocked_w |= q.wr; blocked_r |= q.rd
            if not cands: break
            mems = [q for q in cands if q.mem]; tr = [q for q in cands if q.trans]
            if mems and used == 1: best = mems[0]
            elif tr: best = tr[0]
            else: best = cands[0]
            if best.mem:
                g.sh += best.op[1]; g.mem.append(best.op[2])
            else:
                g.valu.append(best.op)
                for r in best.wr: ready_at[r] = gi + 1
            used += best.slots
            pend.remove(best)
        if not pend: break
    return [q.op for q in pend]

KS = lambda T: (T + 3) % 4
VS = lambda T: (T + 1) % 4

def gen_k12():
    pro = Prog(); p = pro
    p("s_cmp_ge_u32 s2, 256"); p("s_cbranch_scc1 L_k12_done")
    stamp_rt(p, 20); stamp(p, 0)
    p(f"s_load_dwordx2 s[68:69], s[0:1], {ARG['wq']}")
    p(f"s_load_dwordx2 s[70:71], s[0:1], {ARG['ws']}")
    p(f"s_load_dwordx4 s[72:75], s[0:1], {ARG['wg']}")
    p(f"s_load_dwordx4 s[64:67], s[0:1], {ARG['k']}")
    p("v_lshrrev_b32 v16, 6, v0"); p("v_and_b32 v17, 63, v0")
    p(f"v_readfirstlane_b32 s{S_WAVE}, v16")
    p(f"s_and_b32 s{S_T0}, s2, 7"); p(f"s_lshr_b32 s{S_T1}, s2, 3")
    RBB = int(os.environ.get("RBB", "3"))
    p(f"s_and_b32 s{S_RB}, s{S_T1}, {(1 << RBB) - 1}"); p(f"s_lshr_b32 s{S_T1}, s{S_T1}, {RBB}")
    if RBB < 3:
        p(f"s_and_b32 s{S_T2}, s{S_T0}, {(1 << (3 - RBB)) - 1}"); p(f"s_lshl_b32 s{S_T2}, s{S_T2}, {RBB}"); p(f"s_add_u32 s{S_RB}, s{S_RB}, s{S_T2}")
        p(f"s_lshr_b32 s{S_T0}, s{S_T0}, {3 - RBB}")
    p(f"s_lshl_b32 s{S_J}, s{S_T0}, {5 - RBB}"); p(f"s_add_u32 s{S_J}, s{S_J}, s{S_T1}")
    p(f"v_lshlrev_b32 v{V_L16}, 4, v17")
    p("v_lshrrev_b32 v20, 4, v17"); p("v_and_b32 v22, 15, v17")
    p("v_lshlrev_b32 v23, 2, v20"); p("v_xor_b32 v23, v23, v22"); p("v_lshlrev_b32 v24, 13, v20"); p(f"v_lshl_add_u32 v{V_WQ}, v23, 4, v24")
    p(f"s_mul_i32 s{S_W6K}, s{S_WAVE}, 6144")
    p(f"s_mul_i32 s{S_BQ}, s{S_WAVE}, {24*8192}"); p(f"s_lshl_b32 s{S_T0}, s{S_J}, 8"); p(f"s_add_u32 s{S_BQ}, s{S_BQ}, s{S_T0}")
    p(f"s_lshl_b32 s{S_T0}, s{S_RB}, 2"); p(f"s_add_u32 s{S_T0}, s{S_T0}, s{S_WAVE}")
    p(f"s_mul_i32 s{S_XB}, s{S_T0}, 73728"); p(f"s_lshl_b32 s{S_HBASE}, s{S_T0}, 14")
    for d, n in ((S_WQ, 576 * 8192), (S_XN, XN_BYTES)):
        p(f"s_mov_b32 s{d+2}, {n}"); p(f"s_mov_b32 s{d+3}, 0x20000")
    p("s_waitcnt lgkmcnt(0)")
    for d, b in ((S_WQ, 68), (S_XN, 70)):
        p(f"s_mov_b32 s{d}, s{b}"); p(f"s_mov_b32 s{d+1}, s{b+1}")
    assert XN_OFF == 0
    if 'finepro' in ABL: stamp(p, 2)

    stages = [("q", 0, sub, 0) for sub in range(6)] + [("h", 0, sub, 0) for sub in range(3)]
    for t in range(4): stages += [("f", t, sub, (t + 1) % 2) for sub in range(3)]
    NST = len(stages)
    tmpsel = [0]
    def tmp():
        tmpsel[0] ^= 1
        return (S_T0, S_T1)[tmpsel[0]]
    def w_dma(st):
        kind, t, sub, buf = stages[st]; slot = st % 4
        ops = []
        if kind == "q":
            for i in range(6):
                tm = tmp()
                sal = [f"s_add_u32 s{tm}, s{S_BQ}, {(sub * 96 + 4 * i) * 8192}", f"s_add_u32 m0, s{S_W6K}, {WSLOT[slot] + i*1024}"]
                ops.append((sal, (f"buffer_load_dwordx4 v{V_WQ}, s[{S_WQ}:{S_WQ+3}], s{tm} offen{NTW} lds", f"W{st}")))
            return ops
        for reg in range(2):
            for i in range(3):
                base, stride, srdn, vo, cadd = (S_BH if kind == "h" else S_BF), 9216, (S_WG, S_WU)[reg], V_WF, t * 64
                imm = (sub * 192 + 16 * i) * stride + cadd
                tm = tmp()
                sal = [f"s_add_u32 s{tm}, s{base}, {imm}", f"s_add_u32 m0, s{S_W3K}, {WSLOT[slot] + reg*12288 + i*1024}"]
                ops.append((sal, (f"buffer_load_dwordx4 v{vo}, s[{srdn}:{srdn+3}], s{tm} offen{NTW} lds", f"W{st}")))
        return ops
    def x_loads(k0, k1):
        ops = []
        for ks in range(k0, k1):
            for mt in range(4):
                ops.append(([f"s_add_u32 s{S_RD}, s{S_XB}, {ks*4096}"] if mt == 0 else [],
                            (f"buffer_load_dwordx4 {xreg(ks, mt)}, v{V_L16}, s[{S_XN}:{S_XN+3}], s{S_RD} offen offset:{mt*1024}", f"X{ks//3}")))
        return ops
    def kv_dma(which, tile_slot, soff, add):
        ops = []
        for t in range(4):
            tm = tmp()
            base = (0 if which == "K" else 65536) + tile_slot * 16384 + t * 4096
            srdn = S_K if which == "K" else S_V
            if soff is None: sal = [f"s_mov_b32 s{tm}, {add + t*4096}"]
            else: sal = [f"s_add_u32 s{tm}, s{soff}, {add + t*4096}"]
            sal.append(f"s_add_u32 m0, s{S_W1K}, {base}")
            ops.append((sal, (f"buffer_load_dwordx4 v{V_KD if which == 'K' else V_VD}, s[{srdn}:{srdn+3}], s{tm} offen{NTKV} lds", f"{which}{tile_slot}")))
        return ops
    def issue(ops):
        for sal, op in ops:
            for s in reversed(sal): p(s)
            p(op[0], op[1])
    issue(w_dma(0)); issue(x_loads(0, 3))
    if 'finepro' in ABL: stamp(p, 3)
    p("v_lshrrev_b32 v18, 2, v17"); p("v_and_b32 v19, 3, v17"); p("v_and_b32 v21, 3, v18")
    p("v_lshl_add_u32 v23, v20, 3, v21"); p("v_lshlrev_b32 v24, 8, v23"); p("v_lshl_add_u32 v24, v19, 4, v24"); p(f"v_add_u32 v24, {40*1024}, v24")
    for sg_ in range(4):
        p(f"v_xor_b32 v25, {sg_}, v21"); p(f"v_lshl_add_u32 v{V_RQ+sg_}, v25, 6, v24"); p(f"v_add_u32 v{V_RQ+4+sg_}, {64*1024}, v{V_RQ+sg_}")
    p("v_lshlrev_b32 v23, 6, v23")
    p("v_and_b32 v24, 1, v20"); p("v_lshlrev_b32 v24, 5, v24")
    p("v_lshl_add_u32 v25, v19, 3, v23")
    p(f"v_add_u32 v{V_RA}, v25, v24"); p(f"v_add_u32 v{V_RA}, {40*1024}, v{V_RA}")
    p(f"v_xor_b32 v{V_RA+1}, 32, v{V_RA}")
    p(f"v_add_u32 v{V_RA+2}, {64*1024}, v{V_RA}"); p(f"v_add_u32 v{V_RA+3}, {64*1024}, v{V_RA+1}")
    p(f"s_and_b32 s{S_T2}, s{S_J}, 1")
    p(f"s_lshl_b32 s{S_T0}, s{S_T2}, 5")
    p(f"v_xor_b32 v{V_RH}, s{S_T0}, v{V_RA}"); p(f"v_add_u32 v{V_RH+1}, {64*1024}, v{V_RH}")
    p("v_lshrrev_b32 v23, 5, v17"); p("v_lshlrev_b32 v23, 1, v23"); p("v_xor_b32 v23, v23, v19")
    p(f"v_mul_u32_u24 v24, 9216, v18"); p(f"v_lshl_add_u32 v{V_WF}, v23, 4, v24")
    p(f"v_mov_b32 v{V_C1}, {f2u(GC1)}"); p(f"v_mov_b32 v{V_C2}, {f2u(GC2)}")
    srd(p, S_WG, 72, 576 * 9216); srd(p, S_WU, 74, 576 * 9216); srd(p, S_H, 70, H_BYTES, H_OFF); srd(p, S_O, 70, O_BYTES, O_OFF)
    p(f"s_mul_i32 s{S_W3K}, s{S_WAVE}, 3072")
    p(f"s_mul_i32 s{S_BH}, s{S_WAVE}, {48*9216}")
    p(f"s_mul_i32 s{S_RS}, s{S_J}, 288"); p(f"s_add_u32 s{S_RS}, s{S_RS}, s{S_T0}")
    p(f"s_add_u32 s{S_BF}, s{S_BH}, s{S_RS}")
    p(f"s_lshr_b32 s{S_T0}, s{S_J}, 1"); p(f"s_lshl_b32 s{S_T0}, s{S_T0}, 19")
    for d, b in ((S_K, 64), (S_V, 66)):
        p(f"s_add_u32 s{d}, s{b}, s{S_T0}"); p(f"s_addc_u32 s{d+1}, s{b+1}, 0"); p(f"s_mov_b32 s{d+2}, 524288"); p(f"s_mov_b32 s{d+3}, 0x20000")
    p(f"s_lshl_b32 s{S_W1K}, s{S_WAVE}, 10")
    p(f"s_lshr_b32 s{S_T0}, s{S_J}, 1"); p(f"s_mul_i32 s{S_KOFF}, s{S_T0}, 576"); p(f"s_add_u32 s{S_KOFF}, s{S_KOFF}, 256")
    p(f"s_add_u32 s{S_BH}, s{S_BH}, s{S_KOFF}")
    def hoff(dst, colreg, add):
        p(f"s_lshr_b32 s{S_T0}, s{colreg}, 6"); p(f"s_add_u32 s{S_T0}, s{S_T0}, {add}")
        p(f"s_lshr_b32 s{S_T1}, s{S_T0}, 2"); p(f"s_lshl_b32 s{S_T1}, s{S_T1}, 19")
        p(f"s_and_b32 s{S_T0}, s{S_T0}, 3"); p(f"s_lshl_b32 s{S_T0}, s{S_T0}, 10")
        p(f"s_add_u32 s{dst}, s{S_T0}, s{S_T1}"); p(f"s_add_u32 s{dst}, s{dst}, s{S_HBASE}")
    hoff(S_HHALF, S_KOFF, 0); p(f"s_lshl_b32 s{S_T0}, s{S_T2}, 3"); p(f"s_add_u32 s{S_HHALF}, s{S_HHALF}, s{S_T0}")
    for t in range(4): hoff(S_HF + t, S_RS, t)
    p(f"s_lshl_b32 s{S_T0}, s{S_J}, 19"); p(f"s_add_u32 s{S_OBASE}, s{S_HBASE}, s{S_T0}")
    p(f"s_mov_b32 s{S_THR}, {f2u(THRESH)}")
    p(f"s_lshl_b32 s{S_T0}, s{S_WAVE}, 2"); p(f"v_add_u32 v23, s{S_T0}, v20")
    p(f"v_xor_b32 v24, v22, v23"); p(f"v_lshlrev_b32 v24, 4, v24"); p(f"v_lshl_add_u32 v{V_KD}, v23, 8, v24")
    p(f"v_and_b32 v24, 7, v23"); p(f"v_lshlrev_b32 v24, 1, v24"); p(f"v_xor_b32 v24, v22, v24"); p(f"v_lshlrev_b32 v24, 4, v24"); p(f"v_lshl_add_u32 v{V_VD}, v23, 8, v24")
    for ks in range(4):
        p(f"v_add_u32 v23, {4*ks}, v20"); p("v_xor_b32 v23, v23, v22"); p("v_lshlrev_b32 v23, 4, v23"); p(f"v_lshl_add_u32 v{V_KA+ks}, v22, 8, v23")
    p("v_and_b32 v24, 7, v18"); p("v_lshlrev_b32 v25, 8, v18"); p("v_lshl_add_u32 v25, v19, 3, v25"); p("v_add_u32 v25, 0x10000, v25")
    for dt in range(8):
        p(f"v_xor_b32 v23, {dt}, v24"); p(f"v_lshl_add_u32 v{V_VA+dt}, v23, 5, v25")
    p(f"s_lshl_b32 s{S_T0}, s2, 2"); p(f"s_add_u32 s{S_T0}, s{S_T0}, s{S_WAVE}")
    p(f"s_sub_u32 s{S_T1}, s{S_T0}, 288"); p(f"s_cmp_lt_u32 s{S_T0}, 288")
    p(f"s_cselect_b32 s{S_T1}, s{S_T0}, s{S_T1}")
    p(f"s_cselect_b32 s{S_RCNT}, 16, 18")
    p(f"s_mov_b32 s{S_VOFF}, {4608*288}"); p(f"s_cselect_b32 s{S_VOFF}, {4096*288}, s{S_VOFF}")
    p(f"s_cmp_lt_u32 s{S_T0}, 576"); p(f"s_cselect_b32 s{S_RCNT}, s{S_RCNT}, 0")
    p(f"s_lshl_b32 s{S_RS}, s{S_T1}, 10"); p(f"s_lshl_b32 s{S_T1}, s{S_T1}, 6")
    p(f"v_add_u32 v23, s{S_T1}, v17")
    p(f"s_mov_b32 s{S_T1}, 58255"); p(f"v_mul_u32_u24 v24, s{S_T1}, v23"); p("v_lshrrev_b32 v24, 22, v24")
    p("v_mul_u32_u24 v25, 72, v24"); p("v_sub_u32 v25, v23, v25")
    p("v_mul_u32_u24 v26, 57, v25"); p("v_lshrrev_b32 v26, 10, v26")
    p("v_mul_u32_u24 v27, 18, v26"); p("v_sub_u32 v27, v25, v27")
    p(f"v_mul_lo_u32 v26, v26, s{S_VOFF}"); p(f"s_movk_i32 s{S_T1}, 288"); p(f"v_mul_u32_u24 v24, s{S_T1}, v24")
    p("v_lshl_add_u32 v24, v27, 4, v24"); p(f"v_add_u32 v{V_RPD}, v24, v26")

    groups = []
    for st in range(NST):
        kind, t, sub, buf = stages[st]
        if kind == "q":
            for nt in range(8): groups.append((st, nt, 0))
        else:
            nts = [0, 2] if kind == "h" else [0, 1, 2, 3]
            for c0 in (0, 3):
                for nt in nts: groups.append((st, nt, c0))
    def a_reads(gi):
        st, nt, c0 = groups[gi]; kind, t, sub, buf = stages[st]
        hb, off = wbase(st % 4)
        out = []
        for c in range(3):
            for tt in range(2):
                d = V_AF + (gi % 3) * 12 + c * 4 + 2 * tt
                if kind == "q":
                    addr = V_RQ + 4 * hb + (nt >> 1); o = off + c * 8192 + tt * 1024 + 8 * (nt & 1)
                else:
                    addr = (V_RA + 2 * hb + (nt & 1)) if kind == "f" else (V_RH + hb)
                    o = off + (nt >> 1) * 12288 + (c0 + c) * 2048 + tt * 256
                out.append((f"ds_read_b64_tr_b16 v[{d}:{d+1}], v{addr} offset:{o}", f"A{gi%3}"))
        return out
    acc = lambda buf, nt, mt: V_ACC + buf * 64 + (nt * 4 + mt) * 4
    gaps = []; gstart = []
    def ksof(st, c0):
        kind, t, sub, buf = stages[st]
        return sub * 3 if kind == "q" else sub * 6 + c0
    for gi, (st, nt, c0) in enumerate(groups):
        gstart.append(len(gaps))
        kind, t, sub, buf = stages[st]
        for mt in range(4):
            for c in range(3):
                a = acc(buf, nt, mt); af = V_AF + (gi % 3) * 12 + c * 4
                ks = ksof(st, c0) + c
                C = "0" if ks == 0 else f"v[{a}:{a+3}]"
                gaps.append(Gap(f"v_mfma_f32_16x16x32_bf16 v[{a}:{a+3}], v[{af}:{af+3}], {xreg(ks, mt)}, {C}"))
    NG = len(groups)
    first_of_stage = {}
    for gi, (st, nt, c0) in enumerate(groups): first_of_stage.setdefault(st, gi)
    bar_gap = {}
    for gi in range(2, NG):
        st = groups[gi][0]; f = first_of_stage[st]
        rd = a_reads(gi)
        if gi == f:
            g0 = gstart[gi - 1]
            bar_gap[st] = g0 - 1
            for n, r in enumerate(rd): gaps[g0 + n].mem.append(r)
        elif gi == f + 1:
            g0 = gstart[gi - 2]
            for n, r in enumerate(rd): gaps[g0 + 6 + n].mem.append(r)
        else:
            g0 = gstart[gi - 2]
            for n, r in enumerate(rd): gaps[g0 + 2 * n].mem.append(r)
    for gi in range(1, NG):
        g = gaps[gstart[gi] - 1]
        st, nt, c0 = groups[gi]
        vm = []
        if st < 6 and nt == 0: vm.append(f"X{st}")
        nxt = groups[gi + 1][0] if gi + 1 < NG else None
        if nxt is not None and nxt != st:
            g.sh.append(WaitFor(vm=vm + [f"W{nxt}"], lg0=True)); g.sh.append("s_barrier")
        else:
            g.sh.append(WaitFor(lg=(f"A{gi%3}",), vm=vm))
    def place_mem(ops, g0, g1, dense=False, anygap=False):
        g = g0 + 2
        avail = g1 - g
        need = sum(max(2, len(sal) + 1) for sal, op in ops)
        pitch = max(1.0, (avail - (4 if anygap else 16)) / len(ops)) if not dense else 1.0
        last = g0
        for n, (sal, op) in enumerate(ops):
            g = max(last + 1 + len(sal), int(g0 + 2 + n * pitch))
            while True:
                assert g < g1, (g0, g1, n, len(ops))
                ok = len(gaps[g].mem) <= 1 and (dense or anygap or len(gaps[g].mem) == 1) and all(len(gaps[g - len(sal) + i].sh) == 0 for i in range(len(sal)))
                if ok: break
                g += 1
            for i, s in enumerate(sal): gaps[g - len(sal) + i].sh.append(s)
            gaps[g].mem.append(op); last = g
    def q_reload():
        return [([], (f"ds_read_b128 a[{A_Q+4*f}:{A_Q+4*f+3}], v{V_QP + f//8} offset:{(f%8)*1024}", "QR")) for f in range(16)]
    for st in range(NST):
        g0 = gstart[first_of_stage[st]]
        g1 = bar_gap[st + 1] if st + 1 < NST else len(gaps)
        ops = []
        if st == 0: ops = w_dma(1) + x_loads(6, 9) + w_dma(2)
        elif st == 1: ops = x_loads(9, 12) + w_dma(3) + w_dma(4)
        elif st == 2: ops = x_loads(12, 15) + w_dma(5)
        elif st == 3: ops = x_loads(15, 18) + w_dma(6)
        elif st + 3 < NST: ops = w_dma(st + 3)
        if st == 18: ops += kv_dma("V", VS(0), None, 0)
        if st == 19: ops += kv_dma("K", KS(0), None, 0)
        if st == 20: ops += kv_dma("K", KS(1), None, 16384) + kv_dma("V", VS(1), None, 16384) + kv_dma("K", KS(2), None, 32768)
        if ops: place_mem(ops, g0, g1, dense=(st < 1 or st == 20), anygap=(stages[st][0] == 'h' or st < 4))
        if st == 19:
            cand = [g for g in range(g0 + 3, g1 - 2) if not gaps[g].mem][::2]
            for g, (sal, op) in zip(cand, q_reload()): gaps[g].mem.append(op)
            assert len(cand) >= 16
    def ffn_epi(st0):
        kind, t, sub, buf = stages[st0]
        q = []
        for mt in range(4):
            if kind == "f": el = [(acc(buf, n, mt) + r, acc(buf, 2 + n, mt) + r) for n in range(2) for r in range(4)]
            else: el = [(acc(buf, 0, mt) + r, acc(buf, 2, mt) + r) for r in range(4)]
            T = V_T + 8 * (mt % 2)
            for e, (g, u) in enumerate(el): q.append(f"v_mul_f32 v{T+e}, v{g}, v{g}")
            for e, (g, u) in enumerate(el): q.append(f"v_fma_f32 v{T+e}, v{T+e}, v{V_C2}, v{V_C1}")
            for e, (g, u) in enumerate(el): q.append(f"v_mul_f32 v{T+e}, v{T+e}, v{g}")
            for e, (g, u) in enumerate(el):
                q.append(f"v_exp_f32 v{T+e}, v{T+e}"); q.append(f"v_mul_f32 v{g}, v{g}, v{u}")
            for e, (g, u) in enumerate(el): q.append(f"v_add_f32 v{T+e}, 1.0, v{T+e}")
            for e, (g, u) in enumerate(el): q.append(f"v_rcp_f32 v{T+e}, v{T+e}")
            for e, (g, u) in enumerate(el): q.append(f"v_mul_f32 v{g}, v{g}, v{T+e}")
            o = V_HO + 4 * (mt % 2)
            for i in range(len(el) // 2): q.append(f"v_cvt_pk_bf16_f32 v{o+i}, v{el[2*i][0]}, v{el[2*i+1][0]}")
            if kind == "f":
                q.append(("MEM", [f"s_add_u32 s{S_T2}, s{S_HF+t}, {mt*4096}"], (f"buffer_store_dwordx4 v[{o}:{o+3}], v{V_L16}, s[{S_H}:{S_H+3}], s{S_T2} offen{SCH}", None)))
            else:
                q.append(("MEM", [f"s_add_u32 s{S_T2}, s{S_HHALF}, {mt*4096}"], (f"buffer_store_dwordx2 v[{o}:{o+1}], v{V_L16}, s[{S_H}:{S_H+3}], s{S_T2} offen", None)))
        return q
    def q_epi(seg):
        q = []
        for mt in range(4):
            rs = [acc(0, 2 * seg, mt) + r for r in range(4)] + [acc(0, 2 * seg + 1, mt) + r for r in range(4)]
            o = V_T + 4 * ((seg * 4 + mt) % 6)
            for r in rs: q.append(f"v_mul_f32 v{r}, {f2u(QSCALE)}, v{r}")
            for i in range(4): q.append(f"v_cvt_pk_bf16_f32 v{o+i}, v{rs[2*i]}, v{rs[2*i+1]}")
            f = mt * 4 + seg
            q.append(("MEM", [], (f"ds_write_b128 v{V_QP + f//8}, v[{o}:{o+3}] offset:{(f%8)*1024}", None)))
        return q
    sg = lambda st: gstart[first_of_stage[st]]
    f5 = first_of_stage[5]
    left = fill_valu(gaps[:sg(6) - 3], gstart[f5 + 2] + 3, q_epi(0)); assert not left, len(left)
    left = fill_valu(gaps[:sg(6) + 9], gstart[f5 + 4] + 3, q_epi(1)); assert not left, len(left)
    left = fill_valu(gaps[:sg(9) - 3], sg(6) + 3, q_epi(2) + q_epi(3)); assert not left, len(left)
    for st0 in (6, 9, 12, 15):
        end = sg(st0 + 6) - 3 if st0 + 6 < NST else len(gaps)
        left = fill_valu(gaps[:end], sg(st0 + 3) + 3, ffn_epi(st0)); assert not left, (st0, len(left))
    zq = fill_valu(gaps, sg(20) + 3, [f"v_accvgpr_write_b32 a{A_O+i}, 0" for i in range(64)])
    zq += [f"v_accvgpr_write_b32 a{A_O+64+i}, 0" for i in range(64)]
    p(f"s_lshl_b32 s{S_T0}, s{S_WAVE}, 14"); p(f"s_cmp_eq_u32 s{S_WAVE}, 2"); p(f"s_cselect_b32 s{S_T0}, 0x10000, s{S_T0}")
    p(f"s_add_u32 s{S_T1}, s{S_T0}, 8192"); p(f"s_cmp_eq_u32 s{S_WAVE}, 3"); p(f"s_cselect_b32 s{S_T0}, 0x8000, s{S_T0}"); p(f"s_cselect_b32 s{S_T1}, {152*1024}, s{S_T1}")
    p(f"v_add_u32 v{V_QP}, s{S_T0}, v{V_L16}"); p(f"v_add_u32 v{V_QP+1}, s{S_T1}, v{V_L16}")
    issue(x_loads(3, 6))
    if 'finepro' in ABL: stamp(p, 4)
    p.items.append(WaitFor(vm=("W0", "X0")))
    if 'finepro' in ABL: stamp(p, 5)
    p("s_barrier")
    if 'finepro' in ABL: stamp(p, 6)
    for t, tag in a_reads(0) + a_reads(1): p(t, tag)
    p.items.append(WaitFor(lg=("A0",)))
    stamp(p, 1)
    if 'finepro' in ABL:
        gaps[sg(1) - 1].post += stamp_ops(7); gaps[sg(2) - 1].post += stamp_ops(8); gaps[sg(3) - 1].post += stamp_ops(9)
    else:
        for si in range(1, 7): gaps[sg(3*si) - 1].post += stamp_ops(1 + si)
    emit_gaps(p, gaps)
    if 'finepro' not in ABL: stamp(p, 8)

    Sreg = lambda par, kt, qt: V_S + (1 - par) * 64 + (kt * 4 + qt) * 4
    Preg = lambda par, kb, qt: (V_P0 + par * 16 + qt * 4) if kb == 0 else (V_P1 + qt * 4)
    Kf = lambda kt, ks: A_KF + (kt % 2) * 16 + ks * 4
    Vf = lambda dt, kb: A_VF + (dt % 4) * 8 + kb * 4
    def k_reads(slot, kt):
        return [(f"ds_read_b128 a[{Kf(kt,ks)}:{Kf(kt,ks)+3}], v{V_KA+ks} offset:{slot*16384 + kt*4096}", f"KF{kt%2}") for ks in range(4)]
    def v_reads(slot, dt):
        return [(f"ds_read_b64_tr_b16 a[{Vf(dt,kb)+2*t}:{Vf(dt,kb)+2*t+1}], v{V_VA+dt} offset:{slot*16384 + kb*8192 + t*4096}", f"VF{dt%4}") for kb in range(2) for t in range(2)]
    def qk_mfma(par, kt, qt, ks, zero=False):
        s = Sreg(par, kt, qt)
        C = f"v[{s}:{s+3}]" if ks else ("0" if zero else f"v[{V_NM+4*qt}:{V_NM+4*qt+3}]")
        qf = A_Q + (qt * 4 + ks) * 4
        return f"v_mfma_f32_16x16x32_bf16 v[{s}:{s+3}], a[{Kf(kt,ks)}:{Kf(kt,ks)+3}], a[{qf}:{qf+3}], {C}"
    def pv_mfma(par, dt, qt, kb):
        o = A_O + (dt * 4 + qt) * 4; pr = Preg(par, kb, qt)
        return f"v_mfma_f32_16x16x32_bf16 a[{o}:{o+3}], a[{Vf(dt,kb)}:{Vf(dt,kb)+3}], v[{pr}:{pr+3}], a[{o}:{o+3}]"
    def elem(par, tau):
        kb = tau // 32; qt = (tau % 32) // 8; j = tau % 8
        return Sreg(par, 2 * kb + (j >> 2), qt) + (j & 3), kb, qt, j
    def op_exp(par, tau): return f"v_exp_f32 v{V_E + tau % 8}, v{elem(par, tau)[0]}"
    def op_add(par, tau):
        s, kb, qt, j = elem(par, tau)
        src = V_LS + (1 - par) * 4 + qt if (kb == 0 and j == 0) else V_LS + par * 4 + qt
        return f"v_add_f32 v{V_LS + par*4 + qt}, v{src}, v{V_E + tau % 8}"
    def op_cvt(par, tau):
        s, kb, qt, j = elem(par, tau)
        return f"v_cvt_pk_bf16_f32 v{Preg(par, kb, qt) + j//2}, v{V_E + (tau-1) % 8}, v{V_E + tau % 8}"
    def rowmax(p, par, qt, dst):
        regs = [Sreg(par, kt, qt) + r for kt in range(4) for r in range(4)]
        p(f"v_max3_f32 v{dst}, v{regs[0]}, v{regs[1]}, v{regs[2]}")
        for i in range(3, 15, 2): p(f"v_max3_f32 v{dst}, v{dst}, v{regs[i]}, v{regs[i+1]}")
        p(f"v_max_f32 v{dst}, v{dst}, v{regs[15]}")
    def xlane4(p, op, dst, t1):
        for sw in ("v_permlane32_swap_b32", "v_permlane16_swap_b32"):
            for q in range(4): p(f"v_mov_b32 v{t1+q}, v{dst+q}")
            for q in range(4): p(f"{sw} v{dst+q}, v{t1+q}")
            for q in range(4): p(f"{op} v{dst+q}, v{dst+q}, v{t1+q}")

    p(f"s_load_dwordx2 s[64:65], s[0:1], {ARG['wo']}"); p(f"s_load_dwordx2 s[66:67], s[0:1], {ARG['wd']}")
    p.items.append(WaitFor(vm=(f"K{KS(0)}",), lg0=True)); p("s_barrier")
    for t, tag in k_reads(KS(0), 0) + k_reads(KS(0), 1): p(t, tag)
    issue(kv_dma("K", KS(3), None, 3 * 16384) + kv_dma("V", VS(2), None, 2 * 16384))
    p(f"s_cmp_eq_u32 s{S_RCNT}, 16")
    p(f"s_cselect_b32 s{S_WG}, s64, s66"); p(f"s_cselect_b32 s{S_WG+1}, s65, s67")
    p(f"s_mul_i32 s{S_WG+2}, s{S_RCNT}, {256*1152}"); p(f"s_mov_b32 s{S_WU+2}, s{S_WG+2}")
    p(f"s_mov_b32 s{S_T0}, {WP_OFF + 4096*1152}"); p(f"s_cselect_b32 s{S_T0}, {WP_OFF}, s{S_T0}")
    p(f"s_add_u32 s{S_WU}, s70, s{S_T0}"); p(f"s_addc_u32 s{S_WU+1}, s71, 0")
    p(f"s_mov_b32 s{S_RD}, {-3*256*288}"); p(f"s_mov_b32 s{S_BQ}, -3")
    p(f"s_mov_b32 s{S_KOFF}, {4*16384}"); p(f"s_mov_b32 s{S_VOFF}, {3*16384}"); p(f"s_mov_b32 s{S_CNT}, 8")
    g0 = []
    for kt in range(4):
        for qt in range(4):
            for ks in range(4): g0.append(Gap(qk_mfma(0, kt, qt, ks, zero=True)))
    for n, r in enumerate(k_reads(KS(0), 2)): g0[16 + 2 * n].mem.append(r)
    for n, r in enumerate(k_reads(KS(0), 3)): g0[32 + 2 * n].mem.append(r)
    g0[31].sh.append(WaitFor(lg=("KF0",))); g0[47].sh.append(WaitFor(lg=("KF1",)))
    left = fill_valu(g0, 0, ffn_epi(18) + zq)
    p.items.append(WaitFor(lg=("KF0", "KF1")))
    emit_gaps(p, g0)
    for op in left:
        if isinstance(op, tuple):
            for t in op[1]: p(t)
            p(op[2][0], op[2][1])
        else: p(op)
    for q in range(4): p(f"v_mov_b32 v{V_LS+4+q}, 0")
    p.items.append(WaitFor(vm=(f"K{KS(1)}", f"V{VS(0)}"))); p("s_barrier")
    for t, tag in k_reads(KS(1), 0) + k_reads(KS(1), 1): p(t, tag)
    for qt in range(4): rowmax(p, 0, qt, V_R + qt)
    xlane4(p, "v_max_f32", V_R, V_R + 4)
    for qt in range(4):
        for r in range(4): p(f"v_sub_f32 v{V_NM+4*qt+r}, 0, v{V_R+qt}")
        for kt in range(4):
            for r in range(4): p(f"v_sub_f32 v{Sreg(0,kt,qt)+r}, v{Sreg(0,kt,qt)+r}, v{V_R+qt}")
    for tau in range(32 + SHIFT):
        p(op_exp(0, tau))
        if tau >= 1:
            p(op_add(0, tau - 1))
            if (tau - 1) % 2 == 1: p(op_cvt(0, tau - 1))
    tau = 32 + SHIFT - 1
    p("s_nop 0"); p(op_add(0, tau))
    if tau % 2 == 1: p(op_cvt(0, tau))
    p.items.append(WaitFor(lg=("KF0",)))
    if 'finepro' not in ABL: stamp(p, 9)

    body = Prog(); p = body
    p.label("L_att_loop", 6)
    for it in range(4):
        par = it % 2
        G = []
        for kt in range(4):
            for qt in range(4):
                for ks in range(4): G.append(Gap(qk_mfma(1 - par, kt, qt, ks)))
        for dt in range(8):
            for qt in range(4):
                for kb in range(2): G.append(Gap(pv_mfma(par, dt, qt, kb)))
        for b in range(64):
            if b < 32 - SHIFT: sp, tau = par, 32 + SHIFT + b
            else: sp, tau = 1 - par, b - (32 - SHIFT)
            G[2 * b].valu.append(op_exp(sp, tau))
            if 32 - SHIFT <= b < 32:
                tgt = G[63] if b == 32 - SHIFT else G[65]
                tgt.valu.append(op_add(sp, tau))
                if tau % 2 == 1: G[67].valu.append(op_cvt(sp, tau))
        for b in range(64):
            if b < 32 - SHIFT: sp, tau = par, 32 + SHIFT + b
            else: sp, tau = 1 - par, b - (32 - SHIFT)
            if 32 - SHIFT <= b < 32: continue
            G[2 * b + 1].valu.append(op_add(sp, tau))
            if tau % 2 == 1: G[2 * b + 1].valu.append(op_cvt(sp, tau))
        L = V_LS + par * 4
        G[57].valu += [f"v_max3_f32 v{V_CK}, v{L}, v{L+1}, v{L+2}"]
        G[61].valu += [f"v_max_f32 v{V_CK}, v{V_CK}, v{L+3}", f"v_cmp_lt_f32 vcc, s{S_THR}, v{V_CK}"]
        G[63].sh += [f"s_cbranch_vccnz L_rare_stub{it}", Label(f"L_rare_ret{it}")]
        kslot1, kslot2, vslot = KS(it + 1), KS(it + 2), VS(it)
        def put(b0, ops):
            for n, r in enumerate(ops): G[2 * (b0 + n) + 1].mem.append(r)
        put(0, v_reads(vslot, 0)); put(4, v_reads(vslot, 1)); put(8, k_reads(kslot1, 2)); put(12, v_reads(vslot, 2))
        put(16, k_reads(kslot1, 3)); put(20, v_reads(vslot, 3))
        put(36, v_reads(vslot, 4)); put(40, v_reads(vslot, 5)); put(44, v_reads(vslot, 6)); put(48, v_reads(vslot, 7))
        put(52, k_reads(kslot2, 0)); put(56, k_reads(kslot2, 1))
        G[64].sh += [WaitFor(vm=(f"K{kslot2}", f"V{VS(it+1)}", f"R{(it+2)%4}"))]
        G[65].sh += ["s_barrier"]
        dk = kv_dma("K", KS(it), S_KOFF, 0); dv = kv_dma("V", VS(it + 3), S_VOFF, 0)
        dvp = kv_dma("V", VS(it + 2), S_VOFF, -16384)
        def putdma(b, sal, op):
            G[2 * b - 1].sh.append(sal[0]); G[2 * b].sh.append(sal[1]); G[2 * b + 1].mem.append(op)
        for b, (sal, op) in zip((34, 35, 60, 61, 62), dk + dv[:1]): putdma(b, sal, op)
        for b, (sal, op) in zip((24, 25, 26), dvp[1:]): putdma(b, sal, op)
        rp = V_RP[it]; rs_ = V_RP[(it + 2) % 4]
        G[55].mem.append((f"buffer_load_dwordx4 v[{rp}:{rp+3}], v{V_L16}, s[{S_WG}:{S_WG+3}], s{S_RS} offen", f"R{it}"))
        G[56].sh.append(f"s_add_u32 s{S_RS}, s{S_RS}, {288*1024}")
        G[72].sh.append(f"s_add_u32 s{S_BQ}, s{S_BQ}, 1")
        G[74].sh.append(f"s_cmp_lt_u32 s{S_BQ}, s{S_RCNT}"); G[75].sh.append(f"s_cselect_b32 s{S_WU+2}, s{S_WG+2}, 0")
        G[127].mem.append((f"buffer_store_dwordx4 v[{rs_}:{rs_+3}], v{V_RPD}, s[{S_WU}:{S_WU+3}], s{S_RD} offen sc1", None))
        G[2].sh.append(f"s_add_u32 s{S_RD}, s{S_RD}, {256*288}")
        G[126].sh.append(f"s_add_u32 s{S_KOFF}, s{S_KOFF}, 16384"); G[127].sh.append(f"s_add_u32 s{S_VOFF}, s{S_VOFF}, 16384")
        G[15].sh.append(WaitFor(lg=("KF1",))); G[31].sh.append(WaitFor(lg=("KF0",))); G[46].sh.append(WaitFor(lg=("KF1",)))
        G[62].sh.append(WaitFor(lg=("VF0", "VF1", "VF2", "VF3")))
        for dt in range(4, 8): G[64 + 8 * dt - (1 if dt < 7 else 2)].sh.append(WaitFor(lg=(f"VF{dt%4}",)))
        G[125].sh.append(WaitFor(lg=("KF0",)))
        if it == 3:
            G[116].sh.append(f"s_sub_u32 s{S_CNT}, s{S_CNT}, 1")
            if STAMP: G[127].post += ["s_memtime s[76:77]", "s_waitcnt lgkmcnt(0)", f"s_mov_b32 m0, s{S_CNT}", "s_nop 0", "s_movreld_b32 s90, s76"]
            G[127].post += [f"s_cmp_lg_u32 s{S_CNT}, 0", "s_cbranch_scc1 L_att_loop"]
        for gi, g in enumerate(G):
            if len([x for x in g.sh if not isinstance(x, Label)]) > 1: print("att gap", gi, "has", len(g.sh), "shadow ops")
        emit_gaps(p, G)

    epi = Prog(); p = epi
    xlane4(p, "v_add_f32", V_LS + 4, V_R)
    for qt in range(4): p(f"v_rcp_f32 v{V_LS+4+qt}, v{V_LS+4+qt}")
    n = 0
    for qt in range(4):
        for s in range(4):
            T = V_S + (n % 4) * 8
            for h in range(2):
                o = A_O + ((2 * s + h) * 4 + qt) * 4
                for r in range(4): p(f"v_accvgpr_read_b32 v{T+4*h+r}, a{o+r}")
            for i in range(8): p(f"v_mul_f32 v{T+i}, v{T+i}, v{V_LS+4+qt}")
            D = V_S + 32 + (n % 4) * 4
            for i in range(4): p(f"v_cvt_pk_bf16_f32 v{D+i}, v{T+2*i}, v{T+2*i+1}")
            if s == 0: p(f"s_add_u32 s{S_T0}, s{S_OBASE}, {qt*4096}")
            p(f"buffer_store_dwordx4 v[{D}:{D+3}], v{V_L16}, s[{S_O}:{S_O+3}], s{S_T0} offen offset:{s*1024}{SCO}")
            n += 1
    stamp(p, 18)
    if STAMP: p("s_waitcnt vmcnt(0)")
    stamp(p, 19); stamp_rt(p, 21); stamp_dump(p, 70, S_WAVE, 1)
    p.label("L_k12_done"); p("s_endpgm")

    rare = Prog(); p = rare
    for it in range(4):
        p.label(f"L_rare_stub{it}")
        p(f"s_call_b64 s[{S_RET}:{S_RET+1}], L_rare{it%2}")
        p(f"s_branch L_rare_ret{it}")
    rare_items = fix_hazards(rare.items)[0]
    for par in range(2):
        rp = Prog(); p = rp
        p.label(f"L_rare{par}")
        p("s_nop 15")
        Lold = V_LS + (1 - par) * 4
        for qt in range(4):
            rowmax(p, par, qt, V_R + qt)
            p(f"v_log_f32 v{V_R+4}, v{Lold+qt}")
            p(f"v_max3_f32 v{V_R+qt}, v{V_R+qt}, v{V_R+4}, 0")
        xlane4(p, "v_max_f32", V_R, V_R + 4)
        for qt in range(4):
            p(f"v_sub_f32 v{V_R+4+qt}, 0, v{V_R+qt}"); p(f"v_exp_f32 v{V_R+4+qt}, v{V_R+4+qt}")
        for qt in range(4):
            p(f"v_mul_f32 v{Lold+qt}, v{Lold+qt}, v{V_R+4+qt}")
            for r in range(4): p(f"v_sub_f32 v{V_NM+4*qt+r}, v{V_NM+4*qt+r}, v{V_R+qt}")
            for pp in range(2):
                for kt in range(4):
                    for r in range(4): p(f"v_sub_f32 v{Sreg(pp,kt,qt)+r}, v{Sreg(pp,kt,qt)+r}, v{V_R+qt}")
            for dt in range(8):
                o = A_O + (dt * 4 + qt) * 4
                for r in range(4): p(f"v_accvgpr_read_b32 v{V_E+r}, a{o+r}")
                for r in range(4): p(f"v_mul_f32 v{V_E+r}, v{V_E+r}, v{V_R+4+qt}")
                for r in range(4): p(f"v_accvgpr_write_b32 a{o+r}, v{V_E+r}")
        for tau in range(64):
            p(op_exp(par, tau)); p(op_add(par, tau))
            if tau % 2 == 1: p(op_cvt(par, tau))
        for tau in range(SHIFT): p(op_exp(1 - par, tau))
        p("s_nop 3")
        p(f"s_setpc_b64 s[{S_RET}:{S_RET+1}]")
        rare_items += fix_hazards(rp.items)[0]

    resolve_waits(pro.items + body.items + body.items)
    pi = lower_waits(pro.items); bi = lower_waits(body.items)
    pi, a1 = fix_hazards(pi, verbose=True, name="k12pro")
    bi2, a2 = fix_hazards(bi, prev=bi, verbose=True, name="k12body")
    bi3, a3 = fix_hazards(bi2, prev=pi, verbose=True, name="k12body-entry")
    wc = WaitChecker(); wc.run(pi + bi3 + bi3 + epi.items)
    for e in wc.errors[:10]: print("K12 WAITCHECK", e)
    ei, _ = fix_hazards(epi.items, prev=bi3, name="k12epi")
    return pi + bi3 + ei + rare_items, 512, 256
```

```python
from common import *
K3_LDS = 4 * 36864
ABL = os.environ.get('ABL', '')
SCP = '' if 'noscp' in ABL else ' sc1'
PARTB = 4 * 2048 * 576 * 2
def gen_k3():
    pro = Prog(); p = pro
    p("s_cmp_ge_u32 s2, 256"); p("s_cbranch_scc1 L_k3_done")
    stamp_rt(p, 20); stamp(p, 19)
    p(f"s_load_dwordx2 s[6:7], s[0:1], {ARG['ws']}")
    p("v_lshrrev_b32 v15, 6, v0"); p("v_and_b32 v2, 63, v0")
    p("v_readfirstlane_b32 s20, v15")
    p("s_and_b32 s34, s2, 7"); p("s_lshr_b32 s35, s2, 3")
    p("s_lshr_b32 s21, s34, 1")
    p("s_and_b32 s22, s34, 1"); p("s_lshl_b32 s22, s22, 3"); p("s_lshr_b32 s36, s35, 2"); p("s_add_u32 s22, s22, s36")
    p("s_and_b32 s23, s35, 3")
    p("v_lshlrev_b32 v1, 4, v2")
    p("s_cmp_lt_u32 s21, 2")
    p("s_cselect_b32 s24, 16, 18")
    p(f"s_mov_b32 s38, {WP_OFF + 4096*1152}"); p(f"s_cselect_b32 s38, {WP_OFF}, s38")
    p(f"s_mov_b32 s39, {H_OFF}"); p(f"s_cselect_b32 s39, {O_OFF}, s39")
    p(f"s_mul_i32 s10, s24, {256*1152}"); p("s_mov_b32 s11, 0x20000")
    p(f"s_lshl_b32 s14, s24, 20"); p("s_mov_b32 s15, 0x20000")
    p("s_and_b32 s37, s21, 1"); p("s_mul_i32 s40, s37, s24"); p("s_lshl_b32 s41, s40, 19")
    p("s_lshl_b32 s42, s22, 3"); p("s_lshl_b32 s43, s20, 1"); p("s_add_u32 s42, s42, s43")
    p("s_lshl_b32 s27, s42, 12"); p("s_add_u32 s27, s27, s41"); p("s_add_u32 s28, s27, 4096")
    p("s_lshl_b32 s43, s23, 1"); p("s_mul_i32 s43, s43, s24"); p("s_add_u32 s43, s43, s40"); p("s_mul_i32 s26, s43, 36864")
    p("s_mul_i32 s30, s20, 9216"); p("s_add_u32 s26, s26, s30")
    DIST = int(os.environ.get("K3D", "2"))
    p("s_mov_b32 s25, s24"); p(f"s_mov_b32 s29, {DIST+1}")
    p("s_waitcnt lgkmcnt(0)")
    p("s_add_u32 s8, s6, s38"); p("s_addc_u32 s9, s7, 0")
    p("s_add_u32 s12, s6, s39"); p("s_addc_u32 s13, s7, 0")
    Breg = lambda slot, ks, mt: ((slot * 4 + ks) * 2 + mt) * 4
    ACC = 64
    def vmem_ops(slot):
        ops = []
        for i in range(9):
            pre = []
            if i % 4 == 0:
                pre = [(f"s_add_u32 m0, s30, {slot*36864 + i*1024}", None)]
                if i: pre.append((f"s_add_u32 s31, s26, {i*1024}", None))
            ops.append(pre + [(f"buffer_load_dwordx4 v1, s[8:11], s{31 if i >= 4 else 26} offen offset:{(i%4)*1024} lds", f"W{slot}")])
        bl = []
        for ks in range(4):
            for mt in range(2):
                r = Breg(slot, ks, mt)
                bl.append([(f"buffer_load_dwordx4 a[{r}:{r+3}], v1, s[12:15], s{27+mt} offen offset:{ks*1024}", f"B{slot}")])
        out = []
        for i in range(9):
            out.append(ops[i])
            if i < 8: out.append(bl[i])
        return out
    adv = ["s_add_u32 s26, s26, 36864", "s_add_u32 s27, s27, 524288", "s_add_u32 s28, s28, 524288"]
    for grp in vmem_ops(0):
        for t, tag in grp: p(t, tag)
    for t in adv: p(t)
    p("v_lshrrev_b32 v16, 2, v2"); p("s_movk_i32 s38, 288"); p("v_mul_u32_u24 v16, s38, v16")
    p("v_and_b32 v17, 3, v2"); p("v_lshl_add_u32 v11, v17, 3, v16")
    for q in range(1, 4): p(f"v_add_u32 v{11+q}, {q*36864}, v11")
    srd(p, 16, 6, PARTB, PART_OFF)
    p("s_lshl_b32 s40, s21, 6"); p("s_lshl_b32 s41, s22, 2"); p("s_add_u32 s40, s40, s41"); p("s_add_u32 s40, s40, s23")
    p("s_lshl_b32 s40, s40, 2"); p("s_add_u32 s40, s40, s20"); p("s_mul_i32 s40, s40, 9216")
    NPRE = int(os.environ.get("K3PRE", "16"))
    v1ops = vmem_ops(1)
    for grp in v1ops[:NPRE]:
        for t, tag in grp: p(t, tag)
    p.items.append(WaitFor(vm=("W0", "B0"))); p("s_barrier")
    def reads(gi):
        gi %= 72
        slot = gi // 18; i = gi % 18; kp = i // 9; nt = i % 9
        base = 16 + (gi % 4) * 8
        out = []
        for q in range(2):
            for t in range(2):
                d = base + q * 4 + 2 * t
                out.append((f"ds_read_b64_tr_b16 v[{d}:{d+1}], v{11+slot} offset:{(2*kp+q)*9216 + t*4608 + nt*32}", f"A{gi%4}"))
        return out
    for g in range(3):
        for t, tag in reads(g): p(t, tag)
    p.items.append(WaitFor(lg=("A0",)))
    stamp(p, 18)
    def stage(p, s, first=False):
        if first:
            advg = [[(t, None) for t in adv]]
            vq = v1ops[NPRE:]
            for sl in range(2, DIST + 1):
                o = vmem_ops(sl); o[0] = [(t, None) for t in adv] + o[0]; vq = vq + o
            pos = {}
            for n, grp in enumerate(vq): pos[1 + (n * 61) // len(vq)] = grp
            assert len(pos) == len(vq)
        else:
            vm = vmem_ops((s + DIST) % 4)
            pos = {4 * i + 2: vm[i] for i in range(15)}
            pos[60] = vm[15]; pos[62] = vm[16]
        for i in range(18):
            gi = s * 18 + i; kp = i // 9; nt = i % 9
            if i < 15: rd = reads(gi + 3)
            elif i == 15: rd = []
            elif i == 16: rd = reads(gi + 2) + reads(gi + 3)
            else: rd = reads(gi + 3)
            per = (len(rd) + 3) // 4
            base = 16 + (gi % 4) * 8
            n = 0
            for mt in range(2):
                for q in range(2):
                    a = ACC + (nt * 2 + mt) * 4; b = Breg(s, 2 * kp + q, mt)
                    C = "0" if (first and kp == 0 and q == 0) else f"v[{a}:{a+3}]"
                    p(f"v_mfma_f32_16x16x32_bf16 v[{a}:{a+3}], v[{base+4*q}:{base+4*q+3}], a[{b}:{b+3}], {C}")
                    if not first:
                        if i == 0 and n == 0:
                            p("s_cmp_lt_u32 s29, s24"); p("s_cselect_b32 s10, s10, 0"); p("s_cselect_b32 s14, s14, 0")
                        if i == 0 and n == 1: p("s_add_u32 s29, s29, 1")
                    if i == 15 and n == 3:
                        p.items.append(WaitFor(vm=(f"W{(s+1)%4}", f"B{(s+1)%4}"), lg0=True)); p("s_barrier")
                    elif n == 3:
                        p.items.append(WaitFor(lg=(f"A{(gi+1)%4}",)))
                    if i == 17 and n < 3: p(adv[n])
                    if i == 16 and n == 0: p("s_sub_u32 s25, s25, 1")
                    vmops = pos.get(4 * i + n, [])
                    for t, tag in vmops[:-1]: p(t, tag)
                    for t, tag in rd[n*per:(n+1)*per]: p(t, tag)
                    for t, tag in vmops[-1:]: p(t, tag)
                    n += 1
        if STAMP:
            for t in ["s_memtime s[76:77]", "s_waitcnt lgkmcnt(0)", "s_mov_b32 m0, s25", "s_nop 0", "s_movreld_b32 s80, s76"]: p(t)
    stage(p, 0, first=True)
    body = Prog(); p = body
    p.label("L_k3_loop", 6)
    for s in (1, 2, 3, 0):
        stage(p, s)
        p("s_cmp_eq_u32 s25, 0")
        if s != 0: p("s_cbranch_scc1 L_k3_epi")
        else: p("s_cbranch_scc0 L_k3_loop")
    epi = Prog(); p = epi
    p.label("L_k3_epi")
    p("s_nop 4")
    for nt in range(9):
        a = ACC + nt * 8
        for i in range(4): p(f"v_cvt_pk_bf16_f32 v{a+i}, v{a+2*i}, v{a+2*i+1}")
        if nt % 4 == 0 and nt: p("s_add_u32 s40, s40, 4096")
        p(f"buffer_store_dwordx4 v[{a}:{a+3}], v1, s[16:19], s40 offen offset:{(nt%4)*1024}{SCP}")
    if STAMP:
        p("s_waitcnt vmcnt(0)"); p("s_memtime s[60:61]"); p("s_waitcnt lgkmcnt(0)")
    stamp_rt(p, 21); stamp_dump(p, 6, 20, 2)
    if STAMP:
        p("v_mov_b32 v2, s60"); p("buffer_store_dword v2, v1, s[72:75], s78 offen offset:88")
    p.label("L_k3_done"); p("s_endpgm")
    resolve_waits(pro.items + body.items + body.items)
    pi = lower_waits(pro.items); bi = lower_waits(body.items)
    pi, _ = fix_hazards(pi, name="k3pro")
    bi2, added = fix_hazards(bi, prev=bi, verbose=True, name="k3body")
    wc = WaitChecker(); wc.run(pi + bi2 + bi2)
    for e in wc.errors[:10]: print("K3 WAITCHECK", e)
    ei, _ = fix_hazards(epi.items, prev=bi2, name="k3epi")
    return pi + bi2 + ei, 136 + 128, 136

def gen_k4():
    p = Prog()
    p("s_cmp_ge_u32 s2, 256"); p("s_cbranch_scc1 L_k4_done")
    p(f"s_load_dwordx2 s[4:5], s[0:1], {ARG['x']}"); p(f"s_load_dwordx2 s[6:7], s[0:1], {ARG['ws']}"); p(f"s_load_dwordx2 s[20:21], s[0:1], {ARG['out']}")
    p("v_lshrrev_b32 v1, 6, v0")
    p("v_and_b32 v2, 63, v0")
    p("v_lshlrev_b32 v3, 4, v0")
    p("s_mul_i32 s22, s2, 9216")
    p("s_lshr_b32 s23, s2, 4"); p("s_lshl_b32 s23, s23, 7"); p("s_and_b32 s24, s2, 3"); p("s_lshl_b32 s24, s24, 5"); p("s_add_u32 s23, s23, s24")
    p("s_mul_i32 s23, s23, 1152")
    p("s_lshr_b32 s24, s2, 2"); p("s_and_b32 s24, s24, 3"); p("s_mul_i32 s24, s24, 288"); p("s_add_u32 s23, s23, s24")
    p("v_and_b32 v4, 15, v2"); p("v_mul_u32_u24 v4, 1152, v4")
    p("v_lshl_add_u32 v4, v1, 5, v4"); p("v_lshrrev_b32 v5, 4, v2"); p("v_lshl_add_u32 v4, v5, 3, v4")
    p(f"s_add_u32 s25, s23, {16*1152}")
    p("s_waitcnt lgkmcnt(0)")
    srd(p, 12, 6, PARTB, PART_OFF)
    for sp in range(4):
        p(f"s_add_u32 s26, s22, {sp*64*4*9216}")
        p(f"buffer_load_dwordx4 v[{8+4*sp}:{11+4*sp}], v3, s[12:15], s26 offen")
    srd(p, 8, 4, XN_BYTES); srd(p, 16, 20, XN_BYTES)
    for mt in range(2):
        p(f"buffer_load_dwordx2 v[{24+2*mt}:{25+2*mt}], v4, s[8:11], s{23 if mt == 0 else 25} offen")
    p("s_mov_b32 s27, 0xffff0000")
    LOG2E = 1.4426950408889634
    def unpack(dst, src):
        p(f"v_lshlrev_b32 v{dst}, 16, v{src}"); p(f"v_and_b32 v{dst+1}, s27, v{src}")
    def rnd2(a, b):
        p(f"v_cvt_pk_bf16_f32 v{b}, v{a}, v{b}"); p(f"v_lshlrev_b32 v{a}, 16, v{b}"); p(f"v_and_b32 v{b}, s27, v{b}")
    S, D, T = 32, 40, 48
    p("s_waitcnt vmcnt(2)")
    for i in range(4):
        unpack(D + 2*i, 16 + i); unpack(T + 2*i, 20 + i)
    for i in range(8): p(f"v_add_f32 v{D+i}, v{D+i}, v{T+i}")
    for i in range(4): rnd2(D + 2*i, D + 2*i + 1)
    for i in range(8): p(f"v_mul_f32 v{T+i}, {f2u(-LOG2E)}, v{D+i}")
    for i in range(8): p(f"v_exp_f32 v{T+i}, v{T+i}")
    for i in range(4):
        unpack(S + 2*i, 8 + i); unpack(56 + 2*i, 12 + i)
    for i in range(8): p(f"v_add_f32 v{T+i}, 1.0, v{T+i}")
    for i in range(8): p(f"v_rcp_f32 v{T+i}, v{T+i}")
    for i in range(8): p(f"v_add_f32 v{S+i}, v{S+i}, v{56+i}")
    for i in range(4): rnd2(S + 2*i, S + 2*i + 1)
    for i in range(8): p(f"v_mul_f32 v{D+i}, v{D+i}, v{T+i}")
    for i in range(4): rnd2(D + 2*i, D + 2*i + 1)
    for i in range(8): p(f"v_mul_f32 v{S+i}, v{S+i}, v{D+i}")
    for i in range(4): rnd2(S + 2*i, S + 2*i + 1)
    p("s_waitcnt vmcnt(0)")
    for i in range(4): unpack(T + 2*i, 24 + i)
    for i in range(8): p(f"v_add_f32 v{S+i}, v{S+i}, v{T+i}")
    for i in range(4): p(f"v_cvt_pk_bf16_f32 v{S+i}, v{S+2*i}, v{S+2*i+1}")
    p(f"buffer_store_dwordx2 v[{S}:{S+1}], v4, s[16:19], s23 offen")
    p(f"buffer_store_dwordx2 v[{S+2}:{S+3}], v4, s[16:19], s25 offen")
    p.label("L_k4_done"); p("s_endpgm")
    return finish(p, "k4"), 64, 64
```

```python
from common import *
def gen_k0():
    p = Prog()
    PF = os.environ.get("K0PF", "cqk")
    NT = " nt" if "n" in PF else ""
    p("s_cmp_ge_u32 s2, 256"); p("s_cbranch_scc1 L_k0_done")
    if PF:
        p("v_lshrrev_b32 v1, 6, v0"); p("s_nop 0"); p("v_readfirstlane_b32 s20, v1")
        p("s_cmp_eq_u32 s20, 0"); p("s_cbranch_scc0 L_k0_pf")
    p(f"s_load_dwordx2 s[4:5], s[0:1], {ARG['x']}"); p(f"s_load_dwordx2 s[6:7], s[0:1], {ARG['ws']}")
    p("v_lshrrev_b32 v1, 3, v0")
    p("v_and_b32 v2, 7, v0")
    p("s_lshl_b32 s3, s2, 3")
    p("v_add_u32 v3, s3, v1")
    p("v_mul_u32_u24 v3, 1152, v3")
    p("v_lshl_add_u32 v3, v2, 4, v3")
    p("s_waitcnt lgkmcnt(0)")
    srd(p, 8, 4, XN_BYTES); srd(p, 12, 6, XN_BYTES, XN_OFF)
    for i in range(9):
        p(f"buffer_load_dwordx4 v[{8+4*i}:{11+4*i}], v3, s[8:11], 0 offen offset:{i*128}")
    p("s_and_b32 s16, s2, 1"); p("s_lshl_b32 s16, s16, 3")
    p("v_add_u32 v4, s16, v1")
    p("v_and_b32 v5, 3, v2"); p("v_lshl_add_u32 v4, v5, 4, v4"); p("v_lshlrev_b32 v4, 4, v4")
    p("v_lshrrev_b32 v5, 2, v2"); p("v_lshl_add_u32 v4, v5, 12, v4")
    p("s_lshr_b32 s17, s2, 3"); p("s_mul_i32 s17, s17, 73728"); p("s_lshr_b32 s19, s2, 1"); p("s_and_b32 s19, s19, 3"); p("s_lshl_b32 s19, s19, 10"); p("s_add_u32 s17, s17, s19")
    p("s_mov_b32 s18, 0xffff0000")
    F = 48
    for i in range(9):
        p(f"s_waitcnt vmcnt({8-i})")
        for j in range(4):
            p(f"v_lshlrev_b32 v{F+8*i+2*j}, 16, v{8+4*i+j}")
            p(f"v_and_b32 v{F+8*i+2*j+1}, s18, v{8+4*i+j}")
        for j in range(8):
            if i == 0 and j < 4: p(f"v_mov_b32 v{120+j}, v{F+j}")
            else: p(f"v_add_f32 v{120+j%4}, v{120+j%4}, v{F+8*i+j}")
    def reduce8(r):
        p(f"v_add_f32 v{r}, v{r}, v{r+1}"); p(f"v_add_f32 v{r+2}, v{r+2}, v{r+3}"); p(f"v_add_f32 v{r}, v{r}, v{r+2}")
        p(f"v_add_f32_dpp v{r}, v{r}, v{r} quad_perm:[1,0,3,2] row_mask:0xf bank_mask:0xf")
        p(f"v_add_f32_dpp v{r}, v{r}, v{r} quad_perm:[2,3,0,1] row_mask:0xf bank_mask:0xf")
        p(f"v_add_f32_dpp v{r}, v{r}, v{r} row_half_mirror row_mask:0xf bank_mask:0xf")
    reduce8(120)
    p(f"v_mul_f32 v124, {f2u(1.0/576)}, v120")
    for e in range(72):
        t = 126 + (e % 4)
        p(f"v_sub_f32 v{t}, v{F+e}, v124")
        if e < 4: p(f"v_mul_f32 v{120+e}, v{t}, v{t}")
        else: p(f"v_fmac_f32 v{120+e%4}, v{t}, v{t}")
    reduce8(120)
    p(f"v_mul_f32 v120, {f2u(1.0/576)}, v120")
    def rnd(r):
        p(f"v_cvt_pk_bf16_f32 v{r}, v{r}, v{r}"); p(f"v_and_b32 v{r}, s18, v{r}")
    rnd(120); rnd(124)
    p(f"v_add_f32 v120, {f2u(1e-5)}, v120"); rnd(120)
    p("v_sqrt_f32 v120, v120"); rnd(120)
    p("v_rcp_f32 v121, v120")
    p("v_fma_f32 v122, -v120, v121, 1.0"); p("v_fmac_f32 v121, v122, v121")
    for i in range(9):
        for j in range(4):
            a, b = F+8*i+2*j, F+8*i+2*j+1
            p(f"v_sub_f32 v{a}, v{a}, v124"); p(f"v_sub_f32 v{b}, v{b}, v124")
        for j in range(4):
            a, b = F+8*i+2*j, F+8*i+2*j+1
            p(f"v_cvt_pk_bf16_f32 v{b}, v{a}, v{b}")
        for j in range(4):
            a, b = F+8*i+2*j, F+8*i+2*j+1
            p(f"v_lshlrev_b32 v{a}, 16, v{b}"); p(f"v_and_b32 v{b}, s18, v{b}")
        for j in range(4):
            a, b = F+8*i+2*j, F+8*i+2*j+1
            p(f"v_mul_f32 v{a}, v{a}, v121"); p(f"v_mul_f32 v{b}, v{b}, v121")
        for j in range(4):
            a, b = F+8*i+2*j, F+8*i+2*j+1
            p(f"v_cvt_pk_bf16_f32 v{8+4*i+j}, v{a}, v{b}")
        p(f"s_add_u32 s19, s17, {i*8192}")
        p(f"buffer_store_dwordx4 v[{8+4*i}:{11+4*i}], v4, s[12:15], s19 offen sc1")
    p.label("L_k0_done"); p("s_endpgm")
    if PF:
        p.label("L_k0_pf")
        p(f"s_load_dwordx4 s[4:7], s[0:1], {ARG['k']}"); p(f"s_load_dwordx2 s[16:17], s[0:1], {ARG['wq']}")
        p("s_getpc_b64 s[24:25]")
        p.label("L_k0_pc")
        p("v_and_b32 v1, 63, v0"); p("v_lshlrev_b32 v1, 4, v1")
        p("s_and_b32 s21, s2, 7"); p("s_lshr_b32 s22, s2, 3"); p("s_mul_i32 s22, s22, 3"); p("s_add_u32 s22, s22, s20"); p("s_sub_u32 s22, s22, 1")
        n = 0
        if "c" in PF:
            p("s_and_b32 s25, s25, 0xffff"); p("s_mov_b32 s26, L_code_end-L_k0_pc"); p("s_mov_b32 s27, 0x20000")
            p("s_lshl_b32 s23, s22, 10")
            p(f"buffer_load_dwordx4 v[4:7], v1, s[24:27], s23 offen"); n += 1
        p("s_waitcnt lgkmcnt(0)")
        if "q" in PF:
            srd(p, 8, 16, 576 * 8192)
            p("s_lshl_b32 s23, s22, 13"); p("s_lshl_b32 s28, s21, 10"); p("s_add_u32 s23, s23, s28")
            nq = 6 if "Q" not in PF else 3
            for i in range(nq):
                p(f"buffer_load_dwordx4 v[{4+4*n}:{7+4*n}], v1, s[8:11], s23 offen{NT}"); n += 1
                if i + 1 < nq: p(f"s_add_u32 s23, s23, {96*8192}")
        if "k" in PF:
            srd(p, 12, 4, 16 * 524288); srd(p, 28, 6, 16 * 524288)
            p("s_cmp_ge_u32 s22, 48"); p("s_cselect_b32 s23, 1, 0"); p("s_mul_i32 s32, s23, 48"); p("s_sub_u32 s32, s22, s32")
            p("s_lshl_b32 s33, s21, 1"); p("s_add_u32 s23, s23, s33"); p("s_lshl_b32 s23, s23, 19"); p("s_lshl_b32 s32, s32, 10"); p("s_add_u32 s23, s23, s32")
            p(f"buffer_load_dwordx4 v[{4+4*n}:{7+4*n}], v1, s[12:15], s23 offen{NT}"); n += 1
            p(f"buffer_load_dwordx4 v[{4+4*n}:{7+4*n}], v1, s[28:31], s23 offen{NT}"); n += 1
        p("s_endpgm")
    return finish(p, "k0"), 132, 132
```

```python
from common import *
import math
K12_LDS = 160 * 1024
LOG2E = 1.4426950408889634
QSCALE = LOG2E / math.sqrt(128.0)
GC1 = -2.0 * math.sqrt(2.0 / math.pi) * LOG2E
GC2 = GC1 * 0.044715
THRESH = 2.0 ** 64
ABL = os.environ.get('ABL', '')
NTW = "" if "nontw" in ABL else " nt"
NTKV = " nt" if 'ntkv' in ABL else ""
SCH = "" if 'nosch' in ABL else " sc1"
SCO = "" if 'nosco' in ABL else " sc1"

S_HF = 4
S_WG, S_WU, S_WQ, S_K, S_V, S_XN, S_H, S_O = 8, 12, 16, 20, 24, 28, 32, 36
S_WAVE, S_RB, S_J = 40, 41, 42
S_RCNT = 43
S_T0, S_T1, S_T2 = 44, 45, 46
S_KOFF, S_VOFF = 47, 48
S_W1K = 49
S_RET = 50
S_CNT = 52
S_W3K = 53
S_BF = 54
S_BH = 55
S_BQ = 56
S_RS = 57
S_RD = 58
S_HBASE = 59
S_HHALF = 60
S_THR = 61
S_OBASE = 62
S_XB = 63
S_W6K = 79

V_L16 = 1
V_WF = 2
V_WQ = 3
V_RA = 4
V_RH = 8
V_RQ = 88
V_QP = 10
V_C1, V_C2 = 12, 13
V_KD, V_VD = 14, 15
V_AF = 16
V_T = 52
V_HO = 68
V_KA = 76
V_VA = 80
V_RPD = 0
V_ACC = 96
V_X = 224
WSLOT = [128 * 1024, 80 * 1024, 40 * 1024, 104 * 1024]
def wbase(slot):
    b = WSLOT[slot]
    return (0, b - 40 * 1024) if b < 104 * 1024 else (1, b - 104 * 1024)

def xreg(ks, mt):
    f = ks * 4 + mt
    return f"a[{4*f}:{4*f+3}]" if f < 64 else f"v[{V_X+4*(f-64)}:{V_X+4*(f-64)+3}]"

A_Q, A_KF, A_VF, A_O = 0, 64, 96, 128
V_S = 96
V_P0 = 224
V_P1 = 16
V_NM = 32
V_LS = 48
V_E = 56
V_CK = 64
V_R = 65
V_RP = [88, 92, 4, 8]
SHIFT = 2

class Gap:
    def __init__(self, mfma):
        self.mfma = mfma; self.sh = []; self.mem = []; self.valu = []; self.post = []

def emit_gaps(p, gaps):
    for g in gaps:
        if g.mfma: p(g.mfma)
        for it in g.sh + g.mem + g.valu + g.post:
            if isinstance(it, tuple): p(it[0], it[1])
            elif isinstance(it, str): p(it)
            else: p.items.append(it)

def slots_of(text):
    return 2 if text.split()[0] in TRANS else 1

def fill_valu(gaps, start, queue, cap=2, window=40, mins=None):
    class Q: pass
    items = []
    for qi, op in enumerate(queue):
        q = Q(); q.op = op; q.min = mins[qi] if mins else 0; q.mem = isinstance(op, tuple)
        ins = Ins(op[2][0]) if q.mem else Ins(op)
        q.rd = set(ins.rd); q.wr = set(ins.wr); q.slots = 1 if q.mem else slots_of(op); q.trans = (q.slots == 2)
        items.append(q)
    ready_at = {}
    pend = list(items)
    for gi in range(start, len(gaps)):
        g = gaps[gi]
        used = len(g.mem) + sum(slots_of(v) for v in g.valu) + max(0, len(g.sh) - 1)
        while pend and used < cap:
            blocked_w = set(); blocked_r = set()
            cands = []
            for q in pend[:window]:
                dep = (q.rd & blocked_w) or (q.wr & blocked_w) or (q.wr & blocked_r)
                if not dep and gi >= q.min and all(ready_at.get(r, -1) <= gi for r in q.rd):
                    if q.mem:
                        if not g.valu and len(g.sh) == 0: cands.append(q)
                    elif used + q.slots <= cap: cands.append(q)
                blocked_w |= q.wr; blocked_r |= q.rd
            if not cands: break
            mems = [q for q in cands if q.mem]; tr = [q for q in cands if q.trans]
            if mems and used == 1: best = mems[0]
            elif tr: best = tr[0]
            else: best = cands[0]
            if best.mem:
                g.sh += best.op[1]; g.mem.append(best.op[2])
            else:
                g.valu.append(best.op)
                for r in best.wr: ready_at[r] = gi + 1
            used += best.slots
            pend.remove(best)
        if not pend: break
    return [q.op for q in pend]

KS = lambda T: (T + 3) % 4
VS = lambda T: (T + 1) % 4

def gen_k12():
    pro = Prog(); p = pro
    p("s_cmp_ge_u32 s2, 256"); p("s_cbranch_scc1 L_k12_done")
    stamp_rt(p, 20); stamp(p, 0)
    p(f"s_load_dwordx2 s[68:69], s[0:1], {ARG['wq']}")
    p(f"s_load_dwordx2 s[70:71], s[0:1], {ARG['ws']}")
    p(f"s_load_dwordx4 s[72:75], s[0:1], {ARG['wg']}")
    p(f"s_load_dwordx4 s[64:67], s[0:1], {ARG['k']}")
    p("v_lshrrev_b32 v16, 6, v0"); p("v_and_b32 v17, 63, v0")
    p(f"v_readfirstlane_b32 s{S_WAVE}, v16")
    p(f"s_and_b32 s{S_T0}, s2, 7"); p(f"s_lshr_b32 s{S_T1}, s2, 3")
    RBB = int(os.environ.get("RBB", "3"))
    p(f"s_and_b32 s{S_RB}, s{S_T1}, {(1 << RBB) - 1}"); p(f"s_lshr_b32 s{S_T1}, s{S_T1}, {RBB}")
    if RBB < 3:
        p(f"s_and_b32 s{S_T2}, s{S_T0}, {(1 << (3 - RBB)) - 1}"); p(f"s_lshl_b32 s{S_T2}, s{S_T2}, {RBB}"); p(f"s_add_u32 s{S_RB}, s{S_RB}, s{S_T2}")
        p(f"s_lshr_b32 s{S_T0}, s{S_T0}, {3 - RBB}")
    p(f"s_lshl_b32 s{S_J}, s{S_T0}, {5 - RBB}"); p(f"s_add_u32 s{S_J}, s{S_J}, s{S_T1}")
    p(f"v_lshlrev_b32 v{V_L16}, 4, v17")
    p("v_lshrrev_b32 v20, 4, v17"); p("v_and_b32 v22, 15, v17")
    p("v_lshlrev_b32 v23, 2, v20"); p("v_xor_b32 v23, v23, v22"); p("v_lshlrev_b32 v24, 13, v20"); p(f"v_lshl_add_u32 v{V_WQ}, v23, 4, v24")
    p(f"s_mul_i32 s{S_W6K}, s{S_WAVE}, 6144")
    p(f"s_mul_i32 s{S_BQ}, s{S_WAVE}, {24*8192}"); p(f"s_lshl_b32 s{S_T0}, s{S_J}, 8"); p(f"s_add_u32 s{S_BQ}, s{S_BQ}, s{S_T0}")
    p(f"s_lshl_b32 s{S_T0}, s{S_RB}, 2"); p(f"s_add_u32 s{S_T0}, s{S_T0}, s{S_WAVE}")
    p(f"s_mul_i32 s{S_XB}, s{S_T0}, 73728"); p(f"s_lshl_b32 s{S_HBASE}, s{S_T0}, 14")
    for d, n in ((S_WQ, 576 * 8192), (S_XN, XN_BYTES)):
        p(f"s_mov_b32 s{d+2}, {n}"); p(f"s_mov_b32 s{d+3}, 0x20000")
    p("s_waitcnt lgkmcnt(0)")
    for d, b in ((S_WQ, 68), (S_XN, 70)):
        p(f"s_mov_b32 s{d}, s{b}"); p(f"s_mov_b32 s{d+1}, s{b+1}")
    assert XN_OFF == 0
    if 'finepro' in ABL: stamp(p, 2)

    stages = [("q", 0, sub, 0) for sub in range(6)] + [("h", 0, sub, 0) for sub in range(3)]
    for t in range(4): stages += [("f", t, sub, (t + 1) % 2) for sub in range(3)]
    NST = len(stages)
    tmpsel = [0]
    def tmp():
        tmpsel[0] ^= 1
        return (S_T0, S_T1)[tmpsel[0]]
    def w_dma(st):
        kind, t, sub, buf = stages[st]; slot = st % 4
        ops = []
        if kind == "q":
            for i in range(6):
                tm = tmp()
                sal = [f"s_add_u32 s{tm}, s{S_BQ}, {(sub * 96 + 4 * i) * 8192}", f"s_add_u32 m0, s{S_W6K}, {WSLOT[slot] + i*1024}"]
                ops.append((sal, (f"buffer_load_dwordx4 v{V_WQ}, s[{S_WQ}:{S_WQ+3}], s{tm} offen{NTW} lds", f"W{st}")))
            return ops
        for reg in range(2):
            for i in range(3):
                base, stride, srdn, vo, cadd = (S_BH if kind == "h" else S_BF), 9216, (S_WG, S_WU)[reg], V_WF, t * 64
                imm = (sub * 192 + 16 * i) * stride + cadd
                tm = tmp()
                sal = [f"s_add_u32 s{tm}, s{base}, {imm}", f"s_add_u32 m0, s{S_W3K}, {WSLOT[slot] + reg*12288 + i*1024}"]
                ops.append((sal, (f"buffer_load_dwordx4 v{vo}, s[{srdn}:{srdn+3}], s{tm} offen{NTW} lds", f"W{st}")))
        return ops
    def x_loads(k0, k1):
        ops = []
        for ks in range(k0, k1):
            for mt in range(4):
                ops.append(([f"s_add_u32 s{S_RD}, s{S_XB}, {ks*4096}"] if mt == 0 else [],
                            (f"buffer_load_dwordx4 {xreg(ks, mt)}, v{V_L16}, s[{S_XN}:{S_XN+3}], s{S_RD} offen offset:{mt*1024}", f"X{ks//3}")))
        return ops
    def kv_dma(which, tile_slot, soff, add):
        ops = []
        for t in range(4):
            tm = tmp()
            base = (0 if which == "K" else 65536) + tile_slot * 16384 + t * 4096
            srdn = S_K if which == "K" else S_V
            if soff is None: sal = [f"s_mov_b32 s{tm}, {add + t*4096}"]
            else: sal = [f"s_add_u32 s{tm}, s{soff}, {add + t*4096}"]
            sal.append(f"s_add_u32 m0, s{S_W1K}, {base}")
            ops.append((sal, (f"buffer_load_dwordx4 v{V_KD if which == 'K' else V_VD}, s[{srdn}:{srdn+3}], s{tm} offen{NTKV} lds", f"{which}{tile_slot}")))
        return ops
    def issue(ops):
        for sal, op in ops:
            for s in reversed(sal): p(s)
            p(op[0], op[1])
    issue(w_dma(0)); issue(x_loads(0, 3))
    if 'finepro' in ABL: stamp(p, 3)
    p("v_lshrrev_b32 v18, 2, v17"); p("v_and_b32 v19, 3, v17"); p("v_and_b32 v21, 3, v18")
    p("v_lshl_add_u32 v23, v20, 3, v21"); p("v_lshlrev_b32 v24, 8, v23"); p("v_lshl_add_u32 v24, v19, 4, v24"); p(f"v_add_u32 v24, {40*1024}, v24")
    for sg_ in range(4):
        p(f"v_xor_b32 v25, {sg_}, v21"); p(f"v_lshl_add_u32 v{V_RQ+sg_}, v25, 6, v24"); p(f"v_add_u32 v{V_RQ+4+sg_}, {64*1024}, v{V_RQ+sg_}")
    p("v_lshlrev_b32 v23, 6, v23")
    p("v_and_b32 v24, 1, v20"); p("v_lshlrev_b32 v24, 5, v24")
    p("v_lshl_add_u32 v25, v19, 3, v23")
    p(f"v_add_u32 v{V_RA}, v25, v24"); p(f"v_add_u32 v{V_RA}, {40*1024}, v{V_RA}")
    p(f"v_xor_b32 v{V_RA+1}, 32, v{V_RA}")
    p(f"v_add_u32 v{V_RA+2}, {64*1024}, v{V_RA}"); p(f"v_add_u32 v{V_RA+3}, {64*1024}, v{V_RA+1}")
    p(f"s_and_b32 s{S_T2}, s{S_J}, 1")
    p(f"s_lshl_b32 s{S_T0}, s{S_T2}, 5")
    p(f"v_xor_b32 v{V_RH}, s{S_T0}, v{V_RA}"); p(f"v_add_u32 v{V_RH+1}, {64*1024}, v{V_RH}")
    p("v_lshrrev_b32 v23, 5, v17"); p("v_lshlrev_b32 v23, 1, v23"); p("v_xor_b32 v23, v23, v19")
    p(f"v_mul_u32_u24 v24, 9216, v18"); p(f"v_lshl_add_u32 v{V_WF}, v23, 4, v24")
    p(f"v_mov_b32 v{V_C1}, {f2u(GC1)}"); p(f"v_mov_b32 v{V_C2}, {f2u(GC2)}")
    srd(p, S_WG, 72, 576 * 9216); srd(p, S_WU, 74, 576 * 9216); srd(p, S_H, 70, H_BYTES, H_OFF); srd(p, S_O, 70, O_BYTES, O_OFF)
    p(f"s_mul_i32 s{S_W3K}, s{S_WAVE}, 3072")
    p(f"s_mul_i32 s{S_BH}, s{S_WAVE}, {48*9216}")
    p(f"s_mul_i32 s{S_RS}, s{S_J}, 288"); p(f"s_add_u32 s{S_RS}, s{S_RS}, s{S_T0}")
    p(f"s_add_u32 s{S_BF}, s{S_BH}, s{S_RS}")
    p(f"s_lshr_b32 s{S_T0}, s{S_J}, 1"); p(f"s_lshl_b32 s{S_T0}, s{S_T0}, 19")
    for d, b in ((S_K, 64), (S_V, 66)):
        p(f"s_add_u32 s{d}, s{b}, s{S_T0}"); p(f"s_addc_u32 s{d+1}, s{b+1}, 0"); p(f"s_mov_b32 s{d+2}, 524288"); p(f"s_mov_b32 s{d+3}, 0x20000")
    p(f"s_lshl_b32 s{S_W1K}, s{S_WAVE}, 10")
    p(f"s_lshr_b32 s{S_T0}, s{S_J}, 1"); p(f"s_mul_i32 s{S_KOFF}, s{S_T0}, 576"); p(f"s_add_u32 s{S_KOFF}, s{S_KOFF}, 256")
    p(f"s_add_u32 s{S_BH}, s{S_BH}, s{S_KOFF}")
    def hoff(dst, colreg, add):
        p(f"s_lshr_b32 s{S_T0}, s{colreg}, 6"); p(f"s_add_u32 s{S_T0}, s{S_T0}, {add}")
        p(f"s_lshr_b32 s{S_T1}, s{S_T0}, 2"); p(f"s_lshl_b32 s{S_T1}, s{S_T1}, 19")
        p(f"s_and_b32 s{S_T0}, s{S_T0}, 3"); p(f"s_lshl_b32 s{S_T0}, s{S_T0}, 10")
        p(f"s_add_u32 s{dst}, s{S_T0}, s{S_T1}"); p(f"s_add_u32 s{dst}, s{dst}, s{S_HBASE}")
    hoff(S_HHALF, S_KOFF, 0); p(f"s_lshl_b32 s{S_T0}, s{S_T2}, 3"); p(f"s_add_u32 s{S_HHALF}, s{S_HHALF}, s{S_T0}")
    for t in range(4): hoff(S_HF + t, S_RS, t)
    p(f"s_lshl_b32 s{S_T0}, s{S_J}, 19"); p(f"s_add_u32 s{S_OBASE}, s{S_HBASE}, s{S_T0}")
    p(f"s_mov_b32 s{S_THR}, {f2u(THRESH)}")
    p(f"s_lshl_b32 s{S_T0}, s{S_WAVE}, 2"); p(f"v_add_u32 v23, s{S_T0}, v20")
    p(f"v_xor_b32 v24, v22, v23"); p(f"v_lshlrev_b32 v24, 4, v24"); p(f"v_lshl_add_u32 v{V_KD}, v23, 8, v24")
    p(f"v_and_b32 v24, 7, v23"); p(f"v_lshlrev_b32 v24, 1, v24"); p(f"v_xor_b32 v24, v22, v24"); p(f"v_lshlrev_b32 v24, 4, v24"); p(f"v_lshl_add_u32 v{V_VD}, v23, 8, v24")
    for ks in range(4):
        p(f"v_add_u32 v23, {4*ks}, v20"); p("v_xor_b32 v23, v23, v22"); p("v_lshlrev_b32 v23, 4, v23"); p(f"v_lshl_add_u32 v{V_KA+ks}, v22, 8, v23")
    p("v_and_b32 v24, 7, v18"); p("v_lshlrev_b32 v25, 8, v18"); p("v_lshl_add_u32 v25, v19, 3, v25"); p("v_add_u32 v25, 0x10000, v25")
    for dt in range(8):
        p(f"v_xor_b32 v23, {dt}, v24"); p(f"v_lshl_add_u32 v{V_VA+dt}, v23, 5, v25")
    p(f"s_lshl_b32 s{S_T0}, s2, 2"); p(f"s_add_u32 s{S_T0}, s{S_T0}, s{S_WAVE}")
    p(f"s_sub_u32 s{S_T1}, s{S_T0}, 288"); p(f"s_cmp_lt_u32 s{S_T0}, 288")
    p(f"s_cselect_b32 s{S_T1}, s{S_T0}, s{S_T1}")
    p(f"s_cselect_b32 s{S_RCNT}, 16, 18")
    p(f"s_mov_b32 s{S_VOFF}, {4608*288}"); p(f"s_cselect_b32 s{S_VOFF}, {4096*288}, s{S_VOFF}")
    p(f"s_cmp_lt_u32 s{S_T0}, 576"); p(f"s_cselect_b32 s{S_RCNT}, s{S_RCNT}, 0")
    p(f"s_lshl_b32 s{S_RS}, s{S_T1}, 10"); p(f"s_lshl_b32 s{S_T1}, s{S_T1}, 6")
    p(f"v_add_u32 v23, s{S_T1}, v17")
    p(f"s_mov_b32 s{S_T1}, 58255"); p(f"v_mul_u32_u24 v24, s{S_T1}, v23"); p("v_lshrrev_b32 v24, 22, v24")
    p("v_mul_u32_u24 v25, 72, v24"); p("v_sub_u32 v25, v23, v25")
    p("v_mul_u32_u24 v26, 57, v25"); p("v_lshrrev_b32 v26, 10, v26")
    p("v_mul_u32_u24 v27, 18, v26"); p("v_sub_u32 v27, v25, v27")
    p(f"v_mul_lo_u32 v26, v26, s{S_VOFF}"); p(f"s_movk_i32 s{S_T1}, 288"); p(f"v_mul_u32_u24 v24, s{S_T1}, v24")
    p("v_lshl_add_u32 v24, v27, 4, v24"); p(f"v_add_u32 v{V_RPD}, v24, v26")

    groups = []
    for st in range(NST):
        kind, t, sub, buf = stages[st]
        if kind == "q":
            for nt in range(8): groups.append((st, nt, 0))
        else:
            nts = [0, 2] if kind == "h" else [0, 1, 2, 3]
            for c0 in (0, 3):
                for nt in nts: groups.append((st, nt, c0))
    def a_reads(gi):
        st, nt, c0 = groups[gi]; kind, t, sub, buf = stages[st]
        hb, off = wbase(st % 4)
        out = []
        for c in range(3):
            for tt in range(2):
                d = V_AF + (gi % 3) * 12 + c * 4 + 2 * tt
                if kind == "q":
                    addr = V_RQ + 4 * hb + (nt >> 1); o = off + c * 8192 + tt * 1024 + 8 * (nt & 1)
                else:
                    addr = (V_RA + 2 * hb + (nt & 1)) if kind == "f" else (V_RH + hb)
                    o = off + (nt >> 1) * 12288 + (c0 + c) * 2048 + tt * 256
                out.append((f"ds_read_b64_tr_b16 v[{d}:{d+1}], v{addr} offset:{o}", f"A{gi%3}"))
        return out
    acc = lambda buf, nt, mt: V_ACC + buf * 64 + (nt * 4 + mt) * 4
    gaps = []; gstart = []
    def ksof(st, c0):
        kind, t, sub, buf = stages[st]
        return sub * 3 if kind == "q" else sub * 6 + c0
    for gi, (st, nt, c0) in enumerate(groups):
        gstart.append(len(gaps))
        kind, t, sub, buf = stages[st]
        for mt in range(4):
            for c in range(3):
                a = acc(buf, nt, mt); af = V_AF + (gi % 3) * 12 + c * 4
                ks = ksof(st, c0) + c
                C = "0" if ks == 0 else f"v[{a}:{a+3}]"
                gaps.append(Gap(f"v_mfma_f32_16x16x32_bf16 v[{a}:{a+3}], v[{af}:{af+3}], {xreg(ks, mt)}, {C}"))
    NG = len(groups)
    first_of_stage = {}
    for gi, (st, nt, c0) in enumerate(groups): first_of_stage.setdefault(st, gi)
    bar_gap = {}
    for gi in range(2, NG):
        st = groups[gi][0]; f = first_of_stage[st]
        rd = a_reads(gi)
        if gi == f:
            g0 = gstart[gi - 1]
            bar_gap[st] = g0 - 1
            for n, r in enumerate(rd): gaps[g0 + n].mem.append(r)
        elif gi == f + 1:
            g0 = gstart[gi - 2]
            for n, r in enumerate(rd): gaps[g0 + 6 + n].mem.append(r)
        else:
            g0 = gstart[gi - 2]
            for n, r in enumerate(rd): gaps[g0 + 2 * n].mem.append(r)
    for gi in range(1, NG):
        g = gaps[gstart[gi] - 1]
        st, nt, c0 = groups[gi]
        vm = []
        if st < 6 and nt == 0: vm.append(f"X{st}")
        nxt = groups[gi + 1][0] if gi + 1 < NG else None
        if nxt is not None and nxt != st:
            g.sh.append(WaitFor(vm=vm + [f"W{nxt}"], lg0=True)); g.sh.append("s_barrier")
        else:
            g.sh.append(WaitFor(lg=(f"A{gi%3}",), vm=vm))
    def place_mem(ops, g0, g1, dense=False, anygap=False):
        g = g0 + 2
        avail = g1 - g
        need = sum(max(2, len(sal) + 1) for sal, op in ops)
        pitch = max(1.0, (avail - (4 if anygap else 16)) / len(ops)) if not dense else 1.0
        last = g0
        for n, (sal, op) in enumerate(ops):
            g = max(last + 1 + len(sal), int(g0 + 2 + n * pitch))
            while True:
                assert g < g1, (g0, g1, n, len(ops))
                ok = len(gaps[g].mem) <= 1 and (dense or anygap or len(gaps[g].mem) == 1) and all(len(gaps[g - len(sal) + i].sh) == 0 for i in range(len(sal)))
                if ok: break
                g += 1
            for i, s in enumerate(sal): gaps[g - len(sal) + i].sh.append(s)
            gaps[g].mem.append(op); last = g
    def q_reload():
        return [([], (f"ds_read_b128 a[{A_Q+4*f}:{A_Q+4*f+3}], v{V_QP + f//8} offset:{(f%8)*1024}", "QR")) for f in range(16)]
    for st in range(NST):
        g0 = gstart[first_of_stage[st]]
        g1 = bar_gap[st + 1] if st + 1 < NST else len(gaps)
        ops = []
        if st == 0: ops = w_dma(1) + x_loads(6, 9) + w_dma(2)
        elif st == 1: ops = x_loads(9, 12) + w_dma(3) + w_dma(4)
        elif st == 2: ops = x_loads(12, 15) + w_dma(5)
        elif st == 3: ops = x_loads(15, 18) + w_dma(6)
        elif st + 3 < NST: ops = w_dma(st + 3)
        if st == 18: ops += kv_dma("V", VS(0), None, 0)
        if st == 19: ops += kv_dma("K", KS(0), None, 0)
        if st == 20: ops += kv_dma("K", KS(1), None, 16384) + kv_dma("V", VS(1), None, 16384) + kv_dma("K", KS(2), None, 32768)
        if ops: place_mem(ops, g0, g1, dense=(st < 1 or st == 20), anygap=(stages[st][0] == 'h' or st < 4))
        if st == 19:
            cand = [g for g in range(g0 + 3, g1 - 2) if not gaps[g].mem][::2]
            for g, (sal, op) in zip(cand, q_reload()): gaps[g].mem.append(op)
            assert len(cand) >= 16
    def ffn_epi(st0):
        kind, t, sub, buf = stages[st0]
        q = []
        for mt in range(4):
            if kind == "f": el = [(acc(buf, n, mt) + r, acc(buf, 2 + n, mt) + r) for n in range(2) for r in range(4)]
            else: el = [(acc(buf, 0, mt) + r, acc(buf, 2, mt) + r) for r in range(4)]
            T = V_T + 8 * (mt % 2)
            for e, (g, u) in enumerate(el): q.append(f"v_mul_f32 v{T+e}, v{g}, v{g}")
            for e, (g, u) in enumerate(el): q.append(f"v_fma_f32 v{T+e}, v{T+e}, v{V_C2}, v{V_C1}")
            for e, (g, u) in enumerate(el): q.append(f"v_mul_f32 v{T+e}, v{T+e}, v{g}")
            for e, (g, u) in enumerate(el):
                q.append(f"v_exp_f32 v{T+e}, v{T+e}"); q.append(f"v_mul_f32 v{g}, v{g}, v{u}")
            for e, (g, u) in enumerate(el): q.append(f"v_add_f32 v{T+e}, 1.0, v{T+e}")
            for e, (g, u) in enumerate(el): q.append(f"v_rcp_f32 v{T+e}, v{T+e}")
            for e, (g, u) in enumerate(el): q.append(f"v_mul_f32 v{g}, v{g}, v{T+e}")
            o = V_HO + 4 * (mt % 2)
            for i in range(len(el) // 2): q.append(f"v_cvt_pk_bf16_f32 v{o+i}, v{el[2*i][0]}, v{el[2*i+1][0]}")
            if kind == "f":
                q.append(("MEM", [f"s_add_u32 s{S_T2}, s{S_HF+t}, {mt*4096}"], (f"buffer_store_dwordx4 v[{o}:{o+3}], v{V_L16}, s[{S_H}:{S_H+3}], s{S_T2} offen{SCH}", None)))
            else:
                q.append(("MEM", [f"s_add_u32 s{S_T2}, s{S_HHALF}, {mt*4096}"], (f"buffer_store_dwordx2 v[{o}:{o+1}], v{V_L16}, s[{S_H}:{S_H+3}], s{S_T2} offen", None)))
        return q
    def q_epi(seg):
        q = []
        for mt in range(4):
            rs = [acc(0, 2 * seg, mt) + r for r in range(4)] + [acc(0, 2 * seg + 1, mt) + r for r in range(4)]
            o = V_T + 4 * ((seg * 4 + mt) % 6)
            for r in rs: q.append(f"v_mul_f32 v{r}, {f2u(QSCALE)}, v{r}")
            for i in range(4): q.append(f"v_cvt_pk_bf16_f32 v{o+i}, v{rs[2*i]}, v{rs[2*i+1]}")
            f = mt * 4 + seg
            q.append(("MEM", [], (f"ds_write_b128 v{V_QP + f//8}, v[{o}:{o+3}] offset:{(f%8)*1024}", None)))
        return q
    sg = lambda st: gstart[first_of_stage[st]]
    f5 = first_of_stage[5]
    left = fill_valu(gaps[:sg(6) - 3], gstart[f5 + 2] + 3, q_epi(0)); assert not left, len(left)
    left = fill_valu(gaps[:sg(6) + 9], gstart[f5 + 4] + 3, q_epi(1)); assert not left, len(left)
    left = fill_valu(gaps[:sg(9) - 3], sg(6) + 3, q_epi(2) + q_epi(3)); assert not left, len(left)
    for st0 in (6, 9, 12, 15):
        end = sg(st0 + 6) - 3 if st0 + 6 < NST else len(gaps)
        left = fill_valu(gaps[:end], sg(st0 + 3) + 3, ffn_epi(st0)); assert not left, (st0, len(left))
    zq = fill_valu(gaps, sg(20) + 3, [f"v_accvgpr_write_b32 a{A_O+i}, 0" for i in range(64)])
    zq += [f"v_accvgpr_write_b32 a{A_O+64+i}, 0" for i in range(64)]
    p(f"s_lshl_b32 s{S_T0}, s{S_WAVE}, 14"); p(f"s_cmp_eq_u32 s{S_WAVE}, 2"); p(f"s_cselect_b32 s{S_T0}, 0x10000, s{S_T0}")
    p(f"s_add_u32 s{S_T1}, s{S_T0}, 8192"); p(f"s_cmp_eq_u32 s{S_WAVE}, 3"); p(f"s_cselect_b32 s{S_T0}, 0x8000, s{S_T0}"); p(f"s_cselect_b32 s{S_T1}, {152*1024}, s{S_T1}")
    p(f"v_add_u32 v{V_QP}, s{S_T0}, v{V_L16}"); p(f"v_add_u32 v{V_QP+1}, s{S_T1}, v{V_L16}")
    issue(x_loads(3, 6))
    if 'finepro' in ABL: stamp(p, 4)
    p.items.append(WaitFor(vm=("W0", "X0")))
    if 'finepro' in ABL: stamp(p, 5)
    p("s_barrier")
    if 'finepro' in ABL: stamp(p, 6)
    for t, tag in a_reads(0) + a_reads(1): p(t, tag)
    p.items.append(WaitFor(lg=("A0",)))
    stamp(p, 1)
    if 'finepro' in ABL:
        gaps[sg(1) - 1].post += stamp_ops(7); gaps[sg(2) - 1].post += stamp_ops(8); gaps[sg(3) - 1].post += stamp_ops(9)
    else:
        for si in range(1, 7): gaps[sg(3*si) - 1].post += stamp_ops(1 + si)
    emit_gaps(p, gaps)
    if 'finepro' not in ABL: stamp(p, 8)

    Sreg = lambda par, kt, qt: V_S + (1 - par) * 64 + (kt * 4 + qt) * 4
    Preg = lambda par, kb, qt: (V_P0 + par * 16 + qt * 4) if kb == 0 else (V_P1 + qt * 4)
    Kf = lambda kt, ks: A_KF + (kt % 2) * 16 + ks * 4
    Vf = lambda dt, kb: A_VF + (dt % 4) * 8 + kb * 4
    def k_reads(slot, kt):
        return [(f"ds_read_b128 a[{Kf(kt,ks)}:{Kf(kt,ks)+3}], v{V_KA+ks} offset:{slot*16384 + kt*4096}", f"KF{kt%2}") for ks in range(4)]
    def v_reads(slot, dt):
        return [(f"ds_read_b64_tr_b16 a[{Vf(dt,kb)+2*t}:{Vf(dt,kb)+2*t+1}], v{V_VA+dt} offset:{slot*16384 + kb*8192 + t*4096}", f"VF{dt%4}") for kb in range(2) for t in range(2)]
    def qk_mfma(par, kt, qt, ks, zero=False):
        s = Sreg(par, kt, qt)
        C = f"v[{s}:{s+3}]" if ks else ("0" if zero else f"v[{V_NM+4*qt}:{V_NM+4*qt+3}]")
        qf = A_Q + (qt * 4 + ks) * 4
        return f"v_mfma_f32_16x16x32_bf16 v[{s}:{s+3}], a[{Kf(kt,ks)}:{Kf(kt,ks)+3}], a[{qf}:{qf+3}], {C}"
    def pv_mfma(par, dt, qt, kb):
        o = A_O + (dt * 4 + qt) * 4; pr = Preg(par, kb, qt)
        return f"v_mfma_f32_16x16x32_bf16 a[{o}:{o+3}], a[{Vf(dt,kb)}:{Vf(dt,kb)+3}], v[{pr}:{pr+3}], a[{o}:{o+3}]"
    def elem(par, tau):
        kb = tau // 32; qt = (tau % 32) // 8; j = tau % 8
        return Sreg(par, 2 * kb + (j >> 2), qt) + (j & 3), kb, qt, j
    def op_exp(par, tau): return f"v_exp_f32 v{V_E + tau % 8}, v{elem(par, tau)[0]}"
    def op_add(par, tau):
        s, kb, qt, j = elem(par, tau)
        src = V_LS + (1 - par) * 4 + qt if (kb == 0 and j == 0) else V_LS + par * 4 + qt
        return f"v_add_f32 v{V_LS + par*4 + qt}, v{src}, v{V_E + tau % 8}"
    def op_cvt(par, tau):
        s, kb, qt, j = elem(par, tau)
        return f"v_cvt_pk_bf16_f32 v{Preg(par, kb, qt) + j//2}, v{V_E + (tau-1) % 8}, v{V_E + tau % 8}"
    def rowmax(p, par, qt, dst):
        regs = [Sreg(par, kt, qt) + r for kt in range(4) for r in range(4)]
        p(f"v_max3_f32 v{dst}, v{regs[0]}, v{regs[1]}, v{regs[2]}")
        for i in range(3, 15, 2): p(f"v_max3_f32 v{dst}, v{dst}, v{regs[i]}, v{regs[i+1]}")
        p(f"v_max_f32 v{dst}, v{dst}, v{regs[15]}")
    def xlane4(p, op, dst, t1):
        for sw in ("v_permlane32_swap_b32", "v_permlane16_swap_b32"):
            for q in range(4): p(f"v_mov_b32 v{t1+q}, v{dst+q}")
            for q in range(4): p(f"{sw} v{dst+q}, v{t1+q}")
            for q in range(4): p(f"{op} v{dst+q}, v{dst+q}, v{t1+q}")

    p(f"s_load_dwordx2 s[64:65], s[0:1], {ARG['wo']}"); p(f"s_load_dwordx2 s[66:67], s[0:1], {ARG['wd']}")
    p.items.append(WaitFor(vm=(f"K{KS(0)}",), lg0=True)); p("s_barrier")
    for t, tag in k_reads(KS(0), 0) + k_reads(KS(0), 1): p(t, tag)
    issue(kv_dma("K", KS(3), None, 3 * 16384) + kv_dma("V", VS(2), None, 2 * 16384))
    p(f"s_cmp_eq_u32 s{S_RCNT}, 16")
    p(f"s_cselect_b32 s{S_WG}, s64, s66"); p(f"s_cselect_b32 s{S_WG+1}, s65, s67")
    p(f"s_mul_i32 s{S_WG+2}, s{S_RCNT}, {256*1152}"); p(f"s_mov_b32 s{S_WU+2}, s{S_WG+2}")
    p(f"s_mov_b32 s{S_T0}, {WP_OFF + 4096*1152}"); p(f"s_cselect_b32 s{S_T0}, {WP_OFF}, s{S_T0}")
    p(f"s_add_u32 s{S_WU}, s70, s{S_T0}"); p(f"s_addc_u32 s{S_WU+1}, s71, 0")
    p(f"s_mov_b32 s{S_RD}, {-3*256*288}"); p(f"s_mov_b32 s{S_BQ}, -3")
    p(f"s_mov_b32 s{S_KOFF}, {4*16384}"); p(f"s_mov_b32 s{S_VOFF}, {3*16384}"); p(f"s_mov_b32 s{S_CNT}, 8")
    g0 = []
    for kt in range(4):
        for qt in range(4):
            for ks in range(4): g0.append(Gap(qk_mfma(0, kt, qt, ks, zero=True)))
    for n, r in enumerate(k_reads(KS(0), 2)): g0[16 + 2 * n].mem.append(r)
    for n, r in enumerate(k_reads(KS(0), 3)): g0[32 + 2 * n].mem.append(r)
    g0[31].sh.append(WaitFor(lg=("KF0",))); g0[47].sh.append(WaitFor(lg=("KF1",)))
    left = fill_valu(g0, 0, ffn_epi(18) + zq)
    p.items.append(WaitFor(lg=("KF0", "KF1")))
    emit_gaps(p, g0)
    for op in left:
        if isinstance(op, tuple):
            for t in op[1]: p(t)
            p(op[2][0], op[2][1])
        else: p(op)
    for q in range(4): p(f"v_mov_b32 v{V_LS+4+q}, 0")
    p.items.append(WaitFor(vm=(f"K{KS(1)}", f"V{VS(0)}"))); p("s_barrier")
    for t, tag in k_reads(KS(1), 0) + k_reads(KS(1), 1): p(t, tag)
    for qt in range(4): rowmax(p, 0, qt, V_R + qt)
    xlane4(p, "v_max_f32", V_R, V_R + 4)
    for qt in range(4):
        for r in range(4): p(f"v_sub_f32 v{V_NM+4*qt+r}, 0, v{V_R+qt}")
        for kt in range(4):
            for r in range(4): p(f"v_sub_f32 v{Sreg(0,kt,qt)+r}, v{Sreg(0,kt,qt)+r}, v{V_R+qt}")
    for tau in range(32 + SHIFT):
        p(op_exp(0, tau))
        if tau >= 1:
            p(op_add(0, tau - 1))
            if (tau - 1) % 2 == 1: p(op_cvt(0, tau - 1))
    tau = 32 + SHIFT - 1
    p("s_nop 0"); p(op_add(0, tau))
    if tau % 2 == 1: p(op_cvt(0, tau))
    p.items.append(WaitFor(lg=("KF0",)))
    if 'finepro' not in ABL: stamp(p, 9)

    body = Prog(); p = body
    p.label("L_att_loop", 6)
    for it in range(4):
        par = it % 2
        G = []
        for kt in range(4):
            for qt in range(4):
                for ks in range(4): G.append(Gap(qk_mfma(1 - par, kt, qt, ks)))
        for dt in range(8):
            for qt in range(4):
                for kb in range(2): G.append(Gap(pv_mfma(par, dt, qt, kb)))
        for b in range(64):
            if b < 32 - SHIFT: sp, tau = par, 32 + SHIFT + b
            else: sp, tau = 1 - par, b - (32 - SHIFT)
            G[2 * b].valu.append(op_exp(sp, tau))
            if 32 - SHIFT <= b < 32:
                tgt = G[63] if b == 32 - SHIFT else G[65]
                tgt.valu.append(op_add(sp, tau))
                if tau % 2 == 1: G[67].valu.append(op_cvt(sp, tau))
        for b in range(64):
            if b < 32 - SHIFT: sp, tau = par, 32 + SHIFT + b
            else: sp, tau = 1 - par, b - (32 - SHIFT)
            if 32 - SHIFT <= b < 32: continue
            G[2 * b + 1].valu.append(op_add(sp, tau))
            if tau % 2 == 1: G[2 * b + 1].valu.append(op_cvt(sp, tau))
        L = V_LS + par * 4
        G[57].valu += [f"v_max3_f32 v{V_CK}, v{L}, v{L+1}, v{L+2}"]
        G[61].valu += [f"v_max_f32 v{V_CK}, v{V_CK}, v{L+3}", f"v_cmp_lt_f32 vcc, s{S_THR}, v{V_CK}"]
        G[63].sh += [f"s_cbranch_vccnz L_rare_stub{it}", Label(f"L_rare_ret{it}")]
        kslot1, kslot2, vslot = KS(it + 1), KS(it + 2), VS(it)
        def put(b0, ops):
            for n, r in enumerate(ops): G[2 * (b0 + n) + 1].mem.append(r)
        put(0, v_reads(vslot, 0)); put(4, v_reads(vslot, 1)); put(8, k_reads(kslot1, 2)); put(12, v_reads(vslot, 2))
        put(16, k_reads(kslot1, 3)); put(20, v_reads(vslot, 3))
        put(36, v_reads(vslot, 4)); put(40, v_reads(vslot, 5)); put(44, v_reads(vslot, 6)); put(48, v_reads(vslot, 7))
        put(52, k_reads(kslot2, 0)); put(56, k_reads(kslot2, 1))
        G[64].sh += [WaitFor(vm=(f"K{kslot2}", f"V{VS(it+1)}", f"R{(it+2)%4}"))]
        G[65].sh += ["s_barrier"]
        dk = kv_dma("K", KS(it), S_KOFF, 0); dv = kv_dma("V", VS(it + 3), S_VOFF, 0)
        dvp = kv_dma("V", VS(it + 2), S_VOFF, -16384)
        def putdma(b, sal, op):
            G[2 * b - 1].sh.append(sal[0]); G[2 * b].sh.append(sal[1]); G[2 * b + 1].mem.append(op)
        for b, (sal, op) in zip((34, 35, 60, 61, 62), dk + dv[:1]): putdma(b, sal, op)
        for b, (sal, op) in zip((24, 25, 26), dvp[1:]): putdma(b, sal, op)
        rp = V_RP[it]; rs_ = V_RP[(it + 2) % 4]
        G[55].mem.append((f"buffer_load_dwordx4 v[{rp}:{rp+3}], v{V_L16}, s[{S_WG}:{S_WG+3}], s{S_RS} offen", f"R{it}"))
        G[56].sh.append(f"s_add_u32 s{S_RS}, s{S_RS}, {288*1024}")
        G[72].sh.append(f"s_add_u32 s{S_BQ}, s{S_BQ}, 1")
        G[74].sh.append(f"s_cmp_lt_u32 s{S_BQ}, s{S_RCNT}"); G[75].sh.append(f"s_cselect_b32 s{S_WU+2}, s{S_WG+2}, 0")
        G[127].mem.append((f"buffer_store_dwordx4 v[{rs_}:{rs_+3}], v{V_RPD}, s[{S_WU}:{S_WU+3}], s{S_RD} offen sc1", None))
        G[2].sh.append(f"s_add_u32 s{S_RD}, s{S_RD}, {256*288}")
        G[126].sh.append(f"s_add_u32 s{S_KOFF}, s{S_KOFF}, 16384"); G[127].sh.append(f"s_add_u32 s{S_VOFF}, s{S_VOFF}, 16384")
        G[15].sh.append(WaitFor(lg=("KF1",))); G[31].sh.append(WaitFor(lg=("KF0",))); G[46].sh.append(WaitFor(lg=("KF1",)))
        G[62].sh.append(WaitFor(lg=("VF0", "VF1", "VF2", "VF3")))
        for dt in range(4, 8): G[64 + 8 * dt - (1 if dt < 7 else 2)].sh.append(WaitFor(lg=(f"VF{dt%4}",)))
        G[125].sh.append(WaitFor(lg=("KF0",)))
        if it == 3:
            G[116].sh.append(f"s_sub_u32 s{S_CNT}, s{S_CNT}, 1")
            if STAMP: G[127].post += ["s_memtime s[76:77]", "s_waitcnt lgkmcnt(0)", f"s_mov_b32 m0, s{S_CNT}", "s_nop 0", "s_movreld_b32 s90, s76"]
            G[127].post += [f"s_cmp_lg_u32 s{S_CNT}, 0", "s_cbranch_scc1 L_att_loop"]
        for gi, g in enumerate(G):
            if len([x for x in g.sh if not isinstance(x, Label)]) > 1: print("att gap", gi, "has", len(g.sh), "shadow ops")
        emit_gaps(p, G)

    epi = Prog(); p = epi
    xlane4(p, "v_add_f32", V_LS + 4, V_R)
    for qt in range(4): p(f"v_rcp_f32 v{V_LS+4+qt}, v{V_LS+4+qt}")
    n = 0
    for qt in range(4):
        for s in range(4):
            T = V_S + (n % 4) * 8
            for h in range(2):
                o = A_O + ((2 * s + h) * 4 + qt) * 4
                for r in range(4): p(f"v_accvgpr_read_b32 v{T+4*h+r}, a{o+r}")
            for i in range(8): p(f"v_mul_f32 v{T+i}, v{T+i}, v{V_LS+4+qt}")
            D = V_S + 32 + (n % 4) * 4
            for i in range(4): p(f"v_cvt_pk_bf16_f32 v{D+i}, v{T+2*i}, v{T+2*i+1}")
            if s == 0: p(f"s_add_u32 s{S_T0}, s{S_OBASE}, {qt*4096}")
            p(f"buffer_store_dwordx4 v[{D}:{D+3}], v{V_L16}, s[{S_O}:{S_O+3}], s{S_T0} offen offset:{s*1024}{SCO}")
            n += 1
    stamp(p, 18)
    if STAMP: p("s_waitcnt vmcnt(0)")
    stamp(p, 19); stamp_rt(p, 21); stamp_dump(p, 70, S_WAVE, 1)
    p.label("L_k12_done"); p("s_endpgm")

    rare = Prog(); p = rare
    for it in range(4):
        p.label(f"L_rare_stub{it}")
        p(f"s_call_b64 s[{S_RET}:{S_RET+1}], L_rare{it%2}")
        p(f"s_branch L_rare_ret{it}")
    rare_items = fix_hazards(rare.items)[0]
    for par in range(2):
        rp = Prog(); p = rp
        p.label(f"L_rare{par}")
        p("s_nop 15")
        Lold = V_LS + (1 - par) * 4
        for qt in range(4):
            rowmax(p, par, qt, V_R + qt)
            p(f"v_log_f32 v{V_R+4}, v{Lold+qt}")
            p(f"v_max3_f32 v{V_R+qt}, v{V_R+qt}, v{V_R+4}, 0")
        xlane4(p, "v_max_f32", V_R, V_R + 4)
        for qt in range(4):
            p(f"v_sub_f32 v{V_R+4+qt}, 0, v{V_R+qt}"); p(f"v_exp_f32 v{V_R+4+qt}, v{V_R+4+qt}")
        for qt in range(4):
            p(f"v_mul_f32 v{Lold+qt}, v{Lold+qt}, v{V_R+4+qt}")
            for r in range(4): p(f"v_sub_f32 v{V_NM+4*qt+r}, v{V_NM+4*qt+r}, v{V_R+qt}")
            for pp in range(2):
                for kt in range(4):
                    for r in range(4): p(f"v_sub_f32 v{Sreg(pp,kt,qt)+r}, v{Sreg(pp,kt,qt)+r}, v{V_R+qt}")
            for dt in range(8):
                o = A_O + (dt * 4 + qt) * 4
                for r in range(4): p(f"v_accvgpr_read_b32 v{V_E+r}, a{o+r}")
                for r in range(4): p(f"v_mul_f32 v{V_E+r}, v{V_E+r}, v{V_R+4+qt}")
                for r in range(4): p(f"v_accvgpr_write_b32 a{o+r}, v{V_E+r}")
        for tau in range(64):
            p(op_exp(par, tau)); p(op_add(par, tau))
            if tau % 2 == 1: p(op_cvt(par, tau))
        for tau in range(SHIFT): p(op_exp(1 - par, tau))
        p("s_nop 3")
        p(f"s_setpc_b64 s[{S_RET}:{S_RET+1}]")
        rare_items += fix_hazards(rp.items)[0]

    resolve_waits(pro.items + body.items + body.items)
    pi = lower_waits(pro.items); bi = lower_waits(body.items)
    pi, a1 = fix_hazards(pi, verbose=True, name="k12pro")
    bi2, a2 = fix_hazards(bi, prev=bi, verbose=True, name="k12body")
    bi3, a3 = fix_hazards(bi2, prev=pi, verbose=True, name="k12body-entry")
    wc = WaitChecker(); wc.run(pi + bi3 + bi3 + epi.items)
    for e in wc.errors[:10]: print("K12 WAITCHECK", e)
    ei, _ = fix_hazards(epi.items, prev=bi3, name="k12epi")
    return pi + bi3 + ei + rare_items, 512, 256
```

```python
from common import *
import math
LDS_BYTES = 160 * 1024
LOG2E = 1.4426950408889634
QSCALE = LOG2E / math.sqrt(128.0)
GC1 = -2.0 * math.sqrt(2.0 / math.pi) * LOG2E
GC2 = GC1 * 0.044715
THRESH = 2.0 ** 64
ABL = os.environ.get('ABL', '')
NTW = "" if "nontw" in ABL else " nt"
NTQ = "" if "nontq" in ABL else " nt"
NTX = " nt" if "ntx" in ABL else ""
NTKV = " nt" if 'ntkv' in ABL else ""
WS_BYTES = 128 << 20
WPO_OFF = WP_OFF
WPD_OFF = WP_OFF + 4096 * 1152
FLAG_OFF = 100 << 20
SCH = ' sc1' if 'sch' in ABL else ''
SCO = ' sc1' if 'sco' in ABL else ''
LSC = '' if 'nolsc' in ABL else ' sc1'
P3NT = ' nt' if 'p3nt' in ABL else ''
PSTRIDE = 64 * 4 * 4 * 9216

S_HF = 4
S_WG, S_WU, S_WQ, S_K, S_V, S_WS, S_DBG, S_XI = 8, 12, 16, 20, 24, 28, 32, 36
S_WAVE, S_RB, S_J = 40, 41, 42
S_RE = 43
S_T0, S_T1, S_T2 = 44, 45, 46
S_KOFF, S_VOFF = 47, 48
S_W1K = 49
S_RET = 50
S_CNT = 52
S_W3K = 53
S_BF, S_BH, S_BQ = 54, 55, 56
S_RS, S_RD = 57, 58
S_RNW = 59
S_HHALF = 60
S_THR = 61
S_OBASE = 62
S_XB = 63
S_PTR = 64
S_W6K = 3
S_PV = 79
S_SIG = 78
S_SPIN = 75
S_EP = 74
S_FO = 73
S_MIX = 72
S_XCC = 69
S_PW, S_PW2, S_PB0, S_PB1 = 54, 55, 56, 57
S_W9K = 53
S_PST = 58
S_FL = 59
S_FX0, S_FX1 = 60, 63
S_OUT = 16

V_SA = 0
V_L16 = 1
V_WF, V_WQ = 2, 3
V_RA = 4
V_RH = 8
V_QP = 10
V_C1, V_C2 = 12, 13
V_KD, V_VD = 14, 15
V_AF = 16
V_T = 52
V_HO = 68
V_KA = 76
V_VA = 80
V_RQ = 88
V_ACC = 96
V_X = 224
WSLOT = [128 * 1024, 80 * 1024, 40 * 1024, 104 * 1024]
def wbase(slot):
    b = WSLOT[slot]
    return (0, b - 40 * 1024) if b < 104 * 1024 else (1, b - 104 * 1024)
def xreg(ks, mt):
    f = ks * 4 + mt
    return f"a[{4*f}:{4*f+3}]" if f < 64 else f"v[{V_X+4*(f-64)}:{V_X+4*(f-64)+3}]"

A_Q, A_KF, A_VF, A_O = 0, 64, 96, 128
V_S = 96
V_P0 = 224
V_P1 = 16
V_NM = 32
V_LS = 48
V_E = 56
V_CK = 64
V_R = 65
V_RPS = 88
V_RPG, V_RPL = 2, 3
V_PA, V_PT = 4, 5
V_SV = 6
V_LANE = 7
V_EP = 8
SHIFT = 2
KS = lambda T: (T + 3) % 4
VS = lambda T: (T + 1) % 4
P3_SLOT = [0, 80 * 1024, 116 * 1024]
V_AD, V_AS = 96, 168
P3_AR = [32, 40, 56, 64]
V_PWA = 73
V_FX = 88
V_FL = 76

from k12 import Gap, emit_gaps, slots_of, fill_valu

def emit_ops(p, ops):
    for op in ops:
        if isinstance(op, tuple):
            for t in op[1]: p(t)
            p(op[2][0], op[2][1])
        else: p(op)

def gen_mega():
    pro = Prog(); p = pro
    stubs = []
    def poll_check(val, name):
        stubs.append(name)
        return ([f"v_and_b32 v{V_PT}, 0xffffff87, v{V_PT}", f"v_subrev_u32 v{V_PT}, s{S_PV}, v{V_PT}", f"v_cmp_le_u32 vcc, {8-val}, v{V_PT}"],
                [f"s_add_u32 s{S_PV}, s{S_EP}, {val}", f"s_cbranch_vccnz L_stub_{name}", Label(f"L_ret_{name}")])
    poll_load = lambda tag: (f"buffer_load_dword v{V_PT}, v{V_PA}, s[{S_WS}:{S_WS+3}], s{S_FO} offen sc1", tag)
    sig_store = f"buffer_store_dword v{V_SV}, v{V_SA}, s[{S_WS}:{S_WS+3}], s{S_FO} offen sc1"
    sig_val = lambda val: f"v_add_u32 v{V_SV}, {val}, v{V_EP}"

    p("s_cmp_ge_u32 s2, 256"); p("s_cbranch_scc1 L_done")
    stamp_rt(p, 20); stamp(p, 0)
    p(f"s_load_dwordx2 s[{S_XI}:{S_XI+1}], s[0:1], {ARG['x']}")
    p(f"s_load_dwordx2 s[{S_WQ}:{S_WQ+1}], s[0:1], {ARG['wq']}")
    p(f"s_load_dwordx4 s[68:71], s[0:1], {ARG['dbg']}")
    p(f"s_load_dwordx4 s[72:75], s[0:1], {ARG['wg']}")
    p(f"s_load_dwordx4 s[64:67], s[0:1], {ARG['k']}")
    p("v_lshrrev_b32 v16, 6, v0"); p("v_and_b32 v17, 63, v0")
    p(f"v_readfirstlane_b32 s{S_WAVE}, v16")
    p(f"s_and_b32 s{S_T0}, s2, 7"); p(f"s_lshr_b32 s{S_T1}, s2, 3")
    p(f"s_and_b32 s{S_RB}, s{S_T1}, 3"); p(f"s_lshr_b32 s{S_T1}, s{S_T1}, 2")
    p(f"s_and_b32 s{S_T2}, s{S_T0}, 1"); p(f"s_lshl_b32 s{S_T2}, s{S_T2}, 2"); p(f"s_add_u32 s{S_RB}, s{S_RB}, s{S_T2}")
    p(f"s_lshr_b32 s{S_T0}, s{S_T0}, 1"); p(f"s_lshl_b32 s{S_J}, s{S_T0}, 3"); p(f"s_add_u32 s{S_J}, s{S_J}, s{S_T1}")
    p("v_lshrrev_b32 v18, 5, v17"); p("v_and_b32 v19, 31, v17")
    p(f"s_lshl_b32 s{S_T0}, s{S_RB}, 8"); p(f"s_lshl_b32 s{S_T1}, s{S_J}, 3"); p(f"s_add_u32 s{S_T0}, s{S_T0}, s{S_T1}")
    p(f"s_lshl_b32 s{S_T1}, s{S_WAVE}, 1"); p(f"s_add_u32 s{S_T0}, s{S_T0}, s{S_T1}"); p(f"s_mul_i32 s{S_T0}, s{S_T0}, 1152")
    p("v_mul_u32_u24 v20, 1152, v18"); p("v_lshl_add_u32 v20, v19, 4, v20")
    p(f"s_mov_b32 s{S_XI+2}, {XN_BYTES}"); p(f"s_mov_b32 s{S_XI+3}, 0x20000")
    p(f"s_mov_b32 s{S_WQ+2}, {576*8192}"); p(f"s_mov_b32 s{S_WQ+3}, 0x20000")
    p(f"v_lshlrev_b32 v{V_L16}, 4, v17")
    p("v_cmp_gt_u32 vcc, 24, v19")
    p("s_waitcnt lgkmcnt(0)")
    LX = 96
    srd(p, S_DBG, 68, 256)
    p(f"s_lshl_b32 s{S_T1}, s2, 2"); p(f"s_add_u32 s{S_T1}, s{S_T1}, s{S_WAVE}"); p(f"s_cmp_lg_u32 s{S_T1}, 0"); p("s_cbranch_scc1 L_noleader")
    p("s_memrealtime s[76:77]"); p("v_mov_b32 v31, 0"); p("s_waitcnt lgkmcnt(0)")
    p("s_lshl_b32 s76, s76, 8"); p("s_or_b32 s76, s76, 128"); p("v_mov_b32 v30, s76")
    p(f"buffer_store_dword v30, v31, s[{S_DBG}:{S_DBG+3}], 0 offen sc1")
    p.label("L_noleader")
    for m in range(3):
        p(f"buffer_load_dwordx4 v[{LX+4*m}:{LX+4*m+3}], v20, s[{S_XI}:{S_XI+3}], s{S_T0} offen offset:{m*384}{NTX}", "LX")
    p(f"s_mov_b64 s[{S_RET}:{S_RET+1}], vcc")
    p("v_lshrrev_b32 v20, 4, v17"); p("v_and_b32 v22, 15, v17")
    p("v_lshlrev_b32 v23, 2, v20"); p("v_xor_b32 v23, v23, v22"); p("v_lshlrev_b32 v24, 13, v20"); p(f"v_lshl_add_u32 v{V_WQ}, v23, 4, v24")
    p(f"s_mul_i32 s{S_W6K}, s{S_WAVE}, 6144")
    p(f"s_mul_i32 s{S_BQ}, s{S_WAVE}, {24*8192}"); p(f"s_lshl_b32 s{S_T0}, s{S_J}, 8"); p(f"s_add_u32 s{S_BQ}, s{S_BQ}, s{S_T0}")

    stages = [("q", 0, sub, 0) for sub in range(6)] + [("h", 0, sub, 0) for sub in range(3)]
    for t in range(4): stages += [("f", t, sub, (t + 1) % 2) for sub in range(3)]
    NST = len(stages)
    tmpsel = [0]
    def tmp():
        tmpsel[0] ^= 1
        return (S_T0, S_T1)[tmpsel[0]]
    def w_dma(st):
        kind, t, sub, buf = stages[st]; slot = st % 4
        ops = []
        if kind == "q":
            for i in range(6):
                tm = tmp()
                sal = [f"s_add_u32 s{tm}, s{S_BQ}, {(sub * 96 + 4 * i) * 8192}", f"s_add_u32 m0, s{S_W6K}, {WSLOT[slot] + i*1024}"]
                ops.append((sal, (f"buffer_load_dwordx4 v{V_WQ}, s[{S_WQ}:{S_WQ+3}], s{tm} offen{NTQ} lds", f"W{st}")))
            return ops
        for reg in range(2):
            for i in range(3):
                base, srdn = (S_BH if kind == "h" else S_BF), (S_WG, S_WU)[reg]
                imm = (sub * 192 + 16 * i) * 9216 + t * 64
                tm = tmp()
                sal = [f"s_add_u32 s{tm}, s{base}, {imm}", f"s_add_u32 m0, s{S_W3K}, {WSLOT[slot] + reg*12288 + i*1024}"]
                ops.append((sal, (f"buffer_load_dwordx4 v{V_WF}, s[{srdn}:{srdn+3}], s{tm} offen{NTW} lds", f"W{st}")))
        return ops
    def x_loads(k0, k1):
        ops = []
        for ks in range(k0, k1):
            for mt in range(4):
                ops.append(([f"s_add_u32 s{S_RD}, s{S_XB}, {ks*4096}"] if mt == 0 else [],
                            (f"buffer_load_dwordx4 {xreg(ks, mt)}, v{V_L16}, s[{S_WS}:{S_WS+3}], s{S_RD} offen offset:{mt*1024} sc1", f"X{ks//3}")))
        return ops
    def kv_dma(which, tile_slot, soff, add):
        ops = []
        for t in range(4):
            tm = tmp()
            base = (0 if which == "K" else 65536) + tile_slot * 16384 + t * 4096
            srdn = S_K if which == "K" else S_V
            if soff is None: sal = [f"s_mov_b32 s{tm}, {add + t*4096}"]
            else: sal = [f"s_add_u32 s{tm}, s{soff}, {add + t*4096}"]
            sal.append(f"s_add_u32 m0, s{S_W1K}, {base}")
            ops.append((sal, (f"buffer_load_dwordx4 v{V_KD if which == 'K' else V_VD}, s[{srdn}:{srdn+3}], s{tm} offen{NTKV} lds", f"{which}{tile_slot}")))
        return ops
    def issue(ops):
        for sal, op in ops:
            for s in reversed(sal): p(s)
            p(op[0], op[1])
    p(f"s_getpc_b64 s[{S_K}:{S_K+1}]")
    p.label("L_pc0")
    p(f"s_and_b32 s{S_K+1}, s{S_K+1}, 0xffff"); p(f"s_mov_b32 s{S_K+2}, L_code_end-L_pc0"); p(f"s_mov_b32 s{S_K+3}, 0x20000")
    p(f"s_lshr_b32 s{S_T0}, s2, 3"); p(f"s_lshl_b32 s{S_T0}, s{S_T0}, 2"); p(f"s_add_u32 s{S_T0}, s{S_T0}, s{S_WAVE}"); p(f"s_lshl_b32 s{S_T0}, s{S_T0}, 10")
    p(f"buffer_load_dwordx4 v[160:163], v{V_L16}, s[{S_K}:{S_K+3}], s{S_T0} offen", "CODE")
    issue(w_dma(0)); issue(w_dma(1))
    if 'hiws' in ABL:
        p(f"s_add_u32 s70, s70, {128<<20}"); p("s_addc_u32 s71, s71, 0")
    srd(p, S_WS, 70, WS_BYTES)
    srd(p, S_WG, 72, 576 * 9216); srd(p, S_WU, 74, 576 * 9216)
    if 'qtouch' in ABL:
        p(f"s_cmp_eq_u32 s{S_WAVE}, 0"); p("s_cbranch_scc1 L_notouch")
        p(f"s_lshr_b32 s{S_T0}, s2, 3"); p(f"s_mul_i32 s{S_T0}, s{S_T0}, 3"); p(f"s_add_u32 s{S_T0}, s{S_T0}, s{S_WAVE}"); p(f"s_sub_u32 s{S_T0}, s{S_T0}, 1")
        p("v_min_u32 v26, 2, v20"); p("v_lshlrev_b32 v26, 13, v26"); p("v_lshl_add_u32 v26, v22, 7, v26")
        p(f"s_mul_i32 s{S_T0}, s{S_T0}, {3*8192}"); p(f"s_and_b32 s{S_T1}, s{S_J}, 24"); p(f"s_lshl_b32 s{S_T1}, s{S_T1}, 8"); p(f"s_add_u32 s{S_T0}, s{S_T0}, s{S_T1}")
        p(f"s_add_u32 s{S_T1}, s{S_T0}, {288*8192}")
        p.raw(f"    buffer_load_dword v164, v26, s[{S_WQ}:{S_WQ+3}], s{S_T0} offen")
        p.raw(f"    buffer_load_dword v165, v26, s[{S_WQ}:{S_WQ+3}], s{S_T1} offen")
        p.raw("    s_waitcnt vmcnt(15)")
        p("s_branch L_touched")
        p.label("L_notouch")
        p.items.append(WaitFor(vm=("LX",)))
        p.label("L_touched")
    if 'finepro' in ABL: stamp(p, 2)
    F = 112
    p(f"s_mov_b32 s{S_T2}, 0xffff0000")
    for i in range(4): p(f"v_mov_b32 v{140+i}, 0")
    p(f"s_lshl_b32 s{S_T0}, s{S_WAVE}, 5"); p("v_lshlrev_b32 v25, 7, v19"); p("v_lshl_add_u32 v25, v18, 4, v25"); p(f"v_add_u32 v25, s{S_T0}, v25")
    if 'qtouch' not in ABL: p.items.append(WaitFor(vm=("LX",)))
    if 'finepro' in ABL: stamp(p, 3)
    for i in range(12):
        p(f"v_lshlrev_b32 v{F+2*i}, 16, v{LX+i}"); p(f"v_and_b32 v{F+2*i+1}, s{S_T2}, v{LX+i}")
    p(f"s_mov_b64 exec, s[{S_RET}:{S_RET+1}]")
    for e in range(24): p(f"v_add_f32 v{140+e%2}, v{140+e%2}, v{F+e}")
    p("s_mov_b64 exec, -1")
    def reduce32(r, t):
        p(f"v_add_f32 v{r}, v{r}, v{r+1}")
        for mod in ("quad_perm:[1,0,3,2]", "quad_perm:[2,3,0,1]", "row_half_mirror", "row_mirror"):
            p(f"v_add_f32_dpp v{r}, v{r}, v{r} {mod} row_mask:0xf bank_mask:0xf")
        p(f"v_mov_b32 v{t}, v{r}"); p(f"v_permlane16_swap_b32 v{r}, v{t}"); p(f"v_add_f32 v{r}, v{r}, v{t}")
    reduce32(140, 141)
    p(f"v_mul_f32 v140, {f2u(1.0/576)}, v140")
    p(f"s_mov_b64 exec, s[{S_RET}:{S_RET+1}]")
    for e in range(24):
        t = 144 + (e % 4)
        p(f"v_sub_f32 v{t}, v{F+e}, v140"); p(f"v_fmac_f32 v{142+e%2}, v{t}, v{t}")
    p("s_mov_b64 exec, -1")
    reduce32(142, 143)
    p(f"v_mul_f32 v142, {f2u(1.0/576)}, v142")
    def rnd(r):
        p(f"v_cvt_pk_bf16_f32 v{r}, v{r}, v{r}"); p(f"v_and_b32 v{r}, s{S_T2}, v{r}")
    rnd(142); rnd(140)
    p(f"v_add_f32 v142, {f2u(1e-5)}, v142"); rnd(142)
    p("v_sqrt_f32 v142, v142")
    for e in range(24): p(f"v_sub_f32 v{F+e}, v{F+e}, v140")
    rnd(142)
    p("v_rcp_f32 v143, v142")
    for i in range(12): p(f"v_cvt_pk_bf16_f32 v{F+2*i+1}, v{F+2*i}, v{F+2*i+1}")
    p("v_fma_f32 v144, -v142, v143, 1.0"); p("v_fmac_f32 v143, v144, v143")
    for i in range(12):
        p(f"v_lshlrev_b32 v{F+2*i}, 16, v{F+2*i+1}"); p(f"v_and_b32 v{F+2*i+1}, s{S_T2}, v{F+2*i+1}")
    for e in range(24): p(f"v_mul_f32 v{F+e}, v{F+e}, v143")
    for i in range(12): p(f"v_cvt_pk_bf16_f32 v{LX+i}, v{F+2*i}, v{F+2*i+1}")
    p(f"s_mov_b64 exec, s[{S_RET}:{S_RET+1}]")
    for m in range(3): p(f"ds_write_b128 v25, v[{LX+4*m}:{LX+4*m+3}] offset:{m*24*128}")
    p("s_mov_b64 exec, -1")
    p("v_lshrrev_b32 v26, 3, v17"); p("v_and_b32 v27, 3, v26"); p("v_lshrrev_b32 v26, 2, v26"); p("v_and_b32 v28, 7, v17")
    p("v_lshl_add_u32 v27, v27, 4, v28"); p("v_lshlrev_b32 v27, 4, v27"); p("v_lshl_add_u32 v26, v26, 12, v27")
    p(f"s_lshl_b32 s{S_T0}, s{S_RB}, 2"); p(f"s_lshr_b32 s{S_T1}, s{S_J}, 3"); p(f"s_add_u32 s{S_T0}, s{S_T0}, s{S_T1}"); p(f"s_mul_i32 s{S_T0}, s{S_T0}, 73728")
    p(f"s_and_b32 s{S_T1}, s{S_J}, 6"); p(f"s_lshl_b32 s{S_T1}, s{S_T1}, 9"); p(f"s_add_u32 s{S_T0}, s{S_T0}, s{S_T1}")
    p(f"s_and_b32 s{S_T1}, s{S_J}, 1"); p(f"s_lshl_b32 s{S_T1}, s{S_T1}, 7"); p(f"s_add_u32 s{S_T0}, s{S_T0}, s{S_T1}")
    p(f"s_lshl_b32 s{S_W1K}, s{S_WAVE}, 10")
    p("s_waitcnt lgkmcnt(0)"); p("s_barrier")
    p(f"s_cmp_lg_u32 s{S_WAVE}, 0"); p("s_cbranch_scc1 L_noxs")
    for m in range(9): p(f"ds_read_b128 v[{LX+4*m}:{LX+4*m+3}], v{V_L16} offset:{m*1024}")
    for m in range(9):
        p(f"s_waitcnt lgkmcnt({8-m})")
        p(f"buffer_store_dwordx4 v[{LX+4*m}:{LX+4*m+3}], v26, s[{S_WS}:{S_WS+3}], s{S_T0} offen sc1", "XS")
        if m < 8: p(f"s_add_u32 s{S_T0}, s{S_T0}, 8192")
    p.label("L_noxs")
    assert XN_OFF == 0
    if 'finepro' in ABL: stamp(p, 4)
    p("v_lshrrev_b32 v18, 2, v17"); p("v_and_b32 v19, 3, v17"); p("v_and_b32 v21, 3, v18")
    p("v_mov_b32 v31, 0")
    p(f"buffer_load_dword v29, v31, s[{S_DBG}:{S_DBG+3}], 0 offen sc1", "EP")
    p(f"s_mov_b32 s{S_FO}, {FLAG_OFF}")
    p(f"s_getreg_b32 s{S_XCC}, hwreg(HW_REG_XCC_ID, 0, 4)"); p(f"s_lshl_b32 s{S_XCC}, s{S_XCC}, 3")
    p(f"s_lshl_b32 s{S_T0}, s{S_RB}, 11"); p(f"s_lshr_b32 s{S_T1}, s{S_J}, 3"); p(f"s_lshl_b32 s{S_T1}, s{S_T1}, 9"); p(f"s_add_u32 s{S_T1}, s{S_T1}, s{S_T0}")
    p(f"s_and_b32 s{S_T2}, s{S_J}, 7"); p(f"s_lshl_b32 s{S_T2}, s{S_T2}, 2"); p(f"s_add_u32 s{S_T1}, s{S_T1}, s{S_T2}")
    p(f"s_cmp_eq_u32 s{S_WAVE}, 0"); p(f"s_cselect_b32 s{S_T1}, s{S_T1}, {1 << 30}"); p(f"v_mov_b32 v{V_SA}, s{S_T1}")
    p(f"s_lshl_b32 s{S_T1}, s{S_WAVE}, 9"); p(f"s_add_u32 s{S_T0}, s{S_T0}, s{S_T1}"); p(f"v_lshl_add_u32 v30, v28, 2, s{S_T0}")
    p(f"s_lshl_b32 s{S_T0}, s{S_RB}, 2"); p(f"s_add_u32 s{S_T0}, s{S_T0}, s{S_WAVE}")
    p(f"s_mul_i32 s{S_XB}, s{S_T0}, 73728"); p(f"s_lshl_b32 s{S_OBASE}, s{S_T0}, 14")
    p("v_lshl_add_u32 v23, v20, 3, v21"); p("v_lshlrev_b32 v24, 8, v23"); p("v_lshl_add_u32 v24, v19, 4, v24"); p(f"v_add_u32 v24, {40*1024}, v24")
    for sg_ in range(4):
        p(f"v_xor_b32 v25, {sg_}, v21"); p(f"v_lshl_add_u32 v{V_RQ+sg_}, v25, 6, v24"); p(f"v_add_u32 v{V_RQ+4+sg_}, {64*1024}, v{V_RQ+sg_}")
    p(f"s_mov_b32 s{S_SPIN}, 0x40000")
    p.label("L_eppoll")
    p("s_waitcnt vmcnt(0)")
    p(f"v_readfirstlane_b32 s{S_EP}, v29")
    p(f"s_cmp_lg_u32 s{S_EP}, 0"); p("s_cbranch_scc1 L_epok")
    p(f"buffer_load_dword v29, v31, s[{S_DBG}:{S_DBG+3}], 0 offen sc1")
    p(f"s_sub_u32 s{S_SPIN}, s{S_SPIN}, 1"); p(f"s_cmp_lg_u32 s{S_SPIN}, 0"); p("s_cbranch_scc1 L_eppoll")
    p("s_waitcnt vmcnt(0)")
    p.label("L_epok")
    p("v_add_u32 v31, 1, v29"); p(f"v_add_u32 v29, s{S_XCC}, v31")
    p(f"buffer_store_dword v29, v{V_SA}, s[{S_WS}:{S_WS+3}], s{S_FO} offen sc1")
    if 'finepro' in ABL: stamp(p, 5)
    p("v_lshlrev_b32 v23, 6, v23")
    p("v_and_b32 v24, 1, v20"); p("v_lshlrev_b32 v24, 5, v24")
    p("v_lshl_add_u32 v25, v19, 3, v23")
    p(f"v_add_u32 v{V_RA}, v25, v24"); p(f"v_add_u32 v{V_RA}, {40*1024}, v{V_RA}")
    p(f"v_xor_b32 v{V_RA+1}, 32, v{V_RA}")
    p(f"v_add_u32 v{V_RA+2}, {64*1024}, v{V_RA}"); p(f"v_add_u32 v{V_RA+3}, {64*1024}, v{V_RA+1}")
    p(f"s_and_b32 s{S_T2}, s{S_J}, 1"); p(f"s_lshl_b32 s{S_T0}, s{S_T2}, 5")
    p(f"v_xor_b32 v{V_RH}, s{S_T0}, v{V_RA}"); p(f"v_add_u32 v{V_RH+1}, {64*1024}, v{V_RH}")
    p("v_lshrrev_b32 v23, 5, v17"); p("v_lshlrev_b32 v23, 1, v23"); p("v_xor_b32 v23, v23, v19")
    p(f"v_mul_u32_u24 v24, 9216, v18"); p(f"v_lshl_add_u32 v{V_WF}, v23, 4, v24")
    p(f"v_mov_b32 v{V_C1}, {f2u(GC1)}"); p(f"v_mov_b32 v{V_C2}, {f2u(GC2)}")
    p(f"s_mul_i32 s{S_W3K}, s{S_WAVE}, 3072")
    p(f"s_mul_i32 s{S_BH}, s{S_WAVE}, {48*9216}")
    p(f"s_mul_i32 s{S_RS}, s{S_J}, 288"); p(f"s_add_u32 s{S_RS}, s{S_RS}, s{S_T0}")
    p(f"s_add_u32 s{S_BF}, s{S_BH}, s{S_RS}")
    p(f"s_lshr_b32 s{S_T0}, s{S_J}, 1"); p(f"s_lshl_b32 s{S_T0}, s{S_T0}, 19")
    for d, b in ((S_K, 64), (S_V, 66)):
        p(f"s_add_u32 s{d}, s{b}, s{S_T0}"); p(f"s_addc_u32 s{d+1}, s{b+1}, 0"); p(f"s_mov_b32 s{d+2}, 524288"); p(f"s_mov_b32 s{d+3}, 0x20000")
    p(f"s_lshr_b32 s{S_T0}, s{S_J}, 1"); p(f"s_mul_i32 s{S_KOFF}, s{S_T0}, 576"); p(f"s_add_u32 s{S_KOFF}, s{S_KOFF}, 256")
    p(f"s_add_u32 s{S_BH}, s{S_BH}, s{S_KOFF}")
    def hoff(dst, colreg, add):
        p(f"s_lshr_b32 s{S_T0}, s{colreg}, 6"); p(f"s_add_u32 s{S_T0}, s{S_T0}, {add}")
        p(f"s_lshr_b32 s{S_T1}, s{S_T0}, 2"); p(f"s_lshl_b32 s{S_T1}, s{S_T1}, 19")
        p(f"s_and_b32 s{S_T0}, s{S_T0}, 3"); p(f"s_lshl_b32 s{S_T0}, s{S_T0}, 10")
        p(f"s_add_u32 s{dst}, s{S_T0}, s{S_T1}"); p(f"s_add_u32 s{dst}, s{dst}, s{S_OBASE}")
    hoff(S_HHALF, S_KOFF, 0); p(f"s_lshl_b32 s{S_T0}, s{S_T2}, 3"); p(f"s_add_u32 s{S_HHALF}, s{S_HHALF}, s{S_T0}")
    for t in range(4): hoff(S_HF + t, S_RS, t)
    p(f"s_lshl_b32 s{S_T0}, s{S_J}, 19"); p(f"s_add_u32 s{S_OBASE}, s{S_OBASE}, s{S_T0}")
    p(f"s_mov_b32 s{S_THR}, {f2u(THRESH)}")
    p(f"s_lshl_b32 s{S_T0}, s{S_WAVE}, 2"); p(f"v_add_u32 v23, s{S_T0}, v20")
    p(f"v_xor_b32 v24, v22, v23"); p(f"v_lshlrev_b32 v24, 4, v24"); p(f"v_lshl_add_u32 v{V_KD}, v23, 8, v24")
    p(f"v_and_b32 v24, 7, v23"); p(f"v_lshlrev_b32 v24, 1, v24"); p(f"v_xor_b32 v24, v22, v24"); p(f"v_lshlrev_b32 v24, 4, v24"); p(f"v_lshl_add_u32 v{V_VD}, v23, 8, v24")
    for ks in range(4):
        p(f"v_add_u32 v23, {4*ks}, v20"); p("v_xor_b32 v23, v23, v22"); p("v_lshlrev_b32 v23, 4, v23"); p(f"v_lshl_add_u32 v{V_KA+ks}, v22, 8, v23")
    p("v_and_b32 v24, 7, v18"); p("v_lshlrev_b32 v25, 8, v18"); p("v_lshl_add_u32 v25, v19, 3, v25"); p("v_add_u32 v25, 0x10000, v25")
    for dt in range(8):
        p(f"v_xor_b32 v23, {dt}, v24"); p(f"v_lshl_add_u32 v{V_VA+dt}, v23, 5, v25")
    p(f"s_lshl_b32 s{S_T0}, s{S_WAVE}, 14"); p(f"s_cmp_eq_u32 s{S_WAVE}, 2"); p(f"s_cselect_b32 s{S_T0}, 0x10000, s{S_T0}")
    p(f"s_add_u32 s{S_T1}, s{S_T0}, 8192"); p(f"s_cmp_eq_u32 s{S_WAVE}, 3"); p(f"s_cselect_b32 s{S_T0}, 0x8000, s{S_T0}"); p(f"s_cselect_b32 s{S_T1}, {152*1024}, s{S_T1}")
    p(f"v_add_u32 v{V_QP}, s{S_T0}, v{V_L16}"); p(f"v_add_u32 v{V_QP+1}, s{S_T1}, v{V_L16}")
    p(f"s_and_b32 s{S_T0}, s{S_WAVE}, 1"); p(f"s_cmp_eq_u32 s{S_T0}, 0")
    p(f"s_cselect_b32 s64, s{S_WG}, s{S_WU}"); p(f"s_cselect_b32 s65, s{S_WG+1}, s{S_WU+1}"); p(f"s_mov_b32 s66, {576*9216}"); p("s_mov_b32 s67, 0x20000")
    p(f"s_lshr_b32 s{S_T0}, s2, 3"); p(f"s_lshl_b32 s{S_T0}, s{S_T0}, 1"); p(f"s_lshr_b32 s{S_T1}, s{S_WAVE}, 1"); p(f"s_add_u32 s{S_T0}, s{S_T0}, s{S_T1}"); p(f"s_mul_i32 s{S_T0}, s{S_T0}, 27")
    p(f"v_min_u32 v23, 26, v17"); p(f"v_add_u32 v23, s{S_T0}, v23"); p("v_mul_u32_u24 v24, 3641, v23"); p("v_lshrrev_b32 v24, 16, v24")
    p(f"v_mul_u32_u24 v24, {9216 - 18*128}, v24"); p("v_lshl_add_u32 v24, v23, 7, v24")
    p(f"s_lshr_b32 s{S_T0}, s{S_J}, 3"); p(f"s_mul_i32 s{S_T0}, s{S_T0}, 2304"); p(f"v_add_u32 v{V_HO+7}, s{S_T0}, v24")
    p(f"s_mov_b32 s{S_SPIN}, 0x40000")
    p.label("L_xpoll")
    p(f"buffer_load_dword v29, v30, s[{S_WS}:{S_WS+3}], s{S_FO} offen sc1")
    p("s_waitcnt vmcnt(0)")
    p("v_and_b32 v29, 0xffffff87, v29"); p("v_sub_u32 v29, v29, v31"); p("v_cmp_le_u32 vcc, 7, v29")
    p("s_cbranch_vccz L_xready")
    p(f"s_sub_u32 s{S_SPIN}, s{S_SPIN}, 1"); p("s_sleep 1"); p(f"s_cmp_lg_u32 s{S_SPIN}, 0"); p("s_cbranch_scc1 L_xpoll")
    p.label("L_xready")
    if 'finepro' in ABL: stamp(p, 6)

    groups = []
    for st in range(NST):
        kind, t, sub, buf = stages[st]
        if kind == "q":
            for nt in range(8): groups.append((st, nt, 0))
        else:
            nts = [0, 2] if kind == "h" else [0, 1, 2, 3]
            for c0 in (0, 3):
                for nt in nts: groups.append((st, nt, c0))
    def a_reads(gi):
        st, nt, c0 = groups[gi]; kind, t, sub, buf = stages[st]
        hb, off = wbase(st % 4)
        out = []
        for c in range(3):
            for tt in range(2):
                d = V_AF + (gi % 3) * 12 + c * 4 + 2 * tt
                if kind == "q":
                    addr = V_RQ + 4 * hb + (nt >> 1); o = off + c * 8192 + tt * 1024 + 8 * (nt & 1)
                else:
                    addr = (V_RA + 2 * hb + (nt & 1)) if kind == "f" else (V_RH + hb)
                    o = off + (nt >> 1) * 12288 + (c0 + c) * 2048 + tt * 256
                out.append((f"ds_read_b64_tr_b16 v[{d}:{d+1}], v{addr} offset:{o}", f"A{gi%3}"))
        return out
    acc = lambda buf, nt, mt: V_ACC + buf * 64 + (nt * 4 + mt) * 4
    gaps = []; gstart = []
    for gi, (st, nt, c0) in enumerate(groups):
        gstart.append(len(gaps))
        kind, t, sub, buf = stages[st]
        for mt in range(4):
            for c in range(3):
                a = acc(buf, nt, mt); af = V_AF + (gi % 3) * 12 + c * 4
                ks = (sub * 3 if kind == "q" else sub * 6 + c0) + c
                C = "0" if ks == 0 else f"v[{a}:{a+3}]"
                gaps.append(Gap(f"v_mfma_f32_16x16x32_bf16 v[{a}:{a+3}], v[{af}:{af+3}], {xreg(ks, mt)}, {C}"))
    NG = len(groups)
    first_of_stage = {}
    for gi, (st, nt, c0) in enumerate(groups): first_of_stage.setdefault(st, gi)
    bar_gap = {}
    for gi in range(2, NG):
        st = groups[gi][0]; f = first_of_stage[st]
        rd = a_reads(gi)
        if gi == f:
            g0 = gstart[gi - 1]; bar_gap[st] = g0 - 1
            for n, r in enumerate(rd): gaps[g0 + n].mem.append(r)
        elif gi == f + 1:
            g0 = gstart[gi - 2]
            for n, r in enumerate(rd): gaps[g0 + 6 + n].mem.append(r)
        else:
            g0 = gstart[gi - 2]
            for n, r in enumerate(rd): gaps[g0 + 2 * n].mem.append(r)
    for gi in range(1, NG):
        g = gaps[gstart[gi] - 1]
        st, nt, c0 = groups[gi]
        vm = []
        if st < 6 and nt == 0: vm.append(f"X{st}")
        nxt = groups[gi + 1][0] if gi + 1 < NG else None
        if nxt is not None and nxt != st:
            g.sh.append(WaitFor(vm=vm + [f"W{nxt}"], lg0=True)); g.sh.append("s_barrier")
        else:
            g.sh.append(WaitFor(lg=(f"A{gi%3}",), vm=vm))
    def place_mem(gaps, ops, g0, g1, dense=False, want=0):
        pitch = max(1.0, (g1 - g0 - 8) / len(ops)) if not dense else 1.0
        last = g0
        for n, (sal, op) in enumerate(ops):
            g = max(last + 1 + len(sal), int(g0 + 2 + n * pitch))
            while True:
                assert g < g1, (g0, g1, n, len(ops))
                ok = (len(gaps[g].mem) <= 1 if dense else len(gaps[g].mem) == want) and all(len(gaps[g - len(sal) + i].sh) == 0 for i in range(len(sal)))
                if ok: break
                g += 1
            for i, s in enumerate(sal): gaps[g - len(sal) + i].sh.append(s)
            gaps[g].mem.append(op); last = g
    for st in range(NST):
        g0 = gstart[first_of_stage[st]]
        g1 = bar_gap[st + 1] if st + 1 < NST else len(gaps)
        ops = []
        if st == 0: ops = w_dma(2) + x_loads(6, 9) + w_dma(3)
        elif st == 1: ops = x_loads(9, 12) + w_dma(4)
        elif st == 2: ops = x_loads(12, 15) + w_dma(5)
        elif st == 3: ops = x_loads(15, 18) + w_dma(6)
        elif st + 3 < NST: ops = w_dma(st + 3)
        if st < 5 and 'gutouch' in ABL:
            for bt in ([st] if st else [0]) + ([5] if st == 4 else []):
                tm = tmp()
                ops = ops + [([f"s_mov_b32 s{tm}, {bt*96*9216}"], (f"buffer_load_dword v{V_HO+bt}, v{V_HO+7}, s[64:67], s{tm} offen", "TCH"))]
        if st == 18: ops += kv_dma("V", VS(0), None, 0)
        if st == 19: ops += kv_dma("K", KS(0), None, 0)
        if st == 20: ops += kv_dma("K", KS(1), None, 16384) + kv_dma("V", VS(1), None, 16384) + kv_dma("K", KS(2), None, 32768)
        if ops: place_mem(gaps, ops, g0, g1 if st < 20 else g0 + 60)
        if st == 19:
            cand = [g for g in range(g0 + 3, g1 - 2) if not gaps[g].mem][::2]
            assert len(cand) >= 16
            for f, g in enumerate(cand[:16]):
                gaps[g].mem.append((f"ds_read_b128 a[{A_Q+4*f}:{A_Q+4*f+3}], v{V_QP + f//8} offset:{(f%8)*1024}", "QR"))
    def ffn_epi(st0):
        kind, t, sub, buf = stages[st0]
        q = []
        for mt in range(4):
            if kind == "f": el = [(acc(buf, n, mt) + r, acc(buf, 2 + n, mt) + r) for n in range(2) for r in range(4)]
            else: el = [(acc(buf, 0, mt) + r, acc(buf, 2, mt) + r) for r in range(4)]
            T = V_T + 8 * (mt % 2)
            for e, (g, u) in enumerate(el): q.append(f"v_mul_f32 v{T+e}, v{g}, v{g}")
            for e, (g, u) in enumerate(el): q.append(f"v_fma_f32 v{T+e}, v{T+e}, v{V_C2}, v{V_C1}")
            for e, (g, u) in enumerate(el): q.append(f"v_mul_f32 v{T+e}, v{T+e}, v{g}")
            for e, (g, u) in enumerate(el):
                q.append(f"v_exp_f32 v{T+e}, v{T+e}"); q.append(f"v_mul_f32 v{g}, v{g}, v{u}")
            for e, (g, u) in enumerate(el): q.append(f"v_add_f32 v{T+e}, 1.0, v{T+e}")
            for e, (g, u) in enumerate(el): q.append(f"v_rcp_f32 v{T+e}, v{T+e}")
            for e, (g, u) in enumerate(el): q.append(f"v_mul_f32 v{g}, v{g}, v{T+e}")
            o = V_HO + 4 * (mt % 2)
            for i in range(len(el) // 2): q.append(f"v_cvt_pk_bf16_f32 v{o+i}, v{el[2*i][0]}, v{el[2*i+1][0]}")
            if kind == "f":
                q.append(("MEM", [f"s_add_u32 s{S_T2}, s{S_HF+t}, {H_OFF + mt*4096}"], (f"buffer_store_dwordx4 v[{o}:{o+3}], v{V_L16}, s[{S_WS}:{S_WS+3}], s{S_T2} offen{SCH}", None)))
            else:
                q.append(("MEM", [f"s_add_u32 s{S_T2}, s{S_HHALF}, {H_OFF + mt*4096}"], (f"buffer_store_dwordx2 v[{o}:{o+1}], v{V_L16}, s[{S_WS}:{S_WS+3}], s{S_T2} offen{SCH}", None)))
        return q
    def q_epi(seg):
        q = []
        for mt in range(4):
            rs = [acc(0, 2 * seg, mt) + r for r in range(4)] + [acc(0, 2 * seg + 1, mt) + r for r in range(4)]
            o = V_T + 4 * ((seg * 4 + mt) % 4)
            for r in rs: q.append(f"v_mul_f32 v{r}, {f2u(QSCALE)}, v{r}")
            for i in range(4): q.append(f"v_cvt_pk_bf16_f32 v{o+i}, v{rs[2*i]}, v{rs[2*i+1]}")
            f = mt * 4 + seg
            q.append(("MEM", [], (f"ds_write_b128 v{V_QP + f//8}, v[{o}:{o+3}] offset:{(f%8)*1024}", None)))
        return q
    sg = lambda st: gstart[first_of_stage[st]]
    f5 = first_of_stage[5]
    q = []; mins = []
    for seg in range(4):
        e_ = q_epi(seg); q += e_; mins += [gstart[f5 + 2 * seg + 2] + 3] * len(e_)
    left = fill_valu(gaps[:sg(9) - 3], gstart[f5 + 2] + 3, q, mins=mins); assert not left, len(left)
    for seg, lim_ in ((0, sg(6) - 3), (1, sg(6) + 9)):
        cv_ = [x for x in q_epi(seg) if isinstance(x, str)]
        lastg = max(gi for gi, g in enumerate(gaps) for x in g.valu if x in cv_ and gi < sg(9))
        assert lastg < lim_, (seg, lastg, lim_)
    for st0 in (6, 9, 12, 15):
        end = sg(st0 + 6) - 3 if st0 + 6 < NST else len(gaps)
        left = fill_valu(gaps[:end], sg(st0 + 3) + 3, ffn_epi(st0)); assert not left, (st0, len(left))
    zq = fill_valu(gaps, sg(20) + 3, [f"v_accvgpr_write_b32 a{A_O+i}, 0" for i in range(64)])
    zq += [f"v_accvgpr_write_b32 a{A_O+64+i}, 0" for i in range(64)]
    issue(x_loads(0, 3))
    p("s_barrier")
    for t, tag in a_reads(0) + a_reads(1): p(t, tag)
    issue(x_loads(3, 6))
    p.items.append(WaitFor(lg=("A0",), vm=("X0",)))
    stamp(p, 1)
    if 'finepro' in ABL:
        gaps[sg(1) - 1].post += stamp_ops(7); gaps[sg(2) - 1].post += stamp_ops(8); gaps[sg(3) - 1].post += stamp_ops(9)
    else:
        gaps[sg(6) - 1].post += stamp_ops(2); gaps[sg(12) - 1].post += stamp_ops(3)
    emit_gaps(p, gaps)
    if 'finepro' not in ABL: stamp(p, 4)

    Sreg = lambda par, kt, qt: V_S + (1 - par) * 64 + (kt * 4 + qt) * 4
    Preg = lambda par, kb, qt: (V_P0 + par * 16 + qt * 4) if kb == 0 else (V_P1 + qt * 4)
    Kf = lambda kt, ks: A_KF + (kt % 2) * 16 + ks * 4
    Vf = lambda dt, kb: A_VF + (dt % 4) * 8 + kb * 4
    def k_reads(slot, kt):
        return [(f"ds_read_b128 a[{Kf(kt,ks)}:{Kf(kt,ks)+3}], v{V_KA+ks} offset:{slot*16384 + kt*4096}", f"KF{kt%2}") for ks in range(4)]
    def v_reads(slot, dt):
        return [(f"ds_read_b64_tr_b16 a[{Vf(dt,kb)+2*t}:{Vf(dt,kb)+2*t+1}], v{V_VA+dt} offset:{slot*16384 + kb*8192 + t*4096}", f"VF{dt%4}") for kb in range(2) for t in range(2)]
    def qk_mfma(par, kt, qt, ks, zero=False):
        s = Sreg(par, kt, qt)
        C = f"v[{s}:{s+3}]" if ks else ("0" if zero else f"v[{V_NM+4*qt}:{V_NM+4*qt+3}]")
        qf = A_Q + (qt * 4 + ks) * 4
        return f"v_mfma_f32_16x16x32_bf16 v[{s}:{s+3}], a[{Kf(kt,ks)}:{Kf(kt,ks)+3}], a[{qf}:{qf+3}], {C}"
    def pv_mfma(par, dt, qt, kb):
        o = A_O + (dt * 4 + qt) * 4; pr = Preg(par, kb, qt)
        return f"v_mfma_f32_16x16x32_bf16 a[{o}:{o+3}], a[{Vf(dt,kb)}:{Vf(dt,kb)+3}], v[{pr}:{pr+3}], a[{o}:{o+3}]"
    def elem(par, tau):
        kb = tau // 32; qt = (tau % 32) // 8; j = tau % 8
        return Sreg(par, 2 * kb + (j >> 2), qt) + (j & 3), kb, qt, j
    def op_exp(par, tau): return f"v_exp_f32 v{V_E + tau % 8}, v{elem(par, tau)[0]}"
    def op_add(par, tau):
        s, kb, qt, j = elem(par, tau)
        src = V_LS + (1 - par) * 4 + qt if (kb == 0 and j == 0) else V_LS + par * 4 + qt
        return f"v_add_f32 v{V_LS + par*4 + qt}, v{src}, v{V_E + tau % 8}"
    def op_cvt(par, tau):
        s, kb, qt, j = elem(par, tau)
        return f"v_cvt_pk_bf16_f32 v{Preg(par, kb, qt) + j//2}, v{V_E + (tau-1) % 8}, v{V_E + tau % 8}"
    def rowmax(p, par, qt, dst):
        regs = [Sreg(par, kt, qt) + r for kt in range(4) for r in range(4)]
        p(f"v_max3_f32 v{dst}, v{regs[0]}, v{regs[1]}, v{regs[2]}")
        for i in range(3, 15, 2): p(f"v_max3_f32 v{dst}, v{dst}, v{regs[i]}, v{regs[i+1]}")
        p(f"v_max_f32 v{dst}, v{dst}, v{regs[15]}")
    def xlane4_ops(op, dst, t1):
        o = []
        for sw in ("v_permlane32_swap_b32", "v_permlane16_swap_b32"):
            for q in range(4): o.append(f"v_mov_b32 v{t1+q}, v{dst+q}")
            for q in range(4): o.append(f"{sw} v{dst+q}, v{t1+q}")
            for q in range(4): o.append(f"{op} v{dst+q}, v{dst+q}, v{t1+q}")
        return o

    p(f"s_load_dwordx2 s[64:65], s[0:1], {ARG['wo']}"); p(f"s_load_dwordx2 s[66:67], s[0:1], {ARG['wd']}")
    p(f"s_load_dwordx2 s[{S_OUT}:{S_OUT+1}], s[0:1], {ARG['out']}")
    p.items.append(WaitFor(vm=(f"K{KS(0)}",), lg0=True)); p("s_barrier")
    for t, tag in k_reads(KS(0), 0) + k_reads(KS(0), 1): p(t, tag)
    issue(kv_dma("K", KS(3), None, 3 * 16384) + kv_dma("V", VS(2), None, 2 * 16384))
    p(f"s_mov_b32 s{S_OUT+2}, {XN_BYTES}")
    p(f"s_and_b32 s{S_T0}, s{S_J}, 7"); p(f"s_lshl_b32 s{S_T1}, s{S_RB}, 3"); p(f"s_add_u32 s{S_T0}, s{S_T0}, s{S_T1}")
    p(f"s_lshl_b32 s{S_T0}, s{S_T0}, 2"); p(f"s_add_u32 s{S_T0}, s{S_T0}, s{S_WAVE}")
    p(f"s_lshr_b32 s{S_T2}, s{S_J}, 3")
    p(f"s_sub_u32 s{S_T1}, s{S_T0}, 120"); p(f"s_cmp_lt_u32 s{S_T0}, 120")
    p(f"s_cselect_b32 s{S_RE}, s{S_T0}, s{S_T1}"); p(f"s_movk_i32 s{S_RNW}, 136"); p(f"s_cselect_b32 s{S_RNW}, 120, s{S_RNW}")
    p(f"s_cselect_b32 s{S_WG}, s64, s66"); p(f"s_cselect_b32 s{S_WG+1}, s65, s67")
    p(f"s_mov_b32 s{S_WG+2}, {1152*1152}"); p(f"s_cselect_b32 s{S_WG+2}, {1024*1152}, s{S_WG+2}"); p(f"s_mov_b32 s{S_WU+2}, s{S_WG+2}")
    p(f"s_mov_b32 s{S_T0}, {WPD_OFF}"); p(f"s_cselect_b32 s{S_T0}, {WPO_OFF}, s{S_T0}")
    p(f"s_mul_i32 s{S_T1}, s{S_T2}, s{S_WG+2}")
    p(f"s_add_u32 s{S_WG}, s{S_WG}, s{S_T1}"); p(f"s_addc_u32 s{S_WG+1}, s{S_WG+1}, 0")
    p(f"s_add_u32 s{S_T0}, s{S_T0}, s{S_T1}"); p(f"s_add_u32 s{S_WU}, s70, s{S_T0}"); p(f"s_addc_u32 s{S_WU+1}, s71, 0")
    p(f"s_sub_u32 s{S_RE}, s{S_RE}, s{S_RNW}")
    p(f"s_mov_b32 s{S_KOFF}, {4*16384}"); p(f"s_mov_b32 s{S_VOFF}, {3*16384}"); p(f"s_mov_b32 s{S_CNT}, 7")
    p(f"s_lshl_b32 s{S_BQ}, s{S_WAVE}, 11"); p(f"s_add_u32 s{S_BQ}, s{S_BQ}, {128*1024}")
    g0 = []
    for kt in range(4):
        for qt in range(4):
            for ks in range(4): g0.append(Gap(qk_mfma(0, kt, qt, ks, zero=True)))
    for n, r in enumerate(k_reads(KS(0), 2)): g0[16 + 2 * n].mem.append(r)
    for n, r in enumerate(k_reads(KS(0), 3)): g0[32 + 2 * n].mem.append(r)
    g0[31].sh.append(WaitFor(lg=("KF0",))); g0[47].sh.append(WaitFor(lg=("KF1",)))
    left = fill_valu(g0, 0, ffn_epi(18) + zq)
    p.items.append(WaitFor(lg=("KF0", "KF1")))
    emit_gaps(p, g0)
    emit_ops(p, left)
    for q in range(4): p(f"v_mov_b32 v{V_LS+4+q}, 0")
    p.items.append(WaitFor(vm=(f"K{KS(1)}", f"V{VS(0)}"))); p("s_barrier")
    for t, tag in k_reads(KS(1), 0) + k_reads(KS(1), 1): p(t, tag)
    p(f"v_lshrrev_b32 v{V_LANE}, 4, v{V_L16}")
    p(f"v_lshrrev_b32 v{V_RPG}, 2, v{V_LANE}"); p(f"v_and_b32 v{V_PT}, 3, v{V_LANE}")
    p(f"v_lshlrev_b32 v{V_RPL}, 6, v{V_RPG}"); p(f"v_lshl_add_u32 v{V_RPL}, v{V_PT}, 3, v{V_RPL}"); p(f"v_add_u32 v{V_RPL}, s{S_BQ}, v{V_RPL}")
    p(f"v_mul_u32_u24 v{V_RPG}, 1152, v{V_RPG}"); p(f"v_lshl_add_u32 v{V_RPG}, v{V_PT}, 4, v{V_RPG}")
    p(f"s_lshl_b32 s{S_T0}, s{S_RB}, 11"); p(f"s_and_b32 s{S_T1}, s{S_J}, 24"); p(f"s_lshl_b32 s{S_T1}, s{S_T1}, 6"); p(f"s_add_u32 s{S_T0}, s{S_T0}, s{S_T1}")
    p(f"v_and_b32 v{V_PA}, 7, v{V_LANE}"); p(f"v_lshl_add_u32 v{V_PA}, v{V_PA}, 2, s{S_T0}")
    p(f"buffer_load_dword v{V_SV}, v{V_PA}, s[{S_WS}:{S_WS+3}], s{S_FO} offen sc1", "GX")
    p(f"v_lshrrev_b32 v{V_PA}, 3, v{V_LANE}"); p(f"v_and_b32 v{V_PT}, 7, v{V_LANE}"); p(f"v_lshlrev_b32 v{V_PA}, 11, v{V_PA}"); p(f"v_lshl_add_u32 v{V_PA}, v{V_PT}, 2, v{V_PA}")
    p(f"s_and_b32 s{S_T0}, s{S_J}, 24"); p(f"s_lshl_b32 s{S_T0}, s{S_T0}, 6"); p(f"v_add_u32 v{V_PA}, s{S_T0}, v{V_PA}")
    p(f"s_add_u32 s{S_T0}, s{S_EP}, s{S_XCC}"); p(f"v_mov_b32 v{V_EP}, s{S_T0}")
    for qt in range(4): rowmax(p, 0, qt, V_R + qt)
    for t in xlane4_ops("v_max_f32", V_R, V_R + 4): p(t)
    for qt in range(4):
        for r in range(4): p(f"v_sub_f32 v{V_NM+4*qt+r}, 0, v{V_R+qt}")
        for kt in range(4):
            for r in range(4): p(f"v_sub_f32 v{Sreg(0,kt,qt)+r}, v{Sreg(0,kt,qt)+r}, v{V_R+qt}")
    for tau in range(32 + SHIFT):
        p(op_exp(0, tau))
        if tau >= 1:
            p(op_add(0, tau - 1))
            if (tau - 1) % 2 == 1: p(op_cvt(0, tau - 1))
    tau = 32 + SHIFT - 1
    p("s_nop 0"); p(op_add(0, tau))
    if tau % 2 == 1: p(op_cvt(0, tau))
    p.items.append(WaitFor(lg=("KF0",), vm=("GX",)))
    p(f"v_sub_u32 v{V_SV}, v{V_SV}, v{V_EP}"); p(f"v_cmp_le_u32 vcc, 8, v{V_SV}")
    p("s_cmp_lg_u64 vcc, 0"); p(f"s_cselect_b32 s{S_MIX}, 1, {1 if 'forcemix' in ABL else 0}")
    if 'finepro' not in ABL: stamp(p, 5)

    rare_sites = []
    def att_tile(it, last_block=False):
        par = it % 2
        final = last_block and it == 3
        G = []
        for kt in range(4):
            for qt in range(4):
                for ks in range(4): G.append(Gap(None if final else qk_mfma(1 - par, kt, qt, ks)))
        for dt in range(8):
            for qt in range(4):
                for kb in range(2): G.append(Gap(pv_mfma(par, dt, qt, kb)))
        for b in range(64):
            if b < 32 - SHIFT: sp, tau = par, 32 + SHIFT + b
            else: sp, tau = 1 - par, b - (32 - SHIFT)
            if final and b >= 32 - SHIFT: continue
            G[2 * b].valu.append(op_exp(sp, tau))
            if 32 - SHIFT <= b < 32:
                tgt = G[63] if b == 32 - SHIFT else G[65]
                tgt.valu.append(op_add(sp, tau))
                if tau % 2 == 1: G[67].valu.append(op_cvt(sp, tau))
        for b in range(64):
            if b < 32 - SHIFT: sp, tau = par, 32 + SHIFT + b
            else: sp, tau = 1 - par, b - (32 - SHIFT)
            if 32 - SHIFT <= b < 32 or (final and b >= 32 - SHIFT): continue
            gb = 2 * b + 1 if not final else 2 * b + 3
            G[gb].valu.append(op_add(sp, tau))
            if tau % 2 == 1: G[gb].valu.append(op_cvt(sp, tau))
        L = V_LS + par * 4
        site = f"{'z' if last_block else 'l'}{it}"; rare_sites.append((site, par))
        G[57].valu += [f"v_max3_f32 v{V_CK}, v{L}, v{L+1}, v{L+2}"]
        G[61].valu += [f"v_max_f32 v{V_CK}, v{V_CK}, v{L+3}", f"v_cmp_lt_f32 vcc, s{S_THR}, v{V_CK}"]
        G[63].sh += [f"s_cbranch_vccnz L_rare_stub{site}", Label(f"L_rare_ret{site}")]
        kslot1, kslot2, vslot = KS(it + 1), KS(it + 2), VS(it)
        def put(b0, ops):
            for n, r in enumerate(ops): G[2 * (b0 + n) + 1].mem.append(r)
        put(0, v_reads(vslot, 0)); put(4, v_reads(vslot, 1)); put(12, v_reads(vslot, 2)); put(20, v_reads(vslot, 3))
        if not final:
            put(8, k_reads(kslot1, 2)); put(16, k_reads(kslot1, 3))
            G[15].sh.append(WaitFor(lg=("KF1",))); G[31].sh.append(WaitFor(lg=("KF0",))); G[46].sh.append(WaitFor(lg=("KF1",)))
        put(36, v_reads(vslot, 4)); put(40, v_reads(vslot, 5)); put(44, v_reads(vslot, 6)); put(48, v_reads(vslot, 7))
        wv = []
        if not (last_block and it >= 2):
            put(52, k_reads(kslot2, 0)); put(56, k_reads(kslot2, 1)); G[125].sh.append(WaitFor(lg=("KF0",)))
            wv.append(f"K{kslot2}")
        if not final: wv.append(f"V{VS(it+1)}")
        if not last_block and it == 2: wv.append("RD")
        if not last_block and it == 1: wv.append("RST")
        G[64].wv = wv
        G[65].sh += ["s_barrier"]
        def putdma(b, sal, op):
            G[2 * b - 1].sh.append(sal[0]); G[2 * b].sh.append(sal[1]); G[2 * b + 1].mem.append(op)
        if not last_block:
            for b, (sal, op) in zip((34, 35, 60, 61), kv_dma("K", KS(it), S_KOFF, 0)): putdma(b, sal, op)
            G[126].sh.append(f"s_add_u32 s{S_KOFF}, s{S_KOFF}, 16384")
        if not (last_block and it >= 1):
            sal, op = kv_dma("V", VS(it + 3), S_VOFF, 0)[0]; putdma(62, sal, op)
        if not (last_block and it >= 2):
            for b, (sal, op) in zip((24, 25, 26), kv_dma("V", VS(it + 2), S_VOFF, -16384)[1:]): putdma(b, sal, op)
            G[127].sh.append(f"s_add_u32 s{S_VOFF}, s{S_VOFF}, 16384")
        G[62].sh.append(WaitFor(lg=("VF0", "VF1", "VF2", "VF3")))
        for dt in range(4, 8): G[64 + 8 * dt - (1 if dt < 7 else 2)].sh.append(WaitFor(lg=(f"VF{dt%4}",)))
        if not last_block:
            if it == 0:
                sal = [f"s_add_u32 s{S_RE}, s{S_RE}, s{S_RNW}", f"s_mul_i32 s{S_RS}, s{S_RE}, 3641", f"s_lshr_b32 s{S_RS}, s{S_RS}, 16",
                       f"s_mul_i32 s{S_RS}, s{S_RS}, {36864-1152}", f"s_lshl_b32 s{S_RD}, s{S_RE}, 6", f"s_add_u32 s{S_RS}, s{S_RS}, s{S_RD}",
                       f"s_lshl_b32 s{S_RD}, s{S_RE}, 11"]
                for n, s_ in enumerate(sal): G[2 + 2 * n].sh.append(s_)
                G[54].sh.append(f"s_mov_b32 m0, s{S_BQ}")
                G[55].mem.append((f"buffer_load_dwordx4 v{V_RPG}, s[{S_WG}:{S_WG+3}], s{S_RS} offen lds", "RD"))
                G[56].sh.append(f"s_add_u32 s{S_RS}, s{S_RS}, {16*1152-1024}")
                G[59].mem.append((f"buffer_load_dwordx4 v{V_RPG}, s[{S_WG}:{S_WG+3}], s{S_RS} offen offset:1024 lds", "RD"))
            if it == 1:
                G[72].sh.append(f"s_cmp_le_u32 s{S_CNT}, 2"); G[73].sh.append(f"s_cselect_b32 s{S_SIG}, 2, 1")
                G[77].valu.append(f"v_add_u32 v{V_SV}, s{S_SIG}, v{V_EP}")
                G[80].sh.append(f"s_cmp_lg_u32 s{S_MIX}, 0"); G[81].sh += ["s_cbranch_scc1 L_stub_w2", Label("L_ret_w2")]
                G[127].mem.append((sig_store, None))
            if it == 2:
                G[127].mem.append((f"ds_read_b64_tr_b16 v[{V_RPS}:{V_RPS+1}], v{V_RPL} offset:0", "RL"))
            if it == 3:
                G[55].mem.append((f"ds_read_b64_tr_b16 v[{V_RPS+2}:{V_RPS+3}], v{V_RPL} offset:1024", "RL"))
                G[57].mem.append((f"ds_read_b64_tr_b16 v[{V_RPS+4}:{V_RPS+5}], v{V_RPL} offset:32", "RL"))
                G[59].mem.append((f"ds_read_b64_tr_b16 v[{V_RPS+6}:{V_RPS+7}], v{V_RPL} offset:1056", "RL"))
                G[66].sh.append(WaitFor(lg=("RL",)))
                G[67].mem.append((f"buffer_store_dwordx4 v[{V_RPS}:{V_RPS+3}], v{V_L16}, s[{S_WU}:{S_WU+3}], s{S_RD} offen sc1", "RST"))
                G[127].mem.append((f"buffer_store_dwordx4 v[{V_RPS+4}:{V_RPS+7}], v{V_L16}, s[{S_WU}:{S_WU+3}], s{S_RD} offen offset:1024 sc1", "RST"))
        return G
    def finish_tile(G):
        wv = G[64].wv
        if wv: G[64].sh.append(WaitFor(vm=tuple(wv)))
        for gi, g in enumerate(G):
            if g.mfma and len([x for x in g.sh if not isinstance(x, Label)]) > 1: print("att gap", gi, "has", len(g.sh), "shadow ops")

    body = Prog(); p = body
    p.label("L_att_loop", 6)
    for it in range(4):
        G = att_tile(it)
        if it == 3:
            G[116].sh.append(f"s_sub_u32 s{S_CNT}, s{S_CNT}, 1")
            G[127].post += [f"s_cmp_lg_u32 s{S_CNT}, 0", "s_cbranch_scc1 L_att_loop"]
        finish_tile(G); emit_gaps(p, G)

    tail = Prog(); p = tail
    if 'notailtouch' not in ABL:
        p(f"s_getpc_b64 s[{S_WG}:{S_WG+1}]")
        p.label("L_pc1")
        p(f"s_and_b32 s{S_WG+1}, s{S_WG+1}, 0xffff"); p(f"s_mov_b32 s{S_WG+2}, L_code_end-L_pc1")
        p(f"s_lshr_b32 s{S_T0}, s2, 3"); p(f"s_lshl_b32 s{S_T0}, s{S_T0}, 2"); p(f"s_add_u32 s{S_T0}, s{S_T0}, s{S_WAVE}"); p(f"s_lshl_b32 s{S_T0}, s{S_T0}, 10")
        p(f"buffer_load_dwordx4 v[{V_RPS}:{V_RPS+3}], v{V_L16}, s[{S_WG}:{S_WG+3}], s{S_T0} offen", "CODE")
    if 'finepro' not in ABL: stamp(p, 6)
    NP3 = 17
    Breg = lambda s, ks, mt: ((s % 3) * 4 + ks) * 8 + mt * 4
    def p3_w(s):
        off = (WPD_OFF + s * 4 * 36864) if s < 9 else (WPO_OFF + (s - 9) * 4 * 36864)
        base = S_PW if s < 9 else S_PW2
        ops = []
        for i in range(9):
            sal = []
            if i % 4 == 0:
                tm = tmp()
                sal = [f"s_add_u32 s{tm}, s{base}, {off + i*1024}", f"s_add_u32 m0, s{S_W9K}, {P3_SLOT[s%3] + i*1024}"]
            ops.append((sal, (f"buffer_load_dwordx4 v{V_L16}, s[{S_WS}:{S_WS+3}], s{tm} offen offset:{(i%4)*1024}{LSC}{P3NT} lds", f"PW{s}")))
        return ops
    def p3_b(s):
        off = (H_OFF + s * 524288) if s < 9 else (O_OFF + (s - 9) * 524288)
        base = S_PB0 if s < 9 else S_PB1
        ops = []
        for mt in range(2):
            for ks in range(4):
                r = Breg(s, ks, mt)
                ops.append(([f"s_add_u32 s{S_T2}, s{base}, {off + mt*4096}"] if ks == 0 else [],
                            (f"buffer_load_dwordx4 a[{r}:{r+3}], v{V_L16}, s[{S_WS}:{S_WS+3}], s{S_T2} offen offset:{ks*1024}{LSC}{P3NT}", f"PB{s}")))
        return ops
    setup3 = [f"s_lshr_b32 s{S_KOFF}, s{S_J}, 3", f"s_and_b32 s{S_RE}, s{S_J}, 3", f"s_mul_i32 s{S_W9K}, s{S_WAVE}, 9216",
              f"s_mul_i32 s{S_PW2}, s{S_WAVE}, 36864", f"s_mul_i32 s{S_RNW}, s{S_RE}, 9216", f"s_add_u32 s{S_PW2}, s{S_PW2}, s{S_RNW}",
              f"s_mul_i32 s{S_PW}, s{S_KOFF}, {1152*1152}", f"s_add_u32 s{S_PW}, s{S_PW}, s{S_PW2}",
              f"s_mul_i32 s{S_RNW}, s{S_KOFF}, {1024*1152}", f"s_add_u32 s{S_PW2}, s{S_PW2}, s{S_RNW}",
              f"s_lshl_b32 s{S_PST}, s{S_RB}, 3", f"s_and_b32 s{S_RNW}, s{S_J}, 7", f"s_add_u32 s{S_PST}, s{S_PST}, s{S_RNW}",
              f"s_lshr_b32 s{S_FX0}, s{S_PST}, 2",
              f"s_lshl_b32 s{S_PB1}, s{S_FX0}, 2", f"s_add_u32 s{S_PB1}, s{S_PB1}, s{S_WAVE}", f"s_lshl_b32 s{S_PB1}, s{S_PB1}, 13",
              f"s_mul_i32 s{S_PB0}, s{S_KOFF}, {9*524288}", f"s_add_u32 s{S_PB0}, s{S_PB0}, s{S_PB1}",
              f"s_lshl_b32 s{S_RNW}, s{S_KOFF}, 22", f"s_add_u32 s{S_PB1}, s{S_PB1}, s{S_RNW}",
              f"s_mul_i32 s{S_PST}, s{S_PST}, {16*9216}",
              f"s_mul_i32 s{S_FL}, s{S_KOFF}, 9216", f"s_add_u32 s{S_FL}, s{S_FL}, s{S_PST}",
              f"s_mul_i32 s{S_CNT}, s{S_KOFF}, {4*9216}", f"s_add_u32 s{S_PST}, s{S_PST}, s{S_CNT}", f"s_add_u32 s{S_PST}, s{S_PST}, s{S_W9K}",
              f"s_lshl_b32 s{S_FX0}, s{S_FX0}, 2", f"s_add_u32 s{S_FX0}, s{S_FX0}, s{S_KOFF}", f"s_mul_i32 s{S_FX0}, s{S_FX0}, {32*1152}",
              f"s_mul_i32 s{S_CNT}, s{S_RE}, 288", f"s_add_u32 s{S_FX0}, s{S_FX0}, s{S_CNT}", f"s_add_u32 s{S_FX1}, s{S_FX0}, {16*1152}"]
    GL = [att_tile(it, last_block=True) for it in range(4)]
    GL[0][55].mem.append(poll_load("PL"))
    GL[0][100].sh.append(WaitFor(vm=("PL",)))
    cv, cs = poll_check(2, "p2")
    GL[0][121].valu += cv; GL[0][120].sh += cs[:1]; GL[0][122].sh += cs[1:]
    V_TH, V_TW, V_TD = 92, 93, 94
    tset = [f"s_and_b32 s{S_WU}, s{S_J}, 7", f"s_lshl_b32 s{S_WU}, s{S_WU}, 2", f"s_add_u32 s{S_WU}, s{S_WU}, s{S_WAVE}", f"s_lshl_b32 s{S_WU}, s{S_WU}, 11",
            f"s_lshl_b32 s{S_WU+1}, s{S_RB}, 16", f"s_add_u32 s{S_WU}, s{S_WU}, s{S_WU+1}", f"s_lshr_b32 s{S_WU+1}, s{S_J}, 3", f"s_mul_i32 s{S_WU+2}, s{S_WU+1}, {9*524288}",
            f"s_add_u32 s{S_WU}, s{S_WU}, s{S_WU+2}",
            f"s_lshr_b32 s{S_WU+2}, s2, 3", f"s_lshl_b32 s{S_WU+2}, s{S_WU+2}, 2", f"s_add_u32 s{S_WU+2}, s{S_WU+2}, s{S_WAVE}", f"s_lshl_b32 s{S_WU+2}, s{S_WU+2}, 13",
            f"s_mul_i32 s{S_WU+3}, s{S_WU+1}, {1024*1152}", f"s_mul_i32 s{S_WU+1}, s{S_WU+1}, {1152*1152}",
            f"s_add_u32 s{S_WU+1}, s{S_WU+1}, s{S_WU+2}", f"s_add_u32 s{S_WU+3}, s{S_WU+3}, s{S_WU+2}"]
    fr0 = [g for gi, g in enumerate(GL[0]) if not g.sh and gi not in (64,) and gi < 100]
    for s_, g in zip(tset, fr0): g.sh.append(s_)
    assert len(fr0) >= len(tset)
    GL[0][69].valu += [f"v_lshrrev_b32 v{V_TH}, 4, v{V_LANE}"]; GL[0][71].valu += [f"v_lshlrev_b32 v{V_TH}, 19, v{V_TH}"]
    GL[0][123].valu += [f"v_and_b32 v{V_TW}, 15, v{V_LANE}"]; GL[0][127].valu += [f"v_lshl_add_u32 v{V_TH}, v{V_TW}, 7, v{V_TH}"]
    GL[1][55].valu += [f"v_lshlrev_b32 v{V_TW}, 7, v{V_LANE}"]
    def touch(G, g, va, base, off):
        tm = tmp()
        assert not G[g - 1].sh and not G[g].mem, g
        G[g - 1].sh.append(f"s_add_u32 s{tm}, s{base}, {off}")
        G[g].mem.append((f"buffer_load_dword v{V_TD}, v{va}, s[{S_WS}:{S_WS+3}], s{tm} offen{LSC}", "TCH"))
    if 'p3touch' in ABL:
        touch(GL[1], 57, V_TH, S_WU, H_OFF); touch(GL[1], 69, V_TW, S_WU + 1, WPD_OFF)
        touch(GL[2], 51, V_TH, S_WU, H_OFF + 4 * 524288)
    free = [g for gi, g in enumerate(GL[1]) if not g.sh and gi not in (64,)]
    assert len(free) >= 2 * len(setup3)
    for s_, g in zip(setup3, free[::2]): g.sh.append(s_)
    G30 = GL[2]
    place_mem(G30, p3_w(0), 100, 128, dense=True)
    G31 = GL[3]
    for n, (sal, op) in enumerate(p3_b(0) + p3_b(1)):
        G31[4 * n // 2 + 16].post += sal + [op]
    for s in range(3): G31[2].post.append(f"v_add_u32 v{V_PWA+s}, {P3_SLOT[s]}, v{V_L16}")
    G31[64].wv += ["PW0"]
    place_mem(G31, p3_w(1), 66, 104)
    pg = []
    for s in range(NP3):
        if s in (8, 16): order = [(kp, nt) for nt in range(9) for kp in range(2)]
        else: order = [(kp, nt) for kp in range(2) for nt in range(9)]
        for kp, nt in order: pg.append((s, kp, nt))
    def p3_reads(gi):
        s, kp, nt = pg[gi]; base = P3_AR[gi % 4]
        return [(f"ds_read_b128 v[{base+4*q}:{base+4*q+3}], v{V_PWA + s%3} offset:{((2*kp+q)*9 + nt)*1024}", f"PA{gi%4}") for q in range(2)]
    P = []
    for gi, (s, kp, nt) in enumerate(pg):
        A = V_AD if s < 9 else V_AS
        for mt in range(2):
            for q in range(2):
                a = A + (nt * 2 + mt) * 4; b = Breg(s, 2 * kp + q, mt); ar = P3_AR[gi % 4] + 4 * q
                C = "0" if (s in (0, 9) and kp == 0 and q == 0) else f"v[{a}:{a+3}]"
                P.append(Gap(f"v_mfma_f32_16x16x32_bf16 v[{a}:{a+3}], v[{ar}:{ar+3}], a[{b}:{b+3}], {C}"))
    for n, r in enumerate(p3_reads(0) + p3_reads(1) + p3_reads(2)): G31[108 + 2 * n].mem.append(r)
    G31[126].sh.append(WaitFor(lg=("PA0",), vm=("PB0",)))
    for gi in range(3, len(pg)):
        i = gi % 18
        rd = p3_reads(gi)
        if i == 0: g0_ = 4 * (gi - 2); pos = (g0_, g0_ + 1)
        elif i == 1: g0_ = 4 * (gi - 3); pos = (g0_ + 2, g0_ + 3)
        else: g0_ = 4 * (gi - 3); pos = (g0_, g0_ + 2)
        for g_, r in zip(pos, rd): P[g_].mem.append(r)
    barw = {}
    for gi in range(1, len(pg)):
        s = pg[gi][0]; g = P[4 * gi - 1]
        if gi % 18 == 16 and s + 1 < NP3:
            barw[s] = WaitFor(vm=[f"PW{s+1}", f"PB{s+1}"], lg0=True)
            P[4 * gi - 2].sh.append(barw[s]); g.sh.append("s_barrier")
        else: g.sh.append(WaitFor(lg=(f"PA{gi%4}",)))
    def after_barrier(s): return 72 * s + 64
    OSIG = 4
    barw[OSIG].vm = tuple(barw[OSIG].vm) + ("OST",)
    P[after_barrier(OSIG) - 6].valu.append(sig_val(3)); P[after_barrier(OSIG) + 5].mem.append((sig_store, None))
    P[after_barrier(OSIG) + 1].sh.append(f"s_cmp_lg_u32 s{S_MIX}, 0"); P[after_barrier(OSIG) + 2].sh += ["s_cbranch_scc1 L_stub_w3", Label("L_ret_w3")]
    barw[10].vm = tuple(barw[10].vm) + ("DST",)
    P[after_barrier(10) - 6].valu.append(sig_val(4)); P[after_barrier(10) + 5].mem.append((sig_store, None))
    P[72*5+1].sh.append(f"s_lshl_b32 s{S_CNT}, s{S_RB}, 11"); P[72*5+2].sh.append(f"s_lshl_b32 s{S_RE}, s{S_KOFF}, 9"); P[72*5+4].sh.append(f"s_add_u32 s{S_RE}, s{S_RE}, s{S_CNT}")
    P[72*5+5].valu += [f"v_and_b32 v{V_PA}, 7, v{V_LANE}", f"v_lshl_add_u32 v{V_PA}, v{V_PA}, 2, s{S_RE}"]
    P[72*6+41].mem.append(poll_load("PL"))
    P[72*6+68].sh.append(WaitFor(vm=("PL",)))
    cv, cs = poll_check(3, "p3")
    P[72*6+69].valu += cv; P[72*6+69].sh += cs[:1]; P[72*6+70].post += cs[1:]
    P[72*8+1].sh.append(f"s_and_b32 s{S_RE}, s{S_J}, 7"); P[72*8+2].sh.append(f"s_lshl_b32 s{S_RE}, s{S_RE}, 2"); P[72*8+4].sh.append(f"s_add_u32 s{S_RE}, s{S_RE}, s{S_CNT}")
    P[72*8+5].valu += [f"v_and_b32 v{V_PA}, 3, v{V_LANE}", f"v_lshl_add_u32 v{V_PA}, v{V_PA}, 9, s{S_RE}"]
    P[72*11+41].mem.append(poll_load("PL"))
    P[72*11+68].sh.append(WaitFor(vm=("PL",)))
    cv, cs = poll_check(4, "p4")
    P[72*11+69].valu += cv; P[72*11+69].sh += cs[:1]; P[72*11+70].post += cs[1:]
    FD = V_AD
    FXR = 240
    FG = 16
    def fin_loads(kind, dst, tag):
        ops = []
        for m in range(3):
            for sp in range(4):
                tm = tmp()
                ops.append(([f"s_add_u32 s{tm}, s{S_FL}, {PART_OFF + kind*PSTRIDE + sp*4*9216}"],
                            (f"buffer_load_dwordx4 v[{dst+(m*4+sp)*4}:{dst+(m*4+sp)*4+3}], v{V_FL+m}, s[{S_WS}:{S_WS+3}], s{tm} offen sc1", tag)))
        return ops
    xl = []
    for m in range(3):
        for mt in range(2):
            xl.append(([], (f"buffer_load_dwordx2 v[{FXR+4*m+2*mt}:{FXR+4*m+2*mt+1}], v{V_FX}, s[{S_XI}:{S_XI+3}], s{(S_FX0, S_FX1)[mt]} offen offset:{m*128}", "FX")))
    for s in range(NP3):
        ops = []
        if s + 2 < NP3:
            w, b = p3_w(s + 2), p3_b(s + 2)
            ops = w[:4] + b[:4] + w[4:8] + b[4:] + w[8:]
        if s == 12: ops = fin_loads(0, FD, "FD")[:8] + ops
        if s == 13: ops = fin_loads(0, FD, "FD")[8:] + ops
        if s == 15: ops = xl
        if s == int(os.environ.get('WOT', '2')) and 'p3touch' in ABL:
            tm = tmp()
            ops = [([f"s_add_u32 s{tm}, s{S_WU+3}, {WPO_OFF}"], (f"buffer_load_dword v{V_TD}, v{V_TW}, s[{S_WS}:{S_WS+3}], s{tm} offen{LSC}", "TCH"))] + ops
        if ops: place_mem(P, ops, 72 * s, 72 * s + 63)
    allg = G31 + P
    OT = V_AS
    def o_item(n, qt, s):
        T = OT + (n % 4) * 8; D = OT + 32 + (n % 4) * 4
        q = []
        for h in range(2):
            o = A_O + ((2 * s + h) * 4 + qt) * 4
            for r in range(4): q.append(f"v_accvgpr_read_b32 v{T+4*h+r}, a{o+r}")
        for i in range(8): q.append(f"v_mul_f32 v{T+i}, v{T+i}, v{V_LS+4+qt}")
        for i in range(4): q.append(f"v_cvt_pk_bf16_f32 v{D+i}, v{T+2*i}, v{T+2*i+1}")
        q.append(("MEM", [f"s_add_u32 s{S_SIG}, s{S_OBASE}, {O_OFF + qt*4096}"], (f"buffer_store_dwordx4 v[{D}:{D+3}], v{V_L16}, s[{S_WS}:{S_WS+3}], s{S_SIG} offen offset:{s*1024}{SCO}", "OST")))
        return q
    pre = xlane4_ops("v_add_f32", V_LS + 4, OT + 48) + [f"v_rcp_f32 v{V_LS+4+qt}, v{V_LS+4+qt}" for qt in range(4)]
    n = 0; lim = 128 + after_barrier(OSIG - 1)
    q = list(pre); mins = [64] * len(pre)
    for s in range(4):
        for qt in range(4):
            it_ = o_item(n, qt, s); n += 1
            q += it_; mins += [64 + 16 * (s + 1) + 4] * len(it_)
    left = fill_valu(allg[:lim], 64, q, mins=mins); assert not left, len(left)
    fs = [f"v_and_b32 v{V_FX}, 15, v{V_LANE}", f"v_mul_u32_u24 v{V_FX}, 1152, v{V_FX}", f"v_lshrrev_b32 v{V_FL}, 4, v{V_LANE}",
          f"v_lshl_add_u32 v{V_FX}, v{V_FL}, 3, v{V_FX}", f"v_add_u32 v{V_FL}, s{S_W1K}, v{V_L16}", f"v_add_u32 v{V_FL+1}, 4096, v{V_FL}",
          f"v_add_u32 v{V_FL+2}, s{S_VOFF}, v{V_FL}", f"v_add_u32 v{V_FX}, s{S_KOFF}, v{V_FX}", f"v_add_u32 v{V_FL+3}, s{S_VOFF}, v{V_FX}", f"v_subrev_u32 v{V_FL+3}, 8192, v{V_FL+3}"]
    sfree = [g for g in range(72 * 5 + 8, 72 * 5 + 40) if not P[g].sh and not P[g+1].sh]
    P[sfree[0]].sh.append(f"s_lshl_b32 s{S_KOFF}, s{S_WAVE}, 5")
    g_ = [g for g in sfree if g > sfree[0] + 1][0]
    P[g_].sh.append(f"s_cmp_eq_u32 s{S_WAVE}, 0"); P[g_ + 1].sh.append(f"s_cselect_b32 s{S_VOFF}, 8192, {1 << 30}")
    left = fill_valu(P[:72 * 7], 72 * 5 + 44, fs); assert not left
    def part_item(A, nt, kind, tag):
        a = A + nt * 8
        q = [f"v_cvt_pk_bf16_f32 v{a+i}, v{a+2*i}, v{a+2*i+1}" for i in range(4)]
        q.append(("MEM", [f"s_add_u32 s{S_SIG}, s{S_PST}, {PART_OFF + kind*PSTRIDE + nt*1024}"], (f"buffer_store_dwordx4 v[{a}:{a+3}], v{V_L16}, s[{S_WS}:{S_WS+3}], s{S_SIG} offen sc1", tag)))
        return q
    for nt in range(9):
        left = fill_valu(P[:72 * 10], 72 * 8 + 8 * (nt + 1) + 4, part_item(V_AD, nt, 0, "DST")); assert not left
    sleft = []
    for nt in range(9):
        sleft += fill_valu(P, 72 * 16 + 8 * (nt + 1) + 4, part_item(V_AS, nt, 1, "SST"))
    GG = V_AD + 48
    TT = 16
    P[72*14 - 3].sh.append(WaitFor(vm=("FD",)))
    gq = []
    def unpack_sum(src, dst):
        q = []
        for i in range(4):
            q += [f"v_lshlrev_b32 v{dst+2*i}, 16, v{src+i}", f"v_and_b32 v{dst+2*i+1}, s{S_THR}, v{src+i}"]
        for sp in range(1, 4):
            T = TT + 8 * (sp % 2)
            for i in range(4):
                q += [f"v_lshlrev_b32 v{T+2*i}, 16, v{src+4*sp+i}", f"v_and_b32 v{T+2*i+1}, s{S_THR}, v{src+4*sp+i}"]
            for i in range(8): q.append(f"v_add_f32 v{dst+i}, v{dst+i}, v{T+i}")
        return q
    P[72*13+1].sh.append(f"s_mov_b32 s{S_THR}, 0xffff0000") if not P[72*13+1].sh else P[72*13+1].post.append(f"s_mov_b32 s{S_THR}, 0xffff0000")
    for m in range(3):
        D = GG + 8 * m; T = FD + 16 * m
        gq += unpack_sum(FD + 16 * m, D)
        gq += [f"v_mul_f32 v{T+i}, {f2u(-LOG2E)}, v{D+i}" for i in range(8)]
        gq += [f"v_exp_f32 v{T+i}, v{T+i}" for i in range(8)]
        gq += [f"v_add_f32 v{T+i}, 1.0, v{T+i}" for i in range(8)]
        gq += [f"v_rcp_f32 v{T+i}, v{T+i}" for i in range(8)]
        gq += [f"v_mul_f32 v{D+i}, v{D+i}, v{T+i}" for i in range(8)]
    gleft = fill_valu(P, 72 * 14, gq)
    if 'p3nost' in ABL:
        for g in G31 + P: g.mem = [m for m in g.mem if not (m[0].startswith("buffer_store_dwordx4"))]
    if 'p3nold' in ABL:
        for g in P: g.mem = [m for m in g.mem if not (m[0].startswith("buffer_load_dwordx4"))]
    if 'p3novalu' in ABL:
        for g in P: g.valu = [m for m in g.valu if not m.startswith(("v_accvgpr", "v_mul", "v_cvt", "v_exp", "v_rcp", "v_add_f32"))]
    print("phase3 leftovers: s-part", len(sleft), "gate", len(gleft))
    for it in range(4):
        finish_tile(GL[it]); emit_gaps(p, GL[it])
    if 'finepro' not in ABL:
        stamp(p, 7)
        for s, k in ((3, 8), (6, 9), (9, 10), (13, 11)): P[72 * s - 1].post += stamp_ops(k)
    emit_gaps(p, P)
    if 'finepro' not in ABL: stamp(p, 12)
    emit_ops(p, sleft)
    emit_ops(p, gleft)
    p(sig_val(5))
    p("s_waitcnt vmcnt(0)"); p("s_barrier")
    p(sig_store)
    if 'finepro' not in ABL: stamp(p, 13)
    p(f"s_add_u32 s{S_PV}, s{S_EP}, 5"); p(f"s_call_b64 s[{S_RET}:{S_RET+1}], L_spin0")
    if 'finepro' not in ABL: stamp(p, 14)
    for sal, op in fin_loads(1, FD, "FS"):
        for s_ in sal: p(s_)
        p(op[0], op[1])
    for m in range(3):
        p(f"s_waitcnt vmcnt({8 - 4*m + 2*m})")
        D = V_AS + 8 * m
        for t in unpack_sum(FD + 16 * m, D): p(t)
        T = TT
        for i in range(4):
            p(f"v_lshlrev_b32 v{T+2*i}, 16, v{FXR+4*m+i}"); p(f"v_and_b32 v{T+2*i+1}, s{S_THR}, v{FXR+4*m+i}")
        for i in range(8): p(f"v_fmac_f32 v{T+i}, v{D+i}, v{GG+8*m+i}")
        for i in range(4): p(f"v_cvt_pk_bf16_f32 v{D+i}, v{T+2*i}, v{T+2*i+1}")
        va = V_FX if m < 2 else V_FL + 3
        for mt in range(2):
            p(f"buffer_store_dwordx2 v[{D+2*mt}:{D+2*mt+1}], v{va}, s[{S_OUT}:{S_OUT+3}], s{(S_FX0, S_FX1)[mt]} offen offset:{m*128}")
    if STAMP: p("s_waitcnt vmcnt(0)")
    stamp(p, 19); stamp_rt(p, 21); stamp_dump(p, 70, S_WAVE, 1)
    p.label("L_done"); p("s_endpgm")

    rare = Prog(); p = rare
    for site, par in rare_sites:
        p.label(f"L_rare_stub{site}")
        p(f"s_call_b64 s[{S_RET}:{S_RET+1}], L_rare{par}")
        p(f"s_branch L_rare_ret{site}")
    for name in stubs:
        p.label(f"L_stub_{name}")
        p(f"s_call_b64 s[{S_RET}:{S_RET+1}], L_spin0")
        p(f"s_branch L_ret_{name}")
    for name in ("w2", "w3"):
        p.label(f"L_stub_{name}")
        p("buffer_wbl2 sc1"); p("s_waitcnt vmcnt(0)")
        p(f"s_branch L_ret_{name}")
    p.label("L_spin0")
    p(f"s_mov_b32 s{S_SPIN}, 0x40000")
    p.label("L_spin1")
    p(poll_load(None)[0])
    p(f"s_sub_u32 s76, s{S_EP}, s{S_PV}"); p("s_add_u32 s76, s76, 8")
    p("s_waitcnt vmcnt(0)")
    p(f"v_and_b32 v{V_PT}, 0xffffff87, v{V_PT}"); p(f"v_subrev_u32 v{V_PT}, s{S_PV}, v{V_PT}"); p(f"v_cmp_le_u32 vcc, s76, v{V_PT}")
    p("s_cbranch_vccz L_spin2")
    p(f"s_sub_u32 s{S_SPIN}, s{S_SPIN}, 1"); p("s_sleep 1"); p(f"s_cmp_lg_u32 s{S_SPIN}, 0"); p("s_cbranch_scc1 L_spin1")
    p.label("L_spin2")
    p(f"s_setpc_b64 s[{S_RET}:{S_RET+1}]")
    rare_items = fix_hazards(rare.items)[0]
    for par in range(2):
        rp = Prog(); p = rp
        p.label(f"L_rare{par}")
        p("s_nop 15")
        Lold = V_LS + (1 - par) * 4
        for qt in range(4):
            rowmax(p, par, qt, V_R + qt)
            p(f"v_log_f32 v{V_R+4}, v{Lold+qt}")
            p(f"v_max3_f32 v{V_R+qt}, v{V_R+qt}, v{V_R+4}, 0")
        for t in xlane4_ops("v_max_f32", V_R, V_R + 4): p(t)
        for qt in range(4):
            p(f"v_sub_f32 v{V_R+4+qt}, 0, v{V_R+qt}"); p(f"v_exp_f32 v{V_R+4+qt}, v{V_R+4+qt}")
        for qt in range(4):
            p(f"v_mul_f32 v{Lold+qt}, v{Lold+qt}, v{V_R+4+qt}")
            for r in range(4): p(f"v_sub_f32 v{V_NM+4*qt+r}, v{V_NM+4*qt+r}, v{V_R+qt}")
            for pp in range(2):
                for kt in range(4):
                    for r in range(4): p(f"v_sub_f32 v{Sreg(pp,kt,qt)+r}, v{Sreg(pp,kt,qt)+r}, v{V_R+qt}")
            for dt in range(8):
                o = A_O + (dt * 4 + qt) * 4
                for r in range(4): p(f"v_accvgpr_read_b32 v{V_E+r}, a{o+r}")
                for r in range(4): p(f"v_mul_f32 v{V_E+r}, v{V_E+r}, v{V_R+4+qt}")
                for r in range(4): p(f"v_accvgpr_write_b32 a{o+r}, v{V_E+r}")
        for tau in range(64):
            p(op_exp(par, tau)); p(op_add(par, tau))
            if tau % 2 == 1: p(op_cvt(par, tau))
        for tau in range(SHIFT): p(op_exp(1 - par, tau))
        p("s_nop 3")
        p(f"s_setpc_b64 s[{S_RET}:{S_RET+1}]")
        rare_items += fix_hazards(rp.items)[0]

    resolve_waits(pro.items + body.items + body.items + tail.items)
    pi = lower_waits(pro.items); bi = lower_waits(body.items); ti = lower_waits(tail.items)
    pi, a1 = fix_hazards(pi, verbose=False, name="pro")
    bi2, a2 = fix_hazards(bi, prev=bi, verbose=True, name="body")
    bi3, a3 = fix_hazards(bi2, prev=pi, verbose=True, name="body-entry")
    ti, a4 = fix_hazards(ti, prev=bi3, verbose=True, name="tail")
    wc = WaitChecker(); wc.run(pi + bi3 + bi3 + ti)
    for e in wc.errors[:10]: print("WAITCHECK", e)
    return pi + bi3 + ti + rare_items

if __name__ == "__main__":
    import sys
    HEADER = open("cdna_kernels/" + NAME + ".s.ref").read().split("; Override")[0]
    items = gen_mega()
    k = NAME + "_kernel"
    s = HEADER + f"; @launch grid=(256,1,1) block=(256,1,1) lds={LDS_BYTES}\n"
    s += '.amdgcn_target "amdgcn-amd-amdhsa--gfx950"\n' + kernel_text(k, items, 512, 256)
    s += "L_code_end:\n    s_endpgm\n" + '.section .rodata,"a"\n.p2align 6\n' + kd_text(k, 512, 256)
    open(sys.argv[1], "w").write(s)
```

```python
from common import *
import math
LDS_BYTES = 160 * 1024
LOG2E = 1.4426950408889634
QSCALE = LOG2E / math.sqrt(128.0)
GC1 = -2.0 * math.sqrt(2.0 / math.pi) * LOG2E
GC2 = GC1 * 0.044715
THRESH = 2.0 ** 64
ABL = os.environ.get('ABL', '')
NTW = "" if "nontw" in ABL else " nt"
NTQ = "" if "nontq" in ABL else " nt"
NTX = " nt" if "ntx" in ABL else ""
NTKV = " nt" if 'ntkv' in ABL else ""
WS_BYTES = 128 << 20
WPO_OFF = WP_OFF
WPD_OFF = WP_OFF + 4096 * 1152
FLAG_OFF = 100 << 20
SCH = ' sc1' if 'sch' in ABL else ''
SCO = ' sc1' if 'sco' in ABL else ''
LSC = '' if 'nolsc' in ABL else ' sc1'
P3NT = ' nt' if 'p3nt' in ABL else ''
PSTRIDE = 64 * 4 * 4 * 9216

S_HF = 4
S_WG, S_WU, S_WQ, S_K, S_V, S_WS, S_DBG, S_XI = 8, 12, 16, 20, 24, 28, 32, 36
S_WAVE, S_RB, S_J = 40, 41, 42
S_RE = 43
S_T0, S_T1, S_T2 = 44, 45, 46
S_KOFF, S_VOFF = 47, 48
S_W1K = 49
S_RET = 50
S_CNT = 52
S_W3K = 53
S_BF, S_BH, S_BQ = 54, 55, 56
S_RS, S_RD = 57, 58
S_RNW = 59
S_HHALF = 60
S_THR = 61
S_OBASE = 62
S_XB = 63
S_PTR = 64
S_W6K = 3
S_PV = 79
S_SIG = 78
S_SPIN = 75
S_EP = 74
S_FO = 73
S_MIX = 72
S_XCC = 69
S_PW, S_PW2, S_PB0, S_PB1 = 54, 55, 56, 57
S_W9K = 53
S_PST = 58
S_FL = 59
S_FX0, S_FX1 = 60, 63
S_OUT = 16

V_SA = 0
V_L16 = 1
V_WF, V_WQ = 2, 3
V_RA = 4
V_RH = 8
V_QP = 10
V_C1, V_C2 = 12, 13
V_KD, V_VD = 14, 15
V_AF = 16
V_T = 52
V_HO = 68
V_KA = 76
V_VA = 80
V_RQ = 88
V_ACC = 96
V_X = 224
WSLOT = [128 * 1024, 80 * 1024, 40 * 1024, 104 * 1024]
def wbase(slot):
    b = WSLOT[slot]
    return (0, b - 40 * 1024) if b < 104 * 1024 else (1, b - 104 * 1024)
def xreg(ks, mt):
    f = ks * 4 + mt
    return f"a[{4*f}:{4*f+3}]" if f < 64 else f"v[{V_X+4*(f-64)}:{V_X+4*(f-64)+3}]"

A_Q, A_KF, A_VF, A_O = 0, 64, 96, 128
V_S = 96
V_P0 = 224
V_P1 = 16
V_NM = 32
V_LS = 48
V_E = 56
V_CK = 64
V_R = 65
V_RPS = 88
V_RPG, V_RPL = 2, 3
V_PA, V_PT = 4, 5
V_SV = 6
V_LANE = 7
V_EP = 8
SHIFT = 2
KS = lambda T: (T + 3) % 4
VS = lambda T: (T + 1) % 4
P3_SLOT = [0, 80 * 1024, 116 * 1024]
V_AD, V_AS = 96, 168
P3_AR = [32, 40, 56, 64]
V_PWA = 73
V_FX = 88
V_FL = 76

from k12 import Gap, emit_gaps, slots_of, fill_valu

def emit_ops(p, ops):
    for op in ops:
        if isinstance(op, tuple):
            for t in op[1]: p(t)
            p(op[2][0], op[2][1])
        else: p(op)

def gen_mega():
    pro = Prog(); p = pro
    stubs = []
    def poll_check(val, name):
        stubs.append(name)
        return ([f"v_and_b32 v{V_PT}, 0xffffff87, v{V_PT}", f"v_subrev_u32 v{V_PT}, s{S_PV}, v{V_PT}", f"v_cmp_le_u32 vcc, {8-val}, v{V_PT}"],
                [f"s_add_u32 s{S_PV}, s{S_EP}, {val}", f"s_cbranch_vccnz L_stub_{name}", Label(f"L_ret_{name}")])
    poll_load = lambda tag: (f"buffer_load_dword v{V_PT}, v{V_PA}, s[{S_WS}:{S_WS+3}], s{S_FO} offen sc1", tag)
    sig_store = f"buffer_store_dword v{V_SV}, v{V_SA}, s[{S_WS}:{S_WS+3}], s{S_FO} offen sc1"
    sig_val = lambda val: f"v_add_u32 v{V_SV}, {val}, v{V_EP}"

    p("s_cmp_ge_u32 s2, 256"); p("s_cbranch_scc1 L_done")
    stamp_rt(p, 20); stamp(p, 0)
    p(f"s_load_dwordx2 s[{S_XI}:{S_XI+1}], s[0:1], {ARG['x']}")
    p(f"s_load_dwordx2 s[{S_WQ}:{S_WQ+1}], s[0:1], {ARG['wq']}")
    p(f"s_load_dwordx4 s[68:71], s[0:1], {ARG['dbg']}")
    p(f"s_load_dwordx4 s[72:75], s[0:1], {ARG['wg']}")
    p(f"s_load_dwordx4 s[64:67], s[0:1], {ARG['k']}")
    p("v_lshrrev_b32 v16, 6, v0"); p("v_and_b32 v17, 63, v0")
    p(f"v_readfirstlane_b32 s{S_WAVE}, v16")
    p(f"s_and_b32 s{S_T0}, s2, 7"); p(f"s_lshr_b32 s{S_T1}, s2, 3")
    p(f"s_and_b32 s{S_RB}, s{S_T1}, 3"); p(f"s_lshr_b32 s{S_T1}, s{S_T1}, 2")
    p(f"s_and_b32 s{S_T2}, s{S_T0}, 1"); p(f"s_lshl_b32 s{S_T2}, s{S_T2}, 2"); p(f"s_add_u32 s{S_RB}, s{S_RB}, s{S_T2}")
    p(f"s_lshr_b32 s{S_T0}, s{S_T0}, 1"); p(f"s_lshl_b32 s{S_J}, s{S_T0}, 3"); p(f"s_add_u32 s{S_J}, s{S_J}, s{S_T1}")
    p("v_lshrrev_b32 v18, 5, v17"); p("v_and_b32 v19, 31, v17")
    p(f"s_lshl_b32 s{S_T0}, s{S_RB}, 8"); p(f"s_lshl_b32 s{S_T1}, s{S_J}, 3"); p(f"s_add_u32 s{S_T0}, s{S_T0}, s{S_T1}")
    p(f"s_lshl_b32 s{S_T1}, s{S_WAVE}, 1"); p(f"s_add_u32 s{S_T0}, s{S_T0}, s{S_T1}"); p(f"s_mul_i32 s{S_T0}, s{S_T0}, 1152")
    p("v_mul_u32_u24 v20, 1152, v18"); p("v_lshl_add_u32 v20, v19, 4, v20")
    p(f"s_mov_b32 s{S_XI+2}, {XN_BYTES}"); p(f"s_mov_b32 s{S_XI+3}, 0x20000")
    p(f"s_mov_b32 s{S_WQ+2}, {576*8192}"); p(f"s_mov_b32 s{S_WQ+3}, 0x20000")
    p(f"v_lshlrev_b32 v{V_L16}, 4, v17")
    p("v_cmp_gt_u32 vcc, 24, v19")
    p("s_waitcnt lgkmcnt(0)")
    LX = 96
    srd(p, S_DBG, 68, 256)
    p(f"s_lshl_b32 s{S_T1}, s2, 2"); p(f"s_add_u32 s{S_T1}, s{S_T1}, s{S_WAVE}"); p(f"s_cmp_lg_u32 s{S_T1}, 0"); p("s_cbranch_scc1 L_noleader")
    p("s_memrealtime s[76:77]"); p("v_mov_b32 v31, 0"); p("s_waitcnt lgkmcnt(0)")
    p("s_lshl_b32 s76, s76, 8"); p("s_or_b32 s76, s76, 128"); p("v_mov_b32 v30, s76")
    p(f"buffer_store_dword v30, v31, s[{S_DBG}:{S_DBG+3}], 0 offen sc1")
    p.label("L_noleader")
    for m in range(3):
        p(f"buffer_load_dwordx4 v[{LX+4*m}:{LX+4*m+3}], v20, s[{S_XI}:{S_XI+3}], s{S_T0} offen offset:{m*384}{NTX}", "LX")
    p(f"s_mov_b64 s[{S_RET}:{S_RET+1}], vcc")
    p("v_lshrrev_b32 v20, 4, v17"); p("v_and_b32 v22, 15, v17")
    p("v_lshlrev_b32 v23, 2, v20"); p("v_xor_b32 v23, v23, v22"); p("v_lshlrev_b32 v24, 13, v20"); p(f"v_lshl_add_u32 v{V_WQ}, v23, 4, v24")
    p(f"s_mul_i32 s{S_W6K}, s{S_WAVE}, 6144")
    p(f"s_mul_i32 s{S_BQ}, s{S_WAVE}, {24*8192}"); p(f"s_lshl_b32 s{S_T0}, s{S_J}, 8"); p(f"s_add_u32 s{S_BQ}, s{S_BQ}, s{S_T0}")

    stages = [("q", 0, sub, 0) for sub in range(6)] + [("h", 0, sub, 0) for sub in range(3)]
    for t in range(4): stages += [("f", t, sub, (t + 1) % 2) for sub in range(3)]
    NST = len(stages)
    tmpsel = [0]
    def tmp():
        tmpsel[0] ^= 1
        return (S_T0, S_T1)[tmpsel[0]]
    def w_dma(st):
        kind, t, sub, buf = stages[st]; slot = st % 4
        ops = []
        if kind == "q":
            for i in range(6):
                tm = tmp()
                sal = [f"s_add_u32 s{tm}, s{S_BQ}, {(sub * 96 + 4 * i) * 8192}", f"s_add_u32 m0, s{S_W6K}, {WSLOT[slot] + i*1024}"]
                ops.append((sal, (f"buffer_load_dwordx4 v{V_WQ}, s[{S_WQ}:{S_WQ+3}], s{tm} offen{NTQ} lds", f"W{st}")))
            return ops
        for reg in range(2):
            for i in range(3):
                base, srdn = (S_BH if kind == "h" else S_BF), (S_WG, S_WU)[reg]
                imm = (sub * 192 + 16 * i) * 9216 + t * 64
                tm = tmp()
                sal = [f"s_add_u32 s{tm}, s{base}, {imm}", f"s_add_u32 m0, s{S_W3K}, {WSLOT[slot] + reg*12288 + i*1024}"]
                ops.append((sal, (f"buffer_load_dwordx4 v{V_WF}, s[{srdn}:{srdn+3}], s{tm} offen{NTW} lds", f"W{st}")))
        return ops
    def x_loads(k0, k1):
        ops = []
        for ks in range(k0, k1):
            for mt in range(4):
                ops.append(([f"s_add_u32 s{S_RD}, s{S_XB}, {ks*4096}"] if mt == 0 else [],
                            (f"buffer_load_dwordx4 {xreg(ks, mt)}, v{V_L16}, s[{S_WS}:{S_WS+3}], s{S_RD} offen offset:{mt*1024} sc1", f"X{ks//3}")))
        return ops
    def kv_dma(which, tile_slot, soff, add):
        ops = []
        for t in range(4):
            tm = tmp()
            base = (0 if which == "K" else 65536) + tile_slot * 16384 + t * 4096
            srdn = S_K if which == "K" else S_V
            if soff is None: sal = [f"s_mov_b32 s{tm}, {add + t*4096}"]
            else: sal = [f"s_add_u32 s{tm}, s{soff}, {add + t*4096}"]
            sal.append(f"s_add_u32 m0, s{S_W1K}, {base}")
            ops.append((sal, (f"buffer_load_dwordx4 v{V_KD if which == 'K' else V_VD}, s[{srdn}:{srdn+3}], s{tm} offen{NTKV} lds", f"{which}{tile_slot}")))
        return ops
    def issue(ops):
        for sal, op in ops:
            for s in reversed(sal): p(s)
            p(op[0], op[1])
    p(f"s_getpc_b64 s[{S_K}:{S_K+1}]")
    p.label("L_pc0")
    p(f"s_and_b32 s{S_K+1}, s{S_K+1}, 0xffff"); p(f"s_mov_b32 s{S_K+2}, L_code_end-L_pc0"); p(f"s_mov_b32 s{S_K+3}, 0x20000")
    p(f"s_lshr_b32 s{S_T0}, s2, 3"); p(f"s_lshl_b32 s{S_T0}, s{S_T0}, 2"); p(f"s_add_u32 s{S_T0}, s{S_T0}, s{S_WAVE}"); p(f"s_lshl_b32 s{S_T0}, s{S_T0}, 10")
    p(f"buffer_load_dwordx4 v[160:163], v{V_L16}, s[{S_K}:{S_K+3}], s{S_T0} offen", "CODE")
    issue(w_dma(0)); issue(w_dma(1))
    if 'hiws' in ABL:
        p(f"s_add_u32 s70, s70, {128<<20}"); p("s_addc_u32 s71, s71, 0")
    srd(p, S_WS, 70, WS_BYTES)
    srd(p, S_WG, 72, 576 * 9216); srd(p, S_WU, 74, 576 * 9216)
    if 'qtouch' in ABL:
        p(f"s_cmp_eq_u32 s{S_WAVE}, 0"); p("s_cbranch_scc1 L_notouch")
        p(f"s_lshr_b32 s{S_T0}, s2, 3"); p(f"s_mul_i32 s{S_T0}, s{S_T0}, 3"); p(f"s_add_u32 s{S_T0}, s{S_T0}, s{S_WAVE}"); p(f"s_sub_u32 s{S_T0}, s{S_T0}, 1")
        p("v_min_u32 v26, 2, v20"); p("v_lshlrev_b32 v26, 13, v26"); p("v_lshl_add_u32 v26, v22, 7, v26")
        p(f"s_mul_i32 s{S_T0}, s{S_T0}, {3*8192}"); p(f"s_and_b32 s{S_T1}, s{S_J}, 24"); p(f"s_lshl_b32 s{S_T1}, s{S_T1}, 8"); p(f"s_add_u32 s{S_T0}, s{S_T0}, s{S_T1}")
        p(f"s_add_u32 s{S_T1}, s{S_T0}, {288*8192}")
        p.raw(f"    buffer_load_dword v164, v26, s[{S_WQ}:{S_WQ+3}], s{S_T0} offen")
        p.raw(f"    buffer_load_dword v165, v26, s[{S_WQ}:{S_WQ+3}], s{S_T1} offen")
        p.raw("    s_waitcnt vmcnt(15)")
        p("s_branch L_touched")
        p.label("L_notouch")
        p.items.append(WaitFor(vm=("LX",)))
        p.label("L_touched")
    if 'finepro' in ABL: stamp(p, 2)
    F = 112
    p(f"s_mov_b32 s{S_T2}, 0xffff0000")
    for i in range(4): p(f"v_mov_b32 v{140+i}, 0")
    p(f"s_lshl_b32 s{S_T0}, s{S_WAVE}, 5"); p("v_lshlrev_b32 v25, 7, v19"); p("v_lshl_add_u32 v25, v18, 4, v25"); p(f"v_add_u32 v25, s{S_T0}, v25")
    if 'qtouch' not in ABL: p.items.append(WaitFor(vm=("LX",)))
    if 'finepro' in ABL: stamp(p, 3)
    for i in range(12):
        p(f"v_lshlrev_b32 v{F+2*i}, 16, v{LX+i}"); p(f"v_and_b32 v{F+2*i+1}, s{S_T2}, v{LX+i}")
    p(f"s_mov_b64 exec, s[{S_RET}:{S_RET+1}]")
    for e in range(24): p(f"v_add_f32 v{140+e%2}, v{140+e%2}, v{F+e}")
    p("s_mov_b64 exec, -1")
    def reduce32(r, t):
        p(f"v_add_f32 v{r}, v{r}, v{r+1}")
        for mod in ("quad_perm:[1,0,3,2]", "quad_perm:[2,3,0,1]", "row_half_mirror", "row_mirror"):
            p(f"v_add_f32_dpp v{r}, v{r}, v{r} {mod} row_mask:0xf bank_mask:0xf")
        p(f"v_mov_b32 v{t}, v{r}"); p(f"v_permlane16_swap_b32 v{r}, v{t}"); p(f"v_add_f32 v{r}, v{r}, v{t}")
    reduce32(140, 141)
    p(f"v_mul_f32 v140, {f2u(1.0/576)}, v140")
    p(f"s_mov_b64 exec, s[{S_RET}:{S_RET+1}]")
    for e in range(24):
        t = 144 + (e % 4)
        p(f"v_sub_f32 v{t}, v{F+e}, v140"); p(f"v_fmac_f32 v{142+e%2}, v{t}, v{t}")
    p("s_mov_b64 exec, -1")
    reduce32(142, 143)
    p(f"v_mul_f32 v142, {f2u(1.0/576)}, v142")
    def rnd(r):
        p(f"v_cvt_pk_bf16_f32 v{r}, v{r}, v{r}"); p(f"v_and_b32 v{r}, s{S_T2}, v{r}")
    rnd(142); rnd(140)
    p(f"v_add_f32 v142, {f2u(1e-5)}, v142"); rnd(142)
    p("v_sqrt_f32 v142, v142")
    for e in range(24): p(f"v_sub_f32 v{F+e}, v{F+e}, v140")
    rnd(142)
    p("v_rcp_f32 v143, v142")
    for i in range(12): p(f"v_cvt_pk_bf16_f32 v{F+2*i+1}, v{F+2*i}, v{F+2*i+1}")
    p("v_fma_f32 v144, -v142, v143, 1.0"); p("v_fmac_f32 v143, v144, v143")
    for i in range(12):
        p(f"v_lshlrev_b32 v{F+2*i}, 16, v{F+2*i+1}"); p(f"v_and_b32 v{F+2*i+1}, s{S_T2}, v{F+2*i+1}")
    for e in range(24): p(f"v_mul_f32 v{F+e}, v{F+e}, v143")
    for i in range(12): p(f"v_cvt_pk_bf16_f32 v{LX+i}, v{F+2*i}, v{F+2*i+1}")
    p(f"s_mov_b64 exec, s[{S_RET}:{S_RET+1}]")
    for m in range(3): p(f"ds_write_b128 v25, v[{LX+4*m}:{LX+4*m+3}] offset:{m*24*128}")
    p("s_mov_b64 exec, -1")
    p("v_lshrrev_b32 v26, 3, v17"); p("v_and_b32 v27, 3, v26"); p("v_lshrrev_b32 v26, 2, v26"); p("v_and_b32 v28, 7, v17")
    p("v_lshl_add_u32 v27, v27, 4, v28"); p("v_lshlrev_b32 v27, 4, v27"); p("v_lshl_add_u32 v26, v26, 12, v27")
    p(f"s_lshl_b32 s{S_T0}, s{S_RB}, 2"); p(f"s_lshr_b32 s{S_T1}, s{S_J}, 3"); p(f"s_add_u32 s{S_T0}, s{S_T0}, s{S_T1}"); p(f"s_mul_i32 s{S_T0}, s{S_T0}, 73728")
    p(f"s_and_b32 s{S_T1}, s{S_J}, 6"); p(f"s_lshl_b32 s{S_T1}, s{S_T1}, 9"); p(f"s_add_u32 s{S_T0}, s{S_T0}, s{S_T1}")
    p(f"s_and_b32 s{S_T1}, s{S_J}, 1"); p(f"s_lshl_b32 s{S_T1}, s{S_T1}, 7"); p(f"s_add_u32 s{S_T0}, s{S_T0}, s{S_T1}")
    p(f"s_lshl_b32 s{S_W1K}, s{S_WAVE}, 10")
    p("s_waitcnt lgkmcnt(0)"); p("s_barrier")
    p(f"s_cmp_lg_u32 s{S_WAVE}, 0"); p("s_cbranch_scc1 L_noxs")
    for m in range(9): p(f"ds_read_b128 v[{LX+4*m}:{LX+4*m+3}], v{V_L16} offset:{m*1024}")
    for m in range(9):
        p(f"s_waitcnt lgkmcnt({8-m})")
        p(f"buffer_store_dwordx4 v[{LX+4*m}:{LX+4*m+3}], v26, s[{S_WS}:{S_WS+3}], s{S_T0} offen sc1", "XS")
        if m < 8: p(f"s_add_u32 s{S_T0}, s{S_T0}, 8192")
    p.label("L_noxs")
    assert XN_OFF == 0
    if 'finepro' in ABL: stamp(p, 4)
    p("v_lshrrev_b32 v18, 2, v17"); p("v_and_b32 v19, 3, v17"); p("v_and_b32 v21, 3, v18")
    p("v_mov_b32 v31, 0")
    p(f"buffer_load_dword v29, v31, s[{S_DBG}:{S_DBG+3}], 0 offen sc1", "EP")
    p(f"s_mov_b32 s{S_FO}, {FLAG_OFF}")
    p(f"s_getreg_b32 s{S_XCC}, hwreg(HW_REG_XCC_ID, 0, 4)"); p(f"s_lshl_b32 s{S_XCC}, s{S_XCC}, 3")
    p(f"s_lshl_b32 s{S_T0}, s{S_RB}, 11"); p(f"s_lshr_b32 s{S_T1}, s{S_J}, 3"); p(f"s_lshl_b32 s{S_T1}, s{S_T1}, 9"); p(f"s_add_u32 s{S_T1}, s{S_T1}, s{S_T0}")
    p(f"s_and_b32 s{S_T2}, s{S_J}, 7"); p(f"s_lshl_b32 s{S_T2}, s{S_T2}, 2"); p(f"s_add_u32 s{S_T1}, s{S_T1}, s{S_T2}")
    p(f"s_cmp_eq_u32 s{S_WAVE}, 0"); p(f"s_cselect_b32 s{S_T1}, s{S_T1}, {1 << 30}"); p(f"v_mov_b32 v{V_SA}, s{S_T1}")
    p(f"s_lshl_b32 s{S_T1}, s{S_WAVE}, 9"); p(f"s_add_u32 s{S_T0}, s{S_T0}, s{S_T1}"); p(f"v_lshl_add_u32 v30, v28, 2, s{S_T0}")
    p(f"s_lshl_b32 s{S_T0}, s{S_RB}, 2"); p(f"s_add_u32 s{S_T0}, s{S_T0}, s{S_WAVE}")
    p(f"s_mul_i32 s{S_XB}, s{S_T0}, 73728"); p(f"s_lshl_b32 s{S_OBASE}, s{S_T0}, 14")
    p("v_lshl_add_u32 v23, v20, 3, v21"); p("v_lshlrev_b32 v24, 8, v23"); p("v_lshl_add_u32 v24, v19, 4, v24"); p(f"v_add_u32 v24, {40*1024}, v24")
    for sg_ in range(4):
        p(f"v_xor_b32 v25, {sg_}, v21"); p(f"v_lshl_add_u32 v{V_RQ+sg_}, v25, 6, v24"); p(f"v_add_u32 v{V_RQ+4+sg_}, {64*1024}, v{V_RQ+sg_}")
    p(f"s_mov_b32 s{S_SPIN}, 0x40000")
    p.label("L_eppoll")
    p("s_waitcnt vmcnt(0)")
    p(f"v_readfirstlane_b32 s{S_EP}, v29")
    p(f"s_cmp_lg_u32 s{S_EP}, 0"); p("s_cbranch_scc1 L_epok")
    p(f"buffer_load_dword v29, v31, s[{S_DBG}:{S_DBG+3}], 0 offen sc1")
    p(f"s_sub_u32 s{S_SPIN}, s{S_SPIN}, 1"); p(f"s_cmp_lg_u32 s{S_SPIN}, 0"); p("s_cbranch_scc1 L_eppoll")
    p("s_waitcnt vmcnt(0)")
    p.label("L_epok")
    p("v_add_u32 v31, 1, v29"); p(f"v_add_u32 v29, s{S_XCC}, v31")
    p(f"buffer_store_dword v29, v{V_SA}, s[{S_WS}:{S_WS+3}], s{S_FO} offen sc1")
    if 'finepro' in ABL: stamp(p, 5)
    p("v_lshlrev_b32 v23, 6, v23")
    p("v_and_b32 v24, 1, v20"); p("v_lshlrev_b32 v24, 5, v24")
    p("v_lshl_add_u32 v25, v19, 3, v23")
    p(f"v_add_u32 v{V_RA}, v25, v24"); p(f"v_add_u32 v{V_RA}, {40*1024}, v{V_RA}")
    p(f"v_xor_b32 v{V_RA+1}, 32, v{V_RA}")
    p(f"v_add_u32 v{V_RA+2}, {64*1024}, v{V_RA}"); p(f"v_add_u32 v{V_RA+3}, {64*1024}, v{V_RA+1}")
    p(f"s_and_b32 s{S_T2}, s{S_J}, 1"); p(f"s_lshl_b32 s{S_T0}, s{S_T2}, 5")
    p(f"v_xor_b32 v{V_RH}, s{S_T0}, v{V_RA}"); p(f"v_add_u32 v{V_RH+1}, {64*1024}, v{V_RH}")
    p("v_lshrrev_b32 v23, 5, v17"); p("v_lshlrev_b32 v23, 1, v23"); p("v_xor_b32 v23, v23, v19")
    p(f"v_mul_u32_u24 v24, 9216, v18"); p(f"v_lshl_add_u32 v{V_WF}, v23, 4, v24")
    p(f"v_mov_b32 v{V_C1}, {f2u(GC1)}"); p(f"v_mov_b32 v{V_C2}, {f2u(GC2)}")
    p(f"s_mul_i32 s{S_W3K}, s{S_WAVE}, 3072")
    p(f"s_mul_i32 s{S_BH}, s{S_WAVE}, {48*9216}")
    p(f"s_mul_i32 s{S_RS}, s{S_J}, 288"); p(f"s_add_u32 s{S_RS}, s{S_RS}, s{S_T0}")
    p(f"s_add_u32 s{S_BF}, s{S_BH}, s{S_RS}")
    p(f"s_lshr_b32 s{S_T0}, s{S_J}, 1"); p(f"s_lshl_b32 s{S_T0}, s{S_T0}, 19")
    for d, b in ((S_K, 64), (S_V, 66)):
        p(f"s_add_u32 s{d}, s{b}, s{S_T0}"); p(f"s_addc_u32 s{d+1}, s{b+1}, 0"); p(f"s_mov_b32 s{d+2}, 524288"); p(f"s_mov_b32 s{d+3}, 0x20000")
    p(f"s_lshr_b32 s{S_T0}, s{S_J}, 1"); p(f"s_mul_i32 s{S_KOFF}, s{S_T0}, 576"); p(f"s_add_u32 s{S_KOFF}, s{S_KOFF}, 256")
    p(f"s_add_u32 s{S_BH}, s{S_BH}, s{S_KOFF}")
    def hoff(dst, colreg, add):
        p(f"s_lshr_b32 s{S_T0}, s{colreg}, 6"); p(f"s_add_u32 s{S_T0}, s{S_T0}, {add}")
        p(f"s_lshr_b32 s{S_T1}, s{S_T0}, 2"); p(f"s_lshl_b32 s{S_T1}, s{S_T1}, 19")
        p(f"s_and_b32 s{S_T0}, s{S_T0}, 3"); p(f"s_lshl_b32 s{S_T0}, s{S_T0}, 10")
        p(f"s_add_u32 s{dst}, s{S_T0}, s{S_T1}"); p(f"s_add_u32 s{dst}, s{dst}, s{S_OBASE}")
    hoff(S_HHALF, S_KOFF, 0); p(f"s_lshl_b32 s{S_T0}, s{S_T2}, 3"); p(f"s_add_u32 s{S_HHALF}, s{S_HHALF}, s{S_T0}")
    for t in range(4): hoff(S_HF + t, S_RS, t)
    p(f"s_lshl_b32 s{S_T0}, s{S_J}, 19"); p(f"s_add_u32 s{S_OBASE}, s{S_OBASE}, s{S_T0}")
    p(f"s_mov_b32 s{S_THR}, {f2u(THRESH)}")
    p(f"s_lshl_b32 s{S_T0}, s{S_WAVE}, 2"); p(f"v_add_u32 v23, s{S_T0}, v20")
    p(f"v_xor_b32 v24, v22, v23"); p(f"v_lshlrev_b32 v24, 4, v24"); p(f"v_lshl_add_u32 v{V_KD}, v23, 8, v24")
    p(f"v_and_b32 v24, 7, v23"); p(f"v_lshlrev_b32 v24, 1, v24"); p(f"v_xor_b32 v24, v22, v24"); p(f"v_lshlrev_b32 v24, 4, v24"); p(f"v_lshl_add_u32 v{V_VD}, v23, 8, v24")
    for ks in range(4):
        p(f"v_add_u32 v23, {4*ks}, v20"); p("v_xor_b32 v23, v23, v22"); p("v_lshlrev_b32 v23, 4, v23"); p(f"v_lshl_add_u32 v{V_KA+ks}, v22, 8, v23")
    p("v_and_b32 v24, 7, v18"); p("v_lshlrev_b32 v25, 8, v18"); p("v_lshl_add_u32 v25, v19, 3, v25"); p("v_add_u32 v25, 0x10000, v25")
    for dt in range(8):
        p(f"v_xor_b32 v23, {dt}, v24"); p(f"v_lshl_add_u32 v{V_VA+dt}, v23, 5, v25")
    p(f"s_lshl_b32 s{S_T0}, s{S_WAVE}, 14"); p(f"s_cmp_eq_u32 s{S_WAVE}, 2"); p(f"s_cselect_b32 s{S_T0}, 0x10000, s{S_T0}")
    p(f"s_add_u32 s{S_T1}, s{S_T0}, 8192"); p(f"s_cmp_eq_u32 s{S_WAVE}, 3"); p(f"s_cselect_b32 s{S_T0}, 0x8000, s{S_T0}"); p(f"s_cselect_b32 s{S_T1}, {152*1024}, s{S_T1}")
    p(f"v_add_u32 v{V_QP}, s{S_T0}, v{V_L16}"); p(f"v_add_u32 v{V_QP+1}, s{S_T1}, v{V_L16}")
    p(f"s_and_b32 s{S_T0}, s{S_WAVE}, 1"); p(f"s_cmp_eq_u32 s{S_T0}, 0")
    p(f"s_cselect_b32 s64, s{S_WG}, s{S_WU}"); p(f"s_cselect_b32 s65, s{S_WG+1}, s{S_WU+1}"); p(f"s_mov_b32 s66, {576*9216}"); p("s_mov_b32 s67, 0x20000")
    p(f"s_lshr_b32 s{S_T0}, s2, 3"); p(f"s_lshl_b32 s{S_T0}, s{S_T0}, 1"); p(f"s_lshr_b32 s{S_T1}, s{S_WAVE}, 1"); p(f"s_add_u32 s{S_T0}, s{S_T0}, s{S_T1}"); p(f"s_mul_i32 s{S_T0}, s{S_T0}, 27")
    p(f"v_min_u32 v23, 26, v17"); p(f"v_add_u32 v23, s{S_T0}, v23"); p("v_mul_u32_u24 v24, 3641, v23"); p("v_lshrrev_b32 v24, 16, v24")
    p(f"v_mul_u32_u24 v24, {9216 - 18*128}, v24"); p("v_lshl_add_u32 v24, v23, 7, v24")
    p(f"s_lshr_b32 s{S_T0}, s{S_J}, 3"); p(f"s_mul_i32 s{S_T0}, s{S_T0}, 2304"); p(f"v_add_u32 v{V_HO+7}, s{S_T0}, v24")
    p(f"s_mov_b32 s{S_SPIN}, 0x40000")
    p.label("L_xpoll")
    p(f"buffer_load_dword v29, v30, s[{S_WS}:{S_WS+3}], s{S_FO} offen sc1")
    p("s_waitcnt vmcnt(0)")
    p("v_and_b32 v29, 0xffffff87, v29"); p("v_sub_u32 v29, v29, v31"); p("v_cmp_le_u32 vcc, 7, v29")
    p("s_cbranch_vccz L_xready")
    p(f"s_sub_u32 s{S_SPIN}, s{S_SPIN}, 1"); p("s_sleep 1"); p(f"s_cmp_lg_u32 s{S_SPIN}, 0"); p("s_cbranch_scc1 L_xpoll")
    p.label("L_xready")
    if 'finepro' in ABL: stamp(p, 6)

    groups = []
    for st in range(NST):
        kind, t, sub, buf = stages[st]
        if kind == "q":
            for nt in range(8): groups.append((st, nt, 0))
        else:
            nts = [0, 2] if kind == "h" else [0, 1, 2, 3]
            for c0 in (0, 3):
                for nt in nts: groups.append((st, nt, c0))
    def a_reads(gi):
        st, nt, c0 = groups[gi]; kind, t, sub, buf = stages[st]
        hb, off = wbase(st % 4)
        out = []
        for c in range(3):
            for tt in range(2):
                d = V_AF + (gi % 3) * 12 + c * 4 + 2 * tt
                if kind == "q":
                    addr = V_RQ + 4 * hb + (nt >> 1); o = off + c * 8192 + tt * 1024 + 8 * (nt & 1)
                else:
                    addr = (V_RA + 2 * hb + (nt & 1)) if kind == "f" else (V_RH + hb)
                    o = off + (nt >> 1) * 12288 + (c0 + c) * 2048 + tt * 256
                out.append((f"ds_read_b64_tr_b16 v[{d}:{d+1}], v{addr} offset:{o}", f"A{gi%3}"))
        return out
    acc = lambda buf, nt, mt: V_ACC + buf * 64 + (nt * 4 + mt) * 4
    gaps = []; gstart = []
    for gi, (st, nt, c0) in enumerate(groups):
        gstart.append(len(gaps))
        kind, t, sub, buf = stages[st]
        for mt in range(4):
            for c in range(3):
                a = acc(buf, nt, mt); af = V_AF + (gi % 3) * 12 + c * 4
                ks = (sub * 3 if kind == "q" else sub * 6 + c0) + c
                C = "0" if ks == 0 else f"v[{a}:{a+3}]"
                gaps.append(Gap(f"v_mfma_f32_16x16x32_bf16 v[{a}:{a+3}], v[{af}:{af+3}], {xreg(ks, mt)}, {C}"))
    NG = len(groups)
    first_of_stage = {}
    for gi, (st, nt, c0) in enumerate(groups): first_of_stage.setdefault(st, gi)
    bar_gap = {}
    for gi in range(2, NG):
        st = groups[gi][0]; f = first_of_stage[st]
        rd = a_reads(gi)
        if gi == f:
            g0 = gstart[gi - 1]; bar_gap[st] = g0 - 1
            for n, r in enumerate(rd): gaps[g0 + n].mem.append(r)
        elif gi == f + 1:
            g0 = gstart[gi - 2]
            for n, r in enumerate(rd): gaps[g0 + 6 + n].mem.append(r)
        else:
            g0 = gstart[gi - 2]
            for n, r in enumerate(rd): gaps[g0 + 2 * n].mem.append(r)
    for gi in range(1, NG):
        g = gaps[gstart[gi] - 1]
        st, nt, c0 = groups[gi]
        vm = []
        if st < 6 and nt == 0: vm.append(f"X{st}")
        nxt = groups[gi + 1][0] if gi + 1 < NG else None
        if nxt is not None and nxt != st:
            g.sh.append(WaitFor(vm=vm + [f"W{nxt}"], lg0=True)); g.sh.append("s_barrier")
        else:
            g.sh.append(WaitFor(lg=(f"A{gi%3}",), vm=vm))
    def place_mem(gaps, ops, g0, g1, dense=False, want=0):
        pitch = max(1.0, (g1 - g0 - 8) / len(ops)) if not dense else 1.0
        last = g0
        for n, (sal, op) in enumerate(ops):
            g = max(last + 1 + len(sal), int(g0 + 2 + n * pitch))
            while True:
                assert g < g1, (g0, g1, n, len(ops))
                ok = (len(gaps[g].mem) <= 1 if dense else len(gaps[g].mem) == want) and all(len(gaps[g - len(sal) + i].sh) == 0 for i in range(len(sal)))
                if ok: break
                g += 1
            for i, s in enumerate(sal): gaps[g - len(sal) + i].sh.append(s)
            gaps[g].mem.append(op); last = g
    for st in range(NST):
        g0 = gstart[first_of_stage[st]]
        g1 = bar_gap[st + 1] if st + 1 < NST else len(gaps)
        ops = []
        if st == 0: ops = w_dma(2) + x_loads(6, 9) + w_dma(3)
        elif st == 1: ops = x_loads(9, 12) + w_dma(4)
        elif st == 2: ops = x_loads(12, 15) + w_dma(5)
        elif st == 3: ops = x_loads(15, 18) + w_dma(6)
        elif st + 3 < NST: ops = w_dma(st + 3)
        if st < 5 and 'gutouch' in ABL:
            for bt in ([st] if st else [0]) + ([5] if st == 4 else []):
                tm = tmp()
                ops = ops + [([f"s_mov_b32 s{tm}, {bt*96*9216}"], (f"buffer_load_dword v{V_HO+bt}, v{V_HO+7}, s[64:67], s{tm} offen", "TCH"))]
        if st == 18: ops += kv_dma("V", VS(0), None, 0)
        if st == 19: ops += kv_dma("K", KS(0), None, 0)
        if st == 20: ops += kv_dma("K", KS(1), None, 16384) + kv_dma("V", VS(1), None, 16384) + kv_dma("K", KS(2), None, 32768)
        if ops: place_mem(gaps, ops, g0, g1 if st < 20 else g0 + 60)
        if st == 19:
            cand = [g for g in range(g0 + 3, g1 - 2) if not gaps[g].mem][::2]
            assert len(cand) >= 16
            for f, g in enumerate(cand[:16]):
                gaps[g].mem.append((f"ds_read_b128 a[{A_Q+4*f}:{A_Q+4*f+3}], v{V_QP + f//8} offset:{(f%8)*1024}", "QR"))
    def ffn_epi(st0):
        kind, t, sub, buf = stages[st0]
        q = []
        for mt in range(4):
            if kind == "f": el = [(acc(buf, n, mt) + r, acc(buf, 2 + n, mt) + r) for n in range(2) for r in range(4)]
            else: el = [(acc(buf, 0, mt) + r, acc(buf, 2, mt) + r) for r in range(4)]
            T = V_T + 8 * (mt % 2)
            for e, (g, u) in enumerate(el): q.append(f"v_mul_f32 v{T+e}, v{g}, v{g}")
            for e, (g, u) in enumerate(el): q.append(f"v_fma_f32 v{T+e}, v{T+e}, v{V_C2}, v{V_C1}")
            for e, (g, u) in enumerate(el): q.append(f"v_mul_f32 v{T+e}, v{T+e}, v{g}")
            for e, (g, u) in enumerate(el):
                q.append(f"v_exp_f32 v{T+e}, v{T+e}"); q.append(f"v_mul_f32 v{g}, v{g}, v{u}")
            for e, (g, u) in enumerate(el): q.append(f"v_add_f32 v{T+e}, 1.0, v{T+e}")
            for e, (g, u) in enumerate(el): q.append(f"v_rcp_f32 v{T+e}, v{T+e}")
            for e, (g, u) in enumerate(el): q.append(f"v_mul_f32 v{g}, v{g}, v{T+e}")
            o = V_HO + 4 * (mt % 2)
            for i in range(len(el) // 2): q.append(f"v_cvt_pk_bf16_f32 v{o+i}, v{el[2*i][0]}, v{el[2*i+1][0]}")
            if kind == "f":
                q.append(("MEM", [f"s_add_u32 s{S_T2}, s{S_HF+t}, {H_OFF + mt*4096}"], (f"buffer_store_dwordx4 v[{o}:{o+3}], v{V_L16}, s[{S_WS}:{S_WS+3}], s{S_T2} offen{SCH}", None)))
            else:
                q.append(("MEM", [f"s_add_u32 s{S_T2}, s{S_HHALF}, {H_OFF + mt*4096}"], (f"buffer_store_dwordx2 v[{o}:{o+1}], v{V_L16}, s[{S_WS}:{S_WS+3}], s{S_T2} offen{SCH}", None)))
        return q
    def q_epi(seg):
        q = []
        for mt in range(4):
            rs = [acc(0, 2 * seg, mt) + r for r in range(4)] + [acc(0, 2 * seg + 1, mt) + r for r in range(4)]
            o = V_T + 4 * ((seg * 4 + mt) % 4)
            for r in rs: q.append(f"v_mul_f32 v{r}, {f2u(QSCALE)}, v{r}")
            for i in range(4): q.append(f"v_cvt_pk_bf16_f32 v{o+i}, v{rs[2*i]}, v{rs[2*i+1]}")
            f = mt * 4 + seg
            q.append(("MEM", [], (f"ds_write_b128 v{V_QP + f//8}, v[{o}:{o+3}] offset:{(f%8)*1024}", None)))
        return q
    sg = lambda st: gstart[first_of_stage[st]]
    f5 = first_of_stage[5]
    q = []; mins = []
    for seg in range(4):
        e_ = q_epi(seg); q += e_; mins += [gstart[f5 + 2 * seg + 2] + 3] * len(e_)
    left = fill_valu(gaps[:sg(9) - 3], gstart[f5 + 2] + 3, q, mins=mins); assert not left, len(left)
    for seg, lim_ in ((0, sg(6) - 3), (1, sg(6) + 9)):
        cv_ = [x for x in q_epi(seg) if isinstance(x, str)]
        lastg = max(gi for gi, g in enumerate(gaps) for x in g.valu if x in cv_ and gi < sg(9))
        assert lastg < lim_, (seg, lastg, lim_)
    for st0 in (6, 9, 12, 15):
        end = sg(st0 + 6) - 3 if st0 + 6 < NST else len(gaps)
        left = fill_valu(gaps[:end], sg(st0 + 3) + 3, ffn_epi(st0)); assert not left, (st0, len(left))
    zq = fill_valu(gaps, sg(20) + 3, [f"v_accvgpr_write_b32 a{A_O+i}, 0" for i in range(64)])
    zq += [f"v_accvgpr_write_b32 a{A_O+64+i}, 0" for i in range(64)]
    issue(x_loads(0, 3))
    p("s_barrier")
    for t, tag in a_reads(0) + a_reads(1): p(t, tag)
    issue(x_loads(3, 6))
    p.items.append(WaitFor(lg=("A0",), vm=("X0",)))
    stamp(p, 1)
    if 'finepro' in ABL:
        gaps[sg(1) - 1].post += stamp_ops(7); gaps[sg(2) - 1].post += stamp_ops(8); gaps[sg(3) - 1].post += stamp_ops(9)
    else:
        gaps[sg(6) - 1].post += stamp_ops(2); gaps[sg(12) - 1].post += stamp_ops(3)
    emit_gaps(p, gaps)
    if 'finepro' not in ABL: stamp(p, 4)

    Sreg = lambda par, kt, qt: V_S + (1 - par) * 64 + (kt * 4 + qt) * 4
    Preg = lambda par, kb, qt: (V_P0 + par * 16 + qt * 4) if kb == 0 else (V_P1 + qt * 4)
    Kf = lambda kt, ks: A_KF + (kt % 2) * 16 + ks * 4
    Vf = lambda dt, kb: A_VF + (dt % 4) * 8 + kb * 4
    def k_reads(slot, kt):
        return [(f"ds_read_b128 a[{Kf(kt,ks)}:{Kf(kt,ks)+3}], v{V_KA+ks} offset:{slot*16384 + kt*4096}", f"KF{kt%2}") for ks in range(4)]
    def v_reads(slot, dt):
        return [(f"ds_read_b64_tr_b16 a[{Vf(dt,kb)+2*t}:{Vf(dt,kb)+2*t+1}], v{V_VA+dt} offset:{slot*16384 + kb*8192 + t*4096}", f"VF{dt%4}") for kb in range(2) for t in range(2)]
    def qk_mfma(par, kt, qt, ks, zero=False):
        s = Sreg(par, kt, qt)
        C = f"v[{s}:{s+3}]" if ks else ("0" if zero else f"v[{V_NM+4*qt}:{V_NM+4*qt+3}]")
        qf = A_Q + (qt * 4 + ks) * 4
        return f"v_mfma_f32_16x16x32_bf16 v[{s}:{s+3}], a[{Kf(kt,ks)}:{Kf(kt,ks)+3}], a[{qf}:{qf+3}], {C}"
    def pv_mfma(par, dt, qt, kb):
        o = A_O + (dt * 4 + qt) * 4; pr = Preg(par, kb, qt)
        return f"v_mfma_f32_16x16x32_bf16 a[{o}:{o+3}], a[{Vf(dt,kb)}:{Vf(dt,kb)+3}], v[{pr}:{pr+3}], a[{o}:{o+3}]"
    def elem(par, tau):
        kb = tau // 32; qt = (tau % 32) // 8; j = tau % 8
        return Sreg(par, 2 * kb + (j >> 2), qt) + (j & 3), kb, qt, j
    def op_exp(par, tau): return f"v_exp_f32 v{V_E + tau % 8}, v{elem(par, tau)[0]}"
    def op_add(par, tau):
        s, kb, qt, j = elem(par, tau)
        src = V_LS + (1 - par) * 4 + qt if (kb == 0 and j == 0) else V_LS + par * 4 + qt
        return f"v_add_f32 v{V_LS + par*4 + qt}, v{src}, v{V_E + tau % 8}"
    def op_cvt(par, tau):
        s, kb, qt, j = elem(par, tau)
        return f"v_cvt_pk_bf16_f32 v{Preg(par, kb, qt) + j//2}, v{V_E + (tau-1) % 8}, v{V_E + tau % 8}"
    def rowmax(p, par, qt, dst):
        regs = [Sreg(par, kt, qt) + r for kt in range(4) for r in range(4)]
        p(f"v_max3_f32 v{dst}, v{regs[0]}, v{regs[1]}, v{regs[2]}")
        for i in range(3, 15, 2): p(f"v_max3_f32 v{dst}, v{dst}, v{regs[i]}, v{regs[i+1]}")
        p(f"v_max_f32 v{dst}, v{dst}, v{regs[15]}")
    def xlane4_ops(op, dst, t1):
        o = []
        for sw in ("v_permlane32_swap_b32", "v_permlane16_swap_b32"):
            for q in range(4): o.append(f"v_mov_b32 v{t1+q}, v{dst+q}")
            for q in range(4): o.append(f"{sw} v{dst+q}, v{t1+q}")
            for q in range(4): o.append(f"{op} v{dst+q}, v{dst+q}, v{t1+q}")
        return o

    p(f"s_load_dwordx2 s[64:65], s[0:1], {ARG['wo']}"); p(f"s_load_dwordx2 s[66:67], s[0:1], {ARG['wd']}")
    p(f"s_load_dwordx2 s[{S_OUT}:{S_OUT+1}], s[0:1], {ARG['out']}")
    p.items.append(WaitFor(vm=(f"K{KS(0)}",), lg0=True)); p("s_barrier")
    for t, tag in k_reads(KS(0), 0) + k_reads(KS(0), 1): p(t, tag)
    issue(kv_dma("K", KS(3), None, 3 * 16384) + kv_dma("V", VS(2), None, 2 * 16384))
    p(f"s_mov_b32 s{S_OUT+2}, {XN_BYTES}")
    p(f"s_and_b32 s{S_T0}, s{S_J}, 7"); p(f"s_lshl_b32 s{S_T1}, s{S_RB}, 3"); p(f"s_add_u32 s{S_T0}, s{S_T0}, s{S_T1}")
    p(f"s_lshl_b32 s{S_T0}, s{S_T0}, 2"); p(f"s_add_u32 s{S_T0}, s{S_T0}, s{S_WAVE}")
    p(f"s_lshr_b32 s{S_T2}, s{S_J}, 3")
    p(f"s_sub_u32 s{S_T1}, s{S_T0}, 120"); p(f"s_cmp_lt_u32 s{S_T0}, 120")
    p(f"s_cselect_b32 s{S_RE}, s{S_T0}, s{S_T1}"); p(f"s_movk_i32 s{S_RNW}, 136"); p(f"s_cselect_b32 s{S_RNW}, 120, s{S_RNW}")
    p(f"s_cselect_b32 s{S_WG}, s64, s66"); p(f"s_cselect_b32 s{S_WG+1}, s65, s67")
    p(f"s_mov_b32 s{S_WG+2}, {1152*1152}"); p(f"s_cselect_b32 s{S_WG+2}, {1024*1152}, s{S_WG+2}"); p(f"s_mov_b32 s{S_WU+2}, s{S_WG+2}")
    p(f"s_mov_b32 s{S_T0}, {WPD_OFF}"); p(f"s_cselect_b32 s{S_T0}, {WPO_OFF}, s{S_T0}")
    p(f"s_mul_i32 s{S_T1}, s{S_T2}, s{S_WG+2}")
    p(f"s_add_u32 s{S_WG}, s{S_WG}, s{S_T1}"); p(f"s_addc_u32 s{S_WG+1}, s{S_WG+1}, 0")
    p(f"s_add_u32 s{S_T0}, s{S_T0}, s{S_T1}"); p(f"s_add_u32 s{S_WU}, s70, s{S_T0}"); p(f"s_addc_u32 s{S_WU+1}, s71, 0")
    p(f"s_sub_u32 s{S_RE}, s{S_RE}, s{S_RNW}")
    p(f"s_mov_b32 s{S_KOFF}, {4*16384}"); p(f"s_mov_b32 s{S_VOFF}, {3*16384}"); p(f"s_mov_b32 s{S_CNT}, 7")
    p(f"s_lshl_b32 s{S_BQ}, s{S_WAVE}, 11"); p(f"s_add_u32 s{S_BQ}, s{S_BQ}, {128*1024}")
    g0 = []
    for kt in range(4):
        for qt in range(4):
            for ks in range(4): g0.append(Gap(qk_mfma(0, kt, qt, ks, zero=True)))
    for n, r in enumerate(k_reads(KS(0), 2)): g0[16 + 2 * n].mem.append(r)
    for n, r in enumerate(k_reads(KS(0), 3)): g0[32 + 2 * n].mem.append(r)
    g0[31].sh.append(WaitFor(lg=("KF0",))); g0[47].sh.append(WaitFor(lg=("KF1",)))
    left = fill_valu(g0, 0, ffn_epi(18) + zq)
    p.items.append(WaitFor(lg=("KF0", "KF1")))
    emit_gaps(p, g0)
    emit_ops(p, left)
    for q in range(4): p(f"v_mov_b32 v{V_LS+4+q}, 0")
    p.items.append(WaitFor(vm=(f"K{KS(1)}", f"V{VS(0)}"))); p("s_barrier")
    for t, tag in k_reads(KS(1), 0) + k_reads(KS(1), 1): p(t, tag)
    p(f"v_lshrrev_b32 v{V_LANE}, 4, v{V_L16}")
    p(f"v_lshrrev_b32 v{V_RPG}, 2, v{V_LANE}"); p(f"v_and_b32 v{V_PT}, 3, v{V_LANE}")
    p(f"v_lshlrev_b32 v{V_RPL}, 6, v{V_RPG}"); p(f"v_lshl_add_u32 v{V_RPL}, v{V_PT}, 3, v{V_RPL}"); p(f"v_add_u32 v{V_RPL}, s{S_BQ}, v{V_RPL}")
    p(f"v_mul_u32_u24 v{V_RPG}, 1152, v{V_RPG}"); p(f"v_lshl_add_u32 v{V_RPG}, v{V_PT}, 4, v{V_RPG}")
    p(f"s_lshl_b32 s{S_T0}, s{S_RB}, 11"); p(f"s_and_b32 s{S_T1}, s{S_J}, 24"); p(f"s_lshl_b32 s{S_T1}, s{S_T1}, 6"); p(f"s_add_u32 s{S_T0}, s{S_T0}, s{S_T1}")
    p(f"v_and_b32 v{V_PA}, 7, v{V_LANE}"); p(f"v_lshl_add_u32 v{V_PA}, v{V_PA}, 2, s{S_T0}")
    p(f"buffer_load_dword v{V_SV}, v{V_PA}, s[{S_WS}:{S_WS+3}], s{S_FO} offen sc1", "GX")
    p(f"v_lshrrev_b32 v{V_PA}, 3, v{V_LANE}"); p(f"v_and_b32 v{V_PT}, 7, v{V_LANE}"); p(f"v_lshlrev_b32 v{V_PA}, 11, v{V_PA}"); p(f"v_lshl_add_u32 v{V_PA}, v{V_PT}, 2, v{V_PA}")
    p(f"s_and_b32 s{S_T0}, s{S_J}, 24"); p(f"s_lshl_b32 s{S_T0}, s{S_T0}, 6"); p(f"v_add_u32 v{V_PA}, s{S_T0}, v{V_PA}")
    p(f"s_add_u32 s{S_T0}, s{S_EP}, s{S_XCC}"); p(f"v_mov_b32 v{V_EP}, s{S_T0}")
    for qt in range(4): rowmax(p, 0, qt, V_R + qt)
    for t in xlane4_ops("v_max_f32", V_R, V_R + 4): p(t)
    for qt in range(4):
        for r in range(4): p(f"v_sub_f32 v{V_NM+4*qt+r}, 0, v{V_R+qt}")
        for kt in range(4):
            for r in range(4): p(f"v_sub_f32 v{Sreg(0,kt,qt)+r}, v{Sreg(0,kt,qt)+r}, v{V_R+qt}")
    for tau in range(32 + SHIFT):
        p(op_exp(0, tau))
        if tau >= 1:
            p(op_add(0, tau - 1))
            if (tau - 1) % 2 == 1: p(op_cvt(0, tau - 1))
    tau = 32 + SHIFT - 1
    p("s_nop 0"); p(op_add(0, tau))
    if tau % 2 == 1: p(op_cvt(0, tau))
    p.items.append(WaitFor(lg=("KF0",), vm=("GX",)))
    p(f"v_sub_u32 v{V_SV}, v{V_SV}, v{V_EP}"); p(f"v_cmp_le_u32 vcc, 8, v{V_SV}")
    p("s_cmp_lg_u64 vcc, 0"); p(f"s_cselect_b32 s{S_MIX}, 1, {1 if 'forcemix' in ABL else 0}")
    if 'finepro' not in ABL: stamp(p, 5)

    rare_sites = []
    def att_tile(it, last_block=False):
        par = it % 2
        final = last_block and it == 3
        G = []
        for kt in range(4):
            for qt in range(4):
                for ks in range(4): G.append(Gap(None if final else qk_mfma(1 - par, kt, qt, ks)))
        for dt in range(8):
            for qt in range(4):
                for kb in range(2): G.append(Gap(pv_mfma(par, dt, qt, kb)))
        for b in range(64):
            if b < 32 - SHIFT: sp, tau = par, 32 + SHIFT + b
            else: sp, tau = 1 - par, b - (32 - SHIFT)
            if final and b >= 32 - SHIFT: continue
            G[2 * b].valu.append(op_exp(sp, tau))
            if 32 - SHIFT <= b < 32:
                tgt = G[63] if b == 32 - SHIFT else G[65]
                tgt.valu.append(op_add(sp, tau))
                if tau % 2 == 1: G[67].valu.append(op_cvt(sp, tau))
        for b in range(64):
            if b < 32 - SHIFT: sp, tau = par, 32 + SHIFT + b
            else: sp, tau = 1 - par, b - (32 - SHIFT)
            if 32 - SHIFT <= b < 32 or (final and b >= 32 - SHIFT): continue
            gb = 2 * b + 1 if not final else 2 * b + 3
            G[gb].valu.append(op_add(sp, tau))
            if tau % 2 == 1: G[gb].valu.append(op_cvt(sp, tau))
        L = V_LS + par * 4
        site = f"{'z' if last_block else 'l'}{it}"; rare_sites.append((site, par))
        G[57].valu += [f"v_max3_f32 v{V_CK}, v{L}, v{L+1}, v{L+2}"]
        G[61].valu += [f"v_max_f32 v{V_CK}, v{V_CK}, v{L+3}", f"v_cmp_lt_f32 vcc, s{S_THR}, v{V_CK}"]
        G[63].sh += [f"s_cbranch_vccnz L_rare_stub{site}", Label(f"L_rare_ret{site}")]
        kslot1, kslot2, vslot = KS(it + 1), KS(it + 2), VS(it)
        def put(b0, ops):
            for n, r in enumerate(ops): G[2 * (b0 + n) + 1].mem.append(r)
        put(0, v_reads(vslot, 0)); put(4, v_reads(vslot, 1)); put(12, v_reads(vslot, 2)); put(20, v_reads(vslot, 3))
        if not final:
            put(8, k_reads(kslot1, 2)); put(16, k_reads(kslot1, 3))
            G[15].sh.append(WaitFor(lg=("KF1",))); G[31].sh.append(WaitFor(lg=("KF0",))); G[46].sh.append(WaitFor(lg=("KF1",)))
        put(36, v_reads(vslot, 4)); put(40, v_reads(vslot, 5)); put(44, v_reads(vslot, 6)); put(48, v_reads(vslot, 7))
        wv = []
        if not (last_block and it >= 2):
            put(52, k_reads(kslot2, 0)); put(56, k_reads(kslot2, 1)); G[125].sh.append(WaitFor(lg=("KF0",)))
            wv.append(f"K{kslot2}")
        if not final: wv.append(f"V{VS(it+1)}")
        if not last_block and it == 2: wv.append("RD")
        if not last_block and it == 1: wv.append("RST")
        G[64].wv = wv
        G[65].sh += ["s_barrier"]
        def putdma(b, sal, op):
            G[2 * b - 1].sh.append(sal[0]); G[2 * b].sh.append(sal[1]); G[2 * b + 1].mem.append(op)
        if not last_block:
            for b, (sal, op) in zip((34, 35, 60, 61), kv_dma("K", KS(it), S_KOFF, 0)): putdma(b, sal, op)
            G[126].sh.append(f"s_add_u32 s{S_KOFF}, s{S_KOFF}, 16384")
        if not (last_block and it >= 1):
            sal, op = kv_dma("V", VS(it + 3), S_VOFF, 0)[0]; putdma(62, sal, op)
        if not (last_block and it >= 2):
            for b, (sal, op) in zip((24, 25, 26), kv_dma("V", VS(it + 2), S_VOFF, -16384)[1:]): putdma(b, sal, op)
            G[127].sh.append(f"s_add_u32 s{S_VOFF}, s{S_VOFF}, 16384")
        G[62].sh.append(WaitFor(lg=("VF0", "VF1", "VF2", "VF3")))
        for dt in range(4, 8): G[64 + 8 * dt - (1 if dt < 7 else 2)].sh.append(WaitFor(lg=(f"VF{dt%4}",)))
        if not last_block:
            if it == 0:
                sal = [f"s_add_u32 s{S_RE}, s{S_RE}, s{S_RNW}", f"s_mul_i32 s{S_RS}, s{S_RE}, 3641", f"s_lshr_b32 s{S_RS}, s{S_RS}, 16",
                       f"s_mul_i32 s{S_RS}, s{S_RS}, {36864-1152}", f"s_lshl_b32 s{S_RD}, s{S_RE}, 6", f"s_add_u32 s{S_RS}, s{S_RS}, s{S_RD}",
                       f"s_lshl_b32 s{S_RD}, s{S_RE}, 11"]
                for n, s_ in enumerate(sal): G[2 + 2 * n].sh.append(s_)
                G[54].sh.append(f"s_mov_b32 m0, s{S_BQ}")
                G[55].mem.append((f"buffer_load_dwordx4 v{V_RPG}, s[{S_WG}:{S_WG+3}], s{S_RS} offen lds", "RD"))
                G[56].sh.append(f"s_add_u32 s{S_RS}, s{S_RS}, {16*1152-1024}")
                G[59].mem.append((f"buffer_load_dwordx4 v{V_RPG}, s[{S_WG}:{S_WG+3}], s{S_RS} offen offset:1024 lds", "RD"))
            if it == 1:
                G[72].sh.append(f"s_cmp_le_u32 s{S_CNT}, 2"); G[73].sh.append(f"s_cselect_b32 s{S_SIG}, 2, 1")
                G[77].valu.append(f"v_add_u32 v{V_SV}, s{S_SIG}, v{V_EP}")
                G[80].sh.append(f"s_cmp_lg_u32 s{S_MIX}, 0"); G[81].sh += ["s_cbranch_scc1 L_stub_w2", Label("L_ret_w2")]
                G[127].mem.append((sig_store, None))
            if it == 2:
                G[127].mem.append((f"ds_read_b64_tr_b16 v[{V_RPS}:{V_RPS+1}], v{V_RPL} offset:0", "RL"))
            if it == 3:
                G[55].mem.append((f"ds_read_b64_tr_b16 v[{V_RPS+2}:{V_RPS+3}], v{V_RPL} offset:1024", "RL"))
                G[57].mem.append((f"ds_read_b64_tr_b16 v[{V_RPS+4}:{V_RPS+5}], v{V_RPL} offset:32", "RL"))
                G[59].mem.append((f"ds_read_b64_tr_b16 v[{V_RPS+6}:{V_RPS+7}], v{V_RPL} offset:1056", "RL"))
                G[66].sh.append(WaitFor(lg=("RL",)))
                G[67].mem.append((f"buffer_store_dwordx4 v[{V_RPS}:{V_RPS+3}], v{V_L16}, s[{S_WU}:{S_WU+3}], s{S_RD} offen sc1", "RST"))
                G[127].mem.append((f"buffer_store_dwordx4 v[{V_RPS+4}:{V_RPS+7}], v{V_L16}, s[{S_WU}:{S_WU+3}], s{S_RD} offen offset:1024 sc1", "RST"))
        return G
    def finish_tile(G):
        wv = G[64].wv
        if wv: G[64].sh.append(WaitFor(vm=tuple(wv)))
        for gi, g in enumerate(G):
            if g.mfma and len([x for x in g.sh if not isinstance(x, Label)]) > 1: print("att gap", gi, "has", len(g.sh), "shadow ops")

    body = Prog(); p = body
    p.label("L_att_loop", 6)
    for it in range(4):
        G = att_tile(it)
        if it == 3:
            G[116].sh.append(f"s_sub_u32 s{S_CNT}, s{S_CNT}, 1")
            G[127].post += [f"s_cmp_lg_u32 s{S_CNT}, 0", "s_cbranch_scc1 L_att_loop"]
        finish_tile(G); emit_gaps(p, G)

    tail = Prog(); p = tail
    if 'notailtouch' not in ABL:
        p(f"s_getpc_b64 s[{S_WG}:{S_WG+1}]")
        p.label("L_pc1")
        p(f"s_and_b32 s{S_WG+1}, s{S_WG+1}, 0xffff"); p(f"s_mov_b32 s{S_WG+2}, L_code_end-L_pc1")
        p(f"s_lshr_b32 s{S_T0}, s2, 3"); p(f"s_lshl_b32 s{S_T0}, s{S_T0}, 2"); p(f"s_add_u32 s{S_T0}, s{S_T0}, s{S_WAVE}"); p(f"s_lshl_b32 s{S_T0}, s{S_T0}, 10")
        p(f"buffer_load_dwordx4 v[{V_RPS}:{V_RPS+3}], v{V_L16}, s[{S_WG}:{S_WG+3}], s{S_T0} offen", "CODE")
    if 'finepro' not in ABL: stamp(p, 6)
    NP3 = 17
    Breg = lambda s, ks, mt: ((s % 3) * 4 + ks) * 8 + mt * 4
    def p3_w(s):
        off = (WPD_OFF + s * 4 * 36864) if s < 9 else (WPO_OFF + (s - 9) * 4 * 36864)
        base = S_PW if s < 9 else S_PW2
        ops = []
        for i in range(9):
            sal = []
            if i % 4 == 0:
                tm = tmp()
                sal = [f"s_add_u32 s{tm}, s{base}, {off + i*1024}", f"s_add_u32 m0, s{S_W9K}, {P3_SLOT[s%3] + i*1024}"]
            ops.append((sal, (f"buffer_load_dwordx4 v{V_L16}, s[{S_WS}:{S_WS+3}], s{tm} offen offset:{(i%4)*1024}{LSC}{P3NT} lds", f"PW{s}")))
        return ops
    def p3_b(s):
        off = (H_OFF + s * 524288) if s < 9 else (O_OFF + (s - 9) * 524288)
        base = S_PB0 if s < 9 else S_PB1
        ops = []
        for mt in range(2):
            for ks in range(4):
                r = Breg(s, ks, mt)
                ops.append(([f"s_add_u32 s{S_T2}, s{base}, {off + mt*4096}"] if ks == 0 else [],
                            (f"buffer_load_dwordx4 a[{r}:{r+3}], v{V_L16}, s[{S_WS}:{S_WS+3}], s{S_T2} offen offset:{ks*1024}{LSC}{P3NT}", f"PB{s}")))
        return ops
    setup3 = [f"s_lshr_b32 s{S_KOFF}, s{S_J}, 3", f"s_and_b32 s{S_RE}, s{S_J}, 3", f"s_mul_i32 s{S_W9K}, s{S_WAVE}, 9216",
              f"s_mul_i32 s{S_PW2}, s{S_WAVE}, 36864", f"s_mul_i32 s{S_RNW}, s{S_RE}, 9216", f"s_add_u32 s{S_PW2}, s{S_PW2}, s{S_RNW}",
              f"s_mul_i32 s{S_PW}, s{S_KOFF}, {1152*1152}", f"s_add_u32 s{S_PW}, s{S_PW}, s{S_PW2}",
              f"s_mul_i32 s{S_RNW}, s{S_KOFF}, {1024*1152}", f"s_add_u32 s{S_PW2}, s{S_PW2}, s{S_RNW}",
              f"s_lshl_b32 s{S_PST}, s{S_RB}, 3", f"s_and_b32 s{S_RNW}, s{S_J}, 7", f"s_add_u32 s{S_PST}, s{S_PST}, s{S_RNW}",
              f"s_lshr_b32 s{S_FX0}, s{S_PST}, 2",
              f"s_lshl_b32 s{S_PB1}, s{S_FX0}, 2", f"s_add_u32 s{S_PB1}, s{S_PB1}, s{S_WAVE}", f"s_lshl_b32 s{S_PB1}, s{S_PB1}, 13",
              f"s_mul_i32 s{S_PB0}, s{S_KOFF}, {9*524288}", f"s_add_u32 s{S_PB0}, s{S_PB0}, s{S_PB1}",
              f"s_lshl_b32 s{S_RNW}, s{S_KOFF}, 22", f"s_add_u32 s{S_PB1}, s{S_PB1}, s{S_RNW}",
              f"s_mul_i32 s{S_PST}, s{S_PST}, {16*9216}",
              f"s_mul_i32 s{S_FL}, s{S_KOFF}, 9216", f"s_add_u32 s{S_FL}, s{S_FL}, s{S_PST}",
              f"s_mul_i32 s{S_CNT}, s{S_KOFF}, {4*9216}", f"s_add_u32 s{S_PST}, s{S_PST}, s{S_CNT}", f"s_add_u32 s{S_PST}, s{S_PST}, s{S_W9K}",
              f"s_lshl_b32 s{S_FX0}, s{S_FX0}, 2", f"s_add_u32 s{S_FX0}, s{S_FX0}, s{S_KOFF}", f"s_mul_i32 s{S_FX0}, s{S_FX0}, {32*1152}",
              f"s_mul_i32 s{S_CNT}, s{S_RE}, 288", f"s_add_u32 s{S_FX0}, s{S_FX0}, s{S_CNT}", f"s_add_u32 s{S_FX1}, s{S_FX0}, {16*1152}"]
    GL = [att_tile(it, last_block=True) for it in range(4)]
    GL[0][55].mem.append(poll_load("PL"))
    GL[0][100].sh.append(WaitFor(vm=("PL",)))
    cv, cs = poll_check(2, "p2")
    GL[0][121].valu += cv; GL[0][120].sh += cs[:1]; GL[0][122].sh += cs[1:]
    V_TH, V_TW, V_TD = 92, 93, 94
    tset = [f"s_and_b32 s{S_WU}, s{S_J}, 7", f"s_lshl_b32 s{S_WU}, s{S_WU}, 2", f"s_add_u32 s{S_WU}, s{S_WU}, s{S_WAVE}", f"s_lshl_b32 s{S_WU}, s{S_WU}, 11",
            f"s_lshl_b32 s{S_WU+1}, s{S_RB}, 16", f"s_add_u32 s{S_WU}, s{S_WU}, s{S_WU+1}", f"s_lshr_b32 s{S_WU+1}, s{S_J}, 3", f"s_mul_i32 s{S_WU+2}, s{S_WU+1}, {9*524288}",
            f"s_add_u32 s{S_WU}, s{S_WU}, s{S_WU+2}",
            f"s_lshr_b32 s{S_WU+2}, s2, 3", f"s_lshl_b32 s{S_WU+2}, s{S_WU+2}, 2", f"s_add_u32 s{S_WU+2}, s{S_WU+2}, s{S_WAVE}", f"s_lshl_b32 s{S_WU+2}, s{S_WU+2}, 13",
            f"s_mul_i32 s{S_WU+3}, s{S_WU+1}, {1024*1152}", f"s_mul_i32 s{S_WU+1}, s{S_WU+1}, {1152*1152}",
            f"s_add_u32 s{S_WU+1}, s{S_WU+1}, s{S_WU+2}", f"s_add_u32 s{S_WU+3}, s{S_WU+3}, s{S_WU+2}"]
    fr0 = [g for gi, g in enumerate(GL[0]) if not g.sh and gi not in (64,) and gi < 100]
    for s_, g in zip(tset, fr0): g.sh.append(s_)
    assert len(fr0) >= len(tset)
    GL[0][69].valu += [f"v_lshrrev_b32 v{V_TH}, 4, v{V_LANE}"]; GL[0][71].valu += [f"v_lshlrev_b32 v{V_TH}, 19, v{V_TH}"]
    GL[0][123].valu += [f"v_and_b32 v{V_TW}, 15, v{V_LANE}"]; GL[0][127].valu += [f"v_lshl_add_u32 v{V_TH}, v{V_TW}, 7, v{V_TH}"]
    GL[1][55].valu += [f"v_lshlrev_b32 v{V_TW}, 7, v{V_LANE}"]
    def touch(G, g, va, base, off):
        tm = tmp()
        assert not G[g - 1].sh and not G[g].mem, g
        G[g - 1].sh.append(f"s_add_u32 s{tm}, s{base}, {off}")
        G[g].mem.append((f"buffer_load_dword v{V_TD}, v{va}, s[{S_WS}:{S_WS+3}], s{tm} offen{LSC}", "TCH"))
    if 'p3touch' in ABL:
        touch(GL[1], 57, V_TH, S_WU, H_OFF); touch(GL[1], 69, V_TW, S_WU + 1, WPD_OFF)
        touch(GL[2], 51, V_TH, S_WU, H_OFF + 4 * 524288)
    free = [g for gi, g in enumerate(GL[1]) if not g.sh and gi not in (64,)]
    assert len(free) >= 2 * len(setup3)
    for s_, g in zip(setup3, free[::2]): g.sh.append(s_)
    G30 = GL[2]
    place_mem(G30, p3_w(0), 100, 128, dense=True)
    G31 = GL[3]
    for n, (sal, op) in enumerate(p3_b(0) + p3_b(1)):
        G31[4 * n // 2 + 16].post += sal + [op]
    for s in range(3): G31[2].post.append(f"v_add_u32 v{V_PWA+s}, {P3_SLOT[s]}, v{V_L16}")
    G31[64].wv += ["PW0"]
    place_mem(G31, p3_w(1), 66, 104)
    pg = []
    for s in range(NP3):
        if s in (8, 16): order = [(kp, nt) for nt in range(9) for kp in range(2)]
        else: order = [(kp, nt) for kp in range(2) for nt in range(9)]
        for kp, nt in order: pg.append((s, kp, nt))
    def p3_reads(gi):
        s, kp, nt = pg[gi]; base = P3_AR[gi % 4]
        return [(f"ds_read_b128 v[{base+4*q}:{base+4*q+3}], v{V_PWA + s%3} offset:{((2*kp+q)*9 + nt)*1024}", f"PA{gi%4}") for q in range(2)]
    P = []
    for gi, (s, kp, nt) in enumerate(pg):
        A = V_AD if s < 9 else V_AS
        for mt in range(2):
            for q in range(2):
                a = A + (nt * 2 + mt) * 4; b = Breg(s, 2 * kp + q, mt); ar = P3_AR[gi % 4] + 4 * q
                C = "0" if (s in (0, 9) and kp == 0 and q == 0) else f"v[{a}:{a+3}]"
                P.append(Gap(f"v_mfma_f32_16x16x32_bf16 v[{a}:{a+3}], v[{ar}:{ar+3}], a[{b}:{b+3}], {C}"))
    for n, r in enumerate(p3_reads(0) + p3_reads(1) + p3_reads(2)): G31[108 + 2 * n].mem.append(r)
    G31[126].sh.append(WaitFor(lg=("PA0",), vm=("PB0",)))
    for gi in range(3, len(pg)):
        i = gi % 18
        rd = p3_reads(gi)
        if i == 0: g0_ = 4 * (gi - 2); pos = (g0_, g0_ + 1)
        elif i == 1: g0_ = 4 * (gi - 3); pos = (g0_ + 2, g0_ + 3)
        else: g0_ = 4 * (gi - 3); pos = (g0_, g0_ + 2)
        for g_, r in zip(pos, rd): P[g_].mem.append(r)
    barw = {}
    for gi in range(1, len(pg)):
        s = pg[gi][0]; g = P[4 * gi - 1]
        if gi % 18 == 16 and s + 1 < NP3:
            barw[s] = WaitFor(vm=[f"PW{s+1}", f"PB{s+1}"], lg0=True)
            P[4 * gi - 2].sh.append(barw[s]); g.sh.append("s_barrier")
        else: g.sh.append(WaitFor(lg=(f"PA{gi%4}",)))
    def after_barrier(s): return 72 * s + 64
    OSIG = 4
    barw[OSIG].vm = tuple(barw[OSIG].vm) + ("OST",)
    P[after_barrier(OSIG) - 6].valu.append(sig_val(3)); P[after_barrier(OSIG) + 5].mem.append((sig_store, None))
    P[after_barrier(OSIG) + 1].sh.append(f"s_cmp_lg_u32 s{S_MIX}, 0"); P[after_barrier(OSIG) + 2].sh += ["s_cbranch_scc1 L_stub_w3", Label("L_ret_w3")]
    barw[10].vm = tuple(barw[10].vm) + ("DST",)
    P[after_barrier(10) - 6].valu.append(sig_val(4)); P[after_barrier(10) + 5].mem.append((sig_store, None))
    P[72*5+1].sh.append(f"s_lshl_b32 s{S_CNT}, s{S_RB}, 11"); P[72*5+2].sh.append(f"s_lshl_b32 s{S_RE}, s{S_KOFF}, 9"); P[72*5+4].sh.append(f"s_add_u32 s{S_RE}, s{S_RE}, s{S_CNT}")
    P[72*5+5].valu += [f"v_and_b32 v{V_PA}, 7, v{V_LANE}", f"v_lshl_add_u32 v{V_PA}, v{V_PA}, 2, s{S_RE}"]
    P[72*6+41].mem.append(poll_load("PL"))
    P[72*6+68].sh.append(WaitFor(vm=("PL",)))
    cv, cs = poll_check(3, "p3")
    P[72*6+69].valu += cv; P[72*6+69].sh += cs[:1]; P[72*6+70].post += cs[1:]
    P[72*8+1].sh.append(f"s_and_b32 s{S_RE}, s{S_J}, 7"); P[72*8+2].sh.append(f"s_lshl_b32 s{S_RE}, s{S_RE}, 2"); P[72*8+4].sh.append(f"s_add_u32 s{S_RE}, s{S_RE}, s{S_CNT}")
    P[72*8+5].valu += [f"v_and_b32 v{V_PA}, 3, v{V_LANE}", f"v_lshl_add_u32 v{V_PA}, v{V_PA}, 9, s{S_RE}"]
    P[72*11+41].mem.append(poll_load("PL"))
    P[72*11+68].sh.append(WaitFor(vm=("PL",)))
    cv, cs = poll_check(4, "p4")
    P[72*11+69].valu += cv; P[72*11+69].sh += cs[:1]; P[72*11+70].post += cs[1:]
    FD = V_AD
    FXR = 240
    FG = 16
    def fin_loads(kind, dst, tag):
        ops = []
        for m in range(3):
            for sp in range(4):
                tm = tmp()
                ops.append(([f"s_add_u32 s{tm}, s{S_FL}, {PART_OFF + kind*PSTRIDE + sp*4*9216}"],
                            (f"buffer_load_dwordx4 v[{dst+(m*4+sp)*4}:{dst+(m*4+sp)*4+3}], v{V_FL+m}, s[{S_WS}:{S_WS+3}], s{tm} offen sc1", tag)))
        return ops
    xl = []
    for m in range(3):
        for mt in range(2):
            xl.append(([], (f"buffer_load_dwordx2 v[{FXR+4*m+2*mt}:{FXR+4*m+2*mt+1}], v{V_FX}, s[{S_XI}:{S_XI+3}], s{(S_FX0, S_FX1)[mt]} offen offset:{m*128}", "FX")))
    for s in range(NP3):
        ops = []
        if s + 2 < NP3:
            w, b = p3_w(s + 2), p3_b(s + 2)
            ops = w[:4] + b[:4] + w[4:8] + b[4:] + w[8:]
        if s == 12: ops = fin_loads(0, FD, "FD")[:8] + ops
        if s == 13: ops = fin_loads(0, FD, "FD")[8:] + ops
        if s == 15: ops = xl
        if s == int(os.environ.get('WOT', '2')) and 'p3touch' in ABL:
            tm = tmp()
            ops = [([f"s_add_u32 s{tm}, s{S_WU+3}, {WPO_OFF}"], (f"buffer_load_dword v{V_TD}, v{V_TW}, s[{S_WS}:{S_WS+3}], s{tm} offen{LSC}", "TCH"))] + ops
        if ops: place_mem(P, ops, 72 * s, 72 * s + 63)
    allg = G31 + P
    OT = V_AS
    def o_item(n, qt, s):
        T = OT + (n % 4) * 8; D = OT + 32 + (n % 4) * 4
        q = []
        for h in range(2):
            o = A_O + ((2 * s + h) * 4 + qt) * 4
            for r in range(4): q.append(f"v_accvgpr_read_b32 v{T+4*h+r}, a{o+r}")
        for i in range(8): q.append(f"v_mul_f32 v{T+i}, v{T+i}, v{V_LS+4+qt}")
        for i in range(4): q.append(f"v_cvt_pk_bf16_f32 v{D+i}, v{T+2*i}, v{T+2*i+1}")
        q.append(("MEM", [f"s_add_u32 s{S_SIG}, s{S_OBASE}, {O_OFF + qt*4096}"], (f"buffer_store_dwordx4 v[{D}:{D+3}], v{V_L16}, s[{S_WS}:{S_WS+3}], s{S_SIG} offen offset:{s*1024}{SCO}", "OST")))
        return q
    pre = xlane4_ops("v_add_f32", V_LS + 4, OT + 48) + [f"v_rcp_f32 v{V_LS+4+qt}, v{V_LS+4+qt}" for qt in range(4)]
    n = 0; lim = 128 + after_barrier(OSIG - 1)
    q = list(pre); mins = [64] * len(pre)
    for s in range(4):
        for qt in range(4):
            it_ = o_item(n, qt, s); n += 1
            q += it_; mins += [64 + 16 * (s + 1) + 4] * len(it_)
    left = fill_valu(allg[:lim], 64, q, mins=mins); assert not left, len(left)
    fs = [f"v_and_b32 v{V_FX}, 15, v{V_LANE}", f"v_mul_u32_u24 v{V_FX}, 1152, v{V_FX}", f"v_lshrrev_b32 v{V_FL}, 4, v{V_LANE}",
          f"v_lshl_add_u32 v{V_FX}, v{V_FL}, 3, v{V_FX}", f"v_add_u32 v{V_FL}, s{S_W1K}, v{V_L16}", f"v_add_u32 v{V_FL+1}, 4096, v{V_FL}",
          f"v_add_u32 v{V_FL+2}, s{S_VOFF}, v{V_FL}", f"v_add_u32 v{V_FX}, s{S_KOFF}, v{V_FX}", f"v_add_u32 v{V_FL+3}, s{S_VOFF}, v{V_FX}", f"v_subrev_u32 v{V_FL+3}, 8192, v{V_FL+3}"]
    sfree = [g for g in range(72 * 5 + 8, 72 * 5 + 40) if not P[g].sh and not P[g+1].sh]
    P[sfree[0]].sh.append(f"s_lshl_b32 s{S_KOFF}, s{S_WAVE}, 5")
    g_ = [g for g in sfree if g > sfree[0] + 1][0]
    P[g_].sh.append(f"s_cmp_eq_u32 s{S_WAVE}, 0"); P[g_ + 1].sh.append(f"s_cselect_b32 s{S_VOFF}, 8192, {1 << 30}")
    left = fill_valu(P[:72 * 7], 72 * 5 + 44, fs); assert not left
    def part_item(A, nt, kind, tag):
        a = A + nt * 8
        q = [f"v_cvt_pk_bf16_f32 v{a+i}, v{a+2*i}, v{a+2*i+1}" for i in range(4)]
        q.append(("MEM", [f"s_add_u32 s{S_SIG}, s{S_PST}, {PART_OFF + kind*PSTRIDE + nt*1024}"], (f"buffer_store_dwordx4 v[{a}:{a+3}], v{V_L16}, s[{S_WS}:{S_WS+3}], s{S_SIG} offen sc1", tag)))
        return q
    for nt in range(9):
        left = fill_valu(P[:72 * 10], 72 * 8 + 8 * (nt + 1) + 4, part_item(V_AD, nt, 0, "DST")); assert not left
    sleft = []
    for nt in range(9):
        sleft += fill_valu(P, 72 * 16 + 8 * (nt + 1) + 4, part_item(V_AS, nt, 1, "SST"))
    GG = V_AD + 48
    TT = 16
    P[72*14 - 3].sh.append(WaitFor(vm=("FD",)))
    gq = []
    def unpack_sum(src, dst):
        q = []
        for i in range(4):
            q += [f"v_lshlrev_b32 v{dst+2*i}, 16, v{src+i}", f"v_and_b32 v{dst+2*i+1}, s{S_THR}, v{src+i}"]
        for sp in range(1, 4):
            T = TT + 8 * (sp % 2)
            for i in range(4):
                q += [f"v_lshlrev_b32 v{T+2*i}, 16, v{src+4*sp+i}", f"v_and_b32 v{T+2*i+1}, s{S_THR}, v{src+4*sp+i}"]
            for i in range(8): q.append(f"v_add_f32 v{dst+i}, v{dst+i}, v{T+i}")
        return q
    P[72*13+1].sh.append(f"s_mov_b32 s{S_THR}, 0xffff0000") if not P[72*13+1].sh else P[72*13+1].post.append(f"s_mov_b32 s{S_THR}, 0xffff0000")
    for m in range(3):
        D = GG + 8 * m; T = FD + 16 * m
        gq += unpack_sum(FD + 16 * m, D)
        gq += [f"v_mul_f32 v{T+i}, {f2u(-LOG2E)}, v{D+i}" for i in range(8)]
        gq += [f"v_exp_f32 v{T+i}, v{T+i}" for i in range(8)]
        gq += [f"v_add_f32 v{T+i}, 1.0, v{T+i}" for i in range(8)]
        gq += [f"v_rcp_f32 v{T+i}, v{T+i}" for i in range(8)]
        gq += [f"v_mul_f32 v{D+i}, v{D+i}, v{T+i}" for i in range(8)]
    gleft = fill_valu(P, 72 * 14, gq)
    if 'p3nost' in ABL:
        for g in G31 + P: g.mem = [m for m in g.mem if not (m[0].startswith("buffer_store_dwordx4"))]
    if 'p3nold' in ABL:
        for g in P: g.mem = [m for m in g.mem if not (m[0].startswith("buffer_load_dwordx4"))]
    if 'p3novalu' in ABL:
        for g in P: g.valu = [m for m in g.valu if not m.startswith(("v_accvgpr", "v_mul", "v_cvt", "v_exp", "v_rcp", "v_add_f32"))]
    print("phase3 leftovers: s-part", len(sleft), "gate", len(gleft))
    for it in range(4):
        finish_tile(GL[it]); emit_gaps(p, GL[it])
    if 'finepro' not in ABL:
        stamp(p, 7)
        for s, k in ((3, 8), (6, 9), (9, 10), (13, 11)): P[72 * s - 1].post += stamp_ops(k)
    emit_gaps(p, P)
    if 'finepro' not in ABL: stamp(p, 12)
    emit_ops(p, sleft)
    emit_ops(p, gleft)
    p(sig_val(5))
    p("s_waitcnt vmcnt(0)"); p("s_barrier")
    p(sig_store)
    if 'finepro' not in ABL: stamp(p, 13)
    p(f"s_add_u32 s{S_PV}, s{S_EP}, 5"); p(f"s_call_b64 s[{S_RET}:{S_RET+1}], L_spin0")
    if 'finepro' not in ABL: stamp(p, 14)
    for sal, op in fin_loads(1, FD, "FS"):
        for s_ in sal: p(s_)
        p(op[0], op[1])
    for m in range(3):
        p(f"s_waitcnt vmcnt({8 - 4*m + 2*m})")
        D = V_AS + 8 * m
        for t in unpack_sum(FD + 16 * m, D): p(t)
        T = TT
        for i in range(4):
            p(f"v_lshlrev_b32 v{T+2*i}, 16, v{FXR+4*m+i}"); p(f"v_and_b32 v{T+2*i+1}, s{S_THR}, v{FXR+4*m+i}")
        for i in range(8): p(f"v_fmac_f32 v{T+i}, v{D+i}, v{GG+8*m+i}")
        for i in range(4): p(f"v_cvt_pk_bf16_f32 v{D+i}, v{T+2*i}, v{T+2*i+1}")
        va = V_FX if m < 2 else V_FL + 3
        for mt in range(2):
            p(f"buffer_store_dwordx2 v[{D+2*mt}:{D+2*mt+1}], v{va}, s[{S_OUT}:{S_OUT+3}], s{(S_FX0, S_FX1)[mt]} offen offset:{m*128}")
    if STAMP: p("s_waitcnt vmcnt(0)")
    stamp(p, 19); stamp_rt(p, 21)
    if 'dbgout' in ABL:
        p("v_mov_b32 v1, 0"); p("s_not_b32 s76, s100"); p("v_mov_b32 v2, s76"); p("v_mov_b32 v3, s101")
        p("s_mov_b64 exec, 1")
        p(f"buffer_atomic_umax v2, v1, s[{S_DBG}:{S_DBG+3}], 0 offen offset:4")
        p(f"buffer_atomic_umax v3, v1, s[{S_DBG}:{S_DBG+3}], 0 offen offset:8")
        seq = [0, 1, 2, 3, 4, 5, 6, 7, 10, 12, 13, 14, 19]
        for n in range(12):
            p(f"s_sub_u32 s76, s{80+seq[n+1]}, s{80+seq[n]}"); p("v_mov_b32 v2, s76")
            p(f"buffer_atomic_umax v2, v1, s[{S_DBG}:{S_DBG+3}], 0 offen offset:{16+4*n}")
        p("s_sub_u32 s76, s99, s80"); p("v_mov_b32 v2, s76")
        p(f"buffer_atomic_umax v2, v1, s[{S_DBG}:{S_DBG+3}], 0 offen offset:12")
    else:
        stamp_dump(p, 70, S_WAVE, 1)
    p.label("L_done"); p("s_endpgm")

    rare = Prog(); p = rare
    for site, par in rare_sites:
        p.label(f"L_rare_stub{site}")
        p(f"s_call_b64 s[{S_RET}:{S_RET+1}], L_rare{par}")
        p(f"s_branch L_rare_ret{site}")
    for name in stubs:
        p.label(f"L_stub_{name}")
        p(f"s_call_b64 s[{S_RET}:{S_RET+1}], L_spin0")
        p(f"s_branch L_ret_{name}")
    for name in ("w2", "w3"):
        p.label(f"L_stub_{name}")
        p("buffer_wbl2 sc1"); p("s_waitcnt vmcnt(0)")
        p(f"s_branch L_ret_{name}")
    p.label("L_spin0")
    p(f"s_mov_b32 s{S_SPIN}, 0x40000")
    p.label("L_spin1")
    p(poll_load(None)[0])
    p(f"s_sub_u32 s76, s{S_EP}, s{S_PV}"); p("s_add_u32 s76, s76, 8")
    p("s_waitcnt vmcnt(0)")
    p(f"v_and_b32 v{V_PT}, 0xffffff87, v{V_PT}"); p(f"v_subrev_u32 v{V_PT}, s{S_PV}, v{V_PT}"); p(f"v_cmp_le_u32 vcc, s76, v{V_PT}")
    p("s_cbranch_vccz L_spin2")
    p(f"s_sub_u32 s{S_SPIN}, s{S_SPIN}, 1"); p("s_sleep 1"); p(f"s_cmp_lg_u32 s{S_SPIN}, 0"); p("s_cbranch_scc1 L_spin1")
    p.label("L_spin2")
    p(f"s_setpc_b64 s[{S_RET}:{S_RET+1}]")
    rare_items = fix_hazards(rare.items)[0]
    for par in range(2):
        rp = Prog(); p = rp
        p.label(f"L_rare{par}")
        p("s_nop 15")
        Lold = V_LS + (1 - par) * 4
        for qt in range(4):
            rowmax(p, par, qt, V_R + qt)
            p(f"v_log_f32 v{V_R+4}, v{Lold+qt}")
            p(f"v_max3_f32 v{V_R+qt}, v{V_R+qt}, v{V_R+4}, 0")
        for t in xlane4_ops("v_max_f32", V_R, V_R + 4): p(t)
        for qt in range(4):
            p(f"v_sub_f32 v{V_R+4+qt}, 0, v{V_R+qt}"); p(f"v_exp_f32 v{V_R+4+qt}, v{V_R+4+qt}")
        for qt in range(4):
            p(f"v_mul_f32 v{Lold+qt}, v{Lold+qt}, v{V_R+4+qt}")
            for r in range(4): p(f"v_sub_f32 v{V_NM+4*qt+r}, v{V_NM+4*qt+r}, v{V_R+qt}")
            for pp in range(2):
                for kt in range(4):
                    for r in range(4): p(f"v_sub_f32 v{Sreg(pp,kt,qt)+r}, v{Sreg(pp,kt,qt)+r}, v{V_R+qt}")
            for dt in range(8):
                o = A_O + (dt * 4 + qt) * 4
                for r in range(4): p(f"v_accvgpr_read_b32 v{V_E+r}, a{o+r}")
                for r in range(4): p(f"v_mul_f32 v{V_E+r}, v{V_E+r}, v{V_R+4+qt}")
                for r in range(4): p(f"v_accvgpr_write_b32 a{o+r}, v{V_E+r}")
        for tau in range(64):
            p(op_exp(par, tau)); p(op_add(par, tau))
            if tau % 2 == 1: p(op_cvt(par, tau))
        for tau in range(SHIFT): p(op_exp(1 - par, tau))
        p("s_nop 3")
        p(f"s_setpc_b64 s[{S_RET}:{S_RET+1}]")
        rare_items += fix_hazards(rp.items)[0]

    resolve_waits(pro.items + body.items + body.items + tail.items)
    pi = lower_waits(pro.items); bi = lower_waits(body.items); ti = lower_waits(tail.items)
    pi, a1 = fix_hazards(pi, verbose=False, name="pro")
    bi2, a2 = fix_hazards(bi, prev=bi, verbose=True, name="body")
    bi3, a3 = fix_hazards(bi2, prev=pi, verbose=True, name="body-entry")
    ti, a4 = fix_hazards(ti, prev=bi3, verbose=True, name="tail")
    wc = WaitChecker(); wc.run(pi + bi3 + bi3 + ti)
    for e in wc.errors[:10]: print("WAITCHECK", e)
    return pi + bi3 + ti + rare_items

if __name__ == "__main__":
    import sys
    HEADER = open("cdna_kernels/" + NAME + ".s.ref").read().split("; Override")[0]
    items = gen_mega()
    k = NAME + "_kernel"
    s = HEADER + f"; @launch grid=(256,1,1) block=(256,1,1) lds={LDS_BYTES}\n"
    s += '.amdgcn_target "amdgcn-amd-amdhsa--gfx950"\n' + kernel_text(k, items, 512, 256)
    s += "L_code_end:\n    s_endpgm\n" + '.section .rodata,"a"\n.p2align 6\n' + kd_text(k, 512, 256)
    open(sys.argv[1], "w").write(s)
```

```python
from common import *
import math
K12_LDS = 160 * 1024
LOG2E = 1.4426950408889634
QSCALE = LOG2E / math.sqrt(128.0)
GC1 = -2.0 * math.sqrt(2.0 / math.pi) * LOG2E
GC2 = GC1 * 0.044715
THRESH = 2.0 ** 64
ABL = os.environ.get('ABL', '')
NTW = "" if "nontw" in ABL else " nt"
NTKV = " nt" if 'ntkv' in ABL else ""
SCH = "" if 'nosch' in ABL else " sc1"
SCO = "" if 'nosco' in ABL else " sc1"

S_HF = 4
S_WG, S_WU, S_WQ, S_K, S_V, S_XN, S_H, S_O = 8, 12, 16, 20, 24, 28, 32, 36
S_WAVE, S_RB, S_J = 40, 41, 42
S_RCNT = 43
S_T0, S_T1, S_T2 = 44, 45, 46
S_KOFF, S_VOFF = 47, 48
S_W1K = 49
S_RET = 50
S_CNT = 52
S_W3K = 53
S_BF = 54
S_BH = 55
S_BQ = 56
S_RS = 57
S_RD = 58
S_HBASE = 59
S_HHALF = 60
S_THR = 61
S_OBASE = 62
S_XB = 63
S_W6K = 79

V_L16 = 1
V_WF = 2
V_WQ = 3
V_RA = 4
V_RH = 8
V_RQ = 88
V_QP = 10
V_C1, V_C2 = 12, 13
V_KD, V_VD = 14, 15
V_AF = 16
V_T = 52
V_HO = 68
V_KA = 76
V_VA = 80
V_RPD = 0
V_ACC = 96
V_X = 224
WSLOT = [128 * 1024, 80 * 1024, 40 * 1024, 104 * 1024]
def wbase(slot):
    b = WSLOT[slot]
    return (0, b - 40 * 1024) if b < 104 * 1024 else (1, b - 104 * 1024)

def xreg(ks, mt):
    f = ks * 4 + mt
    return f"a[{4*f}:{4*f+3}]" if f < 64 else f"v[{V_X+4*(f-64)}:{V_X+4*(f-64)+3}]"

A_Q, A_KF, A_VF, A_O = 0, 64, 96, 128
V_S = 96
V_P0 = 224
V_P1 = 16
V_NM = 32
V_LS = 48
V_E = 56
V_CK = 64
V_R = 65
V_RP = [88, 92, 4, 8]
SHIFT = 2

class Gap:
    def __init__(self, mfma):
        self.mfma = mfma; self.sh = []; self.mem = []; self.valu = []; self.post = []

def emit_gaps(p, gaps):
    for g in gaps:
        if g.mfma: p(g.mfma)
        for it in g.sh + g.mem + g.valu + g.post:
            if isinstance(it, tuple): p(it[0], it[1])
            elif isinstance(it, str): p(it)
            else: p.items.append(it)

def slots_of(text):
    return 2 if text.split()[0] in TRANS else 1

def fill_valu(gaps, start, queue, cap=2, window=40, mins=None):
    class Q: pass
    items = []
    for qi, op in enumerate(queue):
        q = Q(); q.op = op; q.min = mins[qi] if mins else 0; q.mem = isinstance(op, tuple)
        ins = Ins(op[2][0]) if q.mem else Ins(op)
        q.rd = set(ins.rd); q.wr = set(ins.wr); q.slots = (2 if op[2][0].startswith('buffer') else 1) if q.mem else slots_of(op); q.trans = (q.slots == 2 and not q.mem)
        items.append(q)
    ready_at = {}
    pend = list(items)
    for gi in range(start, len(gaps)):
        g = gaps[gi]
        used = sum(2 if m[0].startswith('buffer') else 1 for m in g.mem) + sum(slots_of(v) for v in g.valu) + max(0, len(g.sh) - 1)
        while pend and used < cap:
            blocked_w = set(); blocked_r = set()
            cands = []
            for q in pend[:window]:
                dep = (q.rd & blocked_w) or (q.wr & blocked_w) or (q.wr & blocked_r)
                if not dep and gi >= q.min and all(ready_at.get(r, -1) <= gi for r in q.rd):
                    if q.mem:
                        if not g.valu and not g.mem and len(g.sh) == 0: cands.append(q)
                    elif used + q.slots <= cap: cands.append(q)
                blocked_w |= q.wr; blocked_r |= q.rd
            if not cands: break
            mems = [q for q in cands if q.mem]; tr = [q for q in cands if q.trans]
            if mems: best = mems[0]
            elif tr: best = tr[0]
            else: best = cands[0]
            if best.mem:
                g.sh += best.op[1]; g.mem.append(best.op[2])
            else:
                g.valu.append(best.op)
                for r in best.wr: ready_at[r] = gi + 1
            used += best.slots
            pend.remove(best)
        if not pend: break
    return [q.op for q in pend]

KS = lambda T: (T + 3) % 4
VS = lambda T: (T + 1) % 4

def gen_k12():
    pro = Prog(); p = pro
    p("s_cmp_ge_u32 s2, 256"); p("s_cbranch_scc1 L_k12_done")
    stamp_rt(p, 20); stamp(p, 0)
    p(f"s_load_dwordx2 s[68:69], s[0:1], {ARG['wq']}")
    p(f"s_load_dwordx2 s[70:71], s[0:1], {ARG['ws']}")
    p(f"s_load_dwordx4 s[72:75], s[0:1], {ARG['wg']}")
    p(f"s_load_dwordx4 s[64:67], s[0:1], {ARG['k']}")
    p("v_lshrrev_b32 v16, 6, v0"); p("v_and_b32 v17, 63, v0")
    p(f"v_readfirstlane_b32 s{S_WAVE}, v16")
    p(f"s_and_b32 s{S_T0}, s2, 7"); p(f"s_lshr_b32 s{S_T1}, s2, 3")
    RBB = int(os.environ.get("RBB", "3"))
    p(f"s_and_b32 s{S_RB}, s{S_T1}, {(1 << RBB) - 1}"); p(f"s_lshr_b32 s{S_T1}, s{S_T1}, {RBB}")
    if RBB < 3:
        p(f"s_and_b32 s{S_T2}, s{S_T0}, {(1 << (3 - RBB)) - 1}"); p(f"s_lshl_b32 s{S_T2}, s{S_T2}, {RBB}"); p(f"s_add_u32 s{S_RB}, s{S_RB}, s{S_T2}")
        p(f"s_lshr_b32 s{S_T0}, s{S_T0}, {3 - RBB}")
    p(f"s_lshl_b32 s{S_J}, s{S_T0}, {5 - RBB}"); p(f"s_add_u32 s{S_J}, s{S_J}, s{S_T1}")
    p(f"v_lshlrev_b32 v{V_L16}, 4, v17")
    p("v_lshrrev_b32 v20, 4, v17"); p("v_and_b32 v22, 15, v17")
    p("v_lshlrev_b32 v23, 2, v20"); p("v_xor_b32 v23, v23, v22"); p("v_lshlrev_b32 v24, 13, v20"); p(f"v_lshl_add_u32 v{V_WQ}, v23, 4, v24")
    p(f"s_mul_i32 s{S_W6K}, s{S_WAVE}, 6144")
    p(f"s_mul_i32 s{S_BQ}, s{S_WAVE}, {24*8192}"); p(f"s_lshl_b32 s{S_T0}, s{S_J}, 8"); p(f"s_add_u32 s{S_BQ}, s{S_BQ}, s{S_T0}")
    p(f"s_lshl_b32 s{S_T0}, s{S_RB}, 2"); p(f"s_add_u32 s{S_T0}, s{S_T0}, s{S_WAVE}")
    p(f"s_mul_i32 s{S_XB}, s{S_T0}, 73728"); p(f"s_lshl_b32 s{S_HBASE}, s{S_T0}, 14")
    for d, n in ((S_WQ, 576 * 8192), (S_XN, XN_BYTES)):
        p(f"s_mov_b32 s{d+2}, {n}"); p(f"s_mov_b32 s{d+3}, 0x20000")
    p("s_waitcnt lgkmcnt(0)")
    for d, b in ((S_WQ, 68), (S_XN, 70)):
        p(f"s_mov_b32 s{d}, s{b}"); p(f"s_mov_b32 s{d+1}, s{b+1}")
    assert XN_OFF == 0
    if 'finepro' in ABL: stamp(p, 2)

    stages = [("q", 0, sub, 0) for sub in range(6)] + [("h", 0, sub, 0) for sub in range(3)]
    for t in range(4): stages += [("f", t, sub, (t + 1) % 2) for sub in range(3)]
    NST = len(stages)
    tmpsel = [0]
    def tmp():
        tmpsel[0] ^= 1
        return (S_T0, S_T1)[tmpsel[0]]
    def w_dma(st):
        kind, t, sub, buf = stages[st]; slot = st % 4
        ops = []
        if kind == "q":
            for i in range(6):
                tm = tmp()
                sal = [f"s_add_u32 s{tm}, s{S_BQ}, {(sub * 96 + 4 * i) * 8192}", f"s_add_u32 m0, s{S_W6K}, {WSLOT[slot] + i*1024}"]
                ops.append((sal, (f"buffer_load_dwordx4 v{V_WQ}, s[{S_WQ}:{S_WQ+3}], s{tm} offen{NTW} lds", f"W{st}")))
            return ops
        for reg in range(2):
            for i in range(3):
                base, stride, srdn, vo, cadd = (S_BH if kind == "h" else S_BF), 9216, (S_WG, S_WU)[reg], V_WF, t * 64
                imm = (sub * 192 + 16 * i) * stride + cadd
                tm = tmp()
                sal = [f"s_add_u32 s{tm}, s{base}, {imm}", f"s_add_u32 m0, s{S_W3K}, {WSLOT[slot] + reg*12288 + i*1024}"]
                ops.append((sal, (f"buffer_load_dwordx4 v{vo}, s[{srdn}:{srdn+3}], s{tm} offen{NTW} lds", f"W{st}")))
        return ops
    def x_loads(k0, k1):
        ops = []
        for ks in range(k0, k1):
            for mt in range(4):
                ops.append(([f"s_add_u32 s{S_RD}, s{S_XB}, {ks*4096}"] if mt == 0 else [],
                            (f"buffer_load_dwordx4 {xreg(ks, mt)}, v{V_L16}, s[{S_XN}:{S_XN+3}], s{S_RD} offen offset:{mt*1024}", f"X{ks//3}")))
        return ops
    def kv_dma(which, tile_slot, soff, add):
        ops = []
        for t in range(4):
            tm = tmp()
            base = (0 if which == "K" else 65536) + tile_slot * 16384 + t * 4096
            srdn = S_K if which == "K" else S_V
            if soff is None: sal = [f"s_mov_b32 s{tm}, {add + t*4096}"]
            else: sal = [f"s_add_u32 s{tm}, s{soff}, {add + t*4096}"]
            sal.append(f"s_add_u32 m0, s{S_W1K}, {base}")
            ops.append((sal, (f"buffer_load_dwordx4 v{V_KD if which == 'K' else V_VD}, s[{srdn}:{srdn+3}], s{tm} offen{NTKV} lds", f"{which}{tile_slot}")))
        return ops
    def issue(ops):
        for sal, op in ops:
            for s in reversed(sal): p(s)
            p(op[0], op[1])
    issue(w_dma(0)); issue(x_loads(0, 3))
    if 'finepro' in ABL: stamp(p, 3)
    p("v_lshrrev_b32 v18, 2, v17"); p("v_and_b32 v19, 3, v17"); p("v_and_b32 v21, 3, v18")
    p("v_lshl_add_u32 v23, v20, 3, v21"); p("v_lshlrev_b32 v24, 8, v23"); p("v_lshl_add_u32 v24, v19, 4, v24"); p(f"v_add_u32 v24, {40*1024}, v24")
    for sg_ in range(4):
        p(f"v_xor_b32 v25, {sg_}, v21"); p(f"v_lshl_add_u32 v{V_RQ+sg_}, v25, 6, v24"); p(f"v_add_u32 v{V_RQ+4+sg_}, {64*1024}, v{V_RQ+sg_}")
    p("v_lshlrev_b32 v23, 6, v23")
    p("v_and_b32 v24, 1, v20"); p("v_lshlrev_b32 v24, 5, v24")
    p("v_lshl_add_u32 v25, v19, 3, v23")
    p(f"v_add_u32 v{V_RA}, v25, v24"); p(f"v_add_u32 v{V_RA}, {40*1024}, v{V_RA}")
    p(f"v_xor_b32 v{V_RA+1}, 32, v{V_RA}")
    p(f"v_add_u32 v{V_RA+2}, {64*1024}, v{V_RA}"); p(f"v_add_u32 v{V_RA+3}, {64*1024}, v{V_RA+1}")
    p(f"s_and_b32 s{S_T2}, s{S_J}, 1")
    p(f"s_lshl_b32 s{S_T0}, s{S_T2}, 5")
    p(f"v_xor_b32 v{V_RH}, s{S_T0}, v{V_RA}"); p(f"v_add_u32 v{V_RH+1}, {64*1024}, v{V_RH}")
    p("v_lshrrev_b32 v23, 5, v17"); p("v_lshlrev_b32 v23, 1, v23"); p("v_xor_b32 v23, v23, v19")
    p(f"v_mul_u32_u24 v24, 9216, v18"); p(f"v_lshl_add_u32 v{V_WF}, v23, 4, v24")
    p(f"v_mov_b32 v{V_C1}, {f2u(GC1)}"); p(f"v_mov_b32 v{V_C2}, {f2u(GC2)}")
    srd(p, S_WG, 72, 576 * 9216); srd(p, S_WU, 74, 576 * 9216); srd(p, S_H, 70, H_BYTES, H_OFF); srd(p, S_O, 70, O_BYTES, O_OFF)
    p(f"s_mul_i32 s{S_W3K}, s{S_WAVE}, 3072")
    p(f"s_mul_i32 s{S_BH}, s{S_WAVE}, {48*9216}")
    p(f"s_mul_i32 s{S_RS}, s{S_J}, 288"); p(f"s_add_u32 s{S_RS}, s{S_RS}, s{S_T0}")
    p(f"s_add_u32 s{S_BF}, s{S_BH}, s{S_RS}")
    p(f"s_lshr_b32 s{S_T0}, s{S_J}, 1"); p(f"s_lshl_b32 s{S_T0}, s{S_T0}, 19")
    for d, b in ((S_K, 64), (S_V, 66)):
        p(f"s_add_u32 s{d}, s{b}, s{S_T0}"); p(f"s_addc_u32 s{d+1}, s{b+1}, 0"); p(f"s_mov_b32 s{d+2}, 524288"); p(f"s_mov_b32 s{d+3}, 0x20000")
    p(f"s_lshl_b32 s{S_W1K}, s{S_WAVE}, 10")
    p(f"s_lshr_b32 s{S_T0}, s{S_J}, 1"); p(f"s_mul_i32 s{S_KOFF}, s{S_T0}, 576"); p(f"s_add_u32 s{S_KOFF}, s{S_KOFF}, 256")
    p(f"s_add_u32 s{S_BH}, s{S_BH}, s{S_KOFF}")
    def hoff(dst, colreg, add):
        p(f"s_lshr_b32 s{S_T0}, s{colreg}, 6"); p(f"s_add_u32 s{S_T0}, s{S_T0}, {add}")
        p(f"s_lshr_b32 s{S_T1}, s{S_T0}, 2"); p(f"s_lshl_b32 s{S_T1}, s{S_T1}, 19")
        p(f"s_and_b32 s{S_T0}, s{S_T0}, 3"); p(f"s_lshl_b32 s{S_T0}, s{S_T0}, 10")
        p(f"s_add_u32 s{dst}, s{S_T0}, s{S_T1}"); p(f"s_add_u32 s{dst}, s{dst}, s{S_HBASE}")
    hoff(S_HHALF, S_KOFF, 0); p(f"s_lshl_b32 s{S_T0}, s{S_T2}, 3"); p(f"s_add_u32 s{S_HHALF}, s{S_HHALF}, s{S_T0}")
    for t in range(4): hoff(S_HF + t, S_RS, t)
    p(f"s_lshl_b32 s{S_T0}, s{S_J}, 19"); p(f"s_add_u32 s{S_OBASE}, s{S_HBASE}, s{S_T0}")
    p(f"s_mov_b32 s{S_THR}, {f2u(THRESH)}")
    p(f"s_lshl_b32 s{S_T0}, s{S_WAVE}, 2"); p(f"v_add_u32 v23, s{S_T0}, v20")
    p(f"v_xor_b32 v24, v22, v23"); p(f"v_lshlrev_b32 v24, 4, v24"); p(f"v_lshl_add_u32 v{V_KD}, v23, 8, v24")
    p(f"v_and_b32 v24, 7, v23"); p(f"v_lshlrev_b32 v24, 1, v24"); p(f"v_xor_b32 v24, v22, v24"); p(f"v_lshlrev_b32 v24, 4, v24"); p(f"v_lshl_add_u32 v{V_VD}, v23, 8, v24")
    for ks in range(4):
        p(f"v_add_u32 v23, {4*ks}, v20"); p("v_xor_b32 v23, v23, v22"); p("v_lshlrev_b32 v23, 4, v23"); p(f"v_lshl_add_u32 v{V_KA+ks}, v22, 8, v23")
    p("v_and_b32 v24, 7, v18"); p("v_lshlrev_b32 v25, 8, v18"); p("v_lshl_add_u32 v25, v19, 3, v25"); p("v_add_u32 v25, 0x10000, v25")
    for dt in range(8):
        p(f"v_xor_b32 v23, {dt}, v24"); p(f"v_lshl_add_u32 v{V_VA+dt}, v23, 5, v25")
    p(f"s_lshl_b32 s{S_T0}, s2, 2"); p(f"s_add_u32 s{S_T0}, s{S_T0}, s{S_WAVE}")
    p(f"s_sub_u32 s{S_T1}, s{S_T0}, 288"); p(f"s_cmp_lt_u32 s{S_T0}, 288")
    p(f"s_cselect_b32 s{S_T1}, s{S_T0}, s{S_T1}")
    p(f"s_cselect_b32 s{S_RCNT}, 16, 18")
    p(f"s_mov_b32 s{S_VOFF}, {4608*288}"); p(f"s_cselect_b32 s{S_VOFF}, {4096*288}, s{S_VOFF}")
    p(f"s_cmp_lt_u32 s{S_T0}, 576"); p(f"s_cselect_b32 s{S_RCNT}, s{S_RCNT}, 0")
    p(f"s_lshl_b32 s{S_RS}, s{S_T1}, 10"); p(f"s_lshl_b32 s{S_T1}, s{S_T1}, 6")
    p(f"v_add_u32 v23, s{S_T1}, v17")
    p(f"s_mov_b32 s{S_T1}, 58255"); p(f"v_mul_u32_u24 v24, s{S_T1}, v23"); p("v_lshrrev_b32 v24, 22, v24")
    p("v_mul_u32_u24 v25, 72, v24"); p("v_sub_u32 v25, v23, v25")
    p("v_mul_u32_u24 v26, 57, v25"); p("v_lshrrev_b32 v26, 10, v26")
    p("v_mul_u32_u24 v27, 18, v26"); p("v_sub_u32 v27, v25, v27")
    p(f"v_mul_lo_u32 v26, v26, s{S_VOFF}"); p(f"s_movk_i32 s{S_T1}, 288"); p(f"v_mul_u32_u24 v24, s{S_T1}, v24")
    p("v_lshl_add_u32 v24, v27, 4, v24"); p(f"v_add_u32 v{V_RPD}, v24, v26")

    groups = []
    for st in range(NST):
        kind, t, sub, buf = stages[st]
        if kind == "q":
            for nt in range(8): groups.append((st, nt, 0))
        else:
            nts = [0, 2] if kind == "h" else [0, 1, 2, 3]
            for c0 in (0, 3):
                for nt in nts: groups.append((st, nt, c0))
    def a_reads(gi):
        st, nt, c0 = groups[gi]; kind, t, sub, buf = stages[st]
        hb, off = wbase(st % 4)
        out = []
        for c in range(3):
            for tt in range(2):
                d = V_AF + (gi % 3) * 12 + c * 4 + 2 * tt
                if kind == "q":
                    addr = V_RQ + 4 * hb + (nt >> 1); o = off + c * 8192 + tt * 1024 + 8 * (nt & 1)
                else:
                    addr = (V_RA + 2 * hb + (nt & 1)) if kind == "f" else (V_RH + hb)
                    o = off + (nt >> 1) * 12288 + (c0 + c) * 2048 + tt * 256
                out.append((f"ds_read_b64_tr_b16 v[{d}:{d+1}], v{addr} offset:{o}", f"A{gi%3}"))
        return out
    acc = lambda buf, nt, mt: V_ACC + buf * 64 + (nt * 4 + mt) * 4
    gaps = []; gstart = []
    def ksof(st, c0):
        kind, t, sub, buf = stages[st]
        return sub * 3 if kind == "q" else sub * 6 + c0
    for gi, (st, nt, c0) in enumerate(groups):
        gstart.append(len(gaps))
        kind, t, sub, buf = stages[st]
        for mt in range(4):
            for c in range(3):
                a = acc(buf, nt, mt); af = V_AF + (gi % 3) * 12 + c * 4
                ks = ksof(st, c0) + c
                C = "0" if ks == 0 else f"v[{a}:{a+3}]"
                gaps.append(Gap(f"v_mfma_f32_16x16x32_bf16 v[{a}:{a+3}], v[{af}:{af+3}], {xreg(ks, mt)}, {C}"))
    NG = len(groups)
    first_of_stage = {}
    for gi, (st, nt, c0) in enumerate(groups): first_of_stage.setdefault(st, gi)
    bar_gap = {}
    for gi in range(2, NG):
        st = groups[gi][0]; f = first_of_stage[st]
        rd = a_reads(gi)
        if gi == f:
            g0 = gstart[gi - 1]
            bar_gap[st] = g0 - 1
            for n, r in enumerate(rd): gaps[g0 + n].mem.append(r)
        elif gi == f + 1:
            g0 = gstart[gi - 2]
            for n, r in enumerate(rd): gaps[g0 + 6 + n].mem.append(r)
        else:
            g0 = gstart[gi - 2]
            for n, r in enumerate(rd): gaps[g0 + 2 * n].mem.append(r)
    for gi in range(1, NG):
        g = gaps[gstart[gi] - 1]
        st, nt, c0 = groups[gi]
        vm = []
        if st < 6 and nt == 0: vm.append(f"X{st}")
        nxt = groups[gi + 1][0] if gi + 1 < NG else None
        if nxt is not None and nxt != st:
            g.sh.append(WaitFor(vm=vm + [f"W{nxt}"], lg0=True)); g.sh.append("s_barrier")
        else:
            g.sh.append(WaitFor(lg=(f"A{gi%3}",), vm=vm))
    def place_mem(ops, g0, g1, dense=False, anygap=False):
        g = g0 + 2
        avail = g1 - g
        need = sum(max(2, len(sal) + 1) for sal, op in ops)
        pitch = max(1.0, (avail - (4 if anygap else 16)) / len(ops)) if not dense else 1.0
        last = g0
        for n, (sal, op) in enumerate(ops):
            g = max(last + 1 + len(sal), int(g0 + 2 + n * pitch))
            while True:
                assert g < g1, (g0, g1, n, len(ops))
                ok = len(gaps[g].mem) <= 1 and (dense or anygap or len(gaps[g].mem) == 1) and all(len(gaps[g - len(sal) + i].sh) == 0 for i in range(len(sal)))
                if ok: break
                g += 1
            for i, s in enumerate(sal): gaps[g - len(sal) + i].sh.append(s)
            gaps[g].mem.append(op); last = g
    def q_reload():
        return [([], (f"ds_read_b128 a[{A_Q+4*f}:{A_Q+4*f+3}], v{V_QP + f//8} offset:{(f%8)*1024}", "QR")) for f in range(16)]
    for st in range(NST):
        g0 = gstart[first_of_stage[st]]
        g1 = bar_gap[st + 1] if st + 1 < NST else len(gaps)
        ops = []
        if st == 0: ops = w_dma(1) + x_loads(6, 9) + w_dma(2)
        elif st == 1: ops = x_loads(9, 12) + w_dma(3) + w_dma(4)
        elif st == 2: ops = x_loads(12, 15) + w_dma(5)
        elif st == 3: ops = x_loads(15, 18) + w_dma(6)
        elif st + 3 < NST: ops = w_dma(st + 3)
        if st == 18: ops += kv_dma("V", VS(0), None, 0)
        if st == 19: ops += kv_dma("K", KS(0), None, 0)
        if st == 20: ops += kv_dma("K", KS(1), None, 16384) + kv_dma("V", VS(1), None, 16384) + kv_dma("K", KS(2), None, 32768)
        if ops: place_mem(ops, g0, g1, dense=(st < 1 or st == 20), anygap=(stages[st][0] == 'h' or st < 4))
        if st == 19:
            cand = [g for g in range(g0 + 3, g1 - 2) if not gaps[g].mem][::2]
            for g, (sal, op) in zip(cand, q_reload()): gaps[g].mem.append(op)
            assert len(cand) >= 16
    def ffn_epi(st0):
        kind, t, sub, buf = stages[st0]
        q = []
        for mt in range(4):
            if kind == "f": el = [(acc(buf, n, mt) + r, acc(buf, 2 + n, mt) + r) for n in range(2) for r in range(4)]
            else: el = [(acc(buf, 0, mt) + r, acc(buf, 2, mt) + r) for r in range(4)]
            T = V_T + 8 * (mt % 2)
            for e, (g, u) in enumerate(el): q.append(f"v_mul_f32 v{T+e}, v{g}, v{g}")
            for e, (g, u) in enumerate(el): q.append(f"v_fma_f32 v{T+e}, v{T+e}, v{V_C2}, v{V_C1}")
            for e, (g, u) in enumerate(el): q.append(f"v_mul_f32 v{T+e}, v{T+e}, v{g}")
            for e, (g, u) in enumerate(el):
                q.append(f"v_exp_f32 v{T+e}, v{T+e}"); q.append(f"v_mul_f32 v{g}, v{g}, v{u}")
            for e, (g, u) in enumerate(el): q.append(f"v_add_f32 v{T+e}, 1.0, v{T+e}")
            for e, (g, u) in enumerate(el): q.append(f"v_rcp_f32 v{T+e}, v{T+e}")
            for e, (g, u) in enumerate(el): q.append(f"v_mul_f32 v{g}, v{g}, v{T+e}")
            o = V_HO + 4 * (mt % 2)
            for i in range(len(el) // 2): q.append(f"v_cvt_pk_bf16_f32 v{o+i}, v{el[2*i][0]}, v{el[2*i+1][0]}")
            if kind == "f":
                q.append(("MEM", [f"s_add_u32 s{S_T2}, s{S_HF+t}, {mt*4096}"], (f"buffer_store_dwordx4 v[{o}:{o+3}], v{V_L16}, s[{S_H}:{S_H+3}], s{S_T2} offen{SCH}", None)))
            else:
                q.append(("MEM", [f"s_add_u32 s{S_T2}, s{S_HHALF}, {mt*4096}"], (f"buffer_store_dwordx2 v[{o}:{o+1}], v{V_L16}, s[{S_H}:{S_H+3}], s{S_T2} offen", None)))
        return q
    def q_epi(seg):
        q = []
        for mt in range(4):
            rs = [acc(0, 2 * seg, mt) + r for r in range(4)] + [acc(0, 2 * seg + 1, mt) + r for r in range(4)]
            o = V_T + 4 * ((seg * 4 + mt) % 6)
            for r in rs: q.append(f"v_mul_f32 v{r}, {f2u(QSCALE)}, v{r}")
            for i in range(4): q.append(f"v_cvt_pk_bf16_f32 v{o+i}, v{rs[2*i]}, v{rs[2*i+1]}")
            f = mt * 4 + seg
            q.append(("MEM", [], (f"ds_write_b128 v{V_QP + f//8}, v[{o}:{o+3}] offset:{(f%8)*1024}", None)))
        return q
    sg = lambda st: gstart[first_of_stage[st]]
    f5 = first_of_stage[5]
    left = fill_valu(gaps[:sg(6) - 3], gstart[f5 + 2] + 3, q_epi(0)); assert not left, len(left)
    left = fill_valu(gaps[:sg(6) + 9], gstart[f5 + 4] + 3, q_epi(1)); assert not left, len(left)
    left = fill_valu(gaps[:sg(9) - 3], sg(6) + 3, q_epi(2) + q_epi(3)); assert not left, len(left)
    for st0 in (6, 9, 12, 15):
        end = sg(st0 + 6) - 3 if st0 + 6 < NST else len(gaps)
        left = fill_valu(gaps[:end], sg(st0 + 3) + 3, ffn_epi(st0)); assert not left, (st0, len(left))
    zq = fill_valu(gaps, sg(20) + 3, [f"v_accvgpr_write_b32 a{A_O+i}, 0" for i in range(64)])
    zq += [f"v_accvgpr_write_b32 a{A_O+64+i}, 0" for i in range(64)]
    p(f"s_lshl_b32 s{S_T0}, s{S_WAVE}, 14"); p(f"s_cmp_eq_u32 s{S_WAVE}, 2"); p(f"s_cselect_b32 s{S_T0}, 0x10000, s{S_T0}")
    p(f"s_add_u32 s{S_T1}, s{S_T0}, 8192"); p(f"s_cmp_eq_u32 s{S_WAVE}, 3"); p(f"s_cselect_b32 s{S_T0}, 0x8000, s{S_T0}"); p(f"s_cselect_b32 s{S_T1}, {152*1024}, s{S_T1}")
    p(f"v_add_u32 v{V_QP}, s{S_T0}, v{V_L16}"); p(f"v_add_u32 v{V_QP+1}, s{S_T1}, v{V_L16}")
    issue(x_loads(3, 6))
    if 'finepro' in ABL: stamp(p, 4)
    p.items.append(WaitFor(vm=("W0", "X0")))
    if 'finepro' in ABL: stamp(p, 5)
    p("s_barrier")
    if 'finepro' in ABL: stamp(p, 6)
    for t, tag in a_reads(0) + a_reads(1): p(t, tag)
    p.items.append(WaitFor(lg=("A0",)))
    stamp(p, 1)
    if 'finepro' in ABL:
        gaps[sg(1) - 1].post += stamp_ops(7); gaps[sg(2) - 1].post += stamp_ops(8); gaps[sg(3) - 1].post += stamp_ops(9)
    else:
        for si in range(1, 7): gaps[sg(3*si) - 1].post += stamp_ops(1 + si)
    emit_gaps(p, gaps)
    if 'finepro' not in ABL: stamp(p, 8)

    Sreg = lambda par, kt, qt: V_S + (1 - par) * 64 + (kt * 4 + qt) * 4
    Preg = lambda par, kb, qt: (V_P0 + par * 16 + qt * 4) if kb == 0 else (V_P1 + qt * 4)
    Kf = lambda kt, ks: A_KF + (kt % 2) * 16 + ks * 4
    Vf = lambda dt, kb: A_VF + (dt % 4) * 8 + kb * 4
    def k_reads(slot, kt):
        return [(f"ds_read_b128 a[{Kf(kt,ks)}:{Kf(kt,ks)+3}], v{V_KA+ks} offset:{slot*16384 + kt*4096}", f"KF{kt%2}") for ks in range(4)]
    def v_reads(slot, dt):
        return [(f"ds_read_b64_tr_b16 a[{Vf(dt,kb)+2*t}:{Vf(dt,kb)+2*t+1}], v{V_VA+dt} offset:{slot*16384 + kb*8192 + t*4096}", f"VF{dt%4}") for kb in range(2) for t in range(2)]
    def qk_mfma(par, kt, qt, ks, zero=False):
        s = Sreg(par, kt, qt)
        C = f"v[{s}:{s+3}]" if ks else ("0" if zero else f"v[{V_NM+4*qt}:{V_NM+4*qt+3}]")
        qf = A_Q + (qt * 4 + ks) * 4
        return f"v_mfma_f32_16x16x32_bf16 v[{s}:{s+3}], a[{Kf(kt,ks)}:{Kf(kt,ks)+3}], a[{qf}:{qf+3}], {C}"
    def pv_mfma(par, dt, qt, kb):
        o = A_O + (dt * 4 + qt) * 4; pr = Preg(par, kb, qt)
        return f"v_mfma_f32_16x16x32_bf16 a[{o}:{o+3}], a[{Vf(dt,kb)}:{Vf(dt,kb)+3}], v[{pr}:{pr+3}], a[{o}:{o+3}]"
    def elem(par, tau):
        kb = tau // 32; qt = (tau % 32) // 8; j = tau % 8
        return Sreg(par, 2 * kb + (j >> 2), qt) + (j & 3), kb, qt, j
    def op_exp(par, tau): return f"v_exp_f32 v{V_E + tau % 8}, v{elem(par, tau)[0]}"
    def op_add(par, tau):
        s, kb, qt, j = elem(par, tau)
        src = V_LS + (1 - par) * 4 + qt if (kb == 0 and j == 0) else V_LS + par * 4 + qt
        return f"v_add_f32 v{V_LS + par*4 + qt}, v{src}, v{V_E + tau % 8}"
    def op_cvt(par, tau):
        s, kb, qt, j = elem(par, tau)
        return f"v_cvt_pk_bf16_f32 v{Preg(par, kb, qt) + j//2}, v{V_E + (tau-1) % 8}, v{V_E + tau % 8}"
    def rowmax(p, par, qt, dst):
        regs = [Sreg(par, kt, qt) + r for kt in range(4) for r in range(4)]
        p(f"v_max3_f32 v{dst}, v{regs[0]}, v{regs[1]}, v{regs[2]}")
        for i in range(3, 15, 2): p(f"v_max3_f32 v{dst}, v{dst}, v{regs[i]}, v{regs[i+1]}")
        p(f"v_max_f32 v{dst}, v{dst}, v{regs[15]}")
    def xlane4(p, op, dst, t1):
        for sw in ("v_permlane32_swap_b32", "v_permlane16_swap_b32"):
            for q in range(4): p(f"v_mov_b32 v{t1+q}, v{dst+q}")
            for q in range(4): p(f"{sw} v{dst+q}, v{t1+q}")
            for q in range(4): p(f"{op} v{dst+q}, v{dst+q}, v{t1+q}")

    p(f"s_load_dwordx2 s[64:65], s[0:1], {ARG['wo']}"); p(f"s_load_dwordx2 s[66:67], s[0:1], {ARG['wd']}")
    p.items.append(WaitFor(vm=(f"K{KS(0)}",), lg0=True)); p("s_barrier")
    for t, tag in k_reads(KS(0), 0) + k_reads(KS(0), 1): p(t, tag)
    issue(kv_dma("K", KS(3), None, 3 * 16384) + kv_dma("V", VS(2), None, 2 * 16384))
    p(f"s_cmp_eq_u32 s{S_RCNT}, 16")
    p(f"s_cselect_b32 s{S_WG}, s64, s66"); p(f"s_cselect_b32 s{S_WG+1}, s65, s67")
    p(f"s_mul_i32 s{S_WG+2}, s{S_RCNT}, {256*1152}"); p(f"s_mov_b32 s{S_WU+2}, s{S_WG+2}")
    p(f"s_mov_b32 s{S_T0}, {WP_OFF + 4096*1152}"); p(f"s_cselect_b32 s{S_T0}, {WP_OFF}, s{S_T0}")
    p(f"s_add_u32 s{S_WU}, s70, s{S_T0}"); p(f"s_addc_u32 s{S_WU+1}, s71, 0")
    p(f"s_mov_b32 s{S_RD}, {-3*256*288}"); p(f"s_mov_b32 s{S_BQ}, -3")
    p(f"s_mov_b32 s{S_KOFF}, {4*16384}"); p(f"s_mov_b32 s{S_VOFF}, {3*16384}"); p(f"s_mov_b32 s{S_CNT}, 8")
    g0 = []
    for kt in range(4):
        for qt in range(4):
            for ks in range(4): g0.append(Gap(qk_mfma(0, kt, qt, ks, zero=True)))
    for n, r in enumerate(k_reads(KS(0), 2)): g0[16 + 2 * n].mem.append(r)
    for n, r in enumerate(k_reads(KS(0), 3)): g0[32 + 2 * n].mem.append(r)
    g0[31].sh.append(WaitFor(lg=("KF0",))); g0[47].sh.append(WaitFor(lg=("KF1",)))
    left = fill_valu(g0, 0, ffn_epi(18) + zq)
    p.items.append(WaitFor(lg=("KF0", "KF1")))
    emit_gaps(p, g0)
    for op in left:
        if isinstance(op, tuple):
            for t in op[1]: p(t)
            p(op[2][0], op[2][1])
        else: p(op)
    for q in range(4): p(f"v_mov_b32 v{V_LS+4+q}, 0")
    p.items.append(WaitFor(vm=(f"K{KS(1)}", f"V{VS(0)}"))); p("s_barrier")
    for t, tag in k_reads(KS(1), 0) + k_reads(KS(1), 1): p(t, tag)
    for qt in range(4): rowmax(p, 0, qt, V_R + qt)
    xlane4(p, "v_max_f32", V_R, V_R + 4)
    for qt in range(4):
        for r in range(4): p(f"v_sub_f32 v{V_NM+4*qt+r}, 0, v{V_R+qt}")
        for kt in range(4):
            for r in range(4): p(f"v_sub_f32 v{Sreg(0,kt,qt)+r}, v{Sreg(0,kt,qt)+r}, v{V_R+qt}")
    for tau in range(32 + SHIFT):
        p(op_exp(0, tau))
        if tau >= 1:
            p(op_add(0, tau - 1))
            if (tau - 1) % 2 == 1: p(op_cvt(0, tau - 1))
    tau = 32 + SHIFT - 1
    p("s_nop 0"); p(op_add(0, tau))
    if tau % 2 == 1: p(op_cvt(0, tau))
    p.items.append(WaitFor(lg=("KF0",)))
    if 'finepro' not in ABL: stamp(p, 9)

    body = Prog(); p = body
    p.label("L_att_loop", 6)
    for it in range(4):
        par = it % 2
        G = []
        for kt in range(4):
            for qt in range(4):
                for ks in range(4): G.append(Gap(qk_mfma(1 - par, kt, qt, ks)))
        for dt in range(8):
            for qt in range(4):
                for kb in range(2): G.append(Gap(pv_mfma(par, dt, qt, kb)))
        for b in range(64):
            if b < 32 - SHIFT: sp, tau = par, 32 + SHIFT + b
            else: sp, tau = 1 - par, b - (32 - SHIFT)
            G[2 * b].valu.append(op_exp(sp, tau))
            if 32 - SHIFT <= b < 32:
                tgt = G[63] if b == 32 - SHIFT else G[65]
                tgt.valu.append(op_add(sp, tau))
                if tau % 2 == 1: G[67].valu.append(op_cvt(sp, tau))
        for b in range(64):
            if b < 32 - SHIFT: sp, tau = par, 32 + SHIFT + b
            else: sp, tau = 1 - par, b - (32 - SHIFT)
            if 32 - SHIFT <= b < 32: continue
            G[2 * b + 1].valu.append(op_add(sp, tau))
            if tau % 2 == 1: G[2 * b + 1].valu.append(op_cvt(sp, tau))
        L = V_LS + par * 4
        G[57].valu += [f"v_max3_f32 v{V_CK}, v{L}, v{L+1}, v{L+2}"]
        G[61].valu += [f"v_max_f32 v{V_CK}, v{V_CK}, v{L+3}", f"v_cmp_lt_f32 vcc, s{S_THR}, v{V_CK}"]
        G[63].sh += [f"s_cbranch_vccnz L_rare_stub{it}", Label(f"L_rare_ret{it}")]
        kslot1, kslot2, vslot = KS(it + 1), KS(it + 2), VS(it)
        def put(b0, ops):
            for n, r in enumerate(ops): G[2 * (b0 + n) + 1].mem.append(r)
        put(0, v_reads(vslot, 0)); put(4, v_reads(vslot, 1)); put(8, k_reads(kslot1, 2)); put(12, v_reads(vslot, 2))
        put(16, k_reads(kslot1, 3)); put(20, v_reads(vslot, 3))
        put(36, v_reads(vslot, 4)); put(40, v_reads(vslot, 5)); put(44, v_reads(vslot, 6)); put(48, v_reads(vslot, 7))
        put(52, k_reads(kslot2, 0)); put(56, k_reads(kslot2, 1))
        G[64].sh += [WaitFor(vm=(f"K{kslot2}", f"V{VS(it+1)}", f"R{(it+2)%4}"))]
        G[65].sh += ["s_barrier"]
        dk = kv_dma("K", KS(it), S_KOFF, 0); dv = kv_dma("V", VS(it + 3), S_VOFF, 0)
        dvp = kv_dma("V", VS(it + 2), S_VOFF, -16384)
        def putdma(b, sal, op):
            G[2 * b - 1].sh.append(sal[0]); G[2 * b].sh.append(sal[1]); G[2 * b + 1].mem.append(op)
        for b, (sal, op) in zip((34, 35, 60, 61, 62), dk + dv[:1]): putdma(b, sal, op)
        for b, (sal, op) in zip((24, 25, 26), dvp[1:]): putdma(b, sal, op)
        rp = V_RP[it]; rs_ = V_RP[(it + 2) % 4]
        G[55].mem.append((f"buffer_load_dwordx4 v[{rp}:{rp+3}], v{V_L16}, s[{S_WG}:{S_WG+3}], s{S_RS} offen", f"R{it}"))
        G[56].sh.append(f"s_add_u32 s{S_RS}, s{S_RS}, {288*1024}")
        G[72].sh.append(f"s_add_u32 s{S_BQ}, s{S_BQ}, 1")
        G[74].sh.append(f"s_cmp_lt_u32 s{S_BQ}, s{S_RCNT}"); G[75].sh.append(f"s_cselect_b32 s{S_WU+2}, s{S_WG+2}, 0")
        G[127].mem.append((f"buffer_store_dwordx4 v[{rs_}:{rs_+3}], v{V_RPD}, s[{S_WU}:{S_WU+3}], s{S_RD} offen sc1", None))
        G[2].sh.append(f"s_add_u32 s{S_RD}, s{S_RD}, {256*288}")
        G[126].sh.append(f"s_add_u32 s{S_KOFF}, s{S_KOFF}, 16384"); G[127].sh.append(f"s_add_u32 s{S_VOFF}, s{S_VOFF}, 16384")
        G[15].sh.append(WaitFor(lg=("KF1",))); G[31].sh.append(WaitFor(lg=("KF0",))); G[46].sh.append(WaitFor(lg=("KF1",)))
        G[62].sh.append(WaitFor(lg=("VF0", "VF1", "VF2", "VF3")))
        for dt in range(4, 8): G[64 + 8 * dt - (1 if dt < 7 else 2)].sh.append(WaitFor(lg=(f"VF{dt%4}",)))
        G[125].sh.append(WaitFor(lg=("KF0",)))
        if it == 3:
            G[116].sh.append(f"s_sub_u32 s{S_CNT}, s{S_CNT}, 1")
            if STAMP: G[127].post += ["s_memtime s[76:77]", "s_waitcnt lgkmcnt(0)", f"s_mov_b32 m0, s{S_CNT}", "s_nop 0", "s_movreld_b32 s90, s76"]
            G[127].post += [f"s_cmp_lg_u32 s{S_CNT}, 0", "s_cbranch_scc1 L_att_loop"]
        for gi, g in enumerate(G):
            if len([x for x in g.sh if not isinstance(x, Label)]) > 1: print("att gap", gi, "has", len(g.sh), "shadow ops")
        emit_gaps(p, G)

    epi = Prog(); p = epi
    xlane4(p, "v_add_f32", V_LS + 4, V_R)
    for qt in range(4): p(f"v_rcp_f32 v{V_LS+4+qt}, v{V_LS+4+qt}")
    n = 0
    for qt in range(4):
        for s in range(4):
            T = V_S + (n % 4) * 8
            for h in range(2):
                o = A_O + ((2 * s + h) * 4 + qt) * 4
                for r in range(4): p(f"v_accvgpr_read_b32 v{T+4*h+r}, a{o+r}")
            for i in range(8): p(f"v_mul_f32 v{T+i}, v{T+i}, v{V_LS+4+qt}")
            D = V_S + 32 + (n % 4) * 4
            for i in range(4): p(f"v_cvt_pk_bf16_f32 v{D+i}, v{T+2*i}, v{T+2*i+1}")
            if s == 0: p(f"s_add_u32 s{S_T0}, s{S_OBASE}, {qt*4096}")
            p(f"buffer_store_dwordx4 v[{D}:{D+3}], v{V_L16}, s[{S_O}:{S_O+3}], s{S_T0} offen offset:{s*1024}{SCO}")
            n += 1
    stamp(p, 18)
    if STAMP: p("s_waitcnt vmcnt(0)")
    stamp(p, 19); stamp_rt(p, 21); stamp_dump(p, 70, S_WAVE, 1)
    p.label("L_k12_done"); p("s_endpgm")

    rare = Prog(); p = rare
    for it in range(4):
        p.label(f"L_rare_stub{it}")
        p(f"s_call_b64 s[{S_RET}:{S_RET+1}], L_rare{it%2}")
        p(f"s_branch L_rare_ret{it}")
    rare_items = fix_hazards(rare.items)[0]
    for par in range(2):
        rp = Prog(); p = rp
        p.label(f"L_rare{par}")
        p("s_nop 15")
        Lold = V_LS + (1 - par) * 4
        for qt in range(4):
            rowmax(p, par, qt, V_R + qt)
            p(f"v_log_f32 v{V_R+4}, v{Lold+qt}")
            p(f"v_max3_f32 v{V_R+qt}, v{V_R+qt}, v{V_R+4}, 0")
        xlane4(p, "v_max_f32", V_R, V_R + 4)
        for qt in range(4):
            p(f"v_sub_f32 v{V_R+4+qt}, 0, v{V_R+qt}"); p(f"v_exp_f32 v{V_R+4+qt}, v{V_R+4+qt}")
        for qt in range(4):
            p(f"v_mul_f32 v{Lold+qt}, v{Lold+qt}, v{V_R+4+qt}")
            for r in range(4): p(f"v_sub_f32 v{V_NM+4*qt+r}, v{V_NM+4*qt+r}, v{V_R+qt}")
            for pp in range(2):
                for kt in range(4):
                    for r in range(4): p(f"v_sub_f32 v{Sreg(pp,kt,qt)+r}, v{Sreg(pp,kt,qt)+r}, v{V_R+qt}")
            for dt in range(8):
                o = A_O + (dt * 4 + qt) * 4
                for r in range(4): p(f"v_accvgpr_read_b32 v{V_E+r}, a{o+r}")
                for r in range(4): p(f"v_mul_f32 v{V_E+r}, v{V_E+r}, v{V_R+4+qt}")
                for r in range(4): p(f"v_accvgpr_write_b32 a{o+r}, v{V_E+r}")
        for tau in range(64):
            p(op_exp(par, tau)); p(op_add(par, tau))
            if tau % 2 == 1: p(op_cvt(par, tau))
        for tau in range(SHIFT): p(op_exp(1 - par, tau))
        p("s_nop 3")
        p(f"s_setpc_b64 s[{S_RET}:{S_RET+1}]")
        rare_items += fix_hazards(rp.items)[0]

    resolve_waits(pro.items + body.items + body.items)
    pi = lower_waits(pro.items); bi = lower_waits(body.items)
    pi, a1 = fix_hazards(pi, verbose=True, name="k12pro")
    bi2, a2 = fix_hazards(bi, prev=bi, verbose=True, name="k12body")
    bi3, a3 = fix_hazards(bi2, prev=pi, verbose=True, name="k12body-entry")
    wc = WaitChecker(); wc.run(pi + bi3 + bi3 + epi.items)
    for e in wc.errors[:10]: print("K12 WAITCHECK", e)
    ei, _ = fix_hazards(epi.items, prev=bi3, name="k12epi")
    return pi + bi3 + ei + rare_items, 512, 256
```

```python
from common import *
import math
LDS_BYTES = 160 * 1024
LOG2E = 1.4426950408889634
QSCALE = LOG2E / math.sqrt(128.0)
GC1 = -2.0 * math.sqrt(2.0 / math.pi) * LOG2E
GC2 = GC1 * 0.044715
CUT = int(os.environ.get("CUT", "30"))
BIAS = float(126 - CUT) if CUT else 0.0
THRESH = 2.0 ** (int(os.environ.get("THR", "64")) - BIAS)
ABL = os.environ.get('ABL', '')
NTW = "" if "nontw" in ABL else " nt"
NTQ = "" if "nontq" in ABL else " nt"
NTX = " nt" if "ntx" in ABL else ""
NTKV = " nt" if 'ntkv' in ABL else ""
WS_BYTES = 128 << 20
WPO_OFF = WP_OFF
WPD_OFF = WP_OFF + 4096 * 1152
FLAG_OFF = 100 << 20
SCH = ' sc1' if 'sch' in ABL else ''
SCO = ' sc1' if 'sco' in ABL else ''
LSC = '' if 'nolsc' in ABL else ' sc1'
P3NT = ' nt' if 'p3nt' in ABL else ''
PSTRIDE = 64 * 4 * 4 * 9216

S_HF = 4
S_WG, S_WU, S_WQ, S_K, S_V, S_WS, S_DBG, S_XI = 8, 12, 16, 20, 24, 28, 32, 36
S_WAVE, S_RB, S_J = 40, 41, 42
S_RE = 43
S_T0, S_T1, S_T2 = 44, 45, 46
S_KOFF, S_VOFF = 47, 48
S_W1K = 49
S_RET = 50
S_CNT = 52
S_W3K = 53
S_BF, S_BH, S_BQ = 54, 55, 56
S_RS, S_RD = 57, 58
S_RNW = 59
S_HHALF = 60
S_THR = 61
S_OBASE = 62
S_XB = 63
S_PTR = 64
S_W6K = 3
S_PV = 79
S_SIG = 78
S_SPIN = 75
S_EP = 74
S_FO = 73
S_MIX = 72
S_XCC = 69
S_PW, S_PW2, S_PB0, S_PB1 = 54, 55, 56, 57
S_W9K = 53
S_PST = 58
S_FL = 59
S_FX0, S_FX1 = 60, 63
S_OUT = 16

V_SA = 0
V_L16 = 1
V_WF, V_WQ = 2, 3
V_RA = 4
V_RH = 8
V_QP = 10
V_C1, V_C2 = 12, 13
V_KD, V_VD = 14, 15
V_AF = 16
V_T = 52
V_HO = 68
V_KA = 76
V_VA = 80
V_RQ = 88
V_ACC = 96
V_X = 224
WSLOT = [128 * 1024, 80 * 1024, 40 * 1024, 104 * 1024]
def wbase(slot):
    b = WSLOT[slot]
    return (0, b - 40 * 1024) if b < 104 * 1024 else (1, b - 104 * 1024)
def xreg(ks, mt):
    f = ks * 4 + mt
    return f"a[{4*f}:{4*f+3}]" if f < 64 else f"v[{V_X+4*(f-64)}:{V_X+4*(f-64)+3}]"

A_Q, A_KF, A_VF, A_O = 0, 64, 96, 128
V_S = 96
V_P0 = 224
V_P1 = 16
V_NM = 32
V_LS = 48
V_E = 56
V_CK = 9
V_ONE = 10
V_R = 64
V_LD = 72
V_RPS = 88
V_RPG, V_RPL = 2, 3
V_PA, V_PT = 4, 5
V_SV = 6
V_LANE = 7
V_EP = 8
KS = lambda T: (T + 3) % 4
VS = lambda T: (T + 1) % 4
P3_SLOT = [0, 80 * 1024, 116 * 1024]
AD = lambda nt, mt: 160 + (nt * 2 + mt) * 4
AS = lambda nt, mt: (96 + (nt * 2 + mt) * 4) if nt < 8 else (240 + mt * 4)
P3_AR = [32, 40, 88, 232]
V_PWA = [1, 76, 77]
V_FX = 79
V_FL = 80
S_FR = 64
V_OWN = 84
V_OWR = 85
OWN_LDS = 40 * 1024
F5_OFF = 32768
S_W0B = 12

from k12 import Gap, emit_gaps, slots_of, fill_valu

def emit_ops(p, ops):
    for op in ops:
        if isinstance(op, tuple):
            for t in op[1]: p(t)
            p(op[2][0], op[2][1])
        else: p(op)

def annotate(ops):
    out = []; cur = []
    for sal, (txt, tag) in ops:
        if sal: cur = list(sal)
        out.append((sal, (txt + " ; need[" + "|".join(cur) + "]", tag)))
    return out

def check_needs(items):
    last = {}; bad = 0
    for it in items:
        if not isinstance(it, Ins): continue
        if "; need[" in it.text:
            for t in it.text.split("; need[")[1].rstrip("]").split("|"):
                if not t: continue
                d = Ins(t).wr[0]
                if last.get(d) != t:
                    bad += 1; print("NEEDCHECK:", it.text, "<- last writer", last.get(d))
        if it.kind == "salu":
            for r in it.wr: last[r] = it.text
    return bad

def gen_mega():
    pro = Prog(); p = pro
    stubs = []
    def poll_check(val, name):
        stubs.append(name)
        return ([f"v_and_b32 v{V_PT}, 0xffffff87, v{V_PT}", f"v_subrev_u32 v{V_PT}, s{S_PV}, v{V_PT}", f"v_cmp_le_u32 vcc, {8-val}, v{V_PT}"],
                [f"s_add_u32 s{S_PV}, s{S_EP}, {val}", f"s_cbranch_vccnz L_stub_{name}", Label(f"L_ret_{name}")])
    poll_load = lambda tag: (f"buffer_load_dword v{V_PT}, v{V_PA}, s[{S_WS}:{S_WS+3}], s{S_FO} offen sc1", tag)
    sig_store = f"buffer_store_dword v{V_SV}, v{V_SA}, s[{S_WS}:{S_WS+3}], s{S_FO} offen sc1"
    sig_val = lambda val: f"v_add_u32 v{V_SV}, {val}, v{V_EP}"

    p("s_cmp_ge_u32 s2, 256"); p("s_cbranch_scc1 L_done")
    stamp_rt(p, 20); stamp(p, 0)
    p(f"s_load_dwordx2 s[{S_XI}:{S_XI+1}], s[0:1], {ARG['x']}")
    p(f"s_load_dwordx2 s[{S_WQ}:{S_WQ+1}], s[0:1], {ARG['wq']}")
    p(f"s_load_dwordx4 s[68:71], s[0:1], {ARG['dbg']}")
    p(f"s_load_dwordx4 s[72:75], s[0:1], {ARG['wg']}")
    p(f"s_load_dwordx4 s[64:67], s[0:1], {ARG['k']}")
    p("v_lshrrev_b32 v16, 6, v0"); p("v_and_b32 v17, 63, v0")
    p(f"v_readfirstlane_b32 s{S_WAVE}, v16")
    p(f"s_and_b32 s{S_T0}, s2, 7"); p(f"s_lshr_b32 s{S_T1}, s2, 3")
    p(f"s_and_b32 s{S_RB}, s{S_T1}, 3"); p(f"s_lshr_b32 s{S_T1}, s{S_T1}, 2")
    p(f"s_and_b32 s{S_T2}, s{S_T0}, 1"); p(f"s_lshl_b32 s{S_T2}, s{S_T2}, 2"); p(f"s_add_u32 s{S_RB}, s{S_RB}, s{S_T2}")
    p(f"s_lshr_b32 s{S_T0}, s{S_T0}, 1"); p(f"s_lshl_b32 s{S_J}, s{S_T0}, 3"); p(f"s_add_u32 s{S_J}, s{S_J}, s{S_T1}")
    p("v_lshrrev_b32 v18, 5, v17"); p("v_and_b32 v19, 31, v17")
    p(f"s_lshl_b32 s{S_T0}, s{S_RB}, 8"); p(f"s_lshl_b32 s{S_T1}, s{S_J}, 3"); p(f"s_add_u32 s{S_T0}, s{S_T0}, s{S_T1}")
    p(f"s_lshl_b32 s{S_T1}, s{S_WAVE}, 1"); p(f"s_add_u32 s{S_T0}, s{S_T0}, s{S_T1}"); p(f"s_mul_i32 s{S_T0}, s{S_T0}, 1152")
    p("v_mul_u32_u24 v20, 1152, v18"); p("v_lshl_add_u32 v20, v19, 4, v20")
    p(f"s_mov_b32 s{S_XI+2}, {XN_BYTES}"); p(f"s_mov_b32 s{S_XI+3}, 0x20000")
    p(f"s_mov_b32 s{S_WQ+2}, {576*8192}"); p(f"s_mov_b32 s{S_WQ+3}, 0x20000")
    p(f"v_lshlrev_b32 v{V_L16}, 4, v17")
    p("v_cmp_gt_u32 vcc, 24, v19")
    p("s_waitcnt lgkmcnt(0)")
    LX = 96
    srd(p, S_DBG, 68, 256)
    p(f"s_lshl_b32 s{S_T1}, s2, 2"); p(f"s_add_u32 s{S_T1}, s{S_T1}, s{S_WAVE}"); p(f"s_cmp_lg_u32 s{S_T1}, 0"); p("s_cbranch_scc1 L_noleader")
    p("s_memrealtime s[76:77]"); p("v_mov_b32 v31, 0"); p("s_waitcnt lgkmcnt(0)")
    p("s_lshl_b32 s76, s76, 8"); p("s_or_b32 s76, s76, 128"); p("v_mov_b32 v30, s76")
    p(f"buffer_store_dword v30, v31, s[{S_DBG}:{S_DBG+3}], 0 offen sc1")
    p.label("L_noleader")
    for m in range(3):
        p(f"buffer_load_dwordx4 v[{LX+4*m}:{LX+4*m+3}], v20, s[{S_XI}:{S_XI+3}], s{S_T0} offen offset:{m*384}{NTX}", "LX")
    p(f"s_mov_b64 s[{S_RET}:{S_RET+1}], vcc")
    p("v_lshrrev_b32 v20, 4, v17"); p("v_and_b32 v22, 15, v17")
    p("v_lshlrev_b32 v23, 2, v20"); p("v_xor_b32 v23, v23, v22"); p("v_lshlrev_b32 v24, 13, v20"); p(f"v_lshl_add_u32 v{V_WQ}, v23, 4, v24")
    p(f"s_mul_i32 s{S_W6K}, s{S_WAVE}, 6144")
    p(f"s_mul_i32 s{S_BQ}, s{S_WAVE}, {24*8192}"); p(f"s_lshl_b32 s{S_T0}, s{S_J}, 8"); p(f"s_add_u32 s{S_BQ}, s{S_BQ}, s{S_T0}")

    stages = [("q", 0, sub, 0) for sub in range(6)] + [("h", 0, sub, 0) for sub in range(3)]
    for t in range(4): stages += [("f", t, sub, (t + 1) % 2) for sub in range(3)]
    NST = len(stages)
    tmpsel = [0]
    def tmp():
        tmpsel[0] ^= 1
        return (S_T0, S_T1)[tmpsel[0]]
    def w_dma(st):
        kind, t, sub, buf = stages[st]; slot = st % 4
        ops = []
        if kind == "q":
            for i in range(6):
                tm = tmp()
                sal = [f"s_add_u32 s{tm}, s{S_BQ}, {(sub * 96 + 4 * i) * 8192}", f"s_add_u32 m0, s{S_W6K}, {WSLOT[slot] + i*1024}"]
                ops.append((sal, (f"buffer_load_dwordx4 v{V_WQ}, s[{S_WQ}:{S_WQ+3}], s{tm} offen{NTQ} lds", f"W{st}")))
            return annotate(ops)
        for reg in range(2):
            for i in range(3):
                base, srdn = (S_BH if kind == "h" else S_BF), (S_WG, S_WU)[reg]
                imm = (sub * 192 + 16 * i) * 9216 + t * 64
                tm = tmp()
                sal = [f"s_add_u32 s{tm}, s{base}, {imm}", f"s_add_u32 m0, s{S_W3K}, {WSLOT[slot] + reg*12288 + i*1024}"]
                ops.append((sal, (f"buffer_load_dwordx4 v{V_WF}, s[{srdn}:{srdn+3}], s{tm} offen{NTW} lds", f"W{st}")))
        return annotate(ops)
    def x_loads(k0, k1):
        ops = []
        for ks in range(k0, k1):
            for mt in range(4):
                ops.append(([f"s_add_u32 s{S_RD}, s{S_XB}, {ks*4096}"] if mt == 0 else [],
                            (f"buffer_load_dwordx4 {xreg(ks, mt)}, v{V_L16}, s[{S_WS}:{S_WS+3}], s{S_RD} offen offset:{mt*1024} sc1", f"X{ks//3}")))
        return annotate(ops)
    def kv_dma(which, tile_slot, soff, add):
        ops = []
        for t in range(4):
            tm = tmp()
            base = (0 if which == "K" else 65536) + tile_slot * 16384 + t * 4096
            srdn = S_K if which == "K" else S_V
            if soff is None: sal = [f"s_mov_b32 s{tm}, {add + t*4096}"]
            else: sal = [f"s_add_u32 s{tm}, s{soff}, {add + t*4096}"]
            sal.append(f"s_add_u32 m0, s{S_W1K}, {base}")
            ops.append((sal, (f"buffer_load_dwordx4 v{V_KD if which == 'K' else V_VD}, s[{srdn}:{srdn+3}], s{tm} offen{NTKV} lds", f"{which}{tile_slot}")))
        return annotate(ops)
    def issue(ops):
        for sal, op in ops:
            for s in reversed(sal): p(s)
            p(op[0], op[1])
    p(f"s_getpc_b64 s[{S_K}:{S_K+1}]")
    p.label("L_pc0")
    p(f"s_and_b32 s{S_K+1}, s{S_K+1}, 0xffff"); p(f"s_mov_b32 s{S_K+2}, L_code_end-L_pc0"); p(f"s_mov_b32 s{S_K+3}, 0x20000")
    p(f"s_lshr_b32 s{S_T0}, s2, 3"); p(f"s_lshl_b32 s{S_T0}, s{S_T0}, 2"); p(f"s_add_u32 s{S_T0}, s{S_T0}, s{S_WAVE}"); p(f"s_lshl_b32 s{S_T0}, s{S_T0}, 10")
    p(f"buffer_load_dwordx4 v[160:163], v{V_L16}, s[{S_K}:{S_K+3}], s{S_T0} offen", "CODE")
    issue(w_dma(0)); issue(w_dma(1))
    if 'hiws' in ABL:
        p(f"s_add_u32 s70, s70, {128<<20}"); p("s_addc_u32 s71, s71, 0")
    srd(p, S_WS, 70, WS_BYTES)
    srd(p, S_WG, 72, 576 * 9216); srd(p, S_WU, 74, 576 * 9216)
    if 'qtouch' in ABL:
        p(f"s_cmp_eq_u32 s{S_WAVE}, 0"); p("s_cbranch_scc1 L_notouch")
        p(f"s_lshr_b32 s{S_T0}, s2, 3"); p(f"s_mul_i32 s{S_T0}, s{S_T0}, 3"); p(f"s_add_u32 s{S_T0}, s{S_T0}, s{S_WAVE}"); p(f"s_sub_u32 s{S_T0}, s{S_T0}, 1")
        p("v_min_u32 v26, 2, v20"); p("v_lshlrev_b32 v26, 13, v26"); p("v_lshl_add_u32 v26, v22, 7, v26")
        p(f"s_mul_i32 s{S_T0}, s{S_T0}, {3*8192}"); p(f"s_and_b32 s{S_T1}, s{S_J}, 24"); p(f"s_lshl_b32 s{S_T1}, s{S_T1}, 8"); p(f"s_add_u32 s{S_T0}, s{S_T0}, s{S_T1}")
        p(f"s_add_u32 s{S_T1}, s{S_T0}, {288*8192}")
        p.raw(f"    buffer_load_dword v164, v26, s[{S_WQ}:{S_WQ+3}], s{S_T0} offen")
        p.raw(f"    buffer_load_dword v165, v26, s[{S_WQ}:{S_WQ+3}], s{S_T1} offen")
        p.raw("    s_waitcnt vmcnt(15)")
        p("s_branch L_touched")
        p.label("L_notouch")
        p.items.append(WaitFor(vm=("LX",)))
        p.label("L_touched")
    if 'finepro' in ABL: stamp(p, 2)
    F = 112
    p(f"s_mov_b32 s{S_T2}, 0xffff0000")
    for i in range(4): p(f"v_mov_b32 v{140+i}, 0")
    p(f"s_lshl_b32 s{S_T0}, s{S_WAVE}, 5"); p("v_lshlrev_b32 v25, 7, v19"); p("v_lshl_add_u32 v25, v18, 4, v25"); p(f"v_add_u32 v25, s{S_T0}, v25")
    if 'qtouch' not in ABL: p.items.append(WaitFor(vm=("LX",)))
    if 'finepro' in ABL: stamp(p, 3)
    for i in range(12):
        p(f"v_lshlrev_b32 v{F+2*i}, 16, v{LX+i}"); p(f"v_and_b32 v{F+2*i+1}, s{S_T2}, v{LX+i}")
    p(f"s_mov_b64 exec, s[{S_RET}:{S_RET+1}]")
    for e in range(24): p(f"v_add_f32 v{140+e%2}, v{140+e%2}, v{F+e}")
    p("s_mov_b64 exec, -1")
    def reduce32(r, t):
        p(f"v_add_f32 v{r}, v{r}, v{r+1}")
        for mod in ("quad_perm:[1,0,3,2]", "quad_perm:[2,3,0,1]", "row_half_mirror", "row_mirror"):
            p(f"v_add_f32_dpp v{r}, v{r}, v{r} {mod} row_mask:0xf bank_mask:0xf")
        p(f"v_mov_b32 v{t}, v{r}"); p(f"v_permlane16_swap_b32 v{r}, v{t}"); p(f"v_add_f32 v{r}, v{r}, v{t}")
    reduce32(140, 141)
    p(f"v_mul_f32 v140, {f2u(1.0/576)}, v140")
    p(f"s_mov_b64 exec, s[{S_RET}:{S_RET+1}]")
    for e in range(24):
        t = 144 + (e % 4)
        p(f"v_sub_f32 v{t}, v{F+e}, v140"); p(f"v_fmac_f32 v{142+e%2}, v{t}, v{t}")
    p("s_mov_b64 exec, -1")
    reduce32(142, 143)
    p(f"v_mul_f32 v142, {f2u(1.0/576)}, v142")
    def rnd(r):
        p(f"v_cvt_pk_bf16_f32 v{r}, v{r}, v{r}"); p(f"v_and_b32 v{r}, s{S_T2}, v{r}")
    rnd(142); rnd(140)
    p(f"v_add_f32 v142, {f2u(1e-5)}, v142"); rnd(142)
    p("v_sqrt_f32 v142, v142")
    for e in range(24): p(f"v_sub_f32 v{F+e}, v{F+e}, v140")
    rnd(142)
    p("v_rcp_f32 v143, v142")
    for i in range(12): p(f"v_cvt_pk_bf16_f32 v{F+2*i+1}, v{F+2*i}, v{F+2*i+1}")
    p("v_fma_f32 v144, -v142, v143, 1.0"); p("v_fmac_f32 v143, v144, v143")
    for i in range(12):
        p(f"v_lshlrev_b32 v{F+2*i}, 16, v{F+2*i+1}"); p(f"v_and_b32 v{F+2*i+1}, s{S_T2}, v{F+2*i+1}")
    for e in range(24): p(f"v_mul_f32 v{F+e}, v{F+e}, v143")
    for i in range(12): p(f"v_cvt_pk_bf16_f32 v{LX+i}, v{F+2*i}, v{F+2*i+1}")
    p(f"s_mov_b64 exec, s[{S_RET}:{S_RET+1}]")
    for m in range(3): p(f"ds_write_b128 v25, v[{LX+4*m}:{LX+4*m+3}] offset:{m*24*128}")
    p("s_mov_b64 exec, -1")
    p("v_lshrrev_b32 v26, 3, v17"); p("v_and_b32 v27, 3, v26"); p("v_lshrrev_b32 v26, 2, v26"); p("v_and_b32 v28, 7, v17")
    p("v_lshl_add_u32 v27, v27, 4, v28"); p("v_lshlrev_b32 v27, 4, v27"); p("v_lshl_add_u32 v26, v26, 12, v27")
    p(f"s_lshl_b32 s{S_T0}, s{S_RB}, 2"); p(f"s_lshr_b32 s{S_T1}, s{S_J}, 3"); p(f"s_add_u32 s{S_T0}, s{S_T0}, s{S_T1}"); p(f"s_mul_i32 s{S_T0}, s{S_T0}, 73728")
    p(f"s_and_b32 s{S_T1}, s{S_J}, 6"); p(f"s_lshl_b32 s{S_T1}, s{S_T1}, 9"); p(f"s_add_u32 s{S_T0}, s{S_T0}, s{S_T1}")
    p(f"s_and_b32 s{S_T1}, s{S_J}, 1"); p(f"s_lshl_b32 s{S_T1}, s{S_T1}, 7"); p(f"s_add_u32 s{S_T0}, s{S_T0}, s{S_T1}")
    p(f"s_lshl_b32 s{S_W1K}, s{S_WAVE}, 10")
    p("s_waitcnt lgkmcnt(0)"); p("s_barrier")
    p(f"s_cmp_lg_u32 s{S_WAVE}, 0"); p("s_cbranch_scc1 L_noxs")
    for m in range(9): p(f"ds_read_b128 v[{LX+4*m}:{LX+4*m+3}], v{V_L16} offset:{m*1024}")
    for m in range(9):
        p(f"s_waitcnt lgkmcnt({8-m})")
        p(f"buffer_store_dwordx4 v[{LX+4*m}:{LX+4*m+3}], v26, s[{S_WS}:{S_WS+3}], s{S_T0} offen sc1", "XS")
        if m < 8: p(f"s_add_u32 s{S_T0}, s{S_T0}, 8192")
    p.label("L_noxs")
    assert XN_OFF == 0
    if 'finepro' in ABL: stamp(p, 4)
    p("v_lshrrev_b32 v18, 2, v17"); p("v_and_b32 v19, 3, v17"); p("v_and_b32 v21, 3, v18")
    p("v_mov_b32 v31, 0")
    p(f"buffer_load_dword v29, v31, s[{S_DBG}:{S_DBG+3}], 0 offen sc1", "EP")
    p(f"s_mov_b32 s{S_FO}, {FLAG_OFF}")
    p(f"s_getreg_b32 s{S_XCC}, hwreg(HW_REG_XCC_ID, 0, 4)"); p(f"s_lshl_b32 s{S_XCC}, s{S_XCC}, 3")
    p(f"s_lshl_b32 s{S_T0}, s{S_RB}, 11"); p(f"s_lshr_b32 s{S_T1}, s{S_J}, 3"); p(f"s_lshl_b32 s{S_T1}, s{S_T1}, 9"); p(f"s_add_u32 s{S_T1}, s{S_T1}, s{S_T0}")
    p(f"s_and_b32 s{S_T2}, s{S_J}, 7"); p(f"s_lshl_b32 s{S_T2}, s{S_T2}, 2"); p(f"s_add_u32 s{S_T1}, s{S_T1}, s{S_T2}")
    p(f"s_cmp_eq_u32 s{S_WAVE}, 0"); p(f"s_cselect_b32 s{S_T1}, s{S_T1}, {1 << 30}"); p(f"v_mov_b32 v{V_SA}, s{S_T1}")
    p(f"s_lshl_b32 s{S_T1}, s{S_WAVE}, 9"); p(f"s_add_u32 s{S_T0}, s{S_T0}, s{S_T1}"); p(f"v_lshl_add_u32 v30, v28, 2, s{S_T0}")
    p(f"s_lshl_b32 s{S_T0}, s{S_RB}, 2"); p(f"s_add_u32 s{S_T0}, s{S_T0}, s{S_WAVE}")
    p(f"s_mul_i32 s{S_XB}, s{S_T0}, 73728"); p(f"s_lshl_b32 s{S_OBASE}, s{S_T0}, 14")
    p("v_lshl_add_u32 v23, v20, 3, v21"); p("v_lshlrev_b32 v24, 8, v23"); p("v_lshl_add_u32 v24, v19, 4, v24"); p(f"v_add_u32 v24, {40*1024}, v24")
    for sg_ in range(4):
        p(f"v_xor_b32 v25, {sg_}, v21"); p(f"v_lshl_add_u32 v{V_RQ+sg_}, v25, 6, v24"); p(f"v_add_u32 v{V_RQ+4+sg_}, {64*1024}, v{V_RQ+sg_}")
    p(f"s_mov_b32 s{S_SPIN}, 0x40000")
    p.label("L_eppoll")
    p("s_waitcnt vmcnt(0)")
    p(f"v_readfirstlane_b32 s{S_EP}, v29")
    p(f"s_cmp_lg_u32 s{S_EP}, 0"); p("s_cbranch_scc1 L_epok")
    p(f"buffer_load_dword v29, v31, s[{S_DBG}:{S_DBG+3}], 0 offen sc1")
    p(f"s_sub_u32 s{S_SPIN}, s{S_SPIN}, 1"); p(f"s_cmp_lg_u32 s{S_SPIN}, 0"); p("s_cbranch_scc1 L_eppoll")
    p("s_waitcnt vmcnt(0)")
    p.label("L_epok")
    p("v_add_u32 v31, 1, v29"); p(f"v_add_u32 v29, s{S_XCC}, v31")
    p(f"buffer_store_dword v29, v{V_SA}, s[{S_WS}:{S_WS+3}], s{S_FO} offen sc1")
    if 'finepro' in ABL: stamp(p, 5)
    p("v_lshlrev_b32 v23, 6, v23")
    p("v_and_b32 v24, 1, v20"); p("v_lshlrev_b32 v24, 5, v24")
    p("v_lshl_add_u32 v25, v19, 3, v23")
    p(f"v_add_u32 v{V_RA}, v25, v24"); p(f"v_add_u32 v{V_RA}, {40*1024}, v{V_RA}")
    p(f"v_xor_b32 v{V_RA+1}, 32, v{V_RA}")
    p(f"v_add_u32 v{V_RA+2}, {64*1024}, v{V_RA}"); p(f"v_add_u32 v{V_RA+3}, {64*1024}, v{V_RA+1}")
    p(f"s_and_b32 s{S_T2}, s{S_J}, 1"); p(f"s_lshl_b32 s{S_T0}, s{S_T2}, 5")
    p(f"v_xor_b32 v{V_RH}, s{S_T0}, v{V_RA}"); p(f"v_add_u32 v{V_RH+1}, {64*1024}, v{V_RH}")
    p("v_lshrrev_b32 v23, 5, v17"); p("v_lshlrev_b32 v23, 1, v23"); p("v_xor_b32 v23, v23, v19")
    p(f"v_mul_u32_u24 v24, 9216, v18"); p(f"v_lshl_add_u32 v{V_WF}, v23, 4, v24")
    p(f"v_mov_b32 v{V_C1}, {f2u(GC1)}"); p(f"v_mov_b32 v{V_C2}, {f2u(GC2)}")
    p(f"s_mul_i32 s{S_W3K}, s{S_WAVE}, 3072")
    p(f"s_mul_i32 s{S_BH}, s{S_WAVE}, {48*9216}")
    p(f"s_mul_i32 s{S_RS}, s{S_J}, 288"); p(f"s_add_u32 s{S_RS}, s{S_RS}, s{S_T0}")
    p(f"s_add_u32 s{S_BF}, s{S_BH}, s{S_RS}")
    p(f"s_lshr_b32 s{S_T0}, s{S_J}, 1"); p(f"s_lshl_b32 s{S_T0}, s{S_T0}, 19")
    for d, b in ((S_K, 64), (S_V, 66)):
        p(f"s_add_u32 s{d}, s{b}, s{S_T0}"); p(f"s_addc_u32 s{d+1}, s{b+1}, 0"); p(f"s_mov_b32 s{d+2}, 524288"); p(f"s_mov_b32 s{d+3}, 0x20000")
    p(f"s_lshr_b32 s{S_T0}, s{S_J}, 1"); p(f"s_mul_i32 s{S_KOFF}, s{S_T0}, 576"); p(f"s_add_u32 s{S_KOFF}, s{S_KOFF}, 256")
    p(f"s_add_u32 s{S_BH}, s{S_BH}, s{S_KOFF}")
    def hoff(dst, colreg, add):
        p(f"s_lshr_b32 s{S_T0}, s{colreg}, 6"); p(f"s_add_u32 s{S_T0}, s{S_T0}, {add}")
        p(f"s_lshr_b32 s{S_T1}, s{S_T0}, 2"); p(f"s_lshl_b32 s{S_T1}, s{S_T1}, 19")
        p(f"s_and_b32 s{S_T0}, s{S_T0}, 3"); p(f"s_lshl_b32 s{S_T0}, s{S_T0}, 10")
        p(f"s_add_u32 s{dst}, s{S_T0}, s{S_T1}"); p(f"s_add_u32 s{dst}, s{dst}, s{S_OBASE}")
    hoff(S_HHALF, S_KOFF, 0); p(f"s_lshl_b32 s{S_T0}, s{S_T2}, 3"); p(f"s_add_u32 s{S_HHALF}, s{S_HHALF}, s{S_T0}")
    for t in range(4): hoff(S_HF + t, S_RS, t)
    p(f"s_lshl_b32 s{S_T0}, s{S_J}, 19"); p(f"s_add_u32 s{S_OBASE}, s{S_OBASE}, s{S_T0}")
    p(f"s_mov_b32 s{S_THR}, {f2u(THRESH)}")
    p(f"s_lshl_b32 s{S_T0}, s{S_WAVE}, 2"); p(f"v_add_u32 v23, s{S_T0}, v20")
    p(f"v_xor_b32 v24, v22, v23"); p(f"v_lshlrev_b32 v24, 4, v24"); p(f"v_lshl_add_u32 v{V_KD}, v23, 8, v24")
    p(f"v_and_b32 v24, 7, v23"); p(f"v_lshlrev_b32 v24, 1, v24"); p(f"v_xor_b32 v24, v22, v24"); p(f"v_lshlrev_b32 v24, 4, v24"); p(f"v_lshl_add_u32 v{V_VD}, v23, 8, v24")
    for ks in range(4):
        p(f"v_add_u32 v23, {4*ks}, v20"); p("v_xor_b32 v23, v23, v22"); p("v_lshlrev_b32 v23, 4, v23"); p(f"v_lshl_add_u32 v{V_KA+ks}, v22, 8, v23")
    p("v_and_b32 v24, 7, v18"); p("v_lshlrev_b32 v25, 8, v18"); p("v_lshl_add_u32 v25, v19, 3, v25"); p("v_add_u32 v25, 0x10000, v25")
    for dt in range(8):
        p(f"v_xor_b32 v23, {dt}, v24"); p(f"v_lshl_add_u32 v{V_VA+dt}, v23, 5, v25")
    p(f"s_lshl_b32 s{S_T0}, s{S_WAVE}, 14"); p(f"s_cmp_eq_u32 s{S_WAVE}, 2"); p(f"s_cselect_b32 s{S_T0}, 0x10000, s{S_T0}")
    p(f"s_add_u32 s{S_T1}, s{S_T0}, 8192"); p(f"s_cmp_eq_u32 s{S_WAVE}, 3"); p(f"s_cselect_b32 s{S_T0}, 0x8000, s{S_T0}"); p(f"s_cselect_b32 s{S_T1}, {152*1024}, s{S_T1}")
    p(f"v_add_u32 v{V_QP}, s{S_T0}, v{V_L16}"); p(f"v_add_u32 v{V_QP+1}, s{S_T1}, v{V_L16}")
    p(f"s_and_b32 s{S_T0}, s{S_WAVE}, 1"); p(f"s_cmp_eq_u32 s{S_T0}, 0")
    p(f"s_cselect_b32 s64, s{S_WG}, s{S_WU}"); p(f"s_cselect_b32 s65, s{S_WG+1}, s{S_WU+1}"); p(f"s_mov_b32 s66, {576*9216}"); p("s_mov_b32 s67, 0x20000")
    p(f"s_lshr_b32 s{S_T0}, s2, 3"); p(f"s_lshl_b32 s{S_T0}, s{S_T0}, 1"); p(f"s_lshr_b32 s{S_T1}, s{S_WAVE}, 1"); p(f"s_add_u32 s{S_T0}, s{S_T0}, s{S_T1}"); p(f"s_mul_i32 s{S_T0}, s{S_T0}, 27")
    p(f"v_min_u32 v23, 26, v17"); p(f"v_add_u32 v23, s{S_T0}, v23"); p("v_mul_u32_u24 v24, 3641, v23"); p("v_lshrrev_b32 v24, 16, v24")
    p(f"v_mul_u32_u24 v24, {9216 - 18*128}, v24"); p("v_lshl_add_u32 v24, v23, 7, v24")
    p(f"s_lshr_b32 s{S_T0}, s{S_J}, 3"); p(f"s_mul_i32 s{S_T0}, s{S_T0}, 2304"); p(f"v_add_u32 v{V_HO+7}, s{S_T0}, v24")
    p(f"s_mov_b32 s{S_SPIN}, 0x40000")
    p.label("L_xpoll")
    p(f"buffer_load_dword v29, v30, s[{S_WS}:{S_WS+3}], s{S_FO} offen sc1")
    p("s_waitcnt vmcnt(0)")
    p("v_and_b32 v29, 0xffffff87, v29"); p("v_sub_u32 v29, v29, v31"); p("v_cmp_le_u32 vcc, 7, v29")
    p("s_cbranch_vccz L_xready")
    p(f"s_sub_u32 s{S_SPIN}, s{S_SPIN}, 1"); p("s_sleep 1"); p(f"s_cmp_lg_u32 s{S_SPIN}, 0"); p("s_cbranch_scc1 L_xpoll")
    p.label("L_xready")
    if 'finepro' in ABL: stamp(p, 6)

    groups = []
    for st in range(NST):
        kind, t, sub, buf = stages[st]
        if kind == "q":
            for nt in range(8): groups.append((st, nt, 0))
        else:
            nts = [0, 2] if kind == "h" else [0, 1, 2, 3]
            for c0 in (0, 3):
                for nt in nts: groups.append((st, nt, c0))
    def a_reads(gi):
        st, nt, c0 = groups[gi]; kind, t, sub, buf = stages[st]
        hb, off = wbase(st % 4)
        out = []
        for c in range(3):
            for tt in range(2):
                d = V_AF + (gi % 3) * 12 + c * 4 + 2 * tt
                if kind == "q":
                    addr = V_RQ + 4 * hb + (nt >> 1); o = off + c * 8192 + tt * 1024 + 8 * (nt & 1)
                else:
                    addr = (V_RA + 2 * hb + (nt & 1)) if kind == "f" else (V_RH + hb)
                    o = off + (nt >> 1) * 12288 + (c0 + c) * 2048 + tt * 256
                out.append((f"ds_read_b64_tr_b16 v[{d}:{d+1}], v{addr} offset:{o}", f"A{gi%3}"))
        return out
    acc = lambda buf, nt, mt: V_ACC + buf * 64 + (nt * 4 + mt) * 4
    gaps = []; gstart = []
    for gi, (st, nt, c0) in enumerate(groups):
        gstart.append(len(gaps))
        kind, t, sub, buf = stages[st]
        for mt in range(4):
            for c in range(3):
                a = acc(buf, nt, mt); af = V_AF + (gi % 3) * 12 + c * 4
                ks = (sub * 3 if kind == "q" else sub * 6 + c0) + c
                C = "0" if ks == 0 else f"v[{a}:{a+3}]"
                gaps.append(Gap(f"v_mfma_f32_16x16x32_bf16 v[{a}:{a+3}], v[{af}:{af+3}], {xreg(ks, mt)}, {C}"))
    NG = len(groups)
    first_of_stage = {}
    for gi, (st, nt, c0) in enumerate(groups): first_of_stage.setdefault(st, gi)
    bar_gap = {}
    for gi in range(2, NG):
        st = groups[gi][0]; f = first_of_stage[st]
        rd = a_reads(gi)
        if gi == f:
            g0 = gstart[gi - 1]; bar_gap[st] = g0 - 1
            for n, r in enumerate(rd): gaps[g0 + n].mem.append(r)
        elif gi == f + 1:
            g0 = gstart[gi - 2]
            for n, r in enumerate(rd): gaps[g0 + 6 + n].mem.append(r)
        else:
            g0 = gstart[gi - 2]
            for n, r in enumerate(rd): gaps[g0 + 2 * n].mem.append(r)
    for gi in range(1, NG):
        g = gaps[gstart[gi] - 1]
        st, nt, c0 = groups[gi]
        vm = []
        if st < 6 and nt == 0: vm.append(f"X{st}")
        nxt = groups[gi + 1][0] if gi + 1 < NG else None
        if nxt is not None and nxt != st:
            g.sh.append(WaitFor(vm=vm + [f"W{nxt}"], lg0=True)); g.sh.append("s_barrier")
        else:
            g.sh.append(WaitFor(lg=(f"A{gi%3}",), vm=vm))
    def place_mem(gaps, ops, g0, g1, dense=False, want=0):
        pitch = max(1.0, (g1 - g0 - 8) / len(ops)) if not dense else 1.0
        last = g0
        for n, (sal, op) in enumerate(ops):
            g = max(last + 1 + len(sal), int(g0 + 2 + n * pitch))
            while True:
                assert g < g1, (g0, g1, n, len(ops))
                ok = (len(gaps[g].mem) <= 1 if dense else len(gaps[g].mem) == want) and all(len(gaps[g - len(sal) + i].sh) == 0 for i in range(len(sal)))
                if ok: break
                g += 1
            for i, s in enumerate(sal): gaps[g - len(sal) + i].sh.append(s)
            gaps[g].mem.append(op); last = g
    for st in range(NST):
        g0 = gstart[first_of_stage[st]]
        g1 = bar_gap[st + 1] if st + 1 < NST else len(gaps)
        ops = []
        if st == 0: ops = w_dma(2) + x_loads(6, 9) + w_dma(3)
        elif st == 1: ops = x_loads(9, 12) + w_dma(4)
        elif st == 2: ops = x_loads(12, 15) + w_dma(5)
        elif st == 3: ops = x_loads(15, 18) + w_dma(6)
        elif st + 3 < NST: ops = w_dma(st + 3)
        if st < 5 and 'gutouch' in ABL:
            for bt in ([st] if st else [0]) + ([5] if st == 4 else []):
                tm = tmp()
                ops = ops + [([f"s_mov_b32 s{tm}, {bt*96*9216}"], (f"buffer_load_dword v{V_HO+bt}, v{V_HO+7}, s[64:67], s{tm} offen", "TCH"))]
        if st == 18: ops += kv_dma("V", VS(0), None, 0)
        if st == 19: ops += kv_dma("K", KS(0), None, 0)
        if st == 20: ops += kv_dma("K", KS(1), None, 16384) + kv_dma("V", VS(1), None, 16384) + kv_dma("K", KS(2), None, 32768)
        if ops: place_mem(gaps, ops, g0, g1 if st < 20 else g0 + 60)
        if st == 19:
            cand = [g for g in range(g0 + 3, g1 - 2) if not gaps[g].mem][::2]
            assert len(cand) >= 16
            for f, g in enumerate(cand[:16]):
                gaps[g].mem.append((f"ds_read_b128 a[{A_Q+4*f}:{A_Q+4*f+3}], v{V_QP + f//8} offset:{(f%8)*1024}", "QR"))
    def ffn_epi(st0):
        kind, t, sub, buf = stages[st0]
        q = []
        for mt in range(4):
            if kind == "f": el = [(acc(buf, n, mt) + r, acc(buf, 2 + n, mt) + r) for n in range(2) for r in range(4)]
            else: el = [(acc(buf, 0, mt) + r, acc(buf, 2, mt) + r) for r in range(4)]
            T = V_T + 8 * (mt % 2)
            for e, (g, u) in enumerate(el): q.append(f"v_mul_f32 v{T+e}, v{g}, v{g}")
            for e, (g, u) in enumerate(el): q.append(f"v_fma_f32 v{T+e}, v{T+e}, v{V_C2}, v{V_C1}")
            for e, (g, u) in enumerate(el): q.append(f"v_mul_f32 v{T+e}, v{T+e}, v{g}")
            for e, (g, u) in enumerate(el):
                q.append(f"v_exp_f32 v{T+e}, v{T+e}"); q.append(f"v_mul_f32 v{g}, v{g}, v{u}")
            for e, (g, u) in enumerate(el): q.append(f"v_add_f32 v{T+e}, 1.0, v{T+e}")
            for e, (g, u) in enumerate(el): q.append(f"v_rcp_f32 v{T+e}, v{T+e}")
            for e, (g, u) in enumerate(el): q.append(f"v_mul_f32 v{g}, v{g}, v{T+e}")
            o = V_HO + 4 * (mt % 2)
            for i in range(len(el) // 2): q.append(f"v_cvt_pk_bf16_f32 v{o+i}, v{el[2*i][0]}, v{el[2*i+1][0]}")
            if kind == "f":
                q.append(("MEM", [f"s_add_u32 s{S_T2}, s{S_HF+t}, {H_OFF + mt*4096}"], (f"buffer_store_dwordx4 v[{o}:{o+3}], v{V_L16}, s[{S_WS}:{S_WS+3}], s{S_T2} offen{SCH}", None)))
            else:
                q.append(("MEM", [f"s_add_u32 s{S_T2}, s{S_HHALF}, {H_OFF + mt*4096}"], (f"buffer_store_dwordx2 v[{o}:{o+1}], v{V_L16}, s[{S_WS}:{S_WS+3}], s{S_T2} offen{SCH}", None)))
        return q
    def q_epi(seg):
        q = []
        for mt in range(4):
            rs = [acc(0, 2 * seg, mt) + r for r in range(4)] + [acc(0, 2 * seg + 1, mt) + r for r in range(4)]
            o = V_T + 4 * ((seg * 4 + mt) % 4)
            for r in rs: q.append(f"v_mul_f32 v{r}, {f2u(QSCALE)}, v{r}")
            for i in range(4): q.append(f"v_cvt_pk_bf16_f32 v{o+i}, v{rs[2*i]}, v{rs[2*i+1]}")
            f = mt * 4 + seg
            q.append(("MEM", [], (f"ds_write_b128 v{V_QP + f//8}, v[{o}:{o+3}] offset:{(f%8)*1024}", None)))
        return q
    sg = lambda st: gstart[first_of_stage[st]]
    f5 = first_of_stage[5]
    q = []; mins = []
    for seg in range(4):
        e_ = q_epi(seg); q += e_; mins += [gstart[f5 + 2 * seg + 2] + 3] * len(e_)
    left = fill_valu(gaps[:sg(9) - 3], gstart[f5 + 2] + 3, q, mins=mins); assert not left, len(left)
    for seg, lim_ in ((0, sg(6) - 3), (1, sg(6) + 9)):
        cv_ = [x for x in q_epi(seg) if isinstance(x, str)]
        lastg = max(gi for gi, g in enumerate(gaps) for x in g.valu if x in cv_ and gi < sg(9))
        assert lastg < lim_, (seg, lastg, lim_)
    for st0 in (6, 9, 12, 15):
        end = sg(st0 + 6) - 3 if st0 + 6 < NST else len(gaps)
        left = fill_valu(gaps[:end], sg(st0 + 3) + 3, ffn_epi(st0)); assert not left, (st0, len(left))
    zq = fill_valu(gaps, sg(20) + 3, [f"v_accvgpr_write_b32 a{A_O+i}, 0" for i in range(64)])
    zq += [f"v_accvgpr_write_b32 a{A_O+64+i}, 0" for i in range(64)]
    issue(x_loads(0, 3))
    p("s_barrier")
    for t, tag in a_reads(0) + a_reads(1): p(t, tag)
    issue(x_loads(3, 6))
    p.items.append(WaitFor(lg=("A0",), vm=("X0",)))
    stamp(p, 1)
    if 'finepro' in ABL:
        gaps[sg(1) - 1].post += stamp_ops(7); gaps[sg(2) - 1].post += stamp_ops(8); gaps[sg(3) - 1].post += stamp_ops(9)
    else:
        gaps[sg(6) - 1].post += stamp_ops(2); gaps[sg(12) - 1].post += stamp_ops(3)
    emit_gaps(p, gaps)
    if 'finepro' not in ABL: stamp(p, 4)

    Sreg = lambda par, kt, qt: V_S + (1 - par) * 64 + (kt * 4 + qt) * 4
    Preg = lambda par, kb, qt: (V_P0 + par * 16 + qt * 4) if kb == 0 else (V_P1 + qt * 4)
    Kf = lambda kt, ks: A_KF + (kt % 2) * 16 + ks * 4
    Vf = lambda dt, kb: A_VF + (dt % 4) * 8 + kb * 4
    def k_reads(slot, kt):
        return [(f"ds_read_b128 a[{Kf(kt,ks)}:{Kf(kt,ks)+3}], v{V_KA+ks} offset:{slot*16384 + kt*4096}", f"KF{kt%2}") for ks in range(4)]
    def v_reads(slot, dt):
        return [(f"ds_read_b64_tr_b16 a[{Vf(dt,kb)+2*t}:{Vf(dt,kb)+2*t+1}], v{V_VA+dt} offset:{slot*16384 + kb*8192 + t*4096}", f"VF{dt%4}") for kb in range(2) for t in range(2)]
    def qk_mfma(par, kt, qt, ks, zero=False):
        s = Sreg(par, kt, qt)
        C = f"v[{s}:{s+3}]" if ks else ("0" if zero else f"v[{V_NM+4*qt}:{V_NM+4*qt+3}]")
        qf = A_Q + (qt * 4 + ks) * 4
        return f"v_mfma_f32_16x16x32_bf16 v[{s}:{s+3}], a[{Kf(kt,ks)}:{Kf(kt,ks)+3}], a[{qf}:{qf+3}], {C}"
    def pv_mfma(par, dt, qt, kb):
        o = A_O + (dt * 4 + qt) * 4; pr = Preg(par, kb, qt)
        return f"v_mfma_f32_16x16x32_bf16 a[{o}:{o+3}], a[{Vf(dt,kb)}:{Vf(dt,kb)+3}], v[{pr}:{pr+3}], a[{o}:{o+3}]"
    def l_mfma(par, qt, kb):
        pr = Preg(par, kb, qt)
        return f"v_mfma_f32_16x16x32_bf16 v[{V_LD}:{V_LD+3}], v[{V_ONE}:{V_ONE+3}], v[{pr}:{pr+3}], " + ("0" if kb == 0 else f"v[{V_LD}:{V_LD+3}]")
    def elem(par, tau):
        kb = tau // 32; r = tau % 32; qt = 2 * (r // 16) + ((r % 4) >> 1); j = 2 * ((r % 16) // 4) + (r & 1)
        return Sreg(par, 2 * kb + (j >> 2), qt) + (j & 3), kb, qt, j
    def op_exp(par, tau): return f"v_exp_f32 v{V_E + tau % 8}, v{elem(par, tau)[0]}"
    def op_add(par, tau):
        s, kb, qt, j = elem(par, tau); assert qt % 2 == 1
        src = V_LS + (1 - par) * 4 + qt if (kb == 0 and j == 0) else V_LS + par * 4 + qt
        return f"v_add_f32 v{V_LS + par*4 + qt}, v{src}, v{V_E + tau % 8}"
    def op_ladd(par, qt): return f"v_add_f32 v{V_LS + par*4 + qt}, v{V_LS + (1-par)*4 + qt}, v{V_LD}"
    def op_cvt(par, tau):
        s, kb, qt, j = elem(par, tau); assert tau % 2 == 1
        return f"v_cvt_pk_bf16_f32 v{Preg(par, kb, qt) + j//2}, v{V_E + (tau-1) % 8}, v{V_E + tau % 8}"
    def rowmax(p, par, qt, dst):
        regs = [Sreg(par, kt, qt) + r for kt in range(4) for r in range(4)]
        p(f"v_max3_f32 v{dst}, v{regs[0]}, v{regs[1]}, v{regs[2]}")
        for i in range(3, 15, 2): p(f"v_max3_f32 v{dst}, v{dst}, v{regs[i]}, v{regs[i+1]}")
        p(f"v_max_f32 v{dst}, v{dst}, v{regs[15]}")
    def xlane_ops(op, dsts, t1):
        o = []
        for sw in ("v_permlane32_swap_b32", "v_permlane16_swap_b32"):
            for q, d in enumerate(dsts): o.append(f"v_mov_b32 v{t1+q}, v{d}")
            for q, d in enumerate(dsts): o.append(f"{sw} v{d}, v{t1+q}")
            for q, d in enumerate(dsts): o.append(f"{op} v{d}, v{d}, v{t1+q}")
        return o

    p(f"s_load_dwordx2 s[64:65], s[0:1], {ARG['wo']}"); p(f"s_load_dwordx2 s[66:67], s[0:1], {ARG['wd']}")
    p(f"s_load_dwordx2 s[{S_OUT}:{S_OUT+1}], s[0:1], {ARG['out']}")
    p.items.append(WaitFor(vm=(f"K{KS(0)}",), lg0=True)); p("s_barrier")
    for t, tag in k_reads(KS(0), 0) + k_reads(KS(0), 1): p(t, tag)
    g0 = []
    for kt in range(4):
        for qt in range(4):
            for ks in range(4): g0.append(Gap(qk_mfma(0, kt, qt, ks, zero=True)))
    for n, r in enumerate(k_reads(KS(0), 2)): g0[16 + 2 * n].mem.append(r)
    for n, r in enumerate(k_reads(KS(0), 3)): g0[32 + 2 * n].mem.append(r)
    g0[31].sh.append(WaitFor(lg=("KF0",))); g0[47].sh.append(WaitFor(lg=("KF1",)))
    place_mem(g0, kv_dma("K", KS(3), None, 3 * 16384) + kv_dma("V", VS(2), None, 2 * 16384), 0, 40)
    epi3 = ffn_epi(18) + zq
    npre = 40
    emit_ops(p, epi3[:npre])
    left = fill_valu(g0, 0, epi3[npre:])
    p.items.append(WaitFor(lg=("KF0", "KF1")))
    emit_gaps(p, g0)
    sal = [f"s_mov_b32 s{S_OUT+2}, {XN_BYTES}",
           f"s_and_b32 s{S_T0}, s{S_J}, 7", f"s_lshl_b32 s{S_T1}, s{S_RB}, 3", f"s_add_u32 s{S_T0}, s{S_T0}, s{S_T1}",
           f"s_lshl_b32 s{S_T0}, s{S_T0}, 2", f"s_add_u32 s{S_T0}, s{S_T0}, s{S_WAVE}", f"s_lshr_b32 s{S_KOFF}, s{S_J}, 3",
           f"s_sub_u32 s{S_T1}, s{S_T0}, 120", f"s_cmp_lt_u32 s{S_T0}, 120",
           f"s_cselect_b32 s{S_RE}, s{S_T0}, s{S_T1}", f"s_movk_i32 s{S_RNW}, 136", f"s_cselect_b32 s{S_RNW}, 120, s{S_RNW}",
           f"s_cselect_b32 s{S_WG}, s64, s66", f"s_cselect_b32 s{S_WG+1}, s65, s67",
           f"s_mov_b32 s{S_WG+2}, {1152*1152}", f"s_cselect_b32 s{S_WG+2}, {1024*1152}, s{S_WG+2}", f"s_mov_b32 s{S_WU+2}, s{S_WG+2}",
           f"s_mov_b32 s{S_T0}, {WPD_OFF}", f"s_cselect_b32 s{S_T0}, {WPO_OFF}, s{S_T0}",
           f"s_mul_i32 s{S_T1}, s{S_KOFF}, s{S_WG+2}",
           f"s_add_u32 s{S_WG}, s{S_WG}, s{S_T1}", f"s_addc_u32 s{S_WG+1}, s{S_WG+1}, 0",
           f"s_add_u32 s{S_T0}, s{S_T0}, s{S_T1}", f"s_add_u32 s{S_WU}, s70, s{S_T0}", f"s_addc_u32 s{S_WU+1}, s71, 0",
           f"s_sub_u32 s{S_RE}, s{S_RE}, s{S_RNW}",
           f"s_mov_b32 s{S_KOFF}, {4*16384}", f"s_mov_b32 s{S_VOFF}, {3*16384}", f"s_mov_b32 s{S_CNT}, 7",
           f"s_lshl_b32 s{S_BQ}, s{S_WAVE}, 11", f"s_add_u32 s{S_BQ}, s{S_BQ}, {128*1024}"]
    emit_ops(p, left)
    for t in sal: p(t)
    for q in range(4): p(f"v_mov_b32 v{V_LS+4+q}, 0")
    for q in range(4): p(f"v_mov_b32 v{V_ONE+q}, 0x3f803f80")
    p.items.append(WaitFor(vm=(f"K{KS(1)}", f"V{VS(0)}"))); p("s_barrier")
    for t, tag in k_reads(KS(1), 0) + k_reads(KS(1), 1): p(t, tag)
    p(f"v_lshrrev_b32 v{V_LANE}, 4, v{V_L16}")
    p(f"v_lshrrev_b32 v{V_RPG}, 2, v{V_LANE}"); p(f"v_and_b32 v{V_PT}, 3, v{V_LANE}")
    p(f"v_lshlrev_b32 v{V_RPL}, 6, v{V_RPG}"); p(f"v_lshl_add_u32 v{V_RPL}, v{V_PT}, 3, v{V_RPL}"); p(f"v_add_u32 v{V_RPL}, s{S_BQ}, v{V_RPL}")
    p(f"v_mul_u32_u24 v{V_RPG}, 1152, v{V_RPG}"); p(f"v_lshl_add_u32 v{V_RPG}, v{V_PT}, 4, v{V_RPG}")
    p(f"s_lshl_b32 s{S_T0}, s{S_RB}, 11"); p(f"s_and_b32 s{S_T1}, s{S_J}, 24"); p(f"s_lshl_b32 s{S_T1}, s{S_T1}, 6"); p(f"s_add_u32 s{S_T0}, s{S_T0}, s{S_T1}")
    p(f"v_and_b32 v{V_PT}, 7, v{V_LANE}"); p(f"v_lshl_add_u32 v{V_PA}, v{V_PT}, 2, s{S_T0}")
    p(f"buffer_load_dword v{V_SV}, v{V_PA}, s[{S_WS}:{S_WS+3}], s{S_FO} offen sc1", "GX")
    p(f"v_lshrrev_b32 v{V_PA}, 3, v{V_LANE}"); p(f"v_lshlrev_b32 v{V_PA}, 11, v{V_PA}"); p(f"v_lshl_add_u32 v{V_PA}, v{V_PT}, 2, v{V_PA}")
    p(f"v_add_u32 v{V_PA}, s{S_T1}, v{V_PA}")
    p(f"s_add_u32 s{S_T0}, s{S_EP}, s{S_XCC}"); p(f"v_mov_b32 v{V_EP}, s{S_T0}")
    for qt in range(4): rowmax(p, 0, qt, V_R + qt)
    for t in xlane_ops("v_max_f32", [V_R + q for q in range(4)], V_R + 4): p(t)
    for qt in range(4):
        for r in range(4): p(f"v_sub_f32 v{V_NM+4*qt+r}, {f2u(-BIAS) if BIAS else 0}, v{V_R+qt}")
    for kt in range(4):
        for qt in range(4):
            for r in (0, 2):
                s_ = Sreg(0, kt, qt) + r
                p(f"v_pk_add_f32 v[{s_}:{s_+1}], v[{s_}:{s_+1}], v[{V_NM+4*qt}:{V_NM+4*qt+1}]")
    for tau in range(36):
        p(op_exp(0, tau))
        if tau % 4 == 0 and tau: p(op_add(0, tau - 1)); p(op_cvt(0, tau - 1))
        if tau % 4 == 2: p(op_cvt(0, tau - 1))
        if tau % 4 == 3: p(op_add(0, tau - 1))
    p.items.append(WaitFor(lg=("KF0",), vm=("GX",)))
    p(op_add(0, 35))
    p(f"v_sub_u32 v{V_SV}, v{V_SV}, v{V_EP}"); p(f"v_cmp_le_u32 vcc, 8, v{V_SV}")
    p("s_cmp_lg_u64 vcc, 0"); p(f"s_cselect_b32 s{S_MIX}, 1, {1 if 'forcemix' in ABL else 0}")
    if 'finepro' not in ABL: stamp(p, 5); stamp_rt(p, 15)

    rare_sites = []
    class Tile: pass
    def used(g): return len(g.mem) + sum(slots_of(v) for v in g.valu)
    def att_tile(it, last_block=False, first_mfmas=None):
        par = it % 2
        final = last_block and it == 3
        T = Tile(); G = []; Q = []; PV = []; LG = []
        mf = first_mfmas or [qk_mfma(1 - par, kt, qt, ks) for kt in range(4) for qt in range(4) for ks in range(4)]
        for i, m in enumerate(mf):
            g = Gap(m); G.append(g); Q.append(g)
            if i in (19, 23, 51, 55):
                g = Gap(l_mfma(par, 0 if i < 32 else 2, 0 if i in (19, 51) else 1)); G.append(g); LG.append(g)
        for dt in range(8):
            for qt in range(4):
                for kb in range(2):
                    g = Gap(pv_mfma(par, dt, qt, kb)); G.append(g); PV.append(g)
        T.G, T.Q, T.PV, T.LG = G, Q, PV, LG
        idx = {id(g): i for i, g in enumerate(G)}
        T.idx = lambda g: idx[id(g)]
        br = Q[-1]
        for b in range(64):
            E, N = (Q[2*b], Q[2*b+1]) if b < 32 else (PV[2*b-64], PV[2*b-63])
            sp, tau = (par, 36 + b) if b < 28 else (1 - par, b - 28)
            if tau % 4 == 0:
                if not (final and b > 28): N.valu.append(op_cvt(sp, tau - 1) if b != 28 else op_cvt(par, 63))
            if final and b >= 28: continue
            E.valu.append(op_exp(sp, tau))
            if tau % 4 == 1: N.valu.append(op_cvt(sp, tau))
            if tau % 4 >= 2: (br if b in (30, 31) else N).valu.append(op_add(sp, tau))
        L = V_LS + par * 4
        site = f"{'z' if last_block else 'l'}{it}"; rare_sites.append((site, "Z" if final else str(par)))
        Q[29].valu.append(op_ladd(par, 0))
        Q[57].valu.append(f"v_max3_f32 v{V_CK}, v{L}, v{L+1}, v{L+3}")
        Q[59].valu.append(op_ladd(par, 2))
        Q[61].valu += [f"v_max_f32 v{V_CK}, v{V_CK}, v{L+2}", f"v_cmp_lt_f32 vcc, s{S_THR}, v{V_CK}"]
        br.sh += [f"s_cbranch_vccnz L_rare_stub{site}", Label(f"L_rare_ret{site}")]
        PV[1].sh.append("s_barrier"); T.wv = []
        T.reserved = {id(PV[0]), id(PV[1])}
        kslot1, kslot2, vslot = KS(it + 1), KS(it + 2), VS(it)
        if not final:
            Q[15].sh.append(WaitFor(lg=("KF1",))); Q[31].sh.append(WaitFor(lg=("KF0",))); Q[47].sh.append(WaitFor(lg=("KF1",)))
        Q[-2].sh.append(WaitFor(lg=("VF0", "VF1", "VF2", "VF3")))
        for dt in range(4, 8): PV[8 * dt - 1].sh.append(WaitFor(lg=(f"VF{dt%4}",)))
        T.cur = 0; T.lastdma = -1
        def put(op, lo=None, sal=(), cap=2):
            g = max(T.cur, T.idx(lo) if lo is not None else 0)
            while True:
                assert g < len(G), op
                ok = not G[g].mem and used(G[g]) < cap and id(G[g]) not in T.reserved
                if ok and sal:
                    fr = [h for h in range(max(T.lastdma + (0 if len(sal) == 2 else 1), g - 6, 0), g) if not G[h].sh and id(G[h]) not in T.reserved]
                    ok = len(fr) >= len(sal)
                if ok: break
                g += 1
            if sal:
                for h, s_ in zip(fr[-len(sal):], sal): G[h].sh.append(s_)
                T.lastdma = g
            G[g].mem.append(op); T.cur = g + 1
            return g
        T.put = put
        def solo(g, sal, op, nxt=None):
            gi = T.idx(g)
            assert not g.mem
            if g.valu:
                assert not nxt.mem; nxt.valu = g.valu + nxt.valu; g.valu = []; T.reserved.add(id(nxt))
            fr = [h for h in range(gi - 3, gi) if not G[h].sh]
            assert len(fr) >= len(sal), (gi, sal)
            for h, s_ in zip(fr[-len(sal):], sal): G[h].sh.append(s_)
            g.mem.append(op); T.lastdma = max(T.lastdma, gi)
        T.solo = solo
        T.endsal = []
        if not final:
            if not (last_block and it >= 2):
                sal_, op = kv_dma("V", VS(it + 2), S_VOFF, -16384)[3]; solo(LG[0], sal_, op)
            if not last_block:
                dk = kv_dma("K", KS(it), S_KOFF, 0)
                solo(LG[1], *dk[0]); solo(Q[41], *dk[1], nxt=Q[43]); solo(LG[2], *dk[2]); solo(LG[3], *dk[3])
                T.endsal.append(f"s_add_u32 s{S_KOFF}, s{S_KOFF}, 16384")
            for r in v_reads(vslot, 0) + v_reads(vslot, 1): put(r)
            for r in k_reads(kslot1, 2): put(r, Q[16])
            v23 = v_reads(vslot, 2) + v_reads(vslot, 3)
            for r in v23[:3]: put(r)
            for r in k_reads(kslot1, 3): put(r, Q[32])
            for r in v23[3:]: put(r)
            assert T.cur <= T.idx(Q[55]), (it, T.cur)
        if not (last_block and it >= 1):
            dv = kv_dma("V", VS(it + 3), S_VOFF, 0)
            solo(PV[5], *dv[0], nxt=PV[7]); solo(PV[57], *dv[1], nxt=PV[59]); solo(PV[61], *dv[2], nxt=PV[63])
        T.cur = T.idx(PV[2])
        T.pv_v = [(r, PV[8 * (dt - 4) + 8]) for dt in range(4, 8) for r in v_reads(vslot, dt)]
        if not (last_block and it >= 2):
            for r, lo in T.pv_v: put(r, lo)
            for r in k_reads(kslot2, 0) + k_reads(kslot2, 1): put(r)
            T.wv.append(f"K{kslot2}")
            T.endsal += [WaitFor(lg=("KF0",)), f"s_add_u32 s{S_VOFF}, s{S_VOFF}, 16384"]
        if not last_block and it == 0:
            sl = [f"s_add_u32 s{S_RE}, s{S_RE}, s{S_RNW}", f"s_mul_i32 s{S_RS}, s{S_RE}, 3641", f"s_lshr_b32 s{S_RS}, s{S_RS}, 16",
                  f"s_mul_i32 s{S_RS}, s{S_RS}, {36864-1152}", f"s_lshl_b32 s{S_RD}, s{S_RE}, 6", f"s_add_u32 s{S_RS}, s{S_RS}, s{S_RD}",
                  f"s_lshl_b32 s{S_RD}, s{S_RE}, 11"]
            for n, s_ in enumerate(sl): Q[2 * n].sh.append(s_)
            Q[58].sh.append(f"s_mov_b32 m0, s{S_BQ}")
            Q[59].mem.append((f"buffer_load_dwordx4 v{V_RPG}, s[{S_WG}:{S_WG+3}], s{S_RS} offen lds", "RD"))
            Q[60].sh.append(f"s_add_u32 s{S_RS}, s{S_RS}, {16*1152-1024}")
            PV[3].mem.append((f"buffer_load_dwordx4 v{V_RPG}, s[{S_WG}:{S_WG+3}], s{S_RS} offen offset:1024 lds", "RD"))
        if not last_block and it == 2:
            PV[3].mem.append((f"ds_read_b64_tr_b16 v[{V_RPS}:{V_RPS+1}], v{V_RPL} offset:0", "RL"))
            PV[7].mem.append((f"ds_read_b64_tr_b16 v[{V_RPS+2}:{V_RPS+3}], v{V_RPL} offset:1024", "RL"))
        if not last_block and it == 3:
            Q[55].mem.append((f"ds_read_b64_tr_b16 v[{V_RPS+4}:{V_RPS+5}], v{V_RPL} offset:32", "RL"))
            Q[57].mem.append((f"ds_read_b64_tr_b16 v[{V_RPS+6}:{V_RPS+7}], v{V_RPL} offset:1056", "RL"))
        if not final: T.wv.append(f"V{VS(it+1)}")
        if not last_block:
            if it == 2: T.wv.append("RD")
            if it == 1:
                T.wv.append("RST")
                PV[10].sh.append(f"s_cmp_le_u32 s{S_CNT}, 2"); PV[11].sh.append(f"s_cselect_b32 s{S_SIG}, 2, 1")
                PV[13].valu.append(f"v_add_u32 v{V_SV}, s{S_SIG}, v{V_EP}")
                PV[16].sh.append(f"s_cmp_lg_u32 s{S_MIX}, 0"); PV[17].sh += ["s_cbranch_scc1 L_stub_w2", Label("L_ret_w2")]
                PV[20].mem.append((sig_store, None))
            if it == 3:
                PV[3].mem.append((f"buffer_store_dwordx4 v[{V_RPS}:{V_RPS+3}], v{V_L16}, s[{S_WU}:{S_WU+3}], s{S_RD} offen sc1", "RST"))
                PV[12].sh.append(WaitFor(lg=("RL",)))
                PV[14].mem.append((f"buffer_store_dwordx4 v[{V_RPS+4}:{V_RPS+7}], v{V_L16}, s[{S_WU}:{S_WU+3}], s{S_RD} offen offset:1024 sc1", "RST"))
        return T
    def finish_tile(T):
        if T.wv: T.PV[0].sh.append(WaitFor(vm=tuple(T.wv)))
        for s_ in T.endsal:
            if isinstance(s_, WaitFor):
                g = [g for g in T.PV[57:] if not g.sh][0]; g.sh.append(s_)
            else:
                c = [g for g in T.G[T.lastdma:] if not g.sh]
                (c[0].sh if c else T.G[-1].post).append(s_)
        ov = sum(max(0, used(g) - 2) + max(0, len([x for x in g.sh if not isinstance(x, Label)]) - 1) for g in T.G)
        print("tile overflow slots:", ov, "gaps", len(T.G))

    body = Prog(); p = body
    p.label("L_att_loop", 6)
    for it in range(4):
        T = att_tile(it)
        if it == 3: T.PV[40].sh.append(f"s_sub_u32 s{S_CNT}, s{S_CNT}, 1")
        finish_tile(T)
        if it == 3: T.G[-1].post += [f"s_cmp_lg_u32 s{S_CNT}, 0", "s_cbranch_scc1 L_att_loop"]
        for g in T.G:
            if 'Lnodma' in ABL: g.mem = [m for m in g.mem if not m[0].startswith("buffer")]
            if 'Lnobar' in ABL: g.sh = [x for x in g.sh if x != "s_barrier"]
            if 'Lnolds' in ABL: g.mem = [m for m in g.mem if not m[0].startswith("ds_")]
            if 'Lnotr' in ABL: g.mem = [m for m in g.mem if not m[0].startswith("ds_read_b64")]
            if 'Lnobr' in ABL: g.sh = [x for x in g.sh if not (isinstance(x, str) and x.startswith("s_cbranch"))]
            if 'Lnovalu' in ABL: g.valu = [x for x in g.valu if x.startswith(("v_exp", "v_add_u32"))]
            if 'Lnoexp' in ABL: g.valu = [x for x in g.valu if not x.startswith("v_exp")]
            if 'Lnowait' in ABL: g.sh = [x for x in g.sh if not (isinstance(x, WaitFor) and x.lg)]
        emit_gaps(p, T.G)

    tail = Prog(); p = tail
    p(f"s_getpc_b64 s[{S_WG}:{S_WG+1}]")
    p.label("L_pc1")
    p(f"s_and_b32 s{S_WG+1}, s{S_WG+1}, 0xffff"); p(f"s_mov_b32 s{S_WG+2}, L_code_end-L_pc1")
    p(f"s_lshr_b32 s{S_T0}, s2, 3"); p(f"s_lshl_b32 s{S_T0}, s{S_T0}, 2"); p(f"s_add_u32 s{S_T0}, s{S_T0}, s{S_WAVE}"); p(f"s_lshl_b32 s{S_T0}, s{S_T0}, 10")
    p(f"buffer_load_dwordx4 v[{V_RPS}:{V_RPS+3}], v{V_L16}, s[{S_WG}:{S_WG+3}], s{S_T0} offen", "CODE")
    if 'finepro' not in ABL: stamp(p, 6)
    NP3 = 17
    Breg = lambda s, ks, mt: ((s % 3) * 4 + ks) * 8 + mt * 4
    def p3_w(s):
        off = (WPD_OFF + s * 4 * 36864) if s < 9 else (WPO_OFF + (s - 9) * 4 * 36864)
        base = S_PW if s < 9 else S_PW2
        ops = []
        for i in range(9):
            sal = []
            if i % 4 == 0:
                tm = tmp()
                m0 = f"s_add_u32 m0, s{S_W0B}, {i*1024}" if s == 0 else f"s_add_u32 m0, s{S_W9K}, {P3_SLOT[(s-1)%3] + i*1024}"
                sal = [f"s_add_u32 s{tm}, s{base}, {off + i*1024}", m0]
            ops.append((sal, (f"buffer_load_dwordx4 v{V_L16}, s[{S_WS}:{S_WS+3}], s{tm} offen offset:{(i%4)*1024}{LSC} lds", f"PW{s}")))
        return annotate(ops)
    def p3_b(s):
        off = (H_OFF + s * 524288) if s < 9 else (O_OFF + (s - 9) * 524288)
        base = S_PB0 if s < 9 else S_PB1
        ops = []
        for mt in range(2):
            for ks in range(4):
                r = Breg(s, ks, mt)
                ops.append(([f"s_add_u32 s{S_T2}, s{base}, {off + mt*4096}"] if ks == 0 else [],
                            (f"buffer_load_dwordx4 a[{r}:{r+3}], v{V_L16}, s[{S_WS}:{S_WS+3}], s{S_T2} offen offset:{ks*1024}{LSC}", f"PB{s}")))
        return annotate(ops)
    setup3 = [f"s_lshr_b32 s{S_KOFF}, s{S_J}, 3", f"s_and_b32 s{S_RE}, s{S_J}, 3", f"s_mul_i32 s{S_W9K}, s{S_WAVE}, 9216",
              f"s_mul_i32 s{S_PW2}, s{S_WAVE}, 36864", f"s_mul_i32 s{S_RNW}, s{S_RE}, 9216", f"s_add_u32 s{S_PW2}, s{S_PW2}, s{S_RNW}",
              f"s_mul_i32 s{S_PW}, s{S_KOFF}, {1152*1152}", f"s_add_u32 s{S_PW}, s{S_PW}, s{S_PW2}",
              f"s_mul_i32 s{S_RNW}, s{S_KOFF}, {1024*1152}", f"s_add_u32 s{S_PW2}, s{S_PW2}, s{S_RNW}",
              f"s_lshl_b32 s{S_PST}, s{S_RB}, 3", f"s_and_b32 s{S_RNW}, s{S_J}, 7", f"s_add_u32 s{S_PST}, s{S_PST}, s{S_RNW}",
              f"s_lshr_b32 s{S_FX0}, s{S_PST}, 2",
              f"s_lshl_b32 s{S_PB1}, s{S_FX0}, 2", f"s_add_u32 s{S_PB1}, s{S_PB1}, s{S_WAVE}", f"s_lshl_b32 s{S_PB1}, s{S_PB1}, 13",
              f"s_mul_i32 s{S_PB0}, s{S_KOFF}, {9*524288}", f"s_add_u32 s{S_PB0}, s{S_PB0}, s{S_PB1}",
              f"s_lshl_b32 s{S_RNW}, s{S_KOFF}, 22", f"s_add_u32 s{S_PB1}, s{S_PB1}, s{S_RNW}",
              f"s_mul_i32 s{S_PST}, s{S_PST}, {16*9216}",
              f"s_mul_i32 s{S_FL}, s{S_KOFF}, 9216", f"s_add_u32 s{S_FL}, s{S_FL}, s{S_PST}",
              f"s_mul_i32 s{S_CNT}, s{S_KOFF}, {4*9216}", f"s_add_u32 s{S_PST}, s{S_PST}, s{S_CNT}", f"s_add_u32 s{S_PST}, s{S_PST}, s{S_W9K}",
              f"s_lshl_b32 s{S_FX0}, s{S_FX0}, 2", f"s_add_u32 s{S_FX0}, s{S_FX0}, s{S_KOFF}", f"s_mul_i32 s{S_FX0}, s{S_FX0}, {32*1152}",
              f"s_mul_i32 s{S_CNT}, s{S_RE}, 288", f"s_add_u32 s{S_FX0}, s{S_FX0}, s{S_CNT}", f"s_add_u32 s{S_FX1}, s{S_FX0}, {16*1152}",
              f"s_add_u32 s{S_CNT}, s{S_KOFF}, 1", f"s_and_b32 s{S_CNT}, s{S_CNT}, 3", f"s_mul_i32 s{S_FR}, s{S_CNT}, {4*9216}", f"s_add_u32 s{S_FR}, s{S_FR}, s{S_FL}",
              f"s_add_u32 s{S_CNT}, s{S_KOFF}, 2", f"s_and_b32 s{S_CNT}, s{S_CNT}, 3", f"s_mul_i32 s{S_FR+1}, s{S_CNT}, {4*9216}", f"s_add_u32 s{S_FR+1}, s{S_FR+1}, s{S_FL}",
              f"s_add_u32 s{S_CNT}, s{S_KOFF}, 3", f"s_and_b32 s{S_CNT}, s{S_CNT}, 3", f"s_mul_i32 s{S_FR+2}, s{S_CNT}, {4*9216}", f"s_add_u32 s{S_FR+2}, s{S_FR+2}, s{S_FL}",
              f"s_add_u32 s{S_CNT}, s{S_WAVE}, 1", f"s_lshr_b32 s{S_CNT}, s{S_CNT}, 2", f"s_mul_i32 s{S_CNT}, s{S_CNT}, {80*1024+27648}",
              f"s_add_u32 s{S_W0B}, s{S_W9K}, {128*1024}", f"s_sub_u32 s{S_W0B}, s{S_W0B}, s{S_CNT}"]
    pg = []
    for s in range(NP3):
        if s in (8, 16): order = [(kp, nt) for nt in range(9) for kp in range(2)]
        else: order = [(kp, nt) for kp in range(2) for nt in range(9)]
        for kp, nt in order: pg.append((s, kp, nt))
    def p3_reads(gi):
        s, kp, nt = pg[gi]; base = P3_AR[gi % 4]
        out = []
        for q in range(2):
            ks = 2 * kp + q
            if s == 0: va, o = (V_PWA[2], 12 * 1024 + (ks * 9 + nt) * 1024) if ks < 3 else (V_PWA[0], 48 * 1024 + nt * 1024)
            else: va, o = V_PWA[(s - 1) % 3], (ks * 9 + nt) * 1024
            out.append((f"ds_read_b128 v[{base+4*q}:{base+4*q+3}], v{va} offset:{o}", f"PA{gi%4}"))
        return out
    pm = []
    for gi, (s, kp, nt) in enumerate(pg):
        for mt in range(2):
            for q in range(2):
                a = (AD if s < 9 else AS)(nt, mt); b = Breg(s, 2 * kp + q, mt); ar = P3_AR[gi % 4] + 4 * q
                C = "0" if (s in (0, 9) and kp == 0 and q == 0) else f"v[{a}:{a+3}]"
                pm.append(f"v_mfma_f32_16x16x32_bf16 v[{a}:{a+3}], v[{ar}:{ar+3}], a[{b}:{b+3}], {C}")
    TL = [att_tile(it, last_block=True, first_mfmas=(pm[:72] if it == 3 else None)) for it in range(4)]
    T28, T29, T30, T31 = TL
    T28.cur = T28.idx(T28.Q[50]); T28.put(poll_load("PL"))
    cv, cs = poll_check(2, "p2")
    T28.PV[40].sh.append(WaitFor(vm=("PL",))); T28.PV[41].sh += cs[:1]; T28.PV[42].post += cv; T28.PV[44].sh += cs[1:]
    free = [g for g in T28.G[:T28.idx(T28.PV[54])] if not g.sh and id(g) not in T28.reserved]
    assert len(free) >= len(setup3), len(free)
    for s_, g in zip(setup3, free): g.sh.append(s_)
    T29.cur = T29.idx(T29.Q[50]); T29.lastdma = max(T29.lastdma, T29.idx(T29.Q[50]))
    for sal_, op in p3_w(0): T29.put(op, sal=sal_); T29.lastdma = T29.cur - 1
    T30.wv.append("PW0")
    if 'tlb' in ABL:
        T29.Q[53].valu.append(f"v_and_b32 v{V_RPS+5}, 1, v{V_LANE}"); T29.Q[55].valu.append(f"v_mul_u32_u24 v{V_RPS+5}, {PSTRIDE}, v{V_RPS+5}")
        T29.Q[45].valu.append(f"v_mov_b32 v{V_RPS+6}, 0")
        tl = [(V_RPS + 6, S_XI, S_FX0, 0), (V_RPS + 6, S_OUT, S_FX0, 0), (V_RPS + 5, S_WS, S_PST, PART_OFF), (V_RPS + 6, S_WS, S_OBASE, O_OFF)]
        T30.cur = 2; T30.lastdma = 0
        for n, (va, sr, so, add) in enumerate(tl):
            T30.put((f"buffer_load_dword v{V_PT}, v{va}, s[{sr}:{sr+3}], s{S_SIG} offen", "TCH"), T30.Q[4 * n + 2], sal=[f"s_add_u32 s{S_SIG}, s{so}, {add}"], cap=3)
    mix = p3_b(0) + p3_w(1)
    T30.Q[49].valu.append(f"v_add_u32 v{V_PWA[1]}, {P3_SLOT[1]}, v{V_L16}"); T30.Q[51].valu.append(f"v_add_u32 v{V_PWA[2]}, {P3_SLOT[2]}, v{V_L16}")
    for g_, t_ in zip((43, 45, 47, 53, 55), [f"v_and_b32 v{V_FX}, 15, v{V_LANE}", f"v_mul_u32_u24 v{V_FX}, 1152, v{V_FX}", f"v_lshrrev_b32 v{V_FX-1}, 4, v{V_LANE}",
                                           f"v_lshl_add_u32 v{V_FX}, v{V_FX-1}, 3, v{V_FX}", f"v_lshl_add_u32 v{V_FX}, s{S_WAVE}, 5, v{V_FX}"]):
        T30.Q[g_].valu.append(t_)
    T30.cur = T30.idx(T30.PV[2])
    for r, lo in T30.pv_v: T30.put(r, lo)
    T30.cur = T30.idx(T30.PV[52])
    for r in p3_reads(0) + p3_reads(1) + p3_reads(2): T30.put(r)
    T30.cur = T30.idx(T30.PV[2]); T30.lastdma = T30.cur
    for n, (sal_, op) in enumerate(mix):
        T30.put(op, T30.PV[2 + 3 * n], sal=sal_, cap=3); T30.lastdma = T30.cur - 1
    T30.G[-1].post.append(WaitFor(lg=("PA0",), vm=("PB0",)))
    T31.wv.append("PW1")
    Q = T31.Q
    for gi in range(1, 18): Q[4 * gi - 1].sh.insert(0, WaitFor(lg=(f"PA{gi%4}",)))
    for gi in range(3, 18):
        for n, r in enumerate(p3_reads(gi)): Q[4 * (gi - 3) + 1 + 2 * n].mem.append(r)
    T31.cur = 0
    vr = [r for dt in range(4) for r in v_reads(VS(3), dt)]
    for n, r in enumerate(vr): T31.put(r, Q[4 * n], cap=3)
    T31.cur = 0; T31.lastdma = 0
    for n, (sal_, op) in enumerate(p3_b(1) + p3_b(2)):
        T31.put(op, Q[4 * n + 2], sal=sal_, cap=3); T31.lastdma = T31.cur - 1
    T31.cur = T31.idx(T31.PV[2])
    for r, lo in T31.pv_v: T31.put(r, lo); T31.cur += 1
    T31.cur = T31.idx(T31.PV[50])
    for r in p3_reads(18) + p3_reads(19) + p3_reads(20): T31.put(r); T31.cur += 1
    T31.cur = T31.idx(T31.PV[2]); T31.lastdma = T31.cur
    for sal_, op in p3_w(2): T31.put(op, sal=sal_); T31.lastdma = T31.cur - 1
    T31.PV[63].sh.append(WaitFor(lg=(f"PA{18%4}",), vm=("PB1",)))
    P = [None] * 72 + [Gap(m) for m in pm[72:]]
    for gi in range(21, len(pg)):
        i = gi % 18
        rd = p3_reads(gi)
        if i == 0: g0_ = 4 * (gi - 2); pos = (g0_, g0_ + 1)
        elif i == 1: g0_ = 4 * (gi - 3); pos = (g0_ + 2, g0_ + 3)
        else: g0_ = 4 * (gi - 3); pos = (g0_, g0_ + 2)
        for g_, r in zip(pos, rd): P[g_].mem.append(r)
    barw = {}
    for gi in range(19, len(pg)):
        s = pg[gi][0]; g = P[4 * gi - 1]
        if gi % 18 == 16 and s + 1 < NP3:
            barw[s] = WaitFor(vm=[f"PW{s+1}", f"PB{s+1}"], lg0=True)
            P[4 * gi - 2].sh.append(barw[s]); g.sh.append("s_barrier")
        else: g.sh.append(WaitFor(lg=(f"PA{gi%4}",)))
    def after_barrier(s): return 72 * s + 64
    OSIG = int(os.environ.get("OSIG", "4")); DSIG = int(os.environ.get("DSIG", "13")); OCAP = int(os.environ.get("OCAP", "3"))
    barw[OSIG].vm = tuple(barw[OSIG].vm) + ("OST",)
    P[after_barrier(OSIG) - 6].valu.append(sig_val(3)); P[after_barrier(OSIG) + 5].mem.append((sig_store, None))
    P[after_barrier(OSIG) + 1].sh.append(f"s_cmp_lg_u32 s{S_MIX}, 0"); P[after_barrier(OSIG) + 2].sh += ["s_cbranch_scc1 L_stub_w3", Label("L_ret_w3")]
    barw[DSIG].vm = tuple(barw[DSIG].vm) + ("DST",)
    P[after_barrier(DSIG) - 6].valu.append(sig_val(4)); P[after_barrier(DSIG) + 5].mem.append((sig_store, None))
    P[72*5+1].sh.append(f"s_lshl_b32 s{S_CNT}, s{S_RB}, 11"); P[72*5+2].sh.append(f"s_lshl_b32 s{S_RE}, s{S_KOFF}, 9"); P[72*5+4].sh.append(f"s_add_u32 s{S_RE}, s{S_RE}, s{S_CNT}")
    P[72*5+5].valu += [f"v_and_b32 v{V_PA}, 7, v{V_LANE}", f"v_lshl_add_u32 v{V_PA}, v{V_PA}, 2, s{S_RE}"]
    P[72*6+69].mem.append(poll_load("PL"))
    P[72*7+28].sh.append(WaitFor(vm=("PL",)))
    cv, cs = poll_check(3, "p3")
    P[72*7+29].valu += cv; P[72*7+29].sh += cs[:1]; P[72*7+30].post += cs[1:]
    PQ = DSIG + 1
    P[72*PQ+49].mem.append(poll_load("PL"))
    P[72*(PQ+1)+12].sh.append(WaitFor(vm=("PL",)))
    cv, cs = poll_check(4, "p4")
    P[72*(PQ+1)+13].valu += cv; P[72*(PQ+1)+13].sh += cs[:1]; P[72*(PQ+1)+13].post += cs[1:]
    FD, GG, FXR, TT = 160, 208, 56, 16
    def fin_loads(kind, dst, tag):
        ops = []
        for m in range(3):
            for sp in range(3):
                tm = tmp()
                ops.append(([f"s_add_u32 s{tm}, s{S_FR+sp}, {PART_OFF + kind*PSTRIDE}"],
                            (f"buffer_load_dwordx4 v[{dst+(m*4+sp)*4}:{dst+(m*4+sp)*4+3}], v{V_FL+m}, s[{S_WS}:{S_WS+3}], s{tm} offen sc1", tag)))
        return annotate(ops)
    own_reads = lambda kind, dst, tag: [(f"ds_read_b128 v[{dst+(m*4+3)*4}:{dst+(m*4+3)*4+3}], v{V_OWR} offset:{kind*9216 + m*4096}", tag) for m in range(3)]
    xl = []
    for m in range(3):
        for mt in range(2):
            xl.append(([], (f"buffer_load_dwordx2 v[{FXR+4*m+2*mt}:{FXR+4*m+2*mt+1}], v{V_FX}, s[{S_XI}:{S_XI+3}], s{(S_FX0, S_FX1)[mt]} offen offset:{m*128}", "FX")))
    for sal_, op in xl: T31.put(op)
    for s in range(1, NP3):
        ops = []
        if s + 2 < NP3:
            w, b = p3_w(s + 2), p3_b(s + 2)
            if s == 7:
                place_mem(P, w, 72 * s, 72 * s + 28); place_mem(P, b, 72 * s + 30, 72 * s + 63); continue
            ops = w[:4] + b[:4] + w[4:8] + b[4:] + w[8:]
        if s == PQ + 1:
            assert s == 15
            place_mem(P, fin_loads(0, FD, "FD") + [([], r) for r in own_reads(0, FD, "FO")], 72 * s + 14, 72 * s + 63); continue
        if ops: place_mem(P, ops, 72 * s, 72 * s + 63)
    allg = T31.PV + P[72:]
    OT = 96
    def o_item(n, qt, s):
        T = OT + (n % 4) * 8; D = OT + 32 + (n % 4) * 4
        q = []
        for h in range(2):
            o = A_O + ((2 * s + h) * 4 + qt) * 4
            for r in range(4): q.append(f"v_accvgpr_read_b32 v{T+4*h+r}, a{o+r}")
        for i in range(8): q.append(f"v_mul_f32 v{T+i}, v{T+i}, v{V_LS+4+qt}")
        for i in range(4): q.append(f"v_cvt_pk_bf16_f32 v{D+i}, v{T+2*i}, v{T+2*i+1}")
        q.append(("MEM", [f"s_add_u32 s{S_SIG}, s{S_OBASE}, {O_OFF + qt*4096}"], (f"buffer_store_dwordx4 v[{D}:{D+3}], v{V_L16}, s[{S_WS}:{S_WS+3}], s{S_SIG} offen offset:{s*1024}{SCO}", "OST")))
        return q
    pre = xlane_ops("v_add_f32", [V_LS + 5, V_LS + 7], OT + 48) + [f"v_rcp_f32 v{V_LS+4+qt}, v{V_LS+4+qt}" for qt in range(4)]
    n = 0; lim = 64 + after_barrier(OSIG - 1) - 72 + 30
    q = list(pre); mins = [2] * len(pre)
    for s in range(4):
        for qt in range(4):
            it_ = o_item(n, qt, s); n += 1
            q += it_; mins += [16 * (s + 1) + 4] * len(it_)
    left = fill_valu(allg[:lim], 2, q, mins=mins, cap=OCAP); assert not left, len(left)
    fs = [f"v_add_u32 v{V_FL}, s{S_W1K}, v{V_L16}", f"v_add_u32 v{V_FL+1}, 4096, v{V_FL}",
          f"v_add_u32 v{V_FL+2}, s{S_VOFF}, v{V_FL}", f"v_add_u32 v{V_FL+3}, s{S_VOFF}, v{V_FX}", f"v_subrev_u32 v{V_FL+3}, 8192, v{V_FL+3}"]
    sal6 = [f"s_lshl_b32 s{S_FL}, s{S_RB}, 3", f"s_and_b32 s{S_T2+32}, s{S_J}, 7", f"s_add_u32 s{S_FL}, s{S_FL}, s{S_T2+32}", f"s_lshl_b32 s{S_FL}, s{S_FL}, 9",
            f"s_add_u32 s{S_FL}, s{S_FL}, {F5_OFF}",
            f"s_lshl_b32 s{S_W0B}, s{S_WAVE}, 7", f"s_add_u32 s{S_W0B}, s{S_W0B}, s{S_FL}", f"s_lshl_b32 s{S_W0B+1}, s{S_KOFF}, 2", f"s_add_u32 s{S_W0B}, s{S_W0B}, s{S_W0B+1}",
            f"s_lshl_b32 s{S_W0B+1}, s{S_KOFF}, 7", f"s_add_u32 s{S_FL}, s{S_FL}, s{S_W0B+1}",
            f"s_add_u32 s{S_W0B+1}, s{S_KOFF}, 1",
            [f"s_cmp_eq_u32 s{S_WAVE}, s{S_KOFF}", f"s_cselect_b32 s{S_W0B+2}, {1 << 30}, 0", f"s_cselect_b32 s{S_W0B+3}, 0, {18432}"],
            f"s_add_u32 s{S_PST}, s{S_PST}, s{S_W0B+2}", f"s_add_u32 s{S_W0B+3}, s{S_W0B+3}, {OWN_LDS}",
            [f"s_cmp_eq_u32 s{S_WAVE}, 0", f"s_cselect_b32 s{S_VOFF}, 8192, {1 << 30}"]]
    g_ = 72 * 6
    for x in sal6:
        while P[g_].sh: g_ += 1
        P[g_].sh += x if isinstance(x, list) else [x]
        g_ += 1
    assert g_ < 72 * 6 + 60
    fs += [f"v_add_u32 v{V_OWN}, s{S_W0B+3}, v{V_L16}", f"v_add_u32 v{V_OWR}, {OWN_LDS}, v{V_FL}"]
    left = fill_valu(P[:72 * 8], 72 * 6 + 60, fs); assert not left
    fs2 = [f"v_mov_b32 v{V_SA}, s{S_W0B}", f"v_min_u32 v{V_PA}, 2, v{V_LANE}", f"v_add_u32 v{V_PA}, s{S_W0B+1}, v{V_PA}", f"v_and_b32 v{V_PA}, 3, v{V_PA}",
           f"v_lshl_add_u32 v{V_PA}, v{V_PA}, 2, s{S_FL}"]
    left = fill_valu(P[:72 * 9], 72 * 8, fs2); assert not left
    def part_item(A, nt, kind, tag):
        a = A(nt, 0)
        q = [f"v_cvt_pk_bf16_f32 v{a+i}, v{a+2*i}, v{a+2*i+1}" for i in range(4)]
        q.append(("MEM", [f"s_add_u32 s{S_SIG}, s{S_PST}, {PART_OFF + kind*PSTRIDE + nt*1024}"], (f"buffer_store_dwordx4 v[{a}:{a+3}], v{V_L16}, s[{S_WS}:{S_WS+3}], s{S_SIG} offen sc1", tag)))
        q.append(("MEM", [], (f"ds_write_b128 v{V_OWN}, v[{a}:{a+3}] offset:{kind*9216 + nt*1024}", None)))
        return q
    for nt in range(9):
        left = fill_valu(P[:72 * DSIG], 72 * 8 + 12 + ((72 * (DSIG - 8) - 30) * nt) // 8, part_item(AD, nt, 0, "DST")); assert not left
    sleft = []
    for nt in range(9):
        sleft += fill_valu(P, 72 * 16 + 8 * (nt + 1) + 4, part_item(AS, nt, 1, "SST"))
    gq = []
    def unpack_sum(src, dst, pk=False):
        q = []
        for i in range(4):
            q += [f"v_lshlrev_b32 v{dst+2*i}, 16, v{src+i}", f"v_and_b32 v{dst+2*i+1}, s{S_THR}, v{src+i}"]
        for sp in range(1, 4):
            T = TT + 8 * (sp % 2)
            for i in range(4):
                q += [f"v_lshlrev_b32 v{T+2*i}, 16, v{src+4*sp+i}", f"v_and_b32 v{T+2*i+1}, s{S_THR}, v{src+4*sp+i}"]
            if pk:
                for i in range(0, 8, 2): q.append(f"v_pk_add_f32 v[{dst+i}:{dst+i+1}], v[{dst+i}:{dst+i+1}], v[{T+i}:{T+i+1}]")
            else:
                for i in range(8): q.append(f"v_add_f32 v{dst+i}, v{dst+i}, v{T+i}")
        return q
    P[72*13+1].post.append(f"s_mov_b32 s{S_THR}, 0xffff0000")
    for m in range(3):
        D = GG + 8 * m; T = FD + 16 * m
        gq += unpack_sum(FD + 16 * m, D, pk=True)
        gq += [f"v_mul_f32 v{T+i}, {f2u(-LOG2E)}, v{D+i}" for i in range(8)]
        gq += [f"v_exp_f32 v{T+i}, v{T+i}" for i in range(8)]
        gq += [f"v_add_f32 v{T+i}, 1.0, v{T+i}" for i in range(8)]
        gq += [f"v_rcp_f32 v{T+i}, v{T+i}" for i in range(8)]
        gq += [f"v_pk_mul_f32 v[{D+i}:{D+i+1}], v[{D+i}:{D+i+1}], v[{T+i}:{T+i+1}]" for i in range(0, 8, 2)]
    gleft = gq
    print("phase3 leftovers: s-part", len(sleft), "gate", len(gleft))
    for T in TL:
        finish_tile(T); emit_gaps(p, T.G)
    if 'finepro' not in ABL:
        stamp(p, 7); stamp_rt(p, 16)
        for s, k in ((3, 8), (6, 9), (9, 10), (13, 11)): P[72 * s - 1].post += stamp_ops(k)
    if 'finep3' in ABL:
        stamp(p, 0)
        for s in range(1, 17): P[72 * (s + 1) - 1].post = [x for x in P[72 * (s + 1) - 1].post if not (isinstance(x, str) and ("s76" in x or "s[76" in x or x == "s_waitcnt lgkmcnt(0)"))] + stamp_ops(s)
    emit_gaps(p, P[72:])
    if 'finep' not in ABL: stamp(p, 12); stamp_rt(p, 17)
    emit_ops(p, sleft)
    XU = 32
    p(sig_val(5))
    p.items.append(WaitFor(vm=("FD",), lg0=True))
    p("s_barrier")
    ng = len(gleft) // 3
    emit_ops(p, gleft[:ng])
    p("s_waitcnt vmcnt(0)")
    p(sig_store)
    emit_ops(p, gleft[ng:])
    for t, tag in own_reads(1, FD, "FO"): p(t, tag)
    for i in range(12):
        p(f"v_lshlrev_b32 v{XU+2*i}, 16, v{FXR+i}"); p(f"v_and_b32 v{XU+2*i+1}, s{S_THR}, v{FXR+i}")
    if 'finep' not in ABL: stamp(p, 13)
    p(f"s_add_u32 s{S_PV}, s{S_EP}, 5"); p(f"s_call_b64 s[{S_RET}:{S_RET+1}], L_spin0")
    if 'finep' not in ABL: stamp(p, 14)
    for sal_, op in fin_loads(1, FD, "FS"):
        for s_ in sal_: p(s_)
        p(op[0], op[1])
    for m in range(3):
        p(f"s_waitcnt vmcnt({6 - 3*m + 2*m}) lgkmcnt(0)")
        D = 96 + 8 * m; T = XU + 8 * m
        for t in unpack_sum(FD + 16 * m, D, pk=True): p(t)
        for i in range(0, 8, 2): p(f"v_pk_fma_f32 v[{T+i}:{T+i+1}], v[{D+i}:{D+i+1}], v[{GG+8*m+i}:{GG+8*m+i+1}], v[{T+i}:{T+i+1}]")
        for i in range(4): p(f"v_cvt_pk_bf16_f32 v{D+i}, v{T+2*i}, v{T+2*i+1}")
        va = V_FX if m < 2 else V_FL + 3
        for mt in range(2):
            p(f"buffer_store_dwordx2 v[{D+2*mt}:{D+2*mt+1}], v{va}, s[{S_OUT}:{S_OUT+3}], s{(S_FX0, S_FX1)[mt]} offen offset:{m*128}")
    if STAMP: p("s_waitcnt vmcnt(0)")
    stamp(p, 19); stamp_rt(p, 21); stamp_dump(p, 70, S_WAVE, 1)
    p.label("L_done"); p("s_endpgm")

    rare = Prog(); p = rare
    for site, var in rare_sites:
        p.label(f"L_rare_stub{site}")
        p(f"s_call_b64 s[{S_RET}:{S_RET+1}], L_rare{var}")
        p(f"s_branch L_rare_ret{site}")
    for name in stubs:
        p.label(f"L_stub_{name}")
        p(f"s_call_b64 s[{S_RET}:{S_RET+1}], L_spin0")
        p(f"s_branch L_ret_{name}")
    for name in ("w2", "w3"):
        p.label(f"L_stub_{name}")
        p("buffer_wbl2 sc1"); p("s_waitcnt vmcnt(0)")
        p(f"s_branch L_ret_{name}")
    p.label("L_spin0")
    p(f"s_mov_b32 s{S_SPIN}, {'0x40' if 'Lno' in ABL else '0x40000'}")
    p.label("L_spin1")
    p(poll_load(None)[0])
    p(f"s_sub_u32 s76, s{S_EP}, s{S_PV}"); p("s_add_u32 s76, s76, 8")
    p("s_waitcnt vmcnt(0)")
    p(f"v_and_b32 v{V_PT}, 0xffffff87, v{V_PT}"); p(f"v_subrev_u32 v{V_PT}, s{S_PV}, v{V_PT}"); p(f"v_cmp_le_u32 vcc, s76, v{V_PT}")
    p("s_cbranch_vccz L_spin2")
    p(f"s_sub_u32 s{S_SPIN}, s{S_SPIN}, 1"); p("s_sleep 1"); p(f"s_cmp_lg_u32 s{S_SPIN}, 0"); p("s_cbranch_scc1 L_spin1")
    p.label("L_spin2")
    p(f"s_setpc_b64 s[{S_RET}:{S_RET+1}]")
    rare_items = fix_hazards(rare.items)[0]
    for var in ("0", "1", "Z"):
        par = 1 if var == "Z" else int(var)
        rp = Prog(); p = rp
        p.label(f"L_rare{var}")
        p("s_nop 15")
        Lold = V_LS + (1 - par) * 4
        for qt in range(4):
            rowmax(p, par, qt, V_R + qt)
            p(f"v_log_f32 v{V_R+4}, v{Lold+qt}")
            if BIAS:
                p(f"v_max_f32 v{V_R+qt}, v{V_R+qt}, v{V_R+4}"); p(f"v_add_f32 v{V_R+qt}, {f2u(BIAS)}, v{V_R+qt}"); p(f"v_max_f32 v{V_R+qt}, 0, v{V_R+qt}")
            else: p(f"v_max3_f32 v{V_R+qt}, v{V_R+qt}, v{V_R+4}, 0")
        for t in xlane_ops("v_max_f32", [V_R + q for q in range(4)], V_R + 4): p(t)
        for qt in range(4):
            p(f"v_sub_f32 v{V_R+4+qt}, 0, v{V_R+qt}"); p(f"v_exp_f32 v{V_R+4+qt}, v{V_R+4+qt}")
        for qt in range(4):
            p(f"v_mul_f32 v{Lold+qt}, v{Lold+qt}, v{V_R+4+qt}")
            if var != "Z":
                for r in range(4): p(f"v_sub_f32 v{V_NM+4*qt+r}, v{V_NM+4*qt+r}, v{V_R+qt}")
            for pp in ((par,) if var == "Z" else (0, 1)):
                for kt in range(4):
                    for r in range(4): p(f"v_sub_f32 v{Sreg(pp,kt,qt)+r}, v{Sreg(pp,kt,qt)+r}, v{V_R+qt}")
            for dt in range(8):
                o = A_O + (dt * 4 + qt) * 4
                for r in range(4): p(f"v_accvgpr_read_b32 v{V_E+r}, a{o+r}")
                for r in range(4): p(f"v_mul_f32 v{V_E+r}, v{V_E+r}, v{V_R+4+qt}")
                for r in range(4): p(f"v_accvgpr_write_b32 a{o+r}, v{V_E+r}")
        for tau in range(64):
            p(op_exp(par, tau))
            if tau % 4 >= 2: p(op_add(par, tau))
            if tau % 2 == 1: p(op_cvt(par, tau))
        for qt in (0, 2):
            p(l_mfma(par, qt, 0)); p(l_mfma(par, qt, 1)); p(op_ladd(par, qt))
        if var != "Z":
            for tau in range(4): p(op_exp(1 - par, tau))
            p(op_cvt(1 - par, 1))
        p("s_nop 3")
        p(f"s_setpc_b64 s[{S_RET}:{S_RET+1}]")
        rare_items += fix_hazards(rp.items)[0]

    resolve_waits(pro.items + body.items + body.items + tail.items)
    pi = lower_waits(pro.items); bi = lower_waits(body.items); ti = lower_waits(tail.items)
    pi, a1 = fix_hazards(pi, verbose=False, name="pro")
    bi2, a2 = fix_hazards(bi, prev=bi, verbose=True, name="body")
    bi3, a3 = fix_hazards(bi2, prev=pi, verbose=True, name="body-entry")
    ti, a4 = fix_hazards(ti, prev=bi3, verbose=True, name="tail")
    wc = WaitChecker(); wc.run(pi + bi3 + bi3 + ti)
    for e in wc.errors[:10]: print("WAITCHECK", e)
    assert check_needs(pi + bi3 + bi3 + ti) == 0
    for it in pi + bi3 + ti:
        if isinstance(it, Ins): it.text = it.text.split(' ; need[')[0]
    return pi + bi3 + ti + rare_items

if __name__ == "__main__":
    import sys
    HEADER = open("cdna_kernels/" + NAME + ".s.ref").read().split("; Override")[0]
    items = gen_mega()
    k = NAME + "_kernel"
    s = HEADER + f"; @launch grid=(256,1,1) block=(256,1,1) lds={LDS_BYTES}\n"
    s += '.amdgcn_target "amdgcn-amd-amdhsa--gfx950"\n' + kernel_text(k, items, 512, 256)
    s += "L_code_end:\n    s_endpgm\n" + '.section .rodata,"a"\n.p2align 6\n' + kd_text(k, 512, 256)
    open(sys.argv[1], "w").write(s)
```

```python
from common import *
import math
LDS_BYTES = 160 * 1024
LOG2E = 1.4426950408889634
QSCALE = LOG2E / math.sqrt(128.0)
GC1 = -2.0 * math.sqrt(2.0 / math.pi) * LOG2E
GC2 = GC1 * 0.044715
CUT = int(os.environ.get("CUT", "30"))
BIAS = float(126 - CUT) if CUT else 0.0
THRESH = 2.0 ** (int(os.environ.get("THR", "64")) - BIAS)
ABL = os.environ.get('ABL', '')
NTW = "" if "nontw" in ABL else " nt"
NTQ = "" if "nontq" in ABL else " nt"
NTT = '' if 'nontt' in ABL else ' nt'
NTX = " nt" if "ntx" in ABL else ""
NTKV = " nt" if 'ntkv' in ABL else ""
WS_BYTES = 128 << 20
WPO_OFF = WP_OFF
WPD_OFF = WP_OFF + 4096 * 1152
FLAG_OFF = 100 << 20
SCH = ' sc1' if 'sch' in ABL else ''
SCO = ' sc1' if 'sco' in ABL else ''
LSC = '' if 'nolsc' in ABL else ' sc1'
P3NT = ' nt' if 'p3nt' in ABL else ''
PSTRIDE = 64 * 4 * 4 * 9216

S_HF = 4
S_WG, S_WU, S_WQ, S_K, S_V, S_WS, S_DBG, S_XI = 8, 12, 16, 20, 24, 28, 32, 36
S_WAVE, S_RB, S_J = 40, 41, 42
S_RE = 43
S_T0, S_T1, S_T2 = 44, 45, 46
S_KOFF, S_VOFF = 47, 48
S_W1K = 49
S_RET = 50
S_CNT = 52
S_W3K = 53
S_BF, S_BH, S_BQ = 54, 55, 56
S_RS, S_RD = 57, 58
S_RNW = 59
S_HHALF = 60
S_THR = 61
S_OBASE = 62
S_XB = 63
S_PTR = 64
S_W6K = 3
S_PV = 79
S_SIG = 78
S_SPIN = 75
S_EP = 74
S_FO = 73
S_MIX = 72
S_XCC = 69
S_EP2 = 68
S_PW, S_PW2, S_PB0, S_PB1 = 54, 55, 56, 57
S_W9K = 53
S_PST = 58
S_FL = 59
S_FX0, S_FX1 = 60, 63
S_OUT = 16

V_SA = 0
V_L16 = 1
V_WF, V_WQ = 2, 3
V_RA = 4
V_RH = 8
V_QP = 10
V_C1, V_C2 = 12, 13
V_KD, V_VD = 14, 15
V_AF = 16
V_T = 52
V_HO = 68
V_KA = 76
V_TA = 76
V_VA = 80
V_RQ = 88
V_ACC = 96
V_X = 224
WSLOT = [128 * 1024, 80 * 1024, 40 * 1024, 104 * 1024]
def wbase(slot):
    b = WSLOT[slot]
    return (0, b - 40 * 1024) if b < 104 * 1024 else (1, b - 104 * 1024)
def xreg(ks, mt):
    f = ks * 4 + mt
    return f"a[{4*f}:{4*f+3}]" if f < 64 else f"v[{V_X+4*(f-64)}:{V_X+4*(f-64)+3}]"

A_Q, A_KF, A_VF, A_O = 0, 64, 96, 128
V_S = 96
V_P0 = 224
V_P1 = 16
V_NM = 32
V_LS = 48
V_E = 56
V_CK = 9
V_ONE = 10
V_R = 64
V_LD = 72
V_RPS = 88
V_RPG, V_RPL = 2, 3
V_PT = 4
V_SV = 6
V_PA = 8
V_LANE = 2
KS = lambda T: (T + 3) % 4
VS = lambda T: (T + 1) % 4
P3_SLOT = [0, 80 * 1024, 116 * 1024]
AD = lambda nt, mt: 160 + (nt * 2 + mt) * 4
AS = lambda nt, mt: (96 + (nt * 2 + mt) * 4) if nt < 8 else (240 + mt * 4)
P3_AR = [32, 40, 88, 232]
V_PWA = [1, 76, 77]
V_XO = 68
V_YW = 78
V_FL = 80
S_FR = 64
V_OWN = 84
V_OWR = 85
OWN_LDS = 40 * 1024
F5_OFF = 32768
S_W0B = 12

from k12 import Gap, emit_gaps, slots_of, fill_valu

def emit_ops(p, ops):
    for op in ops:
        if isinstance(op, tuple):
            for t in op[1]: p(t)
            p(op[2][0], op[2][1])
        else: p(op)

def annotate(ops):
    out = []; cur = []
    for sal, (txt, tag) in ops:
        if sal: cur = list(sal)
        out.append((sal, (txt + " ; need[" + "|".join(cur) + "]", tag)))
    return out

def check_needs(items):
    last = {}; bad = 0
    for it in items:
        if not isinstance(it, Ins): continue
        if "; need[" in it.text:
            for t in it.text.split("; need[")[1].rstrip("]").split("|"):
                if not t: continue
                d = Ins(t).wr[0]
                if last.get(d) != t:
                    bad += 1; print("NEEDCHECK:", it.text, "<- last writer", last.get(d))
        if it.kind == "salu":
            for r in it.wr: last[r] = it.text
    return bad

def gen_mega():
    pro = Prog(); p = pro
    stubs = []
    def poll_check(val, name):
        stubs.append(name)
        return (flag_test(V_PT) + [f"v_cmp_le_u32 vcc, {8-val}, v{V_PT}"],
                [f"s_add_u32 s{S_PV}, s{S_EP}, {val}", f"s_cbranch_vccnz L_stub_{name}", Label(f"L_ret_{name}")])
    def flag_test(r):
        return [f"v_and_b32 v{r}, 0xffffff87, v{r}", f"v_xor_b32 v{r+1}, s{S_EP2}, v{r+1}", f"v_subrev_u32 v{r}, s{S_PV}, v{r}",
                f"v_min_u32 v{r+1}, 1, v{r+1}", f"v_lshl_or_b32 v{r}, v{r+1}, 8, v{r}"]
    poll_load = lambda tag: (f"buffer_load_dwordx2 v[{V_PT}:{V_PT+1}], v{V_PA}, s[{S_WS}:{S_WS+3}], s{S_FO} offen sc1", tag)
    sig_store = f"buffer_store_dwordx2 v[{V_SV}:{V_SV+1}], v{V_SA}, s[{S_WS}:{S_WS+3}], s{S_FO} offen sc1"
    sig_val = lambda val: f"v_add_u32_e64 v{V_SV}, s{S_XCC}, {val}"

    p("s_cmp_ge_u32 s2, 256"); p("s_cbranch_scc1 L_done")
    stamp_rt(p, 20); stamp(p, 0)
    p(f"s_load_dwordx2 s[{S_XI}:{S_XI+1}], s[0:1], {ARG['x']}")
    p(f"s_load_dwordx2 s[{S_WQ}:{S_WQ+1}], s[0:1], {ARG['wq']}")
    p(f"s_load_dwordx4 s[68:71], s[0:1], {ARG['dbg']}")
    p(f"s_load_dwordx4 s[72:75], s[0:1], {ARG['wg']}")
    p(f"s_load_dwordx4 s[64:67], s[0:1], {ARG['k']}")
    p(f"s_getpc_b64 s[{S_K}:{S_K+1}]")
    p.label("L_pc0")
    p(f"s_and_b32 s{S_K+1}, s{S_K+1}, 0xffff"); p(f"s_mov_b32 s{S_K+2}, L_code_end-L_pc0"); p(f"s_mov_b32 s{S_K+3}, 0x20000")
    p(f"s_lshr_b32 s{S_T0}, s2, 3"); p(f"s_lshl_b32 s{S_T0}, s{S_T0}, 12"); p("v_lshlrev_b32 v16, 4, v0")
    p(f"buffer_load_dwordx4 v[160:163], v16, s[{S_K}:{S_K+3}], s{S_T0} offen", "CODE")
    p("v_lshrrev_b32 v16, 6, v0"); p("v_and_b32 v17, 63, v0")
    p(f"v_readfirstlane_b32 s{S_WAVE}, v16")
    p(f"s_and_b32 s{S_T0}, s2, 7"); p(f"s_lshr_b32 s{S_T1}, s2, 3")
    p(f"s_and_b32 s{S_RB}, s{S_T1}, 3"); p(f"s_lshr_b32 s{S_T1}, s{S_T1}, 2")
    p(f"s_and_b32 s{S_T2}, s{S_T0}, 1"); p(f"s_lshl_b32 s{S_T2}, s{S_T2}, 2"); p(f"s_add_u32 s{S_RB}, s{S_RB}, s{S_T2}")
    p(f"s_lshr_b32 s{S_T0}, s{S_T0}, 1"); p(f"s_lshl_b32 s{S_J}, s{S_T0}, 3"); p(f"s_add_u32 s{S_J}, s{S_J}, s{S_T1}")
    p("v_lshrrev_b32 v18, 5, v17"); p("v_and_b32 v19, 31, v17")
    p(f"s_lshl_b32 s{S_T0}, s{S_RB}, 8"); p(f"s_lshl_b32 s{S_T1}, s{S_J}, 3"); p(f"s_add_u32 s{S_T0}, s{S_T0}, s{S_T1}")
    p(f"s_lshl_b32 s{S_T1}, s{S_WAVE}, 1"); p(f"s_add_u32 s{S_T0}, s{S_T0}, s{S_T1}"); p(f"s_mul_i32 s{S_T0}, s{S_T0}, 1152")
    p("v_mul_u32_u24 v20, 1152, v18"); p("v_lshl_add_u32 v20, v19, 4, v20")
    p(f"s_mov_b32 s{S_XI+2}, {XN_BYTES}"); p(f"s_mov_b32 s{S_XI+3}, 0x20000")
    p(f"s_mov_b32 s{S_WQ+2}, {576*8192}"); p(f"s_mov_b32 s{S_WQ+3}, 0x20000")
    p(f"v_lshlrev_b32 v{V_L16}, 4, v17")
    p("v_cmp_gt_u32 vcc, 24, v19")
    p("s_waitcnt lgkmcnt(0)")
    LX = 96
    srd(p, S_DBG, 68, 256)
    p(f"s_lshl_b32 s{S_T1}, s2, 2"); p(f"s_add_u32 s{S_T1}, s{S_T1}, s{S_WAVE}"); p(f"s_cmp_lg_u32 s{S_T1}, 0"); p("s_cbranch_scc1 L_noleader")
    p("s_memrealtime s[76:77]"); p("v_mov_b32 v29, 0"); p("s_waitcnt lgkmcnt(0)")
    p("s_lshl_b64 s[76:77], s[76:77], 8"); p("s_or_b32 s76, s76, 128"); p("v_mov_b32 v30, s76"); p("v_mov_b32 v31, s77")
    p(f"buffer_store_dwordx2 v[30:31], v29, s[{S_DBG}:{S_DBG+3}], 0 offen sc1")
    p.label("L_noleader")
    for m in range(3):
        p(f"buffer_load_dwordx4 v[{LX+4*m}:{LX+4*m+3}], v20, s[{S_XI}:{S_XI+3}], s{S_T0} offen offset:{m*384}{NTX}", "LX")
    p(f"s_mov_b64 s[{S_RET}:{S_RET+1}], vcc")
    p("v_lshrrev_b32 v20, 4, v17"); p("v_and_b32 v22, 15, v17")
    p("v_lshlrev_b32 v23, 2, v20"); p("v_xor_b32 v23, v23, v22"); p("v_lshlrev_b32 v24, 13, v20"); p(f"v_lshl_add_u32 v{V_WQ}, v23, 4, v24")
    p(f"s_mul_i32 s{S_W6K}, s{S_WAVE}, 6144")
    p(f"s_mul_i32 s{S_BQ}, s{S_WAVE}, {24*8192}"); p(f"s_lshl_b32 s{S_T0}, s{S_J}, 8"); p(f"s_add_u32 s{S_BQ}, s{S_BQ}, s{S_T0}")

    stages = [("q", 0, sub, 0) for sub in range(6)] + [("h", 0, sub, 0) for sub in range(3)]
    for t in range(4): stages += [("f", t, sub, (t + 1) % 2) for sub in range(3)]
    NST = len(stages)
    tmpsel = [0]
    def tmp():
        tmpsel[0] ^= 1
        return (S_T0, S_T1)[tmpsel[0]]
    def w_dma(st):
        kind, t, sub, buf = stages[st]; slot = st % 4
        ops = []
        if kind == "q":
            for i in range(6):
                tm = tmp()
                sal = [f"s_add_u32 s{tm}, s{S_BQ}, {(sub * 96 + 4 * i) * 8192}", f"s_add_u32 m0, s{S_W6K}, {WSLOT[slot] + i*1024}"]
                ops.append((sal, (f"buffer_load_dwordx4 v{V_WQ}, s[{S_WQ}:{S_WQ+3}], s{tm} offen{NTQ} lds", f"W{st}")))
            return annotate(ops)
        for reg in range(2):
            for i in range(3):
                base, srdn = (S_BH if kind == "h" else S_BF), (S_WG, S_WU)[reg]
                imm = (sub * 192 + 16 * i) * 9216 + t * 64
                tm = tmp()
                sal = [f"s_add_u32 s{tm}, s{base}, {imm}", f"s_add_u32 m0, s{S_W3K}, {WSLOT[slot] + reg*12288 + i*1024}"]
                ops.append((sal, (f"buffer_load_dwordx4 v{V_WF}, s[{srdn}:{srdn+3}], s{tm} offen{NTW} lds", f"W{st}")))
        return annotate(ops)
    def x_loads(k0, k1):
        ops = []
        for ks in range(k0, k1):
            for mt in range(4):
                ops.append(([f"s_add_u32 s{S_RD}, s{S_XB}, {ks*4096}"] if mt == 0 else [],
                            (f"buffer_load_dwordx4 {xreg(ks, mt)}, v{V_L16}, s[{S_WS}:{S_WS+3}], s{S_RD} offen offset:{mt*1024} sc1", f"X{ks//3}")))
        return annotate(ops)
    def kv_dma(which, tile_slot, soff, add):
        ops = []
        for t in range(4):
            tm = tmp()
            base = (0 if which == "K" else 65536) + tile_slot * 16384 + t * 4096
            srdn = S_K if which == "K" else S_V
            if soff is None: sal = [f"s_mov_b32 s{tm}, {add + t*4096}"]
            else: sal = [f"s_add_u32 s{tm}, s{soff}, {add + t*4096}"]
            sal.append(f"s_add_u32 m0, s{S_W1K}, {base}")
            ops.append((sal, (f"buffer_load_dwordx4 v{V_KD if which == 'K' else V_VD}, s[{srdn}:{srdn+3}], s{tm} offen{NTKV} lds", f"{which}{tile_slot}")))
        return annotate(ops)
    def issue(ops):
        for sal, op in ops:
            for s in reversed(sal): p(s)
            p(op[0], op[1])
    PV_ = os.environ.get('PROV', 'D')
    if PV_ in 'AOCD': issue(w_dma(0))
    if PV_ == 'O': issue(w_dma(1))
    if 'hiws' in ABL:
        p(f"s_add_u32 s70, s70, {128<<20}"); p("s_addc_u32 s71, s71, 0")
    srd(p, S_WS, 70, WS_BYTES)
    srd(p, S_WG, 72, 576 * 9216); srd(p, S_WU, 74, 576 * 9216)
    if 'nobad' not in ABL:
        p(f"s_and_b32 s{S_T0}, s{S_WAVE}, 1"); p(f"s_cmp_eq_u32 s{S_T0}, 0")
        p(f"s_cselect_b32 s{S_V}, s{S_WG}, s{S_WU}"); p(f"s_cselect_b32 s{S_V+1}, s{S_WG+1}, s{S_WU+1}"); p(f"s_mov_b32 s{S_V+2}, {576*9216}"); p(f"s_mov_b32 s{S_V+3}, 0x20000")
        p(f"s_lshr_b32 s{S_T0}, s2, 3"); p(f"s_lshl_b32 s{S_T0}, s{S_T0}, 1"); p(f"s_lshr_b32 s{S_T1}, s{S_WAVE}, 1"); p(f"s_add_u32 s{S_T0}, s{S_T0}, s{S_T1}"); p(f"s_mul_i32 s{S_T0}, s{S_T0}, {9*9216}")
        p(f"s_lshr_b32 s{S_T2}, s{S_J}, 3"); p(f"s_mul_i32 s{S_T2}, s{S_T2}, 2304"); p(f"s_add_u32 s{S_T0}, s{S_T0}, s{S_T2}")
        p(f"s_sub_u32 s{S_T1}, 384, s{S_V}"); p(f"s_sub_u32 s{S_T1}, s{S_T1}, s{S_T2}"); p(f"s_and_b32 s{S_T1}, s{S_T1}, 1023"); p(f"s_add_u32 s{S_T0}, s{S_T0}, s{S_T1}")
        p("v_min_u32 v26, 26, v17"); p("v_mul_u32_u24 v27, 22, v26"); p("v_lshrrev_b32 v27, 6, v27")
        p(f"v_mul_u32_u24 v27, {9216 - 3072}, v27"); p("v_lshl_add_u32 v26, v26, 10, v27")
        p(f"buffer_load_dword v164, v26, s[{S_V}:{S_V+3}], s{S_T0} offen", "TCH")
    if 'finepro' in ABL: stamp(p, 2)
    F = 112
    p(f"s_mov_b32 s{S_T2}, 0xffff0000")
    for i in range(4): p(f"v_mov_b32 v{140+i}, 0")
    p(f"s_lshl_b32 s{S_T0}, s{S_WAVE}, 5"); p("v_lshlrev_b32 v25, 7, v19"); p("v_lshl_add_u32 v25, v18, 4, v25"); p(f"v_add_u32 v25, s{S_T0}, v25")
    p.items.append(WaitFor(vm=("LX",)))
    if 'finepro' in ABL: stamp(p, 3)
    for i in range(12):
        p(f"v_lshlrev_b32 v{F+2*i}, 16, v{LX+i}"); p(f"v_and_b32 v{F+2*i+1}, s{S_T2}, v{LX+i}")
    p(f"s_mov_b64 exec, s[{S_RET}:{S_RET+1}]")
    for e in range(24): p(f"v_add_f32 v{140+e%2}, v{140+e%2}, v{F+e}")
    p("s_mov_b64 exec, -1")
    def reduce32(r, t):
        p(f"v_add_f32 v{r}, v{r}, v{r+1}")
        for mod in ("quad_perm:[1,0,3,2]", "quad_perm:[2,3,0,1]", "row_half_mirror", "row_mirror"):
            p(f"v_add_f32_dpp v{r}, v{r}, v{r} {mod} row_mask:0xf bank_mask:0xf")
        p(f"v_mov_b32 v{t}, v{r}"); p(f"v_permlane16_swap_b32 v{r}, v{t}"); p(f"v_add_f32 v{r}, v{r}, v{t}")
    reduce32(140, 141)
    p(f"v_mul_f32 v140, {f2u(1.0/576)}, v140")
    p(f"s_mov_b64 exec, s[{S_RET}:{S_RET+1}]")
    for e in range(24):
        t = 144 + (e % 4)
        p(f"v_sub_f32 v{t}, v{F+e}, v140"); p(f"v_fmac_f32 v{142+e%2}, v{t}, v{t}")
    p("s_mov_b64 exec, -1")
    reduce32(142, 143)
    p(f"v_mul_f32 v142, {f2u(1.0/576)}, v142")
    def rnd(r):
        p(f"v_cvt_pk_bf16_f32 v{r}, v{r}, v{r}"); p(f"v_and_b32 v{r}, s{S_T2}, v{r}")
    rnd(142); rnd(140)
    p(f"v_add_f32 v142, {f2u(1e-5)}, v142"); rnd(142)
    p("v_sqrt_f32 v142, v142")
    for e in range(24): p(f"v_sub_f32 v{F+e}, v{F+e}, v140")
    rnd(142)
    p("v_rcp_f32 v143, v142")
    for i in range(12): p(f"v_cvt_pk_bf16_f32 v{F+2*i+1}, v{F+2*i}, v{F+2*i+1}")
    p("v_fma_f32 v144, -v142, v143, 1.0"); p("v_fmac_f32 v143, v144, v143")
    for i in range(12):
        p(f"v_lshlrev_b32 v{F+2*i}, 16, v{F+2*i+1}"); p(f"v_and_b32 v{F+2*i+1}, s{S_T2}, v{F+2*i+1}")
    for e in range(24): p(f"v_mul_f32 v{F+e}, v{F+e}, v143")
    for i in range(12): p(f"v_cvt_pk_bf16_f32 v{LX+i}, v{F+2*i}, v{F+2*i+1}")
    p(f"s_mov_b64 exec, s[{S_RET}:{S_RET+1}]")
    for m in range(3): p(f"ds_write_b128 v25, v[{LX+4*m}:{LX+4*m+3}] offset:{m*24*128}")
    p("s_mov_b64 exec, -1")
    p("v_lshrrev_b32 v26, 3, v17"); p("v_and_b32 v27, 3, v26"); p("v_lshrrev_b32 v26, 2, v26"); p("v_and_b32 v28, 7, v17")
    p("v_lshl_add_u32 v27, v27, 4, v28"); p("v_lshlrev_b32 v27, 4, v27"); p("v_lshl_add_u32 v26, v26, 12, v27")
    p(f"s_lshl_b32 s{S_T0}, s{S_RB}, 2"); p(f"s_lshr_b32 s{S_T1}, s{S_J}, 3"); p(f"s_add_u32 s{S_T0}, s{S_T0}, s{S_T1}"); p(f"s_mul_i32 s{S_T0}, s{S_T0}, 73728")
    p(f"s_and_b32 s{S_T1}, s{S_J}, 6"); p(f"s_lshl_b32 s{S_T1}, s{S_T1}, 9"); p(f"s_add_u32 s{S_T0}, s{S_T0}, s{S_T1}")
    p(f"s_and_b32 s{S_T1}, s{S_J}, 1"); p(f"s_lshl_b32 s{S_T1}, s{S_T1}, 7"); p(f"s_add_u32 s{S_T0}, s{S_T0}, s{S_T1}")
    p(f"s_lshl_b32 s{S_W1K}, s{S_WAVE}, 10")
    p("s_waitcnt lgkmcnt(0)"); p("s_barrier")
    p(f"s_cmp_lg_u32 s{S_WAVE}, 0"); p("s_cbranch_scc1 L_noxs")
    for m in range(9): p(f"ds_read_b128 v[{LX+4*m}:{LX+4*m+3}], v{V_L16} offset:{m*1024}")
    for m in range(9):
        p(f"s_waitcnt lgkmcnt({8-m})")
        p(f"buffer_store_dwordx4 v[{LX+4*m}:{LX+4*m+3}], v26, s[{S_WS}:{S_WS+3}], s{S_T0} offen sc1", "XS")
        if m < 8: p(f"s_add_u32 s{S_T0}, s{S_T0}, 8192")
    p.label("L_noxs")
    assert XN_OFF == 0
    if 'finepro' in ABL: stamp(p, 4)
    p("v_lshrrev_b32 v18, 2, v17"); p("v_and_b32 v19, 3, v17"); p("v_and_b32 v21, 3, v18")
    p("v_mov_b32 v29, 0")
    p(f"buffer_load_dwordx2 v[32:33], v29, s[{S_DBG}:{S_DBG+3}], 0 offen sc1", "EP")
    p(f"s_mov_b32 s{S_FO}, {FLAG_OFF}")
    p(f"s_getreg_b32 s{S_XCC}, hwreg(HW_REG_XCC_ID, 0, 4)"); p(f"s_lshl_b32 s{S_XCC}, s{S_XCC}, 3")
    p(f"s_lshl_b32 s{S_T0}, s{S_RB}, 11"); p(f"s_lshr_b32 s{S_T1}, s{S_J}, 3"); p(f"s_lshl_b32 s{S_T1}, s{S_T1}, 9"); p(f"s_add_u32 s{S_T1}, s{S_T1}, s{S_T0}")
    p(f"s_and_b32 s{S_T2}, s{S_J}, 7"); p(f"s_lshl_b32 s{S_T2}, s{S_T2}, 3"); p(f"s_add_u32 s{S_T1}, s{S_T1}, s{S_T2}")
    p(f"s_cmp_eq_u32 s{S_WAVE}, 0"); p(f"s_cselect_b32 s{S_T1}, s{S_T1}, {1 << 30}"); p(f"v_mov_b32 v{V_SA}, s{S_T1}")
    p(f"s_lshl_b32 s{S_T1}, s{S_WAVE}, 9"); p(f"s_add_u32 s{S_T0}, s{S_T0}, s{S_T1}"); p(f"v_lshl_add_u32 v30, v28, 3, s{S_T0}")
    p(f"s_lshl_b32 s{S_T0}, s{S_RB}, 2"); p(f"s_add_u32 s{S_T0}, s{S_T0}, s{S_WAVE}")
    p(f"s_mul_i32 s{S_XB}, s{S_T0}, 73728"); p(f"s_lshl_b32 s{S_OBASE}, s{S_T0}, 14")
    p("v_lshl_add_u32 v23, v20, 3, v21"); p("v_lshlrev_b32 v24, 8, v23"); p("v_lshl_add_u32 v24, v19, 4, v24"); p(f"v_add_u32 v24, {40*1024}, v24")
    for sg_ in range(4):
        p(f"v_xor_b32 v25, {sg_}, v21"); p(f"v_lshl_add_u32 v{V_RQ+sg_}, v25, 6, v24"); p(f"v_add_u32 v{V_RQ+4+sg_}, {64*1024}, v{V_RQ+sg_}")
    p(f"s_mov_b32 s{S_SPIN}, 0x40000")
    p.label("L_eppoll")
    p("s_waitcnt vmcnt(0)")
    p(f"v_readfirstlane_b32 s{S_EP}, v32"); p(f"v_readfirstlane_b32 s{S_EP2}, v33")
    p(f"s_cmp_lg_u32 s{S_EP}, 0"); p("s_cbranch_scc1 L_epok")
    p(f"buffer_load_dwordx2 v[32:33], v29, s[{S_DBG}:{S_DBG+3}], 0 offen sc1")
    p(f"s_sub_u32 s{S_SPIN}, s{S_SPIN}, 1"); p(f"s_cmp_lg_u32 s{S_SPIN}, 0"); p("s_cbranch_scc1 L_eppoll")
    p("s_waitcnt vmcnt(0)")
    p.label("L_epok")
    p(f"s_add_u32 s{S_XCC}, s{S_XCC}, s{S_EP}"); p(f"v_add_u32_e64 v32, s{S_XCC}, 1")
    p(f"buffer_store_dwordx2 v[32:33], v{V_SA}, s[{S_WS}:{S_WS+3}], s{S_FO} offen sc1")
    if 'finepro' in ABL: stamp(p, 5)
    if PV_ == 'B': issue(w_dma(0))
    if PV_ in 'CD': issue(w_dma(1))
    if PV_ == 'D': issue(w_dma(2))
    p("v_lshlrev_b32 v23, 6, v23")
    p("v_and_b32 v24, 1, v20"); p("v_lshlrev_b32 v24, 5, v24")
    p("v_lshl_add_u32 v25, v19, 3, v23")
    p(f"v_add_u32 v{V_RA}, v25, v24"); p(f"v_add_u32 v{V_RA}, {40*1024}, v{V_RA}")
    p(f"v_xor_b32 v{V_RA+1}, 32, v{V_RA}")
    p(f"v_add_u32 v{V_RA+2}, {64*1024}, v{V_RA}"); p(f"v_add_u32 v{V_RA+3}, {64*1024}, v{V_RA+1}")
    p(f"s_and_b32 s{S_T2}, s{S_J}, 1"); p(f"s_lshl_b32 s{S_T0}, s{S_T2}, 5")
    p(f"v_xor_b32 v{V_RH}, s{S_T0}, v{V_RA}"); p(f"v_add_u32 v{V_RH+1}, {64*1024}, v{V_RH}")
    p("v_lshrrev_b32 v23, 5, v17"); p("v_lshlrev_b32 v23, 1, v23"); p("v_xor_b32 v23, v23, v19")
    p(f"v_mul_u32_u24 v24, 9216, v18"); p(f"v_lshl_add_u32 v{V_WF}, v23, 4, v24")
    p(f"v_mov_b32 v{V_C1}, {f2u(GC1)}"); p(f"v_mov_b32 v{V_C2}, {f2u(GC2)}")
    p(f"s_mul_i32 s{S_W3K}, s{S_WAVE}, 3072")
    p(f"s_mul_i32 s{S_BH}, s{S_WAVE}, {48*9216}")
    p(f"s_mul_i32 s{S_RS}, s{S_J}, 288"); p(f"s_add_u32 s{S_RS}, s{S_RS}, s{S_T0}")
    p(f"s_add_u32 s{S_BF}, s{S_BH}, s{S_RS}")
    p(f"s_lshr_b32 s{S_T0}, s{S_J}, 1"); p(f"s_lshl_b32 s{S_T0}, s{S_T0}, 19")
    for d, b in ((S_K, 64), (S_V, 66)):
        p(f"s_add_u32 s{d}, s{b}, s{S_T0}"); p(f"s_addc_u32 s{d+1}, s{b+1}, 0"); p(f"s_mov_b32 s{d+2}, 524288"); p(f"s_mov_b32 s{d+3}, 0x20000")
    p(f"s_lshr_b32 s{S_T0}, s{S_J}, 1"); p(f"s_mul_i32 s{S_KOFF}, s{S_T0}, 576"); p(f"s_add_u32 s{S_KOFF}, s{S_KOFF}, 256")
    p(f"s_add_u32 s{S_BH}, s{S_BH}, s{S_KOFF}")
    def hoff(dst, colreg, add):
        p(f"s_lshr_b32 s{S_T0}, s{colreg}, 6"); p(f"s_add_u32 s{S_T0}, s{S_T0}, {add}")
        p(f"s_lshr_b32 s{S_T1}, s{S_T0}, 2"); p(f"s_lshl_b32 s{S_T1}, s{S_T1}, 19")
        p(f"s_and_b32 s{S_T0}, s{S_T0}, 3"); p(f"s_lshl_b32 s{S_T0}, s{S_T0}, 10")
        p(f"s_add_u32 s{dst}, s{S_T0}, s{S_T1}"); p(f"s_add_u32 s{dst}, s{dst}, s{S_OBASE}")
    hoff(S_HHALF, S_KOFF, 0); p(f"s_lshl_b32 s{S_T0}, s{S_T2}, 3"); p(f"s_add_u32 s{S_HHALF}, s{S_HHALF}, s{S_T0}")
    for t in range(4): hoff(S_HF + t, S_RS, t)
    p(f"s_lshl_b32 s{S_T0}, s{S_J}, 19"); p(f"s_add_u32 s{S_OBASE}, s{S_OBASE}, s{S_T0}")
    p(f"s_mov_b32 s{S_THR}, {f2u(THRESH)}")
    p(f"s_lshl_b32 s{S_T0}, s{S_WAVE}, 2"); p(f"v_add_u32 v23, s{S_T0}, v20")
    p(f"v_xor_b32 v24, v22, v23"); p(f"v_lshlrev_b32 v24, 4, v24"); p(f"v_lshl_add_u32 v{V_KD}, v23, 8, v24")
    p(f"v_and_b32 v24, 7, v23"); p(f"v_lshlrev_b32 v24, 1, v24"); p(f"v_xor_b32 v24, v22, v24"); p(f"v_lshlrev_b32 v24, 4, v24"); p(f"v_lshl_add_u32 v{V_VD}, v23, 8, v24")
    for ks in range(2, 4):
        p(f"v_add_u32 v23, {4*ks}, v20"); p("v_xor_b32 v23, v23, v22"); p("v_lshlrev_b32 v23, 4, v23"); p(f"v_lshl_add_u32 v{V_KA+ks}, v22, 8, v23")
    p("v_and_b32 v24, 7, v18"); p("v_lshlrev_b32 v25, 8, v18"); p("v_lshl_add_u32 v25, v19, 3, v25"); p("v_add_u32 v25, 0x10000, v25")
    for dt in range(8):
        p(f"v_xor_b32 v23, {dt}, v24"); p(f"v_lshl_add_u32 v{V_VA+dt}, v23, 5, v25")
    p(f"s_lshl_b32 s{S_T0}, s{S_WAVE}, 14"); p(f"s_cmp_eq_u32 s{S_WAVE}, 2"); p(f"s_cselect_b32 s{S_T0}, 0x10000, s{S_T0}")
    p(f"s_add_u32 s{S_T1}, s{S_T0}, 8192"); p(f"s_cmp_eq_u32 s{S_WAVE}, 3"); p(f"s_cselect_b32 s{S_T0}, 0x8000, s{S_T0}"); p(f"s_cselect_b32 s{S_T1}, {152*1024}, s{S_T1}")
    p(f"v_add_u32 v{V_QP}, s{S_T0}, v{V_L16}"); p(f"v_add_u32 v{V_QP+1}, s{S_T1}, v{V_L16}")
    p(f"s_lshl_b32 s{S_T0}, s{S_RB}, 11"); p(f"s_and_b32 s{S_T1}, s{S_J}, 24"); p(f"s_lshl_b32 s{S_T1}, s{S_T1}, 6"); p(f"s_add_u32 s{S_T0}, s{S_T0}, s{S_T1}")
    p(f"v_lshl_add_u32 v{V_TA}, v28, 3, s{S_T0}"); p(f"s_add_u32 s{S_PV}, s{S_EP}, 1")
    p(f"s_mov_b32 s{S_SPIN}, 0x40000")
    p.label("L_xpoll")
    p(f"buffer_load_dwordx2 v[34:35], v30, s[{S_WS}:{S_WS+3}], s{S_FO} offen sc1")
    p("s_waitcnt vmcnt(0)")
    for t in flag_test(34): p(t)
    p("v_cmp_le_u32 vcc, 7, v34")
    p("s_cbranch_vccz L_xready")
    p(f"s_sub_u32 s{S_SPIN}, s{S_SPIN}, 1"); p("s_sleep 1"); p(f"s_cmp_lg_u32 s{S_SPIN}, 0"); p("s_cbranch_scc1 L_xpoll")
    p.label("L_xready")
    if 'finepro' in ABL: stamp(p, 6)

    groups = []
    for st in range(NST):
        kind, t, sub, buf = stages[st]
        if kind == "q":
            for nt in range(8): groups.append((st, nt, 0))
        else:
            nts = [0, 2] if kind == "h" else [0, 1, 2, 3]
            for c0 in (0, 3):
                for nt in nts: groups.append((st, nt, c0))
    def a_reads(gi):
        st, nt, c0 = groups[gi]; kind, t, sub, buf = stages[st]
        hb, off = wbase(st % 4)
        out = []
        for c in range(3):
            for tt in range(2):
                d = V_AF + (gi % 3) * 12 + c * 4 + 2 * tt
                if kind == "q":
                    addr = V_RQ + 4 * hb + (nt >> 1); o = off + c * 8192 + tt * 1024 + 8 * (nt & 1)
                else:
                    addr = (V_RA + 2 * hb + (nt & 1)) if kind == "f" else (V_RH + hb)
                    o = off + (nt >> 1) * 12288 + (c0 + c) * 2048 + tt * 256
                out.append((f"ds_read_b64_tr_b16 v[{d}:{d+1}], v{addr} offset:{o}", f"A{gi%3}"))
        return out
    acc = lambda buf, nt, mt: V_ACC + buf * 64 + (nt * 4 + mt) * 4
    gaps = []; gstart = []
    for gi, (st, nt, c0) in enumerate(groups):
        gstart.append(len(gaps))
        kind, t, sub, buf = stages[st]
        for mt in range(4):
            for c in range(3):
                a = acc(buf, nt, mt); af = V_AF + (gi % 3) * 12 + c * 4
                ks = (sub * 3 if kind == "q" else sub * 6 + c0) + c
                C = "0" if ks == 0 else f"v[{a}:{a+3}]"
                gaps.append(Gap(f"v_mfma_f32_16x16x32_bf16 v[{a}:{a+3}], v[{af}:{af+3}], {xreg(ks, mt)}, {C}"))
    NG = len(groups)
    first_of_stage = {}
    for gi, (st, nt, c0) in enumerate(groups): first_of_stage.setdefault(st, gi)
    bar_gap = {}
    for gi in range(2, NG):
        st = groups[gi][0]; f = first_of_stage[st]
        rd = a_reads(gi)
        if gi == f:
            g0 = gstart[gi - 1]; bar_gap[st] = g0 - 1
            for n, r in enumerate(rd): gaps[g0 + n].mem.append(r)
        elif gi == f + 1:
            g0 = gstart[gi - 2]
            for n, r in enumerate(rd): gaps[g0 + 6 + n].mem.append(r)
        else:
            g0 = gstart[gi - 2]
            for n, r in enumerate(rd): gaps[g0 + 2 * n].mem.append(r)
    for gi in range(1, NG):
        g = gaps[gstart[gi] - 1]
        st, nt, c0 = groups[gi]
        vm = []
        if st < 6 and nt == 0: vm.append(f"X{st}")
        nxt = groups[gi + 1][0] if gi + 1 < NG else None
        if nxt is not None and nxt != st:
            g.sh.append(WaitFor(vm=vm + [f"W{nxt}"], lg0=True)); g.sh.append("s_barrier")
        else:
            g.sh.append(WaitFor(lg=(f"A{gi%3}",), vm=vm))
    def place_mem(gaps, ops, g0, g1, dense=False, want=0):
        pitch = max(1.0, (g1 - g0 - 8) / len(ops)) if not dense else 1.0
        last = g0
        for n, (sal, op) in enumerate(ops):
            g = max(last + 1 + len(sal), int(g0 + 2 + n * pitch))
            while True:
                assert g < g1, (g0, g1, n, len(ops))
                ok = (len(gaps[g].mem) <= 1 if dense else len(gaps[g].mem) == want) and all(len(gaps[g - len(sal) + i].sh) == 0 for i in range(len(sal)))
                if ok: break
                g += 1
            for i, s in enumerate(sal): gaps[g - len(sal) + i].sh.append(s)
            gaps[g].mem.append(op); last = g
    for st in range(NST):
        g0 = gstart[first_of_stage[st]]
        g1 = bar_gap[st + 1] if st + 1 < NST else len(gaps)
        ops = []
        if st == 0: ops = (w_dma(2) if PV_ != 'D' else []) + x_loads(6, 9) + w_dma(3)
        elif st == 1: ops = x_loads(9, 12) + w_dma(4)
        elif st == 2: ops = x_loads(12, 15) + w_dma(5)
        elif st == 3: ops = x_loads(15, 18) + w_dma(6)
        elif st + 3 < NST: ops = w_dma(st + 3)
        if st == 4: ops = [([], (f"buffer_load_dword v{V_TA+1}, v{V_TA}, s[{S_WS}:{S_WS+3}], s{S_FO} offen sc1", "GX"))] + ops
        if st == 18: ops += kv_dma("V", VS(0), None, 0)
        if st == 19: ops += kv_dma("K", KS(0), None, 0)
        if st == 20: ops += kv_dma("K", KS(1), None, 16384) + kv_dma("V", VS(1), None, 16384) + kv_dma("K", KS(2), None, 32768)
        if ops: place_mem(gaps, ops, g0, g1 if st < 20 else g0 + 60)
        if st == 19:
            cand = [g for g in range(g0 + 3, g1 - 2) if not gaps[g].mem][::2]
            assert len(cand) >= 16
            for f, g in enumerate(cand[:16]):
                gaps[g].mem.append((f"ds_read_b128 a[{A_Q+4*f}:{A_Q+4*f+3}], v{V_QP + f//8} offset:{(f%8)*1024}", "QR"))
    def ffn_epi(st0, pk=False, mts=(0, 1, 2, 3)):
        kind, t, sub, buf = stages[st0]
        q = []
        for mt in mts:
            if kind == "f": el = [(acc(buf, n, mt) + r, acc(buf, 2 + n, mt) + r) for n in range(2) for r in range(4)]
            else: el = [(acc(buf, 0, mt) + r, acc(buf, 2, mt) + r) for r in range(4)]
            T = V_T + 8 * (mt % 2)
            if pk:
                pr = lambda r: f"v[{r}:{r+1}]"
                ev = list(enumerate(el))[::2]
                for e, (g, u) in ev: q.append(f"v_pk_mul_f32 {pr(T+e)}, {pr(g)}, {pr(g)}")
                for e, (g, u) in ev: q.append(f"v_pk_fma_f32 {pr(T+e)}, {pr(T+e)}, {pr(V_C1)}, {pr(V_C1)} op_sel:[0,1,0] op_sel_hi:[1,1,0]")
                for e, (g, u) in ev: q.append(f"v_pk_mul_f32 {pr(T+e)}, {pr(T+e)}, {pr(g)}")
                for e, (g, u) in enumerate(el): q.append(f"v_exp_f32 v{T+e}, v{T+e}")
                for e, (g, u) in ev: q.append(f"v_pk_mul_f32 {pr(g)}, {pr(g)}, {pr(u)}")
                for e, (g, u) in ev: q.append(f"v_pk_add_f32 {pr(T+e)}, {pr(T+e)}, 1.0 op_sel_hi:[1,0]")
                for e, (g, u) in enumerate(el): q.append(f"v_rcp_f32 v{T+e}, v{T+e}")
                for e, (g, u) in ev: q.append(f"v_pk_mul_f32 {pr(g)}, {pr(g)}, {pr(T+e)}")
            else:
                for e, (g, u) in enumerate(el): q.append(f"v_mul_f32 v{T+e}, v{g}, v{g}")
                for e, (g, u) in enumerate(el): q.append(f"v_fma_f32 v{T+e}, v{T+e}, v{V_C2}, v{V_C1}")
                for e, (g, u) in enumerate(el): q.append(f"v_mul_f32 v{T+e}, v{T+e}, v{g}")
                for e, (g, u) in enumerate(el):
                    q.append(f"v_exp_f32 v{T+e}, v{T+e}"); q.append(f"v_mul_f32 v{g}, v{g}, v{u}")
                for e, (g, u) in enumerate(el): q.append(f"v_add_f32 v{T+e}, 1.0, v{T+e}")
                for e, (g, u) in enumerate(el): q.append(f"v_rcp_f32 v{T+e}, v{T+e}")
                for e, (g, u) in enumerate(el): q.append(f"v_mul_f32 v{g}, v{g}, v{T+e}")
            o = V_HO + 4 * (mt % 2)
            for i in range(len(el) // 2): q.append(f"v_cvt_pk_bf16_f32 v{o+i}, v{el[2*i][0]}, v{el[2*i+1][0]}")
            if kind == "f":
                q.append(("MEM", [f"s_add_u32 s{S_T2}, s{S_HF+t}, {H_OFF + mt*4096}"], (f"buffer_store_dwordx4 v[{o}:{o+3}], v{V_L16}, s[{S_WS}:{S_WS+3}], s{S_T2} offen{SCH}", None)))
            else:
                q.append(("MEM", [f"s_add_u32 s{S_T2}, s{S_HHALF}, {H_OFF + mt*4096}"], (f"buffer_store_dwordx2 v[{o}:{o+1}], v{V_L16}, s[{S_WS}:{S_WS+3}], s{S_T2} offen{SCH}", None)))
        return q
    def q_epi(seg):
        q = []
        for mt in range(4):
            rs = [acc(0, 2 * seg, mt) + r for r in range(4)] + [acc(0, 2 * seg + 1, mt) + r for r in range(4)]
            o = V_T + 4 * ((seg * 4 + mt) % 4)
            for r in rs: q.append(f"v_mul_f32 v{r}, {f2u(QSCALE)}, v{r}")
            for i in range(4): q.append(f"v_cvt_pk_bf16_f32 v{o+i}, v{rs[2*i]}, v{rs[2*i+1]}")
            f = mt * 4 + seg
            q.append(("MEM", [], (f"ds_write_b128 v{V_QP + f//8}, v[{o}:{o+3}] offset:{(f%8)*1024}", None)))
        return q
    sg = lambda st: gstart[first_of_stage[st]]
    gaps[bar_gap[20] - 11].post += [f"s_load_dwordx2 s[64:65], s[0:1], {ARG['wo']}", f"s_load_dwordx2 s[66:67], s[0:1], {ARG['wd']}",
                                    f"s_load_dwordx2 s[{S_OUT}:{S_OUT+1}], s[0:1], {ARG['out']}"]
    g_ = gaps[sg(8) + 1]
    g_.post += [WaitFor(vm=("GX",)), f"v_subrev_u32 v{V_TA+1}, s{S_XCC}, v{V_TA+1}", f"v_cmp_le_u32 vcc, 8, v{V_TA+1}", "s_nop 1",
                "s_cmp_lg_u64 vcc, 0", f"s_cselect_b32 s{S_MIX}, 1, {1 if 'forcemix' in ABL else 0}"]
    f5 = first_of_stage[5]
    q = []; mins = []
    for seg in range(4):
        e_ = q_epi(seg); q += e_; mins += [gstart[f5 + 2 * seg + 2] + 3] * len(e_)
    left = fill_valu(gaps[:sg(9) - 3], gstart[f5 + 2] + 3, q, mins=mins); assert not left, len(left)
    for seg, lim_ in ((0, sg(6) - 3), (1, sg(6) + 9)):
        cv_ = [x for x in q_epi(seg) if isinstance(x, str)]
        lastg = max(gi for gi, g in enumerate(gaps) for x in g.valu if x in cv_ and gi < sg(9))
        assert lastg < lim_, (seg, lastg, lim_)
    for st0 in (6, 9, 12, 15):
        end = sg(st0 + 6) - 3 if st0 + 6 < NST else len(gaps)
        left = fill_valu(gaps[:end], sg(st0 + 3) + 3, ffn_epi(st0)); assert not left, (st0, len(left))
    left = fill_valu(gaps, sg(19), [f"v_xor_b32 v{V_KA}, 128, v{V_KA+2}", f"v_xor_b32 v{V_KA+1}, 128, v{V_KA+3}"]); assert not left
    issue(x_loads(0, 3))
    p("s_barrier")
    for t, tag in a_reads(0) + a_reads(1): p(t, tag)
    if PV_ in 'AB': issue(w_dma(1))
    issue(x_loads(3, 6))
    p.items.append(WaitFor(lg=("A0",), vm=("X0",)))
    stamp(p, 1)
    if 'finepro' in ABL:
        gaps[sg(1) - 1].post += stamp_ops(7); gaps[sg(2) - 1].post += stamp_ops(8); gaps[sg(3) - 1].post += stamp_ops(9)
    elif 'fine1' in ABL:
        for st in range(6, 21): gaps[sg(st) - 1].post += stamp_ops(st - 4)
    else:
        gaps[sg(6) - 1].post += stamp_ops(2); gaps[sg(12) - 1].post += stamp_ops(3)
    emit_gaps(p, gaps)
    if 'fine1' in ABL:
        stamp(p, 17); globals()['ABL'] += ',finepro'
    if 'finepro' not in ABL: stamp(p, 4)

    Sreg = lambda par, kt, qt: V_S + (1 - par) * 64 + (kt * 4 + qt) * 4
    Preg = lambda par, kb, qt: (V_P0 + par * 16 + qt * 4) if kb == 0 else (V_P1 + qt * 4)
    Kf = lambda kt, ks: A_KF + (kt % 2) * 16 + ks * 4
    Vf = lambda dt, kb: A_VF + (dt % 4) * 8 + kb * 4
    def k_reads(slot, kt):
        return [(f"ds_read_b128 a[{Kf(kt,ks)}:{Kf(kt,ks)+3}], v{V_KA+ks} offset:{slot*16384 + kt*4096}", f"KF{kt%2}") for ks in range(4)]
    def v_reads(slot, dt):
        return [(f"ds_read_b64_tr_b16 a[{Vf(dt,kb)+2*t}:{Vf(dt,kb)+2*t+1}], v{V_VA+dt} offset:{slot*16384 + kb*8192 + t*4096}", f"VF{dt%4}") for kb in range(2) for t in range(2)]
    def qk_mfma(par, kt, qt, ks, zero=False):
        s = Sreg(par, kt, qt)
        C = f"v[{s}:{s+3}]" if ks else ("0" if zero else f"v[{V_NM+4*qt}:{V_NM+4*qt+3}]")
        qf = A_Q + (qt * 4 + ks) * 4
        return f"v_mfma_f32_16x16x32_bf16 v[{s}:{s+3}], a[{Kf(kt,ks)}:{Kf(kt,ks)+3}], a[{qf}:{qf+3}], {C}"
    def pv_mfma(par, dt, qt, kb):
        o = A_O + (dt * 4 + qt) * 4; pr = Preg(par, kb, qt)
        return f"v_mfma_f32_16x16x32_bf16 a[{o}:{o+3}], a[{Vf(dt,kb)}:{Vf(dt,kb)+3}], v[{pr}:{pr+3}], a[{o}:{o+3}]"
    def l_mfma(par, qt, kb):
        pr = Preg(par, kb, qt)
        return f"v_mfma_f32_16x16x32_bf16 v[{V_LD}:{V_LD+3}], v[{V_ONE}:{V_ONE+3}], v[{pr}:{pr+3}], " + ("0" if kb == 0 else f"v[{V_LD}:{V_LD+3}]")
    def elem(par, tau):
        kb = tau // 32; r = tau % 32; qt = 2 * (r // 16) + ((r % 4) >> 1); j = 2 * ((r % 16) // 4) + (r & 1)
        return Sreg(par, 2 * kb + (j >> 2), qt) + (j & 3), kb, qt, j
    def op_exp(par, tau): return f"v_exp_f32 v{V_E + tau % 8}, v{elem(par, tau)[0]}"
    def op_add(par, tau):
        s, kb, qt, j = elem(par, tau); assert qt % 2 == 1
        src = V_LS + (1 - par) * 4 + qt if (kb == 0 and j == 0) else V_LS + par * 4 + qt
        return f"v_add_f32 v{V_LS + par*4 + qt}, v{src}, v{V_E + tau % 8}"
    def op_ladd(par, qt): return f"v_add_f32 v{V_LS + par*4 + qt}, v{V_LS + (1-par)*4 + qt}, v{V_LD}"
    def op_cvt(par, tau):
        s, kb, qt, j = elem(par, tau); assert tau % 2 == 1
        return f"v_cvt_pk_bf16_f32 v{Preg(par, kb, qt) + j//2}, v{V_E + (tau-1) % 8}, v{V_E + tau % 8}"
    def rowmax(p, par, qt, dst):
        regs = [Sreg(par, kt, qt) + r for kt in range(4) for r in range(4)]
        p(f"v_max3_f32 v{dst}, v{regs[0]}, v{regs[1]}, v{regs[2]}")
        for i in range(3, 15, 2): p(f"v_max3_f32 v{dst}, v{dst}, v{regs[i]}, v{regs[i+1]}")
        p(f"v_max_f32 v{dst}, v{dst}, v{regs[15]}")
    def xlane_ops(op, dsts, t1):
        o = []
        for sw in ("v_permlane32_swap_b32", "v_permlane16_swap_b32"):
            for q, d in enumerate(dsts): o.append(f"v_mov_b32 v{t1+q}, v{d}")
            for q, d in enumerate(dsts): o.append(f"{sw} v{d}, v{t1+q}")
            for q, d in enumerate(dsts): o.append(f"{op} v{d}, v{d}, v{t1+q}")
        return o

    p.items.append(WaitFor(vm=(f"K{KS(0)}",), lg0=True)); p("s_barrier")
    for t, tag in k_reads(KS(0), 0) + k_reads(KS(0), 1): p(t, tag)
    g0 = []
    for kt in range(4):
        for qt in range(4):
            for ks in range(4): g0.append(Gap(qk_mfma(0, kt, qt, ks, zero=True)))
    for n, r in enumerate(k_reads(KS(0), 2)): g0[16 + 2 * n].mem.append(r)
    for n, r in enumerate(k_reads(KS(0), 3)): g0[32 + 2 * n].mem.append(r)
    g0[31].sh.append(WaitFor(lg=("KF0",))); g0[47].sh.append(WaitFor(lg=("KF1",)))
    place_mem(g0, kv_dma("K", KS(3), None, 3 * 16384) + kv_dma("V", VS(2), None, 2 * 16384), 0, 40)
    full = ffn_epi(18); per = len(full) // 4
    npre = 24
    if 'finea' in ABL: stamp(p, 0)
    emit_ops(p, full[:npre])
    left = fill_valu(g0, 0, full[npre:2 * per])
    left += ffn_epi(18, pk=True, mts=(2, 3))
    p.items.append(WaitFor(lg=("KF0", "KF1")))
    sal = [f"s_mov_b32 s{S_OUT+2}, {XN_BYTES}",
           f"s_and_b32 s{S_T0}, s{S_J}, 7", f"s_lshl_b32 s{S_T1}, s{S_RB}, 3", f"s_add_u32 s{S_T0}, s{S_T0}, s{S_T1}",
           f"s_lshl_b32 s{S_T0}, s{S_T0}, 2", f"s_add_u32 s{S_T0}, s{S_T0}, s{S_WAVE}", f"s_lshr_b32 s{S_KOFF}, s{S_J}, 3",
           f"s_sub_u32 s{S_T1}, s{S_T0}, 120", f"s_cmp_lt_u32 s{S_T0}, 120",
           f"s_cselect_b32 s{S_RE}, s{S_T0}, s{S_T1}", f"s_movk_i32 s{S_RNW}, 136", f"s_cselect_b32 s{S_RNW}, 120, s{S_RNW}",
           f"s_cselect_b32 s{S_WG}, s64, s66", f"s_cselect_b32 s{S_WG+1}, s65, s67",
           f"s_mov_b32 s{S_WG+2}, {1152*1152}", f"s_cselect_b32 s{S_WG+2}, {1024*1152}, s{S_WG+2}", f"s_mov_b32 s{S_WU+2}, s{S_WG+2}",
           f"s_mov_b32 s{S_T0}, {WPD_OFF}", f"s_cselect_b32 s{S_T0}, {WPO_OFF}, s{S_T0}",
           f"s_mul_i32 s{S_T1}, s{S_KOFF}, s{S_WG+2}",
           f"s_add_u32 s{S_WG}, s{S_WG}, s{S_T1}", f"s_addc_u32 s{S_WG+1}, s{S_WG+1}, 0",
           f"s_add_u32 s{S_T0}, s{S_T0}, s{S_T1}", f"s_add_u32 s{S_WU}, s70, s{S_T0}", f"s_addc_u32 s{S_WU+1}, s71, 0",
           f"s_sub_u32 s{S_RE}, s{S_RE}, s{S_RNW}",
           f"s_mov_b32 s{S_KOFF}, {4*16384}", f"s_mov_b32 s{S_VOFF}, {3*16384}", f"s_mov_b32 s{S_CNT}, 7",
           f"s_lshl_b32 s{S_BQ}, s{S_WAVE}, 11", f"s_add_u32 s{S_BQ}, s{S_BQ}, {128*1024}"]
    fr_ = [g for g in g0[41:] if not g.sh]
    k_ = sal.index(f"s_cmp_lt_u32 s{S_T0}, 120")
    for t, g in zip(sal[:k_], fr_): g.sh.append(t)
    emit_gaps(p, g0)
    emit_ops(p, left)
    for t in sal[k_:]: p(t)
    for q in range(4): p(f"v_mov_b32 v{V_LS+4+q}, 0")
    for q in range(4): p(f"v_mov_b32 v{V_ONE+q}, 0x3f803f80")
    p.items.append(WaitFor(vm=(f"K{KS(1)}", f"V{VS(0)}"))); p("s_barrier")
    for t, tag in k_reads(KS(1), 0) + k_reads(KS(1), 1): p(t, tag)
    p(f"v_lshrrev_b32 v{V_PT+1}, 4, v{V_L16}")
    p(f"v_lshrrev_b32 v{V_RPG}, 2, v{V_PT+1}"); p(f"v_and_b32 v{V_PT}, 3, v{V_PT+1}")
    p(f"v_lshlrev_b32 v{V_RPL}, 6, v{V_RPG}"); p(f"v_lshl_add_u32 v{V_RPL}, v{V_PT}, 3, v{V_RPL}"); p(f"v_add_u32 v{V_RPL}, s{S_BQ}, v{V_RPL}")
    p(f"v_mul_u32_u24 v{V_RPG}, 1152, v{V_RPG}"); p(f"v_lshl_add_u32 v{V_RPG}, v{V_PT}, 4, v{V_RPG}")
    p(f"s_and_b32 s{S_T1}, s{S_J}, 24"); p(f"s_lshl_b32 s{S_T1}, s{S_T1}, 6"); p(f"v_and_b32 v{V_PT}, 7, v{V_PT+1}")
    p(f"v_lshrrev_b32 v{V_PA}, 3, v{V_PT+1}"); p(f"v_lshlrev_b32 v{V_PA}, 11, v{V_PA}"); p(f"v_lshl_add_u32 v{V_PA}, v{V_PT}, 3, v{V_PA}")
    p(f"v_add_u32 v{V_PA}, s{S_T1}, v{V_PA}")
    p(f"v_mov_b32 v{V_SV+1}, s{S_EP2}")
    zm = [f"v_mfma_f32_32x32x16_bf16 a[{A_O+16*i}:{A_O+16*i+15}], v[{V_LS+4}:{V_LS+7}], v[{V_LS+4}:{V_LS+7}], 0" for i in range(8)]
    for qt in range(4):
        p(zm[qt]); rowmax(p, 0, qt, V_R + qt)
    for n, t in enumerate(xlane_ops("v_max_f32", [V_R + q for q in range(4)], V_R + 4)):
        if n % 8 == 0: p(zm[4 + n // 8])
        p(t)
    p(zm[7])
    for qt in range(4):
        for r in range(4): p(f"v_sub_f32 v{V_NM+4*qt+r}, {f2u(-BIAS) if BIAS else 0}, v{V_R+qt}")
    for kt in range(4):
        for qt in range(4):
            for r in (0, 2):
                s_ = Sreg(0, kt, qt) + r
                p(f"v_pk_add_f32 v[{s_}:{s_+1}], v[{s_}:{s_+1}], v[{V_NM+4*qt}:{V_NM+4*qt+1}]")
    for tau in range(36):
        p(op_exp(0, tau))
        if tau % 4 == 0 and tau: p(op_add(0, tau - 1)); p(op_cvt(0, tau - 1))
        if tau % 4 == 2: p(op_cvt(0, tau - 1))
        if tau % 4 == 3: p(op_add(0, tau - 1))
    p.items.append(WaitFor(lg=("KF0",)))
    p(op_add(0, 35))
    if 'finepro' not in ABL: stamp(p, 5); stamp_rt(p, 15)

    rare_sites = []
    class Tile: pass
    def used(g): return len(g.mem) + sum(slots_of(v) for v in g.valu)
    def att_tile(it, last_block=False, first_mfmas=None):
        par = it % 2
        final = last_block and it == 3
        T = Tile(); G = []; Q = []; PV = []; LG = []
        mf = first_mfmas or [qk_mfma(1 - par, kt, qt, ks) for kt in range(4) for qt in range(4) for ks in range(4)]
        for i, m in enumerate(mf):
            g = Gap(m); G.append(g); Q.append(g)
            if i in (19, 23, 51, 55):
                g = Gap(l_mfma(par, 0 if i < 32 else 2, 0 if i in (19, 51) else 1)); G.append(g); LG.append(g)
        for dt in range(8):
            for qt in range(4):
                for kb in range(2):
                    g = Gap(pv_mfma(par, dt, qt, kb)); G.append(g); PV.append(g)
        T.G, T.Q, T.PV, T.LG = G, Q, PV, LG
        idx = {id(g): i for i, g in enumerate(G)}
        T.idx = lambda g: idx[id(g)]
        br = Q[-1]
        for b in range(64):
            E, N = (Q[2*b], Q[2*b+1]) if b < 32 else (PV[2*b-64], PV[2*b-63])
            sp, tau = (par, 36 + b) if b < 28 else (1 - par, b - 28)
            if tau % 4 == 0:
                if not (final and b > 28): N.valu.append(op_cvt(sp, tau - 1) if b != 28 else op_cvt(par, 63))
            if final and b >= 28: continue
            E.valu.append(op_exp(sp, tau))
            if tau % 4 == 1: N.valu.append(op_cvt(sp, tau))
            if tau % 4 >= 2: (br if b in (30, 31) else N).valu.append(op_add(sp, tau))
        L = V_LS + par * 4
        site = f"{'z' if last_block else 'l'}{it}"; rare_sites.append((site, "Z" if final else str(par)))
        Q[29].valu.append(op_ladd(par, 0))
        Q[57].valu.append(f"v_max3_f32 v{V_CK}, v{L}, v{L+1}, v{L+3}")
        Q[59].valu.append(op_ladd(par, 2))
        Q[61].valu += [f"v_max_f32 v{V_CK}, v{V_CK}, v{L+2}", f"v_cmp_lt_f32 vcc, s{S_THR}, v{V_CK}"]
        br.sh += [f"s_cbranch_vccnz L_rare_stub{site}", Label(f"L_rare_ret{site}")]
        PV[1].sh.append("s_barrier"); T.wv = []
        T.reserved = {id(PV[0]), id(PV[1])}
        if 'barE' in ABL and not final:
            PV[3].valu = PV[1].valu + PV[3].valu; PV[1].valu = []; T.reserved.add(id(PV[3]))
        kslot1, kslot2, vslot = KS(it + 1), KS(it + 2), VS(it)
        if not final:
            Q[15].sh.append(WaitFor(lg=("KF1",))); Q[31].sh.append(WaitFor(lg=("KF0",))); Q[47].sh.append(WaitFor(lg=("KF1",)))
        Q[-2].sh.append(WaitFor(lg=("VF0", "VF1", "VF2", "VF3")))
        for dt in range(4, 8): PV[8 * dt - 1].sh.append(WaitFor(lg=(f"VF{dt%4}",)))
        T.cur = 0; T.lastdma = -1
        def put(op, lo=None, sal=(), cap=2):
            g = max(T.cur, T.idx(lo) if lo is not None else 0)
            while True:
                assert g < len(G), op
                ok = not G[g].mem and used(G[g]) < cap and id(G[g]) not in T.reserved
                if ok and sal:
                    fr = [h for h in range(max(T.lastdma + (0 if len(sal) == 2 else 1), g - 6, 0), g) if not G[h].sh and id(G[h]) not in T.reserved]
                    ok = len(fr) >= len(sal)
                if ok: break
                g += 1
            if sal:
                for h, s_ in zip(fr[-len(sal):], sal): G[h].sh.append(s_)
                T.lastdma = g
            G[g].mem.append(op); T.cur = g + 1
            return g
        T.put = put
        def solo(g, sal, op, nxt=None):
            gi = T.idx(g)
            assert not g.mem
            if g.valu:
                assert not nxt.mem; nxt.valu = g.valu + nxt.valu; g.valu = []; T.reserved.add(id(nxt))
            fr = [h for h in range(gi - 3, gi) if not G[h].sh]
            assert len(fr) >= len(sal), (gi, sal)
            for h, s_ in zip(fr[-len(sal):], sal): G[h].sh.append(s_)
            g.mem.append(op); T.lastdma = max(T.lastdma, gi)
        T.solo = solo
        T.endsal = []
        if not final:
            if not (last_block and it >= 2):
                sal_, op = kv_dma("V", VS(it + 2), S_VOFF, -16384)[3]; solo(LG[0], sal_, op)
            if not last_block:
                dk = kv_dma("K", KS(it), S_KOFF, 0)
                solo(LG[1], *dk[0]); solo(Q[41], *dk[1], nxt=Q[43]); solo(LG[2], *dk[2]); solo(LG[3], *dk[3])
                T.endsal.append(f"s_add_u32 s{S_KOFF}, s{S_KOFF}, 16384")
            for r in v_reads(vslot, 0) + v_reads(vslot, 1): put(r)
            for r in k_reads(kslot1, 2): put(r, Q[16])
            v23 = v_reads(vslot, 2) + v_reads(vslot, 3)
            for r in v23[:3]: put(r)
            for r in k_reads(kslot1, 3): put(r, Q[32])
            for r in v23[3:]: put(r)
            assert T.cur <= T.idx(Q[55]), (it, T.cur)
        if not (last_block and it >= 1):
            dv = kv_dma("V", VS(it + 3), S_VOFF, 0)
            solo(PV[5], *dv[0], nxt=PV[7]); solo(PV[57], *dv[1], nxt=PV[59]); solo(PV[61], *dv[2], nxt=PV[63])
        T.cur = T.idx(PV[2])
        T.pv_v = [(r, PV[8 * (dt - 4) + 8]) for dt in range(4, 8) for r in v_reads(vslot, dt)]
        if not (last_block and it >= 2):
            for r, lo in T.pv_v: put(r, lo)
            for r in k_reads(kslot2, 0) + k_reads(kslot2, 1): put(r)
            T.wv.append(f"K{kslot2}")
            T.endsal += [WaitFor(lg=("KF0",)), f"s_add_u32 s{S_VOFF}, s{S_VOFF}, 16384"]
        if not last_block and it == 0:
            sl = [f"s_add_u32 s{S_RE}, s{S_RE}, s{S_RNW}", f"s_mul_i32 s{S_RS}, s{S_RE}, 3641", f"s_lshr_b32 s{S_RS}, s{S_RS}, 16",
                  f"s_mul_i32 s{S_RS}, s{S_RS}, {36864-1152}", f"s_lshl_b32 s{S_RD}, s{S_RE}, 6", f"s_add_u32 s{S_RS}, s{S_RS}, s{S_RD}",
                  f"s_lshl_b32 s{S_RD}, s{S_RE}, 11"]
            for n, s_ in enumerate(sl): Q[2 * n].sh.append(s_)
            Q[58].sh.append(f"s_mov_b32 m0, s{S_BQ}")
            Q[59].mem.append((f"buffer_load_dwordx4 v{V_RPG}, s[{S_WG}:{S_WG+3}], s{S_RS} offen lds", "RD"))
            Q[60].sh.append(f"s_add_u32 s{S_RS}, s{S_RS}, {16*1152-1024}")
            PV[3].mem.append((f"buffer_load_dwordx4 v{V_RPG}, s[{S_WG}:{S_WG+3}], s{S_RS} offen offset:1024 lds", "RD"))
        if not last_block and it == 2:
            PV[3].mem.append((f"ds_read_b64_tr_b16 v[{V_RPS}:{V_RPS+1}], v{V_RPL} offset:0", "RL"))
            PV[7].mem.append((f"ds_read_b64_tr_b16 v[{V_RPS+2}:{V_RPS+3}], v{V_RPL} offset:1024", "RL"))
        if not last_block and it == 3:
            Q[55].mem.append((f"ds_read_b64_tr_b16 v[{V_RPS+4}:{V_RPS+5}], v{V_RPL} offset:32", "RL"))
            Q[57].mem.append((f"ds_read_b64_tr_b16 v[{V_RPS+6}:{V_RPS+7}], v{V_RPL} offset:1056", "RL"))
        if not final: T.wv.append(f"V{VS(it+1)}")
        if not last_block:
            if it == 2: T.wv.append("RD")
            if it == 1:
                T.wv.append("RST")
                PV[10].sh.append(f"s_cmp_le_u32 s{S_CNT}, 2"); PV[11].sh.append(f"s_cselect_b32 s{S_SIG}, 2, 1")
                PV[12].sh.append(f"s_add_u32 s{S_SIG}, s{S_SIG}, s{S_XCC}"); PV[13].valu.append(f"v_mov_b32 v{V_SV}, s{S_SIG}")
                PV[16].sh.append(f"s_cmp_lg_u32 s{S_MIX}, 0"); PV[17].sh += ["s_cbranch_scc1 L_stub_w2", Label("L_ret_w2")]
                PV[20].mem.append((sig_store, None))
            if it == 3:
                PV[3].mem.append((f"buffer_store_dwordx4 v[{V_RPS}:{V_RPS+3}], v{V_L16}, s[{S_WU}:{S_WU+3}], s{S_RD} offen sc1", "RST"))
                PV[12].sh.append(WaitFor(lg=("RL",)))
                PV[14].mem.append((f"buffer_store_dwordx4 v[{V_RPS+4}:{V_RPS+7}], v{V_L16}, s[{S_WU}:{S_WU+3}], s{S_RD} offen offset:1024 sc1", "RST"))
        return T
    def finish_tile(T):
        if T.wv: T.PV[0].sh.append(WaitFor(vm=tuple(T.wv)))
        for s_ in T.endsal:
            if isinstance(s_, WaitFor):
                g = [g for g in T.PV[57:] if not g.sh][0]; g.sh.append(s_)
            else:
                c = [g for g in T.G[T.lastdma:] if not g.sh]
                (c[0].sh if c else T.G[-1].post).append(s_)
        ov = sum(max(0, used(g) - 2) + max(0, len([x for x in g.sh if not isinstance(x, Label)]) - 1) for g in T.G)
        print("tile overflow slots:", ov, "gaps", len(T.G))

    body = Prog(); p = body
    p.label("L_att_loop", 6)
    for it in range(4):
        T = att_tile(it)
        if it == 3: T.PV[40].sh.append(f"s_sub_u32 s{S_CNT}, s{S_CNT}, 1")
        finish_tile(T)
        if it == 3: T.G[-1].post += [f"s_cmp_lg_u32 s{S_CNT}, 0", "s_cbranch_scc1 L_att_loop"]
        for g in T.G:
            if 'Lnodma' in ABL: g.mem = [m for m in g.mem if not m[0].startswith("buffer")]
            if 'Lnobar' in ABL: g.sh = [x for x in g.sh if x != "s_barrier"]
            if 'Lnolds' in ABL: g.mem = [m for m in g.mem if not m[0].startswith("ds_")]
            if 'Lnotr' in ABL: g.mem = [m for m in g.mem if not m[0].startswith("ds_read_b64")]
            if 'Lnobr' in ABL: g.sh = [x for x in g.sh if not (isinstance(x, str) and x.startswith("s_cbranch"))]
            if 'Lnovalu' in ABL: g.valu = [x for x in g.valu if x.startswith(("v_exp", "v_add_u32"))]
            if 'Lnoexp' in ABL: g.valu = [x for x in g.valu if not x.startswith("v_exp")]
            if 'Lnowait' in ABL: g.sh = [x for x in g.sh if not (isinstance(x, WaitFor) and x.lg)]
        emit_gaps(p, T.G)

    tail = Prog(); p = tail
    p(f"s_getpc_b64 s[{S_WG}:{S_WG+1}]")
    p.label("L_pc1")
    p(f"s_and_b32 s{S_WG+1}, s{S_WG+1}, 0xffff"); p(f"s_mov_b32 s{S_WG+2}, L_code_end-L_pc1")
    p(f"s_lshr_b32 s{S_T0}, s2, 3"); p(f"s_lshl_b32 s{S_T0}, s{S_T0}, 2"); p(f"s_add_u32 s{S_T0}, s{S_T0}, s{S_WAVE}"); p(f"s_lshl_b32 s{S_T0}, s{S_T0}, 10")
    p(f"buffer_load_dwordx4 v[{V_RPS}:{V_RPS+3}], v{V_L16}, s[{S_WG}:{S_WG+3}], s{S_T0} offen", "CODE")
    p(f"v_lshrrev_b32 v{V_LANE}, 4, v{V_L16}")
    if 'finepro' not in ABL: stamp(p, 6)
    NP3 = 17
    Breg = lambda s, ks, mt: ((s % 3) * 4 + ks) * 8 + mt * 4
    def p3_w(s):
        off = (WPD_OFF + s * 4 * 36864) if s < 9 else (WPO_OFF + (s - 9) * 4 * 36864)
        base = S_PW if s < 9 else S_PW2
        ops = []
        for i in range(9):
            sal = []
            if i % 4 == 0:
                tm = tmp()
                m0 = f"s_add_u32 m0, s{S_W0B}, {i*1024}" if s == 0 else f"s_add_u32 m0, s{S_W9K}, {P3_SLOT[(s-1)%3] + i*1024}"
                sal = [f"s_add_u32 s{tm}, s{base}, {off + i*1024}", m0]
            ops.append((sal, (f"buffer_load_dwordx4 v{V_L16}, s[{S_WS}:{S_WS+3}], s{tm} offen offset:{(i%4)*1024}{LSC} lds", f"PW{s}")))
        return annotate(ops)
    def p3_b(s):
        off = (H_OFF + s * 524288) if s < 9 else (O_OFF + (s - 9) * 524288)
        base = S_PB0 if s < 9 else S_PB1
        ops = []
        for mt in range(2):
            for ks in range(4):
                r = Breg(s, ks, mt)
                ops.append(([f"s_add_u32 s{S_T2}, s{base}, {off + mt*4096}"] if ks == 0 else [],
                            (f"buffer_load_dwordx4 a[{r}:{r+3}], v{V_L16}, s[{S_WS}:{S_WS+3}], s{S_T2} offen offset:{ks*1024}{LSC}", f"PB{s}")))
        return annotate(ops)
    setup3 = [f"s_lshr_b32 s{S_KOFF}, s{S_J}, 3", f"s_and_b32 s{S_RE}, s{S_J}, 3", f"s_mul_i32 s{S_W9K}, s{S_WAVE}, 9216",
              f"s_mul_i32 s{S_PW2}, s{S_WAVE}, 36864", f"s_mul_i32 s{S_RNW}, s{S_RE}, 9216", f"s_add_u32 s{S_PW2}, s{S_PW2}, s{S_RNW}",
              f"s_mul_i32 s{S_PW}, s{S_KOFF}, {1152*1152}", f"s_add_u32 s{S_PW}, s{S_PW}, s{S_PW2}",
              f"s_mul_i32 s{S_RNW}, s{S_KOFF}, {1024*1152}", f"s_add_u32 s{S_PW2}, s{S_PW2}, s{S_RNW}",
              f"s_lshl_b32 s{S_PST}, s{S_RB}, 3", f"s_and_b32 s{S_RNW}, s{S_J}, 7", f"s_add_u32 s{S_PST}, s{S_PST}, s{S_RNW}",
              f"s_lshr_b32 s{S_FX0}, s{S_PST}, 2",
              f"s_lshl_b32 s{S_PB1}, s{S_FX0}, 2", f"s_add_u32 s{S_PB1}, s{S_PB1}, s{S_WAVE}", f"s_lshl_b32 s{S_PB1}, s{S_PB1}, 13",
              f"s_mul_i32 s{S_PB0}, s{S_KOFF}, {9*524288}", f"s_add_u32 s{S_PB0}, s{S_PB0}, s{S_PB1}",
              f"s_lshl_b32 s{S_RNW}, s{S_KOFF}, 22", f"s_add_u32 s{S_PB1}, s{S_PB1}, s{S_RNW}",
              f"s_mul_i32 s{S_PST}, s{S_PST}, {16*9216}",
              f"s_mul_i32 s{S_FL}, s{S_KOFF}, 9216", f"s_add_u32 s{S_FL}, s{S_FL}, s{S_PST}",
              f"s_mul_i32 s{S_CNT}, s{S_KOFF}, {4*9216}", f"s_add_u32 s{S_PST}, s{S_PST}, s{S_CNT}", f"s_add_u32 s{S_PST}, s{S_PST}, s{S_W9K}",
              f"s_lshl_b32 s{S_FX0}, s{S_FX0}, 2", f"s_add_u32 s{S_FX0}, s{S_FX0}, s{S_KOFF}", f"s_mul_i32 s{S_FX0}, s{S_FX0}, {32*1152}",
              f"s_mul_i32 s{S_CNT}, s{S_RE}, 288", f"s_add_u32 s{S_FX0}, s{S_FX0}, s{S_CNT}", f"s_min_u32 s{S_FX1}, s{S_WAVE}, 1", f"s_lshl_b32 s{S_FX1}, s{S_FX1}, 30",
              f"s_add_u32 s{S_CNT}, s{S_KOFF}, 1", f"s_and_b32 s{S_CNT}, s{S_CNT}, 3", f"s_mul_i32 s{S_FR}, s{S_CNT}, {4*9216}", f"s_add_u32 s{S_FR}, s{S_FR}, s{S_FL}",
              f"s_add_u32 s{S_CNT}, s{S_KOFF}, 2", f"s_and_b32 s{S_CNT}, s{S_CNT}, 3", f"s_mul_i32 s{S_FR+1}, s{S_CNT}, {4*9216}", f"s_add_u32 s{S_FR+1}, s{S_FR+1}, s{S_FL}",
              f"s_add_u32 s{S_CNT}, s{S_KOFF}, 3", f"s_and_b32 s{S_CNT}, s{S_CNT}, 3", f"s_mul_i32 s{S_FR+2}, s{S_CNT}, {4*9216}", f"s_add_u32 s{S_FR+2}, s{S_FR+2}, s{S_FL}",
              f"s_add_u32 s{S_CNT}, s{S_WAVE}, 1", f"s_lshr_b32 s{S_CNT}, s{S_CNT}, 2", f"s_mul_i32 s{S_CNT}, s{S_CNT}, {80*1024+27648}",
              f"s_add_u32 s{S_W0B}, s{S_W9K}, {128*1024}", f"s_sub_u32 s{S_W0B}, s{S_W0B}, s{S_CNT}"]
    pg = []
    for s in range(NP3):
        if s in (8, 16): order = [(kp, nt) for nt in range(9) for kp in range(2)]
        else: order = [(kp, nt) for kp in range(2) for nt in range(9)]
        for kp, nt in order: pg.append((s, kp, nt))
    def p3_reads(gi):
        s, kp, nt = pg[gi]; base = P3_AR[gi % 4]
        out = []
        for q in range(2):
            ks = 2 * kp + q
            if s == 0: va, o = (V_PWA[2], 12 * 1024 + (ks * 9 + nt) * 1024) if ks < 3 else (V_PWA[0], 48 * 1024 + nt * 1024)
            else: va, o = V_PWA[(s - 1) % 3], (ks * 9 + nt) * 1024
            out.append((f"ds_read_b128 v[{base+4*q}:{base+4*q+3}], v{va} offset:{o}", f"PA{gi%4}"))
        return out
    pm = []
    for gi, (s, kp, nt) in enumerate(pg):
        for mt in range(2):
            for q in range(2):
                a = (AD if s < 9 else AS)(nt, mt); b = Breg(s, 2 * kp + q, mt); ar = P3_AR[gi % 4] + 4 * q
                C = "0" if (s in (0, 9) and kp == 0 and q == 0) else f"v[{a}:{a+3}]"
                pm.append(f"v_mfma_f32_16x16x32_bf16 v[{a}:{a+3}], v[{ar}:{ar+3}], a[{b}:{b+3}], {C}")
    TL = [att_tile(it, last_block=True, first_mfmas=(pm[:72] if it == 3 else None)) for it in range(4)]
    T28, T29, T30, T31 = TL
    T28.cur = T28.idx(T28.Q[50]); T28.put(poll_load("PL"))
    cv, cs = poll_check(2, "p2")
    T28.PV[40].sh.append(WaitFor(vm=("PL",))); T28.PV[41].sh += cs[:1]; T28.PV[42].post += cv; T28.PV[44].sh += cs[1:]
    free = [g for g in T28.G[:T28.idx(T28.PV[54])] if not g.sh and id(g) not in T28.reserved]
    assert len(free) >= len(setup3), len(free)
    for s_, g in zip(setup3, free): g.sh.append(s_)
    L2T = os.environ.get("L2T", "")
    if L2T:
        V_TH, V_TD = 3, V_SV
        p(f"v_min_u32 v{V_TH}, 15, v{V_LANE}"); p(f"v_lshlrev_b32 v{V_TH}, 7, v{V_TH}")
        for t in [f"s_and_b32 s13, s{S_J}, 7", f"s_lshl_b32 s13, s13, 2", f"s_add_u32 s13, s13, s{S_WAVE}", f"s_lshl_b32 s13, s13, 11",
                  f"s_lshl_b32 s14, s{S_RB}, 16", f"s_add_u32 s13, s13, s14", f"s_lshr_b32 s14, s{S_J}, 3", f"s_mul_i32 s15, s14, {9*524288}", f"s_add_u32 s13, s13, s15",
                  f"s_lshr_b32 s15, s2, 3", f"s_lshl_b32 s15, s15, 2", f"s_add_u32 s15, s15, s{S_WAVE}", f"s_lshl_b32 s15, s15, 11",
                  f"s_mul_i32 s14, s14, {1152*1152}", f"s_add_u32 s14, s14, s15"]: p(t)
        tl = []
        for x in L2T.split(","):
            if x[0] == "h": tl.append((13, H_OFF + int(x[1:]) * 524288))
            else: tl.append((14, WPD_OFF + int(x[1:]) * 262144))
        slots_ = [(T, g) for T in (T28, T29, T30) for g in (T.Q[8], T.Q[40], T.PV[10], T.PV[42])]
        for (T, g0_), (base, off) in zip(slots_, tl):
            T.cur = 0; ld_ = T.lastdma; T.lastdma = T.idx(g0_) - 4
            T.put((f"buffer_load_dword v{V_TD}, v{V_TH}, s[{S_WS}:{S_WS+3}], s77 offen sc1", "TCH"), g0_, sal=[f"s_add_u32 s77, s{base}, {off}"], cap=3)
            T.lastdma = ld_
    for n in range(4): T28.PV[57 + 2 * n].valu.append(f"v_mov_b32 v{V_RPS+4+n}, -1")
    T29.cur = 2; ld_ = T29.lastdma; T29.lastdma = 0
    for nt in range(9):
        T29.put((f"buffer_store_dwordx4 v[{V_RPS+4}:{V_RPS+7}], v{V_L16}, s[{S_WS}:{S_WS+3}], s{S_SIG} offen offset:{(nt%3)*1024} sc1", "DST"), T29.Q[2 + 5 * nt],
                sal=([f"s_add_u32 s{S_SIG}, s{S_PST}, {PART_OFF + PSTRIDE + nt*1024}"] if nt % 3 == 0 else ()), cap=3)
        T29.lastdma = T29.cur - 1
    T29.lastdma = max(ld_, T29.lastdma)
    T29.cur = T29.idx(T29.Q[50]); T29.lastdma = max(T29.lastdma, T29.idx(T29.Q[50]))
    for sal_, op in p3_w(0): T29.put(op, sal=sal_); T29.lastdma = T29.cur - 1
    T30.wv.append("PW0")
    mix = p3_b(0) + p3_w(1)
    T30.Q[49].valu.append(f"v_add_u32 v{V_PWA[1]}, {P3_SLOT[1]}, v{V_L16}"); T30.Q[51].valu.append(f"v_add_u32 v{V_PWA[2]}, {P3_SLOT[2]}, v{V_L16}")
    T30.cur = T30.idx(T30.PV[2])
    for r, lo in T30.pv_v: T30.put(r, lo)
    T30.cur = T30.idx(T30.PV[52])
    for r in p3_reads(0) + p3_reads(1) + p3_reads(2): T30.put(r)
    T30.cur = T30.idx(T30.PV[2]); T30.lastdma = T30.cur
    for n, (sal_, op) in enumerate(mix):
        T30.put(op, T30.PV[2 + 3 * n], sal=sal_, cap=3); T30.lastdma = T30.cur - 1
    T30.G[-1].post.append(WaitFor(lg=("PA0",), vm=("PB0",)))
    T31.wv.append("PW1")
    Q = T31.Q
    for gi in range(1, 18): Q[4 * gi - 1].sh.insert(0, WaitFor(lg=(f"PA{gi%4}",)))
    for gi in range(3, 18):
        for n, r in enumerate(p3_reads(gi)): Q[4 * (gi - 3) + 1 + 2 * n].mem.append(r)
    T31.cur = 0
    vr = [r for dt in range(4) for r in v_reads(VS(3), dt)]
    for n, r in enumerate(vr): T31.put(r, Q[4 * n], cap=3)
    T31.cur = 0; T31.lastdma = 0
    for n, (sal_, op) in enumerate(p3_b(1) + p3_b(2)):
        T31.put(op, Q[4 * n + 2], sal=sal_, cap=3); T31.lastdma = T31.cur - 1
    T31.cur = T31.idx(T31.PV[2])
    for r, lo in T31.pv_v: T31.put(r, lo); T31.cur += 1
    T31.cur = T31.idx(T31.PV[50])
    for r in p3_reads(18) + p3_reads(19) + p3_reads(20): T31.put(r); T31.cur += 1
    T31.cur = T31.idx(T31.PV[2]); T31.lastdma = T31.cur
    for sal_, op in p3_w(2): T31.put(op, sal=sal_); T31.lastdma = T31.cur - 1
    T31.PV[63].sh.append(WaitFor(lg=(f"PA{18%4}",), vm=("PB1",)))
    P = [None] * 72 + [Gap(m) for m in pm[72:]]
    for gi in range(21, len(pg)):
        i = gi % 18
        rd = p3_reads(gi)
        if i == 0: g0_ = 4 * (gi - 2); pos = (g0_, g0_ + 1)
        elif i == 1: g0_ = 4 * (gi - 3); pos = (g0_ + 2, g0_ + 3)
        else: g0_ = 4 * (gi - 3); pos = (g0_, g0_ + 2)
        for g_, r in zip(pos, rd): P[g_].mem.append(r)
    barw = {}
    for gi in range(19, len(pg)):
        s = pg[gi][0]; g = P[4 * gi - 1]
        if gi % 18 == 16 and s + 1 < NP3:
            barw[s] = WaitFor(vm=[f"PW{s+1}", f"PB{s+1}"], lg0=True)
            P[4 * gi - 2].sh.append(barw[s]); g.sh.append("s_barrier")
        else: g.sh.append(WaitFor(lg=(f"PA{gi%4}",)))
    def after_barrier(s): return 72 * s + 64
    OSIG = int(os.environ.get("OSIG", "4")); DSIG = int(os.environ.get("DSIG", "13")); OCAP = int(os.environ.get("OCAP", "3"))
    barw[OSIG].vm = tuple(barw[OSIG].vm) + ("OST",)
    P[after_barrier(OSIG) - 6].valu.append(sig_val(3)); P[after_barrier(OSIG) + 5].mem.append((sig_store, None))
    P[after_barrier(OSIG) + 1].sh.append(f"s_cmp_lg_u32 s{S_MIX}, 0"); P[after_barrier(OSIG) + 2].sh += ["s_cbranch_scc1 L_stub_w3", Label("L_ret_w3")]
    barw[DSIG].vm = tuple(barw[DSIG].vm) + ("DST",)
    P[after_barrier(DSIG) - 6].valu.append(sig_val(4)); P[after_barrier(DSIG) + 5].mem.append((sig_store, None))
    P[72*5+1].sh.append(f"s_lshl_b32 s{S_CNT}, s{S_RB}, 11"); P[72*5+2].sh.append(f"s_lshl_b32 s{S_RE}, s{S_KOFF}, 9"); P[72*5+4].sh.append(f"s_add_u32 s{S_RE}, s{S_RE}, s{S_CNT}")
    P[72*5+5].valu += [f"v_and_b32 v{V_PA}, 7, v{V_LANE}", f"v_lshl_add_u32 v{V_PA}, v{V_PA}, 3, s{S_RE}"]
    P[72*6+69].mem.append(poll_load("PL"))
    P[72*7+28].sh.append(WaitFor(vm=("PL",)))
    cv, cs = poll_check(3, "p3")
    P[72*7+29].valu += cv; P[72*7+29].sh += cs[:1]; P[72*7+30].post += cs[1:]
    PQ = DSIG + 1
    P[72*PQ+49].mem.append(poll_load("PL"))
    P[72*(PQ+1)+12].sh.append(WaitFor(vm=("PL",)))
    cv, cs = poll_check(4, "p4")
    P[72*(PQ+1)+13].valu += cv; P[72*(PQ+1)+13].sh += cs[:1]; P[72*(PQ+1)+13].post += cs[1:]
    HINT = int(os.environ.get("HINT", "1"))
    P[72*16 + HINT - 4].valu.append(sig_val(5)); P[72*16 + HINT].mem.append((sig_store, None))
    FD, GG, FXR, TT = 160, 208, 56, 16
    def fin_loads(kind, dst, tag):
        ops = []
        for m in range(3):
            for sp in range(3):
                tm = tmp()
                ops.append(([f"s_add_u32 s{tm}, s{S_FR+sp}, {PART_OFF + kind*PSTRIDE}"],
                            (f"buffer_load_dwordx4 v[{dst+(m*4+sp)*4}:{dst+(m*4+sp)*4+3}], v{V_FL+m}, s[{S_WS}:{S_WS+3}], s{tm} offen sc1", tag)))
        return annotate(ops)
    own_reads = lambda kind, dst, tag: [(f"ds_read_b128 v[{dst+(m*4+3)*4}:{dst+(m*4+3)*4+3}], v{V_OWR} offset:{kind*9216 + m*4096}", tag) for m in range(3)]
    xq = []
    for m in range(3):
        r = V_XO + m
        xq += [f"v_lshl_add_u32 v{r}, s{S_WAVE}, 6, v{V_LANE}"] + ([f"v_add_u32 v{r}, {256*m}, v{r}"] if m else [])
        xq += [f"v_mul_u32_u24 v71, 3641, v{r}", f"v_lshrrev_b32 v71, 16, v71", f"v_mul_u32_u24 v71, {1152-288}, v71", f"v_lshl_add_u32 v{r}, v{r}, 4, v71"]
        if m == 2: xq += [f"v_add_u32 v{r}, s{S_FX1}, v{r}"]
        xq.append(("MEM", [], (f"buffer_load_dwordx4 v[{FXR+4*m}:{FXR+4*m+3}], v{r}, s[{S_XI}:{S_XI+3}], s{S_FX0} offen", "FX")))
    for s in range(1, NP3):
        ops = []
        if s + 2 < NP3:
            w, b = p3_w(s + 2), p3_b(s + 2)
            if s == 7:
                place_mem(P, w, 72 * s, 72 * s + 28); place_mem(P, b, 72 * s + 30, 72 * s + 63); continue
            ops = w[:4] + b[:4] + w[4:8] + b[4:] + w[8:]
        if s == PQ + 1:
            assert s == 15
            place_mem(P, fin_loads(0, FD, "FD") + [([], r) for r in own_reads(0, FD, "FO")], 72 * s + 14, 72 * s + 63); continue
        if ops: place_mem(P, ops, 72 * s - int(os.environ.get('P3E', '0')), 72 * s + int(os.environ.get('P3W', '63')))
    allg = T31.PV + P[72:]
    OT = 96
    def o_item(n, qt, s):
        T = OT + (n % 4) * 8; D = OT + 32 + (n % 4) * 4
        q = []
        for h in range(2):
            o = A_O + ((2 * s + h) * 4 + qt) * 4
            for r in range(4): q.append(f"v_accvgpr_read_b32 v{T+4*h+r}, a{o+r}")
        for i in range(8): q.append(f"v_mul_f32 v{T+i}, v{T+i}, v{V_LS+4+qt}")
        for i in range(4): q.append(f"v_cvt_pk_bf16_f32 v{D+i}, v{T+2*i}, v{T+2*i+1}")
        q.append(("MEM", [f"s_add_u32 s{S_SIG}, s{S_OBASE}, {O_OFF + qt*4096}"], (f"buffer_store_dwordx4 v[{D}:{D+3}], v{V_L16}, s[{S_WS}:{S_WS+3}], s{S_SIG} offen offset:{s*1024}{SCO}", "OST")))
        return q
    pre = xlane_ops("v_add_f32", [V_LS + 5, V_LS + 7], OT + 48) + [f"v_rcp_f32 v{V_LS+4+qt}, v{V_LS+4+qt}" for qt in range(4)]
    n = 0; lim = 64 + after_barrier(OSIG - 1) - 72 + 30
    pre += xq
    q = list(pre); mins = [2] * len(pre)
    for s in range(4):
        for qt in range(4):
            it_ = o_item(n, qt, s); n += 1
            q += it_; mins += [16 * (s + 1) + 4] * len(it_)
    left = fill_valu(allg[:lim], 2, q, mins=mins, cap=OCAP); assert not left, len(left)
    fs = [f"v_add_u32 v{V_FL}, s{S_W1K}, v{V_L16}", f"v_add_u32 v{V_FL+1}, 4096, v{V_FL}", f"v_add_u32 v{V_FL+2}, s{S_VOFF}, v{V_FL}",
          f"v_and_b32 v{V_YW}, 15, v{V_LANE}", f"v_mul_u32_u24 v{V_YW}, 288, v{V_YW}", f"v_lshrrev_b32 v{V_YW+1}, 4, v{V_LANE}",
          f"v_lshl_add_u32 v{V_YW}, v{V_YW+1}, 3, v{V_YW}", f"v_lshl_add_u32 v{V_YW}, s{S_WAVE}, 5, v{V_YW}",
          f"v_lshrrev_b32 v{V_YW+1}, 16, s{S_FX1}", f"v_add_u32 v{V_YW+1}, v{V_YW+1}, v{V_YW}"]
    sal6 = [f"s_lshl_b32 s{S_FL}, s{S_RB}, 3", f"s_and_b32 s{S_T2+32}, s{S_J}, 7", f"s_add_u32 s{S_FL}, s{S_FL}, s{S_T2+32}", f"s_lshl_b32 s{S_FL}, s{S_FL}, 9",
            f"s_add_u32 s{S_FL}, s{S_FL}, {F5_OFF}",
            f"s_lshl_b32 s{S_W0B}, s{S_WAVE}, 7", f"s_add_u32 s{S_W0B}, s{S_W0B}, s{S_FL}", f"s_lshl_b32 s{S_W0B+1}, s{S_KOFF}, 3", f"s_add_u32 s{S_W0B}, s{S_W0B}, s{S_W0B+1}",
            f"s_lshl_b32 s{S_W0B+1}, s{S_KOFF}, 7", f"s_add_u32 s{S_FL}, s{S_FL}, s{S_W0B+1}",
            f"s_add_u32 s{S_W0B+1}, s{S_KOFF}, 1",
            [f"s_cmp_eq_u32 s{S_WAVE}, s{S_KOFF}", f"s_cselect_b32 s{S_W0B+2}, {1 << 30}, 0", f"s_cselect_b32 s{S_W0B+3}, 0, {18432}"],
            f"s_add_u32 s{S_PST}, s{S_PST}, s{S_W0B+2}", f"s_add_u32 s{S_W0B+3}, s{S_W0B+3}, {OWN_LDS}",
            [f"s_cmp_eq_u32 s{S_WAVE}, 0", f"s_cselect_b32 s{S_VOFF}, 8192, {1 << 30}"]]
    g_ = 72 * 6
    for x in sal6:
        while P[g_].sh: g_ += 1
        P[g_].sh += x if isinstance(x, list) else [x]
        g_ += 1
    assert g_ < 72 * 6 + 60
    fs += [f"v_add_u32 v{V_OWN}, s{S_W0B+3}, v{V_L16}", f"v_add_u32 v{V_OWR}, {OWN_LDS}, v{V_FL}"]
    left = fill_valu(P[:72 * 8], 72 * 6 + 60, fs); assert not left
    fs2 = [f"v_mov_b32 v{V_SA}, s{S_W0B}", f"v_min_u32 v{V_PA}, 2, v{V_LANE}", f"v_add_u32 v{V_PA}, s{S_W0B+1}, v{V_PA}", f"v_and_b32 v{V_PA}, 3, v{V_PA}",
           f"v_lshl_add_u32 v{V_PA}, v{V_PA}, 3, s{S_FL}"]
    left = fill_valu(P[:72 * 9], 72 * 8, fs2); assert not left
    def part_item(A, nt, kind, tag):
        a = A(nt, 0)
        q = [f"v_cvt_pk_bf16_f32 v{a+i}, v{a+2*i}, v{a+2*i+1}" for i in range(4)]
        q.append(("MEM", [f"s_add_u32 s{S_SIG}, s{S_PST}, {PART_OFF + kind*PSTRIDE + nt*1024}"], (f"buffer_store_dwordx4 v[{a}:{a+3}], v{V_L16}, s[{S_WS}:{S_WS+3}], s{S_SIG} offen sc1", tag)))
        q.append(("MEM", [], (f"ds_write_b128 v{V_OWN}, v[{a}:{a+3}] offset:{kind*9216 + nt*1024}", None)))
        return q
    for nt in range(9):
        left = fill_valu(P[:72 * DSIG], 72 * 8 + 12 + ((72 * (DSIG - 8) - 30) * nt) // 8, part_item(AD, nt, 0, "DST")); assert not left
    sleft = []
    for nt in range(9):
        sleft += fill_valu(P, 72 * 16 + 8 * (nt + 1) + 4, part_item(AS, nt, 1, "SST"))
    gq = []
    def unpack_sum(src, dst, pk=False):
        q = []
        for i in range(4):
            q += [f"v_lshlrev_b32 v{dst+2*i}, 16, v{src+i}", f"v_and_b32 v{dst+2*i+1}, s{S_THR}, v{src+i}"]
        for sp in range(1, 4):
            T = TT + 8 * (sp % 2)
            for i in range(4):
                q += [f"v_lshlrev_b32 v{T+2*i}, 16, v{src+4*sp+i}", f"v_and_b32 v{T+2*i+1}, s{S_THR}, v{src+4*sp+i}"]
            if pk:
                for i in range(0, 8, 2): q.append(f"v_pk_add_f32 v[{dst+i}:{dst+i+1}], v[{dst+i}:{dst+i+1}], v[{T+i}:{T+i+1}]")
            else:
                for i in range(8): q.append(f"v_add_f32 v{dst+i}, v{dst+i}, v{T+i}")
        return q
    P[72*13+1].post.append(f"s_mov_b32 s{S_THR}, 0xffff0000")
    for m in range(3):
        D = GG + 8 * m; T = FD + 16 * m
        gq += unpack_sum(FD + 16 * m, D, pk=True)
        gq += [f"v_mul_f32 v{T+i}, {f2u(-LOG2E)}, v{D+i}" for i in range(8)]
        gq += [f"v_exp_f32 v{T+i}, v{T+i}" for i in range(8)]
        gq += [f"v_add_f32 v{T+i}, 1.0, v{T+i}" for i in range(8)]
        gq += [f"v_rcp_f32 v{T+i}, v{T+i}" for i in range(8)]
        gq += [f"v_pk_mul_f32 v[{D+i}:{D+i+1}], v[{D+i}:{D+i+1}], v[{T+i}:{T+i+1}]" for i in range(0, 8, 2)]
    gleft = gq
    print("phase3 leftovers: s-part", len(sleft), "gate", len(gleft))
    for T in TL:
        finish_tile(T); emit_gaps(p, T.G)
    if 'finepro' not in ABL:
        stamp(p, 7); stamp_rt(p, 16)
        for s, k in ((3, 8), (6, 9), (9, 10), (13, 11)): P[72 * s - 1].post += stamp_ops(k)
    if 'finep3' in ABL:
        stamp(p, 0)
        for s in range(1, 17): P[72 * (s + 1) - 1].post = [x for x in P[72 * (s + 1) - 1].post if not (isinstance(x, str) and ("s76" in x or "s[76" in x or x == "s_waitcnt lgkmcnt(0)"))] + stamp_ops(s)
    emit_gaps(p, P[72:])
    if 'finep' not in ABL: stamp(p, 12); stamp_rt(p, 17)
    emit_ops(p, sleft)
    XU = 32
    FS = 96
    def s_loads():
        for sal_, op in fin_loads(1, FS, "FS"):
            for s_ in sal_: p(s_)
            p(op[0], op[1])
    p("s_waitcnt lgkmcnt(0)")
    s_loads()
    p.items.append(WaitFor(vm=("FD",)))
    p("s_barrier")
    for t, tag in own_reads(1, FS, "FO"): p(t, tag)
    emit_ops(p, gleft)
    for i in range(12):
        p(f"v_lshlrev_b32 v{XU+2*i}, 16, v{FXR+i}"); p(f"v_and_b32 v{XU+2*i+1}, s{S_THR}, v{FXR+i}")
    if 'finep' not in ABL: stamp(p, 13)
    p(f"s_mov_b32 s{S_CNT}, 0x40000"); p(f"s_add_u32 s{S_PV}, s{S_EP}, 5")
    p.label("L_dcheck")
    p("s_waitcnt vmcnt(0)")
    q_ = [FS + (m * 4 + sp) * 4 + i for m in range(3) for sp in range(3) for i in range(4)]
    p(f"v_max_u32 v{V_PT}, v{q_[0]}, v{q_[1]}"); p(f"v_max_u32 v{V_PT+1}, v{q_[2]}, v{q_[3]}")
    for i in range(4, 36, 2): p(f"v_max3_u32 v{V_PT+(i//2)%2}, v{V_PT+(i//2)%2}, v{q_[i]}, v{q_[i+1]}")
    p(f"v_max_u32 v{V_PT}, v{V_PT}, v{V_PT+1}")
    p(f"v_cmp_eq_u32 vcc, -1, v{V_PT}")
    p("s_cbranch_vccz L_dready")
    p(f"s_cmp_eq_u32 s{S_CNT}, 0x40000"); p("s_cbranch_scc0 L_dagain")
    p(f"s_call_b64 s[{S_RET}:{S_RET+1}], L_spin0")
    p.label("L_dagain")
    s_loads()
    p(f"s_sub_u32 s{S_CNT}, s{S_CNT}, 1"); p(f"s_cmp_lg_u32 s{S_CNT}, 0"); p("s_cbranch_scc1 L_dcheck")
    p("s_waitcnt vmcnt(0)")
    p.label("L_dready")
    if 'finep' not in ABL: stamp(p, 14)
    p("s_waitcnt lgkmcnt(0)")
    for m in range(3):
        D = FD + 8 * m
        for t in unpack_sum(FS + 16 * m, D, pk=True): p(t)
        for i in range(0, 8, 2): p(f"v_pk_mul_f32 v[{D+i}:{D+i+1}], v[{D+i}:{D+i+1}], v[{GG+8*m+i}:{GG+8*m+i+1}]")
        for i in range(4): p(f"v_cvt_pk_bf16_f32 v{D+i}, v{D+2*i}, v{D+2*i+1}")
        for mt in range(2): p(f"ds_write_b64 v{V_YW + (1 if m == 2 else 0)}, v[{D+2*mt}:{D+2*mt+1}] offset:{m*128 + mt*4608}")
    p("s_waitcnt lgkmcnt(0)"); p("s_barrier")
    for m in range(3): p(f"ds_read_b128 v[{128+4*m}:{131+4*m}], v{V_FL} offset:{m*4096}")
    for m in range(3):
        p(f"s_waitcnt lgkmcnt({2-m})")
        D = 96 + 8 * m; T = XU + 8 * m
        for i in range(4):
            p(f"v_lshlrev_b32 v{D+2*i}, 16, v{128+4*m+i}"); p(f"v_and_b32 v{D+2*i+1}, s{S_THR}, v{128+4*m+i}")
        for i in range(0, 8, 2): p(f"v_pk_add_f32 v[{D+i}:{D+i+1}], v[{D+i}:{D+i+1}], v[{T+i}:{T+i+1}]")
        for i in range(4): p(f"v_cvt_pk_bf16_f32 v{D+i}, v{D+2*i}, v{D+2*i+1}")
        p(f"buffer_store_dwordx4 v[{D}:{D+3}], v{V_XO+m}, s[{S_OUT}:{S_OUT+3}], s{S_FX0} offen")
    if STAMP: p("s_waitcnt vmcnt(0)")
    stamp(p, 19); stamp_rt(p, 21); stamp_dump(p, 70, S_WAVE, 1)
    p.label("L_done"); p("s_endpgm")

    rare = Prog(); p = rare
    for site, var in rare_sites:
        p.label(f"L_rare_stub{site}")
        p(f"s_call_b64 s[{S_RET}:{S_RET+1}], L_rare{var}")
        p(f"s_branch L_rare_ret{site}")
    for name in stubs:
        p.label(f"L_stub_{name}")
        p(f"s_call_b64 s[{S_RET}:{S_RET+1}], L_spin0")
        p(f"s_branch L_ret_{name}")
    for name in ("w2", "w3"):
        p.label(f"L_stub_{name}")
        p("buffer_wbl2 sc1"); p("s_waitcnt vmcnt(0)")
        p(f"s_branch L_ret_{name}")
    p.label("L_spin0")
    p(f"s_mov_b32 s{S_SPIN}, {'0x40' if 'Lno' in ABL else '0x40000'}")
    p.label("L_spin1")
    p(poll_load(None)[0])
    p(f"s_sub_u32 s76, s{S_EP}, s{S_PV}"); p("s_add_u32 s76, s76, 8")
    p("s_waitcnt vmcnt(0)")
    for t in flag_test(V_PT): p(t)
    p(f"v_cmp_le_u32 vcc, s76, v{V_PT}")
    p("s_cbranch_vccz L_spin2")
    p(f"s_sub_u32 s{S_SPIN}, s{S_SPIN}, 1"); p("s_sleep 1"); p(f"s_cmp_lg_u32 s{S_SPIN}, 0"); p("s_cbranch_scc1 L_spin1")
    p.label("L_spin2")
    p(f"s_setpc_b64 s[{S_RET}:{S_RET+1}]")
    rare_items = fix_hazards(rare.items)[0]
    for var in ("0", "1", "Z"):
        par = 1 if var == "Z" else int(var)
        rp = Prog(); p = rp
        p.label(f"L_rare{var}")
        p("s_nop 15")
        Lold = V_LS + (1 - par) * 4
        for qt in range(4):
            rowmax(p, par, qt, V_R + qt)
            p(f"v_log_f32 v{V_R+4}, v{Lold+qt}")
            if BIAS:
                p(f"v_max_f32 v{V_R+qt}, v{V_R+qt}, v{V_R+4}"); p(f"v_add_f32 v{V_R+qt}, {f2u(BIAS)}, v{V_R+qt}"); p(f"v_max_f32 v{V_R+qt}, 0, v{V_R+qt}")
            else: p(f"v_max3_f32 v{V_R+qt}, v{V_R+qt}, v{V_R+4}, 0")
        for t in xlane_ops("v_max_f32", [V_R + q for q in range(4)], V_R + 4): p(t)
        for qt in range(4):
            p(f"v_sub_f32 v{V_R+4+qt}, 0, v{V_R+qt}"); p(f"v_exp_f32 v{V_R+4+qt}, v{V_R+4+qt}")
        for qt in range(4):
            p(f"v_mul_f32 v{Lold+qt}, v{Lold+qt}, v{V_R+4+qt}")
            if var != "Z":
                for r in range(4): p(f"v_sub_f32 v{V_NM+4*qt+r}, v{V_NM+4*qt+r}, v{V_R+qt}")
            for pp in ((par,) if var == "Z" else (0, 1)):
                for kt in range(4):
                    for r in range(4): p(f"v_sub_f32 v{Sreg(pp,kt,qt)+r}, v{Sreg(pp,kt,qt)+r}, v{V_R+qt}")
            for dt in range(8):
                o = A_O + (dt * 4 + qt) * 4
                for r in range(4): p(f"v_accvgpr_read_b32 v{V_E+r}, a{o+r}")
                for r in range(4): p(f"v_mul_f32 v{V_E+r}, v{V_E+r}, v{V_R+4+qt}")
                for r in range(4): p(f"v_accvgpr_write_b32 a{o+r}, v{V_E+r}")
        for tau in range(64):
            p(op_exp(par, tau))
            if tau % 4 >= 2: p(op_add(par, tau))
            if tau % 2 == 1: p(op_cvt(par, tau))
        for qt in (0, 2):
            p(l_mfma(par, qt, 0)); p(l_mfma(par, qt, 1)); p(op_ladd(par, qt))
        if var != "Z":
            for tau in range(4): p(op_exp(1 - par, tau))
            p(op_cvt(1 - par, 1))
        p("s_nop 3")
        p(f"s_setpc_b64 s[{S_RET}:{S_RET+1}]")
        rare_items += fix_hazards(rp.items)[0]

    resolve_waits(pro.items + body.items + body.items + tail.items)
    pi = lower_waits(pro.items); bi = lower_waits(body.items); ti = lower_waits(tail.items)
    pi, a1 = fix_hazards(pi, verbose=False, name="pro")
    bi2, a2 = fix_hazards(bi, prev=bi, verbose=True, name="body")
    bi3, a3 = fix_hazards(bi2, prev=pi, verbose=True, name="body-entry")
    ti, a4 = fix_hazards(ti, prev=bi3, verbose=True, name="tail")
    wc = WaitChecker(); wc.run(pi + bi3 + bi3 + ti)
    for e in wc.errors[:10]: print("WAITCHECK", e)
    assert check_needs(pi + bi3 + bi3 + ti) == 0
    for it in pi + bi3 + ti:
        if isinstance(it, Ins): it.text = it.text.split(' ; need[')[0]
    return pi + bi3 + ti + rare_items

if __name__ == "__main__":
    import sys
    HEADER = open("cdna_kernels/" + NAME + ".s.ref").read().split("; Override")[0]
    items = gen_mega()
    k = NAME + "_kernel"
    s = HEADER + f"; @launch grid=(256,1,1) block=(256,1,1) lds={LDS_BYTES}\n"
    s += '.amdgcn_target "amdgcn-amd-amdhsa--gfx950"\n' + kernel_text(k, items, 512, 256)
    s += "L_code_end:\n    s_endpgm\n" + '.section .rodata,"a"\n.p2align 6\n' + kd_text(k, 512, 256)
    open(sys.argv[1], "w").write(s)
```

```python
from common import *
import math
LDS_BYTES = 160 * 1024
LOG2E = 1.4426950408889634
QSCALE = LOG2E / math.sqrt(128.0)
GC1 = -2.0 * math.sqrt(2.0 / math.pi) * LOG2E
GC2 = GC1 * 0.044715
CUT = int(os.environ.get("CUT", "30"))
BIAS = float(126 - CUT) if CUT else 0.0
THRESH = 2.0 ** (int(os.environ.get("THR", "64")) - BIAS)
ABL = os.environ.get('ABL', '')
NTW = "" if "nontw" in ABL else " nt"
NTQ = "" if "nontq" in ABL else " nt"
NTT = '' if 'nontt' in ABL else ' nt'
NTX = " nt" if "ntx" in ABL else ""
NTKV = " nt" if 'ntkv' in ABL else ""
WS_BYTES = 128 << 20
WPO_OFF = WP_OFF
WPD_OFF = WP_OFF + 4096 * 1152
FLAG_OFF = 100 << 20
SCH = ' sc1' if 'sch' in ABL else ''
SCO = ' sc1' if 'sco' in ABL else ''
LSC = '' if 'nolsc' in ABL else ' sc1'
P3NT = ' nt' if 'p3nt' in ABL else ''
PSTRIDE = 64 * 4 * 4 * 9216

S_HF = 4
S_WG, S_WU, S_WQ, S_K, S_V, S_WS, S_DBG, S_XI = 8, 12, 16, 20, 24, 28, 32, 36
S_WAVE, S_RB, S_J = 40, 41, 42
S_RE = 43
S_T0, S_T1, S_T2 = 44, 45, 46
S_KOFF, S_VOFF = 47, 48
S_W1K = 49
S_RET = 50
S_CNT = 52
S_W3K = 53
S_BF, S_BH, S_BQ = 54, 55, 56
S_RS, S_RD = 57, 58
S_RNW = 59
S_HHALF = 60
S_THR = 61
S_OBASE = 62
S_XB = 63
S_PTR = 64
S_W6K = 3
S_PV = 79
S_SIG = 78
S_SPIN = 75
S_EP = 74
S_FO = 73
S_MIX = 72
S_XCC = 69
S_EP2 = 68
S_PW, S_PW2, S_PB0, S_PB1 = 54, 55, 56, 57
S_W9K = 53
S_PST = 58
S_FL = 59
S_FX0, S_FX1 = 60, 63
S_OUT = 16

V_SA = 0
V_L16 = 1
V_WF, V_WQ = 2, 3
V_RA = 4
V_RH = 8
V_QP = 10
V_C1, V_C2 = 12, 13
V_KD, V_VD = 14, 15
V_AF = 16
V_T = 52
V_HO = 68
V_KA = 76
V_TA = 76
V_VA = 80
V_RQ = 88
V_ACC = 96
V_X = 224
WSLOT = [128 * 1024, 80 * 1024, 40 * 1024, 104 * 1024]
def wbase(slot):
    b = WSLOT[slot]
    return (0, b - 40 * 1024) if b < 104 * 1024 else (1, b - 104 * 1024)
def xreg(ks, mt):
    f = ks * 4 + mt
    return f"a[{4*f}:{4*f+3}]" if f < 64 else f"v[{V_X+4*(f-64)}:{V_X+4*(f-64)+3}]"

A_Q, A_KF, A_VF, A_O = 0, 64, 96, 128
V_S = 96
V_P0 = 224
V_P1 = 16
V_NM = 32
V_LS = 48
V_E = 56
V_CK = 9
V_ONE = 10
V_R = 64
V_LD = 72
V_RPS = 88
V_RPG, V_RPL = 2, 3
V_PT = 4
V_SV = 6
V_PA = 8
V_LANE = 2
KS = lambda T: (T + 3) % 4
VS = lambda T: (T + 1) % 4
P3_SLOT = [0, 80 * 1024, 116 * 1024]
AD = lambda nt, mt: 160 + (nt * 2 + mt) * 4
AS = lambda nt, mt: (96 + (nt * 2 + mt) * 4) if nt < 8 else (240 + mt * 4)
P3_AR = [32, 40, 88, 232]
V_PWA = [1, 76, 77]
V_XO = 68
V_YW = 78
V_FL = 80
S_FR = 64
V_OWN = 84
V_OWR = 85
OWN_LDS = 40 * 1024
F5_OFF = 32768
S_W0B = 12

from k12 import Gap, emit_gaps, slots_of, fill_valu

def emit_ops(p, ops):
    for op in ops:
        if isinstance(op, tuple):
            for t in op[1]: p(t)
            p(op[2][0], op[2][1])
        else: p(op)

def annotate(ops):
    out = []; cur = []
    for sal, (txt, tag) in ops:
        if sal: cur = list(sal)
        out.append((sal, (txt + " ; need[" + "|".join(cur) + "]", tag)))
    return out

def check_needs(items):
    last = {}; bad = 0
    for it in items:
        if not isinstance(it, Ins): continue
        if "; need[" in it.text:
            for t in it.text.split("; need[")[1].rstrip("]").split("|"):
                if not t: continue
                d = Ins(t).wr[0]
                if last.get(d) != t:
                    bad += 1; print("NEEDCHECK:", it.text, "<- last writer", last.get(d))
        if it.kind == "salu":
            for r in it.wr: last[r] = it.text
    return bad

def gen_mega():
    pro = Prog(); p = pro
    stubs = []
    def poll_check(val, name):
        stubs.append(name)
        return (flag_test(V_PT) + [f"v_cmp_le_u32 vcc, {8-val}, v{V_PT}"],
                [f"s_add_u32 s{S_PV}, s{S_EP}, {val}", f"s_cbranch_vccnz L_stub_{name}", Label(f"L_ret_{name}")])
    def flag_test(r):
        return [f"v_and_b32 v{r}, 0xffffff87, v{r}", f"v_xor_b32 v{r+1}, s{S_EP2}, v{r+1}", f"v_subrev_u32 v{r}, s{S_PV}, v{r}",
                f"v_min_u32 v{r+1}, 1, v{r+1}", f"v_lshl_or_b32 v{r}, v{r+1}, 8, v{r}"]
    poll_load = lambda tag: (f"buffer_load_dwordx2 v[{V_PT}:{V_PT+1}], v{V_PA}, s[{S_WS}:{S_WS+3}], s{S_FO} offen sc1", tag)
    sig_store = f"buffer_store_dwordx2 v[{V_SV}:{V_SV+1}], v{V_SA}, s[{S_WS}:{S_WS+3}], s{S_FO} offen sc1"
    sig_val = lambda val: f"v_add_u32_e64 v{V_SV}, s{S_XCC}, {val}"

    p("s_cmp_ge_u32 s2, 256"); p("s_cbranch_scc1 L_done")
    stamp_rt(p, 20); stamp(p, 0)
    p(f"s_load_dwordx2 s[{S_XI}:{S_XI+1}], s[0:1], {ARG['x']}")
    p(f"s_load_dwordx2 s[{S_WQ}:{S_WQ+1}], s[0:1], {ARG['wq']}")
    p(f"s_load_dwordx4 s[68:71], s[0:1], {ARG['dbg']}")
    p(f"s_load_dwordx4 s[72:75], s[0:1], {ARG['wg']}")
    p(f"s_load_dwordx4 s[64:67], s[0:1], {ARG['k']}")
    p(f"s_getpc_b64 s[{S_K}:{S_K+1}]")
    p.label("L_pc0")
    p(f"s_and_b32 s{S_K+1}, s{S_K+1}, 0xffff"); p(f"s_mov_b32 s{S_K+2}, L_code_end-L_pc0"); p(f"s_mov_b32 s{S_K+3}, 0x20000")
    p(f"s_lshr_b32 s{S_T0}, s2, 3"); p(f"s_lshl_b32 s{S_T0}, s{S_T0}, 12"); p("v_lshlrev_b32 v16, 4, v0")
    p(f"buffer_load_dwordx4 v[160:163], v16, s[{S_K}:{S_K+3}], s{S_T0} offen", "CODE")
    p("v_lshrrev_b32 v16, 6, v0"); p("v_and_b32 v17, 63, v0")
    p(f"v_readfirstlane_b32 s{S_WAVE}, v16")
    p(f"s_and_b32 s{S_T0}, s2, 7"); p(f"s_lshr_b32 s{S_T1}, s2, 3")
    p(f"s_and_b32 s{S_RB}, s{S_T1}, 3"); p(f"s_lshr_b32 s{S_T1}, s{S_T1}, 2")
    p(f"s_and_b32 s{S_T2}, s{S_T0}, 1"); p(f"s_lshl_b32 s{S_T2}, s{S_T2}, 2"); p(f"s_add_u32 s{S_RB}, s{S_RB}, s{S_T2}")
    p(f"s_lshr_b32 s{S_T0}, s{S_T0}, 1"); p(f"s_lshl_b32 s{S_J}, s{S_T0}, 3"); p(f"s_add_u32 s{S_J}, s{S_J}, s{S_T1}")
    p("v_lshrrev_b32 v18, 5, v17"); p("v_and_b32 v19, 31, v17")
    p(f"s_lshl_b32 s{S_T0}, s{S_RB}, 8"); p(f"s_lshl_b32 s{S_T1}, s{S_J}, 3"); p(f"s_add_u32 s{S_T0}, s{S_T0}, s{S_T1}")
    p(f"s_lshl_b32 s{S_T1}, s{S_WAVE}, 1"); p(f"s_add_u32 s{S_T0}, s{S_T0}, s{S_T1}"); p(f"s_mul_i32 s{S_T0}, s{S_T0}, 1152")
    p("v_mul_u32_u24 v20, 1152, v18"); p("v_lshl_add_u32 v20, v19, 4, v20")
    p(f"s_mov_b32 s{S_XI+2}, {XN_BYTES}"); p(f"s_mov_b32 s{S_XI+3}, 0x20000")
    p(f"s_mov_b32 s{S_WQ+2}, {576*8192}"); p(f"s_mov_b32 s{S_WQ+3}, 0x20000")
    p(f"v_lshlrev_b32 v{V_L16}, 4, v17")
    p("v_cmp_gt_u32 vcc, 24, v19")
    p("s_waitcnt lgkmcnt(0)")
    LX = 96
    srd(p, S_DBG, 68, 256)
    p(f"s_lshl_b32 s{S_T1}, s2, 2"); p(f"s_add_u32 s{S_T1}, s{S_T1}, s{S_WAVE}"); p(f"s_cmp_lg_u32 s{S_T1}, 0"); p("s_cbranch_scc1 L_noleader")
    p("s_memrealtime s[76:77]"); p("v_mov_b32 v29, 0"); p("s_waitcnt lgkmcnt(0)")
    p("s_lshl_b64 s[76:77], s[76:77], 8"); p("s_or_b32 s76, s76, 128"); p("v_mov_b32 v30, s76"); p("v_mov_b32 v31, s77")
    p(f"buffer_store_dwordx2 v[30:31], v29, s[{S_DBG}:{S_DBG+3}], 0 offen sc1")
    p.label("L_noleader")
    for m in range(3):
        p(f"buffer_load_dwordx4 v[{LX+4*m}:{LX+4*m+3}], v20, s[{S_XI}:{S_XI+3}], s{S_T0} offen offset:{m*384}{NTX}", "LX")
    p(f"s_mov_b64 s[{S_RET}:{S_RET+1}], vcc")
    p("v_lshrrev_b32 v20, 4, v17"); p("v_and_b32 v22, 15, v17")
    p("v_lshlrev_b32 v23, 2, v20"); p("v_xor_b32 v23, v23, v22"); p("v_lshlrev_b32 v24, 13, v20"); p(f"v_lshl_add_u32 v{V_WQ}, v23, 4, v24")
    p(f"s_mul_i32 s{S_W6K}, s{S_WAVE}, 6144")
    p(f"s_mul_i32 s{S_BQ}, s{S_WAVE}, {24*8192}"); p(f"s_lshl_b32 s{S_T0}, s{S_J}, 8"); p(f"s_add_u32 s{S_BQ}, s{S_BQ}, s{S_T0}")

    stages = [("q", 0, sub, 0) for sub in range(6)] + [("h", 0, sub, 0) for sub in range(3)]
    for t in range(4): stages += [("f", t, sub, (t + 1) % 2) for sub in range(3)]
    NST = len(stages)
    tmpsel = [0]
    def tmp():
        tmpsel[0] ^= 1
        return (S_T0, S_T1)[tmpsel[0]]
    def w_dma(st):
        kind, t, sub, buf = stages[st]; slot = st % 4
        ops = []
        if kind == "q":
            for i in range(6):
                tm = tmp()
                sal = [f"s_add_u32 s{tm}, s{S_BQ}, {(sub * 96 + 4 * i) * 8192}", f"s_add_u32 m0, s{S_W6K}, {WSLOT[slot] + i*1024}"]
                ops.append((sal, (f"buffer_load_dwordx4 v{V_WQ}, s[{S_WQ}:{S_WQ+3}], s{tm} offen{NTQ} lds", f"W{st}")))
            return annotate(ops)
        for reg in range(2):
            for i in range(3):
                base, srdn = (S_BH if kind == "h" else S_BF), (S_WG, S_WU)[reg]
                imm = (sub * 192 + 16 * i) * 9216 + t * 64
                tm = tmp()
                sal = [f"s_add_u32 s{tm}, s{base}, {imm}", f"s_add_u32 m0, s{S_W3K}, {WSLOT[slot] + reg*12288 + i*1024}"]
                ops.append((sal, (f"buffer_load_dwordx4 v{V_WF}, s[{srdn}:{srdn+3}], s{tm} offen{NTW} lds", f"W{st}")))
        return annotate(ops)
    def x_loads(k0, k1):
        ops = []
        for ks in range(k0, k1):
            for mt in range(4):
                ops.append(([f"s_add_u32 s{S_RD}, s{S_XB}, {ks*4096}"] if mt == 0 else [],
                            (f"buffer_load_dwordx4 {xreg(ks, mt)}, v{V_L16}, s[{S_WS}:{S_WS+3}], s{S_RD} offen offset:{mt*1024} sc1", f"X{ks//3}")))
        return annotate(ops)
    def kv_dma(which, tile_slot, soff, add):
        ops = []
        for t in range(4):
            tm = tmp()
            base = (0 if which == "K" else 65536) + tile_slot * 16384 + t * 4096
            srdn = S_K if which == "K" else S_V
            if soff is None: sal = [f"s_mov_b32 s{tm}, {add + t*4096}"]
            else: sal = [f"s_add_u32 s{tm}, s{soff}, {add + t*4096}"]
            sal.append(f"s_add_u32 m0, s{S_W1K}, {base}")
            ops.append((sal, (f"buffer_load_dwordx4 v{V_KD if which == 'K' else V_VD}, s[{srdn}:{srdn+3}], s{tm} offen{NTKV} lds", f"{which}{tile_slot}")))
        return annotate(ops)
    def issue(ops):
        for sal, op in ops:
            for s in reversed(sal): p(s)
            p(op[0], op[1])
    PV_ = os.environ.get('PROV', 'D')
    if PV_ in 'AOCD': issue(w_dma(0))
    if PV_ == 'O': issue(w_dma(1))
    if 'hiws' in ABL:
        p(f"s_add_u32 s70, s70, {128<<20}"); p("s_addc_u32 s71, s71, 0")
    srd(p, S_WS, 70, WS_BYTES)
    srd(p, S_WG, 72, 576 * 9216); srd(p, S_WU, 74, 576 * 9216)
    if 'nobad' not in ABL:
        p(f"s_and_b32 s{S_T0}, s{S_WAVE}, 1"); p(f"s_cmp_eq_u32 s{S_T0}, 0")
        p(f"s_cselect_b32 s{S_V}, s{S_WG}, s{S_WU}"); p(f"s_cselect_b32 s{S_V+1}, s{S_WG+1}, s{S_WU+1}"); p(f"s_mov_b32 s{S_V+2}, {576*9216}"); p(f"s_mov_b32 s{S_V+3}, 0x20000")
        p(f"s_lshr_b32 s{S_T0}, s2, 3"); p(f"s_lshl_b32 s{S_T0}, s{S_T0}, 1"); p(f"s_lshr_b32 s{S_T1}, s{S_WAVE}, 1"); p(f"s_add_u32 s{S_T0}, s{S_T0}, s{S_T1}"); p(f"s_mul_i32 s{S_T0}, s{S_T0}, {9*9216}")
        p(f"s_lshr_b32 s{S_T2}, s{S_J}, 3"); p(f"s_mul_i32 s{S_T2}, s{S_T2}, 2304"); p(f"s_add_u32 s{S_T0}, s{S_T0}, s{S_T2}")
        p(f"s_sub_u32 s{S_T1}, 384, s{S_V}"); p(f"s_sub_u32 s{S_T1}, s{S_T1}, s{S_T2}"); p(f"s_and_b32 s{S_T1}, s{S_T1}, 1023"); p(f"s_add_u32 s{S_T0}, s{S_T0}, s{S_T1}")
        p("v_min_u32 v26, 26, v17"); p("v_mul_u32_u24 v27, 22, v26"); p("v_lshrrev_b32 v27, 6, v27")
        p(f"v_mul_u32_u24 v27, {9216 - 3072}, v27"); p("v_lshl_add_u32 v26, v26, 10, v27")
        p(f"buffer_load_dword v164, v26, s[{S_V}:{S_V+3}], s{S_T0} offen", "TCH")
    if 'finepro' in ABL: stamp(p, 2)
    F = 112
    p(f"s_mov_b32 s{S_T2}, 0xffff0000")
    for i in range(4): p(f"v_mov_b32 v{140+i}, 0")
    p(f"s_lshl_b32 s{S_T0}, s{S_WAVE}, 5"); p("v_lshlrev_b32 v25, 7, v19"); p("v_lshl_add_u32 v25, v18, 4, v25"); p(f"v_add_u32 v25, s{S_T0}, v25")
    p.items.append(WaitFor(vm=("LX",)))
    if 'finepro' in ABL: stamp(p, 3)
    for i in range(12):
        p(f"v_lshlrev_b32 v{F+2*i}, 16, v{LX+i}"); p(f"v_and_b32 v{F+2*i+1}, s{S_T2}, v{LX+i}")
    p(f"s_mov_b64 exec, s[{S_RET}:{S_RET+1}]")
    for e in range(24): p(f"v_add_f32 v{140+e%2}, v{140+e%2}, v{F+e}")
    p("s_mov_b64 exec, -1")
    def reduce32(r, t):
        p(f"v_add_f32 v{r}, v{r}, v{r+1}")
        for mod in ("quad_perm:[1,0,3,2]", "quad_perm:[2,3,0,1]", "row_half_mirror", "row_mirror"):
            p(f"v_add_f32_dpp v{r}, v{r}, v{r} {mod} row_mask:0xf bank_mask:0xf")
        p(f"v_mov_b32 v{t}, v{r}"); p(f"v_permlane16_swap_b32 v{r}, v{t}"); p(f"v_add_f32 v{r}, v{r}, v{t}")
    reduce32(140, 141)
    p(f"v_mul_f32 v140, {f2u(1.0/576)}, v140")
    p(f"s_mov_b64 exec, s[{S_RET}:{S_RET+1}]")
    for e in range(24):
        t = 144 + (e % 4)
        p(f"v_sub_f32 v{t}, v{F+e}, v140"); p(f"v_fmac_f32 v{142+e%2}, v{t}, v{t}")
    p("s_mov_b64 exec, -1")
    reduce32(142, 143)
    p(f"v_mul_f32 v142, {f2u(1.0/576)}, v142")
    def rnd(r):
        p(f"v_cvt_pk_bf16_f32 v{r}, v{r}, v{r}"); p(f"v_and_b32 v{r}, s{S_T2}, v{r}")
    rnd(142); rnd(140)
    p(f"v_add_f32 v142, {f2u(1e-5)}, v142"); rnd(142)
    p("v_sqrt_f32 v142, v142")
    for e in range(24): p(f"v_sub_f32 v{F+e}, v{F+e}, v140")
    rnd(142)
    p("v_rcp_f32 v143, v142")
    for i in range(12): p(f"v_cvt_pk_bf16_f32 v{F+2*i+1}, v{F+2*i}, v{F+2*i+1}")
    p("v_fma_f32 v144, -v142, v143, 1.0"); p("v_fmac_f32 v143, v144, v143")
    for i in range(12):
        p(f"v_lshlrev_b32 v{F+2*i}, 16, v{F+2*i+1}"); p(f"v_and_b32 v{F+2*i+1}, s{S_T2}, v{F+2*i+1}")
    for e in range(24): p(f"v_mul_f32 v{F+e}, v{F+e}, v143")
    for i in range(12): p(f"v_cvt_pk_bf16_f32 v{LX+i}, v{F+2*i}, v{F+2*i+1}")
    p(f"s_mov_b64 exec, s[{S_RET}:{S_RET+1}]")
    for m in range(3): p(f"ds_write_b128 v25, v[{LX+4*m}:{LX+4*m+3}] offset:{m*24*128}")
    p("s_mov_b64 exec, -1")
    p("v_lshrrev_b32 v26, 3, v17"); p("v_and_b32 v27, 3, v26"); p("v_lshrrev_b32 v26, 2, v26"); p("v_and_b32 v28, 7, v17")
    p("v_lshl_add_u32 v27, v27, 4, v28"); p("v_lshlrev_b32 v27, 4, v27"); p("v_lshl_add_u32 v26, v26, 12, v27")
    p(f"s_lshl_b32 s{S_T0}, s{S_RB}, 2"); p(f"s_lshr_b32 s{S_T1}, s{S_J}, 3"); p(f"s_add_u32 s{S_T0}, s{S_T0}, s{S_T1}"); p(f"s_mul_i32 s{S_T0}, s{S_T0}, 73728")
    p(f"s_and_b32 s{S_T1}, s{S_J}, 6"); p(f"s_lshl_b32 s{S_T1}, s{S_T1}, 9"); p(f"s_add_u32 s{S_T0}, s{S_T0}, s{S_T1}")
    p(f"s_and_b32 s{S_T1}, s{S_J}, 1"); p(f"s_lshl_b32 s{S_T1}, s{S_T1}, 7"); p(f"s_add_u32 s{S_T0}, s{S_T0}, s{S_T1}")
    p(f"s_lshl_b32 s{S_W1K}, s{S_WAVE}, 10")
    p("s_waitcnt lgkmcnt(0)"); p("s_barrier")
    p(f"s_cmp_lg_u32 s{S_WAVE}, 0"); p("s_cbranch_scc1 L_noxs")
    for m in range(9): p(f"ds_read_b128 v[{LX+4*m}:{LX+4*m+3}], v{V_L16} offset:{m*1024}")
    for m in range(9):
        p(f"s_waitcnt lgkmcnt({8-m})")
        p(f"buffer_store_dwordx4 v[{LX+4*m}:{LX+4*m+3}], v26, s[{S_WS}:{S_WS+3}], s{S_T0} offen sc1", "XS")
        if m < 8: p(f"s_add_u32 s{S_T0}, s{S_T0}, 8192")
    p.label("L_noxs")
    assert XN_OFF == 0
    if 'finepro' in ABL: stamp(p, 4)
    p("v_lshrrev_b32 v18, 2, v17"); p("v_and_b32 v19, 3, v17"); p("v_and_b32 v21, 3, v18")
    p("v_mov_b32 v29, 0")
    p(f"buffer_load_dwordx2 v[32:33], v29, s[{S_DBG}:{S_DBG+3}], 0 offen sc1", "EP")
    p(f"s_mov_b32 s{S_FO}, {FLAG_OFF}")
    p(f"s_getreg_b32 s{S_XCC}, hwreg(HW_REG_XCC_ID, 0, 4)"); p(f"s_lshl_b32 s{S_XCC}, s{S_XCC}, 3")
    p(f"s_lshl_b32 s{S_T0}, s{S_RB}, 11"); p(f"s_lshr_b32 s{S_T1}, s{S_J}, 3"); p(f"s_lshl_b32 s{S_T1}, s{S_T1}, 9"); p(f"s_add_u32 s{S_T1}, s{S_T1}, s{S_T0}")
    p(f"s_and_b32 s{S_T2}, s{S_J}, 7"); p(f"s_lshl_b32 s{S_T2}, s{S_T2}, 3"); p(f"s_add_u32 s{S_T1}, s{S_T1}, s{S_T2}")
    p(f"s_cmp_eq_u32 s{S_WAVE}, 0"); p(f"s_cselect_b32 s{S_T1}, s{S_T1}, {1 << 30}"); p(f"v_mov_b32 v{V_SA}, s{S_T1}")
    p(f"s_lshl_b32 s{S_T1}, s{S_WAVE}, 9"); p(f"s_add_u32 s{S_T0}, s{S_T0}, s{S_T1}"); p(f"v_lshl_add_u32 v30, v28, 3, s{S_T0}")
    p(f"s_lshl_b32 s{S_T0}, s{S_RB}, 2"); p(f"s_add_u32 s{S_T0}, s{S_T0}, s{S_WAVE}")
    p(f"s_mul_i32 s{S_XB}, s{S_T0}, 73728"); p(f"s_lshl_b32 s{S_OBASE}, s{S_T0}, 14")
    p("v_lshl_add_u32 v23, v20, 3, v21"); p("v_lshlrev_b32 v24, 8, v23"); p("v_lshl_add_u32 v24, v19, 4, v24"); p(f"v_add_u32 v24, {40*1024}, v24")
    for sg_ in range(4):
        p(f"v_xor_b32 v25, {sg_}, v21"); p(f"v_lshl_add_u32 v{V_RQ+sg_}, v25, 6, v24"); p(f"v_add_u32 v{V_RQ+4+sg_}, {64*1024}, v{V_RQ+sg_}")
    p(f"s_mov_b32 s{S_SPIN}, 0x40000")
    p.label("L_eppoll")
    p("s_waitcnt vmcnt(0)")
    p(f"v_readfirstlane_b32 s{S_EP}, v32"); p(f"v_readfirstlane_b32 s{S_EP2}, v33")
    p(f"s_cmp_lg_u32 s{S_EP}, 0"); p("s_cbranch_scc1 L_epok")
    p(f"buffer_load_dwordx2 v[32:33], v29, s[{S_DBG}:{S_DBG+3}], 0 offen sc1")
    p(f"s_sub_u32 s{S_SPIN}, s{S_SPIN}, 1"); p(f"s_cmp_lg_u32 s{S_SPIN}, 0"); p("s_cbranch_scc1 L_eppoll")
    p("s_waitcnt vmcnt(0)")
    p.label("L_epok")
    p(f"s_add_u32 s{S_XCC}, s{S_XCC}, s{S_EP}"); p(f"v_add_u32_e64 v32, s{S_XCC}, 1")
    p(f"buffer_store_dwordx2 v[32:33], v{V_SA}, s[{S_WS}:{S_WS+3}], s{S_FO} offen sc1")
    if 'finepro' in ABL: stamp(p, 5)
    if PV_ == 'B': issue(w_dma(0))
    if PV_ in 'CD': issue(w_dma(1))
    if PV_ == 'D': issue(w_dma(2))
    p("v_lshlrev_b32 v23, 6, v23")
    p("v_and_b32 v24, 1, v20"); p("v_lshlrev_b32 v24, 5, v24")
    p("v_lshl_add_u32 v25, v19, 3, v23")
    p(f"v_add_u32 v{V_RA}, v25, v24"); p(f"v_add_u32 v{V_RA}, {40*1024}, v{V_RA}")
    p(f"v_xor_b32 v{V_RA+1}, 32, v{V_RA}")
    p(f"v_add_u32 v{V_RA+2}, {64*1024}, v{V_RA}"); p(f"v_add_u32 v{V_RA+3}, {64*1024}, v{V_RA+1}")
    p(f"s_and_b32 s{S_T2}, s{S_J}, 1"); p(f"s_lshl_b32 s{S_T0}, s{S_T2}, 5")
    p(f"v_xor_b32 v{V_RH}, s{S_T0}, v{V_RA}"); p(f"v_add_u32 v{V_RH+1}, {64*1024}, v{V_RH}")
    p("v_lshrrev_b32 v23, 5, v17"); p("v_lshlrev_b32 v23, 1, v23"); p("v_xor_b32 v23, v23, v19")
    p(f"v_mul_u32_u24 v24, 9216, v18"); p(f"v_lshl_add_u32 v{V_WF}, v23, 4, v24")
    p(f"v_mov_b32 v{V_C1}, {f2u(GC1)}"); p(f"v_mov_b32 v{V_C2}, {f2u(GC2)}")
    p(f"s_mul_i32 s{S_W3K}, s{S_WAVE}, 3072")
    p(f"s_mul_i32 s{S_BH}, s{S_WAVE}, {48*9216}")
    p(f"s_mul_i32 s{S_RS}, s{S_J}, 288"); p(f"s_add_u32 s{S_RS}, s{S_RS}, s{S_T0}")
    p(f"s_add_u32 s{S_BF}, s{S_BH}, s{S_RS}")
    p(f"s_lshr_b32 s{S_T0}, s{S_J}, 1"); p(f"s_lshl_b32 s{S_T0}, s{S_T0}, 19")
    for d, b in ((S_K, 64), (S_V, 66)):
        p(f"s_add_u32 s{d}, s{b}, s{S_T0}"); p(f"s_addc_u32 s{d+1}, s{b+1}, 0"); p(f"s_mov_b32 s{d+2}, 524288"); p(f"s_mov_b32 s{d+3}, 0x20000")
    p(f"s_lshr_b32 s{S_T0}, s{S_J}, 1"); p(f"s_mul_i32 s{S_KOFF}, s{S_T0}, 576"); p(f"s_add_u32 s{S_KOFF}, s{S_KOFF}, 256")
    p(f"s_add_u32 s{S_BH}, s{S_BH}, s{S_KOFF}")
    def hoff(dst, colreg, add):
        p(f"s_lshr_b32 s{S_T0}, s{colreg}, 6"); p(f"s_add_u32 s{S_T0}, s{S_T0}, {add}")
        p(f"s_lshr_b32 s{S_T1}, s{S_T0}, 2"); p(f"s_lshl_b32 s{S_T1}, s{S_T1}, 19")
        p(f"s_and_b32 s{S_T0}, s{S_T0}, 3"); p(f"s_lshl_b32 s{S_T0}, s{S_T0}, 10")
        p(f"s_add_u32 s{dst}, s{S_T0}, s{S_T1}"); p(f"s_add_u32 s{dst}, s{dst}, s{S_OBASE}")
    hoff(S_HHALF, S_KOFF, 0); p(f"s_lshl_b32 s{S_T0}, s{S_T2}, 3"); p(f"s_add_u32 s{S_HHALF}, s{S_HHALF}, s{S_T0}")
    for t in range(4): hoff(S_HF + t, S_RS, t)
    p(f"s_lshl_b32 s{S_T0}, s{S_J}, 19"); p(f"s_add_u32 s{S_OBASE}, s{S_OBASE}, s{S_T0}")
    p(f"s_mov_b32 s{S_THR}, {f2u(THRESH)}")
    p(f"s_lshl_b32 s{S_T0}, s{S_WAVE}, 2"); p(f"v_add_u32 v23, s{S_T0}, v20")
    p(f"v_xor_b32 v24, v22, v23"); p(f"v_lshlrev_b32 v24, 4, v24"); p(f"v_lshl_add_u32 v{V_KD}, v23, 8, v24")
    p(f"v_and_b32 v24, 7, v23"); p(f"v_lshlrev_b32 v24, 1, v24"); p(f"v_xor_b32 v24, v22, v24"); p(f"v_lshlrev_b32 v24, 4, v24"); p(f"v_lshl_add_u32 v{V_VD}, v23, 8, v24")
    for ks in range(2, 4):
        p(f"v_add_u32 v23, {4*ks}, v20"); p("v_xor_b32 v23, v23, v22"); p("v_lshlrev_b32 v23, 4, v23"); p(f"v_lshl_add_u32 v{V_KA+ks}, v22, 8, v23")
    p("v_and_b32 v24, 7, v18"); p("v_lshlrev_b32 v25, 8, v18"); p("v_lshl_add_u32 v25, v19, 3, v25"); p("v_add_u32 v25, 0x10000, v25")
    for dt in range(8):
        p(f"v_xor_b32 v23, {dt}, v24"); p(f"v_lshl_add_u32 v{V_VA+dt}, v23, 5, v25")
    p(f"s_lshl_b32 s{S_T0}, s{S_WAVE}, 14"); p(f"s_cmp_eq_u32 s{S_WAVE}, 2"); p(f"s_cselect_b32 s{S_T0}, 0x10000, s{S_T0}")
    p(f"s_add_u32 s{S_T1}, s{S_T0}, 8192"); p(f"s_cmp_eq_u32 s{S_WAVE}, 3"); p(f"s_cselect_b32 s{S_T0}, 0x8000, s{S_T0}"); p(f"s_cselect_b32 s{S_T1}, {152*1024}, s{S_T1}")
    p(f"v_add_u32 v{V_QP}, s{S_T0}, v{V_L16}"); p(f"v_add_u32 v{V_QP+1}, s{S_T1}, v{V_L16}")
    p(f"s_lshl_b32 s{S_T0}, s{S_RB}, 11"); p(f"s_and_b32 s{S_T1}, s{S_J}, 24"); p(f"s_lshl_b32 s{S_T1}, s{S_T1}, 6"); p(f"s_add_u32 s{S_T0}, s{S_T0}, s{S_T1}")
    p(f"v_lshl_add_u32 v{V_TA}, v28, 3, s{S_T0}"); p(f"s_add_u32 s{S_PV}, s{S_EP}, 1")
    p(f"s_mov_b32 s{S_SPIN}, 0x40000")
    p.label("L_xpoll")
    p(f"buffer_load_dwordx2 v[34:35], v30, s[{S_WS}:{S_WS+3}], s{S_FO} offen sc1")
    p("s_waitcnt vmcnt(0)")
    for t in flag_test(34): p(t)
    p("v_cmp_le_u32 vcc, 7, v34")
    p("s_cbranch_vccz L_xready")
    p(f"s_sub_u32 s{S_SPIN}, s{S_SPIN}, 1"); p("s_sleep 1"); p(f"s_cmp_lg_u32 s{S_SPIN}, 0"); p("s_cbranch_scc1 L_xpoll")
    p.label("L_xready")
    if 'finepro' in ABL: stamp(p, 6)

    groups = []
    for st in range(NST):
        kind, t, sub, buf = stages[st]
        if kind == "q":
            for nt in range(8): groups.append((st, nt, 0))
        else:
            nts = [0, 2] if kind == "h" else [0, 1, 2, 3]
            for c0 in (0, 3):
                for nt in nts: groups.append((st, nt, c0))
    def a_reads(gi):
        st, nt, c0 = groups[gi]; kind, t, sub, buf = stages[st]
        hb, off = wbase(st % 4)
        out = []
        for c in range(3):
            for tt in range(2):
                d = V_AF + (gi % 3) * 12 + c * 4 + 2 * tt
                if kind == "q":
                    addr = V_RQ + 4 * hb + (nt >> 1); o = off + c * 8192 + tt * 1024 + 8 * (nt & 1)
                else:
                    addr = (V_RA + 2 * hb + (nt & 1)) if kind == "f" else (V_RH + hb)
                    o = off + (nt >> 1) * 12288 + (c0 + c) * 2048 + tt * 256
                out.append((f"ds_read_b64_tr_b16 v[{d}:{d+1}], v{addr} offset:{o}", f"A{gi%3}"))
        return out
    acc = lambda buf, nt, mt: V_ACC + buf * 64 + (nt * 4 + mt) * 4
    gaps = []; gstart = []
    for gi, (st, nt, c0) in enumerate(groups):
        gstart.append(len(gaps))
        kind, t, sub, buf = stages[st]
        for mt in range(4):
            for c in range(3):
                a = acc(buf, nt, mt); af = V_AF + (gi % 3) * 12 + c * 4
                ks = (sub * 3 if kind == "q" else sub * 6 + c0) + c
                C = "0" if ks == 0 else f"v[{a}:{a+3}]"
                gaps.append(Gap(f"v_mfma_f32_16x16x32_bf16 v[{a}:{a+3}], v[{af}:{af+3}], {xreg(ks, mt)}, {C}"))
    NG = len(groups)
    first_of_stage = {}
    for gi, (st, nt, c0) in enumerate(groups): first_of_stage.setdefault(st, gi)
    bar_gap = {}
    for gi in range(2, NG):
        st = groups[gi][0]; f = first_of_stage[st]
        rd = a_reads(gi)
        if gi == f:
            g0 = gstart[gi - 1]; bar_gap[st] = g0 - 1
            for n, r in enumerate(rd): gaps[g0 + n].mem.append(r)
        elif gi == f + 1:
            g0 = gstart[gi - 2]
            for n, r in enumerate(rd): gaps[g0 + 6 + n].mem.append(r)
        else:
            g0 = gstart[gi - 2]
            for n, r in enumerate(rd): gaps[g0 + 2 * n].mem.append(r)
    for gi in range(1, NG):
        g = gaps[gstart[gi] - 1]
        st, nt, c0 = groups[gi]
        vm = []
        if st < 6 and nt == 0: vm.append(f"X{st}")
        nxt = groups[gi + 1][0] if gi + 1 < NG else None
        if nxt is not None and nxt != st:
            g.sh.append(WaitFor(vm=vm + [f"W{nxt}"], lg0=True)); g.sh.append("s_barrier")
        else:
            g.sh.append(WaitFor(lg=(f"A{gi%3}",), vm=vm))
    def place_mem(gaps, ops, g0, g1, dense=False, want=0):
        pitch = max(1.0, (g1 - g0 - 8) / len(ops)) if not dense else 1.0
        last = g0
        for n, (sal, op) in enumerate(ops):
            g = max(last + 1 + len(sal), int(g0 + 2 + n * pitch))
            while True:
                assert g < g1, (g0, g1, n, len(ops))
                ok = (len(gaps[g].mem) <= 1 if dense else len(gaps[g].mem) == want) and all(len(gaps[g - len(sal) + i].sh) == 0 for i in range(len(sal)))
                if ok: break
                g += 1
            for i, s in enumerate(sal): gaps[g - len(sal) + i].sh.append(s)
            gaps[g].mem.append(op); last = g
    for st in range(NST):
        g0 = gstart[first_of_stage[st]]
        g1 = bar_gap[st + 1] if st + 1 < NST else len(gaps)
        ops = []
        if st == 0: ops = (w_dma(2) if PV_ != 'D' else []) + x_loads(6, 9) + w_dma(3)
        elif st == 1: ops = x_loads(9, 12) + w_dma(4)
        elif st == 2: ops = x_loads(12, 15) + w_dma(5)
        elif st == 3: ops = x_loads(15, 18) + w_dma(6)
        elif st + 3 < NST: ops = w_dma(st + 3)
        if st == 4: ops = [([], (f"buffer_load_dword v{V_TA+1}, v{V_TA}, s[{S_WS}:{S_WS+3}], s{S_FO} offen sc1", "GX"))] + ops
        if st == 18: ops += kv_dma("V", VS(0), None, 0)
        if st == 19: ops += kv_dma("K", KS(0), None, 0)
        if st == 20: ops += kv_dma("K", KS(1), None, 16384) + kv_dma("V", VS(1), None, 16384) + kv_dma("K", KS(2), None, 32768)
        if ops: place_mem(gaps, ops, g0, g1 if st < 20 else g0 + 60)
        if st == 19:
            cand = [g for g in range(g0 + 3, g1 - 2) if not gaps[g].mem][::2]
            assert len(cand) >= 16
            for f, g in enumerate(cand[:16]):
                gaps[g].mem.append((f"ds_read_b128 a[{A_Q+4*f}:{A_Q+4*f+3}], v{V_QP + f//8} offset:{(f%8)*1024}", "QR"))
    def ffn_epi(st0, pk=False, mts=(0, 1, 2, 3)):
        kind, t, sub, buf = stages[st0]
        q = []
        for mt in mts:
            if kind == "f": el = [(acc(buf, n, mt) + r, acc(buf, 2 + n, mt) + r) for n in range(2) for r in range(4)]
            else: el = [(acc(buf, 0, mt) + r, acc(buf, 2, mt) + r) for r in range(4)]
            T = V_T + 8 * (mt % 2)
            if pk:
                pr = lambda r: f"v[{r}:{r+1}]"
                ev = list(enumerate(el))[::2]
                for e, (g, u) in ev: q.append(f"v_pk_mul_f32 {pr(T+e)}, {pr(g)}, {pr(g)}")
                for e, (g, u) in ev: q.append(f"v_pk_fma_f32 {pr(T+e)}, {pr(T+e)}, {pr(V_C1)}, {pr(V_C1)} op_sel:[0,1,0] op_sel_hi:[1,1,0]")
                for e, (g, u) in ev: q.append(f"v_pk_mul_f32 {pr(T+e)}, {pr(T+e)}, {pr(g)}")
                for e, (g, u) in enumerate(el): q.append(f"v_exp_f32 v{T+e}, v{T+e}")
                for e, (g, u) in ev: q.append(f"v_pk_mul_f32 {pr(g)}, {pr(g)}, {pr(u)}")
                for e, (g, u) in ev: q.append(f"v_pk_add_f32 {pr(T+e)}, {pr(T+e)}, 1.0 op_sel_hi:[1,0]")
                for e, (g, u) in enumerate(el): q.append(f"v_rcp_f32 v{T+e}, v{T+e}")
                for e, (g, u) in ev: q.append(f"v_pk_mul_f32 {pr(g)}, {pr(g)}, {pr(T+e)}")
            else:
                for e, (g, u) in enumerate(el): q.append(f"v_mul_f32 v{T+e}, v{g}, v{g}")
                for e, (g, u) in enumerate(el): q.append(f"v_fma_f32 v{T+e}, v{T+e}, v{V_C2}, v{V_C1}")
                for e, (g, u) in enumerate(el): q.append(f"v_mul_f32 v{T+e}, v{T+e}, v{g}")
                for e, (g, u) in enumerate(el):
                    q.append(f"v_exp_f32 v{T+e}, v{T+e}"); q.append(f"v_mul_f32 v{g}, v{g}, v{u}")
                for e, (g, u) in enumerate(el): q.append(f"v_add_f32 v{T+e}, 1.0, v{T+e}")
                for e, (g, u) in enumerate(el): q.append(f"v_rcp_f32 v{T+e}, v{T+e}")
                for e, (g, u) in enumerate(el): q.append(f"v_mul_f32 v{g}, v{g}, v{T+e}")
            o = V_HO + 4 * (mt % 2)
            for i in range(len(el) // 2): q.append(f"v_cvt_pk_bf16_f32 v{o+i}, v{el[2*i][0]}, v{el[2*i+1][0]}")
            if kind == "f":
                q.append(("MEM", [f"s_add_u32 s{S_T2}, s{S_HF+t}, {H_OFF + mt*4096}"], (f"buffer_store_dwordx4 v[{o}:{o+3}], v{V_L16}, s[{S_WS}:{S_WS+3}], s{S_T2} offen{SCH}", None)))
            else:
                q.append(("MEM", [f"s_add_u32 s{S_T2}, s{S_HHALF}, {H_OFF + mt*4096}"], (f"buffer_store_dwordx2 v[{o}:{o+1}], v{V_L16}, s[{S_WS}:{S_WS+3}], s{S_T2} offen{SCH}", None)))
        return q
    def q_epi(seg):
        q = []
        for mt in range(4):
            rs = [acc(0, 2 * seg, mt) + r for r in range(4)] + [acc(0, 2 * seg + 1, mt) + r for r in range(4)]
            o = V_T + 4 * ((seg * 4 + mt) % 4)
            for r in rs: q.append(f"v_mul_f32 v{r}, {f2u(QSCALE)}, v{r}")
            for i in range(4): q.append(f"v_cvt_pk_bf16_f32 v{o+i}, v{rs[2*i]}, v{rs[2*i+1]}")
            f = mt * 4 + seg
            q.append(("MEM", [], (f"ds_write_b128 v{V_QP + f//8}, v[{o}:{o+3}] offset:{(f%8)*1024}", None)))
        return q
    sg = lambda st: gstart[first_of_stage[st]]
    gaps[bar_gap[20] - 11].post += [f"s_load_dwordx2 s[64:65], s[0:1], {ARG['wo']}", f"s_load_dwordx2 s[66:67], s[0:1], {ARG['wd']}",
                                    f"s_load_dwordx2 s[{S_OUT}:{S_OUT+1}], s[0:1], {ARG['out']}"]
    g_ = gaps[sg(8) + 1]
    g_.post += [WaitFor(vm=("GX",)), f"v_subrev_u32 v{V_TA+1}, s{S_XCC}, v{V_TA+1}", f"v_cmp_le_u32 vcc, 8, v{V_TA+1}", "s_nop 1",
                "s_cmp_lg_u64 vcc, 0", f"s_cselect_b32 s{S_MIX}, 1, {1 if 'forcemix' in ABL else 0}"]
    f5 = first_of_stage[5]
    q = []; mins = []
    for seg in range(4):
        e_ = q_epi(seg); q += e_; mins += [gstart[f5 + 2 * seg + 2] + 3] * len(e_)
    left = fill_valu(gaps[:sg(9) - 3], gstart[f5 + 2] + 3, q, mins=mins); assert not left, len(left)
    for seg, lim_ in ((0, sg(6) - 3), (1, sg(6) + 9)):
        cv_ = [x for x in q_epi(seg) if isinstance(x, str)]
        lastg = max(gi for gi, g in enumerate(gaps) for x in g.valu if x in cv_ and gi < sg(9))
        assert lastg < lim_, (seg, lastg, lim_)
    for st0 in (6, 9, 12, 15):
        end = sg(st0 + 6) - 3 if st0 + 6 < NST else len(gaps)
        left = fill_valu(gaps[:end], sg(st0 + 3) + 3, ffn_epi(st0)); assert not left, (st0, len(left))
    left = fill_valu(gaps, sg(19), [f"v_xor_b32 v{V_KA}, 128, v{V_KA+2}", f"v_xor_b32 v{V_KA+1}, 128, v{V_KA+3}"]); assert not left
    issue(x_loads(0, 3))
    p("s_barrier")
    for t, tag in a_reads(0) + a_reads(1): p(t, tag)
    if PV_ in 'AB': issue(w_dma(1))
    issue(x_loads(3, 6))
    p.items.append(WaitFor(lg=("A0",), vm=("X0",)))
    stamp(p, 1)
    if 'finepro' in ABL:
        gaps[sg(1) - 1].post += stamp_ops(7); gaps[sg(2) - 1].post += stamp_ops(8); gaps[sg(3) - 1].post += stamp_ops(9)
    elif 'fine1' in ABL:
        for st in range(6, 21): gaps[sg(st) - 1].post += stamp_ops(st - 4)
    else:
        gaps[sg(6) - 1].post += stamp_ops(2); gaps[sg(12) - 1].post += stamp_ops(3)
    emit_gaps(p, gaps)
    if 'fine1' in ABL:
        stamp(p, 17); globals()['ABL'] += ',finepro'
    if 'finepro' not in ABL: stamp(p, 4)

    Sreg = lambda par, kt, qt: V_S + (1 - par) * 64 + (kt * 4 + qt) * 4
    Preg = lambda par, kb, qt: (V_P0 + par * 16 + qt * 4) if kb == 0 else (V_P1 + qt * 4)
    Kf = lambda kt, ks: A_KF + (kt % 2) * 16 + ks * 4
    Vf = lambda dt, kb: A_VF + (dt % 4) * 8 + kb * 4
    def k_reads(slot, kt):
        return [(f"ds_read_b128 a[{Kf(kt,ks)}:{Kf(kt,ks)+3}], v{V_KA+ks} offset:{slot*16384 + kt*4096}", f"KF{kt%2}") for ks in range(4)]
    def v_reads(slot, dt):
        return [(f"ds_read_b64_tr_b16 a[{Vf(dt,kb)+2*t}:{Vf(dt,kb)+2*t+1}], v{V_VA+dt} offset:{slot*16384 + kb*8192 + t*4096}", f"VF{dt%4}") for kb in range(2) for t in range(2)]
    def qk_mfma(par, kt, qt, ks, zero=False):
        s = Sreg(par, kt, qt)
        C = f"v[{s}:{s+3}]" if ks else ("0" if zero else f"v[{V_NM+4*qt}:{V_NM+4*qt+3}]")
        qf = A_Q + (qt * 4 + ks) * 4
        return f"v_mfma_f32_16x16x32_bf16 v[{s}:{s+3}], a[{Kf(kt,ks)}:{Kf(kt,ks)+3}], a[{qf}:{qf+3}], {C}"
    def pv_mfma(par, dt, qt, kb):
        o = A_O + (dt * 4 + qt) * 4; pr = Preg(par, kb, qt)
        return f"v_mfma_f32_16x16x32_bf16 a[{o}:{o+3}], a[{Vf(dt,kb)}:{Vf(dt,kb)+3}], v[{pr}:{pr+3}], a[{o}:{o+3}]"
    def l_mfma(par, qt, kb):
        pr = Preg(par, kb, qt)
        return f"v_mfma_f32_16x16x32_bf16 v[{V_LD}:{V_LD+3}], v[{V_ONE}:{V_ONE+3}], v[{pr}:{pr+3}], " + ("0" if kb == 0 else f"v[{V_LD}:{V_LD+3}]")
    def elem(par, tau):
        kb = tau // 32; r = tau % 32; qt = 2 * (r // 16) + ((r % 4) >> 1); j = 2 * ((r % 16) // 4) + (r & 1)
        return Sreg(par, 2 * kb + (j >> 2), qt) + (j & 3), kb, qt, j
    def op_exp(par, tau): return f"v_exp_f32 v{V_E + tau % 8}, v{elem(par, tau)[0]}"
    def op_add(par, tau):
        s, kb, qt, j = elem(par, tau); assert qt % 2 == 1
        src = V_LS + (1 - par) * 4 + qt if (kb == 0 and j == 0) else V_LS + par * 4 + qt
        return f"v_add_f32 v{V_LS + par*4 + qt}, v{src}, v{V_E + tau % 8}"
    def op_ladd(par, qt): return f"v_add_f32 v{V_LS + par*4 + qt}, v{V_LS + (1-par)*4 + qt}, v{V_LD}"
    def op_cvt(par, tau):
        s, kb, qt, j = elem(par, tau); assert tau % 2 == 1
        return f"v_cvt_pk_bf16_f32 v{Preg(par, kb, qt) + j//2}, v{V_E + (tau-1) % 8}, v{V_E + tau % 8}"
    def rowmax(p, par, qt, dst):
        regs = [Sreg(par, kt, qt) + r for kt in range(4) for r in range(4)]
        p(f"v_max3_f32 v{dst}, v{regs[0]}, v{regs[1]}, v{regs[2]}")
        for i in range(3, 15, 2): p(f"v_max3_f32 v{dst}, v{dst}, v{regs[i]}, v{regs[i+1]}")
        p(f"v_max_f32 v{dst}, v{dst}, v{regs[15]}")
    def xlane_ops(op, dsts, t1):
        o = []
        for sw in ("v_permlane32_swap_b32", "v_permlane16_swap_b32"):
            for q, d in enumerate(dsts): o.append(f"v_mov_b32 v{t1+q}, v{d}")
            for q, d in enumerate(dsts): o.append(f"{sw} v{d}, v{t1+q}")
            for q, d in enumerate(dsts): o.append(f"{op} v{d}, v{d}, v{t1+q}")
        return o

    p.items.append(WaitFor(vm=(f"K{KS(0)}",), lg0=True)); p("s_barrier")
    for t, tag in k_reads(KS(0), 0) + k_reads(KS(0), 1): p(t, tag)
    g0 = []
    for kt in range(4):
        for qt in range(4):
            for ks in range(4): g0.append(Gap(qk_mfma(0, kt, qt, ks, zero=True)))
    for n, r in enumerate(k_reads(KS(0), 2)): g0[16 + 2 * n].mem.append(r)
    for n, r in enumerate(k_reads(KS(0), 3)): g0[32 + 2 * n].mem.append(r)
    g0[31].sh.append(WaitFor(lg=("KF0",))); g0[47].sh.append(WaitFor(lg=("KF1",)))
    place_mem(g0, kv_dma("K", KS(3), None, 3 * 16384) + kv_dma("V", VS(2), None, 2 * 16384), 0, 40)
    full = ffn_epi(18); per = len(full) // 4
    npre = 24
    if 'finea' in ABL: stamp(p, 0)
    emit_ops(p, full[:npre])
    left = fill_valu(g0, 0, full[npre:2 * per])
    left += ffn_epi(18, pk=True, mts=(2, 3))
    p.items.append(WaitFor(lg=("KF0", "KF1")))
    sal = [f"s_mov_b32 s{S_OUT+2}, {XN_BYTES}",
           f"s_and_b32 s{S_T0}, s{S_J}, 7", f"s_lshl_b32 s{S_T1}, s{S_RB}, 3", f"s_add_u32 s{S_T0}, s{S_T0}, s{S_T1}",
           f"s_lshl_b32 s{S_T0}, s{S_T0}, 2", f"s_add_u32 s{S_T0}, s{S_T0}, s{S_WAVE}", f"s_lshr_b32 s{S_KOFF}, s{S_J}, 3",
           f"s_sub_u32 s{S_T1}, s{S_T0}, 120", f"s_cmp_lt_u32 s{S_T0}, 120",
           f"s_cselect_b32 s{S_RE}, s{S_T0}, s{S_T1}", f"s_movk_i32 s{S_RNW}, 136", f"s_cselect_b32 s{S_RNW}, 120, s{S_RNW}",
           f"s_cselect_b32 s{S_WG}, s64, s66", f"s_cselect_b32 s{S_WG+1}, s65, s67",
           f"s_mov_b32 s{S_WG+2}, {1152*1152}", f"s_cselect_b32 s{S_WG+2}, {1024*1152}, s{S_WG+2}", f"s_mov_b32 s{S_WU+2}, s{S_WG+2}",
           f"s_mov_b32 s{S_T0}, {WPD_OFF}", f"s_cselect_b32 s{S_T0}, {WPO_OFF}, s{S_T0}",
           f"s_mul_i32 s{S_T1}, s{S_KOFF}, s{S_WG+2}",
           f"s_add_u32 s{S_WG}, s{S_WG}, s{S_T1}", f"s_addc_u32 s{S_WG+1}, s{S_WG+1}, 0",
           f"s_add_u32 s{S_T0}, s{S_T0}, s{S_T1}", f"s_add_u32 s{S_WU}, s70, s{S_T0}", f"s_addc_u32 s{S_WU+1}, s71, 0",
           f"s_sub_u32 s{S_RE}, s{S_RE}, s{S_RNW}",
           f"s_mov_b32 s{S_KOFF}, {4*16384}", f"s_mov_b32 s{S_VOFF}, {3*16384}", f"s_mov_b32 s{S_CNT}, 7",
           f"s_lshl_b32 s{S_BQ}, s{S_WAVE}, 11", f"s_add_u32 s{S_BQ}, s{S_BQ}, {128*1024}"]
    fr_ = [g for g in g0[41:] if not g.sh]
    k_ = sal.index(f"s_cmp_lt_u32 s{S_T0}, 120")
    for t, g in zip(sal[:k_], fr_): g.sh.append(t)
    emit_gaps(p, g0)
    emit_ops(p, left)
    for t in sal[k_:]: p(t)
    for q in range(4): p(f"v_mov_b32 v{V_LS+4+q}, 0")
    for q in range(4): p(f"v_mov_b32 v{V_ONE+q}, 0x3f803f80")
    p.items.append(WaitFor(vm=(f"K{KS(1)}", f"V{VS(0)}"))); p("s_barrier")
    for t, tag in k_reads(KS(1), 0) + k_reads(KS(1), 1): p(t, tag)
    p(f"v_lshrrev_b32 v{V_PT+1}, 4, v{V_L16}")
    p(f"v_lshrrev_b32 v{V_RPG}, 2, v{V_PT+1}"); p(f"v_and_b32 v{V_PT}, 3, v{V_PT+1}")
    p(f"v_lshlrev_b32 v{V_RPL}, 6, v{V_RPG}"); p(f"v_lshl_add_u32 v{V_RPL}, v{V_PT}, 3, v{V_RPL}"); p(f"v_add_u32 v{V_RPL}, s{S_BQ}, v{V_RPL}")
    p(f"v_mul_u32_u24 v{V_RPG}, 1152, v{V_RPG}"); p(f"v_lshl_add_u32 v{V_RPG}, v{V_PT}, 4, v{V_RPG}")
    p(f"s_and_b32 s{S_T1}, s{S_J}, 24"); p(f"s_lshl_b32 s{S_T1}, s{S_T1}, 6"); p(f"v_and_b32 v{V_PT}, 7, v{V_PT+1}")
    p(f"v_lshrrev_b32 v{V_PA}, 3, v{V_PT+1}"); p(f"v_lshlrev_b32 v{V_PA}, 11, v{V_PA}"); p(f"v_lshl_add_u32 v{V_PA}, v{V_PT}, 3, v{V_PA}")
    p(f"v_add_u32 v{V_PA}, s{S_T1}, v{V_PA}")
    p(f"v_mov_b32 v{V_SV+1}, s{S_EP2}")
    zm = [f"v_mfma_f32_32x32x16_bf16 a[{A_O+16*i}:{A_O+16*i+15}], v[{V_LS+4}:{V_LS+7}], v[{V_LS+4}:{V_LS+7}], 0" for i in range(8)]
    for qt in range(4):
        p(zm[qt]); rowmax(p, 0, qt, V_R + qt)
    for n, t in enumerate(xlane_ops("v_max_f32", [V_R + q for q in range(4)], V_R + 4)):
        if n % 8 == 0: p(zm[4 + n // 8])
        p(t)
    p(zm[7])
    for qt in range(4):
        for r in range(4): p(f"v_sub_f32 v{V_NM+4*qt+r}, {f2u(-BIAS) if BIAS else 0}, v{V_R+qt}")
    for kt in range(4):
        for qt in range(4):
            for r in (0, 2):
                s_ = Sreg(0, kt, qt) + r
                p(f"v_pk_add_f32 v[{s_}:{s_+1}], v[{s_}:{s_+1}], v[{V_NM+4*qt}:{V_NM+4*qt+1}]")
    for tau in range(36):
        p(op_exp(0, tau))
        if tau % 4 == 0 and tau: p(op_add(0, tau - 1)); p(op_cvt(0, tau - 1))
        if tau % 4 == 2: p(op_cvt(0, tau - 1))
        if tau % 4 == 3: p(op_add(0, tau - 1))
    p.items.append(WaitFor(lg=("KF0",)))
    p(op_add(0, 35))
    if 'finepro' not in ABL: stamp(p, 5); stamp_rt(p, 15)

    rare_sites = []
    class Tile: pass
    def used(g): return len(g.mem) + sum(slots_of(v) for v in g.valu)
    def att_tile(it, last_block=False, first_mfmas=None):
        par = it % 2
        final = last_block and it == 3
        T = Tile(); G = []; Q = []; PV = []; LG = []
        mf = first_mfmas or [qk_mfma(1 - par, kt, qt, ks) for kt in range(4) for qt in range(4) for ks in range(4)]
        for i, m in enumerate(mf):
            g = Gap(m); G.append(g); Q.append(g)
            if i in (19, 23, 51, 55):
                g = Gap(l_mfma(par, 0 if i < 32 else 2, 0 if i in (19, 51) else 1)); G.append(g); LG.append(g)
        for dt in range(8):
            for qt in range(4):
                for kb in range(2):
                    g = Gap(pv_mfma(par, dt, qt, kb)); G.append(g); PV.append(g)
        T.G, T.Q, T.PV, T.LG = G, Q, PV, LG
        idx = {id(g): i for i, g in enumerate(G)}
        T.idx = lambda g: idx[id(g)]
        br = Q[-1]
        for b in range(64):
            E, N = (Q[2*b], Q[2*b+1]) if b < 32 else (PV[2*b-64], PV[2*b-63])
            sp, tau = (par, 36 + b) if b < 28 else (1 - par, b - 28)
            if tau % 4 == 0:
                if not (final and b > 28): N.valu.append(op_cvt(sp, tau - 1) if b != 28 else op_cvt(par, 63))
            if final and b >= 28: continue
            E.valu.append(op_exp(sp, tau))
            if tau % 4 == 1: N.valu.append(op_cvt(sp, tau))
            if tau % 4 >= 2: (br if b in (30, 31) else N).valu.append(op_add(sp, tau))
        L = V_LS + par * 4
        site = f"{'z' if last_block else 'l'}{it}"; rare_sites.append((site, "Z" if final else str(par)))
        Q[29].valu.append(op_ladd(par, 0))
        Q[57].valu.append(f"v_max3_f32 v{V_CK}, v{L}, v{L+1}, v{L+3}")
        Q[59].valu.append(op_ladd(par, 2))
        Q[61].valu += [f"v_max_f32 v{V_CK}, v{V_CK}, v{L+2}", f"v_cmp_lt_f32 vcc, s{S_THR}, v{V_CK}"]
        br.sh += [f"s_cbranch_vccnz L_rare_stub{site}", Label(f"L_rare_ret{site}")]
        PV[1].sh.append("s_barrier"); T.wv = []
        T.reserved = {id(PV[0]), id(PV[1])}
        if 'barE' in ABL and not final:
            PV[3].valu = PV[1].valu + PV[3].valu; PV[1].valu = []; T.reserved.add(id(PV[3]))
        kslot1, kslot2, vslot = KS(it + 1), KS(it + 2), VS(it)
        if not final:
            Q[15].sh.append(WaitFor(lg=("KF1",))); Q[31].sh.append(WaitFor(lg=("KF0",))); Q[47].sh.append(WaitFor(lg=("KF1",)))
        Q[-2].sh.append(WaitFor(lg=("VF0", "VF1", "VF2", "VF3")))
        for dt in range(4, 8): PV[8 * dt - 1].sh.append(WaitFor(lg=(f"VF{dt%4}",)))
        T.cur = 0; T.lastdma = -1
        def put(op, lo=None, sal=(), cap=2):
            g = max(T.cur, T.idx(lo) if lo is not None else 0)
            while True:
                assert g < len(G), op
                ok = not G[g].mem and used(G[g]) < cap and id(G[g]) not in T.reserved
                if ok and sal:
                    fr = [h for h in range(max(T.lastdma + (0 if len(sal) == 2 else 1), g - 6, 0), g) if not G[h].sh and id(G[h]) not in T.reserved]
                    ok = len(fr) >= len(sal)
                if ok: break
                g += 1
            if sal:
                for h, s_ in zip(fr[-len(sal):], sal): G[h].sh.append(s_)
                T.lastdma = g
            G[g].mem.append(op); T.cur = g + 1
            return g
        T.put = put
        def solo(g, sal, op, nxt=None):
            gi = T.idx(g)
            assert not g.mem
            if g.valu:
                assert not nxt.mem; nxt.valu = g.valu + nxt.valu; g.valu = []; T.reserved.add(id(nxt))
            fr = [h for h in range(gi - 3, gi) if not G[h].sh]
            assert len(fr) >= len(sal), (gi, sal)
            for h, s_ in zip(fr[-len(sal):], sal): G[h].sh.append(s_)
            g.mem.append(op); T.lastdma = max(T.lastdma, gi)
        T.solo = solo
        T.endsal = []
        if not final:
            if not (last_block and it >= 2):
                sal_, op = kv_dma("V", VS(it + 2), S_VOFF, -16384)[3]; solo(LG[0], sal_, op)
            if not last_block:
                dk = kv_dma("K", KS(it), S_KOFF, 0)
                solo(LG[1], *dk[0]); solo(Q[41], *dk[1], nxt=Q[43]); solo(LG[2], *dk[2]); solo(LG[3], *dk[3])
                T.endsal.append(f"s_add_u32 s{S_KOFF}, s{S_KOFF}, 16384")
            for r in v_reads(vslot, 0) + v_reads(vslot, 1): put(r)
            for r in k_reads(kslot1, 2): put(r, Q[16])
            v23 = v_reads(vslot, 2) + v_reads(vslot, 3)
            for r in v23[:3]: put(r)
            for r in k_reads(kslot1, 3): put(r, Q[32])
            for r in v23[3:]: put(r)
            assert T.cur <= T.idx(Q[55]), (it, T.cur)
        if not (last_block and it >= 1):
            dv = kv_dma("V", VS(it + 3), S_VOFF, 0)
            solo(PV[5], *dv[0], nxt=PV[7]); solo(PV[57], *dv[1], nxt=PV[59]); solo(PV[61], *dv[2], nxt=PV[63])
        T.cur = T.idx(PV[2])
        T.pv_v = [(r, PV[8 * (dt - 4) + 8]) for dt in range(4, 8) for r in v_reads(vslot, dt)]
        if not (last_block and it >= 2):
            for r, lo in T.pv_v: put(r, lo)
            for r in k_reads(kslot2, 0) + k_reads(kslot2, 1): put(r)
            T.wv.append(f"K{kslot2}")
            T.endsal += [WaitFor(lg=("KF0",)), f"s_add_u32 s{S_VOFF}, s{S_VOFF}, 16384"]
        if not last_block and it == 0:
            sl = [f"s_add_u32 s{S_RE}, s{S_RE}, s{S_RNW}", f"s_mul_i32 s{S_RS}, s{S_RE}, 3641", f"s_lshr_b32 s{S_RS}, s{S_RS}, 16",
                  f"s_mul_i32 s{S_RS}, s{S_RS}, {36864-1152}", f"s_lshl_b32 s{S_RD}, s{S_RE}, 6", f"s_add_u32 s{S_RS}, s{S_RS}, s{S_RD}",
                  f"s_lshl_b32 s{S_RD}, s{S_RE}, 11"]
            for n, s_ in enumerate(sl): Q[2 * n].sh.append(s_)
            Q[58].sh.append(f"s_mov_b32 m0, s{S_BQ}")
            Q[59].mem.append((f"buffer_load_dwordx4 v{V_RPG}, s[{S_WG}:{S_WG+3}], s{S_RS} offen lds", "RD"))
            Q[60].sh.append(f"s_add_u32 s{S_RS}, s{S_RS}, {16*1152-1024}")
            PV[3].mem.append((f"buffer_load_dwordx4 v{V_RPG}, s[{S_WG}:{S_WG+3}], s{S_RS} offen offset:1024 lds", "RD"))
        if not last_block and it == 2:
            PV[3].mem.append((f"ds_read_b64_tr_b16 v[{V_RPS}:{V_RPS+1}], v{V_RPL} offset:0", "RL"))
            PV[7].mem.append((f"ds_read_b64_tr_b16 v[{V_RPS+2}:{V_RPS+3}], v{V_RPL} offset:1024", "RL"))
        if not last_block and it == 3:
            Q[55].mem.append((f"ds_read_b64_tr_b16 v[{V_RPS+4}:{V_RPS+5}], v{V_RPL} offset:32", "RL"))
            Q[57].mem.append((f"ds_read_b64_tr_b16 v[{V_RPS+6}:{V_RPS+7}], v{V_RPL} offset:1056", "RL"))
        if not final: T.wv.append(f"V{VS(it+1)}")
        if not last_block:
            if it == 2: T.wv.append("RD")
            if it == 1:
                T.wv.append("RST")
                PV[10].sh.append(f"s_cmp_le_u32 s{S_CNT}, 2"); PV[11].sh.append(f"s_cselect_b32 s{S_SIG}, 2, 1")
                PV[12].sh.append(f"s_add_u32 s{S_SIG}, s{S_SIG}, s{S_XCC}"); PV[13].valu.append(f"v_mov_b32 v{V_SV}, s{S_SIG}")
                PV[16].sh.append(f"s_cmp_lg_u32 s{S_MIX}, 0"); PV[17].sh += ["s_cbranch_scc1 L_stub_w2", Label("L_ret_w2")]
                PV[20].mem.append((sig_store, None))
            if it == 3:
                PV[3].mem.append((f"buffer_store_dwordx4 v[{V_RPS}:{V_RPS+3}], v{V_L16}, s[{S_WU}:{S_WU+3}], s{S_RD} offen sc1", "RST"))
                PV[12].sh.append(WaitFor(lg=("RL",)))
                PV[14].mem.append((f"buffer_store_dwordx4 v[{V_RPS+4}:{V_RPS+7}], v{V_L16}, s[{S_WU}:{S_WU+3}], s{S_RD} offen offset:1024 sc1", "RST"))
        return T
    def finish_tile(T):
        if T.wv: T.PV[0].sh.append(WaitFor(vm=tuple(T.wv)))
        for s_ in T.endsal:
            if isinstance(s_, WaitFor):
                g = [g for g in T.PV[57:] if not g.sh][0]; g.sh.append(s_)
            else:
                c = [g for g in T.G[T.lastdma:] if not g.sh]
                (c[0].sh if c else T.G[-1].post).append(s_)
        ov = sum(max(0, used(g) - 2) + max(0, len([x for x in g.sh if not isinstance(x, Label)]) - 1) for g in T.G)
        print("tile overflow slots:", ov, "gaps", len(T.G))

    body = Prog(); p = body
    p.label("L_att_loop", 6)
    for it in range(4):
        T = att_tile(it)
        if it == 3: T.PV[40].sh.append(f"s_sub_u32 s{S_CNT}, s{S_CNT}, 1")
        finish_tile(T)
        if it == 3: T.G[-1].post += [f"s_cmp_lg_u32 s{S_CNT}, 0", "s_cbranch_scc1 L_att_loop"]
        for g in T.G:
            if 'Lnodma' in ABL: g.mem = [m for m in g.mem if not m[0].startswith("buffer")]
            if 'Lnobar' in ABL: g.sh = [x for x in g.sh if x != "s_barrier"]
            if 'Lnolds' in ABL: g.mem = [m for m in g.mem if not m[0].startswith("ds_")]
            if 'Lnotr' in ABL: g.mem = [m for m in g.mem if not m[0].startswith("ds_read_b64")]
            if 'Lnobr' in ABL: g.sh = [x for x in g.sh if not (isinstance(x, str) and x.startswith("s_cbranch"))]
            if 'Lnovalu' in ABL: g.valu = [x for x in g.valu if x.startswith(("v_exp", "v_add_u32"))]
            if 'Lnoexp' in ABL: g.valu = [x for x in g.valu if not x.startswith("v_exp")]
            if 'Lnowait' in ABL: g.sh = [x for x in g.sh if not (isinstance(x, WaitFor) and x.lg)]
        emit_gaps(p, T.G)

    tail = Prog(); p = tail
    p(f"s_getpc_b64 s[{S_WG}:{S_WG+1}]")
    p.label("L_pc1")
    p(f"s_and_b32 s{S_WG+1}, s{S_WG+1}, 0xffff"); p(f"s_mov_b32 s{S_WG+2}, L_code_end-L_pc1")
    p(f"s_lshr_b32 s{S_T0}, s2, 3"); p(f"s_lshl_b32 s{S_T0}, s{S_T0}, 2"); p(f"s_add_u32 s{S_T0}, s{S_T0}, s{S_WAVE}"); p(f"s_lshl_b32 s{S_T0}, s{S_T0}, 10")
    p(f"buffer_load_dwordx4 v[{V_RPS}:{V_RPS+3}], v{V_L16}, s[{S_WG}:{S_WG+3}], s{S_T0} offen", "CODE")
    p(f"v_lshrrev_b32 v{V_LANE}, 4, v{V_L16}")
    if 'finepro' not in ABL: stamp(p, 6)
    NP3 = 17
    Breg = lambda s, ks, mt: ((s % 3) * 4 + ks) * 8 + mt * 4
    def p3_w(s):
        off = (WPD_OFF + s * 4 * 36864) if s < 9 else (WPO_OFF + (s - 9) * 4 * 36864)
        base = S_PW if s < 9 else S_PW2
        ops = []
        for i in range(9):
            sal = []
            if i % 4 == 0:
                tm = tmp()
                m0 = f"s_add_u32 m0, s{S_W0B}, {i*1024}" if s == 0 else f"s_add_u32 m0, s{S_W9K}, {P3_SLOT[(s-1)%3] + i*1024}"
                sal = [f"s_add_u32 s{tm}, s{base}, {off + i*1024}", m0]
            ops.append((sal, (f"buffer_load_dwordx4 v{V_L16}, s[{S_WS}:{S_WS+3}], s{tm} offen offset:{(i%4)*1024}{LSC} lds", f"PW{s}")))
        return annotate(ops)
    def p3_b(s):
        off = (H_OFF + s * 524288) if s < 9 else (O_OFF + (s - 9) * 524288)
        base = S_PB0 if s < 9 else S_PB1
        ops = []
        for mt in range(2):
            for ks in range(4):
                r = Breg(s, ks, mt)
                ops.append(([f"s_add_u32 s{S_T2}, s{base}, {off + mt*4096}"] if ks == 0 else [],
                            (f"buffer_load_dwordx4 a[{r}:{r+3}], v{V_L16}, s[{S_WS}:{S_WS+3}], s{S_T2} offen offset:{ks*1024}{LSC}", f"PB{s}")))
        return annotate(ops)
    setup3 = [f"s_lshr_b32 s{S_KOFF}, s{S_J}, 3", f"s_and_b32 s{S_RE}, s{S_J}, 3", f"s_mul_i32 s{S_W9K}, s{S_WAVE}, 9216",
              f"s_mul_i32 s{S_PW2}, s{S_WAVE}, 36864", f"s_mul_i32 s{S_RNW}, s{S_RE}, 9216", f"s_add_u32 s{S_PW2}, s{S_PW2}, s{S_RNW}",
              f"s_mul_i32 s{S_PW}, s{S_KOFF}, {1152*1152}", f"s_add_u32 s{S_PW}, s{S_PW}, s{S_PW2}",
              f"s_mul_i32 s{S_RNW}, s{S_KOFF}, {1024*1152}", f"s_add_u32 s{S_PW2}, s{S_PW2}, s{S_RNW}",
              f"s_lshl_b32 s{S_PST}, s{S_RB}, 3", f"s_and_b32 s{S_RNW}, s{S_J}, 7", f"s_add_u32 s{S_PST}, s{S_PST}, s{S_RNW}",
              f"s_lshr_b32 s{S_FX0}, s{S_PST}, 2",
              f"s_lshl_b32 s{S_PB1}, s{S_FX0}, 2", f"s_add_u32 s{S_PB1}, s{S_PB1}, s{S_WAVE}", f"s_lshl_b32 s{S_PB1}, s{S_PB1}, 13",
              f"s_mul_i32 s{S_PB0}, s{S_KOFF}, {9*524288}", f"s_add_u32 s{S_PB0}, s{S_PB0}, s{S_PB1}",
              f"s_lshl_b32 s{S_RNW}, s{S_KOFF}, 22", f"s_add_u32 s{S_PB1}, s{S_PB1}, s{S_RNW}",
              f"s_mul_i32 s{S_PST}, s{S_PST}, {16*9216}",
              f"s_mul_i32 s{S_FL}, s{S_KOFF}, 9216", f"s_add_u32 s{S_FL}, s{S_FL}, s{S_PST}",
              f"s_mul_i32 s{S_CNT}, s{S_KOFF}, {4*9216}", f"s_add_u32 s{S_PST}, s{S_PST}, s{S_CNT}", f"s_add_u32 s{S_PST}, s{S_PST}, s{S_W9K}",
              f"s_lshl_b32 s{S_FX0}, s{S_FX0}, 2", f"s_add_u32 s{S_FX0}, s{S_FX0}, s{S_KOFF}", f"s_mul_i32 s{S_FX0}, s{S_FX0}, {32*1152}",
              f"s_mul_i32 s{S_CNT}, s{S_RE}, 288", f"s_add_u32 s{S_FX0}, s{S_FX0}, s{S_CNT}", f"s_min_u32 s{S_FX1}, s{S_WAVE}, 1", f"s_lshl_b32 s{S_FX1}, s{S_FX1}, 30",
              f"s_add_u32 s{S_CNT}, s{S_KOFF}, 1", f"s_and_b32 s{S_CNT}, s{S_CNT}, 3", f"s_mul_i32 s{S_FR}, s{S_CNT}, {4*9216}", f"s_add_u32 s{S_FR}, s{S_FR}, s{S_FL}",
              f"s_add_u32 s{S_CNT}, s{S_KOFF}, 2", f"s_and_b32 s{S_CNT}, s{S_CNT}, 3", f"s_mul_i32 s{S_FR+1}, s{S_CNT}, {4*9216}", f"s_add_u32 s{S_FR+1}, s{S_FR+1}, s{S_FL}",
              f"s_add_u32 s{S_CNT}, s{S_KOFF}, 3", f"s_and_b32 s{S_CNT}, s{S_CNT}, 3", f"s_mul_i32 s{S_FR+2}, s{S_CNT}, {4*9216}", f"s_add_u32 s{S_FR+2}, s{S_FR+2}, s{S_FL}",
              f"s_add_u32 s{S_CNT}, s{S_WAVE}, 1", f"s_lshr_b32 s{S_CNT}, s{S_CNT}, 2", f"s_mul_i32 s{S_CNT}, s{S_CNT}, {80*1024+27648}",
              f"s_add_u32 s{S_W0B}, s{S_W9K}, {128*1024}", f"s_sub_u32 s{S_W0B}, s{S_W0B}, s{S_CNT}"]
    pg = []
    for s in range(NP3):
        if s in (8, 16): order = [(kp, nt) for nt in range(9) for kp in range(2)]
        else: order = [(kp, nt) for kp in range(2) for nt in range(9)]
        for kp, nt in order: pg.append((s, kp, nt))
    def p3_reads(gi):
        s, kp, nt = pg[gi]; base = P3_AR[gi % 4]
        out = []
        for q in range(2):
            ks = 2 * kp + q
            if s == 0: va, o = (V_PWA[2], 12 * 1024 + (ks * 9 + nt) * 1024) if ks < 3 else (V_PWA[0], 48 * 1024 + nt * 1024)
            else: va, o = V_PWA[(s - 1) % 3], (ks * 9 + nt) * 1024
            out.append((f"ds_read_b128 v[{base+4*q}:{base+4*q+3}], v{va} offset:{o}", f"PA{gi%4}"))
        return out
    pm = []
    for gi, (s, kp, nt) in enumerate(pg):
        for mt in range(2):
            for q in range(2):
                a = (AD if s < 9 else AS)(nt, mt); b = Breg(s, 2 * kp + q, mt); ar = P3_AR[gi % 4] + 4 * q
                C = "0" if (s in (0, 9) and kp == 0 and q == 0) else f"v[{a}:{a+3}]"
                pm.append(f"v_mfma_f32_16x16x32_bf16 v[{a}:{a+3}], v[{ar}:{ar+3}], a[{b}:{b+3}], {C}")
    TL = [att_tile(it, last_block=True, first_mfmas=(pm[:72] if it == 3 else None)) for it in range(4)]
    T28, T29, T30, T31 = TL
    T28.cur = T28.idx(T28.Q[50]); T28.put(poll_load("PL"))
    cv, cs = poll_check(2, "p2")
    T28.PV[40].sh.append(WaitFor(vm=("PL",))); T28.PV[41].sh += cs[:1]; T28.PV[42].post += cv; T28.PV[44].sh += cs[1:]
    free = [g for g in T28.G[:T28.idx(T28.PV[54])] if not g.sh and id(g) not in T28.reserved]
    assert len(free) >= len(setup3), len(free)
    for s_, g in zip(setup3, free): g.sh.append(s_)
    L2T = os.environ.get("L2T", "")
    if L2T:
        V_TH, V_TD = 3, V_SV
        p(f"v_min_u32 v{V_TH}, 15, v{V_LANE}"); p(f"v_lshlrev_b32 v{V_TH}, 7, v{V_TH}")
        for t in [f"s_and_b32 s13, s{S_J}, 7", f"s_lshl_b32 s13, s13, 2", f"s_add_u32 s13, s13, s{S_WAVE}", f"s_lshl_b32 s13, s13, 11",
                  f"s_lshl_b32 s14, s{S_RB}, 16", f"s_add_u32 s13, s13, s14", f"s_lshr_b32 s14, s{S_J}, 3", f"s_mul_i32 s15, s14, {9*524288}", f"s_add_u32 s13, s13, s15",
                  f"s_lshr_b32 s15, s2, 3", f"s_lshl_b32 s15, s15, 2", f"s_add_u32 s15, s15, s{S_WAVE}", f"s_lshl_b32 s15, s15, 11",
                  f"s_mul_i32 s14, s14, {1152*1152}", f"s_add_u32 s14, s14, s15"]: p(t)
        tl = []
        for x in L2T.split(","):
            if x[0] == "h": tl.append((13, H_OFF + int(x[1:]) * 524288))
            else: tl.append((14, WPD_OFF + int(x[1:]) * 262144))
        slots_ = [(T, g) for T in (T28, T29, T30) for g in (T.Q[8], T.Q[40], T.PV[10], T.PV[42])]
        for (T, g0_), (base, off) in zip(slots_, tl):
            T.cur = 0; ld_ = T.lastdma; T.lastdma = T.idx(g0_) - 4
            T.put((f"buffer_load_dword v{V_TD}, v{V_TH}, s[{S_WS}:{S_WS+3}], s77 offen sc1", "TCH"), g0_, sal=[f"s_add_u32 s77, s{base}, {off}"], cap=3)
            T.lastdma = ld_
    for n in range(4): T28.PV[57 + 2 * n].valu.append(f"v_mov_b32 v{V_RPS+4+n}, -1")
    T29.cur = 2; ld_ = T29.lastdma; T29.lastdma = 0
    for nt in range(9):
        T29.put((f"buffer_store_dwordx4 v[{V_RPS+4}:{V_RPS+7}], v{V_L16}, s[{S_WS}:{S_WS+3}], s{S_SIG} offen offset:{(nt%3)*1024} sc1", "DST"), T29.Q[2 + 5 * nt],
                sal=([f"s_add_u32 s{S_SIG}, s{S_PST}, {PART_OFF + PSTRIDE + nt*1024}"] if nt % 3 == 0 else ()), cap=3)
        T29.lastdma = T29.cur - 1
    T29.lastdma = max(ld_, T29.lastdma)
    T29.cur = T29.idx(T29.Q[50]); T29.lastdma = max(T29.lastdma, T29.idx(T29.Q[50]))
    for sal_, op in p3_w(0): T29.put(op, sal=sal_); T29.lastdma = T29.cur - 1
    T30.wv.append("PW0")
    mix = p3_b(0) + p3_w(1)
    T30.Q[49].valu.append(f"v_add_u32 v{V_PWA[1]}, {P3_SLOT[1]}, v{V_L16}"); T30.Q[51].valu.append(f"v_add_u32 v{V_PWA[2]}, {P3_SLOT[2]}, v{V_L16}")
    T30.cur = T30.idx(T30.PV[2])
    for r, lo in T30.pv_v: T30.put(r, lo)
    T30.cur = T30.idx(T30.PV[52])
    for r in p3_reads(0) + p3_reads(1) + p3_reads(2): T30.put(r)
    T30.cur = T30.idx(T30.PV[2]); T30.lastdma = T30.cur
    for n, (sal_, op) in enumerate(mix):
        T30.put(op, T30.PV[2 + 3 * n], sal=sal_, cap=3); T30.lastdma = T30.cur - 1
    T30.G[-1].post.append(WaitFor(lg=("PA0",), vm=("PB0",)))
    T31.wv.append("PW1")
    Q = T31.Q
    for gi in range(1, 18): Q[4 * gi - 1].sh.insert(0, WaitFor(lg=(f"PA{gi%4}",)))
    for gi in range(3, 18):
        for n, r in enumerate(p3_reads(gi)): Q[4 * (gi - 3) + 1 + 2 * n].mem.append(r)
    T31.cur = 0
    vr = [r for dt in range(4) for r in v_reads(VS(3), dt)]
    for n, r in enumerate(vr): T31.put(r, Q[4 * n], cap=3)
    T31.cur = 0; T31.lastdma = 0
    for n, (sal_, op) in enumerate(p3_b(1) + p3_b(2)):
        T31.put(op, Q[4 * n + 2], sal=sal_, cap=3); T31.lastdma = T31.cur - 1
    T31.cur = T31.idx(T31.PV[2])
    for r, lo in T31.pv_v: T31.put(r, lo); T31.cur += 1
    T31.cur = T31.idx(T31.PV[50])
    for r in p3_reads(18) + p3_reads(19) + p3_reads(20): T31.put(r); T31.cur += 1
    T31.cur = T31.idx(T31.PV[2]); T31.lastdma = T31.cur
    for sal_, op in p3_w(2): T31.put(op, sal=sal_); T31.lastdma = T31.cur - 1
    T31.PV[63].sh.append(WaitFor(lg=(f"PA{18%4}",), vm=("PB1",)))
    P = [None] * 72 + [Gap(m) for m in pm[72:]]
    for gi in range(21, len(pg)):
        i = gi % 18
        rd = p3_reads(gi)
        if i == 0: g0_ = 4 * (gi - 2); pos = (g0_, g0_ + 1)
        elif i == 1: g0_ = 4 * (gi - 3); pos = (g0_ + 2, g0_ + 3)
        else: g0_ = 4 * (gi - 3); pos = (g0_, g0_ + 2)
        for g_, r in zip(pos, rd): P[g_].mem.append(r)
    barw = {}
    for gi in range(19, len(pg)):
        s = pg[gi][0]; g = P[4 * gi - 1]
        if gi % 18 == 16 and s + 1 < NP3:
            barw[s] = WaitFor(vm=[f"PW{s+1}", f"PB{s+1}"], lg0=True)
            P[4 * gi - 2].sh.append(barw[s]); g.sh.append("s_barrier")
        else: g.sh.append(WaitFor(lg=(f"PA{gi%4}",)))
    def after_barrier(s): return 72 * s + 64
    OSIG = int(os.environ.get("OSIG", "4")); DSIG = int(os.environ.get("DSIG", "13")); OCAP = int(os.environ.get("OCAP", "3"))
    barw[OSIG].vm = tuple(barw[OSIG].vm) + ("OST",)
    P[after_barrier(OSIG) - 6].valu.append(sig_val(3)); P[after_barrier(OSIG) + 5].mem.append((sig_store, None))
    P[after_barrier(OSIG) + 1].sh.append(f"s_cmp_lg_u32 s{S_MIX}, 0"); P[after_barrier(OSIG) + 2].sh += ["s_cbranch_scc1 L_stub_w3", Label("L_ret_w3")]
    barw[DSIG].vm = tuple(barw[DSIG].vm) + ("DST",)
    P[after_barrier(DSIG) - 6].valu.append(sig_val(4)); P[after_barrier(DSIG) + 5].mem.append((sig_store, None))
    P[72*5+1].sh.append(f"s_lshl_b32 s{S_CNT}, s{S_RB}, 11"); P[72*5+2].sh.append(f"s_lshl_b32 s{S_RE}, s{S_KOFF}, 9"); P[72*5+4].sh.append(f"s_add_u32 s{S_RE}, s{S_RE}, s{S_CNT}")
    P[72*5+5].valu += [f"v_and_b32 v{V_PA}, 7, v{V_LANE}", f"v_lshl_add_u32 v{V_PA}, v{V_PA}, 3, s{S_RE}"]
    P[72*6+69].mem.append(poll_load("PL"))
    P[72*7+28].sh.append(WaitFor(vm=("PL",)))
    cv, cs = poll_check(3, "p3")
    P[72*7+29].valu += cv; P[72*7+29].sh += cs[:1]; P[72*7+30].post += cs[1:]
    PQ = DSIG + 1
    P[72*PQ+49].mem.append(poll_load("PL"))
    P[72*(PQ+1)+12].sh.append(WaitFor(vm=("PL",)))
    cv, cs = poll_check(4, "p4")
    P[72*(PQ+1)+13].valu += cv; P[72*(PQ+1)+13].sh += cs[:1]; P[72*(PQ+1)+13].post += cs[1:]
    HINT = int(os.environ.get("HINT", "1"))
    P[72*16 + HINT - 4].valu.append(sig_val(5)); P[72*16 + HINT].mem.append((sig_store, None))
    FD, GG, FXR, TT = 160, 208, 56, 16
    def fin_loads(kind, dst, tag):
        ops = []
        for m in range(3):
            for sp in range(3):
                tm = tmp()
                ops.append(([f"s_add_u32 s{tm}, s{S_FR+sp}, {PART_OFF + kind*PSTRIDE}"],
                            (f"buffer_load_dwordx4 v[{dst+(m*4+sp)*4}:{dst+(m*4+sp)*4+3}], v{V_FL+m}, s[{S_WS}:{S_WS+3}], s{tm} offen sc1", tag)))
        return annotate(ops)
    own_reads = lambda kind, dst, tag: [(f"ds_read_b128 v[{dst+(m*4+3)*4}:{dst+(m*4+3)*4+3}], v{V_OWR} offset:{kind*9216 + m*4096}", tag) for m in range(3)]
    xq = []
    for m in range(3):
        r = V_XO + m
        xq += [f"v_lshl_add_u32 v{r}, s{S_WAVE}, 6, v{V_LANE}"] + ([f"v_add_u32 v{r}, {256*m}, v{r}"] if m else [])
        xq += [f"v_mul_u32_u24 v71, 3641, v{r}", f"v_lshrrev_b32 v71, 16, v71", f"v_mul_u32_u24 v71, {1152-288}, v71", f"v_lshl_add_u32 v{r}, v{r}, 4, v71"]
        if m == 2: xq += [f"v_add_u32 v{r}, s{S_FX1}, v{r}"]
        xq.append(("MEM", [], (f"buffer_load_dwordx4 v[{FXR+4*m}:{FXR+4*m+3}], v{r}, s[{S_XI}:{S_XI+3}], s{S_FX0} offen", "FX")))
    for s in range(1, NP3):
        ops = []
        if s + 2 < NP3:
            w, b = p3_w(s + 2), p3_b(s + 2)
            if s == 7:
                place_mem(P, w, 72 * s, 72 * s + 28); place_mem(P, b, 72 * s + 30, 72 * s + 63); continue
            ops = w[:4] + b[:4] + w[4:8] + b[4:] + w[8:]
        if s == PQ + 1:
            assert s == 15
            place_mem(P, fin_loads(0, FD, "FD") + [([], r) for r in own_reads(0, FD, "FO")], 72 * s + 14, 72 * s + 63); continue
        if ops: place_mem(P, ops, 72 * s - int(os.environ.get('P3E', '0')), 72 * s + int(os.environ.get('P3W', '63')))
    allg = T31.PV + P[72:]
    OT = 96
    def o_item(n, qt, s):
        T = OT + (n % 4) * 8; D = OT + 32 + (n % 4) * 4
        q = []
        for h in range(2):
            o = A_O + ((2 * s + h) * 4 + qt) * 4
            for r in range(4): q.append(f"v_accvgpr_read_b32 v{T+4*h+r}, a{o+r}")
        for i in range(8): q.append(f"v_mul_f32 v{T+i}, v{T+i}, v{V_LS+4+qt}")
        for i in range(4): q.append(f"v_cvt_pk_bf16_f32 v{D+i}, v{T+2*i}, v{T+2*i+1}")
        q.append(("MEM", [f"s_add_u32 s{S_SIG}, s{S_OBASE}, {O_OFF + qt*4096}"], (f"buffer_store_dwordx4 v[{D}:{D+3}], v{V_L16}, s[{S_WS}:{S_WS+3}], s{S_SIG} offen offset:{s*1024}{SCO}", "OST")))
        return q
    pre = xlane_ops("v_add_f32", [V_LS + 5, V_LS + 7], OT + 48) + [f"v_rcp_f32 v{V_LS+4+qt}, v{V_LS+4+qt}" for qt in range(4)]
    n = 0; lim = 64 + after_barrier(OSIG - 1) - 72 + 30
    pre += xq
    q = list(pre); mins = [2] * len(pre)
    for s in range(4):
        for qt in range(4):
            it_ = o_item(n, qt, s); n += 1
            q += it_; mins += [16 * (s + 1) + 4] * len(it_)
    left = fill_valu(allg[:lim], 2, q, mins=mins, cap=OCAP); assert not left, len(left)
    fs = [f"v_add_u32 v{V_FL}, s{S_W1K}, v{V_L16}", f"v_add_u32 v{V_FL+1}, 4096, v{V_FL}", f"v_add_u32 v{V_FL+2}, s{S_VOFF}, v{V_FL}",
          f"v_and_b32 v{V_YW}, 15, v{V_LANE}", f"v_mul_u32_u24 v{V_YW}, 288, v{V_YW}", f"v_lshrrev_b32 v{V_YW+1}, 4, v{V_LANE}",
          f"v_lshl_add_u32 v{V_YW}, v{V_YW+1}, 3, v{V_YW}", f"v_lshl_add_u32 v{V_YW}, s{S_WAVE}, 5, v{V_YW}",
          f"v_lshrrev_b32 v{V_YW+1}, 16, s{S_FX1}", f"v_add_u32 v{V_YW+1}, v{V_YW+1}, v{V_YW}"]
    sal6 = [f"s_lshl_b32 s{S_FL}, s{S_RB}, 3", f"s_and_b32 s{S_T2+32}, s{S_J}, 7", f"s_add_u32 s{S_FL}, s{S_FL}, s{S_T2+32}", f"s_lshl_b32 s{S_FL}, s{S_FL}, 9",
            f"s_add_u32 s{S_FL}, s{S_FL}, {F5_OFF}",
            f"s_lshl_b32 s{S_W0B}, s{S_WAVE}, 7", f"s_add_u32 s{S_W0B}, s{S_W0B}, s{S_FL}", f"s_lshl_b32 s{S_W0B+1}, s{S_KOFF}, 3", f"s_add_u32 s{S_W0B}, s{S_W0B}, s{S_W0B+1}",
            f"s_lshl_b32 s{S_W0B+1}, s{S_KOFF}, 7", f"s_add_u32 s{S_FL}, s{S_FL}, s{S_W0B+1}",
            f"s_add_u32 s{S_W0B+1}, s{S_KOFF}, 1",
            [f"s_cmp_eq_u32 s{S_WAVE}, s{S_KOFF}", f"s_cselect_b32 s{S_W0B+2}, {1 << 30}, 0", f"s_cselect_b32 s{S_W0B+3}, 0, {18432}"],
            f"s_add_u32 s{S_PST}, s{S_PST}, s{S_W0B+2}", f"s_add_u32 s{S_W0B+3}, s{S_W0B+3}, {OWN_LDS}",
            [f"s_cmp_eq_u32 s{S_WAVE}, 0", f"s_cselect_b32 s{S_VOFF}, 8192, {1 << 30}"]]
    g_ = 72 * 6
    for x in sal6:
        while P[g_].sh: g_ += 1
        P[g_].sh += x if isinstance(x, list) else [x]
        g_ += 1
    assert g_ < 72 * 6 + 60
    fs += [f"v_add_u32 v{V_OWN}, s{S_W0B+3}, v{V_L16}", f"v_add_u32 v{V_OWR}, {OWN_LDS}, v{V_FL}"]
    left = fill_valu(P[:72 * 8], 72 * 6 + 60, fs); assert not left
    fs2 = [f"v_mov_b32 v{V_SA}, s{S_W0B}", f"v_min_u32 v{V_PA}, 2, v{V_LANE}", f"v_add_u32 v{V_PA}, s{S_W0B+1}, v{V_PA}", f"v_and_b32 v{V_PA}, 3, v{V_PA}",
           f"v_lshl_add_u32 v{V_PA}, v{V_PA}, 3, s{S_FL}"]
    left = fill_valu(P[:72 * 9], 72 * 8, fs2); assert not left
    def part_item(A, nt, kind, tag):
        a = A(nt, 0)
        q = [f"v_cvt_pk_bf16_f32 v{a+i}, v{a+2*i}, v{a+2*i+1}" for i in range(4)]
        q.append(("MEM", [f"s_add_u32 s{S_SIG}, s{S_PST}, {PART_OFF + kind*PSTRIDE + nt*1024}"], (f"buffer_store_dwordx4 v[{a}:{a+3}], v{V_L16}, s[{S_WS}:{S_WS+3}], s{S_SIG} offen sc1", tag)))
        q.append(("MEM", [], (f"ds_write_b128 v{V_OWN}, v[{a}:{a+3}] offset:{kind*9216 + nt*1024}", None)))
        return q
    for nt in range(9):
        left = fill_valu(P[:72 * DSIG], 72 * 8 + 12 + ((72 * (DSIG - 8) - 30) * nt) // 8, part_item(AD, nt, 0, "DST")); assert not left
    sleft = []
    for nt in range(9):
        sleft += fill_valu(P, 72 * 16 + 8 * (nt + 1) + 4, part_item(AS, nt, 1, "SST"))
    gq = []
    def unpack_sum(src, dst, pk=False):
        q = []
        for i in range(4):
            q += [f"v_lshlrev_b32 v{dst+2*i}, 16, v{src+i}", f"v_and_b32 v{dst+2*i+1}, s{S_THR}, v{src+i}"]
        for sp in range(1, 4):
            T = TT + 8 * (sp % 2)
            for i in range(4):
                q += [f"v_lshlrev_b32 v{T+2*i}, 16, v{src+4*sp+i}", f"v_and_b32 v{T+2*i+1}, s{S_THR}, v{src+4*sp+i}"]
            if pk:
                for i in range(0, 8, 2): q.append(f"v_pk_add_f32 v[{dst+i}:{dst+i+1}], v[{dst+i}:{dst+i+1}], v[{T+i}:{T+i+1}]")
            else:
                for i in range(8): q.append(f"v_add_f32 v{dst+i}, v{dst+i}, v{T+i}")
        return q
    P[72*13+1].post.append(f"s_mov_b32 s{S_THR}, 0xffff0000")
    for m in range(3):
        D = GG + 8 * m; T = FD + 16 * m
        gq += unpack_sum(FD + 16 * m, D, pk=True)
        gq += [f"v_mul_f32 v{T+i}, {f2u(-LOG2E)}, v{D+i}" for i in range(8)]
        gq += [f"v_exp_f32 v{T+i}, v{T+i}" for i in range(8)]
        gq += [f"v_add_f32 v{T+i}, 1.0, v{T+i}" for i in range(8)]
        gq += [f"v_rcp_f32 v{T+i}, v{T+i}" for i in range(8)]
        gq += [f"v_pk_mul_f32 v[{D+i}:{D+i+1}], v[{D+i}:{D+i+1}], v[{T+i}:{T+i+1}]" for i in range(0, 8, 2)]
    gleft = gq
    print("phase3 leftovers: s-part", len(sleft), "gate", len(gleft))
    for T in TL:
        finish_tile(T); emit_gaps(p, T.G)
    if 'finepro' not in ABL:
        stamp(p, 7); stamp_rt(p, 16)
        for s, k in ((3, 8), (6, 9), (9, 10), (13, 11)): P[72 * s - 1].post += stamp_ops(k)
    if 'finep3' in ABL:
        stamp(p, 0)
        for s in range(1, 17): P[72 * (s + 1) - 1].post = [x for x in P[72 * (s + 1) - 1].post if not (isinstance(x, str) and ("s76" in x or "s[76" in x or x == "s_waitcnt lgkmcnt(0)"))] + stamp_ops(s)
    emit_gaps(p, P[72:])
    if 'finep' not in ABL: stamp(p, 12); stamp_rt(p, 17)
    emit_ops(p, sleft)
    XU = 32
    FS = 96
    def s_loads():
        for sal_, op in fin_loads(1, FS, "FS"):
            for s_ in sal_: p(s_)
            p(op[0], op[1])
    p("s_waitcnt lgkmcnt(0)")
    s_loads()
    p.items.append(WaitFor(vm=("FD",)))
    p("s_barrier")
    for t, tag in own_reads(1, FS, "FO"): p(t, tag)
    emit_ops(p, gleft)
    for i in range(12):
        p(f"v_lshlrev_b32 v{XU+2*i}, 16, v{FXR+i}"); p(f"v_and_b32 v{XU+2*i+1}, s{S_THR}, v{FXR+i}")
    if 'finep' not in ABL: stamp(p, 13)
    p(f"s_mov_b32 s{S_CNT}, 0x40000"); p(f"s_add_u32 s{S_PV}, s{S_EP}, 5")
    p.label("L_dcheck")
    p("s_waitcnt vmcnt(0)")
    q_ = [FS + (m * 4 + sp) * 4 + i for m in range(3) for sp in range(3) for i in range(4)]
    p(f"v_max_u32 v{V_PT}, v{q_[0]}, v{q_[1]}"); p(f"v_max_u32 v{V_PT+1}, v{q_[2]}, v{q_[3]}")
    for i in range(4, 36, 2): p(f"v_max3_u32 v{V_PT+(i//2)%2}, v{V_PT+(i//2)%2}, v{q_[i]}, v{q_[i+1]}")
    p(f"v_max_u32 v{V_PT}, v{V_PT}, v{V_PT+1}")
    p(f"v_cmp_eq_u32 vcc, -1, v{V_PT}")
    p("s_cbranch_vccz L_dready")
    p(f"s_cmp_eq_u32 s{S_CNT}, 0x40000"); p("s_cbranch_scc0 L_dagain")
    p(f"s_call_b64 s[{S_RET}:{S_RET+1}], L_spin0")
    p.label("L_dagain")
    s_loads()
    p(f"s_sub_u32 s{S_CNT}, s{S_CNT}, 1"); p(f"s_cmp_lg_u32 s{S_CNT}, 0"); p("s_cbranch_scc1 L_dcheck")
    p("s_waitcnt vmcnt(0)")
    p.label("L_dready")
    if 'finep' not in ABL: stamp(p, 14)
    p("s_waitcnt lgkmcnt(0)")
    for m in range(3):
        D = FD + 8 * m
        for t in unpack_sum(FS + 16 * m, D, pk=True): p(t)
        for i in range(0, 8, 2): p(f"v_pk_mul_f32 v[{D+i}:{D+i+1}], v[{D+i}:{D+i+1}], v[{GG+8*m+i}:{GG+8*m+i+1}]")
        for i in range(4): p(f"v_cvt_pk_bf16_f32 v{D+i}, v{D+2*i}, v{D+2*i+1}")
        for mt in range(2): p(f"ds_write_b64 v{V_YW + (1 if m == 2 else 0)}, v[{D+2*mt}:{D+2*mt+1}] offset:{m*128 + mt*4608}")
    p("s_waitcnt lgkmcnt(0)"); p("s_barrier")
    for m in range(3): p(f"ds_read_b128 v[{128+4*m}:{131+4*m}], v{V_FL} offset:{m*4096}")
    for m in range(3):
        p(f"s_waitcnt lgkmcnt({2-m})")
        D = 96 + 8 * m; T = XU + 8 * m
        for i in range(4):
            p(f"v_lshlrev_b32 v{D+2*i}, 16, v{128+4*m+i}"); p(f"v_and_b32 v{D+2*i+1}, s{S_THR}, v{128+4*m+i}")
        for i in range(0, 8, 2): p(f"v_pk_add_f32 v[{D+i}:{D+i+1}], v[{D+i}:{D+i+1}], v[{T+i}:{T+i+1}]")
        for i in range(4): p(f"v_cvt_pk_bf16_f32 v{D+i}, v{D+2*i}, v{D+2*i+1}")
        p(f"buffer_store_dwordx4 v[{D}:{D+3}], v{V_XO+m}, s[{S_OUT}:{S_OUT+3}], s{S_FX0} offen")
    if STAMP: p("s_waitcnt vmcnt(0)")
    stamp(p, 19); stamp_rt(p, 21)
    if 'dbgout' in ABL:
        p(f"s_cmp_eq_u32 s2, 250"); p(f"s_cselect_b32 s76, 36, 0x1000"); p("s_cmp_eq_u32 s2, 1"); p("s_cselect_b32 s76, 8, s76")
        p(f"s_cmp_eq_u32 s{S_WAVE}, 0"); p("s_cselect_b32 s76, s76, 0x1000"); p("v_mov_b32 v1, s76")
        p(f"s_lshr_b32 s77, s{S_EP}, 8")
        for n, k in enumerate((100, 95, 96, 97, 101)):
            p(f"s_sub_u32 s76, s{k}, s77"); p("s_and_b32 s76, s76, 0xffffff"); p("v_mov_b32 v2, s76")
            p(f"buffer_store_dword v2, v1, s[{S_DBG}:{S_DBG+3}], 0 offen offset:{4*n}")
        for n, (a_, b_) in enumerate(((81, 80), (99, 80))):
            p(f"s_sub_u32 s76, s{a_}, s{b_}"); p("v_mov_b32 v2, s76")
            p(f"buffer_store_dword v2, v1, s[{S_DBG}:{S_DBG+3}], 0 offen offset:{20+4*n}")
    else:
        stamp_dump(p, 70, S_WAVE, 1)
    p.label("L_done"); p("s_endpgm")

    rare = Prog(); p = rare
    for site, var in rare_sites:
        p.label(f"L_rare_stub{site}")
        p(f"s_call_b64 s[{S_RET}:{S_RET+1}], L_rare{var}")
        p(f"s_branch L_rare_ret{site}")
    for name in stubs:
        p.label(f"L_stub_{name}")
        p(f"s_call_b64 s[{S_RET}:{S_RET+1}], L_spin0")
        p(f"s_branch L_ret_{name}")
    for name in ("w2", "w3"):
        p.label(f"L_stub_{name}")
        p("buffer_wbl2 sc1"); p("s_waitcnt vmcnt(0)")
        p(f"s_branch L_ret_{name}")
    p.label("L_spin0")
    p(f"s_mov_b32 s{S_SPIN}, {'0x40' if 'Lno' in ABL else '0x40000'}")
    p.label("L_spin1")
    p(poll_load(None)[0])
    p(f"s_sub_u32 s76, s{S_EP}, s{S_PV}"); p("s_add_u32 s76, s76, 8")
    p("s_waitcnt vmcnt(0)")
    for t in flag_test(V_PT): p(t)
    p(f"v_cmp_le_u32 vcc, s76, v{V_PT}")
    p("s_cbranch_vccz L_spin2")
    p(f"s_sub_u32 s{S_SPIN}, s{S_SPIN}, 1"); p("s_sleep 1"); p(f"s_cmp_lg_u32 s{S_SPIN}, 0"); p("s_cbranch_scc1 L_spin1")
    p.label("L_spin2")
    p(f"s_setpc_b64 s[{S_RET}:{S_RET+1}]")
    rare_items = fix_hazards(rare.items)[0]
    for var in ("0", "1", "Z"):
        par = 1 if var == "Z" else int(var)
        rp = Prog(); p = rp
        p.label(f"L_rare{var}")
        p("s_nop 15")
        Lold = V_LS + (1 - par) * 4
        for qt in range(4):
            rowmax(p, par, qt, V_R + qt)
            p(f"v_log_f32 v{V_R+4}, v{Lold+qt}")
            if BIAS:
                p(f"v_max_f32 v{V_R+qt}, v{V_R+qt}, v{V_R+4}"); p(f"v_add_f32 v{V_R+qt}, {f2u(BIAS)}, v{V_R+qt}"); p(f"v_max_f32 v{V_R+qt}, 0, v{V_R+qt}")
            else: p(f"v_max3_f32 v{V_R+qt}, v{V_R+qt}, v{V_R+4}, 0")
        for t in xlane_ops("v_max_f32", [V_R + q for q in range(4)], V_R + 4): p(t)
        for qt in range(4):
            p(f"v_sub_f32 v{V_R+4+qt}, 0, v{V_R+qt}"); p(f"v_exp_f32 v{V_R+4+qt}, v{V_R+4+qt}")
        for qt in range(4):
            p(f"v_mul_f32 v{Lold+qt}, v{Lold+qt}, v{V_R+4+qt}")
            if var != "Z":
                for r in range(4): p(f"v_sub_f32 v{V_NM+4*qt+r}, v{V_NM+4*qt+r}, v{V_R+qt}")
            for pp in ((par,) if var == "Z" else (0, 1)):
                for kt in range(4):
                    for r in range(4): p(f"v_sub_f32 v{Sreg(pp,kt,qt)+r}, v{Sreg(pp,kt,qt)+r}, v{V_R+qt}")
            for dt in range(8):
                o = A_O + (dt * 4 + qt) * 4
                for r in range(4): p(f"v_accvgpr_read_b32 v{V_E+r}, a{o+r}")
                for r in range(4): p(f"v_mul_f32 v{V_E+r}, v{V_E+r}, v{V_R+4+qt}")
                for r in range(4): p(f"v_accvgpr_write_b32 a{o+r}, v{V_E+r}")
        for tau in range(64):
            p(op_exp(par, tau))
            if tau % 4 >= 2: p(op_add(par, tau))
            if tau % 2 == 1: p(op_cvt(par, tau))
        for qt in (0, 2):
            p(l_mfma(par, qt, 0)); p(l_mfma(par, qt, 1)); p(op_ladd(par, qt))
        if var != "Z":
            for tau in range(4): p(op_exp(1 - par, tau))
            p(op_cvt(1 - par, 1))
        p("s_nop 3")
        p(f"s_setpc_b64 s[{S_RET}:{S_RET+1}]")
        rare_items += fix_hazards(rp.items)[0]

    resolve_waits(pro.items + body.items + body.items + tail.items)
    pi = lower_waits(pro.items); bi = lower_waits(body.items); ti = lower_waits(tail.items)
    pi, a1 = fix_hazards(pi, verbose=False, name="pro")
    bi2, a2 = fix_hazards(bi, prev=bi, verbose=True, name="body")
    bi3, a3 = fix_hazards(bi2, prev=pi, verbose=True, name="body-entry")
    ti, a4 = fix_hazards(ti, prev=bi3, verbose=True, name="tail")
    wc = WaitChecker(); wc.run(pi + bi3 + bi3 + ti)
    for e in wc.errors[:10]: print("WAITCHECK", e)
    assert check_needs(pi + bi3 + bi3 + ti) == 0
    for it in pi + bi3 + ti:
        if isinstance(it, Ins): it.text = it.text.split(' ; need[')[0]
    return pi + bi3 + ti + rare_items

if __name__ == "__main__":
    import sys
    HEADER = open("cdna_kernels/" + NAME + ".s.ref").read().split("; Override")[0]
    items = gen_mega()
    k = NAME + "_kernel"
    s = HEADER + f"; @launch grid=(256,1,1) block=(256,1,1) lds={LDS_BYTES}\n"
    s += '.amdgcn_target "amdgcn-amd-amdhsa--gfx950"\n' + kernel_text(k, items, 512, 256)
    s += "L_code_end:\n    s_endpgm\n" + '.section .rodata,"a"\n.p2align 6\n' + kd_text(k, 512, 256)
    open(sys.argv[1], "w").write(s)
```

```python
from common import *
import math
LDS_BYTES = 160 * 1024
LOG2E = 1.4426950408889634
QSCALE = LOG2E / math.sqrt(128.0)
GC1 = -2.0 * math.sqrt(2.0 / math.pi) * LOG2E
GC2 = GC1 * 0.044715
CUT = int(os.environ.get("CUT", "30"))
BIAS = float(126 - CUT) if CUT else 0.0
THRESH = 2.0 ** (int(os.environ.get("THR", "64")) - BIAS)
ABL = os.environ.get('ABL', '')
NTW = "" if "nontw" in ABL else " nt"
NTQ = "" if "nontq" in ABL else " nt"
NTT = '' if 'nontt' in ABL else ' nt'
NTX = " nt" if "ntx" in ABL else ""
NTKV = " nt" if 'ntkv' in ABL else ""
WS_BYTES = 128 << 20
WPO_OFF = WP_OFF
WPD_OFF = WP_OFF + 4096 * 1152
FLAG_OFF = 100 << 20
SCH = ' sc1' if 'sch' in ABL else ''
SCO = ' sc1' if 'sco' in ABL else ''
LSC = '' if 'nolsc' in ABL else ' sc1'
P3NT = ' nt' if 'p3nt' in ABL else ''
PSTRIDE = 64 * 4 * 4 * 9216

S_HF = 4
S_WG, S_WU, S_WQ, S_K, S_V, S_WS, S_DBG, S_XI = 8, 12, 16, 20, 24, 28, 32, 36
S_WAVE, S_RB, S_J = 40, 41, 42
S_RE = 43
S_T0, S_T1, S_T2 = 44, 45, 46
S_KOFF, S_VOFF = 47, 48
S_W1K = 49
S_RET = 50
S_CNT = 52
S_W3K = 53
S_BF, S_BH, S_BQ = 54, 55, 56
S_RS, S_RD = 57, 58
S_RNW = 59
S_HHALF = 60
S_THR = 61
S_OBASE = 62
S_XB = 63
S_PTR = 64
S_W6K = 3
S_PV = 79
S_SIG = 78
S_SPIN = 75
S_EP = 74
S_FO = 73
S_MIX = 72
S_XCC = 69
S_EP2 = 68
S_PW, S_PW2, S_PB0, S_PB1 = 54, 55, 56, 57
S_W9K = 53
S_PST = 58
S_FL = 59
S_FX0, S_FX1 = 60, 63
S_OUT = 16

V_SA = 0
V_L16 = 1
V_WF, V_WQ = 2, 3
V_RA = 4
V_RH = 8
V_QP = 10
V_C1, V_C2 = 12, 13
V_KD, V_VD = 14, 15
V_AF = 16
V_T = 52
V_HO = 68
V_KA = 76
V_TA = 76
V_VA = 80
V_RQ = 88
V_ACC = 96
V_X = 224
WSLOT = [128 * 1024, 80 * 1024, 40 * 1024, 104 * 1024]
def wbase(slot):
    b = WSLOT[slot]
    return (0, b - 40 * 1024) if b < 104 * 1024 else (1, b - 104 * 1024)
def xreg(ks, mt):
    f = ks * 4 + mt
    return f"a[{4*f}:{4*f+3}]" if f < 64 else f"v[{V_X+4*(f-64)}:{V_X+4*(f-64)+3}]"

A_Q, A_KF, A_VF, A_O = 0, 64, 96, 128
V_S = 96
V_P0 = 224
V_P1 = 16
V_NM = 32
V_LS = 48
V_E = 56
V_CK = 9
V_ONE = 10
V_R = 64
V_LD = 72
V_RPS = 88
V_RPG, V_RPL = 2, 3
V_PT = 4
V_SV = 6
V_PA = 8
V_LANE = 2
KS = lambda T: (T + 3) % 4
VS = lambda T: (T + 1) % 4
P3_SLOT = [0, 80 * 1024, 116 * 1024]
AD = lambda nt, mt: 160 + (nt * 2 + mt) * 4
AS = lambda nt, mt: (96 + (nt * 2 + mt) * 4) if nt < 8 else (240 + mt * 4)
P3_AR = [32, 40, 88, 232]
V_PWA = [1, 76, 77]
V_XO = 68
V_YW = 78
V_FL = 80
S_FR = 64
V_OWN = 84
V_OWR = 85
OWN_LDS = 40 * 1024
FX_OFF = 16384
F5_OFF = 32768
S_W0B = 12

from k12 import Gap, emit_gaps, slots_of, fill_valu

def emit_ops(p, ops):
    for op in ops:
        if isinstance(op, tuple):
            for t in op[1]: p(t)
            p(op[2][0], op[2][1])
        else: p(op)

def annotate(ops):
    out = []; cur = []
    for sal, (txt, tag) in ops:
        if sal: cur = list(sal)
        out.append((sal, (txt + " ; need[" + "|".join(cur) + "]", tag)))
    return out

def check_needs(items):
    last = {}; bad = 0
    for it in items:
        if not isinstance(it, Ins): continue
        if "; need[" in it.text:
            for t in it.text.split("; need[")[1].rstrip("]").split("|"):
                if not t: continue
                d = Ins(t).wr[0]
                if last.get(d) != t:
                    bad += 1; print("NEEDCHECK:", it.text, "<- last writer", last.get(d))
        if it.kind == "salu":
            for r in it.wr: last[r] = it.text
    return bad

def gen_mega():
    pro = Prog(); p = pro
    stubs = []
    def poll_check(val, name):
        stubs.append(name)
        return (flag_test(V_PT) + [f"v_cmp_le_u32 vcc, {8-val}, v{V_PT}"],
                [f"s_add_u32 s{S_PV}, s{S_EP}, {val}", f"s_cbranch_vccnz L_stub_{name}", Label(f"L_ret_{name}")])
    def flag_test(r):
        return [f"v_and_b32 v{r}, 0xffffff87, v{r}", f"v_xor_b32 v{r+1}, s{S_EP2}, v{r+1}", f"v_subrev_u32 v{r}, s{S_PV}, v{r}",
                f"v_min_u32 v{r+1}, 1, v{r+1}", f"v_lshl_or_b32 v{r}, v{r+1}, 8, v{r}"]
    poll_load = lambda tag: (f"buffer_load_dwordx2 v[{V_PT}:{V_PT+1}], v{V_PA}, s[{S_WS}:{S_WS+3}], s{S_FO} offen sc1", tag)
    sig_store = f"buffer_store_dwordx2 v[{V_SV}:{V_SV+1}], v{V_SA}, s[{S_WS}:{S_WS+3}], s{S_FO} offen sc1"
    sig_val = lambda val: f"v_add_u32_e64 v{V_SV}, s{S_XCC}, {val}"

    p("s_cmp_ge_u32 s2, 256"); p("s_cbranch_scc1 L_done")
    stamp_rt(p, 20); stamp(p, 0)
    LX = 96
    p(f"s_load_dwordx2 s[{S_XI}:{S_XI+1}], s[0:1], {ARG['x']}")
    p(f"s_load_dwordx4 s[68:71], s[0:1], {ARG['dbg']}")
    p(f"s_getpc_b64 s[{S_K}:{S_K+1}]")
    p.label("L_pc0")
    p(f"s_and_b32 s{S_K+1}, s{S_K+1}, 0xffff"); p(f"s_mov_b32 s{S_K+2}, L_code_end-L_pc0"); p(f"s_mov_b32 s{S_K+3}, 0x20000")
    p(f"s_lshr_b32 s{S_T1}, s2, 3"); p(f"s_lshl_b32 s{S_T0}, s{S_T1}, 12"); p("v_lshlrev_b32 v16, 4, v0")
    p(f"buffer_load_dwordx4 v[160:163], v16, s[{S_K}:{S_K+3}], s{S_T0} offen", "CODE")
    p(f"s_and_b32 s{S_CNT}, s2, 7"); p(f"s_lshl_b32 s{S_CNT}, s{S_CNT}, 5"); p(f"s_or_b32 s{S_CNT}, s{S_CNT}, s{S_T1}")
    p("v_lshrrev_b32 v18, 5, v0"); p("v_and_b32 v19, 31, v0"); p(f"s_mul_i32 s{S_T0}, s{S_CNT}, 9216")
    p("v_mul_u32_u24 v20, 1152, v18"); p("v_lshl_add_u32 v20, v19, 4, v20")
    p(f"s_mov_b32 s{S_XI+2}, {XN_BYTES}"); p(f"s_mov_b32 s{S_XI+3}, 0x20000")
    p("s_waitcnt lgkmcnt(0)")
    for m in range(3):
        p(f"buffer_load_dwordx4 v[{LX+4*m}:{LX+4*m+3}], v20, s[{S_XI}:{S_XI+3}], s{S_T0} offen offset:{m*384}{NTX}", "LX")
    p(f"s_load_dwordx2 s[{S_WQ}:{S_WQ+1}], s[0:1], {ARG['wq']}")
    p(f"s_load_dwordx4 s[72:75], s[0:1], {ARG['wg']}")
    p(f"s_load_dwordx4 s[64:67], s[0:1], {ARG['k']}")
    p("s_memrealtime s[76:77]")
    p("v_lshrrev_b32 v16, 6, v0"); p("v_and_b32 v17, 63, v0"); p("v_cmp_gt_u32 vcc, 24, v19")
    p(f"v_readfirstlane_b32 s{S_WAVE}, v16")
    srd(p, S_DBG, 68, 256); srd(p, S_WS, 70, WS_BYTES)
    p(f"s_mov_b64 s[{S_RET}:{S_RET+1}], vcc")
    p(f"s_and_b32 s{S_T0}, s2, 7")
    p(f"s_and_b32 s{S_RB}, s{S_T1}, 3"); p(f"s_lshr_b32 s{S_T1}, s{S_T1}, 2")
    p(f"s_and_b32 s{S_T2}, s{S_T0}, 1"); p(f"s_lshl_b32 s{S_T2}, s{S_T2}, 2"); p(f"s_add_u32 s{S_RB}, s{S_RB}, s{S_T2}")
    p(f"s_lshr_b32 s{S_T0}, s{S_T0}, 1"); p(f"s_lshl_b32 s{S_J}, s{S_T0}, 3"); p(f"s_add_u32 s{S_J}, s{S_J}, s{S_T1}")
    p(f"s_mov_b32 s{S_WQ+2}, {576*8192}"); p(f"s_mov_b32 s{S_WQ+3}, 0x20000")
    p(f"v_lshlrev_b32 v{V_L16}, 4, v17"); p("v_mov_b32 v71, 0")
    p("s_waitcnt lgkmcnt(0)")
    p(f"s_lshl_b32 s{S_T1}, s2, 2"); p(f"s_add_u32 s{S_T1}, s{S_T1}, s{S_WAVE}"); p(f"s_cmp_lg_u32 s{S_T1}, 1"); p("s_cbranch_scc1 L_noleader")
    p("s_lshl_b64 s[76:77], s[76:77], 8"); p("s_or_b32 s76, s76, 128"); p("v_mov_b32 v30, s76"); p("v_mov_b32 v31, s77")
    p.raw(f"    buffer_store_dwordx2 v[30:31], v71, s[{S_DBG}:{S_DBG+3}], 0 offen sc1")
    p.label("L_noleader")
    p("v_lshrrev_b32 v20, 4, v17"); p("v_and_b32 v22, 15, v17")
    p("v_lshlrev_b32 v23, 2, v20"); p("v_xor_b32 v23, v23, v22"); p("v_lshlrev_b32 v24, 13, v20"); p(f"v_lshl_add_u32 v{V_WQ}, v23, 4, v24")
    p(f"s_mul_i32 s{S_W6K}, s{S_WAVE}, 6144")
    p(f"s_mul_i32 s{S_BQ}, s{S_WAVE}, {24*8192}"); p(f"s_lshl_b32 s{S_T0}, s{S_J}, 8"); p(f"s_add_u32 s{S_BQ}, s{S_BQ}, s{S_T0}")

    stages = [("q", 0, sub, 0) for sub in range(6)] + [("h", 0, sub, 0) for sub in range(3)]
    for t in range(4): stages += [("f", t, sub, (t + 1) % 2) for sub in range(3)]
    NST = len(stages)
    tmpsel = [0]
    def tmp():
        tmpsel[0] ^= 1
        return (S_T0, S_T1)[tmpsel[0]]
    def w_dma(st):
        kind, t, sub, buf = stages[st]; slot = st % 4
        ops = []
        if kind == "q":
            for i in range(6):
                tm = tmp()
                sal = [f"s_add_u32 s{tm}, s{S_BQ}, {(sub * 96 + 4 * i) * 8192}", f"s_add_u32 m0, s{S_W6K}, {WSLOT[slot] + i*1024}"]
                ops.append((sal, (f"buffer_load_dwordx4 v{V_WQ}, s[{S_WQ}:{S_WQ+3}], s{tm} offen{NTQ} lds", f"W{st}")))
            return annotate(ops)
        for reg in range(2):
            for i in range(3):
                base, srdn = (S_BH if kind == "h" else S_BF), (S_WG, S_WU)[reg]
                imm = (sub * 192 + 16 * i) * 9216 + t * 64
                tm = tmp()
                sal = [f"s_add_u32 s{tm}, s{base}, {imm}", f"s_add_u32 m0, s{S_W3K}, {WSLOT[slot] + reg*12288 + i*1024}"]
                ops.append((sal, (f"buffer_load_dwordx4 v{V_WF}, s[{srdn}:{srdn+3}], s{tm} offen{NTW} lds", f"W{st}")))
        return annotate(ops)
    def x_loads(k0, k1):
        ops = []
        for ks in range(k0, k1):
            for mt in range(4):
                ops.append(([f"s_add_u32 s{S_RD}, s{S_XB}, {ks*4096}"] if mt == 0 else [],
                            (f"buffer_load_dwordx4 {xreg(ks, mt)}, v{V_L16}, s[{S_WS}:{S_WS+3}], s{S_RD} offen offset:{mt*1024} sc1", f"X{ks//3}")))
        return annotate(ops)
    def kv_dma(which, tile_slot, soff, add):
        ops = []
        for t in range(4):
            tm = tmp()
            base = (0 if which == "K" else 65536) + tile_slot * 16384 + t * 4096
            srdn = S_K if which == "K" else S_V
            if soff is None: sal = [f"s_mov_b32 s{tm}, {add + t*4096}"]
            else: sal = [f"s_add_u32 s{tm}, s{soff}, {add + t*4096}"]
            sal.append(f"s_add_u32 m0, s{S_W1K}, {base}")
            ops.append((sal, (f"buffer_load_dwordx4 v{V_KD if which == 'K' else V_VD}, s[{srdn}:{srdn+3}], s{tm} offen{NTKV} lds", f"{which}{tile_slot}")))
        return annotate(ops)
    def issue(ops):
        for sal, op in ops:
            for s in reversed(sal): p(s)
            p(op[0], op[1])
    PV_ = os.environ.get('PROV', 'D')
    srd(p, S_WG, 72, 576 * 9216); srd(p, S_WU, 74, 576 * 9216)
    def w3(st):
        for i in range(8):
            tm = tmp()
            p(f"s_add_u32 m0, s{S_RNW}, {WSLOT[st % 4] + i*1024}"); p(f"s_add_u32 s{tm}, s{S_RE}, {(st * 96 + 4 * i) * 8192}")
            p(f"buffer_load_dwordx4 v{V_WQ}, s[{S_WQ}:{S_WQ+3}], s{tm} offen{NTQ} lds", f"W{st}")
    if 'latebad' in ABL:
        srd(p, S_V, 72, 0); p("v_mov_b32 v36, 0"); p(f"s_mov_b32 s{S_RS}, 0")
    p(f"s_cmp_eq_u32 s{S_WAVE}, 0"); p("s_cbranch_scc1 L_w0a")
    p(f"s_sub_u32 s{S_T2}, s{S_WAVE}, 1"); p(f"s_lshl_b32 s{S_RNW}, s{S_T2}, 13"); p(f"s_lshl_b32 s{S_RE}, s{S_T2}, 18"); p(f"s_add_u32 s{S_RE}, s{S_RE}, s{S_T0}")
    w3(0)
    p(f"s_lshr_b32 s{S_T0}, s2, 3"); p(f"s_mul_i32 s{S_T0}, s{S_T0}, 3"); p(f"s_add_u32 s{S_T0}, s{S_T0}, s{S_T2}")
    p(f"s_and_b32 s{S_T1}, s{S_T0}, 1"); p(f"s_cmp_eq_u32 s{S_T1}, 0")
    p(f"s_cselect_b32 s{S_V}, s{S_WG}, s{S_WU}"); p(f"s_cselect_b32 s{S_V+1}, s{S_WG+1}, s{S_WU+1}"); p(f"s_mov_b32 s{S_V+2}, {576*9216}"); p(f"s_mov_b32 s{S_V+3}, 0x20000")
    p(f"s_lshr_b32 s{S_T0}, s{S_T0}, 1"); p(f"s_mul_i32 s{S_RS}, s{S_T0}, {12*9216}")
    p(f"s_lshr_b32 s{S_T2}, s{S_J}, 3"); p(f"s_mul_i32 s{S_T2}, s{S_T2}, 2304"); p(f"s_add_u32 s{S_RS}, s{S_RS}, s{S_T2}")
    p(f"s_sub_u32 s{S_T1}, 384, s{S_V}"); p(f"s_sub_u32 s{S_T1}, s{S_T1}, s{S_T2}"); p(f"s_and_b32 s{S_T1}, s{S_T1}, 1023"); p(f"s_add_u32 s{S_RS}, s{S_RS}, s{S_T1}")
    p("v_min_u32 v36, 35, v17"); p("v_mul_u32_u24 v27, 43, v36"); p("v_lshrrev_b32 v27, 7, v27")
    p(f"v_mul_u32_u24 v27, {9216 - 3072}, v27"); p("v_lshl_add_u32 v36, v36, 10, v27")
    if 'latebad' not in ABL: p(f"buffer_load_dword v164, v36, s[{S_V}:{S_V+3}], s{S_RS} offen", "TCH")
    p.label("L_w0a")
    p("v_lshrrev_b32 v26, 3, v17"); p("v_and_b32 v27, 3, v26"); p("v_lshrrev_b32 v26, 2, v26"); p("v_and_b32 v28, 7, v17")
    p("v_lshl_add_u32 v27, v27, 4, v28"); p("v_lshlrev_b32 v27, 4, v27"); p("v_lshl_add_u32 v26, v26, 12, v27")
    p(f"s_lshr_b32 s{S_T0}, s{S_CNT}, 3"); p(f"s_mul_i32 s{S_RD}, s{S_T0}, 73728")
    p(f"s_and_b32 s{S_T1}, s{S_CNT}, 6"); p(f"s_lshl_b32 s{S_T1}, s{S_T1}, 9"); p(f"s_add_u32 s{S_RD}, s{S_RD}, s{S_T1}")
    p(f"s_and_b32 s{S_T1}, s{S_CNT}, 1"); p(f"s_lshl_b32 s{S_T1}, s{S_T1}, 7"); p(f"s_add_u32 s{S_RD}, s{S_RD}, s{S_T1}")
    p(f"s_mov_b32 s{S_FO}, {FLAG_OFF}")
    p(f"s_getreg_b32 s{S_XCC}, hwreg(HW_REG_XCC_ID, 0, 4)"); p(f"s_lshl_b32 s{S_XCC}, s{S_XCC}, 3")
    p(f"s_lshl_b32 s{S_T0}, s{S_T0}, 9"); p(f"s_and_b32 s{S_T1}, s{S_CNT}, 7"); p(f"s_lshl_b32 s{S_T1}, s{S_T1}, 3"); p(f"s_add_u32 s{S_T0}, s{S_T0}, s{S_T1}"); p(f"s_add_u32 s{S_T0}, s{S_T0}, {FX_OFF}")
    p(f"v_mov_b32 v31, s{S_T0}")
    p(f"s_lshl_b32 s{S_T0}, s{S_RB}, 11"); p(f"s_and_b32 s{S_T1}, s{S_J}, 24"); p(f"s_lshl_b32 s{S_T1}, s{S_T1}, 6"); p(f"s_add_u32 s{S_T1}, s{S_T1}, s{S_T0}")
    p(f"v_lshl_add_u32 v{V_TA}, v28, 3, s{S_T1}")
    p(f"s_and_b32 s{S_T2}, s{S_J}, 7"); p(f"s_lshl_b32 s{S_T2}, s{S_T2}, 3"); p(f"s_add_u32 s{S_T1}, s{S_T1}, s{S_T2}")
    p(f"v_writelane_b32 v31, s{S_T1}, 1")
    p(f"s_cmp_eq_u32 s{S_WAVE}, 0"); p(f"s_cselect_b32 s{S_T1}, s{S_T1}, {1 << 30}"); p(f"v_mov_b32 v{V_SA}, s{S_T1}")
    p(f"s_add_u32 s{S_T0}, s{S_T0}, {FX_OFF}"); p(f"v_lshl_add_u32 v30, v28, 3, s{S_T0}"); p("v_and_b32 v27, 24, v17"); p("v_lshl_add_u32 v30, v27, 6, v30")
    p(f"s_lshl_b32 s{S_T0}, s{S_RB}, 2"); p(f"s_add_u32 s{S_T0}, s{S_T0}, s{S_WAVE}")
    p(f"s_mul_i32 s{S_XB}, s{S_T0}, 73728"); p(f"s_lshl_b32 s{S_OBASE}, s{S_T0}, 14")
    if 'finepro' in ABL: stamp(p, 2)
    F = 112
    pr = lambda r: f"v[{r}:{r+1}]"
    p(f"s_mov_b32 s{S_T2}, 0xffff0000")
    for i in range(4): p(f"v_mov_b32 v{140+i}, 0")
    p("v_lshlrev_b32 v25, 7, v19"); p("v_lshl_add_u32 v25, v18, 4, v25")
    p(f"s_cmp_eq_u32 s{S_WAVE}, 0"); p("s_cbranch_scc0 L_w0b")
    p.raw("    s_waitcnt vmcnt(0)")
    p.label("L_w0b")
    p("s_waitcnt vmcnt(9)" if 'latebad' not in ABL else "s_waitcnt vmcnt(8)")
    p(f"buffer_load_dwordx2 v[72:73], v71, s[{S_DBG}:{S_DBG+3}], 0 offen sc1", "EP")
    if 'finepro' in ABL: stamp(p, 3)
    for i in range(12):
        p(f"v_lshlrev_b32 v{F+2*i}, 16, v{LX+i}"); p(f"v_and_b32 v{F+2*i+1}, s{S_T2}, v{LX+i}")
    for i in range(6): p(f"v_pk_add_f32 {pr(144+2*i)}, {pr(F+4*i)}, {pr(F+4*i+2)}")
    for i in range(3): p(f"v_pk_add_f32 {pr(144+4*i)}, {pr(144+4*i)}, {pr(146+4*i)}")
    p(f"v_pk_add_f32 {pr(144)}, {pr(144)}, {pr(148)}")
    p(f"s_mov_b64 exec, s[{S_RET}:{S_RET+1}]")
    p(f"v_pk_add_f32 {pr(140)}, {pr(144)}, {pr(152)}")
    p("s_mov_b64 exec, -1")
    def reduce32(r, t):
        p(f"v_add_f32 v{r}, v{r}, v{r+1}")
        for mod in ("quad_perm:[1,0,3,2]", "quad_perm:[2,3,0,1]", "row_half_mirror", "row_mirror"):
            p(f"v_add_f32_dpp v{r}, v{r}, v{r} {mod} row_mask:0xf bank_mask:0xf")
        p(f"v_mov_b32 v{t}, v{r}"); p(f"v_permlane16_swap_b32 v{r}, v{t}"); p(f"v_add_f32 v{r}, v{r}, v{t}")
    reduce32(140, 141)
    p(f"v_mul_f32 v140, {f2u(-1.0/576)}, v140")
    for i in range(12): p(f"v_pk_add_f32 {pr(168+2*i)}, {pr(F+2*i)}, {pr(140)} op_sel_hi:[1,0]")
    p(f"v_cvt_pk_bf16_f32 v140, v140, v140")
    for i in range(2): p(f"v_pk_mul_f32 {pr(144+2*i)}, {pr(168+2*i)}, {pr(168+2*i)}")
    p(f"v_and_b32 v140, s{S_T2}, v140")
    for i in range(2, 12): p(f"v_pk_fma_f32 {pr(144+2*(i%2))}, {pr(168+2*i)}, {pr(168+2*i)}, {pr(144+2*(i%2))}")
    p(f"s_mov_b64 exec, s[{S_RET}:{S_RET+1}]")
    p(f"v_pk_add_f32 {pr(142)}, {pr(144)}, {pr(146)}")
    p("s_mov_b64 exec, -1")
    red = Prog(); p_ = p; p = red
    reduce32(142, 143)
    p(f"v_mul_f32 v142, {f2u(1.0/576)}, v142")
    def rnd(r):
        p(f"v_cvt_pk_bf16_f32 v{r}, v{r}, v{r}"); p(f"v_and_b32 v{r}, s{S_T2}, v{r}")
    rnd(142)
    p(f"v_add_f32 v142, {f2u(1e-5)}, v142"); rnd(142)
    p("v_sqrt_f32 v142, v142"); rnd(142)
    p("v_rcp_f32 v143, v142"); p("v_fma_f32 v144, -v142, v143, 1.0"); p("v_fma_f32 v142, v144, v143, v143")
    p = p_
    oth = [f"v_pk_add_f32 {pr(F+2*i)}, {pr(F+2*i)}, {pr(140)} op_sel_hi:[1,0]" for i in range(12)]
    oth += [f"v_cvt_pk_bf16_f32 v{F+2*i+1}, v{F+2*i}, v{F+2*i+1}" for i in range(12)]
    for i in range(12): oth += [f"v_lshlrev_b32 v{F+2*i}, 16, v{F+2*i+1}", f"v_and_b32 v{F+2*i+1}, s{S_T2}, v{F+2*i+1}"]
    for it in red.items:
        p.items.append(it)
        for t in oth[:2]: p(t)
        oth = oth[2:]
    for t in oth: p(t)
    for i in range(12): p(f"v_pk_mul_f32 {pr(F+2*i)}, {pr(F+2*i)}, {pr(142)} op_sel_hi:[1,0]")
    for i in range(12): p(f"v_cvt_pk_bf16_f32 v{LX+i}, v{F+2*i}, v{F+2*i+1}")
    p(f"s_mov_b64 exec, s[{S_RET}:{S_RET+1}]")
    for m in range(3): p(f"ds_write_b128 v25, v[{LX+4*m}:{LX+4*m+3}] offset:{m*24*128}")
    p("s_mov_b64 exec, -1")
    p("s_waitcnt lgkmcnt(0)"); p("s_barrier")
    p(f"s_cmp_lg_u32 s{S_WAVE}, 0"); p("s_cbranch_scc1 L_noxs")
    for m in range(9): p(f"ds_read_b128 v[{LX+4*m}:{LX+4*m+3}], v{V_L16} offset:{m*1024}")
    for m in range(9):
        p(f"s_waitcnt lgkmcnt({8-m})")
        p(f"buffer_store_dwordx4 v[{LX+4*m}:{LX+4*m+3}], v26, s[{S_WS}:{S_WS+3}], s{S_RD} offen sc1", "XS")
        if m < 8: p(f"s_add_u32 s{S_RD}, s{S_RD}, 8192")
    def ep_wait(sfx):
        p(f"s_mov_b32 s{S_SPIN}, 0x40000")
        p.label(f"L_eppoll{sfx}")
        p(f"v_readfirstlane_b32 s{S_EP}, v72"); p(f"v_readfirstlane_b32 s{S_EP2}, v73")
        p(f"s_cmp_lg_u32 s{S_EP}, 0"); p(f"s_cbranch_scc1 L_epok{sfx}")
        p.raw(f"    buffer_load_dwordx2 v[72:73], v71, s[{S_DBG}:{S_DBG+3}], 0 offen sc1")
        p.raw("    s_waitcnt vmcnt(0)")
        p(f"s_sub_u32 s{S_SPIN}, s{S_SPIN}, 1"); p(f"s_cmp_lg_u32 s{S_SPIN}, 0"); p(f"s_cbranch_scc1 L_eppoll{sfx}")
        p.label(f"L_epok{sfx}")
    if 'finepro' in ABL: stamp(p, 4)
    p("s_waitcnt vmcnt(0)")
    ep_wait("a")
    p(f"s_add_u32 s{S_T0}, s{S_XCC}, s{S_EP}"); p(f"s_add_u32 s{S_PV}, s{S_EP}, 1")
    p(f"v_add_u32_e64 v32, s{S_T0}, 1"); p("v_mov_b32 v33, v73")
    p(f"buffer_store_dwordx2 v[32:33], v31, s[{S_WS}:{S_WS+3}], s{S_FO} offen sc1")
    if 'wdelay' in ABL: p("s_barrier")
    if 'finepro' in ABL: stamp(p, 5)
    p(f"s_mov_b32 s{S_SPIN}, 0x40000")
    p.label("L_xpoll")
    p(f"buffer_load_dwordx2 v[34:35], v30, s[{S_WS}:{S_WS+3}], s{S_FO} offen sc1")
    p("s_waitcnt vmcnt(0)")
    for t in flag_test(34): p(t)
    p("v_cmp_le_u32 vcc, 7, v34")
    p("s_cbranch_vccz L_xready")
    p(f"s_sub_u32 s{S_SPIN}, s{S_SPIN}, 1"); p(f"s_cmp_lg_u32 s{S_SPIN}, 0"); p("s_cbranch_scc1 L_xpoll")
    p("s_branch L_xready")
    p.label("L_noxs")
    if 'finepro' in ABL: stamp(p, 4)
    if 'wdelay' in ABL: p("s_barrier")
    w3(1)
    if PV_ == 'D': w3(2)
    if 'finepro' in ABL: stamp(p, 5)
    p.label("L_xready")
    p("s_barrier")
    if 'finepro' in ABL: stamp(p, 6)
    issue(x_loads(0, 3))
    p("v_lshrrev_b32 v18, 2, v17"); p("v_and_b32 v19, 3, v17"); p("v_and_b32 v21, 3, v18")
    p(f"s_lshl_b32 s{S_W1K}, s{S_WAVE}, 10")
    p("v_lshl_add_u32 v23, v20, 3, v21"); p("v_lshlrev_b32 v24, 8, v23"); p("v_lshl_add_u32 v24, v19, 4, v24"); p(f"v_add_u32 v24, {40*1024}, v24")
    for sg_ in range(4):
        p(f"v_xor_b32 v25, {sg_}, v21"); p(f"v_lshl_add_u32 v{V_RQ+sg_}, v25, 6, v24"); p(f"v_add_u32 v{V_RQ+4+sg_}, {64*1024}, v{V_RQ+sg_}")
    p("v_lshlrev_b32 v23, 6, v23")
    p("v_and_b32 v24, 1, v20"); p("v_lshlrev_b32 v24, 5, v24")
    p("v_lshl_add_u32 v25, v19, 3, v23")
    p(f"v_add_u32 v{V_RA}, v25, v24"); p(f"v_add_u32 v{V_RA}, {40*1024}, v{V_RA}")
    p(f"v_xor_b32 v{V_RA+1}, 32, v{V_RA}")
    p(f"v_add_u32 v{V_RA+2}, {64*1024}, v{V_RA}"); p(f"v_add_u32 v{V_RA+3}, {64*1024}, v{V_RA+1}")
    p(f"s_and_b32 s{S_T2}, s{S_J}, 1"); p(f"s_lshl_b32 s{S_T0}, s{S_T2}, 5")
    p(f"v_xor_b32 v{V_RH}, s{S_T0}, v{V_RA}"); p(f"v_add_u32 v{V_RH+1}, {64*1024}, v{V_RH}")
    p("v_lshrrev_b32 v23, 5, v17"); p("v_lshlrev_b32 v23, 1, v23"); p("v_xor_b32 v23, v23, v19")
    p(f"v_mul_u32_u24 v24, 9216, v18"); p(f"v_lshl_add_u32 v{V_WF}, v23, 4, v24")
    p(f"v_mov_b32 v{V_C1}, {f2u(GC1)}"); p(f"v_mov_b32 v{V_C2}, {f2u(GC2)}")
    p(f"s_mul_i32 s{S_W3K}, s{S_WAVE}, 3072")
    p(f"s_mul_i32 s{S_BH}, s{S_WAVE}, {48*9216}")
    p(f"s_mul_i32 s{S_RS}, s{S_J}, 288"); p(f"s_add_u32 s{S_RS}, s{S_RS}, s{S_T0}")
    p(f"s_add_u32 s{S_BF}, s{S_BH}, s{S_RS}")
    p(f"s_lshr_b32 s{S_T0}, s{S_J}, 1"); p(f"s_lshl_b32 s{S_T0}, s{S_T0}, 19")
    for d, b in ((S_K, 64), (S_V, 66)):
        p(f"s_add_u32 s{d}, s{b}, s{S_T0}"); p(f"s_addc_u32 s{d+1}, s{b+1}, 0"); p(f"s_mov_b32 s{d+2}, 524288"); p(f"s_mov_b32 s{d+3}, 0x20000")
    p(f"s_lshr_b32 s{S_T0}, s{S_J}, 1"); p(f"s_mul_i32 s{S_KOFF}, s{S_T0}, 576"); p(f"s_add_u32 s{S_KOFF}, s{S_KOFF}, 256")
    p(f"s_add_u32 s{S_BH}, s{S_BH}, s{S_KOFF}")
    def hoff(dst, colreg, add):
        p(f"s_lshr_b32 s{S_T0}, s{colreg}, 6"); p(f"s_add_u32 s{S_T0}, s{S_T0}, {add}")
        p(f"s_lshr_b32 s{S_T1}, s{S_T0}, 2"); p(f"s_lshl_b32 s{S_T1}, s{S_T1}, 19")
        p(f"s_and_b32 s{S_T0}, s{S_T0}, 3"); p(f"s_lshl_b32 s{S_T0}, s{S_T0}, 10")
        p(f"s_add_u32 s{dst}, s{S_T0}, s{S_T1}"); p(f"s_add_u32 s{dst}, s{dst}, s{S_OBASE}")
    hoff(S_HHALF, S_KOFF, 0); p(f"s_lshl_b32 s{S_T0}, s{S_T2}, 3"); p(f"s_add_u32 s{S_HHALF}, s{S_HHALF}, s{S_T0}")
    for t in range(4): hoff(S_HF + t, S_RS, t)
    p(f"s_lshl_b32 s{S_T0}, s{S_J}, 19"); p(f"s_add_u32 s{S_OBASE}, s{S_OBASE}, s{S_T0}")
    p(f"s_mov_b32 s{S_THR}, {f2u(THRESH)}")
    p(f"s_lshl_b32 s{S_T0}, s{S_WAVE}, 2"); p(f"v_add_u32 v23, s{S_T0}, v20")
    p(f"v_xor_b32 v24, v22, v23"); p(f"v_lshlrev_b32 v24, 4, v24"); p(f"v_lshl_add_u32 v{V_KD}, v23, 8, v24")
    p(f"v_and_b32 v24, 7, v23"); p(f"v_lshlrev_b32 v24, 1, v24"); p(f"v_xor_b32 v24, v22, v24"); p(f"v_lshlrev_b32 v24, 4, v24"); p(f"v_lshl_add_u32 v{V_VD}, v23, 8, v24")
    for ks in range(2, 4):
        p(f"v_add_u32 v23, {4*ks}, v20"); p("v_xor_b32 v23, v23, v22"); p("v_lshlrev_b32 v23, 4, v23"); p(f"v_lshl_add_u32 v{V_KA+ks}, v22, 8, v23")
    p("v_and_b32 v24, 7, v18"); p("v_lshlrev_b32 v25, 8, v18"); p("v_lshl_add_u32 v25, v19, 3, v25"); p("v_add_u32 v25, 0x10000, v25")
    for dt in range(8):
        p(f"v_xor_b32 v23, {dt}, v24"); p(f"v_lshl_add_u32 v{V_VA+dt}, v23, 5, v25")
    p(f"s_lshl_b32 s{S_T0}, s{S_WAVE}, 14"); p(f"s_cmp_eq_u32 s{S_WAVE}, 2"); p(f"s_cselect_b32 s{S_T0}, 0x10000, s{S_T0}")
    p(f"s_add_u32 s{S_T1}, s{S_T0}, 8192"); p(f"s_cmp_eq_u32 s{S_WAVE}, 3"); p(f"s_cselect_b32 s{S_T0}, 0x8000, s{S_T0}"); p(f"s_cselect_b32 s{S_T1}, {152*1024}, s{S_T1}")
    p(f"v_add_u32 v{V_QP}, s{S_T0}, v{V_L16}"); p(f"v_add_u32 v{V_QP+1}, s{S_T1}, v{V_L16}")

    groups = []
    for st in range(NST):
        kind, t, sub, buf = stages[st]
        if kind == "q":
            for nt in range(8): groups.append((st, nt, 0))
        else:
            nts = [0, 2] if kind == "h" else [0, 1, 2, 3]
            for c0 in (0, 3):
                for nt in nts: groups.append((st, nt, c0))
    def a_reads(gi):
        st, nt, c0 = groups[gi]; kind, t, sub, buf = stages[st]
        hb, off = wbase(st % 4)
        out = []
        for c in range(3):
            for tt in range(2):
                d = V_AF + (gi % 3) * 12 + c * 4 + 2 * tt
                if kind == "q":
                    addr = V_RQ + 4 * hb + (nt >> 1); o = off + c * 8192 + tt * 1024 + 8 * (nt & 1)
                else:
                    addr = (V_RA + 2 * hb + (nt & 1)) if kind == "f" else (V_RH + hb)
                    o = off + (nt >> 1) * 12288 + (c0 + c) * 2048 + tt * 256
                out.append((f"ds_read_b64_tr_b16 v[{d}:{d+1}], v{addr} offset:{o}", f"A{gi%3}"))
        return out
    acc = lambda buf, nt, mt: V_ACC + buf * 64 + (nt * 4 + mt) * 4
    gaps = []; gstart = []
    for gi, (st, nt, c0) in enumerate(groups):
        gstart.append(len(gaps))
        kind, t, sub, buf = stages[st]
        for mt in range(4):
            for c in range(3):
                a = acc(buf, nt, mt); af = V_AF + (gi % 3) * 12 + c * 4
                ks = (sub * 3 if kind == "q" else sub * 6 + c0) + c
                C = "0" if ks == 0 else f"v[{a}:{a+3}]"
                gaps.append(Gap(f"v_mfma_f32_16x16x32_bf16 v[{a}:{a+3}], v[{af}:{af+3}], {xreg(ks, mt)}, {C}"))
    NG = len(groups)
    first_of_stage = {}
    for gi, (st, nt, c0) in enumerate(groups): first_of_stage.setdefault(st, gi)
    bar_gap = {}
    for gi in range(2, NG):
        st = groups[gi][0]; f = first_of_stage[st]
        rd = a_reads(gi)
        if gi == f:
            g0 = gstart[gi - 1]; bar_gap[st] = g0 - 1
            for n, r in enumerate(rd): gaps[g0 + n].mem.append(r)
        elif gi == f + 1:
            g0 = gstart[gi - 2]
            for n, r in enumerate(rd): gaps[g0 + 6 + n].mem.append(r)
        else:
            g0 = gstart[gi - 2]
            for n, r in enumerate(rd): gaps[g0 + 2 * n].mem.append(r)
    for gi in range(1, NG):
        g = gaps[gstart[gi] - 1]
        st, nt, c0 = groups[gi]
        vm = []
        if st < 6 and nt == 0: vm.append(f"X{st}")
        nxt = groups[gi + 1][0] if gi + 1 < NG else None
        if nxt is not None and nxt != st:
            g.sh.append(WaitFor(vm=vm + [f"W{nxt}"], lg0=True)); g.sh.append("s_barrier")
        else:
            g.sh.append(WaitFor(lg=(f"A{gi%3}",), vm=vm))
    def place_mem(gaps, ops, g0, g1, dense=False, want=0):
        pitch = max(1.0, (g1 - g0 - 8) / len(ops)) if not dense else 1.0
        last = g0
        for n, (sal, op) in enumerate(ops):
            g = max(last + 1 + len(sal), int(g0 + 2 + n * pitch))
            while True:
                assert g < g1, (g0, g1, n, len(ops))
                ok = (len(gaps[g].mem) <= 1 if dense else len(gaps[g].mem) == want) and all(len(gaps[g - len(sal) + i].sh) == 0 for i in range(len(sal)))
                if ok: break
                g += 1
            for i, s in enumerate(sal): gaps[g - len(sal) + i].sh.append(s)
            gaps[g].mem.append(op); last = g
    for st in range(NST):
        g0 = gstart[first_of_stage[st]]
        g1 = bar_gap[st + 1] if st + 1 < NST else len(gaps)
        ops = []
        if st == 0: ops = (w_dma(2) if PV_ != 'D' else []) + x_loads(6, 9) + w_dma(3)
        elif st == 1: ops = x_loads(9, 12) + w_dma(4)
        elif st == 2: ops = x_loads(12, 15) + w_dma(5)
        elif st == 3: ops = x_loads(15, 18) + w_dma(6)
        elif st + 3 < NST: ops = w_dma(st + 3)
        if st == 4: ops = [([], (f"buffer_load_dwordx2 v[74:75], v{V_TA}, s[{S_WS}:{S_WS+3}], s{S_FO} offen sc1", "GX"))] + ops
        if st == 18: ops += kv_dma("V", VS(0), None, 0)
        if st == 19: ops += kv_dma("K", KS(0), None, 0)
        if st == 20: ops += kv_dma("K", KS(1), None, 16384) + kv_dma("V", VS(1), None, 16384) + kv_dma("K", KS(2), None, 32768)
        if ops: place_mem(gaps, ops, g0, g1 if st < 20 else g0 + 60)
        if st == 19:
            cand = [g for g in range(g0 + 3, g1 - 2) if not gaps[g].mem][::2]
            assert len(cand) >= 16
            for f, g in enumerate(cand[:16]):
                gaps[g].mem.append((f"ds_read_b128 a[{A_Q+4*f}:{A_Q+4*f+3}], v{V_QP + f//8} offset:{(f%8)*1024}", "QR"))
    def ffn_epi(st0, pk=False, mts=(0, 1, 2, 3)):
        kind, t, sub, buf = stages[st0]
        q = []
        for mt in mts:
            if kind == "f": el = [(acc(buf, n, mt) + r, acc(buf, 2 + n, mt) + r) for n in range(2) for r in range(4)]
            else: el = [(acc(buf, 0, mt) + r, acc(buf, 2, mt) + r) for r in range(4)]
            T = V_T + 8 * (mt % 2)
            if pk:
                pr = lambda r: f"v[{r}:{r+1}]"
                ev = list(enumerate(el))[::2]
                for e, (g, u) in ev: q.append(f"v_pk_mul_f32 {pr(T+e)}, {pr(g)}, {pr(g)}")
                for e, (g, u) in ev: q.append(f"v_pk_fma_f32 {pr(T+e)}, {pr(T+e)}, {pr(V_C1)}, {pr(V_C1)} op_sel:[0,1,0] op_sel_hi:[1,1,0]")
                for e, (g, u) in ev: q.append(f"v_pk_mul_f32 {pr(T+e)}, {pr(T+e)}, {pr(g)}")
                for e, (g, u) in enumerate(el): q.append(f"v_exp_f32 v{T+e}, v{T+e}")
                for e, (g, u) in ev: q.append(f"v_pk_mul_f32 {pr(g)}, {pr(g)}, {pr(u)}")
                for e, (g, u) in ev: q.append(f"v_pk_add_f32 {pr(T+e)}, {pr(T+e)}, 1.0 op_sel_hi:[1,0]")
                for e, (g, u) in enumerate(el): q.append(f"v_rcp_f32 v{T+e}, v{T+e}")
                for e, (g, u) in ev: q.append(f"v_pk_mul_f32 {pr(g)}, {pr(g)}, {pr(T+e)}")
            else:
                for e, (g, u) in enumerate(el): q.append(f"v_mul_f32 v{T+e}, v{g}, v{g}")
                for e, (g, u) in enumerate(el): q.append(f"v_fma_f32 v{T+e}, v{T+e}, v{V_C2}, v{V_C1}")
                for e, (g, u) in enumerate(el): q.append(f"v_mul_f32 v{T+e}, v{T+e}, v{g}")
                for e, (g, u) in enumerate(el):
                    q.append(f"v_exp_f32 v{T+e}, v{T+e}"); q.append(f"v_mul_f32 v{g}, v{g}, v{u}")
                for e, (g, u) in enumerate(el): q.append(f"v_add_f32 v{T+e}, 1.0, v{T+e}")
                for e, (g, u) in enumerate(el): q.append(f"v_rcp_f32 v{T+e}, v{T+e}")
                for e, (g, u) in enumerate(el): q.append(f"v_mul_f32 v{g}, v{g}, v{T+e}")
            o = V_HO + 4 * (mt % 2)
            for i in range(len(el) // 2): q.append(f"v_cvt_pk_bf16_f32 v{o+i}, v{el[2*i][0]}, v{el[2*i+1][0]}")
            if kind == "f":
                q.append(("MEM", [f"s_add_u32 s{S_T2}, s{S_HF+t}, {H_OFF + mt*4096}"], (f"buffer_store_dwordx4 v[{o}:{o+3}], v{V_L16}, s[{S_WS}:{S_WS+3}], s{S_T2} offen{SCH}", None)))
            else:
                q.append(("MEM", [f"s_add_u32 s{S_T2}, s{S_HHALF}, {H_OFF + mt*4096}"], (f"buffer_store_dwordx2 v[{o}:{o+1}], v{V_L16}, s[{S_WS}:{S_WS+3}], s{S_T2} offen{SCH}", None)))
        return q
    def q_epi(seg):
        q = []
        for mt in range(4):
            rs = [acc(0, 2 * seg, mt) + r for r in range(4)] + [acc(0, 2 * seg + 1, mt) + r for r in range(4)]
            o = V_T + 4 * ((seg * 4 + mt) % 4)
            for r in rs: q.append(f"v_mul_f32 v{r}, {f2u(QSCALE)}, v{r}")
            for i in range(4): q.append(f"v_cvt_pk_bf16_f32 v{o+i}, v{rs[2*i]}, v{rs[2*i+1]}")
            f = mt * 4 + seg
            q.append(("MEM", [], (f"ds_write_b128 v{V_QP + f//8}, v[{o}:{o+3}] offset:{(f%8)*1024}", None)))
        return q
    sg = lambda st: gstart[first_of_stage[st]]
    gaps[bar_gap[20] - 11].post += [f"s_load_dwordx2 s[64:65], s[0:1], {ARG['wo']}", f"s_load_dwordx2 s[66:67], s[0:1], {ARG['wd']}",
                                    f"s_load_dwordx2 s[{S_OUT}:{S_OUT+1}], s[0:1], {ARG['out']}"]
    g_ = gaps[sg(8) + 1]
    g_.post += [WaitFor(vm=("GX",)), f"v_subrev_u32 v74, s{S_XCC}, v74", f"v_xor_b32 v75, s{S_EP2}, v75", "v_min_u32 v75, 1, v75", "v_lshl_or_b32 v74, v75, 8, v74", "v_cmp_le_u32 vcc, 8, v74", "s_nop 1",
                "s_cmp_lg_u64 vcc, 0", f"s_cselect_b32 s{S_MIX}, 1, {1 if 'forcemix' in ABL else 0}"]
    f5 = first_of_stage[5]
    q = []; mins = []
    for seg in range(4):
        e_ = q_epi(seg); q += e_; mins += [gstart[f5 + 2 * seg + 2] + 3] * len(e_)
    left = fill_valu(gaps[:sg(9) - 3], gstart[f5 + 2] + 3, q, mins=mins); assert not left, len(left)
    for seg, lim_ in ((0, sg(6) - 3), (1, sg(6) + 9)):
        cv_ = [x for x in q_epi(seg) if isinstance(x, str)]
        lastg = max(gi for gi, g in enumerate(gaps) for x in g.valu if x in cv_ and gi < sg(9))
        assert lastg < lim_, (seg, lastg, lim_)
    for st0 in (6, 9, 12, 15):
        end = sg(st0 + 6) - 3 if st0 + 6 < NST else len(gaps)
        left = fill_valu(gaps[:end], sg(st0 + 3) + 3, ffn_epi(st0)); assert not left, (st0, len(left))
    left = fill_valu(gaps, sg(19), [f"v_xor_b32 v{V_KA}, 128, v{V_KA+2}", f"v_xor_b32 v{V_KA+1}, 128, v{V_KA+3}"]); assert not left
    issue(x_loads(3, 6))
    p.items.append(WaitFor(vm=("X0",)))
    p("s_barrier")
    for t, tag in a_reads(0) + a_reads(1): p(t, tag)
    ep_wait("b")
    p(f"s_add_u32 s{S_XCC}, s{S_XCC}, s{S_EP}")
    p.items.append(WaitFor(lg=("A0",)))
    stamp(p, 1)
    if 'finepro' in ABL:
        gaps[sg(1) - 1].post += stamp_ops(7); gaps[sg(2) - 1].post += stamp_ops(8); gaps[sg(3) - 1].post += stamp_ops(9)
    elif 'fine1' in ABL:
        for st in range(6, 21): gaps[sg(st) - 1].post += stamp_ops(st - 4)
    else:
        gaps[sg(6) - 1].post += stamp_ops(2); gaps[sg(12) - 1].post += stamp_ops(3)
    emit_gaps(p, gaps)
    if 'fine1' in ABL:
        stamp(p, 17); globals()['ABL'] += ',finepro'
    if 'finepro' not in ABL: stamp(p, 4)

    Sreg = lambda par, kt, qt: V_S + (1 - par) * 64 + (kt * 4 + qt) * 4
    Preg = lambda par, kb, qt: (V_P0 + par * 16 + qt * 4) if kb == 0 else (V_P1 + qt * 4)
    Kf = lambda kt, ks: A_KF + (kt % 2) * 16 + ks * 4
    Vf = lambda dt, kb: A_VF + (dt % 4) * 8 + kb * 4
    def k_reads(slot, kt):
        return [(f"ds_read_b128 a[{Kf(kt,ks)}:{Kf(kt,ks)+3}], v{V_KA+ks} offset:{slot*16384 + kt*4096}", f"KF{kt%2}") for ks in range(4)]
    def v_reads(slot, dt):
        return [(f"ds_read_b64_tr_b16 a[{Vf(dt,kb)+2*t}:{Vf(dt,kb)+2*t+1}], v{V_VA+dt} offset:{slot*16384 + kb*8192 + t*4096}", f"VF{dt%4}") for kb in range(2) for t in range(2)]
    def qk_mfma(par, kt, qt, ks, zero=False):
        s = Sreg(par, kt, qt)
        C = f"v[{s}:{s+3}]" if ks else ("0" if zero else f"v[{V_NM+4*qt}:{V_NM+4*qt+3}]")
        qf = A_Q + (qt * 4 + ks) * 4
        return f"v_mfma_f32_16x16x32_bf16 v[{s}:{s+3}], a[{Kf(kt,ks)}:{Kf(kt,ks)+3}], a[{qf}:{qf+3}], {C}"
    def pv_mfma(par, dt, qt, kb):
        o = A_O + (dt * 4 + qt) * 4; pr = Preg(par, kb, qt)
        return f"v_mfma_f32_16x16x32_bf16 a[{o}:{o+3}], a[{Vf(dt,kb)}:{Vf(dt,kb)+3}], v[{pr}:{pr+3}], a[{o}:{o+3}]"
    def l_mfma(par, qt, kb):
        pr = Preg(par, kb, qt)
        return f"v_mfma_f32_16x16x32_bf16 v[{V_LD}:{V_LD+3}], v[{V_ONE}:{V_ONE+3}], v[{pr}:{pr+3}], " + ("0" if kb == 0 else f"v[{V_LD}:{V_LD+3}]")
    def elem(par, tau):
        kb = tau // 32; r = tau % 32; qt = 2 * (r // 16) + ((r % 4) >> 1); j = 2 * ((r % 16) // 4) + (r & 1)
        return Sreg(par, 2 * kb + (j >> 2), qt) + (j & 3), kb, qt, j
    def op_exp(par, tau): return f"v_exp_f32 v{V_E + tau % 8}, v{elem(par, tau)[0]}"
    def op_add(par, tau):
        s, kb, qt, j = elem(par, tau); assert qt % 2 == 1
        src = V_LS + (1 - par) * 4 + qt if (kb == 0 and j == 0) else V_LS + par * 4 + qt
        return f"v_add_f32 v{V_LS + par*4 + qt}, v{src}, v{V_E + tau % 8}"
    def op_ladd(par, qt): return f"v_add_f32 v{V_LS + par*4 + qt}, v{V_LS + (1-par)*4 + qt}, v{V_LD}"
    def op_cvt(par, tau):
        s, kb, qt, j = elem(par, tau); assert tau % 2 == 1
        return f"v_cvt_pk_bf16_f32 v{Preg(par, kb, qt) + j//2}, v{V_E + (tau-1) % 8}, v{V_E + tau % 8}"
    def rowmax(p, par, qt, dst):
        regs = [Sreg(par, kt, qt) + r for kt in range(4) for r in range(4)]
        p(f"v_max3_f32 v{dst}, v{regs[0]}, v{regs[1]}, v{regs[2]}")
        for i in range(3, 15, 2): p(f"v_max3_f32 v{dst}, v{dst}, v{regs[i]}, v{regs[i+1]}")
        p(f"v_max_f32 v{dst}, v{dst}, v{regs[15]}")
    def xlane_ops(op, dsts, t1):
        o = []
        for sw in ("v_permlane32_swap_b32", "v_permlane16_swap_b32"):
            for q, d in enumerate(dsts): o.append(f"v_mov_b32 v{t1+q}, v{d}")
            for q, d in enumerate(dsts): o.append(f"{sw} v{d}, v{t1+q}")
            for q, d in enumerate(dsts): o.append(f"{op} v{d}, v{d}, v{t1+q}")
        return o

    p.items.append(WaitFor(vm=(f"K{KS(0)}",), lg0=True)); p("s_barrier")
    for t, tag in k_reads(KS(0), 0) + k_reads(KS(0), 1): p(t, tag)
    g0 = []
    for kt in range(4):
        for qt in range(4):
            for ks in range(4): g0.append(Gap(qk_mfma(0, kt, qt, ks, zero=True)))
    for n, r in enumerate(k_reads(KS(0), 2)): g0[16 + 2 * n].mem.append(r)
    for n, r in enumerate(k_reads(KS(0), 3)): g0[32 + 2 * n].mem.append(r)
    g0[31].sh.append(WaitFor(lg=("KF0",))); g0[47].sh.append(WaitFor(lg=("KF1",)))
    place_mem(g0, kv_dma("K", KS(3), None, 3 * 16384) + kv_dma("V", VS(2), None, 2 * 16384), 0, 40)
    full = ffn_epi(18); per = len(full) // 4
    npre = 24
    if 'finea' in ABL: stamp(p, 0)
    emit_ops(p, full[:npre])
    left = fill_valu(g0, 0, full[npre:2 * per])
    left += ffn_epi(18, pk=True, mts=(2, 3))
    p.items.append(WaitFor(lg=("KF0", "KF1")))
    sal = [f"s_mov_b32 s{S_OUT+2}, {XN_BYTES}",
           f"s_and_b32 s{S_T0}, s{S_J}, 7", f"s_lshl_b32 s{S_T1}, s{S_RB}, 3", f"s_add_u32 s{S_T0}, s{S_T0}, s{S_T1}",
           f"s_lshl_b32 s{S_T0}, s{S_T0}, 2", f"s_add_u32 s{S_T0}, s{S_T0}, s{S_WAVE}", f"s_lshr_b32 s{S_KOFF}, s{S_J}, 3",
           f"s_sub_u32 s{S_T1}, s{S_T0}, 120", f"s_cmp_lt_u32 s{S_T0}, 120",
           f"s_cselect_b32 s{S_RE}, s{S_T0}, s{S_T1}", f"s_movk_i32 s{S_RNW}, 136", f"s_cselect_b32 s{S_RNW}, 120, s{S_RNW}",
           f"s_cselect_b32 s{S_WG}, s64, s66", f"s_cselect_b32 s{S_WG+1}, s65, s67",
           f"s_mov_b32 s{S_WG+2}, {1152*1152}", f"s_cselect_b32 s{S_WG+2}, {1024*1152}, s{S_WG+2}", f"s_mov_b32 s{S_WU+2}, s{S_WG+2}",
           f"s_mov_b32 s{S_T0}, {WPD_OFF}", f"s_cselect_b32 s{S_T0}, {WPO_OFF}, s{S_T0}",
           f"s_mul_i32 s{S_T1}, s{S_KOFF}, s{S_WG+2}",
           f"s_add_u32 s{S_WG}, s{S_WG}, s{S_T1}", f"s_addc_u32 s{S_WG+1}, s{S_WG+1}, 0",
           f"s_add_u32 s{S_T0}, s{S_T0}, s{S_T1}", f"s_add_u32 s{S_WU}, s70, s{S_T0}", f"s_addc_u32 s{S_WU+1}, s71, 0",
           f"s_sub_u32 s{S_RE}, s{S_RE}, s{S_RNW}",
           f"s_mov_b32 s{S_KOFF}, {4*16384}", f"s_mov_b32 s{S_VOFF}, {3*16384}", f"s_mov_b32 s{S_CNT}, 7",
           f"s_lshl_b32 s{S_BQ}, s{S_WAVE}, 11", f"s_add_u32 s{S_BQ}, s{S_BQ}, {128*1024}"]
    fr_ = [g for g in g0[41:] if not g.sh]
    k_ = sal.index(f"s_cmp_lt_u32 s{S_T0}, 120")
    for t, g in zip(sal[:k_], fr_): g.sh.append(t)
    emit_gaps(p, g0)
    emit_ops(p, left)
    for t in sal[k_:]: p(t)
    for q in range(4): p(f"v_mov_b32 v{V_LS+4+q}, 0")
    for q in range(4): p(f"v_mov_b32 v{V_ONE+q}, 0x3f803f80")
    p.items.append(WaitFor(vm=(f"K{KS(1)}", f"V{VS(0)}"))); p("s_barrier")
    for t, tag in k_reads(KS(1), 0) + k_reads(KS(1), 1): p(t, tag)
    p(f"v_lshrrev_b32 v{V_PT+1}, 4, v{V_L16}")
    p(f"v_lshrrev_b32 v{V_RPG}, 2, v{V_PT+1}"); p(f"v_and_b32 v{V_PT}, 3, v{V_PT+1}")
    p(f"v_lshlrev_b32 v{V_RPL}, 6, v{V_RPG}"); p(f"v_lshl_add_u32 v{V_RPL}, v{V_PT}, 3, v{V_RPL}"); p(f"v_add_u32 v{V_RPL}, s{S_BQ}, v{V_RPL}")
    p(f"v_mul_u32_u24 v{V_RPG}, 1152, v{V_RPG}"); p(f"v_lshl_add_u32 v{V_RPG}, v{V_PT}, 4, v{V_RPG}")
    p(f"s_and_b32 s{S_T1}, s{S_J}, 24"); p(f"s_lshl_b32 s{S_T1}, s{S_T1}, 6"); p(f"v_and_b32 v{V_PT}, 7, v{V_PT+1}")
    p(f"v_lshrrev_b32 v{V_PA}, 3, v{V_PT+1}"); p(f"v_lshlrev_b32 v{V_PA}, 11, v{V_PA}"); p(f"v_lshl_add_u32 v{V_PA}, v{V_PT}, 3, v{V_PA}")
    p(f"v_add_u32 v{V_PA}, s{S_T1}, v{V_PA}")
    p(f"v_mov_b32 v{V_SV+1}, s{S_EP2}")
    zm = [f"v_mfma_f32_32x32x16_bf16 a[{A_O+16*i}:{A_O+16*i+15}], v[{V_LS+4}:{V_LS+7}], v[{V_LS+4}:{V_LS+7}], 0" for i in range(8)]
    for qt in range(4):
        p(zm[qt]); rowmax(p, 0, qt, V_R + qt)
    for n, t in enumerate(xlane_ops("v_max_f32", [V_R + q for q in range(4)], V_R + 4)):
        if n % 8 == 0: p(zm[4 + n // 8])
        p(t)
    p(zm[7])
    for qt in range(4):
        for r in range(4): p(f"v_sub_f32 v{V_NM+4*qt+r}, {f2u(-BIAS) if BIAS else 0}, v{V_R+qt}")
    for kt in range(4):
        for qt in range(4):
            for r in (0, 2):
                s_ = Sreg(0, kt, qt) + r
                p(f"v_pk_add_f32 v[{s_}:{s_+1}], v[{s_}:{s_+1}], v[{V_NM+4*qt}:{V_NM+4*qt+1}]")
    for tau in range(36):
        p(op_exp(0, tau))
        if tau % 4 == 0 and tau: p(op_add(0, tau - 1)); p(op_cvt(0, tau - 1))
        if tau % 4 == 2: p(op_cvt(0, tau - 1))
        if tau % 4 == 3: p(op_add(0, tau - 1))
    p.items.append(WaitFor(lg=("KF0",)))
    p(op_add(0, 35))
    if 'finepro' not in ABL: stamp(p, 5); stamp_rt(p, 15)

    rare_sites = []
    class Tile: pass
    def used(g): return len(g.mem) + sum(slots_of(v) for v in g.valu)
    def att_tile(it, last_block=False, first_mfmas=None):
        par = it % 2
        final = last_block and it == 3
        T = Tile(); G = []; Q = []; PV = []; LG = []
        mf = first_mfmas or [qk_mfma(1 - par, kt, qt, ks) for kt in range(4) for qt in range(4) for ks in range(4)]
        for i, m in enumerate(mf):
            g = Gap(m); G.append(g); Q.append(g)
            if i in (19, 23, 51, 55):
                g = Gap(l_mfma(par, 0 if i < 32 else 2, 0 if i in (19, 51) else 1)); G.append(g); LG.append(g)
        for dt in range(8):
            for qt in range(4):
                for kb in range(2):
                    g = Gap(pv_mfma(par, dt, qt, kb)); G.append(g); PV.append(g)
        T.G, T.Q, T.PV, T.LG = G, Q, PV, LG
        idx = {id(g): i for i, g in enumerate(G)}
        T.idx = lambda g: idx[id(g)]
        br = Q[-1]
        for b in range(64):
            E, N = (Q[2*b], Q[2*b+1]) if b < 32 else (PV[2*b-64], PV[2*b-63])
            sp, tau = (par, 36 + b) if b < 28 else (1 - par, b - 28)
            if tau % 4 == 0:
                if not (final and b > 28): N.valu.append(op_cvt(sp, tau - 1) if b != 28 else op_cvt(par, 63))
            if final and b >= 28: continue
            E.valu.append(op_exp(sp, tau))
            if tau % 4 == 1: N.valu.append(op_cvt(sp, tau))
            if tau % 4 >= 2: (br if b in (30, 31) else N).valu.append(op_add(sp, tau))
        L = V_LS + par * 4
        site = f"{'z' if last_block else 'l'}{it}"; rare_sites.append((site, "Z" if final else str(par)))
        Q[29].valu.append(op_ladd(par, 0))
        Q[57].valu.append(f"v_max3_f32 v{V_CK}, v{L}, v{L+1}, v{L+3}")
        Q[59].valu.append(op_ladd(par, 2))
        Q[61].valu += [f"v_max_f32 v{V_CK}, v{V_CK}, v{L+2}", f"v_cmp_lt_f32 vcc, s{S_THR}, v{V_CK}"]
        br.sh += [f"s_cbranch_vccnz L_rare_stub{site}", Label(f"L_rare_ret{site}")]
        PV[1].sh.append("s_barrier"); T.wv = []
        T.reserved = {id(PV[0]), id(PV[1])}
        if 'barE' in ABL and not final:
            PV[3].valu = PV[1].valu + PV[3].valu; PV[1].valu = []; T.reserved.add(id(PV[3]))
        kslot1, kslot2, vslot = KS(it + 1), KS(it + 2), VS(it)
        if not final:
            Q[15].sh.append(WaitFor(lg=("KF1",))); Q[31].sh.append(WaitFor(lg=("KF0",))); Q[47].sh.append(WaitFor(lg=("KF1",)))
        Q[-2].sh.append(WaitFor(lg=("VF0", "VF1", "VF2", "VF3")))
        for dt in range(4, 8): PV[8 * dt - 1].sh.append(WaitFor(lg=(f"VF{dt%4}",)))
        T.cur = 0; T.lastdma = -1
        def put(op, lo=None, sal=(), cap=2):
            g = max(T.cur, T.idx(lo) if lo is not None else 0)
            while True:
                assert g < len(G), op
                ok = not G[g].mem and used(G[g]) < cap and id(G[g]) not in T.reserved
                if ok and sal:
                    fr = [h for h in range(max(T.lastdma + (0 if len(sal) == 2 else 1), g - 6, 0), g) if not G[h].sh and id(G[h]) not in T.reserved]
                    ok = len(fr) >= len(sal)
                if ok: break
                g += 1
            if sal:
                for h, s_ in zip(fr[-len(sal):], sal): G[h].sh.append(s_)
                T.lastdma = g
            G[g].mem.append(op); T.cur = g + 1
            return g
        T.put = put
        def solo(g, sal, op, nxt=None):
            gi = T.idx(g)
            assert not g.mem
            if g.valu:
                assert not nxt.mem; nxt.valu = g.valu + nxt.valu; g.valu = []; T.reserved.add(id(nxt))
            fr = [h for h in range(gi - 3, gi) if not G[h].sh]
            assert len(fr) >= len(sal), (gi, sal)
            for h, s_ in zip(fr[-len(sal):], sal): G[h].sh.append(s_)
            g.mem.append(op); T.lastdma = max(T.lastdma, gi)
        T.solo = solo
        T.endsal = []
        if not final:
            if not (last_block and it >= 2):
                sal_, op = kv_dma("V", VS(it + 2), S_VOFF, -16384)[3]; solo(LG[0], sal_, op)
            if not last_block:
                dk = kv_dma("K", KS(it), S_KOFF, 0)
                solo(LG[1], *dk[0]); solo(Q[41], *dk[1], nxt=Q[43]); solo(LG[2], *dk[2]); solo(LG[3], *dk[3])
                T.endsal.append(f"s_add_u32 s{S_KOFF}, s{S_KOFF}, 16384")
            for r in v_reads(vslot, 0) + v_reads(vslot, 1): put(r)
            for r in k_reads(kslot1, 2): put(r, Q[16])
            v23 = v_reads(vslot, 2) + v_reads(vslot, 3)
            for r in v23[:3]: put(r)
            for r in k_reads(kslot1, 3): put(r, Q[32])
            for r in v23[3:]: put(r)
            assert T.cur <= T.idx(Q[55]), (it, T.cur)
        if not (last_block and it >= 1):
            dv = kv_dma("V", VS(it + 3), S_VOFF, 0)
            solo(PV[5], *dv[0], nxt=PV[7]); solo(PV[57], *dv[1], nxt=PV[59]); solo(PV[61], *dv[2], nxt=PV[63])
        T.cur = T.idx(PV[2])
        T.pv_v = [(r, PV[8 * (dt - 4) + 8]) for dt in range(4, 8) for r in v_reads(vslot, dt)]
        if not (last_block and it >= 2):
            for r, lo in T.pv_v: put(r, lo)
            for r in k_reads(kslot2, 0) + k_reads(kslot2, 1): put(r)
            T.wv.append(f"K{kslot2}")
            T.endsal += [WaitFor(lg=("KF0",)), f"s_add_u32 s{S_VOFF}, s{S_VOFF}, 16384"]
        if not last_block and it == 0:
            sl = [f"s_add_u32 s{S_RE}, s{S_RE}, s{S_RNW}", f"s_mul_i32 s{S_RS}, s{S_RE}, 3641", f"s_lshr_b32 s{S_RS}, s{S_RS}, 16",
                  f"s_mul_i32 s{S_RS}, s{S_RS}, {36864-1152}", f"s_lshl_b32 s{S_RD}, s{S_RE}, 6", f"s_add_u32 s{S_RS}, s{S_RS}, s{S_RD}",
                  f"s_lshl_b32 s{S_RD}, s{S_RE}, 11"]
            for n, s_ in enumerate(sl): Q[2 * n].sh.append(s_)
            Q[58].sh.append(f"s_mov_b32 m0, s{S_BQ}")
            Q[59].mem.append((f"buffer_load_dwordx4 v{V_RPG}, s[{S_WG}:{S_WG+3}], s{S_RS} offen lds", "RD"))
            Q[60].sh.append(f"s_add_u32 s{S_RS}, s{S_RS}, {16*1152-1024}")
            PV[3].mem.append((f"buffer_load_dwordx4 v{V_RPG}, s[{S_WG}:{S_WG+3}], s{S_RS} offen offset:1024 lds", "RD"))
        if not last_block and it == 2:
            PV[3].mem.append((f"ds_read_b64_tr_b16 v[{V_RPS}:{V_RPS+1}], v{V_RPL} offset:0", "RL"))
            PV[7].mem.append((f"ds_read_b64_tr_b16 v[{V_RPS+2}:{V_RPS+3}], v{V_RPL} offset:1024", "RL"))
        if not last_block and it == 3:
            Q[55].mem.append((f"ds_read_b64_tr_b16 v[{V_RPS+4}:{V_RPS+5}], v{V_RPL} offset:32", "RL"))
            Q[57].mem.append((f"ds_read_b64_tr_b16 v[{V_RPS+6}:{V_RPS+7}], v{V_RPL} offset:1056", "RL"))
        if not final: T.wv.append(f"V{VS(it+1)}")
        if not last_block:
            if it == 2: T.wv.append("RD")
            if it == 1:
                T.wv.append("RST")
                PV[10].sh.append(f"s_cmp_le_u32 s{S_CNT}, 2"); PV[11].sh.append(f"s_cselect_b32 s{S_SIG}, 2, 1")
                PV[12].sh.append(f"s_add_u32 s{S_SIG}, s{S_SIG}, s{S_XCC}"); PV[13].valu.append(f"v_mov_b32 v{V_SV}, s{S_SIG}")
                PV[16].sh.append(f"s_cmp_lg_u32 s{S_MIX}, 0"); PV[17].sh += ["s_cbranch_scc1 L_stub_w2", Label("L_ret_w2")]
                PV[20].mem.append((sig_store, None))
            if it == 3:
                PV[3].mem.append((f"buffer_store_dwordx4 v[{V_RPS}:{V_RPS+3}], v{V_L16}, s[{S_WU}:{S_WU+3}], s{S_RD} offen sc1", "RST"))
                PV[12].sh.append(WaitFor(lg=("RL",)))
                PV[14].mem.append((f"buffer_store_dwordx4 v[{V_RPS+4}:{V_RPS+7}], v{V_L16}, s[{S_WU}:{S_WU+3}], s{S_RD} offen offset:1024 sc1", "RST"))
        return T
    def finish_tile(T):
        if T.wv: T.PV[0].sh.append(WaitFor(vm=tuple(T.wv)))
        for s_ in T.endsal:
            if isinstance(s_, WaitFor):
                g = [g for g in T.PV[57:] if not g.sh][0]; g.sh.append(s_)
            else:
                c = [g for g in T.G[T.lastdma:] if not g.sh]
                (c[0].sh if c else T.G[-1].post).append(s_)
        ov = sum(max(0, used(g) - 2) + max(0, len([x for x in g.sh if not isinstance(x, Label)]) - 1) for g in T.G)
        print("tile overflow slots:", ov, "gaps", len(T.G))

    body = Prog(); p = body
    p.label("L_att_loop", 6)
    for it in range(4):
        T = att_tile(it)
        if it == 3: T.PV[40].sh.append(f"s_sub_u32 s{S_CNT}, s{S_CNT}, 1")
        finish_tile(T)
        if it == 3: T.G[-1].post += [f"s_cmp_lg_u32 s{S_CNT}, 0", "s_cbranch_scc1 L_att_loop"]
        for g in T.G:
            if 'Lnodma' in ABL: g.mem = [m for m in g.mem if not m[0].startswith("buffer")]
            if 'Lnobar' in ABL: g.sh = [x for x in g.sh if x != "s_barrier"]
            if 'Lnolds' in ABL: g.mem = [m for m in g.mem if not m[0].startswith("ds_")]
            if 'Lnotr' in ABL: g.mem = [m for m in g.mem if not m[0].startswith("ds_read_b64")]
            if 'Lnobr' in ABL: g.sh = [x for x in g.sh if not (isinstance(x, str) and x.startswith("s_cbranch"))]
            if 'Lnovalu' in ABL: g.valu = [x for x in g.valu if x.startswith(("v_exp", "v_add_u32"))]
            if 'Lnoexp' in ABL: g.valu = [x for x in g.valu if not x.startswith("v_exp")]
            if 'Lnowait' in ABL: g.sh = [x for x in g.sh if not (isinstance(x, WaitFor) and x.lg)]
        emit_gaps(p, T.G)

    tail = Prog(); p = tail
    p(f"s_getpc_b64 s[{S_WG}:{S_WG+1}]")
    p.label("L_pc1")
    p(f"s_and_b32 s{S_WG+1}, s{S_WG+1}, 0xffff"); p(f"s_mov_b32 s{S_WG+2}, L_code_end-L_pc1")
    p(f"s_lshr_b32 s{S_T0}, s2, 3"); p(f"s_lshl_b32 s{S_T0}, s{S_T0}, 2"); p(f"s_add_u32 s{S_T0}, s{S_T0}, s{S_WAVE}"); p(f"s_lshl_b32 s{S_T0}, s{S_T0}, 10")
    p(f"buffer_load_dwordx4 v[{V_RPS}:{V_RPS+3}], v{V_L16}, s[{S_WG}:{S_WG+3}], s{S_T0} offen", "CODE")
    p(f"v_lshrrev_b32 v{V_LANE}, 4, v{V_L16}")
    if 'finepro' not in ABL: stamp(p, 6)
    NP3 = 17
    Breg = lambda s, ks, mt: ((s % 3) * 4 + ks) * 8 + mt * 4
    def p3_w(s):
        off = (WPD_OFF + s * 4 * 36864) if s < 9 else (WPO_OFF + (s - 9) * 4 * 36864)
        base = S_PW if s < 9 else S_PW2
        ops = []
        for i in range(9):
            sal = []
            if i % 4 == 0:
                tm = tmp()
                m0 = f"s_add_u32 m0, s{S_W0B}, {i*1024}" if s == 0 else f"s_add_u32 m0, s{S_W9K}, {P3_SLOT[(s-1)%3] + i*1024}"
                sal = [f"s_add_u32 s{tm}, s{base}, {off + i*1024}", m0]
            ops.append((sal, (f"buffer_load_dwordx4 v{V_L16}, s[{S_WS}:{S_WS+3}], s{tm} offen offset:{(i%4)*1024}{LSC} lds", f"PW{s}")))
        return annotate(ops)
    def p3_b(s):
        off = (H_OFF + s * 524288) if s < 9 else (O_OFF + (s - 9) * 524288)
        base = S_PB0 if s < 9 else S_PB1
        ops = []
        for mt in range(2):
            for ks in range(4):
                r = Breg(s, ks, mt)
                ops.append(([f"s_add_u32 s{S_T2}, s{base}, {off + mt*4096}"] if ks == 0 else [],
                            (f"buffer_load_dwordx4 a[{r}:{r+3}], v{V_L16}, s[{S_WS}:{S_WS+3}], s{S_T2} offen offset:{ks*1024}{LSC}", f"PB{s}")))
        return annotate(ops)
    setup3 = [f"s_lshr_b32 s{S_KOFF}, s{S_J}, 3", f"s_and_b32 s{S_RE}, s{S_J}, 3", f"s_mul_i32 s{S_W9K}, s{S_WAVE}, 9216",
              f"s_mul_i32 s{S_PW2}, s{S_WAVE}, 36864", f"s_mul_i32 s{S_RNW}, s{S_RE}, 9216", f"s_add_u32 s{S_PW2}, s{S_PW2}, s{S_RNW}",
              f"s_mul_i32 s{S_PW}, s{S_KOFF}, {1152*1152}", f"s_add_u32 s{S_PW}, s{S_PW}, s{S_PW2}",
              f"s_mul_i32 s{S_RNW}, s{S_KOFF}, {1024*1152}", f"s_add_u32 s{S_PW2}, s{S_PW2}, s{S_RNW}",
              f"s_lshl_b32 s{S_PST}, s{S_RB}, 3", f"s_and_b32 s{S_RNW}, s{S_J}, 7", f"s_add_u32 s{S_PST}, s{S_PST}, s{S_RNW}",
              f"s_lshr_b32 s{S_FX0}, s{S_PST}, 2",
              f"s_lshl_b32 s{S_PB1}, s{S_FX0}, 2", f"s_add_u32 s{S_PB1}, s{S_PB1}, s{S_WAVE}", f"s_lshl_b32 s{S_PB1}, s{S_PB1}, 13",
              f"s_mul_i32 s{S_PB0}, s{S_KOFF}, {9*524288}", f"s_add_u32 s{S_PB0}, s{S_PB0}, s{S_PB1}",
              f"s_lshl_b32 s{S_RNW}, s{S_KOFF}, 22", f"s_add_u32 s{S_PB1}, s{S_PB1}, s{S_RNW}",
              f"s_mul_i32 s{S_PST}, s{S_PST}, {16*9216}",
              f"s_mul_i32 s{S_FL}, s{S_KOFF}, 9216", f"s_add_u32 s{S_FL}, s{S_FL}, s{S_PST}",
              f"s_mul_i32 s{S_CNT}, s{S_KOFF}, {4*9216}", f"s_add_u32 s{S_PST}, s{S_PST}, s{S_CNT}", f"s_add_u32 s{S_PST}, s{S_PST}, s{S_W9K}",
              f"s_lshl_b32 s{S_FX0}, s{S_FX0}, 2", f"s_add_u32 s{S_FX0}, s{S_FX0}, s{S_KOFF}", f"s_mul_i32 s{S_FX0}, s{S_FX0}, {32*1152}",
              f"s_mul_i32 s{S_CNT}, s{S_RE}, 288", f"s_add_u32 s{S_FX0}, s{S_FX0}, s{S_CNT}", f"s_min_u32 s{S_FX1}, s{S_WAVE}, 1", f"s_lshl_b32 s{S_FX1}, s{S_FX1}, 30",
              f"s_add_u32 s{S_CNT}, s{S_KOFF}, 1", f"s_and_b32 s{S_CNT}, s{S_CNT}, 3", f"s_mul_i32 s{S_FR}, s{S_CNT}, {4*9216}", f"s_add_u32 s{S_FR}, s{S_FR}, s{S_FL}",
              f"s_add_u32 s{S_CNT}, s{S_KOFF}, 2", f"s_and_b32 s{S_CNT}, s{S_CNT}, 3", f"s_mul_i32 s{S_FR+1}, s{S_CNT}, {4*9216}", f"s_add_u32 s{S_FR+1}, s{S_FR+1}, s{S_FL}",
              f"s_add_u32 s{S_CNT}, s{S_KOFF}, 3", f"s_and_b32 s{S_CNT}, s{S_CNT}, 3", f"s_mul_i32 s{S_FR+2}, s{S_CNT}, {4*9216}", f"s_add_u32 s{S_FR+2}, s{S_FR+2}, s{S_FL}",
              f"s_add_u32 s{S_CNT}, s{S_WAVE}, 1", f"s_lshr_b32 s{S_CNT}, s{S_CNT}, 2", f"s_mul_i32 s{S_CNT}, s{S_CNT}, {80*1024+27648}",
              f"s_add_u32 s{S_W0B}, s{S_W9K}, {128*1024}", f"s_sub_u32 s{S_W0B}, s{S_W0B}, s{S_CNT}"]
    pg = []
    for s in range(NP3):
        if s in (8, 16): order = [(kp, nt) for nt in range(9) for kp in range(2)]
        else: order = [(kp, nt) for kp in range(2) for nt in range(9)]
        for kp, nt in order: pg.append((s, kp, nt))
    def p3_reads(gi):
        s, kp, nt = pg[gi]; base = P3_AR[gi % 4]
        out = []
        for q in range(2):
            ks = 2 * kp + q
            if s == 0: va, o = (V_PWA[2], 12 * 1024 + (ks * 9 + nt) * 1024) if ks < 3 else (V_PWA[0], 48 * 1024 + nt * 1024)
            else: va, o = V_PWA[(s - 1) % 3], (ks * 9 + nt) * 1024
            out.append((f"ds_read_b128 v[{base+4*q}:{base+4*q+3}], v{va} offset:{o}", f"PA{gi%4}"))
        return out
    pm = []
    for gi, (s, kp, nt) in enumerate(pg):
        for mt in range(2):
            for q in range(2):
                a = (AD if s < 9 else AS)(nt, mt); b = Breg(s, 2 * kp + q, mt); ar = P3_AR[gi % 4] + 4 * q
                C = "0" if (s in (0, 9) and kp == 0 and q == 0) else f"v[{a}:{a+3}]"
                pm.append(f"v_mfma_f32_16x16x32_bf16 v[{a}:{a+3}], v[{ar}:{ar+3}], a[{b}:{b+3}], {C}")
    TL = [att_tile(it, last_block=True, first_mfmas=(pm[:72] if it == 3 else None)) for it in range(4)]
    T28, T29, T30, T31 = TL
    T28.cur = T28.idx(T28.Q[50]); T28.put(poll_load("PL"))
    cv, cs = poll_check(2, "p2")
    T28.PV[40].sh.append(WaitFor(vm=("PL",))); T28.PV[41].sh += cs[:1]; T28.PV[42].post += cv; T28.PV[44].sh += cs[1:]
    free = [g for g in T28.G[:T28.idx(T28.PV[54])] if not g.sh and id(g) not in T28.reserved]
    assert len(free) >= len(setup3), len(free)
    for s_, g in zip(setup3, free): g.sh.append(s_)
    L2T = os.environ.get("L2T", "")
    if L2T:
        V_TH, V_TD = 3, V_SV
        p(f"v_min_u32 v{V_TH}, 15, v{V_LANE}"); p(f"v_lshlrev_b32 v{V_TH}, 7, v{V_TH}")
        for t in [f"s_and_b32 s13, s{S_J}, 7", f"s_lshl_b32 s13, s13, 2", f"s_add_u32 s13, s13, s{S_WAVE}", f"s_lshl_b32 s13, s13, 11",
                  f"s_lshl_b32 s14, s{S_RB}, 16", f"s_add_u32 s13, s13, s14", f"s_lshr_b32 s14, s{S_J}, 3", f"s_mul_i32 s15, s14, {9*524288}", f"s_add_u32 s13, s13, s15",
                  f"s_lshr_b32 s15, s2, 3", f"s_lshl_b32 s15, s15, 2", f"s_add_u32 s15, s15, s{S_WAVE}", f"s_lshl_b32 s15, s15, 11",
                  f"s_mul_i32 s14, s14, {1152*1152}", f"s_add_u32 s14, s14, s15"]: p(t)
        tl = []
        for x in L2T.split(","):
            if x[0] == "h": tl.append((13, H_OFF + int(x[1:]) * 524288))
            else: tl.append((14, WPD_OFF + int(x[1:]) * 262144))
        slots_ = [(T, g) for T in (T28, T29, T30) for g in (T.Q[8], T.Q[40], T.PV[10], T.PV[42])]
        for (T, g0_), (base, off) in zip(slots_, tl):
            T.cur = 0; ld_ = T.lastdma; T.lastdma = T.idx(g0_) - 4
            T.put((f"buffer_load_dword v{V_TD}, v{V_TH}, s[{S_WS}:{S_WS+3}], s77 offen sc1", "TCH"), g0_, sal=[f"s_add_u32 s77, s{base}, {off}"], cap=3)
            T.lastdma = ld_
    for n in range(4): T28.PV[57 + 2 * n].valu.append(f"v_mov_b32 v{V_RPS+4+n}, -1")
    T29.cur = 2; ld_ = T29.lastdma; T29.lastdma = 0
    for nt in range(9):
        T29.put((f"buffer_store_dwordx4 v[{V_RPS+4}:{V_RPS+7}], v{V_L16}, s[{S_WS}:{S_WS+3}], s{S_SIG} offen offset:{(nt%3)*1024} sc1", "DST"), T29.Q[2 + 5 * nt],
                sal=([f"s_add_u32 s{S_SIG}, s{S_PST}, {PART_OFF + PSTRIDE + nt*1024}"] if nt % 3 == 0 else ()), cap=3)
        T29.lastdma = T29.cur - 1
    T29.lastdma = max(ld_, T29.lastdma)
    T29.cur = T29.idx(T29.Q[50]); T29.lastdma = max(T29.lastdma, T29.idx(T29.Q[50]))
    for sal_, op in p3_w(0): T29.put(op, sal=sal_); T29.lastdma = T29.cur - 1
    T30.wv.append("PW0")
    mix = p3_b(0) + p3_w(1)
    T30.Q[49].valu.append(f"v_add_u32 v{V_PWA[1]}, {P3_SLOT[1]}, v{V_L16}"); T30.Q[51].valu.append(f"v_add_u32 v{V_PWA[2]}, {P3_SLOT[2]}, v{V_L16}")
    T30.cur = T30.idx(T30.PV[2])
    for r, lo in T30.pv_v: T30.put(r, lo)
    T30.cur = T30.idx(T30.PV[52])
    for r in p3_reads(0) + p3_reads(1) + p3_reads(2): T30.put(r)
    T30.cur = T30.idx(T30.PV[2]); T30.lastdma = T30.cur
    for n, (sal_, op) in enumerate(mix):
        T30.put(op, T30.PV[2 + 3 * n], sal=sal_, cap=3); T30.lastdma = T30.cur - 1
    T30.G[-1].post.append(WaitFor(lg=("PA0",), vm=("PB0",)))
    T31.wv.append("PW1")
    Q = T31.Q
    for gi in range(1, 18): Q[4 * gi - 1].sh.insert(0, WaitFor(lg=(f"PA{gi%4}",)))
    for gi in range(3, 18):
        for n, r in enumerate(p3_reads(gi)): Q[4 * (gi - 3) + 1 + 2 * n].mem.append(r)
    T31.cur = 0
    vr = [r for dt in range(4) for r in v_reads(VS(3), dt)]
    for n, r in enumerate(vr): T31.put(r, Q[4 * n], cap=3)
    T31.cur = 0; T31.lastdma = 0
    for n, (sal_, op) in enumerate(p3_b(1) + p3_b(2)):
        T31.put(op, Q[4 * n + 2], sal=sal_, cap=3); T31.lastdma = T31.cur - 1
    T31.cur = T31.idx(T31.PV[2])
    for r, lo in T31.pv_v: T31.put(r, lo); T31.cur += 1
    T31.cur = T31.idx(T31.PV[50])
    for r in p3_reads(18) + p3_reads(19) + p3_reads(20): T31.put(r); T31.cur += 1
    T31.cur = T31.idx(T31.PV[2]); T31.lastdma = T31.cur
    for sal_, op in p3_w(2): T31.put(op, sal=sal_); T31.lastdma = T31.cur - 1
    T31.PV[63].sh.append(WaitFor(lg=(f"PA{18%4}",), vm=("PB1",)))
    P = [None] * 72 + [Gap(m) for m in pm[72:]]
    for gi in range(21, len(pg)):
        i = gi % 18
        rd = p3_reads(gi)
        if i == 0: g0_ = 4 * (gi - 2); pos = (g0_, g0_ + 1)
        elif i == 1: g0_ = 4 * (gi - 3); pos = (g0_ + 2, g0_ + 3)
        else: g0_ = 4 * (gi - 3); pos = (g0_, g0_ + 2)
        for g_, r in zip(pos, rd): P[g_].mem.append(r)
    barw = {}
    for gi in range(19, len(pg)):
        s = pg[gi][0]; g = P[4 * gi - 1]
        if gi % 18 == 16 and s + 1 < NP3:
            barw[s] = WaitFor(vm=[f"PW{s+1}", f"PB{s+1}"], lg0=True)
            P[4 * gi - 2].sh.append(barw[s]); g.sh.append("s_barrier")
        else: g.sh.append(WaitFor(lg=(f"PA{gi%4}",)))
    def after_barrier(s): return 72 * s + 64
    OSIG = int(os.environ.get("OSIG", "4")); DSIG = int(os.environ.get("DSIG", "13")); OCAP = int(os.environ.get("OCAP", "3"))
    barw[OSIG].vm = tuple(barw[OSIG].vm) + ("OST",)
    P[after_barrier(OSIG) - 6].valu.append(sig_val(3)); P[after_barrier(OSIG) + 5].mem.append((sig_store, None))
    P[after_barrier(OSIG) + 1].sh.append(f"s_cmp_lg_u32 s{S_MIX}, 0"); P[after_barrier(OSIG) + 2].sh += ["s_cbranch_scc1 L_stub_w3", Label("L_ret_w3")]
    barw[DSIG].vm = tuple(barw[DSIG].vm) + ("DST",)
    P[after_barrier(DSIG) - 6].valu.append(sig_val(4)); P[after_barrier(DSIG) + 5].mem.append((sig_store, None))
    P[72*5+1].sh.append(f"s_lshl_b32 s{S_CNT}, s{S_RB}, 11"); P[72*5+2].sh.append(f"s_lshl_b32 s{S_RE}, s{S_KOFF}, 9"); P[72*5+4].sh.append(f"s_add_u32 s{S_RE}, s{S_RE}, s{S_CNT}")
    P[72*5+5].valu += [f"v_and_b32 v{V_PA}, 7, v{V_LANE}", f"v_lshl_add_u32 v{V_PA}, v{V_PA}, 3, s{S_RE}"]
    P[72*6+69].mem.append(poll_load("PL"))
    P[72*7+28].sh.append(WaitFor(vm=("PL",)))
    cv, cs = poll_check(3, "p3")
    P[72*7+29].valu += cv; P[72*7+29].sh += cs[:1]; P[72*7+30].post += cs[1:]
    PQ = DSIG + 1
    P[72*PQ+49].mem.append(poll_load("PL"))
    P[72*(PQ+1)+12].sh.append(WaitFor(vm=("PL",)))
    cv, cs = poll_check(4, "p4")
    P[72*(PQ+1)+13].valu += cv; P[72*(PQ+1)+13].sh += cs[:1]; P[72*(PQ+1)+13].post += cs[1:]
    HINT = int(os.environ.get("HINT", "1"))
    P[72*16 + HINT - 4].valu.append(sig_val(5)); P[72*16 + HINT].mem.append((sig_store, None))
    FD, GG, FXR, TT = 160, 208, 56, 16
    def fin_loads(kind, dst, tag):
        ops = []
        for m in range(3):
            for sp in range(3):
                tm = tmp()
                ops.append(([f"s_add_u32 s{tm}, s{S_FR+sp}, {PART_OFF + kind*PSTRIDE}"],
                            (f"buffer_load_dwordx4 v[{dst+(m*4+sp)*4}:{dst+(m*4+sp)*4+3}], v{V_FL+m}, s[{S_WS}:{S_WS+3}], s{tm} offen sc1", tag)))
        return annotate(ops)
    own_reads = lambda kind, dst, tag: [(f"ds_read_b128 v[{dst+(m*4+3)*4}:{dst+(m*4+3)*4+3}], v{V_OWR} offset:{kind*9216 + m*4096}", tag) for m in range(3)]
    xq = []
    for m in range(3):
        r = V_XO + m
        xq += [f"v_lshl_add_u32 v{r}, s{S_WAVE}, 6, v{V_LANE}"] + ([f"v_add_u32 v{r}, {256*m}, v{r}"] if m else [])
        xq += [f"v_mul_u32_u24 v71, 3641, v{r}", f"v_lshrrev_b32 v71, 16, v71", f"v_mul_u32_u24 v71, {1152-288}, v71", f"v_lshl_add_u32 v{r}, v{r}, 4, v71"]
        if m == 2: xq += [f"v_add_u32 v{r}, s{S_FX1}, v{r}"]
        xq.append(("MEM", [], (f"buffer_load_dwordx4 v[{FXR+4*m}:{FXR+4*m+3}], v{r}, s[{S_XI}:{S_XI+3}], s{S_FX0} offen", "FX")))
    for s in range(1, NP3):
        ops = []
        if s + 2 < NP3:
            w, b = p3_w(s + 2), p3_b(s + 2)
            if s == 7:
                place_mem(P, w, 72 * s, 72 * s + 28); place_mem(P, b, 72 * s + 30, 72 * s + 63); continue
            ops = w[:4] + b[:4] + w[4:8] + b[4:] + w[8:]
        if s == PQ + 1:
            assert s == 15
            place_mem(P, fin_loads(0, FD, "FD") + [([], r) for r in own_reads(0, FD, "FO")], 72 * s + 14, 72 * s + 63); continue
        if ops: place_mem(P, ops, 72 * s - int(os.environ.get('P3E', '0')), 72 * s + int(os.environ.get('P3W', '63')))
    allg = T31.PV + P[72:]
    OT = 96
    def o_item(n, qt, s):
        T = OT + (n % 4) * 8; D = OT + 32 + (n % 4) * 4
        q = []
        for h in range(2):
            o = A_O + ((2 * s + h) * 4 + qt) * 4
            for r in range(4): q.append(f"v_accvgpr_read_b32 v{T+4*h+r}, a{o+r}")
        for i in range(8): q.append(f"v_mul_f32 v{T+i}, v{T+i}, v{V_LS+4+qt}")
        for i in range(4): q.append(f"v_cvt_pk_bf16_f32 v{D+i}, v{T+2*i}, v{T+2*i+1}")
        q.append(("MEM", [f"s_add_u32 s{S_SIG}, s{S_OBASE}, {O_OFF + qt*4096}"], (f"buffer_store_dwordx4 v[{D}:{D+3}], v{V_L16}, s[{S_WS}:{S_WS+3}], s{S_SIG} offen offset:{s*1024}{SCO}", "OST")))
        return q
    pre = xlane_ops("v_add_f32", [V_LS + 5, V_LS + 7], OT + 48) + [f"v_rcp_f32 v{V_LS+4+qt}, v{V_LS+4+qt}" for qt in range(4)]
    n = 0; lim = 64 + after_barrier(OSIG - 1) - 72 + 30
    pre += xq
    q = list(pre); mins = [2] * len(pre)
    for s in range(4):
        for qt in range(4):
            it_ = o_item(n, qt, s); n += 1
            q += it_; mins += [16 * (s + 1) + 4] * len(it_)
    left = fill_valu(allg[:lim], 2, q, mins=mins, cap=OCAP); assert not left, len(left)
    fs = [f"v_add_u32 v{V_FL}, s{S_W1K}, v{V_L16}", f"v_add_u32 v{V_FL+1}, 4096, v{V_FL}", f"v_add_u32 v{V_FL+2}, s{S_VOFF}, v{V_FL}",
          f"v_and_b32 v{V_YW}, 15, v{V_LANE}", f"v_mul_u32_u24 v{V_YW}, 288, v{V_YW}", f"v_lshrrev_b32 v{V_YW+1}, 4, v{V_LANE}",
          f"v_lshl_add_u32 v{V_YW}, v{V_YW+1}, 3, v{V_YW}", f"v_lshl_add_u32 v{V_YW}, s{S_WAVE}, 5, v{V_YW}",
          f"v_lshrrev_b32 v{V_YW+1}, 16, s{S_FX1}", f"v_add_u32 v{V_YW+1}, v{V_YW+1}, v{V_YW}"]
    sal6 = [f"s_lshl_b32 s{S_FL}, s{S_RB}, 3", f"s_and_b32 s{S_T2+32}, s{S_J}, 7", f"s_add_u32 s{S_FL}, s{S_FL}, s{S_T2+32}", f"s_lshl_b32 s{S_FL}, s{S_FL}, 9",
            f"s_add_u32 s{S_FL}, s{S_FL}, {F5_OFF}",
            f"s_lshl_b32 s{S_W0B}, s{S_WAVE}, 7", f"s_add_u32 s{S_W0B}, s{S_W0B}, s{S_FL}", f"s_lshl_b32 s{S_W0B+1}, s{S_KOFF}, 3", f"s_add_u32 s{S_W0B}, s{S_W0B}, s{S_W0B+1}",
            f"s_lshl_b32 s{S_W0B+1}, s{S_KOFF}, 7", f"s_add_u32 s{S_FL}, s{S_FL}, s{S_W0B+1}",
            f"s_add_u32 s{S_W0B+1}, s{S_KOFF}, 1",
            [f"s_cmp_eq_u32 s{S_WAVE}, s{S_KOFF}", f"s_cselect_b32 s{S_W0B+2}, {1 << 30}, 0", f"s_cselect_b32 s{S_W0B+3}, 0, {18432}"],
            f"s_add_u32 s{S_PST}, s{S_PST}, s{S_W0B+2}", f"s_add_u32 s{S_W0B+3}, s{S_W0B+3}, {OWN_LDS}",
            [f"s_cmp_eq_u32 s{S_WAVE}, 0", f"s_cselect_b32 s{S_VOFF}, 8192, {1 << 30}"]]
    g_ = 72 * 6
    for x in sal6:
        while P[g_].sh: g_ += 1
        P[g_].sh += x if isinstance(x, list) else [x]
        g_ += 1
    assert g_ < 72 * 6 + 60
    fs += [f"v_add_u32 v{V_OWN}, s{S_W0B+3}, v{V_L16}", f"v_add_u32 v{V_OWR}, {OWN_LDS}, v{V_FL}"]
    left = fill_valu(P[:72 * 8], 72 * 6 + 60, fs); assert not left
    fs2 = [f"v_mov_b32 v{V_SA}, s{S_W0B}", f"v_min_u32 v{V_PA}, 2, v{V_LANE}", f"v_add_u32 v{V_PA}, s{S_W0B+1}, v{V_PA}", f"v_and_b32 v{V_PA}, 3, v{V_PA}",
           f"v_lshl_add_u32 v{V_PA}, v{V_PA}, 3, s{S_FL}"]
    left = fill_valu(P[:72 * 9], 72 * 8, fs2); assert not left
    def part_item(A, nt, kind, tag):
        a = A(nt, 0)
        q = [f"v_cvt_pk_bf16_f32 v{a+i}, v{a+2*i}, v{a+2*i+1}" for i in range(4)]
        q.append(("MEM", [f"s_add_u32 s{S_SIG}, s{S_PST}, {PART_OFF + kind*PSTRIDE + nt*1024}"], (f"buffer_store_dwordx4 v[{a}:{a+3}], v{V_L16}, s[{S_WS}:{S_WS+3}], s{S_SIG} offen sc1", tag)))
        q.append(("MEM", [], (f"ds_write_b128 v{V_OWN}, v[{a}:{a+3}] offset:{kind*9216 + nt*1024}", None)))
        return q
    for nt in range(9):
        left = fill_valu(P[:72 * DSIG], 72 * 8 + 12 + ((72 * (DSIG - 8) - 30) * nt) // 8, part_item(AD, nt, 0, "DST")); assert not left
    sleft = []
    for nt in range(9):
        sleft += fill_valu(P, 72 * 16 + 8 * (nt + 1) + 4, part_item(AS, nt, 1, "SST"))
    gq = []
    def unpack_sum(src, dst, pk=False):
        q = []
        for i in range(4):
            q += [f"v_lshlrev_b32 v{dst+2*i}, 16, v{src+i}", f"v_and_b32 v{dst+2*i+1}, s{S_THR}, v{src+i}"]
        for sp in range(1, 4):
            T = TT + 8 * (sp % 2)
            for i in range(4):
                q += [f"v_lshlrev_b32 v{T+2*i}, 16, v{src+4*sp+i}", f"v_and_b32 v{T+2*i+1}, s{S_THR}, v{src+4*sp+i}"]
            if pk:
                for i in range(0, 8, 2): q.append(f"v_pk_add_f32 v[{dst+i}:{dst+i+1}], v[{dst+i}:{dst+i+1}], v[{T+i}:{T+i+1}]")
            else:
                for i in range(8): q.append(f"v_add_f32 v{dst+i}, v{dst+i}, v{T+i}")
        return q
    P[72*13+1].post.append(f"s_mov_b32 s{S_THR}, 0xffff0000")
    for m in range(3):
        D = GG + 8 * m; T = FD + 16 * m
        gq += unpack_sum(FD + 16 * m, D, pk=True)
        gq += [f"v_mul_f32 v{T+i}, {f2u(-LOG2E)}, v{D+i}" for i in range(8)]
        gq += [f"v_exp_f32 v{T+i}, v{T+i}" for i in range(8)]
        gq += [f"v_add_f32 v{T+i}, 1.0, v{T+i}" for i in range(8)]
        gq += [f"v_rcp_f32 v{T+i}, v{T+i}" for i in range(8)]
        gq += [f"v_pk_mul_f32 v[{D+i}:{D+i+1}], v[{D+i}:{D+i+1}], v[{T+i}:{T+i+1}]" for i in range(0, 8, 2)]
    gleft = gq
    print("phase3 leftovers: s-part", len(sleft), "gate", len(gleft))
    for T in TL:
        finish_tile(T); emit_gaps(p, T.G)
    if 'finepro' not in ABL:
        stamp(p, 7); stamp_rt(p, 16)
        for s, k in ((3, 8), (6, 9), (9, 10), (13, 11)): P[72 * s - 1].post += stamp_ops(k)
    if 'finep3' in ABL:
        stamp(p, 0)
        for s in range(1, 17): P[72 * (s + 1) - 1].post = [x for x in P[72 * (s + 1) - 1].post if not (isinstance(x, str) and ("s76" in x or "s[76" in x or x == "s_waitcnt lgkmcnt(0)"))] + stamp_ops(s)
    emit_gaps(p, P[72:])
    if 'finep' not in ABL: stamp(p, 12); stamp_rt(p, 17)
    emit_ops(p, sleft)
    XU = 32
    FS = 96
    def s_loads():
        for sal_, op in fin_loads(1, FS, "FS"):
            for s_ in sal_: p(s_)
            p(op[0], op[1])
    p("s_waitcnt lgkmcnt(0)")
    s_loads()
    p.items.append(WaitFor(vm=("FD",)))
    p("s_barrier")
    for t, tag in own_reads(1, FS, "FO"): p(t, tag)
    emit_ops(p, gleft)
    for i in range(12):
        p(f"v_lshlrev_b32 v{XU+2*i}, 16, v{FXR+i}"); p(f"v_and_b32 v{XU+2*i+1}, s{S_THR}, v{FXR+i}")
    if 'finep' not in ABL: stamp(p, 13)
    p(f"s_mov_b32 s{S_CNT}, 0x40000"); p(f"s_add_u32 s{S_PV}, s{S_EP}, 5")
    p.label("L_dcheck")
    p("s_waitcnt vmcnt(0)")
    q_ = [FS + (m * 4 + sp) * 4 + i for m in range(3) for sp in range(3) for i in range(4)]
    p(f"v_max_u32 v{V_PT}, v{q_[0]}, v{q_[1]}"); p(f"v_max_u32 v{V_PT+1}, v{q_[2]}, v{q_[3]}")
    for i in range(4, 36, 2): p(f"v_max3_u32 v{V_PT+(i//2)%2}, v{V_PT+(i//2)%2}, v{q_[i]}, v{q_[i+1]}")
    p(f"v_max_u32 v{V_PT}, v{V_PT}, v{V_PT+1}")
    p(f"v_cmp_eq_u32 vcc, -1, v{V_PT}")
    p("s_cbranch_vccz L_dready")
    p(f"s_cmp_eq_u32 s{S_CNT}, 0x40000"); p("s_cbranch_scc0 L_dagain")
    p(f"s_call_b64 s[{S_RET}:{S_RET+1}], L_spin0")
    p.label("L_dagain")
    s_loads()
    p(f"s_sub_u32 s{S_CNT}, s{S_CNT}, 1"); p(f"s_cmp_lg_u32 s{S_CNT}, 0"); p("s_cbranch_scc1 L_dcheck")
    p("s_waitcnt vmcnt(0)")
    p.label("L_dready")
    if 'finep' not in ABL: stamp(p, 14)
    p("s_waitcnt lgkmcnt(0)")
    for m in range(3):
        D = FD + 8 * m
        for t in unpack_sum(FS + 16 * m, D, pk=True): p(t)
        for i in range(0, 8, 2): p(f"v_pk_mul_f32 v[{D+i}:{D+i+1}], v[{D+i}:{D+i+1}], v[{GG+8*m+i}:{GG+8*m+i+1}]")
        for i in range(4): p(f"v_cvt_pk_bf16_f32 v{D+i}, v{D+2*i}, v{D+2*i+1}")
        for mt in range(2): p(f"ds_write_b64 v{V_YW + (1 if m == 2 else 0)}, v[{D+2*mt}:{D+2*mt+1}] offset:{m*128 + mt*4608}")
    p("s_waitcnt lgkmcnt(0)"); p("s_barrier")
    for m in range(3): p(f"ds_read_b128 v[{128+4*m}:{131+4*m}], v{V_FL} offset:{m*4096}")
    for m in range(3):
        p(f"s_waitcnt lgkmcnt({2-m})")
        D = 96 + 8 * m; T = XU + 8 * m
        for i in range(4):
            p(f"v_lshlrev_b32 v{D+2*i}, 16, v{128+4*m+i}"); p(f"v_and_b32 v{D+2*i+1}, s{S_THR}, v{128+4*m+i}")
        for i in range(0, 8, 2): p(f"v_pk_add_f32 v[{D+i}:{D+i+1}], v[{D+i}:{D+i+1}], v[{T+i}:{T+i+1}]")
        for i in range(4): p(f"v_cvt_pk_bf16_f32 v{D+i}, v{D+2*i}, v{D+2*i+1}")
        p(f"buffer_store_dwordx4 v[{D}:{D+3}], v{V_XO+m}, s[{S_OUT}:{S_OUT+3}], s{S_FX0} offen")
    if STAMP: p("s_waitcnt vmcnt(0)")
    stamp(p, 19); stamp_rt(p, 21)
    if 'dbgout' in ABL:
        p(f"s_cmp_eq_u32 s2, 250"); p(f"s_cselect_b32 s76, 36, 0x1000"); p("s_cmp_eq_u32 s2, 1"); p("s_cselect_b32 s76, 8, s76")
        p(f"s_cmp_eq_u32 s{S_WAVE}, 0"); p("s_cselect_b32 s76, s76, 0x1000"); p("v_mov_b32 v1, s76")
        p(f"s_lshr_b32 s77, s{S_EP}, 8")
        for n, k in enumerate((100, 95, 96, 97, 101)):
            p(f"s_sub_u32 s76, s{k}, s77"); p("s_and_b32 s76, s76, 0xffffff"); p("v_mov_b32 v2, s76")
            p(f"buffer_store_dword v2, v1, s[{S_DBG}:{S_DBG+3}], 0 offen offset:{4*n}")
        for n, (a_, b_) in enumerate(((81, 80), (99, 80))):
            p(f"s_sub_u32 s76, s{a_}, s{b_}"); p("v_mov_b32 v2, s76")
            p(f"buffer_store_dword v2, v1, s[{S_DBG}:{S_DBG+3}], 0 offen offset:{20+4*n}")
    else:
        stamp_dump(p, 70, S_WAVE, 1)
    p.label("L_done"); p("s_endpgm")

    rare = Prog(); p = rare
    for site, var in rare_sites:
        p.label(f"L_rare_stub{site}")
        p(f"s_call_b64 s[{S_RET}:{S_RET+1}], L_rare{var}")
        p(f"s_branch L_rare_ret{site}")
    for name in stubs:
        p.label(f"L_stub_{name}")
        p(f"s_call_b64 s[{S_RET}:{S_RET+1}], L_spin0")
        p(f"s_branch L_ret_{name}")
    for name in ("w2", "w3"):
        p.label(f"L_stub_{name}")
        p("buffer_wbl2 sc1"); p("s_waitcnt vmcnt(0)")
        p(f"s_branch L_ret_{name}")
    p.label("L_spin0")
    p(f"s_mov_b32 s{S_SPIN}, {'0x40' if 'Lno' in ABL else '0x40000'}")
    p.label("L_spin1")
    p(poll_load(None)[0])
    p(f"s_sub_u32 s76, s{S_EP}, s{S_PV}"); p("s_add_u32 s76, s76, 8")
    p("s_waitcnt vmcnt(0)")
    for t in flag_test(V_PT): p(t)
    p(f"v_cmp_le_u32 vcc, s76, v{V_PT}")
    p("s_cbranch_vccz L_spin2")
    p(f"s_sub_u32 s{S_SPIN}, s{S_SPIN}, 1"); p("s_sleep 1"); p(f"s_cmp_lg_u32 s{S_SPIN}, 0"); p("s_cbranch_scc1 L_spin1")
    p.label("L_spin2")
    p(f"s_setpc_b64 s[{S_RET}:{S_RET+1}]")
    rare_items = fix_hazards(rare.items)[0]
    for var in ("0", "1", "Z"):
        par = 1 if var == "Z" else int(var)
        rp = Prog(); p = rp
        p.label(f"L_rare{var}")
        p("s_nop 15")
        Lold = V_LS + (1 - par) * 4
        for qt in range(4):
            rowmax(p, par, qt, V_R + qt)
            p(f"v_log_f32 v{V_R+4}, v{Lold+qt}")
            if BIAS:
                p(f"v_max_f32 v{V_R+qt}, v{V_R+qt}, v{V_R+4}"); p(f"v_add_f32 v{V_R+qt}, {f2u(BIAS)}, v{V_R+qt}"); p(f"v_max_f32 v{V_R+qt}, 0, v{V_R+qt}")
            else: p(f"v_max3_f32 v{V_R+qt}, v{V_R+qt}, v{V_R+4}, 0")
        for t in xlane_ops("v_max_f32", [V_R + q for q in range(4)], V_R + 4): p(t)
        for qt in range(4):
            p(f"v_sub_f32 v{V_R+4+qt}, 0, v{V_R+qt}"); p(f"v_exp_f32 v{V_R+4+qt}, v{V_R+4+qt}")
        for qt in range(4):
            p(f"v_mul_f32 v{Lold+qt}, v{Lold+qt}, v{V_R+4+qt}")
            if var != "Z":
                for r in range(4): p(f"v_sub_f32 v{V_NM+4*qt+r}, v{V_NM+4*qt+r}, v{V_R+qt}")
            for pp in ((par,) if var == "Z" else (0, 1)):
                for kt in range(4):
                    for r in range(4): p(f"v_sub_f32 v{Sreg(pp,kt,qt)+r}, v{Sreg(pp,kt,qt)+r}, v{V_R+qt}")
            for dt in range(8):
                o = A_O + (dt * 4 + qt) * 4
                for r in range(4): p(f"v_accvgpr_read_b32 v{V_E+r}, a{o+r}")
                for r in range(4): p(f"v_mul_f32 v{V_E+r}, v{V_E+r}, v{V_R+4+qt}")
                for r in range(4): p(f"v_accvgpr_write_b32 a{o+r}, v{V_E+r}")
        for tau in range(64):
            p(op_exp(par, tau))
            if tau % 4 >= 2: p(op_add(par, tau))
            if tau % 2 == 1: p(op_cvt(par, tau))
        for qt in (0, 2):
            p(l_mfma(par, qt, 0)); p(l_mfma(par, qt, 1)); p(op_ladd(par, qt))
        if var != "Z":
            for tau in range(4): p(op_exp(1 - par, tau))
            p(op_cvt(1 - par, 1))
        p("s_nop 3")
        p(f"s_setpc_b64 s[{S_RET}:{S_RET+1}]")
        rare_items += fix_hazards(rp.items)[0]

    resolve_waits(pro.items + body.items + body.items + tail.items)
    pi = lower_waits(pro.items); bi = lower_waits(body.items); ti = lower_waits(tail.items)
    pi, a1 = fix_hazards(pi, verbose=False, name="pro")
    bi2, a2 = fix_hazards(bi, prev=bi, verbose=True, name="body")
    bi3, a3 = fix_hazards(bi2, prev=pi, verbose=True, name="body-entry")
    ti, a4 = fix_hazards(ti, prev=bi3, verbose=True, name="tail")
    wc = WaitChecker(); wc.run(pi + bi3 + bi3 + ti)
    for e in wc.errors[:10]: print("WAITCHECK", e)
    assert check_needs(pi + bi3 + bi3 + ti) == 0
    for it in pi + bi3 + ti:
        if isinstance(it, Ins): it.text = it.text.split(' ; need[')[0]
    return pi + bi3 + ti + rare_items

if __name__ == "__main__":
    import sys
    HEADER = open("cdna_kernels/" + NAME + ".s.ref").read().split("; Override")[0]
    items = gen_mega()
    k = NAME + "_kernel"
    s = HEADER + f"; @launch grid=(256,1,1) block=(256,1,1) lds={LDS_BYTES}\n"
    s += '.amdgcn_target "amdgcn-amd-amdhsa--gfx950"\n' + kernel_text(k, items, 512, 256)
    s += "L_code_end:\n    s_endpgm\n" + '.section .rodata,"a"\n.p2align 6\n' + kd_text(k, 512, 256)
    open(sys.argv[1], "w").write(s)
```

```python
from common import *
import math
LDS_BYTES = 160 * 1024
LOG2E = 1.4426950408889634
QSCALE = LOG2E / math.sqrt(128.0)
GC1 = -2.0 * math.sqrt(2.0 / math.pi) * LOG2E
GC2 = GC1 * 0.044715
CUT = int(os.environ.get("CUT", "30"))
BIAS = float(126 - CUT) if CUT else 0.0
THRESH = 2.0 ** (int(os.environ.get("THR", "64")) - BIAS)
ABL = os.environ.get('ABL', '')
NTW = "" if "nontw" in ABL else " nt"
NTQ = "" if "nontq" in ABL else " nt"
NTT = '' if 'nontt' in ABL else ' nt'
NTX = " nt" if "ntx" in ABL else ""
NTKV = " nt" if 'ntkv' in ABL else ""
WS_BYTES = 128 << 20
WPO_OFF = WP_OFF
WPD_OFF = WP_OFF + 4096 * 1152
FLAG_OFF = (100 << 20) if 'farflag' in ABL else (5 << 19)
SCH = ' sc1' if 'sch' in ABL else ''
SCO = ' sc1' if 'sco' in ABL else ''
LSC = '' if 'nolsc' in ABL else ' sc1'
P3NT = ' nt' if 'p3nt' in ABL else ''
PSTRIDE = 64 * 4 * 4 * 9216

S_HF = 4
S_WG, S_WU, S_WQ, S_K, S_V, S_WS, S_DBG, S_XI = 8, 12, 16, 20, 24, 28, 32, 36
S_WAVE, S_RB, S_J = 40, 41, 42
S_RE = 43
S_T0, S_T1, S_T2 = 44, 45, 46
S_KOFF, S_VOFF = 47, 48
S_W1K = 49
S_RET = 50
S_CNT = 52
S_W3K = 53
S_BF, S_BH, S_BQ = 54, 55, 56
S_RS, S_RD = 57, 58
S_RNW = 59
S_HHALF = 60
S_THR = 61
S_OBASE = 62
S_XB = 63
S_PTR = 64
S_W6K = 3
S_PV = 79
S_SIG = 78
S_SPIN = 75
S_EP = 74
S_FO = 73
S_MIX = 72
S_XCC = 69
S_EP2 = 68
S_PW, S_PW2, S_PB0, S_PB1 = 54, 55, 56, 57
S_W9K = 53
S_PST = 58
S_FL = 59
S_FX0, S_FX1 = 60, 63
S_OUT = 16

V_SA = 0
V_L16 = 1
V_WF, V_WQ = 2, 3
V_RA = 4
V_RH = 8
V_QP = 10
V_C1, V_C2 = 12, 13
V_KD, V_VD = 14, 15
V_AF = 16
V_T = 52
V_HO = 68
V_KA = 76
V_TA = 76
V_VA = 80
V_RQ = 88
V_ACC = 96
V_X = 224
WSLOT = [128 * 1024, 80 * 1024, 40 * 1024, 104 * 1024]
def wbase(slot):
    b = WSLOT[slot]
    return (0, b - 40 * 1024) if b < 104 * 1024 else (1, b - 104 * 1024)
def xreg(ks, mt):
    f = ks * 4 + mt
    return f"a[{4*f}:{4*f+3}]" if f < 64 else f"v[{V_X+4*(f-64)}:{V_X+4*(f-64)+3}]"

A_Q, A_KF, A_VF, A_O = 0, 64, 96, 128
V_S = 96
V_P0 = 224
V_P1 = 16
V_NM = 32
V_LS = 48
V_E = 56
V_CK = 9
V_ONE = 10
V_R = 64
V_LD = 72
V_RPS = 88
V_RPG, V_RPL = 2, 3
V_PT = 4
V_SV = 6
V_PA = 8
V_LANE = 2
KS = lambda T: (T + 3) % 4
VS = lambda T: (T + 1) % 4
P3_SLOT = [0, 80 * 1024, 116 * 1024]
AD = lambda nt, mt: 160 + (nt * 2 + mt) * 4
AS = lambda nt, mt: (96 + (nt * 2 + mt) * 4) if nt < 8 else (240 + mt * 4)
P3_AR = [32, 40, 88, 232]
V_PWA = [1, 76, 77]
V_XO = 68
V_YW = 78
V_FL = 80
S_FR = 64
V_OWN = 84
V_OWR = 85
OWN_LDS = 40 * 1024
FX_OFF = 16384
F5_OFF = 32768
S_W0B = 12

from k12 import Gap, emit_gaps, slots_of, fill_valu

def emit_ops(p, ops):
    for op in ops:
        if isinstance(op, tuple):
            for t in op[1]: p(t)
            p(op[2][0], op[2][1])
        else: p(op)

def annotate(ops):
    out = []; cur = []
    for sal, (txt, tag) in ops:
        if sal: cur = list(sal)
        out.append((sal, (txt + " ; need[" + "|".join(cur) + "]", tag)))
    return out

def check_needs(items):
    last = {}; bad = 0
    for it in items:
        if not isinstance(it, Ins): continue
        if "; need[" in it.text:
            for t in it.text.split("; need[")[1].rstrip("]").split("|"):
                if not t: continue
                d = Ins(t).wr[0]
                if last.get(d) != t:
                    bad += 1; print("NEEDCHECK:", it.text, "<- last writer", last.get(d))
        if it.kind == "salu":
            for r in it.wr: last[r] = it.text
    return bad

def gen_mega():
    pro = Prog(); p = pro
    stubs = []
    def poll_check(val, name):
        stubs.append(name)
        return (flag_test(V_PT) + [f"v_cmp_le_u32 vcc, {8-val}, v{V_PT}"],
                [f"s_add_u32 s{S_PV}, s{S_EP}, {val}", f"s_cbranch_vccnz L_stub_{name}", Label(f"L_ret_{name}")])
    def flag_test(r):
        return [f"v_and_b32 v{r}, 0xffffff87, v{r}", f"v_xor_b32 v{r+1}, s{S_EP2}, v{r+1}", f"v_subrev_u32 v{r}, s{S_PV}, v{r}",
                f"v_min_u32 v{r+1}, 1, v{r+1}", f"v_lshl_or_b32 v{r}, v{r+1}, 8, v{r}"]
    poll_load = lambda tag: (f"buffer_load_dwordx2 v[{V_PT}:{V_PT+1}], v{V_PA}, s[{S_WS}:{S_WS+3}], s{S_FO} offen sc1", tag)
    sig_store = f"buffer_store_dwordx2 v[{V_SV}:{V_SV+1}], v{V_SA}, s[{S_WS}:{S_WS+3}], s{S_FO} offen sc1"
    sig_val = lambda val: f"v_add_u32_e64 v{V_SV}, s{S_XCC}, {val}"

    p("s_cmp_ge_u32 s2, 256"); p("s_cbranch_scc1 L_done")
    stamp_rt(p, 20); stamp(p, 0)
    LX = 96
    p(f"s_load_dwordx2 s[{S_XI}:{S_XI+1}], s[0:1], {ARG['x']}")
    p(f"s_load_dwordx4 s[68:71], s[0:1], {ARG['dbg']}")
    p(f"s_getpc_b64 s[{S_K}:{S_K+1}]")
    p.label("L_pc0")
    p(f"s_and_b32 s{S_K+1}, s{S_K+1}, 0xffff"); p(f"s_mov_b32 s{S_K+2}, L_code_end-L_pc0"); p(f"s_mov_b32 s{S_K+3}, 0x20000")
    p(f"s_lshr_b32 s{S_T1}, s2, 3"); p(f"s_lshl_b32 s{S_T0}, s{S_T1}, 12"); p("v_lshlrev_b32 v16, 4, v0")
    p(f"buffer_load_dwordx4 v[160:163], v16, s[{S_K}:{S_K+3}], s{S_T0} offen", "CODE")
    p(f"s_and_b32 s{S_CNT}, s2, 7"); p(f"s_lshl_b32 s{S_CNT}, s{S_CNT}, 5"); p(f"s_or_b32 s{S_CNT}, s{S_CNT}, s{S_T1}")
    p("v_lshrrev_b32 v18, 5, v0"); p("v_and_b32 v19, 31, v0"); p(f"s_mul_i32 s{S_T0}, s{S_CNT}, 9216")
    p("v_mul_u32_u24 v20, 1152, v18"); p("v_lshl_add_u32 v20, v19, 4, v20")
    p(f"s_mov_b32 s{S_XI+2}, {XN_BYTES}"); p(f"s_mov_b32 s{S_XI+3}, 0x20000")
    p("s_waitcnt lgkmcnt(0)")
    for m in range(3):
        p(f"buffer_load_dwordx4 v[{LX+4*m}:{LX+4*m+3}], v20, s[{S_XI}:{S_XI+3}], s{S_T0} offen offset:{m*384}{NTX}", "LX")
    p(f"s_load_dwordx2 s[{S_WQ}:{S_WQ+1}], s[0:1], {ARG['wq']}")
    p(f"s_load_dwordx4 s[72:75], s[0:1], {ARG['wg']}")
    p(f"s_load_dwordx4 s[64:67], s[0:1], {ARG['k']}")
    p("s_memrealtime s[76:77]")
    p("v_lshrrev_b32 v16, 6, v0"); p("v_and_b32 v17, 63, v0"); p("v_cmp_gt_u32 vcc, 24, v19")
    p(f"v_readfirstlane_b32 s{S_WAVE}, v16")
    srd(p, S_DBG, 68, 256); srd(p, S_WS, 70, WS_BYTES)
    if 'tlb' in ABL:
        p("v_min_u32 v37, 41, v17"); p("v_lshlrev_b32 v37, 21, v37"); p("v_mov_b32 v38, 128")
        p(f"buffer_load_dword v165, v37, s[{S_WS}:{S_WS+3}], 0 offen", "TCH")
        p(f"buffer_load_dword v166, v38, s[{S_DBG}:{S_DBG+3}], 0 offen", "TCH")
    p(f"s_mov_b64 s[{S_RET}:{S_RET+1}], vcc")
    p(f"s_and_b32 s{S_T0}, s2, 7")
    p(f"s_and_b32 s{S_RB}, s{S_T1}, 3"); p(f"s_lshr_b32 s{S_T1}, s{S_T1}, 2")
    p(f"s_and_b32 s{S_T2}, s{S_T0}, 1"); p(f"s_lshl_b32 s{S_T2}, s{S_T2}, 2"); p(f"s_add_u32 s{S_RB}, s{S_RB}, s{S_T2}")
    p(f"s_lshr_b32 s{S_T0}, s{S_T0}, 1"); p(f"s_lshl_b32 s{S_J}, s{S_T0}, 3"); p(f"s_add_u32 s{S_J}, s{S_J}, s{S_T1}")
    p(f"s_mov_b32 s{S_WQ+2}, {576*8192}"); p(f"s_mov_b32 s{S_WQ+3}, 0x20000")
    p(f"v_lshlrev_b32 v{V_L16}, 4, v17"); p("v_mov_b32 v71, 0")
    p("s_waitcnt lgkmcnt(0)")
    p(f"s_lshl_b32 s{S_T1}, s2, 2"); p(f"s_add_u32 s{S_T1}, s{S_T1}, s{S_WAVE}"); p(f"s_cmp_lg_u32 s{S_T1}, 1"); p("s_cbranch_scc1 L_noleader")
    p("s_lshl_b64 s[76:77], s[76:77], 8"); p("s_or_b32 s76, s76, 128"); p("v_mov_b32 v30, s76"); p("v_mov_b32 v31, s77")
    p.raw(f"    buffer_store_dwordx2 v[30:31], v71, s[{S_DBG}:{S_DBG+3}], 0 offen sc1")
    p.label("L_noleader")
    p("v_lshrrev_b32 v20, 4, v17"); p("v_and_b32 v22, 15, v17")
    p("v_lshlrev_b32 v23, 2, v20"); p("v_xor_b32 v23, v23, v22"); p("v_lshlrev_b32 v24, 13, v20"); p(f"v_lshl_add_u32 v{V_WQ}, v23, 4, v24")
    p(f"s_mul_i32 s{S_W6K}, s{S_WAVE}, 6144")
    p(f"s_mul_i32 s{S_BQ}, s{S_WAVE}, {24*8192}"); p(f"s_lshl_b32 s{S_T0}, s{S_J}, 8"); p(f"s_add_u32 s{S_BQ}, s{S_BQ}, s{S_T0}")

    stages = [("q", 0, sub, 0) for sub in range(6)] + [("h", 0, sub, 0) for sub in range(3)]
    for t in range(4): stages += [("f", t, sub, (t + 1) % 2) for sub in range(3)]
    NST = len(stages)
    tmpsel = [0]
    def tmp():
        tmpsel[0] ^= 1
        return (S_T0, S_T1)[tmpsel[0]]
    def w_dma(st):
        kind, t, sub, buf = stages[st]; slot = st % 4
        ops = []
        if kind == "q":
            for i in range(6):
                tm = tmp()
                sal = [f"s_add_u32 s{tm}, s{S_BQ}, {(sub * 96 + 4 * i) * 8192}", f"s_add_u32 m0, s{S_W6K}, {WSLOT[slot] + i*1024}"]
                ops.append((sal, (f"buffer_load_dwordx4 v{V_WQ}, s[{S_WQ}:{S_WQ+3}], s{tm} offen{NTQ} lds", f"W{st}")))
            return annotate(ops)
        for reg in range(2):
            for i in range(3):
                base, srdn = (S_BH if kind == "h" else S_BF), (S_WG, S_WU)[reg]
                imm = (sub * 192 + 16 * i) * 9216 + t * 64
                tm = tmp()
                sal = [f"s_add_u32 s{tm}, s{base}, {imm}", f"s_add_u32 m0, s{S_W3K}, {WSLOT[slot] + reg*12288 + i*1024}"]
                ops.append((sal, (f"buffer_load_dwordx4 v{V_WF}, s[{srdn}:{srdn+3}], s{tm} offen{NTW} lds", f"W{st}")))
        return annotate(ops)
    def x_loads(k0, k1):
        ops = []
        for ks in range(k0, k1):
            for mt in range(4):
                ops.append(([f"s_add_u32 s{S_RD}, s{S_XB}, {ks*4096}"] if mt == 0 else [],
                            (f"buffer_load_dwordx4 {xreg(ks, mt)}, v{V_L16}, s[{S_WS}:{S_WS+3}], s{S_RD} offen offset:{mt*1024} sc1", f"X{ks//3}")))
        return annotate(ops)
    def kv_dma(which, tile_slot, soff, add):
        ops = []
        for t in range(4):
            tm = tmp()
            base = (0 if which == "K" else 65536) + tile_slot * 16384 + t * 4096
            srdn = S_K if which == "K" else S_V
            if soff is None: sal = [f"s_mov_b32 s{tm}, {add + t*4096}"]
            else: sal = [f"s_add_u32 s{tm}, s{soff}, {add + t*4096}"]
            sal.append(f"s_add_u32 m0, s{S_W1K}, {base}")
            ops.append((sal, (f"buffer_load_dwordx4 v{V_KD if which == 'K' else V_VD}, s[{srdn}:{srdn+3}], s{tm} offen{NTKV} lds", f"{which}{tile_slot}")))
        return annotate(ops)
    def issue(ops):
        for sal, op in ops:
            for s in reversed(sal): p(s)
            p(op[0], op[1])
    PV_ = os.environ.get('PROV', 'D')
    srd(p, S_WG, 72, 576 * 9216); srd(p, S_WU, 74, 576 * 9216)
    def w3(st):
        for i in range(8):
            tm = tmp()
            p(f"s_add_u32 m0, s{S_RNW}, {WSLOT[st % 4] + i*1024}"); p(f"s_add_u32 s{tm}, s{S_RE}, {(st * 96 + 4 * i) * 8192}")
            p(f"buffer_load_dwordx4 v{V_WQ}, s[{S_WQ}:{S_WQ+3}], s{tm} offen{NTQ} lds", f"W{st}")
    if 'latebad' in ABL:
        srd(p, S_V, 72, 0); p("v_mov_b32 v36, 0"); p(f"s_mov_b32 s{S_RS}, 0")
    p(f"s_cmp_eq_u32 s{S_WAVE}, 0"); p("s_cbranch_scc1 L_w0a")
    p(f"s_sub_u32 s{S_T2}, s{S_WAVE}, 1"); p(f"s_lshl_b32 s{S_RNW}, s{S_T2}, 13"); p(f"s_lshl_b32 s{S_RE}, s{S_T2}, 18"); p(f"s_add_u32 s{S_RE}, s{S_RE}, s{S_T0}")
    w3(0)
    p(f"s_lshr_b32 s{S_T0}, s2, 3"); p(f"s_mul_i32 s{S_T0}, s{S_T0}, 3"); p(f"s_add_u32 s{S_T0}, s{S_T0}, s{S_T2}")
    p(f"s_and_b32 s{S_T1}, s{S_T0}, 1"); p(f"s_cmp_eq_u32 s{S_T1}, 0")
    p(f"s_cselect_b32 s{S_V}, s{S_WG}, s{S_WU}"); p(f"s_cselect_b32 s{S_V+1}, s{S_WG+1}, s{S_WU+1}"); p(f"s_mov_b32 s{S_V+2}, {576*9216}"); p(f"s_mov_b32 s{S_V+3}, 0x20000")
    p(f"s_lshr_b32 s{S_T0}, s{S_T0}, 1"); p(f"s_mul_i32 s{S_RS}, s{S_T0}, {12*9216}")
    p(f"s_lshr_b32 s{S_T2}, s{S_J}, 3"); p(f"s_mul_i32 s{S_T2}, s{S_T2}, 2304"); p(f"s_add_u32 s{S_RS}, s{S_RS}, s{S_T2}")
    p(f"s_sub_u32 s{S_T1}, 384, s{S_V}"); p(f"s_sub_u32 s{S_T1}, s{S_T1}, s{S_T2}"); p(f"s_and_b32 s{S_T1}, s{S_T1}, 1023"); p(f"s_add_u32 s{S_RS}, s{S_RS}, s{S_T1}")
    p("v_min_u32 v36, 35, v17"); p("v_mul_u32_u24 v27, 43, v36"); p("v_lshrrev_b32 v27, 7, v27")
    p(f"v_mul_u32_u24 v27, {9216 - 3072}, v27"); p("v_lshl_add_u32 v36, v36, 10, v27")
    if 'latebad' not in ABL: p(f"buffer_load_dword v164, v36, s[{S_V}:{S_V+3}], s{S_RS} offen", "TCH")
    p.label("L_w0a")
    p("v_lshrrev_b32 v26, 3, v17"); p("v_and_b32 v27, 3, v26"); p("v_lshrrev_b32 v26, 2, v26"); p("v_and_b32 v28, 7, v17")
    p("v_lshl_add_u32 v27, v27, 4, v28"); p("v_lshlrev_b32 v27, 4, v27"); p("v_lshl_add_u32 v26, v26, 12, v27")
    p(f"s_lshr_b32 s{S_T0}, s{S_CNT}, 3"); p(f"s_mul_i32 s{S_RD}, s{S_T0}, 73728")
    p(f"s_and_b32 s{S_T1}, s{S_CNT}, 6"); p(f"s_lshl_b32 s{S_T1}, s{S_T1}, 9"); p(f"s_add_u32 s{S_RD}, s{S_RD}, s{S_T1}")
    p(f"s_and_b32 s{S_T1}, s{S_CNT}, 1"); p(f"s_lshl_b32 s{S_T1}, s{S_T1}, 7"); p(f"s_add_u32 s{S_RD}, s{S_RD}, s{S_T1}")
    p(f"s_mov_b32 s{S_FO}, {FLAG_OFF}")
    p(f"s_getreg_b32 s{S_XCC}, hwreg(HW_REG_XCC_ID, 0, 4)"); p(f"s_lshl_b32 s{S_XCC}, s{S_XCC}, 3")
    p(f"s_lshl_b32 s{S_T0}, s{S_T0}, 9"); p(f"s_and_b32 s{S_T1}, s{S_CNT}, 7"); p(f"s_lshl_b32 s{S_T1}, s{S_T1}, 3"); p(f"s_add_u32 s{S_T0}, s{S_T0}, s{S_T1}"); p(f"s_add_u32 s{S_T0}, s{S_T0}, {FX_OFF}")
    p(f"v_mov_b32 v31, s{S_T0}")
    p(f"s_lshl_b32 s{S_T0}, s{S_RB}, 11"); p(f"s_and_b32 s{S_T1}, s{S_J}, 24"); p(f"s_lshl_b32 s{S_T1}, s{S_T1}, 6"); p(f"s_add_u32 s{S_T1}, s{S_T1}, s{S_T0}")
    p(f"v_lshl_add_u32 v{V_TA}, v28, 3, s{S_T1}")
    p(f"s_and_b32 s{S_T2}, s{S_J}, 7"); p(f"s_lshl_b32 s{S_T2}, s{S_T2}, 3"); p(f"s_add_u32 s{S_T1}, s{S_T1}, s{S_T2}")
    p(f"v_writelane_b32 v31, s{S_T1}, 1")
    p(f"s_cmp_eq_u32 s{S_WAVE}, 0"); p(f"s_cselect_b32 s{S_T1}, s{S_T1}, {1 << 30}"); p(f"v_mov_b32 v{V_SA}, s{S_T1}")
    p(f"s_add_u32 s{S_T0}, s{S_T0}, {FX_OFF}"); p(f"v_lshl_add_u32 v30, v28, 3, s{S_T0}"); p("v_and_b32 v27, 24, v17"); p("v_lshl_add_u32 v30, v27, 6, v30")
    p(f"s_lshl_b32 s{S_T0}, s{S_RB}, 2"); p(f"s_add_u32 s{S_T0}, s{S_T0}, s{S_WAVE}")
    p(f"s_mul_i32 s{S_XB}, s{S_T0}, 73728"); p(f"s_lshl_b32 s{S_OBASE}, s{S_T0}, 14")
    if 'finepro' in ABL: stamp(p, 2)
    F = 112
    pr = lambda r: f"v[{r}:{r+1}]"
    p(f"s_mov_b32 s{S_T2}, 0xffff0000")
    for i in range(4): p(f"v_mov_b32 v{140+i}, 0")
    p("v_lshlrev_b32 v25, 7, v19"); p("v_lshl_add_u32 v25, v18, 4, v25")
    p(f"s_cmp_eq_u32 s{S_WAVE}, 0"); p("s_cbranch_scc0 L_w0b")
    nt_ = 2 if 'tlb' in ABL else 0
    p.raw(f"    s_waitcnt vmcnt({nt_})")
    p.label("L_w0b")
    p(f"s_waitcnt vmcnt({9 + nt_})")
    p(f"buffer_load_dwordx2 v[72:73], v71, s[{S_DBG}:{S_DBG+3}], 0 offen sc1", "EP")
    if 'finepro' in ABL: stamp(p, 3)
    for i in range(12):
        p(f"v_lshlrev_b32 v{F+2*i}, 16, v{LX+i}"); p(f"v_and_b32 v{F+2*i+1}, s{S_T2}, v{LX+i}")
    for i in range(6): p(f"v_pk_add_f32 {pr(144+2*i)}, {pr(F+4*i)}, {pr(F+4*i+2)}")
    for i in range(3): p(f"v_pk_add_f32 {pr(144+4*i)}, {pr(144+4*i)}, {pr(146+4*i)}")
    p(f"v_pk_add_f32 {pr(144)}, {pr(144)}, {pr(148)}")
    p(f"s_mov_b64 exec, s[{S_RET}:{S_RET+1}]")
    p(f"v_pk_add_f32 {pr(140)}, {pr(144)}, {pr(152)}")
    p("s_mov_b64 exec, -1")
    def reduce32(r, t):
        p(f"v_add_f32 v{r}, v{r}, v{r+1}")
        for mod in ("quad_perm:[1,0,3,2]", "quad_perm:[2,3,0,1]", "row_half_mirror", "row_mirror"):
            p(f"v_add_f32_dpp v{r}, v{r}, v{r} {mod} row_mask:0xf bank_mask:0xf")
        p(f"v_mov_b32 v{t}, v{r}"); p(f"v_permlane16_swap_b32 v{r}, v{t}"); p(f"v_add_f32 v{r}, v{r}, v{t}")
    reduce32(140, 141)
    p(f"v_mul_f32 v140, {f2u(-1.0/576)}, v140")
    for i in range(12): p(f"v_pk_add_f32 {pr(168+2*i)}, {pr(F+2*i)}, {pr(140)} op_sel_hi:[1,0]")
    p(f"v_cvt_pk_bf16_f32 v140, v140, v140")
    for i in range(2): p(f"v_pk_mul_f32 {pr(144+2*i)}, {pr(168+2*i)}, {pr(168+2*i)}")
    p(f"v_and_b32 v140, s{S_T2}, v140")
    for i in range(2, 12): p(f"v_pk_fma_f32 {pr(144+2*(i%2))}, {pr(168+2*i)}, {pr(168+2*i)}, {pr(144+2*(i%2))}")
    p(f"s_mov_b64 exec, s[{S_RET}:{S_RET+1}]")
    p(f"v_pk_add_f32 {pr(142)}, {pr(144)}, {pr(146)}")
    p("s_mov_b64 exec, -1")
    red = Prog(); p_ = p; p = red
    reduce32(142, 143)
    p(f"v_mul_f32 v142, {f2u(1.0/576)}, v142")
    def rnd(r):
        p(f"v_cvt_pk_bf16_f32 v{r}, v{r}, v{r}"); p(f"v_and_b32 v{r}, s{S_T2}, v{r}")
    rnd(142)
    p(f"v_add_f32 v142, {f2u(1e-5)}, v142"); rnd(142)
    p("v_sqrt_f32 v142, v142"); rnd(142)
    p("v_rcp_f32 v143, v142"); p("v_fma_f32 v144, -v142, v143, 1.0"); p("v_fma_f32 v142, v144, v143, v143")
    p = p_
    oth = [f"v_pk_add_f32 {pr(F+2*i)}, {pr(F+2*i)}, {pr(140)} op_sel_hi:[1,0]" for i in range(12)]
    oth += [f"v_cvt_pk_bf16_f32 v{F+2*i+1}, v{F+2*i}, v{F+2*i+1}" for i in range(12)]
    for i in range(12): oth += [f"v_lshlrev_b32 v{F+2*i}, 16, v{F+2*i+1}", f"v_and_b32 v{F+2*i+1}, s{S_T2}, v{F+2*i+1}"]
    for it in red.items:
        p.items.append(it)
        for t in oth[:2]: p(t)
        oth = oth[2:]
    for t in oth: p(t)
    for i in range(12): p(f"v_pk_mul_f32 {pr(F+2*i)}, {pr(F+2*i)}, {pr(142)} op_sel_hi:[1,0]")
    for i in range(12): p(f"v_cvt_pk_bf16_f32 v{LX+i}, v{F+2*i}, v{F+2*i+1}")
    p(f"s_mov_b64 exec, s[{S_RET}:{S_RET+1}]")
    for m in range(3): p(f"ds_write_b128 v25, v[{LX+4*m}:{LX+4*m+3}] offset:{m*24*128}")
    p("s_mov_b64 exec, -1")
    p("s_waitcnt lgkmcnt(0)"); p("s_barrier")
    p(f"s_cmp_lg_u32 s{S_WAVE}, 0"); p("s_cbranch_scc1 L_noxs")
    for m in range(9): p(f"ds_read_b128 v[{LX+4*m}:{LX+4*m+3}], v{V_L16} offset:{m*1024}")
    for m in range(9):
        p(f"s_waitcnt lgkmcnt({8-m})")
        p(f"buffer_store_dwordx4 v[{LX+4*m}:{LX+4*m+3}], v26, s[{S_WS}:{S_WS+3}], s{S_RD} offen sc1", "XS")
        if m < 8: p(f"s_add_u32 s{S_RD}, s{S_RD}, 8192")
    def ep_wait(sfx):
        p(f"s_mov_b32 s{S_SPIN}, 0x40000")
        p.label(f"L_eppoll{sfx}")
        p(f"v_readfirstlane_b32 s{S_EP}, v72"); p(f"v_readfirstlane_b32 s{S_EP2}, v73")
        p(f"s_cmp_lg_u32 s{S_EP}, 0"); p(f"s_cbranch_scc1 L_epok{sfx}")
        p.raw(f"    buffer_load_dwordx2 v[72:73], v71, s[{S_DBG}:{S_DBG+3}], 0 offen sc1")
        p.raw("    s_waitcnt vmcnt(0)")
        p(f"s_sub_u32 s{S_SPIN}, s{S_SPIN}, 1"); p(f"s_cmp_lg_u32 s{S_SPIN}, 0"); p(f"s_cbranch_scc1 L_eppoll{sfx}")
        p.label(f"L_epok{sfx}")
    if 'finepro' in ABL: stamp(p, 4)
    p("s_waitcnt vmcnt(0)")
    ep_wait("a")
    p(f"s_add_u32 s{S_T0}, s{S_XCC}, s{S_EP}"); p(f"s_add_u32 s{S_PV}, s{S_EP}, 1")
    p(f"v_add_u32_e64 v32, s{S_T0}, 1"); p("v_mov_b32 v33, v73")
    p(f"buffer_store_dwordx2 v[32:33], v31, s[{S_WS}:{S_WS+3}], s{S_FO} offen sc1")
    if 'wdelay' in ABL: p("s_barrier")
    if 'finepro' in ABL: stamp(p, 5)
    p(f"s_mov_b32 s{S_SPIN}, 0x40000")
    p.label("L_xpoll")
    p(f"buffer_load_dwordx2 v[34:35], v30, s[{S_WS}:{S_WS+3}], s{S_FO} offen sc1")
    p("s_waitcnt vmcnt(0)")
    for t in flag_test(34): p(t)
    p("v_cmp_le_u32 vcc, 7, v34")
    p("s_cbranch_vccz L_xready")
    p(f"s_sub_u32 s{S_SPIN}, s{S_SPIN}, 1"); p(f"s_cmp_lg_u32 s{S_SPIN}, 0"); p("s_cbranch_scc1 L_xpoll")
    p("s_branch L_xready")
    p.label("L_noxs")
    if 'finepro' in ABL: stamp(p, 4)
    if 'wdelay' in ABL: p("s_barrier")
    w3(1)
    if PV_ == 'D': w3(2)
    if 'finepro' in ABL: stamp(p, 5)
    p.label("L_xready")
    p("s_barrier")
    if 'finepro' in ABL: stamp(p, 6)
    issue(x_loads(0, 3))
    p("v_lshrrev_b32 v18, 2, v17"); p("v_and_b32 v19, 3, v17"); p("v_and_b32 v21, 3, v18")
    p(f"s_lshl_b32 s{S_W1K}, s{S_WAVE}, 10")
    p("v_lshl_add_u32 v23, v20, 3, v21"); p("v_lshlrev_b32 v24, 8, v23"); p("v_lshl_add_u32 v24, v19, 4, v24"); p(f"v_add_u32 v24, {40*1024}, v24")
    for sg_ in range(4):
        p(f"v_xor_b32 v25, {sg_}, v21"); p(f"v_lshl_add_u32 v{V_RQ+sg_}, v25, 6, v24"); p(f"v_add_u32 v{V_RQ+4+sg_}, {64*1024}, v{V_RQ+sg_}")
    p("v_lshlrev_b32 v23, 6, v23")
    p("v_and_b32 v24, 1, v20"); p("v_lshlrev_b32 v24, 5, v24")
    p("v_lshl_add_u32 v25, v19, 3, v23")
    p(f"v_add_u32 v{V_RA}, v25, v24"); p(f"v_add_u32 v{V_RA}, {40*1024}, v{V_RA}")
    p(f"v_xor_b32 v{V_RA+1}, 32, v{V_RA}")
    p(f"v_add_u32 v{V_RA+2}, {64*1024}, v{V_RA}"); p(f"v_add_u32 v{V_RA+3}, {64*1024}, v{V_RA+1}")
    p(f"s_and_b32 s{S_T2}, s{S_J}, 1"); p(f"s_lshl_b32 s{S_T0}, s{S_T2}, 5")
    p(f"v_xor_b32 v{V_RH}, s{S_T0}, v{V_RA}"); p(f"v_add_u32 v{V_RH+1}, {64*1024}, v{V_RH}")
    p("v_lshrrev_b32 v23, 5, v17"); p("v_lshlrev_b32 v23, 1, v23"); p("v_xor_b32 v23, v23, v19")
    p(f"v_mul_u32_u24 v24, 9216, v18"); p(f"v_lshl_add_u32 v{V_WF}, v23, 4, v24")
    p(f"v_mov_b32 v{V_C1}, {f2u(GC1)}"); p(f"v_mov_b32 v{V_C2}, {f2u(GC2)}")
    p(f"s_mul_i32 s{S_W3K}, s{S_WAVE}, 3072")
    p(f"s_mul_i32 s{S_BH}, s{S_WAVE}, {48*9216}")
    p(f"s_mul_i32 s{S_RS}, s{S_J}, 288"); p(f"s_add_u32 s{S_RS}, s{S_RS}, s{S_T0}")
    p(f"s_add_u32 s{S_BF}, s{S_BH}, s{S_RS}")
    p(f"s_lshr_b32 s{S_T0}, s{S_J}, 1"); p(f"s_lshl_b32 s{S_T0}, s{S_T0}, 19")
    for d, b in ((S_K, 64), (S_V, 66)):
        p(f"s_add_u32 s{d}, s{b}, s{S_T0}"); p(f"s_addc_u32 s{d+1}, s{b+1}, 0"); p(f"s_mov_b32 s{d+2}, 524288"); p(f"s_mov_b32 s{d+3}, 0x20000")
    p(f"s_lshr_b32 s{S_T0}, s{S_J}, 1"); p(f"s_mul_i32 s{S_KOFF}, s{S_T0}, 576"); p(f"s_add_u32 s{S_KOFF}, s{S_KOFF}, 256")
    p(f"s_add_u32 s{S_BH}, s{S_BH}, s{S_KOFF}")
    def hoff(dst, colreg, add):
        p(f"s_lshr_b32 s{S_T0}, s{colreg}, 6"); p(f"s_add_u32 s{S_T0}, s{S_T0}, {add}")
        p(f"s_lshr_b32 s{S_T1}, s{S_T0}, 2"); p(f"s_lshl_b32 s{S_T1}, s{S_T1}, 19")
        p(f"s_and_b32 s{S_T0}, s{S_T0}, 3"); p(f"s_lshl_b32 s{S_T0}, s{S_T0}, 10")
        p(f"s_add_u32 s{dst}, s{S_T0}, s{S_T1}"); p(f"s_add_u32 s{dst}, s{dst}, s{S_OBASE}")
    hoff(S_HHALF, S_KOFF, 0); p(f"s_lshl_b32 s{S_T0}, s{S_T2}, 3"); p(f"s_add_u32 s{S_HHALF}, s{S_HHALF}, s{S_T0}")
    for t in range(4): hoff(S_HF + t, S_RS, t)
    p(f"s_lshl_b32 s{S_T0}, s{S_J}, 19"); p(f"s_add_u32 s{S_OBASE}, s{S_OBASE}, s{S_T0}")
    p(f"s_mov_b32 s{S_THR}, {f2u(THRESH)}")
    p(f"s_lshl_b32 s{S_T0}, s{S_WAVE}, 2"); p(f"v_add_u32 v23, s{S_T0}, v20")
    p(f"v_xor_b32 v24, v22, v23"); p(f"v_lshlrev_b32 v24, 4, v24"); p(f"v_lshl_add_u32 v{V_KD}, v23, 8, v24")
    p(f"v_and_b32 v24, 7, v23"); p(f"v_lshlrev_b32 v24, 1, v24"); p(f"v_xor_b32 v24, v22, v24"); p(f"v_lshlrev_b32 v24, 4, v24"); p(f"v_lshl_add_u32 v{V_VD}, v23, 8, v24")
    for ks in range(2, 4):
        p(f"v_add_u32 v23, {4*ks}, v20"); p("v_xor_b32 v23, v23, v22"); p("v_lshlrev_b32 v23, 4, v23"); p(f"v_lshl_add_u32 v{V_KA+ks}, v22, 8, v23")
    p("v_and_b32 v24, 7, v18"); p("v_lshlrev_b32 v25, 8, v18"); p("v_lshl_add_u32 v25, v19, 3, v25"); p("v_add_u32 v25, 0x10000, v25")
    for dt in range(8):
        p(f"v_xor_b32 v23, {dt}, v24"); p(f"v_lshl_add_u32 v{V_VA+dt}, v23, 5, v25")
    p(f"s_lshl_b32 s{S_T0}, s{S_WAVE}, 14"); p(f"s_cmp_eq_u32 s{S_WAVE}, 2"); p(f"s_cselect_b32 s{S_T0}, 0x10000, s{S_T0}")
    p(f"s_add_u32 s{S_T1}, s{S_T0}, 8192"); p(f"s_cmp_eq_u32 s{S_WAVE}, 3"); p(f"s_cselect_b32 s{S_T0}, 0x8000, s{S_T0}"); p(f"s_cselect_b32 s{S_T1}, {152*1024}, s{S_T1}")
    p(f"v_add_u32 v{V_QP}, s{S_T0}, v{V_L16}"); p(f"v_add_u32 v{V_QP+1}, s{S_T1}, v{V_L16}")

    groups = []
    for st in range(NST):
        kind, t, sub, buf = stages[st]
        if kind == "q":
            for nt in range(8): groups.append((st, nt, 0))
        else:
            nts = [0, 2] if kind == "h" else [0, 1, 2, 3]
            for c0 in (0, 3):
                for nt in nts: groups.append((st, nt, c0))
    def a_reads(gi):
        st, nt, c0 = groups[gi]; kind, t, sub, buf = stages[st]
        hb, off = wbase(st % 4)
        out = []
        for c in range(3):
            for tt in range(2):
                d = V_AF + (gi % 3) * 12 + c * 4 + 2 * tt
                if kind == "q":
                    addr = V_RQ + 4 * hb + (nt >> 1); o = off + c * 8192 + tt * 1024 + 8 * (nt & 1)
                else:
                    addr = (V_RA + 2 * hb + (nt & 1)) if kind == "f" else (V_RH + hb)
                    o = off + (nt >> 1) * 12288 + (c0 + c) * 2048 + tt * 256
                out.append((f"ds_read_b64_tr_b16 v[{d}:{d+1}], v{addr} offset:{o}", f"A{gi%3}"))
        return out
    acc = lambda buf, nt, mt: V_ACC + buf * 64 + (nt * 4 + mt) * 4
    gaps = []; gstart = []
    for gi, (st, nt, c0) in enumerate(groups):
        gstart.append(len(gaps))
        kind, t, sub, buf = stages[st]
        for mt in range(4):
            for c in range(3):
                a = acc(buf, nt, mt); af = V_AF + (gi % 3) * 12 + c * 4
                ks = (sub * 3 if kind == "q" else sub * 6 + c0) + c
                C = "0" if ks == 0 else f"v[{a}:{a+3}]"
                gaps.append(Gap(f"v_mfma_f32_16x16x32_bf16 v[{a}:{a+3}], v[{af}:{af+3}], {xreg(ks, mt)}, {C}"))
    NG = len(groups)
    first_of_stage = {}
    for gi, (st, nt, c0) in enumerate(groups): first_of_stage.setdefault(st, gi)
    bar_gap = {}
    for gi in range(2, NG):
        st = groups[gi][0]; f = first_of_stage[st]
        rd = a_reads(gi)
        if gi == f:
            g0 = gstart[gi - 1]; bar_gap[st] = g0 - 1
            for n, r in enumerate(rd): gaps[g0 + n].mem.append(r)
        elif gi == f + 1:
            g0 = gstart[gi - 2]
            for n, r in enumerate(rd): gaps[g0 + 6 + n].mem.append(r)
        else:
            g0 = gstart[gi - 2]
            for n, r in enumerate(rd): gaps[g0 + 2 * n].mem.append(r)
    for gi in range(1, NG):
        g = gaps[gstart[gi] - 1]
        st, nt, c0 = groups[gi]
        vm = []
        if st < 6 and nt == 0: vm.append(f"X{st}")
        nxt = groups[gi + 1][0] if gi + 1 < NG else None
        if nxt is not None and nxt != st:
            g.sh.append(WaitFor(vm=vm + [f"W{nxt}"], lg0=True)); g.sh.append("s_barrier")
        else:
            g.sh.append(WaitFor(lg=(f"A{gi%3}",), vm=vm))
    def place_mem(gaps, ops, g0, g1, dense=False, want=0):
        pitch = max(1.0, (g1 - g0 - 8) / len(ops)) if not dense else 1.0
        last = g0
        for n, (sal, op) in enumerate(ops):
            g = max(last + 1 + len(sal), int(g0 + 2 + n * pitch))
            while True:
                assert g < g1, (g0, g1, n, len(ops))
                ok = (len(gaps[g].mem) <= 1 if dense else len(gaps[g].mem) == want) and all(len(gaps[g - len(sal) + i].sh) == 0 for i in range(len(sal)))
                if ok: break
                g += 1
            for i, s in enumerate(sal): gaps[g - len(sal) + i].sh.append(s)
            gaps[g].mem.append(op); last = g
    for st in range(NST):
        g0 = gstart[first_of_stage[st]]
        g1 = bar_gap[st + 1] if st + 1 < NST else len(gaps)
        ops = []
        if st == 0: ops = (w_dma(2) if PV_ != 'D' else []) + x_loads(6, 9) + w_dma(3)
        elif st == 1: ops = x_loads(9, 12) + w_dma(4)
        elif st == 2: ops = x_loads(12, 15) + w_dma(5)
        elif st == 3: ops = x_loads(15, 18) + w_dma(6)
        elif st + 3 < NST: ops = w_dma(st + 3)
        if st == 4: ops = [([], (f"buffer_load_dwordx2 v[74:75], v{V_TA}, s[{S_WS}:{S_WS+3}], s{S_FO} offen sc1", "GX"))] + ops
        if st == 18: ops += kv_dma("V", VS(0), None, 0)
        if st == 19: ops += kv_dma("K", KS(0), None, 0)
        if st == 20: ops += kv_dma("K", KS(1), None, 16384) + kv_dma("V", VS(1), None, 16384) + kv_dma("K", KS(2), None, 32768)
        if ops: place_mem(gaps, ops, g0, g1 if st < 20 else g0 + 60)
        if st == 19:
            cand = [g for g in range(g0 + 3, g1 - 2) if not gaps[g].mem][::2]
            assert len(cand) >= 16
            for f, g in enumerate(cand[:16]):
                gaps[g].mem.append((f"ds_read_b128 a[{A_Q+4*f}:{A_Q+4*f+3}], v{V_QP + f//8} offset:{(f%8)*1024}", "QR"))
    def ffn_epi(st0, pk=False, mts=(0, 1, 2, 3)):
        kind, t, sub, buf = stages[st0]
        q = []
        for mt in mts:
            if kind == "f": el = [(acc(buf, n, mt) + r, acc(buf, 2 + n, mt) + r) for n in range(2) for r in range(4)]
            else: el = [(acc(buf, 0, mt) + r, acc(buf, 2, mt) + r) for r in range(4)]
            T = V_T + 8 * (mt % 2)
            if pk:
                pr = lambda r: f"v[{r}:{r+1}]"
                ev = list(enumerate(el))[::2]
                for e, (g, u) in ev: q.append(f"v_pk_mul_f32 {pr(T+e)}, {pr(g)}, {pr(g)}")
                for e, (g, u) in ev: q.append(f"v_pk_fma_f32 {pr(T+e)}, {pr(T+e)}, {pr(V_C1)}, {pr(V_C1)} op_sel:[0,1,0] op_sel_hi:[1,1,0]")
                for e, (g, u) in ev: q.append(f"v_pk_mul_f32 {pr(T+e)}, {pr(T+e)}, {pr(g)}")
                for e, (g, u) in enumerate(el): q.append(f"v_exp_f32 v{T+e}, v{T+e}")
                for e, (g, u) in ev: q.append(f"v_pk_mul_f32 {pr(g)}, {pr(g)}, {pr(u)}")
                for e, (g, u) in ev: q.append(f"v_pk_add_f32 {pr(T+e)}, {pr(T+e)}, 1.0 op_sel_hi:[1,0]")
                for e, (g, u) in enumerate(el): q.append(f"v_rcp_f32 v{T+e}, v{T+e}")
                for e, (g, u) in ev: q.append(f"v_pk_mul_f32 {pr(g)}, {pr(g)}, {pr(T+e)}")
            else:
                for e, (g, u) in enumerate(el): q.append(f"v_mul_f32 v{T+e}, v{g}, v{g}")
                for e, (g, u) in enumerate(el): q.append(f"v_fma_f32 v{T+e}, v{T+e}, v{V_C2}, v{V_C1}")
                for e, (g, u) in enumerate(el): q.append(f"v_mul_f32 v{T+e}, v{T+e}, v{g}")
                for e, (g, u) in enumerate(el):
                    q.append(f"v_exp_f32 v{T+e}, v{T+e}"); q.append(f"v_mul_f32 v{g}, v{g}, v{u}")
                for e, (g, u) in enumerate(el): q.append(f"v_add_f32 v{T+e}, 1.0, v{T+e}")
                for e, (g, u) in enumerate(el): q.append(f"v_rcp_f32 v{T+e}, v{T+e}")
                for e, (g, u) in enumerate(el): q.append(f"v_mul_f32 v{g}, v{g}, v{T+e}")
            o = V_HO + 4 * (mt % 2)
            for i in range(len(el) // 2): q.append(f"v_cvt_pk_bf16_f32 v{o+i}, v{el[2*i][0]}, v{el[2*i+1][0]}")
            if kind == "f":
                q.append(("MEM", [f"s_add_u32 s{S_T2}, s{S_HF+t}, {H_OFF + mt*4096}"], (f"buffer_store_dwordx4 v[{o}:{o+3}], v{V_L16}, s[{S_WS}:{S_WS+3}], s{S_T2} offen{SCH}", None)))
            else:
                q.append(("MEM", [f"s_add_u32 s{S_T2}, s{S_HHALF}, {H_OFF + mt*4096}"], (f"buffer_store_dwordx2 v[{o}:{o+1}], v{V_L16}, s[{S_WS}:{S_WS+3}], s{S_T2} offen{SCH}", None)))
        return q
    def q_epi(seg):
        q = []
        for mt in range(4):
            rs = [acc(0, 2 * seg, mt) + r for r in range(4)] + [acc(0, 2 * seg + 1, mt) + r for r in range(4)]
            o = V_T + 4 * ((seg * 4 + mt) % 4)
            for r in rs: q.append(f"v_mul_f32 v{r}, {f2u(QSCALE)}, v{r}")
            for i in range(4): q.append(f"v_cvt_pk_bf16_f32 v{o+i}, v{rs[2*i]}, v{rs[2*i+1]}")
            f = mt * 4 + seg
            q.append(("MEM", [], (f"ds_write_b128 v{V_QP + f//8}, v[{o}:{o+3}] offset:{(f%8)*1024}", None)))
        return q
    sg = lambda st: gstart[first_of_stage[st]]
    gaps[bar_gap[20] - 11].post += [f"s_load_dwordx2 s[64:65], s[0:1], {ARG['wo']}", f"s_load_dwordx2 s[66:67], s[0:1], {ARG['wd']}",
                                    f"s_load_dwordx2 s[{S_OUT}:{S_OUT+1}], s[0:1], {ARG['out']}"]
    g_ = gaps[sg(8) + 1]
    g_.post += [WaitFor(vm=("GX",)), f"v_subrev_u32 v74, s{S_XCC}, v74", f"v_xor_b32 v75, s{S_EP2}, v75", "v_min_u32 v75, 1, v75", "v_lshl_or_b32 v74, v75, 8, v74", "v_cmp_le_u32 vcc, 8, v74", "s_nop 1",
                "s_cmp_lg_u64 vcc, 0", f"s_cselect_b32 s{S_MIX}, 1, {1 if 'forcemix' in ABL else 0}"]
    f5 = first_of_stage[5]
    q = []; mins = []
    for seg in range(4):
        e_ = q_epi(seg); q += e_; mins += [gstart[f5 + 2 * seg + 2] + 3] * len(e_)
    left = fill_valu(gaps[:sg(9) - 3], gstart[f5 + 2] + 3, q, mins=mins); assert not left, len(left)
    for seg, lim_ in ((0, sg(6) - 3), (1, sg(6) + 9)):
        cv_ = [x for x in q_epi(seg) if isinstance(x, str)]
        lastg = max(gi for gi, g in enumerate(gaps) for x in g.valu if x in cv_ and gi < sg(9))
        assert lastg < lim_, (seg, lastg, lim_)
    for st0 in (6, 9, 12, 15):
        end = sg(st0 + 6) - 3 if st0 + 6 < NST else len(gaps)
        left = fill_valu(gaps[:end], sg(st0 + 3) + 3, ffn_epi(st0)); assert not left, (st0, len(left))
    left = fill_valu(gaps, sg(19), [f"v_xor_b32 v{V_KA}, 128, v{V_KA+2}", f"v_xor_b32 v{V_KA+1}, 128, v{V_KA+3}"]); assert not left
    issue(x_loads(3, 6))
    p.items.append(WaitFor(vm=("X0",)))
    p("s_barrier")
    for t, tag in a_reads(0) + a_reads(1): p(t, tag)
    ep_wait("b")
    p(f"s_add_u32 s{S_XCC}, s{S_XCC}, s{S_EP}")
    p.items.append(WaitFor(lg=("A0",)))
    stamp(p, 1)
    if 'finepro' in ABL:
        gaps[sg(1) - 1].post += stamp_ops(7); gaps[sg(2) - 1].post += stamp_ops(8); gaps[sg(3) - 1].post += stamp_ops(9)
    elif 'fine1' in ABL:
        for st in range(6, 21): gaps[sg(st) - 1].post += stamp_ops(st - 4)
    else:
        gaps[sg(6) - 1].post += stamp_ops(2); gaps[sg(12) - 1].post += stamp_ops(3)
    emit_gaps(p, gaps)
    if 'fine1' in ABL:
        stamp(p, 17); globals()['ABL'] += ',finepro'
    if 'finepro' not in ABL: stamp(p, 4)

    Sreg = lambda par, kt, qt: V_S + (1 - par) * 64 + (kt * 4 + qt) * 4
    Preg = lambda par, kb, qt: (V_P0 + par * 16 + qt * 4) if kb == 0 else (V_P1 + qt * 4)
    Kf = lambda kt, ks: A_KF + (kt % 2) * 16 + ks * 4
    Vf = lambda dt, kb: A_VF + (dt % 4) * 8 + kb * 4
    def k_reads(slot, kt):
        return [(f"ds_read_b128 a[{Kf(kt,ks)}:{Kf(kt,ks)+3}], v{V_KA+ks} offset:{slot*16384 + kt*4096}", f"KF{kt%2}") for ks in range(4)]
    def v_reads(slot, dt):
        return [(f"ds_read_b64_tr_b16 a[{Vf(dt,kb)+2*t}:{Vf(dt,kb)+2*t+1}], v{V_VA+dt} offset:{slot*16384 + kb*8192 + t*4096}", f"VF{dt%4}") for kb in range(2) for t in range(2)]
    def qk_mfma(par, kt, qt, ks, zero=False):
        s = Sreg(par, kt, qt)
        C = f"v[{s}:{s+3}]" if ks else ("0" if zero else f"v[{V_NM+4*qt}:{V_NM+4*qt+3}]")
        qf = A_Q + (qt * 4 + ks) * 4
        return f"v_mfma_f32_16x16x32_bf16 v[{s}:{s+3}], a[{Kf(kt,ks)}:{Kf(kt,ks)+3}], a[{qf}:{qf+3}], {C}"
    def pv_mfma(par, dt, qt, kb):
        o = A_O + (dt * 4 + qt) * 4; pr = Preg(par, kb, qt)
        return f"v_mfma_f32_16x16x32_bf16 a[{o}:{o+3}], a[{Vf(dt,kb)}:{Vf(dt,kb)+3}], v[{pr}:{pr+3}], a[{o}:{o+3}]"
    def l_mfma(par, qt, kb):
        pr = Preg(par, kb, qt)
        return f"v_mfma_f32_16x16x32_bf16 v[{V_LD}:{V_LD+3}], v[{V_ONE}:{V_ONE+3}], v[{pr}:{pr+3}], " + ("0" if kb == 0 else f"v[{V_LD}:{V_LD+3}]")
    def elem(par, tau):
        kb = tau // 32; r = tau % 32; qt = 2 * (r // 16) + ((r % 4) >> 1); j = 2 * ((r % 16) // 4) + (r & 1)
        return Sreg(par, 2 * kb + (j >> 2), qt) + (j & 3), kb, qt, j
    def op_exp(par, tau): return f"v_exp_f32 v{V_E + tau % 8}, v{elem(par, tau)[0]}"
    def op_add(par, tau):
        s, kb, qt, j = elem(par, tau); assert qt % 2 == 1
        src = V_LS + (1 - par) * 4 + qt if (kb == 0 and j == 0) else V_LS + par * 4 + qt
        return f"v_add_f32 v{V_LS + par*4 + qt}, v{src}, v{V_E + tau % 8}"
    def op_ladd(par, qt): return f"v_add_f32 v{V_LS + par*4 + qt}, v{V_LS + (1-par)*4 + qt}, v{V_LD}"
    def op_cvt(par, tau):
        s, kb, qt, j = elem(par, tau); assert tau % 2 == 1
        return f"v_cvt_pk_bf16_f32 v{Preg(par, kb, qt) + j//2}, v{V_E + (tau-1) % 8}, v{V_E + tau % 8}"
    def rowmax(p, par, qt, dst):
        regs = [Sreg(par, kt, qt) + r for kt in range(4) for r in range(4)]
        p(f"v_max3_f32 v{dst}, v{regs[0]}, v{regs[1]}, v{regs[2]}")
        for i in range(3, 15, 2): p(f"v_max3_f32 v{dst}, v{dst}, v{regs[i]}, v{regs[i+1]}")
        p(f"v_max_f32 v{dst}, v{dst}, v{regs[15]}")
    def xlane_ops(op, dsts, t1):
        o = []
        for sw in ("v_permlane32_swap_b32", "v_permlane16_swap_b32"):
            for q, d in enumerate(dsts): o.append(f"v_mov_b32 v{t1+q}, v{d}")
            for q, d in enumerate(dsts): o.append(f"{sw} v{d}, v{t1+q}")
            for q, d in enumerate(dsts): o.append(f"{op} v{d}, v{d}, v{t1+q}")
        return o

    p.items.append(WaitFor(vm=(f"K{KS(0)}",), lg0=True)); p("s_barrier")
    for t, tag in k_reads(KS(0), 0) + k_reads(KS(0), 1): p(t, tag)
    g0 = []
    for kt in range(4):
        for qt in range(4):
            for ks in range(4): g0.append(Gap(qk_mfma(0, kt, qt, ks, zero=True)))
    for n, r in enumerate(k_reads(KS(0), 2)): g0[16 + 2 * n].mem.append(r)
    for n, r in enumerate(k_reads(KS(0), 3)): g0[32 + 2 * n].mem.append(r)
    g0[31].sh.append(WaitFor(lg=("KF0",))); g0[47].sh.append(WaitFor(lg=("KF1",)))
    place_mem(g0, kv_dma("K", KS(3), None, 3 * 16384) + kv_dma("V", VS(2), None, 2 * 16384), 0, 40)
    full = ffn_epi(18); per = len(full) // 4
    npre = 24
    if 'finea' in ABL: stamp(p, 0)
    emit_ops(p, full[:npre])
    left = fill_valu(g0, 0, full[npre:2 * per])
    left += ffn_epi(18, pk=True, mts=(2, 3))
    p.items.append(WaitFor(lg=("KF0", "KF1")))
    sal = [f"s_mov_b32 s{S_OUT+2}, {XN_BYTES}",
           f"s_and_b32 s{S_T0}, s{S_J}, 7", f"s_lshl_b32 s{S_T1}, s{S_RB}, 3", f"s_add_u32 s{S_T0}, s{S_T0}, s{S_T1}",
           f"s_lshl_b32 s{S_T0}, s{S_T0}, 2", f"s_add_u32 s{S_T0}, s{S_T0}, s{S_WAVE}", f"s_lshr_b32 s{S_KOFF}, s{S_J}, 3",
           f"s_sub_u32 s{S_T1}, s{S_T0}, 120", f"s_cmp_lt_u32 s{S_T0}, 120",
           f"s_cselect_b32 s{S_RE}, s{S_T0}, s{S_T1}", f"s_movk_i32 s{S_RNW}, 136", f"s_cselect_b32 s{S_RNW}, 120, s{S_RNW}",
           f"s_cselect_b32 s{S_WG}, s64, s66", f"s_cselect_b32 s{S_WG+1}, s65, s67",
           f"s_mov_b32 s{S_WG+2}, {1152*1152}", f"s_cselect_b32 s{S_WG+2}, {1024*1152}, s{S_WG+2}", f"s_mov_b32 s{S_WU+2}, s{S_WG+2}",
           f"s_mov_b32 s{S_T0}, {WPD_OFF}", f"s_cselect_b32 s{S_T0}, {WPO_OFF}, s{S_T0}",
           f"s_mul_i32 s{S_T1}, s{S_KOFF}, s{S_WG+2}",
           f"s_add_u32 s{S_WG}, s{S_WG}, s{S_T1}", f"s_addc_u32 s{S_WG+1}, s{S_WG+1}, 0",
           f"s_add_u32 s{S_T0}, s{S_T0}, s{S_T1}", f"s_add_u32 s{S_WU}, s70, s{S_T0}", f"s_addc_u32 s{S_WU+1}, s71, 0",
           f"s_sub_u32 s{S_RE}, s{S_RE}, s{S_RNW}",
           f"s_mov_b32 s{S_KOFF}, {4*16384}", f"s_mov_b32 s{S_VOFF}, {3*16384}", f"s_mov_b32 s{S_CNT}, 7",
           f"s_lshl_b32 s{S_BQ}, s{S_WAVE}, 11", f"s_add_u32 s{S_BQ}, s{S_BQ}, {128*1024}"]
    fr_ = [g for g in g0[41:] if not g.sh]
    k_ = sal.index(f"s_cmp_lt_u32 s{S_T0}, 120")
    for t, g in zip(sal[:k_], fr_): g.sh.append(t)
    emit_gaps(p, g0)
    emit_ops(p, left)
    for t in sal[k_:]: p(t)
    for q in range(4): p(f"v_mov_b32 v{V_LS+4+q}, 0")
    for q in range(4): p(f"v_mov_b32 v{V_ONE+q}, 0x3f803f80")
    p.items.append(WaitFor(vm=(f"K{KS(1)}", f"V{VS(0)}"))); p("s_barrier")
    for t, tag in k_reads(KS(1), 0) + k_reads(KS(1), 1): p(t, tag)
    p(f"v_lshrrev_b32 v{V_PT+1}, 4, v{V_L16}")
    p(f"v_lshrrev_b32 v{V_RPG}, 2, v{V_PT+1}"); p(f"v_and_b32 v{V_PT}, 3, v{V_PT+1}")
    p(f"v_lshlrev_b32 v{V_RPL}, 6, v{V_RPG}"); p(f"v_lshl_add_u32 v{V_RPL}, v{V_PT}, 3, v{V_RPL}"); p(f"v_add_u32 v{V_RPL}, s{S_BQ}, v{V_RPL}")
    p(f"v_mul_u32_u24 v{V_RPG}, 1152, v{V_RPG}"); p(f"v_lshl_add_u32 v{V_RPG}, v{V_PT}, 4, v{V_RPG}")
    p(f"s_and_b32 s{S_T1}, s{S_J}, 24"); p(f"s_lshl_b32 s{S_T1}, s{S_T1}, 6"); p(f"v_and_b32 v{V_PT}, 7, v{V_PT+1}")
    p(f"v_lshrrev_b32 v{V_PA}, 3, v{V_PT+1}"); p(f"v_lshlrev_b32 v{V_PA}, 11, v{V_PA}"); p(f"v_lshl_add_u32 v{V_PA}, v{V_PT}, 3, v{V_PA}")
    p(f"v_add_u32 v{V_PA}, s{S_T1}, v{V_PA}")
    p(f"v_mov_b32 v{V_SV+1}, s{S_EP2}")
    zm = [f"v_mfma_f32_32x32x16_bf16 a[{A_O+16*i}:{A_O+16*i+15}], v[{V_LS+4}:{V_LS+7}], v[{V_LS+4}:{V_LS+7}], 0" for i in range(8)]
    for qt in range(4):
        p(zm[qt]); rowmax(p, 0, qt, V_R + qt)
    for n, t in enumerate(xlane_ops("v_max_f32", [V_R + q for q in range(4)], V_R + 4)):
        if n % 8 == 0: p(zm[4 + n // 8])
        p(t)
    p(zm[7])
    for qt in range(4):
        for r in range(4): p(f"v_sub_f32 v{V_NM+4*qt+r}, {f2u(-BIAS) if BIAS else 0}, v{V_R+qt}")
    for kt in range(4):
        for qt in range(4):
            for r in (0, 2):
                s_ = Sreg(0, kt, qt) + r
                p(f"v_pk_add_f32 v[{s_}:{s_+1}], v[{s_}:{s_+1}], v[{V_NM+4*qt}:{V_NM+4*qt+1}]")
    for tau in range(36):
        p(op_exp(0, tau))
        if tau % 4 == 0 and tau: p(op_add(0, tau - 1)); p(op_cvt(0, tau - 1))
        if tau % 4 == 2: p(op_cvt(0, tau - 1))
        if tau % 4 == 3: p(op_add(0, tau - 1))
    p.items.append(WaitFor(lg=("KF0",)))
    p(op_add(0, 35))
    if 'finepro' not in ABL: stamp(p, 5); stamp_rt(p, 15)

    rare_sites = []
    class Tile: pass
    def used(g): return len(g.mem) + sum(slots_of(v) for v in g.valu)
    def att_tile(it, last_block=False, first_mfmas=None):
        par = it % 2
        final = last_block and it == 3
        T = Tile(); G = []; Q = []; PV = []; LG = []
        mf = first_mfmas or [qk_mfma(1 - par, kt, qt, ks) for kt in range(4) for qt in range(4) for ks in range(4)]
        for i, m in enumerate(mf):
            g = Gap(m); G.append(g); Q.append(g)
            if i in (19, 23, 51, 55):
                g = Gap(l_mfma(par, 0 if i < 32 else 2, 0 if i in (19, 51) else 1)); G.append(g); LG.append(g)
        for dt in range(8):
            for qt in range(4):
                for kb in range(2):
                    g = Gap(pv_mfma(par, dt, qt, kb)); G.append(g); PV.append(g)
        T.G, T.Q, T.PV, T.LG = G, Q, PV, LG
        idx = {id(g): i for i, g in enumerate(G)}
        T.idx = lambda g: idx[id(g)]
        br = Q[-1]
        for b in range(64):
            E, N = (Q[2*b], Q[2*b+1]) if b < 32 else (PV[2*b-64], PV[2*b-63])
            sp, tau = (par, 36 + b) if b < 28 else (1 - par, b - 28)
            if tau % 4 == 0:
                if not (final and b > 28): N.valu.append(op_cvt(sp, tau - 1) if b != 28 else op_cvt(par, 63))
            if final and b >= 28: continue
            E.valu.append(op_exp(sp, tau))
            if tau % 4 == 1: N.valu.append(op_cvt(sp, tau))
            if tau % 4 >= 2: (br if b in (30, 31) else N).valu.append(op_add(sp, tau))
        L = V_LS + par * 4
        site = f"{'z' if last_block else 'l'}{it}"; rare_sites.append((site, "Z" if final else str(par)))
        Q[29].valu.append(op_ladd(par, 0))
        Q[57].valu.append(f"v_max3_f32 v{V_CK}, v{L}, v{L+1}, v{L+3}")
        Q[59].valu.append(op_ladd(par, 2))
        Q[61].valu += [f"v_max_f32 v{V_CK}, v{V_CK}, v{L+2}", f"v_cmp_lt_f32 vcc, s{S_THR}, v{V_CK}"]
        br.sh += [f"s_cbranch_vccnz L_rare_stub{site}", Label(f"L_rare_ret{site}")]
        PV[1].sh.append("s_barrier"); T.wv = []
        T.reserved = {id(PV[0]), id(PV[1])}
        if 'barE' in ABL and not final:
            PV[3].valu = PV[1].valu + PV[3].valu; PV[1].valu = []; T.reserved.add(id(PV[3]))
        kslot1, kslot2, vslot = KS(it + 1), KS(it + 2), VS(it)
        if not final:
            Q[15].sh.append(WaitFor(lg=("KF1",))); Q[31].sh.append(WaitFor(lg=("KF0",))); Q[47].sh.append(WaitFor(lg=("KF1",)))
        Q[-2].sh.append(WaitFor(lg=("VF0", "VF1", "VF2", "VF3")))
        for dt in range(4, 8): PV[8 * dt - 1].sh.append(WaitFor(lg=(f"VF{dt%4}",)))
        T.cur = 0; T.lastdma = -1
        def put(op, lo=None, sal=(), cap=2):
            g = max(T.cur, T.idx(lo) if lo is not None else 0)
            while True:
                assert g < len(G), op
                ok = not G[g].mem and used(G[g]) < cap and id(G[g]) not in T.reserved
                if ok and sal:
                    fr = [h for h in range(max(T.lastdma + (0 if len(sal) == 2 else 1), g - 6, 0), g) if not G[h].sh and id(G[h]) not in T.reserved]
                    ok = len(fr) >= len(sal)
                if ok: break
                g += 1
            if sal:
                for h, s_ in zip(fr[-len(sal):], sal): G[h].sh.append(s_)
                T.lastdma = g
            G[g].mem.append(op); T.cur = g + 1
            return g
        T.put = put
        def solo(g, sal, op, nxt=None):
            gi = T.idx(g)
            assert not g.mem
            if g.valu:
                assert not nxt.mem; nxt.valu = g.valu + nxt.valu; g.valu = []; T.reserved.add(id(nxt))
            fr = [h for h in range(gi - 3, gi) if not G[h].sh]
            assert len(fr) >= len(sal), (gi, sal)
            for h, s_ in zip(fr[-len(sal):], sal): G[h].sh.append(s_)
            g.mem.append(op); T.lastdma = max(T.lastdma, gi)
        T.solo = solo
        T.endsal = []
        if not final:
            if not (last_block and it >= 2):
                sal_, op = kv_dma("V", VS(it + 2), S_VOFF, -16384)[3]; solo(LG[0], sal_, op)
            if not last_block:
                dk = kv_dma("K", KS(it), S_KOFF, 0)
                solo(LG[1], *dk[0]); solo(Q[41], *dk[1], nxt=Q[43]); solo(LG[2], *dk[2]); solo(LG[3], *dk[3])
                T.endsal.append(f"s_add_u32 s{S_KOFF}, s{S_KOFF}, 16384")
            for r in v_reads(vslot, 0) + v_reads(vslot, 1): put(r)
            for r in k_reads(kslot1, 2): put(r, Q[16])
            v23 = v_reads(vslot, 2) + v_reads(vslot, 3)
            for r in v23[:3]: put(r)
            for r in k_reads(kslot1, 3): put(r, Q[32])
            for r in v23[3:]: put(r)
            assert T.cur <= T.idx(Q[55]), (it, T.cur)
        if not (last_block and it >= 1):
            dv = kv_dma("V", VS(it + 3), S_VOFF, 0)
            solo(PV[5], *dv[0], nxt=PV[7]); solo(PV[57], *dv[1], nxt=PV[59]); solo(PV[61], *dv[2], nxt=PV[63])
        T.cur = T.idx(PV[2])
        T.pv_v = [(r, PV[8 * (dt - 4) + 8]) for dt in range(4, 8) for r in v_reads(vslot, dt)]
        if not (last_block and it >= 2):
            for r, lo in T.pv_v: put(r, lo)
            for r in k_reads(kslot2, 0) + k_reads(kslot2, 1): put(r)
            T.wv.append(f"K{kslot2}")
            T.endsal += [WaitFor(lg=("KF0",)), f"s_add_u32 s{S_VOFF}, s{S_VOFF}, 16384"]
        if not last_block and it == 0:
            sl = [f"s_add_u32 s{S_RE}, s{S_RE}, s{S_RNW}", f"s_mul_i32 s{S_RS}, s{S_RE}, 3641", f"s_lshr_b32 s{S_RS}, s{S_RS}, 16",
                  f"s_mul_i32 s{S_RS}, s{S_RS}, {36864-1152}", f"s_lshl_b32 s{S_RD}, s{S_RE}, 6", f"s_add_u32 s{S_RS}, s{S_RS}, s{S_RD}",
                  f"s_lshl_b32 s{S_RD}, s{S_RE}, 11"]
            for n, s_ in enumerate(sl): Q[2 * n].sh.append(s_)
            Q[58].sh.append(f"s_mov_b32 m0, s{S_BQ}")
            Q[59].mem.append((f"buffer_load_dwordx4 v{V_RPG}, s[{S_WG}:{S_WG+3}], s{S_RS} offen lds", "RD"))
            Q[60].sh.append(f"s_add_u32 s{S_RS}, s{S_RS}, {16*1152-1024}")
            PV[3].mem.append((f"buffer_load_dwordx4 v{V_RPG}, s[{S_WG}:{S_WG+3}], s{S_RS} offen offset:1024 lds", "RD"))
        if not last_block and it == 2:
            PV[3].mem.append((f"ds_read_b64_tr_b16 v[{V_RPS}:{V_RPS+1}], v{V_RPL} offset:0", "RL"))
            PV[7].mem.append((f"ds_read_b64_tr_b16 v[{V_RPS+2}:{V_RPS+3}], v{V_RPL} offset:1024", "RL"))
        if not last_block and it == 3:
            Q[55].mem.append((f"ds_read_b64_tr_b16 v[{V_RPS+4}:{V_RPS+5}], v{V_RPL} offset:32", "RL"))
            Q[57].mem.append((f"ds_read_b64_tr_b16 v[{V_RPS+6}:{V_RPS+7}], v{V_RPL} offset:1056", "RL"))
        if not final: T.wv.append(f"V{VS(it+1)}")
        if not last_block:
            if it == 2: T.wv.append("RD")
            if it == 1:
                T.wv.append("RST")
                PV[10].sh.append(f"s_cmp_le_u32 s{S_CNT}, 2"); PV[11].sh.append(f"s_cselect_b32 s{S_SIG}, 2, 1")
                PV[12].sh.append(f"s_add_u32 s{S_SIG}, s{S_SIG}, s{S_XCC}"); PV[13].valu.append(f"v_mov_b32 v{V_SV}, s{S_SIG}")
                PV[16].sh.append(f"s_cmp_lg_u32 s{S_MIX}, 0"); PV[17].sh += ["s_cbranch_scc1 L_stub_w2", Label("L_ret_w2")]
                PV[20].mem.append((sig_store, None))
            if it == 3:
                PV[3].mem.append((f"buffer_store_dwordx4 v[{V_RPS}:{V_RPS+3}], v{V_L16}, s[{S_WU}:{S_WU+3}], s{S_RD} offen sc1", "RST"))
                PV[12].sh.append(WaitFor(lg=("RL",)))
                PV[14].mem.append((f"buffer_store_dwordx4 v[{V_RPS+4}:{V_RPS+7}], v{V_L16}, s[{S_WU}:{S_WU+3}], s{S_RD} offen offset:1024 sc1", "RST"))
        return T
    def finish_tile(T):
        if T.wv: T.PV[0].sh.append(WaitFor(vm=tuple(T.wv)))
        for s_ in T.endsal:
            if isinstance(s_, WaitFor):
                g = [g for g in T.PV[57:] if not g.sh][0]; g.sh.append(s_)
            else:
                c = [g for g in T.G[T.lastdma:] if not g.sh]
                (c[0].sh if c else T.G[-1].post).append(s_)
        ov = sum(max(0, used(g) - 2) + max(0, len([x for x in g.sh if not isinstance(x, Label)]) - 1) for g in T.G)
        print("tile overflow slots:", ov, "gaps", len(T.G))

    body = Prog(); p = body
    p.label("L_att_loop", 6)
    for it in range(4):
        T = att_tile(it)
        if it == 3: T.PV[40].sh.append(f"s_sub_u32 s{S_CNT}, s{S_CNT}, 1")
        finish_tile(T)
        if it == 3: T.G[-1].post += [f"s_cmp_lg_u32 s{S_CNT}, 0", "s_cbranch_scc1 L_att_loop"]
        for g in T.G:
            if 'Lnodma' in ABL: g.mem = [m for m in g.mem if not m[0].startswith("buffer")]
            if 'Lnobar' in ABL: g.sh = [x for x in g.sh if x != "s_barrier"]
            if 'Lnolds' in ABL: g.mem = [m for m in g.mem if not m[0].startswith("ds_")]
            if 'Lnotr' in ABL: g.mem = [m for m in g.mem if not m[0].startswith("ds_read_b64")]
            if 'Lnobr' in ABL: g.sh = [x for x in g.sh if not (isinstance(x, str) and x.startswith("s_cbranch"))]
            if 'Lnovalu' in ABL: g.valu = [x for x in g.valu if x.startswith(("v_exp", "v_add_u32"))]
            if 'Lnoexp' in ABL: g.valu = [x for x in g.valu if not x.startswith("v_exp")]
            if 'Lnowait' in ABL: g.sh = [x for x in g.sh if not (isinstance(x, WaitFor) and x.lg)]
        emit_gaps(p, T.G)

    tail = Prog(); p = tail
    p(f"s_getpc_b64 s[{S_WG}:{S_WG+1}]")
    p.label("L_pc1")
    p(f"s_and_b32 s{S_WG+1}, s{S_WG+1}, 0xffff"); p(f"s_mov_b32 s{S_WG+2}, L_code_end-L_pc1")
    p(f"s_lshr_b32 s{S_T0}, s2, 3"); p(f"s_lshl_b32 s{S_T0}, s{S_T0}, 2"); p(f"s_add_u32 s{S_T0}, s{S_T0}, s{S_WAVE}"); p(f"s_lshl_b32 s{S_T0}, s{S_T0}, 10")
    p(f"buffer_load_dwordx4 v[{V_RPS}:{V_RPS+3}], v{V_L16}, s[{S_WG}:{S_WG+3}], s{S_T0} offen", "CODE")
    p(f"v_lshrrev_b32 v{V_LANE}, 4, v{V_L16}")
    if 'finepro' not in ABL: stamp(p, 6)
    NP3 = 17
    Breg = lambda s, ks, mt: ((s % 3) * 4 + ks) * 8 + mt * 4
    def p3_w(s):
        off = (WPD_OFF + s * 4 * 36864) if s < 9 else (WPO_OFF + (s - 9) * 4 * 36864)
        base = S_PW if s < 9 else S_PW2
        ops = []
        for i in range(9):
            sal = []
            if i % 4 == 0:
                tm = tmp()
                m0 = f"s_add_u32 m0, s{S_W0B}, {i*1024}" if s == 0 else f"s_add_u32 m0, s{S_W9K}, {P3_SLOT[(s-1)%3] + i*1024}"
                sal = [f"s_add_u32 s{tm}, s{base}, {off + i*1024}", m0]
            ops.append((sal, (f"buffer_load_dwordx4 v{V_L16}, s[{S_WS}:{S_WS+3}], s{tm} offen offset:{(i%4)*1024}{LSC} lds", f"PW{s}")))
        return annotate(ops)
    def p3_b(s):
        off = (H_OFF + s * 524288) if s < 9 else (O_OFF + (s - 9) * 524288)
        base = S_PB0 if s < 9 else S_PB1
        ops = []
        for mt in range(2):
            for ks in range(4):
                r = Breg(s, ks, mt)
                ops.append(([f"s_add_u32 s{S_T2}, s{base}, {off + mt*4096}"] if ks == 0 else [],
                            (f"buffer_load_dwordx4 a[{r}:{r+3}], v{V_L16}, s[{S_WS}:{S_WS+3}], s{S_T2} offen offset:{ks*1024}{LSC}", f"PB{s}")))
        return annotate(ops)
    setup3 = [f"s_lshr_b32 s{S_KOFF}, s{S_J}, 3", f"s_and_b32 s{S_RE}, s{S_J}, 3", f"s_mul_i32 s{S_W9K}, s{S_WAVE}, 9216",
              f"s_mul_i32 s{S_PW2}, s{S_WAVE}, 36864", f"s_mul_i32 s{S_RNW}, s{S_RE}, 9216", f"s_add_u32 s{S_PW2}, s{S_PW2}, s{S_RNW}",
              f"s_mul_i32 s{S_PW}, s{S_KOFF}, {1152*1152}", f"s_add_u32 s{S_PW}, s{S_PW}, s{S_PW2}",
              f"s_mul_i32 s{S_RNW}, s{S_KOFF}, {1024*1152}", f"s_add_u32 s{S_PW2}, s{S_PW2}, s{S_RNW}",
              f"s_lshl_b32 s{S_PST}, s{S_RB}, 3", f"s_and_b32 s{S_RNW}, s{S_J}, 7", f"s_add_u32 s{S_PST}, s{S_PST}, s{S_RNW}",
              f"s_lshr_b32 s{S_FX0}, s{S_PST}, 2",
              f"s_lshl_b32 s{S_PB1}, s{S_FX0}, 2", f"s_add_u32 s{S_PB1}, s{S_PB1}, s{S_WAVE}", f"s_lshl_b32 s{S_PB1}, s{S_PB1}, 13",
              f"s_mul_i32 s{S_PB0}, s{S_KOFF}, {9*524288}", f"s_add_u32 s{S_PB0}, s{S_PB0}, s{S_PB1}",
              f"s_lshl_b32 s{S_RNW}, s{S_KOFF}, 22", f"s_add_u32 s{S_PB1}, s{S_PB1}, s{S_RNW}",
              f"s_mul_i32 s{S_PST}, s{S_PST}, {16*9216}",
              f"s_mul_i32 s{S_FL}, s{S_KOFF}, 9216", f"s_add_u32 s{S_FL}, s{S_FL}, s{S_PST}",
              f"s_mul_i32 s{S_CNT}, s{S_KOFF}, {4*9216}", f"s_add_u32 s{S_PST}, s{S_PST}, s{S_CNT}", f"s_add_u32 s{S_PST}, s{S_PST}, s{S_W9K}",
              f"s_lshl_b32 s{S_FX0}, s{S_FX0}, 2", f"s_add_u32 s{S_FX0}, s{S_FX0}, s{S_KOFF}", f"s_mul_i32 s{S_FX0}, s{S_FX0}, {32*1152}",
              f"s_mul_i32 s{S_CNT}, s{S_RE}, 288", f"s_add_u32 s{S_FX0}, s{S_FX0}, s{S_CNT}", f"s_min_u32 s{S_FX1}, s{S_WAVE}, 1", f"s_lshl_b32 s{S_FX1}, s{S_FX1}, 30",
              f"s_add_u32 s{S_CNT}, s{S_KOFF}, 1", f"s_and_b32 s{S_CNT}, s{S_CNT}, 3", f"s_mul_i32 s{S_FR}, s{S_CNT}, {4*9216}", f"s_add_u32 s{S_FR}, s{S_FR}, s{S_FL}",
              f"s_add_u32 s{S_CNT}, s{S_KOFF}, 2", f"s_and_b32 s{S_CNT}, s{S_CNT}, 3", f"s_mul_i32 s{S_FR+1}, s{S_CNT}, {4*9216}", f"s_add_u32 s{S_FR+1}, s{S_FR+1}, s{S_FL}",
              f"s_add_u32 s{S_CNT}, s{S_KOFF}, 3", f"s_and_b32 s{S_CNT}, s{S_CNT}, 3", f"s_mul_i32 s{S_FR+2}, s{S_CNT}, {4*9216}", f"s_add_u32 s{S_FR+2}, s{S_FR+2}, s{S_FL}",
              f"s_add_u32 s{S_CNT}, s{S_WAVE}, 1", f"s_lshr_b32 s{S_CNT}, s{S_CNT}, 2", f"s_mul_i32 s{S_CNT}, s{S_CNT}, {80*1024+27648}",
              f"s_add_u32 s{S_W0B}, s{S_W9K}, {128*1024}", f"s_sub_u32 s{S_W0B}, s{S_W0B}, s{S_CNT}"]
    pg = []
    for s in range(NP3):
        if s in (8, 16): order = [(kp, nt) for nt in range(9) for kp in range(2)]
        else: order = [(kp, nt) for kp in range(2) for nt in range(9)]
        for kp, nt in order: pg.append((s, kp, nt))
    def p3_reads(gi):
        s, kp, nt = pg[gi]; base = P3_AR[gi % 4]
        out = []
        for q in range(2):
            ks = 2 * kp + q
            if s == 0: va, o = (V_PWA[2], 12 * 1024 + (ks * 9 + nt) * 1024) if ks < 3 else (V_PWA[0], 48 * 1024 + nt * 1024)
            else: va, o = V_PWA[(s - 1) % 3], (ks * 9 + nt) * 1024
            out.append((f"ds_read_b128 v[{base+4*q}:{base+4*q+3}], v{va} offset:{o}", f"PA{gi%4}"))
        return out
    pm = []
    for gi, (s, kp, nt) in enumerate(pg):
        for mt in range(2):
            for q in range(2):
                a = (AD if s < 9 else AS)(nt, mt); b = Breg(s, 2 * kp + q, mt); ar = P3_AR[gi % 4] + 4 * q
                C = "0" if (s in (0, 9) and kp == 0 and q == 0) else f"v[{a}:{a+3}]"
                pm.append(f"v_mfma_f32_16x16x32_bf16 v[{a}:{a+3}], v[{ar}:{ar+3}], a[{b}:{b+3}], {C}")
    TL = [att_tile(it, last_block=True, first_mfmas=(pm[:72] if it == 3 else None)) for it in range(4)]
    T28, T29, T30, T31 = TL
    T28.cur = T28.idx(T28.Q[50]); T28.put(poll_load("PL"))
    cv, cs = poll_check(2, "p2")
    T28.PV[40].sh.append(WaitFor(vm=("PL",))); T28.PV[41].sh += cs[:1]; T28.PV[42].post += cv; T28.PV[44].sh += cs[1:]
    free = [g for g in T28.G[:T28.idx(T28.PV[54])] if not g.sh and id(g) not in T28.reserved]
    assert len(free) >= len(setup3), len(free)
    for s_, g in zip(setup3, free): g.sh.append(s_)
    L2T = os.environ.get("L2T", "")
    if L2T:
        V_TH, V_TD = 3, V_SV
        p(f"v_min_u32 v{V_TH}, 15, v{V_LANE}"); p(f"v_lshlrev_b32 v{V_TH}, 7, v{V_TH}")
        for t in [f"s_and_b32 s13, s{S_J}, 7", f"s_lshl_b32 s13, s13, 2", f"s_add_u32 s13, s13, s{S_WAVE}", f"s_lshl_b32 s13, s13, 11",
                  f"s_lshl_b32 s14, s{S_RB}, 16", f"s_add_u32 s13, s13, s14", f"s_lshr_b32 s14, s{S_J}, 3", f"s_mul_i32 s15, s14, {9*524288}", f"s_add_u32 s13, s13, s15",
                  f"s_lshr_b32 s15, s2, 3", f"s_lshl_b32 s15, s15, 2", f"s_add_u32 s15, s15, s{S_WAVE}", f"s_lshl_b32 s15, s15, 11",
                  f"s_mul_i32 s14, s14, {1152*1152}", f"s_add_u32 s14, s14, s15"]: p(t)
        tl = []
        for x in L2T.split(","):
            if x[0] == "h": tl.append((13, H_OFF + int(x[1:]) * 524288))
            else: tl.append((14, WPD_OFF + int(x[1:]) * 262144))
        slots_ = [(T, g) for T in (T28, T29, T30) for g in (T.Q[8], T.Q[40], T.PV[10], T.PV[42])]
        for (T, g0_), (base, off) in zip(slots_, tl):
            T.cur = 0; ld_ = T.lastdma; T.lastdma = T.idx(g0_) - 4
            T.put((f"buffer_load_dword v{V_TD}, v{V_TH}, s[{S_WS}:{S_WS+3}], s77 offen sc1", "TCH"), g0_, sal=[f"s_add_u32 s77, s{base}, {off}"], cap=3)
            T.lastdma = ld_
    for n in range(4): T28.PV[57 + 2 * n].valu.append(f"v_mov_b32 v{V_RPS+4+n}, -1")
    T29.cur = 2; ld_ = T29.lastdma; T29.lastdma = 0
    for nt in range(9):
        T29.put((f"buffer_store_dwordx4 v[{V_RPS+4}:{V_RPS+7}], v{V_L16}, s[{S_WS}:{S_WS+3}], s{S_SIG} offen offset:{(nt%3)*1024} sc1", "DST"), T29.Q[2 + 5 * nt],
                sal=([f"s_add_u32 s{S_SIG}, s{S_PST}, {PART_OFF + PSTRIDE + nt*1024}"] if nt % 3 == 0 else ()), cap=3)
        T29.lastdma = T29.cur - 1
    T29.lastdma = max(ld_, T29.lastdma)
    T29.cur = T29.idx(T29.Q[50]); T29.lastdma = max(T29.lastdma, T29.idx(T29.Q[50]))
    for sal_, op in p3_w(0): T29.put(op, sal=sal_); T29.lastdma = T29.cur - 1
    T30.wv.append("PW0")
    mix = p3_b(0) + p3_w(1)
    T30.Q[49].valu.append(f"v_add_u32 v{V_PWA[1]}, {P3_SLOT[1]}, v{V_L16}"); T30.Q[51].valu.append(f"v_add_u32 v{V_PWA[2]}, {P3_SLOT[2]}, v{V_L16}")
    T30.cur = T30.idx(T30.PV[2])
    for r, lo in T30.pv_v: T30.put(r, lo)
    T30.cur = T30.idx(T30.PV[52])
    for r in p3_reads(0) + p3_reads(1) + p3_reads(2): T30.put(r)
    T30.cur = T30.idx(T30.PV[2]); T30.lastdma = T30.cur
    for n, (sal_, op) in enumerate(mix):
        T30.put(op, T30.PV[2 + 3 * n], sal=sal_, cap=3); T30.lastdma = T30.cur - 1
    T30.G[-1].post.append(WaitFor(lg=("PA0",), vm=("PB0",)))
    T31.wv.append("PW1")
    Q = T31.Q
    for gi in range(1, 18): Q[4 * gi - 1].sh.insert(0, WaitFor(lg=(f"PA{gi%4}",)))
    for gi in range(3, 18):
        for n, r in enumerate(p3_reads(gi)): Q[4 * (gi - 3) + 1 + 2 * n].mem.append(r)
    T31.cur = 0
    vr = [r for dt in range(4) for r in v_reads(VS(3), dt)]
    for n, r in enumerate(vr): T31.put(r, Q[4 * n], cap=3)
    T31.cur = 0; T31.lastdma = 0
    for n, (sal_, op) in enumerate(p3_b(1) + p3_b(2)):
        T31.put(op, Q[4 * n + 2], sal=sal_, cap=3); T31.lastdma = T31.cur - 1
    T31.cur = T31.idx(T31.PV[2])
    for r, lo in T31.pv_v: T31.put(r, lo); T31.cur += 1
    T31.cur = T31.idx(T31.PV[50])
    for r in p3_reads(18) + p3_reads(19) + p3_reads(20): T31.put(r); T31.cur += 1
    T31.cur = T31.idx(T31.PV[2]); T31.lastdma = T31.cur
    for sal_, op in p3_w(2): T31.put(op, sal=sal_); T31.lastdma = T31.cur - 1
    T31.PV[63].sh.append(WaitFor(lg=(f"PA{18%4}",), vm=("PB1",)))
    P = [None] * 72 + [Gap(m) for m in pm[72:]]
    for gi in range(21, len(pg)):
        i = gi % 18
        rd = p3_reads(gi)
        if i == 0: g0_ = 4 * (gi - 2); pos = (g0_, g0_ + 1)
        elif i == 1: g0_ = 4 * (gi - 3); pos = (g0_ + 2, g0_ + 3)
        else: g0_ = 4 * (gi - 3); pos = (g0_, g0_ + 2)
        for g_, r in zip(pos, rd): P[g_].mem.append(r)
    barw = {}
    for gi in range(19, len(pg)):
        s = pg[gi][0]; g = P[4 * gi - 1]
        if gi % 18 == 16 and s + 1 < NP3:
            barw[s] = WaitFor(vm=[f"PW{s+1}", f"PB{s+1}"], lg0=True)
            P[4 * gi - 2].sh.append(barw[s]); g.sh.append("s_barrier")
        else: g.sh.append(WaitFor(lg=(f"PA{gi%4}",)))
    def after_barrier(s): return 72 * s + 64
    OSIG = int(os.environ.get("OSIG", "4")); DSIG = int(os.environ.get("DSIG", "13")); OCAP = int(os.environ.get("OCAP", "3"))
    barw[OSIG].vm = tuple(barw[OSIG].vm) + ("OST",)
    P[after_barrier(OSIG) - 6].valu.append(sig_val(3)); P[after_barrier(OSIG) + 5].mem.append((sig_store, None))
    P[after_barrier(OSIG) + 1].sh.append(f"s_cmp_lg_u32 s{S_MIX}, 0"); P[after_barrier(OSIG) + 2].sh += ["s_cbranch_scc1 L_stub_w3", Label("L_ret_w3")]
    barw[DSIG].vm = tuple(barw[DSIG].vm) + ("DST",)
    P[after_barrier(DSIG) - 6].valu.append(sig_val(4)); P[after_barrier(DSIG) + 5].mem.append((sig_store, None))
    P[72*5+1].sh.append(f"s_lshl_b32 s{S_CNT}, s{S_RB}, 11"); P[72*5+2].sh.append(f"s_lshl_b32 s{S_RE}, s{S_KOFF}, 9"); P[72*5+4].sh.append(f"s_add_u32 s{S_RE}, s{S_RE}, s{S_CNT}")
    P[72*5+5].valu += [f"v_and_b32 v{V_PA}, 7, v{V_LANE}", f"v_lshl_add_u32 v{V_PA}, v{V_PA}, 3, s{S_RE}"]
    P[72*6+69].mem.append(poll_load("PL"))
    P[72*7+28].sh.append(WaitFor(vm=("PL",)))
    cv, cs = poll_check(3, "p3")
    P[72*7+29].valu += cv; P[72*7+29].sh += cs[:1]; P[72*7+30].post += cs[1:]
    PQ = DSIG + 1
    P[72*PQ+49].mem.append(poll_load("PL"))
    P[72*(PQ+1)+12].sh.append(WaitFor(vm=("PL",)))
    cv, cs = poll_check(4, "p4")
    P[72*(PQ+1)+13].valu += cv; P[72*(PQ+1)+13].sh += cs[:1]; P[72*(PQ+1)+13].post += cs[1:]
    HINT = int(os.environ.get("HINT", "1"))
    P[72*16 + HINT - 4].valu.append(sig_val(5)); P[72*16 + HINT].mem.append((sig_store, None))
    FD, GG, FXR, TT = 160, 208, 56, 16
    def fin_loads(kind, dst, tag):
        ops = []
        for m in range(3):
            for sp in range(3):
                tm = tmp()
                ops.append(([f"s_add_u32 s{tm}, s{S_FR+sp}, {PART_OFF + kind*PSTRIDE}"],
                            (f"buffer_load_dwordx4 v[{dst+(m*4+sp)*4}:{dst+(m*4+sp)*4+3}], v{V_FL+m}, s[{S_WS}:{S_WS+3}], s{tm} offen sc1", tag)))
        return annotate(ops)
    own_reads = lambda kind, dst, tag: [(f"ds_read_b128 v[{dst+(m*4+3)*4}:{dst+(m*4+3)*4+3}], v{V_OWR} offset:{kind*9216 + m*4096}", tag) for m in range(3)]
    xq = []
    for m in range(3):
        r = V_XO + m
        xq += [f"v_lshl_add_u32 v{r}, s{S_WAVE}, 6, v{V_LANE}"] + ([f"v_add_u32 v{r}, {256*m}, v{r}"] if m else [])
        xq += [f"v_mul_u32_u24 v71, 3641, v{r}", f"v_lshrrev_b32 v71, 16, v71", f"v_mul_u32_u24 v71, {1152-288}, v71", f"v_lshl_add_u32 v{r}, v{r}, 4, v71"]
        if m == 2: xq += [f"v_add_u32 v{r}, s{S_FX1}, v{r}"]
        xq.append(("MEM", [], (f"buffer_load_dwordx4 v[{FXR+4*m}:{FXR+4*m+3}], v{r}, s[{S_XI}:{S_XI+3}], s{S_FX0} offen", "FX")))
    for s in range(1, NP3):
        ops = []
        if s + 2 < NP3:
            w, b = p3_w(s + 2), p3_b(s + 2)
            if s == 7:
                place_mem(P, w, 72 * s, 72 * s + 28); place_mem(P, b, 72 * s + 30, 72 * s + 63); continue
            ops = w[:4] + b[:4] + w[4:8] + b[4:] + w[8:]
        if s == PQ + 1:
            assert s == 15
            place_mem(P, fin_loads(0, FD, "FD") + [([], r) for r in own_reads(0, FD, "FO")], 72 * s + 14, 72 * s + 63); continue
        if ops: place_mem(P, ops, 72 * s - int(os.environ.get('P3E', '0')), 72 * s + int(os.environ.get('P3W', '63')))
    allg = T31.PV + P[72:]
    OT = 96
    def o_item(n, qt, s):
        T = OT + (n % 4) * 8; D = OT + 32 + (n % 4) * 4
        q = []
        for h in range(2):
            o = A_O + ((2 * s + h) * 4 + qt) * 4
            for r in range(4): q.append(f"v_accvgpr_read_b32 v{T+4*h+r}, a{o+r}")
        for i in range(8): q.append(f"v_mul_f32 v{T+i}, v{T+i}, v{V_LS+4+qt}")
        for i in range(4): q.append(f"v_cvt_pk_bf16_f32 v{D+i}, v{T+2*i}, v{T+2*i+1}")
        q.append(("MEM", [f"s_add_u32 s{S_SIG}, s{S_OBASE}, {O_OFF + qt*4096}"], (f"buffer_store_dwordx4 v[{D}:{D+3}], v{V_L16}, s[{S_WS}:{S_WS+3}], s{S_SIG} offen offset:{s*1024}{SCO}", "OST")))
        return q
    pre = xlane_ops("v_add_f32", [V_LS + 5, V_LS + 7], OT + 48) + [f"v_rcp_f32 v{V_LS+4+qt}, v{V_LS+4+qt}" for qt in range(4)]
    n = 0; lim = 64 + after_barrier(OSIG - 1) - 72 + 30
    pre += xq
    q = list(pre); mins = [2] * len(pre)
    for s in range(4):
        for qt in range(4):
            it_ = o_item(n, qt, s); n += 1
            q += it_; mins += [16 * (s + 1) + 4] * len(it_)
    left = fill_valu(allg[:lim], 2, q, mins=mins, cap=OCAP); assert not left, len(left)
    fs = [f"v_add_u32 v{V_FL}, s{S_W1K}, v{V_L16}", f"v_add_u32 v{V_FL+1}, 4096, v{V_FL}", f"v_add_u32 v{V_FL+2}, s{S_VOFF}, v{V_FL}",
          f"v_and_b32 v{V_YW}, 15, v{V_LANE}", f"v_mul_u32_u24 v{V_YW}, 288, v{V_YW}", f"v_lshrrev_b32 v{V_YW+1}, 4, v{V_LANE}",
          f"v_lshl_add_u32 v{V_YW}, v{V_YW+1}, 3, v{V_YW}", f"v_lshl_add_u32 v{V_YW}, s{S_WAVE}, 5, v{V_YW}",
          f"v_lshrrev_b32 v{V_YW+1}, 16, s{S_FX1}", f"v_add_u32 v{V_YW+1}, v{V_YW+1}, v{V_YW}"]
    sal6 = [f"s_lshl_b32 s{S_FL}, s{S_RB}, 3", f"s_and_b32 s{S_T2+32}, s{S_J}, 7", f"s_add_u32 s{S_FL}, s{S_FL}, s{S_T2+32}", f"s_lshl_b32 s{S_FL}, s{S_FL}, 9",
            f"s_add_u32 s{S_FL}, s{S_FL}, {F5_OFF}",
            f"s_lshl_b32 s{S_W0B}, s{S_WAVE}, 7", f"s_add_u32 s{S_W0B}, s{S_W0B}, s{S_FL}", f"s_lshl_b32 s{S_W0B+1}, s{S_KOFF}, 3", f"s_add_u32 s{S_W0B}, s{S_W0B}, s{S_W0B+1}",
            f"s_lshl_b32 s{S_W0B+1}, s{S_KOFF}, 7", f"s_add_u32 s{S_FL}, s{S_FL}, s{S_W0B+1}",
            f"s_add_u32 s{S_W0B+1}, s{S_KOFF}, 1",
            [f"s_cmp_eq_u32 s{S_WAVE}, s{S_KOFF}", f"s_cselect_b32 s{S_W0B+2}, {1 << 30}, 0", f"s_cselect_b32 s{S_W0B+3}, 0, {18432}"],
            f"s_add_u32 s{S_PST}, s{S_PST}, s{S_W0B+2}", f"s_add_u32 s{S_W0B+3}, s{S_W0B+3}, {OWN_LDS}",
            [f"s_cmp_eq_u32 s{S_WAVE}, 0", f"s_cselect_b32 s{S_VOFF}, 8192, {1 << 30}"]]
    g_ = 72 * 6
    for x in sal6:
        while P[g_].sh: g_ += 1
        P[g_].sh += x if isinstance(x, list) else [x]
        g_ += 1
    assert g_ < 72 * 6 + 60
    fs += [f"v_add_u32 v{V_OWN}, s{S_W0B+3}, v{V_L16}", f"v_add_u32 v{V_OWR}, {OWN_LDS}, v{V_FL}"]
    left = fill_valu(P[:72 * 8], 72 * 6 + 60, fs); assert not left
    fs2 = [f"v_mov_b32 v{V_SA}, s{S_W0B}", f"v_min_u32 v{V_PA}, 2, v{V_LANE}", f"v_add_u32 v{V_PA}, s{S_W0B+1}, v{V_PA}", f"v_and_b32 v{V_PA}, 3, v{V_PA}",
           f"v_lshl_add_u32 v{V_PA}, v{V_PA}, 3, s{S_FL}"]
    left = fill_valu(P[:72 * 9], 72 * 8, fs2); assert not left
    def part_item(A, nt, kind, tag):
        a = A(nt, 0)
        q = [f"v_cvt_pk_bf16_f32 v{a+i}, v{a+2*i}, v{a+2*i+1}" for i in range(4)]
        q.append(("MEM", [f"s_add_u32 s{S_SIG}, s{S_PST}, {PART_OFF + kind*PSTRIDE + nt*1024}"], (f"buffer_store_dwordx4 v[{a}:{a+3}], v{V_L16}, s[{S_WS}:{S_WS+3}], s{S_SIG} offen sc1", tag)))
        q.append(("MEM", [], (f"ds_write_b128 v{V_OWN}, v[{a}:{a+3}] offset:{kind*9216 + nt*1024}", None)))
        return q
    for nt in range(9):
        left = fill_valu(P[:72 * DSIG], 72 * 8 + 12 + ((72 * (DSIG - 8) - 30) * nt) // 8, part_item(AD, nt, 0, "DST")); assert not left
    sleft = []
    for nt in range(9):
        sleft += fill_valu(P, 72 * 16 + 8 * (nt + 1) + 4, part_item(AS, nt, 1, "SST"))
    gq = []
    def unpack_sum(src, dst, pk=False):
        q = []
        for i in range(4):
            q += [f"v_lshlrev_b32 v{dst+2*i}, 16, v{src+i}", f"v_and_b32 v{dst+2*i+1}, s{S_THR}, v{src+i}"]
        for sp in range(1, 4):
            T = TT + 8 * (sp % 2)
            for i in range(4):
                q += [f"v_lshlrev_b32 v{T+2*i}, 16, v{src+4*sp+i}", f"v_and_b32 v{T+2*i+1}, s{S_THR}, v{src+4*sp+i}"]
            if pk:
                for i in range(0, 8, 2): q.append(f"v_pk_add_f32 v[{dst+i}:{dst+i+1}], v[{dst+i}:{dst+i+1}], v[{T+i}:{T+i+1}]")
            else:
                for i in range(8): q.append(f"v_add_f32 v{dst+i}, v{dst+i}, v{T+i}")
        return q
    P[72*13+1].post.append(f"s_mov_b32 s{S_THR}, 0xffff0000")
    for m in range(3):
        D = GG + 8 * m; T = FD + 16 * m
        gq += unpack_sum(FD + 16 * m, D, pk=True)
        gq += [f"v_mul_f32 v{T+i}, {f2u(-LOG2E)}, v{D+i}" for i in range(8)]
        gq += [f"v_exp_f32 v{T+i}, v{T+i}" for i in range(8)]
        gq += [f"v_add_f32 v{T+i}, 1.0, v{T+i}" for i in range(8)]
        gq += [f"v_rcp_f32 v{T+i}, v{T+i}" for i in range(8)]
        gq += [f"v_pk_mul_f32 v[{D+i}:{D+i+1}], v[{D+i}:{D+i+1}], v[{T+i}:{T+i+1}]" for i in range(0, 8, 2)]
    gleft = gq
    print("phase3 leftovers: s-part", len(sleft), "gate", len(gleft))
    for T in TL:
        finish_tile(T); emit_gaps(p, T.G)
    if 'finepro' not in ABL:
        stamp(p, 7); stamp_rt(p, 16)
        for s, k in ((3, 8), (6, 9), (9, 10), (13, 11)): P[72 * s - 1].post += stamp_ops(k)
    if 'finep3' in ABL:
        stamp(p, 0)
        for s in range(1, 17): P[72 * (s + 1) - 1].post = [x for x in P[72 * (s + 1) - 1].post if not (isinstance(x, str) and ("s76" in x or "s[76" in x or x == "s_waitcnt lgkmcnt(0)"))] + stamp_ops(s)
    emit_gaps(p, P[72:])
    if 'finep' not in ABL: stamp(p, 12); stamp_rt(p, 17)
    emit_ops(p, sleft)
    XU = 32
    FS = 96
    def s_loads():
        for sal_, op in fin_loads(1, FS, "FS"):
            for s_ in sal_: p(s_)
            p(op[0], op[1])
    p("s_waitcnt lgkmcnt(0)")
    s_loads()
    p.items.append(WaitFor(vm=("FD",)))
    p("s_barrier")
    for t, tag in own_reads(1, FS, "FO"): p(t, tag)
    emit_ops(p, gleft)
    for i in range(12):
        p(f"v_lshlrev_b32 v{XU+2*i}, 16, v{FXR+i}"); p(f"v_and_b32 v{XU+2*i+1}, s{S_THR}, v{FXR+i}")
    if 'finep' not in ABL: stamp(p, 13)
    p(f"s_mov_b32 s{S_CNT}, 0x40000"); p(f"s_add_u32 s{S_PV}, s{S_EP}, 5")
    p.label("L_dcheck")
    p("s_waitcnt vmcnt(0)")
    q_ = [FS + (m * 4 + sp) * 4 + i for m in range(3) for sp in range(3) for i in range(4)]
    p(f"v_max_u32 v{V_PT}, v{q_[0]}, v{q_[1]}"); p(f"v_max_u32 v{V_PT+1}, v{q_[2]}, v{q_[3]}")
    for i in range(4, 36, 2): p(f"v_max3_u32 v{V_PT+(i//2)%2}, v{V_PT+(i//2)%2}, v{q_[i]}, v{q_[i+1]}")
    p(f"v_max_u32 v{V_PT}, v{V_PT}, v{V_PT+1}")
    p(f"v_cmp_eq_u32 vcc, -1, v{V_PT}")
    p("s_cbranch_vccz L_dready")
    p(f"s_cmp_eq_u32 s{S_CNT}, 0x40000"); p("s_cbranch_scc0 L_dagain")
    p(f"s_call_b64 s[{S_RET}:{S_RET+1}], L_spin0")
    p.label("L_dagain")
    s_loads()
    p(f"s_sub_u32 s{S_CNT}, s{S_CNT}, 1"); p(f"s_cmp_lg_u32 s{S_CNT}, 0"); p("s_cbranch_scc1 L_dcheck")
    p("s_waitcnt vmcnt(0)")
    p.label("L_dready")
    if 'finep' not in ABL: stamp(p, 14)
    p("s_waitcnt lgkmcnt(0)")
    for m in range(3):
        D = FD + 8 * m
        for t in unpack_sum(FS + 16 * m, D, pk=True): p(t)
        for i in range(0, 8, 2): p(f"v_pk_mul_f32 v[{D+i}:{D+i+1}], v[{D+i}:{D+i+1}], v[{GG+8*m+i}:{GG+8*m+i+1}]")
        for i in range(4): p(f"v_cvt_pk_bf16_f32 v{D+i}, v{D+2*i}, v{D+2*i+1}")
        for mt in range(2): p(f"ds_write_b64 v{V_YW + (1 if m == 2 else 0)}, v[{D+2*mt}:{D+2*mt+1}] offset:{m*128 + mt*4608}")
    p("s_waitcnt lgkmcnt(0)"); p("s_barrier")
    for m in range(3): p(f"ds_read_b128 v[{128+4*m}:{131+4*m}], v{V_FL} offset:{m*4096}")
    for m in range(3):
        p(f"s_waitcnt lgkmcnt({2-m})")
        D = 96 + 8 * m; T = XU + 8 * m
        for i in range(4):
            p(f"v_lshlrev_b32 v{D+2*i}, 16, v{128+4*m+i}"); p(f"v_and_b32 v{D+2*i+1}, s{S_THR}, v{128+4*m+i}")
        for i in range(0, 8, 2): p(f"v_pk_add_f32 v[{D+i}:{D+i+1}], v[{D+i}:{D+i+1}], v[{T+i}:{T+i+1}]")
        for i in range(4): p(f"v_cvt_pk_bf16_f32 v{D+i}, v{D+2*i}, v{D+2*i+1}")
        p(f"buffer_store_dwordx4 v[{D}:{D+3}], v{V_XO+m}, s[{S_OUT}:{S_OUT+3}], s{S_FX0} offen")
    if STAMP: p("s_waitcnt vmcnt(0)")
    stamp(p, 19); stamp_rt(p, 21)
    if 'dbgout' in ABL:
        p(f"s_cmp_eq_u32 s2, 250"); p(f"s_cselect_b32 s76, 36, 0x1000"); p("s_cmp_eq_u32 s2, 1"); p("s_cselect_b32 s76, 8, s76")
        p(f"s_cmp_eq_u32 s{S_WAVE}, 0"); p("s_cselect_b32 s76, s76, 0x1000"); p("v_mov_b32 v1, s76")
        p(f"s_lshr_b32 s77, s{S_EP}, 8")
        for n, k in enumerate((100, 95, 96, 97, 101)):
            p(f"s_sub_u32 s76, s{k}, s77"); p("s_and_b32 s76, s76, 0xffffff"); p("v_mov_b32 v2, s76")
            p(f"buffer_store_dword v2, v1, s[{S_DBG}:{S_DBG+3}], 0 offen offset:{4*n}")
        for n, (a_, b_) in enumerate(((81, 80), (99, 80))):
            p(f"s_sub_u32 s76, s{a_}, s{b_}"); p("v_mov_b32 v2, s76")
            p(f"buffer_store_dword v2, v1, s[{S_DBG}:{S_DBG+3}], 0 offen offset:{20+4*n}")
    else:
        stamp_dump(p, 70, S_WAVE, 1)
    p.label("L_done"); p("s_endpgm")

    rare = Prog(); p = rare
    for site, var in rare_sites:
        p.label(f"L_rare_stub{site}")
        p(f"s_call_b64 s[{S_RET}:{S_RET+1}], L_rare{var}")
        p(f"s_branch L_rare_ret{site}")
    for name in stubs:
        p.label(f"L_stub_{name}")
        p(f"s_call_b64 s[{S_RET}:{S_RET+1}], L_spin0")
        p(f"s_branch L_ret_{name}")
    for name in ("w2", "w3"):
        p.label(f"L_stub_{name}")
        p("buffer_wbl2 sc1"); p("s_waitcnt vmcnt(0)")
        p(f"s_branch L_ret_{name}")
    p.label("L_spin0")
    p(f"s_mov_b32 s{S_SPIN}, {'0x40' if 'Lno' in ABL else '0x40000'}")
    p.label("L_spin1")
    p(poll_load(None)[0])
    p(f"s_sub_u32 s76, s{S_EP}, s{S_PV}"); p("s_add_u32 s76, s76, 8")
    p("s_waitcnt vmcnt(0)")
    for t in flag_test(V_PT): p(t)
    p(f"v_cmp_le_u32 vcc, s76, v{V_PT}")
    p("s_cbranch_vccz L_spin2")
    p(f"s_sub_u32 s{S_SPIN}, s{S_SPIN}, 1"); p("s_sleep 1"); p(f"s_cmp_lg_u32 s{S_SPIN}, 0"); p("s_cbranch_scc1 L_spin1")
    p.label("L_spin2")
    p(f"s_setpc_b64 s[{S_RET}:{S_RET+1}]")
    rare_items = fix_hazards(rare.items)[0]
    for var in ("0", "1", "Z"):
        par = 1 if var == "Z" else int(var)
        rp = Prog(); p = rp
        p.label(f"L_rare{var}")
        p("s_nop 15")
        Lold = V_LS + (1 - par) * 4
        for qt in range(4):
            rowmax(p, par, qt, V_R + qt)
            p(f"v_log_f32 v{V_R+4}, v{Lold+qt}")
            if BIAS:
                p(f"v_max_f32 v{V_R+qt}, v{V_R+qt}, v{V_R+4}"); p(f"v_add_f32 v{V_R+qt}, {f2u(BIAS)}, v{V_R+qt}"); p(f"v_max_f32 v{V_R+qt}, 0, v{V_R+qt}")
            else: p(f"v_max3_f32 v{V_R+qt}, v{V_R+qt}, v{V_R+4}, 0")
        for t in xlane_ops("v_max_f32", [V_R + q for q in range(4)], V_R + 4): p(t)
        for qt in range(4):
            p(f"v_sub_f32 v{V_R+4+qt}, 0, v{V_R+qt}"); p(f"v_exp_f32 v{V_R+4+qt}, v{V_R+4+qt}")
        for qt in range(4):
            p(f"v_mul_f32 v{Lold+qt}, v{Lold+qt}, v{V_R+4+qt}")
            if var != "Z":
                for r in range(4): p(f"v_sub_f32 v{V_NM+4*qt+r}, v{V_NM+4*qt+r}, v{V_R+qt}")
            for pp in ((par,) if var == "Z" else (0, 1)):
                for kt in range(4):
                    for r in range(4): p(f"v_sub_f32 v{Sreg(pp,kt,qt)+r}, v{Sreg(pp,kt,qt)+r}, v{V_R+qt}")
            for dt in range(8):
                o = A_O + (dt * 4 + qt) * 4
                for r in range(4): p(f"v_accvgpr_read_b32 v{V_E+r}, a{o+r}")
                for r in range(4): p(f"v_mul_f32 v{V_E+r}, v{V_E+r}, v{V_R+4+qt}")
                for r in range(4): p(f"v_accvgpr_write_b32 a{o+r}, v{V_E+r}")
        for tau in range(64):
            p(op_exp(par, tau))
            if tau % 4 >= 2: p(op_add(par, tau))
            if tau % 2 == 1: p(op_cvt(par, tau))
        for qt in (0, 2):
            p(l_mfma(par, qt, 0)); p(l_mfma(par, qt, 1)); p(op_ladd(par, qt))
        if var != "Z":
            for tau in range(4): p(op_exp(1 - par, tau))
            p(op_cvt(1 - par, 1))
        p("s_nop 3")
        p(f"s_setpc_b64 s[{S_RET}:{S_RET+1}]")
        rare_items += fix_hazards(rp.items)[0]

    resolve_waits(pro.items + body.items + body.items + tail.items)
    pi = lower_waits(pro.items); bi = lower_waits(body.items); ti = lower_waits(tail.items)
    pi, a1 = fix_hazards(pi, verbose=False, name="pro")
    bi2, a2 = fix_hazards(bi, prev=bi, verbose=True, name="body")
    bi3, a3 = fix_hazards(bi2, prev=pi, verbose=True, name="body-entry")
    ti, a4 = fix_hazards(ti, prev=bi3, verbose=True, name="tail")
    wc = WaitChecker(); wc.run(pi + bi3 + bi3 + ti)
    for e in wc.errors[:10]: print("WAITCHECK", e)
    assert check_needs(pi + bi3 + bi3 + ti) == 0
    for it in pi + bi3 + ti:
        if isinstance(it, Ins): it.text = it.text.split(' ; need[')[0]
    return pi + bi3 + ti + rare_items

if __name__ == "__main__":
    import sys
    HEADER = open("cdna_kernels/" + NAME + ".s.ref").read().split("; Override")[0]
    items = gen_mega()
    k = NAME + "_kernel"
    s = HEADER + f"; @launch grid=(256,1,1) block=(256,1,1) lds={LDS_BYTES}\n"
    s += '.amdgcn_target "amdgcn-amd-amdhsa--gfx950"\n' + kernel_text(k, items, 512, 256)
    s += "L_code_end:\n    s_endpgm\n" + '.section .rodata,"a"\n.p2align 6\n' + kd_text(k, 512, 256)
    open(sys.argv[1], "w").write(s)
```

```python
from common import *
import math
LDS_BYTES = 160 * 1024
LOG2E = 1.4426950408889634
QSCALE = LOG2E / math.sqrt(128.0)
GC1 = -2.0 * math.sqrt(2.0 / math.pi) * LOG2E
GC2 = GC1 * 0.044715
CUT = int(os.environ.get("CUT", "30"))
BIAS = float(126 - CUT) if CUT else 0.0
THRESH = 2.0 ** (int(os.environ.get("THR", "64")) - BIAS)
ABL = os.environ.get('ABL', '')
NTW = "" if "nontw" in ABL else " nt"
NTQ = "" if "nontq" in ABL else " nt"
NTT = '' if 'nontt' in ABL else ' nt'
NTX = " nt" if "ntx" in ABL else ""
NTKV = " nt" if 'ntkv' in ABL else ""
WS_BYTES = 128 << 20
WPO_OFF = WP_OFF
WPD_OFF = WP_OFF + 4096 * 1152
FLAG_OFF = (100 << 20) if 'farflag' in ABL else (5 << 19)
SCH = ' sc1' if 'sch' in ABL else ''
SCO = ' sc1' if 'sco' in ABL else ''
LSC = '' if 'nolsc' in ABL else ' sc1'
P3NT = ' nt' if 'p3nt' in ABL else ''
PSTRIDE = 64 * 4 * 4 * 9216

S_HF = 4
S_WG, S_WU, S_WQ, S_K, S_V, S_WS, S_DBG, S_XI = 8, 12, 16, 20, 24, 28, 32, 36
S_WAVE, S_RB, S_J = 40, 41, 42
S_RE = 43
S_T0, S_T1, S_T2 = 44, 45, 46
S_KOFF, S_VOFF = 47, 48
S_W1K = 49
S_RET = 50
S_CNT = 52
S_W3K = 53
S_BF, S_BH, S_BQ = 54, 55, 56
S_RS, S_RD = 57, 58
S_RNW = 59
S_HHALF = 60
S_THR = 61
S_OBASE = 62
S_XB = 63
S_PTR = 64
S_W6K = 3
S_PV = 79
S_SIG = 78
S_SPIN = 75
S_EP = 74
S_FO = 73
S_MIX = 72
S_XCC = 69
S_EP2 = 68
S_PW, S_PW2, S_PB0, S_PB1 = 54, 55, 56, 57
S_W9K = 53
S_PST = 58
S_FL = 59
S_FX0, S_FX1 = 60, 63
S_OUT = 16

V_SA = 0
V_L16 = 1
V_WF, V_WQ = 2, 3
V_RA = 4
V_RH = 8
V_QP = 10
V_C1, V_C2 = 12, 13
V_KD, V_VD = 14, 15
V_AF = 16
V_T = 52
V_HO = 68
V_KA = 76
V_TA = 76
V_VA = 80
V_RQ = 88
V_ACC = 96
V_X = 224
WSLOT = [128 * 1024, 80 * 1024, 40 * 1024, 104 * 1024]
def wbase(slot):
    b = WSLOT[slot]
    return (0, b - 40 * 1024) if b < 104 * 1024 else (1, b - 104 * 1024)
def xreg(ks, mt):
    f = ks * 4 + mt
    return f"a[{4*f}:{4*f+3}]" if f < 64 else f"v[{V_X+4*(f-64)}:{V_X+4*(f-64)+3}]"

A_Q, A_KF, A_VF, A_O = 0, 64, 96, 128
V_S = 96
V_P0 = 224
V_P1 = 16
V_NM = 32
V_LS = 48
V_E = 56
V_CK = 9
V_ONE = 10
V_R = 64
V_LD = 72
V_RPS = 88
V_RPG, V_RPL = 2, 3
V_PT = 4
V_SV = 6
V_PA = 8
V_LANE = 2
KS = lambda T: (T + 3) % 4
VS = lambda T: (T + 1) % 4
P3_SLOT = [0, 80 * 1024, 116 * 1024]
AD = lambda nt, mt: 160 + (nt * 2 + mt) * 4
AS = lambda nt, mt: (96 + (nt * 2 + mt) * 4) if nt < 8 else (240 + mt * 4)
P3_AR = [32, 40, 88, 232]
V_PWA = [1, 76, 77]
V_XO = 68
V_YW = 78
V_FL = 80
S_FR = 64
V_OWN = 84
V_OWR = 85
OWN_LDS = 40 * 1024
FX_OFF = 16384
F5_OFF = 32768
S_W0B = 12

from k12 import Gap, emit_gaps, slots_of, fill_valu

def emit_ops(p, ops):
    for op in ops:
        if isinstance(op, tuple):
            for t in op[1]: p(t)
            p(op[2][0], op[2][1])
        else: p(op)

def annotate(ops):
    out = []; cur = []
    for sal, (txt, tag) in ops:
        if sal: cur = list(sal)
        out.append((sal, (txt + " ; need[" + "|".join(cur) + "]", tag)))
    return out

def check_needs(items):
    last = {}; bad = 0
    for it in items:
        if not isinstance(it, Ins): continue
        if "; need[" in it.text:
            for t in it.text.split("; need[")[1].rstrip("]").split("|"):
                if not t: continue
                d = Ins(t).wr[0]
                if last.get(d) != t:
                    bad += 1; print("NEEDCHECK:", it.text, "<- last writer", last.get(d))
        if it.kind == "salu":
            for r in it.wr: last[r] = it.text
    return bad

def gen_mega():
    pro = Prog(); p = pro
    stubs = []
    def poll_check(val, name):
        stubs.append(name)
        return (flag_test(V_PT) + [f"v_cmp_le_u32 vcc, {8-val}, v{V_PT}"],
                [f"s_add_u32 s{S_PV}, s{S_EP}, {val}", f"s_cbranch_vccnz L_stub_{name}", Label(f"L_ret_{name}")])
    def flag_test(r):
        return [f"v_and_b32 v{r}, 0xffffff87, v{r}", f"v_xor_b32 v{r+1}, s{S_EP2}, v{r+1}", f"v_subrev_u32 v{r}, s{S_PV}, v{r}",
                f"v_min_u32 v{r+1}, 1, v{r+1}", f"v_lshl_or_b32 v{r}, v{r+1}, 8, v{r}"]
    poll_load = lambda tag: (f"buffer_load_dwordx2 v[{V_PT}:{V_PT+1}], v{V_PA}, s[{S_WS}:{S_WS+3}], s{S_FO} offen sc1", tag)
    sig_store = f"buffer_store_dwordx2 v[{V_SV}:{V_SV+1}], v{V_SA}, s[{S_WS}:{S_WS+3}], s{S_FO} offen sc1"
    sig_val = lambda val: f"v_add_u32_e64 v{V_SV}, s{S_XCC}, {val}"

    p("s_cmp_ge_u32 s2, 256"); p("s_cbranch_scc1 L_done")
    stamp_rt(p, 20); stamp(p, 0)
    LX = 96
    p(f"s_load_dwordx2 s[{S_XI}:{S_XI+1}], s[0:1], {ARG['x']}")
    p(f"s_load_dwordx4 s[68:71], s[0:1], {ARG['dbg']}")
    p(f"s_getpc_b64 s[{S_K}:{S_K+1}]")
    p.label("L_pc0")
    p(f"s_and_b32 s{S_K+1}, s{S_K+1}, 0xffff"); p(f"s_mov_b32 s{S_K+2}, L_code_end-L_pc0"); p(f"s_mov_b32 s{S_K+3}, 0x20000")
    p(f"s_lshr_b32 s{S_T1}, s2, 3"); p(f"s_lshl_b32 s{S_T0}, s{S_T1}, 12"); p("v_lshlrev_b32 v16, 4, v0")
    p(f"buffer_load_dwordx4 v[160:163], v16, s[{S_K}:{S_K+3}], s{S_T0} offen", "CODE")
    p(f"s_and_b32 s{S_CNT}, s2, 7"); p(f"s_lshl_b32 s{S_CNT}, s{S_CNT}, 5"); p(f"s_or_b32 s{S_CNT}, s{S_CNT}, s{S_T1}")
    p("v_lshrrev_b32 v18, 5, v0"); p("v_and_b32 v19, 31, v0"); p(f"s_mul_i32 s{S_T0}, s{S_CNT}, 9216")
    p("v_mul_u32_u24 v20, 1152, v18"); p("v_lshl_add_u32 v20, v19, 4, v20")
    p(f"s_mov_b32 s{S_XI+2}, {XN_BYTES}"); p(f"s_mov_b32 s{S_XI+3}, 0x20000")
    p("s_waitcnt lgkmcnt(0)")
    for m in range(3):
        p(f"buffer_load_dwordx4 v[{LX+4*m}:{LX+4*m+3}], v20, s[{S_XI}:{S_XI+3}], s{S_T0} offen offset:{m*384}{NTX}", "LX")
    p(f"s_load_dwordx2 s[{S_WQ}:{S_WQ+1}], s[0:1], {ARG['wq']}")
    p(f"s_load_dwordx4 s[72:75], s[0:1], {ARG['wg']}")
    p(f"s_load_dwordx4 s[64:67], s[0:1], {ARG['k']}")
    p("s_memrealtime s[76:77]")
    p("v_lshrrev_b32 v16, 6, v0"); p("v_and_b32 v17, 63, v0"); p("v_cmp_gt_u32 vcc, 24, v19")
    p(f"v_readfirstlane_b32 s{S_WAVE}, v16")
    srd(p, S_DBG, 68, 256); srd(p, S_WS, 70, WS_BYTES)
    if 'tlb' in ABL:
        p("v_min_u32 v37, 41, v17"); p("v_lshlrev_b32 v37, 21, v37"); p("v_mov_b32 v38, 128")
        p(f"buffer_load_dword v165, v37, s[{S_WS}:{S_WS+3}], 0 offen", "TCH")
        p(f"buffer_load_dword v166, v38, s[{S_DBG}:{S_DBG+3}], 0 offen", "TCH")
    p(f"s_mov_b64 s[{S_RET}:{S_RET+1}], vcc")
    p(f"s_and_b32 s{S_T0}, s2, 7")
    p(f"s_and_b32 s{S_RB}, s{S_T1}, 3"); p(f"s_lshr_b32 s{S_T1}, s{S_T1}, 2")
    p(f"s_and_b32 s{S_T2}, s{S_T0}, 1"); p(f"s_lshl_b32 s{S_T2}, s{S_T2}, 2"); p(f"s_add_u32 s{S_RB}, s{S_RB}, s{S_T2}")
    p(f"s_lshr_b32 s{S_T0}, s{S_T0}, 1"); p(f"s_lshl_b32 s{S_J}, s{S_T0}, 3"); p(f"s_add_u32 s{S_J}, s{S_J}, s{S_T1}")
    p(f"s_mov_b32 s{S_WQ+2}, {576*8192}"); p(f"s_mov_b32 s{S_WQ+3}, 0x20000")
    p(f"v_lshlrev_b32 v{V_L16}, 4, v17"); p("v_mov_b32 v71, 0")
    p("s_waitcnt lgkmcnt(0)")
    p(f"s_lshl_b32 s{S_T1}, s2, 2"); p(f"s_add_u32 s{S_T1}, s{S_T1}, s{S_WAVE}"); p(f"s_cmp_lg_u32 s{S_T1}, 1"); p("s_cbranch_scc1 L_noleader")
    p("s_lshl_b64 s[76:77], s[76:77], 8"); p("s_or_b32 s76, s76, 128"); p("v_mov_b32 v30, s76"); p("v_mov_b32 v31, s77")
    p.raw(f"    buffer_store_dwordx2 v[30:31], v71, s[{S_DBG}:{S_DBG+3}], 0 offen sc1")
    p.label("L_noleader")
    p("v_lshrrev_b32 v20, 4, v17"); p("v_and_b32 v22, 15, v17")
    p("v_lshlrev_b32 v23, 2, v20"); p("v_xor_b32 v23, v23, v22"); p("v_lshlrev_b32 v24, 13, v20"); p(f"v_lshl_add_u32 v{V_WQ}, v23, 4, v24")
    p(f"s_mul_i32 s{S_W6K}, s{S_WAVE}, 6144")
    p(f"s_mul_i32 s{S_BQ}, s{S_WAVE}, {24*8192}"); p(f"s_lshl_b32 s{S_T0}, s{S_J}, 8"); p(f"s_add_u32 s{S_BQ}, s{S_BQ}, s{S_T0}")

    stages = [("q", 0, sub, 0) for sub in range(6)] + [("h", 0, sub, 0) for sub in range(3)]
    for t in range(4): stages += [("f", t, sub, (t + 1) % 2) for sub in range(3)]
    NST = len(stages)
    tmpsel = [0]
    def tmp():
        tmpsel[0] ^= 1
        return (S_T0, S_T1)[tmpsel[0]]
    def w_dma(st):
        kind, t, sub, buf = stages[st]; slot = st % 4
        ops = []
        if kind == "q":
            for i in range(6):
                tm = tmp()
                sal = [f"s_add_u32 s{tm}, s{S_BQ}, {(sub * 96 + 4 * i) * 8192}", f"s_add_u32 m0, s{S_W6K}, {WSLOT[slot] + i*1024}"]
                ops.append((sal, (f"buffer_load_dwordx4 v{V_WQ}, s[{S_WQ}:{S_WQ+3}], s{tm} offen{NTQ} lds", f"W{st}")))
            return annotate(ops)
        for reg in range(2):
            for i in range(3):
                base, srdn = (S_BH if kind == "h" else S_BF), (S_WG, S_WU)[reg]
                imm = (sub * 192 + 16 * i) * 9216 + t * 64
                tm = tmp()
                sal = [f"s_add_u32 s{tm}, s{base}, {imm}", f"s_add_u32 m0, s{S_W3K}, {WSLOT[slot] + reg*12288 + i*1024}"]
                ops.append((sal, (f"buffer_load_dwordx4 v{V_WF}, s[{srdn}:{srdn+3}], s{tm} offen{NTW} lds", f"W{st}")))
        return annotate(ops)
    def x_loads(k0, k1):
        ops = []
        for ks in range(k0, k1):
            for mt in range(4):
                ops.append(([f"s_add_u32 s{S_RD}, s{S_XB}, {ks*4096}"] if mt == 0 else [],
                            (f"buffer_load_dwordx4 {xreg(ks, mt)}, v{V_L16}, s[{S_WS}:{S_WS+3}], s{S_RD} offen offset:{mt*1024} sc1", f"X{ks//3}")))
        return annotate(ops)
    def kv_dma(which, tile_slot, soff, add):
        ops = []
        for t in range(4):
            tm = tmp()
            base = (0 if which == "K" else 65536) + tile_slot * 16384 + t * 4096
            srdn = S_K if which == "K" else S_V
            if soff is None: sal = [f"s_mov_b32 s{tm}, {add + t*4096}"]
            else: sal = [f"s_add_u32 s{tm}, s{soff}, {add + t*4096}"]
            sal.append(f"s_add_u32 m0, s{S_W1K}, {base}")
            ops.append((sal, (f"buffer_load_dwordx4 v{V_KD if which == 'K' else V_VD}, s[{srdn}:{srdn+3}], s{tm} offen{NTKV} lds", f"{which}{tile_slot}")))
        return annotate(ops)
    def issue(ops):
        for sal, op in ops:
            for s in reversed(sal): p(s)
            p(op[0], op[1])
    PV_ = os.environ.get('PROV', 'D')
    srd(p, S_WG, 72, 576 * 9216); srd(p, S_WU, 74, 576 * 9216)
    def w3(st):
        for i in range(8):
            tm = tmp()
            p(f"s_add_u32 m0, s{S_RNW}, {WSLOT[st % 4] + i*1024}"); p(f"s_add_u32 s{tm}, s{S_RE}, {(st * 96 + 4 * i) * 8192}")
            p(f"buffer_load_dwordx4 v{V_WQ}, s[{S_WQ}:{S_WQ+3}], s{tm} offen{NTQ} lds", f"W{st}")
    if 'latebad' in ABL:
        srd(p, S_V, 72, 0); p("v_mov_b32 v36, 0"); p(f"s_mov_b32 s{S_RS}, 0")
    p(f"s_cmp_eq_u32 s{S_WAVE}, 0"); p("s_cbranch_scc1 L_w0a")
    p(f"s_sub_u32 s{S_T2}, s{S_WAVE}, 1"); p(f"s_lshl_b32 s{S_RNW}, s{S_T2}, 13"); p(f"s_lshl_b32 s{S_RE}, s{S_T2}, 18"); p(f"s_add_u32 s{S_RE}, s{S_RE}, s{S_T0}")
    w3(0)
    p(f"s_lshr_b32 s{S_T0}, s2, 3"); p(f"s_mul_i32 s{S_T0}, s{S_T0}, 3"); p(f"s_add_u32 s{S_T0}, s{S_T0}, s{S_T2}")
    p(f"s_and_b32 s{S_T1}, s{S_T0}, 1"); p(f"s_cmp_eq_u32 s{S_T1}, 0")
    p(f"s_cselect_b32 s{S_V}, s{S_WG}, s{S_WU}"); p(f"s_cselect_b32 s{S_V+1}, s{S_WG+1}, s{S_WU+1}"); p(f"s_mov_b32 s{S_V+2}, {576*9216}"); p(f"s_mov_b32 s{S_V+3}, 0x20000")
    p(f"s_lshr_b32 s{S_T0}, s{S_T0}, 1"); p(f"s_mul_i32 s{S_RS}, s{S_T0}, {12*9216}")
    p(f"s_lshr_b32 s{S_T2}, s{S_J}, 3"); p(f"s_mul_i32 s{S_T2}, s{S_T2}, 2304"); p(f"s_add_u32 s{S_RS}, s{S_RS}, s{S_T2}")
    p(f"s_sub_u32 s{S_T1}, 384, s{S_V}"); p(f"s_sub_u32 s{S_T1}, s{S_T1}, s{S_T2}"); p(f"s_and_b32 s{S_T1}, s{S_T1}, 1023"); p(f"s_add_u32 s{S_RS}, s{S_RS}, s{S_T1}")
    p("v_min_u32 v36, 35, v17"); p("v_mul_u32_u24 v27, 43, v36"); p("v_lshrrev_b32 v27, 7, v27")
    p(f"v_mul_u32_u24 v27, {9216 - 3072}, v27"); p("v_lshl_add_u32 v36, v36, 10, v27")
    if 'latebad' not in ABL: p(f"buffer_load_dword v164, v36, s[{S_V}:{S_V+3}], s{S_RS} offen", "TCH")
    p.label("L_w0a")
    p("v_lshrrev_b32 v26, 3, v17"); p("v_and_b32 v27, 3, v26"); p("v_lshrrev_b32 v26, 2, v26"); p("v_and_b32 v28, 7, v17")
    p("v_lshl_add_u32 v27, v27, 4, v28"); p("v_lshlrev_b32 v27, 4, v27"); p("v_lshl_add_u32 v26, v26, 12, v27")
    p(f"s_lshr_b32 s{S_T0}, s{S_CNT}, 3"); p(f"s_mul_i32 s{S_RD}, s{S_T0}, 73728")
    p(f"s_and_b32 s{S_T1}, s{S_CNT}, 6"); p(f"s_lshl_b32 s{S_T1}, s{S_T1}, 9"); p(f"s_add_u32 s{S_RD}, s{S_RD}, s{S_T1}")
    p(f"s_and_b32 s{S_T1}, s{S_CNT}, 1"); p(f"s_lshl_b32 s{S_T1}, s{S_T1}, 7"); p(f"s_add_u32 s{S_RD}, s{S_RD}, s{S_T1}")
    p(f"s_mov_b32 s{S_FO}, {FLAG_OFF}")
    p(f"s_getreg_b32 s{S_XCC}, hwreg(HW_REG_XCC_ID, 0, 4)"); p(f"s_lshl_b32 s{S_XCC}, s{S_XCC}, 3")
    p(f"s_lshl_b32 s{S_T0}, s{S_T0}, 9"); p(f"s_and_b32 s{S_T1}, s{S_CNT}, 7"); p(f"s_lshl_b32 s{S_T1}, s{S_T1}, 3"); p(f"s_add_u32 s{S_T0}, s{S_T0}, s{S_T1}"); p(f"s_add_u32 s{S_T0}, s{S_T0}, {FX_OFF}")
    p(f"v_mov_b32 v31, s{S_T0}")
    p(f"s_lshl_b32 s{S_T0}, s{S_RB}, 11"); p(f"s_and_b32 s{S_T1}, s{S_J}, 24"); p(f"s_lshl_b32 s{S_T1}, s{S_T1}, 6"); p(f"s_add_u32 s{S_T1}, s{S_T1}, s{S_T0}")
    p(f"v_lshl_add_u32 v{V_TA}, v28, 3, s{S_T1}")
    p(f"s_and_b32 s{S_T2}, s{S_J}, 7"); p(f"s_lshl_b32 s{S_T2}, s{S_T2}, 3"); p(f"s_add_u32 s{S_T1}, s{S_T1}, s{S_T2}")
    p(f"v_writelane_b32 v31, s{S_T1}, 1")
    p(f"s_cmp_eq_u32 s{S_WAVE}, 0"); p(f"s_cselect_b32 s{S_T1}, s{S_T1}, {1 << 30}"); p(f"v_mov_b32 v{V_SA}, s{S_T1}")
    p(f"s_add_u32 s{S_T0}, s{S_T0}, {FX_OFF}"); p(f"v_lshl_add_u32 v30, v28, 3, s{S_T0}"); p("v_and_b32 v27, 24, v17"); p("v_lshl_add_u32 v30, v27, 6, v30")
    p(f"s_lshl_b32 s{S_T0}, s{S_RB}, 2"); p(f"s_add_u32 s{S_T0}, s{S_T0}, s{S_WAVE}")
    p(f"s_mul_i32 s{S_XB}, s{S_T0}, 73728"); p(f"s_lshl_b32 s{S_OBASE}, s{S_T0}, 14")
    if 'finepro' in ABL: stamp(p, 2)
    F = 112
    pr = lambda r: f"v[{r}:{r+1}]"
    p(f"s_mov_b32 s{S_T2}, 0xffff0000")
    for i in range(4): p(f"v_mov_b32 v{140+i}, 0")
    p("v_lshlrev_b32 v25, 7, v19"); p("v_lshl_add_u32 v25, v18, 4, v25")
    p(f"s_cmp_eq_u32 s{S_WAVE}, 0"); p("s_cbranch_scc0 L_w0b")
    nt_ = 2 if 'tlb' in ABL else 0
    p.raw(f"    s_waitcnt vmcnt({nt_})")
    p.label("L_w0b")
    p(f"s_waitcnt vmcnt({9 + nt_})")
    p(f"buffer_load_dwordx2 v[72:73], v71, s[{S_DBG}:{S_DBG+3}], 0 offen sc1", "EP")
    if 'finepro' in ABL: stamp(p, 3)
    for i in range(12):
        p(f"v_lshlrev_b32 v{F+2*i}, 16, v{LX+i}"); p(f"v_and_b32 v{F+2*i+1}, s{S_T2}, v{LX+i}")
    for i in range(6): p(f"v_pk_add_f32 {pr(144+2*i)}, {pr(F+4*i)}, {pr(F+4*i+2)}")
    for i in range(3): p(f"v_pk_add_f32 {pr(144+4*i)}, {pr(144+4*i)}, {pr(146+4*i)}")
    p(f"v_pk_add_f32 {pr(144)}, {pr(144)}, {pr(148)}")
    p(f"s_mov_b64 exec, s[{S_RET}:{S_RET+1}]")
    p(f"v_pk_add_f32 {pr(140)}, {pr(144)}, {pr(152)}")
    p("s_mov_b64 exec, -1")
    def reduce32(r, t):
        p(f"v_add_f32 v{r}, v{r}, v{r+1}")
        for mod in ("quad_perm:[1,0,3,2]", "quad_perm:[2,3,0,1]", "row_half_mirror", "row_mirror"):
            p(f"v_add_f32_dpp v{r}, v{r}, v{r} {mod} row_mask:0xf bank_mask:0xf")
        p(f"v_mov_b32 v{t}, v{r}"); p(f"v_permlane16_swap_b32 v{r}, v{t}"); p(f"v_add_f32 v{r}, v{r}, v{t}")
    reduce32(140, 141)
    p(f"v_mul_f32 v140, {f2u(-1.0/576)}, v140")
    for i in range(12): p(f"v_pk_add_f32 {pr(168+2*i)}, {pr(F+2*i)}, {pr(140)} op_sel_hi:[1,0]")
    p(f"v_cvt_pk_bf16_f32 v140, v140, v140")
    for i in range(2): p(f"v_pk_mul_f32 {pr(144+2*i)}, {pr(168+2*i)}, {pr(168+2*i)}")
    p(f"v_and_b32 v140, s{S_T2}, v140")
    for i in range(2, 12): p(f"v_pk_fma_f32 {pr(144+2*(i%2))}, {pr(168+2*i)}, {pr(168+2*i)}, {pr(144+2*(i%2))}")
    p(f"s_mov_b64 exec, s[{S_RET}:{S_RET+1}]")
    p(f"v_pk_add_f32 {pr(142)}, {pr(144)}, {pr(146)}")
    p("s_mov_b64 exec, -1")
    red = Prog(); p_ = p; p = red
    reduce32(142, 143)
    p(f"v_mul_f32 v142, {f2u(1.0/576)}, v142")
    def rnd(r):
        p(f"v_cvt_pk_bf16_f32 v{r}, v{r}, v{r}"); p(f"v_and_b32 v{r}, s{S_T2}, v{r}")
    rnd(142)
    p(f"v_add_f32 v142, {f2u(1e-5)}, v142"); rnd(142)
    p("v_sqrt_f32 v142, v142"); rnd(142)
    p("v_rcp_f32 v143, v142"); p("v_fma_f32 v144, -v142, v143, 1.0"); p("v_fma_f32 v142, v144, v143, v143")
    p = p_
    oth = [f"v_pk_add_f32 {pr(F+2*i)}, {pr(F+2*i)}, {pr(140)} op_sel_hi:[1,0]" for i in range(12)]
    oth += [f"v_cvt_pk_bf16_f32 v{F+2*i+1}, v{F+2*i}, v{F+2*i+1}" for i in range(12)]
    for i in range(12): oth += [f"v_lshlrev_b32 v{F+2*i}, 16, v{F+2*i+1}", f"v_and_b32 v{F+2*i+1}, s{S_T2}, v{F+2*i+1}"]
    for it in red.items:
        p.items.append(it)
        for t in oth[:2]: p(t)
        oth = oth[2:]
    for t in oth: p(t)
    for i in range(12): p(f"v_pk_mul_f32 {pr(F+2*i)}, {pr(F+2*i)}, {pr(142)} op_sel_hi:[1,0]")
    for i in range(12): p(f"v_cvt_pk_bf16_f32 v{LX+i}, v{F+2*i}, v{F+2*i+1}")
    p(f"s_mov_b64 exec, s[{S_RET}:{S_RET+1}]")
    for m in range(3): p(f"ds_write_b128 v25, v[{LX+4*m}:{LX+4*m+3}] offset:{m*24*128}")
    p("s_mov_b64 exec, -1")
    p("s_waitcnt lgkmcnt(0)"); p("s_barrier")
    p(f"s_cmp_lg_u32 s{S_WAVE}, 0"); p("s_cbranch_scc1 L_noxs")
    for m in range(9): p(f"ds_read_b128 v[{LX+4*m}:{LX+4*m+3}], v{V_L16} offset:{m*1024}")
    for m in range(9):
        p(f"s_waitcnt lgkmcnt({8-m})")
        p(f"buffer_store_dwordx4 v[{LX+4*m}:{LX+4*m+3}], v26, s[{S_WS}:{S_WS+3}], s{S_RD} offen sc1", "XS")
        if m < 8: p(f"s_add_u32 s{S_RD}, s{S_RD}, 8192")
    def ep_wait(sfx):
        p(f"s_mov_b32 s{S_SPIN}, 0x40000")
        p.label(f"L_eppoll{sfx}")
        p(f"v_readfirstlane_b32 s{S_EP}, v72"); p(f"v_readfirstlane_b32 s{S_EP2}, v73")
        p(f"s_cmp_lg_u32 s{S_EP}, 0"); p(f"s_cbranch_scc1 L_epok{sfx}")
        p.raw(f"    buffer_load_dwordx2 v[72:73], v71, s[{S_DBG}:{S_DBG+3}], 0 offen sc1")
        p.raw("    s_waitcnt vmcnt(0)")
        p(f"s_sub_u32 s{S_SPIN}, s{S_SPIN}, 1"); p(f"s_cmp_lg_u32 s{S_SPIN}, 0"); p(f"s_cbranch_scc1 L_eppoll{sfx}")
        p.label(f"L_epok{sfx}")
    if 'finepro' in ABL: stamp(p, 4)
    p("s_waitcnt vmcnt(0)")
    ep_wait("a")
    p(f"s_add_u32 s{S_T0}, s{S_XCC}, s{S_EP}"); p(f"s_add_u32 s{S_PV}, s{S_EP}, 1")
    p(f"v_add_u32_e64 v32, s{S_T0}, 1"); p("v_mov_b32 v33, v73")
    p(f"buffer_store_dwordx2 v[32:33], v31, s[{S_WS}:{S_WS+3}], s{S_FO} offen sc1")
    if 'wdelay' in ABL: p("s_barrier")
    if 'finepro' in ABL: stamp(p, 5)
    p(f"s_mov_b32 s{S_SPIN}, 0x40000")
    p.label("L_xpoll")
    p(f"buffer_load_dwordx2 v[34:35], v30, s[{S_WS}:{S_WS+3}], s{S_FO} offen sc1")
    p("s_waitcnt vmcnt(0)")
    for t in flag_test(34): p(t)
    p("v_cmp_le_u32 vcc, 7, v34")
    p("s_cbranch_vccz L_xready")
    p(f"s_sub_u32 s{S_SPIN}, s{S_SPIN}, 1"); p(f"s_cmp_lg_u32 s{S_SPIN}, 0"); p("s_cbranch_scc1 L_xpoll")
    p("s_branch L_xready")
    p.label("L_noxs")
    if 'finepro' in ABL: stamp(p, 4)
    if 'wdelay' in ABL: p("s_barrier")
    w3(1)
    if PV_ == 'D': w3(2)
    if 'finepro' in ABL: stamp(p, 5)
    p.label("L_xready")
    p("s_barrier")
    if 'finepro' in ABL: stamp(p, 6)
    issue(x_loads(0, 3))
    p("v_lshrrev_b32 v18, 2, v17"); p("v_and_b32 v19, 3, v17"); p("v_and_b32 v21, 3, v18")
    p(f"s_lshl_b32 s{S_W1K}, s{S_WAVE}, 10")
    p("v_lshl_add_u32 v23, v20, 3, v21"); p("v_lshlrev_b32 v24, 8, v23"); p("v_lshl_add_u32 v24, v19, 4, v24"); p(f"v_add_u32 v24, {40*1024}, v24")
    for sg_ in range(4):
        p(f"v_xor_b32 v25, {sg_}, v21"); p(f"v_lshl_add_u32 v{V_RQ+sg_}, v25, 6, v24"); p(f"v_add_u32 v{V_RQ+4+sg_}, {64*1024}, v{V_RQ+sg_}")
    p("v_lshlrev_b32 v23, 6, v23")
    p("v_and_b32 v24, 1, v20"); p("v_lshlrev_b32 v24, 5, v24")
    p("v_lshl_add_u32 v25, v19, 3, v23")
    p(f"v_add_u32 v{V_RA}, v25, v24"); p(f"v_add_u32 v{V_RA}, {40*1024}, v{V_RA}")
    p(f"v_xor_b32 v{V_RA+1}, 32, v{V_RA}")
    p(f"v_add_u32 v{V_RA+2}, {64*1024}, v{V_RA}"); p(f"v_add_u32 v{V_RA+3}, {64*1024}, v{V_RA+1}")
    p(f"s_and_b32 s{S_T2}, s{S_J}, 1"); p(f"s_lshl_b32 s{S_T0}, s{S_T2}, 5")
    p(f"v_xor_b32 v{V_RH}, s{S_T0}, v{V_RA}"); p(f"v_add_u32 v{V_RH+1}, {64*1024}, v{V_RH}")
    p("v_lshrrev_b32 v23, 5, v17"); p("v_lshlrev_b32 v23, 1, v23"); p("v_xor_b32 v23, v23, v19")
    p(f"v_mul_u32_u24 v24, 9216, v18"); p(f"v_lshl_add_u32 v{V_WF}, v23, 4, v24")
    p(f"v_mov_b32 v{V_C1}, {f2u(GC1)}"); p(f"v_mov_b32 v{V_C2}, {f2u(GC2)}")
    p(f"s_mul_i32 s{S_W3K}, s{S_WAVE}, 3072")
    p(f"s_mul_i32 s{S_BH}, s{S_WAVE}, {48*9216}")
    p(f"s_mul_i32 s{S_RS}, s{S_J}, 288"); p(f"s_add_u32 s{S_RS}, s{S_RS}, s{S_T0}")
    p(f"s_add_u32 s{S_BF}, s{S_BH}, s{S_RS}")
    p(f"s_lshr_b32 s{S_T0}, s{S_J}, 1"); p(f"s_lshl_b32 s{S_T0}, s{S_T0}, 19")
    for d, b in ((S_K, 64), (S_V, 66)):
        p(f"s_add_u32 s{d}, s{b}, s{S_T0}"); p(f"s_addc_u32 s{d+1}, s{b+1}, 0"); p(f"s_mov_b32 s{d+2}, 524288"); p(f"s_mov_b32 s{d+3}, 0x20000")
    p(f"s_lshr_b32 s{S_T0}, s{S_J}, 1"); p(f"s_mul_i32 s{S_KOFF}, s{S_T0}, 576"); p(f"s_add_u32 s{S_KOFF}, s{S_KOFF}, 256")
    p(f"s_add_u32 s{S_BH}, s{S_BH}, s{S_KOFF}")
    def hoff(dst, colreg, add):
        p(f"s_lshr_b32 s{S_T0}, s{colreg}, 6"); p(f"s_add_u32 s{S_T0}, s{S_T0}, {add}")
        p(f"s_lshr_b32 s{S_T1}, s{S_T0}, 2"); p(f"s_lshl_b32 s{S_T1}, s{S_T1}, 19")
        p(f"s_and_b32 s{S_T0}, s{S_T0}, 3"); p(f"s_lshl_b32 s{S_T0}, s{S_T0}, 10")
        p(f"s_add_u32 s{dst}, s{S_T0}, s{S_T1}"); p(f"s_add_u32 s{dst}, s{dst}, s{S_OBASE}")
    hoff(S_HHALF, S_KOFF, 0); p(f"s_lshl_b32 s{S_T0}, s{S_T2}, 3"); p(f"s_add_u32 s{S_HHALF}, s{S_HHALF}, s{S_T0}")
    for t in range(4): hoff(S_HF + t, S_RS, t)
    p(f"s_lshl_b32 s{S_T0}, s{S_J}, 19"); p(f"s_add_u32 s{S_OBASE}, s{S_OBASE}, s{S_T0}")
    p(f"s_mov_b32 s{S_THR}, {f2u(THRESH)}")
    p(f"s_lshl_b32 s{S_T0}, s{S_WAVE}, 2"); p(f"v_add_u32 v23, s{S_T0}, v20")
    p(f"v_xor_b32 v24, v22, v23"); p(f"v_lshlrev_b32 v24, 4, v24"); p(f"v_lshl_add_u32 v{V_KD}, v23, 8, v24")
    p(f"v_and_b32 v24, 7, v23"); p(f"v_lshlrev_b32 v24, 1, v24"); p(f"v_xor_b32 v24, v22, v24"); p(f"v_lshlrev_b32 v24, 4, v24"); p(f"v_lshl_add_u32 v{V_VD}, v23, 8, v24")
    for ks in range(2, 4):
        p(f"v_add_u32 v23, {4*ks}, v20"); p("v_xor_b32 v23, v23, v22"); p("v_lshlrev_b32 v23, 4, v23"); p(f"v_lshl_add_u32 v{V_KA+ks}, v22, 8, v23")
    p("v_and_b32 v24, 7, v18"); p("v_lshlrev_b32 v25, 8, v18"); p("v_lshl_add_u32 v25, v19, 3, v25"); p("v_add_u32 v25, 0x10000, v25")
    for dt in range(8):
        p(f"v_xor_b32 v23, {dt}, v24"); p(f"v_lshl_add_u32 v{V_VA+dt}, v23, 5, v25")
    p(f"s_lshl_b32 s{S_T0}, s{S_WAVE}, 14"); p(f"s_cmp_eq_u32 s{S_WAVE}, 2"); p(f"s_cselect_b32 s{S_T0}, 0x10000, s{S_T0}")
    p(f"s_add_u32 s{S_T1}, s{S_T0}, 8192"); p(f"s_cmp_eq_u32 s{S_WAVE}, 3"); p(f"s_cselect_b32 s{S_T0}, 0x8000, s{S_T0}"); p(f"s_cselect_b32 s{S_T1}, {152*1024}, s{S_T1}")
    p(f"v_add_u32 v{V_QP}, s{S_T0}, v{V_L16}"); p(f"v_add_u32 v{V_QP+1}, s{S_T1}, v{V_L16}")

    groups = []
    for st in range(NST):
        kind, t, sub, buf = stages[st]
        if kind == "q":
            for nt in range(8): groups.append((st, nt, 0))
        else:
            nts = [0, 2] if kind == "h" else [0, 1, 2, 3]
            for c0 in (0, 3):
                for nt in nts: groups.append((st, nt, c0))
    def a_reads(gi):
        st, nt, c0 = groups[gi]; kind, t, sub, buf = stages[st]
        hb, off = wbase(st % 4)
        out = []
        for c in range(3):
            for tt in range(2):
                d = V_AF + (gi % 3) * 12 + c * 4 + 2 * tt
                if kind == "q":
                    addr = V_RQ + 4 * hb + (nt >> 1); o = off + c * 8192 + tt * 1024 + 8 * (nt & 1)
                else:
                    addr = (V_RA + 2 * hb + (nt & 1)) if kind == "f" else (V_RH + hb)
                    o = off + (nt >> 1) * 12288 + (c0 + c) * 2048 + tt * 256
                out.append((f"ds_read_b64_tr_b16 v[{d}:{d+1}], v{addr} offset:{o}", f"A{gi%3}"))
        return out
    acc = lambda buf, nt, mt: V_ACC + buf * 64 + (nt * 4 + mt) * 4
    gaps = []; gstart = []
    for gi, (st, nt, c0) in enumerate(groups):
        gstart.append(len(gaps))
        kind, t, sub, buf = stages[st]
        for mt in range(4):
            for c in range(3):
                a = acc(buf, nt, mt); af = V_AF + (gi % 3) * 12 + c * 4
                ks = (sub * 3 if kind == "q" else sub * 6 + c0) + c
                C = "0" if ks == 0 else f"v[{a}:{a+3}]"
                gaps.append(Gap(f"v_mfma_f32_16x16x32_bf16 v[{a}:{a+3}], v[{af}:{af+3}], {xreg(ks, mt)}, {C}"))
    NG = len(groups)
    first_of_stage = {}
    for gi, (st, nt, c0) in enumerate(groups): first_of_stage.setdefault(st, gi)
    bar_gap = {}
    for gi in range(2, NG):
        st = groups[gi][0]; f = first_of_stage[st]
        rd = a_reads(gi)
        if gi == f:
            g0 = gstart[gi - 1]; bar_gap[st] = g0 - 1
            for n, r in enumerate(rd): gaps[g0 + n].mem.append(r)
        elif gi == f + 1:
            g0 = gstart[gi - 2]
            for n, r in enumerate(rd): gaps[g0 + 6 + n].mem.append(r)
        else:
            g0 = gstart[gi - 2]
            for n, r in enumerate(rd): gaps[g0 + 2 * n].mem.append(r)
    for gi in range(1, NG):
        g = gaps[gstart[gi] - 1]
        st, nt, c0 = groups[gi]
        vm = []
        if st < 6 and nt == 0: vm.append(f"X{st}")
        nxt = groups[gi + 1][0] if gi + 1 < NG else None
        if nxt is not None and nxt != st:
            g.sh.append(WaitFor(vm=vm + [f"W{nxt}"], lg0=True)); g.sh.append("s_barrier")
        else:
            g.sh.append(WaitFor(lg=(f"A{gi%3}",), vm=vm))
    def place_mem(gaps, ops, g0, g1, dense=False, want=0):
        pitch = max(1.0, (g1 - g0 - 8) / len(ops)) if not dense else 1.0
        last = g0
        for n, (sal, op) in enumerate(ops):
            g = max(last + 1 + len(sal), int(g0 + 2 + n * pitch))
            while True:
                assert g < g1, (g0, g1, n, len(ops))
                ok = (len(gaps[g].mem) <= 1 if dense else len(gaps[g].mem) == want) and all(len(gaps[g - len(sal) + i].sh) == 0 for i in range(len(sal)))
                if ok: break
                g += 1
            for i, s in enumerate(sal): gaps[g - len(sal) + i].sh.append(s)
            gaps[g].mem.append(op); last = g
    for st in range(NST):
        g0 = gstart[first_of_stage[st]]
        g1 = bar_gap[st + 1] if st + 1 < NST else len(gaps)
        ops = []
        if st == 0: ops = (w_dma(2) if PV_ != 'D' else []) + x_loads(6, 9) + w_dma(3)
        elif st == 1: ops = x_loads(9, 12) + w_dma(4)
        elif st == 2: ops = x_loads(12, 15) + w_dma(5)
        elif st == 3: ops = x_loads(15, 18) + w_dma(6)
        elif st + 3 < NST: ops = w_dma(st + 3)
        if st == 4: ops = [([], (f"buffer_load_dwordx2 v[74:75], v{V_TA}, s[{S_WS}:{S_WS+3}], s{S_FO} offen sc1", "GX"))] + ops
        if st == 18: ops += kv_dma("V", VS(0), None, 0)
        if st == 19: ops += kv_dma("K", KS(0), None, 0)
        if st == 20: ops += kv_dma("K", KS(1), None, 16384) + kv_dma("V", VS(1), None, 16384) + kv_dma("K", KS(2), None, 32768)
        if ops: place_mem(gaps, ops, g0, g1 if st < 20 else g0 + 60)
        if st == 19:
            cand = [g for g in range(g0 + 3, g1 - 2) if not gaps[g].mem][::2]
            assert len(cand) >= 16
            for f, g in enumerate(cand[:16]):
                gaps[g].mem.append((f"ds_read_b128 a[{A_Q+4*f}:{A_Q+4*f+3}], v{V_QP + f//8} offset:{(f%8)*1024}", "QR"))
    def ffn_epi(st0, pk=False, mts=(0, 1, 2, 3)):
        kind, t, sub, buf = stages[st0]
        q = []
        for mt in mts:
            if kind == "f": el = [(acc(buf, n, mt) + r, acc(buf, 2 + n, mt) + r) for n in range(2) for r in range(4)]
            else: el = [(acc(buf, 0, mt) + r, acc(buf, 2, mt) + r) for r in range(4)]
            T = V_T + 8 * (mt % 2)
            if pk:
                pr = lambda r: f"v[{r}:{r+1}]"
                ev = list(enumerate(el))[::2]
                for e, (g, u) in ev: q.append(f"v_pk_mul_f32 {pr(T+e)}, {pr(g)}, {pr(g)}")
                for e, (g, u) in ev: q.append(f"v_pk_fma_f32 {pr(T+e)}, {pr(T+e)}, {pr(V_C1)}, {pr(V_C1)} op_sel:[0,1,0] op_sel_hi:[1,1,0]")
                for e, (g, u) in ev: q.append(f"v_pk_mul_f32 {pr(T+e)}, {pr(T+e)}, {pr(g)}")
                for e, (g, u) in enumerate(el): q.append(f"v_exp_f32 v{T+e}, v{T+e}")
                for e, (g, u) in ev: q.append(f"v_pk_mul_f32 {pr(g)}, {pr(g)}, {pr(u)}")
                for e, (g, u) in ev: q.append(f"v_pk_add_f32 {pr(T+e)}, {pr(T+e)}, 1.0 op_sel_hi:[1,0]")
                for e, (g, u) in enumerate(el): q.append(f"v_rcp_f32 v{T+e}, v{T+e}")
                for e, (g, u) in ev: q.append(f"v_pk_mul_f32 {pr(g)}, {pr(g)}, {pr(T+e)}")
            else:
                for e, (g, u) in enumerate(el): q.append(f"v_mul_f32 v{T+e}, v{g}, v{g}")
                for e, (g, u) in enumerate(el): q.append(f"v_fma_f32 v{T+e}, v{T+e}, v{V_C2}, v{V_C1}")
                for e, (g, u) in enumerate(el): q.append(f"v_mul_f32 v{T+e}, v{T+e}, v{g}")
                for e, (g, u) in enumerate(el):
                    q.append(f"v_exp_f32 v{T+e}, v{T+e}"); q.append(f"v_mul_f32 v{g}, v{g}, v{u}")
                for e, (g, u) in enumerate(el): q.append(f"v_add_f32 v{T+e}, 1.0, v{T+e}")
                for e, (g, u) in enumerate(el): q.append(f"v_rcp_f32 v{T+e}, v{T+e}")
                for e, (g, u) in enumerate(el): q.append(f"v_mul_f32 v{g}, v{g}, v{T+e}")
            o = V_HO + 4 * (mt % 2)
            for i in range(len(el) // 2): q.append(f"v_cvt_pk_bf16_f32 v{o+i}, v{el[2*i][0]}, v{el[2*i+1][0]}")
            if kind == "f":
                q.append(("MEM", [f"s_add_u32 s{S_T2}, s{S_HF+t}, {H_OFF + mt*4096}"], (f"buffer_store_dwordx4 v[{o}:{o+3}], v{V_L16}, s[{S_WS}:{S_WS+3}], s{S_T2} offen{SCH}", None)))
            else:
                q.append(("MEM", [f"s_add_u32 s{S_T2}, s{S_HHALF}, {H_OFF + mt*4096}"], (f"buffer_store_dwordx2 v[{o}:{o+1}], v{V_L16}, s[{S_WS}:{S_WS+3}], s{S_T2} offen{SCH}", None)))
        return q
    def q_epi(seg):
        q = []
        for mt in range(4):
            rs = [acc(0, 2 * seg, mt) + r for r in range(4)] + [acc(0, 2 * seg + 1, mt) + r for r in range(4)]
            o = V_T + 4 * ((seg * 4 + mt) % 4)
            for r in rs: q.append(f"v_mul_f32 v{r}, {f2u(QSCALE)}, v{r}")
            for i in range(4): q.append(f"v_cvt_pk_bf16_f32 v{o+i}, v{rs[2*i]}, v{rs[2*i+1]}")
            f = mt * 4 + seg
            q.append(("MEM", [], (f"ds_write_b128 v{V_QP + f//8}, v[{o}:{o+3}] offset:{(f%8)*1024}", None)))
        return q
    sg = lambda st: gstart[first_of_stage[st]]
    gaps[bar_gap[20] - 11].post += [f"s_load_dwordx2 s[64:65], s[0:1], {ARG['wo']}", f"s_load_dwordx2 s[66:67], s[0:1], {ARG['wd']}",
                                    f"s_load_dwordx2 s[{S_OUT}:{S_OUT+1}], s[0:1], {ARG['out']}"]
    g_ = gaps[sg(8) + 1]
    g_.post += [WaitFor(vm=("GX",)), f"v_subrev_u32 v74, s{S_XCC}, v74", f"v_xor_b32 v75, s{S_EP2}, v75", "v_min_u32 v75, 1, v75", "v_lshl_or_b32 v74, v75, 8, v74", "v_cmp_le_u32 vcc, 8, v74", "s_nop 1",
                "s_cmp_lg_u64 vcc, 0", f"s_cselect_b32 s{S_MIX}, 1, {1 if 'forcemix' in ABL else 0}"]
    f5 = first_of_stage[5]
    q = []; mins = []
    for seg in range(4):
        e_ = q_epi(seg); q += e_; mins += [gstart[f5 + 2 * seg + 2] + 3] * len(e_)
    left = fill_valu(gaps[:sg(9) - 3], gstart[f5 + 2] + 3, q, mins=mins); assert not left, len(left)
    for seg, lim_ in ((0, sg(6) - 3), (1, sg(6) + 9)):
        cv_ = [x for x in q_epi(seg) if isinstance(x, str)]
        lastg = max(gi for gi, g in enumerate(gaps) for x in g.valu if x in cv_ and gi < sg(9))
        assert lastg < lim_, (seg, lastg, lim_)
    for st0 in (6, 9, 12, 15):
        end = sg(st0 + 6) - 3 if st0 + 6 < NST else len(gaps)
        left = fill_valu(gaps[:end], sg(st0 + 3) + 3, ffn_epi(st0)); assert not left, (st0, len(left))
    left = fill_valu(gaps, sg(19), [f"v_xor_b32 v{V_KA}, 128, v{V_KA+2}", f"v_xor_b32 v{V_KA+1}, 128, v{V_KA+3}"]); assert not left
    issue(x_loads(3, 6))
    p.items.append(WaitFor(vm=("X0",)))
    p("s_barrier")
    for t, tag in a_reads(0) + a_reads(1): p(t, tag)
    ep_wait("b")
    p(f"s_add_u32 s{S_XCC}, s{S_XCC}, s{S_EP}")
    p.items.append(WaitFor(lg=("A0",)))
    stamp(p, 1)
    if 'finepro' in ABL:
        gaps[sg(1) - 1].post += stamp_ops(7); gaps[sg(2) - 1].post += stamp_ops(8); gaps[sg(3) - 1].post += stamp_ops(9)
    elif 'fine1' in ABL:
        for st in range(6, 21): gaps[sg(st) - 1].post += stamp_ops(st - 4)
    else:
        gaps[sg(6) - 1].post += stamp_ops(2); gaps[sg(12) - 1].post += stamp_ops(3)
    emit_gaps(p, gaps)
    if 'fine1' in ABL:
        stamp(p, 17); globals()['ABL'] += ',finepro'
    if 'finepro' not in ABL: stamp(p, 4)

    Sreg = lambda par, kt, qt: V_S + (1 - par) * 64 + (kt * 4 + qt) * 4
    Preg = lambda par, kb, qt: (V_P0 + par * 16 + qt * 4) if kb == 0 else (V_P1 + qt * 4)
    Kf = lambda kt, ks: A_KF + (kt % 2) * 16 + ks * 4
    Vf = lambda dt, kb: A_VF + (dt % 4) * 8 + kb * 4
    def k_reads(slot, kt):
        return [(f"ds_read_b128 a[{Kf(kt,ks)}:{Kf(kt,ks)+3}], v{V_KA+ks} offset:{slot*16384 + kt*4096}", f"KF{kt%2}") for ks in range(4)]
    def v_reads(slot, dt):
        return [(f"ds_read_b64_tr_b16 a[{Vf(dt,kb)+2*t}:{Vf(dt,kb)+2*t+1}], v{V_VA+dt} offset:{slot*16384 + kb*8192 + t*4096}", f"VF{dt%4}") for kb in range(2) for t in range(2)]
    def qk_mfma(par, kt, qt, ks, zero=False):
        s = Sreg(par, kt, qt)
        C = f"v[{s}:{s+3}]" if ks else ("0" if zero else f"v[{V_NM+4*qt}:{V_NM+4*qt+3}]")
        qf = A_Q + (qt * 4 + ks) * 4
        return f"v_mfma_f32_16x16x32_bf16 v[{s}:{s+3}], a[{Kf(kt,ks)}:{Kf(kt,ks)+3}], a[{qf}:{qf+3}], {C}"
    def pv_mfma(par, dt, qt, kb):
        o = A_O + (dt * 4 + qt) * 4; pr = Preg(par, kb, qt)
        return f"v_mfma_f32_16x16x32_bf16 a[{o}:{o+3}], a[{Vf(dt,kb)}:{Vf(dt,kb)+3}], v[{pr}:{pr+3}], a[{o}:{o+3}]"
    def l_mfma(par, qt, kb):
        pr = Preg(par, kb, qt)
        return f"v_mfma_f32_16x16x32_bf16 v[{V_LD}:{V_LD+3}], v[{V_ONE}:{V_ONE+3}], v[{pr}:{pr+3}], " + ("0" if kb == 0 else f"v[{V_LD}:{V_LD+3}]")
    def elem(par, tau):
        kb = tau // 32; r = tau % 32; qt = 2 * (r // 16) + ((r % 4) >> 1); j = 2 * ((r % 16) // 4) + (r & 1)
        return Sreg(par, 2 * kb + (j >> 2), qt) + (j & 3), kb, qt, j
    def op_exp(par, tau): return f"v_exp_f32 v{V_E + tau % 8}, v{elem(par, tau)[0]}"
    def op_add(par, tau):
        s, kb, qt, j = elem(par, tau); assert qt % 2 == 1
        src = V_LS + (1 - par) * 4 + qt if (kb == 0 and j == 0) else V_LS + par * 4 + qt
        return f"v_add_f32 v{V_LS + par*4 + qt}, v{src}, v{V_E + tau % 8}"
    def op_ladd(par, qt): return f"v_add_f32 v{V_LS + par*4 + qt}, v{V_LS + (1-par)*4 + qt}, v{V_LD}"
    def op_cvt(par, tau):
        s, kb, qt, j = elem(par, tau); assert tau % 2 == 1
        return f"v_cvt_pk_bf16_f32 v{Preg(par, kb, qt) + j//2}, v{V_E + (tau-1) % 8}, v{V_E + tau % 8}"
    def rowmax(p, par, qt, dst):
        regs = [Sreg(par, kt, qt) + r for kt in range(4) for r in range(4)]
        p(f"v_max3_f32 v{dst}, v{regs[0]}, v{regs[1]}, v{regs[2]}")
        for i in range(3, 15, 2): p(f"v_max3_f32 v{dst}, v{dst}, v{regs[i]}, v{regs[i+1]}")
        p(f"v_max_f32 v{dst}, v{dst}, v{regs[15]}")
    def xlane_ops(op, dsts, t1):
        o = []
        for sw in ("v_permlane32_swap_b32", "v_permlane16_swap_b32"):
            for q, d in enumerate(dsts): o.append(f"v_mov_b32 v{t1+q}, v{d}")
            for q, d in enumerate(dsts): o.append(f"{sw} v{d}, v{t1+q}")
            for q, d in enumerate(dsts): o.append(f"{op} v{d}, v{d}, v{t1+q}")
        return o

    p.items.append(WaitFor(vm=(f"K{KS(0)}",), lg0=True)); p("s_barrier")
    for t, tag in k_reads(KS(0), 0) + k_reads(KS(0), 1): p(t, tag)
    g0 = []
    for kt in range(4):
        for qt in range(4):
            for ks in range(4): g0.append(Gap(qk_mfma(0, kt, qt, ks, zero=True)))
    for n, r in enumerate(k_reads(KS(0), 2)): g0[16 + 2 * n].mem.append(r)
    for n, r in enumerate(k_reads(KS(0), 3)): g0[32 + 2 * n].mem.append(r)
    g0[31].sh.append(WaitFor(lg=("KF0",))); g0[47].sh.append(WaitFor(lg=("KF1",)))
    place_mem(g0, kv_dma("K", KS(3), None, 3 * 16384) + kv_dma("V", VS(2), None, 2 * 16384), 0, 40)
    full = ffn_epi(18); per = len(full) // 4
    npre = 24
    if 'finea' in ABL: stamp(p, 0)
    emit_ops(p, full[:npre])
    left = fill_valu(g0, 0, full[npre:2 * per])
    left += ffn_epi(18, pk=True, mts=(2, 3))
    p.items.append(WaitFor(lg=("KF0", "KF1")))
    sal = [f"s_mov_b32 s{S_OUT+2}, {XN_BYTES}",
           f"s_and_b32 s{S_T0}, s{S_J}, 7", f"s_lshl_b32 s{S_T1}, s{S_RB}, 3", f"s_add_u32 s{S_T0}, s{S_T0}, s{S_T1}",
           f"s_lshl_b32 s{S_T0}, s{S_T0}, 2", f"s_add_u32 s{S_T0}, s{S_T0}, s{S_WAVE}", f"s_lshr_b32 s{S_KOFF}, s{S_J}, 3",
           f"s_sub_u32 s{S_T1}, s{S_T0}, 120", f"s_cmp_lt_u32 s{S_T0}, 120",
           f"s_cselect_b32 s{S_RE}, s{S_T0}, s{S_T1}", f"s_movk_i32 s{S_RNW}, 136", f"s_cselect_b32 s{S_RNW}, 120, s{S_RNW}",
           f"s_cselect_b32 s{S_WG}, s64, s66", f"s_cselect_b32 s{S_WG+1}, s65, s67",
           f"s_mov_b32 s{S_WG+2}, {1152*1152}", f"s_cselect_b32 s{S_WG+2}, {1024*1152}, s{S_WG+2}", f"s_mov_b32 s{S_WU+2}, s{S_WG+2}",
           f"s_mov_b32 s{S_T0}, {WPD_OFF}", f"s_cselect_b32 s{S_T0}, {WPO_OFF}, s{S_T0}",
           f"s_mul_i32 s{S_T1}, s{S_KOFF}, s{S_WG+2}",
           f"s_add_u32 s{S_WG}, s{S_WG}, s{S_T1}", f"s_addc_u32 s{S_WG+1}, s{S_WG+1}, 0",
           f"s_add_u32 s{S_T0}, s{S_T0}, s{S_T1}", f"s_add_u32 s{S_WU}, s70, s{S_T0}", f"s_addc_u32 s{S_WU+1}, s71, 0",
           f"s_sub_u32 s{S_RE}, s{S_RE}, s{S_RNW}",
           f"s_mov_b32 s{S_KOFF}, {4*16384}", f"s_mov_b32 s{S_VOFF}, {3*16384}", f"s_mov_b32 s{S_CNT}, 7",
           f"s_lshl_b32 s{S_BQ}, s{S_WAVE}, 11", f"s_add_u32 s{S_BQ}, s{S_BQ}, {128*1024}"]
    fr_ = [g for g in g0[41:] if not g.sh]
    k_ = sal.index(f"s_cmp_lt_u32 s{S_T0}, 120")
    for t, g in zip(sal[:k_], fr_): g.sh.append(t)
    emit_gaps(p, g0)
    emit_ops(p, left)
    for t in sal[k_:]: p(t)
    for q in range(4): p(f"v_mov_b32 v{V_LS+4+q}, 0")
    for q in range(4): p(f"v_mov_b32 v{V_ONE+q}, 0x3f803f80")
    p.items.append(WaitFor(vm=(f"K{KS(1)}", f"V{VS(0)}"))); p("s_barrier")
    for t, tag in k_reads(KS(1), 0) + k_reads(KS(1), 1): p(t, tag)
    p(f"v_lshrrev_b32 v{V_PT+1}, 4, v{V_L16}")
    p(f"v_lshrrev_b32 v{V_RPG}, 2, v{V_PT+1}"); p(f"v_and_b32 v{V_PT}, 3, v{V_PT+1}")
    p(f"v_lshlrev_b32 v{V_RPL}, 6, v{V_RPG}"); p(f"v_lshl_add_u32 v{V_RPL}, v{V_PT}, 3, v{V_RPL}"); p(f"v_add_u32 v{V_RPL}, s{S_BQ}, v{V_RPL}")
    p(f"v_mul_u32_u24 v{V_RPG}, 1152, v{V_RPG}"); p(f"v_lshl_add_u32 v{V_RPG}, v{V_PT}, 4, v{V_RPG}")
    p(f"s_and_b32 s{S_T1}, s{S_J}, 24"); p(f"s_lshl_b32 s{S_T1}, s{S_T1}, 6"); p(f"v_and_b32 v{V_PT}, 7, v{V_PT+1}")
    p(f"v_lshrrev_b32 v{V_PA}, 3, v{V_PT+1}"); p(f"v_lshlrev_b32 v{V_PA}, 11, v{V_PA}"); p(f"v_lshl_add_u32 v{V_PA}, v{V_PT}, 3, v{V_PA}")
    p(f"v_add_u32 v{V_PA}, s{S_T1}, v{V_PA}")
    p(f"v_mov_b32 v{V_SV+1}, s{S_EP2}")
    zm = [f"v_mfma_f32_32x32x16_bf16 a[{A_O+16*i}:{A_O+16*i+15}], v[{V_LS+4}:{V_LS+7}], v[{V_LS+4}:{V_LS+7}], 0" for i in range(8)]
    for qt in range(4):
        p(zm[qt]); rowmax(p, 0, qt, V_R + qt)
    for n, t in enumerate(xlane_ops("v_max_f32", [V_R + q for q in range(4)], V_R + 4)):
        if n % 8 == 0: p(zm[4 + n // 8])
        p(t)
    p(zm[7])
    for qt in range(4):
        for r in range(4): p(f"v_sub_f32 v{V_NM+4*qt+r}, {f2u(-BIAS) if BIAS else 0}, v{V_R+qt}")
    for kt in range(4):
        for qt in range(4):
            for r in (0, 2):
                s_ = Sreg(0, kt, qt) + r
                p(f"v_pk_add_f32 v[{s_}:{s_+1}], v[{s_}:{s_+1}], v[{V_NM+4*qt}:{V_NM+4*qt+1}]")
    for tau in range(36):
        p(op_exp(0, tau))
        if tau % 4 == 0 and tau: p(op_add(0, tau - 1)); p(op_cvt(0, tau - 1))
        if tau % 4 == 2: p(op_cvt(0, tau - 1))
        if tau % 4 == 3: p(op_add(0, tau - 1))
    p.items.append(WaitFor(lg=("KF0",)))
    p(op_add(0, 35))
    if 'finepro' not in ABL: stamp(p, 5); stamp_rt(p, 15)

    rare_sites = []
    class Tile: pass
    def used(g): return len(g.mem) + sum(slots_of(v) for v in g.valu)
    def att_tile(it, last_block=False, first_mfmas=None):
        par = it % 2
        final = last_block and it == 3
        T = Tile(); G = []; Q = []; PV = []; LG = []
        mf = first_mfmas or [qk_mfma(1 - par, kt, qt, ks) for kt in range(4) for qt in range(4) for ks in range(4)]
        for i, m in enumerate(mf):
            g = Gap(m); G.append(g); Q.append(g)
            if i in (19, 23, 51, 55):
                g = Gap(l_mfma(par, 0 if i < 32 else 2, 0 if i in (19, 51) else 1)); G.append(g); LG.append(g)
        for dt in range(8):
            for qt in range(4):
                for kb in range(2):
                    g = Gap(pv_mfma(par, dt, qt, kb)); G.append(g); PV.append(g)
        T.G, T.Q, T.PV, T.LG = G, Q, PV, LG
        idx = {id(g): i for i, g in enumerate(G)}
        T.idx = lambda g: idx[id(g)]
        br = Q[-1]
        for b in range(64):
            E, N = (Q[2*b], Q[2*b+1]) if b < 32 else (PV[2*b-64], PV[2*b-63])
            sp, tau = (par, 36 + b) if b < 28 else (1 - par, b - 28)
            if tau % 4 == 0:
                if not (final and b > 28): N.valu.append(op_cvt(sp, tau - 1) if b != 28 else op_cvt(par, 63))
            if final and b >= 28: continue
            E.valu.append(op_exp(sp, tau))
            if tau % 4 == 1: N.valu.append(op_cvt(sp, tau))
            if tau % 4 >= 2: (br if b in (30, 31) else N).valu.append(op_add(sp, tau))
        L = V_LS + par * 4
        site = f"{'z' if last_block else 'l'}{it}"; rare_sites.append((site, "Z" if final else str(par)))
        Q[29].valu.append(op_ladd(par, 0))
        Q[57].valu.append(f"v_max3_f32 v{V_CK}, v{L}, v{L+1}, v{L+3}")
        Q[59].valu.append(op_ladd(par, 2))
        Q[61].valu += [f"v_max_f32 v{V_CK}, v{V_CK}, v{L+2}", f"v_cmp_lt_f32 vcc, s{S_THR}, v{V_CK}"]
        br.sh += [f"s_cbranch_vccnz L_rare_stub{site}", Label(f"L_rare_ret{site}")]
        PV[1].sh.append("s_barrier"); T.wv = []
        T.reserved = {id(PV[0]), id(PV[1])}
        if 'barE' in ABL and not final:
            PV[3].valu = PV[1].valu + PV[3].valu; PV[1].valu = []; T.reserved.add(id(PV[3]))
        kslot1, kslot2, vslot = KS(it + 1), KS(it + 2), VS(it)
        if not final:
            Q[15].sh.append(WaitFor(lg=("KF1",))); Q[31].sh.append(WaitFor(lg=("KF0",))); Q[47].sh.append(WaitFor(lg=("KF1",)))
        Q[-2].sh.append(WaitFor(lg=("VF0", "VF1", "VF2", "VF3")))
        for dt in range(4, 8): PV[8 * dt - 1].sh.append(WaitFor(lg=(f"VF{dt%4}",)))
        T.cur = 0; T.lastdma = -1
        def put(op, lo=None, sal=(), cap=2):
            g = max(T.cur, T.idx(lo) if lo is not None else 0)
            while True:
                assert g < len(G), op
                ok = not G[g].mem and used(G[g]) < cap and id(G[g]) not in T.reserved
                if ok and sal:
                    fr = [h for h in range(max(T.lastdma + (0 if len(sal) == 2 else 1), g - 6, 0), g) if not G[h].sh and id(G[h]) not in T.reserved]
                    ok = len(fr) >= len(sal)
                if ok: break
                g += 1
            if sal:
                for h, s_ in zip(fr[-len(sal):], sal): G[h].sh.append(s_)
                T.lastdma = g
            G[g].mem.append(op); T.cur = g + 1
            return g
        T.put = put
        def solo(g, sal, op, nxt=None):
            gi = T.idx(g)
            assert not g.mem
            if g.valu:
                assert not nxt.mem; nxt.valu = g.valu + nxt.valu; g.valu = []; T.reserved.add(id(nxt))
            fr = [h for h in range(gi - 3, gi) if not G[h].sh]
            assert len(fr) >= len(sal), (gi, sal)
            for h, s_ in zip(fr[-len(sal):], sal): G[h].sh.append(s_)
            g.mem.append(op); T.lastdma = max(T.lastdma, gi)
        T.solo = solo
        T.endsal = []
        if not final:
            if not (last_block and it >= 2):
                sal_, op = kv_dma("V", VS(it + 2), S_VOFF, -16384)[3]; solo(LG[0], sal_, op)
            if not last_block:
                dk = kv_dma("K", KS(it), S_KOFF, 0)
                solo(LG[1], *dk[0]); solo(Q[41], *dk[1], nxt=Q[43]); solo(LG[2], *dk[2]); solo(LG[3], *dk[3])
                T.endsal.append(f"s_add_u32 s{S_KOFF}, s{S_KOFF}, 16384")
            for r in v_reads(vslot, 0) + v_reads(vslot, 1): put(r)
            for r in k_reads(kslot1, 2): put(r, Q[16])
            v23 = v_reads(vslot, 2) + v_reads(vslot, 3)
            for r in v23[:3]: put(r)
            for r in k_reads(kslot1, 3): put(r, Q[32])
            for r in v23[3:]: put(r)
            assert T.cur <= T.idx(Q[55]), (it, T.cur)
        if not (last_block and it >= 1):
            dv = kv_dma("V", VS(it + 3), S_VOFF, 0)
            solo(PV[5], *dv[0], nxt=PV[7]); solo(PV[57], *dv[1], nxt=PV[59]); solo(PV[61], *dv[2], nxt=PV[63])
        T.cur = T.idx(PV[2])
        T.pv_v = [(r, PV[8 * (dt - 4) + 8]) for dt in range(4, 8) for r in v_reads(vslot, dt)]
        if not (last_block and it >= 2):
            for r, lo in T.pv_v: put(r, lo)
            for r in k_reads(kslot2, 0) + k_reads(kslot2, 1): put(r)
            T.wv.append(f"K{kslot2}")
            T.endsal += [WaitFor(lg=("KF0",)), f"s_add_u32 s{S_VOFF}, s{S_VOFF}, 16384"]
        if not last_block and it == 0:
            sl = [f"s_add_u32 s{S_RE}, s{S_RE}, s{S_RNW}", f"s_mul_i32 s{S_RS}, s{S_RE}, 3641", f"s_lshr_b32 s{S_RS}, s{S_RS}, 16",
                  f"s_mul_i32 s{S_RS}, s{S_RS}, {36864-1152}", f"s_lshl_b32 s{S_RD}, s{S_RE}, 6", f"s_add_u32 s{S_RS}, s{S_RS}, s{S_RD}",
                  f"s_lshl_b32 s{S_RD}, s{S_RE}, 11"]
            for n, s_ in enumerate(sl): Q[2 * n].sh.append(s_)
            Q[58].sh.append(f"s_mov_b32 m0, s{S_BQ}")
            Q[59].mem.append((f"buffer_load_dwordx4 v{V_RPG}, s[{S_WG}:{S_WG+3}], s{S_RS} offen lds", "RD"))
            Q[60].sh.append(f"s_add_u32 s{S_RS}, s{S_RS}, {16*1152-1024}")
            PV[3].mem.append((f"buffer_load_dwordx4 v{V_RPG}, s[{S_WG}:{S_WG+3}], s{S_RS} offen offset:1024 lds", "RD"))
        if not last_block and it == 2:
            PV[3].mem.append((f"ds_read_b64_tr_b16 v[{V_RPS}:{V_RPS+1}], v{V_RPL} offset:0", "RL"))
            PV[7].mem.append((f"ds_read_b64_tr_b16 v[{V_RPS+2}:{V_RPS+3}], v{V_RPL} offset:1024", "RL"))
        if not last_block and it == 3:
            Q[55].mem.append((f"ds_read_b64_tr_b16 v[{V_RPS+4}:{V_RPS+5}], v{V_RPL} offset:32", "RL"))
            Q[57].mem.append((f"ds_read_b64_tr_b16 v[{V_RPS+6}:{V_RPS+7}], v{V_RPL} offset:1056", "RL"))
        if not final: T.wv.append(f"V{VS(it+1)}")
        if not last_block:
            if it == 2: T.wv.append("RD")
            if it == 1:
                T.wv.append("RST")
                PV[10].sh.append(f"s_cmp_le_u32 s{S_CNT}, 2"); PV[11].sh.append(f"s_cselect_b32 s{S_SIG}, 2, 1")
                PV[12].sh.append(f"s_add_u32 s{S_SIG}, s{S_SIG}, s{S_XCC}"); PV[13].valu.append(f"v_mov_b32 v{V_SV}, s{S_SIG}")
                PV[16].sh.append(f"s_cmp_lg_u32 s{S_MIX}, 0"); PV[17].sh += ["s_cbranch_scc1 L_stub_w2", Label("L_ret_w2")]
                PV[20].mem.append((sig_store, None))
            if it == 3:
                PV[3].mem.append((f"buffer_store_dwordx4 v[{V_RPS}:{V_RPS+3}], v{V_L16}, s[{S_WU}:{S_WU+3}], s{S_RD} offen sc1", "RST"))
                PV[12].sh.append(WaitFor(lg=("RL",)))
                PV[14].mem.append((f"buffer_store_dwordx4 v[{V_RPS+4}:{V_RPS+7}], v{V_L16}, s[{S_WU}:{S_WU+3}], s{S_RD} offen offset:1024 sc1", "RST"))
        return T
    def finish_tile(T):
        if T.wv: T.PV[0].sh.append(WaitFor(vm=tuple(T.wv)))
        for s_ in T.endsal:
            if isinstance(s_, WaitFor):
                g = [g for g in T.PV[57:] if not g.sh][0]; g.sh.append(s_)
            else:
                c = [g for g in T.G[T.lastdma:] if not g.sh]
                (c[0].sh if c else T.G[-1].post).append(s_)
        ov = sum(max(0, used(g) - 2) + max(0, len([x for x in g.sh if not isinstance(x, Label)]) - 1) for g in T.G)
        print("tile overflow slots:", ov, "gaps", len(T.G))

    body = Prog(); p = body
    p.label("L_att_loop", 6)
    for it in range(4):
        T = att_tile(it)
        if it == 3: T.PV[40].sh.append(f"s_sub_u32 s{S_CNT}, s{S_CNT}, 1")
        finish_tile(T)
        if it == 3: T.G[-1].post += [f"s_cmp_lg_u32 s{S_CNT}, 0", "s_cbranch_scc1 L_att_loop"]
        for g in T.G:
            if 'Lnodma' in ABL: g.mem = [m for m in g.mem if not m[0].startswith("buffer")]
            if 'Lnobar' in ABL: g.sh = [x for x in g.sh if x != "s_barrier"]
            if 'Lnolds' in ABL: g.mem = [m for m in g.mem if not m[0].startswith("ds_")]
            if 'Lnotr' in ABL: g.mem = [m for m in g.mem if not m[0].startswith("ds_read_b64")]
            if 'Lnobr' in ABL: g.sh = [x for x in g.sh if not (isinstance(x, str) and x.startswith("s_cbranch"))]
            if 'Lnovalu' in ABL: g.valu = [x for x in g.valu if x.startswith(("v_exp", "v_add_u32"))]
            if 'Lnoexp' in ABL: g.valu = [x for x in g.valu if not x.startswith("v_exp")]
            if 'Lnowait' in ABL: g.sh = [x for x in g.sh if not (isinstance(x, WaitFor) and x.lg)]
        emit_gaps(p, T.G)

    tail = Prog(); p = tail
    p(f"s_getpc_b64 s[{S_WG}:{S_WG+1}]")
    p.label("L_pc1")
    p(f"s_and_b32 s{S_WG+1}, s{S_WG+1}, 0xffff"); p(f"s_mov_b32 s{S_WG+2}, L_code_end-L_pc1")
    p(f"s_lshr_b32 s{S_T0}, s2, 3"); p(f"s_lshl_b32 s{S_T0}, s{S_T0}, 2"); p(f"s_add_u32 s{S_T0}, s{S_T0}, s{S_WAVE}"); p(f"s_lshl_b32 s{S_T0}, s{S_T0}, 10")
    p(f"buffer_load_dwordx4 v[{V_RPS}:{V_RPS+3}], v{V_L16}, s[{S_WG}:{S_WG+3}], s{S_T0} offen", "CODE")
    p(f"v_lshrrev_b32 v{V_LANE}, 4, v{V_L16}")
    if 'finepro' not in ABL: stamp(p, 6)
    NP3 = 17
    Breg = lambda s, ks, mt: ((s % 3) * 4 + ks) * 8 + mt * 4
    def p3_w(s):
        off = (WPD_OFF + s * 4 * 36864) if s < 9 else (WPO_OFF + (s - 9) * 4 * 36864)
        base = S_PW if s < 9 else S_PW2
        ops = []
        for i in range(9):
            sal = []
            if i % 4 == 0:
                tm = tmp()
                m0 = f"s_add_u32 m0, s{S_W0B}, {i*1024}" if s == 0 else f"s_add_u32 m0, s{S_W9K}, {P3_SLOT[(s-1)%3] + i*1024}"
                sal = [f"s_add_u32 s{tm}, s{base}, {off + i*1024}", m0]
            ops.append((sal, (f"buffer_load_dwordx4 v{V_L16}, s[{S_WS}:{S_WS+3}], s{tm} offen offset:{(i%4)*1024}{LSC} lds", f"PW{s}")))
        return annotate(ops)
    def p3_b(s):
        off = (H_OFF + s * 524288) if s < 9 else (O_OFF + (s - 9) * 524288)
        base = S_PB0 if s < 9 else S_PB1
        ops = []
        for mt in range(2):
            for ks in range(4):
                r = Breg(s, ks, mt)
                ops.append(([f"s_add_u32 s{S_T2}, s{base}, {off + mt*4096}"] if ks == 0 else [],
                            (f"buffer_load_dwordx4 a[{r}:{r+3}], v{V_L16}, s[{S_WS}:{S_WS+3}], s{S_T2} offen offset:{ks*1024}{LSC}", f"PB{s}")))
        return annotate(ops)
    setup3 = [f"s_lshr_b32 s{S_KOFF}, s{S_J}, 3", f"s_and_b32 s{S_RE}, s{S_J}, 3", f"s_mul_i32 s{S_W9K}, s{S_WAVE}, 9216",
              f"s_mul_i32 s{S_PW2}, s{S_WAVE}, 36864", f"s_mul_i32 s{S_RNW}, s{S_RE}, 9216", f"s_add_u32 s{S_PW2}, s{S_PW2}, s{S_RNW}",
              f"s_mul_i32 s{S_PW}, s{S_KOFF}, {1152*1152}", f"s_add_u32 s{S_PW}, s{S_PW}, s{S_PW2}",
              f"s_mul_i32 s{S_RNW}, s{S_KOFF}, {1024*1152}", f"s_add_u32 s{S_PW2}, s{S_PW2}, s{S_RNW}",
              f"s_lshl_b32 s{S_PST}, s{S_RB}, 3", f"s_and_b32 s{S_RNW}, s{S_J}, 7", f"s_add_u32 s{S_PST}, s{S_PST}, s{S_RNW}",
              f"s_lshr_b32 s{S_FX0}, s{S_PST}, 2",
              f"s_lshl_b32 s{S_PB1}, s{S_FX0}, 2", f"s_add_u32 s{S_PB1}, s{S_PB1}, s{S_WAVE}", f"s_lshl_b32 s{S_PB1}, s{S_PB1}, 13",
              f"s_mul_i32 s{S_PB0}, s{S_KOFF}, {9*524288}", f"s_add_u32 s{S_PB0}, s{S_PB0}, s{S_PB1}",
              f"s_lshl_b32 s{S_RNW}, s{S_KOFF}, 22", f"s_add_u32 s{S_PB1}, s{S_PB1}, s{S_RNW}",
              f"s_mul_i32 s{S_PST}, s{S_PST}, {16*9216}",
              f"s_mul_i32 s{S_FL}, s{S_KOFF}, 9216", f"s_add_u32 s{S_FL}, s{S_FL}, s{S_PST}",
              f"s_mul_i32 s{S_CNT}, s{S_KOFF}, {4*9216}", f"s_add_u32 s{S_PST}, s{S_PST}, s{S_CNT}", f"s_add_u32 s{S_PST}, s{S_PST}, s{S_W9K}",
              f"s_lshl_b32 s{S_FX0}, s{S_FX0}, 2", f"s_add_u32 s{S_FX0}, s{S_FX0}, s{S_KOFF}", f"s_mul_i32 s{S_FX0}, s{S_FX0}, {32*1152}",
              f"s_mul_i32 s{S_CNT}, s{S_RE}, 288", f"s_add_u32 s{S_FX0}, s{S_FX0}, s{S_CNT}", f"s_min_u32 s{S_FX1}, s{S_WAVE}, 1", f"s_lshl_b32 s{S_FX1}, s{S_FX1}, 30",
              f"s_add_u32 s{S_CNT}, s{S_KOFF}, 1", f"s_and_b32 s{S_CNT}, s{S_CNT}, 3", f"s_mul_i32 s{S_FR}, s{S_CNT}, {4*9216}", f"s_add_u32 s{S_FR}, s{S_FR}, s{S_FL}",
              f"s_add_u32 s{S_CNT}, s{S_KOFF}, 2", f"s_and_b32 s{S_CNT}, s{S_CNT}, 3", f"s_mul_i32 s{S_FR+1}, s{S_CNT}, {4*9216}", f"s_add_u32 s{S_FR+1}, s{S_FR+1}, s{S_FL}",
              f"s_add_u32 s{S_CNT}, s{S_KOFF}, 3", f"s_and_b32 s{S_CNT}, s{S_CNT}, 3", f"s_mul_i32 s{S_FR+2}, s{S_CNT}, {4*9216}", f"s_add_u32 s{S_FR+2}, s{S_FR+2}, s{S_FL}",
              f"s_add_u32 s{S_CNT}, s{S_WAVE}, 1", f"s_lshr_b32 s{S_CNT}, s{S_CNT}, 2", f"s_mul_i32 s{S_CNT}, s{S_CNT}, {80*1024+27648}",
              f"s_add_u32 s{S_W0B}, s{S_W9K}, {128*1024}", f"s_sub_u32 s{S_W0B}, s{S_W0B}, s{S_CNT}"]
    pg = []
    for s in range(NP3):
        if s in (8, 16): order = [(kp, nt) for nt in range(9) for kp in range(2)]
        else: order = [(kp, nt) for kp in range(2) for nt in range(9)]
        for kp, nt in order: pg.append((s, kp, nt))
    def p3_reads(gi):
        s, kp, nt = pg[gi]; base = P3_AR[gi % 4]
        out = []
        for q in range(2):
            ks = 2 * kp + q
            if s == 0: va, o = (V_PWA[2], 12 * 1024 + (ks * 9 + nt) * 1024) if ks < 3 else (V_PWA[0], 48 * 1024 + nt * 1024)
            else: va, o = V_PWA[(s - 1) % 3], (ks * 9 + nt) * 1024
            out.append((f"ds_read_b128 v[{base+4*q}:{base+4*q+3}], v{va} offset:{o}", f"PA{gi%4}"))
        return out
    pm = []
    for gi, (s, kp, nt) in enumerate(pg):
        for mt in range(2):
            for q in range(2):
                a = (AD if s < 9 else AS)(nt, mt); b = Breg(s, 2 * kp + q, mt); ar = P3_AR[gi % 4] + 4 * q
                C = "0" if (s in (0, 9) and kp == 0 and q == 0) else f"v[{a}:{a+3}]"
                pm.append(f"v_mfma_f32_16x16x32_bf16 v[{a}:{a+3}], v[{ar}:{ar+3}], a[{b}:{b+3}], {C}")
    TL = [att_tile(it, last_block=True, first_mfmas=(pm[:72] if it == 3 else None)) for it in range(4)]
    T28, T29, T30, T31 = TL
    T28.cur = T28.idx(T28.Q[50]); T28.put(poll_load("PL"))
    cv, cs = poll_check(2, "p2")
    T28.PV[40].sh.append(WaitFor(vm=("PL",))); T28.PV[41].sh += cs[:1]; T28.PV[42].post += cv; T28.PV[44].sh += cs[1:]
    free = [g for g in T28.G[:T28.idx(T28.PV[54])] if not g.sh and id(g) not in T28.reserved]
    assert len(free) >= len(setup3), len(free)
    for s_, g in zip(setup3, free): g.sh.append(s_)
    L2T = os.environ.get("L2T", "")
    if L2T:
        V_TH, V_TD = 3, V_SV
        p(f"v_min_u32 v{V_TH}, 15, v{V_LANE}"); p(f"v_lshlrev_b32 v{V_TH}, 7, v{V_TH}")
        for t in [f"s_and_b32 s13, s{S_J}, 7", f"s_lshl_b32 s13, s13, 2", f"s_add_u32 s13, s13, s{S_WAVE}", f"s_lshl_b32 s13, s13, 11",
                  f"s_lshl_b32 s14, s{S_RB}, 16", f"s_add_u32 s13, s13, s14", f"s_lshr_b32 s14, s{S_J}, 3", f"s_mul_i32 s15, s14, {9*524288}", f"s_add_u32 s13, s13, s15",
                  f"s_lshr_b32 s15, s2, 3", f"s_lshl_b32 s15, s15, 2", f"s_add_u32 s15, s15, s{S_WAVE}", f"s_lshl_b32 s15, s15, 11",
                  f"s_mul_i32 s14, s14, {1152*1152}", f"s_add_u32 s14, s14, s15"]: p(t)
        tl = []
        for x in L2T.split(","):
            if x[0] == "h": tl.append((13, H_OFF + int(x[1:]) * 524288))
            else: tl.append((14, WPD_OFF + int(x[1:]) * 262144))
        slots_ = [(T, g) for T in (T28, T29, T30) for g in (T.Q[8], T.Q[40], T.PV[10], T.PV[42])]
        for (T, g0_), (base, off) in zip(slots_, tl):
            T.cur = 0; ld_ = T.lastdma; T.lastdma = T.idx(g0_) - 4
            T.put((f"buffer_load_dword v{V_TD}, v{V_TH}, s[{S_WS}:{S_WS+3}], s77 offen sc1", "TCH"), g0_, sal=[f"s_add_u32 s77, s{base}, {off}"], cap=3)
            T.lastdma = ld_
    for n in range(4): T28.PV[57 + 2 * n].valu.append(f"v_mov_b32 v{V_RPS+4+n}, -1")
    T29.cur = 2; ld_ = T29.lastdma; T29.lastdma = 0
    for nt in range(9):
        T29.put((f"buffer_store_dwordx4 v[{V_RPS+4}:{V_RPS+7}], v{V_L16}, s[{S_WS}:{S_WS+3}], s{S_SIG} offen offset:{(nt%3)*1024} sc1", "DST"), T29.Q[2 + 5 * nt],
                sal=([f"s_add_u32 s{S_SIG}, s{S_PST}, {PART_OFF + PSTRIDE + nt*1024}"] if nt % 3 == 0 else ()), cap=3)
        T29.lastdma = T29.cur - 1
    T29.lastdma = max(ld_, T29.lastdma)
    T29.cur = T29.idx(T29.Q[50]); T29.lastdma = max(T29.lastdma, T29.idx(T29.Q[50]))
    for sal_, op in p3_w(0): T29.put(op, sal=sal_); T29.lastdma = T29.cur - 1
    T30.wv.append("PW0")
    mix = p3_b(0) + p3_w(1)
    T30.Q[49].valu.append(f"v_add_u32 v{V_PWA[1]}, {P3_SLOT[1]}, v{V_L16}"); T30.Q[51].valu.append(f"v_add_u32 v{V_PWA[2]}, {P3_SLOT[2]}, v{V_L16}")
    T30.cur = T30.idx(T30.PV[2])
    for r, lo in T30.pv_v: T30.put(r, lo)
    T30.cur = T30.idx(T30.PV[52])
    for r in p3_reads(0) + p3_reads(1) + p3_reads(2): T30.put(r)
    T30.cur = T30.idx(T30.PV[2]); T30.lastdma = T30.cur
    for n, (sal_, op) in enumerate(mix):
        T30.put(op, T30.PV[2 + 3 * n], sal=sal_, cap=3); T30.lastdma = T30.cur - 1
    T30.G[-1].post.append(WaitFor(lg=("PA0",), vm=("PB0",)))
    T31.wv.append("PW1")
    Q = T31.Q
    for gi in range(1, 18): Q[4 * gi - 1].sh.insert(0, WaitFor(lg=(f"PA{gi%4}",)))
    for gi in range(3, 18):
        for n, r in enumerate(p3_reads(gi)): Q[4 * (gi - 3) + 1 + 2 * n].mem.append(r)
    T31.cur = 0
    vr = [r for dt in range(4) for r in v_reads(VS(3), dt)]
    for n, r in enumerate(vr): T31.put(r, Q[4 * n], cap=3)
    T31.cur = 0; T31.lastdma = 0
    for n, (sal_, op) in enumerate(p3_b(1) + p3_b(2)):
        T31.put(op, Q[4 * n + 2], sal=sal_, cap=3); T31.lastdma = T31.cur - 1
    T31.cur = T31.idx(T31.PV[2])
    for r, lo in T31.pv_v: T31.put(r, lo); T31.cur += 1
    T31.cur = T31.idx(T31.PV[50])
    for r in p3_reads(18) + p3_reads(19) + p3_reads(20): T31.put(r); T31.cur += 1
    T31.cur = T31.idx(T31.PV[2]); T31.lastdma = T31.cur
    EARLY3 = os.environ.get("EARLY3", "")
    for sal_, op in p3_w(2) + (p3_w(3) if "w" in EARLY3 else []) + (p3_b(3) if "b" in EARLY3 else []):
        T31.put(op, sal=sal_); T31.lastdma = T31.cur - 1
    T31.PV[63].sh.append(WaitFor(lg=(f"PA{18%4}",), vm=("PB1",)))
    P = [None] * 72 + [Gap(m) for m in pm[72:]]
    for gi in range(21, len(pg)):
        i = gi % 18
        rd = p3_reads(gi)
        if i == 0: g0_ = 4 * (gi - 2); pos = (g0_, g0_ + 1)
        elif i == 1: g0_ = 4 * (gi - 3); pos = (g0_ + 2, g0_ + 3)
        else: g0_ = 4 * (gi - 3); pos = (g0_, g0_ + 2)
        for g_, r in zip(pos, rd): P[g_].mem.append(r)
    barw = {}
    for gi in range(19, len(pg)):
        s = pg[gi][0]; g = P[4 * gi - 1]
        if gi % 18 == 16 and s + 1 < NP3:
            barw[s] = WaitFor(vm=[f"PW{s+1}", f"PB{s+1}"], lg0=True)
            P[4 * gi - 2].sh.append(barw[s]); g.sh.append("s_barrier")
        else: g.sh.append(WaitFor(lg=(f"PA{gi%4}",)))
    def after_barrier(s): return 72 * s + 64
    OSIG = int(os.environ.get("OSIG", "4")); DSIG = int(os.environ.get("DSIG", "13")); OCAP = int(os.environ.get("OCAP", "3"))
    barw[OSIG].vm = tuple(barw[OSIG].vm) + ("OST",)
    P[after_barrier(OSIG) - 6].valu.append(sig_val(3)); P[after_barrier(OSIG) + 5].mem.append((sig_store, None))
    P[after_barrier(OSIG) + 1].sh.append(f"s_cmp_lg_u32 s{S_MIX}, 0"); P[after_barrier(OSIG) + 2].sh += ["s_cbranch_scc1 L_stub_w3", Label("L_ret_w3")]
    barw[DSIG].vm = tuple(barw[DSIG].vm) + ("DST",)
    P[after_barrier(DSIG) - 6].valu.append(sig_val(4)); P[after_barrier(DSIG) + 5].mem.append((sig_store, None))
    P[72*5+1].sh.append(f"s_lshl_b32 s{S_CNT}, s{S_RB}, 11"); P[72*5+2].sh.append(f"s_lshl_b32 s{S_RE}, s{S_KOFF}, 9"); P[72*5+4].sh.append(f"s_add_u32 s{S_RE}, s{S_RE}, s{S_CNT}")
    P[72*5+5].valu += [f"v_and_b32 v{V_PA}, 7, v{V_LANE}", f"v_lshl_add_u32 v{V_PA}, v{V_PA}, 3, s{S_RE}"]
    P[72*6+69].mem.append(poll_load("PL"))
    P[72*7+28].sh.append(WaitFor(vm=("PL",)))
    cv, cs = poll_check(3, "p3")
    P[72*7+29].valu += cv; P[72*7+29].sh += cs[:1]; P[72*7+30].post += cs[1:]
    PQ = DSIG + 1
    P[72*PQ+49].mem.append(poll_load("PL"))
    P[72*(PQ+1)+12].sh.append(WaitFor(vm=("PL",)))
    cv, cs = poll_check(4, "p4")
    P[72*(PQ+1)+13].valu += cv; P[72*(PQ+1)+13].sh += cs[:1]; P[72*(PQ+1)+13].post += cs[1:]
    HINT = int(os.environ.get("HINT", "1"))
    P[72*16 + HINT - 4].valu.append(sig_val(5)); P[72*16 + HINT].mem.append((sig_store, None))
    FD, GG, FXR, TT = 160, 208, 56, 16
    def fin_loads(kind, dst, tag):
        ops = []
        for m in range(3):
            for sp in range(3):
                tm = tmp()
                ops.append(([f"s_add_u32 s{tm}, s{S_FR+sp}, {PART_OFF + kind*PSTRIDE}"],
                            (f"buffer_load_dwordx4 v[{dst+(m*4+sp)*4}:{dst+(m*4+sp)*4+3}], v{V_FL+m}, s[{S_WS}:{S_WS+3}], s{tm} offen sc1", tag)))
        return annotate(ops)
    own_reads = lambda kind, dst, tag: [(f"ds_read_b128 v[{dst+(m*4+3)*4}:{dst+(m*4+3)*4+3}], v{V_OWR} offset:{kind*9216 + m*4096}", tag) for m in range(3)]
    xq = []
    for m in range(3):
        r = V_XO + m
        xq += [f"v_lshl_add_u32 v{r}, s{S_WAVE}, 6, v{V_LANE}"] + ([f"v_add_u32 v{r}, {256*m}, v{r}"] if m else [])
        xq += [f"v_mul_u32_u24 v71, 3641, v{r}", f"v_lshrrev_b32 v71, 16, v71", f"v_mul_u32_u24 v71, {1152-288}, v71", f"v_lshl_add_u32 v{r}, v{r}, 4, v71"]
        if m == 2: xq += [f"v_add_u32 v{r}, s{S_FX1}, v{r}"]
        xq.append(("MEM", [], (f"buffer_load_dwordx4 v[{FXR+4*m}:{FXR+4*m+3}], v{r}, s[{S_XI}:{S_XI+3}], s{S_FX0} offen", "FX")))
    for s in range(1, NP3):
        ops = []
        if s + 2 < NP3:
            w, b = p3_w(s + 2), p3_b(s + 2)
            if s == 7:
                place_mem(P, w, 72 * s, 72 * s + 28); place_mem(P, b, 72 * s + 30, 72 * s + 63); continue
            if s == 1:
                if "w" in EARLY3: w = []
                if "b" in EARLY3: b = []
            ops = w[:4] + b[:4] + w[4:8] + b[4:] + w[8:]
        if s == PQ + 1:
            assert s == 15
            place_mem(P, fin_loads(0, FD, "FD") + [([], r) for r in own_reads(0, FD, "FO")], 72 * s + 14, 72 * s + 63); continue
        if ops: place_mem(P, ops, 72 * s - int(os.environ.get('P3E', '0')), 72 * s + int(os.environ.get('P3W', '63')))
    allg = T31.PV + P[72:]
    OT = 96
    def o_item(n, qt, s):
        T = OT + (n % 4) * 8; D = OT + 32 + (n % 4) * 4
        q = []
        for h in range(2):
            o = A_O + ((2 * s + h) * 4 + qt) * 4
            for r in range(4): q.append(f"v_accvgpr_read_b32 v{T+4*h+r}, a{o+r}")
        for i in range(8): q.append(f"v_mul_f32 v{T+i}, v{T+i}, v{V_LS+4+qt}")
        for i in range(4): q.append(f"v_cvt_pk_bf16_f32 v{D+i}, v{T+2*i}, v{T+2*i+1}")
        q.append(("MEM", [f"s_add_u32 s{S_SIG}, s{S_OBASE}, {O_OFF + qt*4096}"], (f"buffer_store_dwordx4 v[{D}:{D+3}], v{V_L16}, s[{S_WS}:{S_WS+3}], s{S_SIG} offen offset:{s*1024}{SCO}", "OST")))
        return q
    pre = xlane_ops("v_add_f32", [V_LS + 5, V_LS + 7], OT + 48) + [f"v_rcp_f32 v{V_LS+4+qt}, v{V_LS+4+qt}" for qt in range(4)]
    n = 0; lim = 64 + after_barrier(OSIG - 1) - 72 + 30
    pre += xq
    q = list(pre); mins = [2] * len(pre)
    for s in range(4):
        for qt in range(4):
            it_ = o_item(n, qt, s); n += 1
            q += it_; mins += [16 * (s + 1) + 4] * len(it_)
    left = fill_valu(allg[:lim], 2, q, mins=mins, cap=OCAP); assert not left, len(left)
    fs = [f"v_add_u32 v{V_FL}, s{S_W1K}, v{V_L16}", f"v_add_u32 v{V_FL+1}, 4096, v{V_FL}", f"v_add_u32 v{V_FL+2}, s{S_VOFF}, v{V_FL}",
          f"v_and_b32 v{V_YW}, 15, v{V_LANE}", f"v_mul_u32_u24 v{V_YW}, 288, v{V_YW}", f"v_lshrrev_b32 v{V_YW+1}, 4, v{V_LANE}",
          f"v_lshl_add_u32 v{V_YW}, v{V_YW+1}, 3, v{V_YW}", f"v_lshl_add_u32 v{V_YW}, s{S_WAVE}, 5, v{V_YW}",
          f"v_lshrrev_b32 v{V_YW+1}, 16, s{S_FX1}", f"v_add_u32 v{V_YW+1}, v{V_YW+1}, v{V_YW}"]
    sal6 = [f"s_lshl_b32 s{S_FL}, s{S_RB}, 3", f"s_and_b32 s{S_T2+32}, s{S_J}, 7", f"s_add_u32 s{S_FL}, s{S_FL}, s{S_T2+32}", f"s_lshl_b32 s{S_FL}, s{S_FL}, 9",
            f"s_add_u32 s{S_FL}, s{S_FL}, {F5_OFF}",
            f"s_lshl_b32 s{S_W0B}, s{S_WAVE}, 7", f"s_add_u32 s{S_W0B}, s{S_W0B}, s{S_FL}", f"s_lshl_b32 s{S_W0B+1}, s{S_KOFF}, 3", f"s_add_u32 s{S_W0B}, s{S_W0B}, s{S_W0B+1}",
            f"s_lshl_b32 s{S_W0B+1}, s{S_KOFF}, 7", f"s_add_u32 s{S_FL}, s{S_FL}, s{S_W0B+1}",
            f"s_add_u32 s{S_W0B+1}, s{S_KOFF}, 1",
            [f"s_cmp_eq_u32 s{S_WAVE}, s{S_KOFF}", f"s_cselect_b32 s{S_W0B+2}, {1 << 30}, 0", f"s_cselect_b32 s{S_W0B+3}, 0, {18432}"],
            f"s_add_u32 s{S_PST}, s{S_PST}, s{S_W0B+2}", f"s_add_u32 s{S_W0B+3}, s{S_W0B+3}, {OWN_LDS}",
            [f"s_cmp_eq_u32 s{S_WAVE}, 0", f"s_cselect_b32 s{S_VOFF}, 8192, {1 << 30}"]]
    g_ = 72 * 6
    for x in sal6:
        while P[g_].sh: g_ += 1
        P[g_].sh += x if isinstance(x, list) else [x]
        g_ += 1
    assert g_ < 72 * 6 + 60
    fs += [f"v_add_u32 v{V_OWN}, s{S_W0B+3}, v{V_L16}", f"v_add_u32 v{V_OWR}, {OWN_LDS}, v{V_FL}"]
    left = fill_valu(P[:72 * 8], 72 * 6 + 60, fs); assert not left
    fs2 = [f"v_mov_b32 v{V_SA}, s{S_W0B}", f"v_min_u32 v{V_PA}, 2, v{V_LANE}", f"v_add_u32 v{V_PA}, s{S_W0B+1}, v{V_PA}", f"v_and_b32 v{V_PA}, 3, v{V_PA}",
           f"v_lshl_add_u32 v{V_PA}, v{V_PA}, 3, s{S_FL}"]
    left = fill_valu(P[:72 * 9], 72 * 8, fs2); assert not left
    def part_item(A, nt, kind, tag):
        a = A(nt, 0)
        q = [f"v_cvt_pk_bf16_f32 v{a+i}, v{a+2*i}, v{a+2*i+1}" for i in range(4)]
        q.append(("MEM", [f"s_add_u32 s{S_SIG}, s{S_PST}, {PART_OFF + kind*PSTRIDE + nt*1024}"], (f"buffer_store_dwordx4 v[{a}:{a+3}], v{V_L16}, s[{S_WS}:{S_WS+3}], s{S_SIG} offen sc1", tag)))
        q.append(("MEM", [], (f"ds_write_b128 v{V_OWN}, v[{a}:{a+3}] offset:{kind*9216 + nt*1024}", None)))
        return q
    for nt in range(9):
        left = fill_valu(P[:72 * DSIG], 72 * 8 + 12 + ((72 * (DSIG - 8) - 30) * nt) // 8, part_item(AD, nt, 0, "DST")); assert not left
    sleft = []
    for nt in range(9):
        sleft += fill_valu(P, 72 * 16 + 8 * (nt + 1) + 4, part_item(AS, nt, 1, "SST"))
    gq = []
    def unpack_sum(src, dst, pk=False):
        q = []
        for i in range(4):
            q += [f"v_lshlrev_b32 v{dst+2*i}, 16, v{src+i}", f"v_and_b32 v{dst+2*i+1}, s{S_THR}, v{src+i}"]
        for sp in range(1, 4):
            T = TT + 8 * (sp % 2)
            for i in range(4):
                q += [f"v_lshlrev_b32 v{T+2*i}, 16, v{src+4*sp+i}", f"v_and_b32 v{T+2*i+1}, s{S_THR}, v{src+4*sp+i}"]
            if pk:
                for i in range(0, 8, 2): q.append(f"v_pk_add_f32 v[{dst+i}:{dst+i+1}], v[{dst+i}:{dst+i+1}], v[{T+i}:{T+i+1}]")
            else:
                for i in range(8): q.append(f"v_add_f32 v{dst+i}, v{dst+i}, v{T+i}")
        return q
    P[72*13+1].post.append(f"s_mov_b32 s{S_THR}, 0xffff0000")
    for m in range(3):
        D = GG + 8 * m; T = FD + 16 * m
        gq += unpack_sum(FD + 16 * m, D, pk=True)
        gq += [f"v_mul_f32 v{T+i}, {f2u(-LOG2E)}, v{D+i}" for i in range(8)]
        gq += [f"v_exp_f32 v{T+i}, v{T+i}" for i in range(8)]
        gq += [f"v_add_f32 v{T+i}, 1.0, v{T+i}" for i in range(8)]
        gq += [f"v_rcp_f32 v{T+i}, v{T+i}" for i in range(8)]
        gq += [f"v_pk_mul_f32 v[{D+i}:{D+i+1}], v[{D+i}:{D+i+1}], v[{T+i}:{T+i+1}]" for i in range(0, 8, 2)]
    gleft = gq
    print("phase3 leftovers: s-part", len(sleft), "gate", len(gleft))
    for T in TL:
        finish_tile(T); emit_gaps(p, T.G)
    if 'finepro' not in ABL:
        stamp(p, 7); stamp_rt(p, 16)
        for s, k in ((3, 8), (6, 9), (9, 10), (13, 11)): P[72 * s - 1].post += stamp_ops(k)
    if 'finep3' in ABL:
        stamp(p, 0)
        for s in range(1, 17): P[72 * (s + 1) - 1].post = [x for x in P[72 * (s + 1) - 1].post if not (isinstance(x, str) and ("s76" in x or "s[76" in x or x == "s_waitcnt lgkmcnt(0)"))] + stamp_ops(s)
    emit_gaps(p, P[72:])
    if 'finep' not in ABL: stamp(p, 12); stamp_rt(p, 17)
    emit_ops(p, sleft)
    XU = 32
    FS = 96
    def s_loads():
        for sal_, op in fin_loads(1, FS, "FS"):
            for s_ in sal_: p(s_)
            p(op[0], op[1])
    p("s_waitcnt lgkmcnt(0)")
    s_loads()
    p.items.append(WaitFor(vm=("FD",)))
    p("s_barrier")
    for t, tag in own_reads(1, FS, "FO"): p(t, tag)
    emit_ops(p, gleft)
    for i in range(12):
        p(f"v_lshlrev_b32 v{XU+2*i}, 16, v{FXR+i}"); p(f"v_and_b32 v{XU+2*i+1}, s{S_THR}, v{FXR+i}")
    if 'finep' not in ABL: stamp(p, 13)
    p(f"s_mov_b32 s{S_CNT}, 0x40000"); p(f"s_add_u32 s{S_PV}, s{S_EP}, 5")
    p.label("L_dcheck")
    p("s_waitcnt vmcnt(0)")
    q_ = [FS + (m * 4 + sp) * 4 + i for m in range(3) for sp in range(3) for i in range(4)]
    p(f"v_max_u32 v{V_PT}, v{q_[0]}, v{q_[1]}"); p(f"v_max_u32 v{V_PT+1}, v{q_[2]}, v{q_[3]}")
    for i in range(4, 36, 2): p(f"v_max3_u32 v{V_PT+(i//2)%2}, v{V_PT+(i//2)%2}, v{q_[i]}, v{q_[i+1]}")
    p(f"v_max_u32 v{V_PT}, v{V_PT}, v{V_PT+1}")
    p(f"v_cmp_eq_u32 vcc, -1, v{V_PT}")
    p("s_cbranch_vccz L_dready")
    p(f"s_cmp_eq_u32 s{S_CNT}, 0x40000"); p("s_cbranch_scc0 L_dagain")
    p(f"s_call_b64 s[{S_RET}:{S_RET+1}], L_spin0")
    p.label("L_dagain")
    s_loads()
    p(f"s_sub_u32 s{S_CNT}, s{S_CNT}, 1"); p(f"s_cmp_lg_u32 s{S_CNT}, 0"); p("s_cbranch_scc1 L_dcheck")
    p("s_waitcnt vmcnt(0)")
    p.label("L_dready")
    if 'finep' not in ABL: stamp(p, 14)
    p("s_waitcnt lgkmcnt(0)")
    for m in range(3):
        D = FD + 8 * m
        for t in unpack_sum(FS + 16 * m, D, pk=True): p(t)
        for i in range(0, 8, 2): p(f"v_pk_mul_f32 v[{D+i}:{D+i+1}], v[{D+i}:{D+i+1}], v[{GG+8*m+i}:{GG+8*m+i+1}]")
        for i in range(4): p(f"v_cvt_pk_bf16_f32 v{D+i}, v{D+2*i}, v{D+2*i+1}")
        for mt in range(2): p(f"ds_write_b64 v{V_YW + (1 if m == 2 else 0)}, v[{D+2*mt}:{D+2*mt+1}] offset:{m*128 + mt*4608}")
    p("s_waitcnt lgkmcnt(0)"); p("s_barrier")
    for m in range(3): p(f"ds_read_b128 v[{128+4*m}:{131+4*m}], v{V_FL} offset:{m*4096}")
    for m in range(3):
        p(f"s_waitcnt lgkmcnt({2-m})")
        D = 96 + 8 * m; T = XU + 8 * m
        for i in range(4):
            p(f"v_lshlrev_b32 v{D+2*i}, 16, v{128+4*m+i}"); p(f"v_and_b32 v{D+2*i+1}, s{S_THR}, v{128+4*m+i}")
        for i in range(0, 8, 2): p(f"v_pk_add_f32 v[{D+i}:{D+i+1}], v[{D+i}:{D+i+1}], v[{T+i}:{T+i+1}]")
        for i in range(4): p(f"v_cvt_pk_bf16_f32 v{D+i}, v{D+2*i}, v{D+2*i+1}")
        p(f"buffer_store_dwordx4 v[{D}:{D+3}], v{V_XO+m}, s[{S_OUT}:{S_OUT+3}], s{S_FX0} offen")
    if STAMP: p("s_waitcnt vmcnt(0)")
    stamp(p, 19); stamp_rt(p, 21)
    if 'dbgout' in ABL:
        p(f"s_cmp_eq_u32 s2, 250"); p(f"s_cselect_b32 s76, 36, 0x1000"); p("s_cmp_eq_u32 s2, 1"); p("s_cselect_b32 s76, 8, s76")
        p(f"s_cmp_eq_u32 s{S_WAVE}, 0"); p("s_cselect_b32 s76, s76, 0x1000"); p("v_mov_b32 v1, s76")
        p(f"s_lshr_b32 s77, s{S_EP}, 8")
        for n, k in enumerate((100, 95, 96, 97, 101)):
            p(f"s_sub_u32 s76, s{k}, s77"); p("s_and_b32 s76, s76, 0xffffff"); p("v_mov_b32 v2, s76")
            p(f"buffer_store_dword v2, v1, s[{S_DBG}:{S_DBG+3}], 0 offen offset:{4*n}")
        for n, (a_, b_) in enumerate(((81, 80), (99, 80))):
            p(f"s_sub_u32 s76, s{a_}, s{b_}"); p("v_mov_b32 v2, s76")
            p(f"buffer_store_dword v2, v1, s[{S_DBG}:{S_DBG+3}], 0 offen offset:{20+4*n}")
    else:
        stamp_dump(p, 70, S_WAVE, 1)
    p.label("L_done"); p("s_endpgm")

    rare = Prog(); p = rare
    for site, var in rare_sites:
        p.label(f"L_rare_stub{site}")
        p(f"s_call_b64 s[{S_RET}:{S_RET+1}], L_rare{var}")
        p(f"s_branch L_rare_ret{site}")
    for name in stubs:
        p.label(f"L_stub_{name}")
        p(f"s_call_b64 s[{S_RET}:{S_RET+1}], L_spin0")
        p(f"s_branch L_ret_{name}")
    for name in ("w2", "w3"):
        p.label(f"L_stub_{name}")
        p("buffer_wbl2 sc1"); p("s_waitcnt vmcnt(0)")
        p(f"s_branch L_ret_{name}")
    p.label("L_spin0")
    p(f"s_mov_b32 s{S_SPIN}, {'0x40' if 'Lno' in ABL else '0x40000'}")
    p.label("L_spin1")
    p(poll_load(None)[0])
    p(f"s_sub_u32 s76, s{S_EP}, s{S_PV}"); p("s_add_u32 s76, s76, 8")
    p("s_waitcnt vmcnt(0)")
    for t in flag_test(V_PT): p(t)
    p(f"v_cmp_le_u32 vcc, s76, v{V_PT}")
    p("s_cbranch_vccz L_spin2")
    p(f"s_sub_u32 s{S_SPIN}, s{S_SPIN}, 1"); p("s_sleep 1"); p(f"s_cmp_lg_u32 s{S_SPIN}, 0"); p("s_cbranch_scc1 L_spin1")
    p.label("L_spin2")
    p(f"s_setpc_b64 s[{S_RET}:{S_RET+1}]")
    rare_items = fix_hazards(rare.items)[0]
    for var in ("0", "1", "Z"):
        par = 1 if var == "Z" else int(var)
        rp = Prog(); p = rp
        p.label(f"L_rare{var}")
        p("s_nop 15")
        Lold = V_LS + (1 - par) * 4
        for qt in range(4):
            rowmax(p, par, qt, V_R + qt)
            p(f"v_log_f32 v{V_R+4}, v{Lold+qt}")
            if BIAS:
                p(f"v_max_f32 v{V_R+qt}, v{V_R+qt}, v{V_R+4}"); p(f"v_add_f32 v{V_R+qt}, {f2u(BIAS)}, v{V_R+qt}"); p(f"v_max_f32 v{V_R+qt}, 0, v{V_R+qt}")
            else: p(f"v_max3_f32 v{V_R+qt}, v{V_R+qt}, v{V_R+4}, 0")
        for t in xlane_ops("v_max_f32", [V_R + q for q in range(4)], V_R + 4): p(t)
        for qt in range(4):
            p(f"v_sub_f32 v{V_R+4+qt}, 0, v{V_R+qt}"); p(f"v_exp_f32 v{V_R+4+qt}, v{V_R+4+qt}")
        for qt in range(4):
            p(f"v_mul_f32 v{Lold+qt}, v{Lold+qt}, v{V_R+4+qt}")
            if var != "Z":
                for r in range(4): p(f"v_sub_f32 v{V_NM+4*qt+r}, v{V_NM+4*qt+r}, v{V_R+qt}")
            for pp in ((par,) if var == "Z" else (0, 1)):
                for kt in range(4):
                    for r in range(4): p(f"v_sub_f32 v{Sreg(pp,kt,qt)+r}, v{Sreg(pp,kt,qt)+r}, v{V_R+qt}")
            for dt in range(8):
                o = A_O + (dt * 4 + qt) * 4
                for r in range(4): p(f"v_accvgpr_read_b32 v{V_E+r}, a{o+r}")
                for r in range(4): p(f"v_mul_f32 v{V_E+r}, v{V_E+r}, v{V_R+4+qt}")
                for r in range(4): p(f"v_accvgpr_write_b32 a{o+r}, v{V_E+r}")
        for tau in range(64):
            p(op_exp(par, tau))
            if tau % 4 >= 2: p(op_add(par, tau))
            if tau % 2 == 1: p(op_cvt(par, tau))
        for qt in (0, 2):
            p(l_mfma(par, qt, 0)); p(l_mfma(par, qt, 1)); p(op_ladd(par, qt))
        if var != "Z":
            for tau in range(4): p(op_exp(1 - par, tau))
            p(op_cvt(1 - par, 1))
        p("s_nop 3")
        p(f"s_setpc_b64 s[{S_RET}:{S_RET+1}]")
        rare_items += fix_hazards(rp.items)[0]

    resolve_waits(pro.items + body.items + body.items + tail.items)
    pi = lower_waits(pro.items); bi = lower_waits(body.items); ti = lower_waits(tail.items)
    pi, a1 = fix_hazards(pi, verbose=False, name="pro")
    bi2, a2 = fix_hazards(bi, prev=bi, verbose=True, name="body")
    bi3, a3 = fix_hazards(bi2, prev=pi, verbose=True, name="body-entry")
    ti, a4 = fix_hazards(ti, prev=bi3, verbose=True, name="tail")
    wc = WaitChecker(); wc.run(pi + bi3 + bi3 + ti)
    for e in wc.errors[:10]: print("WAITCHECK", e)
    assert check_needs(pi + bi3 + bi3 + ti) == 0
    for it in pi + bi3 + ti:
        if isinstance(it, Ins): it.text = it.text.split(' ; need[')[0]
    return pi + bi3 + ti + rare_items

if __name__ == "__main__":
    import sys
    HEADER = open("cdna_kernels/" + NAME + ".s.ref").read().split("; Override")[0]
    items = gen_mega()
    k = NAME + "_kernel"
    s = HEADER + f"; @launch grid=(256,1,1) block=(256,1,1) lds={LDS_BYTES}\n"
    s += '.amdgcn_target "amdgcn-amd-amdhsa--gfx950"\n' + kernel_text(k, items, 512, 256)
    s += "L_code_end:\n    s_endpgm\n" + '.section .rodata,"a"\n.p2align 6\n' + kd_text(k, 512, 256)
    open(sys.argv[1], "w").write(s)
```

```python
from common import *
import math, re
from k12 import Gap, emit_gaps, slots_of, fill_valu
LDS_BYTES = 160 * 1024
LOG2E = 1.4426950408889634
QSCALE = LOG2E / math.sqrt(128.0)
GC1 = -2.0 * math.sqrt(2.0 / math.pi) * LOG2E
GC2 = GC1 * 0.044715
CUT = int(os.environ.get("CUT", "30"))
BIAS = float(126 - CUT) if CUT else 0.0
THRESH = 2.0 ** (int(os.environ.get("THR", "64")) - BIAS)
ABL = os.environ.get('ABL', '')
NTQ = "" if "nontq" in ABL else " nt"
NTKV = " nt" if 'ntkv' in ABL else ""
NTR = "" if "nontr" in ABL else " nt"
WS_BYTES = 128 << 20
CH_O, CH_D = 1024 * 1152, 1152 * 1152
WPO_OFF = WP_OFF
WPD_OFF = WPO_OFF + 4 * CH_O
WPG_OFF = WPD_OFF + 4 * CH_D
WPU_OFF = WPG_OFF + 4 * CH_D
FLAG_OFF = 5 << 19
FX_OFF, F5_OFF = 16384, 32768
PSTRIDE = 64 * 4 * 4 * 9216
K = 1024

S_W6K = 3
S_HF = 4
S_RSRC, S_RDST, S_WQ, S_K, S_V, S_WS, S_DBG, S_XI = 8, 12, 16, 20, 24, 28, 32, 36
S_OUT = 16
S_WAVE, S_RB, S_J = 40, 41, 42
S_RE = 43
S_T0, S_T1, S_T2 = 44, 45, 46
S_KOFF, S_VOFF = 47, 48
S_W1K = 49
S_RET = 50
S_CNT = 52
S_RMAG, S_RSTR, S_RLB, S_BQ = 53, 54, 55, 56
S_RS, S_RD, S_RNW = 57, 58, 59
S_HHALF, S_THR, S_OBASE, S_XB = 60, 61, 62, 63
S_RO = 64
S_EP2, S_XCC = 68, 69
S_MIX, S_FO, S_EP, S_SPIN = 72, 73, 74, 75
S_SIG, S_PV = 78, 79
S_GF, S_GH, S_GL, S_GLH = 53, 54, 55, 56
S_Q = 43
S_PW, S_PW2, S_PB0, S_PB1 = 12, 13, 14, 15
S_W9K, S_PST, S_FL = 57, 59, 67
S_FR = 64
S_FX0, S_FX1 = 32, 33
S_U0, S_U1, S_U2, S_U3 = 20, 21, 22, 23
S_XR = 58

V_SA, V_L16, V_RPG, V_RPL = 0, 1, 2, 3
V_PT, V_SV, V_PA, V_CK = 4, 6, 8, 9
V_LANE = 2
V_WQ = 9
V_ONE = 10
V_KD, V_VD = 14, 15
V_AF, V_RQ = 16, 52
V_P1, V_NM, V_LS, V_E, V_R, V_LD, V_KA, V_VA, V_RPS = 16, 32, 48, 56, 64, 72, 76, 80, 88
V_S, V_P0 = 96, 224
A_Q, A_KF, A_VF, A_O = 0, 64, 96, 128
XMAP = [("a", 16 * l) for l in range(6)] + [("v", 224), ("a", 128), ("a", 144), ("a", 96), ("a", 112), ("v", 240)] + [("a", 160 + 16 * l) for l in range(6)]
def xreg(ks, mt):
    t, b = XMAP[ks]
    return f"{t}[{b+4*mt}:{b+4*mt+3}]"
KS = lambda T: (T + 3) % 4
VS = lambda T: (T + 1) % 4
QSLOT = [40 * K, 0, 80 * K, 104 * K, 128 * K, 24 * K]
QBASE = [0, 80 * K, 128 * K]
LN_LDS = 64 * K
FSLOT = [128 * K, 0, 40 * K, 104 * K]
F_AR = [[32, 36, 40], [44, 88, 92]]
V_FA = 76
V_T, V_HO, V_C1, V_C2 = 56, 16, 10, 11
P3_SLOT = [64 * K, 104 * K, 0]
V_PWA = [77, 76, 1]
P3_AR = [80, 48, 32, 40]
AS = lambda nt, mt: (192 + (nt * 2 + mt) * 4) if nt < 8 else (24 + mt * 4)
AD = lambda nt, mt: 96 + (nt * 2 + mt) * 4
V_FL, V_XO, V_YW, V_OWN, V_OWR = 72, 12, 78, 15, 75
OWN_LDS, OWN_DUMMY = 140 * K, 40 * K

def emit_ops(p, ops):
    for op in ops:
        if isinstance(op, tuple):
            for t in op[1]: p(t)
            p(op[2][0], op[2][1])
        else: p(op)
def annotate(ops):
    out = []; cur = []
    for sal, (txt, tag) in ops:
        if sal: cur = list(sal)
        out.append((sal, (txt + " ; need[" + "|".join(cur) + "]", tag)))
    return out
def check_needs(items):
    last = {}; bad = 0
    for it in items:
        if not isinstance(it, Ins): continue
        if "; need[" in it.text:
            for t in it.text.split("; need[")[1].rstrip("]").split("|"):
                if not t: continue
                d = Ins(t).wr[0]
                if last.get(d) != t:
                    bad += 1; print("NEEDCHECK:", it.text, "<- last writer", last.get(d))
        if it.kind == "salu":
            for r in it.wr: last[r] = it.text
    return bad
def place_mem(gaps, ops, g0, g1):
    pitch = max(1.0, (g1 - g0 - 8) / len(ops))
    last = g0
    for n, (sal, op) in enumerate(ops):
        g = max(last + 1 + len(sal), int(g0 + 2 + n * pitch))
        while True:
            assert g < g1, (g0, g1, n, len(ops))
            if not gaps[g].mem and not gaps[g].valu and all(len(gaps[g - len(sal) + i].sh) == 0 for i in range(len(sal))): break
            g += 1
        for i, s in enumerate(sal): gaps[g - len(sal) + i].sh.append(s)
        gaps[g].mem.append(op); last = g
def place_salu(gaps, ops, g0, g1):
    g = g0
    for x in ops:
        while gaps[g].sh: g += 1
        assert g < g1, (g, g1)
        gaps[g].sh += x if isinstance(x, list) else [x]
        g += 1
    return g

def gen():
    pro = Prog(); p = pro
    stubs = []
    FINE = 'fine' in ABL
    def flag_test(r):
        return [f"v_and_b32 v{r}, 0xffffff87, v{r}", f"v_xor_b32 v{r+1}, s{S_EP2}, v{r+1}", f"v_subrev_u32 v{r}, s{S_PV}, v{r}",
                f"v_min_u32 v{r+1}, 1, v{r+1}", f"v_lshl_or_b32 v{r}, v{r+1}, 8, v{r}"]
    def poll_check(val, name):
        stubs.append(name)
        return (flag_test(V_PT) + [f"v_cmp_le_u32 vcc, {8-val}, v{V_PT}"],
                [f"s_add_u32 s{S_PV}, s{S_EP}, {val}", f"s_cbranch_vccnz L_stub_{name}", Label(f"L_ret_{name}")])
    poll_load = lambda tag: (f"buffer_load_dwordx2 v[{V_PT}:{V_PT+1}], v{V_PA}, s[{S_WS}:{S_WS+3}], s{S_FO} offen sc1", tag)
    sig_store = f"buffer_store_dwordx2 v[{V_SV}:{V_SV+1}], v{V_SA}, s[{S_WS}:{S_WS+3}], s{S_FO} offen sc1"
    sig_val = lambda val: f"v_add_u32_e64 v{V_SV}, s{S_XCC}, {val}"
    def put_poll(G, gload, gcheck, val, name):
        assert not G[gload].mem, gload
        G[gload].mem.append(poll_load("PL"))
        cv, cs = poll_check(val, name)
        G[gcheck].post += [WaitFor(vm=("PL",)), cs[0]] + cv; G[gcheck + 1].post += cs[1:]
    tmpsel = [0]
    def tmp():
        tmpsel[0] ^= 1
        return (S_T0, S_T1)[tmpsel[0]]
    def issue(ops):
        for sal, op in ops:
            for s in reversed(sal): p(s)
            p(op[0], op[1])
    def wq_dma(st):
        ops = []
        for i in range(6):
            tm = tmp()
            ops.append(([f"s_add_u32 s{tm}, s{S_BQ}, {(st * 96 + 4 * i) * 8192}", f"s_add_u32 m0, s{S_W6K}, {QSLOT[st] + i*1024}"],
                        (f"buffer_load_dwordx4 v{V_WQ}, s[{S_WQ}:{S_WQ+3}], s{tm} offen{NTQ} lds", f"W{st}")))
        return annotate(ops)
    def x_loads(k0, k1, tagf):
        ops = []
        for ks in range(k0, k1):
            for mt in range(4):
                ops.append(([f"s_add_u32 s{S_XR}, s{S_XB}, {ks*4096}"] if mt == 0 else [],
                            (f"buffer_load_dwordx4 {xreg(ks, mt)}, v{V_L16}, s[{S_WS}:{S_WS+3}], s{S_XR} offen offset:{mt*1024} sc1", tagf(ks))))
        return annotate(ops)
    def kv_dma(which, tile_slot, soff, add):
        ops = []
        for t in range(4):
            tm = tmp()
            base = (0 if which == "K" else 65536) + tile_slot * 16384 + t * 4096
            srdn = S_K if which == "K" else S_V
            sal = [f"s_mov_b32 s{tm}, {add + t*4096}"] if soff is None else [f"s_add_u32 s{tm}, s{soff}, {add + t*4096}"]
            sal.append(f"s_add_u32 m0, s{S_W1K}, {base}")
            ops.append((sal, (f"buffer_load_dwordx4 v{V_KD if which == 'K' else V_VD}, s[{srdn}:{srdn+3}], s{tm} offen{NTKV} lds", f"{which}{tile_slot}")))
        return annotate(ops)

    p("s_cmp_ge_u32 s2, 256"); p("s_cbranch_scc1 L_done")
    stamp_rt(p, 20); stamp(p, 0)
    LX = 96
    p(f"s_load_dwordx2 s[{S_XI}:{S_XI+1}], s[0:1], {ARG['x']}")
    p(f"s_load_dwordx4 s[68:71], s[0:1], {ARG['dbg']}")
    p(f"s_getpc_b64 s[{S_K}:{S_K+1}]")
    p.label("L_pc0")
    p(f"s_and_b32 s{S_K+1}, s{S_K+1}, 0xffff"); p(f"s_mov_b32 s{S_K+2}, L_code_end-L_pc0"); p(f"s_mov_b32 s{S_K+3}, 0x20000")
    HOP = 'nohop' not in ABL
    if HOP:
        p(f"s_lshr_b32 s{S_T1}, s2, 3"); p(f"s_lshl_b32 s{S_T0}, s{S_T1}, 12"); p("v_lshlrev_b32 v16, 4, v0")
        p(f"buffer_load_dwordx4 v[160:163], v16, s[{S_K}:{S_K+3}], s{S_T0} offen", "CODE")
    else:
        p(f"s_lshr_b32 s{S_T1}, s2, 3"); p(f"s_lshl_b32 s{S_T0}, s{S_T1}, 10"); p("v_lshlrev_b32 v16, 2, v0")
        p(f"buffer_load_dword v160, v16, s[{S_K}:{S_K+3}], s{S_T0} offen", "CODE")
    p(f"s_and_b32 s{S_CNT}, s2, 7"); p(f"s_lshl_b32 s{S_CNT}, s{S_CNT}, 5"); p(f"s_or_b32 s{S_CNT}, s{S_CNT}, s{S_T1}")
    p("v_lshrrev_b32 v18, 5, v0"); p("v_and_b32 v19, 31, v0"); p(f"s_mul_i32 s{S_T0}, s{S_CNT}, 9216")
    p("v_mul_u32_u24 v20, 1152, v18"); p("v_lshl_add_u32 v20, v19, 4, v20")
    p(f"s_mov_b32 s{S_XI+2}, {XN_BYTES}"); p(f"s_mov_b32 s{S_XI+3}, 0x20000")
    p("s_waitcnt lgkmcnt(0)")
    for m in range(3):
        p(f"buffer_load_dwordx4 v[{LX+4*m}:{LX+4*m+3}], v20, s[{S_XI}:{S_XI+3}], s{S_T0} offen offset:{m*384}", "LX")
    p(f"s_load_dwordx2 s[{S_WQ}:{S_WQ+1}], s[0:1], {ARG['wq']}")
    p(f"s_load_dwordx4 s[64:67], s[0:1], {ARG['k']}")
    p(f"s_load_dwordx2 s[4:5], s[0:1], {ARG['wo']}"); p(f"s_load_dwordx2 s[6:7], s[0:1], {ARG['wd']}")
    p(f"s_load_dwordx4 s[12:15], s[0:1], {ARG['wg']}")
    p("s_memrealtime s[76:77]")
    p("v_lshrrev_b32 v16, 6, v0"); p("v_and_b32 v17, 63, v0"); p("v_cmp_gt_u32 vcc, 24, v19")
    p(f"v_readfirstlane_b32 s{S_WAVE}, v16")
    srd(p, S_DBG, 68, 256); srd(p, S_WS, 70, WS_BYTES)
    p(f"s_mov_b64 s[{S_RET}:{S_RET+1}], vcc")
    p(f"s_and_b32 s{S_T0}, s2, 7")
    p(f"s_and_b32 s{S_RB}, s{S_T1}, 3"); p(f"s_lshr_b32 s{S_T1}, s{S_T1}, 2")
    p(f"s_and_b32 s{S_T2}, s{S_T0}, 1"); p(f"s_lshl_b32 s{S_T2}, s{S_T2}, 2"); p(f"s_add_u32 s{S_RB}, s{S_RB}, s{S_T2}")
    p(f"s_lshr_b32 s{S_T0}, s{S_T0}, 1"); p(f"s_lshl_b32 s{S_J}, s{S_T0}, 3"); p(f"s_add_u32 s{S_J}, s{S_J}, s{S_T1}")
    p(f"s_mov_b32 s{S_WQ+2}, {576*8192}"); p(f"s_mov_b32 s{S_WQ+3}, 0x20000")
    p(f"v_lshlrev_b32 v{V_L16}, 4, v17"); p("v_mov_b32 v71, 0")
    p("v_lshrrev_b32 v20, 4, v17"); p("v_and_b32 v22, 15, v17")
    p("v_lshlrev_b32 v23, 2, v20"); p("v_xor_b32 v23, v23, v22"); p("v_lshlrev_b32 v24, 13, v20"); p(f"v_lshl_add_u32 v{V_WQ}, v23, 4, v24")
    p(f"s_mul_i32 s{S_W6K}, s{S_WAVE}, 6144")
    p(f"s_mul_i32 s{S_BQ}, s{S_WAVE}, {24*8192}"); p(f"s_lshl_b32 s{S_T0}, s{S_J}, 8"); p(f"s_add_u32 s{S_BQ}, s{S_BQ}, s{S_T0}")
    p("s_waitcnt lgkmcnt(0)")
    p(f"s_lshl_b32 s{S_T1}, s2, 2"); p(f"s_add_u32 s{S_T1}, s{S_T1}, s{S_WAVE}"); p(f"s_cmp_lg_u32 s{S_T1}, 1"); p("s_cbranch_scc1 L_noleader")
    p("s_lshl_b64 s[76:77], s[76:77], 8"); p("s_or_b32 s76, s76, 128"); p("v_mov_b32 v30, s76"); p("v_mov_b32 v31, s77")
    p.raw(f"    buffer_store_dwordx2 v[30:31], v71, s[{S_DBG}:{S_DBG+3}], 0 offen sc1")
    p.label("L_noleader")
    NPRE = int(os.environ.get("NPRE", "3"))
    def w3(st):
        for i in range(8):
            tm = tmp()
            p(f"s_add_u32 m0, s{S_RNW}, {QSLOT[st] + i*1024}"); p(f"s_add_u32 s{tm}, s{S_RE}, {(st * 96 + 4 * i) * 8192}")
            p(f"buffer_load_dwordx4 v{V_WQ}, s[{S_WQ}:{S_WQ+3}], s{tm} offen{NTQ} lds", f"W{st}")
    p(f"s_sub_u32 s{S_T2}, s{S_WAVE}, 1"); p(f"s_lshl_b32 s{S_RNW}, s{S_T2}, 13"); p(f"s_lshl_b32 s{S_RE}, s{S_T2}, 18"); p(f"s_add_u32 s{S_RE}, s{S_RE}, s{S_T0}")
    p(f"s_cmp_eq_u32 s{S_WAVE}, 0"); p("s_cbranch_scc1 L_w0a")
    w3(0)
    p.label("L_w0a")
    p("v_lshrrev_b32 v26, 3, v17"); p("v_and_b32 v27, 3, v26"); p("v_lshrrev_b32 v26, 2, v26"); p("v_and_b32 v28, 7, v17")
    p("v_lshl_add_u32 v27, v27, 4, v28"); p("v_lshlrev_b32 v27, 4, v27"); p("v_lshl_add_u32 v26, v26, 12, v27")
    p(f"s_lshr_b32 s{S_T0}, s{S_CNT}, 3"); p(f"s_mul_i32 s{S_RD}, s{S_T0}, 73728")
    p(f"s_and_b32 s{S_T1}, s{S_CNT}, 6"); p(f"s_lshl_b32 s{S_T1}, s{S_T1}, 9"); p(f"s_add_u32 s{S_RD}, s{S_RD}, s{S_T1}")
    p(f"s_and_b32 s{S_T1}, s{S_CNT}, 1"); p(f"s_lshl_b32 s{S_T1}, s{S_T1}, 7"); p(f"s_add_u32 s{S_RD}, s{S_RD}, s{S_T1}")
    p(f"s_mov_b32 s{S_FO}, {FLAG_OFF}")
    p(f"s_getreg_b32 s{S_XCC}, hwreg(HW_REG_XCC_ID, 0, 4)"); p(f"s_lshl_b32 s{S_XCC}, s{S_XCC}, 3")
    p(f"s_lshl_b32 s{S_T0}, s{S_T0}, 9"); p(f"s_and_b32 s{S_T1}, s{S_CNT}, 7"); p(f"s_lshl_b32 s{S_T1}, s{S_T1}, 3"); p(f"s_add_u32 s{S_T0}, s{S_T0}, s{S_T1}"); p(f"s_add_u32 s{S_T0}, s{S_T0}, {FX_OFF}")
    p(f"v_mov_b32 v31, s{S_T0}")
    p(f"s_lshl_b32 s{S_T0}, s{S_RB}, 11"); p(f"s_and_b32 s{S_T1}, s{S_J}, 24"); p(f"s_lshl_b32 s{S_T1}, s{S_T1}, 6"); p(f"s_add_u32 s{S_T1}, s{S_T1}, s{S_T0}")
    p(f"v_lshl_add_u32 v64, v28, 3, s{S_T1}")
    p(f"s_and_b32 s{S_T2}, s{S_J}, 7"); p(f"s_lshl_b32 s{S_T2}, s{S_T2}, 3"); p(f"s_add_u32 s{S_T1}, s{S_T1}, s{S_T2}")
    p(f"v_writelane_b32 v31, s{S_T1}, 1")
    p(f"s_cmp_eq_u32 s{S_WAVE}, 0"); p(f"s_cselect_b32 s{S_T1}, s{S_T1}, {1 << 30}"); p(f"v_mov_b32 v{V_SA}, s{S_T1}")
    p(f"s_add_u32 s{S_T0}, s{S_T0}, {FX_OFF}"); p(f"v_lshl_add_u32 v30, v28, 3, s{S_T0}"); p("v_and_b32 v27, 24, v17"); p("v_lshl_add_u32 v30, v27, 6, v30")
    p(f"s_lshl_b32 s{S_T0}, s{S_RB}, 2"); p(f"s_add_u32 s{S_T0}, s{S_T0}, s{S_WAVE}")
    p(f"s_mul_i32 s{S_XB}, s{S_T0}, 73728"); p(f"s_lshl_b32 s{S_OBASE}, s{S_T0}, 14")
    if 'finepro' in ABL: stamp(p, 2)
    F = 112
    pr = lambda r: f"v[{r}:{r+1}]"
    p(f"s_mov_b32 s{S_T2}, 0xffff0000")
    for i in range(4): p(f"v_mov_b32 v{140+i}, 0")
    p("v_lshlrev_b32 v25, 7, v19"); p("v_lshl_add_u32 v25, v18, 4, v25"); p(f"v_add_u32 v25, {LN_LDS}, v25"); p(f"v_add_u32 v29, {LN_LDS}, v{V_L16}")
    p(f"s_cmp_eq_u32 s{S_WAVE}, 0"); p("s_cbranch_scc0 L_w0b")
    p.raw("    s_waitcnt vmcnt(0)")
    p.label("L_w0b")
    p("s_waitcnt vmcnt(8)")
    p(f"buffer_load_dwordx2 v[72:73], v71, s[{S_DBG}:{S_DBG+3}], 0 offen sc1", "EP")
    if 'finepro' in ABL: stamp(p, 3)
    for i in range(12):
        p(f"v_lshlrev_b32 v{F+2*i}, 16, v{LX+i}"); p(f"v_and_b32 v{F+2*i+1}, s{S_T2}, v{LX+i}")
    for i in range(6): p(f"v_pk_add_f32 {pr(144+2*i)}, {pr(F+4*i)}, {pr(F+4*i+2)}")
    for i in range(3): p(f"v_pk_add_f32 {pr(144+4*i)}, {pr(144+4*i)}, {pr(146+4*i)}")
    p(f"v_pk_add_f32 {pr(144)}, {pr(144)}, {pr(148)}")
    p(f"s_mov_b64 exec, s[{S_RET}:{S_RET+1}]")
    p(f"v_pk_add_f32 {pr(140)}, {pr(144)}, {pr(152)}")
    p("s_mov_b64 exec, -1")
    def reduce32(pp, r, t):
        pp(f"v_add_f32 v{r}, v{r}, v{r+1}")
        for mod in ("quad_perm:[1,0,3,2]", "quad_perm:[2,3,0,1]", "row_half_mirror", "row_mirror"):
            pp(f"v_add_f32_dpp v{r}, v{r}, v{r} {mod} row_mask:0xf bank_mask:0xf")
        pp(f"v_mov_b32 v{t}, v{r}"); pp(f"v_permlane16_swap_b32 v{r}, v{t}"); pp(f"v_add_f32 v{r}, v{r}, v{t}")
    reduce32(p, 140, 141)
    p(f"v_mul_f32 v140, {f2u(-1.0/576)}, v140")
    for i in range(12): p(f"v_pk_add_f32 {pr(168+2*i)}, {pr(F+2*i)}, {pr(140)} op_sel_hi:[1,0]")
    p(f"v_cvt_pk_bf16_f32 v140, v140, v140")
    for i in range(2): p(f"v_pk_mul_f32 {pr(144+2*i)}, {pr(168+2*i)}, {pr(168+2*i)}")
    p(f"v_and_b32 v140, s{S_T2}, v140")
    for i in range(2, 12): p(f"v_pk_fma_f32 {pr(144+2*(i%2))}, {pr(168+2*i)}, {pr(168+2*i)}, {pr(144+2*(i%2))}")
    p(f"s_mov_b64 exec, s[{S_RET}:{S_RET+1}]")
    p(f"v_pk_add_f32 {pr(142)}, {pr(144)}, {pr(146)}")
    p("s_mov_b64 exec, -1")
    red = Prog()
    reduce32(red, 142, 143)
    red(f"v_mul_f32 v142, {f2u(1.0/576)}, v142")
    def rnd(r):
        red(f"v_cvt_pk_bf16_f32 v{r}, v{r}, v{r}"); red(f"v_and_b32 v{r}, s{S_T2}, v{r}")
    rnd(142); red(f"v_add_f32 v142, {f2u(1e-5)}, v142"); rnd(142)
    red("v_sqrt_f32 v142, v142"); rnd(142)
    red("v_rcp_f32 v143, v142"); red("v_fma_f32 v144, -v142, v143, 1.0"); red("v_fma_f32 v142, v144, v143, v143")
    oth = [f"v_pk_add_f32 {pr(F+2*i)}, {pr(F+2*i)}, {pr(140)} op_sel_hi:[1,0]" for i in range(12)]
    oth += [f"v_cvt_pk_bf16_f32 v{F+2*i+1}, v{F+2*i}, v{F+2*i+1}" for i in range(12)]
    for i in range(12): oth += [f"v_lshlrev_b32 v{F+2*i}, 16, v{F+2*i+1}", f"v_and_b32 v{F+2*i+1}, s{S_T2}, v{F+2*i+1}"]
    for it in red.items:
        p.items.append(it)
        for t in oth[:2]: p(t)
        oth = oth[2:]
    for t in oth: p(t)
    for i in range(12): p(f"v_pk_mul_f32 {pr(F+2*i)}, {pr(F+2*i)}, {pr(142)} op_sel_hi:[1,0]")
    for i in range(12): p(f"v_cvt_pk_bf16_f32 v{LX+i}, v{F+2*i}, v{F+2*i+1}")
    p(f"s_mov_b64 exec, s[{S_RET}:{S_RET+1}]")
    for m in range(3): p(f"ds_write_b128 v25, v[{LX+4*m}:{LX+4*m+3}] offset:{m*24*128}")
    p("s_mov_b64 exec, -1")
    p("s_waitcnt lgkmcnt(0)"); p("s_barrier")
    p(f"s_cmp_lg_u32 s{S_WAVE}, 0"); p("s_cbranch_scc1 L_noxs")
    for m in range(9): p(f"ds_read_b128 v[{LX+4*m}:{LX+4*m+3}], v29 offset:{m*1024}")
    for m in range(9):
        p(f"s_waitcnt lgkmcnt({8-m})")
        p(f"buffer_store_dwordx4 v[{LX+4*m}:{LX+4*m+3}], v26, s[{S_WS}:{S_WS+3}], s{S_RD} offen sc1", "XS")
        if m < 8: p(f"s_add_u32 s{S_RD}, s{S_RD}, 8192")
    def ep_wait(sfx):
        p(f"s_mov_b32 s{S_SPIN}, 0x40000")
        p.label(f"L_eppoll{sfx}")
        p(f"v_readfirstlane_b32 s{S_EP}, v72"); p(f"v_readfirstlane_b32 s{S_EP2}, v73")
        p(f"s_cmp_lg_u32 s{S_EP}, 0"); p(f"s_cbranch_scc1 L_epok{sfx}")
        p.raw(f"    buffer_load_dwordx2 v[72:73], v71, s[{S_DBG}:{S_DBG+3}], 0 offen sc1")
        p.raw("    s_waitcnt vmcnt(0)")
        p(f"s_sub_u32 s{S_SPIN}, s{S_SPIN}, 1"); p(f"s_cmp_lg_u32 s{S_SPIN}, 0"); p(f"s_cbranch_scc1 L_eppoll{sfx}")
        p.label(f"L_epok{sfx}")
    if 'finepro' in ABL: stamp(p, 4)
    p("s_waitcnt vmcnt(0)")
    ep_wait("a")
    p(f"s_add_u32 s{S_T0}, s{S_XCC}, s{S_EP}"); p(f"s_add_u32 s{S_PV}, s{S_EP}, 1")
    p(f"v_add_u32_e64 v32, s{S_T0}, 1"); p("v_mov_b32 v33, v73")
    p(f"buffer_store_dwordx2 v[32:33], v31, s[{S_WS}:{S_WS+3}], s{S_FO} offen sc1")
    if 'finepro' in ABL: stamp(p, 5)
    p(f"s_mov_b32 s{S_SPIN}, 0x40000")
    p.label("L_xpoll")
    p(f"buffer_load_dwordx2 v[34:35], v30, s[{S_WS}:{S_WS+3}], s{S_FO} offen sc1")
    p("s_waitcnt vmcnt(0)")
    for t in flag_test(34): p(t)
    p("v_cmp_le_u32 vcc, 7, v34")
    p("s_cbranch_vccz L_xready")
    p(f"s_sub_u32 s{S_SPIN}, s{S_SPIN}, 1"); p(f"s_cmp_lg_u32 s{S_SPIN}, 0"); p("s_cbranch_scc1 L_xpoll")
    p("s_branch L_xready")
    p.label("L_noxs")
    if 'finepro' in ABL: stamp(p, 4)
    for st in range(1, NPRE): w3(st)
    if HOP:
        p("s_mov_b64 exec, 0")
        p(f"s_cmp_eq_u32 s{S_WAVE}, 1"); p("s_cbranch_scc1 L_pad0")
        p(f"s_cmp_eq_u32 s{S_WAVE}, 2"); p("s_cbranch_scc1 L_pad1")
        p("s_branch L_pad2")
        p.label("L_padend")
        p("s_mov_b64 exec, -1")
    if 'finepro' in ABL: stamp(p, 5)
    if HOP: p("s_branch L_xready")
    p.label("L_xready", 12 if HOP else None)
    p("s_barrier")
    if 'finepro' in ABL: stamp(p, 6)
    xt = lambda ks: f"X{ks//3}"
    issue(x_loads(0, 3, xt))
    p("v_lshrrev_b32 v18, 2, v17"); p("v_and_b32 v19, 3, v17"); p("v_and_b32 v21, 3, v18")
    p(f"s_lshl_b32 s{S_W1K}, s{S_WAVE}, 10")
    p("v_lshl_add_u32 v23, v20, 3, v21"); p("v_lshlrev_b32 v24, 8, v23"); p("v_lshl_add_u32 v24, v19, 4, v24")
    for sg_ in range(4):
        p(f"v_xor_b32 v25, {sg_}, v21"); p(f"v_lshl_add_u32 v{V_RQ+sg_}, v25, 6, v24")
        p(f"v_add_u32 v{V_RQ+4+sg_}, {QBASE[1]}, v{V_RQ+sg_}"); p(f"v_add_u32 v{V_RQ+8+sg_}, {QBASE[2]}, v{V_RQ+sg_}")
    p(f"s_lshr_b32 s{S_T0}, s{S_J}, 1"); p(f"s_lshl_b32 s{S_T0}, s{S_T0}, 19")
    for d, b in ((S_K, 64), (S_V, 66)):
        p(f"s_add_u32 s{d}, s{b}, s{S_T0}"); p(f"s_addc_u32 s{d+1}, s{b+1}, 0"); p(f"s_mov_b32 s{d+2}, 524288"); p(f"s_mov_b32 s{d+3}, 0x20000")
    p(f"s_lshl_b32 s{S_T0}, s{S_WAVE}, 2"); p(f"v_add_u32 v23, s{S_T0}, v20")
    p(f"v_xor_b32 v24, v22, v23"); p(f"v_lshlrev_b32 v24, 4, v24"); p(f"v_lshl_add_u32 v{V_KD}, v23, 8, v24")
    p(f"v_and_b32 v24, 7, v23"); p(f"v_lshlrev_b32 v24, 1, v24"); p(f"v_xor_b32 v24, v22, v24"); p(f"v_lshlrev_b32 v24, 4, v24"); p(f"v_lshl_add_u32 v{V_VD}, v23, 8, v24")
    for ks in range(4):
        p(f"v_add_u32 v23, {4*ks}, v20"); p("v_xor_b32 v23, v23, v22"); p("v_lshlrev_b32 v23, 4, v23"); p(f"v_lshl_add_u32 v{V_KA+ks}, v22, 8, v23")
    p("v_and_b32 v24, 7, v18"); p("v_lshlrev_b32 v25, 8, v18"); p("v_lshl_add_u32 v25, v19, 3, v25"); p("v_add_u32 v25, 0x10000, v25")
    for dt in range(8):
        p(f"v_xor_b32 v23, {dt}, v24"); p(f"v_lshl_add_u32 v{V_VA+dt}, v23, 5, v25")
    p(f"s_and_b32 s{S_T0}, s{S_J}, 7"); p(f"s_lshl_b32 s{S_T1}, s{S_RB}, 3"); p(f"s_add_u32 s{S_T0}, s{S_T0}, s{S_T1}")
    p(f"s_lshl_b32 s{S_T0}, s{S_T0}, 2"); p(f"s_add_u32 s{S_T0}, s{S_T0}, s{S_WAVE}"); p(f"s_lshr_b32 s{S_T2}, s{S_J}, 3")
    p(f"s_cmp_lt_u32 s{S_T0}, 190"); p(f"s_cselect_b32 s{S_RSRC}, s12, s14"); p(f"s_cselect_b32 s{S_RSRC+1}, s13, s15")
    p(f"s_movk_i32 s{S_RE}, 190"); p(f"s_cselect_b32 s{S_RE}, 124, s{S_RE}"); p(f"s_mov_b32 s{S_T1}, {WPU_OFF}"); p(f"s_cselect_b32 s{S_T1}, {WPG_OFF}, s{S_T1}")
    p(f"s_cmp_lt_u32 s{S_T0}, 124"); p(f"s_cselect_b32 s{S_RSRC}, s6, s{S_RSRC}"); p(f"s_cselect_b32 s{S_RSRC+1}, s7, s{S_RSRC+1}")
    p(f"s_cselect_b32 s{S_RE}, 58, s{S_RE}"); p(f"s_cselect_b32 s{S_T1}, {WPD_OFF}, s{S_T1}")
    p(f"s_movk_i32 s{S_RMAG}, 3641"); p(f"s_cselect_b32 s{S_RMAG}, 7282, s{S_RMAG}")
    p(f"s_mov_b32 s{S_RSTR}, {32*9216 - 128*18}"); p(f"s_cselect_b32 s{S_RSTR}, {32*1152 - 128*9}, s{S_RSTR}")
    for n, (ra, rb_) in enumerate(((16, 8), (4, 16), (20, 24))):
        p(f"s_mov_b32 s{S_RO+n}, {ra*9216 - (n+1)*1024}"); p(f"s_cselect_b32 s{S_RO+n}, {rb_*1152 - (n+1)*1024}, s{S_RO+n}")
    p(f"s_movk_i32 s{S_KOFF}, 9216"); p(f"s_cselect_b32 s{S_KOFF}, 1152, s{S_KOFF}")
    p(f"s_cselect_b32 s{S_VOFF}, 0, 4")
    p(f"s_movk_i32 s{S_RS}, 2304"); p(f"s_cselect_b32 s{S_RS}, {CH_D}, s{S_RS}")
    p(f"s_mov_b32 s{S_RSRC+2}, {576*9216}"); p(f"s_cselect_b32 s{S_RD}, 0, 2304"); p(f"s_cselect_b32 s{S_RSRC+2}, {CH_D}, s{S_RSRC+2}")
    p(f"s_mov_b32 s{S_RDST+2}, {CH_D}"); p(f"s_movk_i32 s{S_RNW}, 66")
    p(f"s_cmp_lt_u32 s{S_T0}, 58"); p(f"s_cselect_b32 s{S_RSRC}, s4, s{S_RSRC}"); p(f"s_cselect_b32 s{S_RSRC+1}, s5, s{S_RSRC+1}")
    p(f"s_cselect_b32 s{S_RE}, 0, s{S_RE}"); p(f"s_cselect_b32 s{S_T1}, {WPO_OFF}, s{S_T1}"); p(f"s_cselect_b32 s{S_RNW}, 58, s{S_RNW}")
    p(f"s_cselect_b32 s{S_RS}, {CH_O}, s{S_RS}"); p(f"s_cselect_b32 s{S_RSRC+2}, {CH_O}, s{S_RSRC+2}"); p(f"s_cselect_b32 s{S_RDST+2}, {CH_O}, s{S_RDST+2}")
    p(f"s_sub_u32 s{S_RE}, s{S_T0}, s{S_RE}"); p(f"s_sub_u32 s{S_RE}, s{S_RE}, s{S_RNW}")
    p(f"s_mul_i32 s{S_RS}, s{S_RS}, s{S_T2}"); p(f"s_add_u32 s{S_RSRC}, s{S_RSRC}, s{S_RS}"); p(f"s_addc_u32 s{S_RSRC+1}, s{S_RSRC+1}, 0")
    p(f"s_mul_i32 s{S_RD}, s{S_RD}, s{S_T2}"); p(f"s_sub_u32 s{S_RSRC+2}, s{S_RSRC+2}, s{S_RD}"); p(f"s_mov_b32 s{S_RSRC+3}, 0x20000")
    p(f"s_mul_i32 s{S_RS}, s{S_RDST+2}, s{S_T2}"); p(f"s_add_u32 s{S_T1}, s{S_T1}, s{S_RS}")
    p(f"s_add_u32 s{S_RDST}, s70, s{S_T1}"); p(f"s_addc_u32 s{S_RDST+1}, s71, 0"); p(f"s_mov_b32 s{S_RDST+3}, 0x20000")
    p(f"s_lshl_b32 s{S_RLB}, s{S_WAVE}, 12"); p(f"s_add_u32 s{S_RLB}, s{S_RLB}, {128*K}")
    p("v_lshrrev_b32 v23, 3, v17"); p("v_lshrrev_b32 v24, 2, v23"); p(f"v_mul_u32_u24 v24, s{S_VOFF}, v24"); p("v_add_u32 v23, v23, v24")
    p(f"v_mul_u32_u24 v23, s{S_KOFF}, v23"); p(f"v_lshl_add_u32 v{V_RPG}, v28, 4, v23")
    p(f"v_lshlrev_b32 v{V_RPL}, 7, v18"); p(f"v_lshl_add_u32 v{V_RPL}, v19, 3, v{V_RPL}"); p(f"v_add_u32 v{V_RPL}, s{S_RLB}, v{V_RPL}")
    p(f"s_lshl_b32 s{S_T1}, s{S_T2}, 9"); p("v_lshrrev_b32 v23, 3, v17"); p("v_lshlrev_b32 v23, 11, v23"); p(f"v_lshl_add_u32 v{V_PA}, v28, 3, v23"); p(f"v_add_u32 v{V_PA}, s{S_T1}, v{V_PA}")
    for q in range(4): p(f"v_mov_b32 v{V_ONE+q}, 0x3f803f80")
    p(f"s_mov_b32 s{S_THR}, {f2u(THRESH)}")
    p(f"s_mov_b32 s{S_KOFF}, {4*16384}"); p(f"s_mov_b32 s{S_VOFF}, {3*16384}"); p(f"s_mov_b32 s{S_CNT}, 7")

    qacc = lambda nt, mt: 96 + (nt * 4 + mt) * 4
    groups = [(st, nt) for st in range(6) for nt in (range(8) if st < 5 else (4, 5, 6, 7, 0, 1, 2, 3))]
    def q_reads(gi):
        st, nt = groups[gi]
        hb = 0 if QSLOT[st] < 64 * K else (1 if QSLOT[st] < 128 * K else 2)
        off = QSLOT[st] - QBASE[hb]
        return [(f"ds_read_b64_tr_b16 v[{V_AF+(gi%3)*12+c*4+2*tt}:{V_AF+(gi%3)*12+c*4+2*tt+1}], v{V_RQ+4*hb+(nt>>1)} offset:{off + c*8192 + tt*1024 + 8*(nt&1)}", f"A{gi%3}")
                for c in range(3) for tt in range(2)]
    gaps = []
    for gi, (st, nt) in enumerate(groups):
        for mt in range(4):
            for c in range(3):
                a = qacc(nt, mt); af = V_AF + (gi % 3) * 12 + c * 4; ks = st * 3 + c
                gaps.append(Gap(f"v_mfma_f32_16x16x32_bf16 v[{a}:{a+3}], v[{af}:{af+3}], {xreg(ks, mt)}, " + ("0" if ks == 0 else f"v[{a}:{a+3}]")))
    for gi in range(2, 48):
        rd = q_reads(gi)
        if gi % 8 == 0: pos = [12 * (gi - 1) + n for n in range(6)]
        elif gi % 8 == 1: pos = [12 * (gi - 2) + 6 + n for n in range(6)]
        else: pos = [12 * (gi - 2) + 2 * n for n in range(6)]
        for g, r in zip(pos, rd): gaps[g].mem.append(r)
    for gi in range(1, 48):
        g = gaps[12 * gi - 1]; st = gi // 8
        vm = [f"X{st}"] if gi % 8 == 0 else []
        if gi % 8 == 7 and st < 5:
            g.sh += [WaitFor(vm=[f"W{st+1}"] + ([f"K{KS(0)}"] if st == 4 else []), lg0=True), "s_barrier"]
        else: g.sh.append(WaitFor(lg=(f"A{gi%3}",), vm=vm))
    sched = {0: [], 1: [], 2: [], 3: [], 4: []}
    for st in range(NPRE, 6): sched[max(0, st - 3) if st < 5 else max(1, st - 3)] += wq_dma(st)
    for st in range(4): sched[st] = (sched[st][:6] if st == 0 and NPRE < 3 else []) + x_loads(3 * st + 6, 3 * st + 9, xt) + (sched[st][6:] if st == 0 and NPRE < 3 else sched[st])
    sched[2] += kv_dma("K", KS(0), None, 0)
    sched[3] += kv_dma("K", KS(1), None, 16384) + kv_dma("V", VS(0), None, 0)
    sched[4] += [([], (f"buffer_load_dwordx2 v[66:67], v64, s[{S_WS}:{S_WS+3}], s{S_FO} offen sc1", "GX"))] + kv_dma("V", VS(1), None, 16384) + kv_dma("V", VS(2), None, 32768)
    for st in range(5): place_mem(gaps, sched[st], 96 * st, 96 * st + 83)
    gaps[96 * 4 + 72].post += [f"s_load_dwordx2 s[{S_OUT}:{S_OUT+1}], s[0:1], {ARG['out']}", f"s_mov_b32 s{S_OUT+2}, {XN_BYTES}"]
    Kf = lambda kt, ks: A_KF + (kt % 2) * 16 + ks * 4
    def k_reads(slot, kt):
        return [(f"ds_read_b128 a[{Kf(kt,ks)}:{Kf(kt,ks)+3}], v{V_KA+ks} offset:{slot*16384 + kt*4096}", f"KF{kt%2}") for ks in range(4)]
    for n, r in enumerate(k_reads(KS(0), 0) + k_reads(KS(0), 1)): gaps[96 * 5 + 74 + 2 * n].mem.append(r)
    def q_epi(seg):
        q = []
        for mt in range(4):
            rs = [qacc(2 * seg, mt) + r for r in range(4)] + [qacc(2 * seg + 1, mt) + r for r in range(4)]
            for r in rs: q.append(f"v_mul_f32 v{r}, {f2u(QSCALE)}, v{r}")
            for i in range(4): q.append(f"v_cvt_pk_bf16_f32 v{rs[2*i]}, v{rs[2*i]}, v{rs[2*i+1]}")
            for i in range(4): q.append(f"v_accvgpr_write_b32 a{A_Q + (mt*4 + seg)*4 + i}, v{rs[2*i]}")
        return q
    q = []; mins = []
    for n, seg in enumerate((2, 3, 0)):
        e_ = q_epi(seg); q += e_; mins += [96 * 5 + 24 * (n + 1) + 3] * len(e_)
    qleft = fill_valu(gaps, 96 * 5 + 27, q, mins=mins) + q_epi(1)
    issue(x_loads(3, 6, xt))
    p.items.append(WaitFor(vm=("X0",)))
    p("s_barrier")
    for t, tag in q_reads(0) + q_reads(1): p(t, tag)
    ep_wait("b")
    p(f"s_add_u32 s{S_XCC}, s{S_XCC}, s{S_EP}"); p(f"v_mov_b32 v{V_SV+1}, s{S_EP2}")
    p.items.append(WaitFor(lg=("A0",)))
    stamp(p, 1)
    if 'finepro' in ABL:
        for s_ in range(6): gaps[96 * (s_ + 1) - 1].post += stamp_ops(7 + s_)
    emit_gaps(p, gaps)
    if not FINE: stamp(p, 2)

    Sreg = lambda par, kt, qt: V_S + (1 - par) * 64 + (kt * 4 + qt) * 4
    Preg = lambda par, kb, qt: (V_P0 + par * 16 + qt * 4) if kb == 0 else (V_P1 + qt * 4)
    Vf = lambda dt, kb: A_VF + (dt % 4) * 8 + kb * 4
    def v_reads(slot, dt):
        return [(f"ds_read_b64_tr_b16 a[{Vf(dt,kb)+2*t}:{Vf(dt,kb)+2*t+1}], v{V_VA+dt} offset:{slot*16384 + kb*8192 + t*4096}", f"VF{dt%4}") for kb in range(2) for t in range(2)]
    def qk_mfma(par, kt, qt, ks, first=None):
        s = Sreg(par, kt, qt)
        C = first if first else (f"v[{s}:{s+3}]" if ks else f"v[{V_NM+4*qt}:{V_NM+4*qt+3}]")
        qf = A_Q + (qt * 4 + ks) * 4
        return f"v_mfma_f32_16x16x32_bf16 v[{s}:{s+3}], a[{Kf(kt,ks)}:{Kf(kt,ks)+3}], a[{qf}:{qf+3}], {C}"
    def pv_mfma(par, dt, qt, kb):
        o = A_O + (dt * 4 + qt) * 4; pr_ = Preg(par, kb, qt)
        return f"v_mfma_f32_16x16x32_bf16 a[{o}:{o+3}], a[{Vf(dt,kb)}:{Vf(dt,kb)+3}], v[{pr_}:{pr_+3}], a[{o}:{o+3}]"
    def l_mfma(par, qt, kb):
        pr_ = Preg(par, kb, qt)
        return f"v_mfma_f32_16x16x32_bf16 v[{V_LD}:{V_LD+3}], v[{V_ONE}:{V_ONE+3}], v[{pr_}:{pr_+3}], " + ("0" if kb == 0 else f"v[{V_LD}:{V_LD+3}]")
    def elem(par, tau):
        kb = tau // 32; r = tau % 32; qt = 2 * (r // 16) + ((r % 4) >> 1); j = 2 * ((r % 16) // 4) + (r & 1)
        return Sreg(par, 2 * kb + (j >> 2), qt) + (j & 3), kb, qt, j
    def op_exp(par, tau): return f"v_exp_f32 v{V_E + tau % 8}, v{elem(par, tau)[0]}"
    def op_add(par, tau):
        s, kb, qt, j = elem(par, tau); assert qt % 2 == 1
        src = V_LS + (1 - par) * 4 + qt if (kb == 0 and j == 0) else V_LS + par * 4 + qt
        return f"v_add_f32 v{V_LS + par*4 + qt}, v{src}, v{V_E + tau % 8}"
    def op_ladd(par, qt): return f"v_add_f32 v{V_LS + par*4 + qt}, v{V_LS + (1-par)*4 + qt}, v{V_LD}"
    def op_cvt(par, tau):
        s, kb, qt, j = elem(par, tau); assert tau % 2 == 1
        return f"v_cvt_pk_bf16_f32 v{Preg(par, kb, qt) + j//2}, v{V_E + (tau-1) % 8}, v{V_E + tau % 8}"
    def rowmax_ops(par, qt, dst, kts=range(4), cont=False):
        regs = [Sreg(par, kt, qt) + r for kt in kts for r in range(4)]
        if cont: regs = [dst] + regs
        o = [f"v_max3_f32 v{dst}, v{regs[0]}, v{regs[1]}, v{regs[2]}"]; i = 3
        while i + 1 < len(regs): o.append(f"v_max3_f32 v{dst}, v{dst}, v{regs[i]}, v{regs[i+1]}"); i += 2
        if i < len(regs): o.append(f"v_max_f32 v{dst}, v{dst}, v{regs[i]}")
        return o
    def xlane_ops(op, dsts, t1):
        o = []
        for sw in ("v_permlane32_swap_b32", "v_permlane16_swap_b32"):
            for q, d in enumerate(dsts): o.append(f"v_mov_b32 v{t1+q}, v{d}")
            for q, d in enumerate(dsts): o.append(f"{sw} v{d}, v{t1+q}")
            for q, d in enumerate(dsts): o.append(f"{op} v{d}, v{d}, v{t1+q}")
        return o
    g0 = []
    for ksp in ((2, 3), (0, 1)):
        for kt in range(2):
            for qt in range(4):
                for ks in ksp:
                    s = Sreg(0, kt, qt); g0.append(Gap(qk_mfma(0, kt, qt, ks, first=("0" if ks == 2 else f"v[{s}:{s+3}]"))))
    for kt in range(2, 4):
        for qt in range(4):
            for ks in range(4): g0.append(Gap(qk_mfma(0, kt, qt, ks, first=("0" if ks == 0 else None))))
    nup = len([x for x in qleft if x in set(q_epi(2) + q_epi(3))])
    up = [x for x in qleft if x in set(q_epi(2) + q_epi(3))]; lo = [x for x in qleft if x not in set(up)]
    print("Q epilogue left: upper", len(up), "lower", len(lo))
    p.items.append(WaitFor(vm=(f"K{KS(1)}", f"V{VS(0)}", "GX"), lg0=True)); p("s_barrier")
    emit_ops(p, up)
    lo2 = fill_valu(g0[:15], 0, lo, cap=3)
    g0[15].post += lo2
    for n, r in enumerate(k_reads(KS(0), 2)): g0[24 + n].mem.append(r)
    for n, r in enumerate(k_reads(KS(0), 3)): g0[32 + 2 * n].mem.append(r)
    for n, r in enumerate(k_reads(KS(1), 0)): g0[48 + 2 * n].mem.append(r)
    g0[31].sh.append(WaitFor(lg=("KF0",))); g0[47].sh.append(WaitFor(lg=("KF1",)))
    place_mem(g0, kv_dma("K", KS(2), None, 2 * 16384) + kv_dma("K", KS(3), None, 3 * 16384), 16, 64)
    mq = [f"v_subrev_u32 v66, s{S_XCC}, v66", f"v_xor_b32 v67, s{S_EP2}, v67", "v_min_u32 v67, 1, v67", "v_lshl_or_b32 v66, v67, 8, v66", "v_cmp_le_u32 vcc, 8, v66"]
    mq += [f"v_mov_b32 v{V_LS+4+q}, 0" for q in range(4)]
    mn = [16] * len(mq)
    for qt in range(4):
        o = rowmax_ops(0, qt, V_E + qt, kts=(0, 1)); mq += o; mn += [38] * len(o)
    for qt in range(4):
        o = rowmax_ops(0, qt, V_E + qt, kts=(2,), cont=True); mq += o; mn += [54] * len(o)
    left = fill_valu(g0, 16, mq, mins=mn)
    emit_gaps(p, g0)
    emit_ops(p, left)
    p("s_cmp_lg_u64 vcc, 0"); p(f"s_cselect_b32 s{S_MIX}, 1, {1 if 'forcemix' in ABL else 0}")
    p("s_barrier")
    for t, tag in k_reads(KS(1), 1): p(t, tag)
    zm = [f"v_mfma_f32_32x32x16_bf16 a[{A_O+16*i}:{A_O+16*i+15}], v[{V_LS+4}:{V_LS+7}], v[{V_LS+4}:{V_LS+7}], 0" for i in range(8)]
    p(zm[0])
    for qt in range(4):
        for t in rowmax_ops(0, qt, V_E + qt, kts=(3,), cont=True): p(t)
    for n, t in enumerate(xlane_ops("v_max_f32", [V_E + q for q in range(4)], V_E + 4)):
        if n % 8 == 0: p(zm[1 + n // 8])
        p(t)
    for qt in range(4):
        if qt % 2 == 0: p(zm[4 + qt // 2])
        for r in range(4): p(f"v_sub_f32 v{V_NM+4*qt+r}, {f2u(-BIAS) if BIAS else 0}, v{V_E+qt}")
    for kt in range(4):
        for qt in range(4):
            for r in (0, 2):
                s_ = Sreg(0, kt, qt) + r
                p(f"v_pk_add_f32 v[{s_}:{s_+1}], v[{s_}:{s_+1}], v[{V_NM+4*qt}:{V_NM+4*qt+1}]")
    for tau in range(36):
        if tau in (0, 4): p(zm[6 + tau // 4])
        p(op_exp(0, tau))
        if tau % 4 == 0 and tau: p(op_add(0, tau - 1)); p(op_cvt(0, tau - 1))
        if tau % 4 == 2: p(op_cvt(0, tau - 1))
        if tau % 4 == 3: p(op_add(0, tau - 1))
    p.items.append(WaitFor(lg=("KF0",)))
    p(op_add(0, 35))
    if not FINE: stamp(p, 3); stamp_rt(p, 15)
    if 'fineloop' in ABL: stamp(p, 8)

    rare_sites = []
    class Tile: pass
    def used(g): return len(g.mem) + sum(slots_of(v) for v in g.valu)
    def att_tile(it, last_block=False, first_mfmas=None):
        par = it % 2
        final = last_block and it == 3
        T = Tile(); G = []; Q = []; PV = []; LG = []
        mf = first_mfmas or [qk_mfma(1 - par, kt, qt, ks) for kt in range(4) for qt in range(4) for ks in range(4)]
        for i, m in enumerate(mf):
            g = Gap(m); G.append(g); Q.append(g)
            if i in (19, 23, 51, 55):
                g = Gap(l_mfma(par, 0 if i < 32 else 2, 0 if i in (19, 51) else 1)); G.append(g); LG.append(g)
        for dt in range(8):
            for qt in range(4):
                for kb in range(2):
                    g = Gap(pv_mfma(par, dt, qt, kb)); G.append(g); PV.append(g)
        T.G, T.Q, T.PV, T.LG = G, Q, PV, LG
        idx = {id(g): i for i, g in enumerate(G)}
        T.idx = lambda g: idx[id(g)]
        br = Q[63]
        for b in range(64):
            E, N = (Q[2*b], Q[2*b+1]) if b < 32 else (PV[2*b-64], PV[2*b-63])
            sp, tau = (par, 36 + b) if b < 28 else (1 - par, b - 28)
            if tau % 4 == 0 and not (final and b > 28): N.valu.append(op_cvt(sp, tau - 1) if b != 28 else op_cvt(par, 63))
            if final and b >= 28: continue
            E.valu.append(op_exp(sp, tau))
            if tau % 4 == 1: N.valu.append(op_cvt(sp, tau))
            if tau % 4 >= 2: (br if b in (30, 31) else N).valu.append(op_add(sp, tau))
        L = V_LS + par * 4
        site = f"{'z' if last_block else 'l'}{it}"; rare_sites.append((site, "Z" if final else str(par)))
        Q[29].valu.append(op_ladd(par, 0))
        Q[57].valu.append(f"v_max3_f32 v{V_CK}, v{L}, v{L+1}, v{L+3}")
        Q[59 if not final else 60].valu.append(op_ladd(par, 2))
        Q[61].valu += [f"v_max_f32 v{V_CK}, v{V_CK}, v{L+2}", f"v_cmp_lt_f32 vcc, s{S_THR}, v{V_CK}"]
        br.sh += [f"s_cbranch_vccnz L_rare_stub{site}", Label(f"L_rare_ret{site}")]
        PV[1].sh.append("s_barrier"); T.wv = []
        T.reserved = {id(PV[0]), id(PV[1])}
        kslot1, kslot2, vslot = KS(it + 1), KS(it + 2), VS(it)
        if not final:
            Q[15].sh.append(WaitFor(lg=("KF1",))); Q[31].sh.append(WaitFor(lg=("KF0",))); Q[47].sh.append(WaitFor(lg=("KF1",)))
        Q[-2].sh.append(WaitFor(lg=("VF0", "VF1", "VF2", "VF3")))
        for dt in range(4, 8): PV[8 * dt - 1].sh.append(WaitFor(lg=(f"VF{dt%4}",)))
        T.cur = 0; T.lastdma = -1
        def put(op, lo=None, sal=(), cap=2):
            g = max(T.cur, T.idx(lo) if lo is not None else 0)
            while True:
                assert g < len(G), op
                ok = not G[g].mem and used(G[g]) < cap and id(G[g]) not in T.reserved
                if ok and sal:
                    fr = [h for h in range(max(T.lastdma + (0 if len(sal) == 2 else 1), g - 6, 0), g) if not G[h].sh and id(G[h]) not in T.reserved]
                    ok = len(fr) >= len(sal)
                if ok: break
                g += 1
            if sal:
                for h, s_ in zip(fr[-len(sal):], sal): G[h].sh.append(s_)
                T.lastdma = g
            G[g].mem.append(op); T.cur = g + 1
            return g
        T.put = put
        def putseq(ops, g_from, step, cap=3):
            T.cur = T.idx(g_from); T.lastdma = T.cur - 3
            for n, (sal_, op) in enumerate(ops):
                put(op, G[min(len(G) - 1, T.idx(g_from) + int(step * n))], sal=sal_, cap=cap); T.lastdma = T.cur - 1
        T.putseq = putseq
        def solo(g, sal, op, nxt=None):
            gi = T.idx(g); assert not g.mem
            if g.valu:
                assert not nxt.mem; nxt.valu = g.valu + nxt.valu; g.valu = []; T.reserved.add(id(nxt))
            fr = [h for h in range(gi - 3, gi) if not G[h].sh]
            assert len(fr) >= len(sal), (gi, sal)
            for h, s_ in zip(fr[-len(sal):], sal): G[h].sh.append(s_)
            g.mem.append(op); T.lastdma = max(T.lastdma, gi)
        T.endsal = []
        if not final:
            if not (last_block and it >= 2):
                sal_, op = kv_dma("V", VS(it + 2), S_VOFF, -16384)[3]; solo(LG[0], sal_, op)
            if not last_block:
                dk = kv_dma("K", KS(it), S_KOFF, 0)
                solo(LG[1], *dk[0]); solo(Q[41], *dk[1], nxt=Q[43]); solo(LG[2], *dk[2]); solo(LG[3], *dk[3])
                T.endsal.append(f"s_add_u32 s{S_KOFF}, s{S_KOFF}, 16384")
            for r in v_reads(vslot, 0) + v_reads(vslot, 1): put(r)
            for r in k_reads(kslot1, 2): put(r, Q[16])
            v23 = v_reads(vslot, 2) + v_reads(vslot, 3)
            for r in v23[:3]: put(r)
            for r in k_reads(kslot1, 3): put(r, Q[32])
            for r in v23[3:]: put(r)
            assert T.cur <= T.idx(Q[55]), (it, T.cur)
        if not (last_block and it >= 1):
            dv = kv_dma("V", VS(it + 3), S_VOFF, 0)
            solo(PV[5], *dv[0], nxt=PV[7]); solo(PV[57], *dv[1], nxt=PV[59]); solo(PV[61], *dv[2], nxt=PV[63])
        T.cur = T.idx(PV[2])
        for dt in range(4, 8):
            for r in v_reads(vslot, dt):
                put(r, PV[8 * (dt - 4) + 8])
                if final: T.cur += 1
        if not (last_block and it >= 2):
            for r in k_reads(kslot2, 0) + k_reads(kslot2, 1): put(r)
            T.wv.append(f"K{kslot2}")
            T.endsal += [WaitFor(lg=("KF0",)), f"s_add_u32 s{S_VOFF}, s{S_VOFF}, 16384"]
        if not final: T.wv.append(f"V{VS(it+1)}")
        if not last_block:
            rd = lambda h, t, d: (f"ds_read_b64_tr_b16 v[{V_RPS+d}:{V_RPS+d+1}], v{V_RPL} offset:{t*2048 + h*32}", "RL")
            st_ = lambda h: (f"buffer_store_dwordx4 v[{V_RPS+4*(h%2)}:{V_RPS+4*(h%2)+3}], v{V_L16}, s[{S_RDST}:{S_RDST+3}], s{S_RD} offen offset:{h*1024} sc1", "RST")
            if it == 0:
                sl = [f"s_add_u32 s{S_RE}, s{S_RE}, s{S_RNW}", f"s_mul_i32 s{S_RS}, s{S_RE}, s{S_RMAG}", f"s_lshr_b32 s{S_RS}, s{S_RS}, 16",
                      f"s_mul_i32 s{S_RS}, s{S_RS}, s{S_RSTR}", f"s_lshl_b32 s{S_RD}, s{S_RE}, 7", f"s_add_u32 s{S_RS}, s{S_RS}, s{S_RD}", f"s_lshl_b32 s{S_RD}, s{S_RE}, 12"]
                for n, s_ in enumerate(sl): Q[2 * n].sh.append(s_)
            rdma = lambda n: (f"buffer_load_dwordx4 v{V_RPG}, s[{S_RSRC}:{S_RSRC+3}], s{S_SIG if n else S_RS} offen offset:{n*1024}{NTR} lds", "RD")
            RSP = os.environ.get("RSP", "1")
            if it == 0 and RSP == "0":
                PV[8].sh.append(f"s_mov_b32 m0, s{S_RLB}")
                for n in range(4):
                    if n: PV[8 + 10 * n].sh.append(f"s_add_u32 s{S_SIG}, s{S_RS}, s{S_RO+n-1}")
                    PV[10 + 10 * n].mem.append(rdma(n))
            if it in (0, 1) and RSP == "1":
                for n, (gm, gs, g) in zip((2 * it, 2 * it + 1), ((Q[28], Q[27], Q[30]), (PV[28], PV[27], PV[30]))):
                    gm.sh.append(f"s_mov_b32 m0, s{S_RLB}")
                    if n: gs.sh.append(f"s_add_u32 s{S_SIG}, s{S_RS}, s{S_RO+n-1}")
                    g.mem.append(rdma(n))
            if it == 1:
                T.wv.append("RST")
                PV[10].sh.append(f"s_cmp_le_u32 s{S_CNT}, 2"); PV[11].sh.append(f"s_cselect_b32 s{S_SIG}, 2, 1")
                PV[12].sh.append(f"s_add_u32 s{S_SIG}, s{S_SIG}, s{S_XCC}"); PV[13].valu.append(f"v_mov_b32 v{V_SV}, s{S_SIG}")
                PV[20].mem.append((sig_store, None))
            if it == 3:
                Q[1].sh.append(WaitFor(vm=("RD",)))
                Q[2].mem.append(rd(0, 0, 0)); Q[6].mem.append(rd(0, 1, 2)); Q[10].mem.append(rd(1, 0, 4)); Q[14].mem.append(rd(1, 1, 6))
                Q[33].sh.append(WaitFor(lg=("RL",)))
                Q[34].mem.append(st_(0)); Q[44].mem.append(st_(1))
                Q[55].mem.append(rd(2, 0, 0)); Q[57].mem.append(rd(2, 1, 2)); PV[3].mem.append(rd(3, 0, 4)); PV[7].mem.append(rd(3, 1, 6))
                PV[20].sh.append(WaitFor(lg=("RL",)))
                PV[22].mem.append(st_(2)); PV[34].mem.append(st_(3))
        return T
    def finish_tile(T):
        if T.wv: T.PV[0].sh.append(WaitFor(vm=tuple(T.wv)))
        for s_ in T.endsal:
            if isinstance(s_, WaitFor):
                g = [g for g in T.PV[57:] if not g.sh][0]; g.sh.append(s_)
            else:
                c = [g for g in T.PV[61:] if not g.sh]
                (c[0].sh if c else T.G[-1].post).append(s_)
        ov = sum(max(0, used(g) - 2) + max(0, len([x for x in g.sh if not isinstance(x, Label)]) - 1) for g in T.G)
        print("tile overflow slots:", ov, "gaps", len(T.G))

    body = Prog(); p = body
    p.label("L_att_loop", 6)
    for it in range(4):
        T = att_tile(it)
        if it == 3: T.PV[40].sh.append(f"s_sub_u32 s{S_CNT}, s{S_CNT}, 1")
        finish_tile(T)
        if it == 3 and 'fineloop' in ABL: T.G[-1].post += ["s_memtime s[76:77]", "s_waitcnt lgkmcnt(0)", f"s_mov_b32 m0, s{S_CNT}", "s_nop 0", "s_movreld_b32 s81, s76"]
        if it == 3: T.G[-1].post += [f"s_cmp_lg_u32 s{S_CNT}, 0", "s_cbranch_scc1 L_att_loop"]
        emit_gaps(p, T.G)

    tail = Prog(); p = tail
    p(f"s_getpc_b64 s[{S_RSRC}:{S_RSRC+1}]")
    p.label("L_pc1")
    p(f"s_and_b32 s{S_RSRC+1}, s{S_RSRC+1}, 0xffff"); p(f"s_mov_b32 s{S_RSRC+2}, L_code_end-L_pc1")
    p(f"s_lshr_b32 s{S_T0}, s2, 3"); p(f"s_lshl_b32 s{S_T0}, s{S_T0}, 2"); p(f"s_add_u32 s{S_T0}, s{S_T0}, s{S_WAVE}"); p(f"s_lshl_b32 s{S_T0}, s{S_T0}, 10")
    p(f"buffer_load_dwordx4 v[{V_RPS}:{V_RPS+3}], v{V_L16}, s[{S_RSRC}:{S_RSRC+3}], s{S_T0} offen", "CODE")
    p(f"v_lshrrev_b32 v{V_LANE}, 4, v{V_L16}")
    if not FINE: stamp(p, 4)
    fst = [("f", t, sub) for t in range(4) for sub in range(3)] + [("h", 0, sub) for sub in range(3)]
    facc = lambda st, nt, mt: ((160 if fst[st][1] % 2 == 0 else 96) + (nt * 4 + mt) * 4) if fst[st][0] == "f" else (160 + (nt // 2) * 16 + mt * 4)
    def fw_dma(st):
        kind, t, sub = fst[st]; ops = []
        for i in range(3):
            tm = tmp()
            if kind == "f":
                sal = [f"s_add_u32 s{tm}, s{S_GF}, {WPG_OFF + (sub*6 + i)*73728 + t*2048}", f"s_add_u32 m0, s{S_GL}, {FSLOT[st%4] + i*4096}"]
                ops.append((sal, (f"buffer_load_dwordx4 v{V_L16}, s[{S_WS}:{S_WS+3}], s{tm} offen sc1 lds", f"FW{st}")))
                ops.append(([], (f"buffer_load_dwordx4 v{V_L16}, s[{S_WS}:{S_WS+3}], s{tm} offen offset:1024 sc1 lds", f"FW{st}")))
            else:
                sal = [f"s_add_u32 s{tm}, s{S_GH}, {WPG_OFF + (sub*6 + i)*73728}", f"s_add_u32 m0, s{S_GL}, {FSLOT[st%4] + i*4096}"]
                ops.append((sal, (f"buffer_load_dwordx4 v{V_L16}, s[{S_WS}:{S_WS+3}], s{tm} offen sc1 lds", f"FW{st}")))
        return annotate(ops)
    fg = [(st, nt, c0) for st in range(15) for c0 in (0, 3) for nt in ((0, 1, 2, 3) if fst[st][0] == "f" else (0, 2))]
    def f_reads(gi):
        st, nt, c0 = fg[gi]; b = FSLOT[st % 4]
        va, off = (V_L16, b) if b < 64 * K else (V_FA, b - 104 * K)
        return [(f"ds_read_b128 v[{F_AR[gi%2][c]}:{F_AR[gi%2][c]+3}], v{va} offset:{off + (c0+c)*4096 + nt*1024}", f"FA{gi%2}") for c in range(3)]
    fm = []
    for gi, (st, nt, c0) in enumerate(fg):
        for mt in range(4):
            for c in range(3):
                a = facc(st, nt, mt); af = F_AR[gi % 2][c]; ks = fst[st][2] * 6 + c0 + c
                fm.append(f"v_mfma_f32_16x16x32_bf16 v[{a}:{a+3}], v[{af}:{af+3}], {xreg(ks, mt)}, " + ("0" if ks == 0 else f"v[{a}:{a+3}]"))
    TL = [att_tile(it, last_block=True, first_mfmas=(fm[:96] if it == 3 else None)) for it in range(4)]
    T28, T29, T30, T31 = TL
    def hoff(dst, add):
        return [f"s_add_u32 s{S_U1}, s{S_U0}, {add}", f"s_lshr_b32 s{S_U2}, s{S_U1}, 2", f"s_lshl_b32 s{S_U2}, s{S_U2}, 19", f"s_and_b32 s{S_U1}, s{S_U1}, 3",
                f"s_lshl_b32 s{S_U1}, s{S_U1}, 10", f"s_add_u32 s{dst}, s{S_U1}, s{S_U2}", f"s_add_u32 s{dst}, s{dst}, s{S_OBASE}"]
    setupA = [f"s_lshr_b32 s{S_Q}, s{S_J}, 3", f"s_and_b32 s{S_U3}, s{S_J}, 1",
              f"s_and_b32 s{S_U0}, s{S_WAVE}, 1", f"s_lshl_b32 s{S_GL}, s{S_U0}, 11", f"s_lshl_b32 s{S_U0}, s{S_U0}, 2", f"s_add_u32 s{S_U0}, s{S_U0}, s{S_Q}",
              f"s_mul_i32 s{S_GF}, s{S_U0}, {CH_D}", f"s_lshr_b32 s{S_U0}, s{S_WAVE}, 1", f"s_mul_i32 s{S_U1}, s{S_U0}, {3*73728}", f"s_add_u32 s{S_GF}, s{S_GF}, s{S_U1}",
              f"s_mul_i32 s{S_U0}, s{S_U0}, 12288", f"s_add_u32 s{S_GL}, s{S_GL}, s{S_U0}",
              f"s_and_b32 s{S_U0}, s{S_J}, 7", f"s_mul_i32 s{S_U0}, s{S_U0}, 9216", f"s_add_u32 s{S_GF}, s{S_GF}, s{S_U0}",
              f"s_lshl_b32 s{S_U0}, s{S_U3}, 13", f"s_sub_u32 s{S_GH}, s{S_GF}, s{S_U0}", f"s_add_u32 s{S_GH}, s{S_GH}, 8192",
              f"s_lshl_b32 s{S_U0}, s{S_U3}, 10", f"s_add_u32 s{S_GF}, s{S_GF}, s{S_U0}",
              f"s_mul_i32 s{S_W9K}, s{S_WAVE}, 9216", f"s_lshl_b32 s{S_PST}, s{S_RB}, 3", f"s_and_b32 s{S_U0}, s{S_J}, 7", f"s_add_u32 s{S_PST}, s{S_PST}, s{S_U0}",
              f"s_lshr_b32 s{S_FX0}, s{S_PST}, 2", f"s_mul_i32 s{S_PST}, s{S_PST}, {16*9216}",
              f"s_mul_i32 s{S_FL}, s{S_Q}, 9216", f"s_add_u32 s{S_FL}, s{S_FL}, s{S_PST}",
              f"s_mul_i32 s{S_U0}, s{S_Q}, {4*9216}", f"s_add_u32 s{S_PST}, s{S_PST}, s{S_U0}", f"s_add_u32 s{S_PST}, s{S_PST}, s{S_W9K}"]
    setupB = [f"s_lshr_b32 s{S_U0}, s{S_J}, 1", f"s_mul_i32 s{S_U0}, s{S_U0}, 9", f"s_add_u32 s{S_U0}, s{S_U0}, 4"] + hoff(S_HHALF, 0)
    setupB += [f"s_lshl_b32 s{S_U1}, s{S_U3}, 3", f"s_add_u32 s{S_HHALF}, s{S_HHALF}, s{S_U1}", f"s_mul_i32 s{S_U1}, s{S_U3}, 5", f"s_add_u32 s{S_U0}, s{S_U0}, s{S_U1}", f"s_sub_u32 s{S_U0}, s{S_U0}, 4"]
    for t in range(4): setupB += hoff(S_HF + t, t)
    setupB += [f"s_lshl_b32 s{S_U0}, s{S_J}, 19", f"s_add_u32 s{S_OBASE}, s{S_OBASE}, s{S_U0}",
               f"s_mul_i32 s{S_GLH}, s{S_WAVE}, 12288", f"s_add_u32 s{S_GLH}, s{S_GLH}, {80*K}",
               [f"s_cmp_eq_u32 s{S_WAVE}, 2", f"s_cselect_b32 s{S_GLH}, {24*K}, s{S_GLH}"], [f"s_cmp_eq_u32 s{S_WAVE}, 3", f"s_cselect_b32 s{S_GLH}, {64*K}, s{S_GLH}"]]
    setupC = [f"s_and_b32 s{S_U3}, s{S_J}, 3", f"s_mul_i32 s{S_PW2}, s{S_WAVE}, 36864", f"s_mul_i32 s{S_U0}, s{S_U3}, 9216", f"s_add_u32 s{S_PW2}, s{S_PW2}, s{S_U0}",
              f"s_mul_i32 s{S_PW}, s{S_Q}, {CH_O}", f"s_add_u32 s{S_PW}, s{S_PW}, s{S_PW2}", f"s_mul_i32 s{S_U0}, s{S_Q}, {CH_D}", f"s_add_u32 s{S_PW2}, s{S_PW2}, s{S_U0}",
              f"s_lshl_b32 s{S_PB1}, s{S_FX0}, 2", f"s_add_u32 s{S_PB1}, s{S_PB1}, s{S_WAVE}", f"s_lshl_b32 s{S_PB1}, s{S_PB1}, 13",
              f"s_lshl_b32 s{S_PB0}, s{S_Q}, 22", f"s_add_u32 s{S_PB0}, s{S_PB0}, s{S_PB1}", f"s_mul_i32 s{S_U0}, s{S_Q}, {9*524288}", f"s_add_u32 s{S_PB1}, s{S_PB1}, s{S_U0}",
              f"s_lshl_b32 s{S_FX0}, s{S_FX0}, 2", f"s_add_u32 s{S_FX0}, s{S_FX0}, s{S_Q}", f"s_mul_i32 s{S_FX0}, s{S_FX0}, {32*1152}",
              f"s_mul_i32 s{S_U0}, s{S_U3}, 288", f"s_add_u32 s{S_FX0}, s{S_FX0}, s{S_U0}", f"s_min_u32 s{S_FX1}, s{S_WAVE}, 1", f"s_lshl_b32 s{S_FX1}, s{S_FX1}, 30"]
    for n in range(3):
        setupC += [f"s_add_u32 s{S_U0}, s{S_Q}, {n+1}", f"s_and_b32 s{S_U0}, s{S_U0}, 3", f"s_mul_i32 s{S_FR+n}, s{S_U0}, {4*9216}", f"s_add_u32 s{S_FR+n}, s{S_FR+n}, s{S_FL}"]
    setupC += [f"s_lshl_b32 s{S_U0}, s{S_RB}, 11", f"s_lshl_b32 s{S_CNT}, s{S_Q}, 9", f"s_add_u32 s{S_CNT}, s{S_CNT}, s{S_U0}",
               f"s_lshl_b32 s{S_FL}, s{S_RB}, 3", f"s_and_b32 s{S_U0}, s{S_J}, 7", f"s_add_u32 s{S_FL}, s{S_FL}, s{S_U0}", f"s_lshl_b32 s{S_FL}, s{S_FL}, 9", f"s_add_u32 s{S_FL}, s{S_FL}, {F5_OFF}",
               f"s_lshl_b32 s{S_U0}, s{S_WAVE}, 7", f"s_add_u32 s{S_U0}, s{S_U0}, s{S_FL}", f"s_lshl_b32 s{S_U1}, s{S_Q}, 3", f"s_add_u32 s{S_U0}, s{S_U0}, s{S_U1}",
               f"s_lshl_b32 s{S_U1}, s{S_Q}, 7", f"s_add_u32 s{S_FL}, s{S_FL}, s{S_U1}", f"s_add_u32 s{S_U1}, s{S_Q}, 1",
               [f"s_cmp_eq_u32 s{S_WAVE}, s{S_Q}", f"s_cselect_b32 s{S_U2}, {1 << 30}, 0", f"s_cselect_b32 s{S_U3}, {OWN_LDS - OWN_DUMMY}, 0"],
               f"s_add_u32 s{S_PST}, s{S_PST}, s{S_U2}", f"s_add_u32 s{S_U3}, s{S_U3}, {OWN_DUMMY}",
               [f"s_cmp_eq_u32 s{S_WAVE}, 0", f"s_cselect_b32 s{S_KOFF}, 8192, {1 << 30}"]]
    T28.cur = T28.idx(T28.Q[50]); gl = T28.put(poll_load("PL"))
    cv, cs = poll_check(2, "p2")
    T28.PV[40].sh.append(WaitFor(vm=("PL",))); T28.PV[41].sh += cs[:1]; T28.PV[42].post += cv; T28.PV[44].sh += cs[1:]
    free = [g for g in T28.G[:T28.idx(T28.PV[54])] if not g.sh and id(g) not in T28.reserved]
    assert len(free) >= len(setupA + setupB), len(free)
    for s_, g in zip(setupA + setupB, free): g.sh += s_ if isinstance(s_, list) else [s_]
    if 'noxt' not in ABL:
        p(f"v_min_u32 v3, 23, v{V_LANE}"); p("v_lshlrev_b32 v3, 7, v3")
        p(f"s_and_b32 s{S_KOFF}, s{S_J}, 7"); p(f"s_mul_i32 s{S_KOFF}, s{S_KOFF}, 3072"); p(f"s_add_u32 s{S_KOFF}, s{S_KOFF}, s{S_XB}")
        for n, (T, g) in enumerate(((T28, T28.PV[12]), (T29, T29.Q[6]), (T30, T30.Q[6]))):
            T.putseq([([f"s_add_u32 s77, s{S_KOFF}, {n*24576}"], (f"buffer_load_dword v{V_SV}, v3, s[{S_WS}:{S_WS+3}], s77 offen sc1", "TCH"))], g, 1)
    pois = annotate([(([f"s_add_u32 s{S_SIG}, s{S_PST}, {PART_OFF + PSTRIDE + nt*1024}"] if nt % 3 == 0 else []),
                      (f"buffer_store_dwordx4 v[24:27], v{V_L16}, s[{S_WS}:{S_WS+3}], s{S_SIG} offen offset:{(nt%3)*1024} sc1", "SST")) for nt in range(9)])
    T29.putseq(fw_dma(0), T29.Q[24], 6)
    T29.putseq(fw_dma(1)[:2], T29.PV[4], 2, cap=2); T29.putseq(fw_dma(1)[2:], T29.PV[56], 2, cap=2)
    T30.wv.append("FW0")
    T30.Q[49].valu.append(f"v_add_u32 v{V_FA}, {104*K}, v{V_L16}"); T30.Q[51].valu.append(f"v_add_u32 v{V_PWA[0]}, {P3_SLOT[0]}, v{V_L16}")
    xl = lambda ks: f"XL{ks}"
    T30.cur = T30.idx(T30.PV[54])
    for r in f_reads(0): T30.put(r)
    T30.putseq(x_loads(0, 3, xl), T30.PV[3], 2)
    T30.putseq(x_loads(3, 4, xl), T30.PV[41], 2, cap=2)
    T30.G[-1].post.append(WaitFor(lg=("FA0",), vm=("XL2",)))
    T31.wv.append("FW1")
    Q = T31.Q
    for gi in range(1, 8):
        Q[12 * gi - 1].sh.insert(0, WaitFor(lg=(f"FA{gi%2}",), vm=(("XL5",) if gi == 4 else ())))
        for n, r in enumerate(f_reads(gi)): Q[12 * (gi - 1) + 1 + 2 * n].mem.append(r)
    T31.putseq(x_loads(4, 6, xl), Q[2], 2.2)
    T31.cur = T31.idx(Q[40])
    for r in [r for dt in range(4) for r in v_reads(VS(3), dt)]: T31.put(r); T31.cur += 1
    assert T31.cur < T31.idx(Q[92])
    T31.putseq(x_loads(6, 7, xl) + fw_dma(2), Q[64], 3, cap=1)
    assert T31.cur <= T31.idx(T31.PV[0])
    T31.cur = T31.idx(T31.PV[52])
    for r in f_reads(8): T31.put(r); T31.cur += 1
    T31.putseq(fw_dma(3), T31.PV[3], 2, cap=2)
    T31.PV[63].sh.append(WaitFor(lg=("FA0",), vm=("XL8",)))
    FG = [None] * 96 + [Gap(m) for m in fm[96:]]
    fs0 = {}
    for gi, (st, nt, c0) in enumerate(fg): fs0.setdefault(st, gi)
    fbar = {}
    for gi in range(9, len(fg)):
        for n, r in enumerate(f_reads(gi)): FG[12 * (gi - 1) + 2 * n].mem.append(r)
        st, nt, c0 = fg[gi]
        vm = [f"XL{fst[st][2]*6 + c0 + 2}"] if (st < 3 and nt == 0) else []
        last = gi + 1 == len(fg) or fg[gi + 1][0] != st
        if last:
            fbar[st] = WaitFor(vm=vm + ([f"FW{st+1}"] if st < 14 else ["PW0"]), lg0=True)
            FG[12 * gi - 2].sh.append(fbar[st]); FG[12 * gi - 1].sh.append("s_barrier")
        else: FG[12 * gi - 1].sh.append(WaitFor(lg=(f"FA{gi%2}",), vm=vm))
    sgf = lambda st: 12 * fs0[st] if st < 15 else len(FG)
    abar = lambda st: sgf(st + 1) - 12
    NP3 = 17
    Breg = lambda s, ks, mt: ((s % 3) * 4 + ks) * 8 + mt * 4
    def p3_w(s):
        off = (WPO_OFF + s * 4 * 36864) if s < 8 else (WPD_OFF + (s - 8) * 4 * 36864)
        base = S_PW if s < 8 else S_PW2
        ops = []
        for i in range(9):
            sal = []
            if i % 4 == 0:
                tm = tmp()
                sal = [f"s_add_u32 s{tm}, s{base}, {off + i*1024}", f"s_add_u32 m0, s{S_W9K}, {P3_SLOT[s%3] + i*1024}"]
            ops.append((sal, (f"buffer_load_dwordx4 v{V_L16}, s[{S_WS}:{S_WS+3}], s{tm} offen offset:{(i%4)*1024} sc1 lds", f"PW{s}")))
        return annotate(ops)
    def p3_b(s):
        off = (O_OFF + s * 524288) if s < 8 else (H_OFF + (s - 8) * 524288)
        base = S_PB0 if s < 8 else S_PB1
        ops = []
        for mt in range(2):
            for ks in range(4):
                r = Breg(s, ks, mt)
                ops.append(([f"s_add_u32 s{S_XR}, s{base}, {off + mt*4096}"] if ks == 0 else [],
                            (f"buffer_load_dwordx4 a[{r}:{r+3}], v{V_L16}, s[{S_WS}:{S_WS+3}], s{S_XR} offen offset:{ks*1024} sc1", f"PB{s}")))
        return annotate(ops)
    pg = []
    for s in range(NP3):
        order = [(kp, nt) for nt in range(9) for kp in range(2)] if s == 16 else [(kp, nt) for kp in range(2) for nt in range(9)]
        for kp, nt in order: pg.append((s, kp, nt))
    def p3_reads(gi):
        s, kp, nt = pg[gi]; base = P3_AR[gi % 4]
        return [(f"ds_read_b128 v[{base+4*q}:{base+4*q+3}], v{V_PWA[s%3]} offset:{((2*kp+q)*9 + nt)*1024}", f"PA{gi%4}") for q in range(2)]
    P = []
    for gi, (s, kp, nt) in enumerate(pg):
        for mt in range(2):
            for q in range(2):
                a = (AS if s < 8 else AD)(nt, mt); b = Breg(s, 2 * kp + q, mt); ar = P3_AR[gi % 4] + 4 * q
                P.append(Gap(f"v_mfma_f32_16x16x32_bf16 v[{a}:{a+3}], v[{ar}:{ar+3}], a[{b}:{b+3}], " + ("0" if (s in (0, 8) and kp == 0 and q == 0) else f"v[{a}:{a+3}]")))
    for n, r in enumerate(p3_reads(0) + p3_reads(1)): FG[len(FG) - 12 + 2 * n].mem.append(r)
    FG[-1].sh.append(WaitFor(lg=("PA0",), vm=("PB0",)))
    for gi in range(2, len(pg)):
        i = gi % 18
        if gi == 2: pos = (0, 1)
        elif gi == 3: pos = (2, 3)
        elif i == 0: pos = (4 * (gi - 2), 4 * (gi - 2) + 1)
        elif i == 1: pos = (4 * (gi - 3) + 2, 4 * (gi - 3) + 3)
        else: pos = (4 * (gi - 3), 4 * (gi - 3) + 2)
        for g_, r in zip(pos, p3_reads(gi)): P[g_].mem.append(r)
    barw = {}
    for gi in range(1, len(pg)):
        s = pg[gi][0]; g = P[4 * gi - 1]
        if gi % 18 == 16 and s + 1 < NP3:
            barw[s] = WaitFor(vm=[f"PW{s+1}", f"PB{s+1}"], lg0=True)
            P[4 * gi - 2].sh.append(barw[s]); g.sh.append("s_barrier")
        else: g.sh.append(WaitFor(lg=(f"PA{gi%4}",)))
    pab = lambda s: 72 * s + 64
    OSIG, HSIG, SSIG = 8, int(os.environ.get("HSIG", "3")), 13
    fbar[OSIG].vm = tuple(fbar[OSIG].vm) + ("OST",)
    FG[abar(OSIG) - 5].valu.append(sig_val(3)); FG[abar(OSIG) + 7].mem.append((sig_store, None))
    FG[abar(OSIG) + 1].sh.append(f"s_cmp_lg_u32 s{S_MIX}, 0"); FG[abar(OSIG) + 2].sh += ["s_cbranch_scc1 L_stub_w3", Label("L_ret_w3")]
    put_poll(FG, sgf(10) + 7, sgf(11) + 7, 3, "p3")
    barw[HSIG].vm = tuple(barw[HSIG].vm) + ("HST",)
    P[pab(HSIG) - 7].valu.append(sig_val(4)); P[pab(HSIG) + 5].mem.append((sig_store, None))
    P[pab(HSIG) + 1].sh.append(f"s_cmp_lg_u32 s{S_MIX}, 0"); P[pab(HSIG) + 2].sh += ["s_cbranch_scc1 L_stub_w4", Label("L_ret_w4")]
    put_poll(P, 72 * 5 + 69, 72 * 6 + 28, 4, "p4")
    barw[SSIG].vm = tuple(barw[SSIG].vm) + ("SST",)
    P[pab(SSIG) - 7].valu.append(sig_val(4)); P[pab(SSIG) + 5].mem.append((sig_store, None))
    put_poll(P, 72 * 14 + 49, 72 * 15 + 12, 4, "p5")
    P[72 * 16 - 3].valu.append(sig_val(5)); P[72 * 16 + 1].mem.append((sig_store, None))
    for st in range(1, 15):
        ops = fw_dma(st + 3) if st + 3 < 15 else []
        if st == 9: ops += p3_w(0)
        if st in (7, 8, 10): ops += pois[{7: 0, 8: 3, 10: 6}[st]:][:3]
        if st == 13: ops = p3_b(0) + p3_w(1)
        if st == 14: ops = p3_b(1)
        if ops: place_mem(FG, ops, sgf(st), abar(st) - 2 if st < 13 else sgf(st + 1) - 1)
    FS, SG, FD, FXR, TT, XU = 192, [240, 248, 24], 96, 168, 56, 32
    def fin_loads(kind, dst, tag):
        ops = []
        for m in range(3):
            for sp in range(3):
                tm = tmp()
                ops.append(([f"s_add_u32 s{tm}, s{S_FR+sp}, {PART_OFF + kind*PSTRIDE}"],
                            (f"buffer_load_dwordx4 v[{dst+(m*4+sp)*4}:{dst+(m*4+sp)*4+3}], v{V_FL+m}, s[{S_WS}:{S_WS+3}], s{tm} offen sc1", tag)))
        return annotate(ops)
    own_reads = lambda kind, dst, tag: [(f"ds_read_b128 v[{dst+(m*4+3)*4}:{dst+(m*4+3)*4+3}], v{V_OWR} offset:{kind*9216 + m*4096}", tag) for m in range(3)]
    for s in range(NP3):
        if s + 2 < NP3:
            w, b = p3_w(s + 2), p3_b(s + 2)
            if s == 6:
                place_mem(P, w, 72 * s, 72 * s + 28); place_mem(P, b, 72 * s + 30, 72 * s + 63)
            else: place_mem(P, w[:4] + b[:4] + w[4:8] + b[4:] + w[8:], 72 * s + (2 if s == 0 else 0), 72 * s + 63)
        if s == 15: place_mem(P, fin_loads(0, FS, "FS") + [([], r) for r in own_reads(0, FS, "FO")], 72 * s + 14, 72 * s + 63)
    allg = T31.PV + FG[96:]
    OT = 96
    def o_item(n, qt, s):
        T = 56 + (n % 2) * 8; D = OT + n * 4
        q = []
        for h in range(2):
            o = A_O + ((2 * s + h) * 4 + qt) * 4
            for r in range(4): q.append(f"v_accvgpr_read_b32 v{T+4*h+r}, a{o+r}")
        for i in range(8): q.append(f"v_mul_f32 v{T+i}, v{T+i}, v{V_LS+4+qt}")
        for i in range(4): q.append(f"v_cvt_pk_bf16_f32 v{D+i}, v{T+2*i}, v{T+2*i+1}")
        q.append(("MEM", [f"s_add_u32 s{S_SIG}, s{S_OBASE}, {O_OFF + qt*4096}"], (f"buffer_store_dwordx4 v[{D}:{D+3}], v{V_L16}, s[{S_WS}:{S_WS+3}], s{S_SIG} offen offset:{s*1024}", "OST")))
        return q
    def xitem(ks, mt):
        return ("MEM", [f"s_add_u32 s{S_XR}, s{S_XB}, {ks*4096}"], (f"buffer_load_dwordx4 {xreg(ks, mt)}, v{V_L16}, s[{S_WS}:{S_WS+3}], s{S_XR} offen offset:{mt*1024} sc1", f"XL{ks}"))
    pre = xlane_ops("v_add_f32", [V_LS + 5, V_LS + 7], OT + 48) + [f"v_rcp_f32 v{V_LS+4+qt}, v{V_LS+4+qt}" for qt in range(4)]
    pre += [f"v_mov_b32 v{V_C1}, {f2u(GC1)}", f"v_mov_b32 v{V_C2}, {f2u(GC2)}", f"v_add_u32 v3, s{S_GLH}, v{V_L16}"]
    left = fill_valu(T31.Q, 66, pre); assert not left, len(left)
    q = []; mins = []; n = 0; ost = []
    xk = {0: (7, 8), 1: (12, 13), 2: (14, 15), 3: (16, 17)}
    for s in range(4):
        for qt in range(4):
            it_ = o_item(n, qt, s); n += 1
            ost.append(it_.pop())
            it_ = it_[:8] + [xitem(xk[s][0], qt), xitem(xk[s][1], qt)] + it_[8:]
            q += it_; mins += [16 * (s + 1) + 4] * len(it_)
        if s == 0:
            for ks, mn_ in ((9, 49), (10, 65), (11, 65)):
                q += [xitem(ks, mt) for mt in range(4)]; mins += [mn_] * 4
    OCAP = int(os.environ.get("OCAP", "3")); OST0 = int(os.environ.get("OST0", "170"))
    lim_ = 64 + sgf(3) - 96 - 3
    NDIR = 4
    V_OP = 3
    a1 = 64 + abar(1) - 96
    q += ost[:NDIR]; mins += [OST0 + ((lim_ - 10 - OST0) * i) // NDIR for i in range(NDIR)]
    q += [("MEM", [], (f"ds_write_b128 v{V_OP}, v[{OT+4*n}:{OT+4*n+3}] offset:{(n-NDIR)*1024}", None)) for n in range(NDIR, 16)]
    mins += [a1 + 2 + 6 * i for i in range(16 - NDIR)]
    g_from, g_to = sgf(3) + 8, abar(int(os.environ.get('OEND', 5)))
    for n in range(NDIR, 16):
        g = g_from + ((g_to - g_from) * (n - NDIR)) // (16 - NDIR)
        while FG[g].mem or FG[g].valu: g += 1
        r = 24 + 4 * (n % 2)
        FG[g].mem.append((f"ds_read_b128 v[{r}:{r+3}], v{V_OP} offset:{(n-NDIR)*1024}", f"OP{n%2}"))
        g += 14
        while FG[g].mem or FG[g].valu or FG[g].sh or FG[g-1].sh: g += 1
        _, sal_, (txt, tag) = ost[n]
        FG[g-1].sh.append(WaitFor(lg=(f"OP{n%2}",))); FG[g].sh += sal_
        FG[g].mem.append((txt.replace(f"v[{OT+4*n}:{OT+4*n+3}]", f"v[{r}:{r+3}]"), tag))
        assert g + 2 < g_from + ((g_to - g_from) * (n + 2 - NDIR)) // (16 - NDIR)
    place_salu(FG, setupC, sgf(4), sgf(6))
    left = fill_valu(FG[:sgf(7)], sgf(6) + 40, [f"v_mov_b32 v{24+n}, -1" for n in range(4)]); assert not left
    left = fill_valu(allg[:lim_], 2, q, mins=mins, cap=OCAP, window=80); assert not left, len(left)
    pos = {}
    for gi, g in enumerate(allg):
        for m in g.mem:
            if m[1] and m[1].startswith("XL"): pos[m[1]] = gi
    print("last X load gap (PV31 = 0..63):", pos)
    need = {"XL7": 63, "XL8": 63, "XL9": 64 + 47, "XL10": 64 + 47, "XL11": 64 + 47, "XL12": 64 + 95, "XL13": 64 + 95, "XL14": 64 + 95, "XL15": 64 + 143, "XL16": 64 + 143, "XL17": 64 + 143}
    for k_, v_ in need.items(): assert pos[k_] < v_, (k_, pos[k_], v_)
    def ffn_epi(st0):
        kind, t, sub = fst[st0]; q = []
        for mt in range(4):
            if kind == "f": el = [(facc(st0, n, mt) + r, facc(st0, 2 + n, mt) + r) for n in range(2) for r in range(4)]
            else: el = [(facc(st0, 0, mt) + r, facc(st0, 2, mt) + r) for r in range(4)]
            T = V_T + 8 * (mt % 2)
            for e, (g, u) in enumerate(el): q.append(f"v_mul_f32 v{T+e}, v{g}, v{g}")
            for e, (g, u) in enumerate(el): q.append(f"v_fma_f32 v{T+e}, v{T+e}, v{V_C2}, v{V_C1}")
            for e, (g, u) in enumerate(el): q.append(f"v_mul_f32 v{T+e}, v{T+e}, v{g}")
            for e, (g, u) in enumerate(el):
                q.append(f"v_exp_f32 v{T+e}, v{T+e}"); q.append(f"v_mul_f32 v{g}, v{g}, v{u}")
            for e, (g, u) in enumerate(el): q.append(f"v_add_f32 v{T+e}, 1.0, v{T+e}")
            for e, (g, u) in enumerate(el): q.append(f"v_rcp_f32 v{T+e}, v{T+e}")
            for e, (g, u) in enumerate(el): q.append(f"v_mul_f32 v{g}, v{g}, v{T+e}")
            o = V_HO + 4 * (mt % 2)
            for i in range(len(el) // 2): q.append(f"v_cvt_pk_bf16_f32 v{o+i}, v{el[2*i][0]}, v{el[2*i+1][0]}")
            if kind == "f":
                q.append(("MEM", [f"s_add_u32 s{S_T2}, s{S_HF+t}, {H_OFF + mt*4096}"], (f"buffer_store_dwordx4 v[{o}:{o+3}], v{V_L16}, s[{S_WS}:{S_WS+3}], s{S_T2} offen", "HST")))
            else:
                q.append(("MEM", [f"s_add_u32 s{S_T2}, s{S_HHALF}, {H_OFF + mt*4096}"], (f"buffer_store_dwordx2 v[{o}:{o+1}], v{V_L16}, s[{S_WS}:{S_WS+3}], s{S_T2} offen", "HST")))
        return q
    fs = [f"v_and_b32 v{V_PA}, 7, v{V_LANE}", f"v_lshl_add_u32 v{V_PA}, v{V_PA}, 3, s{S_CNT}",
          f"v_add_u32 v{V_FL}, s{S_W1K}, v{V_L16}", f"v_add_u32 v{V_FL+1}, 4096, v{V_FL}", f"v_add_u32 v{V_FL+2}, s{S_KOFF}, v{V_FL}",
          f"v_and_b32 v{V_YW}, 15, v{V_LANE}", f"v_mul_u32_u24 v{V_YW}, 288, v{V_YW}", f"v_lshrrev_b32 v{V_YW+1}, 4, v{V_LANE}",
          f"v_lshl_add_u32 v{V_YW}, v{V_YW+1}, 3, v{V_YW}", f"v_lshl_add_u32 v{V_YW}, s{S_WAVE}, 5, v{V_YW}",
          f"v_lshrrev_b32 v{V_YW+1}, 16, s{S_FX1}", f"v_add_u32 v{V_YW+1}, v{V_YW+1}, v{V_YW}",
          f"v_add_u32 v{V_OWN}, s{S_U3}, v{V_L16}", f"v_add_u32 v{V_OWR}, {OWN_LDS}, v{V_FL}"]
    for m in range(3):
        r = V_XO + m
        fs += [f"v_lshl_add_u32 v{r}, s{S_WAVE}, 6, v{V_LANE}"] + ([f"v_add_u32 v{r}, {256*m}, v{r}"] if m else [])
        fs += [f"v_mul_u32_u24 v9, 3641, v{r}", f"v_lshrrev_b32 v9, 16, v9", f"v_mul_u32_u24 v9, {1152-288}, v9", f"v_lshl_add_u32 v{r}, v{r}, 4, v9"]
        if m == 2: fs += [f"v_add_u32 v{r}, s{S_FX1}, v{r}"]
    for st0 in (0, 3, 6):
        left = fill_valu(FG[:sgf(st0 + 6) - 3], sgf(st0 + 3) + 3, ffn_epi(st0) + (fs if st0 == 3 else [])); assert not left, (st0, len(left))
    allp = FG[sgf(12):] + P
    e9, e12 = ffn_epi(9), ffn_epi(12)
    xq = [("MEM", [], (f"buffer_load_dwordx4 v[{FXR+4*m}:{FXR+4*m+3}], v{V_XO+m}, s[{S_XI}:{S_XI+3}], s{S_FX0} offen", "FX")) for m in range(3)]
    HCAP = int(os.environ.get("HCAP", "3"))
    left = fill_valu(allp[:144], 3, e9)
    left = fill_valu(allp[:144 + pab(HSIG - 1) + 30], 144, left + e12 + xq, mins=[0] * len(left) + [148] * (len(e12) + 3), cap=HCAP); assert not left, len(left)
    fs2 = [f"v_mov_b32 v{V_SA}, s{S_U0}", f"v_min_u32 v{V_PA}, 2, v{V_LANE}", f"v_add_u32 v{V_PA}, s{S_U1}, v{V_PA}", f"v_and_b32 v{V_PA}, 3, v{V_PA}",
           f"v_lshl_add_u32 v{V_PA}, v{V_PA}, 3, s{S_FL}"]
    left = fill_valu(P[:72 * 8], 72 * 7, fs2); assert not left
    def part_item(A, nt, kind, tag):
        a = A(nt, 0)
        q = [f"v_cvt_pk_bf16_f32 v{a+i}, v{a+2*i}, v{a+2*i+1}" for i in range(4)]
        q.append(("MEM", [f"s_add_u32 s{S_SIG}, s{S_PST}, {PART_OFF + kind*PSTRIDE + nt*1024}"], (f"buffer_store_dwordx4 v[{a}:{a+3}], v{V_L16}, s[{S_WS}:{S_WS+3}], s{S_SIG} offen sc1", tag)))
        q.append(("MEM", [], (f"ds_write_b128 v{V_OWN}, v[{a}:{a+3}] offset:{kind*9216 + nt*1024}", None)))
        return q
    for nt in range(9):
        left = fill_valu(P[:72 * SSIG], 72 * 8 + 4 + ((72 * (SSIG - 8) - 30) * nt) // 8, part_item(AS, nt, 0, "SST")); assert not left
    dleft = []
    for nt in range(9): dleft += fill_valu(P, 72 * 16 + 8 * (nt + 1) + 4, part_item(AD, nt, 1, "DST"))
    P[72 * 13 + 1].post.append(f"s_mov_b32 s{S_THR}, 0xffff0000")
    def unpack_sum(src, dst):
        q = []
        for i in range(4): q += [f"v_lshlrev_b32 v{dst+2*i}, 16, v{src+i}", f"v_and_b32 v{dst+2*i+1}, s{S_THR}, v{src+i}"]
        for sp in range(1, 4):
            T = TT + 8 * (sp % 2)
            for i in range(4): q += [f"v_lshlrev_b32 v{T+2*i}, 16, v{src+4*sp+i}", f"v_and_b32 v{T+2*i+1}, s{S_THR}, v{src+4*sp+i}"]
            for i in range(0, 8, 2): q.append(f"v_pk_add_f32 v[{dst+i}:{dst+i+1}], v[{dst+i}:{dst+i+1}], v[{T+i}:{T+i+1}]")
        return q
    IPF = int(os.environ.get("IPF", "0"))
    if IPF:
        cnt_ = [0]
        def ipf(G, g):
            while G[g].sh: g += 1
            cnt_[0] += 1
            G[g].sh += [Raw("    s_getpc_b64 s[34:35]")]
            g += 1
            while G[g].sh: g += 1
            G[g].sh += [Raw(f"    s_load_dword s24, s[34:35], {IPF}")]
        for T in TL[2:]: ipf(T.Q, 3); ipf(T.PV, 3)
        for st in range(1, 15): ipf(FG, sgf(st) + 1)
        for s in range(NP3 - 1): ipf(P, 72 * s + 1)
    if 'nohst' in ABL:
        for g in FG[96:] + P: g.mem = [m for m in g.mem if m[1] != "HST"]
    for n_, T in enumerate(TL):
        finish_tile(T)
        if 'fineloop' in ABL:
            T.Q[-1].post += stamp_ops(9 + 2 * n_); T.G[-1].post += stamp_ops(10 + 2 * n_)
        emit_gaps(p, T.G)
    if not FINE:
        stamp(p, 5); stamp_rt(p, 16)
        FG[sgf(3) - 1].post += stamp_ops(6); FG[sgf(12) - 1].post += stamp_ops(7); FG[-1].post += stamp_ops(8)
        for s, k in ((4, 9), (8, 10), (13, 11)): P[72 * s - 1].post += stamp_ops(k)
    if 'finef' in ABL:
        stamp(p, 0)
        for st in range(1, 15): FG[sgf(st + 1) - 1].post += stamp_ops(st)
        P[71].post += stamp_ops(15); P[143].post += stamp_ops(16)
    emit_gaps(p, FG[96:])
    if 'finep3' in ABL:
        for s in range(17): P[72 * (s + 1) - 1].post += stamp_ops(s)
    emit_gaps(p, P)
    if not FINE: stamp(p, 12); stamp_rt(p, 17)
    emit_ops(p, dleft)
    def d_loads():
        for sal_, op in fin_loads(1, FD, "FD"):
            for s_ in sal_: p(s_)
            p(op[0], op[1])
    p("s_waitcnt lgkmcnt(0)")
    d_loads()
    p.items.append(WaitFor(vm=("FS",)))
    p("s_barrier")
    for t, tag in own_reads(1, FD, "FO"): p(t, tag)
    for m in range(3):
        for t in unpack_sum(FS + 16 * m, SG[m]): p(t)
    for i in range(12):
        p(f"v_lshlrev_b32 v{XU+2*i}, 16, v{FXR+i}"); p(f"v_and_b32 v{XU+2*i+1}, s{S_THR}, v{FXR+i}")
    if not FINE: stamp(p, 13)
    p(f"s_mov_b32 s{S_CNT}, 0x40000"); p(f"s_add_u32 s{S_PV}, s{S_EP}, 5")
    p.label("L_dcheck")
    p("s_waitcnt vmcnt(0)")
    q_ = [FD + (m * 4 + sp) * 4 + i for m in range(3) for sp in range(3) for i in range(4)]
    p(f"v_max_u32 v{V_PT}, v{q_[0]}, v{q_[1]}"); p(f"v_max_u32 v{V_PT+1}, v{q_[2]}, v{q_[3]}")
    for i in range(4, 36, 2): p(f"v_max3_u32 v{V_PT+(i//2)%2}, v{V_PT+(i//2)%2}, v{q_[i]}, v{q_[i+1]}")
    p(f"v_max_u32 v{V_PT}, v{V_PT}, v{V_PT+1}")
    p(f"v_cmp_eq_u32 vcc, -1, v{V_PT}")
    p("s_cbranch_vccz L_dready")
    p(f"s_cmp_eq_u32 s{S_CNT}, 0x40000"); p("s_cbranch_scc0 L_dagain")
    p(f"s_call_b64 s[{S_RET}:{S_RET+1}], L_spin0")
    p.label("L_dagain")
    d_loads()
    p(f"s_sub_u32 s{S_CNT}, s{S_CNT}, 1"); p(f"s_cmp_lg_u32 s{S_CNT}, 0"); p("s_cbranch_scc1 L_dcheck")
    p("s_waitcnt vmcnt(0)")
    p.label("L_dready")
    if not FINE: stamp(p, 14)
    p("s_waitcnt lgkmcnt(0)")
    p(f"v_mov_b32 v{V_PT}, {f2u(-LOG2E)}")
    for m in range(3):
        D = 144 + 8 * m; T = FD + 16 * m; S_ = SG[m]
        for t in unpack_sum(FD + 16 * m, D): p(t)
        for i in range(0, 8, 2): p(f"v_pk_mul_f32 {pr(T+i)}, {pr(D+i)}, {pr(V_PT)} op_sel_hi:[1,0]")
        for i in range(8): p(f"v_exp_f32 v{T+i}, v{T+i}")
        for i in range(0, 8, 2): p(f"v_pk_mul_f32 {pr(D+i)}, {pr(D+i)}, {pr(S_+i)}")
        for i in range(0, 8, 2): p(f"v_pk_add_f32 {pr(T+i)}, {pr(T+i)}, 1.0 op_sel_hi:[1,0]")
        for i in range(8): p(f"v_rcp_f32 v{T+i}, v{T+i}")
        for i in range(0, 8, 2): p(f"v_pk_mul_f32 {pr(D+i)}, {pr(D+i)}, {pr(T+i)}")
        for i in range(4): p(f"v_cvt_pk_bf16_f32 v{D+i}, v{D+2*i}, v{D+2*i+1}")
        for mt in range(2): p(f"ds_write_b64 v{V_YW + (1 if m == 2 else 0)}, v[{D+2*mt}:{D+2*mt+1}] offset:{m*128 + mt*4608}")
    p("s_waitcnt lgkmcnt(0)"); p("s_barrier")
    for m in range(3): p(f"ds_read_b128 v[{128+4*m}:{131+4*m}], v{V_FL} offset:{m*4096}")
    for m in range(3):
        p(f"s_waitcnt lgkmcnt({2-m})")
        D = 96 + 8 * m; T = XU + 8 * m
        for i in range(4):
            p(f"v_lshlrev_b32 v{D+2*i}, 16, v{128+4*m+i}"); p(f"v_and_b32 v{D+2*i+1}, s{S_THR}, v{128+4*m+i}")
        for i in range(0, 8, 2): p(f"v_pk_add_f32 {pr(D+i)}, {pr(D+i)}, {pr(T+i)}")
        for i in range(4): p(f"v_cvt_pk_bf16_f32 v{D+i}, v{D+2*i}, v{D+2*i+1}")
        p(f"buffer_store_dwordx4 v[{D}:{D+3}], v{V_XO+m}, s[{S_OUT}:{S_OUT+3}], s{S_FX0} offen")
    if STAMP: p("s_waitcnt vmcnt(0)")
    stamp(p, 19); stamp_rt(p, 21); stamp_dump(p, 70, S_WAVE, 1)
    p.label("L_done"); p("s_endpgm")

    rare = Prog(); p = rare
    for site, var in rare_sites:
        p.label(f"L_rare_stub{site}")
        p(f"s_call_b64 s[{S_RET}:{S_RET+1}], L_rare{var}")
        p(f"s_branch L_rare_ret{site}")
    for name in stubs:
        p.label(f"L_stub_{name}")
        p(f"s_call_b64 s[{S_RET}:{S_RET+1}], L_spin0")
        p(f"s_branch L_ret_{name}")
    for name in ("w3", "w4"):
        p.label(f"L_stub_{name}")
        p("buffer_wbl2 sc1"); p("s_waitcnt vmcnt(0)")
        p(f"s_branch L_ret_{name}")
    p.label("L_spin0")
    p(f"s_mov_b32 s{S_SPIN}, 0x40000")
    p.label("L_spin1")
    p(poll_load(None)[0])
    p(f"s_sub_u32 s76, s{S_EP}, s{S_PV}"); p("s_add_u32 s76, s76, 8")
    p("s_waitcnt vmcnt(0)")
    for t in flag_test(V_PT): p(t)
    p(f"v_cmp_le_u32 vcc, s76, v{V_PT}")
    p("s_cbranch_vccz L_spin2")
    p(f"s_sub_u32 s{S_SPIN}, s{S_SPIN}, 1"); p("s_sleep 1"); p(f"s_cmp_lg_u32 s{S_SPIN}, 0"); p("s_cbranch_scc1 L_spin1")
    p.label("L_spin2")
    p(f"s_setpc_b64 s[{S_RET}:{S_RET+1}]")
    rare_items = fix_hazards(rare.items)[0]
    for var in ("0", "1", "Z"):
        par = 1 if var == "Z" else int(var)
        rp = Prog(); p = rp
        p.label(f"L_rare{var}")
        p("s_nop 15")
        Lold = V_LS + (1 - par) * 4
        for qt in range(4):
            for t in rowmax_ops(par, qt, V_R + qt): p(t)
            p(f"v_log_f32 v{V_R+4}, v{Lold+qt}")
            p(f"v_max_f32 v{V_R+qt}, v{V_R+qt}, v{V_R+4}"); p(f"v_add_f32 v{V_R+qt}, {f2u(BIAS)}, v{V_R+qt}"); p(f"v_max_f32 v{V_R+qt}, 0, v{V_R+qt}")
        for t in xlane_ops("v_max_f32", [V_R + q for q in range(4)], V_R + 4): p(t)
        for qt in range(4):
            p(f"v_sub_f32 v{V_R+4+qt}, 0, v{V_R+qt}"); p(f"v_exp_f32 v{V_R+4+qt}, v{V_R+4+qt}")
        for qt in range(4):
            p(f"v_mul_f32 v{Lold+qt}, v{Lold+qt}, v{V_R+4+qt}")
            if var != "Z":
                for r in range(4): p(f"v_sub_f32 v{V_NM+4*qt+r}, v{V_NM+4*qt+r}, v{V_R+qt}")
            for pp in ((par,) if var == "Z" else (0, 1)):
                for kt in range(4):
                    for r in range(4): p(f"v_sub_f32 v{Sreg(pp,kt,qt)+r}, v{Sreg(pp,kt,qt)+r}, v{V_R+qt}")
            for dt in range(8):
                o = A_O + (dt * 4 + qt) * 4
                for r in range(4): p(f"v_accvgpr_read_b32 v{V_E+r}, a{o+r}")
                for r in range(4): p(f"v_mul_f32 v{V_E+r}, v{V_E+r}, v{V_R+4+qt}")
                for r in range(4): p(f"v_accvgpr_write_b32 a{o+r}, v{V_E+r}")
        for tau in range(64):
            p(op_exp(par, tau))
            if tau % 4 >= 2: p(op_add(par, tau))
            if tau % 2 == 1: p(op_cvt(par, tau))
        for qt in (0, 2):
            p(l_mfma(par, qt, 0)); p(l_mfma(par, qt, 1)); p(op_ladd(par, qt))
        if var != "Z":
            for tau in range(4): p(op_exp(1 - par, tau))
            p(op_cvt(1 - par, 1))
        p("s_nop 3")
        p(f"s_setpc_b64 s[{S_RET}:{S_RET+1}]")
        rare_items += fix_hazards(rp.items)[0]

    resolve_waits(pro.items + body.items + body.items + tail.items)
    pi = lower_waits(pro.items); bi = lower_waits(body.items); ti = lower_waits(tail.items)
    pi, a1 = fix_hazards(pi, verbose=False, name="pro")
    bi2, a2 = fix_hazards(bi, prev=bi, verbose=True, name="body")
    bi3, a3 = fix_hazards(bi2, prev=pi, verbose=True, name="body-entry")
    ti, a4 = fix_hazards(ti, prev=bi3, verbose=True, name="tail")
    wc = WaitChecker(); wc.run(pi + bi3 + bi3 + ti)
    for e in wc.errors[:10]: print("WAITCHECK", e)
    assert check_needs(pi + bi3 + bi3 + ti) == 0
    for it in pi + bi3 + ti:
        if isinstance(it, Ins): it.text = it.text.split(' ; need[')[0]
    allit = pi + bi3 + ti
    if not HOP: return allit + rare_items
    import subprocess
    def with_pads(pos):
        out = []; k_ = 0
        for n, it in enumerate(allit):
            out.append(it)
            if n in pos:
                out += [Label(f"L_pad{k_}"), Ins("s_cbranch_execz " + (f"L_pad{k_+3}" if k_ + 3 < len(pos) else "L_padend"), "PAD")]; k_ += 1
        return out + rare_items
    def addrs(items):
        txt = '.amdgcn_target "amdgcn-amd-amdhsa--gfx950"\n.text\n'
        for n, it in enumerate(items):
            if isinstance(it, Ins) and it.kind == "mfma": txt += render([it]) + f"L_m{id(it)}:\n"
            else: txt += render([it])
        txt += "L_code_end:\n"
        open("pads.s", "w").write(txt)
        subprocess.run(["clang", "-x", "assembler", "-target", "amdgcn-amd-amdhsa", "-mcpu=gfx950", "-c", "pads.s", "-o", "pads.o"], check=True)
        o = subprocess.run(["llvm-objdump", "-t", "pads.o"], capture_output=True, text=True).stdout
        return {l.split()[-1]: int(l.split()[0], 16) for l in o.splitlines() if ".text" in l and l.split()[-1].startswith("L_")}
    mi = [n for n, it in enumerate(allit) if isinstance(it, Ins) and it.kind == "mfma"]
    POFF = int(os.environ.get("POFF", "0"))
    pos = set(mi[:3])
    for rnd_ in range(6):
        ad = addrs(with_pads(pos))
        new_ = set(); page = None
        for n in mi:
            a_ = ad[f"L_m{id(allit[n])}"] - POFF
            if page is not None and a_ // 4096 != page: new_.add(n)
            page = a_ // 4096
        if new_ == pos: break
        pos = new_
    ad = addrs(with_pads(pos))
    print("pads at:", " ".join(hex(ad[f"L_pad{k}"]) for k in range(len(pos))))
    return with_pads(pos)

if __name__ == "__main__":
    import sys
    HEADER = open("cdna_kernels/" + NAME + ".s.ref").read().split("; Override")[0]
    items = gen()
    k = NAME + "_kernel"
    s = HEADER + f"; @launch grid=(256,1,1) block=(256,1,1) lds={LDS_BYTES}\n"
    s += '.amdgcn_target "amdgcn-amd-amdhsa--gfx950"\n' + kernel_text(k, items, 512, 256)
    s += "L_code_end:\n    s_endpgm\n" + '.section .rodata,"a"\n.p2align 6\n' + kd_text(k, 512, 256)
    open(sys.argv[1], "w").write(s)
```

```python
from common import *
import math
LDS_BYTES = 160 * 1024
LOG2E = 1.4426950408889634
QSCALE = LOG2E / math.sqrt(128.0)
GC1 = -2.0 * math.sqrt(2.0 / math.pi) * LOG2E
GC2 = GC1 * 0.044715
CUT = int(os.environ.get("CUT", "30"))
BIAS = float(126 - CUT) if CUT else 0.0
THRESH = 2.0 ** (int(os.environ.get("THR", "64")) - BIAS)
ABL = os.environ.get('ABL', '')
NTW = "" if "nontw" in ABL else " nt"
NTQ = "" if "nontq" in ABL else " nt"
NTT = '' if 'nontt' in ABL else ' nt'
NTX = " nt" if "ntx" in ABL else ""
NTKV = " nt" if 'ntkv' in ABL else ""
WS_BYTES = 128 << 20
WPO_OFF = WP_OFF
WPD_OFF = WP_OFF + 4096 * 1152
FLAG_OFF = (100 << 20) if 'farflag' in ABL else (5 << 19)
SCH = ' sc1' if 'sch' in ABL else ''
SCO = ' sc1' if 'sco' in ABL else ''
LSC = '' if 'nolsc' in ABL else ' sc1'
P3NT = ' nt' if 'p3nt' in ABL else ''
PSTRIDE = 64 * 4 * 4 * 9216

S_HF = 4
S_WG, S_WU, S_WQ, S_K, S_V, S_WS, S_DBG, S_XI = 8, 12, 16, 20, 24, 28, 32, 36
S_WAVE, S_RB, S_J = 40, 41, 42
S_RE = 43
S_T0, S_T1, S_T2 = 44, 45, 46
S_KOFF, S_VOFF = 47, 48
S_W1K = 49
S_RET = 50
S_CNT = 52
S_W3K = 53
S_BF, S_BH, S_BQ = 54, 55, 56
S_RS, S_RD = 57, 58
S_RNW = 59
S_HHALF = 60
S_THR = 61
S_OBASE = 62
S_XB = 63
S_PTR = 64
S_W6K = 3
S_PV = 79
S_SIG = 78
S_SPIN = 75
S_EP = 74
S_FO = 73
S_MIX = 72
S_XCC = 69
S_EP2 = 68
S_PW, S_PW2, S_PB0, S_PB1 = 54, 55, 56, 57
S_W9K = 53
S_PST = 58
S_FL = 59
S_FX0, S_FX1 = 60, 63
S_OUT = 16

V_SA = 0
V_L16 = 1
V_WF, V_WQ = 2, 3
V_RA = 4
V_RH = 8
V_QP = 10
V_C1, V_C2 = 12, 13
V_KD, V_VD = 14, 15
V_AF = 16
V_T = 52
V_HO = 68
V_KA = 76
V_TA = 76
V_VA = 80
V_RQ = 88
V_ACC = 96
V_X = 224
WSLOT = [128 * 1024, 80 * 1024, 40 * 1024, 104 * 1024]
def wbase(slot):
    b = WSLOT[slot]
    return (0, b - 40 * 1024) if b < 104 * 1024 else (1, b - 104 * 1024)
def xreg(ks, mt):
    f = ks * 4 + mt
    return f"a[{4*f}:{4*f+3}]" if f < 64 else f"v[{V_X+4*(f-64)}:{V_X+4*(f-64)+3}]"

A_Q, A_KF, A_VF, A_O = 0, 64, 96, 128
V_S = 96
V_P0 = 224
V_P1 = 16
V_NM = 32
V_LS = 48
V_E = 56
V_CK = 9
V_ONE = 10
V_R = 64
V_LD = 72
V_RPS = 88
V_RPG, V_RPL = 2, 3
V_PT = 4
V_SV = 6
V_PA = 8
V_LANE = 2
KS = lambda T: (T + 3) % 4
VS = lambda T: (T + 1) % 4
P3_SLOT = [0, 80 * 1024, 116 * 1024]
AD = lambda nt, mt: 160 + (nt * 2 + mt) * 4
AS = lambda nt, mt: (96 + (nt * 2 + mt) * 4) if nt < 8 else (240 + mt * 4)
P3_AR = [32, 40, 88, 232]
V_PWA = [1, 76, 77]
V_XO = 68
V_YW = 78
V_FL = 80
S_FR = 64
V_OWN = 84
V_OWR = 85
OWN_LDS = 40 * 1024
FX_OFF = 16384
F5_OFF = 32768
S_W0B = 12

from k12 import Gap, emit_gaps, slots_of, fill_valu

def emit_ops(p, ops):
    for op in ops:
        if isinstance(op, tuple):
            for t in op[1]: p(t)
            p(op[2][0], op[2][1])
        else: p(op)

def annotate(ops):
    out = []; cur = []
    for sal, (txt, tag) in ops:
        if sal: cur = list(sal)
        out.append((sal, (txt + " ; need[" + "|".join(cur) + "]", tag)))
    return out

def check_needs(items):
    last = {}; bad = 0
    for it in items:
        if not isinstance(it, Ins): continue
        if "; need[" in it.text:
            for t in it.text.split("; need[")[1].rstrip("]").split("|"):
                if not t: continue
                d = Ins(t).wr[0]
                if last.get(d) != t:
                    bad += 1; print("NEEDCHECK:", it.text, "<- last writer", last.get(d))
        if it.kind == "salu":
            for r in it.wr: last[r] = it.text
    return bad

def gen_mega():
    pro = Prog(); p = pro
    stubs = []
    def poll_check(val, name):
        stubs.append(name)
        return (flag_test(V_PT) + [f"v_cmp_le_u32 vcc, {8-val}, v{V_PT}"],
                [f"s_add_u32 s{S_PV}, s{S_EP}, {val}", f"s_cbranch_vccnz L_stub_{name}", Label(f"L_ret_{name}")])
    def flag_test(r):
        return [f"v_and_b32 v{r}, 0xffffff87, v{r}", f"v_xor_b32 v{r+1}, s{S_EP2}, v{r+1}", f"v_subrev_u32 v{r}, s{S_PV}, v{r}",
                f"v_min_u32 v{r+1}, 1, v{r+1}", f"v_lshl_or_b32 v{r}, v{r+1}, 8, v{r}"]
    poll_load = lambda tag: (f"buffer_load_dwordx2 v[{V_PT}:{V_PT+1}], v{V_PA}, s[{S_WS}:{S_WS+3}], s{S_FO} offen sc1", tag)
    sig_store = f"buffer_store_dwordx2 v[{V_SV}:{V_SV+1}], v{V_SA}, s[{S_WS}:{S_WS+3}], s{S_FO} offen sc1"
    sig_val = lambda val: f"v_add_u32_e64 v{V_SV}, s{S_XCC}, {val}"

    p("s_cmp_ge_u32 s2, 256"); p("s_cbranch_scc1 L_done")
    stamp_rt(p, 20); stamp(p, 0)
    LX = 96
    p(f"s_load_dwordx2 s[{S_XI}:{S_XI+1}], s[0:1], {ARG['x']}")
    p(f"s_load_dwordx4 s[68:71], s[0:1], {ARG['dbg']}")
    p(f"s_getpc_b64 s[{S_K}:{S_K+1}]")
    p.label("L_pc0")
    p(f"s_and_b32 s{S_K+1}, s{S_K+1}, 0xffff"); p(f"s_mov_b32 s{S_K+2}, L_code_end-L_pc0"); p(f"s_mov_b32 s{S_K+3}, 0x20000")
    p(f"s_lshr_b32 s{S_T1}, s2, 3"); p(f"s_lshl_b32 s{S_T0}, s{S_T1}, 12"); p("v_lshlrev_b32 v16, 4, v0")
    p(f"buffer_load_dwordx4 v[160:163], v16, s[{S_K}:{S_K+3}], s{S_T0} offen", "CODE")
    p(f"s_and_b32 s{S_CNT}, s2, 7"); p(f"s_lshl_b32 s{S_CNT}, s{S_CNT}, 5"); p(f"s_or_b32 s{S_CNT}, s{S_CNT}, s{S_T1}")
    p("v_lshrrev_b32 v18, 5, v0"); p("v_and_b32 v19, 31, v0"); p(f"s_mul_i32 s{S_T0}, s{S_CNT}, 9216")
    p("v_mul_u32_u24 v20, 1152, v18"); p("v_lshl_add_u32 v20, v19, 4, v20")
    p(f"s_mov_b32 s{S_XI+2}, {XN_BYTES}"); p(f"s_mov_b32 s{S_XI+3}, 0x20000")
    p("s_waitcnt lgkmcnt(0)")
    for m in range(3):
        p(f"buffer_load_dwordx4 v[{LX+4*m}:{LX+4*m+3}], v20, s[{S_XI}:{S_XI+3}], s{S_T0} offen offset:{m*384}{NTX}", "LX")
    p(f"s_load_dwordx2 s[{S_WQ}:{S_WQ+1}], s[0:1], {ARG['wq']}")
    p(f"s_load_dwordx4 s[72:75], s[0:1], {ARG['wg']}")
    p(f"s_load_dwordx4 s[64:67], s[0:1], {ARG['k']}")
    p("s_memrealtime s[76:77]")
    p("v_lshrrev_b32 v16, 6, v0"); p("v_and_b32 v17, 63, v0"); p("v_cmp_gt_u32 vcc, 24, v19")
    p(f"v_readfirstlane_b32 s{S_WAVE}, v16")
    srd(p, S_DBG, 68, 256); srd(p, S_WS, 70, WS_BYTES)
    if 'tlb' in ABL:
        p("v_min_u32 v37, 41, v17"); p("v_lshlrev_b32 v37, 21, v37"); p("v_mov_b32 v38, 128")
        p(f"buffer_load_dword v165, v37, s[{S_WS}:{S_WS+3}], 0 offen", "TCH")
        p(f"buffer_load_dword v166, v38, s[{S_DBG}:{S_DBG+3}], 0 offen", "TCH")
    p(f"s_mov_b64 s[{S_RET}:{S_RET+1}], vcc")
    p(f"s_and_b32 s{S_T0}, s2, 7")
    p(f"s_and_b32 s{S_RB}, s{S_T1}, 3"); p(f"s_lshr_b32 s{S_T1}, s{S_T1}, 2")
    p(f"s_and_b32 s{S_T2}, s{S_T0}, 1"); p(f"s_lshl_b32 s{S_T2}, s{S_T2}, 2"); p(f"s_add_u32 s{S_RB}, s{S_RB}, s{S_T2}")
    p(f"s_lshr_b32 s{S_T0}, s{S_T0}, 1"); p(f"s_lshl_b32 s{S_J}, s{S_T0}, 3"); p(f"s_add_u32 s{S_J}, s{S_J}, s{S_T1}")
    p(f"s_mov_b32 s{S_WQ+2}, {576*8192}"); p(f"s_mov_b32 s{S_WQ+3}, 0x20000")
    p(f"v_lshlrev_b32 v{V_L16}, 4, v17"); p("v_mov_b32 v71, 0")
    p("s_waitcnt lgkmcnt(0)")
    p(f"s_lshl_b32 s{S_T1}, s2, 2"); p(f"s_add_u32 s{S_T1}, s{S_T1}, s{S_WAVE}"); p(f"s_cmp_lg_u32 s{S_T1}, 1"); p("s_cbranch_scc1 L_noleader")
    p("s_lshl_b64 s[76:77], s[76:77], 8"); p("s_or_b32 s76, s76, 128"); p("v_mov_b32 v30, s76"); p("v_mov_b32 v31, s77")
    p.raw(f"    buffer_store_dwordx2 v[30:31], v71, s[{S_DBG}:{S_DBG+3}], 0 offen sc1")
    p.label("L_noleader")
    p("v_lshrrev_b32 v20, 4, v17"); p("v_and_b32 v22, 15, v17")
    p("v_lshlrev_b32 v23, 2, v20"); p("v_xor_b32 v23, v23, v22"); p("v_lshlrev_b32 v24, 13, v20"); p(f"v_lshl_add_u32 v{V_WQ}, v23, 4, v24")
    p(f"s_mul_i32 s{S_W6K}, s{S_WAVE}, 6144")
    p(f"s_mul_i32 s{S_BQ}, s{S_WAVE}, {24*8192}"); p(f"s_lshl_b32 s{S_T0}, s{S_J}, 8"); p(f"s_add_u32 s{S_BQ}, s{S_BQ}, s{S_T0}")

    stages = [("q", 0, sub, 0) for sub in range(6)] + [("h", 0, sub, 0) for sub in range(3)]
    for t in range(4): stages += [("f", t, sub, (t + 1) % 2) for sub in range(3)]
    NST = len(stages)
    tmpsel = [0]
    def tmp():
        tmpsel[0] ^= 1
        return (S_T0, S_T1)[tmpsel[0]]
    def w_dma(st):
        kind, t, sub, buf = stages[st]; slot = st % 4
        ops = []
        if kind == "q":
            for i in range(6):
                tm = tmp()
                sal = [f"s_add_u32 s{tm}, s{S_BQ}, {(sub * 96 + 4 * i) * 8192}", f"s_add_u32 m0, s{S_W6K}, {WSLOT[slot] + i*1024}"]
                ops.append((sal, (f"buffer_load_dwordx4 v{V_WQ}, s[{S_WQ}:{S_WQ+3}], s{tm} offen{NTQ} lds", f"W{st}")))
            return annotate(ops)
        for reg in range(2):
            for i in range(3):
                base, srdn = (S_BH if kind == "h" else S_BF), (S_WG, S_WU)[reg]
                imm = (sub * 192 + 16 * i) * 9216 + t * 64
                tm = tmp()
                sal = [f"s_add_u32 s{tm}, s{base}, {imm}", f"s_add_u32 m0, s{S_W3K}, {WSLOT[slot] + reg*12288 + i*1024}"]
                ops.append((sal, (f"buffer_load_dwordx4 v{V_WF}, s[{srdn}:{srdn+3}], s{tm} offen{NTW} lds", f"W{st}")))
        return annotate(ops)
    def x_loads(k0, k1):
        ops = []
        for ks in range(k0, k1):
            for mt in range(4):
                ops.append(([f"s_add_u32 s{S_RD}, s{S_XB}, {ks*4096}"] if mt == 0 else [],
                            (f"buffer_load_dwordx4 {xreg(ks, mt)}, v{V_L16}, s[{S_WS}:{S_WS+3}], s{S_RD} offen offset:{mt*1024} sc1", f"X{ks//3}")))
        return annotate(ops)
    def kv_dma(which, tile_slot, soff, add):
        ops = []
        for t in range(4):
            tm = tmp()
            base = (0 if which == "K" else 65536) + tile_slot * 16384 + t * 4096
            srdn = S_K if which == "K" else S_V
            if soff is None: sal = [f"s_mov_b32 s{tm}, {add + t*4096}"]
            else: sal = [f"s_add_u32 s{tm}, s{soff}, {add + t*4096}"]
            sal.append(f"s_add_u32 m0, s{S_W1K}, {base}")
            ops.append((sal, (f"buffer_load_dwordx4 v{V_KD if which == 'K' else V_VD}, s[{srdn}:{srdn+3}], s{tm} offen{NTKV} lds", f"{which}{tile_slot}")))
        return annotate(ops)
    def issue(ops):
        for sal, op in ops:
            for s in reversed(sal): p(s)
            p(op[0], op[1])
    PV_ = os.environ.get('PROV', 'D')
    srd(p, S_WG, 72, 576 * 9216); srd(p, S_WU, 74, 576 * 9216)
    def w3(st):
        for i in range(8):
            tm = tmp()
            p(f"s_add_u32 m0, s{S_RNW}, {WSLOT[st % 4] + i*1024}"); p(f"s_add_u32 s{tm}, s{S_RE}, {(st * 96 + 4 * i) * 8192}")
            p(f"buffer_load_dwordx4 v{V_WQ}, s[{S_WQ}:{S_WQ+3}], s{tm} offen{NTQ} lds", f"W{st}")
    if 'latebad' in ABL:
        srd(p, S_V, 72, 0); p("v_mov_b32 v36, 0"); p(f"s_mov_b32 s{S_RS}, 0")
    p(f"s_cmp_eq_u32 s{S_WAVE}, 0"); p("s_cbranch_scc1 L_w0a")
    p(f"s_sub_u32 s{S_T2}, s{S_WAVE}, 1"); p(f"s_lshl_b32 s{S_RNW}, s{S_T2}, 13"); p(f"s_lshl_b32 s{S_RE}, s{S_T2}, 18"); p(f"s_add_u32 s{S_RE}, s{S_RE}, s{S_T0}")
    w3(0)
    p(f"s_lshr_b32 s{S_T0}, s2, 3"); p(f"s_mul_i32 s{S_T0}, s{S_T0}, 3"); p(f"s_add_u32 s{S_T0}, s{S_T0}, s{S_T2}")
    p(f"s_and_b32 s{S_T1}, s{S_T0}, 1"); p(f"s_cmp_eq_u32 s{S_T1}, 0")
    p(f"s_cselect_b32 s{S_V}, s{S_WG}, s{S_WU}"); p(f"s_cselect_b32 s{S_V+1}, s{S_WG+1}, s{S_WU+1}"); p(f"s_mov_b32 s{S_V+2}, {576*9216}"); p(f"s_mov_b32 s{S_V+3}, 0x20000")
    p(f"s_lshr_b32 s{S_T0}, s{S_T0}, 1"); p(f"s_mul_i32 s{S_RS}, s{S_T0}, {12*9216}")
    p(f"s_lshr_b32 s{S_T2}, s{S_J}, 3"); p(f"s_mul_i32 s{S_T2}, s{S_T2}, 2304"); p(f"s_add_u32 s{S_RS}, s{S_RS}, s{S_T2}")
    p(f"s_sub_u32 s{S_T1}, 384, s{S_V}"); p(f"s_sub_u32 s{S_T1}, s{S_T1}, s{S_T2}"); p(f"s_and_b32 s{S_T1}, s{S_T1}, 1023"); p(f"s_add_u32 s{S_RS}, s{S_RS}, s{S_T1}")
    p("v_min_u32 v36, 35, v17"); p("v_mul_u32_u24 v27, 43, v36"); p("v_lshrrev_b32 v27, 7, v27")
    p(f"v_mul_u32_u24 v27, {9216 - 3072}, v27"); p("v_lshl_add_u32 v36, v36, 10, v27")
    if 'latebad' not in ABL: p(f"buffer_load_dword v164, v36, s[{S_V}:{S_V+3}], s{S_RS} offen", "TCH")
    p.label("L_w0a")
    p("v_lshrrev_b32 v26, 3, v17"); p("v_and_b32 v27, 3, v26"); p("v_lshrrev_b32 v26, 2, v26"); p("v_and_b32 v28, 7, v17")
    p("v_lshl_add_u32 v27, v27, 4, v28"); p("v_lshlrev_b32 v27, 4, v27"); p("v_lshl_add_u32 v26, v26, 12, v27")
    p(f"s_lshr_b32 s{S_T0}, s{S_CNT}, 3"); p(f"s_mul_i32 s{S_RD}, s{S_T0}, 73728")
    p(f"s_and_b32 s{S_T1}, s{S_CNT}, 6"); p(f"s_lshl_b32 s{S_T1}, s{S_T1}, 9"); p(f"s_add_u32 s{S_RD}, s{S_RD}, s{S_T1}")
    p(f"s_and_b32 s{S_T1}, s{S_CNT}, 1"); p(f"s_lshl_b32 s{S_T1}, s{S_T1}, 7"); p(f"s_add_u32 s{S_RD}, s{S_RD}, s{S_T1}")
    p(f"s_mov_b32 s{S_FO}, {FLAG_OFF}")
    p(f"s_getreg_b32 s{S_XCC}, hwreg(HW_REG_XCC_ID, 0, 4)"); p(f"s_lshl_b32 s{S_XCC}, s{S_XCC}, 3")
    p(f"s_lshl_b32 s{S_T0}, s{S_T0}, 9"); p(f"s_and_b32 s{S_T1}, s{S_CNT}, 7"); p(f"s_lshl_b32 s{S_T1}, s{S_T1}, 3"); p(f"s_add_u32 s{S_T0}, s{S_T0}, s{S_T1}"); p(f"s_add_u32 s{S_T0}, s{S_T0}, {FX_OFF}")
    p(f"v_mov_b32 v31, s{S_T0}")
    p(f"s_lshl_b32 s{S_T0}, s{S_RB}, 11"); p(f"s_and_b32 s{S_T1}, s{S_J}, 24"); p(f"s_lshl_b32 s{S_T1}, s{S_T1}, 6"); p(f"s_add_u32 s{S_T1}, s{S_T1}, s{S_T0}")
    p(f"v_lshl_add_u32 v{V_TA}, v28, 3, s{S_T1}")
    p(f"s_and_b32 s{S_T2}, s{S_J}, 7"); p(f"s_lshl_b32 s{S_T2}, s{S_T2}, 3"); p(f"s_add_u32 s{S_T1}, s{S_T1}, s{S_T2}")
    p(f"v_writelane_b32 v31, s{S_T1}, 1")
    p(f"s_cmp_eq_u32 s{S_WAVE}, 0"); p(f"s_cselect_b32 s{S_T1}, s{S_T1}, {1 << 30}"); p(f"v_mov_b32 v{V_SA}, s{S_T1}")
    p(f"s_add_u32 s{S_T0}, s{S_T0}, {FX_OFF}"); p(f"v_lshl_add_u32 v30, v28, 3, s{S_T0}"); p("v_and_b32 v27, 24, v17"); p("v_lshl_add_u32 v30, v27, 6, v30")
    p(f"s_lshl_b32 s{S_T0}, s{S_RB}, 2"); p(f"s_add_u32 s{S_T0}, s{S_T0}, s{S_WAVE}")
    p(f"s_mul_i32 s{S_XB}, s{S_T0}, 73728"); p(f"s_lshl_b32 s{S_OBASE}, s{S_T0}, 14")
    if 'finepro' in ABL: stamp(p, 2)
    F = 112
    pr = lambda r: f"v[{r}:{r+1}]"
    p(f"s_mov_b32 s{S_T2}, 0xffff0000")
    for i in range(4): p(f"v_mov_b32 v{140+i}, 0")
    p("v_lshlrev_b32 v25, 7, v19"); p("v_lshl_add_u32 v25, v18, 4, v25")
    p(f"s_cmp_eq_u32 s{S_WAVE}, 0"); p("s_cbranch_scc0 L_w0b")
    nt_ = 2 if 'tlb' in ABL else 0
    p.raw(f"    s_waitcnt vmcnt({nt_})")
    p.label("L_w0b")
    p(f"s_waitcnt vmcnt({9 + nt_})")
    p(f"buffer_load_dwordx2 v[72:73], v71, s[{S_DBG}:{S_DBG+3}], 0 offen sc1", "EP")
    if 'finepro' in ABL: stamp(p, 3)
    for i in range(12):
        p(f"v_lshlrev_b32 v{F+2*i}, 16, v{LX+i}"); p(f"v_and_b32 v{F+2*i+1}, s{S_T2}, v{LX+i}")
    for i in range(6): p(f"v_pk_add_f32 {pr(144+2*i)}, {pr(F+4*i)}, {pr(F+4*i+2)}")
    for i in range(3): p(f"v_pk_add_f32 {pr(144+4*i)}, {pr(144+4*i)}, {pr(146+4*i)}")
    p(f"v_pk_add_f32 {pr(144)}, {pr(144)}, {pr(148)}")
    p(f"s_mov_b64 exec, s[{S_RET}:{S_RET+1}]")
    p(f"v_pk_add_f32 {pr(140)}, {pr(144)}, {pr(152)}")
    p("s_mov_b64 exec, -1")
    def reduce32(r, t):
        p(f"v_add_f32 v{r}, v{r}, v{r+1}")
        for mod in ("quad_perm:[1,0,3,2]", "quad_perm:[2,3,0,1]", "row_half_mirror", "row_mirror"):
            p(f"v_add_f32_dpp v{r}, v{r}, v{r} {mod} row_mask:0xf bank_mask:0xf")
        p(f"v_mov_b32 v{t}, v{r}"); p(f"v_permlane16_swap_b32 v{r}, v{t}"); p(f"v_add_f32 v{r}, v{r}, v{t}")
    reduce32(140, 141)
    p(f"v_mul_f32 v140, {f2u(-1.0/576)}, v140")
    for i in range(12): p(f"v_pk_add_f32 {pr(168+2*i)}, {pr(F+2*i)}, {pr(140)} op_sel_hi:[1,0]")
    p(f"v_cvt_pk_bf16_f32 v140, v140, v140")
    for i in range(2): p(f"v_pk_mul_f32 {pr(144+2*i)}, {pr(168+2*i)}, {pr(168+2*i)}")
    p(f"v_and_b32 v140, s{S_T2}, v140")
    for i in range(2, 12): p(f"v_pk_fma_f32 {pr(144+2*(i%2))}, {pr(168+2*i)}, {pr(168+2*i)}, {pr(144+2*(i%2))}")
    p(f"s_mov_b64 exec, s[{S_RET}:{S_RET+1}]")
    p(f"v_pk_add_f32 {pr(142)}, {pr(144)}, {pr(146)}")
    p("s_mov_b64 exec, -1")
    red = Prog(); p_ = p; p = red
    reduce32(142, 143)
    p(f"v_mul_f32 v142, {f2u(1.0/576)}, v142")
    def rnd(r):
        p(f"v_cvt_pk_bf16_f32 v{r}, v{r}, v{r}"); p(f"v_and_b32 v{r}, s{S_T2}, v{r}")
    rnd(142)
    p(f"v_add_f32 v142, {f2u(1e-5)}, v142"); rnd(142)
    p("v_sqrt_f32 v142, v142"); rnd(142)
    p("v_rcp_f32 v143, v142"); p("v_fma_f32 v144, -v142, v143, 1.0"); p("v_fma_f32 v142, v144, v143, v143")
    p = p_
    oth = [f"v_pk_add_f32 {pr(F+2*i)}, {pr(F+2*i)}, {pr(140)} op_sel_hi:[1,0]" for i in range(12)]
    oth += [f"v_cvt_pk_bf16_f32 v{F+2*i+1}, v{F+2*i}, v{F+2*i+1}" for i in range(12)]
    for i in range(12): oth += [f"v_lshlrev_b32 v{F+2*i}, 16, v{F+2*i+1}", f"v_and_b32 v{F+2*i+1}, s{S_T2}, v{F+2*i+1}"]
    for it in red.items:
        p.items.append(it)
        for t in oth[:2]: p(t)
        oth = oth[2:]
    for t in oth: p(t)
    for i in range(12): p(f"v_pk_mul_f32 {pr(F+2*i)}, {pr(F+2*i)}, {pr(142)} op_sel_hi:[1,0]")
    for i in range(12): p(f"v_cvt_pk_bf16_f32 v{LX+i}, v{F+2*i}, v{F+2*i+1}")
    p(f"s_mov_b64 exec, s[{S_RET}:{S_RET+1}]")
    for m in range(3): p(f"ds_write_b128 v25, v[{LX+4*m}:{LX+4*m+3}] offset:{m*24*128}")
    p("s_mov_b64 exec, -1")
    p("s_waitcnt lgkmcnt(0)"); p("s_barrier")
    p(f"s_cmp_lg_u32 s{S_WAVE}, 0"); p("s_cbranch_scc1 L_noxs")
    for m in range(9): p(f"ds_read_b128 v[{LX+4*m}:{LX+4*m+3}], v{V_L16} offset:{m*1024}")
    for m in range(9):
        p(f"s_waitcnt lgkmcnt({8-m})")
        p(f"buffer_store_dwordx4 v[{LX+4*m}:{LX+4*m+3}], v26, s[{S_WS}:{S_WS+3}], s{S_RD} offen sc1", "XS")
        if m < 8: p(f"s_add_u32 s{S_RD}, s{S_RD}, 8192")
    def ep_wait(sfx):
        p(f"s_mov_b32 s{S_SPIN}, 0x40000")
        p.label(f"L_eppoll{sfx}")
        p(f"v_readfirstlane_b32 s{S_EP}, v72"); p(f"v_readfirstlane_b32 s{S_EP2}, v73")
        p(f"s_cmp_lg_u32 s{S_EP}, 0"); p(f"s_cbranch_scc1 L_epok{sfx}")
        p.raw(f"    buffer_load_dwordx2 v[72:73], v71, s[{S_DBG}:{S_DBG+3}], 0 offen sc1")
        p.raw("    s_waitcnt vmcnt(0)")
        p(f"s_sub_u32 s{S_SPIN}, s{S_SPIN}, 1"); p(f"s_cmp_lg_u32 s{S_SPIN}, 0"); p(f"s_cbranch_scc1 L_eppoll{sfx}")
        p.label(f"L_epok{sfx}")
    if 'finepro' in ABL: stamp(p, 4)
    p("s_waitcnt vmcnt(0)")
    ep_wait("a")
    p(f"s_add_u32 s{S_T0}, s{S_XCC}, s{S_EP}"); p(f"s_add_u32 s{S_PV}, s{S_EP}, 1")
    p(f"v_add_u32_e64 v32, s{S_T0}, 1"); p("v_mov_b32 v33, v73")
    p(f"buffer_store_dwordx2 v[32:33], v31, s[{S_WS}:{S_WS+3}], s{S_FO} offen sc1")
    if 'wdelay' in ABL: p("s_barrier")
    if 'finepro' in ABL: stamp(p, 5)
    p(f"s_mov_b32 s{S_SPIN}, 0x40000")
    p.label("L_xpoll")
    p(f"buffer_load_dwordx2 v[34:35], v30, s[{S_WS}:{S_WS+3}], s{S_FO} offen sc1")
    p("s_waitcnt vmcnt(0)")
    for t in flag_test(34): p(t)
    p("v_cmp_le_u32 vcc, 7, v34")
    p("s_cbranch_vccz L_xready")
    p(f"s_sub_u32 s{S_SPIN}, s{S_SPIN}, 1"); p(f"s_cmp_lg_u32 s{S_SPIN}, 0"); p("s_cbranch_scc1 L_xpoll")
    p("s_branch L_xready")
    p.label("L_noxs")
    if 'finepro' in ABL: stamp(p, 4)
    if 'wdelay' in ABL: p("s_barrier")
    w3(1)
    if PV_ == 'D': w3(2)
    HOP = 'nohop' not in ABL
    if HOP:
        p("s_mov_b64 exec, 0")
        p(f"s_cmp_eq_u32 s{S_WAVE}, 1"); p("s_cbranch_scc1 L_pad0")
        p(f"s_cmp_eq_u32 s{S_WAVE}, 2"); p("s_cbranch_scc1 L_pad1")
        p("s_branch L_pad2")
        p.label("L_padend")
        p("s_mov_b64 exec, -1")
    if 'finepro' in ABL: stamp(p, 5)
    if HOP: p("s_branch L_xready")
    p.label("L_xready", 12 if HOP else None)
    p("s_barrier")
    if 'finepro' in ABL: stamp(p, 6)
    issue(x_loads(0, 3))
    p("v_lshrrev_b32 v18, 2, v17"); p("v_and_b32 v19, 3, v17"); p("v_and_b32 v21, 3, v18")
    p(f"s_lshl_b32 s{S_W1K}, s{S_WAVE}, 10")
    p("v_lshl_add_u32 v23, v20, 3, v21"); p("v_lshlrev_b32 v24, 8, v23"); p("v_lshl_add_u32 v24, v19, 4, v24"); p(f"v_add_u32 v24, {40*1024}, v24")
    for sg_ in range(4):
        p(f"v_xor_b32 v25, {sg_}, v21"); p(f"v_lshl_add_u32 v{V_RQ+sg_}, v25, 6, v24"); p(f"v_add_u32 v{V_RQ+4+sg_}, {64*1024}, v{V_RQ+sg_}")
    p("v_lshlrev_b32 v23, 6, v23")
    p("v_and_b32 v24, 1, v20"); p("v_lshlrev_b32 v24, 5, v24")
    p("v_lshl_add_u32 v25, v19, 3, v23")
    p(f"v_add_u32 v{V_RA}, v25, v24"); p(f"v_add_u32 v{V_RA}, {40*1024}, v{V_RA}")
    p(f"v_xor_b32 v{V_RA+1}, 32, v{V_RA}")
    p(f"v_add_u32 v{V_RA+2}, {64*1024}, v{V_RA}"); p(f"v_add_u32 v{V_RA+3}, {64*1024}, v{V_RA+1}")
    p(f"s_and_b32 s{S_T2}, s{S_J}, 1"); p(f"s_lshl_b32 s{S_T0}, s{S_T2}, 5")
    p(f"v_xor_b32 v{V_RH}, s{S_T0}, v{V_RA}"); p(f"v_add_u32 v{V_RH+1}, {64*1024}, v{V_RH}")
    p("v_lshrrev_b32 v23, 5, v17"); p("v_lshlrev_b32 v23, 1, v23"); p("v_xor_b32 v23, v23, v19")
    p(f"v_mul_u32_u24 v24, 9216, v18"); p(f"v_lshl_add_u32 v{V_WF}, v23, 4, v24")
    p(f"v_mov_b32 v{V_C1}, {f2u(GC1)}"); p(f"v_mov_b32 v{V_C2}, {f2u(GC2)}")
    p(f"s_mul_i32 s{S_W3K}, s{S_WAVE}, 3072")
    p(f"s_mul_i32 s{S_BH}, s{S_WAVE}, {48*9216}")
    p(f"s_mul_i32 s{S_RS}, s{S_J}, 288"); p(f"s_add_u32 s{S_RS}, s{S_RS}, s{S_T0}")
    p(f"s_add_u32 s{S_BF}, s{S_BH}, s{S_RS}")
    p(f"s_lshr_b32 s{S_T0}, s{S_J}, 1"); p(f"s_lshl_b32 s{S_T0}, s{S_T0}, 19")
    for d, b in ((S_K, 64), (S_V, 66)):
        p(f"s_add_u32 s{d}, s{b}, s{S_T0}"); p(f"s_addc_u32 s{d+1}, s{b+1}, 0"); p(f"s_mov_b32 s{d+2}, 524288"); p(f"s_mov_b32 s{d+3}, 0x20000")
    p(f"s_lshr_b32 s{S_T0}, s{S_J}, 1"); p(f"s_mul_i32 s{S_KOFF}, s{S_T0}, 576"); p(f"s_add_u32 s{S_KOFF}, s{S_KOFF}, 256")
    p(f"s_add_u32 s{S_BH}, s{S_BH}, s{S_KOFF}")
    def hoff(dst, colreg, add):
        p(f"s_lshr_b32 s{S_T0}, s{colreg}, 6"); p(f"s_add_u32 s{S_T0}, s{S_T0}, {add}")
        p(f"s_lshr_b32 s{S_T1}, s{S_T0}, 2"); p(f"s_lshl_b32 s{S_T1}, s{S_T1}, 19")
        p(f"s_and_b32 s{S_T0}, s{S_T0}, 3"); p(f"s_lshl_b32 s{S_T0}, s{S_T0}, 10")
        p(f"s_add_u32 s{dst}, s{S_T0}, s{S_T1}"); p(f"s_add_u32 s{dst}, s{dst}, s{S_OBASE}")
    hoff(S_HHALF, S_KOFF, 0); p(f"s_lshl_b32 s{S_T0}, s{S_T2}, 3"); p(f"s_add_u32 s{S_HHALF}, s{S_HHALF}, s{S_T0}")
    for t in range(4): hoff(S_HF + t, S_RS, t)
    p(f"s_lshl_b32 s{S_T0}, s{S_J}, 19"); p(f"s_add_u32 s{S_OBASE}, s{S_OBASE}, s{S_T0}")
    p(f"s_mov_b32 s{S_THR}, {f2u(THRESH)}")
    p(f"s_lshl_b32 s{S_T0}, s{S_WAVE}, 2"); p(f"v_add_u32 v23, s{S_T0}, v20")
    p(f"v_xor_b32 v24, v22, v23"); p(f"v_lshlrev_b32 v24, 4, v24"); p(f"v_lshl_add_u32 v{V_KD}, v23, 8, v24")
    p(f"v_and_b32 v24, 7, v23"); p(f"v_lshlrev_b32 v24, 1, v24"); p(f"v_xor_b32 v24, v22, v24"); p(f"v_lshlrev_b32 v24, 4, v24"); p(f"v_lshl_add_u32 v{V_VD}, v23, 8, v24")
    for ks in range(2, 4):
        p(f"v_add_u32 v23, {4*ks}, v20"); p("v_xor_b32 v23, v23, v22"); p("v_lshlrev_b32 v23, 4, v23"); p(f"v_lshl_add_u32 v{V_KA+ks}, v22, 8, v23")
    p("v_and_b32 v24, 7, v18"); p("v_lshlrev_b32 v25, 8, v18"); p("v_lshl_add_u32 v25, v19, 3, v25"); p("v_add_u32 v25, 0x10000, v25")
    for dt in range(8):
        p(f"v_xor_b32 v23, {dt}, v24"); p(f"v_lshl_add_u32 v{V_VA+dt}, v23, 5, v25")
    p(f"s_lshl_b32 s{S_T0}, s{S_WAVE}, 14"); p(f"s_cmp_eq_u32 s{S_WAVE}, 2"); p(f"s_cselect_b32 s{S_T0}, 0x10000, s{S_T0}")
    p(f"s_add_u32 s{S_T1}, s{S_T0}, 8192"); p(f"s_cmp_eq_u32 s{S_WAVE}, 3"); p(f"s_cselect_b32 s{S_T0}, 0x8000, s{S_T0}"); p(f"s_cselect_b32 s{S_T1}, {152*1024}, s{S_T1}")
    p(f"v_add_u32 v{V_QP}, s{S_T0}, v{V_L16}"); p(f"v_add_u32 v{V_QP+1}, s{S_T1}, v{V_L16}")

    groups = []
    for st in range(NST):
        kind, t, sub, buf = stages[st]
        if kind == "q":
            for nt in range(8): groups.append((st, nt, 0))
        else:
            nts = [0, 2] if kind == "h" else [0, 1, 2, 3]
            for c0 in (0, 3):
                for nt in nts: groups.append((st, nt, c0))
    def a_reads(gi):
        st, nt, c0 = groups[gi]; kind, t, sub, buf = stages[st]
        hb, off = wbase(st % 4)
        out = []
        for c in range(3):
            for tt in range(2):
                d = V_AF + (gi % 3) * 12 + c * 4 + 2 * tt
                if kind == "q":
                    addr = V_RQ + 4 * hb + (nt >> 1); o = off + c * 8192 + tt * 1024 + 8 * (nt & 1)
                else:
                    addr = (V_RA + 2 * hb + (nt & 1)) if kind == "f" else (V_RH + hb)
                    o = off + (nt >> 1) * 12288 + (c0 + c) * 2048 + tt * 256
                out.append((f"ds_read_b64_tr_b16 v[{d}:{d+1}], v{addr} offset:{o}", f"A{gi%3}"))
        return out
    acc = lambda buf, nt, mt: V_ACC + buf * 64 + (nt * 4 + mt) * 4
    gaps = []; gstart = []
    for gi, (st, nt, c0) in enumerate(groups):
        gstart.append(len(gaps))
        kind, t, sub, buf = stages[st]
        for mt in range(4):
            for c in range(3):
                a = acc(buf, nt, mt); af = V_AF + (gi % 3) * 12 + c * 4
                ks = (sub * 3 if kind == "q" else sub * 6 + c0) + c
                C = "0" if ks == 0 else f"v[{a}:{a+3}]"
                gaps.append(Gap(f"v_mfma_f32_16x16x32_bf16 v[{a}:{a+3}], v[{af}:{af+3}], {xreg(ks, mt)}, {C}"))
    NG = len(groups)
    first_of_stage = {}
    for gi, (st, nt, c0) in enumerate(groups): first_of_stage.setdefault(st, gi)
    bar_gap = {}
    for gi in range(2, NG):
        st = groups[gi][0]; f = first_of_stage[st]
        rd = a_reads(gi)
        if gi == f:
            g0 = gstart[gi - 1]; bar_gap[st] = g0 - 1
            for n, r in enumerate(rd): gaps[g0 + n].mem.append(r)
        elif gi == f + 1:
            g0 = gstart[gi - 2]
            for n, r in enumerate(rd): gaps[g0 + 6 + n].mem.append(r)
        else:
            g0 = gstart[gi - 2]
            for n, r in enumerate(rd): gaps[g0 + 2 * n].mem.append(r)
    for gi in range(1, NG):
        g = gaps[gstart[gi] - 1]
        st, nt, c0 = groups[gi]
        vm = []
        if st < 6 and nt == 0: vm.append(f"X{st}")
        nxt = groups[gi + 1][0] if gi + 1 < NG else None
        if nxt is not None and nxt != st:
            g.sh.append(WaitFor(vm=vm + [f"W{nxt}"], lg0=True)); g.sh.append("s_barrier")
        else:
            g.sh.append(WaitFor(lg=(f"A{gi%3}",), vm=vm))
    def place_mem(gaps, ops, g0, g1, dense=False, want=0):
        pitch = max(1.0, (g1 - g0 - 8) / len(ops)) if not dense else 1.0
        last = g0
        for n, (sal, op) in enumerate(ops):
            g = max(last + 1 + len(sal), int(g0 + 2 + n * pitch))
            while True:
                assert g < g1, (g0, g1, n, len(ops))
                ok = (len(gaps[g].mem) <= 1 if dense else len(gaps[g].mem) == want) and all(len(gaps[g - len(sal) + i].sh) == 0 for i in range(len(sal)))
                if ok: break
                g += 1
            for i, s in enumerate(sal): gaps[g - len(sal) + i].sh.append(s)
            gaps[g].mem.append(op); last = g
    for st in range(NST):
        g0 = gstart[first_of_stage[st]]
        g1 = bar_gap[st + 1] if st + 1 < NST else len(gaps)
        ops = []
        if st == 0: ops = (w_dma(2) if PV_ != 'D' else []) + x_loads(6, 9) + w_dma(3)
        elif st == 1: ops = x_loads(9, 12) + w_dma(4)
        elif st == 2: ops = x_loads(12, 15) + w_dma(5)
        elif st == 3: ops = x_loads(15, 18) + w_dma(6)
        elif st + 3 < NST: ops = w_dma(st + 3)
        if st == 4: ops = [([], (f"buffer_load_dwordx2 v[74:75], v{V_TA}, s[{S_WS}:{S_WS+3}], s{S_FO} offen sc1", "GX"))] + ops
        if st == 18: ops += kv_dma("V", VS(0), None, 0)
        if st == 19: ops += kv_dma("K", KS(0), None, 0)
        if st == 20: ops += kv_dma("K", KS(1), None, 16384) + kv_dma("V", VS(1), None, 16384) + kv_dma("K", KS(2), None, 32768)
        if ops: place_mem(gaps, ops, g0, g1 if st < 20 else g0 + 60)
        if st == 19:
            cand = [g for g in range(g0 + 3, g1 - 2) if not gaps[g].mem][::2]
            assert len(cand) >= 16
            for f, g in enumerate(cand[:16]):
                gaps[g].mem.append((f"ds_read_b128 a[{A_Q+4*f}:{A_Q+4*f+3}], v{V_QP + f//8} offset:{(f%8)*1024}", "QR"))
    def ffn_epi(st0, pk=False, mts=(0, 1, 2, 3)):
        kind, t, sub, buf = stages[st0]
        q = []
        for mt in mts:
            if kind == "f": el = [(acc(buf, n, mt) + r, acc(buf, 2 + n, mt) + r) for n in range(2) for r in range(4)]
            else: el = [(acc(buf, 0, mt) + r, acc(buf, 2, mt) + r) for r in range(4)]
            T = V_T + 8 * (mt % 2)
            if pk:
                pr = lambda r: f"v[{r}:{r+1}]"
                ev = list(enumerate(el))[::2]
                for e, (g, u) in ev: q.append(f"v_pk_mul_f32 {pr(T+e)}, {pr(g)}, {pr(g)}")
                for e, (g, u) in ev: q.append(f"v_pk_fma_f32 {pr(T+e)}, {pr(T+e)}, {pr(V_C1)}, {pr(V_C1)} op_sel:[0,1,0] op_sel_hi:[1,1,0]")
                for e, (g, u) in ev: q.append(f"v_pk_mul_f32 {pr(T+e)}, {pr(T+e)}, {pr(g)}")
                for e, (g, u) in enumerate(el): q.append(f"v_exp_f32 v{T+e}, v{T+e}")
                for e, (g, u) in ev: q.append(f"v_pk_mul_f32 {pr(g)}, {pr(g)}, {pr(u)}")
                for e, (g, u) in ev: q.append(f"v_pk_add_f32 {pr(T+e)}, {pr(T+e)}, 1.0 op_sel_hi:[1,0]")
                for e, (g, u) in enumerate(el): q.append(f"v_rcp_f32 v{T+e}, v{T+e}")
                for e, (g, u) in ev: q.append(f"v_pk_mul_f32 {pr(g)}, {pr(g)}, {pr(T+e)}")
            else:
                for e, (g, u) in enumerate(el): q.append(f"v_mul_f32 v{T+e}, v{g}, v{g}")
                for e, (g, u) in enumerate(el): q.append(f"v_fma_f32 v{T+e}, v{T+e}, v{V_C2}, v{V_C1}")
                for e, (g, u) in enumerate(el): q.append(f"v_mul_f32 v{T+e}, v{T+e}, v{g}")
                for e, (g, u) in enumerate(el):
                    q.append(f"v_exp_f32 v{T+e}, v{T+e}"); q.append(f"v_mul_f32 v{g}, v{g}, v{u}")
                for e, (g, u) in enumerate(el): q.append(f"v_add_f32 v{T+e}, 1.0, v{T+e}")
                for e, (g, u) in enumerate(el): q.append(f"v_rcp_f32 v{T+e}, v{T+e}")
                for e, (g, u) in enumerate(el): q.append(f"v_mul_f32 v{g}, v{g}, v{T+e}")
            o = V_HO + 4 * (mt % 2)
            for i in range(len(el) // 2): q.append(f"v_cvt_pk_bf16_f32 v{o+i}, v{el[2*i][0]}, v{el[2*i+1][0]}")
            if kind == "f":
                q.append(("MEM", [f"s_add_u32 s{S_T2}, s{S_HF+t}, {H_OFF + mt*4096}"], (f"buffer_store_dwordx4 v[{o}:{o+3}], v{V_L16}, s[{S_WS}:{S_WS+3}], s{S_T2} offen{SCH}", None)))
            else:
                q.append(("MEM", [f"s_add_u32 s{S_T2}, s{S_HHALF}, {H_OFF + mt*4096}"], (f"buffer_store_dwordx2 v[{o}:{o+1}], v{V_L16}, s[{S_WS}:{S_WS+3}], s{S_T2} offen{SCH}", None)))
        return q
    def q_epi(seg):
        q = []
        for mt in range(4):
            rs = [acc(0, 2 * seg, mt) + r for r in range(4)] + [acc(0, 2 * seg + 1, mt) + r for r in range(4)]
            o = V_T + 4 * ((seg * 4 + mt) % 4)
            for r in rs: q.append(f"v_mul_f32 v{r}, {f2u(QSCALE)}, v{r}")
            for i in range(4): q.append(f"v_cvt_pk_bf16_f32 v{o+i}, v{rs[2*i]}, v{rs[2*i+1]}")
            f = mt * 4 + seg
            q.append(("MEM", [], (f"ds_write_b128 v{V_QP + f//8}, v[{o}:{o+3}] offset:{(f%8)*1024}", None)))
        return q
    sg = lambda st: gstart[first_of_stage[st]]
    gaps[bar_gap[20] - 11].post += [f"s_load_dwordx2 s[64:65], s[0:1], {ARG['wo']}", f"s_load_dwordx2 s[66:67], s[0:1], {ARG['wd']}",
                                    f"s_load_dwordx2 s[{S_OUT}:{S_OUT+1}], s[0:1], {ARG['out']}"]
    g_ = gaps[sg(8) + 1]
    g_.post += [WaitFor(vm=("GX",)), f"v_subrev_u32 v74, s{S_XCC}, v74", f"v_xor_b32 v75, s{S_EP2}, v75", "v_min_u32 v75, 1, v75", "v_lshl_or_b32 v74, v75, 8, v74", "v_cmp_le_u32 vcc, 8, v74", "s_nop 1",
                "s_cmp_lg_u64 vcc, 0", f"s_cselect_b32 s{S_MIX}, 1, {1 if 'forcemix' in ABL else 0}"]
    f5 = first_of_stage[5]
    q = []; mins = []
    for seg in range(4):
        e_ = q_epi(seg); q += e_; mins += [gstart[f5 + 2 * seg + 2] + 3] * len(e_)
    left = fill_valu(gaps[:sg(9) - 3], gstart[f5 + 2] + 3, q, mins=mins); assert not left, len(left)
    for seg, lim_ in ((0, sg(6) - 3), (1, sg(6) + 9)):
        cv_ = [x for x in q_epi(seg) if isinstance(x, str)]
        lastg = max(gi for gi, g in enumerate(gaps) for x in g.valu if x in cv_ and gi < sg(9))
        assert lastg < lim_, (seg, lastg, lim_)
    for st0 in (6, 9, 12, 15):
        end = sg(st0 + 6) - 3 if st0 + 6 < NST else len(gaps)
        left = fill_valu(gaps[:end], sg(st0 + 3) + 3, ffn_epi(st0)); assert not left, (st0, len(left))
    left = fill_valu(gaps, sg(19), [f"v_xor_b32 v{V_KA}, 128, v{V_KA+2}", f"v_xor_b32 v{V_KA+1}, 128, v{V_KA+3}"]); assert not left
    issue(x_loads(3, 6))
    p.items.append(WaitFor(vm=("X0",)))
    p("s_barrier")
    for t, tag in a_reads(0) + a_reads(1): p(t, tag)
    ep_wait("b")
    p(f"s_add_u32 s{S_XCC}, s{S_XCC}, s{S_EP}")
    p.items.append(WaitFor(lg=("A0",)))
    stamp(p, 1)
    if 'finepro' in ABL:
        gaps[sg(1) - 1].post += stamp_ops(7); gaps[sg(2) - 1].post += stamp_ops(8); gaps[sg(3) - 1].post += stamp_ops(9)
    elif 'fine1' in ABL:
        for st in range(6, 21): gaps[sg(st) - 1].post += stamp_ops(st - 4)
    else:
        gaps[sg(6) - 1].post += stamp_ops(2); gaps[sg(12) - 1].post += stamp_ops(3)
    emit_gaps(p, gaps)
    if 'fine1' in ABL:
        stamp(p, 17); globals()['ABL'] += ',finepro'
    if 'finepro' not in ABL: stamp(p, 4)

    Sreg = lambda par, kt, qt: V_S + (1 - par) * 64 + (kt * 4 + qt) * 4
    Preg = lambda par, kb, qt: (V_P0 + par * 16 + qt * 4) if kb == 0 else (V_P1 + qt * 4)
    Kf = lambda kt, ks: A_KF + (kt % 2) * 16 + ks * 4
    Vf = lambda dt, kb: A_VF + (dt % 4) * 8 + kb * 4
    def k_reads(slot, kt):
        return [(f"ds_read_b128 a[{Kf(kt,ks)}:{Kf(kt,ks)+3}], v{V_KA+ks} offset:{slot*16384 + kt*4096}", f"KF{kt%2}") for ks in range(4)]
    def v_reads(slot, dt):
        return [(f"ds_read_b64_tr_b16 a[{Vf(dt,kb)+2*t}:{Vf(dt,kb)+2*t+1}], v{V_VA+dt} offset:{slot*16384 + kb*8192 + t*4096}", f"VF{dt%4}") for kb in range(2) for t in range(2)]
    def qk_mfma(par, kt, qt, ks, zero=False):
        s = Sreg(par, kt, qt)
        C = f"v[{s}:{s+3}]" if ks else ("0" if zero else f"v[{V_NM+4*qt}:{V_NM+4*qt+3}]")
        qf = A_Q + (qt * 4 + ks) * 4
        return f"v_mfma_f32_16x16x32_bf16 v[{s}:{s+3}], a[{Kf(kt,ks)}:{Kf(kt,ks)+3}], a[{qf}:{qf+3}], {C}"
    def pv_mfma(par, dt, qt, kb):
        o = A_O + (dt * 4 + qt) * 4; pr = Preg(par, kb, qt)
        return f"v_mfma_f32_16x16x32_bf16 a[{o}:{o+3}], a[{Vf(dt,kb)}:{Vf(dt,kb)+3}], v[{pr}:{pr+3}], a[{o}:{o+3}]"
    def l_mfma(par, qt, kb):
        pr = Preg(par, kb, qt)
        return f"v_mfma_f32_16x16x32_bf16 v[{V_LD}:{V_LD+3}], v[{V_ONE}:{V_ONE+3}], v[{pr}:{pr+3}], " + ("0" if kb == 0 else f"v[{V_LD}:{V_LD+3}]")
    def elem(par, tau):
        kb = tau // 32; r = tau % 32; qt = 2 * (r // 16) + ((r % 4) >> 1); j = 2 * ((r % 16) // 4) + (r & 1)
        return Sreg(par, 2 * kb + (j >> 2), qt) + (j & 3), kb, qt, j
    def op_exp(par, tau): return f"v_exp_f32 v{V_E + tau % 8}, v{elem(par, tau)[0]}"
    def op_add(par, tau):
        s, kb, qt, j = elem(par, tau); assert qt % 2 == 1
        src = V_LS + (1 - par) * 4 + qt if (kb == 0 and j == 0) else V_LS + par * 4 + qt
        return f"v_add_f32 v{V_LS + par*4 + qt}, v{src}, v{V_E + tau % 8}"
    def op_ladd(par, qt): return f"v_add_f32 v{V_LS + par*4 + qt}, v{V_LS + (1-par)*4 + qt}, v{V_LD}"
    def op_cvt(par, tau):
        s, kb, qt, j = elem(par, tau); assert tau % 2 == 1
        return f"v_cvt_pk_bf16_f32 v{Preg(par, kb, qt) + j//2}, v{V_E + (tau-1) % 8}, v{V_E + tau % 8}"
    def rowmax(p, par, qt, dst):
        regs = [Sreg(par, kt, qt) + r for kt in range(4) for r in range(4)]
        p(f"v_max3_f32 v{dst}, v{regs[0]}, v{regs[1]}, v{regs[2]}")
        for i in range(3, 15, 2): p(f"v_max3_f32 v{dst}, v{dst}, v{regs[i]}, v{regs[i+1]}")
        p(f"v_max_f32 v{dst}, v{dst}, v{regs[15]}")
    def xlane_ops(op, dsts, t1):
        o = []
        for sw in ("v_permlane32_swap_b32", "v_permlane16_swap_b32"):
            for q, d in enumerate(dsts): o.append(f"v_mov_b32 v{t1+q}, v{d}")
            for q, d in enumerate(dsts): o.append(f"{sw} v{d}, v{t1+q}")
            for q, d in enumerate(dsts): o.append(f"{op} v{d}, v{d}, v{t1+q}")
        return o

    p.items.append(WaitFor(vm=(f"K{KS(0)}",), lg0=True)); p("s_barrier")
    for t, tag in k_reads(KS(0), 0) + k_reads(KS(0), 1): p(t, tag)
    g0 = []
    for kt in range(4):
        for qt in range(4):
            for ks in range(4): g0.append(Gap(qk_mfma(0, kt, qt, ks, zero=True)))
    for n, r in enumerate(k_reads(KS(0), 2)): g0[16 + 2 * n].mem.append(r)
    for n, r in enumerate(k_reads(KS(0), 3)): g0[32 + 2 * n].mem.append(r)
    g0[31].sh.append(WaitFor(lg=("KF0",))); g0[47].sh.append(WaitFor(lg=("KF1",)))
    place_mem(g0, kv_dma("K", KS(3), None, 3 * 16384) + kv_dma("V", VS(2), None, 2 * 16384), 0, 40)
    full = ffn_epi(18); per = len(full) // 4
    npre = 24
    if 'finea' in ABL: stamp(p, 0)
    emit_ops(p, full[:npre])
    left = fill_valu(g0, 0, full[npre:2 * per])
    left += ffn_epi(18, pk=True, mts=(2, 3))
    p.items.append(WaitFor(lg=("KF0", "KF1")))
    sal = [f"s_mov_b32 s{S_OUT+2}, {XN_BYTES}",
           f"s_and_b32 s{S_T0}, s{S_J}, 7", f"s_lshl_b32 s{S_T1}, s{S_RB}, 3", f"s_add_u32 s{S_T0}, s{S_T0}, s{S_T1}",
           f"s_lshl_b32 s{S_T0}, s{S_T0}, 2", f"s_add_u32 s{S_T0}, s{S_T0}, s{S_WAVE}", f"s_lshr_b32 s{S_KOFF}, s{S_J}, 3",
           f"s_sub_u32 s{S_T1}, s{S_T0}, 120", f"s_cmp_lt_u32 s{S_T0}, 120",
           f"s_cselect_b32 s{S_RE}, s{S_T0}, s{S_T1}", f"s_movk_i32 s{S_RNW}, 136", f"s_cselect_b32 s{S_RNW}, 120, s{S_RNW}",
           f"s_cselect_b32 s{S_WG}, s64, s66", f"s_cselect_b32 s{S_WG+1}, s65, s67",
           f"s_mov_b32 s{S_WG+2}, {1152*1152}", f"s_cselect_b32 s{S_WG+2}, {1024*1152}, s{S_WG+2}", f"s_mov_b32 s{S_WU+2}, s{S_WG+2}",
           f"s_mov_b32 s{S_T0}, {WPD_OFF}", f"s_cselect_b32 s{S_T0}, {WPO_OFF}, s{S_T0}",
           f"s_mul_i32 s{S_T1}, s{S_KOFF}, s{S_WG+2}",
           f"s_add_u32 s{S_WG}, s{S_WG}, s{S_T1}", f"s_addc_u32 s{S_WG+1}, s{S_WG+1}, 0",
           f"s_add_u32 s{S_T0}, s{S_T0}, s{S_T1}", f"s_add_u32 s{S_WU}, s70, s{S_T0}", f"s_addc_u32 s{S_WU+1}, s71, 0",
           f"s_sub_u32 s{S_RE}, s{S_RE}, s{S_RNW}",
           f"s_mov_b32 s{S_KOFF}, {4*16384}", f"s_mov_b32 s{S_VOFF}, {3*16384}", f"s_mov_b32 s{S_CNT}, 7",
           f"s_lshl_b32 s{S_BQ}, s{S_WAVE}, 11", f"s_add_u32 s{S_BQ}, s{S_BQ}, {128*1024}"]
    fr_ = [g for g in g0[41:] if not g.sh]
    k_ = sal.index(f"s_cmp_lt_u32 s{S_T0}, 120")
    for t, g in zip(sal[:k_], fr_): g.sh.append(t)
    emit_gaps(p, g0)
    emit_ops(p, left)
    for t in sal[k_:]: p(t)
    for q in range(4): p(f"v_mov_b32 v{V_LS+4+q}, 0")
    for q in range(4): p(f"v_mov_b32 v{V_ONE+q}, 0x3f803f80")
    p.items.append(WaitFor(vm=(f"K{KS(1)}", f"V{VS(0)}"))); p("s_barrier")
    for t, tag in k_reads(KS(1), 0) + k_reads(KS(1), 1): p(t, tag)
    p(f"v_lshrrev_b32 v{V_PT+1}, 4, v{V_L16}")
    p(f"v_lshrrev_b32 v{V_RPG}, 2, v{V_PT+1}"); p(f"v_and_b32 v{V_PT}, 3, v{V_PT+1}")
    p(f"v_lshlrev_b32 v{V_RPL}, 6, v{V_RPG}"); p(f"v_lshl_add_u32 v{V_RPL}, v{V_PT}, 3, v{V_RPL}"); p(f"v_add_u32 v{V_RPL}, s{S_BQ}, v{V_RPL}")
    p(f"v_mul_u32_u24 v{V_RPG}, 1152, v{V_RPG}"); p(f"v_lshl_add_u32 v{V_RPG}, v{V_PT}, 4, v{V_RPG}")
    p(f"s_and_b32 s{S_T1}, s{S_J}, 24"); p(f"s_lshl_b32 s{S_T1}, s{S_T1}, 6"); p(f"v_and_b32 v{V_PT}, 7, v{V_PT+1}")
    p(f"v_lshrrev_b32 v{V_PA}, 3, v{V_PT+1}"); p(f"v_lshlrev_b32 v{V_PA}, 11, v{V_PA}"); p(f"v_lshl_add_u32 v{V_PA}, v{V_PT}, 3, v{V_PA}")
    p(f"v_add_u32 v{V_PA}, s{S_T1}, v{V_PA}")
    p(f"v_mov_b32 v{V_SV+1}, s{S_EP2}")
    zm = [f"v_mfma_f32_32x32x16_bf16 a[{A_O+16*i}:{A_O+16*i+15}], v[{V_LS+4}:{V_LS+7}], v[{V_LS+4}:{V_LS+7}], 0" for i in range(8)]
    for qt in range(4):
        p(zm[qt]); rowmax(p, 0, qt, V_R + qt)
    for n, t in enumerate(xlane_ops("v_max_f32", [V_R + q for q in range(4)], V_R + 4)):
        if n % 8 == 0: p(zm[4 + n // 8])
        p(t)
    p(zm[7])
    for qt in range(4):
        for r in range(4): p(f"v_sub_f32 v{V_NM+4*qt+r}, {f2u(-BIAS) if BIAS else 0}, v{V_R+qt}")
    for kt in range(4):
        for qt in range(4):
            for r in (0, 2):
                s_ = Sreg(0, kt, qt) + r
                p(f"v_pk_add_f32 v[{s_}:{s_+1}], v[{s_}:{s_+1}], v[{V_NM+4*qt}:{V_NM+4*qt+1}]")
    for tau in range(36):
        p(op_exp(0, tau))
        if tau % 4 == 0 and tau: p(op_add(0, tau - 1)); p(op_cvt(0, tau - 1))
        if tau % 4 == 2: p(op_cvt(0, tau - 1))
        if tau % 4 == 3: p(op_add(0, tau - 1))
    p.items.append(WaitFor(lg=("KF0",)))
    p(op_add(0, 35))
    if 'finepro' not in ABL: stamp(p, 5); stamp_rt(p, 15)

    rare_sites = []
    class Tile: pass
    def used(g): return len(g.mem) + sum(slots_of(v) for v in g.valu)
    def att_tile(it, last_block=False, first_mfmas=None):
        par = it % 2
        final = last_block and it == 3
        T = Tile(); G = []; Q = []; PV = []; LG = []
        mf = first_mfmas or [qk_mfma(1 - par, kt, qt, ks) for kt in range(4) for qt in range(4) for ks in range(4)]
        for i, m in enumerate(mf):
            g = Gap(m); G.append(g); Q.append(g)
            if i in (19, 23, 51, 55):
                g = Gap(l_mfma(par, 0 if i < 32 else 2, 0 if i in (19, 51) else 1)); G.append(g); LG.append(g)
        for dt in range(8):
            for qt in range(4):
                for kb in range(2):
                    g = Gap(pv_mfma(par, dt, qt, kb)); G.append(g); PV.append(g)
        T.G, T.Q, T.PV, T.LG = G, Q, PV, LG
        idx = {id(g): i for i, g in enumerate(G)}
        T.idx = lambda g: idx[id(g)]
        br = Q[-1]
        for b in range(64):
            E, N = (Q[2*b], Q[2*b+1]) if b < 32 else (PV[2*b-64], PV[2*b-63])
            sp, tau = (par, 36 + b) if b < 28 else (1 - par, b - 28)
            if tau % 4 == 0:
                if not (final and b > 28): N.valu.append(op_cvt(sp, tau - 1) if b != 28 else op_cvt(par, 63))
            if final and b >= 28: continue
            E.valu.append(op_exp(sp, tau))
            if tau % 4 == 1: N.valu.append(op_cvt(sp, tau))
            if tau % 4 >= 2: (br if b in (30, 31) else N).valu.append(op_add(sp, tau))
        L = V_LS + par * 4
        site = f"{'z' if last_block else 'l'}{it}"; rare_sites.append((site, "Z" if final else str(par)))
        Q[29].valu.append(op_ladd(par, 0))
        Q[57].valu.append(f"v_max3_f32 v{V_CK}, v{L}, v{L+1}, v{L+3}")
        Q[59].valu.append(op_ladd(par, 2))
        Q[61].valu += [f"v_max_f32 v{V_CK}, v{V_CK}, v{L+2}", f"v_cmp_lt_f32 vcc, s{S_THR}, v{V_CK}"]
        br.sh += [f"s_cbranch_vccnz L_rare_stub{site}", Label(f"L_rare_ret{site}")]
        PV[1].sh.append("s_barrier"); T.wv = []
        T.reserved = {id(PV[0]), id(PV[1])}
        if 'barE' in ABL and not final:
            PV[3].valu = PV[1].valu + PV[3].valu; PV[1].valu = []; T.reserved.add(id(PV[3]))
        kslot1, kslot2, vslot = KS(it + 1), KS(it + 2), VS(it)
        if not final:
            Q[15].sh.append(WaitFor(lg=("KF1",))); Q[31].sh.append(WaitFor(lg=("KF0",))); Q[47].sh.append(WaitFor(lg=("KF1",)))
        Q[-2].sh.append(WaitFor(lg=("VF0", "VF1", "VF2", "VF3")))
        for dt in range(4, 8): PV[8 * dt - 1].sh.append(WaitFor(lg=(f"VF{dt%4}",)))
        T.cur = 0; T.lastdma = -1
        def put(op, lo=None, sal=(), cap=2):
            g = max(T.cur, T.idx(lo) if lo is not None else 0)
            while True:
                assert g < len(G), op
                ok = not G[g].mem and used(G[g]) < cap and id(G[g]) not in T.reserved
                if ok and sal:
                    fr = [h for h in range(max(T.lastdma + (0 if len(sal) == 2 else 1), g - 6, 0), g) if not G[h].sh and id(G[h]) not in T.reserved]
                    ok = len(fr) >= len(sal)
                if ok: break
                g += 1
            if sal:
                for h, s_ in zip(fr[-len(sal):], sal): G[h].sh.append(s_)
                T.lastdma = g
            G[g].mem.append(op); T.cur = g + 1
            return g
        T.put = put
        def solo(g, sal, op, nxt=None):
            gi = T.idx(g)
            assert not g.mem
            if g.valu:
                assert not nxt.mem; nxt.valu = g.valu + nxt.valu; g.valu = []; T.reserved.add(id(nxt))
            fr = [h for h in range(gi - 3, gi) if not G[h].sh]
            assert len(fr) >= len(sal), (gi, sal)
            for h, s_ in zip(fr[-len(sal):], sal): G[h].sh.append(s_)
            g.mem.append(op); T.lastdma = max(T.lastdma, gi)
        T.solo = solo
        T.endsal = []
        if not final:
            if not (last_block and it >= 2):
                sal_, op = kv_dma("V", VS(it + 2), S_VOFF, -16384)[3]; solo(LG[0], sal_, op)
            if not last_block:
                dk = kv_dma("K", KS(it), S_KOFF, 0)
                solo(LG[1], *dk[0]); solo(Q[41], *dk[1], nxt=Q[43]); solo(LG[2], *dk[2]); solo(LG[3], *dk[3])
                T.endsal.append(f"s_add_u32 s{S_KOFF}, s{S_KOFF}, 16384")
            for r in v_reads(vslot, 0) + v_reads(vslot, 1): put(r)
            for r in k_reads(kslot1, 2): put(r, Q[16])
            v23 = v_reads(vslot, 2) + v_reads(vslot, 3)
            for r in v23[:3]: put(r)
            for r in k_reads(kslot1, 3): put(r, Q[32])
            for r in v23[3:]: put(r)
            assert T.cur <= T.idx(Q[55]), (it, T.cur)
        if not (last_block and it >= 1):
            dv = kv_dma("V", VS(it + 3), S_VOFF, 0)
            solo(PV[5], *dv[0], nxt=PV[7]); solo(PV[57], *dv[1], nxt=PV[59]); solo(PV[61], *dv[2], nxt=PV[63])
        T.cur = T.idx(PV[2])
        T.pv_v = [(r, PV[8 * (dt - 4) + 8]) for dt in range(4, 8) for r in v_reads(vslot, dt)]
        if not (last_block and it >= 2):
            for r, lo in T.pv_v: put(r, lo)
            for r in k_reads(kslot2, 0) + k_reads(kslot2, 1): put(r)
            T.wv.append(f"K{kslot2}")
            T.endsal += [WaitFor(lg=("KF0",)), f"s_add_u32 s{S_VOFF}, s{S_VOFF}, 16384"]
        if not last_block and it == 0:
            sl = [f"s_add_u32 s{S_RE}, s{S_RE}, s{S_RNW}", f"s_mul_i32 s{S_RS}, s{S_RE}, 3641", f"s_lshr_b32 s{S_RS}, s{S_RS}, 16",
                  f"s_mul_i32 s{S_RS}, s{S_RS}, {36864-1152}", f"s_lshl_b32 s{S_RD}, s{S_RE}, 6", f"s_add_u32 s{S_RS}, s{S_RS}, s{S_RD}",
                  f"s_lshl_b32 s{S_RD}, s{S_RE}, 11"]
            for n, s_ in enumerate(sl): Q[2 * n].sh.append(s_)
            Q[58].sh.append(f"s_mov_b32 m0, s{S_BQ}")
            Q[59].mem.append((f"buffer_load_dwordx4 v{V_RPG}, s[{S_WG}:{S_WG+3}], s{S_RS} offen lds", "RD"))
            Q[60].sh.append(f"s_add_u32 s{S_RS}, s{S_RS}, {16*1152-1024}")
            PV[3].mem.append((f"buffer_load_dwordx4 v{V_RPG}, s[{S_WG}:{S_WG+3}], s{S_RS} offen offset:1024 lds", "RD"))
        if not last_block and it == 2:
            PV[3].mem.append((f"ds_read_b64_tr_b16 v[{V_RPS}:{V_RPS+1}], v{V_RPL} offset:0", "RL"))
            PV[7].mem.append((f"ds_read_b64_tr_b16 v[{V_RPS+2}:{V_RPS+3}], v{V_RPL} offset:1024", "RL"))
        if not last_block and it == 3:
            Q[55].mem.append((f"ds_read_b64_tr_b16 v[{V_RPS+4}:{V_RPS+5}], v{V_RPL} offset:32", "RL"))
            Q[57].mem.append((f"ds_read_b64_tr_b16 v[{V_RPS+6}:{V_RPS+7}], v{V_RPL} offset:1056", "RL"))
        if not final: T.wv.append(f"V{VS(it+1)}")
        if not last_block:
            if it == 2: T.wv.append("RD")
            if it == 1:
                T.wv.append("RST")
                PV[10].sh.append(f"s_cmp_le_u32 s{S_CNT}, 2"); PV[11].sh.append(f"s_cselect_b32 s{S_SIG}, 2, 1")
                PV[12].sh.append(f"s_add_u32 s{S_SIG}, s{S_SIG}, s{S_XCC}"); PV[13].valu.append(f"v_mov_b32 v{V_SV}, s{S_SIG}")
                PV[16].sh.append(f"s_cmp_lg_u32 s{S_MIX}, 0"); PV[17].sh += ["s_cbranch_scc1 L_stub_w2", Label("L_ret_w2")]
                PV[20].mem.append((sig_store, None))
            if it == 3:
                PV[3].mem.append((f"buffer_store_dwordx4 v[{V_RPS}:{V_RPS+3}], v{V_L16}, s[{S_WU}:{S_WU+3}], s{S_RD} offen sc1", "RST"))
                PV[12].sh.append(WaitFor(lg=("RL",)))
                PV[14].mem.append((f"buffer_store_dwordx4 v[{V_RPS+4}:{V_RPS+7}], v{V_L16}, s[{S_WU}:{S_WU+3}], s{S_RD} offen offset:1024 sc1", "RST"))
        return T
    def finish_tile(T):
        if T.wv: T.PV[0].sh.append(WaitFor(vm=tuple(T.wv)))
        for s_ in T.endsal:
            if isinstance(s_, WaitFor):
                g = [g for g in T.PV[57:] if not g.sh][0]; g.sh.append(s_)
            else:
                c = [g for g in T.G[T.lastdma:] if not g.sh]
                (c[0].sh if c else T.G[-1].post).append(s_)
        ov = sum(max(0, used(g) - 2) + max(0, len([x for x in g.sh if not isinstance(x, Label)]) - 1) for g in T.G)
        print("tile overflow slots:", ov, "gaps", len(T.G))

    body = Prog(); p = body
    p.label("L_att_loop", 6)
    for it in range(4):
        T = att_tile(it)
        if it == 3: T.PV[40].sh.append(f"s_sub_u32 s{S_CNT}, s{S_CNT}, 1")
        finish_tile(T)
        if it == 3: T.G[-1].post += [f"s_cmp_lg_u32 s{S_CNT}, 0", "s_cbranch_scc1 L_att_loop"]
        for g in T.G:
            if 'Lnodma' in ABL: g.mem = [m for m in g.mem if not m[0].startswith("buffer")]
            if 'Lnobar' in ABL: g.sh = [x for x in g.sh if x != "s_barrier"]
            if 'Lnolds' in ABL: g.mem = [m for m in g.mem if not m[0].startswith("ds_")]
            if 'Lnotr' in ABL: g.mem = [m for m in g.mem if not m[0].startswith("ds_read_b64")]
            if 'Lnobr' in ABL: g.sh = [x for x in g.sh if not (isinstance(x, str) and x.startswith("s_cbranch"))]
            if 'Lnovalu' in ABL: g.valu = [x for x in g.valu if x.startswith(("v_exp", "v_add_u32"))]
            if 'Lnoexp' in ABL: g.valu = [x for x in g.valu if not x.startswith("v_exp")]
            if 'Lnowait' in ABL: g.sh = [x for x in g.sh if not (isinstance(x, WaitFor) and x.lg)]
        emit_gaps(p, T.G)

    tail = Prog(); p = tail
    p(f"s_getpc_b64 s[{S_WG}:{S_WG+1}]")
    p.label("L_pc1")
    p(f"s_and_b32 s{S_WG+1}, s{S_WG+1}, 0xffff"); p(f"s_mov_b32 s{S_WG+2}, L_code_end-L_pc1")
    p(f"s_lshr_b32 s{S_T0}, s2, 3"); p(f"s_lshl_b32 s{S_T0}, s{S_T0}, 2"); p(f"s_add_u32 s{S_T0}, s{S_T0}, s{S_WAVE}"); p(f"s_lshl_b32 s{S_T0}, s{S_T0}, 10")
    p(f"buffer_load_dwordx4 v[{V_RPS}:{V_RPS+3}], v{V_L16}, s[{S_WG}:{S_WG+3}], s{S_T0} offen", "CODE")
    p(f"v_lshrrev_b32 v{V_LANE}, 4, v{V_L16}")
    if 'finepro' not in ABL: stamp(p, 6)
    NP3 = 17
    Breg = lambda s, ks, mt: ((s % 3) * 4 + ks) * 8 + mt * 4
    def p3_w(s):
        off = (WPD_OFF + s * 4 * 36864) if s < 9 else (WPO_OFF + (s - 9) * 4 * 36864)
        base = S_PW if s < 9 else S_PW2
        ops = []
        for i in range(9):
            sal = []
            if i % 4 == 0:
                tm = tmp()
                m0 = f"s_add_u32 m0, s{S_W0B}, {i*1024}" if s == 0 else f"s_add_u32 m0, s{S_W9K}, {P3_SLOT[(s-1)%3] + i*1024}"
                sal = [f"s_add_u32 s{tm}, s{base}, {off + i*1024}", m0]
            ops.append((sal, (f"buffer_load_dwordx4 v{V_L16}, s[{S_WS}:{S_WS+3}], s{tm} offen offset:{(i%4)*1024}{LSC} lds", f"PW{s}")))
        return annotate(ops)
    def p3_b(s):
        off = (H_OFF + s * 524288) if s < 9 else (O_OFF + (s - 9) * 524288)
        base = S_PB0 if s < 9 else S_PB1
        ops = []
        for mt in range(2):
            for ks in range(4):
                r = Breg(s, ks, mt)
                ops.append(([f"s_add_u32 s{S_T2}, s{base}, {off + mt*4096}"] if ks == 0 else [],
                            (f"buffer_load_dwordx4 a[{r}:{r+3}], v{V_L16}, s[{S_WS}:{S_WS+3}], s{S_T2} offen offset:{ks*1024}{LSC}", f"PB{s}")))
        return annotate(ops)
    setup3 = [f"s_lshr_b32 s{S_KOFF}, s{S_J}, 3", f"s_and_b32 s{S_RE}, s{S_J}, 3", f"s_mul_i32 s{S_W9K}, s{S_WAVE}, 9216",
              f"s_mul_i32 s{S_PW2}, s{S_WAVE}, 36864", f"s_mul_i32 s{S_RNW}, s{S_RE}, 9216", f"s_add_u32 s{S_PW2}, s{S_PW2}, s{S_RNW}",
              f"s_mul_i32 s{S_PW}, s{S_KOFF}, {1152*1152}", f"s_add_u32 s{S_PW}, s{S_PW}, s{S_PW2}",
              f"s_mul_i32 s{S_RNW}, s{S_KOFF}, {1024*1152}", f"s_add_u32 s{S_PW2}, s{S_PW2}, s{S_RNW}",
              f"s_lshl_b32 s{S_PST}, s{S_RB}, 3", f"s_and_b32 s{S_RNW}, s{S_J}, 7", f"s_add_u32 s{S_PST}, s{S_PST}, s{S_RNW}",
              f"s_lshr_b32 s{S_FX0}, s{S_PST}, 2",
              f"s_lshl_b32 s{S_PB1}, s{S_FX0}, 2", f"s_add_u32 s{S_PB1}, s{S_PB1}, s{S_WAVE}", f"s_lshl_b32 s{S_PB1}, s{S_PB1}, 13",
              f"s_mul_i32 s{S_PB0}, s{S_KOFF}, {9*524288}", f"s_add_u32 s{S_PB0}, s{S_PB0}, s{S_PB1}",
              f"s_lshl_b32 s{S_RNW}, s{S_KOFF}, 22", f"s_add_u32 s{S_PB1}, s{S_PB1}, s{S_RNW}",
              f"s_mul_i32 s{S_PST}, s{S_PST}, {16*9216}",
              f"s_mul_i32 s{S_FL}, s{S_KOFF}, 9216", f"s_add_u32 s{S_FL}, s{S_FL}, s{S_PST}",
              f"s_mul_i32 s{S_CNT}, s{S_KOFF}, {4*9216}", f"s_add_u32 s{S_PST}, s{S_PST}, s{S_CNT}", f"s_add_u32 s{S_PST}, s{S_PST}, s{S_W9K}",
              f"s_lshl_b32 s{S_FX0}, s{S_FX0}, 2", f"s_add_u32 s{S_FX0}, s{S_FX0}, s{S_KOFF}", f"s_mul_i32 s{S_FX0}, s{S_FX0}, {32*1152}",
              f"s_mul_i32 s{S_CNT}, s{S_RE}, 288", f"s_add_u32 s{S_FX0}, s{S_FX0}, s{S_CNT}", f"s_min_u32 s{S_FX1}, s{S_WAVE}, 1", f"s_lshl_b32 s{S_FX1}, s{S_FX1}, 30",
              f"s_add_u32 s{S_CNT}, s{S_KOFF}, 1", f"s_and_b32 s{S_CNT}, s{S_CNT}, 3", f"s_mul_i32 s{S_FR}, s{S_CNT}, {4*9216}", f"s_add_u32 s{S_FR}, s{S_FR}, s{S_FL}",
              f"s_add_u32 s{S_CNT}, s{S_KOFF}, 2", f"s_and_b32 s{S_CNT}, s{S_CNT}, 3", f"s_mul_i32 s{S_FR+1}, s{S_CNT}, {4*9216}", f"s_add_u32 s{S_FR+1}, s{S_FR+1}, s{S_FL}",
              f"s_add_u32 s{S_CNT}, s{S_KOFF}, 3", f"s_and_b32 s{S_CNT}, s{S_CNT}, 3", f"s_mul_i32 s{S_FR+2}, s{S_CNT}, {4*9216}", f"s_add_u32 s{S_FR+2}, s{S_FR+2}, s{S_FL}",
              f"s_add_u32 s{S_CNT}, s{S_WAVE}, 1", f"s_lshr_b32 s{S_CNT}, s{S_CNT}, 2", f"s_mul_i32 s{S_CNT}, s{S_CNT}, {80*1024+27648}",
              f"s_add_u32 s{S_W0B}, s{S_W9K}, {128*1024}", f"s_sub_u32 s{S_W0B}, s{S_W0B}, s{S_CNT}"]
    pg = []
    for s in range(NP3):
        if s in (8, 16): order = [(kp, nt) for nt in range(9) for kp in range(2)]
        else: order = [(kp, nt) for kp in range(2) for nt in range(9)]
        for kp, nt in order: pg.append((s, kp, nt))
    def p3_reads(gi):
        s, kp, nt = pg[gi]; base = P3_AR[gi % 4]
        out = []
        for q in range(2):
            ks = 2 * kp + q
            if s == 0: va, o = (V_PWA[2], 12 * 1024 + (ks * 9 + nt) * 1024) if ks < 3 else (V_PWA[0], 48 * 1024 + nt * 1024)
            else: va, o = V_PWA[(s - 1) % 3], (ks * 9 + nt) * 1024
            out.append((f"ds_read_b128 v[{base+4*q}:{base+4*q+3}], v{va} offset:{o}", f"PA{gi%4}"))
        return out
    pm = []
    for gi, (s, kp, nt) in enumerate(pg):
        for mt in range(2):
            for q in range(2):
                a = (AD if s < 9 else AS)(nt, mt); b = Breg(s, 2 * kp + q, mt); ar = P3_AR[gi % 4] + 4 * q
                C = "0" if (s in (0, 9) and kp == 0 and q == 0) else f"v[{a}:{a+3}]"
                pm.append(f"v_mfma_f32_16x16x32_bf16 v[{a}:{a+3}], v[{ar}:{ar+3}], a[{b}:{b+3}], {C}")
    TL = [att_tile(it, last_block=True, first_mfmas=(pm[:72] if it == 3 else None)) for it in range(4)]
    T28, T29, T30, T31 = TL
    T28.cur = T28.idx(T28.Q[50]); T28.put(poll_load("PL"))
    cv, cs = poll_check(2, "p2")
    T28.PV[40].sh.append(WaitFor(vm=("PL",))); T28.PV[41].sh += cs[:1]; T28.PV[42].post += cv; T28.PV[44].sh += cs[1:]
    free = [g for g in T28.G[:T28.idx(T28.PV[54])] if not g.sh and id(g) not in T28.reserved]
    assert len(free) >= len(setup3), len(free)
    for s_, g in zip(setup3, free): g.sh.append(s_)
    L2T = os.environ.get("L2T", "")
    if L2T:
        V_TH, V_TD = 3, V_SV
        p(f"v_min_u32 v{V_TH}, 15, v{V_LANE}"); p(f"v_lshlrev_b32 v{V_TH}, 7, v{V_TH}")
        for t in [f"s_and_b32 s13, s{S_J}, 7", f"s_lshl_b32 s13, s13, 2", f"s_add_u32 s13, s13, s{S_WAVE}", f"s_lshl_b32 s13, s13, 11",
                  f"s_lshl_b32 s14, s{S_RB}, 16", f"s_add_u32 s13, s13, s14", f"s_lshr_b32 s14, s{S_J}, 3", f"s_mul_i32 s15, s14, {9*524288}", f"s_add_u32 s13, s13, s15",
                  f"s_lshr_b32 s15, s2, 3", f"s_lshl_b32 s15, s15, 2", f"s_add_u32 s15, s15, s{S_WAVE}", f"s_lshl_b32 s15, s15, 11",
                  f"s_mul_i32 s14, s14, {1152*1152}", f"s_add_u32 s14, s14, s15"]: p(t)
        tl = []
        for x in L2T.split(","):
            if x[0] == "h": tl.append((13, H_OFF + int(x[1:]) * 524288))
            else: tl.append((14, WPD_OFF + int(x[1:]) * 262144))
        slots_ = [(T, g) for T in (T28, T29, T30) for g in (T.Q[8], T.Q[40], T.PV[10], T.PV[42])]
        for (T, g0_), (base, off) in zip(slots_, tl):
            T.cur = 0; ld_ = T.lastdma; T.lastdma = T.idx(g0_) - 4
            T.put((f"buffer_load_dword v{V_TD}, v{V_TH}, s[{S_WS}:{S_WS+3}], s77 offen sc1", "TCH"), g0_, sal=[f"s_add_u32 s77, s{base}, {off}"], cap=3)
            T.lastdma = ld_
    for n in range(4): T28.PV[57 + 2 * n].valu.append(f"v_mov_b32 v{V_RPS+4+n}, -1")
    T29.cur = 2; ld_ = T29.lastdma; T29.lastdma = 0
    for nt in range(9):
        T29.put((f"buffer_store_dwordx4 v[{V_RPS+4}:{V_RPS+7}], v{V_L16}, s[{S_WS}:{S_WS+3}], s{S_SIG} offen offset:{(nt%3)*1024} sc1", "DST"), T29.Q[2 + 5 * nt],
                sal=([f"s_add_u32 s{S_SIG}, s{S_PST}, {PART_OFF + PSTRIDE + nt*1024}"] if nt % 3 == 0 else ()), cap=3)
        T29.lastdma = T29.cur - 1
    T29.lastdma = max(ld_, T29.lastdma)
    T29.cur = T29.idx(T29.Q[50]); T29.lastdma = max(T29.lastdma, T29.idx(T29.Q[50]))
    for sal_, op in p3_w(0): T29.put(op, sal=sal_); T29.lastdma = T29.cur - 1
    T30.wv.append("PW0")
    mix = p3_b(0) + p3_w(1)
    T30.Q[49].valu.append(f"v_add_u32 v{V_PWA[1]}, {P3_SLOT[1]}, v{V_L16}"); T30.Q[51].valu.append(f"v_add_u32 v{V_PWA[2]}, {P3_SLOT[2]}, v{V_L16}")
    T30.cur = T30.idx(T30.PV[2])
    for r, lo in T30.pv_v: T30.put(r, lo)
    T30.cur = T30.idx(T30.PV[52])
    for r in p3_reads(0) + p3_reads(1) + p3_reads(2): T30.put(r)
    T30.cur = T30.idx(T30.PV[2]); T30.lastdma = T30.cur
    for n, (sal_, op) in enumerate(mix):
        T30.put(op, T30.PV[2 + 3 * n], sal=sal_, cap=3); T30.lastdma = T30.cur - 1
    T30.G[-1].post.append(WaitFor(lg=("PA0",), vm=("PB0",)))
    T31.wv.append("PW1")
    Q = T31.Q
    for gi in range(1, 18): Q[4 * gi - 1].sh.insert(0, WaitFor(lg=(f"PA{gi%4}",)))
    for gi in range(3, 18):
        for n, r in enumerate(p3_reads(gi)): Q[4 * (gi - 3) + 1 + 2 * n].mem.append(r)
    T31.cur = 0
    vr = [r for dt in range(4) for r in v_reads(VS(3), dt)]
    for n, r in enumerate(vr): T31.put(r, Q[4 * n], cap=3)
    T31.cur = 0; T31.lastdma = 0
    for n, (sal_, op) in enumerate(p3_b(1) + p3_b(2)):
        T31.put(op, Q[4 * n + 2], sal=sal_, cap=3); T31.lastdma = T31.cur - 1
    T31.cur = T31.idx(T31.PV[2])
    for r, lo in T31.pv_v: T31.put(r, lo); T31.cur += 1
    T31.cur = T31.idx(T31.PV[50])
    for r in p3_reads(18) + p3_reads(19) + p3_reads(20): T31.put(r); T31.cur += 1
    T31.cur = T31.idx(T31.PV[2]); T31.lastdma = T31.cur
    EARLY3 = os.environ.get("EARLY3", "")
    for sal_, op in p3_w(2) + (p3_w(3) if "w" in EARLY3 else []) + (p3_b(3) if "b" in EARLY3 else []):
        T31.put(op, sal=sal_); T31.lastdma = T31.cur - 1
    T31.PV[63].sh.append(WaitFor(lg=(f"PA{18%4}",), vm=("PB1",)))
    P = [None] * 72 + [Gap(m) for m in pm[72:]]
    for gi in range(21, len(pg)):
        i = gi % 18
        rd = p3_reads(gi)
        if i == 0: g0_ = 4 * (gi - 2); pos = (g0_, g0_ + 1)
        elif i == 1: g0_ = 4 * (gi - 3); pos = (g0_ + 2, g0_ + 3)
        else: g0_ = 4 * (gi - 3); pos = (g0_, g0_ + 2)
        for g_, r in zip(pos, rd): P[g_].mem.append(r)
    barw = {}
    for gi in range(19, len(pg)):
        s = pg[gi][0]; g = P[4 * gi - 1]
        if gi % 18 == 16 and s + 1 < NP3:
            barw[s] = WaitFor(vm=[f"PW{s+1}", f"PB{s+1}"], lg0=True)
            P[4 * gi - 2].sh.append(barw[s]); g.sh.append("s_barrier")
        else: g.sh.append(WaitFor(lg=(f"PA{gi%4}",)))
    def after_barrier(s): return 72 * s + 64
    OSIG = int(os.environ.get("OSIG", "4")); DSIG = int(os.environ.get("DSIG", "13")); OCAP = int(os.environ.get("OCAP", "3"))
    barw[OSIG].vm = tuple(barw[OSIG].vm) + ("OST",)
    P[after_barrier(OSIG) - 6].valu.append(sig_val(3)); P[after_barrier(OSIG) + 5].mem.append((sig_store, None))
    P[after_barrier(OSIG) + 1].sh.append(f"s_cmp_lg_u32 s{S_MIX}, 0"); P[after_barrier(OSIG) + 2].sh += ["s_cbranch_scc1 L_stub_w3", Label("L_ret_w3")]
    barw[DSIG].vm = tuple(barw[DSIG].vm) + ("DST",)
    P[after_barrier(DSIG) - 6].valu.append(sig_val(4)); P[after_barrier(DSIG) + 5].mem.append((sig_store, None))
    P[72*5+1].sh.append(f"s_lshl_b32 s{S_CNT}, s{S_RB}, 11"); P[72*5+2].sh.append(f"s_lshl_b32 s{S_RE}, s{S_KOFF}, 9"); P[72*5+4].sh.append(f"s_add_u32 s{S_RE}, s{S_RE}, s{S_CNT}")
    P[72*5+5].valu += [f"v_and_b32 v{V_PA}, 7, v{V_LANE}", f"v_lshl_add_u32 v{V_PA}, v{V_PA}, 3, s{S_RE}"]
    P[72*6+69].mem.append(poll_load("PL"))
    P[72*7+28].sh.append(WaitFor(vm=("PL",)))
    cv, cs = poll_check(3, "p3")
    P[72*7+29].valu += cv; P[72*7+29].sh += cs[:1]; P[72*7+30].post += cs[1:]
    PQ = DSIG + 1
    P[72*PQ+49].mem.append(poll_load("PL"))
    P[72*(PQ+1)+12].sh.append(WaitFor(vm=("PL",)))
    cv, cs = poll_check(4, "p4")
    P[72*(PQ+1)+13].valu += cv; P[72*(PQ+1)+13].sh += cs[:1]; P[72*(PQ+1)+13].post += cs[1:]
    HINT = int(os.environ.get("HINT", "1"))
    P[72*16 + HINT - 4].valu.append(sig_val(5)); P[72*16 + HINT].mem.append((sig_store, None))
    FD, GG, FXR, TT = 160, 208, 56, 16
    def fin_loads(kind, dst, tag):
        ops = []
        for m in range(3):
            for sp in range(3):
                tm = tmp()
                ops.append(([f"s_add_u32 s{tm}, s{S_FR+sp}, {PART_OFF + kind*PSTRIDE}"],
                            (f"buffer_load_dwordx4 v[{dst+(m*4+sp)*4}:{dst+(m*4+sp)*4+3}], v{V_FL+m}, s[{S_WS}:{S_WS+3}], s{tm} offen sc1", tag)))
        return annotate(ops)
    own_reads = lambda kind, dst, tag: [(f"ds_read_b128 v[{dst+(m*4+3)*4}:{dst+(m*4+3)*4+3}], v{V_OWR} offset:{kind*9216 + m*4096}", tag) for m in range(3)]
    xq = []
    for m in range(3):
        r = V_XO + m
        xq += [f"v_lshl_add_u32 v{r}, s{S_WAVE}, 6, v{V_LANE}"] + ([f"v_add_u32 v{r}, {256*m}, v{r}"] if m else [])
        xq += [f"v_mul_u32_u24 v71, 3641, v{r}", f"v_lshrrev_b32 v71, 16, v71", f"v_mul_u32_u24 v71, {1152-288}, v71", f"v_lshl_add_u32 v{r}, v{r}, 4, v71"]
        if m == 2: xq += [f"v_add_u32 v{r}, s{S_FX1}, v{r}"]
        xq.append(("MEM", [], (f"buffer_load_dwordx4 v[{FXR+4*m}:{FXR+4*m+3}], v{r}, s[{S_XI}:{S_XI+3}], s{S_FX0} offen", "FX")))
    for s in range(1, NP3):
        ops = []
        if s + 2 < NP3:
            w, b = p3_w(s + 2), p3_b(s + 2)
            if s == 7:
                place_mem(P, w, 72 * s, 72 * s + 28); place_mem(P, b, 72 * s + 30, 72 * s + 63); continue
            if s == 1:
                if "w" in EARLY3: w = []
                if "b" in EARLY3: b = []
            ops = w[:4] + b[:4] + w[4:8] + b[4:] + w[8:]
        if s == PQ + 1:
            assert s == 15
            place_mem(P, fin_loads(0, FD, "FD") + [([], r) for r in own_reads(0, FD, "FO")], 72 * s + 14, 72 * s + 63); continue
        if ops: place_mem(P, ops, 72 * s - int(os.environ.get('P3E', '0')), 72 * s + int(os.environ.get('P3W', '63')))
    allg = T31.PV + P[72:]
    OT = 96
    def o_item(n, qt, s):
        T = OT + (n % 4) * 8; D = OT + 32 + (n % 4) * 4
        q = []
        for h in range(2):
            o = A_O + ((2 * s + h) * 4 + qt) * 4
            for r in range(4): q.append(f"v_accvgpr_read_b32 v{T+4*h+r}, a{o+r}")
        for i in range(8): q.append(f"v_mul_f32 v{T+i}, v{T+i}, v{V_LS+4+qt}")
        for i in range(4): q.append(f"v_cvt_pk_bf16_f32 v{D+i}, v{T+2*i}, v{T+2*i+1}")
        q.append(("MEM", [f"s_add_u32 s{S_SIG}, s{S_OBASE}, {O_OFF + qt*4096}"], (f"buffer_store_dwordx4 v[{D}:{D+3}], v{V_L16}, s[{S_WS}:{S_WS+3}], s{S_SIG} offen offset:{s*1024}{SCO}", "OST")))
        return q
    pre = xlane_ops("v_add_f32", [V_LS + 5, V_LS + 7], OT + 48) + [f"v_rcp_f32 v{V_LS+4+qt}, v{V_LS+4+qt}" for qt in range(4)]
    n = 0; lim = 64 + after_barrier(OSIG - 1) - 72 + 30
    pre += xq
    q = list(pre); mins = [2] * len(pre)
    for s in range(4):
        for qt in range(4):
            it_ = o_item(n, qt, s); n += 1
            q += it_; mins += [16 * (s + 1) + 4] * len(it_)
    left = fill_valu(allg[:lim], 2, q, mins=mins, cap=OCAP); assert not left, len(left)
    fs = [f"v_add_u32 v{V_FL}, s{S_W1K}, v{V_L16}", f"v_add_u32 v{V_FL+1}, 4096, v{V_FL}", f"v_add_u32 v{V_FL+2}, s{S_VOFF}, v{V_FL}",
          f"v_and_b32 v{V_YW}, 15, v{V_LANE}", f"v_mul_u32_u24 v{V_YW}, 288, v{V_YW}", f"v_lshrrev_b32 v{V_YW+1}, 4, v{V_LANE}",
          f"v_lshl_add_u32 v{V_YW}, v{V_YW+1}, 3, v{V_YW}", f"v_lshl_add_u32 v{V_YW}, s{S_WAVE}, 5, v{V_YW}",
          f"v_lshrrev_b32 v{V_YW+1}, 16, s{S_FX1}", f"v_add_u32 v{V_YW+1}, v{V_YW+1}, v{V_YW}"]
    sal6 = [f"s_lshl_b32 s{S_FL}, s{S_RB}, 3", f"s_and_b32 s{S_T2+32}, s{S_J}, 7", f"s_add_u32 s{S_FL}, s{S_FL}, s{S_T2+32}", f"s_lshl_b32 s{S_FL}, s{S_FL}, 9",
            f"s_add_u32 s{S_FL}, s{S_FL}, {F5_OFF}",
            f"s_lshl_b32 s{S_W0B}, s{S_WAVE}, 7", f"s_add_u32 s{S_W0B}, s{S_W0B}, s{S_FL}", f"s_lshl_b32 s{S_W0B+1}, s{S_KOFF}, 3", f"s_add_u32 s{S_W0B}, s{S_W0B}, s{S_W0B+1}",
            f"s_lshl_b32 s{S_W0B+1}, s{S_KOFF}, 7", f"s_add_u32 s{S_FL}, s{S_FL}, s{S_W0B+1}",
            f"s_add_u32 s{S_W0B+1}, s{S_KOFF}, 1",
            [f"s_cmp_eq_u32 s{S_WAVE}, s{S_KOFF}", f"s_cselect_b32 s{S_W0B+2}, {1 << 30}, 0", f"s_cselect_b32 s{S_W0B+3}, 0, {18432}"],
            f"s_add_u32 s{S_PST}, s{S_PST}, s{S_W0B+2}", f"s_add_u32 s{S_W0B+3}, s{S_W0B+3}, {OWN_LDS}",
            [f"s_cmp_eq_u32 s{S_WAVE}, 0", f"s_cselect_b32 s{S_VOFF}, 8192, {1 << 30}"]]
    g_ = 72 * 6
    for x in sal6:
        while P[g_].sh: g_ += 1
        P[g_].sh += x if isinstance(x, list) else [x]
        g_ += 1
    assert g_ < 72 * 6 + 60
    fs += [f"v_add_u32 v{V_OWN}, s{S_W0B+3}, v{V_L16}", f"v_add_u32 v{V_OWR}, {OWN_LDS}, v{V_FL}"]
    left = fill_valu(P[:72 * 8], 72 * 6 + 60, fs); assert not left
    fs2 = [f"v_mov_b32 v{V_SA}, s{S_W0B}", f"v_min_u32 v{V_PA}, 2, v{V_LANE}", f"v_add_u32 v{V_PA}, s{S_W0B+1}, v{V_PA}", f"v_and_b32 v{V_PA}, 3, v{V_PA}",
           f"v_lshl_add_u32 v{V_PA}, v{V_PA}, 3, s{S_FL}"]
    left = fill_valu(P[:72 * 9], 72 * 8, fs2); assert not left
    def part_item(A, nt, kind, tag):
        a = A(nt, 0)
        q = [f"v_cvt_pk_bf16_f32 v{a+i}, v{a+2*i}, v{a+2*i+1}" for i in range(4)]
        q.append(("MEM", [f"s_add_u32 s{S_SIG}, s{S_PST}, {PART_OFF + kind*PSTRIDE + nt*1024}"], (f"buffer_store_dwordx4 v[{a}:{a+3}], v{V_L16}, s[{S_WS}:{S_WS+3}], s{S_SIG} offen sc1", tag)))
        q.append(("MEM", [], (f"ds_write_b128 v{V_OWN}, v[{a}:{a+3}] offset:{kind*9216 + nt*1024}", None)))
        return q
    for nt in range(9):
        left = fill_valu(P[:72 * DSIG], 72 * 8 + 12 + ((72 * (DSIG - 8) - 30) * nt) // 8, part_item(AD, nt, 0, "DST")); assert not left
    sleft = []
    for nt in range(9):
        sleft += fill_valu(P, 72 * 16 + 8 * (nt + 1) + 4, part_item(AS, nt, 1, "SST"))
    gq = []
    def unpack_sum(src, dst, pk=False):
        q = []
        for i in range(4):
            q += [f"v_lshlrev_b32 v{dst+2*i}, 16, v{src+i}", f"v_and_b32 v{dst+2*i+1}, s{S_THR}, v{src+i}"]
        for sp in range(1, 4):
            T = TT + 8 * (sp % 2)
            for i in range(4):
                q += [f"v_lshlrev_b32 v{T+2*i}, 16, v{src+4*sp+i}", f"v_and_b32 v{T+2*i+1}, s{S_THR}, v{src+4*sp+i}"]
            if pk:
                for i in range(0, 8, 2): q.append(f"v_pk_add_f32 v[{dst+i}:{dst+i+1}], v[{dst+i}:{dst+i+1}], v[{T+i}:{T+i+1}]")
            else:
                for i in range(8): q.append(f"v_add_f32 v{dst+i}, v{dst+i}, v{T+i}")
        return q
    P[72*13+1].post.append(f"s_mov_b32 s{S_THR}, 0xffff0000")
    for m in range(3):
        D = GG + 8 * m; T = FD + 16 * m
        gq += unpack_sum(FD + 16 * m, D, pk=True)
        gq += [f"v_mul_f32 v{T+i}, {f2u(-LOG2E)}, v{D+i}" for i in range(8)]
        gq += [f"v_exp_f32 v{T+i}, v{T+i}" for i in range(8)]
        gq += [f"v_add_f32 v{T+i}, 1.0, v{T+i}" for i in range(8)]
        gq += [f"v_rcp_f32 v{T+i}, v{T+i}" for i in range(8)]
        gq += [f"v_pk_mul_f32 v[{D+i}:{D+i+1}], v[{D+i}:{D+i+1}], v[{T+i}:{T+i+1}]" for i in range(0, 8, 2)]
    gleft = gq
    print("phase3 leftovers: s-part", len(sleft), "gate", len(gleft))
    for T in TL:
        finish_tile(T); emit_gaps(p, T.G)
    if 'finepro' not in ABL:
        stamp(p, 7); stamp_rt(p, 16)
        for s, k in ((3, 8), (6, 9), (9, 10), (13, 11)): P[72 * s - 1].post += stamp_ops(k)
    if 'finep3' in ABL:
        stamp(p, 0)
        for s in range(1, 17): P[72 * (s + 1) - 1].post = [x for x in P[72 * (s + 1) - 1].post if not (isinstance(x, str) and ("s76" in x or "s[76" in x or x == "s_waitcnt lgkmcnt(0)"))] + stamp_ops(s)
    emit_gaps(p, P[72:])
    if 'finep' not in ABL: stamp(p, 12); stamp_rt(p, 17)
    emit_ops(p, sleft)
    XU = 32
    FS = 96
    def s_loads():
        for sal_, op in fin_loads(1, FS, "FS"):
            for s_ in sal_: p(s_)
            p(op[0], op[1])
    p("s_waitcnt lgkmcnt(0)")
    s_loads()
    p.items.append(WaitFor(vm=("FD",)))
    p("s_barrier")
    for t, tag in own_reads(1, FS, "FO"): p(t, tag)
    emit_ops(p, gleft)
    for i in range(12):
        p(f"v_lshlrev_b32 v{XU+2*i}, 16, v{FXR+i}"); p(f"v_and_b32 v{XU+2*i+1}, s{S_THR}, v{FXR+i}")
    if 'finep' not in ABL: stamp(p, 13)
    p(f"s_mov_b32 s{S_CNT}, 0x40000"); p(f"s_add_u32 s{S_PV}, s{S_EP}, 5")
    p.label("L_dcheck")
    p("s_waitcnt vmcnt(0)")
    q_ = [FS + (m * 4 + sp) * 4 + i for m in range(3) for sp in range(3) for i in range(4)]
    p(f"v_max_u32 v{V_PT}, v{q_[0]}, v{q_[1]}"); p(f"v_max_u32 v{V_PT+1}, v{q_[2]}, v{q_[3]}")
    for i in range(4, 36, 2): p(f"v_max3_u32 v{V_PT+(i//2)%2}, v{V_PT+(i//2)%2}, v{q_[i]}, v{q_[i+1]}")
    p(f"v_max_u32 v{V_PT}, v{V_PT}, v{V_PT+1}")
    p(f"v_cmp_eq_u32 vcc, -1, v{V_PT}")
    p("s_cbranch_vccz L_dready")
    p(f"s_cmp_eq_u32 s{S_CNT}, 0x40000"); p("s_cbranch_scc0 L_dagain")
    p(f"s_call_b64 s[{S_RET}:{S_RET+1}], L_spin0")
    p.label("L_dagain")
    s_loads()
    p(f"s_sub_u32 s{S_CNT}, s{S_CNT}, 1"); p(f"s_cmp_lg_u32 s{S_CNT}, 0"); p("s_cbranch_scc1 L_dcheck")
    p("s_waitcnt vmcnt(0)")
    p.label("L_dready")
    if 'finep' not in ABL: stamp(p, 14)
    p("s_waitcnt lgkmcnt(0)")
    for m in range(3):
        D = FD + 8 * m
        for t in unpack_sum(FS + 16 * m, D, pk=True): p(t)
        for i in range(0, 8, 2): p(f"v_pk_mul_f32 v[{D+i}:{D+i+1}], v[{D+i}:{D+i+1}], v[{GG+8*m+i}:{GG+8*m+i+1}]")
        for i in range(4): p(f"v_cvt_pk_bf16_f32 v{D+i}, v{D+2*i}, v{D+2*i+1}")
        for mt in range(2): p(f"ds_write_b64 v{V_YW + (1 if m == 2 else 0)}, v[{D+2*mt}:{D+2*mt+1}] offset:{m*128 + mt*4608}")
    p("s_waitcnt lgkmcnt(0)"); p("s_barrier")
    for m in range(3): p(f"ds_read_b128 v[{128+4*m}:{131+4*m}], v{V_FL} offset:{m*4096}")
    for m in range(3):
        p(f"s_waitcnt lgkmcnt({2-m})")
        D = 96 + 8 * m; T = XU + 8 * m
        for i in range(4):
            p(f"v_lshlrev_b32 v{D+2*i}, 16, v{128+4*m+i}"); p(f"v_and_b32 v{D+2*i+1}, s{S_THR}, v{128+4*m+i}")
        for i in range(0, 8, 2): p(f"v_pk_add_f32 v[{D+i}:{D+i+1}], v[{D+i}:{D+i+1}], v[{T+i}:{T+i+1}]")
        for i in range(4): p(f"v_cvt_pk_bf16_f32 v{D+i}, v{D+2*i}, v{D+2*i+1}")
        p(f"buffer_store_dwordx4 v[{D}:{D+3}], v{V_XO+m}, s[{S_OUT}:{S_OUT+3}], s{S_FX0} offen")
    p(f"s_lshl_b32 s{S_T0}, s2, 12"); p("v_mov_b32 v4, 0"); p("v_mov_b32 v5, 0")
    p(f"buffer_store_dwordx2 v[4:5], v4, s[{S_DBG}:{S_DBG+3}], s{S_T0} offen sc1")
    if STAMP: p("s_waitcnt vmcnt(0)")
    stamp(p, 19); stamp_rt(p, 21)
    if 'dbgout' in ABL:
        p(f"s_cmp_eq_u32 s2, 250"); p(f"s_cselect_b32 s76, 36, 0x1000"); p("s_cmp_eq_u32 s2, 1"); p("s_cselect_b32 s76, 8, s76")
        p(f"s_cmp_eq_u32 s{S_WAVE}, 0"); p("s_cselect_b32 s76, s76, 0x1000"); p("v_mov_b32 v1, s76")
        p(f"s_lshr_b32 s77, s{S_EP}, 8")
        for n, k in enumerate((100, 95, 96, 97, 101)):
            p(f"s_sub_u32 s76, s{k}, s77"); p("s_and_b32 s76, s76, 0xffffff"); p("v_mov_b32 v2, s76")
            p(f"buffer_store_dword v2, v1, s[{S_DBG}:{S_DBG+3}], 0 offen offset:{4*n}")
        for n, (a_, b_) in enumerate(((81, 80), (99, 80))):
            p(f"s_sub_u32 s76, s{a_}, s{b_}"); p("v_mov_b32 v2, s76")
            p(f"buffer_store_dword v2, v1, s[{S_DBG}:{S_DBG+3}], 0 offen offset:{20+4*n}")
    else:
        stamp_dump(p, 70, S_WAVE, 1)
    p.label("L_done"); p("s_endpgm")

    rare = Prog(); p = rare
    for site, var in rare_sites:
        p.label(f"L_rare_stub{site}")
        p(f"s_call_b64 s[{S_RET}:{S_RET+1}], L_rare{var}")
        p(f"s_branch L_rare_ret{site}")
    for name in stubs:
        p.label(f"L_stub_{name}")
        p(f"s_call_b64 s[{S_RET}:{S_RET+1}], L_spin0")
        p(f"s_branch L_ret_{name}")
    for name in ("w2", "w3"):
        p.label(f"L_stub_{name}")
        p("buffer_wbl2 sc1"); p("s_waitcnt vmcnt(0)")
        p(f"s_branch L_ret_{name}")
    p.label("L_spin0")
    p(f"s_mov_b32 s{S_SPIN}, {'0x40' if 'Lno' in ABL else '0x40000'}")
    p.label("L_spin1")
    p(poll_load(None)[0])
    p(f"s_sub_u32 s76, s{S_EP}, s{S_PV}"); p("s_add_u32 s76, s76, 8")
    p("s_waitcnt vmcnt(0)")
    for t in flag_test(V_PT): p(t)
    p(f"v_cmp_le_u32 vcc, s76, v{V_PT}")
    p("s_cbranch_vccz L_spin2")
    p(f"s_sub_u32 s{S_SPIN}, s{S_SPIN}, 1"); p("s_sleep 1"); p(f"s_cmp_lg_u32 s{S_SPIN}, 0"); p("s_cbranch_scc1 L_spin1")
    p.label("L_spin2")
    p(f"s_setpc_b64 s[{S_RET}:{S_RET+1}]")
    rare_items = fix_hazards(rare.items)[0]
    for var in ("0", "1", "Z"):
        par = 1 if var == "Z" else int(var)
        rp = Prog(); p = rp
        p.label(f"L_rare{var}")
        p("s_nop 15")
        Lold = V_LS + (1 - par) * 4
        for qt in range(4):
            rowmax(p, par, qt, V_R + qt)
            p(f"v_log_f32 v{V_R+4}, v{Lold+qt}")
            if BIAS:
                p(f"v_max_f32 v{V_R+qt}, v{V_R+qt}, v{V_R+4}"); p(f"v_add_f32 v{V_R+qt}, {f2u(BIAS)}, v{V_R+qt}"); p(f"v_max_f32 v{V_R+qt}, 0, v{V_R+qt}")
            else: p(f"v_max3_f32 v{V_R+qt}, v{V_R+qt}, v{V_R+4}, 0")
        for t in xlane_ops("v_max_f32", [V_R + q for q in range(4)], V_R + 4): p(t)
        for qt in range(4):
            p(f"v_sub_f32 v{V_R+4+qt}, 0, v{V_R+qt}"); p(f"v_exp_f32 v{V_R+4+qt}, v{V_R+4+qt}")
        for qt in range(4):
            p(f"v_mul_f32 v{Lold+qt}, v{Lold+qt}, v{V_R+4+qt}")
            if var != "Z":
                for r in range(4): p(f"v_sub_f32 v{V_NM+4*qt+r}, v{V_NM+4*qt+r}, v{V_R+qt}")
            for pp in ((par,) if var == "Z" else (0, 1)):
                for kt in range(4):
                    for r in range(4): p(f"v_sub_f32 v{Sreg(pp,kt,qt)+r}, v{Sreg(pp,kt,qt)+r}, v{V_R+qt}")
            for dt in range(8):
                o = A_O + (dt * 4 + qt) * 4
                for r in range(4): p(f"v_accvgpr_read_b32 v{V_E+r}, a{o+r}")
                for r in range(4): p(f"v_mul_f32 v{V_E+r}, v{V_E+r}, v{V_R+4+qt}")
                for r in range(4): p(f"v_accvgpr_write_b32 a{o+r}, v{V_E+r}")
        for tau in range(64):
            p(op_exp(par, tau))
            if tau % 4 >= 2: p(op_add(par, tau))
            if tau % 2 == 1: p(op_cvt(par, tau))
        for qt in (0, 2):
            p(l_mfma(par, qt, 0)); p(l_mfma(par, qt, 1)); p(op_ladd(par, qt))
        if var != "Z":
            for tau in range(4): p(op_exp(1 - par, tau))
            p(op_cvt(1 - par, 1))
        p("s_nop 3")
        p(f"s_setpc_b64 s[{S_RET}:{S_RET+1}]")
        rare_items += fix_hazards(rp.items)[0]

    resolve_waits(pro.items + body.items + body.items + tail.items)
    pi = lower_waits(pro.items); bi = lower_waits(body.items); ti = lower_waits(tail.items)
    pi, a1 = fix_hazards(pi, verbose=False, name="pro")
    bi2, a2 = fix_hazards(bi, prev=bi, verbose=True, name="body")
    bi3, a3 = fix_hazards(bi2, prev=pi, verbose=True, name="body-entry")
    ti, a4 = fix_hazards(ti, prev=bi3, verbose=True, name="tail")
    wc = WaitChecker(); wc.run(pi + bi3 + bi3 + ti)
    for e in wc.errors[:10]: print("WAITCHECK", e)
    assert check_needs(pi + bi3 + bi3 + ti) == 0
    for it in pi + bi3 + ti:
        if isinstance(it, Ins): it.text = it.text.split(' ; need[')[0]
    allit = pi + bi3 + ti
    if not HOP: return allit + rare_items
    import subprocess
    def with_pads(pos):
        out = []; k_ = 0
        for n, it in enumerate(allit):
            out.append(it)
            if n in pos:
                out += [Label(f"L_pad{k_}"), Ins("s_cbranch_execz " + (f"L_pad{k_+3}" if k_ + 3 < len(pos) else "L_padend"), "PAD")]; k_ += 1
        return out + rare_items
    def addrs(items):
        txt = '.amdgcn_target "amdgcn-amd-amdhsa--gfx950"\n.text\n'
        for n, it in enumerate(items):
            if isinstance(it, Ins) and it.kind == "mfma": txt += render([it]) + f"L_m{id(it)}:\n"
            else: txt += render([it])
        txt += "L_code_end:\n"
        open("pads.s", "w").write(txt)
        subprocess.run(["clang", "-x", "assembler", "-target", "amdgcn-amd-amdhsa", "-mcpu=gfx950", "-c", "pads.s", "-o", "pads.o"], check=True)
        o = subprocess.run(["llvm-objdump", "-t", "pads.o"], capture_output=True, text=True).stdout
        return {l.split()[-1]: int(l.split()[0], 16) for l in o.splitlines() if ".text" in l and l.split()[-1].startswith("L_")}
    mi = [n for n, it in enumerate(allit) if isinstance(it, Ins) and it.kind == "mfma"]
    POFF = int(os.environ.get("POFF", "0"))
    pos = set(mi[:3])
    for rnd_ in range(6):
        ad = addrs(with_pads(pos))
        new_ = set(); page = None
        for n in mi:
            a_ = ad[f"L_m{id(allit[n])}"] - POFF
            if page is not None and a_ // 4096 != page: new_.add(n)
            page = a_ // 4096
        if new_ == pos: break
        pos = new_
    ad = addrs(with_pads(pos))
    print("pads at:", " ".join(hex(ad[f"L_pad{k}"]) for k in range(len(pos))))
    return with_pads(pos)

if __name__ == "__main__":
    import sys
    HEADER = open("cdna_kernels/" + NAME + ".s.ref").read().split("; Override")[0]
    items = gen_mega()
    k = NAME + "_kernel"
    s = HEADER + f"; @launch grid=(256,1,1) block=(256,1,1) lds={LDS_BYTES}\n"
    s += '.amdgcn_target "amdgcn-amd-amdhsa--gfx950"\n' + kernel_text(k, items, 512, 256)
    s += "L_code_end:\n    s_endpgm\n" + '.section .rodata,"a"\n.p2align 6\n' + kd_text(k, 512, 256)
    open(sys.argv[1], "w").write(s)
```

```python
from common import *
import math
LDS_BYTES = 160 * 1024
LOG2E = 1.4426950408889634
QSCALE = LOG2E / math.sqrt(128.0)
GC1 = -2.0 * math.sqrt(2.0 / math.pi) * LOG2E
GC2 = GC1 * 0.044715
CUT = int(os.environ.get("CUT", "30"))
BIAS = float(126 - CUT) if CUT else 0.0
THRESH = 2.0 ** (int(os.environ.get("THR", "64")) - BIAS)
ABL = os.environ.get('ABL', '')
NTW = "" if "nontw" in ABL else " nt"
NTQ = "" if "nontq" in ABL else " nt"
NTT = '' if 'nontt' in ABL else ' nt'
NTX = " nt" if "ntx" in ABL else ""
NTKV = " nt" if 'ntkv' in ABL else ""
WS_BYTES = 128 << 20
WPO_OFF = WP_OFF
WPD_OFF = WP_OFF + 4096 * 1152
FLAG_OFF = (100 << 20) if 'farflag' in ABL else (5 << 19)
SCH = ' sc1' if 'sch' in ABL else ''
SCO = ' sc1' if 'sco' in ABL else ''
LSC = '' if 'nolsc' in ABL else ' sc1'
P3NT = ' nt' if 'p3nt' in ABL else ''
PSTRIDE = 64 * 4 * 4 * 9216

S_HF = 4
S_WG, S_WU, S_WQ, S_K, S_V, S_WS, S_DBG, S_XI = 8, 12, 16, 20, 24, 28, 32, 36
S_WAVE, S_RB, S_J = 40, 41, 42
S_RE = 43
S_T0, S_T1, S_T2 = 44, 45, 46
S_KOFF, S_VOFF = 47, 48
S_W1K = 49
S_RET = 50
S_CNT = 52
S_W3K = 53
S_BF, S_BH, S_BQ = 54, 55, 56
S_RS, S_RD = 57, 58
S_RNW = 59
S_HHALF = 60
S_THR = 61
S_OBASE = 62
S_XB = 63
S_PTR = 64
S_W6K = 3
S_PV = 79
S_SIG = 78
S_SPIN = 75
S_EP = 74
S_FO = 73
S_MIX = 72
S_XCC = 69
S_EP2 = 68
S_PW, S_PW2, S_PB0, S_PB1 = 54, 55, 56, 57
S_W9K = 53
S_PST = 58
S_FL = 59
S_FX0, S_FX1 = 60, 63
S_OUT = 16

V_SA = 0
V_L16 = 1
V_WF, V_WQ = 2, 3
V_RA = 4
V_RH = 8
V_QP = 10
V_C1, V_C2 = 12, 13
V_KD, V_VD = 14, 15
V_AF = 16
V_T = 52
V_HO = 68
V_KA = 76
V_TA = 76
V_VA = 80
V_RQ = 88
V_ACC = 96
V_X = 224
WSLOT = [128 * 1024, 80 * 1024, 40 * 1024, 104 * 1024]
def wbase(slot):
    b = WSLOT[slot]
    return (0, b - 40 * 1024) if b < 104 * 1024 else (1, b - 104 * 1024)
def xreg(ks, mt):
    f = ks * 4 + mt
    return f"a[{4*f}:{4*f+3}]" if f < 64 else f"v[{V_X+4*(f-64)}:{V_X+4*(f-64)+3}]"

A_Q, A_KF, A_VF, A_O = 0, 64, 96, 128
V_S = 96
V_P0 = 224
V_P1 = 16
V_NM = 32
V_LS = 48
V_E = 56
V_CK = 9
V_ONE = 10
V_R = 64
V_LD = 72
V_RPS = 88
V_RPG, V_RPL = 2, 3
V_PT = 4
V_SV = 6
V_PA = 8
V_LANE = 2
KS = lambda T: (T + 3) % 4
VS = lambda T: (T + 1) % 4
P3_SLOT = [0, 80 * 1024, 116 * 1024]
AD = lambda nt, mt: 160 + (nt * 2 + mt) * 4
AS = lambda nt, mt: (96 + (nt * 2 + mt) * 4) if nt < 8 else (240 + mt * 4)
P3_AR = [32, 40, 88, 232]
V_PWA = [1, 76, 77]
V_XO = 68
V_YW = 78
V_FL = 80
S_FR = 64
V_OWN = 84
V_OWR = 85
OWN_LDS = 40 * 1024
FX_OFF = 16384
F5_OFF = 32768
S_W0B = 12

from k12 import Gap, emit_gaps, slots_of, fill_valu

def emit_ops(p, ops):
    for op in ops:
        if isinstance(op, tuple):
            for t in op[1]: p(t)
            p(op[2][0], op[2][1])
        else: p(op)

def annotate(ops):
    out = []; cur = []
    for sal, (txt, tag) in ops:
        if sal: cur = list(sal)
        out.append((sal, (txt + " ; need[" + "|".join(cur) + "]", tag)))
    return out

def check_needs(items):
    last = {}; bad = 0
    for it in items:
        if not isinstance(it, Ins): continue
        if "; need[" in it.text:
            for t in it.text.split("; need[")[1].rstrip("]").split("|"):
                if not t: continue
                d = Ins(t).wr[0]
                if last.get(d) != t:
                    bad += 1; print("NEEDCHECK:", it.text, "<- last writer", last.get(d))
        if it.kind == "salu":
            for r in it.wr: last[r] = it.text
    return bad

def gen_mega():
    pro = Prog(); p = pro
    stubs = []
    def poll_check(val, name):
        stubs.append(name)
        return (flag_test(V_PT) + [f"v_cmp_le_u32 vcc, {8-val}, v{V_PT}"],
                [f"s_add_u32 s{S_PV}, s{S_EP}, {val}", f"s_cbranch_vccnz L_stub_{name}", Label(f"L_ret_{name}")])
    def flag_test(r):
        return [f"v_and_b32 v{r}, 0xffffff87, v{r}", f"v_xor_b32 v{r+1}, s{S_EP2}, v{r+1}", f"v_subrev_u32 v{r}, s{S_PV}, v{r}",
                f"v_min_u32 v{r+1}, 1, v{r+1}", f"v_lshl_or_b32 v{r}, v{r+1}, 8, v{r}"]
    poll_load = lambda tag: (f"buffer_load_dwordx2 v[{V_PT}:{V_PT+1}], v{V_PA}, s[{S_WS}:{S_WS+3}], s{S_FO} offen sc1", tag)
    sig_store = f"buffer_store_dwordx2 v[{V_SV}:{V_SV+1}], v{V_SA}, s[{S_WS}:{S_WS+3}], s{S_FO} offen sc1"
    sig_val = lambda val: f"v_add_u32_e64 v{V_SV}, s{S_XCC}, {val}"

    p("s_cmp_ge_u32 s2, 256"); p("s_cbranch_scc1 L_done")
    stamp_rt(p, 20); stamp(p, 0)
    LX = 96
    p(f"s_load_dwordx2 s[{S_XI}:{S_XI+1}], s[0:1], {ARG['x']}")
    p(f"s_load_dwordx4 s[68:71], s[0:1], {ARG['dbg']}")
    p(f"s_getpc_b64 s[{S_K}:{S_K+1}]")
    p.label("L_pc0")
    p(f"s_and_b32 s{S_K+1}, s{S_K+1}, 0xffff"); p(f"s_mov_b32 s{S_K+2}, L_code_end-L_pc0"); p(f"s_mov_b32 s{S_K+3}, 0x20000")
    p(f"s_lshr_b32 s{S_T1}, s2, 3"); p(f"s_lshl_b32 s{S_T0}, s{S_T1}, 12"); p("v_lshlrev_b32 v16, 4, v0")
    p(f"buffer_load_dwordx4 v[160:163], v16, s[{S_K}:{S_K+3}], s{S_T0} offen", "CODE")
    p(f"s_and_b32 s{S_CNT}, s2, 7"); p(f"s_lshl_b32 s{S_CNT}, s{S_CNT}, 5"); p(f"s_or_b32 s{S_CNT}, s{S_CNT}, s{S_T1}")
    p("v_lshrrev_b32 v18, 5, v0"); p("v_and_b32 v19, 31, v0"); p(f"s_mul_i32 s{S_T0}, s{S_CNT}, 9216")
    p("v_mul_u32_u24 v20, 1152, v18"); p("v_lshl_add_u32 v20, v19, 4, v20")
    p(f"s_mov_b32 s{S_XI+2}, {XN_BYTES}"); p(f"s_mov_b32 s{S_XI+3}, 0x20000")
    p("s_waitcnt lgkmcnt(0)")
    for m in range(3):
        p(f"buffer_load_dwordx4 v[{LX+4*m}:{LX+4*m+3}], v20, s[{S_XI}:{S_XI+3}], s{S_T0} offen offset:{m*384}{NTX}", "LX")
    p(f"s_load_dwordx2 s[{S_WQ}:{S_WQ+1}], s[0:1], {ARG['wq']}")
    p(f"s_load_dwordx4 s[72:75], s[0:1], {ARG['wg']}")
    p(f"s_load_dwordx4 s[64:67], s[0:1], {ARG['k']}")
    p("s_memrealtime s[76:77]")
    p("v_lshrrev_b32 v16, 6, v0"); p("v_and_b32 v17, 63, v0"); p("v_cmp_gt_u32 vcc, 24, v19")
    p(f"v_readfirstlane_b32 s{S_WAVE}, v16")
    srd(p, S_DBG, 68, 256); srd(p, S_WS, 70, WS_BYTES)
    if 'tlb' in ABL:
        p("v_min_u32 v37, 41, v17"); p("v_lshlrev_b32 v37, 21, v37"); p("v_mov_b32 v38, 128")
        p(f"buffer_load_dword v165, v37, s[{S_WS}:{S_WS+3}], 0 offen", "TCH")
        p(f"buffer_load_dword v166, v38, s[{S_DBG}:{S_DBG+3}], 0 offen", "TCH")
    p(f"s_mov_b64 s[{S_RET}:{S_RET+1}], vcc")
    p(f"s_and_b32 s{S_T0}, s2, 7")
    p(f"s_and_b32 s{S_RB}, s{S_T1}, 3"); p(f"s_lshr_b32 s{S_T1}, s{S_T1}, 2")
    p(f"s_and_b32 s{S_T2}, s{S_T0}, 1"); p(f"s_lshl_b32 s{S_T2}, s{S_T2}, 2"); p(f"s_add_u32 s{S_RB}, s{S_RB}, s{S_T2}")
    p(f"s_lshr_b32 s{S_T0}, s{S_T0}, 1"); p(f"s_lshl_b32 s{S_J}, s{S_T0}, 3"); p(f"s_add_u32 s{S_J}, s{S_J}, s{S_T1}")
    p(f"s_mov_b32 s{S_WQ+2}, {576*8192}"); p(f"s_mov_b32 s{S_WQ+3}, 0x20000")
    p(f"v_lshlrev_b32 v{V_L16}, 4, v17"); p("v_mov_b32 v71, 0")
    p("s_waitcnt lgkmcnt(0)")
    p(f"s_lshl_b32 s{S_T1}, s2, 2"); p(f"s_add_u32 s{S_T1}, s{S_T1}, s{S_WAVE}"); p(f"s_cmp_lg_u32 s{S_T1}, 1"); p("s_cbranch_scc1 L_noleader")
    p("s_lshl_b64 s[76:77], s[76:77], 8"); p("s_or_b32 s76, s76, 128"); p("v_mov_b32 v30, s76"); p("v_mov_b32 v31, s77")
    p.raw(f"    buffer_store_dwordx2 v[30:31], v71, s[{S_DBG}:{S_DBG+3}], 0 offen sc1")
    p.label("L_noleader")
    p("v_lshrrev_b32 v20, 4, v17"); p("v_and_b32 v22, 15, v17")
    p("v_lshlrev_b32 v23, 2, v20"); p("v_xor_b32 v23, v23, v22"); p("v_lshlrev_b32 v24, 13, v20"); p(f"v_lshl_add_u32 v{V_WQ}, v23, 4, v24")
    p(f"s_mul_i32 s{S_W6K}, s{S_WAVE}, 6144")
    p(f"s_mul_i32 s{S_BQ}, s{S_WAVE}, {24*8192}"); p(f"s_lshl_b32 s{S_T0}, s{S_J}, 8"); p(f"s_add_u32 s{S_BQ}, s{S_BQ}, s{S_T0}")

    stages = [("q", 0, sub, 0) for sub in range(6)] + [("h", 0, sub, 0) for sub in range(3)]
    for t in range(4): stages += [("f", t, sub, (t + 1) % 2) for sub in range(3)]
    NST = len(stages)
    tmpsel = [0]
    def tmp():
        tmpsel[0] ^= 1
        return (S_T0, S_T1)[tmpsel[0]]
    def w_dma(st):
        kind, t, sub, buf = stages[st]; slot = st % 4
        ops = []
        if kind == "q":
            for i in range(6):
                tm = tmp()
                sal = [f"s_add_u32 s{tm}, s{S_BQ}, {(sub * 96 + 4 * i) * 8192}", f"s_add_u32 m0, s{S_W6K}, {WSLOT[slot] + i*1024}"]
                ops.append((sal, (f"buffer_load_dwordx4 v{V_WQ}, s[{S_WQ}:{S_WQ+3}], s{tm} offen{NTQ} lds", f"W{st}")))
            return annotate(ops)
        for reg in range(2):
            for i in range(3):
                base, srdn = (S_BH if kind == "h" else S_BF), (S_WG, S_WU)[reg]
                imm = (sub * 192 + 16 * i) * 9216 + t * 64
                tm = tmp()
                sal = [f"s_add_u32 s{tm}, s{base}, {imm}", f"s_add_u32 m0, s{S_W3K}, {WSLOT[slot] + reg*12288 + i*1024}"]
                ops.append((sal, (f"buffer_load_dwordx4 v{V_WF}, s[{srdn}:{srdn+3}], s{tm} offen{NTW} lds", f"W{st}")))
        return annotate(ops)
    def x_loads(k0, k1):
        ops = []
        for ks in range(k0, k1):
            for mt in range(4):
                ops.append(([f"s_add_u32 s{S_RD}, s{S_XB}, {ks*4096}"] if mt == 0 else [],
                            (f"buffer_load_dwordx4 {xreg(ks, mt)}, v{V_L16}, s[{S_WS}:{S_WS+3}], s{S_RD} offen offset:{mt*1024} sc1", f"X{ks//3}")))
        return annotate(ops)
    def kv_dma(which, tile_slot, soff, add):
        ops = []
        for t in range(4):
            tm = tmp()
            base = (0 if which == "K" else 65536) + tile_slot * 16384 + t * 4096
            srdn = S_K if which == "K" else S_V
            if soff is None: sal = [f"s_mov_b32 s{tm}, {add + t*4096}"]
            else: sal = [f"s_add_u32 s{tm}, s{soff}, {add + t*4096}"]
            sal.append(f"s_add_u32 m0, s{S_W1K}, {base}")
            ops.append((sal, (f"buffer_load_dwordx4 v{V_KD if which == 'K' else V_VD}, s[{srdn}:{srdn+3}], s{tm} offen{NTKV} lds", f"{which}{tile_slot}")))
        return annotate(ops)
    def issue(ops):
        for sal, op in ops:
            for s in reversed(sal): p(s)
            p(op[0], op[1])
    PV_ = os.environ.get('PROV', 'D')
    srd(p, S_WG, 72, 576 * 9216); srd(p, S_WU, 74, 576 * 9216)
    def w3(st):
        for i in range(8):
            tm = tmp()
            p(f"s_add_u32 m0, s{S_RNW}, {WSLOT[st % 4] + i*1024}"); p(f"s_add_u32 s{tm}, s{S_RE}, {(st * 96 + 4 * i) * 8192}")
            p(f"buffer_load_dwordx4 v{V_WQ}, s[{S_WQ}:{S_WQ+3}], s{tm} offen{NTQ} lds", f"W{st}")
    if 'latebad' in ABL:
        srd(p, S_V, 72, 0); p("v_mov_b32 v36, 0"); p(f"s_mov_b32 s{S_RS}, 0")
    p(f"s_cmp_eq_u32 s{S_WAVE}, 0"); p("s_cbranch_scc1 L_w0a")
    p(f"s_sub_u32 s{S_T2}, s{S_WAVE}, 1"); p(f"s_lshl_b32 s{S_RNW}, s{S_T2}, 13"); p(f"s_lshl_b32 s{S_RE}, s{S_T2}, 18"); p(f"s_add_u32 s{S_RE}, s{S_RE}, s{S_T0}")
    w3(0)
    p(f"s_lshr_b32 s{S_T0}, s2, 3"); p(f"s_mul_i32 s{S_T0}, s{S_T0}, 3"); p(f"s_add_u32 s{S_T0}, s{S_T0}, s{S_T2}")
    p(f"s_and_b32 s{S_T1}, s{S_T0}, 1"); p(f"s_cmp_eq_u32 s{S_T1}, 0")
    p(f"s_cselect_b32 s{S_V}, s{S_WG}, s{S_WU}"); p(f"s_cselect_b32 s{S_V+1}, s{S_WG+1}, s{S_WU+1}"); p(f"s_mov_b32 s{S_V+2}, {576*9216}"); p(f"s_mov_b32 s{S_V+3}, 0x20000")
    p(f"s_lshr_b32 s{S_T0}, s{S_T0}, 1"); p(f"s_mul_i32 s{S_RS}, s{S_T0}, {12*9216}")
    p(f"s_lshr_b32 s{S_T2}, s{S_J}, 3"); p(f"s_mul_i32 s{S_T2}, s{S_T2}, 2304"); p(f"s_add_u32 s{S_RS}, s{S_RS}, s{S_T2}")
    p(f"s_sub_u32 s{S_T1}, 384, s{S_V}"); p(f"s_sub_u32 s{S_T1}, s{S_T1}, s{S_T2}"); p(f"s_and_b32 s{S_T1}, s{S_T1}, 1023"); p(f"s_add_u32 s{S_RS}, s{S_RS}, s{S_T1}")
    p("v_min_u32 v36, 35, v17"); p("v_mul_u32_u24 v27, 43, v36"); p("v_lshrrev_b32 v27, 7, v27")
    p(f"v_mul_u32_u24 v27, {9216 - 3072}, v27"); p("v_lshl_add_u32 v36, v36, 10, v27")
    if 'latebad' not in ABL: p(f"buffer_load_dword v164, v36, s[{S_V}:{S_V+3}], s{S_RS} offen", "TCH")
    p.label("L_w0a")
    p("v_lshrrev_b32 v26, 3, v17"); p("v_and_b32 v27, 3, v26"); p("v_lshrrev_b32 v26, 2, v26"); p("v_and_b32 v28, 7, v17")
    p("v_lshl_add_u32 v27, v27, 4, v28"); p("v_lshlrev_b32 v27, 4, v27"); p("v_lshl_add_u32 v26, v26, 12, v27")
    p(f"s_lshr_b32 s{S_T0}, s{S_CNT}, 3"); p(f"s_mul_i32 s{S_RD}, s{S_T0}, 73728")
    p(f"s_and_b32 s{S_T1}, s{S_CNT}, 6"); p(f"s_lshl_b32 s{S_T1}, s{S_T1}, 9"); p(f"s_add_u32 s{S_RD}, s{S_RD}, s{S_T1}")
    p(f"s_and_b32 s{S_T1}, s{S_CNT}, 1"); p(f"s_lshl_b32 s{S_T1}, s{S_T1}, 7"); p(f"s_add_u32 s{S_RD}, s{S_RD}, s{S_T1}")
    p(f"s_mov_b32 s{S_FO}, {FLAG_OFF}")
    p(f"s_getreg_b32 s{S_XCC}, hwreg(HW_REG_XCC_ID, 0, 4)"); p(f"s_lshl_b32 s{S_XCC}, s{S_XCC}, 3")
    p(f"s_lshl_b32 s{S_T0}, s{S_T0}, 9"); p(f"s_and_b32 s{S_T1}, s{S_CNT}, 7"); p(f"s_lshl_b32 s{S_T1}, s{S_T1}, 3"); p(f"s_add_u32 s{S_T0}, s{S_T0}, s{S_T1}"); p(f"s_add_u32 s{S_T0}, s{S_T0}, {FX_OFF}")
    p(f"v_mov_b32 v31, s{S_T0}")
    p(f"s_lshl_b32 s{S_T0}, s{S_RB}, 11"); p(f"s_and_b32 s{S_T1}, s{S_J}, 24"); p(f"s_lshl_b32 s{S_T1}, s{S_T1}, 6"); p(f"s_add_u32 s{S_T1}, s{S_T1}, s{S_T0}")
    p(f"v_lshl_add_u32 v{V_TA}, v28, 3, s{S_T1}")
    p(f"s_and_b32 s{S_T2}, s{S_J}, 7"); p(f"s_lshl_b32 s{S_T2}, s{S_T2}, 3"); p(f"s_add_u32 s{S_T1}, s{S_T1}, s{S_T2}")
    p(f"v_writelane_b32 v31, s{S_T1}, 1")
    p(f"s_cmp_eq_u32 s{S_WAVE}, 0"); p(f"s_cselect_b32 s{S_T1}, s{S_T1}, {1 << 30}"); p(f"v_mov_b32 v{V_SA}, s{S_T1}")
    p(f"s_add_u32 s{S_T0}, s{S_T0}, {FX_OFF}"); p(f"v_lshl_add_u32 v30, v28, 3, s{S_T0}"); p("v_and_b32 v27, 24, v17"); p("v_lshl_add_u32 v30, v27, 6, v30")
    p(f"s_lshl_b32 s{S_T0}, s{S_RB}, 2"); p(f"s_add_u32 s{S_T0}, s{S_T0}, s{S_WAVE}")
    p(f"s_mul_i32 s{S_XB}, s{S_T0}, 73728"); p(f"s_lshl_b32 s{S_OBASE}, s{S_T0}, 14")
    if 'finepro' in ABL: stamp(p, 2)
    F = 112
    pr = lambda r: f"v[{r}:{r+1}]"
    p(f"s_mov_b32 s{S_T2}, 0xffff0000")
    for i in range(4): p(f"v_mov_b32 v{140+i}, 0")
    p("v_lshlrev_b32 v25, 7, v19"); p("v_lshl_add_u32 v25, v18, 4, v25")
    p(f"s_cmp_eq_u32 s{S_WAVE}, 0"); p("s_cbranch_scc0 L_w0b")
    nt_ = 2 if 'tlb' in ABL else 0
    p.raw(f"    s_waitcnt vmcnt({nt_})")
    p.label("L_w0b")
    p(f"s_waitcnt vmcnt({9 + nt_})")
    p(f"buffer_load_dwordx2 v[72:73], v71, s[{S_DBG}:{S_DBG+3}], 0 offen sc1", "EP")
    if 'finepro' in ABL: stamp(p, 3)
    for i in range(12):
        p(f"v_lshlrev_b32 v{F+2*i}, 16, v{LX+i}"); p(f"v_and_b32 v{F+2*i+1}, s{S_T2}, v{LX+i}")
    for i in range(6): p(f"v_pk_add_f32 {pr(144+2*i)}, {pr(F+4*i)}, {pr(F+4*i+2)}")
    for i in range(3): p(f"v_pk_add_f32 {pr(144+4*i)}, {pr(144+4*i)}, {pr(146+4*i)}")
    p(f"v_pk_add_f32 {pr(144)}, {pr(144)}, {pr(148)}")
    p(f"s_mov_b64 exec, s[{S_RET}:{S_RET+1}]")
    p(f"v_pk_add_f32 {pr(140)}, {pr(144)}, {pr(152)}")
    p("s_mov_b64 exec, -1")
    def reduce32(r, t):
        p(f"v_add_f32 v{r}, v{r}, v{r+1}")
        for mod in ("quad_perm:[1,0,3,2]", "quad_perm:[2,3,0,1]", "row_half_mirror", "row_mirror"):
            p(f"v_add_f32_dpp v{r}, v{r}, v{r} {mod} row_mask:0xf bank_mask:0xf")
        p(f"v_mov_b32 v{t}, v{r}"); p(f"v_permlane16_swap_b32 v{r}, v{t}"); p(f"v_add_f32 v{r}, v{r}, v{t}")
    reduce32(140, 141)
    p(f"v_mul_f32 v140, {f2u(-1.0/576)}, v140")
    for i in range(12): p(f"v_pk_add_f32 {pr(168+2*i)}, {pr(F+2*i)}, {pr(140)} op_sel_hi:[1,0]")
    p(f"v_cvt_pk_bf16_f32 v140, v140, v140")
    for i in range(2): p(f"v_pk_mul_f32 {pr(144+2*i)}, {pr(168+2*i)}, {pr(168+2*i)}")
    p(f"v_and_b32 v140, s{S_T2}, v140")
    for i in range(2, 12): p(f"v_pk_fma_f32 {pr(144+2*(i%2))}, {pr(168+2*i)}, {pr(168+2*i)}, {pr(144+2*(i%2))}")
    p(f"s_mov_b64 exec, s[{S_RET}:{S_RET+1}]")
    p(f"v_pk_add_f32 {pr(142)}, {pr(144)}, {pr(146)}")
    p("s_mov_b64 exec, -1")
    red = Prog(); p_ = p; p = red
    reduce32(142, 143)
    p(f"v_mul_f32 v142, {f2u(1.0/576)}, v142")
    def rnd(r):
        p(f"v_cvt_pk_bf16_f32 v{r}, v{r}, v{r}"); p(f"v_and_b32 v{r}, s{S_T2}, v{r}")
    rnd(142)
    p(f"v_add_f32 v142, {f2u(1e-5)}, v142"); rnd(142)
    p("v_sqrt_f32 v142, v142"); rnd(142)
    p("v_rcp_f32 v143, v142"); p("v_fma_f32 v144, -v142, v143, 1.0"); p("v_fma_f32 v142, v144, v143, v143")
    p = p_
    oth = [f"v_pk_add_f32 {pr(F+2*i)}, {pr(F+2*i)}, {pr(140)} op_sel_hi:[1,0]" for i in range(12)]
    oth += [f"v_cvt_pk_bf16_f32 v{F+2*i+1}, v{F+2*i}, v{F+2*i+1}" for i in range(12)]
    for i in range(12): oth += [f"v_lshlrev_b32 v{F+2*i}, 16, v{F+2*i+1}", f"v_and_b32 v{F+2*i+1}, s{S_T2}, v{F+2*i+1}"]
    for it in red.items:
        p.items.append(it)
        for t in oth[:2]: p(t)
        oth = oth[2:]
    for t in oth: p(t)
    for i in range(12): p(f"v_pk_mul_f32 {pr(F+2*i)}, {pr(F+2*i)}, {pr(142)} op_sel_hi:[1,0]")
    for i in range(12): p(f"v_cvt_pk_bf16_f32 v{LX+i}, v{F+2*i}, v{F+2*i+1}")
    p(f"s_mov_b64 exec, s[{S_RET}:{S_RET+1}]")
    for m in range(3): p(f"ds_write_b128 v25, v[{LX+4*m}:{LX+4*m+3}] offset:{m*24*128}")
    p("s_mov_b64 exec, -1")
    p("s_waitcnt lgkmcnt(0)"); p("s_barrier")
    p(f"s_cmp_lg_u32 s{S_WAVE}, 0"); p("s_cbranch_scc1 L_noxs")
    for m in range(9): p(f"ds_read_b128 v[{LX+4*m}:{LX+4*m+3}], v{V_L16} offset:{m*1024}")
    for m in range(9):
        p(f"s_waitcnt lgkmcnt({8-m})")
        p(f"buffer_store_dwordx4 v[{LX+4*m}:{LX+4*m+3}], v26, s[{S_WS}:{S_WS+3}], s{S_RD} offen sc1", "XS")
        if m < 8: p(f"s_add_u32 s{S_RD}, s{S_RD}, 8192")
    def ep_wait(sfx):
        p(f"s_mov_b32 s{S_SPIN}, 0x40000")
        p.label(f"L_eppoll{sfx}")
        p(f"v_readfirstlane_b32 s{S_EP}, v72"); p(f"v_readfirstlane_b32 s{S_EP2}, v73")
        p(f"s_cmp_lg_u32 s{S_EP}, 0"); p(f"s_cbranch_scc1 L_epok{sfx}")
        p.raw(f"    buffer_load_dwordx2 v[72:73], v71, s[{S_DBG}:{S_DBG+3}], 0 offen sc1")
        p.raw("    s_waitcnt vmcnt(0)")
        p(f"s_sub_u32 s{S_SPIN}, s{S_SPIN}, 1"); p(f"s_cmp_lg_u32 s{S_SPIN}, 0"); p(f"s_cbranch_scc1 L_eppoll{sfx}")
        p.label(f"L_epok{sfx}")
    if 'finepro' in ABL: stamp(p, 4)
    p("s_waitcnt vmcnt(0)")
    ep_wait("a")
    p(f"s_add_u32 s{S_T0}, s{S_XCC}, s{S_EP}"); p(f"s_add_u32 s{S_PV}, s{S_EP}, 1")
    p(f"v_add_u32_e64 v32, s{S_T0}, 1"); p("v_mov_b32 v33, v73")
    p(f"buffer_store_dwordx2 v[32:33], v31, s[{S_WS}:{S_WS+3}], s{S_FO} offen sc1")
    if 'wdelay' in ABL: p("s_barrier")
    if 'finepro' in ABL: stamp(p, 5)
    p(f"s_mov_b32 s{S_SPIN}, 0x40000")
    p.label("L_xpoll")
    p(f"buffer_load_dwordx2 v[34:35], v30, s[{S_WS}:{S_WS+3}], s{S_FO} offen sc1")
    p("s_waitcnt vmcnt(0)")
    for t in flag_test(34): p(t)
    p("v_cmp_le_u32 vcc, 7, v34")
    p("s_cbranch_vccz L_xready")
    p(f"s_sub_u32 s{S_SPIN}, s{S_SPIN}, 1"); p(f"s_cmp_lg_u32 s{S_SPIN}, 0"); p("s_cbranch_scc1 L_xpoll")
    p("s_branch L_xready")
    p.label("L_noxs")
    if 'finepro' in ABL: stamp(p, 4)
    if 'wdelay' in ABL: p("s_barrier")
    w3(1)
    if PV_ == 'D': w3(2)
    HOP = 'nohop' not in ABL
    if HOP:
        p("s_mov_b64 exec, 0")
        p(f"s_cmp_eq_u32 s{S_WAVE}, 1"); p("s_cbranch_scc1 L_pad0")
        p(f"s_cmp_eq_u32 s{S_WAVE}, 2"); p("s_cbranch_scc1 L_pad1")
        p("s_branch L_pad2")
        p.label("L_padend")
        p("s_mov_b64 exec, -1")
    if 'finepro' in ABL: stamp(p, 5)
    if HOP: p("s_branch L_xready")
    p.label("L_xready", 12 if HOP else None)
    p("s_barrier")
    if 'finepro' in ABL: stamp(p, 6)
    issue(x_loads(0, 3))
    p("v_lshrrev_b32 v18, 2, v17"); p("v_and_b32 v19, 3, v17"); p("v_and_b32 v21, 3, v18")
    p(f"s_lshl_b32 s{S_W1K}, s{S_WAVE}, 10")
    p("v_lshl_add_u32 v23, v20, 3, v21"); p("v_lshlrev_b32 v24, 8, v23"); p("v_lshl_add_u32 v24, v19, 4, v24"); p(f"v_add_u32 v24, {40*1024}, v24")
    for sg_ in range(4):
        p(f"v_xor_b32 v25, {sg_}, v21"); p(f"v_lshl_add_u32 v{V_RQ+sg_}, v25, 6, v24"); p(f"v_add_u32 v{V_RQ+4+sg_}, {64*1024}, v{V_RQ+sg_}")
    p("v_lshlrev_b32 v23, 6, v23")
    p("v_and_b32 v24, 1, v20"); p("v_lshlrev_b32 v24, 5, v24")
    p("v_lshl_add_u32 v25, v19, 3, v23")
    p(f"v_add_u32 v{V_RA}, v25, v24"); p(f"v_add_u32 v{V_RA}, {40*1024}, v{V_RA}")
    p(f"v_xor_b32 v{V_RA+1}, 32, v{V_RA}")
    p(f"v_add_u32 v{V_RA+2}, {64*1024}, v{V_RA}"); p(f"v_add_u32 v{V_RA+3}, {64*1024}, v{V_RA+1}")
    p(f"s_and_b32 s{S_T2}, s{S_J}, 1"); p(f"s_lshl_b32 s{S_T0}, s{S_T2}, 5")
    p(f"v_xor_b32 v{V_RH}, s{S_T0}, v{V_RA}"); p(f"v_add_u32 v{V_RH+1}, {64*1024}, v{V_RH}")
    p("v_lshrrev_b32 v23, 5, v17"); p("v_lshlrev_b32 v23, 1, v23"); p("v_xor_b32 v23, v23, v19")
    p(f"v_mul_u32_u24 v24, 9216, v18"); p(f"v_lshl_add_u32 v{V_WF}, v23, 4, v24")
    p(f"v_mov_b32 v{V_C1}, {f2u(GC1)}"); p(f"v_mov_b32 v{V_C2}, {f2u(GC2)}")
    p(f"s_mul_i32 s{S_W3K}, s{S_WAVE}, 3072")
    p(f"s_mul_i32 s{S_BH}, s{S_WAVE}, {48*9216}")
    p(f"s_mul_i32 s{S_RS}, s{S_J}, 288"); p(f"s_add_u32 s{S_RS}, s{S_RS}, s{S_T0}")
    p(f"s_add_u32 s{S_BF}, s{S_BH}, s{S_RS}")
    p(f"s_lshr_b32 s{S_T0}, s{S_J}, 1"); p(f"s_lshl_b32 s{S_T0}, s{S_T0}, 19")
    for d, b in ((S_K, 64), (S_V, 66)):
        p(f"s_add_u32 s{d}, s{b}, s{S_T0}"); p(f"s_addc_u32 s{d+1}, s{b+1}, 0"); p(f"s_mov_b32 s{d+2}, 524288"); p(f"s_mov_b32 s{d+3}, 0x20000")
    p(f"s_lshr_b32 s{S_T0}, s{S_J}, 1"); p(f"s_mul_i32 s{S_KOFF}, s{S_T0}, 576"); p(f"s_add_u32 s{S_KOFF}, s{S_KOFF}, 256")
    p(f"s_add_u32 s{S_BH}, s{S_BH}, s{S_KOFF}")
    def hoff(dst, colreg, add):
        p(f"s_lshr_b32 s{S_T0}, s{colreg}, 6"); p(f"s_add_u32 s{S_T0}, s{S_T0}, {add}")
        p(f"s_lshr_b32 s{S_T1}, s{S_T0}, 2"); p(f"s_lshl_b32 s{S_T1}, s{S_T1}, 19")
        p(f"s_and_b32 s{S_T0}, s{S_T0}, 3"); p(f"s_lshl_b32 s{S_T0}, s{S_T0}, 10")
        p(f"s_add_u32 s{dst}, s{S_T0}, s{S_T1}"); p(f"s_add_u32 s{dst}, s{dst}, s{S_OBASE}")
    hoff(S_HHALF, S_KOFF, 0); p(f"s_lshl_b32 s{S_T0}, s{S_T2}, 3"); p(f"s_add_u32 s{S_HHALF}, s{S_HHALF}, s{S_T0}")
    for t in range(4): hoff(S_HF + t, S_RS, t)
    p(f"s_lshl_b32 s{S_T0}, s{S_J}, 19"); p(f"s_add_u32 s{S_OBASE}, s{S_OBASE}, s{S_T0}")
    p(f"s_mov_b32 s{S_THR}, {f2u(THRESH)}")
    p(f"s_lshl_b32 s{S_T0}, s{S_WAVE}, 2"); p(f"v_add_u32 v23, s{S_T0}, v20")
    p(f"v_xor_b32 v24, v22, v23"); p(f"v_lshlrev_b32 v24, 4, v24"); p(f"v_lshl_add_u32 v{V_KD}, v23, 8, v24")
    p(f"v_and_b32 v24, 7, v23"); p(f"v_lshlrev_b32 v24, 1, v24"); p(f"v_xor_b32 v24, v22, v24"); p(f"v_lshlrev_b32 v24, 4, v24"); p(f"v_lshl_add_u32 v{V_VD}, v23, 8, v24")
    for ks in range(2, 4):
        p(f"v_add_u32 v23, {4*ks}, v20"); p("v_xor_b32 v23, v23, v22"); p("v_lshlrev_b32 v23, 4, v23"); p(f"v_lshl_add_u32 v{V_KA+ks}, v22, 8, v23")
    p("v_and_b32 v24, 7, v18"); p("v_lshlrev_b32 v25, 8, v18"); p("v_lshl_add_u32 v25, v19, 3, v25"); p("v_add_u32 v25, 0x10000, v25")
    for dt in range(8):
        p(f"v_xor_b32 v23, {dt}, v24"); p(f"v_lshl_add_u32 v{V_VA+dt}, v23, 5, v25")
    p(f"s_lshl_b32 s{S_T0}, s{S_WAVE}, 14"); p(f"s_cmp_eq_u32 s{S_WAVE}, 2"); p(f"s_cselect_b32 s{S_T0}, 0x10000, s{S_T0}")
    p(f"s_add_u32 s{S_T1}, s{S_T0}, 8192"); p(f"s_cmp_eq_u32 s{S_WAVE}, 3"); p(f"s_cselect_b32 s{S_T0}, 0x8000, s{S_T0}"); p(f"s_cselect_b32 s{S_T1}, {152*1024}, s{S_T1}")
    p(f"v_add_u32 v{V_QP}, s{S_T0}, v{V_L16}"); p(f"v_add_u32 v{V_QP+1}, s{S_T1}, v{V_L16}")

    groups = []
    for st in range(NST):
        kind, t, sub, buf = stages[st]
        if kind == "q":
            for nt in range(8): groups.append((st, nt, 0))
        else:
            nts = [0, 2] if kind == "h" else [0, 1, 2, 3]
            for c0 in (0, 3):
                for nt in nts: groups.append((st, nt, c0))
    def a_reads(gi):
        st, nt, c0 = groups[gi]; kind, t, sub, buf = stages[st]
        hb, off = wbase(st % 4)
        out = []
        for c in range(3):
            for tt in range(2):
                d = V_AF + (gi % 3) * 12 + c * 4 + 2 * tt
                if kind == "q":
                    addr = V_RQ + 4 * hb + (nt >> 1); o = off + c * 8192 + tt * 1024 + 8 * (nt & 1)
                else:
                    addr = (V_RA + 2 * hb + (nt & 1)) if kind == "f" else (V_RH + hb)
                    o = off + (nt >> 1) * 12288 + (c0 + c) * 2048 + tt * 256
                out.append((f"ds_read_b64_tr_b16 v[{d}:{d+1}], v{addr} offset:{o}", f"A{gi%3}"))
        return out
    acc = lambda buf, nt, mt: V_ACC + buf * 64 + (nt * 4 + mt) * 4
    gaps = []; gstart = []
    for gi, (st, nt, c0) in enumerate(groups):
        gstart.append(len(gaps))
        kind, t, sub, buf = stages[st]
        for mt in range(4):
            for c in range(3):
                a = acc(buf, nt, mt); af = V_AF + (gi % 3) * 12 + c * 4
                ks = (sub * 3 if kind == "q" else sub * 6 + c0) + c
                C = "0" if ks == 0 else f"v[{a}:{a+3}]"
                gaps.append(Gap(f"v_mfma_f32_16x16x32_bf16 v[{a}:{a+3}], v[{af}:{af+3}], {xreg(ks, mt)}, {C}"))
    NG = len(groups)
    first_of_stage = {}
    for gi, (st, nt, c0) in enumerate(groups): first_of_stage.setdefault(st, gi)
    bar_gap = {}
    for gi in range(2, NG):
        st = groups[gi][0]; f = first_of_stage[st]
        rd = a_reads(gi)
        if gi == f:
            g0 = gstart[gi - 1]; bar_gap[st] = g0 - 1
            for n, r in enumerate(rd): gaps[g0 + n].mem.append(r)
        elif gi == f + 1:
            g0 = gstart[gi - 2]
            for n, r in enumerate(rd): gaps[g0 + 6 + n].mem.append(r)
        else:
            g0 = gstart[gi - 2]
            for n, r in enumerate(rd): gaps[g0 + 2 * n].mem.append(r)
    for gi in range(1, NG):
        g = gaps[gstart[gi] - 1]
        st, nt, c0 = groups[gi]
        vm = []
        if st < 6 and nt == 0: vm.append(f"X{st}")
        nxt = groups[gi + 1][0] if gi + 1 < NG else None
        if nxt is not None and nxt != st:
            g.sh.append(WaitFor(vm=vm + [f"W{nxt}"], lg0=True)); g.sh.append("s_barrier")
        else:
            g.sh.append(WaitFor(lg=(f"A{gi%3}",), vm=vm))
    def place_mem(gaps, ops, g0, g1, dense=False, want=0):
        pitch = max(1.0, (g1 - g0 - 8) / len(ops)) if not dense else 1.0
        last = g0
        for n, (sal, op) in enumerate(ops):
            g = max(last + 1 + len(sal), int(g0 + 2 + n * pitch))
            while True:
                assert g < g1, (g0, g1, n, len(ops))
                ok = (len(gaps[g].mem) <= 1 if dense else len(gaps[g].mem) == want) and all(len(gaps[g - len(sal) + i].sh) == 0 for i in range(len(sal)))
                if ok: break
                g += 1
            for i, s in enumerate(sal): gaps[g - len(sal) + i].sh.append(s)
            gaps[g].mem.append(op); last = g
    for st in range(NST):
        g0 = gstart[first_of_stage[st]]
        g1 = bar_gap[st + 1] if st + 1 < NST else len(gaps)
        ops = []
        if st == 0: ops = (w_dma(2) if PV_ != 'D' else []) + x_loads(6, 9) + w_dma(3)
        elif st == 1: ops = x_loads(9, 12) + w_dma(4)
        elif st == 2: ops = x_loads(12, 15) + w_dma(5)
        elif st == 3: ops = x_loads(15, 18) + w_dma(6)
        elif st + 3 < NST: ops = w_dma(st + 3)
        if st == 4: ops = [([], (f"buffer_load_dwordx2 v[74:75], v{V_TA}, s[{S_WS}:{S_WS+3}], s{S_FO} offen sc1", "GX"))] + ops
        if st == 18: ops += kv_dma("V", VS(0), None, 0)
        if st == 19: ops += kv_dma("K", KS(0), None, 0)
        if st == 20: ops += kv_dma("K", KS(1), None, 16384) + kv_dma("V", VS(1), None, 16384) + kv_dma("K", KS(2), None, 32768)
        if ops: place_mem(gaps, ops, g0, g1 if st < 20 else g0 + 60)
        if st == 19:
            cand = [g for g in range(g0 + 3, g1 - 2) if not gaps[g].mem][::2]
            assert len(cand) >= 16
            for f, g in enumerate(cand[:16]):
                gaps[g].mem.append((f"ds_read_b128 a[{A_Q+4*f}:{A_Q+4*f+3}], v{V_QP + f//8} offset:{(f%8)*1024}", "QR"))
    def ffn_epi(st0, pk=False, mts=(0, 1, 2, 3)):
        kind, t, sub, buf = stages[st0]
        q = []
        for mt in mts:
            if kind == "f": el = [(acc(buf, n, mt) + r, acc(buf, 2 + n, mt) + r) for n in range(2) for r in range(4)]
            else: el = [(acc(buf, 0, mt) + r, acc(buf, 2, mt) + r) for r in range(4)]
            T = V_T + 8 * (mt % 2)
            if pk:
                pr = lambda r: f"v[{r}:{r+1}]"
                ev = list(enumerate(el))[::2]
                for e, (g, u) in ev: q.append(f"v_pk_mul_f32 {pr(T+e)}, {pr(g)}, {pr(g)}")
                for e, (g, u) in ev: q.append(f"v_pk_fma_f32 {pr(T+e)}, {pr(T+e)}, {pr(V_C1)}, {pr(V_C1)} op_sel:[0,1,0] op_sel_hi:[1,1,0]")
                for e, (g, u) in ev: q.append(f"v_pk_mul_f32 {pr(T+e)}, {pr(T+e)}, {pr(g)}")
                for e, (g, u) in enumerate(el): q.append(f"v_exp_f32 v{T+e}, v{T+e}")
                for e, (g, u) in ev: q.append(f"v_pk_mul_f32 {pr(g)}, {pr(g)}, {pr(u)}")
                for e, (g, u) in ev: q.append(f"v_pk_add_f32 {pr(T+e)}, {pr(T+e)}, 1.0 op_sel_hi:[1,0]")
                for e, (g, u) in enumerate(el): q.append(f"v_rcp_f32 v{T+e}, v{T+e}")
                for e, (g, u) in ev: q.append(f"v_pk_mul_f32 {pr(g)}, {pr(g)}, {pr(T+e)}")
            else:
                for e, (g, u) in enumerate(el): q.append(f"v_mul_f32 v{T+e}, v{g}, v{g}")
                for e, (g, u) in enumerate(el): q.append(f"v_fma_f32 v{T+e}, v{T+e}, v{V_C2}, v{V_C1}")
                for e, (g, u) in enumerate(el): q.append(f"v_mul_f32 v{T+e}, v{T+e}, v{g}")
                for e, (g, u) in enumerate(el):
                    q.append(f"v_exp_f32 v{T+e}, v{T+e}"); q.append(f"v_mul_f32 v{g}, v{g}, v{u}")
                for e, (g, u) in enumerate(el): q.append(f"v_add_f32 v{T+e}, 1.0, v{T+e}")
                for e, (g, u) in enumerate(el): q.append(f"v_rcp_f32 v{T+e}, v{T+e}")
                for e, (g, u) in enumerate(el): q.append(f"v_mul_f32 v{g}, v{g}, v{T+e}")
            o = V_HO + 4 * (mt % 2)
            for i in range(len(el) // 2): q.append(f"v_cvt_pk_bf16_f32 v{o+i}, v{el[2*i][0]}, v{el[2*i+1][0]}")
            if kind == "f":
                q.append(("MEM", [f"s_add_u32 s{S_T2}, s{S_HF+t}, {H_OFF + mt*4096}"], (f"buffer_store_dwordx4 v[{o}:{o+3}], v{V_L16}, s[{S_WS}:{S_WS+3}], s{S_T2} offen{SCH}", None)))
            else:
                q.append(("MEM", [f"s_add_u32 s{S_T2}, s{S_HHALF}, {H_OFF + mt*4096}"], (f"buffer_store_dwordx2 v[{o}:{o+1}], v{V_L16}, s[{S_WS}:{S_WS+3}], s{S_T2} offen{SCH}", None)))
        return q
    def q_epi(seg):
        q = []
        for mt in range(4):
            rs = [acc(0, 2 * seg, mt) + r for r in range(4)] + [acc(0, 2 * seg + 1, mt) + r for r in range(4)]
            o = V_T + 4 * ((seg * 4 + mt) % 4)
            for r in rs: q.append(f"v_mul_f32 v{r}, {f2u(QSCALE)}, v{r}")
            for i in range(4): q.append(f"v_cvt_pk_bf16_f32 v{o+i}, v{rs[2*i]}, v{rs[2*i+1]}")
            f = mt * 4 + seg
            q.append(("MEM", [], (f"ds_write_b128 v{V_QP + f//8}, v[{o}:{o+3}] offset:{(f%8)*1024}", None)))
        return q
    sg = lambda st: gstart[first_of_stage[st]]
    gaps[bar_gap[20] - 11].post += [f"s_load_dwordx2 s[64:65], s[0:1], {ARG['wo']}", f"s_load_dwordx2 s[66:67], s[0:1], {ARG['wd']}",
                                    f"s_load_dwordx2 s[{S_OUT}:{S_OUT+1}], s[0:1], {ARG['out']}"]
    g_ = gaps[sg(8) + 1]
    g_.post += [WaitFor(vm=("GX",)), f"v_subrev_u32 v74, s{S_XCC}, v74", f"v_xor_b32 v75, s{S_EP2}, v75", "v_min_u32 v75, 1, v75", "v_lshl_or_b32 v74, v75, 8, v74", "v_cmp_le_u32 vcc, 8, v74", "s_nop 1",
                "s_cmp_lg_u64 vcc, 0", f"s_cselect_b32 s{S_MIX}, 1, {1 if 'forcemix' in ABL else 0}"]
    f5 = first_of_stage[5]
    q = []; mins = []
    for seg in range(4):
        e_ = q_epi(seg); q += e_; mins += [gstart[f5 + 2 * seg + 2] + 3] * len(e_)
    left = fill_valu(gaps[:sg(9) - 3], gstart[f5 + 2] + 3, q, mins=mins); assert not left, len(left)
    for seg, lim_ in ((0, sg(6) - 3), (1, sg(6) + 9)):
        cv_ = [x for x in q_epi(seg) if isinstance(x, str)]
        lastg = max(gi for gi, g in enumerate(gaps) for x in g.valu if x in cv_ and gi < sg(9))
        assert lastg < lim_, (seg, lastg, lim_)
    for st0 in (6, 9, 12, 15):
        end = sg(st0 + 6) - 3 if st0 + 6 < NST else len(gaps)
        left = fill_valu(gaps[:end], sg(st0 + 3) + 3, ffn_epi(st0)); assert not left, (st0, len(left))
    left = fill_valu(gaps, sg(19), [f"v_xor_b32 v{V_KA}, 128, v{V_KA+2}", f"v_xor_b32 v{V_KA+1}, 128, v{V_KA+3}"]); assert not left
    issue(x_loads(3, 6))
    p.items.append(WaitFor(vm=("X0",)))
    p("s_barrier")
    for t, tag in a_reads(0) + a_reads(1): p(t, tag)
    ep_wait("b")
    p(f"s_add_u32 s{S_XCC}, s{S_XCC}, s{S_EP}")
    p.items.append(WaitFor(lg=("A0",)))
    stamp(p, 1)
    if 'finepro' in ABL:
        gaps[sg(1) - 1].post += stamp_ops(7); gaps[sg(2) - 1].post += stamp_ops(8); gaps[sg(3) - 1].post += stamp_ops(9)
    elif 'fine1' in ABL:
        for st in range(6, 21): gaps[sg(st) - 1].post += stamp_ops(st - 4)
    else:
        gaps[sg(6) - 1].post += stamp_ops(2); gaps[sg(12) - 1].post += stamp_ops(3)
    emit_gaps(p, gaps)
    if 'fine1' in ABL:
        stamp(p, 17); globals()['ABL'] += ',finepro'
    if 'finepro' not in ABL: stamp(p, 4)

    Sreg = lambda par, kt, qt: V_S + (1 - par) * 64 + (kt * 4 + qt) * 4
    Preg = lambda par, kb, qt: (V_P0 + par * 16 + qt * 4) if kb == 0 else (V_P1 + qt * 4)
    Kf = lambda kt, ks: A_KF + (kt % 2) * 16 + ks * 4
    Vf = lambda dt, kb: A_VF + (dt % 4) * 8 + kb * 4
    def k_reads(slot, kt):
        return [(f"ds_read_b128 a[{Kf(kt,ks)}:{Kf(kt,ks)+3}], v{V_KA+ks} offset:{slot*16384 + kt*4096}", f"KF{kt%2}") for ks in range(4)]
    def v_reads(slot, dt):
        return [(f"ds_read_b64_tr_b16 a[{Vf(dt,kb)+2*t}:{Vf(dt,kb)+2*t+1}], v{V_VA+dt} offset:{slot*16384 + kb*8192 + t*4096}", f"VF{dt%4}") for kb in range(2) for t in range(2)]
    def qk_mfma(par, kt, qt, ks, zero=False):
        s = Sreg(par, kt, qt)
        C = f"v[{s}:{s+3}]" if ks else ("0" if zero else f"v[{V_NM+4*qt}:{V_NM+4*qt+3}]")
        qf = A_Q + (qt * 4 + ks) * 4
        return f"v_mfma_f32_16x16x32_bf16 v[{s}:{s+3}], a[{Kf(kt,ks)}:{Kf(kt,ks)+3}], a[{qf}:{qf+3}], {C}"
    def pv_mfma(par, dt, qt, kb):
        o = A_O + (dt * 4 + qt) * 4; pr = Preg(par, kb, qt)
        return f"v_mfma_f32_16x16x32_bf16 a[{o}:{o+3}], a[{Vf(dt,kb)}:{Vf(dt,kb)+3}], v[{pr}:{pr+3}], a[{o}:{o+3}]"
    def l_mfma(par, qt, kb):
        pr = Preg(par, kb, qt)
        return f"v_mfma_f32_16x16x32_bf16 v[{V_LD}:{V_LD+3}], v[{V_ONE}:{V_ONE+3}], v[{pr}:{pr+3}], " + ("0" if kb == 0 else f"v[{V_LD}:{V_LD+3}]")
    def elem(par, tau):
        kb = tau // 32; r = tau % 32; qt = 2 * (r // 16) + ((r % 4) >> 1); j = 2 * ((r % 16) // 4) + (r & 1)
        return Sreg(par, 2 * kb + (j >> 2), qt) + (j & 3), kb, qt, j
    def op_exp(par, tau): return f"v_exp_f32 v{V_E + tau % 8}, v{elem(par, tau)[0]}"
    def op_add(par, tau):
        s, kb, qt, j = elem(par, tau); assert qt % 2 == 1
        src = V_LS + (1 - par) * 4 + qt if (kb == 0 and j == 0) else V_LS + par * 4 + qt
        return f"v_add_f32 v{V_LS + par*4 + qt}, v{src}, v{V_E + tau % 8}"
    def op_ladd(par, qt): return f"v_add_f32 v{V_LS + par*4 + qt}, v{V_LS + (1-par)*4 + qt}, v{V_LD}"
    def op_cvt(par, tau):
        s, kb, qt, j = elem(par, tau); assert tau % 2 == 1
        return f"v_cvt_pk_bf16_f32 v{Preg(par, kb, qt) + j//2}, v{V_E + (tau-1) % 8}, v{V_E + tau % 8}"
    def rowmax(p, par, qt, dst):
        regs = [Sreg(par, kt, qt) + r for kt in range(4) for r in range(4)]
        p(f"v_max3_f32 v{dst}, v{regs[0]}, v{regs[1]}, v{regs[2]}")
        for i in range(3, 15, 2): p(f"v_max3_f32 v{dst}, v{dst}, v{regs[i]}, v{regs[i+1]}")
        p(f"v_max_f32 v{dst}, v{dst}, v{regs[15]}")
    def xlane_ops(op, dsts, t1):
        o = []
        for sw in ("v_permlane32_swap_b32", "v_permlane16_swap_b32"):
            for q, d in enumerate(dsts): o.append(f"v_mov_b32 v{t1+q}, v{d}")
            for q, d in enumerate(dsts): o.append(f"{sw} v{d}, v{t1+q}")
            for q, d in enumerate(dsts): o.append(f"{op} v{d}, v{d}, v{t1+q}")
        return o

    p.items.append(WaitFor(vm=(f"K{KS(0)}",), lg0=True)); p("s_barrier")
    for t, tag in k_reads(KS(0), 0) + k_reads(KS(0), 1): p(t, tag)
    g0 = []
    for kt in range(4):
        for qt in range(4):
            for ks in range(4): g0.append(Gap(qk_mfma(0, kt, qt, ks, zero=True)))
    for n, r in enumerate(k_reads(KS(0), 2)): g0[16 + 2 * n].mem.append(r)
    for n, r in enumerate(k_reads(KS(0), 3)): g0[32 + 2 * n].mem.append(r)
    g0[31].sh.append(WaitFor(lg=("KF0",))); g0[47].sh.append(WaitFor(lg=("KF1",)))
    place_mem(g0, kv_dma("K", KS(3), None, 3 * 16384) + kv_dma("V", VS(2), None, 2 * 16384), 0, 40)
    full = ffn_epi(18); per = len(full) // 4
    npre = 24
    if 'finea' in ABL: stamp(p, 0)
    emit_ops(p, full[:npre])
    left = fill_valu(g0, 0, full[npre:2 * per])
    left += ffn_epi(18, pk=True, mts=(2, 3))
    p.items.append(WaitFor(lg=("KF0", "KF1")))
    sal = [f"s_mov_b32 s{S_OUT+2}, {XN_BYTES}",
           f"s_and_b32 s{S_T0}, s{S_J}, 7", f"s_lshl_b32 s{S_T1}, s{S_RB}, 3", f"s_add_u32 s{S_T0}, s{S_T0}, s{S_T1}",
           f"s_lshl_b32 s{S_T0}, s{S_T0}, 2", f"s_add_u32 s{S_T0}, s{S_T0}, s{S_WAVE}", f"s_lshr_b32 s{S_KOFF}, s{S_J}, 3",
           f"s_sub_u32 s{S_T1}, s{S_T0}, 120", f"s_cmp_lt_u32 s{S_T0}, 120",
           f"s_cselect_b32 s{S_RE}, s{S_T0}, s{S_T1}", f"s_movk_i32 s{S_RNW}, 136", f"s_cselect_b32 s{S_RNW}, 120, s{S_RNW}",
           f"s_cselect_b32 s{S_WG}, s64, s66", f"s_cselect_b32 s{S_WG+1}, s65, s67",
           f"s_mov_b32 s{S_WG+2}, {1152*1152}", f"s_cselect_b32 s{S_WG+2}, {1024*1152}, s{S_WG+2}", f"s_mov_b32 s{S_WU+2}, s{S_WG+2}",
           f"s_mov_b32 s{S_T0}, {WPD_OFF}", f"s_cselect_b32 s{S_T0}, {WPO_OFF}, s{S_T0}",
           f"s_mul_i32 s{S_T1}, s{S_KOFF}, s{S_WG+2}",
           f"s_add_u32 s{S_WG}, s{S_WG}, s{S_T1}", f"s_addc_u32 s{S_WG+1}, s{S_WG+1}, 0",
           f"s_add_u32 s{S_T0}, s{S_T0}, s{S_T1}", f"s_add_u32 s{S_WU}, s70, s{S_T0}", f"s_addc_u32 s{S_WU+1}, s71, 0",
           f"s_sub_u32 s{S_RE}, s{S_RE}, s{S_RNW}",
           f"s_mov_b32 s{S_KOFF}, {4*16384}", f"s_mov_b32 s{S_VOFF}, {3*16384}", f"s_mov_b32 s{S_CNT}, 7",
           f"s_lshl_b32 s{S_BQ}, s{S_WAVE}, 11", f"s_add_u32 s{S_BQ}, s{S_BQ}, {128*1024}"]
    fr_ = [g for g in g0[41:] if not g.sh]
    k_ = sal.index(f"s_cmp_lt_u32 s{S_T0}, 120")
    for t, g in zip(sal[:k_], fr_): g.sh.append(t)
    emit_gaps(p, g0)
    emit_ops(p, left)
    for t in sal[k_:]: p(t)
    for q in range(4): p(f"v_mov_b32 v{V_LS+4+q}, 0")
    for q in range(4): p(f"v_mov_b32 v{V_ONE+q}, 0x3f803f80")
    p.items.append(WaitFor(vm=(f"K{KS(1)}", f"V{VS(0)}"))); p("s_barrier")
    for t, tag in k_reads(KS(1), 0) + k_reads(KS(1), 1): p(t, tag)
    p(f"v_lshrrev_b32 v{V_PT+1}, 4, v{V_L16}")
    p(f"v_lshrrev_b32 v{V_RPG}, 2, v{V_PT+1}"); p(f"v_and_b32 v{V_PT}, 3, v{V_PT+1}")
    p(f"v_lshlrev_b32 v{V_RPL}, 6, v{V_RPG}"); p(f"v_lshl_add_u32 v{V_RPL}, v{V_PT}, 3, v{V_RPL}"); p(f"v_add_u32 v{V_RPL}, s{S_BQ}, v{V_RPL}")
    p(f"v_mul_u32_u24 v{V_RPG}, 1152, v{V_RPG}"); p(f"v_lshl_add_u32 v{V_RPG}, v{V_PT}, 4, v{V_RPG}")
    p(f"s_and_b32 s{S_T1}, s{S_J}, 24"); p(f"s_lshl_b32 s{S_T1}, s{S_T1}, 6"); p(f"v_and_b32 v{V_PT}, 7, v{V_PT+1}")
    p(f"v_lshrrev_b32 v{V_PA}, 3, v{V_PT+1}"); p(f"v_lshlrev_b32 v{V_PA}, 11, v{V_PA}"); p(f"v_lshl_add_u32 v{V_PA}, v{V_PT}, 3, v{V_PA}")
    p(f"v_add_u32 v{V_PA}, s{S_T1}, v{V_PA}")
    p(f"v_mov_b32 v{V_SV+1}, s{S_EP2}")
    zm = [f"v_mfma_f32_32x32x16_bf16 a[{A_O+16*i}:{A_O+16*i+15}], v[{V_LS+4}:{V_LS+7}], v[{V_LS+4}:{V_LS+7}], 0" for i in range(8)]
    for qt in range(4):
        p(zm[qt]); rowmax(p, 0, qt, V_R + qt)
    for n, t in enumerate(xlane_ops("v_max_f32", [V_R + q for q in range(4)], V_R + 4)):
        if n % 8 == 0: p(zm[4 + n // 8])
        p(t)
    p(zm[7])
    for qt in range(4):
        for r in range(4): p(f"v_sub_f32 v{V_NM+4*qt+r}, {f2u(-BIAS) if BIAS else 0}, v{V_R+qt}")
    for kt in range(4):
        for qt in range(4):
            for r in (0, 2):
                s_ = Sreg(0, kt, qt) + r
                p(f"v_pk_add_f32 v[{s_}:{s_+1}], v[{s_}:{s_+1}], v[{V_NM+4*qt}:{V_NM+4*qt+1}]")
    for tau in range(36):
        p(op_exp(0, tau))
        if tau % 4 == 0 and tau: p(op_add(0, tau - 1)); p(op_cvt(0, tau - 1))
        if tau % 4 == 2: p(op_cvt(0, tau - 1))
        if tau % 4 == 3: p(op_add(0, tau - 1))
    p.items.append(WaitFor(lg=("KF0",)))
    p(op_add(0, 35))
    if 'finepro' not in ABL: stamp(p, 5); stamp_rt(p, 15)

    rare_sites = []
    class Tile: pass
    def used(g): return len(g.mem) + sum(slots_of(v) for v in g.valu)
    def att_tile(it, last_block=False, first_mfmas=None):
        par = it % 2
        final = last_block and it == 3
        T = Tile(); G = []; Q = []; PV = []; LG = []
        mf = first_mfmas or [qk_mfma(1 - par, kt, qt, ks) for kt in range(4) for qt in range(4) for ks in range(4)]
        for i, m in enumerate(mf):
            g = Gap(m); G.append(g); Q.append(g)
            if i in (19, 23, 51, 55):
                g = Gap(l_mfma(par, 0 if i < 32 else 2, 0 if i in (19, 51) else 1)); G.append(g); LG.append(g)
        for dt in range(8):
            for qt in range(4):
                for kb in range(2):
                    g = Gap(pv_mfma(par, dt, qt, kb)); G.append(g); PV.append(g)
        T.G, T.Q, T.PV, T.LG = G, Q, PV, LG
        idx = {id(g): i for i, g in enumerate(G)}
        T.idx = lambda g: idx[id(g)]
        br = Q[-1]
        for b in range(64):
            E, N = (Q[2*b], Q[2*b+1]) if b < 32 else (PV[2*b-64], PV[2*b-63])
            sp, tau = (par, 36 + b) if b < 28 else (1 - par, b - 28)
            if tau % 4 == 0:
                if not (final and b > 28): N.valu.append(op_cvt(sp, tau - 1) if b != 28 else op_cvt(par, 63))
            if final and b >= 28: continue
            E.valu.append(op_exp(sp, tau))
            if tau % 4 == 1: N.valu.append(op_cvt(sp, tau))
            if tau % 4 >= 2: (br if b in (30, 31) else N).valu.append(op_add(sp, tau))
        L = V_LS + par * 4
        site = f"{'z' if last_block else 'l'}{it}"; rare_sites.append((site, "Z" if final else str(par)))
        Q[29].valu.append(op_ladd(par, 0))
        Q[57].valu.append(f"v_max3_f32 v{V_CK}, v{L}, v{L+1}, v{L+3}")
        Q[59].valu.append(op_ladd(par, 2))
        Q[61].valu += [f"v_max_f32 v{V_CK}, v{V_CK}, v{L+2}", f"v_cmp_lt_f32 vcc, s{S_THR}, v{V_CK}"]
        br.sh += [f"s_cbranch_vccnz L_rare_stub{site}", Label(f"L_rare_ret{site}")]
        PV[1].sh.append("s_barrier"); T.wv = []
        T.reserved = {id(PV[0]), id(PV[1])}
        if 'barE' in ABL and not final:
            PV[3].valu = PV[1].valu + PV[3].valu; PV[1].valu = []; T.reserved.add(id(PV[3]))
        kslot1, kslot2, vslot = KS(it + 1), KS(it + 2), VS(it)
        if not final:
            Q[15].sh.append(WaitFor(lg=("KF1",))); Q[31].sh.append(WaitFor(lg=("KF0",))); Q[47].sh.append(WaitFor(lg=("KF1",)))
        Q[-2].sh.append(WaitFor(lg=("VF0", "VF1", "VF2", "VF3")))
        for dt in range(4, 8): PV[8 * dt - 1].sh.append(WaitFor(lg=(f"VF{dt%4}",)))
        T.cur = 0; T.lastdma = -1
        def put(op, lo=None, sal=(), cap=2):
            g = max(T.cur, T.idx(lo) if lo is not None else 0)
            while True:
                assert g < len(G), op
                ok = not G[g].mem and used(G[g]) < cap and id(G[g]) not in T.reserved
                if ok and sal:
                    fr = [h for h in range(max(T.lastdma + (0 if len(sal) == 2 else 1), g - 6, 0), g) if not G[h].sh and id(G[h]) not in T.reserved]
                    ok = len(fr) >= len(sal)
                if ok: break
                g += 1
            if sal:
                for h, s_ in zip(fr[-len(sal):], sal): G[h].sh.append(s_)
                T.lastdma = g
            G[g].mem.append(op); T.cur = g + 1
            return g
        T.put = put
        def solo(g, sal, op, nxt=None):
            gi = T.idx(g)
            assert not g.mem
            if g.valu:
                assert not nxt.mem; nxt.valu = g.valu + nxt.valu; g.valu = []; T.reserved.add(id(nxt))
            fr = [h for h in range(gi - 3, gi) if not G[h].sh]
            assert len(fr) >= len(sal), (gi, sal)
            for h, s_ in zip(fr[-len(sal):], sal): G[h].sh.append(s_)
            g.mem.append(op); T.lastdma = max(T.lastdma, gi)
        T.solo = solo
        T.endsal = []
        if not final:
            if not (last_block and it >= 2):
                sal_, op = kv_dma("V", VS(it + 2), S_VOFF, -16384)[3]; solo(LG[0], sal_, op)
            if not last_block:
                dk = kv_dma("K", KS(it), S_KOFF, 0)
                solo(LG[1], *dk[0]); solo(Q[41], *dk[1], nxt=Q[43]); solo(LG[2], *dk[2]); solo(LG[3], *dk[3])
                T.endsal.append(f"s_add_u32 s{S_KOFF}, s{S_KOFF}, 16384")
            for r in v_reads(vslot, 0) + v_reads(vslot, 1): put(r)
            for r in k_reads(kslot1, 2): put(r, Q[16])
            v23 = v_reads(vslot, 2) + v_reads(vslot, 3)
            for r in v23[:3]: put(r)
            for r in k_reads(kslot1, 3): put(r, Q[32])
            for r in v23[3:]: put(r)
            assert T.cur <= T.idx(Q[55]), (it, T.cur)
        if not (last_block and it >= 1):
            dv = kv_dma("V", VS(it + 3), S_VOFF, 0)
            solo(PV[5], *dv[0], nxt=PV[7]); solo(PV[57], *dv[1], nxt=PV[59]); solo(PV[61], *dv[2], nxt=PV[63])
        T.cur = T.idx(PV[2])
        T.pv_v = [(r, PV[8 * (dt - 4) + 8]) for dt in range(4, 8) for r in v_reads(vslot, dt)]
        if not (last_block and it >= 2):
            for r, lo in T.pv_v: put(r, lo)
            for r in k_reads(kslot2, 0) + k_reads(kslot2, 1): put(r)
            T.wv.append(f"K{kslot2}")
            T.endsal += [WaitFor(lg=("KF0",)), f"s_add_u32 s{S_VOFF}, s{S_VOFF}, 16384"]
        if not last_block and it == 0:
            sl = [f"s_add_u32 s{S_RE}, s{S_RE}, s{S_RNW}", f"s_mul_i32 s{S_RS}, s{S_RE}, 3641", f"s_lshr_b32 s{S_RS}, s{S_RS}, 16",
                  f"s_mul_i32 s{S_RS}, s{S_RS}, {36864-1152}", f"s_lshl_b32 s{S_RD}, s{S_RE}, 6", f"s_add_u32 s{S_RS}, s{S_RS}, s{S_RD}",
                  f"s_lshl_b32 s{S_RD}, s{S_RE}, 11"]
            for n, s_ in enumerate(sl): Q[2 * n].sh.append(s_)
            Q[58].sh.append(f"s_mov_b32 m0, s{S_BQ}")
            Q[59].mem.append((f"buffer_load_dwordx4 v{V_RPG}, s[{S_WG}:{S_WG+3}], s{S_RS} offen lds", "RD"))
            Q[60].sh.append(f"s_add_u32 s{S_RS}, s{S_RS}, {16*1152-1024}")
            PV[3].mem.append((f"buffer_load_dwordx4 v{V_RPG}, s[{S_WG}:{S_WG+3}], s{S_RS} offen offset:1024 lds", "RD"))
        if not last_block and it == 2:
            PV[3].mem.append((f"ds_read_b64_tr_b16 v[{V_RPS}:{V_RPS+1}], v{V_RPL} offset:0", "RL"))
            PV[7].mem.append((f"ds_read_b64_tr_b16 v[{V_RPS+2}:{V_RPS+3}], v{V_RPL} offset:1024", "RL"))
        if not last_block and it == 3:
            Q[55].mem.append((f"ds_read_b64_tr_b16 v[{V_RPS+4}:{V_RPS+5}], v{V_RPL} offset:32", "RL"))
            Q[57].mem.append((f"ds_read_b64_tr_b16 v[{V_RPS+6}:{V_RPS+7}], v{V_RPL} offset:1056", "RL"))
        if not final: T.wv.append(f"V{VS(it+1)}")
        if not last_block:
            if it == 2: T.wv.append("RD")
            if it == 1:
                T.wv.append("RST")
                PV[10].sh.append(f"s_cmp_le_u32 s{S_CNT}, 2"); PV[11].sh.append(f"s_cselect_b32 s{S_SIG}, 2, 1")
                PV[12].sh.append(f"s_add_u32 s{S_SIG}, s{S_SIG}, s{S_XCC}"); PV[13].valu.append(f"v_mov_b32 v{V_SV}, s{S_SIG}")
                PV[16].sh.append(f"s_cmp_lg_u32 s{S_MIX}, 0"); PV[17].sh += ["s_cbranch_scc1 L_stub_w2", Label("L_ret_w2")]
                PV[20].mem.append((sig_store, None))
            if it == 3:
                PV[3].mem.append((f"buffer_store_dwordx4 v[{V_RPS}:{V_RPS+3}], v{V_L16}, s[{S_WU}:{S_WU+3}], s{S_RD} offen sc1", "RST"))
                PV[12].sh.append(WaitFor(lg=("RL",)))
                PV[14].mem.append((f"buffer_store_dwordx4 v[{V_RPS+4}:{V_RPS+7}], v{V_L16}, s[{S_WU}:{S_WU+3}], s{S_RD} offen offset:1024 sc1", "RST"))
        return T
    def finish_tile(T):
        if T.wv: T.PV[0].sh.append(WaitFor(vm=tuple(T.wv)))
        for s_ in T.endsal:
            if isinstance(s_, WaitFor):
                g = [g for g in T.PV[57:] if not g.sh][0]; g.sh.append(s_)
            else:
                c = [g for g in T.G[T.lastdma:] if not g.sh]
                (c[0].sh if c else T.G[-1].post).append(s_)
        ov = sum(max(0, used(g) - 2) + max(0, len([x for x in g.sh if not isinstance(x, Label)]) - 1) for g in T.G)
        print("tile overflow slots:", ov, "gaps", len(T.G))

    body = Prog(); p = body
    p.label("L_att_loop", 6)
    for it in range(4):
        T = att_tile(it)
        if it == 3: T.PV[40].sh.append(f"s_sub_u32 s{S_CNT}, s{S_CNT}, 1")
        finish_tile(T)
        if it == 3: T.G[-1].post += [f"s_cmp_lg_u32 s{S_CNT}, 0", "s_cbranch_scc1 L_att_loop"]
        for g in T.G:
            if 'Lnodma' in ABL: g.mem = [m for m in g.mem if not m[0].startswith("buffer")]
            if 'Lnobar' in ABL: g.sh = [x for x in g.sh if x != "s_barrier"]
            if 'Lnolds' in ABL: g.mem = [m for m in g.mem if not m[0].startswith("ds_")]
            if 'Lnotr' in ABL: g.mem = [m for m in g.mem if not m[0].startswith("ds_read_b64")]
            if 'Lnobr' in ABL: g.sh = [x for x in g.sh if not (isinstance(x, str) and x.startswith("s_cbranch"))]
            if 'Lnovalu' in ABL: g.valu = [x for x in g.valu if x.startswith(("v_exp", "v_add_u32"))]
            if 'Lnoexp' in ABL: g.valu = [x for x in g.valu if not x.startswith("v_exp")]
            if 'Lnowait' in ABL: g.sh = [x for x in g.sh if not (isinstance(x, WaitFor) and x.lg)]
        emit_gaps(p, T.G)

    tail = Prog(); p = tail
    p(f"s_getpc_b64 s[{S_WG}:{S_WG+1}]")
    p.label("L_pc1")
    p(f"s_and_b32 s{S_WG+1}, s{S_WG+1}, 0xffff"); p(f"s_mov_b32 s{S_WG+2}, L_code_end-L_pc1")
    p(f"s_lshr_b32 s{S_T0}, s2, 3"); p(f"s_lshl_b32 s{S_T0}, s{S_T0}, 2"); p(f"s_add_u32 s{S_T0}, s{S_T0}, s{S_WAVE}"); p(f"s_lshl_b32 s{S_T0}, s{S_T0}, 10")
    p(f"buffer_load_dwordx4 v[{V_RPS}:{V_RPS+3}], v{V_L16}, s[{S_WG}:{S_WG+3}], s{S_T0} offen", "CODE")
    p(f"v_lshrrev_b32 v{V_LANE}, 4, v{V_L16}")
    if 'finepro' not in ABL: stamp(p, 6)
    NP3 = 17
    Breg = lambda s, ks, mt: ((s % 3) * 4 + ks) * 8 + mt * 4
    def p3_w(s):
        off = (WPD_OFF + s * 4 * 36864) if s < 9 else (WPO_OFF + (s - 9) * 4 * 36864)
        base = S_PW if s < 9 else S_PW2
        ops = []
        for i in range(9):
            sal = []
            if i % 4 == 0:
                tm = tmp()
                m0 = f"s_add_u32 m0, s{S_W0B}, {i*1024}" if s == 0 else f"s_add_u32 m0, s{S_W9K}, {P3_SLOT[(s-1)%3] + i*1024}"
                sal = [f"s_add_u32 s{tm}, s{base}, {off + i*1024}", m0]
            ops.append((sal, (f"buffer_load_dwordx4 v{V_L16}, s[{S_WS}:{S_WS+3}], s{tm} offen offset:{(i%4)*1024}{LSC} lds", f"PW{s}")))
        return annotate(ops)
    def p3_b(s):
        off = (H_OFF + s * 524288) if s < 9 else (O_OFF + (s - 9) * 524288)
        base = S_PB0 if s < 9 else S_PB1
        ops = []
        for mt in range(2):
            for ks in range(4):
                r = Breg(s, ks, mt)
                ops.append(([f"s_add_u32 s{S_T2}, s{base}, {off + mt*4096}"] if ks == 0 else [],
                            (f"buffer_load_dwordx4 a[{r}:{r+3}], v{V_L16}, s[{S_WS}:{S_WS+3}], s{S_T2} offen offset:{ks*1024}{LSC}", f"PB{s}")))
        return annotate(ops)
    setup3 = [f"s_lshr_b32 s{S_KOFF}, s{S_J}, 3", f"s_and_b32 s{S_RE}, s{S_J}, 3", f"s_mul_i32 s{S_W9K}, s{S_WAVE}, 9216",
              f"s_mul_i32 s{S_PW2}, s{S_WAVE}, 36864", f"s_mul_i32 s{S_RNW}, s{S_RE}, 9216", f"s_add_u32 s{S_PW2}, s{S_PW2}, s{S_RNW}",
              f"s_mul_i32 s{S_PW}, s{S_KOFF}, {1152*1152}", f"s_add_u32 s{S_PW}, s{S_PW}, s{S_PW2}",
              f"s_mul_i32 s{S_RNW}, s{S_KOFF}, {1024*1152}", f"s_add_u32 s{S_PW2}, s{S_PW2}, s{S_RNW}",
              f"s_lshl_b32 s{S_PST}, s{S_RB}, 3", f"s_and_b32 s{S_RNW}, s{S_J}, 7", f"s_add_u32 s{S_PST}, s{S_PST}, s{S_RNW}",
              f"s_lshr_b32 s{S_FX0}, s{S_PST}, 2",
              f"s_lshl_b32 s{S_PB1}, s{S_FX0}, 2", f"s_add_u32 s{S_PB1}, s{S_PB1}, s{S_WAVE}", f"s_lshl_b32 s{S_PB1}, s{S_PB1}, 13",
              f"s_mul_i32 s{S_PB0}, s{S_KOFF}, {9*524288}", f"s_add_u32 s{S_PB0}, s{S_PB0}, s{S_PB1}",
              f"s_lshl_b32 s{S_RNW}, s{S_KOFF}, 22", f"s_add_u32 s{S_PB1}, s{S_PB1}, s{S_RNW}",
              f"s_mul_i32 s{S_PST}, s{S_PST}, {16*9216}",
              f"s_mul_i32 s{S_FL}, s{S_KOFF}, 9216", f"s_add_u32 s{S_FL}, s{S_FL}, s{S_PST}",
              f"s_mul_i32 s{S_CNT}, s{S_KOFF}, {4*9216}", f"s_add_u32 s{S_PST}, s{S_PST}, s{S_CNT}", f"s_add_u32 s{S_PST}, s{S_PST}, s{S_W9K}",
              f"s_lshl_b32 s{S_FX0}, s{S_FX0}, 2", f"s_add_u32 s{S_FX0}, s{S_FX0}, s{S_KOFF}", f"s_mul_i32 s{S_FX0}, s{S_FX0}, {32*1152}",
              f"s_mul_i32 s{S_CNT}, s{S_RE}, 288", f"s_add_u32 s{S_FX0}, s{S_FX0}, s{S_CNT}", f"s_min_u32 s{S_FX1}, s{S_WAVE}, 1", f"s_lshl_b32 s{S_FX1}, s{S_FX1}, 30",
              f"s_add_u32 s{S_CNT}, s{S_KOFF}, 1", f"s_and_b32 s{S_CNT}, s{S_CNT}, 3", f"s_mul_i32 s{S_FR}, s{S_CNT}, {4*9216}", f"s_add_u32 s{S_FR}, s{S_FR}, s{S_FL}",
              f"s_add_u32 s{S_CNT}, s{S_KOFF}, 2", f"s_and_b32 s{S_CNT}, s{S_CNT}, 3", f"s_mul_i32 s{S_FR+1}, s{S_CNT}, {4*9216}", f"s_add_u32 s{S_FR+1}, s{S_FR+1}, s{S_FL}",
              f"s_add_u32 s{S_CNT}, s{S_KOFF}, 3", f"s_and_b32 s{S_CNT}, s{S_CNT}, 3", f"s_mul_i32 s{S_FR+2}, s{S_CNT}, {4*9216}", f"s_add_u32 s{S_FR+2}, s{S_FR+2}, s{S_FL}",
              f"s_add_u32 s{S_CNT}, s{S_WAVE}, 1", f"s_lshr_b32 s{S_CNT}, s{S_CNT}, 2", f"s_mul_i32 s{S_CNT}, s{S_CNT}, {80*1024+27648}",
              f"s_add_u32 s{S_W0B}, s{S_W9K}, {128*1024}", f"s_sub_u32 s{S_W0B}, s{S_W0B}, s{S_CNT}"]
    pg = []
    for s in range(NP3):
        if s in (8, 16): order = [(kp, nt) for nt in range(9) for kp in range(2)]
        else: order = [(kp, nt) for kp in range(2) for nt in range(9)]
        for kp, nt in order: pg.append((s, kp, nt))
    def p3_reads(gi):
        s, kp, nt = pg[gi]; base = P3_AR[gi % 4]
        out = []
        for q in range(2):
            ks = 2 * kp + q
            if s == 0: va, o = (V_PWA[2], 12 * 1024 + (ks * 9 + nt) * 1024) if ks < 3 else (V_PWA[0], 48 * 1024 + nt * 1024)
            else: va, o = V_PWA[(s - 1) % 3], (ks * 9 + nt) * 1024
            out.append((f"ds_read_b128 v[{base+4*q}:{base+4*q+3}], v{va} offset:{o}", f"PA{gi%4}"))
        return out
    pm = []
    for gi, (s, kp, nt) in enumerate(pg):
        for mt in range(2):
            for q in range(2):
                a = (AD if s < 9 else AS)(nt, mt); b = Breg(s, 2 * kp + q, mt); ar = P3_AR[gi % 4] + 4 * q
                C = "0" if (s in (0, 9) and kp == 0 and q == 0) else f"v[{a}:{a+3}]"
                pm.append(f"v_mfma_f32_16x16x32_bf16 v[{a}:{a+3}], v[{ar}:{ar+3}], a[{b}:{b+3}], {C}")
    TL = [att_tile(it, last_block=True, first_mfmas=(pm[:72] if it == 3 else None)) for it in range(4)]
    T28, T29, T30, T31 = TL
    T28.cur = T28.idx(T28.Q[50]); T28.put(poll_load("PL"))
    cv, cs = poll_check(2, "p2")
    T28.PV[40].sh.append(WaitFor(vm=("PL",))); T28.PV[41].sh += cs[:1]; T28.PV[42].post += cv; T28.PV[44].sh += cs[1:]
    free = [g for g in T28.G[:T28.idx(T28.PV[54])] if not g.sh and id(g) not in T28.reserved]
    assert len(free) >= len(setup3), len(free)
    for s_, g in zip(setup3, free): g.sh.append(s_)
    L2T = os.environ.get("L2T", "")
    if L2T:
        V_TH, V_TD = 3, V_SV
        p(f"v_min_u32 v{V_TH}, 15, v{V_LANE}"); p(f"v_lshlrev_b32 v{V_TH}, 7, v{V_TH}")
        for t in [f"s_and_b32 s13, s{S_J}, 7", f"s_lshl_b32 s13, s13, 2", f"s_add_u32 s13, s13, s{S_WAVE}", f"s_lshl_b32 s13, s13, 11",
                  f"s_lshl_b32 s14, s{S_RB}, 16", f"s_add_u32 s13, s13, s14", f"s_lshr_b32 s14, s{S_J}, 3", f"s_mul_i32 s15, s14, {9*524288}", f"s_add_u32 s13, s13, s15",
                  f"s_lshr_b32 s15, s2, 3", f"s_lshl_b32 s15, s15, 2", f"s_add_u32 s15, s15, s{S_WAVE}", f"s_lshl_b32 s15, s15, 11",
                  f"s_mul_i32 s14, s14, {1152*1152}", f"s_add_u32 s14, s14, s15"]: p(t)
        tl = []
        for x in L2T.split(","):
            if x[0] == "h": tl.append((13, H_OFF + int(x[1:]) * 524288))
            else: tl.append((14, WPD_OFF + int(x[1:]) * 262144))
        slots_ = [(T, g) for T in (T28, T29, T30) for g in (T.Q[8], T.Q[40], T.PV[10], T.PV[42])]
        for (T, g0_), (base, off) in zip(slots_, tl):
            T.cur = 0; ld_ = T.lastdma; T.lastdma = T.idx(g0_) - 4
            T.put((f"buffer_load_dword v{V_TD}, v{V_TH}, s[{S_WS}:{S_WS+3}], s77 offen sc1", "TCH"), g0_, sal=[f"s_add_u32 s77, s{base}, {off}"], cap=3)
            T.lastdma = ld_
    for n in range(4): T28.PV[57 + 2 * n].valu.append(f"v_mov_b32 v{V_RPS+4+n}, -1")
    T29.cur = 2; ld_ = T29.lastdma; T29.lastdma = 0
    for nt in range(9):
        T29.put((f"buffer_store_dwordx4 v[{V_RPS+4}:{V_RPS+7}], v{V_L16}, s[{S_WS}:{S_WS+3}], s{S_SIG} offen offset:{(nt%3)*1024} sc1", "DST"), T29.Q[2 + 5 * nt],
                sal=([f"s_add_u32 s{S_SIG}, s{S_PST}, {PART_OFF + PSTRIDE + nt*1024}"] if nt % 3 == 0 else ()), cap=3)
        T29.lastdma = T29.cur - 1
    T29.lastdma = max(ld_, T29.lastdma)
    T29.cur = T29.idx(T29.Q[50]); T29.lastdma = max(T29.lastdma, T29.idx(T29.Q[50]))
    for sal_, op in p3_w(0): T29.put(op, sal=sal_); T29.lastdma = T29.cur - 1
    T30.wv.append("PW0")
    mix = p3_b(0) + p3_w(1)
    T30.Q[49].valu.append(f"v_add_u32 v{V_PWA[1]}, {P3_SLOT[1]}, v{V_L16}"); T30.Q[51].valu.append(f"v_add_u32 v{V_PWA[2]}, {P3_SLOT[2]}, v{V_L16}")
    T30.cur = T30.idx(T30.PV[2])
    for r, lo in T30.pv_v: T30.put(r, lo)
    T30.cur = T30.idx(T30.PV[52])
    for r in p3_reads(0) + p3_reads(1) + p3_reads(2): T30.put(r)
    T30.cur = T30.idx(T30.PV[2]); T30.lastdma = T30.cur
    for n, (sal_, op) in enumerate(mix):
        T30.put(op, T30.PV[2 + 3 * n], sal=sal_, cap=3); T30.lastdma = T30.cur - 1
    T30.G[-1].post.append(WaitFor(lg=("PA0",), vm=("PB0",)))
    T31.wv.append("PW1")
    Q = T31.Q
    for gi in range(1, 18): Q[4 * gi - 1].sh.insert(0, WaitFor(lg=(f"PA{gi%4}",)))
    for gi in range(3, 18):
        for n, r in enumerate(p3_reads(gi)): Q[4 * (gi - 3) + 1 + 2 * n].mem.append(r)
    T31.cur = 0
    vr = [r for dt in range(4) for r in v_reads(VS(3), dt)]
    for n, r in enumerate(vr): T31.put(r, Q[4 * n], cap=3)
    T31.cur = 0; T31.lastdma = 0
    for n, (sal_, op) in enumerate(p3_b(1) + p3_b(2)):
        T31.put(op, Q[4 * n + 2], sal=sal_, cap=3); T31.lastdma = T31.cur - 1
    T31.cur = T31.idx(T31.PV[2])
    for r, lo in T31.pv_v: T31.put(r, lo); T31.cur += 1
    T31.cur = T31.idx(T31.PV[50])
    for r in p3_reads(18) + p3_reads(19) + p3_reads(20): T31.put(r); T31.cur += 1
    T31.cur = T31.idx(T31.PV[2]); T31.lastdma = T31.cur
    EARLY3 = os.environ.get("EARLY3", "")
    for sal_, op in p3_w(2) + (p3_w(3) if "w" in EARLY3 else []) + (p3_b(3) if "b" in EARLY3 else []):
        T31.put(op, sal=sal_); T31.lastdma = T31.cur - 1
    T31.PV[63].sh.append(WaitFor(lg=(f"PA{18%4}",), vm=("PB1",)))
    P = [None] * 72 + [Gap(m) for m in pm[72:]]
    for gi in range(21, len(pg)):
        i = gi % 18
        rd = p3_reads(gi)
        if i == 0: g0_ = 4 * (gi - 2); pos = (g0_, g0_ + 1)
        elif i == 1: g0_ = 4 * (gi - 3); pos = (g0_ + 2, g0_ + 3)
        else: g0_ = 4 * (gi - 3); pos = (g0_, g0_ + 2)
        for g_, r in zip(pos, rd): P[g_].mem.append(r)
    barw = {}
    for gi in range(19, len(pg)):
        s = pg[gi][0]; g = P[4 * gi - 1]
        if gi % 18 == 16 and s + 1 < NP3:
            barw[s] = WaitFor(vm=[f"PW{s+1}", f"PB{s+1}"], lg0=True)
            P[4 * gi - 2].sh.append(barw[s]); g.sh.append("s_barrier")
        else: g.sh.append(WaitFor(lg=(f"PA{gi%4}",)))
    def after_barrier(s): return 72 * s + 64
    OSIG = int(os.environ.get("OSIG", "4")); DSIG = int(os.environ.get("DSIG", "13")); OCAP = int(os.environ.get("OCAP", "3"))
    barw[OSIG].vm = tuple(barw[OSIG].vm) + ("OST",)
    P[after_barrier(OSIG) - 6].valu.append(sig_val(3)); P[after_barrier(OSIG) + 5].mem.append((sig_store, None))
    P[after_barrier(OSIG) + 1].sh.append(f"s_cmp_lg_u32 s{S_MIX}, 0"); P[after_barrier(OSIG) + 2].sh += ["s_cbranch_scc1 L_stub_w3", Label("L_ret_w3")]
    barw[DSIG].vm = tuple(barw[DSIG].vm) + ("DST",)
    P[after_barrier(DSIG) - 6].valu.append(sig_val(4)); P[after_barrier(DSIG) + 5].mem.append((sig_store, None))
    P[72*5+1].sh.append(f"s_lshl_b32 s{S_CNT}, s{S_RB}, 11"); P[72*5+2].sh.append(f"s_lshl_b32 s{S_RE}, s{S_KOFF}, 9"); P[72*5+4].sh.append(f"s_add_u32 s{S_RE}, s{S_RE}, s{S_CNT}")
    P[72*5+5].valu += [f"v_and_b32 v{V_PA}, 7, v{V_LANE}", f"v_lshl_add_u32 v{V_PA}, v{V_PA}, 3, s{S_RE}"]
    P[72*6+69].mem.append(poll_load("PL"))
    P[72*7+28].sh.append(WaitFor(vm=("PL",)))
    cv, cs = poll_check(3, "p3")
    P[72*7+29].valu += cv; P[72*7+29].sh += cs[:1]; P[72*7+30].post += cs[1:]
    PQ = DSIG + 1
    P[72*PQ+49].mem.append(poll_load("PL"))
    P[72*(PQ+1)+12].sh.append(WaitFor(vm=("PL",)))
    cv, cs = poll_check(4, "p4")
    P[72*(PQ+1)+13].valu += cv; P[72*(PQ+1)+13].sh += cs[:1]; P[72*(PQ+1)+13].post += cs[1:]
    HINT = int(os.environ.get("HINT", "1"))
    P[72*16 + HINT - 4].valu.append(sig_val(5)); P[72*16 + HINT].mem.append((sig_store, None))
    FD, GG, FXR, TT = 160, 208, 56, 16
    def fin_loads(kind, dst, tag):
        ops = []
        for m in range(3):
            for sp in range(3):
                tm = tmp()
                ops.append(([f"s_add_u32 s{tm}, s{S_FR+sp}, {PART_OFF + kind*PSTRIDE}"],
                            (f"buffer_load_dwordx4 v[{dst+(m*4+sp)*4}:{dst+(m*4+sp)*4+3}], v{V_FL+m}, s[{S_WS}:{S_WS+3}], s{tm} offen sc1", tag)))
        return annotate(ops)
    own_reads = lambda kind, dst, tag: [(f"ds_read_b128 v[{dst+(m*4+3)*4}:{dst+(m*4+3)*4+3}], v{V_OWR} offset:{kind*9216 + m*4096}", tag) for m in range(3)]
    xq = []
    for m in range(3):
        r = V_XO + m
        xq += [f"v_lshl_add_u32 v{r}, s{S_WAVE}, 6, v{V_LANE}"] + ([f"v_add_u32 v{r}, {256*m}, v{r}"] if m else [])
        xq += [f"v_mul_u32_u24 v71, 3641, v{r}", f"v_lshrrev_b32 v71, 16, v71", f"v_mul_u32_u24 v71, {1152-288}, v71", f"v_lshl_add_u32 v{r}, v{r}, 4, v71"]
        if m == 2: xq += [f"v_add_u32 v{r}, s{S_FX1}, v{r}"]
        xq.append(("MEM", [], (f"buffer_load_dwordx4 v[{FXR+4*m}:{FXR+4*m+3}], v{r}, s[{S_XI}:{S_XI+3}], s{S_FX0} offen", "FX")))
    for s in range(1, NP3):
        ops = []
        if s + 2 < NP3:
            w, b = p3_w(s + 2), p3_b(s + 2)
            if s == 7:
                place_mem(P, w, 72 * s, 72 * s + 28); place_mem(P, b, 72 * s + 30, 72 * s + 63); continue
            if s == 1:
                if "w" in EARLY3: w = []
                if "b" in EARLY3: b = []
            ops = w[:4] + b[:4] + w[4:8] + b[4:] + w[8:]
        if s == PQ + 1:
            assert s == 15
            place_mem(P, fin_loads(0, FD, "FD") + [([], r) for r in own_reads(0, FD, "FO")], 72 * s + 14, 72 * s + 63); continue
        if ops: place_mem(P, ops, 72 * s - int(os.environ.get('P3E', '0')), 72 * s + int(os.environ.get('P3W', '63')))
    allg = T31.PV + P[72:]
    OT = 96
    def o_item(n, qt, s):
        T = OT + (n % 4) * 8; D = OT + 32 + (n % 4) * 4
        q = []
        for h in range(2):
            o = A_O + ((2 * s + h) * 4 + qt) * 4
            for r in range(4): q.append(f"v_accvgpr_read_b32 v{T+4*h+r}, a{o+r}")
        for i in range(8): q.append(f"v_mul_f32 v{T+i}, v{T+i}, v{V_LS+4+qt}")
        for i in range(4): q.append(f"v_cvt_pk_bf16_f32 v{D+i}, v{T+2*i}, v{T+2*i+1}")
        q.append(("MEM", [f"s_add_u32 s{S_SIG}, s{S_OBASE}, {O_OFF + qt*4096}"], (f"buffer_store_dwordx4 v[{D}:{D+3}], v{V_L16}, s[{S_WS}:{S_WS+3}], s{S_SIG} offen offset:{s*1024}{SCO}", "OST")))
        return q
    pre = xlane_ops("v_add_f32", [V_LS + 5, V_LS + 7], OT + 48) + [f"v_rcp_f32 v{V_LS+4+qt}, v{V_LS+4+qt}" for qt in range(4)]
    n = 0; lim = 64 + after_barrier(OSIG - 1) - 72 + 30
    pre += xq
    q = list(pre); mins = [2] * len(pre)
    for s in range(4):
        for qt in range(4):
            it_ = o_item(n, qt, s); n += 1
            q += it_; mins += [16 * (s + 1) + 4] * len(it_)
    left = fill_valu(allg[:lim], 2, q, mins=mins, cap=OCAP); assert not left, len(left)
    fs = [f"v_add_u32 v{V_FL}, s{S_W1K}, v{V_L16}", f"v_add_u32 v{V_FL+1}, 4096, v{V_FL}", f"v_add_u32 v{V_FL+2}, s{S_VOFF}, v{V_FL}",
          f"v_and_b32 v{V_YW}, 15, v{V_LANE}", f"v_mul_u32_u24 v{V_YW}, 288, v{V_YW}", f"v_lshrrev_b32 v{V_YW+1}, 4, v{V_LANE}",
          f"v_lshl_add_u32 v{V_YW}, v{V_YW+1}, 3, v{V_YW}", f"v_lshl_add_u32 v{V_YW}, s{S_WAVE}, 5, v{V_YW}",
          f"v_lshrrev_b32 v{V_YW+1}, 16, s{S_FX1}", f"v_add_u32 v{V_YW+1}, v{V_YW+1}, v{V_YW}"]
    sal6 = [f"s_lshl_b32 s{S_FL}, s{S_RB}, 3", f"s_and_b32 s{S_T2+32}, s{S_J}, 7", f"s_add_u32 s{S_FL}, s{S_FL}, s{S_T2+32}", f"s_lshl_b32 s{S_FL}, s{S_FL}, 9",
            f"s_add_u32 s{S_FL}, s{S_FL}, {F5_OFF}",
            f"s_lshl_b32 s{S_W0B}, s{S_WAVE}, 7", f"s_add_u32 s{S_W0B}, s{S_W0B}, s{S_FL}", f"s_lshl_b32 s{S_W0B+1}, s{S_KOFF}, 3", f"s_add_u32 s{S_W0B}, s{S_W0B}, s{S_W0B+1}",
            f"s_lshl_b32 s{S_W0B+1}, s{S_KOFF}, 7", f"s_add_u32 s{S_FL}, s{S_FL}, s{S_W0B+1}",
            f"s_add_u32 s{S_W0B+1}, s{S_KOFF}, 1",
            [f"s_cmp_eq_u32 s{S_WAVE}, s{S_KOFF}", f"s_cselect_b32 s{S_W0B+2}, {1 << 30}, 0", f"s_cselect_b32 s{S_W0B+3}, 0, {18432}"],
            f"s_add_u32 s{S_PST}, s{S_PST}, s{S_W0B+2}", f"s_add_u32 s{S_W0B+3}, s{S_W0B+3}, {OWN_LDS}",
            [f"s_cmp_eq_u32 s{S_WAVE}, 0", f"s_cselect_b32 s{S_VOFF}, 8192, {1 << 30}"]]
    g_ = 72 * 6
    for x in sal6:
        while P[g_].sh: g_ += 1
        P[g_].sh += x if isinstance(x, list) else [x]
        g_ += 1
    assert g_ < 72 * 6 + 60
    fs += [f"v_add_u32 v{V_OWN}, s{S_W0B+3}, v{V_L16}", f"v_add_u32 v{V_OWR}, {OWN_LDS}, v{V_FL}"]
    left = fill_valu(P[:72 * 8], 72 * 6 + 60, fs); assert not left
    fs2 = [f"v_mov_b32 v{V_SA}, s{S_W0B}", f"v_min_u32 v{V_PA}, 2, v{V_LANE}", f"v_add_u32 v{V_PA}, s{S_W0B+1}, v{V_PA}", f"v_and_b32 v{V_PA}, 3, v{V_PA}",
           f"v_lshl_add_u32 v{V_PA}, v{V_PA}, 3, s{S_FL}"]
    left = fill_valu(P[:72 * 9], 72 * 8, fs2); assert not left
    def part_item(A, nt, kind, tag):
        a = A(nt, 0)
        q = [f"v_cvt_pk_bf16_f32 v{a+i}, v{a+2*i}, v{a+2*i+1}" for i in range(4)]
        q.append(("MEM", [f"s_add_u32 s{S_SIG}, s{S_PST}, {PART_OFF + kind*PSTRIDE + nt*1024}"], (f"buffer_store_dwordx4 v[{a}:{a+3}], v{V_L16}, s[{S_WS}:{S_WS+3}], s{S_SIG} offen sc1", tag)))
        q.append(("MEM", [], (f"ds_write_b128 v{V_OWN}, v[{a}:{a+3}] offset:{kind*9216 + nt*1024}", None)))
        return q
    for nt in range(9):
        left = fill_valu(P[:72 * DSIG], 72 * 8 + 12 + ((72 * (DSIG - 8) - 30) * nt) // 8, part_item(AD, nt, 0, "DST")); assert not left
    sleft = []
    for nt in range(9):
        sleft += fill_valu(P, 72 * 16 + 8 * (nt + 1) + 4, part_item(AS, nt, 1, "SST"))
    gq = []
    def unpack_sum(src, dst, pk=False):
        q = []
        for i in range(4):
            q += [f"v_lshlrev_b32 v{dst+2*i}, 16, v{src+i}", f"v_and_b32 v{dst+2*i+1}, s{S_THR}, v{src+i}"]
        for sp in range(1, 4):
            T = TT + 8 * (sp % 2)
            for i in range(4):
                q += [f"v_lshlrev_b32 v{T+2*i}, 16, v{src+4*sp+i}", f"v_and_b32 v{T+2*i+1}, s{S_THR}, v{src+4*sp+i}"]
            if pk:
                for i in range(0, 8, 2): q.append(f"v_pk_add_f32 v[{dst+i}:{dst+i+1}], v[{dst+i}:{dst+i+1}], v[{T+i}:{T+i+1}]")
            else:
                for i in range(8): q.append(f"v_add_f32 v{dst+i}, v{dst+i}, v{T+i}")
        return q
    P[72*13+1].post.append(f"s_mov_b32 s{S_THR}, 0xffff0000")
    for m in range(3):
        D = GG + 8 * m; T = FD + 16 * m
        gq += unpack_sum(FD + 16 * m, D, pk=True)
        gq += [f"v_mul_f32 v{T+i}, {f2u(-LOG2E)}, v{D+i}" for i in range(8)]
        gq += [f"v_exp_f32 v{T+i}, v{T+i}" for i in range(8)]
        gq += [f"v_add_f32 v{T+i}, 1.0, v{T+i}" for i in range(8)]
        gq += [f"v_rcp_f32 v{T+i}, v{T+i}" for i in range(8)]
        gq += [f"v_pk_mul_f32 v[{D+i}:{D+i+1}], v[{D+i}:{D+i+1}], v[{T+i}:{T+i+1}]" for i in range(0, 8, 2)]
    gleft = gq
    print("phase3 leftovers: s-part", len(sleft), "gate", len(gleft))
    for T in TL:
        finish_tile(T); emit_gaps(p, T.G)
    if 'finepro' not in ABL:
        stamp(p, 7); stamp_rt(p, 16)
        for s, k in ((3, 8), (6, 9), (9, 10), (13, 11)): P[72 * s - 1].post += stamp_ops(k)
    if 'finep3' in ABL:
        stamp(p, 0)
        for s in range(1, 17): P[72 * (s + 1) - 1].post = [x for x in P[72 * (s + 1) - 1].post if not (isinstance(x, str) and ("s76" in x or "s[76" in x or x == "s_waitcnt lgkmcnt(0)"))] + stamp_ops(s)
    emit_gaps(p, P[72:])
    if 'finep' not in ABL: stamp(p, 12); stamp_rt(p, 17)
    emit_ops(p, sleft)
    XU = 32
    FS = 96
    def s_loads():
        for sal_, op in fin_loads(1, FS, "FS"):
            for s_ in sal_: p(s_)
            p(op[0], op[1])
    p("s_waitcnt lgkmcnt(0)")
    s_loads()
    p.items.append(WaitFor(vm=("FD",)))
    p("s_barrier")
    for t, tag in own_reads(1, FS, "FO"): p(t, tag)
    emit_ops(p, gleft)
    for i in range(12):
        p(f"v_lshlrev_b32 v{XU+2*i}, 16, v{FXR+i}"); p(f"v_and_b32 v{XU+2*i+1}, s{S_THR}, v{FXR+i}")
    if 'finep' not in ABL: stamp(p, 13)
    p(f"s_mov_b32 s{S_CNT}, 0x40000"); p(f"s_add_u32 s{S_PV}, s{S_EP}, 5")
    p.label("L_dcheck")
    p("s_waitcnt vmcnt(0)")
    q_ = [FS + (m * 4 + sp) * 4 + i for m in range(3) for sp in range(3) for i in range(4)]
    p(f"v_max_u32 v{V_PT}, v{q_[0]}, v{q_[1]}"); p(f"v_max_u32 v{V_PT+1}, v{q_[2]}, v{q_[3]}")
    for i in range(4, 36, 2): p(f"v_max3_u32 v{V_PT+(i//2)%2}, v{V_PT+(i//2)%2}, v{q_[i]}, v{q_[i+1]}")
    p(f"v_max_u32 v{V_PT}, v{V_PT}, v{V_PT+1}")
    p(f"v_cmp_eq_u32 vcc, -1, v{V_PT}")
    p("s_cbranch_vccz L_dready")
    p(f"s_cmp_eq_u32 s{S_CNT}, 0x40000"); p("s_cbranch_scc0 L_dagain")
    p(f"s_call_b64 s[{S_RET}:{S_RET+1}], L_spin0")
    p.label("L_dagain")
    s_loads()
    p(f"s_sub_u32 s{S_CNT}, s{S_CNT}, 1"); p(f"s_cmp_lg_u32 s{S_CNT}, 0"); p("s_cbranch_scc1 L_dcheck")
    p("s_waitcnt vmcnt(0)")
    p.label("L_dready")
    if 'finep' not in ABL: stamp(p, 14)
    p("s_waitcnt lgkmcnt(0)")
    for m in range(3):
        D = FD + 8 * m
        for t in unpack_sum(FS + 16 * m, D, pk=True): p(t)
        for i in range(0, 8, 2): p(f"v_pk_mul_f32 v[{D+i}:{D+i+1}], v[{D+i}:{D+i+1}], v[{GG+8*m+i}:{GG+8*m+i+1}]")
        for i in range(4): p(f"v_cvt_pk_bf16_f32 v{D+i}, v{D+2*i}, v{D+2*i+1}")
        for mt in range(2): p(f"ds_write_b64 v{V_YW + (1 if m == 2 else 0)}, v[{D+2*mt}:{D+2*mt+1}] offset:{m*128 + mt*4608}")
    p("s_waitcnt lgkmcnt(0)"); p("s_barrier")
    for m in range(3): p(f"ds_read_b128 v[{128+4*m}:{131+4*m}], v{V_FL} offset:{m*4096}")
    for m in range(3):
        p(f"s_waitcnt lgkmcnt({2-m})")
        D = 96 + 8 * m; T = XU + 8 * m
        for i in range(4):
            p(f"v_lshlrev_b32 v{D+2*i}, 16, v{128+4*m+i}"); p(f"v_and_b32 v{D+2*i+1}, s{S_THR}, v{128+4*m+i}")
        for i in range(0, 8, 2): p(f"v_pk_add_f32 v[{D+i}:{D+i+1}], v[{D+i}:{D+i+1}], v[{T+i}:{T+i+1}]")
        for i in range(4): p(f"v_cvt_pk_bf16_f32 v{D+i}, v{D+2*i}, v{D+2*i+1}")
        p(f"buffer_store_dwordx4 v[{D}:{D+3}], v{V_XO+m}, s[{S_OUT}:{S_OUT+3}], s{S_FX0} offen")
    p(f"s_lshl_b32 s{S_T0}, s2, 12"); p("v_mov_b32 v4, 0"); p("v_mov_b32 v5, 0")
    p(f"buffer_store_dwordx2 v[4:5], v4, s[{S_DBG}:{S_DBG+3}], s{S_T0} offen sc1")
    if STAMP: p("s_waitcnt vmcnt(0)")
    stamp(p, 19); stamp_rt(p, 21)
    if 'dbgout' in ABL:
        p(f"s_cmp_eq_u32 s2, 250"); p(f"s_cselect_b32 s76, 36, 0x1000"); p("s_cmp_eq_u32 s2, 1"); p("s_cselect_b32 s76, 8, s76")
        p(f"s_cmp_eq_u32 s{S_WAVE}, 0"); p("s_cselect_b32 s76, s76, 0x1000"); p("v_mov_b32 v1, s76")
        p(f"s_lshr_b32 s77, s{S_EP}, 8")
        for n, k in enumerate((100, 95, 96, 97, 101)):
            p(f"s_sub_u32 s76, s{k}, s77"); p("s_and_b32 s76, s76, 0xffffff"); p("v_mov_b32 v2, s76")
            p(f"buffer_store_dword v2, v1, s[{S_DBG}:{S_DBG+3}], 0 offen offset:{4*n}")
        for n, (a_, b_) in enumerate(((81, 80), (99, 80))):
            p(f"s_sub_u32 s76, s{a_}, s{b_}"); p("v_mov_b32 v2, s76")
            p(f"buffer_store_dword v2, v1, s[{S_DBG}:{S_DBG+3}], 0 offen offset:{20+4*n}")
    else:
        stamp_dump(p, 70, S_WAVE, 1)
    p.label("L_done"); p("s_endpgm")

    rare = Prog(); p = rare
    for site, var in rare_sites:
        p.label(f"L_rare_stub{site}")
        p(f"s_call_b64 s[{S_RET}:{S_RET+1}], L_rare{var}")
        p(f"s_branch L_rare_ret{site}")
    for name in stubs:
        p.label(f"L_stub_{name}")
        p(f"s_call_b64 s[{S_RET}:{S_RET+1}], L_spin0")
        p(f"s_branch L_ret_{name}")
    for name in ("w2", "w3"):
        p.label(f"L_stub_{name}")
        p("buffer_wbl2 sc1"); p("s_waitcnt vmcnt(0)")
        p(f"s_branch L_ret_{name}")
    p.label("L_spin0")
    p(f"s_mov_b32 s{S_SPIN}, {'0x40' if 'Lno' in ABL else '0x40000'}")
    p.label("L_spin1")
    p(poll_load(None)[0])
    p(f"s_sub_u32 s76, s{S_EP}, s{S_PV}"); p("s_add_u32 s76, s76, 8")
    p("s_waitcnt vmcnt(0)")
    for t in flag_test(V_PT): p(t)
    p(f"v_cmp_le_u32 vcc, s76, v{V_PT}")
    p("s_cbranch_vccz L_spin2")
    p(f"s_sub_u32 s{S_SPIN}, s{S_SPIN}, 1"); p("s_sleep 1"); p(f"s_cmp_lg_u32 s{S_SPIN}, 0"); p("s_cbranch_scc1 L_spin1")
    p.label("L_spin2")
    p(f"s_setpc_b64 s[{S_RET}:{S_RET+1}]")
    rare_items = fix_hazards(rare.items)[0]
    for var in ("0", "1", "Z"):
        par = 1 if var == "Z" else int(var)
        rp = Prog(); p = rp
        p.label(f"L_rare{var}")
        p("s_nop 15")
        Lold = V_LS + (1 - par) * 4
        for qt in range(4):
            rowmax(p, par, qt, V_R + qt)
            p(f"v_log_f32 v{V_R+4}, v{Lold+qt}")
            if BIAS:
                p(f"v_max_f32 v{V_R+qt}, v{V_R+qt}, v{V_R+4}"); p(f"v_add_f32 v{V_R+qt}, {f2u(BIAS)}, v{V_R+qt}"); p(f"v_max_f32 v{V_R+qt}, 0, v{V_R+qt}")
            else: p(f"v_max3_f32 v{V_R+qt}, v{V_R+qt}, v{V_R+4}, 0")
        for t in xlane_ops("v_max_f32", [V_R + q for q in range(4)], V_R + 4): p(t)
        for qt in range(4):
            p(f"v_sub_f32 v{V_R+4+qt}, 0, v{V_R+qt}"); p(f"v_exp_f32 v{V_R+4+qt}, v{V_R+4+qt}")
        for qt in range(4):
            p(f"v_mul_f32 v{Lold+qt}, v{Lold+qt}, v{V_R+4+qt}")
            if var != "Z":
                for r in range(4): p(f"v_sub_f32 v{V_NM+4*qt+r}, v{V_NM+4*qt+r}, v{V_R+qt}")
            for pp in ((par,) if var == "Z" else (0, 1)):
                for kt in range(4):
                    for r in range(4): p(f"v_sub_f32 v{Sreg(pp,kt,qt)+r}, v{Sreg(pp,kt,qt)+r}, v{V_R+qt}")
            for dt in range(8):
                o = A_O + (dt * 4 + qt) * 4
                for r in range(4): p(f"v_accvgpr_read_b32 v{V_E+r}, a{o+r}")
                for r in range(4): p(f"v_mul_f32 v{V_E+r}, v{V_E+r}, v{V_R+4+qt}")
                for r in range(4): p(f"v_accvgpr_write_b32 a{o+r}, v{V_E+r}")
        for tau in range(64):
            p(op_exp(par, tau))
            if tau % 4 >= 2: p(op_add(par, tau))
            if tau % 2 == 1: p(op_cvt(par, tau))
        for qt in (0, 2):
            p(l_mfma(par, qt, 0)); p(l_mfma(par, qt, 1)); p(op_ladd(par, qt))
        if var != "Z":
            for tau in range(4): p(op_exp(1 - par, tau))
            p(op_cvt(1 - par, 1))
        p("s_nop 3")
        p(f"s_setpc_b64 s[{S_RET}:{S_RET+1}]")
        rare_items += fix_hazards(rp.items)[0]

    resolve_waits(pro.items + body.items + body.items + tail.items)
    pi = lower_waits(pro.items); bi = lower_waits(body.items); ti = lower_waits(tail.items)
    pi, a1 = fix_hazards(pi, verbose=False, name="pro")
    bi2, a2 = fix_hazards(bi, prev=bi, verbose=True, name="body")
    bi3, a3 = fix_hazards(bi2, prev=pi, verbose=True, name="body-entry")
    ti, a4 = fix_hazards(ti, prev=bi3, verbose=True, name="tail")
    wc = WaitChecker(); wc.run(pi + bi3 + bi3 + ti)
    for e in wc.errors[:10]: print("WAITCHECK", e)
    assert check_needs(pi + bi3 + bi3 + ti) == 0
    for it in pi + bi3 + ti:
        if isinstance(it, Ins): it.text = it.text.split(' ; need[')[0]
    allit = pi + bi3 + ti
    if not HOP: return allit + rare_items
    import subprocess
    REV = int(os.environ.get("PREV", "1")); PMAX = int(os.environ.get("PMAX", "99"))
    def with_pads(pos):
        out = []; k_ = 0; N = len(pos)
        for n, it in enumerate(allit):
            out.append(it)
            if n in pos:
                me = (N - 1 - k_) if REV else k_
                out += [Label(f"L_pad{me}"), Ins("s_cbranch_execz " + (f"L_pad{me+3}" if me + 3 < N else "L_padend"), "PAD")]; k_ += 1
        return out + rare_items
    def addrs(items):
        txt = '.amdgcn_target "amdgcn-amd-amdhsa--gfx950"\n.text\n'
        for n, it in enumerate(items):
            txt += render([it])
            if isinstance(it, Ins) and it.tag != "PAD": txt += f"L_m{id(it)}:\n"
        txt += "L_code_end:\n"
        open("pads.s", "w").write(txt)
        subprocess.run(["clang", "-x", "assembler", "-target", "amdgcn-amd-amdhsa", "-mcpu=gfx950", "-c", "pads.s", "-o", "pads.o"], check=True)
        o = subprocess.run(["llvm-objdump", "-t", "pads.o"], capture_output=True, text=True).stdout
        return {l.split()[-1]: int(l.split()[0], 16) for l in o.splitlines() if ".text" in l and l.split()[-1].startswith("L_")}
    first = [n for n, it in enumerate(allit) if isinstance(it, Ins) and it.kind == "mfma"][0]
    cand = [n for n in range(first, len(allit) - 1) if isinstance(allit[n], Ins) and allit[n].kind != "ctl" and isinstance(allit[n + 1], Ins)]
    pos = set(cand[:3])
    for rnd_ in range(8):
        ad = addrs(with_pads(pos))
        pages = {}
        for n in cand:
            a_ = ad[f"L_m{id(allit[n])}"]
            if a_ % 4096 < 52: pages.setdefault(a_ // 4096, []).append(n)
        new_ = []
        for pg_, ns in sorted(pages.items()):
            keep = [n for n in ns if n in pos]
            mf_ = [n for n in ns if allit[n].kind == "mfma" and allit[n + 1].kind not in ("salu", "wait", "ctl")] or [n for n in ns if allit[n].kind == "mfma"]
            new_.append(keep[0] if keep else (mf_ or ns)[0])
        new_ = set(new_[:PMAX])
        if new_ == pos: break
        pos = new_
    ad = addrs(with_pads(pos))
    print("pads at:", " ".join(hex(ad[f"L_pad{k}"]) for k in range(len(pos))), "end", hex(ad["L_done"]), "spin", hex(ad["L_spin0"]))
    return with_pads(pos)

if __name__ == "__main__":
    import sys
    HEADER = open("cdna_kernels/" + NAME + ".s.ref").read().split("; Override")[0]
    items = gen_mega()
    k = NAME + "_kernel"
    s = HEADER + f"; @launch grid=(256,1,1) block=(256,1,1) lds={LDS_BYTES}\n"
    s += '.amdgcn_target "amdgcn-amd-amdhsa--gfx950"\n' + kernel_text(k, items, 512, 256)
    s += "L_code_end:\n    s_endpgm\n" + '.section .rodata,"a"\n.p2align 6\n' + kd_text(k, 512, 256)
    open(sys.argv[1], "w").write(s)
```

```python
from common import *
import math
LDS_BYTES = 160 * 1024
LOG2E = 1.4426950408889634
QSCALE = LOG2E / math.sqrt(128.0)
GC1 = -2.0 * math.sqrt(2.0 / math.pi) * LOG2E
GC2 = GC1 * 0.044715
CUT = int(os.environ.get("CUT", "24"))
BIAS = float(126 - CUT) if CUT else 0.0
THRESH = 2.0 ** (int(os.environ.get("THR", "64")) - BIAS)
ABL = os.environ.get('ABL', '')
NTW = "" if "nontw" in ABL else " nt"
NTQ = "" if "nontq" in ABL else " nt"
NTT = '' if 'nontt' in ABL else ' nt'
NTX = " nt" if "ntx" in ABL else ""
NTKV = " nt" if 'ntkv' in ABL else ""
WS_BYTES = 128 << 20
WPO_OFF = WP_OFF
WPD_OFF = WP_OFF + 4096 * 1152
FLAG_OFF = (100 << 20) if 'farflag' in ABL else (5 << 19)
SCH = ' sc1' if 'sch' in ABL else ''
SCO = ' sc1' if 'sco' in ABL else ''
LSC = '' if 'nolsc' in ABL else ' sc1'
P3NT = ' nt' if 'p3nt' in ABL else ''
PSTRIDE = 64 * 4 * 4 * 9216

S_HF = 4
S_WG, S_WU, S_WQ, S_K, S_V, S_WS, S_DBG, S_XI = 8, 12, 16, 20, 24, 28, 32, 36
S_WAVE, S_RB, S_J = 40, 41, 42
S_RE = 43
S_T0, S_T1, S_T2 = 44, 45, 46
S_KOFF, S_VOFF = 47, 48
S_W1K = 49
S_RET = 50
S_CNT = 52
S_W3K = 53
S_BF, S_BH, S_BQ = 54, 55, 56
S_RS, S_RD = 57, 58
S_RNW = 59
S_HHALF = 60
S_THR = 61
S_OBASE = 62
S_XB = 63
S_PTR = 64
S_W6K = 3
S_PV = 79
S_SIG = 78
S_SPIN = 75
S_EP = 74
S_FO = 73
S_MIX = 72
S_XCC = 69
S_EP2 = 68
S_PW, S_PW2, S_PB0, S_PB1 = 54, 55, 56, 57
S_W9K = 53
S_PST = 58
S_FL = 59
S_FX0, S_FX1 = 60, 63
S_OUT = 16

V_SA = 0
V_L16 = 1
V_WF, V_WQ = 2, 3
V_RA = 4
V_RH = 8
V_QP = 10
V_C1, V_C2 = 12, 13
V_KD, V_VD = 14, 15
V_AF = 16
V_T = 52
V_HO = 68
V_KA = 76
V_TA = 76
V_VA = 80
V_RQ = 88
V_ACC = 96
V_X = 224
WSLOT = [128 * 1024, 80 * 1024, 40 * 1024, 104 * 1024]
def wbase(slot):
    b = WSLOT[slot]
    return (0, b - 40 * 1024) if b < 104 * 1024 else (1, b - 104 * 1024)
def xreg(ks, mt):
    f = ks * 4 + mt
    return f"a[{4*f}:{4*f+3}]" if f < 64 else f"v[{V_X+4*(f-64)}:{V_X+4*(f-64)+3}]"

A_Q, A_KF, A_VF, A_O = 0, 64, 96, 128
V_S = 96
V_P0 = 224
V_P1 = 16
V_NM = 32
V_LS = 48
V_E = 56
V_CK = 9
V_ONE = 10
V_R = 64
V_LD = 72
V_RPS = 88
V_RPG, V_RPL = 2, 3
V_PT = 4
V_SV = 6
V_PA = 8
V_LANE = 2
KS = lambda T: (T + 3) % 4
VS = lambda T: (T + 1) % 4
P3_SLOT = [0, 80 * 1024, 116 * 1024]
AD = lambda nt, mt: 160 + (nt * 2 + mt) * 4
AS = lambda nt, mt: (96 + (nt * 2 + mt) * 4) if nt < 8 else (240 + mt * 4)
P3_AR = [32, 40, 88, 232]
V_PWA = [1, 76, 77]
V_XO = 68
V_YW = 78
V_FL = 80
S_FR = 64
V_OWN = 84
V_OWR = 85
OWN_LDS = 40 * 1024
FX_OFF = 16384
F5_OFF = 32768
S_W0B = 12

from k12 import Gap, emit_gaps, slots_of, fill_valu

def emit_ops(p, ops):
    for op in ops:
        if isinstance(op, tuple):
            for t in op[1]: p(t)
            p(op[2][0], op[2][1])
        else: p(op)

def annotate(ops):
    out = []; cur = []
    for sal, (txt, tag) in ops:
        if sal: cur = list(sal)
        out.append((sal, (txt + " ; need[" + "|".join(cur) + "]", tag)))
    return out

def check_needs(items):
    last = {}; bad = 0
    for it in items:
        if not isinstance(it, Ins): continue
        if "; need[" in it.text:
            for t in it.text.split("; need[")[1].rstrip("]").split("|"):
                if not t: continue
                d = Ins(t).wr[0]
                if last.get(d) != t:
                    bad += 1; print("NEEDCHECK:", it.text, "<- last writer", last.get(d))
        if it.kind == "salu":
            for r in it.wr: last[r] = it.text
    return bad

def gen_mega():
    pro = Prog(); p = pro
    stubs = []
    def poll_check(val, name):
        stubs.append(name)
        return (flag_test(V_PT) + [f"v_cmp_le_u32 vcc, {8-val}, v{V_PT}"],
                [f"s_add_u32 s{S_PV}, s{S_EP}, {val}", f"s_cbranch_vccnz L_stub_{name}", Label(f"L_ret_{name}")])
    def flag_test(r):
        return [f"v_and_b32 v{r}, 0xffffff87, v{r}", f"v_xor_b32 v{r+1}, s{S_EP2}, v{r+1}", f"v_subrev_u32 v{r}, s{S_PV}, v{r}",
                f"v_min_u32 v{r+1}, 1, v{r+1}", f"v_lshl_or_b32 v{r}, v{r+1}, 8, v{r}"]
    poll_load = lambda tag: (f"buffer_load_dwordx2 v[{V_PT}:{V_PT+1}], v{V_PA}, s[{S_WS}:{S_WS+3}], s{S_FO} offen sc1", tag)
    sig_store = f"buffer_store_dwordx2 v[{V_SV}:{V_SV+1}], v{V_SA}, s[{S_WS}:{S_WS+3}], s{S_FO} offen sc1"
    sig_val = lambda val: f"v_add_u32_e64 v{V_SV}, s{S_XCC}, {val}"

    p("s_cmp_ge_u32 s2, 256"); p("s_cbranch_scc1 L_done")
    stamp_rt(p, 20); stamp(p, 0)
    LX = 96
    p(f"s_load_dwordx2 s[{S_XI}:{S_XI+1}], s[0:1], {ARG['x']}")
    p(f"s_load_dwordx4 s[68:71], s[0:1], {ARG['dbg']}")
    p(f"s_getpc_b64 s[{S_K}:{S_K+1}]")
    p.label("L_pc0")
    p(f"s_and_b32 s{S_K+1}, s{S_K+1}, 0xffff"); p(f"s_mov_b32 s{S_K+2}, L_code_end-L_pc0"); p(f"s_mov_b32 s{S_K+3}, 0x20000")
    p(f"s_lshr_b32 s{S_T1}, s2, 3"); p(f"s_lshl_b32 s{S_T0}, s{S_T1}, 12"); p("v_lshlrev_b32 v16, 4, v0")
    CL = os.environ.get("CL", "0")
    if CL == "0": p(f"buffer_load_dwordx4 v[160:163], v16, s[{S_K}:{S_K+3}], s{S_T0} offen", "CODE")
    else: p(f"s_mov_b32 s{S_T2}, s{S_T0}")
    p(f"s_and_b32 s{S_CNT}, s2, 7"); p(f"s_lshl_b32 s{S_CNT}, s{S_CNT}, 5"); p(f"s_or_b32 s{S_CNT}, s{S_CNT}, s{S_T1}")
    p("v_lshrrev_b32 v18, 5, v0"); p("v_and_b32 v19, 31, v0"); p(f"s_mul_i32 s{S_T0}, s{S_CNT}, 9216")
    p("v_mul_u32_u24 v20, 1152, v18"); p("v_lshl_add_u32 v20, v19, 4, v20")
    p(f"s_mov_b32 s{S_XI+2}, {XN_BYTES}"); p(f"s_mov_b32 s{S_XI+3}, 0x20000")
    p("s_waitcnt lgkmcnt(0)")
    for m in range(3):
        p(f"buffer_load_dwordx4 v[{LX+4*m}:{LX+4*m+3}], v20, s[{S_XI}:{S_XI+3}], s{S_T0} offen offset:{m*384}{NTX}", "LX")
    if CL != "0": p(f"buffer_load_dwordx4 v[160:163], v16, s[{S_K}:{S_K+3}], s{S_T2} offen", "CODE")
    if CL == "2":
        p("v_lshrrev_b32 v21, 6, v0"); p("s_nop 0"); p(f"v_readfirstlane_b32 s{S_WAVE}, v21")
        p("s_mov_b64 exec, 0")
        for w in range(3):
            p(f"s_cmp_eq_u32 s{S_WAVE}, {w}"); p(f"s_cbranch_scc1 L_ppad{w}")
        p("s_branch L_ppad3")
        p.label("L_ppadend")
        p("s_mov_b64 exec, -1")
    def ppad(k):
        if CL == "2":
            p.label(f"L_ppad{k}"); p("s_cbranch_execz L_ppadend")
    p(f"s_load_dwordx2 s[{S_WQ}:{S_WQ+1}], s[0:1], {ARG['wq']}")
    p(f"s_load_dwordx4 s[72:75], s[0:1], {ARG['wg']}")
    p(f"s_load_dwordx4 s[64:67], s[0:1], {ARG['k']}")
    p("s_memrealtime s[76:77]")
    p("v_lshrrev_b32 v16, 6, v0"); p("v_and_b32 v17, 63, v0"); p("v_cmp_gt_u32 vcc, 24, v19")
    p(f"v_readfirstlane_b32 s{S_WAVE}, v16")
    srd(p, S_DBG, 68, 256); srd(p, S_WS, 70, WS_BYTES)
    if 'tlb' in ABL:
        p("v_min_u32 v37, 41, v17"); p("v_lshlrev_b32 v37, 21, v37"); p("v_mov_b32 v38, 128")
        p(f"buffer_load_dword v165, v37, s[{S_WS}:{S_WS+3}], 0 offen", "TCH")
        p(f"buffer_load_dword v166, v38, s[{S_DBG}:{S_DBG+3}], 0 offen", "TCH")
    p(f"s_mov_b64 s[{S_RET}:{S_RET+1}], vcc")
    p(f"s_and_b32 s{S_T0}, s2, 7")
    p(f"s_and_b32 s{S_RB}, s{S_T1}, 3"); p(f"s_lshr_b32 s{S_T1}, s{S_T1}, 2")
    p(f"s_and_b32 s{S_T2}, s{S_T0}, 1"); p(f"s_lshl_b32 s{S_T2}, s{S_T2}, 2"); p(f"s_add_u32 s{S_RB}, s{S_RB}, s{S_T2}")
    p(f"s_lshr_b32 s{S_T0}, s{S_T0}, 1"); p(f"s_lshl_b32 s{S_J}, s{S_T0}, 3"); p(f"s_add_u32 s{S_J}, s{S_J}, s{S_T1}")
    p(f"s_mov_b32 s{S_WQ+2}, {576*8192}"); p(f"s_mov_b32 s{S_WQ+3}, 0x20000")
    p(f"v_lshlrev_b32 v{V_L16}, 4, v17"); p("v_mov_b32 v71, 0")
    p("s_waitcnt lgkmcnt(0)")
    p(f"s_lshl_b32 s{S_T1}, s2, 2"); p(f"s_add_u32 s{S_T1}, s{S_T1}, s{S_WAVE}"); p(f"s_cmp_lg_u32 s{S_T1}, 1"); p("s_cbranch_scc1 L_noleader")
    p("s_lshl_b64 s[76:77], s[76:77], 8"); p("s_or_b32 s76, s76, 128"); p("v_mov_b32 v30, s76"); p("v_mov_b32 v31, s77")
    p.raw(f"    buffer_store_dwordx2 v[30:31], v71, s[{S_DBG}:{S_DBG+3}], 0 offen sc1")
    p.label("L_noleader")
    p("v_lshrrev_b32 v20, 4, v17"); p("v_and_b32 v22, 15, v17")
    p("v_lshlrev_b32 v23, 2, v20"); p("v_xor_b32 v23, v23, v22"); p("v_lshlrev_b32 v24, 13, v20"); p(f"v_lshl_add_u32 v{V_WQ}, v23, 4, v24")
    p(f"s_mul_i32 s{S_W6K}, s{S_WAVE}, 6144")
    p(f"s_mul_i32 s{S_BQ}, s{S_WAVE}, {24*8192}"); p(f"s_lshl_b32 s{S_T0}, s{S_J}, 8"); p(f"s_add_u32 s{S_BQ}, s{S_BQ}, s{S_T0}")

    stages = [("q", 0, sub, 0) for sub in range(6)] + [("h", 0, sub, 0) for sub in range(3)]
    for t in range(4): stages += [("f", t, sub, (t + 1) % 2) for sub in range(3)]
    NST = len(stages)
    tmpsel = [0]
    def tmp():
        tmpsel[0] ^= 1
        return (S_T0, S_T1)[tmpsel[0]]
    def w_dma(st):
        kind, t, sub, buf = stages[st]; slot = st % 4
        ops = []
        if kind == "q":
            for i in range(6):
                tm = tmp()
                sal = [f"s_add_u32 s{tm}, s{S_BQ}, {(sub * 96 + 4 * i) * 8192}", f"s_add_u32 m0, s{S_W6K}, {WSLOT[slot] + i*1024}"]
                ops.append((sal, (f"buffer_load_dwordx4 v{V_WQ}, s[{S_WQ}:{S_WQ+3}], s{tm} offen{NTQ} lds", f"W{st}")))
            return annotate(ops)
        for reg in range(2):
            for i in range(3):
                base, srdn = (S_BH if kind == "h" else S_BF), (S_WG, S_WU)[reg]
                imm = (sub * 192 + 16 * i) * 9216 + t * 64
                tm = tmp()
                sal = [f"s_add_u32 s{tm}, s{base}, {imm}", f"s_add_u32 m0, s{S_W3K}, {WSLOT[slot] + reg*12288 + i*1024}"]
                ops.append((sal, (f"buffer_load_dwordx4 v{V_WF}, s[{srdn}:{srdn+3}], s{tm} offen{NTW} lds", f"W{st}")))
        return annotate(ops)
    def x_loads(k0, k1):
        ops = []
        for ks in range(k0, k1):
            for mt in range(4):
                ops.append(([f"s_add_u32 s{S_RD}, s{S_XB}, {ks*4096}"] if mt == 0 else [],
                            (f"buffer_load_dwordx4 {xreg(ks, mt)}, v{V_L16}, s[{S_WS}:{S_WS+3}], s{S_RD} offen offset:{mt*1024} sc1", f"X{ks//3}")))
        return annotate(ops)
    def kv_dma(which, tile_slot, soff, add):
        ops = []
        for t in range(4):
            tm = tmp()
            base = (0 if which == "K" else 65536) + tile_slot * 16384 + t * 4096
            srdn = S_K if which == "K" else S_V
            if soff is None: sal = [f"s_mov_b32 s{tm}, {add + t*4096}"]
            else: sal = [f"s_add_u32 s{tm}, s{soff}, {add + t*4096}"]
            sal.append(f"s_add_u32 m0, s{S_W1K}, {base}")
            ops.append((sal, (f"buffer_load_dwordx4 v{V_KD if which == 'K' else V_VD}, s[{srdn}:{srdn+3}], s{tm} offen{NTKV} lds", f"{which}{tile_slot}")))
        return annotate(ops)
    def issue(ops):
        for sal, op in ops:
            for s in reversed(sal): p(s)
            p(op[0], op[1])
    PV_ = os.environ.get('PROV', 'D')
    srd(p, S_WG, 72, 576 * 9216); srd(p, S_WU, 74, 576 * 9216)
    def w3(st):
        for i in range(8):
            tm = tmp()
            p(f"s_add_u32 m0, s{S_RNW}, {WSLOT[st % 4] + i*1024}"); p(f"s_add_u32 s{tm}, s{S_RE}, {(st * 96 + 4 * i) * 8192}")
            p(f"buffer_load_dwordx4 v{V_WQ}, s[{S_WQ}:{S_WQ+3}], s{tm} offen{NTQ} lds", f"W{st}")
    if 'latebad' in ABL:
        srd(p, S_V, 72, 0); p("v_mov_b32 v36, 0"); p(f"s_mov_b32 s{S_RS}, 0")
    p(f"s_cmp_eq_u32 s{S_WAVE}, 0"); p("s_cbranch_scc1 L_w0a")
    p(f"s_sub_u32 s{S_T2}, s{S_WAVE}, 1"); p(f"s_lshl_b32 s{S_RNW}, s{S_T2}, 13"); p(f"s_lshl_b32 s{S_RE}, s{S_T2}, 18"); p(f"s_add_u32 s{S_RE}, s{S_RE}, s{S_T0}")
    w3(0)
    p(f"s_lshr_b32 s{S_T0}, s2, 3"); p(f"s_mul_i32 s{S_T0}, s{S_T0}, 3"); p(f"s_add_u32 s{S_T0}, s{S_T0}, s{S_T2}")
    p(f"s_and_b32 s{S_T1}, s{S_T0}, 1"); p(f"s_cmp_eq_u32 s{S_T1}, 0")
    p(f"s_cselect_b32 s{S_V}, s{S_WG}, s{S_WU}"); p(f"s_cselect_b32 s{S_V+1}, s{S_WG+1}, s{S_WU+1}"); p(f"s_mov_b32 s{S_V+2}, {576*9216}"); p(f"s_mov_b32 s{S_V+3}, 0x20000")
    p(f"s_lshr_b32 s{S_T0}, s{S_T0}, 1"); p(f"s_mul_i32 s{S_RS}, s{S_T0}, {12*9216}")
    p(f"s_lshr_b32 s{S_T2}, s{S_J}, 3"); p(f"s_mul_i32 s{S_T2}, s{S_T2}, 2304"); p(f"s_add_u32 s{S_RS}, s{S_RS}, s{S_T2}")
    p(f"s_sub_u32 s{S_T1}, 384, s{S_V}"); p(f"s_sub_u32 s{S_T1}, s{S_T1}, s{S_T2}"); p(f"s_and_b32 s{S_T1}, s{S_T1}, 1023"); p(f"s_add_u32 s{S_RS}, s{S_RS}, s{S_T1}")
    p("v_min_u32 v36, 35, v17"); p("v_mul_u32_u24 v27, 43, v36"); p("v_lshrrev_b32 v27, 7, v27")
    p(f"v_mul_u32_u24 v27, {9216 - 3072}, v27"); p("v_lshl_add_u32 v36, v36, 10, v27")
    if 'latebad' not in ABL: p(f"buffer_load_dword v164, v36, s[{S_V}:{S_V+3}], s{S_RS} offen", "TCH")
    p.label("L_w0a")
    ppad(0)
    p("v_lshrrev_b32 v26, 3, v17"); p("v_and_b32 v27, 3, v26"); p("v_lshrrev_b32 v26, 2, v26"); p("v_and_b32 v28, 7, v17")
    p("v_lshl_add_u32 v27, v27, 4, v28"); p("v_lshlrev_b32 v27, 4, v27"); p("v_lshl_add_u32 v26, v26, 12, v27")
    p(f"s_lshr_b32 s{S_T0}, s{S_CNT}, 3"); p(f"s_mul_i32 s{S_RD}, s{S_T0}, 73728")
    p(f"s_and_b32 s{S_T1}, s{S_CNT}, 6"); p(f"s_lshl_b32 s{S_T1}, s{S_T1}, 9"); p(f"s_add_u32 s{S_RD}, s{S_RD}, s{S_T1}")
    p(f"s_and_b32 s{S_T1}, s{S_CNT}, 1"); p(f"s_lshl_b32 s{S_T1}, s{S_T1}, 7"); p(f"s_add_u32 s{S_RD}, s{S_RD}, s{S_T1}")
    p(f"s_mov_b32 s{S_FO}, {FLAG_OFF}")
    p(f"s_getreg_b32 s{S_XCC}, hwreg(HW_REG_XCC_ID, 0, 4)"); p(f"s_lshl_b32 s{S_XCC}, s{S_XCC}, 3")
    p(f"s_lshl_b32 s{S_T0}, s{S_T0}, 9"); p(f"s_and_b32 s{S_T1}, s{S_CNT}, 7"); p(f"s_lshl_b32 s{S_T1}, s{S_T1}, 3"); p(f"s_add_u32 s{S_T0}, s{S_T0}, s{S_T1}"); p(f"s_add_u32 s{S_T0}, s{S_T0}, {FX_OFF}")
    p(f"v_mov_b32 v31, s{S_T0}")
    p(f"s_lshl_b32 s{S_T0}, s{S_RB}, 11"); p(f"s_and_b32 s{S_T1}, s{S_J}, 24"); p(f"s_lshl_b32 s{S_T1}, s{S_T1}, 6"); p(f"s_add_u32 s{S_T1}, s{S_T1}, s{S_T0}")
    p(f"v_lshl_add_u32 v{V_TA}, v28, 3, s{S_T1}")
    p(f"s_and_b32 s{S_T2}, s{S_J}, 7"); p(f"s_lshl_b32 s{S_T2}, s{S_T2}, 3"); p(f"s_add_u32 s{S_T1}, s{S_T1}, s{S_T2}")
    p(f"v_writelane_b32 v31, s{S_T1}, 1")
    p(f"s_cmp_eq_u32 s{S_WAVE}, 0"); p(f"s_cselect_b32 s{S_T1}, s{S_T1}, {1 << 30}"); p(f"v_mov_b32 v{V_SA}, s{S_T1}")
    p(f"s_add_u32 s{S_T0}, s{S_T0}, {FX_OFF}"); p(f"v_lshl_add_u32 v30, v28, 3, s{S_T0}"); p("v_and_b32 v27, 24, v17"); p("v_lshl_add_u32 v30, v27, 6, v30")
    p(f"s_lshl_b32 s{S_T0}, s{S_RB}, 2"); p(f"s_add_u32 s{S_T0}, s{S_T0}, s{S_WAVE}")
    p(f"s_mul_i32 s{S_XB}, s{S_T0}, 73728"); p(f"s_lshl_b32 s{S_OBASE}, s{S_T0}, 14")
    if 'finepro' in ABL: stamp(p, 2)
    F = 112
    pr = lambda r: f"v[{r}:{r+1}]"
    p(f"s_mov_b32 s{S_T2}, 0xffff0000")
    for i in range(4): p(f"v_mov_b32 v{140+i}, 0")
    p("v_lshlrev_b32 v25, 7, v19"); p("v_lshl_add_u32 v25, v18, 4, v25")
    p(f"s_cmp_eq_u32 s{S_WAVE}, 0"); p("s_cbranch_scc0 L_w0b")
    nt_ = (2 if 'tlb' in ABL else 0) + (1 if CL != '0' else 0)
    p.raw(f"    s_waitcnt vmcnt({nt_})")
    p.label("L_w0b")
    p(f"s_waitcnt vmcnt({9 + nt_})")
    p(f"buffer_load_dwordx2 v[72:73], v71, s[{S_DBG}:{S_DBG+3}], 0 offen sc1", "EP")
    if 'finepro' in ABL: stamp(p, 3)
    for i in range(12):
        p(f"v_lshlrev_b32 v{F+2*i}, 16, v{LX+i}"); p(f"v_and_b32 v{F+2*i+1}, s{S_T2}, v{LX+i}")
    for i in range(6): p(f"v_pk_add_f32 {pr(144+2*i)}, {pr(F+4*i)}, {pr(F+4*i+2)}")
    for i in range(3): p(f"v_pk_add_f32 {pr(144+4*i)}, {pr(144+4*i)}, {pr(146+4*i)}")
    p(f"v_pk_add_f32 {pr(144)}, {pr(144)}, {pr(148)}")
    p(f"s_mov_b64 exec, s[{S_RET}:{S_RET+1}]")
    p(f"v_pk_add_f32 {pr(140)}, {pr(144)}, {pr(152)}")
    p("s_mov_b64 exec, -1")
    def reduce32(r, t):
        p(f"v_add_f32 v{r}, v{r}, v{r+1}")
        for mod in ("quad_perm:[1,0,3,2]", "quad_perm:[2,3,0,1]", "row_half_mirror", "row_mirror"):
            p(f"v_add_f32_dpp v{r}, v{r}, v{r} {mod} row_mask:0xf bank_mask:0xf")
        p(f"v_mov_b32 v{t}, v{r}"); p(f"v_permlane16_swap_b32 v{r}, v{t}"); p(f"v_add_f32 v{r}, v{r}, v{t}")
    ppad(1)
    reduce32(140, 141)
    p(f"v_mul_f32 v140, {f2u(-1.0/576)}, v140")
    for i in range(12): p(f"v_pk_add_f32 {pr(168+2*i)}, {pr(F+2*i)}, {pr(140)} op_sel_hi:[1,0]")
    p(f"v_cvt_pk_bf16_f32 v140, v140, v140")
    for i in range(2): p(f"v_pk_mul_f32 {pr(144+2*i)}, {pr(168+2*i)}, {pr(168+2*i)}")
    p(f"v_and_b32 v140, s{S_T2}, v140")
    for i in range(2, 12): p(f"v_pk_fma_f32 {pr(144+2*(i%2))}, {pr(168+2*i)}, {pr(168+2*i)}, {pr(144+2*(i%2))}")
    p(f"s_mov_b64 exec, s[{S_RET}:{S_RET+1}]")
    p(f"v_pk_add_f32 {pr(142)}, {pr(144)}, {pr(146)}")
    p("s_mov_b64 exec, -1")
    red = Prog(); p_ = p; p = red
    reduce32(142, 143)
    p(f"v_mul_f32 v142, {f2u(1.0/576)}, v142")
    def rnd(r):
        p(f"v_cvt_pk_bf16_f32 v{r}, v{r}, v{r}"); p(f"v_and_b32 v{r}, s{S_T2}, v{r}")
    rnd(142)
    p(f"v_add_f32 v142, {f2u(1e-5)}, v142"); rnd(142)
    p("v_sqrt_f32 v142, v142"); rnd(142)
    p("v_rcp_f32 v143, v142"); p("v_fma_f32 v144, -v142, v143, 1.0"); p("v_fma_f32 v142, v144, v143, v143")
    p = p_
    oth = [f"v_pk_add_f32 {pr(F+2*i)}, {pr(F+2*i)}, {pr(140)} op_sel_hi:[1,0]" for i in range(12)]
    oth += [f"v_cvt_pk_bf16_f32 v{F+2*i+1}, v{F+2*i}, v{F+2*i+1}" for i in range(12)]
    for i in range(12): oth += [f"v_lshlrev_b32 v{F+2*i}, 16, v{F+2*i+1}", f"v_and_b32 v{F+2*i+1}, s{S_T2}, v{F+2*i+1}"]
    for it in red.items:
        p.items.append(it)
        for t in oth[:2]: p(t)
        oth = oth[2:]
    for t in oth: p(t)
    ppad(2)
    for i in range(12): p(f"v_pk_mul_f32 {pr(F+2*i)}, {pr(F+2*i)}, {pr(142)} op_sel_hi:[1,0]")
    for i in range(12): p(f"v_cvt_pk_bf16_f32 v{LX+i}, v{F+2*i}, v{F+2*i+1}")
    p(f"s_mov_b64 exec, s[{S_RET}:{S_RET+1}]")
    for m in range(3): p(f"ds_write_b128 v25, v[{LX+4*m}:{LX+4*m+3}] offset:{m*24*128}")
    p("s_mov_b64 exec, -1")
    p("s_waitcnt lgkmcnt(0)"); p("s_barrier")
    p(f"s_cmp_lg_u32 s{S_WAVE}, 0"); p("s_cbranch_scc1 L_noxs")
    for m in range(9): p(f"ds_read_b128 v[{LX+4*m}:{LX+4*m+3}], v{V_L16} offset:{m*1024}")
    for m in range(9):
        p(f"s_waitcnt lgkmcnt({8-m})")
        p(f"buffer_store_dwordx4 v[{LX+4*m}:{LX+4*m+3}], v26, s[{S_WS}:{S_WS+3}], s{S_RD} offen sc1", "XS")
        if m < 8: p(f"s_add_u32 s{S_RD}, s{S_RD}, 8192")
    def ep_wait(sfx):
        p(f"s_mov_b32 s{S_SPIN}, 0x40000")
        p.label(f"L_eppoll{sfx}")
        p(f"v_readfirstlane_b32 s{S_EP}, v72"); p(f"v_readfirstlane_b32 s{S_EP2}, v73")
        p(f"s_cmp_lg_u32 s{S_EP}, 0"); p(f"s_cbranch_scc1 L_epok{sfx}")
        p.raw(f"    buffer_load_dwordx2 v[72:73], v71, s[{S_DBG}:{S_DBG+3}], 0 offen sc1")
        p.raw("    s_waitcnt vmcnt(0)")
        p(f"s_sub_u32 s{S_SPIN}, s{S_SPIN}, 1"); p(f"s_cmp_lg_u32 s{S_SPIN}, 0"); p(f"s_cbranch_scc1 L_eppoll{sfx}")
        p.label(f"L_epok{sfx}")
    ppad(3)
    if 'finepro' in ABL: stamp(p, 4)
    p("s_waitcnt vmcnt(0)")
    ep_wait("a")
    p(f"s_add_u32 s{S_T0}, s{S_XCC}, s{S_EP}"); p(f"s_add_u32 s{S_PV}, s{S_EP}, 1")
    p(f"v_add_u32_e64 v32, s{S_T0}, 1"); p("v_mov_b32 v33, v73")
    p(f"buffer_store_dwordx2 v[32:33], v31, s[{S_WS}:{S_WS+3}], s{S_FO} offen sc1")
    if 'wdelay' in ABL: p("s_barrier")
    if 'finepro' in ABL: stamp(p, 5)
    p(f"s_mov_b32 s{S_SPIN}, 0x40000")
    p.label("L_xpoll")
    p(f"buffer_load_dwordx2 v[34:35], v30, s[{S_WS}:{S_WS+3}], s{S_FO} offen sc1")
    p("s_waitcnt vmcnt(0)")
    for t in flag_test(34): p(t)
    p("v_cmp_le_u32 vcc, 7, v34")
    p("s_cbranch_vccz L_xready")
    p(f"s_sub_u32 s{S_SPIN}, s{S_SPIN}, 1"); p(f"s_cmp_lg_u32 s{S_SPIN}, 0"); p("s_cbranch_scc1 L_xpoll")
    p("s_branch L_xready")
    p.label("L_noxs")
    if 'finepro' in ABL: stamp(p, 4)
    if 'wdelay' in ABL: p("s_barrier")
    w3(1)
    if PV_ == 'D': w3(2)
    HOP = 'nohop' not in ABL
    if HOP:
        p("s_mov_b64 exec, 0")
        p(f"s_cmp_eq_u32 s{S_WAVE}, 1"); p("s_cbranch_scc1 L_pad0")
        p(f"s_cmp_eq_u32 s{S_WAVE}, 2"); p("s_cbranch_scc1 L_pad1")
        p("s_branch L_pad2")
        p.label("L_padend")
        p("s_mov_b64 exec, -1")
    if 'finepro' in ABL: stamp(p, 5)
    if HOP: p("s_branch L_xready")
    p.label("L_xready", 12 if HOP else None)
    p("s_barrier")
    if 'finepro' in ABL: stamp(p, 6)
    issue(x_loads(0, 3))
    p("v_lshrrev_b32 v18, 2, v17"); p("v_and_b32 v19, 3, v17"); p("v_and_b32 v21, 3, v18")
    p(f"s_lshl_b32 s{S_W1K}, s{S_WAVE}, 10")
    p("v_lshl_add_u32 v23, v20, 3, v21"); p("v_lshlrev_b32 v24, 8, v23"); p("v_lshl_add_u32 v24, v19, 4, v24"); p(f"v_add_u32 v24, {40*1024}, v24")
    for sg_ in range(4):
        p(f"v_xor_b32 v25, {sg_}, v21"); p(f"v_lshl_add_u32 v{V_RQ+sg_}, v25, 6, v24"); p(f"v_add_u32 v{V_RQ+4+sg_}, {64*1024}, v{V_RQ+sg_}")
    p("v_lshlrev_b32 v23, 6, v23")
    p("v_and_b32 v24, 1, v20"); p("v_lshlrev_b32 v24, 5, v24")
    p("v_lshl_add_u32 v25, v19, 3, v23")
    p(f"v_add_u32 v{V_RA}, v25, v24"); p(f"v_add_u32 v{V_RA}, {40*1024}, v{V_RA}")
    p(f"v_xor_b32 v{V_RA+1}, 32, v{V_RA}")
    p(f"v_add_u32 v{V_RA+2}, {64*1024}, v{V_RA}"); p(f"v_add_u32 v{V_RA+3}, {64*1024}, v{V_RA+1}")
    p(f"s_and_b32 s{S_T2}, s{S_J}, 1"); p(f"s_lshl_b32 s{S_T0}, s{S_T2}, 5")
    p(f"v_xor_b32 v{V_RH}, s{S_T0}, v{V_RA}"); p(f"v_add_u32 v{V_RH+1}, {64*1024}, v{V_RH}")
    p("v_lshrrev_b32 v23, 5, v17"); p("v_lshlrev_b32 v23, 1, v23"); p("v_xor_b32 v23, v23, v19")
    p(f"v_mul_u32_u24 v24, 9216, v18"); p(f"v_lshl_add_u32 v{V_WF}, v23, 4, v24")
    p(f"v_mov_b32 v{V_C1}, {f2u(GC1)}"); p(f"v_mov_b32 v{V_C2}, {f2u(GC2)}")
    p(f"s_mul_i32 s{S_W3K}, s{S_WAVE}, 3072")
    p(f"s_mul_i32 s{S_BH}, s{S_WAVE}, {48*9216}")
    p(f"s_mul_i32 s{S_RS}, s{S_J}, 288"); p(f"s_add_u32 s{S_RS}, s{S_RS}, s{S_T0}")
    p(f"s_add_u32 s{S_BF}, s{S_BH}, s{S_RS}")
    p(f"s_lshr_b32 s{S_T0}, s{S_J}, 1"); p(f"s_lshl_b32 s{S_T0}, s{S_T0}, 19")
    for d, b in ((S_K, 64), (S_V, 66)):
        p(f"s_add_u32 s{d}, s{b}, s{S_T0}"); p(f"s_addc_u32 s{d+1}, s{b+1}, 0"); p(f"s_mov_b32 s{d+2}, 524288"); p(f"s_mov_b32 s{d+3}, 0x20000")
    p(f"s_lshr_b32 s{S_T0}, s{S_J}, 1"); p(f"s_mul_i32 s{S_KOFF}, s{S_T0}, 576"); p(f"s_add_u32 s{S_KOFF}, s{S_KOFF}, 256")
    p(f"s_add_u32 s{S_BH}, s{S_BH}, s{S_KOFF}")
    def hoff(dst, colreg, add):
        p(f"s_lshr_b32 s{S_T0}, s{colreg}, 6"); p(f"s_add_u32 s{S_T0}, s{S_T0}, {add}")
        p(f"s_lshr_b32 s{S_T1}, s{S_T0}, 2"); p(f"s_lshl_b32 s{S_T1}, s{S_T1}, 19")
        p(f"s_and_b32 s{S_T0}, s{S_T0}, 3"); p(f"s_lshl_b32 s{S_T0}, s{S_T0}, 10")
        p(f"s_add_u32 s{dst}, s{S_T0}, s{S_T1}"); p(f"s_add_u32 s{dst}, s{dst}, s{S_OBASE}")
    hoff(S_HHALF, S_KOFF, 0); p(f"s_lshl_b32 s{S_T0}, s{S_T2}, 3"); p(f"s_add_u32 s{S_HHALF}, s{S_HHALF}, s{S_T0}")
    for t in range(4): hoff(S_HF + t, S_RS, t)
    p(f"s_lshl_b32 s{S_T0}, s{S_J}, 19"); p(f"s_add_u32 s{S_OBASE}, s{S_OBASE}, s{S_T0}")
    p(f"s_mov_b32 s{S_THR}, {f2u(THRESH)}")
    p(f"s_lshl_b32 s{S_T0}, s{S_WAVE}, 2"); p(f"v_add_u32 v23, s{S_T0}, v20")
    p(f"v_xor_b32 v24, v22, v23"); p(f"v_lshlrev_b32 v24, 4, v24"); p(f"v_lshl_add_u32 v{V_KD}, v23, 8, v24")
    p(f"v_and_b32 v24, 7, v23"); p(f"v_lshlrev_b32 v24, 1, v24"); p(f"v_xor_b32 v24, v22, v24"); p(f"v_lshlrev_b32 v24, 4, v24"); p(f"v_lshl_add_u32 v{V_VD}, v23, 8, v24")
    for ks in range(2, 4):
        p(f"v_add_u32 v23, {4*ks}, v20"); p("v_xor_b32 v23, v23, v22"); p("v_lshlrev_b32 v23, 4, v23"); p(f"v_lshl_add_u32 v{V_KA+ks}, v22, 8, v23")
    p("v_and_b32 v24, 7, v18"); p("v_lshlrev_b32 v25, 8, v18"); p("v_lshl_add_u32 v25, v19, 3, v25"); p("v_add_u32 v25, 0x10000, v25")
    for dt in range(8):
        p(f"v_xor_b32 v23, {dt}, v24"); p(f"v_lshl_add_u32 v{V_VA+dt}, v23, 5, v25")
    p(f"s_lshl_b32 s{S_T0}, s{S_WAVE}, 14"); p(f"s_cmp_eq_u32 s{S_WAVE}, 2"); p(f"s_cselect_b32 s{S_T0}, 0x10000, s{S_T0}")
    p(f"s_add_u32 s{S_T1}, s{S_T0}, 8192"); p(f"s_cmp_eq_u32 s{S_WAVE}, 3"); p(f"s_cselect_b32 s{S_T0}, 0x8000, s{S_T0}"); p(f"s_cselect_b32 s{S_T1}, {152*1024}, s{S_T1}")
    p(f"v_add_u32 v{V_QP}, s{S_T0}, v{V_L16}"); p(f"v_add_u32 v{V_QP+1}, s{S_T1}, v{V_L16}")

    groups = []
    for st in range(NST):
        kind, t, sub, buf = stages[st]
        if kind == "q":
            for nt in range(8): groups.append((st, nt, 0))
        else:
            nts = [0, 2] if kind == "h" else [0, 1, 2, 3]
            for c0 in (0, 3):
                for nt in nts: groups.append((st, nt, c0))
    def a_reads(gi):
        st, nt, c0 = groups[gi]; kind, t, sub, buf = stages[st]
        hb, off = wbase(st % 4)
        out = []
        for c in range(3):
            for tt in range(2):
                d = V_AF + (gi % 3) * 12 + c * 4 + 2 * tt
                if kind == "q":
                    addr = V_RQ + 4 * hb + (nt >> 1); o = off + c * 8192 + tt * 1024 + 8 * (nt & 1)
                else:
                    addr = (V_RA + 2 * hb + (nt & 1)) if kind == "f" else (V_RH + hb)
                    o = off + (nt >> 1) * 12288 + (c0 + c) * 2048 + tt * 256
                out.append((f"ds_read_b64_tr_b16 v[{d}:{d+1}], v{addr} offset:{o}", f"A{gi%3}"))
        return out
    acc = lambda buf, nt, mt: V_ACC + buf * 64 + (nt * 4 + mt) * 4
    gaps = []; gstart = []
    for gi, (st, nt, c0) in enumerate(groups):
        gstart.append(len(gaps))
        kind, t, sub, buf = stages[st]
        for mt in range(4):
            for c in range(3):
                a = acc(buf, nt, mt); af = V_AF + (gi % 3) * 12 + c * 4
                ks = (sub * 3 if kind == "q" else sub * 6 + c0) + c
                C = "0" if ks == 0 else f"v[{a}:{a+3}]"
                gaps.append(Gap(f"v_mfma_f32_16x16x32_bf16 v[{a}:{a+3}], v[{af}:{af+3}], {xreg(ks, mt)}, {C}"))
    NG = len(groups)
    first_of_stage = {}
    for gi, (st, nt, c0) in enumerate(groups): first_of_stage.setdefault(st, gi)
    bar_gap = {}
    for gi in range(2, NG):
        st = groups[gi][0]; f = first_of_stage[st]
        rd = a_reads(gi)
        if gi == f:
            g0 = gstart[gi - 1]; bar_gap[st] = g0 - 1
            for n, r in enumerate(rd): gaps[g0 + n].mem.append(r)
        elif gi == f + 1:
            g0 = gstart[gi - 2]
            for n, r in enumerate(rd): gaps[g0 + 6 + n].mem.append(r)
        else:
            g0 = gstart[gi - 2]
            for n, r in enumerate(rd): gaps[g0 + 2 * n].mem.append(r)
    for gi in range(1, NG):
        g = gaps[gstart[gi] - 1]
        st, nt, c0 = groups[gi]
        vm = []
        if st < 6 and nt == 0: vm.append(f"X{st}")
        nxt = groups[gi + 1][0] if gi + 1 < NG else None
        if nxt is not None and nxt != st:
            g.sh.append(WaitFor(vm=vm + [f"W{nxt}"], lg0=True)); g.sh.append("s_barrier")
        else:
            g.sh.append(WaitFor(lg=(f"A{gi%3}",), vm=vm))
    def place_mem(gaps, ops, g0, g1, dense=False, want=0):
        pitch = max(1.0, (g1 - g0 - 8) / len(ops)) if not dense else 1.0
        last = g0
        for n, (sal, op) in enumerate(ops):
            g = max(last + 1 + len(sal), int(g0 + 2 + n * pitch))
            while True:
                assert g < g1, (g0, g1, n, len(ops))
                ok = (len(gaps[g].mem) <= 1 if dense else len(gaps[g].mem) == want) and all(len(gaps[g - len(sal) + i].sh) == 0 for i in range(len(sal)))
                if ok: break
                g += 1
            for i, s in enumerate(sal): gaps[g - len(sal) + i].sh.append(s)
            gaps[g].mem.append(op); last = g
    for st in range(NST):
        g0 = gstart[first_of_stage[st]]
        g1 = bar_gap[st + 1] if st + 1 < NST else len(gaps)
        ops = []
        if st == 0: ops = (w_dma(2) if PV_ != 'D' else []) + x_loads(6, 9) + w_dma(3)
        elif st == 1: ops = x_loads(9, 12) + w_dma(4)
        elif st == 2: ops = x_loads(12, 15) + w_dma(5)
        elif st == 3: ops = x_loads(15, 18) + w_dma(6)
        elif st + 3 < NST: ops = w_dma(st + 3)
        if st == 4: ops = [([], (f"buffer_load_dwordx2 v[74:75], v{V_TA}, s[{S_WS}:{S_WS+3}], s{S_FO} offen sc1", "GX"))] + ops
        if st == 18: ops += kv_dma("V", VS(0), None, 0)
        if st == 19: ops += kv_dma("K", KS(0), None, 0)
        if st == 20: ops += kv_dma("K", KS(1), None, 16384) + kv_dma("V", VS(1), None, 16384) + kv_dma("K", KS(2), None, 32768)
        if ops: place_mem(gaps, ops, g0, g1 if st < 20 else g0 + 60)
        if st == 19:
            cand = [g for g in range(g0 + 3, g1 - 2) if not gaps[g].mem][::2]
            assert len(cand) >= 16
            for f, g in enumerate(cand[:16]):
                gaps[g].mem.append((f"ds_read_b128 a[{A_Q+4*f}:{A_Q+4*f+3}], v{V_QP + f//8} offset:{(f%8)*1024}", "QR"))
    def ffn_epi(st0, pk=False, mts=(0, 1, 2, 3)):
        kind, t, sub, buf = stages[st0]
        q = []
        for mt in mts:
            if kind == "f": el = [(acc(buf, n, mt) + r, acc(buf, 2 + n, mt) + r) for n in range(2) for r in range(4)]
            else: el = [(acc(buf, 0, mt) + r, acc(buf, 2, mt) + r) for r in range(4)]
            T = V_T + 8 * (mt % 2)
            if pk:
                pr = lambda r: f"v[{r}:{r+1}]"
                ev = list(enumerate(el))[::2]
                for e, (g, u) in ev: q.append(f"v_pk_mul_f32 {pr(T+e)}, {pr(g)}, {pr(g)}")
                for e, (g, u) in ev: q.append(f"v_pk_fma_f32 {pr(T+e)}, {pr(T+e)}, {pr(V_C1)}, {pr(V_C1)} op_sel:[0,1,0] op_sel_hi:[1,1,0]")
                for e, (g, u) in ev: q.append(f"v_pk_mul_f32 {pr(T+e)}, {pr(T+e)}, {pr(g)}")
                for e, (g, u) in enumerate(el): q.append(f"v_exp_f32 v{T+e}, v{T+e}")
                for e, (g, u) in ev: q.append(f"v_pk_mul_f32 {pr(g)}, {pr(g)}, {pr(u)}")
                for e, (g, u) in ev: q.append(f"v_pk_add_f32 {pr(T+e)}, {pr(T+e)}, 1.0 op_sel_hi:[1,0]")
                for e, (g, u) in enumerate(el): q.append(f"v_rcp_f32 v{T+e}, v{T+e}")
                for e, (g, u) in ev: q.append(f"v_pk_mul_f32 {pr(g)}, {pr(g)}, {pr(T+e)}")
            else:
                for e, (g, u) in enumerate(el): q.append(f"v_mul_f32 v{T+e}, v{g}, v{g}")
                for e, (g, u) in enumerate(el): q.append(f"v_fma_f32 v{T+e}, v{T+e}, v{V_C2}, v{V_C1}")
                for e, (g, u) in enumerate(el): q.append(f"v_mul_f32 v{T+e}, v{T+e}, v{g}")
                for e, (g, u) in enumerate(el):
                    q.append(f"v_exp_f32 v{T+e}, v{T+e}"); q.append(f"v_mul_f32 v{g}, v{g}, v{u}")
                for e, (g, u) in enumerate(el): q.append(f"v_add_f32 v{T+e}, 1.0, v{T+e}")
                for e, (g, u) in enumerate(el): q.append(f"v_rcp_f32 v{T+e}, v{T+e}")
                for e, (g, u) in enumerate(el): q.append(f"v_mul_f32 v{g}, v{g}, v{T+e}")
            o = V_HO + 4 * (mt % 2)
            for i in range(len(el) // 2): q.append(f"v_cvt_pk_bf16_f32 v{o+i}, v{el[2*i][0]}, v{el[2*i+1][0]}")
            if kind == "f":
                q.append(("MEM", [f"s_add_u32 s{S_T2}, s{S_HF+t}, {H_OFF + mt*4096}"], (f"buffer_store_dwordx4 v[{o}:{o+3}], v{V_L16}, s[{S_WS}:{S_WS+3}], s{S_T2} offen{SCH}", None)))
            else:
                q.append(("MEM", [f"s_add_u32 s{S_T2}, s{S_HHALF}, {H_OFF + mt*4096}"], (f"buffer_store_dwordx2 v[{o}:{o+1}], v{V_L16}, s[{S_WS}:{S_WS+3}], s{S_T2} offen{SCH}", None)))
        return q
    def q_epi(seg):
        q = []
        for mt in range(4):
            rs = [acc(0, 2 * seg, mt) + r for r in range(4)] + [acc(0, 2 * seg + 1, mt) + r for r in range(4)]
            o = V_T + 4 * ((seg * 4 + mt) % 4)
            for r in rs: q.append(f"v_mul_f32 v{r}, {f2u(QSCALE)}, v{r}")
            for i in range(4): q.append(f"v_cvt_pk_bf16_f32 v{o+i}, v{rs[2*i]}, v{rs[2*i+1]}")
            f = mt * 4 + seg
            q.append(("MEM", [], (f"ds_write_b128 v{V_QP + f//8}, v[{o}:{o+3}] offset:{(f%8)*1024}", None)))
        return q
    sg = lambda st: gstart[first_of_stage[st]]
    gaps[bar_gap[20] - 11].post += [f"s_load_dwordx2 s[64:65], s[0:1], {ARG['wo']}", f"s_load_dwordx2 s[66:67], s[0:1], {ARG['wd']}",
                                    f"s_load_dwordx2 s[{S_OUT}:{S_OUT+1}], s[0:1], {ARG['out']}"]
    g_ = gaps[sg(8) + 1]
    g_.post += [WaitFor(vm=("GX",)), f"v_subrev_u32 v74, s{S_XCC}, v74", f"v_xor_b32 v75, s{S_EP2}, v75", "v_min_u32 v75, 1, v75", "v_lshl_or_b32 v74, v75, 8, v74", "v_cmp_le_u32 vcc, 8, v74", "s_nop 1",
                "s_cmp_lg_u64 vcc, 0", f"s_cselect_b32 s{S_MIX}, 1, {1 if 'forcemix' in ABL else 0}"]
    f5 = first_of_stage[5]
    q = []; mins = []
    for seg in range(4):
        e_ = q_epi(seg); q += e_; mins += [gstart[f5 + 2 * seg + 2] + 3] * len(e_)
    left = fill_valu(gaps[:sg(9) - 3], gstart[f5 + 2] + 3, q, mins=mins); assert not left, len(left)
    for seg, lim_ in ((0, sg(6) - 3), (1, sg(6) + 9)):
        cv_ = [x for x in q_epi(seg) if isinstance(x, str)]
        lastg = max(gi for gi, g in enumerate(gaps) for x in g.valu if x in cv_ and gi < sg(9))
        assert lastg < lim_, (seg, lastg, lim_)
    for st0 in (6, 9, 12, 15):
        end = sg(st0 + 6) - 3 if st0 + 6 < NST else len(gaps)
        left = fill_valu(gaps[:end], sg(st0 + 3) + 3, ffn_epi(st0)); assert not left, (st0, len(left))
    left = fill_valu(gaps, sg(19), [f"v_xor_b32 v{V_KA}, 128, v{V_KA+2}", f"v_xor_b32 v{V_KA+1}, 128, v{V_KA+3}"]); assert not left
    issue(x_loads(3, 6))
    p.items.append(WaitFor(vm=("X0",)))
    p("s_barrier")
    for t, tag in a_reads(0) + a_reads(1): p(t, tag)
    ep_wait("b")
    p(f"s_add_u32 s{S_XCC}, s{S_XCC}, s{S_EP}")
    p.items.append(WaitFor(lg=("A0",)))
    stamp(p, 1)
    if 'finepro' in ABL:
        gaps[sg(1) - 1].post += stamp_ops(7); gaps[sg(2) - 1].post += stamp_ops(8); gaps[sg(3) - 1].post += stamp_ops(9)
    elif 'fine1' in ABL:
        for st in range(6, 21): gaps[sg(st) - 1].post += stamp_ops(st - 4)
    else:
        gaps[sg(6) - 1].post += stamp_ops(2); gaps[sg(12) - 1].post += stamp_ops(3)
    emit_gaps(p, gaps)
    if 'fine1' in ABL:
        stamp(p, 17); globals()['ABL'] += ',finepro'
    if 'finepro' not in ABL: stamp(p, 4)

    Sreg = lambda par, kt, qt: V_S + (1 - par) * 64 + (kt * 4 + qt) * 4
    Preg = lambda par, kb, qt: (V_P0 + par * 16 + qt * 4) if kb == 0 else (V_P1 + qt * 4)
    Kf = lambda kt, ks: A_KF + (kt % 2) * 16 + ks * 4
    Vf = lambda dt, kb: A_VF + (dt % 4) * 8 + kb * 4
    def k_reads(slot, kt):
        return [(f"ds_read_b128 a[{Kf(kt,ks)}:{Kf(kt,ks)+3}], v{V_KA+ks} offset:{slot*16384 + kt*4096}", f"KF{kt%2}") for ks in range(4)]
    def v_reads(slot, dt):
        return [(f"ds_read_b64_tr_b16 a[{Vf(dt,kb)+2*t}:{Vf(dt,kb)+2*t+1}], v{V_VA+dt} offset:{slot*16384 + kb*8192 + t*4096}", f"VF{dt%4}") for kb in range(2) for t in range(2)]
    def qk_mfma(par, kt, qt, ks, zero=False):
        s = Sreg(par, kt, qt)
        C = f"v[{s}:{s+3}]" if ks else ("0" if zero else f"v[{V_NM+4*qt}:{V_NM+4*qt+3}]")
        qf = A_Q + (qt * 4 + ks) * 4
        return f"v_mfma_f32_16x16x32_bf16 v[{s}:{s+3}], a[{Kf(kt,ks)}:{Kf(kt,ks)+3}], a[{qf}:{qf+3}], {C}"
    def pv_mfma(par, dt, qt, kb):
        o = A_O + (dt * 4 + qt) * 4; pr = Preg(par, kb, qt)
        return f"v_mfma_f32_16x16x32_bf16 a[{o}:{o+3}], a[{Vf(dt,kb)}:{Vf(dt,kb)+3}], v[{pr}:{pr+3}], a[{o}:{o+3}]"
    def l_mfma(par, qt, kb):
        pr = Preg(par, kb, qt)
        return f"v_mfma_f32_16x16x32_bf16 v[{V_LD}:{V_LD+3}], v[{V_ONE}:{V_ONE+3}], v[{pr}:{pr+3}], " + ("0" if kb == 0 else f"v[{V_LD}:{V_LD+3}]")
    def elem(par, tau):
        kb = tau // 32; r = tau % 32; qt = 2 * (r // 16) + ((r % 4) >> 1); j = 2 * ((r % 16) // 4) + (r & 1)
        return Sreg(par, 2 * kb + (j >> 2), qt) + (j & 3), kb, qt, j
    def op_exp(par, tau): return f"v_exp_f32 v{V_E + tau % 8}, v{elem(par, tau)[0]}"
    def op_add(par, tau):
        s, kb, qt, j = elem(par, tau); assert qt % 2 == 1
        src = V_LS + (1 - par) * 4 + qt if (kb == 0 and j == 0) else V_LS + par * 4 + qt
        return f"v_add_f32 v{V_LS + par*4 + qt}, v{src}, v{V_E + tau % 8}"
    def op_ladd(par, qt): return f"v_add_f32 v{V_LS + par*4 + qt}, v{V_LS + (1-par)*4 + qt}, v{V_LD}"
    def op_cvt(par, tau):
        s, kb, qt, j = elem(par, tau); assert tau % 2 == 1
        return f"v_cvt_pk_bf16_f32 v{Preg(par, kb, qt) + j//2}, v{V_E + (tau-1) % 8}, v{V_E + tau % 8}"
    def rowmax(p, par, qt, dst):
        regs = [Sreg(par, kt, qt) + r for kt in range(4) for r in range(4)]
        p(f"v_max3_f32 v{dst}, v{regs[0]}, v{regs[1]}, v{regs[2]}")
        for i in range(3, 15, 2): p(f"v_max3_f32 v{dst}, v{dst}, v{regs[i]}, v{regs[i+1]}")
        p(f"v_max_f32 v{dst}, v{dst}, v{regs[15]}")
    def xlane_ops(op, dsts, t1):
        o = []
        for sw in ("v_permlane32_swap_b32", "v_permlane16_swap_b32"):
            for q, d in enumerate(dsts): o.append(f"v_mov_b32 v{t1+q}, v{d}")
            for q, d in enumerate(dsts): o.append(f"{sw} v{d}, v{t1+q}")
            for q, d in enumerate(dsts): o.append(f"{op} v{d}, v{d}, v{t1+q}")
        return o

    p.items.append(WaitFor(vm=(f"K{KS(0)}",), lg0=True)); p("s_barrier")
    for t, tag in k_reads(KS(0), 0) + k_reads(KS(0), 1): p(t, tag)
    g0 = []
    for kt in range(4):
        for qt in range(4):
            for ks in range(4): g0.append(Gap(qk_mfma(0, kt, qt, ks, zero=True)))
    for n, r in enumerate(k_reads(KS(0), 2)): g0[16 + 2 * n].mem.append(r)
    for n, r in enumerate(k_reads(KS(0), 3)): g0[32 + 2 * n].mem.append(r)
    g0[31].sh.append(WaitFor(lg=("KF0",))); g0[47].sh.append(WaitFor(lg=("KF1",)))
    place_mem(g0, kv_dma("K", KS(3), None, 3 * 16384) + kv_dma("V", VS(2), None, 2 * 16384), 0, 40)
    full = ffn_epi(18); per = len(full) // 4
    npre = 24
    if 'finea' in ABL: stamp(p, 0)
    emit_ops(p, full[:npre])
    left = fill_valu(g0, 0, full[npre:2 * per])
    left += ffn_epi(18, pk=True, mts=(2, 3))
    p.items.append(WaitFor(lg=("KF0", "KF1")))
    sal = [f"s_mov_b32 s{S_OUT+2}, {XN_BYTES}",
           f"s_and_b32 s{S_T0}, s{S_J}, 7", f"s_lshl_b32 s{S_T1}, s{S_RB}, 3", f"s_add_u32 s{S_T0}, s{S_T0}, s{S_T1}",
           f"s_lshl_b32 s{S_T0}, s{S_T0}, 2", f"s_add_u32 s{S_T0}, s{S_T0}, s{S_WAVE}", f"s_lshr_b32 s{S_KOFF}, s{S_J}, 3",
           f"s_sub_u32 s{S_T1}, s{S_T0}, 120", f"s_cmp_lt_u32 s{S_T0}, 120",
           f"s_cselect_b32 s{S_RE}, s{S_T0}, s{S_T1}", f"s_movk_i32 s{S_RNW}, 136", f"s_cselect_b32 s{S_RNW}, 120, s{S_RNW}",
           f"s_cselect_b32 s{S_WG}, s64, s66", f"s_cselect_b32 s{S_WG+1}, s65, s67",
           f"s_mov_b32 s{S_WG+2}, {1152*1152}", f"s_cselect_b32 s{S_WG+2}, {1024*1152}, s{S_WG+2}", f"s_mov_b32 s{S_WU+2}, s{S_WG+2}",
           f"s_mov_b32 s{S_T0}, {WPD_OFF}", f"s_cselect_b32 s{S_T0}, {WPO_OFF}, s{S_T0}",
           f"s_mul_i32 s{S_T1}, s{S_KOFF}, s{S_WG+2}",
           f"s_add_u32 s{S_WG}, s{S_WG}, s{S_T1}", f"s_addc_u32 s{S_WG+1}, s{S_WG+1}, 0",
           f"s_add_u32 s{S_T0}, s{S_T0}, s{S_T1}", f"s_add_u32 s{S_WU}, s70, s{S_T0}", f"s_addc_u32 s{S_WU+1}, s71, 0",
           f"s_sub_u32 s{S_RE}, s{S_RE}, s{S_RNW}",
           f"s_mov_b32 s{S_KOFF}, {4*16384}", f"s_mov_b32 s{S_VOFF}, {3*16384}", f"s_mov_b32 s{S_CNT}, 7",
           f"s_lshl_b32 s{S_BQ}, s{S_WAVE}, 11", f"s_add_u32 s{S_BQ}, s{S_BQ}, {128*1024}"]
    fr_ = [g for g in g0[41:] if not g.sh]
    k_ = sal.index(f"s_cmp_lt_u32 s{S_T0}, 120")
    for t, g in zip(sal[:k_], fr_): g.sh.append(t)
    emit_gaps(p, g0)
    emit_ops(p, left)
    for t in sal[k_:]: p(t)
    for q in range(4): p(f"v_mov_b32 v{V_LS+4+q}, 0")
    for q in range(4): p(f"v_mov_b32 v{V_ONE+q}, 0x3f803f80")
    p.items.append(WaitFor(vm=(f"K{KS(1)}", f"V{VS(0)}"))); p("s_barrier")
    for t, tag in k_reads(KS(1), 0) + k_reads(KS(1), 1): p(t, tag)
    p(f"v_lshrrev_b32 v{V_PT+1}, 4, v{V_L16}")
    p(f"v_lshrrev_b32 v{V_RPG}, 2, v{V_PT+1}"); p(f"v_and_b32 v{V_PT}, 3, v{V_PT+1}")
    p(f"v_lshlrev_b32 v{V_RPL}, 6, v{V_RPG}"); p(f"v_lshl_add_u32 v{V_RPL}, v{V_PT}, 3, v{V_RPL}"); p(f"v_add_u32 v{V_RPL}, s{S_BQ}, v{V_RPL}")
    p(f"v_mul_u32_u24 v{V_RPG}, 1152, v{V_RPG}"); p(f"v_lshl_add_u32 v{V_RPG}, v{V_PT}, 4, v{V_RPG}")
    p(f"s_and_b32 s{S_T1}, s{S_J}, 24"); p(f"s_lshl_b32 s{S_T1}, s{S_T1}, 6"); p(f"v_and_b32 v{V_PT}, 7, v{V_PT+1}")
    p(f"v_lshrrev_b32 v{V_PA}, 3, v{V_PT+1}"); p(f"v_lshlrev_b32 v{V_PA}, 11, v{V_PA}"); p(f"v_lshl_add_u32 v{V_PA}, v{V_PT}, 3, v{V_PA}")
    p(f"v_add_u32 v{V_PA}, s{S_T1}, v{V_PA}")
    p(f"v_mov_b32 v{V_SV+1}, s{S_EP2}")
    zm = [f"v_mfma_f32_32x32x16_bf16 a[{A_O+16*i}:{A_O+16*i+15}], v[{V_LS+4}:{V_LS+7}], v[{V_LS+4}:{V_LS+7}], 0" for i in range(8)]
    for qt in range(4):
        p(zm[qt]); rowmax(p, 0, qt, V_R + qt)
    for n, t in enumerate(xlane_ops("v_max_f32", [V_R + q for q in range(4)], V_R + 4)):
        if n % 8 == 0: p(zm[4 + n // 8])
        p(t)
    p(zm[7])
    for qt in range(4):
        for r in range(4): p(f"v_sub_f32 v{V_NM+4*qt+r}, {f2u(-BIAS) if BIAS else 0}, v{V_R+qt}")
    for kt in range(4):
        for qt in range(4):
            for r in (0, 2):
                s_ = Sreg(0, kt, qt) + r
                p(f"v_pk_add_f32 v[{s_}:{s_+1}], v[{s_}:{s_+1}], v[{V_NM+4*qt}:{V_NM+4*qt+1}]")
    for tau in range(36):
        p(op_exp(0, tau))
        if tau % 4 == 0 and tau: p(op_add(0, tau - 1)); p(op_cvt(0, tau - 1))
        if tau % 4 == 2: p(op_cvt(0, tau - 1))
        if tau % 4 == 3: p(op_add(0, tau - 1))
    p.items.append(WaitFor(lg=("KF0",)))
    p(op_add(0, 35))
    if 'finepro' not in ABL: stamp(p, 5); stamp_rt(p, 15)

    rare_sites = []
    class Tile: pass
    def used(g): return len(g.mem) + sum(slots_of(v) for v in g.valu)
    def att_tile(it, last_block=False, first_mfmas=None):
        par = it % 2
        final = last_block and it == 3
        T = Tile(); G = []; Q = []; PV = []; LG = []
        mf = first_mfmas or [qk_mfma(1 - par, kt, qt, ks) for kt in range(4) for qt in range(4) for ks in range(4)]
        for i, m in enumerate(mf):
            g = Gap(m); G.append(g); Q.append(g)
            if i in (19, 23, 51, 55):
                g = Gap(l_mfma(par, 0 if i < 32 else 2, 0 if i in (19, 51) else 1)); G.append(g); LG.append(g)
        for dt in range(8):
            for qt in range(4):
                for kb in range(2):
                    g = Gap(pv_mfma(par, dt, qt, kb)); G.append(g); PV.append(g)
        T.G, T.Q, T.PV, T.LG = G, Q, PV, LG
        idx = {id(g): i for i, g in enumerate(G)}
        T.idx = lambda g: idx[id(g)]
        br = Q[-1]
        for b in range(64):
            E, N = (Q[2*b], Q[2*b+1]) if b < 32 else (PV[2*b-64], PV[2*b-63])
            sp, tau = (par, 36 + b) if b < 28 else (1 - par, b - 28)
            if tau % 4 == 0:
                if not (final and b > 28): N.valu.append(op_cvt(sp, tau - 1) if b != 28 else op_cvt(par, 63))
            if final and b >= 28: continue
            E.valu.append(op_exp(sp, tau))
            if tau % 4 == 1: N.valu.append(op_cvt(sp, tau))
            if tau % 4 >= 2: (br if b in (30, 31) else N).valu.append(op_add(sp, tau))
        L = V_LS + par * 4
        site = f"{'z' if last_block else 'l'}{it}"; rare_sites.append((site, "Z" if final else str(par)))
        Q[29].valu.append(op_ladd(par, 0))
        Q[57].valu.append(f"v_max3_f32 v{V_CK}, v{L}, v{L+1}, v{L+3}")
        Q[59].valu.append(op_ladd(par, 2))
        Q[61].valu += [f"v_max_f32 v{V_CK}, v{V_CK}, v{L+2}", f"v_cmp_lt_f32 vcc, s{S_THR}, v{V_CK}"]
        br.sh += [f"s_cbranch_vccnz L_rare_stub{site}", Label(f"L_rare_ret{site}")]
        PV[1].sh.append("s_barrier"); T.wv = []
        T.reserved = {id(PV[0]), id(PV[1])}
        if 'barE' in ABL and not final:
            PV[3].valu = PV[1].valu + PV[3].valu; PV[1].valu = []; T.reserved.add(id(PV[3]))
        kslot1, kslot2, vslot = KS(it + 1), KS(it + 2), VS(it)
        if not final:
            Q[15].sh.append(WaitFor(lg=("KF1",))); Q[31].sh.append(WaitFor(lg=("KF0",))); Q[47].sh.append(WaitFor(lg=("KF1",)))
        Q[-2].sh.append(WaitFor(lg=("VF0", "VF1", "VF2", "VF3")))
        for dt in range(4, 8): PV[8 * dt - 1].sh.append(WaitFor(lg=(f"VF{dt%4}",)))
        T.cur = 0; T.lastdma = -1
        def put(op, lo=None, sal=(), cap=2):
            g = max(T.cur, T.idx(lo) if lo is not None else 0)
            while True:
                assert g < len(G), op
                ok = not G[g].mem and used(G[g]) < cap and id(G[g]) not in T.reserved
                if ok and sal:
                    fr = [h for h in range(max(T.lastdma + (0 if len(sal) == 2 else 1), g - 6, 0), g) if not G[h].sh and id(G[h]) not in T.reserved]
                    ok = len(fr) >= len(sal)
                if ok: break
                g += 1
            if sal:
                for h, s_ in zip(fr[-len(sal):], sal): G[h].sh.append(s_)
                T.lastdma = g
            G[g].mem.append(op); T.cur = g + 1
            return g
        T.put = put
        def solo(g, sal, op, nxt=None):
            gi = T.idx(g)
            assert not g.mem
            if g.valu:
                assert not nxt.mem; nxt.valu = g.valu + nxt.valu; g.valu = []; T.reserved.add(id(nxt))
            fr = [h for h in range(gi - 3, gi) if not G[h].sh]
            assert len(fr) >= len(sal), (gi, sal)
            for h, s_ in zip(fr[-len(sal):], sal): G[h].sh.append(s_)
            g.mem.append(op); T.lastdma = max(T.lastdma, gi)
        T.solo = solo
        T.endsal = []
        if not final:
            if not (last_block and it >= 2):
                sal_, op = kv_dma("V", VS(it + 2), S_VOFF, -16384)[3]; solo(LG[0], sal_, op)
            if not last_block:
                dk = kv_dma("K", KS(it), S_KOFF, 0)
                solo(LG[1], *dk[0]); solo(Q[41], *dk[1], nxt=Q[43]); solo(LG[2], *dk[2]); solo(LG[3], *dk[3])
                T.endsal.append(f"s_add_u32 s{S_KOFF}, s{S_KOFF}, 16384")
            for r in v_reads(vslot, 0) + v_reads(vslot, 1): put(r)
            for r in k_reads(kslot1, 2): put(r, Q[16])
            v23 = v_reads(vslot, 2) + v_reads(vslot, 3)
            for r in v23[:3]: put(r)
            for r in k_reads(kslot1, 3): put(r, Q[32])
            for r in v23[3:]: put(r)
            assert T.cur <= T.idx(Q[55]), (it, T.cur)
        if not (last_block and it >= 1):
            dv = kv_dma("V", VS(it + 3), S_VOFF, 0)
            solo(PV[5], *dv[0], nxt=PV[7]); solo(PV[57], *dv[1], nxt=PV[59]); solo(PV[61], *dv[2], nxt=PV[63])
        T.cur = T.idx(PV[2])
        T.pv_v = [(r, PV[8 * (dt - 4) + 8]) for dt in range(4, 8) for r in v_reads(vslot, dt)]
        if not (last_block and it >= 2):
            for r, lo in T.pv_v: put(r, lo)
            for r in k_reads(kslot2, 0) + k_reads(kslot2, 1): put(r)
            T.wv.append(f"K{kslot2}")
            T.endsal += [WaitFor(lg=("KF0",)), f"s_add_u32 s{S_VOFF}, s{S_VOFF}, 16384"]
        if not last_block and it == 0:
            sl = [f"s_add_u32 s{S_RE}, s{S_RE}, s{S_RNW}", f"s_mul_i32 s{S_RS}, s{S_RE}, 3641", f"s_lshr_b32 s{S_RS}, s{S_RS}, 16",
                  f"s_mul_i32 s{S_RS}, s{S_RS}, {36864-1152}", f"s_lshl_b32 s{S_RD}, s{S_RE}, 6", f"s_add_u32 s{S_RS}, s{S_RS}, s{S_RD}",
                  f"s_lshl_b32 s{S_RD}, s{S_RE}, 11"]
            for n, s_ in enumerate(sl): Q[2 * n].sh.append(s_)
            Q[58].sh.append(f"s_mov_b32 m0, s{S_BQ}")
            Q[59].mem.append((f"buffer_load_dwordx4 v{V_RPG}, s[{S_WG}:{S_WG+3}], s{S_RS} offen lds", "RD"))
            Q[60].sh.append(f"s_add_u32 s{S_RS}, s{S_RS}, {16*1152-1024}")
            PV[3].mem.append((f"buffer_load_dwordx4 v{V_RPG}, s[{S_WG}:{S_WG+3}], s{S_RS} offen offset:1024 lds", "RD"))
        if not last_block and it == 2:
            PV[3].mem.append((f"ds_read_b64_tr_b16 v[{V_RPS}:{V_RPS+1}], v{V_RPL} offset:0", "RL"))
            PV[7].mem.append((f"ds_read_b64_tr_b16 v[{V_RPS+2}:{V_RPS+3}], v{V_RPL} offset:1024", "RL"))
        if not last_block and it == 3:
            Q[55].mem.append((f"ds_read_b64_tr_b16 v[{V_RPS+4}:{V_RPS+5}], v{V_RPL} offset:32", "RL"))
            Q[57].mem.append((f"ds_read_b64_tr_b16 v[{V_RPS+6}:{V_RPS+7}], v{V_RPL} offset:1056", "RL"))
        if not final: T.wv.append(f"V{VS(it+1)}")
        if not last_block:
            if it == 2: T.wv.append("RD")
            if it == 1:
                T.wv.append("RST")
                PV[10].sh.append(f"s_cmp_le_u32 s{S_CNT}, 2"); PV[11].sh.append(f"s_cselect_b32 s{S_SIG}, 2, 1")
                PV[12].sh.append(f"s_add_u32 s{S_SIG}, s{S_SIG}, s{S_XCC}"); PV[13].valu.append(f"v_mov_b32 v{V_SV}, s{S_SIG}")
                PV[16].sh.append(f"s_cmp_lg_u32 s{S_MIX}, 0"); PV[17].sh += ["s_cbranch_scc1 L_stub_w2", Label("L_ret_w2")]
                PV[20].mem.append((sig_store, None))
            if it == 3:
                PV[3].mem.append((f"buffer_store_dwordx4 v[{V_RPS}:{V_RPS+3}], v{V_L16}, s[{S_WU}:{S_WU+3}], s{S_RD} offen sc1", "RST"))
                PV[12].sh.append(WaitFor(lg=("RL",)))
                PV[14].mem.append((f"buffer_store_dwordx4 v[{V_RPS+4}:{V_RPS+7}], v{V_L16}, s[{S_WU}:{S_WU+3}], s{S_RD} offen offset:1024 sc1", "RST"))
        return T
    def finish_tile(T):
        if T.wv: T.PV[0].sh.append(WaitFor(vm=tuple(T.wv)))
        for s_ in T.endsal:
            if isinstance(s_, WaitFor):
                g = [g for g in T.PV[57:] if not g.sh][0]; g.sh.append(s_)
            else:
                c = [g for g in T.G[T.lastdma:] if not g.sh]
                (c[0].sh if c else T.G[-1].post).append(s_)
        ov = sum(max(0, used(g) - 2) + max(0, len([x for x in g.sh if not isinstance(x, Label)]) - 1) for g in T.G)
        print("tile overflow slots:", ov, "gaps", len(T.G))

    body = Prog(); p = body
    p.label("L_att_loop", 6)
    for it in range(4):
        T = att_tile(it)
        if it == 3: T.PV[40].sh.append(f"s_sub_u32 s{S_CNT}, s{S_CNT}, 1")
        finish_tile(T)
        if it == 3: T.G[-1].post += [f"s_cmp_lg_u32 s{S_CNT}, 0", "s_cbranch_scc1 L_att_loop"]
        for g in T.G:
            if 'Lnodma' in ABL: g.mem = [m for m in g.mem if not m[0].startswith("buffer")]
            if 'Lnobar' in ABL: g.sh = [x for x in g.sh if x != "s_barrier"]
            if 'Lnolds' in ABL: g.mem = [m for m in g.mem if not m[0].startswith("ds_")]
            if 'Lnotr' in ABL: g.mem = [m for m in g.mem if not m[0].startswith("ds_read_b64")]
            if 'Lnobr' in ABL: g.sh = [x for x in g.sh if not (isinstance(x, str) and x.startswith("s_cbranch"))]
            if 'Lnovalu' in ABL: g.valu = [x for x in g.valu if x.startswith(("v_exp", "v_add_u32"))]
            if 'Lnoexp' in ABL: g.valu = [x for x in g.valu if not x.startswith("v_exp")]
            if 'Lnowait' in ABL: g.sh = [x for x in g.sh if not (isinstance(x, WaitFor) and x.lg)]
        emit_gaps(p, T.G)

    tail = Prog(); p = tail
    p(f"s_getpc_b64 s[{S_WG}:{S_WG+1}]")
    p.label("L_pc1")
    p(f"s_and_b32 s{S_WG+1}, s{S_WG+1}, 0xffff"); p(f"s_mov_b32 s{S_WG+2}, L_code_end-L_pc1")
    p(f"s_lshr_b32 s{S_T0}, s2, 3"); p(f"s_lshl_b32 s{S_T0}, s{S_T0}, 2"); p(f"s_add_u32 s{S_T0}, s{S_T0}, s{S_WAVE}"); p(f"s_lshl_b32 s{S_T0}, s{S_T0}, 10")
    p(f"buffer_load_dwordx4 v[{V_RPS}:{V_RPS+3}], v{V_L16}, s[{S_WG}:{S_WG+3}], s{S_T0} offen", "CODE")
    p(f"v_lshrrev_b32 v{V_LANE}, 4, v{V_L16}")
    if 'finepro' not in ABL: stamp(p, 6)
    NP3 = 17
    Breg = lambda s, ks, mt: ((s % 3) * 4 + ks) * 8 + mt * 4
    def p3_w(s):
        off = (WPD_OFF + s * 4 * 36864) if s < 9 else (WPO_OFF + (s - 9) * 4 * 36864)
        base = S_PW if s < 9 else S_PW2
        ops = []
        for i in range(9):
            sal = []
            if i % 4 == 0:
                tm = tmp()
                m0 = f"s_add_u32 m0, s{S_W0B}, {i*1024}" if s == 0 else f"s_add_u32 m0, s{S_W9K}, {P3_SLOT[(s-1)%3] + i*1024}"
                sal = [f"s_add_u32 s{tm}, s{base}, {off + i*1024}", m0]
            ops.append((sal, (f"buffer_load_dwordx4 v{V_L16}, s[{S_WS}:{S_WS+3}], s{tm} offen offset:{(i%4)*1024}{LSC} lds", f"PW{s}")))
        return annotate(ops)
    def p3_b(s):
        off = (H_OFF + s * 524288) if s < 9 else (O_OFF + (s - 9) * 524288)
        base = S_PB0 if s < 9 else S_PB1
        ops = []
        for mt in range(2):
            for ks in range(4):
                r = Breg(s, ks, mt)
                ops.append(([f"s_add_u32 s{S_T2}, s{base}, {off + mt*4096}"] if ks == 0 else [],
                            (f"buffer_load_dwordx4 a[{r}:{r+3}], v{V_L16}, s[{S_WS}:{S_WS+3}], s{S_T2} offen offset:{ks*1024}{LSC}", f"PB{s}")))
        return annotate(ops)
    setup3 = [f"s_lshr_b32 s{S_KOFF}, s{S_J}, 3", f"s_and_b32 s{S_RE}, s{S_J}, 3", f"s_mul_i32 s{S_W9K}, s{S_WAVE}, 9216",
              f"s_mul_i32 s{S_PW2}, s{S_WAVE}, 36864", f"s_mul_i32 s{S_RNW}, s{S_RE}, 9216", f"s_add_u32 s{S_PW2}, s{S_PW2}, s{S_RNW}",
              f"s_mul_i32 s{S_PW}, s{S_KOFF}, {1152*1152}", f"s_add_u32 s{S_PW}, s{S_PW}, s{S_PW2}",
              f"s_mul_i32 s{S_RNW}, s{S_KOFF}, {1024*1152}", f"s_add_u32 s{S_PW2}, s{S_PW2}, s{S_RNW}",
              f"s_lshl_b32 s{S_PST}, s{S_RB}, 3", f"s_and_b32 s{S_RNW}, s{S_J}, 7", f"s_add_u32 s{S_PST}, s{S_PST}, s{S_RNW}",
              f"s_lshr_b32 s{S_FX0}, s{S_PST}, 2",
              f"s_lshl_b32 s{S_PB1}, s{S_FX0}, 2", f"s_add_u32 s{S_PB1}, s{S_PB1}, s{S_WAVE}", f"s_lshl_b32 s{S_PB1}, s{S_PB1}, 13",
              f"s_mul_i32 s{S_PB0}, s{S_KOFF}, {9*524288}", f"s_add_u32 s{S_PB0}, s{S_PB0}, s{S_PB1}",
              f"s_lshl_b32 s{S_RNW}, s{S_KOFF}, 22", f"s_add_u32 s{S_PB1}, s{S_PB1}, s{S_RNW}",
              f"s_mul_i32 s{S_PST}, s{S_PST}, {16*9216}",
              f"s_mul_i32 s{S_FL}, s{S_KOFF}, 9216", f"s_add_u32 s{S_FL}, s{S_FL}, s{S_PST}",
              f"s_mul_i32 s{S_CNT}, s{S_KOFF}, {4*9216}", f"s_add_u32 s{S_PST}, s{S_PST}, s{S_CNT}", f"s_add_u32 s{S_PST}, s{S_PST}, s{S_W9K}",
              f"s_lshl_b32 s{S_FX0}, s{S_FX0}, 2", f"s_add_u32 s{S_FX0}, s{S_FX0}, s{S_KOFF}", f"s_mul_i32 s{S_FX0}, s{S_FX0}, {32*1152}",
              f"s_mul_i32 s{S_CNT}, s{S_RE}, 288", f"s_add_u32 s{S_FX0}, s{S_FX0}, s{S_CNT}", f"s_min_u32 s{S_FX1}, s{S_WAVE}, 1", f"s_lshl_b32 s{S_FX1}, s{S_FX1}, 30",
              f"s_add_u32 s{S_CNT}, s{S_KOFF}, 1", f"s_and_b32 s{S_CNT}, s{S_CNT}, 3", f"s_mul_i32 s{S_FR}, s{S_CNT}, {4*9216}", f"s_add_u32 s{S_FR}, s{S_FR}, s{S_FL}",
              f"s_add_u32 s{S_CNT}, s{S_KOFF}, 2", f"s_and_b32 s{S_CNT}, s{S_CNT}, 3", f"s_mul_i32 s{S_FR+1}, s{S_CNT}, {4*9216}", f"s_add_u32 s{S_FR+1}, s{S_FR+1}, s{S_FL}",
              f"s_add_u32 s{S_CNT}, s{S_KOFF}, 3", f"s_and_b32 s{S_CNT}, s{S_CNT}, 3", f"s_mul_i32 s{S_FR+2}, s{S_CNT}, {4*9216}", f"s_add_u32 s{S_FR+2}, s{S_FR+2}, s{S_FL}",
              f"s_add_u32 s{S_CNT}, s{S_WAVE}, 1", f"s_lshr_b32 s{S_CNT}, s{S_CNT}, 2", f"s_mul_i32 s{S_CNT}, s{S_CNT}, {80*1024+27648}",
              f"s_add_u32 s{S_W0B}, s{S_W9K}, {128*1024}", f"s_sub_u32 s{S_W0B}, s{S_W0B}, s{S_CNT}"]
    pg = []
    for s in range(NP3):
        if s in (8, 16): order = [(kp, nt) for nt in range(9) for kp in range(2)]
        else: order = [(kp, nt) for kp in range(2) for nt in range(9)]
        for kp, nt in order: pg.append((s, kp, nt))
    def p3_reads(gi):
        s, kp, nt = pg[gi]; base = P3_AR[gi % 4]
        out = []
        for q in range(2):
            ks = 2 * kp + q
            if s == 0: va, o = (V_PWA[2], 12 * 1024 + (ks * 9 + nt) * 1024) if ks < 3 else (V_PWA[0], 48 * 1024 + nt * 1024)
            else: va, o = V_PWA[(s - 1) % 3], (ks * 9 + nt) * 1024
            out.append((f"ds_read_b128 v[{base+4*q}:{base+4*q+3}], v{va} offset:{o}", f"PA{gi%4}"))
        return out
    pm = []
    for gi, (s, kp, nt) in enumerate(pg):
        for mt in range(2):
            for q in range(2):
                a = (AD if s < 9 else AS)(nt, mt); b = Breg(s, 2 * kp + q, mt); ar = P3_AR[gi % 4] + 4 * q
                C = "0" if (s in (0, 9) and kp == 0 and q == 0) else f"v[{a}:{a+3}]"
                pm.append(f"v_mfma_f32_16x16x32_bf16 v[{a}:{a+3}], v[{ar}:{ar+3}], a[{b}:{b+3}], {C}")
    TL = [att_tile(it, last_block=True, first_mfmas=(pm[:72] if it == 3 else None)) for it in range(4)]
    T28, T29, T30, T31 = TL
    T28.cur = T28.idx(T28.Q[50]); T28.put(poll_load("PL"))
    cv, cs = poll_check(2, "p2")
    T28.PV[40].sh.append(WaitFor(vm=("PL",))); T28.PV[41].sh += cs[:1]; T28.PV[42].post += cv; T28.PV[44].sh += cs[1:]
    free = [g for g in T28.G[:T28.idx(T28.PV[54])] if not g.sh and id(g) not in T28.reserved]
    assert len(free) >= len(setup3), len(free)
    for s_, g in zip(setup3, free): g.sh.append(s_)
    L2T = os.environ.get("L2T", "")
    if L2T:
        V_TH, V_TD = 3, V_SV
        p(f"v_min_u32 v{V_TH}, 15, v{V_LANE}"); p(f"v_lshlrev_b32 v{V_TH}, 7, v{V_TH}")
        for t in [f"s_and_b32 s13, s{S_J}, 7", f"s_lshl_b32 s13, s13, 2", f"s_add_u32 s13, s13, s{S_WAVE}", f"s_lshl_b32 s13, s13, 11",
                  f"s_lshl_b32 s14, s{S_RB}, 16", f"s_add_u32 s13, s13, s14", f"s_lshr_b32 s14, s{S_J}, 3", f"s_mul_i32 s15, s14, {9*524288}", f"s_add_u32 s13, s13, s15",
                  f"s_lshr_b32 s15, s2, 3", f"s_lshl_b32 s15, s15, 2", f"s_add_u32 s15, s15, s{S_WAVE}", f"s_lshl_b32 s15, s15, 11",
                  f"s_mul_i32 s14, s14, {1152*1152}", f"s_add_u32 s14, s14, s15"]: p(t)
        tl = []
        for x in L2T.split(","):
            if x[0] == "h": tl.append((13, H_OFF + int(x[1:]) * 524288))
            else: tl.append((14, WPD_OFF + int(x[1:]) * 262144))
        slots_ = [(T, g) for T in (T28, T29, T30) for g in (T.Q[8], T.Q[40], T.PV[10], T.PV[42])]
        for (T, g0_), (base, off) in zip(slots_, tl):
            T.cur = 0; ld_ = T.lastdma; T.lastdma = T.idx(g0_) - 4
            T.put((f"buffer_load_dword v{V_TD}, v{V_TH}, s[{S_WS}:{S_WS+3}], s77 offen sc1", "TCH"), g0_, sal=[f"s_add_u32 s77, s{base}, {off}"], cap=3)
            T.lastdma = ld_
    for n in range(4): T28.Q[45 + 2 * n].valu.append(f"v_mov_b32 v{V_RPS+4+n}, -1")
    ploc = [(T28, T28.PV[20]), (T28, T28.PV[50]), (T29, T29.Q[8]), (T29, T29.Q[36]), (T29, T29.PV[16]), (T29, T29.PV[40]), (T30, T30.Q[4]), (T30, T30.Q[28]), (T30, T30.Q[52])]
    for nt, (T, g_) in enumerate(ploc):
        ld_ = T.lastdma; T.cur = 0; T.lastdma = T.idx(g_) - 4
        T.put((f"buffer_store_dwordx4 v[{V_RPS+4}:{V_RPS+7}], v{V_L16}, s[{S_WS}:{S_WS+3}], s{S_SIG} offen sc1", "DST"), g_,
              sal=[f"s_add_u32 s{S_SIG}, s{S_PST}, {PART_OFF + PSTRIDE + nt*1024}"], cap=3)
        T.lastdma = ld_
    assert T28.idx(free[len(setup3) - 1]) < T28.idx(T28.PV[14])
    T29.cur = T29.idx(T29.Q[50]); T29.lastdma = max(T29.lastdma, T29.idx(T29.Q[50]))
    for sal_, op in p3_w(0): T29.put(op, sal=sal_); T29.lastdma = T29.cur - 1
    T30.wv.append("PW0")
    mix = p3_b(0) + p3_w(1)
    T30.Q[49].valu.append(f"v_add_u32 v{V_PWA[1]}, {P3_SLOT[1]}, v{V_L16}"); T30.Q[51].valu.append(f"v_add_u32 v{V_PWA[2]}, {P3_SLOT[2]}, v{V_L16}")
    T30.cur = T30.idx(T30.PV[2])
    for r, lo in T30.pv_v: T30.put(r, lo)
    T30.cur = T30.idx(T30.PV[52])
    for r in p3_reads(0) + p3_reads(1) + p3_reads(2): T30.put(r)
    T30.cur = T30.idx(T30.PV[2]); T30.lastdma = T30.cur
    for n, (sal_, op) in enumerate(mix):
        T30.put(op, T30.PV[2 + 3 * n], sal=sal_, cap=3); T30.lastdma = T30.cur - 1
    T30.G[-1].post.append(WaitFor(lg=("PA0",), vm=("PB0",)))
    T31.wv.append("PW1")
    Q = T31.Q
    for gi in range(1, 18): Q[4 * gi - 1].sh.insert(0, WaitFor(lg=(f"PA{gi%4}",)))
    for gi in range(3, 18):
        for n, r in enumerate(p3_reads(gi)): Q[4 * (gi - 3) + 1 + 2 * n].mem.append(r)
    T31.cur = 0
    vr = [r for dt in range(4) for r in v_reads(VS(3), dt)]
    for n, r in enumerate(vr): T31.put(r, Q[4 * n], cap=3)
    T31.cur = 0; T31.lastdma = 0
    for n, (sal_, op) in enumerate(p3_b(1) + p3_b(2)):
        T31.put(op, Q[4 * n + 2], sal=sal_, cap=3); T31.lastdma = T31.cur - 1
    T31.cur = T31.idx(T31.PV[2])
    for r, lo in T31.pv_v: T31.put(r, lo); T31.cur += 1
    T31.cur = T31.idx(T31.PV[50])
    for r in p3_reads(18) + p3_reads(19) + p3_reads(20): T31.put(r); T31.cur += 1
    T31.cur = T31.idx(T31.PV[2]); T31.lastdma = T31.cur
    EARLY3 = os.environ.get("EARLY3", "")
    for sal_, op in p3_w(2) + (p3_w(3) if "w" in EARLY3 else []) + (p3_b(3) if "b" in EARLY3 else []):
        T31.put(op, sal=sal_); T31.lastdma = T31.cur - 1
    T31.PV[63].sh.append(WaitFor(lg=(f"PA{18%4}",), vm=("PB1",)))
    P = [None] * 72 + [Gap(m) for m in pm[72:]]
    for gi in range(21, len(pg)):
        i = gi % 18
        rd = p3_reads(gi)
        if i == 0: g0_ = 4 * (gi - 2); pos = (g0_, g0_ + 1)
        elif i == 1: g0_ = 4 * (gi - 3); pos = (g0_ + 2, g0_ + 3)
        else: g0_ = 4 * (gi - 3); pos = (g0_, g0_ + 2)
        for g_, r in zip(pos, rd): P[g_].mem.append(r)
    barw = {}
    for gi in range(19, len(pg)):
        s = pg[gi][0]; g = P[4 * gi - 1]
        if gi % 18 == 16 and s + 1 < NP3:
            barw[s] = WaitFor(vm=[f"PW{s+1}", f"PB{s+1}"], lg0=True)
            P[4 * gi - 2].sh.append(barw[s]); g.sh.append("s_barrier")
        else: g.sh.append(WaitFor(lg=(f"PA{gi%4}",)))
    def after_barrier(s): return 72 * s + 64
    OSIG = int(os.environ.get("OSIG", "4")); DSIG = int(os.environ.get("DSIG", "13")); OCAP = int(os.environ.get("OCAP", "3"))
    barw[OSIG].vm = tuple(barw[OSIG].vm) + ("OST",)
    P[after_barrier(OSIG) - 6].valu.append(sig_val(3)); P[after_barrier(OSIG) + 5].mem.append((sig_store, None))
    P[after_barrier(OSIG) + 1].sh.append(f"s_cmp_lg_u32 s{S_MIX}, 0"); P[after_barrier(OSIG) + 2].sh += ["s_cbranch_scc1 L_stub_w3", Label("L_ret_w3")]
    barw[DSIG].vm = tuple(barw[DSIG].vm) + ("DST",)
    P[after_barrier(DSIG) - 6].valu.append(sig_val(4)); P[after_barrier(DSIG) + 5].mem.append((sig_store, None))
    P[72*5+1].sh.append(f"s_lshl_b32 s{S_CNT}, s{S_RB}, 11"); P[72*5+2].sh.append(f"s_lshl_b32 s{S_RE}, s{S_KOFF}, 9"); P[72*5+4].sh.append(f"s_add_u32 s{S_RE}, s{S_RE}, s{S_CNT}")
    P[72*5+5].valu += [f"v_and_b32 v{V_PA}, 7, v{V_LANE}", f"v_lshl_add_u32 v{V_PA}, v{V_PA}, 3, s{S_RE}"]
    P[72*6+69].mem.append(poll_load("PL"))
    P[72*7+28].sh.append(WaitFor(vm=("PL",)))
    cv, cs = poll_check(3, "p3")
    P[72*7+29].valu += cv; P[72*7+29].sh += cs[:1]; P[72*7+30].post += cs[1:]
    PQ = DSIG + 1
    P[72*PQ+49].mem.append(poll_load("PL"))
    P[72*(PQ+1)+12].sh.append(WaitFor(vm=("PL",)))
    cv, cs = poll_check(4, "p4")
    P[72*(PQ+1)+13].valu += cv; P[72*(PQ+1)+13].sh += cs[:1]; P[72*(PQ+1)+13].post += cs[1:]
    HINT = int(os.environ.get("HINT", "1"))
    P[72*16 + HINT - 4].valu.append(sig_val(5)); P[72*16 + HINT].mem.append((sig_store, None))
    FD, GG, FXR, TT = 160, 208, 56, 16
    def fin_loads(kind, dst, tag):
        ops = []
        for m in range(3):
            for sp in range(3):
                tm = tmp()
                ops.append(([f"s_add_u32 s{tm}, s{S_FR+sp}, {PART_OFF + kind*PSTRIDE}"],
                            (f"buffer_load_dwordx4 v[{dst+(m*4+sp)*4}:{dst+(m*4+sp)*4+3}], v{V_FL+m}, s[{S_WS}:{S_WS+3}], s{tm} offen sc1", tag)))
        return annotate(ops)
    own_reads = lambda kind, dst, tag: [(f"ds_read_b128 v[{dst+(m*4+3)*4}:{dst+(m*4+3)*4+3}], v{V_OWR} offset:{kind*9216 + m*4096}", tag) for m in range(3)]
    xq = []
    for m in range(3):
        r = V_XO + m
        xq += [f"v_lshl_add_u32 v{r}, s{S_WAVE}, 6, v{V_LANE}"] + ([f"v_add_u32 v{r}, {256*m}, v{r}"] if m else [])
        xq += [f"v_mul_u32_u24 v71, 3641, v{r}", f"v_lshrrev_b32 v71, 16, v71", f"v_mul_u32_u24 v71, {1152-288}, v71", f"v_lshl_add_u32 v{r}, v{r}, 4, v71"]
        if m == 2: xq += [f"v_add_u32 v{r}, s{S_FX1}, v{r}"]
        xq.append(("MEM", [], (f"buffer_load_dwordx4 v[{FXR+4*m}:{FXR+4*m+3}], v{r}, s[{S_XI}:{S_XI+3}], s{S_FX0} offen", "FX")))
    for s in range(1, NP3):
        ops = []
        if s + 2 < NP3:
            w, b = p3_w(s + 2), p3_b(s + 2)
            if s == 7:
                place_mem(P, w, 72 * s, 72 * s + 28); place_mem(P, b, 72 * s + 30, 72 * s + 63); continue
            if s == 1:
                if "w" in EARLY3: w = []
                if "b" in EARLY3: b = []
            ops = w[:4] + b[:4] + w[4:8] + b[4:] + w[8:]
        if s == PQ + 1:
            assert s == 15
            place_mem(P, fin_loads(0, FD, "FD") + [([], r) for r in own_reads(0, FD, "FO")], 72 * s + 14, 72 * s + 63); continue
        if ops: place_mem(P, ops, 72 * s - int(os.environ.get('P3E', '0')), 72 * s + int(os.environ.get('P3W', '63')))
    allg = T31.PV + P[72:]
    OT = 96
    def o_item(n, qt, s):
        T = OT + (n % 4) * 8; D = OT + 32 + (n % 4) * 4
        q = []
        for h in range(2):
            o = A_O + ((2 * s + h) * 4 + qt) * 4
            for r in range(4): q.append(f"v_accvgpr_read_b32 v{T+4*h+r}, a{o+r}")
        for i in range(8): q.append(f"v_mul_f32 v{T+i}, v{T+i}, v{V_LS+4+qt}")
        for i in range(4): q.append(f"v_cvt_pk_bf16_f32 v{D+i}, v{T+2*i}, v{T+2*i+1}")
        q.append(("MEM", [f"s_add_u32 s{S_SIG}, s{S_OBASE}, {O_OFF + qt*4096}"], (f"buffer_store_dwordx4 v[{D}:{D+3}], v{V_L16}, s[{S_WS}:{S_WS+3}], s{S_SIG} offen offset:{s*1024}{SCO}", "OST")))
        return q
    pre = xlane_ops("v_add_f32", [V_LS + 5, V_LS + 7], OT + 48) + [f"v_rcp_f32 v{V_LS+4+qt}, v{V_LS+4+qt}" for qt in range(4)]
    n = 0; lim = 64 + after_barrier(OSIG - 1) - 72 + 30
    pre += xq
    q = list(pre); mins = [2] * len(pre)
    for s in range(4):
        for qt in range(4):
            it_ = o_item(n, qt, s); n += 1
            q += it_; mins += [16 * (s + 1) + 4] * len(it_)
    left = fill_valu(allg[:lim], 2, q, mins=mins, cap=OCAP); assert not left, len(left)
    fs = [f"v_add_u32 v{V_FL}, s{S_W1K}, v{V_L16}", f"v_add_u32 v{V_FL+1}, 4096, v{V_FL}", f"v_add_u32 v{V_FL+2}, s{S_VOFF}, v{V_FL}",
          f"v_and_b32 v{V_YW}, 15, v{V_LANE}", f"v_mul_u32_u24 v{V_YW}, 288, v{V_YW}", f"v_lshrrev_b32 v{V_YW+1}, 4, v{V_LANE}",
          f"v_lshl_add_u32 v{V_YW}, v{V_YW+1}, 3, v{V_YW}", f"v_lshl_add_u32 v{V_YW}, s{S_WAVE}, 5, v{V_YW}",
          f"v_lshrrev_b32 v{V_YW+1}, 16, s{S_FX1}", f"v_add_u32 v{V_YW+1}, v{V_YW+1}, v{V_YW}"]
    sal6 = [f"s_lshl_b32 s{S_FL}, s{S_RB}, 3", f"s_and_b32 s{S_T2+32}, s{S_J}, 7", f"s_add_u32 s{S_FL}, s{S_FL}, s{S_T2+32}", f"s_lshl_b32 s{S_FL}, s{S_FL}, 9",
            f"s_add_u32 s{S_FL}, s{S_FL}, {F5_OFF}",
            f"s_lshl_b32 s{S_W0B}, s{S_WAVE}, 7", f"s_add_u32 s{S_W0B}, s{S_W0B}, s{S_FL}", f"s_lshl_b32 s{S_W0B+1}, s{S_KOFF}, 3", f"s_add_u32 s{S_W0B}, s{S_W0B}, s{S_W0B+1}",
            f"s_lshl_b32 s{S_W0B+1}, s{S_KOFF}, 7", f"s_add_u32 s{S_FL}, s{S_FL}, s{S_W0B+1}",
            f"s_add_u32 s{S_W0B+1}, s{S_KOFF}, 1",
            [f"s_cmp_eq_u32 s{S_WAVE}, s{S_KOFF}", f"s_cselect_b32 s{S_W0B+2}, {1 << 30}, 0", f"s_cselect_b32 s{S_W0B+3}, 0, {18432}"],
            f"s_add_u32 s{S_PST}, s{S_PST}, s{S_W0B+2}", f"s_add_u32 s{S_W0B+3}, s{S_W0B+3}, {OWN_LDS}",
            [f"s_cmp_eq_u32 s{S_WAVE}, 0", f"s_cselect_b32 s{S_VOFF}, 8192, {1 << 30}"]]
    g_ = 72 * 6
    for x in sal6:
        while P[g_].sh: g_ += 1
        P[g_].sh += x if isinstance(x, list) else [x]
        g_ += 1
    assert g_ < 72 * 6 + 60
    fs += [f"v_add_u32 v{V_OWN}, s{S_W0B+3}, v{V_L16}", f"v_add_u32 v{V_OWR}, {OWN_LDS}, v{V_FL}"]
    left = fill_valu(P[:72 * 8], 72 * 6 + 60, fs); assert not left
    fs2 = [f"v_mov_b32 v{V_SA}, s{S_W0B}", f"v_min_u32 v{V_PA}, 2, v{V_LANE}", f"v_add_u32 v{V_PA}, s{S_W0B+1}, v{V_PA}", f"v_and_b32 v{V_PA}, 3, v{V_PA}",
           f"v_lshl_add_u32 v{V_PA}, v{V_PA}, 3, s{S_FL}"]
    left = fill_valu(P[:72 * 9], 72 * 8, fs2); assert not left
    def part_item(A, nt, kind, tag):
        a = A(nt, 0)
        q = [f"v_cvt_pk_bf16_f32 v{a+i}, v{a+2*i}, v{a+2*i+1}" for i in range(4)]
        q.append(("MEM", [f"s_add_u32 s{S_SIG}, s{S_PST}, {PART_OFF + kind*PSTRIDE + nt*1024}"], (f"buffer_store_dwordx4 v[{a}:{a+3}], v{V_L16}, s[{S_WS}:{S_WS+3}], s{S_SIG} offen sc1", tag)))
        q.append(("MEM", [], (f"ds_write_b128 v{V_OWN}, v[{a}:{a+3}] offset:{kind*9216 + nt*1024}", None)))
        return q
    for nt in range(9):
        left = fill_valu(P[:72 * DSIG], 72 * 8 + 12 + ((72 * (DSIG - 8) - 30) * nt) // 8, part_item(AD, nt, 0, "DST")); assert not left
    sleft = []
    for nt in range(9):
        sleft += fill_valu(P, 72 * 16 + 8 * (nt + 1) + 4, part_item(AS, nt, 1, "SST"))
    gq = []
    def unpack_sum(src, dst, pk=False):
        q = []
        for i in range(4):
            q += [f"v_lshlrev_b32 v{dst+2*i}, 16, v{src+i}", f"v_and_b32 v{dst+2*i+1}, s{S_THR}, v{src+i}"]
        for sp in range(1, 4):
            T = TT + 8 * (sp % 2)
            for i in range(4):
                q += [f"v_lshlrev_b32 v{T+2*i}, 16, v{src+4*sp+i}", f"v_and_b32 v{T+2*i+1}, s{S_THR}, v{src+4*sp+i}"]
            if pk:
                for i in range(0, 8, 2): q.append(f"v_pk_add_f32 v[{dst+i}:{dst+i+1}], v[{dst+i}:{dst+i+1}], v[{T+i}:{T+i+1}]")
            else:
                for i in range(8): q.append(f"v_add_f32 v{dst+i}, v{dst+i}, v{T+i}")
        return q
    P[72*13+1].post.append(f"s_mov_b32 s{S_THR}, 0xffff0000")
    for m in range(3):
        D = GG + 8 * m; T = FD + 16 * m
        gq += unpack_sum(FD + 16 * m, D, pk=True)
        gq += [f"v_mul_f32 v{T+i}, {f2u(-LOG2E)}, v{D+i}" for i in range(8)]
        gq += [f"v_exp_f32 v{T+i}, v{T+i}" for i in range(8)]
        gq += [f"v_add_f32 v{T+i}, 1.0, v{T+i}" for i in range(8)]
        gq += [f"v_rcp_f32 v{T+i}, v{T+i}" for i in range(8)]
        gq += [f"v_pk_mul_f32 v[{D+i}:{D+i+1}], v[{D+i}:{D+i+1}], v[{T+i}:{T+i+1}]" for i in range(0, 8, 2)]
    gleft = gq
    print("phase3 leftovers: s-part", len(sleft), "gate", len(gleft))
    if 'fineprol' in ABL: stamp(p, 1)
    for n_, T in enumerate(TL):
        finish_tile(T)
        if 'fineprol' in ABL:
            T.Q[-1].post += stamp_ops(9 + 2 * n_); T.G[-1].post += stamp_ops(10 + 2 * n_)
        emit_gaps(p, T.G)
    if 'finepro' not in ABL:
        stamp(p, 7); stamp_rt(p, 16)
        for s, k in ((3, 8), (6, 9), (9, 10), (13, 11)): P[72 * s - 1].post += stamp_ops(k)
    if 'finep3' in ABL:
        stamp(p, 0)
        for s in range(1, 17): P[72 * (s + 1) - 1].post = [x for x in P[72 * (s + 1) - 1].post if not (isinstance(x, str) and ("s76" in x or "s[76" in x or x == "s_waitcnt lgkmcnt(0)"))] + stamp_ops(s)
    emit_gaps(p, P[72:])
    if 'finep' not in ABL: stamp(p, 12); stamp_rt(p, 17)
    emit_ops(p, sleft)
    XU = 32
    FS = 96
    def s_loads():
        for sal_, op in fin_loads(1, FS, "FS"):
            for s_ in sal_: p(s_)
            p(op[0], op[1])
    p("s_waitcnt lgkmcnt(0)")
    s_loads()
    p.items.append(WaitFor(vm=("FD",)))
    p("s_barrier")
    for t, tag in own_reads(1, FS, "FO"): p(t, tag)
    emit_ops(p, gleft)
    for i in range(12):
        p(f"v_lshlrev_b32 v{XU+2*i}, 16, v{FXR+i}"); p(f"v_and_b32 v{XU+2*i+1}, s{S_THR}, v{FXR+i}")
    if 'finep' not in ABL: stamp(p, 13)
    p(f"s_mov_b32 s{S_CNT}, 0x40000"); p(f"s_add_u32 s{S_PV}, s{S_EP}, 5")
    p.label("L_dcheck")
    p("s_waitcnt vmcnt(0)")
    q_ = [FS + (m * 4 + sp) * 4 + i for m in range(3) for sp in range(3) for i in range(4)]
    p(f"v_max_u32 v{V_PT}, v{q_[0]}, v{q_[1]}"); p(f"v_max_u32 v{V_PT+1}, v{q_[2]}, v{q_[3]}")
    for i in range(4, 36, 2): p(f"v_max3_u32 v{V_PT+(i//2)%2}, v{V_PT+(i//2)%2}, v{q_[i]}, v{q_[i+1]}")
    p(f"v_max_u32 v{V_PT}, v{V_PT}, v{V_PT+1}")
    p(f"v_cmp_eq_u32 vcc, -1, v{V_PT}")
    p("s_cbranch_vccz L_dready")
    p(f"s_cmp_eq_u32 s{S_CNT}, 0x40000"); p("s_cbranch_scc0 L_dagain")
    p(f"s_call_b64 s[{S_RET}:{S_RET+1}], L_spin0")
    p.label("L_dagain")
    s_loads()
    p(f"s_sub_u32 s{S_CNT}, s{S_CNT}, 1"); p(f"s_cmp_lg_u32 s{S_CNT}, 0"); p("s_cbranch_scc1 L_dcheck")
    p("s_waitcnt vmcnt(0)")
    p.label("L_dready")
    if 'finep' not in ABL: stamp(p, 14)
    p("s_waitcnt lgkmcnt(0)")
    for m in range(3):
        D = FD + 8 * m
        for t in unpack_sum(FS + 16 * m, D, pk=True): p(t)
        for i in range(0, 8, 2): p(f"v_pk_mul_f32 v[{D+i}:{D+i+1}], v[{D+i}:{D+i+1}], v[{GG+8*m+i}:{GG+8*m+i+1}]")
        for i in range(4): p(f"v_cvt_pk_bf16_f32 v{D+i}, v{D+2*i}, v{D+2*i+1}")
        for mt in range(2): p(f"ds_write_b64 v{V_YW + (1 if m == 2 else 0)}, v[{D+2*mt}:{D+2*mt+1}] offset:{m*128 + mt*4608}")
    p("s_waitcnt lgkmcnt(0)"); p("s_barrier")
    for m in range(3): p(f"ds_read_b128 v[{128+4*m}:{131+4*m}], v{V_FL} offset:{m*4096}")
    for m in range(3):
        p(f"s_waitcnt lgkmcnt({2-m})")
        D = 96 + 8 * m; T = XU + 8 * m
        for i in range(4):
            p(f"v_lshlrev_b32 v{D+2*i}, 16, v{128+4*m+i}"); p(f"v_and_b32 v{D+2*i+1}, s{S_THR}, v{128+4*m+i}")
        for i in range(0, 8, 2): p(f"v_pk_add_f32 v[{D+i}:{D+i+1}], v[{D+i}:{D+i+1}], v[{T+i}:{T+i+1}]")
        for i in range(4): p(f"v_cvt_pk_bf16_f32 v{D+i}, v{D+2*i}, v{D+2*i+1}")
        p(f"buffer_store_dwordx4 v[{D}:{D+3}], v{V_XO+m}, s[{S_OUT}:{S_OUT+3}], s{S_FX0} offen")
    p(f"s_lshl_b32 s{S_T0}, s2, 12"); p("v_mov_b32 v4, 0"); p("v_mov_b32 v5, 0")
    p(f"buffer_store_dwordx2 v[4:5], v4, s[{S_DBG}:{S_DBG+3}], s{S_T0} offen sc1")
    if STAMP: p("s_waitcnt vmcnt(0)")
    stamp(p, 19); stamp_rt(p, 21)
    if 'dbgout' in ABL:
        p(f"s_cmp_eq_u32 s2, 250"); p(f"s_cselect_b32 s76, 36, 0x1000"); p("s_cmp_eq_u32 s2, 1"); p("s_cselect_b32 s76, 8, s76")
        p(f"s_cmp_eq_u32 s{S_WAVE}, 0"); p("s_cselect_b32 s76, s76, 0x1000"); p("v_mov_b32 v1, s76")
        p(f"s_lshr_b32 s77, s{S_EP}, 8")
        for n, k in enumerate((100, 95, 96, 97, 101)):
            p(f"s_sub_u32 s76, s{k}, s77"); p("s_and_b32 s76, s76, 0xffffff"); p("v_mov_b32 v2, s76")
            p(f"buffer_store_dword v2, v1, s[{S_DBG}:{S_DBG+3}], 0 offen offset:{4*n}")
        for n, (a_, b_) in enumerate(((81, 80), (99, 80))):
            p(f"s_sub_u32 s76, s{a_}, s{b_}"); p("v_mov_b32 v2, s76")
            p(f"buffer_store_dword v2, v1, s[{S_DBG}:{S_DBG+3}], 0 offen offset:{20+4*n}")
    else:
        stamp_dump(p, 70, S_WAVE, 1)
    p.label("L_done"); p("s_endpgm")

    rare = Prog(); p = rare
    for site, var in rare_sites:
        p.label(f"L_rare_stub{site}")
        p(f"s_call_b64 s[{S_RET}:{S_RET+1}], L_rare{var}")
        p(f"s_branch L_rare_ret{site}")
    for name in stubs:
        p.label(f"L_stub_{name}")
        p(f"s_call_b64 s[{S_RET}:{S_RET+1}], L_spin0")
        p(f"s_branch L_ret_{name}")
    for name in ("w2", "w3"):
        p.label(f"L_stub_{name}")
        p("buffer_wbl2 sc1"); p("s_waitcnt vmcnt(0)")
        p(f"s_branch L_ret_{name}")
    p.label("L_spin0")
    p(f"s_mov_b32 s{S_SPIN}, {'0x40' if 'Lno' in ABL else '0x40000'}")
    p.label("L_spin1")
    p(poll_load(None)[0])
    p(f"s_sub_u32 s76, s{S_EP}, s{S_PV}"); p("s_add_u32 s76, s76, 8")
    p("s_waitcnt vmcnt(0)")
    for t in flag_test(V_PT): p(t)
    p(f"v_cmp_le_u32 vcc, s76, v{V_PT}")
    p("s_cbranch_vccz L_spin2")
    p(f"s_sub_u32 s{S_SPIN}, s{S_SPIN}, 1"); p("s_sleep 1"); p(f"s_cmp_lg_u32 s{S_SPIN}, 0"); p("s_cbranch_scc1 L_spin1")
    p.label("L_spin2")
    p(f"s_setpc_b64 s[{S_RET}:{S_RET+1}]")
    rare_items = fix_hazards(rare.items)[0]
    for var in ("0", "1", "Z"):
        par = 1 if var == "Z" else int(var)
        rp = Prog(); p = rp
        p.label(f"L_rare{var}")
        p("s_nop 15")
        Lold = V_LS + (1 - par) * 4
        for qt in range(4):
            rowmax(p, par, qt, V_R + qt)
            p(f"v_log_f32 v{V_R+4}, v{Lold+qt}")
            if BIAS:
                p(f"v_max_f32 v{V_R+qt}, v{V_R+qt}, v{V_R+4}"); p(f"v_add_f32 v{V_R+qt}, {f2u(BIAS)}, v{V_R+qt}"); p(f"v_max_f32 v{V_R+qt}, 0, v{V_R+qt}")
            else: p(f"v_max3_f32 v{V_R+qt}, v{V_R+qt}, v{V_R+4}, 0")
        for t in xlane_ops("v_max_f32", [V_R + q for q in range(4)], V_R + 4): p(t)
        for qt in range(4):
            p(f"v_sub_f32 v{V_R+4+qt}, 0, v{V_R+qt}"); p(f"v_exp_f32 v{V_R+4+qt}, v{V_R+4+qt}")
        for qt in range(4):
            p(f"v_mul_f32 v{Lold+qt}, v{Lold+qt}, v{V_R+4+qt}")
            if var != "Z":
                for r in range(4): p(f"v_sub_f32 v{V_NM+4*qt+r}, v{V_NM+4*qt+r}, v{V_R+qt}")
            for pp in ((par,) if var == "Z" else (0, 1)):
                for kt in range(4):
                    for r in range(4): p(f"v_sub_f32 v{Sreg(pp,kt,qt)+r}, v{Sreg(pp,kt,qt)+r}, v{V_R+qt}")
            for dt in range(8):
                o = A_O + (dt * 4 + qt) * 4
                for r in range(4): p(f"v_accvgpr_read_b32 v{V_E+r}, a{o+r}")
                for r in range(4): p(f"v_mul_f32 v{V_E+r}, v{V_E+r}, v{V_R+4+qt}")
                for r in range(4): p(f"v_accvgpr_write_b32 a{o+r}, v{V_E+r}")
        for tau in range(64):
            p(op_exp(par, tau))
            if tau % 4 >= 2: p(op_add(par, tau))
            if tau % 2 == 1: p(op_cvt(par, tau))
        for qt in (0, 2):
            p(l_mfma(par, qt, 0)); p(l_mfma(par, qt, 1)); p(op_ladd(par, qt))
        if var != "Z":
            for tau in range(4): p(op_exp(1 - par, tau))
            p(op_cvt(1 - par, 1))
        p("s_nop 3")
        p(f"s_setpc_b64 s[{S_RET}:{S_RET+1}]")
        rare_items += fix_hazards(rp.items)[0]

    resolve_waits(pro.items + body.items + body.items + tail.items)
    pi = lower_waits(pro.items); bi = lower_waits(body.items); ti = lower_waits(tail.items)
    pi, a1 = fix_hazards(pi, verbose=False, name="pro")
    bi2, a2 = fix_hazards(bi, prev=bi, verbose=True, name="body")
    bi3, a3 = fix_hazards(bi2, prev=pi, verbose=True, name="body-entry")
    ti, a4 = fix_hazards(ti, prev=bi3, verbose=True, name="tail")
    wc = WaitChecker(); wc.run(pi + bi3 + bi3 + ti)
    for e in wc.errors[:10]: print("WAITCHECK", e)
    assert check_needs(pi + bi3 + bi3 + ti) == 0
    for it in pi + bi3 + ti:
        if isinstance(it, Ins): it.text = it.text.split(' ; need[')[0]
    allit = pi + bi3 + ti
    if not HOP: return allit + rare_items
    import subprocess
    REV = int(os.environ.get("PREV", "1")); PMAX = int(os.environ.get("PMAX", "16"))
    def with_pads(pos):
        out = []; k_ = 0; N = len(pos)
        for n, it in enumerate(allit):
            out.append(it)
            if n in pos:
                me = (N - 1 - k_) if REV else k_
                out += [Label(f"L_pad{me}"), Ins("s_cbranch_execz " + (f"L_pad{me+3}" if me + 3 < N else "L_padend"), "PAD")]; k_ += 1
        return out + rare_items
    def addrs(items):
        txt = '.amdgcn_target "amdgcn-amd-amdhsa--gfx950"\n.text\n'
        for n, it in enumerate(items):
            txt += render([it])
            if isinstance(it, Ins) and it.tag != "PAD": txt += f"L_m{id(it)}:\n"
        txt += "L_code_end:\n"
        open("pads.s", "w").write(txt)
        subprocess.run(["clang", "-x", "assembler", "-target", "amdgcn-amd-amdhsa", "-mcpu=gfx950", "-c", "pads.s", "-o", "pads.o"], check=True)
        o = subprocess.run(["llvm-objdump", "-t", "pads.o"], capture_output=True, text=True).stdout
        return {l.split()[-1]: int(l.split()[0], 16) for l in o.splitlines() if ".text" in l and l.split()[-1].startswith("L_")}
    first = [n for n, it in enumerate(allit) if isinstance(it, Ins) and it.kind == "mfma"][0]
    cand = [n for n in range(first, len(allit) - 1) if isinstance(allit[n], Ins) and allit[n].kind != "ctl" and isinstance(allit[n + 1], Ins)]
    pos = set(cand[:3])
    for rnd_ in range(8):
        ad = addrs(with_pads(pos))
        pages = {}
        for n in cand:
            a_ = ad[f"L_m{id(allit[n])}"]
            if a_ % 4096 < 52: pages.setdefault(a_ // 4096, []).append(n)
        new_ = []
        for pg_, ns in sorted(pages.items()):
            keep = [n for n in ns if n in pos]
            mf_ = [n for n in ns if allit[n].kind == "mfma" and allit[n + 1].kind not in ("salu", "wait", "ctl")] or [n for n in ns if allit[n].kind == "mfma"]
            new_.append(keep[0] if keep else (mf_ or ns)[0])
        new_ = set(new_[:PMAX])
        if new_ == pos: break
        pos = new_
    ad = addrs(with_pads(pos))
    print("pads at:", " ".join(hex(ad[f"L_pad{k}"]) for k in range(len(pos))), "end", hex(ad["L_done"]), "spin", hex(ad["L_spin0"]))
    return with_pads(pos)

if __name__ == "__main__":
    import sys
    HEADER = open("cdna_kernels/" + NAME + ".s.ref").read().split("; Override")[0]
    items = gen_mega()
    k = NAME + "_kernel"
    s = HEADER + f"; @launch grid=(256,1,1) block=(256,1,1) lds={LDS_BYTES}\n"
    s += '.amdgcn_target "amdgcn-amd-amdhsa--gfx950"\n' + kernel_text(k, items, 512, 256)
    s += "L_code_end:\n    s_endpgm\n" + '.section .rodata,"a"\n.p2align 6\n' + kd_text(k, 512, 256)
    open(sys.argv[1], "w").write(s)
```

```python
from common import *
import math
LDS_BYTES = 160 * 1024
LOG2E = 1.4426950408889634
QSCALE = LOG2E / math.sqrt(128.0)
GC1 = -2.0 * math.sqrt(2.0 / math.pi) * LOG2E
GC2 = GC1 * 0.044715
CUT = int(os.environ.get("CUT", "24"))
BIAS = float(126 - CUT) if CUT else 0.0
THRESH = 2.0 ** (int(os.environ.get("THR", "64")) - BIAS)
ABL = os.environ.get('ABL', '')
NTW = "" if "nontw" in ABL else " nt"
NTQ = "" if "nontq" in ABL else " nt"
NTT = '' if 'nontt' in ABL else ' nt'
NTX = " nt" if "ntx" in ABL else ""
NTKV = " nt" if 'ntkv' in ABL else ""
WS_BYTES = 128 << 20
WPO_OFF = WP_OFF
WPD_OFF = WP_OFF + 4096 * 1152
FLAG_OFF = (100 << 20) if 'farflag' in ABL else (5 << 19)
SCH = ' sc1' if 'sch' in ABL else ''
SCO = ' sc1' if 'sco' in ABL else ''
LSC = '' if 'nolsc' in ABL else ' sc1'
P3NT = ' nt' if 'p3nt' in ABL else ''
PSTRIDE = 64 * 4 * 4 * 9216

S_HF = 4
S_WG, S_WU, S_WQ, S_K, S_V, S_WS, S_DBG, S_XI = 8, 12, 16, 20, 24, 28, 32, 36
S_WAVE, S_RB, S_J = 40, 41, 42
S_RE = 43
S_T0, S_T1, S_T2 = 44, 45, 46
S_KOFF, S_VOFF = 47, 48
S_W1K = 49
S_RET = 50
S_CNT = 52
S_W3K = 53
S_BF, S_BH, S_BQ = 54, 55, 56
S_RS, S_RD = 57, 58
S_RNW = 59
S_HHALF = 60
S_THR = 61
S_OBASE = 62
S_XB = 63
S_PTR = 64
S_W6K = 3
S_PV = 79
S_SIG = 78
S_SPIN = 75
S_EP = 74
S_FO = 73
S_MIX = 72
S_XCC = 69
S_EP2 = 68
S_PW, S_PW2, S_PB0, S_PB1 = 54, 55, 56, 57
S_W9K = 53
S_PST = 58
S_FL = 59
S_FX0, S_FX1 = 60, 63
S_OUT = 16

V_SA = 0
V_L16 = 1
V_WF, V_WQ = 2, 3
V_RA = 4
V_RH = 8
V_QP = 10
V_C1, V_C2 = 12, 13
V_KD, V_VD = 14, 15
V_AF = 16
V_T = 52
V_HO = 68
V_KA = 76
V_TA = 76
V_VA = 80
V_RQ = 88
V_ACC = 96
V_X = 224
WSLOT = [128 * 1024, 80 * 1024, 40 * 1024, 104 * 1024]
def wbase(slot):
    b = WSLOT[slot]
    return (0, b - 40 * 1024) if b < 104 * 1024 else (1, b - 104 * 1024)
def xreg(ks, mt):
    f = ks * 4 + mt
    return f"a[{4*f}:{4*f+3}]" if f < 64 else f"v[{V_X+4*(f-64)}:{V_X+4*(f-64)+3}]"

A_Q, A_KF, A_VF, A_O = 0, 64, 96, 128
V_S = 96
V_P0 = 224
V_P1 = 16
V_NM = 32
V_LS = 48
V_E = 56
V_CK = 9
V_ONE = 10
V_R = 64
V_LD = 72
V_RPS = 88
V_RPG, V_RPL = 2, 3
V_PT = 4
V_SV = 6
V_PA = 8
V_LANE = 2
KS = lambda T: (T + 3) % 4
VS = lambda T: (T + 1) % 4
P3_SLOT = [0, 80 * 1024, 116 * 1024]
AD = lambda nt, mt: 160 + (nt * 2 + mt) * 4
AS = lambda nt, mt: (96 + (nt * 2 + mt) * 4) if nt < 8 else (240 + mt * 4)
P3_AR = [32, 40, 88, 232]
V_PWA = [1, 76, 77]
V_XO = 68
V_YW = 78
V_FL = 80
S_FR = 64
V_OWN = 84
V_OWR = 85
OWN_LDS = 40 * 1024
FX_OFF = 16384
F5_OFF = 32768
S_W0B = 12

from k12 import Gap, emit_gaps, slots_of, fill_valu

def emit_ops(p, ops):
    for op in ops:
        if isinstance(op, tuple):
            for t in op[1]: p(t)
            p(op[2][0], op[2][1])
        else: p(op)

def annotate(ops):
    out = []; cur = []
    for sal, (txt, tag) in ops:
        if sal: cur = list(sal)
        out.append((sal, (txt + " ; need[" + "|".join(cur) + "]", tag)))
    return out

def check_needs(items):
    last = {}; bad = 0
    for it in items:
        if not isinstance(it, Ins): continue
        if "; need[" in it.text:
            for t in it.text.split("; need[")[1].rstrip("]").split("|"):
                if not t: continue
                d = Ins(t).wr[0]
                if last.get(d) != t:
                    bad += 1; print("NEEDCHECK:", it.text, "<- last writer", last.get(d))
        if it.kind == "salu":
            for r in it.wr: last[r] = it.text
    return bad

def gen_mega():
    pro = Prog(); p = pro
    stubs = []
    def poll_check(val, name):
        stubs.append(name)
        return (flag_test(V_PT) + [f"v_cmp_le_u32 vcc, {8-val}, v{V_PT}"],
                [f"s_add_u32 s{S_PV}, s{S_EP}, {val}", f"s_cbranch_vccnz L_stub_{name}", Label(f"L_ret_{name}")])
    def flag_test(r):
        return [f"v_and_b32 v{r}, 0xffffff87, v{r}", f"v_xor_b32 v{r+1}, s{S_EP2}, v{r+1}", f"v_subrev_u32 v{r}, s{S_PV}, v{r}",
                f"v_min_u32 v{r+1}, 1, v{r+1}", f"v_lshl_or_b32 v{r}, v{r+1}, 8, v{r}"]
    poll_load = lambda tag: (f"buffer_load_dwordx2 v[{V_PT}:{V_PT+1}], v{V_PA}, s[{S_WS}:{S_WS+3}], s{S_FO} offen sc1", tag)
    sig_store = f"buffer_store_dwordx2 v[{V_SV}:{V_SV+1}], v{V_SA}, s[{S_WS}:{S_WS+3}], s{S_FO} offen sc1"
    sig_val = lambda val: f"v_add_u32_e64 v{V_SV}, s{S_XCC}, {val}"

    p("s_cmp_ge_u32 s2, 256"); p("s_cbranch_scc1 L_done")
    stamp_rt(p, 20); stamp(p, 0)
    LX = 96
    p(f"s_load_dwordx2 s[{S_XI}:{S_XI+1}], s[0:1], {ARG['x']}")
    p(f"s_load_dwordx4 s[68:71], s[0:1], {ARG['dbg']}")
    p(f"s_getpc_b64 s[{S_K}:{S_K+1}]")
    p.label("L_pc0")
    p(f"s_and_b32 s{S_K+1}, s{S_K+1}, 0xffff"); p(f"s_mov_b32 s{S_K+2}, L_code_end-L_pc0"); p(f"s_mov_b32 s{S_K+3}, 0x20000")
    p(f"s_lshr_b32 s{S_T1}, s2, 3"); p(f"s_lshl_b32 s{S_T0}, s{S_T1}, 12"); p("v_lshlrev_b32 v16, 4, v0")
    CL = os.environ.get("CL", "0")
    if CL == "0": p(f"buffer_load_dwordx4 v[160:163], v16, s[{S_K}:{S_K+3}], s{S_T0} offen", "CODE")
    else: p(f"s_mov_b32 s{S_T2}, s{S_T0}")
    p(f"s_and_b32 s{S_CNT}, s2, 7"); p(f"s_lshl_b32 s{S_CNT}, s{S_CNT}, 5"); p(f"s_or_b32 s{S_CNT}, s{S_CNT}, s{S_T1}")
    p("v_lshrrev_b32 v18, 5, v0"); p("v_and_b32 v19, 31, v0"); p(f"s_mul_i32 s{S_T0}, s{S_CNT}, 9216")
    p("v_mul_u32_u24 v20, 1152, v18"); p("v_lshl_add_u32 v20, v19, 4, v20")
    p(f"s_mov_b32 s{S_XI+2}, {XN_BYTES}"); p(f"s_mov_b32 s{S_XI+3}, 0x20000")
    p("s_waitcnt lgkmcnt(0)")
    for m in range(3):
        p(f"buffer_load_dwordx4 v[{LX+4*m}:{LX+4*m+3}], v20, s[{S_XI}:{S_XI+3}], s{S_T0} offen offset:{m*384}{NTX}", "LX")
    if CL != "0": p(f"buffer_load_dwordx4 v[160:163], v16, s[{S_K}:{S_K+3}], s{S_T2} offen", "CODE")
    if CL == "2":
        p("v_lshrrev_b32 v21, 6, v0"); p("s_nop 0"); p(f"v_readfirstlane_b32 s{S_WAVE}, v21")
        p("s_mov_b64 exec, 0")
        for w in range(3):
            p(f"s_cmp_eq_u32 s{S_WAVE}, {w}"); p(f"s_cbranch_scc1 L_ppad{w}")
        p("s_branch L_ppad3")
        p.label("L_ppadend")
        p("s_mov_b64 exec, -1")
    def ppad(k):
        if CL == "2":
            p.label(f"L_ppad{k}"); p("s_cbranch_execz L_ppadend")
    p(f"s_load_dwordx2 s[{S_WQ}:{S_WQ+1}], s[0:1], {ARG['wq']}")
    p(f"s_load_dwordx4 s[72:75], s[0:1], {ARG['wg']}")
    p(f"s_load_dwordx4 s[64:67], s[0:1], {ARG['k']}")
    p("s_memrealtime s[76:77]")
    p("v_lshrrev_b32 v16, 6, v0"); p("v_and_b32 v17, 63, v0"); p("v_cmp_gt_u32 vcc, 24, v19")
    p(f"v_readfirstlane_b32 s{S_WAVE}, v16")
    srd(p, S_DBG, 68, 256); srd(p, S_WS, 70, WS_BYTES)
    if 'tlb' in ABL:
        p("v_min_u32 v37, 41, v17"); p("v_lshlrev_b32 v37, 21, v37"); p("v_mov_b32 v38, 128")
        p(f"buffer_load_dword v165, v37, s[{S_WS}:{S_WS+3}], 0 offen", "TCH")
        p(f"buffer_load_dword v166, v38, s[{S_DBG}:{S_DBG+3}], 0 offen", "TCH")
    p(f"s_mov_b64 s[{S_RET}:{S_RET+1}], vcc")
    p(f"s_and_b32 s{S_T0}, s2, 7")
    p(f"s_and_b32 s{S_RB}, s{S_T1}, 3"); p(f"s_lshr_b32 s{S_T1}, s{S_T1}, 2")
    p(f"s_and_b32 s{S_T2}, s{S_T0}, 1"); p(f"s_lshl_b32 s{S_T2}, s{S_T2}, 2"); p(f"s_add_u32 s{S_RB}, s{S_RB}, s{S_T2}")
    p(f"s_lshr_b32 s{S_T0}, s{S_T0}, 1"); p(f"s_lshl_b32 s{S_J}, s{S_T0}, 3"); p(f"s_add_u32 s{S_J}, s{S_J}, s{S_T1}")
    p(f"s_mov_b32 s{S_WQ+2}, {576*8192}"); p(f"s_mov_b32 s{S_WQ+3}, 0x20000")
    p(f"v_lshlrev_b32 v{V_L16}, 4, v17"); p("v_mov_b32 v71, 0")
    p("s_waitcnt lgkmcnt(0)")
    p(f"s_lshl_b32 s{S_T1}, s2, 2"); p(f"s_add_u32 s{S_T1}, s{S_T1}, s{S_WAVE}"); p(f"s_cmp_lg_u32 s{S_T1}, 1"); p("s_cbranch_scc1 L_noleader")
    p("s_lshl_b64 s[76:77], s[76:77], 8"); p("s_or_b32 s76, s76, 128"); p("v_mov_b32 v30, s76"); p("v_mov_b32 v31, s77")
    p.raw(f"    buffer_store_dwordx2 v[30:31], v71, s[{S_DBG}:{S_DBG+3}], 0 offen sc1")
    p.label("L_noleader")
    p("v_lshrrev_b32 v20, 4, v17"); p("v_and_b32 v22, 15, v17")
    p("v_lshlrev_b32 v23, 2, v20"); p("v_xor_b32 v23, v23, v22"); p("v_lshlrev_b32 v24, 13, v20"); p(f"v_lshl_add_u32 v{V_WQ}, v23, 4, v24")
    p(f"s_mul_i32 s{S_W6K}, s{S_WAVE}, 6144")
    p(f"s_mul_i32 s{S_BQ}, s{S_WAVE}, {24*8192}"); p(f"s_lshl_b32 s{S_T0}, s{S_J}, 8"); p(f"s_add_u32 s{S_BQ}, s{S_BQ}, s{S_T0}")

    stages = [("q", 0, sub, 0) for sub in range(6)] + [("h", 0, sub, 0) for sub in range(3)]
    for t in range(4): stages += [("f", t, sub, (t + 1) % 2) for sub in range(3)]
    NST = len(stages)
    tmpsel = [0]
    def tmp():
        tmpsel[0] ^= 1
        return (S_T0, S_T1)[tmpsel[0]]
    def w_dma(st):
        kind, t, sub, buf = stages[st]; slot = st % 4
        ops = []
        if kind == "q":
            for i in range(6):
                tm = tmp()
                sal = [f"s_add_u32 s{tm}, s{S_BQ}, {(sub * 96 + 4 * i) * 8192}", f"s_add_u32 m0, s{S_W6K}, {WSLOT[slot] + i*1024}"]
                ops.append((sal, (f"buffer_load_dwordx4 v{V_WQ}, s[{S_WQ}:{S_WQ+3}], s{tm} offen{NTQ} lds", f"W{st}")))
            return annotate(ops)
        for reg in range(2):
            for i in range(3):
                base, srdn = (S_BH if kind == "h" else S_BF), (S_WG, S_WU)[reg]
                imm = (sub * 192 + 16 * i) * 9216 + t * 64
                tm = tmp()
                sal = [f"s_add_u32 s{tm}, s{base}, {imm}", f"s_add_u32 m0, s{S_W3K}, {WSLOT[slot] + reg*12288 + i*1024}"]
                ops.append((sal, (f"buffer_load_dwordx4 v{V_WF}, s[{srdn}:{srdn+3}], s{tm} offen{NTW} lds", f"W{st}")))
        return annotate(ops)
    def x_loads(k0, k1):
        ops = []
        for ks in range(k0, k1):
            for mt in range(4):
                ops.append(([f"s_add_u32 s{S_RD}, s{S_XB}, {ks*4096}"] if mt == 0 else [],
                            (f"buffer_load_dwordx4 {xreg(ks, mt)}, v{V_L16}, s[{S_WS}:{S_WS+3}], s{S_RD} offen offset:{mt*1024} sc1", f"X{ks//3}")))
        return annotate(ops)
    def kv_dma(which, tile_slot, soff, add):
        ops = []
        for t in range(4):
            tm = tmp()
            base = (0 if which == "K" else 65536) + tile_slot * 16384 + t * 4096
            srdn = S_K if which == "K" else S_V
            if soff is None: sal = [f"s_mov_b32 s{tm}, {add + t*4096}"]
            else: sal = [f"s_add_u32 s{tm}, s{soff}, {add + t*4096}"]
            sal.append(f"s_add_u32 m0, s{S_W1K}, {base}")
            ops.append((sal, (f"buffer_load_dwordx4 v{V_KD if which == 'K' else V_VD}, s[{srdn}:{srdn+3}], s{tm} offen{NTKV} lds", f"{which}{tile_slot}")))
        return annotate(ops)
    def issue(ops):
        for sal, op in ops:
            for s in reversed(sal): p(s)
            p(op[0], op[1])
    PV_ = os.environ.get('PROV', 'D')
    srd(p, S_WG, 72, 576 * 9216); srd(p, S_WU, 74, 576 * 9216)
    def w3(st):
        for i in range(8):
            tm = tmp()
            p(f"s_add_u32 m0, s{S_RNW}, {WSLOT[st % 4] + i*1024}"); p(f"s_add_u32 s{tm}, s{S_RE}, {(st * 96 + 4 * i) * 8192}")
            p(f"buffer_load_dwordx4 v{V_WQ}, s[{S_WQ}:{S_WQ+3}], s{tm} offen{NTQ} lds", f"W{st}")
    if 'latebad' in ABL:
        srd(p, S_V, 72, 0); p("v_mov_b32 v36, 0"); p(f"s_mov_b32 s{S_RS}, 0")
    p(f"s_cmp_eq_u32 s{S_WAVE}, 0"); p("s_cbranch_scc1 L_w0a")
    p(f"s_sub_u32 s{S_T2}, s{S_WAVE}, 1"); p(f"s_lshl_b32 s{S_RNW}, s{S_T2}, 13"); p(f"s_lshl_b32 s{S_RE}, s{S_T2}, 18"); p(f"s_add_u32 s{S_RE}, s{S_RE}, s{S_T0}")
    w3(0)
    p(f"s_lshr_b32 s{S_T0}, s2, 3"); p(f"s_mul_i32 s{S_T0}, s{S_T0}, 3"); p(f"s_add_u32 s{S_T0}, s{S_T0}, s{S_T2}")
    p(f"s_and_b32 s{S_T1}, s{S_T0}, 1"); p(f"s_cmp_eq_u32 s{S_T1}, 0")
    p(f"s_cselect_b32 s{S_V}, s{S_WG}, s{S_WU}"); p(f"s_cselect_b32 s{S_V+1}, s{S_WG+1}, s{S_WU+1}"); p(f"s_mov_b32 s{S_V+2}, {576*9216}"); p(f"s_mov_b32 s{S_V+3}, 0x20000")
    p(f"s_lshr_b32 s{S_T0}, s{S_T0}, 1"); p(f"s_mul_i32 s{S_RS}, s{S_T0}, {12*9216}")
    p(f"s_lshr_b32 s{S_T2}, s{S_J}, 3"); p(f"s_mul_i32 s{S_T2}, s{S_T2}, 2304"); p(f"s_add_u32 s{S_RS}, s{S_RS}, s{S_T2}")
    p(f"s_sub_u32 s{S_T1}, 384, s{S_V}"); p(f"s_sub_u32 s{S_T1}, s{S_T1}, s{S_T2}"); p(f"s_and_b32 s{S_T1}, s{S_T1}, 1023"); p(f"s_add_u32 s{S_RS}, s{S_RS}, s{S_T1}")
    p("v_min_u32 v36, 35, v17"); p("v_mul_u32_u24 v27, 43, v36"); p("v_lshrrev_b32 v27, 7, v27")
    p(f"v_mul_u32_u24 v27, {9216 - 3072}, v27"); p("v_lshl_add_u32 v36, v36, 10, v27")
    if 'latebad' not in ABL: p(f"buffer_load_dword v164, v36, s[{S_V}:{S_V+3}], s{S_RS} offen", "TCH")
    p.label("L_w0a")
    ppad(0)
    p("v_lshrrev_b32 v26, 3, v17"); p("v_and_b32 v27, 3, v26"); p("v_lshrrev_b32 v26, 2, v26"); p("v_and_b32 v28, 7, v17")
    p("v_lshl_add_u32 v27, v27, 4, v28"); p("v_lshlrev_b32 v27, 4, v27"); p("v_lshl_add_u32 v26, v26, 12, v27")
    p(f"s_lshr_b32 s{S_T0}, s{S_CNT}, 3"); p(f"s_mul_i32 s{S_RD}, s{S_T0}, 73728")
    p(f"s_and_b32 s{S_T1}, s{S_CNT}, 6"); p(f"s_lshl_b32 s{S_T1}, s{S_T1}, 9"); p(f"s_add_u32 s{S_RD}, s{S_RD}, s{S_T1}")
    p(f"s_and_b32 s{S_T1}, s{S_CNT}, 1"); p(f"s_lshl_b32 s{S_T1}, s{S_T1}, 7"); p(f"s_add_u32 s{S_RD}, s{S_RD}, s{S_T1}")
    p(f"s_mov_b32 s{S_FO}, {FLAG_OFF}")
    p(f"s_getreg_b32 s{S_XCC}, hwreg(HW_REG_XCC_ID, 0, 4)"); p(f"s_lshl_b32 s{S_XCC}, s{S_XCC}, 3")
    p(f"s_lshl_b32 s{S_T0}, s{S_T0}, 9"); p(f"s_and_b32 s{S_T1}, s{S_CNT}, 7"); p(f"s_lshl_b32 s{S_T1}, s{S_T1}, 3"); p(f"s_add_u32 s{S_T0}, s{S_T0}, s{S_T1}"); p(f"s_add_u32 s{S_T0}, s{S_T0}, {FX_OFF}")
    p(f"v_mov_b32 v31, s{S_T0}")
    p(f"s_lshl_b32 s{S_T0}, s{S_RB}, 11"); p(f"s_and_b32 s{S_T1}, s{S_J}, 24"); p(f"s_lshl_b32 s{S_T1}, s{S_T1}, 6"); p(f"s_add_u32 s{S_T1}, s{S_T1}, s{S_T0}")
    p(f"v_lshl_add_u32 v{V_TA}, v28, 3, s{S_T1}")
    p(f"s_and_b32 s{S_T2}, s{S_J}, 7"); p(f"s_lshl_b32 s{S_T2}, s{S_T2}, 3"); p(f"s_add_u32 s{S_T1}, s{S_T1}, s{S_T2}")
    p(f"v_writelane_b32 v31, s{S_T1}, 1")
    p(f"s_cmp_eq_u32 s{S_WAVE}, 0"); p(f"s_cselect_b32 s{S_T1}, s{S_T1}, {1 << 30}"); p(f"v_mov_b32 v{V_SA}, s{S_T1}")
    p(f"s_add_u32 s{S_T0}, s{S_T0}, {FX_OFF}"); p(f"v_lshl_add_u32 v30, v28, 3, s{S_T0}"); p("v_and_b32 v27, 24, v17"); p("v_lshl_add_u32 v30, v27, 6, v30")
    p(f"s_lshl_b32 s{S_T0}, s{S_RB}, 2"); p(f"s_add_u32 s{S_T0}, s{S_T0}, s{S_WAVE}")
    p(f"s_mul_i32 s{S_XB}, s{S_T0}, 73728"); p(f"s_lshl_b32 s{S_OBASE}, s{S_T0}, 14")
    if 'finepro' in ABL: stamp(p, 2)
    F = 112
    pr = lambda r: f"v[{r}:{r+1}]"
    p(f"s_mov_b32 s{S_T2}, 0xffff0000")
    for i in range(4): p(f"v_mov_b32 v{140+i}, 0")
    p("v_lshlrev_b32 v25, 7, v19"); p("v_lshl_add_u32 v25, v18, 4, v25")
    p(f"s_cmp_eq_u32 s{S_WAVE}, 0"); p("s_cbranch_scc0 L_w0b")
    nt_ = (2 if 'tlb' in ABL else 0) + (1 if CL != '0' else 0)
    p.raw(f"    s_waitcnt vmcnt({nt_})")
    p.label("L_w0b")
    p(f"s_waitcnt vmcnt({9 + nt_})")
    p(f"buffer_load_dwordx2 v[72:73], v71, s[{S_DBG}:{S_DBG+3}], 0 offen sc1", "EP")
    if 'finepro' in ABL: stamp(p, 3)
    for i in range(12):
        p(f"v_lshlrev_b32 v{F+2*i}, 16, v{LX+i}"); p(f"v_and_b32 v{F+2*i+1}, s{S_T2}, v{LX+i}")
    for i in range(6): p(f"v_pk_add_f32 {pr(144+2*i)}, {pr(F+4*i)}, {pr(F+4*i+2)}")
    for i in range(3): p(f"v_pk_add_f32 {pr(144+4*i)}, {pr(144+4*i)}, {pr(146+4*i)}")
    p(f"v_pk_add_f32 {pr(144)}, {pr(144)}, {pr(148)}")
    p(f"s_mov_b64 exec, s[{S_RET}:{S_RET+1}]")
    p(f"v_pk_add_f32 {pr(140)}, {pr(144)}, {pr(152)}")
    p("s_mov_b64 exec, -1")
    def reduce32(r, t):
        p(f"v_add_f32 v{r}, v{r}, v{r+1}")
        for mod in ("quad_perm:[1,0,3,2]", "quad_perm:[2,3,0,1]", "row_half_mirror", "row_mirror"):
            p(f"v_add_f32_dpp v{r}, v{r}, v{r} {mod} row_mask:0xf bank_mask:0xf")
        p(f"v_mov_b32 v{t}, v{r}"); p(f"v_permlane16_swap_b32 v{r}, v{t}"); p(f"v_add_f32 v{r}, v{r}, v{t}")
    ppad(1)
    reduce32(140, 141)
    p(f"v_mul_f32 v140, {f2u(-1.0/576)}, v140")
    for i in range(12): p(f"v_pk_add_f32 {pr(168+2*i)}, {pr(F+2*i)}, {pr(140)} op_sel_hi:[1,0]")
    p(f"v_cvt_pk_bf16_f32 v140, v140, v140")
    for i in range(2): p(f"v_pk_mul_f32 {pr(144+2*i)}, {pr(168+2*i)}, {pr(168+2*i)}")
    p(f"v_and_b32 v140, s{S_T2}, v140")
    for i in range(2, 12): p(f"v_pk_fma_f32 {pr(144+2*(i%2))}, {pr(168+2*i)}, {pr(168+2*i)}, {pr(144+2*(i%2))}")
    p(f"s_mov_b64 exec, s[{S_RET}:{S_RET+1}]")
    p(f"v_pk_add_f32 {pr(142)}, {pr(144)}, {pr(146)}")
    p("s_mov_b64 exec, -1")
    red = Prog(); p_ = p; p = red
    reduce32(142, 143)
    p(f"v_mul_f32 v142, {f2u(1.0/576)}, v142")
    def rnd(r):
        p(f"v_cvt_pk_bf16_f32 v{r}, v{r}, v{r}"); p(f"v_and_b32 v{r}, s{S_T2}, v{r}")
    rnd(142)
    p(f"v_add_f32 v142, {f2u(1e-5)}, v142"); rnd(142)
    p("v_sqrt_f32 v142, v142"); rnd(142)
    p("v_rcp_f32 v143, v142"); p("v_fma_f32 v144, -v142, v143, 1.0"); p("v_fma_f32 v142, v144, v143, v143")
    p = p_
    oth = [f"v_pk_add_f32 {pr(F+2*i)}, {pr(F+2*i)}, {pr(140)} op_sel_hi:[1,0]" for i in range(12)]
    oth += [f"v_cvt_pk_bf16_f32 v{F+2*i+1}, v{F+2*i}, v{F+2*i+1}" for i in range(12)]
    for i in range(12): oth += [f"v_lshlrev_b32 v{F+2*i}, 16, v{F+2*i+1}", f"v_and_b32 v{F+2*i+1}, s{S_T2}, v{F+2*i+1}"]
    for it in red.items:
        p.items.append(it)
        for t in oth[:2]: p(t)
        oth = oth[2:]
    for t in oth: p(t)
    ppad(2)
    for i in range(12): p(f"v_pk_mul_f32 {pr(F+2*i)}, {pr(F+2*i)}, {pr(142)} op_sel_hi:[1,0]")
    for i in range(12): p(f"v_cvt_pk_bf16_f32 v{LX+i}, v{F+2*i}, v{F+2*i+1}")
    p(f"s_mov_b64 exec, s[{S_RET}:{S_RET+1}]")
    for m in range(3): p(f"ds_write_b128 v25, v[{LX+4*m}:{LX+4*m+3}] offset:{m*24*128}")
    p("s_mov_b64 exec, -1")
    p("s_waitcnt lgkmcnt(0)"); p("s_barrier")
    p(f"s_cmp_lg_u32 s{S_WAVE}, 0"); p("s_cbranch_scc1 L_noxs")
    for m in range(9): p(f"ds_read_b128 v[{LX+4*m}:{LX+4*m+3}], v{V_L16} offset:{m*1024}")
    for m in range(9):
        p(f"s_waitcnt lgkmcnt({8-m})")
        p(f"buffer_store_dwordx4 v[{LX+4*m}:{LX+4*m+3}], v26, s[{S_WS}:{S_WS+3}], s{S_RD} offen sc1", "XS")
        if m < 8: p(f"s_add_u32 s{S_RD}, s{S_RD}, 8192")
    def ep_wait(sfx):
        p(f"s_mov_b32 s{S_SPIN}, 0x40000")
        p.label(f"L_eppoll{sfx}")
        p(f"v_readfirstlane_b32 s{S_EP}, v72"); p(f"v_readfirstlane_b32 s{S_EP2}, v73")
        p(f"s_cmp_lg_u32 s{S_EP}, 0"); p(f"s_cbranch_scc1 L_epok{sfx}")
        p.raw(f"    buffer_load_dwordx2 v[72:73], v71, s[{S_DBG}:{S_DBG+3}], 0 offen sc1")
        p.raw("    s_waitcnt vmcnt(0)")
        p(f"s_sub_u32 s{S_SPIN}, s{S_SPIN}, 1"); p(f"s_cmp_lg_u32 s{S_SPIN}, 0"); p(f"s_cbranch_scc1 L_eppoll{sfx}")
        p.label(f"L_epok{sfx}")
    ppad(3)
    if 'finepro' in ABL: stamp(p, 4)
    p("s_waitcnt vmcnt(0)")
    ep_wait("a")
    p(f"s_add_u32 s{S_T0}, s{S_XCC}, s{S_EP}"); p(f"s_add_u32 s{S_PV}, s{S_EP}, 1")
    p(f"v_add_u32_e64 v32, s{S_T0}, 1"); p("v_mov_b32 v33, v73")
    p(f"buffer_store_dwordx2 v[32:33], v31, s[{S_WS}:{S_WS+3}], s{S_FO} offen sc1")
    if 'wdelay' in ABL: p("s_barrier")
    if 'finepro' in ABL: stamp(p, 5)
    p("s_branch L_xready")
    p.label("L_noxs")
    if 'finepro' in ABL: stamp(p, 4)
    if 'wdelay' in ABL: p("s_barrier")
    w3(1)
    if PV_ == 'D': w3(2)
    HOP = 'nohop' not in ABL
    if HOP:
        p("s_mov_b64 exec, 0")
        p(f"s_cmp_eq_u32 s{S_WAVE}, 1"); p("s_cbranch_scc1 L_pad0")
        p(f"s_cmp_eq_u32 s{S_WAVE}, 2"); p("s_cbranch_scc1 L_pad1")
        p("s_branch L_pad2")
        p.label("L_padend")
        p("s_mov_b64 exec, -1")
    if 'finepro' in ABL: stamp(p, 5)
    if HOP: p("s_branch L_xready")
    p.label("L_xready", 12 if HOP else None)
    p("v_lshrrev_b32 v18, 2, v17"); p("v_and_b32 v19, 3, v17"); p("v_and_b32 v21, 3, v18")
    p(f"s_lshl_b32 s{S_W1K}, s{S_WAVE}, 10")
    p("v_lshl_add_u32 v23, v20, 3, v21"); p("v_lshlrev_b32 v24, 8, v23"); p("v_lshl_add_u32 v24, v19, 4, v24"); p(f"v_add_u32 v24, {40*1024}, v24")
    for sg_ in range(4):
        p(f"v_xor_b32 v25, {sg_}, v21"); p(f"v_lshl_add_u32 v{V_RQ+sg_}, v25, 6, v24"); p(f"v_add_u32 v{V_RQ+4+sg_}, {64*1024}, v{V_RQ+sg_}")
    p("v_lshlrev_b32 v23, 6, v23")
    p("v_and_b32 v24, 1, v20"); p("v_lshlrev_b32 v24, 5, v24")
    p("v_lshl_add_u32 v25, v19, 3, v23")
    p(f"v_add_u32 v{V_RA}, v25, v24"); p(f"v_add_u32 v{V_RA}, {40*1024}, v{V_RA}")
    p(f"v_xor_b32 v{V_RA+1}, 32, v{V_RA}")
    p(f"v_add_u32 v{V_RA+2}, {64*1024}, v{V_RA}"); p(f"v_add_u32 v{V_RA+3}, {64*1024}, v{V_RA+1}")
    p(f"s_and_b32 s{S_T2}, s{S_J}, 1"); p(f"s_lshl_b32 s{S_T0}, s{S_T2}, 5")
    p(f"v_xor_b32 v{V_RH}, s{S_T0}, v{V_RA}"); p(f"v_add_u32 v{V_RH+1}, {64*1024}, v{V_RH}")
    p("v_lshrrev_b32 v23, 5, v17"); p("v_lshlrev_b32 v23, 1, v23"); p("v_xor_b32 v23, v23, v19")
    p(f"v_mul_u32_u24 v24, 9216, v18"); p(f"v_lshl_add_u32 v{V_WF}, v23, 4, v24")
    p(f"v_mov_b32 v{V_C1}, {f2u(GC1)}"); p(f"v_mov_b32 v{V_C2}, {f2u(GC2)}")
    p(f"s_mul_i32 s{S_W3K}, s{S_WAVE}, 3072")
    p(f"s_mul_i32 s{S_BH}, s{S_WAVE}, {48*9216}")
    p(f"s_mul_i32 s{S_RS}, s{S_J}, 288"); p(f"s_add_u32 s{S_RS}, s{S_RS}, s{S_T0}")
    p(f"s_add_u32 s{S_BF}, s{S_BH}, s{S_RS}")
    p(f"s_lshr_b32 s{S_T0}, s{S_J}, 1"); p(f"s_lshl_b32 s{S_T0}, s{S_T0}, 19")
    for d, b in ((S_K, 64), (S_V, 66)):
        p(f"s_add_u32 s{d}, s{b}, s{S_T0}"); p(f"s_addc_u32 s{d+1}, s{b+1}, 0"); p(f"s_mov_b32 s{d+2}, 524288"); p(f"s_mov_b32 s{d+3}, 0x20000")
    p(f"s_lshr_b32 s{S_T0}, s{S_J}, 1"); p(f"s_mul_i32 s{S_KOFF}, s{S_T0}, 576"); p(f"s_add_u32 s{S_KOFF}, s{S_KOFF}, 256")
    p(f"s_add_u32 s{S_BH}, s{S_BH}, s{S_KOFF}")
    def hoff(dst, colreg, add):
        p(f"s_lshr_b32 s{S_T0}, s{colreg}, 6"); p(f"s_add_u32 s{S_T0}, s{S_T0}, {add}")
        p(f"s_lshr_b32 s{S_T1}, s{S_T0}, 2"); p(f"s_lshl_b32 s{S_T1}, s{S_T1}, 19")
        p(f"s_and_b32 s{S_T0}, s{S_T0}, 3"); p(f"s_lshl_b32 s{S_T0}, s{S_T0}, 10")
        p(f"s_add_u32 s{dst}, s{S_T0}, s{S_T1}"); p(f"s_add_u32 s{dst}, s{dst}, s{S_OBASE}")
    hoff(S_HHALF, S_KOFF, 0); p(f"s_lshl_b32 s{S_T0}, s{S_T2}, 3"); p(f"s_add_u32 s{S_HHALF}, s{S_HHALF}, s{S_T0}")
    for t in range(4): hoff(S_HF + t, S_RS, t)
    p(f"s_lshl_b32 s{S_T0}, s{S_J}, 19"); p(f"s_add_u32 s{S_OBASE}, s{S_OBASE}, s{S_T0}")
    p(f"s_mov_b32 s{S_THR}, {f2u(THRESH)}")
    p(f"s_lshl_b32 s{S_T0}, s{S_WAVE}, 2"); p(f"v_add_u32 v23, s{S_T0}, v20")
    p(f"v_xor_b32 v24, v22, v23"); p(f"v_lshlrev_b32 v24, 4, v24"); p(f"v_lshl_add_u32 v{V_KD}, v23, 8, v24")
    p(f"v_and_b32 v24, 7, v23"); p(f"v_lshlrev_b32 v24, 1, v24"); p(f"v_xor_b32 v24, v22, v24"); p(f"v_lshlrev_b32 v24, 4, v24"); p(f"v_lshl_add_u32 v{V_VD}, v23, 8, v24")
    for ks in range(2, 4):
        p(f"v_add_u32 v23, {4*ks}, v20"); p("v_xor_b32 v23, v23, v22"); p("v_lshlrev_b32 v23, 4, v23"); p(f"v_lshl_add_u32 v{V_KA+ks}, v22, 8, v23")
    p("v_and_b32 v24, 7, v18"); p("v_lshlrev_b32 v25, 8, v18"); p("v_lshl_add_u32 v25, v19, 3, v25"); p("v_add_u32 v25, 0x10000, v25")
    for dt in range(8):
        p(f"v_xor_b32 v23, {dt}, v24"); p(f"v_lshl_add_u32 v{V_VA+dt}, v23, 5, v25")
    p(f"s_lshl_b32 s{S_T0}, s{S_WAVE}, 14"); p(f"s_cmp_eq_u32 s{S_WAVE}, 2"); p(f"s_cselect_b32 s{S_T0}, 0x10000, s{S_T0}")
    p(f"s_add_u32 s{S_T1}, s{S_T0}, 8192"); p(f"s_cmp_eq_u32 s{S_WAVE}, 3"); p(f"s_cselect_b32 s{S_T0}, 0x8000, s{S_T0}"); p(f"s_cselect_b32 s{S_T1}, {152*1024}, s{S_T1}")
    p(f"v_add_u32 v{V_QP}, s{S_T0}, v{V_L16}"); p(f"v_add_u32 v{V_QP+1}, s{S_T1}, v{V_L16}")
    p(f"s_cmp_lg_u32 s{S_WAVE}, 0"); p("s_cbranch_scc1 L_xgo")
    p(f"s_mov_b32 s{S_SPIN}, 0x40000")
    p.label("L_xpoll")
    p.raw(f"    buffer_load_dwordx2 v[34:35], v30, s[{S_WS}:{S_WS+3}], s{S_FO} offen sc1")
    p.raw("    s_waitcnt vmcnt(0)")
    for t in flag_test(34): p(t)
    p("v_cmp_le_u32 vcc, 7, v34")
    p("s_cbranch_vccz L_xgo")
    p(f"s_sub_u32 s{S_SPIN}, s{S_SPIN}, 1"); p(f"s_cmp_lg_u32 s{S_SPIN}, 0"); p("s_cbranch_scc1 L_xpoll")
    p.label("L_xgo")
    p("s_barrier")
    if 'finepro' in ABL: stamp(p, 6)
    issue(x_loads(0, 3))

    groups = []
    for st in range(NST):
        kind, t, sub, buf = stages[st]
        if kind == "q":
            for nt in range(8): groups.append((st, nt, 0))
        else:
            nts = [0, 2] if kind == "h" else [0, 1, 2, 3]
            for c0 in (0, 3):
                for nt in nts: groups.append((st, nt, c0))
    def a_reads(gi):
        st, nt, c0 = groups[gi]; kind, t, sub, buf = stages[st]
        hb, off = wbase(st % 4)
        out = []
        for c in range(3):
            for tt in range(2):
                d = V_AF + (gi % 3) * 12 + c * 4 + 2 * tt
                if kind == "q":
                    addr = V_RQ + 4 * hb + (nt >> 1); o = off + c * 8192 + tt * 1024 + 8 * (nt & 1)
                else:
                    addr = (V_RA + 2 * hb + (nt & 1)) if kind == "f" else (V_RH + hb)
                    o = off + (nt >> 1) * 12288 + (c0 + c) * 2048 + tt * 256
                out.append((f"ds_read_b64_tr_b16 v[{d}:{d+1}], v{addr} offset:{o}", f"A{gi%3}"))
        return out
    acc = lambda buf, nt, mt: V_ACC + buf * 64 + (nt * 4 + mt) * 4
    gaps = []; gstart = []
    for gi, (st, nt, c0) in enumerate(groups):
        gstart.append(len(gaps))
        kind, t, sub, buf = stages[st]
        for mt in range(4):
            for c in range(3):
                a = acc(buf, nt, mt); af = V_AF + (gi % 3) * 12 + c * 4
                ks = (sub * 3 if kind == "q" else sub * 6 + c0) + c
                C = "0" if ks == 0 else f"v[{a}:{a+3}]"
                gaps.append(Gap(f"v_mfma_f32_16x16x32_bf16 v[{a}:{a+3}], v[{af}:{af+3}], {xreg(ks, mt)}, {C}"))
    NG = len(groups)
    first_of_stage = {}
    for gi, (st, nt, c0) in enumerate(groups): first_of_stage.setdefault(st, gi)
    bar_gap = {}
    for gi in range(2, NG):
        st = groups[gi][0]; f = first_of_stage[st]
        rd = a_reads(gi)
        if gi == f:
            g0 = gstart[gi - 1]; bar_gap[st] = g0 - 1
            for n, r in enumerate(rd): gaps[g0 + n].mem.append(r)
        elif gi == f + 1:
            g0 = gstart[gi - 2]
            for n, r in enumerate(rd): gaps[g0 + 6 + n].mem.append(r)
        else:
            g0 = gstart[gi - 2]
            for n, r in enumerate(rd): gaps[g0 + 2 * n].mem.append(r)
    for gi in range(1, NG):
        g = gaps[gstart[gi] - 1]
        st, nt, c0 = groups[gi]
        vm = []
        if st < 6 and nt == 0: vm.append(f"X{st}")
        nxt = groups[gi + 1][0] if gi + 1 < NG else None
        if nxt is not None and nxt != st:
            g.sh.append(WaitFor(vm=vm + [f"W{nxt}"], lg0=True)); g.sh.append("s_barrier")
        else:
            g.sh.append(WaitFor(lg=(f"A{gi%3}",), vm=vm))
    def place_mem(gaps, ops, g0, g1, dense=False, want=0):
        pitch = max(1.0, (g1 - g0 - 8) / len(ops)) if not dense else 1.0
        last = g0
        for n, (sal, op) in enumerate(ops):
            g = max(last + 1 + len(sal), int(g0 + 2 + n * pitch))
            while True:
                assert g < g1, (g0, g1, n, len(ops))
                ok = (len(gaps[g].mem) <= 1 if dense else len(gaps[g].mem) == want) and all(len(gaps[g - len(sal) + i].sh) == 0 for i in range(len(sal)))
                if ok: break
                g += 1
            for i, s in enumerate(sal): gaps[g - len(sal) + i].sh.append(s)
            gaps[g].mem.append(op); last = g
    for st in range(NST):
        g0 = gstart[first_of_stage[st]]
        g1 = bar_gap[st + 1] if st + 1 < NST else len(gaps)
        ops = []
        XL_ = os.environ.get('XL', '0') == '1'
        if st == 0: ops = (x_loads(3, 9) if XL_ else x_loads(6, 9) + w_dma(3))
        elif st == 1: ops = (w_dma(3) if XL_ else []) + x_loads(9, 12) + w_dma(4)
        elif st == 2: ops = x_loads(12, 15) + w_dma(5)
        elif st == 3: ops = x_loads(15, 18) + w_dma(6)
        elif st + 3 < NST: ops = w_dma(st + 3)
        if st == 4: ops = [([], (f"buffer_load_dwordx2 v[74:75], v{V_TA}, s[{S_WS}:{S_WS+3}], s{S_FO} offen sc1", "GX"))] + ops
        if st == 18: ops += kv_dma("V", VS(0), None, 0)
        if st == 19: ops += kv_dma("K", KS(0), None, 0)
        if st == 20: ops += kv_dma("K", KS(1), None, 16384) + kv_dma("V", VS(1), None, 16384) + kv_dma("K", KS(2), None, 32768)
        if ops: place_mem(gaps, ops, g0 - (2 if st == 0 else 0), (g0 + 66 if (st == 0 and XL_) else g1) if st < 20 else g0 + 60)
        if st == 19:
            cand = [g for g in range(g0 + 3, g1 - 2) if not gaps[g].mem][::2]
            assert len(cand) >= 16
            for f, g in enumerate(cand[:16]):
                gaps[g].mem.append((f"ds_read_b128 a[{A_Q+4*f}:{A_Q+4*f+3}], v{V_QP + f//8} offset:{(f%8)*1024}", "QR"))
    def ffn_epi(st0, pk=False, mts=(0, 1, 2, 3)):
        kind, t, sub, buf = stages[st0]
        q = []
        for mt in mts:
            if kind == "f": el = [(acc(buf, n, mt) + r, acc(buf, 2 + n, mt) + r) for n in range(2) for r in range(4)]
            else: el = [(acc(buf, 0, mt) + r, acc(buf, 2, mt) + r) for r in range(4)]
            T = V_T + 8 * (mt % 2)
            if pk:
                pr = lambda r: f"v[{r}:{r+1}]"
                ev = list(enumerate(el))[::2]
                for e, (g, u) in ev: q.append(f"v_pk_mul_f32 {pr(T+e)}, {pr(g)}, {pr(g)}")
                for e, (g, u) in ev: q.append(f"v_pk_fma_f32 {pr(T+e)}, {pr(T+e)}, {pr(V_C1)}, {pr(V_C1)} op_sel:[0,1,0] op_sel_hi:[1,1,0]")
                for e, (g, u) in ev: q.append(f"v_pk_mul_f32 {pr(T+e)}, {pr(T+e)}, {pr(g)}")
                for e, (g, u) in enumerate(el): q.append(f"v_exp_f32 v{T+e}, v{T+e}")
                for e, (g, u) in ev: q.append(f"v_pk_mul_f32 {pr(g)}, {pr(g)}, {pr(u)}")
                for e, (g, u) in ev: q.append(f"v_pk_add_f32 {pr(T+e)}, {pr(T+e)}, 1.0 op_sel_hi:[1,0]")
                for e, (g, u) in enumerate(el): q.append(f"v_rcp_f32 v{T+e}, v{T+e}")
                for e, (g, u) in ev: q.append(f"v_pk_mul_f32 {pr(g)}, {pr(g)}, {pr(T+e)}")
            else:
                for e, (g, u) in enumerate(el): q.append(f"v_mul_f32 v{T+e}, v{g}, v{g}")
                for e, (g, u) in enumerate(el): q.append(f"v_fma_f32 v{T+e}, v{T+e}, v{V_C2}, v{V_C1}")
                for e, (g, u) in enumerate(el): q.append(f"v_mul_f32 v{T+e}, v{T+e}, v{g}")
                for e, (g, u) in enumerate(el):
                    q.append(f"v_exp_f32 v{T+e}, v{T+e}"); q.append(f"v_mul_f32 v{g}, v{g}, v{u}")
                for e, (g, u) in enumerate(el): q.append(f"v_add_f32 v{T+e}, 1.0, v{T+e}")
                for e, (g, u) in enumerate(el): q.append(f"v_rcp_f32 v{T+e}, v{T+e}")
                for e, (g, u) in enumerate(el): q.append(f"v_mul_f32 v{g}, v{g}, v{T+e}")
            o = V_HO + 4 * (mt % 2)
            for i in range(len(el) // 2): q.append(f"v_cvt_pk_bf16_f32 v{o+i}, v{el[2*i][0]}, v{el[2*i+1][0]}")
            if kind == "f":
                q.append(("MEM", [f"s_add_u32 s{S_T2}, s{S_HF+t}, {H_OFF + mt*4096}"], (f"buffer_store_dwordx4 v[{o}:{o+3}], v{V_L16}, s[{S_WS}:{S_WS+3}], s{S_T2} offen{SCH}", None)))
            else:
                q.append(("MEM", [f"s_add_u32 s{S_T2}, s{S_HHALF}, {H_OFF + mt*4096}"], (f"buffer_store_dwordx2 v[{o}:{o+1}], v{V_L16}, s[{S_WS}:{S_WS+3}], s{S_T2} offen{SCH}", None)))
        return q
    def q_epi(seg):
        q = []
        for mt in range(4):
            rs = [acc(0, 2 * seg, mt) + r for r in range(4)] + [acc(0, 2 * seg + 1, mt) + r for r in range(4)]
            o = V_T + 4 * ((seg * 4 + mt) % 4)
            for r in rs: q.append(f"v_mul_f32 v{r}, {f2u(QSCALE)}, v{r}")
            for i in range(4): q.append(f"v_cvt_pk_bf16_f32 v{o+i}, v{rs[2*i]}, v{rs[2*i+1]}")
            f = mt * 4 + seg
            q.append(("MEM", [], (f"ds_write_b128 v{V_QP + f//8}, v[{o}:{o+3}] offset:{(f%8)*1024}", None)))
        return q
    sg = lambda st: gstart[first_of_stage[st]]
    gaps[bar_gap[20] - 11].post += [f"s_load_dwordx2 s[64:65], s[0:1], {ARG['wo']}", f"s_load_dwordx2 s[66:67], s[0:1], {ARG['wd']}",
                                    f"s_load_dwordx2 s[{S_OUT}:{S_OUT+1}], s[0:1], {ARG['out']}"]
    g_ = gaps[sg(8) + 1]
    g_.post += [WaitFor(vm=("GX",)), f"v_subrev_u32 v74, s{S_XCC}, v74", f"v_xor_b32 v75, s{S_EP2}, v75", "v_min_u32 v75, 1, v75", "v_lshl_or_b32 v74, v75, 8, v74", "v_cmp_le_u32 vcc, 8, v74", "s_nop 1",
                "s_cmp_lg_u64 vcc, 0", f"s_cselect_b32 s{S_MIX}, 1, {1 if 'forcemix' in ABL else 0}"]
    f5 = first_of_stage[5]
    q = []; mins = []
    for seg in range(4):
        e_ = q_epi(seg); q += e_; mins += [gstart[f5 + 2 * seg + 2] + 3] * len(e_)
    left = fill_valu(gaps[:sg(9) - 3], gstart[f5 + 2] + 3, q, mins=mins); assert not left, len(left)
    for seg, lim_ in ((0, sg(6) - 3), (1, sg(6) + 9)):
        cv_ = [x for x in q_epi(seg) if isinstance(x, str)]
        lastg = max(gi for gi, g in enumerate(gaps) for x in g.valu if x in cv_ and gi < sg(9))
        assert lastg < lim_, (seg, lastg, lim_)
    for st0 in (6, 9, 12, 15):
        end = sg(st0 + 6) - 3 if st0 + 6 < NST else len(gaps)
        left = fill_valu(gaps[:end], sg(st0 + 3) + 3, ffn_epi(st0)); assert not left, (st0, len(left))
    left = fill_valu(gaps, sg(19), [f"v_xor_b32 v{V_KA}, 128, v{V_KA+2}", f"v_xor_b32 v{V_KA+1}, 128, v{V_KA+3}"]); assert not left
    if not XL_: issue(x_loads(3, 6))
    p.items.append(WaitFor(vm=("X0",)))
    p("s_barrier")
    for t, tag in a_reads(0) + a_reads(1): p(t, tag)
    ep_wait("b")
    p(f"s_add_u32 s{S_XCC}, s{S_XCC}, s{S_EP}")
    p.items.append(WaitFor(lg=("A0",)))
    stamp(p, 1)
    if 'finepro' in ABL:
        gaps[sg(1) - 1].post += stamp_ops(7); gaps[sg(2) - 1].post += stamp_ops(8); gaps[sg(3) - 1].post += stamp_ops(9)
    elif 'fine1' in ABL:
        for st in range(6, 21): gaps[sg(st) - 1].post += stamp_ops(st - 4)
    else:
        gaps[sg(6) - 1].post += stamp_ops(2); gaps[sg(12) - 1].post += stamp_ops(3)
    emit_gaps(p, gaps)
    if 'fine1' in ABL:
        stamp(p, 17); globals()['ABL'] += ',finepro'
    if 'finepro' not in ABL: stamp(p, 4)

    Sreg = lambda par, kt, qt: V_S + (1 - par) * 64 + (kt * 4 + qt) * 4
    Preg = lambda par, kb, qt: (V_P0 + par * 16 + qt * 4) if kb == 0 else (V_P1 + qt * 4)
    Kf = lambda kt, ks: A_KF + (kt % 2) * 16 + ks * 4
    Vf = lambda dt, kb: A_VF + (dt % 4) * 8 + kb * 4
    def k_reads(slot, kt):
        return [(f"ds_read_b128 a[{Kf(kt,ks)}:{Kf(kt,ks)+3}], v{V_KA+ks} offset:{slot*16384 + kt*4096}", f"KF{kt%2}") for ks in range(4)]
    def v_reads(slot, dt):
        return [(f"ds_read_b64_tr_b16 a[{Vf(dt,kb)+2*t}:{Vf(dt,kb)+2*t+1}], v{V_VA+dt} offset:{slot*16384 + kb*8192 + t*4096}", f"VF{dt%4}") for kb in range(2) for t in range(2)]
    def qk_mfma(par, kt, qt, ks, zero=False):
        s = Sreg(par, kt, qt)
        C = f"v[{s}:{s+3}]" if ks else ("0" if zero else f"v[{V_NM+4*qt}:{V_NM+4*qt+3}]")
        qf = A_Q + (qt * 4 + ks) * 4
        return f"v_mfma_f32_16x16x32_bf16 v[{s}:{s+3}], a[{Kf(kt,ks)}:{Kf(kt,ks)+3}], a[{qf}:{qf+3}], {C}"
    def pv_mfma(par, dt, qt, kb):
        o = A_O + (dt * 4 + qt) * 4; pr = Preg(par, kb, qt)
        return f"v_mfma_f32_16x16x32_bf16 a[{o}:{o+3}], a[{Vf(dt,kb)}:{Vf(dt,kb)+3}], v[{pr}:{pr+3}], a[{o}:{o+3}]"
    def l_mfma(par, qt, kb):
        pr = Preg(par, kb, qt)
        return f"v_mfma_f32_16x16x32_bf16 v[{V_LD}:{V_LD+3}], v[{V_ONE}:{V_ONE+3}], v[{pr}:{pr+3}], " + ("0" if kb == 0 else f"v[{V_LD}:{V_LD+3}]")
    def elem(par, tau):
        kb = tau // 32; r = tau % 32; qt = 2 * (r // 16) + ((r % 4) >> 1); j = 2 * ((r % 16) // 4) + (r & 1)
        return Sreg(par, 2 * kb + (j >> 2), qt) + (j & 3), kb, qt, j
    def op_exp(par, tau): return f"v_exp_f32 v{V_E + tau % 8}, v{elem(par, tau)[0]}"
    def op_add(par, tau):
        s, kb, qt, j = elem(par, tau); assert qt % 2 == 1
        src = V_LS + (1 - par) * 4 + qt if (kb == 0 and j == 0) else V_LS + par * 4 + qt
        return f"v_add_f32 v{V_LS + par*4 + qt}, v{src}, v{V_E + tau % 8}"
    def op_ladd(par, qt): return f"v_add_f32 v{V_LS + par*4 + qt}, v{V_LS + (1-par)*4 + qt}, v{V_LD}"
    def op_cvt(par, tau):
        s, kb, qt, j = elem(par, tau); assert tau % 2 == 1
        return f"v_cvt_pk_bf16_f32 v{Preg(par, kb, qt) + j//2}, v{V_E + (tau-1) % 8}, v{V_E + tau % 8}"
    def rowmax(p, par, qt, dst):
        regs = [Sreg(par, kt, qt) + r for kt in range(4) for r in range(4)]
        p(f"v_max3_f32 v{dst}, v{regs[0]}, v{regs[1]}, v{regs[2]}")
        for i in range(3, 15, 2): p(f"v_max3_f32 v{dst}, v{dst}, v{regs[i]}, v{regs[i+1]}")
        p(f"v_max_f32 v{dst}, v{dst}, v{regs[15]}")
    def xlane_ops(op, dsts, t1):
        o = []
        for sw in ("v_permlane32_swap_b32", "v_permlane16_swap_b32"):
            for q, d in enumerate(dsts): o.append(f"v_mov_b32 v{t1+q}, v{d}")
            for q, d in enumerate(dsts): o.append(f"{sw} v{d}, v{t1+q}")
            for q, d in enumerate(dsts): o.append(f"{op} v{d}, v{d}, v{t1+q}")
        return o

    p.items.append(WaitFor(vm=(f"K{KS(0)}",), lg0=True)); p("s_barrier")
    for t, tag in k_reads(KS(0), 0) + k_reads(KS(0), 1): p(t, tag)
    g0 = []
    for kt in range(4):
        for qt in range(4):
            for ks in range(4): g0.append(Gap(qk_mfma(0, kt, qt, ks, zero=True)))
    for n, r in enumerate(k_reads(KS(0), 2)): g0[16 + 2 * n].mem.append(r)
    for n, r in enumerate(k_reads(KS(0), 3)): g0[32 + 2 * n].mem.append(r)
    g0[31].sh.append(WaitFor(lg=("KF0",))); g0[47].sh.append(WaitFor(lg=("KF1",)))
    place_mem(g0, kv_dma("K", KS(3), None, 3 * 16384) + kv_dma("V", VS(2), None, 2 * 16384), 0, 40)
    full = ffn_epi(18); per = len(full) // 4
    npre = 24
    if 'finea' in ABL: stamp(p, 0)
    emit_ops(p, full[:npre])
    left = fill_valu(g0, 0, full[npre:2 * per])
    left += ffn_epi(18, pk=True, mts=(2, 3))
    p.items.append(WaitFor(lg=("KF0", "KF1")))
    sal = [f"s_mov_b32 s{S_OUT+2}, {XN_BYTES}",
           f"s_and_b32 s{S_T0}, s{S_J}, 7", f"s_lshl_b32 s{S_T1}, s{S_RB}, 3", f"s_add_u32 s{S_T0}, s{S_T0}, s{S_T1}",
           f"s_lshl_b32 s{S_T0}, s{S_T0}, 2", f"s_add_u32 s{S_T0}, s{S_T0}, s{S_WAVE}", f"s_lshr_b32 s{S_KOFF}, s{S_J}, 3",
           f"s_sub_u32 s{S_T1}, s{S_T0}, 120", f"s_cmp_lt_u32 s{S_T0}, 120",
           f"s_cselect_b32 s{S_RE}, s{S_T0}, s{S_T1}", f"s_movk_i32 s{S_RNW}, 136", f"s_cselect_b32 s{S_RNW}, 120, s{S_RNW}",
           f"s_cselect_b32 s{S_WG}, s64, s66", f"s_cselect_b32 s{S_WG+1}, s65, s67",
           f"s_mov_b32 s{S_WG+2}, {1152*1152}", f"s_cselect_b32 s{S_WG+2}, {1024*1152}, s{S_WG+2}", f"s_mov_b32 s{S_WU+2}, s{S_WG+2}",
           f"s_mov_b32 s{S_T0}, {WPD_OFF}", f"s_cselect_b32 s{S_T0}, {WPO_OFF}, s{S_T0}",
           f"s_mul_i32 s{S_T1}, s{S_KOFF}, s{S_WG+2}",
           f"s_add_u32 s{S_WG}, s{S_WG}, s{S_T1}", f"s_addc_u32 s{S_WG+1}, s{S_WG+1}, 0",
           f"s_add_u32 s{S_T0}, s{S_T0}, s{S_T1}", f"s_add_u32 s{S_WU}, s70, s{S_T0}", f"s_addc_u32 s{S_WU+1}, s71, 0",
           f"s_sub_u32 s{S_RE}, s{S_RE}, s{S_RNW}",
           f"s_mov_b32 s{S_KOFF}, {4*16384}", f"s_mov_b32 s{S_VOFF}, {3*16384}", f"s_mov_b32 s{S_CNT}, 7",
           f"s_lshl_b32 s{S_BQ}, s{S_WAVE}, 11", f"s_add_u32 s{S_BQ}, s{S_BQ}, {128*1024}"]
    fr_ = [g for g in g0[41:] if not g.sh]
    k_ = sal.index(f"s_cmp_lt_u32 s{S_T0}, 120")
    for t, g in zip(sal[:k_], fr_): g.sh.append(t)
    emit_gaps(p, g0)
    emit_ops(p, left)
    for t in sal[k_:]: p(t)
    for q in range(4): p(f"v_mov_b32 v{V_LS+4+q}, 0")
    for q in range(4): p(f"v_mov_b32 v{V_ONE+q}, 0x3f803f80")
    p.items.append(WaitFor(vm=(f"K{KS(1)}", f"V{VS(0)}"))); p("s_barrier")
    for t, tag in k_reads(KS(1), 0) + k_reads(KS(1), 1): p(t, tag)
    p(f"v_lshrrev_b32 v{V_PT+1}, 4, v{V_L16}")
    p(f"v_lshrrev_b32 v{V_RPG}, 2, v{V_PT+1}"); p(f"v_and_b32 v{V_PT}, 3, v{V_PT+1}")
    p(f"v_lshlrev_b32 v{V_RPL}, 6, v{V_RPG}"); p(f"v_lshl_add_u32 v{V_RPL}, v{V_PT}, 3, v{V_RPL}"); p(f"v_add_u32 v{V_RPL}, s{S_BQ}, v{V_RPL}")
    p(f"v_mul_u32_u24 v{V_RPG}, 1152, v{V_RPG}"); p(f"v_lshl_add_u32 v{V_RPG}, v{V_PT}, 4, v{V_RPG}")
    p(f"s_and_b32 s{S_T1}, s{S_J}, 24"); p(f"s_lshl_b32 s{S_T1}, s{S_T1}, 6"); p(f"v_and_b32 v{V_PT}, 7, v{V_PT+1}")
    p(f"v_lshrrev_b32 v{V_PA}, 3, v{V_PT+1}"); p(f"v_lshlrev_b32 v{V_PA}, 11, v{V_PA}"); p(f"v_lshl_add_u32 v{V_PA}, v{V_PT}, 3, v{V_PA}")
    p(f"v_add_u32 v{V_PA}, s{S_T1}, v{V_PA}")
    p(f"v_mov_b32 v{V_SV+1}, s{S_EP2}")
    zm = [f"v_mfma_f32_32x32x16_bf16 a[{A_O+16*i}:{A_O+16*i+15}], v[{V_LS+4}:{V_LS+7}], v[{V_LS+4}:{V_LS+7}], 0" for i in range(8)]
    for qt in range(4):
        p(zm[qt]); rowmax(p, 0, qt, V_R + qt)
    for n, t in enumerate(xlane_ops("v_max_f32", [V_R + q for q in range(4)], V_R + 4)):
        if n % 8 == 0: p(zm[4 + n // 8])
        p(t)
    p(zm[7])
    for qt in range(4):
        for r in range(4): p(f"v_sub_f32 v{V_NM+4*qt+r}, {f2u(-BIAS) if BIAS else 0}, v{V_R+qt}")
    for kt in range(4):
        for qt in range(4):
            for r in (0, 2):
                s_ = Sreg(0, kt, qt) + r
                p(f"v_pk_add_f32 v[{s_}:{s_+1}], v[{s_}:{s_+1}], v[{V_NM+4*qt}:{V_NM+4*qt+1}]")
    for tau in range(36):
        p(op_exp(0, tau))
        if tau % 4 == 0 and tau: p(op_add(0, tau - 1)); p(op_cvt(0, tau - 1))
        if tau % 4 == 2: p(op_cvt(0, tau - 1))
        if tau % 4 == 3: p(op_add(0, tau - 1))
    p.items.append(WaitFor(lg=("KF0",)))
    p(op_add(0, 35))
    if 'finepro' not in ABL: stamp(p, 5); stamp_rt(p, 15)

    rare_sites = []
    class Tile: pass
    def used(g): return len(g.mem) + sum(slots_of(v) for v in g.valu)
    def att_tile(it, last_block=False, first_mfmas=None):
        par = it % 2
        final = last_block and it == 3
        T = Tile(); G = []; Q = []; PV = []; LG = []
        mf = first_mfmas or [qk_mfma(1 - par, kt, qt, ks) for kt in range(4) for qt in range(4) for ks in range(4)]
        for i, m in enumerate(mf):
            g = Gap(m); G.append(g); Q.append(g)
            if i in (19, 23, 51, 55):
                g = Gap(l_mfma(par, 0 if i < 32 else 2, 0 if i in (19, 51) else 1)); G.append(g); LG.append(g)
        for dt in range(8):
            for qt in range(4):
                for kb in range(2):
                    g = Gap(pv_mfma(par, dt, qt, kb)); G.append(g); PV.append(g)
        T.G, T.Q, T.PV, T.LG = G, Q, PV, LG
        idx = {id(g): i for i, g in enumerate(G)}
        T.idx = lambda g: idx[id(g)]
        br = Q[-1]
        for b in range(64):
            E, N = (Q[2*b], Q[2*b+1]) if b < 32 else (PV[2*b-64], PV[2*b-63])
            sp, tau = (par, 36 + b) if b < 28 else (1 - par, b - 28)
            if tau % 4 == 0:
                if not (final and b > 28): N.valu.append(op_cvt(sp, tau - 1) if b != 28 else op_cvt(par, 63))
            if final and b >= 28: continue
            E.valu.append(op_exp(sp, tau))
            if tau % 4 == 1: N.valu.append(op_cvt(sp, tau))
            if tau % 4 >= 2: (br if b in (30, 31) else N).valu.append(op_add(sp, tau))
        L = V_LS + par * 4
        site = f"{'z' if last_block else 'l'}{it}"; rare_sites.append((site, "Z" if final else str(par)))
        Q[29].valu.append(op_ladd(par, 0))
        Q[57].valu.append(f"v_max3_f32 v{V_CK}, v{L}, v{L+1}, v{L+3}")
        Q[59].valu.append(op_ladd(par, 2))
        Q[61].valu += [f"v_max_f32 v{V_CK}, v{V_CK}, v{L+2}", f"v_cmp_lt_f32 vcc, s{S_THR}, v{V_CK}"]
        br.sh += [f"s_cbranch_vccnz L_rare_stub{site}", Label(f"L_rare_ret{site}")]
        PV[1].sh.append("s_barrier"); T.wv = []
        T.reserved = {id(PV[0]), id(PV[1])}
        if 'barE' in ABL and not final:
            PV[3].valu = PV[1].valu + PV[3].valu; PV[1].valu = []; T.reserved.add(id(PV[3]))
        kslot1, kslot2, vslot = KS(it + 1), KS(it + 2), VS(it)
        if not final:
            Q[15].sh.append(WaitFor(lg=("KF1",))); Q[31].sh.append(WaitFor(lg=("KF0",))); Q[47].sh.append(WaitFor(lg=("KF1",)))
        Q[-2].sh.append(WaitFor(lg=("VF0", "VF1", "VF2", "VF3")))
        for dt in range(4, 8): PV[8 * dt - 1].sh.append(WaitFor(lg=(f"VF{dt%4}",)))
        T.cur = 0; T.lastdma = -1
        def put(op, lo=None, sal=(), cap=2):
            g = max(T.cur, T.idx(lo) if lo is not None else 0)
            while True:
                assert g < len(G), op
                ok = not G[g].mem and used(G[g]) < cap and id(G[g]) not in T.reserved
                if ok and sal:
                    fr = [h for h in range(max(T.lastdma + (0 if len(sal) == 2 else 1), g - 6, 0), g) if not G[h].sh and id(G[h]) not in T.reserved]
                    ok = len(fr) >= len(sal)
                if ok: break
                g += 1
            if sal:
                for h, s_ in zip(fr[-len(sal):], sal): G[h].sh.append(s_)
                T.lastdma = g
            G[g].mem.append(op); T.cur = g + 1
            return g
        T.put = put
        def solo(g, sal, op, nxt=None):
            gi = T.idx(g)
            assert not g.mem
            if g.valu:
                assert not nxt.mem; nxt.valu = g.valu + nxt.valu; g.valu = []; T.reserved.add(id(nxt))
            fr = [h for h in range(gi - 3, gi) if not G[h].sh]
            assert len(fr) >= len(sal), (gi, sal)
            for h, s_ in zip(fr[-len(sal):], sal): G[h].sh.append(s_)
            g.mem.append(op); T.lastdma = max(T.lastdma, gi)
        T.solo = solo
        T.endsal = []
        if not final:
            if not (last_block and it >= 2):
                sal_, op = kv_dma("V", VS(it + 2), S_VOFF, -16384)[3]; solo(LG[0], sal_, op)
            if not last_block:
                dk = kv_dma("K", KS(it), S_KOFF, 0)
                solo(LG[1], *dk[0]); solo(Q[41], *dk[1], nxt=Q[43]); solo(LG[2], *dk[2]); solo(LG[3], *dk[3])
                T.endsal.append(f"s_add_u32 s{S_KOFF}, s{S_KOFF}, 16384")
            for r in v_reads(vslot, 0) + v_reads(vslot, 1): put(r)
            for r in k_reads(kslot1, 2): put(r, Q[16])
            v23 = v_reads(vslot, 2) + v_reads(vslot, 3)
            for r in v23[:3]: put(r)
            for r in k_reads(kslot1, 3): put(r, Q[32])
            for r in v23[3:]: put(r)
            assert T.cur <= T.idx(Q[55]), (it, T.cur)
        if not (last_block and it >= 1):
            dv = kv_dma("V", VS(it + 3), S_VOFF, 0)
            solo(PV[5], *dv[0], nxt=PV[7]); solo(PV[57], *dv[1], nxt=PV[59]); solo(PV[61], *dv[2], nxt=PV[63])
        T.cur = T.idx(PV[2])
        T.pv_v = [(r, PV[8 * (dt - 4) + 8]) for dt in range(4, 8) for r in v_reads(vslot, dt)]
        if not (last_block and it >= 2):
            for r, lo in T.pv_v: put(r, lo)
            for r in k_reads(kslot2, 0) + k_reads(kslot2, 1): put(r)
            T.wv.append(f"K{kslot2}")
            T.endsal += [WaitFor(lg=("KF0",)), f"s_add_u32 s{S_VOFF}, s{S_VOFF}, 16384"]
        if not last_block and it == 0:
            sl = [f"s_add_u32 s{S_RE}, s{S_RE}, s{S_RNW}", f"s_mul_i32 s{S_RS}, s{S_RE}, 3641", f"s_lshr_b32 s{S_RS}, s{S_RS}, 16",
                  f"s_mul_i32 s{S_RS}, s{S_RS}, {36864-1152}", f"s_lshl_b32 s{S_RD}, s{S_RE}, 6", f"s_add_u32 s{S_RS}, s{S_RS}, s{S_RD}",
                  f"s_lshl_b32 s{S_RD}, s{S_RE}, 11"]
            for n, s_ in enumerate(sl): Q[2 * n].sh.append(s_)
            Q[58].sh.append(f"s_mov_b32 m0, s{S_BQ}")
            Q[59].mem.append((f"buffer_load_dwordx4 v{V_RPG}, s[{S_WG}:{S_WG+3}], s{S_RS} offen lds", "RD"))
            Q[60].sh.append(f"s_add_u32 s{S_RS}, s{S_RS}, {16*1152-1024}")
            PV[3].mem.append((f"buffer_load_dwordx4 v{V_RPG}, s[{S_WG}:{S_WG+3}], s{S_RS} offen offset:1024 lds", "RD"))
        if not last_block and it == 2:
            PV[3].mem.append((f"ds_read_b64_tr_b16 v[{V_RPS}:{V_RPS+1}], v{V_RPL} offset:0", "RL"))
            PV[7].mem.append((f"ds_read_b64_tr_b16 v[{V_RPS+2}:{V_RPS+3}], v{V_RPL} offset:1024", "RL"))
        if not last_block and it == 3:
            Q[55].mem.append((f"ds_read_b64_tr_b16 v[{V_RPS+4}:{V_RPS+5}], v{V_RPL} offset:32", "RL"))
            Q[57].mem.append((f"ds_read_b64_tr_b16 v[{V_RPS+6}:{V_RPS+7}], v{V_RPL} offset:1056", "RL"))
        if not final: T.wv.append(f"V{VS(it+1)}")
        if not last_block:
            if it == 2: T.wv.append("RD")
            if it == 1:
                T.wv.append("RST")
                PV[10].sh.append(f"s_cmp_le_u32 s{S_CNT}, 2"); PV[11].sh.append(f"s_cselect_b32 s{S_SIG}, 2, 1")
                PV[12].sh.append(f"s_add_u32 s{S_SIG}, s{S_SIG}, s{S_XCC}"); PV[13].valu.append(f"v_mov_b32 v{V_SV}, s{S_SIG}")
                PV[16].sh.append(f"s_cmp_lg_u32 s{S_MIX}, 0"); PV[17].sh += ["s_cbranch_scc1 L_stub_w2", Label("L_ret_w2")]
                PV[20].mem.append((sig_store, None))
            if it == 3:
                PV[3].mem.append((f"buffer_store_dwordx4 v[{V_RPS}:{V_RPS+3}], v{V_L16}, s[{S_WU}:{S_WU+3}], s{S_RD} offen sc1", "RST"))
                PV[12].sh.append(WaitFor(lg=("RL",)))
                PV[14].mem.append((f"buffer_store_dwordx4 v[{V_RPS+4}:{V_RPS+7}], v{V_L16}, s[{S_WU}:{S_WU+3}], s{S_RD} offen offset:1024 sc1", "RST"))
        return T
    def finish_tile(T):
        if T.wv: T.PV[0].sh.append(WaitFor(vm=tuple(T.wv)))
        for s_ in T.endsal:
            if isinstance(s_, WaitFor):
                g = [g for g in T.PV[57:] if not g.sh][0]; g.sh.append(s_)
            else:
                c = [g for g in T.G[T.lastdma:] if not g.sh]
                (c[0].sh if c else T.G[-1].post).append(s_)
        ov = sum(max(0, used(g) - 2) + max(0, len([x for x in g.sh if not isinstance(x, Label)]) - 1) for g in T.G)
        print("tile overflow slots:", ov, "gaps", len(T.G))

    body = Prog(); p = body
    p.label("L_att_loop", 6)
    for it in range(4):
        T = att_tile(it)
        if it == 3: T.PV[40].sh.append(f"s_sub_u32 s{S_CNT}, s{S_CNT}, 1")
        finish_tile(T)
        if it == 3: T.G[-1].post += [f"s_cmp_lg_u32 s{S_CNT}, 0", "s_cbranch_scc1 L_att_loop"]
        for g in T.G:
            if 'Lnodma' in ABL: g.mem = [m for m in g.mem if not m[0].startswith("buffer")]
            if 'Lnobar' in ABL: g.sh = [x for x in g.sh if x != "s_barrier"]
            if 'Lnolds' in ABL: g.mem = [m for m in g.mem if not m[0].startswith("ds_")]
            if 'Lnotr' in ABL: g.mem = [m for m in g.mem if not m[0].startswith("ds_read_b64")]
            if 'Lnobr' in ABL: g.sh = [x for x in g.sh if not (isinstance(x, str) and x.startswith("s_cbranch"))]
            if 'Lnovalu' in ABL: g.valu = [x for x in g.valu if x.startswith(("v_exp", "v_add_u32"))]
            if 'Lnoexp' in ABL: g.valu = [x for x in g.valu if not x.startswith("v_exp")]
            if 'Lnowait' in ABL: g.sh = [x for x in g.sh if not (isinstance(x, WaitFor) and x.lg)]
        emit_gaps(p, T.G)

    tail = Prog(); p = tail
    p(f"s_getpc_b64 s[{S_WG}:{S_WG+1}]")
    p.label("L_pc1")
    p(f"s_and_b32 s{S_WG+1}, s{S_WG+1}, 0xffff"); p(f"s_mov_b32 s{S_WG+2}, L_code_end-L_pc1")
    p(f"s_lshr_b32 s{S_T0}, s2, 3"); p(f"s_lshl_b32 s{S_T0}, s{S_T0}, 2"); p(f"s_add_u32 s{S_T0}, s{S_T0}, s{S_WAVE}"); p(f"s_lshl_b32 s{S_T0}, s{S_T0}, 10")
    p(f"buffer_load_dwordx4 v[{V_RPS}:{V_RPS+3}], v{V_L16}, s[{S_WG}:{S_WG+3}], s{S_T0} offen", "CODE")
    p(f"v_lshrrev_b32 v{V_LANE}, 4, v{V_L16}")
    if 'finepro' not in ABL: stamp(p, 6)
    NP3 = 17
    Breg = lambda s, ks, mt: ((s % 3) * 4 + ks) * 8 + mt * 4
    def p3_w(s):
        off = (WPD_OFF + s * 4 * 36864) if s < 9 else (WPO_OFF + (s - 9) * 4 * 36864)
        base = S_PW if s < 9 else S_PW2
        ops = []
        for i in range(9):
            sal = []
            if i % 4 == 0:
                tm = tmp()
                m0 = f"s_add_u32 m0, s{S_W0B}, {i*1024}" if s == 0 else f"s_add_u32 m0, s{S_W9K}, {P3_SLOT[(s-1)%3] + i*1024}"
                sal = [f"s_add_u32 s{tm}, s{base}, {off + i*1024}", m0]
            ops.append((sal, (f"buffer_load_dwordx4 v{V_L16}, s[{S_WS}:{S_WS+3}], s{tm} offen offset:{(i%4)*1024}{LSC} lds", f"PW{s}")))
        return annotate(ops)
    def p3_b(s):
        off = (H_OFF + s * 524288) if s < 9 else (O_OFF + (s - 9) * 524288)
        base = S_PB0 if s < 9 else S_PB1
        ops = []
        for mt in range(2):
            for ks in range(4):
                r = Breg(s, ks, mt)
                ops.append(([f"s_add_u32 s{S_T2}, s{base}, {off + mt*4096}"] if ks == 0 else [],
                            (f"buffer_load_dwordx4 a[{r}:{r+3}], v{V_L16}, s[{S_WS}:{S_WS+3}], s{S_T2} offen offset:{ks*1024}{LSC}", f"PB{s}")))
        return annotate(ops)
    setup3 = [f"s_lshr_b32 s{S_KOFF}, s{S_J}, 3", f"s_and_b32 s{S_RE}, s{S_J}, 3", f"s_mul_i32 s{S_W9K}, s{S_WAVE}, 9216",
              f"s_mul_i32 s{S_PW2}, s{S_WAVE}, 36864", f"s_mul_i32 s{S_RNW}, s{S_RE}, 9216", f"s_add_u32 s{S_PW2}, s{S_PW2}, s{S_RNW}",
              f"s_mul_i32 s{S_PW}, s{S_KOFF}, {1152*1152}", f"s_add_u32 s{S_PW}, s{S_PW}, s{S_PW2}",
              f"s_mul_i32 s{S_RNW}, s{S_KOFF}, {1024*1152}", f"s_add_u32 s{S_PW2}, s{S_PW2}, s{S_RNW}",
              f"s_lshl_b32 s{S_PST}, s{S_RB}, 3", f"s_and_b32 s{S_RNW}, s{S_J}, 7", f"s_add_u32 s{S_PST}, s{S_PST}, s{S_RNW}",
              f"s_lshr_b32 s{S_FX0}, s{S_PST}, 2",
              f"s_lshl_b32 s{S_PB1}, s{S_FX0}, 2", f"s_add_u32 s{S_PB1}, s{S_PB1}, s{S_WAVE}", f"s_lshl_b32 s{S_PB1}, s{S_PB1}, 13",
              f"s_mul_i32 s{S_PB0}, s{S_KOFF}, {9*524288}", f"s_add_u32 s{S_PB0}, s{S_PB0}, s{S_PB1}",
              f"s_lshl_b32 s{S_RNW}, s{S_KOFF}, 22", f"s_add_u32 s{S_PB1}, s{S_PB1}, s{S_RNW}",
              f"s_mul_i32 s{S_PST}, s{S_PST}, {16*9216}",
              f"s_mul_i32 s{S_FL}, s{S_KOFF}, 9216", f"s_add_u32 s{S_FL}, s{S_FL}, s{S_PST}",
              f"s_mul_i32 s{S_CNT}, s{S_KOFF}, {4*9216}", f"s_add_u32 s{S_PST}, s{S_PST}, s{S_CNT}", f"s_add_u32 s{S_PST}, s{S_PST}, s{S_W9K}",
              f"s_lshl_b32 s{S_FX0}, s{S_FX0}, 2", f"s_add_u32 s{S_FX0}, s{S_FX0}, s{S_KOFF}", f"s_mul_i32 s{S_FX0}, s{S_FX0}, {32*1152}",
              f"s_mul_i32 s{S_CNT}, s{S_RE}, 288", f"s_add_u32 s{S_FX0}, s{S_FX0}, s{S_CNT}", f"s_min_u32 s{S_FX1}, s{S_WAVE}, 1", f"s_lshl_b32 s{S_FX1}, s{S_FX1}, 30",
              f"s_add_u32 s{S_CNT}, s{S_KOFF}, 1", f"s_and_b32 s{S_CNT}, s{S_CNT}, 3", f"s_mul_i32 s{S_FR}, s{S_CNT}, {4*9216}", f"s_add_u32 s{S_FR}, s{S_FR}, s{S_FL}",
              f"s_add_u32 s{S_CNT}, s{S_KOFF}, 2", f"s_and_b32 s{S_CNT}, s{S_CNT}, 3", f"s_mul_i32 s{S_FR+1}, s{S_CNT}, {4*9216}", f"s_add_u32 s{S_FR+1}, s{S_FR+1}, s{S_FL}",
              f"s_add_u32 s{S_CNT}, s{S_KOFF}, 3", f"s_and_b32 s{S_CNT}, s{S_CNT}, 3", f"s_mul_i32 s{S_FR+2}, s{S_CNT}, {4*9216}", f"s_add_u32 s{S_FR+2}, s{S_FR+2}, s{S_FL}",
              f"s_add_u32 s{S_CNT}, s{S_WAVE}, 1", f"s_lshr_b32 s{S_CNT}, s{S_CNT}, 2", f"s_mul_i32 s{S_CNT}, s{S_CNT}, {80*1024+27648}",
              f"s_add_u32 s{S_W0B}, s{S_W9K}, {128*1024}", f"s_sub_u32 s{S_W0B}, s{S_W0B}, s{S_CNT}"]
    pg = []
    for s in range(NP3):
        if s in (8, 16): order = [(kp, nt) for nt in range(9) for kp in range(2)]
        else: order = [(kp, nt) for kp in range(2) for nt in range(9)]
        for kp, nt in order: pg.append((s, kp, nt))
    def p3_reads(gi):
        s, kp, nt = pg[gi]; base = P3_AR[gi % 4]
        out = []
        for q in range(2):
            ks = 2 * kp + q
            if s == 0: va, o = (V_PWA[2], 12 * 1024 + (ks * 9 + nt) * 1024) if ks < 3 else (V_PWA[0], 48 * 1024 + nt * 1024)
            else: va, o = V_PWA[(s - 1) % 3], (ks * 9 + nt) * 1024
            out.append((f"ds_read_b128 v[{base+4*q}:{base+4*q+3}], v{va} offset:{o}", f"PA{gi%4}"))
        return out
    pm = []
    for gi, (s, kp, nt) in enumerate(pg):
        for mt in range(2):
            for q in range(2):
                a = (AD if s < 9 else AS)(nt, mt); b = Breg(s, 2 * kp + q, mt); ar = P3_AR[gi % 4] + 4 * q
                C = "0" if (s in (0, 9) and kp == 0 and q == 0) else f"v[{a}:{a+3}]"
                pm.append(f"v_mfma_f32_16x16x32_bf16 v[{a}:{a+3}], v[{ar}:{ar+3}], a[{b}:{b+3}], {C}")
    TL = [att_tile(it, last_block=True, first_mfmas=(pm[:72] if it == 3 else None)) for it in range(4)]
    T28, T29, T30, T31 = TL
    T28.cur = T28.idx(T28.Q[50]); T28.put(poll_load("PL"))
    cv, cs = poll_check(2, "p2")
    T28.PV[40].sh.append(WaitFor(vm=("PL",))); T28.PV[41].sh += cs[:1]; T28.PV[42].post += cv; T28.PV[44].sh += cs[1:]
    free = [g for g in T28.G[:T28.idx(T28.PV[54])] if not g.sh and id(g) not in T28.reserved]
    assert len(free) >= len(setup3), len(free)
    for s_, g in zip(setup3, free): g.sh.append(s_)
    L2T = os.environ.get("L2T", "")
    if L2T:
        V_TH, V_TD = 3, V_SV
        p(f"v_min_u32 v{V_TH}, 15, v{V_LANE}"); p(f"v_lshlrev_b32 v{V_TH}, 7, v{V_TH}")
        for t in [f"s_and_b32 s13, s{S_J}, 7", f"s_lshl_b32 s13, s13, 2", f"s_add_u32 s13, s13, s{S_WAVE}", f"s_lshl_b32 s13, s13, 11",
                  f"s_lshl_b32 s14, s{S_RB}, 16", f"s_add_u32 s13, s13, s14", f"s_lshr_b32 s14, s{S_J}, 3", f"s_mul_i32 s15, s14, {9*524288}", f"s_add_u32 s13, s13, s15",
                  f"s_lshr_b32 s15, s2, 3", f"s_lshl_b32 s15, s15, 2", f"s_add_u32 s15, s15, s{S_WAVE}", f"s_lshl_b32 s15, s15, 11",
                  f"s_mul_i32 s14, s14, {1152*1152}", f"s_add_u32 s14, s14, s15"]: p(t)
        tl = []
        for x in L2T.split(","):
            if x[0] == "h": tl.append((13, H_OFF + int(x[1:]) * 524288))
            else: tl.append((14, WPD_OFF + int(x[1:]) * 262144))
        slots_ = [(T, g) for T in (T28, T29, T30) for g in (T.Q[8], T.Q[40], T.PV[10], T.PV[42])]
        for (T, g0_), (base, off) in zip(slots_, tl):
            T.cur = 0; ld_ = T.lastdma; T.lastdma = T.idx(g0_) - 4
            T.put((f"buffer_load_dword v{V_TD}, v{V_TH}, s[{S_WS}:{S_WS+3}], s77 offen sc1", "TCH"), g0_, sal=[f"s_add_u32 s77, s{base}, {off}"], cap=3)
            T.lastdma = ld_
    for n in range(4): T28.Q[45 + 2 * n].valu.append(f"v_mov_b32 v{V_RPS+4+n}, -1")
    ploc = [(T28, T28.PV[20]), (T28, T28.PV[50]), (T29, T29.Q[8]), (T29, T29.Q[36]), (T29, T29.PV[16]), (T29, T29.PV[40]), (T30, T30.Q[4]), (T30, T30.Q[28]), (T30, T30.Q[52])]
    for nt, (T, g_) in enumerate(ploc):
        ld_ = T.lastdma; T.cur = 0; T.lastdma = T.idx(g_) - 4
        T.put((f"buffer_store_dwordx4 v[{V_RPS+4}:{V_RPS+7}], v{V_L16}, s[{S_WS}:{S_WS+3}], s{S_SIG} offen sc1", "DST"), g_,
              sal=[f"s_add_u32 s{S_SIG}, s{S_PST}, {PART_OFF + PSTRIDE + nt*1024}"], cap=3)
        T.lastdma = ld_
    assert T28.idx(free[len(setup3) - 1]) < T28.idx(T28.PV[14])
    T29.cur = T29.idx(T29.Q[50]); T29.lastdma = max(T29.lastdma, T29.idx(T29.Q[50]))
    for sal_, op in p3_w(0): T29.put(op, sal=sal_); T29.lastdma = T29.cur - 1
    T30.wv.append("PW0")
    mix = p3_b(0) + p3_w(1)
    T30.Q[49].valu.append(f"v_add_u32 v{V_PWA[1]}, {P3_SLOT[1]}, v{V_L16}"); T30.Q[51].valu.append(f"v_add_u32 v{V_PWA[2]}, {P3_SLOT[2]}, v{V_L16}")
    T30.cur = T30.idx(T30.PV[2])
    for r, lo in T30.pv_v: T30.put(r, lo)
    T30.cur = T30.idx(T30.PV[52])
    for r in p3_reads(0) + p3_reads(1) + p3_reads(2): T30.put(r)
    T30.cur = T30.idx(T30.PV[2]); T30.lastdma = T30.cur
    for n, (sal_, op) in enumerate(mix):
        T30.put(op, T30.PV[2 + 3 * n], sal=sal_, cap=3); T30.lastdma = T30.cur - 1
    T30.G[-1].post.append(WaitFor(lg=("PA0",), vm=("PB0",)))
    T31.wv.append("PW1")
    Q = T31.Q
    for gi in range(1, 18): Q[4 * gi - 1].sh.insert(0, WaitFor(lg=(f"PA{gi%4}",)))
    for gi in range(3, 18):
        for n, r in enumerate(p3_reads(gi)): Q[4 * (gi - 3) + 1 + 2 * n].mem.append(r)
    T31.cur = 0
    vr = [r for dt in range(4) for r in v_reads(VS(3), dt)]
    for n, r in enumerate(vr): T31.put(r, Q[4 * n], cap=3)
    T31.cur = 0; T31.lastdma = 0
    for n, (sal_, op) in enumerate(p3_b(1) + p3_b(2)):
        T31.put(op, Q[4 * n + 2], sal=sal_, cap=3); T31.lastdma = T31.cur - 1
    T31.cur = T31.idx(T31.PV[2])
    for r, lo in T31.pv_v: T31.put(r, lo); T31.cur += 1
    T31.cur = T31.idx(T31.PV[50])
    for r in p3_reads(18) + p3_reads(19) + p3_reads(20): T31.put(r); T31.cur += 1
    T31.cur = T31.idx(T31.PV[2]); T31.lastdma = T31.cur
    EARLY3 = os.environ.get("EARLY3", "")
    for sal_, op in p3_w(2) + (p3_w(3) if "w" in EARLY3 else []) + (p3_b(3) if "b" in EARLY3 else []):
        T31.put(op, sal=sal_); T31.lastdma = T31.cur - 1
    T31.PV[63].sh.append(WaitFor(lg=(f"PA{18%4}",), vm=("PB1",)))
    P = [None] * 72 + [Gap(m) for m in pm[72:]]
    for gi in range(21, len(pg)):
        i = gi % 18
        rd = p3_reads(gi)
        if i == 0: g0_ = 4 * (gi - 2); pos = (g0_, g0_ + 1)
        elif i == 1: g0_ = 4 * (gi - 3); pos = (g0_ + 2, g0_ + 3)
        else: g0_ = 4 * (gi - 3); pos = (g0_, g0_ + 2)
        for g_, r in zip(pos, rd): P[g_].mem.append(r)
    barw = {}
    for gi in range(19, len(pg)):
        s = pg[gi][0]; g = P[4 * gi - 1]
        if gi % 18 == 16 and s + 1 < NP3:
            barw[s] = WaitFor(vm=[f"PW{s+1}", f"PB{s+1}"], lg0=True)
            P[4 * gi - 2].sh.append(barw[s]); g.sh.append("s_barrier")
        else: g.sh.append(WaitFor(lg=(f"PA{gi%4}",)))
    def after_barrier(s): return 72 * s + 64
    OSIG = int(os.environ.get("OSIG", "4")); DSIG = int(os.environ.get("DSIG", "13")); OCAP = int(os.environ.get("OCAP", "3"))
    barw[OSIG].vm = tuple(barw[OSIG].vm) + ("OST",)
    P[after_barrier(OSIG) - 6].valu.append(sig_val(3)); P[after_barrier(OSIG) + 5].mem.append((sig_store, None))
    P[after_barrier(OSIG) + 1].sh.append(f"s_cmp_lg_u32 s{S_MIX}, 0"); P[after_barrier(OSIG) + 2].sh += ["s_cbranch_scc1 L_stub_w3", Label("L_ret_w3")]
    barw[DSIG].vm = tuple(barw[DSIG].vm) + ("DST",)
    P[after_barrier(DSIG) - 6].valu.append(sig_val(4)); P[after_barrier(DSIG) + 5].mem.append((sig_store, None))
    P[72*5+1].sh.append(f"s_lshl_b32 s{S_CNT}, s{S_RB}, 11"); P[72*5+2].sh.append(f"s_lshl_b32 s{S_RE}, s{S_KOFF}, 9"); P[72*5+4].sh.append(f"s_add_u32 s{S_RE}, s{S_RE}, s{S_CNT}")
    P[72*5+5].valu += [f"v_and_b32 v{V_PA}, 7, v{V_LANE}", f"v_lshl_add_u32 v{V_PA}, v{V_PA}, 3, s{S_RE}"]
    P[72*6+69].mem.append(poll_load("PL"))
    P[72*7+28].sh.append(WaitFor(vm=("PL",)))
    cv, cs = poll_check(3, "p3")
    P[72*7+29].valu += cv; P[72*7+29].sh += cs[:1]; P[72*7+30].post += cs[1:]
    PQ = DSIG + 1
    P[72*PQ+49].mem.append(poll_load("PL"))
    P[72*(PQ+1)+12].sh.append(WaitFor(vm=("PL",)))
    cv, cs = poll_check(4, "p4")
    P[72*(PQ+1)+13].valu += cv; P[72*(PQ+1)+13].sh += cs[:1]; P[72*(PQ+1)+13].post += cs[1:]
    HINT = int(os.environ.get("HINT", "1"))
    P[72*16 + HINT - 4].valu.append(sig_val(5)); P[72*16 + HINT].mem.append((sig_store, None))
    FD, GG, FXR, TT = 160, 208, 56, 16
    def fin_loads(kind, dst, tag):
        ops = []
        for m in range(3):
            for sp in range(3):
                tm = tmp()
                ops.append(([f"s_add_u32 s{tm}, s{S_FR+sp}, {PART_OFF + kind*PSTRIDE}"],
                            (f"buffer_load_dwordx4 v[{dst+(m*4+sp)*4}:{dst+(m*4+sp)*4+3}], v{V_FL+m}, s[{S_WS}:{S_WS+3}], s{tm} offen sc1", tag)))
        return annotate(ops)
    own_reads = lambda kind, dst, tag: [(f"ds_read_b128 v[{dst+(m*4+3)*4}:{dst+(m*4+3)*4+3}], v{V_OWR} offset:{kind*9216 + m*4096}", tag) for m in range(3)]
    xq = []
    for m in range(3):
        r = V_XO + m
        xq += [f"v_lshl_add_u32 v{r}, s{S_WAVE}, 6, v{V_LANE}"] + ([f"v_add_u32 v{r}, {256*m}, v{r}"] if m else [])
        xq += [f"v_mul_u32_u24 v71, 3641, v{r}", f"v_lshrrev_b32 v71, 16, v71", f"v_mul_u32_u24 v71, {1152-288}, v71", f"v_lshl_add_u32 v{r}, v{r}, 4, v71"]
        if m == 2: xq += [f"v_add_u32 v{r}, s{S_FX1}, v{r}"]
        xq.append(("MEM", [], (f"buffer_load_dwordx4 v[{FXR+4*m}:{FXR+4*m+3}], v{r}, s[{S_XI}:{S_XI+3}], s{S_FX0} offen", "FX")))
    for s in range(1, NP3):
        ops = []
        if s + 2 < NP3:
            w, b = p3_w(s + 2), p3_b(s + 2)
            if s == 7:
                place_mem(P, w, 72 * s, 72 * s + 28); place_mem(P, b, 72 * s + 30, 72 * s + 63); continue
            if s == 1:
                if "w" in EARLY3: w = []
                if "b" in EARLY3: b = []
            ops = w[:4] + b[:4] + w[4:8] + b[4:] + w[8:]
        if s == PQ + 1:
            assert s == 15
            place_mem(P, fin_loads(0, FD, "FD") + [([], r) for r in own_reads(0, FD, "FO")], 72 * s + 14, 72 * s + 63); continue
        if ops: place_mem(P, ops, 72 * s - int(os.environ.get('P3E', '0')), 72 * s + int(os.environ.get('P3W', '63')))
    allg = T31.PV + P[72:]
    OT = 96
    def o_item(n, qt, s):
        T = OT + (n % 4) * 8; D = OT + 32 + (n % 4) * 4
        q = []
        for h in range(2):
            o = A_O + ((2 * s + h) * 4 + qt) * 4
            for r in range(4): q.append(f"v_accvgpr_read_b32 v{T+4*h+r}, a{o+r}")
        for i in range(8): q.append(f"v_mul_f32 v{T+i}, v{T+i}, v{V_LS+4+qt}")
        for i in range(4): q.append(f"v_cvt_pk_bf16_f32 v{D+i}, v{T+2*i}, v{T+2*i+1}")
        q.append(("MEM", [f"s_add_u32 s{S_SIG}, s{S_OBASE}, {O_OFF + qt*4096}"], (f"buffer_store_dwordx4 v[{D}:{D+3}], v{V_L16}, s[{S_WS}:{S_WS+3}], s{S_SIG} offen offset:{s*1024}{SCO}", "OST")))
        return q
    pre = xlane_ops("v_add_f32", [V_LS + 5, V_LS + 7], OT + 48) + [f"v_rcp_f32 v{V_LS+4+qt}, v{V_LS+4+qt}" for qt in range(4)]
    n = 0; lim = 64 + after_barrier(OSIG - 1) - 72 + 30
    pre += xq
    q = list(pre); mins = [2] * len(pre)
    for s in range(4):
        for qt in range(4):
            it_ = o_item(n, qt, s); n += 1
            q += it_; mins += [16 * (s + 1) + 4] * len(it_)
    left = fill_valu(allg[:lim], 2, q, mins=mins, cap=OCAP); assert not left, len(left)
    fs = [f"v_add_u32 v{V_FL}, s{S_W1K}, v{V_L16}", f"v_add_u32 v{V_FL+1}, 4096, v{V_FL}", f"v_add_u32 v{V_FL+2}, s{S_VOFF}, v{V_FL}",
          f"v_and_b32 v{V_YW}, 15, v{V_LANE}", f"v_mul_u32_u24 v{V_YW}, 288, v{V_YW}", f"v_lshrrev_b32 v{V_YW+1}, 4, v{V_LANE}",
          f"v_lshl_add_u32 v{V_YW}, v{V_YW+1}, 3, v{V_YW}", f"v_lshl_add_u32 v{V_YW}, s{S_WAVE}, 5, v{V_YW}",
          f"v_lshrrev_b32 v{V_YW+1}, 16, s{S_FX1}", f"v_add_u32 v{V_YW+1}, v{V_YW+1}, v{V_YW}"]
    sal6 = [f"s_lshl_b32 s{S_FL}, s{S_RB}, 3", f"s_and_b32 s{S_T2+32}, s{S_J}, 7", f"s_add_u32 s{S_FL}, s{S_FL}, s{S_T2+32}", f"s_lshl_b32 s{S_FL}, s{S_FL}, 9",
            f"s_add_u32 s{S_FL}, s{S_FL}, {F5_OFF}",
            f"s_lshl_b32 s{S_W0B}, s{S_WAVE}, 7", f"s_add_u32 s{S_W0B}, s{S_W0B}, s{S_FL}", f"s_lshl_b32 s{S_W0B+1}, s{S_KOFF}, 3", f"s_add_u32 s{S_W0B}, s{S_W0B}, s{S_W0B+1}",
            f"s_lshl_b32 s{S_W0B+1}, s{S_KOFF}, 7", f"s_add_u32 s{S_FL}, s{S_FL}, s{S_W0B+1}",
            f"s_add_u32 s{S_W0B+1}, s{S_KOFF}, 1",
            [f"s_cmp_eq_u32 s{S_WAVE}, s{S_KOFF}", f"s_cselect_b32 s{S_W0B+2}, {1 << 30}, 0", f"s_cselect_b32 s{S_W0B+3}, 0, {18432}"],
            f"s_add_u32 s{S_PST}, s{S_PST}, s{S_W0B+2}", f"s_add_u32 s{S_W0B+3}, s{S_W0B+3}, {OWN_LDS}",
            [f"s_cmp_eq_u32 s{S_WAVE}, 0", f"s_cselect_b32 s{S_VOFF}, 8192, {1 << 30}"]]
    g_ = 72 * 6
    for x in sal6:
        while P[g_].sh: g_ += 1
        P[g_].sh += x if isinstance(x, list) else [x]
        g_ += 1
    assert g_ < 72 * 6 + 60
    fs += [f"v_add_u32 v{V_OWN}, s{S_W0B+3}, v{V_L16}", f"v_add_u32 v{V_OWR}, {OWN_LDS}, v{V_FL}"]
    left = fill_valu(P[:72 * 8], 72 * 6 + 60, fs); assert not left
    fs2 = [f"v_mov_b32 v{V_SA}, s{S_W0B}", f"v_min_u32 v{V_PA}, 2, v{V_LANE}", f"v_add_u32 v{V_PA}, s{S_W0B+1}, v{V_PA}", f"v_and_b32 v{V_PA}, 3, v{V_PA}",
           f"v_lshl_add_u32 v{V_PA}, v{V_PA}, 3, s{S_FL}"]
    left = fill_valu(P[:72 * 9], 72 * 8, fs2); assert not left
    def part_item(A, nt, kind, tag):
        a = A(nt, 0)
        q = [f"v_cvt_pk_bf16_f32 v{a+i}, v{a+2*i}, v{a+2*i+1}" for i in range(4)]
        q.append(("MEM", [f"s_add_u32 s{S_SIG}, s{S_PST}, {PART_OFF + kind*PSTRIDE + nt*1024}"], (f"buffer_store_dwordx4 v[{a}:{a+3}], v{V_L16}, s[{S_WS}:{S_WS+3}], s{S_SIG} offen sc1", tag)))
        q.append(("MEM", [], (f"ds_write_b128 v{V_OWN}, v[{a}:{a+3}] offset:{kind*9216 + nt*1024}", None)))
        return q
    for nt in range(9):
        left = fill_valu(P[:72 * DSIG], 72 * 8 + 12 + ((72 * (DSIG - 8) - 30) * nt) // 8, part_item(AD, nt, 0, "DST")); assert not left
    sleft = []
    for nt in range(9):
        sleft += fill_valu(P, 72 * 16 + 8 * (nt + 1) + 4, part_item(AS, nt, 1, "SST"))
    gq = []
    def unpack_sum(src, dst, pk=False):
        q = []
        for i in range(4):
            q += [f"v_lshlrev_b32 v{dst+2*i}, 16, v{src+i}", f"v_and_b32 v{dst+2*i+1}, s{S_THR}, v{src+i}"]
        for sp in range(1, 4):
            T = TT + 8 * (sp % 2)
            for i in range(4):
                q += [f"v_lshlrev_b32 v{T+2*i}, 16, v{src+4*sp+i}", f"v_and_b32 v{T+2*i+1}, s{S_THR}, v{src+4*sp+i}"]
            if pk:
                for i in range(0, 8, 2): q.append(f"v_pk_add_f32 v[{dst+i}:{dst+i+1}], v[{dst+i}:{dst+i+1}], v[{T+i}:{T+i+1}]")
            else:
                for i in range(8): q.append(f"v_add_f32 v{dst+i}, v{dst+i}, v{T+i}")
        return q
    P[72*13+1].post.append(f"s_mov_b32 s{S_THR}, 0xffff0000")
    for m in range(3):
        D = GG + 8 * m; T = FD + 16 * m
        gq += unpack_sum(FD + 16 * m, D, pk=True)
        gq += [f"v_mul_f32 v{T+i}, {f2u(-LOG2E)}, v{D+i}" for i in range(8)]
        gq += [f"v_exp_f32 v{T+i}, v{T+i}" for i in range(8)]
        gq += [f"v_add_f32 v{T+i}, 1.0, v{T+i}" for i in range(8)]
        gq += [f"v_rcp_f32 v{T+i}, v{T+i}" for i in range(8)]
        gq += [f"v_pk_mul_f32 v[{D+i}:{D+i+1}], v[{D+i}:{D+i+1}], v[{T+i}:{T+i+1}]" for i in range(0, 8, 2)]
    gleft = gq
    print("phase3 leftovers: s-part", len(sleft), "gate", len(gleft))
    if 'fineprol' in ABL: stamp(p, 1)
    for n_, T in enumerate(TL):
        finish_tile(T)
        if 'fineprol' in ABL:
            T.Q[-1].post += stamp_ops(9 + 2 * n_); T.G[-1].post += stamp_ops(10 + 2 * n_)
        emit_gaps(p, T.G)
    if 'finepro' not in ABL:
        stamp(p, 7); stamp_rt(p, 16)
        for s, k in ((3, 8), (6, 9), (9, 10), (13, 11)): P[72 * s - 1].post += stamp_ops(k)
    if 'finep3' in ABL:
        stamp(p, 0)
        for s in range(1, 17): P[72 * (s + 1) - 1].post = [x for x in P[72 * (s + 1) - 1].post if not (isinstance(x, str) and ("s76" in x or "s[76" in x or x == "s_waitcnt lgkmcnt(0)"))] + stamp_ops(s)
    emit_gaps(p, P[72:])
    if 'finep' not in ABL: stamp(p, 12); stamp_rt(p, 17)
    emit_ops(p, sleft)
    XU = 32
    FS = 96
    def s_loads():
        for sal_, op in fin_loads(1, FS, "FS"):
            for s_ in sal_: p(s_)
            p(op[0], op[1])
    p("s_waitcnt lgkmcnt(0)")
    s_loads()
    p.items.append(WaitFor(vm=("FD",)))
    p("s_barrier")
    for t, tag in own_reads(1, FS, "FO"): p(t, tag)
    emit_ops(p, gleft)
    for i in range(12):
        p(f"v_lshlrev_b32 v{XU+2*i}, 16, v{FXR+i}"); p(f"v_and_b32 v{XU+2*i+1}, s{S_THR}, v{FXR+i}")
    if 'finep' not in ABL: stamp(p, 13)
    p(f"s_mov_b32 s{S_CNT}, 0x40000"); p(f"s_add_u32 s{S_PV}, s{S_EP}, 5")
    p.label("L_dcheck")
    p("s_waitcnt vmcnt(0)")
    q_ = [FS + (m * 4 + sp) * 4 + i for m in range(3) for sp in range(3) for i in range(4)]
    p(f"v_max_u32 v{V_PT}, v{q_[0]}, v{q_[1]}"); p(f"v_max_u32 v{V_PT+1}, v{q_[2]}, v{q_[3]}")
    for i in range(4, 36, 2): p(f"v_max3_u32 v{V_PT+(i//2)%2}, v{V_PT+(i//2)%2}, v{q_[i]}, v{q_[i+1]}")
    p(f"v_max_u32 v{V_PT}, v{V_PT}, v{V_PT+1}")
    p(f"v_cmp_eq_u32 vcc, -1, v{V_PT}")
    p("s_cbranch_vccz L_dready")
    p(f"s_cmp_eq_u32 s{S_CNT}, 0x40000"); p("s_cbranch_scc0 L_dagain")
    p(f"s_call_b64 s[{S_RET}:{S_RET+1}], L_spin0")
    p.label("L_dagain")
    s_loads()
    p(f"s_sub_u32 s{S_CNT}, s{S_CNT}, 1"); p(f"s_cmp_lg_u32 s{S_CNT}, 0"); p("s_cbranch_scc1 L_dcheck")
    p("s_waitcnt vmcnt(0)")
    p.label("L_dready")
    if 'finep' not in ABL: stamp(p, 14)
    p("s_waitcnt lgkmcnt(0)")
    for m in range(3):
        D = FD + 8 * m
        for t in unpack_sum(FS + 16 * m, D, pk=True): p(t)
        for i in range(0, 8, 2): p(f"v_pk_mul_f32 v[{D+i}:{D+i+1}], v[{D+i}:{D+i+1}], v[{GG+8*m+i}:{GG+8*m+i+1}]")
        for i in range(4): p(f"v_cvt_pk_bf16_f32 v{D+i}, v{D+2*i}, v{D+2*i+1}")
        for mt in range(2): p(f"ds_write_b64 v{V_YW + (1 if m == 2 else 0)}, v[{D+2*mt}:{D+2*mt+1}] offset:{m*128 + mt*4608}")
    p("s_waitcnt lgkmcnt(0)"); p("s_barrier")
    for m in range(3): p(f"ds_read_b128 v[{128+4*m}:{131+4*m}], v{V_FL} offset:{m*4096}")
    for m in range(3):
        p(f"s_waitcnt lgkmcnt({2-m})")
        D = 96 + 8 * m; T = XU + 8 * m
        for i in range(4):
            p(f"v_lshlrev_b32 v{D+2*i}, 16, v{128+4*m+i}"); p(f"v_and_b32 v{D+2*i+1}, s{S_THR}, v{128+4*m+i}")
        for i in range(0, 8, 2): p(f"v_pk_add_f32 v[{D+i}:{D+i+1}], v[{D+i}:{D+i+1}], v[{T+i}:{T+i+1}]")
        for i in range(4): p(f"v_cvt_pk_bf16_f32 v{D+i}, v{D+2*i}, v{D+2*i+1}")
        p(f"buffer_store_dwordx4 v[{D}:{D+3}], v{V_XO+m}, s[{S_OUT}:{S_OUT+3}], s{S_FX0} offen")
    p(f"s_lshl_b32 s{S_T0}, s2, 12"); p("v_mov_b32 v4, 0"); p("v_mov_b32 v5, 0")
    p(f"buffer_store_dwordx2 v[4:5], v4, s[{S_DBG}:{S_DBG+3}], s{S_T0} offen sc1")
    if STAMP: p("s_waitcnt vmcnt(0)")
    stamp(p, 19); stamp_rt(p, 21)
    if 'dbgout' in ABL:
        p(f"s_cmp_eq_u32 s2, 250"); p(f"s_cselect_b32 s76, 36, 0x1000"); p("s_cmp_eq_u32 s2, 1"); p("s_cselect_b32 s76, 8, s76")
        p(f"s_cmp_eq_u32 s{S_WAVE}, 0"); p("s_cselect_b32 s76, s76, 0x1000"); p("v_mov_b32 v1, s76")
        p(f"s_lshr_b32 s77, s{S_EP}, 8")
        for n, k in enumerate((100, 95, 96, 97, 101)):
            p(f"s_sub_u32 s76, s{k}, s77"); p("s_and_b32 s76, s76, 0xffffff"); p("v_mov_b32 v2, s76")
            p(f"buffer_store_dword v2, v1, s[{S_DBG}:{S_DBG+3}], 0 offen offset:{4*n}")
        for n, (a_, b_) in enumerate(((81, 80), (99, 80))):
            p(f"s_sub_u32 s76, s{a_}, s{b_}"); p("v_mov_b32 v2, s76")
            p(f"buffer_store_dword v2, v1, s[{S_DBG}:{S_DBG+3}], 0 offen offset:{20+4*n}")
    else:
        stamp_dump(p, 70, S_WAVE, 1)
    p.label("L_done"); p("s_endpgm")

    rare = Prog(); p = rare
    for site, var in rare_sites:
        p.label(f"L_rare_stub{site}")
        p(f"s_call_b64 s[{S_RET}:{S_RET+1}], L_rare{var}")
        p(f"s_branch L_rare_ret{site}")
    for name in stubs:
        p.label(f"L_stub_{name}")
        p(f"s_call_b64 s[{S_RET}:{S_RET+1}], L_spin0")
        p(f"s_branch L_ret_{name}")
    for name in ("w2", "w3"):
        p.label(f"L_stub_{name}")
        p("buffer_wbl2 sc1"); p("s_waitcnt vmcnt(0)")
        p(f"s_branch L_ret_{name}")
    p.label("L_spin0")
    p(f"s_mov_b32 s{S_SPIN}, {'0x40' if 'Lno' in ABL else '0x40000'}")
    p.label("L_spin1")
    p(poll_load(None)[0])
    p(f"s_sub_u32 s76, s{S_EP}, s{S_PV}"); p("s_add_u32 s76, s76, 8")
    p("s_waitcnt vmcnt(0)")
    for t in flag_test(V_PT): p(t)
    p(f"v_cmp_le_u32 vcc, s76, v{V_PT}")
    p("s_cbranch_vccz L_spin2")
    p(f"s_sub_u32 s{S_SPIN}, s{S_SPIN}, 1"); p("s_sleep 1"); p(f"s_cmp_lg_u32 s{S_SPIN}, 0"); p("s_cbranch_scc1 L_spin1")
    p.label("L_spin2")
    p(f"s_setpc_b64 s[{S_RET}:{S_RET+1}]")
    rare_items = fix_hazards(rare.items)[0]
    for var in ("0", "1", "Z"):
        par = 1 if var == "Z" else int(var)
        rp = Prog(); p = rp
        p.label(f"L_rare{var}")
        p("s_nop 15")
        Lold = V_LS + (1 - par) * 4
        for qt in range(4):
            rowmax(p, par, qt, V_R + qt)
            p(f"v_log_f32 v{V_R+4}, v{Lold+qt}")
            if BIAS:
                p(f"v_max_f32 v{V_R+qt}, v{V_R+qt}, v{V_R+4}"); p(f"v_add_f32 v{V_R+qt}, {f2u(BIAS)}, v{V_R+qt}"); p(f"v_max_f32 v{V_R+qt}, 0, v{V_R+qt}")
            else: p(f"v_max3_f32 v{V_R+qt}, v{V_R+qt}, v{V_R+4}, 0")
        for t in xlane_ops("v_max_f32", [V_R + q for q in range(4)], V_R + 4): p(t)
        for qt in range(4):
            p(f"v_sub_f32 v{V_R+4+qt}, 0, v{V_R+qt}"); p(f"v_exp_f32 v{V_R+4+qt}, v{V_R+4+qt}")
        for qt in range(4):
            p(f"v_mul_f32 v{Lold+qt}, v{Lold+qt}, v{V_R+4+qt}")
            if var != "Z":
                for r in range(4): p(f"v_sub_f32 v{V_NM+4*qt+r}, v{V_NM+4*qt+r}, v{V_R+qt}")
            for pp in ((par,) if var == "Z" else (0, 1)):
                for kt in range(4):
                    for r in range(4): p(f"v_sub_f32 v{Sreg(pp,kt,qt)+r}, v{Sreg(pp,kt,qt)+r}, v{V_R+qt}")
            for dt in range(8):
                o = A_O + (dt * 4 + qt) * 4
                for r in range(4): p(f"v_accvgpr_read_b32 v{V_E+r}, a{o+r}")
                for r in range(4): p(f"v_mul_f32 v{V_E+r}, v{V_E+r}, v{V_R+4+qt}")
                for r in range(4): p(f"v_accvgpr_write_b32 a{o+r}, v{V_E+r}")
        for tau in range(64):
            p(op_exp(par, tau))
            if tau % 4 >= 2: p(op_add(par, tau))
            if tau % 2 == 1: p(op_cvt(par, tau))
        for qt in (0, 2):
            p(l_mfma(par, qt, 0)); p(l_mfma(par, qt, 1)); p(op_ladd(par, qt))
        if var != "Z":
            for tau in range(4): p(op_exp(1 - par, tau))
            p(op_cvt(1 - par, 1))
        p("s_nop 3")
        p(f"s_setpc_b64 s[{S_RET}:{S_RET+1}]")
        rare_items += fix_hazards(rp.items)[0]

    resolve_waits(pro.items + body.items + body.items + tail.items)
    pi = lower_waits(pro.items); bi = lower_waits(body.items); ti = lower_waits(tail.items)
    pi, a1 = fix_hazards(pi, verbose=False, name="pro")
    bi2, a2 = fix_hazards(bi, prev=bi, verbose=True, name="body")
    bi3, a3 = fix_hazards(bi2, prev=pi, verbose=True, name="body-entry")
    ti, a4 = fix_hazards(ti, prev=bi3, verbose=True, name="tail")
    wc = WaitChecker(); wc.run(pi + bi3 + bi3 + ti)
    for e in wc.errors[:10]: print("WAITCHECK", e)
    assert check_needs(pi + bi3 + bi3 + ti) == 0
    for it in pi + bi3 + ti:
        if isinstance(it, Ins): it.text = it.text.split(' ; need[')[0]
    allit = pi + bi3 + ti
    if not HOP: return allit + rare_items
    import subprocess
    REV = int(os.environ.get("PREV", "1")); PMAX = int(os.environ.get("PMAX", "16"))
    def with_pads(pos):
        out = []; k_ = 0; N = len(pos)
        for n, it in enumerate(allit):
            out.append(it)
            if n in pos:
                me = (N - 1 - k_) if REV else k_
                out += [Label(f"L_pad{me}"), Ins("s_cbranch_execz " + (f"L_pad{me+3}" if me + 3 < N else "L_padend"), "PAD")]; k_ += 1
        return out + rare_items
    def addrs(items):
        txt = '.amdgcn_target "amdgcn-amd-amdhsa--gfx950"\n.text\n'
        for n, it in enumerate(items):
            txt += render([it])
            if isinstance(it, Ins) and it.tag != "PAD": txt += f"L_m{id(it)}:\n"
        txt += "L_code_end:\n"
        open("pads.s", "w").write(txt)
        subprocess.run(["clang", "-x", "assembler", "-target", "amdgcn-amd-amdhsa", "-mcpu=gfx950", "-c", "pads.s", "-o", "pads.o"], check=True)
        o = subprocess.run(["llvm-objdump", "-t", "pads.o"], capture_output=True, text=True).stdout
        return {l.split()[-1]: int(l.split()[0], 16) for l in o.splitlines() if ".text" in l and l.split()[-1].startswith("L_")}
    first = [n for n, it in enumerate(allit) if isinstance(it, Ins) and it.kind == "mfma"][0]
    cand = [n for n in range(first, len(allit) - 1) if isinstance(allit[n], Ins) and allit[n].kind != "ctl" and isinstance(allit[n + 1], Ins)]
    pos = set(cand[:3])
    for rnd_ in range(8):
        ad = addrs(with_pads(pos))
        pages = {}
        for n in cand:
            a_ = ad[f"L_m{id(allit[n])}"]
            if a_ % 4096 < 52: pages.setdefault(a_ // 4096, []).append(n)
        new_ = []
        for pg_, ns in sorted(pages.items()):
            keep = [n for n in ns if n in pos]
            mf_ = [n for n in ns if allit[n].kind == "mfma" and allit[n + 1].kind not in ("salu", "wait", "ctl")] or [n for n in ns if allit[n].kind == "mfma"]
            new_.append(keep[0] if keep else (mf_ or ns)[0])
        new_ = set(new_[:PMAX])
        if new_ == pos: break
        pos = new_
    ad = addrs(with_pads(pos))
    print("pads at:", " ".join(hex(ad[f"L_pad{k}"]) for k in range(len(pos))), "end", hex(ad["L_done"]), "spin", hex(ad["L_spin0"]))
    return with_pads(pos)

if __name__ == "__main__":
    import sys
    HEADER = open("cdna_kernels/" + NAME + ".s.ref").read().split("; Override")[0]
    items = gen_mega()
    k = NAME + "_kernel"
    s = HEADER + f"; @launch grid=(256,1,1) block=(256,1,1) lds={LDS_BYTES}\n"
    s += '.amdgcn_target "amdgcn-amd-amdhsa--gfx950"\n' + kernel_text(k, items, 512, 256)
    s += "L_code_end:\n    s_endpgm\n" + '.section .rodata,"a"\n.p2align 6\n' + kd_text(k, 512, 256)
    open(sys.argv[1], "w").write(s)
```

```python
from common import *
import math
LDS_BYTES = 160 * 1024
LOG2E = 1.4426950408889634
QSCALE = LOG2E / math.sqrt(128.0)
GC1 = -2.0 * math.sqrt(2.0 / math.pi) * LOG2E
GC2 = GC1 * 0.044715
CUT = int(os.environ.get("CUT", "24"))
BIAS = float(126 - CUT) if CUT else 0.0
THRESH = 2.0 ** (int(os.environ.get("THR", "64")) - BIAS)
ABL = os.environ.get('ABL', '')
NTW = "" if "nontw" in ABL else " nt"
NTQ = "" if "nontq" in ABL else " nt"
NTT = '' if 'nontt' in ABL else ' nt'
SNAKE = 'nosnake' not in ABL
sn = lambda rng, odd: (list(rng)[::-1] if (SNAKE and odd % 2) else list(rng))
NTX = " nt" if "ntx" in ABL else ""
NTKV = " nt" if 'ntkv' in ABL else ""
WS_BYTES = 128 << 20
WPO_OFF = WP_OFF
WPD_OFF = WP_OFF + 4096 * 1152
FLAG_OFF = (100 << 20) if 'farflag' in ABL else (5 << 19)
SCH = ' sc1' if 'sch' in ABL else ''
SCO = ' sc1' if 'sco' in ABL else ''
LSC = '' if 'nolsc' in ABL else ' sc1'
P3NT = ' nt' if 'p3nt' in ABL else ''
PSTRIDE = 64 * 4 * 4 * 9216

S_HF = 4
S_WG, S_WU, S_WQ, S_K, S_V, S_WS, S_DBG, S_XI = 8, 12, 16, 20, 24, 28, 32, 36
S_WAVE, S_RB, S_J = 40, 41, 42
S_RE = 43
S_T0, S_T1, S_T2 = 44, 45, 46
S_KOFF, S_VOFF = 47, 48
S_W1K = 49
S_RET = 50
S_CNT = 52
S_W3K = 53
S_BF, S_BH, S_BQ = 54, 55, 56
S_RS, S_RD = 57, 58
S_RNW = 59
S_HHALF = 60
S_THR = 61
S_OBASE = 62
S_XB = 63
S_PTR = 64
S_W6K = 3
S_PV = 79
S_SIG = 78
S_SPIN = 75
S_EP = 74
S_FO = 73
S_MIX = 72
S_XCC = 69
S_EP2 = 68
S_PW, S_PW2, S_PB0, S_PB1 = 54, 55, 56, 57
S_W9K = 53
S_PST = 58
S_FL = 59
S_FX0, S_FX1 = 60, 63
S_OUT = 16

V_SA = 0
V_L16 = 1
V_WF, V_WQ = 2, 3
V_RA = 4
V_RH = 8
V_QP = 10
V_C1, V_C2 = 12, 13
V_KD, V_VD = 14, 15
V_AF = 16
V_T = 52
V_HO = 68
V_KA = 76
V_TA = 76
V_VA = 80
V_RQ = 88
V_ACC = 96
V_X = 224
WSLOT = [128 * 1024, 80 * 1024, 40 * 1024, 104 * 1024]
def wbase(slot):
    b = WSLOT[slot]
    return (0, b - 40 * 1024) if b < 104 * 1024 else (1, b - 104 * 1024)
def xreg(ks, mt):
    f = ks * 4 + mt
    return f"a[{4*f}:{4*f+3}]" if f < 64 else f"v[{V_X+4*(f-64)}:{V_X+4*(f-64)+3}]"

A_Q, A_KF, A_VF, A_O = 0, 64, 96, 128
V_S = 96
V_P0 = 224
V_P1 = 16
V_NM = 32
V_LS = 48
V_E = 56
V_CK = 9
V_ONE = 10
V_R = 64
V_LD = 72
V_RPS = 88
V_RPG, V_RPL = 2, 3
V_PT = 4
V_SV = 6
V_PA = 8
V_LANE = 2
KS = lambda T: (T + 3) % 4
VS = lambda T: (T + 1) % 4
P3_SLOT = [0, 80 * 1024, 116 * 1024]
AD = lambda nt, mt: 160 + (nt * 2 + mt) * 4
AS = lambda nt, mt: (96 + (nt * 2 + mt) * 4) if nt < 8 else (240 + mt * 4)
P3_AR = [32, 40, 88, 232]
V_PWA = [1, 76, 77]
V_XO = 68
V_YW = 78
V_FL = 80
S_FR = 64
V_OWN = 84
V_OWR = 85
OWN_LDS = 40 * 1024
FX_OFF = 16384
F5_OFF = 32768
S_W0B = 12

from k12 import Gap, emit_gaps, slots_of, fill_valu

def emit_ops(p, ops):
    for op in ops:
        if isinstance(op, tuple):
            for t in op[1]: p(t)
            p(op[2][0], op[2][1])
        else: p(op)

def annotate(ops):
    out = []; cur = []
    for sal, (txt, tag) in ops:
        if sal: cur = list(sal)
        out.append((sal, (txt + " ; need[" + "|".join(cur) + "]", tag)))
    return out

def check_needs(items):
    last = {}; bad = 0
    for it in items:
        if not isinstance(it, Ins): continue
        if "; need[" in it.text:
            for t in it.text.split("; need[")[1].rstrip("]").split("|"):
                if not t: continue
                d = Ins(t).wr[0]
                if last.get(d) != t:
                    bad += 1; print("NEEDCHECK:", it.text, "<- last writer", last.get(d))
        if it.kind == "salu":
            for r in it.wr: last[r] = it.text
    return bad

def order2(nouter, ninner, mode, flip):
    os_ = list(range(nouter))[::-1] if flip else list(range(nouter))
    out = []
    if mode == "c":
        for n, o in enumerate(os_): out += [(o, i) for i in (range(ninner) if n % 2 == 0 else range(ninner - 1, -1, -1))]
    elif mode == "k":
        for i in range(ninner): out += [(o, i) for o in (os_ if i % 2 == 0 else os_[::-1])]
    else:
        for h in range(0, ninner, 2):
            seq = os_ if (h // 2) % 2 == 0 else os_[::-1]
            for n, o in enumerate(seq): out += [(o, h), (o, h + 1)] if n % 2 == 0 else [(o, h + 1), (o, h)]
    return out
OQK, OPV, OP1, OP3 = (os.environ.get(k, d) for k, d in (("OQK", "c1"), ("OPV", "c1"), ("OP1", "c1"), ("OP3", "c1")))

def gen_mega():
    pro = Prog(); p = pro
    stubs = []
    def poll_check(val, name):
        stubs.append(name)
        return (flag_test(V_PT) + [f"v_cmp_le_u32 vcc, {8-val}, v{V_PT}"],
                [f"s_add_u32 s{S_PV}, s{S_EP}, {val}", f"s_cbranch_vccnz L_stub_{name}", Label(f"L_ret_{name}")])
    def flag_test(r):
        return [f"v_and_b32 v{r}, 0xffffff87, v{r}", f"v_xor_b32 v{r+1}, s{S_EP2}, v{r+1}", f"v_subrev_u32 v{r}, s{S_PV}, v{r}",
                f"v_min_u32 v{r+1}, 1, v{r+1}", f"v_lshl_or_b32 v{r}, v{r+1}, 8, v{r}"]
    poll_load = lambda tag: (f"buffer_load_dwordx2 v[{V_PT}:{V_PT+1}], v{V_PA}, s[{S_WS}:{S_WS+3}], s{S_FO} offen sc1", tag)
    sig_store = f"buffer_store_dwordx2 v[{V_SV}:{V_SV+1}], v{V_SA}, s[{S_WS}:{S_WS+3}], s{S_FO} offen sc1"
    sig_val = lambda val: f"v_add_u32_e64 v{V_SV}, s{S_XCC}, {val}"

    p("s_cmp_ge_u32 s2, 256"); p("s_cbranch_scc1 L_done")
    stamp_rt(p, 20); stamp(p, 0)
    LX = 96
    p(f"s_load_dwordx2 s[{S_XI}:{S_XI+1}], s[0:1], {ARG['x']}")
    p(f"s_load_dwordx4 s[68:71], s[0:1], {ARG['dbg']}")
    p(f"s_getpc_b64 s[{S_K}:{S_K+1}]")
    p.label("L_pc0")
    p(f"s_and_b32 s{S_K+1}, s{S_K+1}, 0xffff"); p(f"s_mov_b32 s{S_K+2}, L_code_end-L_pc0"); p(f"s_mov_b32 s{S_K+3}, 0x20000")
    p(f"s_lshr_b32 s{S_T1}, s2, 3"); p(f"s_lshl_b32 s{S_T0}, s{S_T1}, 12"); p("v_lshlrev_b32 v16, 4, v0")
    CL = os.environ.get("CL", "0")
    if CL == "0": p(f"buffer_load_dwordx4 v[160:163], v16, s[{S_K}:{S_K+3}], s{S_T0} offen", "CODE")
    else: p(f"s_mov_b32 s{S_T2}, s{S_T0}")
    p(f"s_and_b32 s{S_CNT}, s2, 7"); p(f"s_lshl_b32 s{S_CNT}, s{S_CNT}, 5"); p(f"s_or_b32 s{S_CNT}, s{S_CNT}, s{S_T1}")
    p("v_lshrrev_b32 v18, 5, v0"); p("v_and_b32 v19, 31, v0"); p(f"s_mul_i32 s{S_T0}, s{S_CNT}, 9216")
    p("v_mul_u32_u24 v20, 1152, v18"); p("v_lshl_add_u32 v20, v19, 4, v20")
    p(f"s_mov_b32 s{S_XI+2}, {XN_BYTES}"); p(f"s_mov_b32 s{S_XI+3}, 0x20000")
    p("s_waitcnt lgkmcnt(0)")
    for m in range(3):
        p(f"buffer_load_dwordx4 v[{LX+4*m}:{LX+4*m+3}], v20, s[{S_XI}:{S_XI+3}], s{S_T0} offen offset:{m*384}{NTX}", "LX")
    if CL != "0": p(f"buffer_load_dwordx4 v[160:163], v16, s[{S_K}:{S_K+3}], s{S_T2} offen", "CODE")
    if CL == "2":
        p("v_lshrrev_b32 v21, 6, v0"); p("s_nop 0"); p(f"v_readfirstlane_b32 s{S_WAVE}, v21")
        p("s_mov_b64 exec, 0")
        for w in range(3):
            p(f"s_cmp_eq_u32 s{S_WAVE}, {w}"); p(f"s_cbranch_scc1 L_ppad{w}")
        p("s_branch L_ppad3")
        p.label("L_ppadend")
        p("s_mov_b64 exec, -1")
    def ppad(k):
        if CL == "2":
            p.label(f"L_ppad{k}"); p("s_cbranch_execz L_ppadend")
    p(f"s_load_dwordx2 s[{S_WQ}:{S_WQ+1}], s[0:1], {ARG['wq']}")
    p(f"s_load_dwordx4 s[72:75], s[0:1], {ARG['wg']}")
    p(f"s_load_dwordx4 s[64:67], s[0:1], {ARG['k']}")
    p("s_memrealtime s[76:77]")
    p("v_lshrrev_b32 v16, 6, v0"); p("v_and_b32 v17, 63, v0"); p("v_cmp_gt_u32 vcc, 24, v19")
    p(f"v_readfirstlane_b32 s{S_WAVE}, v16")
    srd(p, S_DBG, 68, 256); srd(p, S_WS, 70, WS_BYTES)
    if 'tlb' in ABL:
        p("v_min_u32 v37, 41, v17"); p("v_lshlrev_b32 v37, 21, v37"); p("v_mov_b32 v38, 128")
        p(f"buffer_load_dword v165, v37, s[{S_WS}:{S_WS+3}], 0 offen", "TCH")
        p(f"buffer_load_dword v166, v38, s[{S_DBG}:{S_DBG+3}], 0 offen", "TCH")
    p(f"s_mov_b64 s[{S_RET}:{S_RET+1}], vcc")
    p(f"s_and_b32 s{S_T0}, s2, 7")
    p(f"s_and_b32 s{S_RB}, s{S_T1}, 3"); p(f"s_lshr_b32 s{S_T1}, s{S_T1}, 2")
    p(f"s_and_b32 s{S_T2}, s{S_T0}, 1"); p(f"s_lshl_b32 s{S_T2}, s{S_T2}, 2"); p(f"s_add_u32 s{S_RB}, s{S_RB}, s{S_T2}")
    p(f"s_lshr_b32 s{S_T0}, s{S_T0}, 1"); p(f"s_lshl_b32 s{S_J}, s{S_T0}, 3"); p(f"s_add_u32 s{S_J}, s{S_J}, s{S_T1}")
    p(f"s_mov_b32 s{S_WQ+2}, {576*8192}"); p(f"s_mov_b32 s{S_WQ+3}, 0x20000")
    p(f"v_lshlrev_b32 v{V_L16}, 4, v17"); p("v_mov_b32 v71, 0")
    p("s_waitcnt lgkmcnt(0)")
    p(f"s_lshl_b32 s{S_T1}, s2, 2"); p(f"s_add_u32 s{S_T1}, s{S_T1}, s{S_WAVE}"); p(f"s_cmp_lg_u32 s{S_T1}, 1"); p("s_cbranch_scc1 L_noleader")
    p("s_lshl_b64 s[76:77], s[76:77], 8"); p("s_or_b32 s76, s76, 128"); p("v_mov_b32 v30, s76"); p("v_mov_b32 v31, s77")
    p.raw(f"    buffer_store_dwordx2 v[30:31], v71, s[{S_DBG}:{S_DBG+3}], 0 offen sc1")
    p.label("L_noleader")
    p("v_lshrrev_b32 v20, 4, v17"); p("v_and_b32 v22, 15, v17")
    p("v_lshlrev_b32 v23, 2, v20"); p("v_xor_b32 v23, v23, v22"); p("v_lshlrev_b32 v24, 13, v20"); p(f"v_lshl_add_u32 v{V_WQ}, v23, 4, v24")
    p(f"s_mul_i32 s{S_W6K}, s{S_WAVE}, 6144")
    p(f"s_mul_i32 s{S_BQ}, s{S_WAVE}, {24*8192}"); p(f"s_lshl_b32 s{S_T0}, s{S_J}, 8"); p(f"s_add_u32 s{S_BQ}, s{S_BQ}, s{S_T0}")

    stages = [("q", 0, sub, 0) for sub in range(6)] + [("h", 0, sub, 0) for sub in range(3)]
    for t in range(4): stages += [("f", t, sub, (t + 1) % 2) for sub in range(3)]
    NST = len(stages)
    tmpsel = [0]
    def tmp():
        tmpsel[0] ^= 1
        return (S_T0, S_T1)[tmpsel[0]]
    def w_dma(st):
        kind, t, sub, buf = stages[st]; slot = st % 4
        ops = []
        if kind == "q":
            for i in range(6):
                tm = tmp()
                sal = [f"s_add_u32 s{tm}, s{S_BQ}, {(sub * 96 + 4 * i) * 8192}", f"s_add_u32 m0, s{S_W6K}, {WSLOT[slot] + i*1024}"]
                ops.append((sal, (f"buffer_load_dwordx4 v{V_WQ}, s[{S_WQ}:{S_WQ+3}], s{tm} offen{NTQ} lds", f"W{st}")))
            return annotate(ops)
        for reg in range(2):
            for i in range(3):
                base, srdn = (S_BH if kind == "h" else S_BF), (S_WG, S_WU)[reg]
                imm = (sub * 192 + 16 * i) * 9216 + t * 64
                tm = tmp()
                sal = [f"s_add_u32 s{tm}, s{base}, {imm}", f"s_add_u32 m0, s{S_W3K}, {WSLOT[slot] + reg*12288 + i*1024}"]
                ops.append((sal, (f"buffer_load_dwordx4 v{V_WF}, s[{srdn}:{srdn+3}], s{tm} offen{NTW} lds", f"W{st}")))
        return annotate(ops)
    def x_loads(k0, k1):
        ops = []
        for ks in range(k0, k1):
            for mt in range(4):
                ops.append(([f"s_add_u32 s{S_RD}, s{S_XB}, {ks*4096}"] if mt == 0 else [],
                            (f"buffer_load_dwordx4 {xreg(ks, mt)}, v{V_L16}, s[{S_WS}:{S_WS+3}], s{S_RD} offen offset:{mt*1024} sc1", f"X{ks//3}")))
        return annotate(ops)
    def kv_dma(which, tile_slot, soff, add):
        ops = []
        for t in range(4):
            tm = tmp()
            base = (0 if which == "K" else 65536) + tile_slot * 16384 + t * 4096
            srdn = S_K if which == "K" else S_V
            if soff is None: sal = [f"s_mov_b32 s{tm}, {add + t*4096}"]
            else: sal = [f"s_add_u32 s{tm}, s{soff}, {add + t*4096}"]
            sal.append(f"s_add_u32 m0, s{S_W1K}, {base}")
            ops.append((sal, (f"buffer_load_dwordx4 v{V_KD if which == 'K' else V_VD}, s[{srdn}:{srdn+3}], s{tm} offen{NTKV} lds", f"{which}{tile_slot}")))
        return annotate(ops)
    def issue(ops):
        for sal, op in ops:
            for s in reversed(sal): p(s)
            p(op[0], op[1])
    PV_ = os.environ.get('PROV', 'D')
    srd(p, S_WG, 72, 576 * 9216); srd(p, S_WU, 74, 576 * 9216)
    def w3(st):
        for i in range(8):
            tm = tmp()
            p(f"s_add_u32 m0, s{S_RNW}, {WSLOT[st % 4] + i*1024}"); p(f"s_add_u32 s{tm}, s{S_RE}, {(st * 96 + 4 * i) * 8192}")
            p(f"buffer_load_dwordx4 v{V_WQ}, s[{S_WQ}:{S_WQ+3}], s{tm} offen{NTQ} lds", f"W{st}")
    if 'latebad' in ABL:
        srd(p, S_V, 72, 0); p("v_mov_b32 v36, 0"); p(f"s_mov_b32 s{S_RS}, 0")
    p(f"s_cmp_eq_u32 s{S_WAVE}, 0"); p("s_cbranch_scc1 L_w0a")
    p(f"s_sub_u32 s{S_T2}, s{S_WAVE}, 1"); p(f"s_lshl_b32 s{S_RNW}, s{S_T2}, 13"); p(f"s_lshl_b32 s{S_RE}, s{S_T2}, 18"); p(f"s_add_u32 s{S_RE}, s{S_RE}, s{S_T0}")
    w3(0)
    p(f"s_lshr_b32 s{S_T0}, s2, 3"); p(f"s_mul_i32 s{S_T0}, s{S_T0}, 3"); p(f"s_add_u32 s{S_T0}, s{S_T0}, s{S_T2}")
    p(f"s_and_b32 s{S_T1}, s{S_T0}, 1"); p(f"s_cmp_eq_u32 s{S_T1}, 0")
    p(f"s_cselect_b32 s{S_V}, s{S_WG}, s{S_WU}"); p(f"s_cselect_b32 s{S_V+1}, s{S_WG+1}, s{S_WU+1}"); p(f"s_mov_b32 s{S_V+2}, {576*9216}"); p(f"s_mov_b32 s{S_V+3}, 0x20000")
    p(f"s_lshr_b32 s{S_T0}, s{S_T0}, 1"); p(f"s_mul_i32 s{S_RS}, s{S_T0}, {12*9216}")
    p(f"s_lshr_b32 s{S_T2}, s{S_J}, 3"); p(f"s_mul_i32 s{S_T2}, s{S_T2}, 2304"); p(f"s_add_u32 s{S_RS}, s{S_RS}, s{S_T2}")
    p(f"s_sub_u32 s{S_T1}, 384, s{S_V}"); p(f"s_sub_u32 s{S_T1}, s{S_T1}, s{S_T2}"); p(f"s_and_b32 s{S_T1}, s{S_T1}, 1023"); p(f"s_add_u32 s{S_RS}, s{S_RS}, s{S_T1}")
    p("v_min_u32 v36, 35, v17"); p("v_mul_u32_u24 v27, 43, v36"); p("v_lshrrev_b32 v27, 7, v27")
    p(f"v_mul_u32_u24 v27, {9216 - 3072}, v27"); p("v_lshl_add_u32 v36, v36, 10, v27")
    if 'latebad' not in ABL: p(f"buffer_load_dword v164, v36, s[{S_V}:{S_V+3}], s{S_RS} offen", "TCH")
    p.label("L_w0a")
    ppad(0)
    p("v_lshrrev_b32 v26, 3, v17"); p("v_and_b32 v27, 3, v26"); p("v_lshrrev_b32 v26, 2, v26"); p("v_and_b32 v28, 7, v17")
    p("v_lshl_add_u32 v27, v27, 4, v28"); p("v_lshlrev_b32 v27, 4, v27"); p("v_lshl_add_u32 v26, v26, 12, v27")
    p(f"s_lshr_b32 s{S_T0}, s{S_CNT}, 3"); p(f"s_mul_i32 s{S_RD}, s{S_T0}, 73728")
    p(f"s_and_b32 s{S_T1}, s{S_CNT}, 6"); p(f"s_lshl_b32 s{S_T1}, s{S_T1}, 9"); p(f"s_add_u32 s{S_RD}, s{S_RD}, s{S_T1}")
    p(f"s_and_b32 s{S_T1}, s{S_CNT}, 1"); p(f"s_lshl_b32 s{S_T1}, s{S_T1}, 7"); p(f"s_add_u32 s{S_RD}, s{S_RD}, s{S_T1}")
    p(f"s_mov_b32 s{S_FO}, {FLAG_OFF}")
    p(f"s_getreg_b32 s{S_XCC}, hwreg(HW_REG_XCC_ID, 0, 4)"); p(f"s_lshl_b32 s{S_XCC}, s{S_XCC}, 3")
    p(f"s_lshl_b32 s{S_T0}, s{S_T0}, 9"); p(f"s_and_b32 s{S_T1}, s{S_CNT}, 7"); p(f"s_lshl_b32 s{S_T1}, s{S_T1}, 3"); p(f"s_add_u32 s{S_T0}, s{S_T0}, s{S_T1}"); p(f"s_add_u32 s{S_T0}, s{S_T0}, {FX_OFF}")
    p(f"v_mov_b32 v31, s{S_T0}")
    p(f"s_lshl_b32 s{S_T0}, s{S_RB}, 11"); p(f"s_and_b32 s{S_T1}, s{S_J}, 24"); p(f"s_lshl_b32 s{S_T1}, s{S_T1}, 6"); p(f"s_add_u32 s{S_T1}, s{S_T1}, s{S_T0}")
    p(f"v_lshl_add_u32 v{V_TA}, v28, 3, s{S_T1}")
    p(f"s_and_b32 s{S_T2}, s{S_J}, 7"); p(f"s_lshl_b32 s{S_T2}, s{S_T2}, 3"); p(f"s_add_u32 s{S_T1}, s{S_T1}, s{S_T2}")
    p(f"v_writelane_b32 v31, s{S_T1}, 1")
    p(f"s_cmp_eq_u32 s{S_WAVE}, 0"); p(f"s_cselect_b32 s{S_T1}, s{S_T1}, {1 << 30}"); p(f"v_mov_b32 v{V_SA}, s{S_T1}")
    p(f"s_add_u32 s{S_T0}, s{S_T0}, {FX_OFF}"); p(f"v_lshl_add_u32 v30, v28, 3, s{S_T0}"); p("v_and_b32 v27, 24, v17"); p("v_lshl_add_u32 v30, v27, 6, v30")
    p(f"s_lshl_b32 s{S_T0}, s{S_RB}, 2"); p(f"s_add_u32 s{S_T0}, s{S_T0}, s{S_WAVE}")
    p(f"s_mul_i32 s{S_XB}, s{S_T0}, 73728"); p(f"s_lshl_b32 s{S_OBASE}, s{S_T0}, 14")
    if 'finepro' in ABL: stamp(p, 2)
    F = 112
    pr = lambda r: f"v[{r}:{r+1}]"
    p(f"s_mov_b32 s{S_T2}, 0xffff0000")
    for i in range(4): p(f"v_mov_b32 v{140+i}, 0")
    p("v_lshlrev_b32 v25, 7, v19"); p("v_lshl_add_u32 v25, v18, 4, v25")
    p(f"s_cmp_eq_u32 s{S_WAVE}, 0"); p("s_cbranch_scc0 L_w0b")
    nt_ = (2 if 'tlb' in ABL else 0) + (1 if CL != '0' else 0)
    p.raw(f"    s_waitcnt vmcnt({nt_})")
    p.label("L_w0b")
    p(f"s_waitcnt vmcnt({9 + nt_})")
    p(f"buffer_load_dwordx2 v[72:73], v71, s[{S_DBG}:{S_DBG+3}], 0 offen sc1", "EP")
    if 'finepro' in ABL: stamp(p, 3)
    for i in range(12):
        p(f"v_lshlrev_b32 v{F+2*i}, 16, v{LX+i}"); p(f"v_and_b32 v{F+2*i+1}, s{S_T2}, v{LX+i}")
    for i in range(6): p(f"v_pk_add_f32 {pr(144+2*i)}, {pr(F+4*i)}, {pr(F+4*i+2)}")
    for i in range(3): p(f"v_pk_add_f32 {pr(144+4*i)}, {pr(144+4*i)}, {pr(146+4*i)}")
    p(f"v_pk_add_f32 {pr(144)}, {pr(144)}, {pr(148)}")
    p(f"s_mov_b64 exec, s[{S_RET}:{S_RET+1}]")
    p(f"v_pk_add_f32 {pr(140)}, {pr(144)}, {pr(152)}")
    p("s_mov_b64 exec, -1")
    def reduce32(r, t):
        p(f"v_add_f32 v{r}, v{r}, v{r+1}")
        for mod in ("quad_perm:[1,0,3,2]", "quad_perm:[2,3,0,1]", "row_half_mirror", "row_mirror"):
            p(f"v_add_f32_dpp v{r}, v{r}, v{r} {mod} row_mask:0xf bank_mask:0xf")
        p(f"v_mov_b32 v{t}, v{r}"); p(f"v_permlane16_swap_b32 v{r}, v{t}"); p(f"v_add_f32 v{r}, v{r}, v{t}")
    ppad(1)
    reduce32(140, 141)
    p(f"v_mul_f32 v140, {f2u(-1.0/576)}, v140")
    for i in range(12): p(f"v_pk_add_f32 {pr(168+2*i)}, {pr(F+2*i)}, {pr(140)} op_sel_hi:[1,0]")
    p(f"v_cvt_pk_bf16_f32 v140, v140, v140")
    for i in range(2): p(f"v_pk_mul_f32 {pr(144+2*i)}, {pr(168+2*i)}, {pr(168+2*i)}")
    p(f"v_and_b32 v140, s{S_T2}, v140")
    for i in range(2, 12): p(f"v_pk_fma_f32 {pr(144+2*(i%2))}, {pr(168+2*i)}, {pr(168+2*i)}, {pr(144+2*(i%2))}")
    p(f"s_mov_b64 exec, s[{S_RET}:{S_RET+1}]")
    p(f"v_pk_add_f32 {pr(142)}, {pr(144)}, {pr(146)}")
    p("s_mov_b64 exec, -1")
    red = Prog(); p_ = p; p = red
    reduce32(142, 143)
    p(f"v_mul_f32 v142, {f2u(1.0/576)}, v142")
    def rnd(r):
        p(f"v_cvt_pk_bf16_f32 v{r}, v{r}, v{r}"); p(f"v_and_b32 v{r}, s{S_T2}, v{r}")
    rnd(142)
    p(f"v_add_f32 v142, {f2u(1e-5)}, v142"); rnd(142)
    p("v_sqrt_f32 v142, v142"); rnd(142)
    p("v_rcp_f32 v143, v142"); p("v_fma_f32 v144, -v142, v143, 1.0"); p("v_fma_f32 v142, v144, v143, v143")
    p = p_
    oth = [f"v_pk_add_f32 {pr(F+2*i)}, {pr(F+2*i)}, {pr(140)} op_sel_hi:[1,0]" for i in range(12)]
    oth += [f"v_cvt_pk_bf16_f32 v{F+2*i+1}, v{F+2*i}, v{F+2*i+1}" for i in range(12)]
    for i in range(12): oth += [f"v_lshlrev_b32 v{F+2*i}, 16, v{F+2*i+1}", f"v_and_b32 v{F+2*i+1}, s{S_T2}, v{F+2*i+1}"]
    for it in red.items:
        p.items.append(it)
        for t in oth[:2]: p(t)
        oth = oth[2:]
    for t in oth: p(t)
    ppad(2)
    for i in range(12): p(f"v_pk_mul_f32 {pr(F+2*i)}, {pr(F+2*i)}, {pr(142)} op_sel_hi:[1,0]")
    for i in range(12): p(f"v_cvt_pk_bf16_f32 v{LX+i}, v{F+2*i}, v{F+2*i+1}")
    p(f"s_mov_b64 exec, s[{S_RET}:{S_RET+1}]")
    for m in range(3): p(f"ds_write_b128 v25, v[{LX+4*m}:{LX+4*m+3}] offset:{m*24*128}")
    p("s_mov_b64 exec, -1")
    p("s_waitcnt lgkmcnt(0)"); p("s_barrier")
    p(f"s_cmp_lg_u32 s{S_WAVE}, 0"); p("s_cbranch_scc1 L_noxs")
    for m in range(9): p(f"ds_read_b128 v[{LX+4*m}:{LX+4*m+3}], v{V_L16} offset:{m*1024}")
    for m in range(9):
        p(f"s_waitcnt lgkmcnt({8-m})")
        p(f"buffer_store_dwordx4 v[{LX+4*m}:{LX+4*m+3}], v26, s[{S_WS}:{S_WS+3}], s{S_RD} offen sc1", "XS")
        if m < 8: p(f"s_add_u32 s{S_RD}, s{S_RD}, 8192")
    def ep_wait(sfx):
        p(f"s_mov_b32 s{S_SPIN}, 0x40000")
        p.label(f"L_eppoll{sfx}")
        p(f"v_readfirstlane_b32 s{S_EP}, v72"); p(f"v_readfirstlane_b32 s{S_EP2}, v73")
        p(f"s_cmp_lg_u32 s{S_EP}, 0"); p(f"s_cbranch_scc1 L_epok{sfx}")
        p.raw(f"    buffer_load_dwordx2 v[72:73], v71, s[{S_DBG}:{S_DBG+3}], 0 offen sc1")
        p.raw("    s_waitcnt vmcnt(0)")
        p(f"s_sub_u32 s{S_SPIN}, s{S_SPIN}, 1"); p(f"s_cmp_lg_u32 s{S_SPIN}, 0"); p(f"s_cbranch_scc1 L_eppoll{sfx}")
        p.label(f"L_epok{sfx}")
    ppad(3)
    if 'finepro' in ABL: stamp(p, 4)
    p("s_waitcnt vmcnt(0)")
    ep_wait("a")
    p(f"s_add_u32 s{S_T0}, s{S_XCC}, s{S_EP}"); p(f"s_add_u32 s{S_PV}, s{S_EP}, 1")
    p(f"v_add_u32_e64 v32, s{S_T0}, 1"); p("v_mov_b32 v33, v73")
    p(f"buffer_store_dwordx2 v[32:33], v31, s[{S_WS}:{S_WS+3}], s{S_FO} offen sc1")
    if 'wdelay' in ABL: p("s_barrier")
    if 'finepro' in ABL: stamp(p, 5)
    p("s_branch L_xready")
    p.label("L_noxs")
    if 'finepro' in ABL: stamp(p, 4)
    if 'wdelay' in ABL: p("s_barrier")
    w3(1)
    if PV_ == 'D': w3(2)
    HOP = 'nohop' not in ABL
    if HOP:
        p("s_mov_b64 exec, 0")
        p(f"s_cmp_eq_u32 s{S_WAVE}, 1"); p("s_cbranch_scc1 L_pad0")
        p(f"s_cmp_eq_u32 s{S_WAVE}, 2"); p("s_cbranch_scc1 L_pad1")
        p("s_branch L_pad2")
        p.label("L_padend")
        p("s_mov_b64 exec, -1")
    if 'finepro' in ABL: stamp(p, 5)
    if HOP: p("s_branch L_xready")
    p.label("L_xready", 12 if HOP else None)
    p("v_lshrrev_b32 v18, 2, v17"); p("v_and_b32 v19, 3, v17"); p("v_and_b32 v21, 3, v18")
    p(f"s_lshl_b32 s{S_W1K}, s{S_WAVE}, 10")
    p("v_lshl_add_u32 v23, v20, 3, v21"); p("v_lshlrev_b32 v24, 8, v23"); p("v_lshl_add_u32 v24, v19, 4, v24"); p(f"v_add_u32 v24, {40*1024}, v24")
    for sg_ in range(4):
        p(f"v_xor_b32 v25, {sg_}, v21"); p(f"v_lshl_add_u32 v{V_RQ+sg_}, v25, 6, v24"); p(f"v_add_u32 v{V_RQ+4+sg_}, {64*1024}, v{V_RQ+sg_}")
    p("v_lshlrev_b32 v23, 6, v23")
    p("v_and_b32 v24, 1, v20"); p("v_lshlrev_b32 v24, 5, v24")
    p("v_lshl_add_u32 v25, v19, 3, v23")
    p(f"v_add_u32 v{V_RA}, v25, v24"); p(f"v_add_u32 v{V_RA}, {40*1024}, v{V_RA}")
    p(f"v_xor_b32 v{V_RA+1}, 32, v{V_RA}")
    p(f"v_add_u32 v{V_RA+2}, {64*1024}, v{V_RA}"); p(f"v_add_u32 v{V_RA+3}, {64*1024}, v{V_RA+1}")
    p(f"s_and_b32 s{S_T2}, s{S_J}, 1"); p(f"s_lshl_b32 s{S_T0}, s{S_T2}, 5")
    p(f"v_xor_b32 v{V_RH}, s{S_T0}, v{V_RA}"); p(f"v_add_u32 v{V_RH+1}, {64*1024}, v{V_RH}")
    p("v_lshrrev_b32 v23, 5, v17"); p("v_lshlrev_b32 v23, 1, v23"); p("v_xor_b32 v23, v23, v19")
    p(f"v_mul_u32_u24 v24, 9216, v18"); p(f"v_lshl_add_u32 v{V_WF}, v23, 4, v24")
    p(f"v_mov_b32 v{V_C1}, {f2u(GC1)}"); p(f"v_mov_b32 v{V_C2}, {f2u(GC2)}")
    p(f"s_mul_i32 s{S_W3K}, s{S_WAVE}, 3072")
    p(f"s_mul_i32 s{S_BH}, s{S_WAVE}, {48*9216}")
    p(f"s_mul_i32 s{S_RS}, s{S_J}, 288"); p(f"s_add_u32 s{S_RS}, s{S_RS}, s{S_T0}")
    p(f"s_add_u32 s{S_BF}, s{S_BH}, s{S_RS}")
    p(f"s_lshr_b32 s{S_T0}, s{S_J}, 1"); p(f"s_lshl_b32 s{S_T0}, s{S_T0}, 19")
    for d, b in ((S_K, 64), (S_V, 66)):
        p(f"s_add_u32 s{d}, s{b}, s{S_T0}"); p(f"s_addc_u32 s{d+1}, s{b+1}, 0"); p(f"s_mov_b32 s{d+2}, 524288"); p(f"s_mov_b32 s{d+3}, 0x20000")
    p(f"s_lshr_b32 s{S_T0}, s{S_J}, 1"); p(f"s_mul_i32 s{S_KOFF}, s{S_T0}, 576"); p(f"s_add_u32 s{S_KOFF}, s{S_KOFF}, 256")
    p(f"s_add_u32 s{S_BH}, s{S_BH}, s{S_KOFF}")
    def hoff(dst, colreg, add):
        p(f"s_lshr_b32 s{S_T0}, s{colreg}, 6"); p(f"s_add_u32 s{S_T0}, s{S_T0}, {add}")
        p(f"s_lshr_b32 s{S_T1}, s{S_T0}, 2"); p(f"s_lshl_b32 s{S_T1}, s{S_T1}, 19")
        p(f"s_and_b32 s{S_T0}, s{S_T0}, 3"); p(f"s_lshl_b32 s{S_T0}, s{S_T0}, 10")
        p(f"s_add_u32 s{dst}, s{S_T0}, s{S_T1}"); p(f"s_add_u32 s{dst}, s{dst}, s{S_OBASE}")
    hoff(S_HHALF, S_KOFF, 0); p(f"s_lshl_b32 s{S_T0}, s{S_T2}, 3"); p(f"s_add_u32 s{S_HHALF}, s{S_HHALF}, s{S_T0}")
    for t in range(4): hoff(S_HF + t, S_RS, t)
    p(f"s_lshl_b32 s{S_T0}, s{S_J}, 19"); p(f"s_add_u32 s{S_OBASE}, s{S_OBASE}, s{S_T0}")
    p(f"s_mov_b32 s{S_THR}, {f2u(THRESH)}")
    p(f"s_lshl_b32 s{S_T0}, s{S_WAVE}, 2"); p(f"v_add_u32 v23, s{S_T0}, v20")
    p(f"v_xor_b32 v24, v22, v23"); p(f"v_lshlrev_b32 v24, 4, v24"); p(f"v_lshl_add_u32 v{V_KD}, v23, 8, v24")
    p(f"v_and_b32 v24, 7, v23"); p(f"v_lshlrev_b32 v24, 1, v24"); p(f"v_xor_b32 v24, v22, v24"); p(f"v_lshlrev_b32 v24, 4, v24"); p(f"v_lshl_add_u32 v{V_VD}, v23, 8, v24")
    for ks in range(2, 4):
        p(f"v_add_u32 v23, {4*ks}, v20"); p("v_xor_b32 v23, v23, v22"); p("v_lshlrev_b32 v23, 4, v23"); p(f"v_lshl_add_u32 v{V_KA+ks}, v22, 8, v23")
    p("v_and_b32 v24, 7, v18"); p("v_lshlrev_b32 v25, 8, v18"); p("v_lshl_add_u32 v25, v19, 3, v25"); p("v_add_u32 v25, 0x10000, v25")
    for dt in range(8):
        p(f"v_xor_b32 v23, {dt}, v24"); p(f"v_lshl_add_u32 v{V_VA+dt}, v23, 5, v25")
    p(f"s_lshl_b32 s{S_T0}, s{S_WAVE}, 14"); p(f"s_cmp_eq_u32 s{S_WAVE}, 2"); p(f"s_cselect_b32 s{S_T0}, 0x10000, s{S_T0}")
    p(f"s_add_u32 s{S_T1}, s{S_T0}, 8192"); p(f"s_cmp_eq_u32 s{S_WAVE}, 3"); p(f"s_cselect_b32 s{S_T0}, 0x8000, s{S_T0}"); p(f"s_cselect_b32 s{S_T1}, {152*1024}, s{S_T1}")
    p(f"v_add_u32 v{V_QP}, s{S_T0}, v{V_L16}"); p(f"v_add_u32 v{V_QP+1}, s{S_T1}, v{V_L16}")
    p(f"s_cmp_lg_u32 s{S_WAVE}, 0"); p("s_cbranch_scc1 L_xgo")
    p(f"s_mov_b32 s{S_SPIN}, 0x40000")
    p.label("L_xpoll")
    p.raw(f"    buffer_load_dwordx2 v[34:35], v30, s[{S_WS}:{S_WS+3}], s{S_FO} offen sc1")
    p.raw("    s_waitcnt vmcnt(0)")
    for t in flag_test(34): p(t)
    p("v_cmp_le_u32 vcc, 7, v34")
    p("s_cbranch_vccz L_xgo")
    p(f"s_sub_u32 s{S_SPIN}, s{S_SPIN}, 1"); p(f"s_cmp_lg_u32 s{S_SPIN}, 0"); p("s_cbranch_scc1 L_xpoll")
    p.label("L_xgo")
    p("s_barrier")
    if 'finepro' in ABL: stamp(p, 6)
    issue(x_loads(0, 3))

    groups = []
    for st in range(NST):
        kind, t, sub, buf = stages[st]
        if kind == "q":
            for nt in range(8): groups.append((st, nt, 0))
        else:
            nts = [0, 2] if kind == "h" else [0, 1, 2, 3]
            if os.environ.get("P1MAJ", "nt") == "nt":
                for n_, nt in enumerate(nts):
                    for c0 in ((0, 3) if n_ % 2 == 0 else (3, 0)): groups.append((st, nt, c0))
            else:
                for c0 in (0, 3):
                    for nt in nts: groups.append((st, nt, c0))
    def a_reads(gi):
        st, nt, c0 = groups[gi]; kind, t, sub, buf = stages[st]
        hb, off = wbase(st % 4)
        out = []
        for c in range(3):
            for tt in range(2):
                d = V_AF + (gi % 3) * 12 + c * 4 + 2 * tt
                if kind == "q":
                    addr = V_RQ + 4 * hb + (nt >> 1); o = off + c * 8192 + tt * 1024 + 8 * (nt & 1)
                else:
                    addr = (V_RA + 2 * hb + (nt & 1)) if kind == "f" else (V_RH + hb)
                    o = off + (nt >> 1) * 12288 + (c0 + c) * 2048 + tt * 256
                out.append((f"ds_read_b64_tr_b16 v[{d}:{d+1}], v{addr} offset:{o}", f"A{gi%3}"))
        return out
    acc = lambda buf, nt, mt: V_ACC + buf * 64 + (nt * 4 + mt) * 4
    gaps = []; gstart = []; seen1 = set()
    for gi, (st, nt, c0) in enumerate(groups):
        gstart.append(len(gaps))
        kind, t, sub, buf = stages[st]
        seen = set()
        for mt, c in order2(4, 3, OP1[0], OP1[1] == "1" and gi % 2):
            if True:
                a = acc(buf, nt, mt); af = V_AF + (gi % 3) * 12 + c * 4
                ks = (sub * 3 if kind == "q" else sub * 6 + c0) + c
                C = "0" if (sub == 0 and (st, nt, mt) not in seen1) else f"v[{a}:{a+3}]"; seen1.add((st, nt, mt))
                gaps.append(Gap(f"v_mfma_f32_16x16x32_bf16 v[{a}:{a+3}], v[{af}:{af+3}], {xreg(ks, mt)}, {C}"))
    NG = len(groups)
    first_of_stage = {}
    for gi, (st, nt, c0) in enumerate(groups): first_of_stage.setdefault(st, gi)
    bar_gap = {}
    for gi in range(2, NG):
        st = groups[gi][0]; f = first_of_stage[st]
        rd = a_reads(gi)
        if gi == f:
            g0 = gstart[gi - 1]; bar_gap[st] = g0 - 1
            for n, r in enumerate(rd): gaps[g0 + n].mem.append(r)
        elif gi == f + 1:
            g0 = gstart[gi - 2]
            for n, r in enumerate(rd): gaps[g0 + 6 + n].mem.append(r)
        else:
            g0 = gstart[gi - 2]
            for n, r in enumerate(rd): gaps[g0 + 2 * n].mem.append(r)
    for gi in range(1, NG):
        g = gaps[gstart[gi] - 1]
        st, nt, c0 = groups[gi]
        vm = []
        if st < 6 and nt == 0: vm.append(f"X{st}")
        nxt = groups[gi + 1][0] if gi + 1 < NG else None
        if nxt is not None and nxt != st:
            g.sh.append(WaitFor(vm=vm + [f"W{nxt}"], lg0=True)); g.sh.append("s_barrier")
        else:
            g.sh.append(WaitFor(lg=(f"A{gi%3}",), vm=vm))
    def place_mem(gaps, ops, g0, g1, dense=False, want=0):
        pitch = max(1.0, (g1 - g0 - 8) / len(ops)) if not dense else 1.0
        last = g0
        for n, (sal, op) in enumerate(ops):
            g = max(last + 1 + len(sal), int(g0 + 2 + n * pitch))
            while True:
                assert g < g1, (g0, g1, n, len(ops))
                ok = (len(gaps[g].mem) <= 1 if dense else len(gaps[g].mem) == want) and all(len(gaps[g - len(sal) + i].sh) == 0 for i in range(len(sal)))
                if ok: break
                g += 1
            for i, s in enumerate(sal): gaps[g - len(sal) + i].sh.append(s)
            gaps[g].mem.append(op); last = g
    for st in range(NST):
        g0 = gstart[first_of_stage[st]]
        g1 = bar_gap[st + 1] if st + 1 < NST else len(gaps)
        ops = []
        XL_ = os.environ.get('XL', '0') == '1'
        if st == 0: ops = (x_loads(3, 9) if XL_ else x_loads(6, 9) + w_dma(3))
        elif st == 1: ops = (w_dma(3) if XL_ else []) + x_loads(9, 12) + w_dma(4)
        elif st == 2: ops = x_loads(12, 15) + w_dma(5)
        elif st == 3: ops = x_loads(15, 18) + w_dma(6)
        elif st + 3 < NST: ops = w_dma(st + 3)
        if st == 4: ops = [([], (f"buffer_load_dwordx2 v[74:75], v{V_TA}, s[{S_WS}:{S_WS+3}], s{S_FO} offen sc1", "GX"))] + ops
        if st == 18: ops += kv_dma("V", VS(0), None, 0)
        if st == 19: ops += kv_dma("K", KS(0), None, 0)
        if st == 20: ops += kv_dma("K", KS(1), None, 16384) + kv_dma("V", VS(1), None, 16384) + kv_dma("K", KS(2), None, 32768)
        if ops: place_mem(gaps, ops, g0 - (2 if st == 0 else 0), (g0 + 66 if (st == 0 and XL_) else g1) if st < 20 else g0 + 60)
        if st == 19:
            cand = [g for g in range(g0 + 3, g1 - 2) if not gaps[g].mem][::2]
            assert len(cand) >= 16
            for f, g in enumerate(cand[:16]):
                gaps[g].mem.append((f"ds_read_b128 a[{A_Q+4*f}:{A_Q+4*f+3}], v{V_QP + f//8} offset:{(f%8)*1024}", "QR"))
    def ffn_epi(st0, pk=False, mts=(0, 1, 2, 3)):
        kind, t, sub, buf = stages[st0]
        q = []
        for mt in mts:
            if kind == "f": el = [(acc(buf, n, mt) + r, acc(buf, 2 + n, mt) + r) for n in range(2) for r in range(4)]
            else: el = [(acc(buf, 0, mt) + r, acc(buf, 2, mt) + r) for r in range(4)]
            T = V_T + 8 * (mt % 2)
            if pk:
                pr = lambda r: f"v[{r}:{r+1}]"
                ev = list(enumerate(el))[::2]
                for e, (g, u) in ev: q.append(f"v_pk_mul_f32 {pr(T+e)}, {pr(g)}, {pr(g)}")
                for e, (g, u) in ev: q.append(f"v_pk_fma_f32 {pr(T+e)}, {pr(T+e)}, {pr(V_C1)}, {pr(V_C1)} op_sel:[0,1,0] op_sel_hi:[1,1,0]")
                for e, (g, u) in ev: q.append(f"v_pk_mul_f32 {pr(T+e)}, {pr(T+e)}, {pr(g)}")
                for e, (g, u) in enumerate(el): q.append(f"v_exp_f32 v{T+e}, v{T+e}")
                for e, (g, u) in ev: q.append(f"v_pk_mul_f32 {pr(g)}, {pr(g)}, {pr(u)}")
                for e, (g, u) in ev: q.append(f"v_pk_add_f32 {pr(T+e)}, {pr(T+e)}, 1.0 op_sel_hi:[1,0]")
                for e, (g, u) in enumerate(el): q.append(f"v_rcp_f32 v{T+e}, v{T+e}")
                for e, (g, u) in ev: q.append(f"v_pk_mul_f32 {pr(g)}, {pr(g)}, {pr(T+e)}")
            else:
                for e, (g, u) in enumerate(el): q.append(f"v_mul_f32 v{T+e}, v{g}, v{g}")
                for e, (g, u) in enumerate(el): q.append(f"v_fma_f32 v{T+e}, v{T+e}, v{V_C2}, v{V_C1}")
                for e, (g, u) in enumerate(el): q.append(f"v_mul_f32 v{T+e}, v{T+e}, v{g}")
                for e, (g, u) in enumerate(el):
                    q.append(f"v_exp_f32 v{T+e}, v{T+e}"); q.append(f"v_mul_f32 v{g}, v{g}, v{u}")
                for e, (g, u) in enumerate(el): q.append(f"v_add_f32 v{T+e}, 1.0, v{T+e}")
                for e, (g, u) in enumerate(el): q.append(f"v_rcp_f32 v{T+e}, v{T+e}")
                for e, (g, u) in enumerate(el): q.append(f"v_mul_f32 v{g}, v{g}, v{T+e}")
            o = V_HO + 4 * (mt % 2)
            for i in range(len(el) // 2): q.append(f"v_cvt_pk_bf16_f32 v{o+i}, v{el[2*i][0]}, v{el[2*i+1][0]}")
            if kind == "f":
                q.append(("MEM", [f"s_add_u32 s{S_T2}, s{S_HF+t}, {H_OFF + mt*4096}"], (f"buffer_store_dwordx4 v[{o}:{o+3}], v{V_L16}, s[{S_WS}:{S_WS+3}], s{S_T2} offen{SCH}", None)))
            else:
                q.append(("MEM", [f"s_add_u32 s{S_T2}, s{S_HHALF}, {H_OFF + mt*4096}"], (f"buffer_store_dwordx2 v[{o}:{o+1}], v{V_L16}, s[{S_WS}:{S_WS+3}], s{S_T2} offen{SCH}", None)))
        return q
    def q_epi(seg):
        q = []
        for mt in range(4):
            rs = [acc(0, 2 * seg, mt) + r for r in range(4)] + [acc(0, 2 * seg + 1, mt) + r for r in range(4)]
            o = V_T + 4 * ((seg * 4 + mt) % 4)
            for r in rs: q.append(f"v_mul_f32 v{r}, {f2u(QSCALE)}, v{r}")
            for i in range(4): q.append(f"v_cvt_pk_bf16_f32 v{o+i}, v{rs[2*i]}, v{rs[2*i+1]}")
            f = mt * 4 + seg
            q.append(("MEM", [], (f"ds_write_b128 v{V_QP + f//8}, v[{o}:{o+3}] offset:{(f%8)*1024}", None)))
        return q
    sg = lambda st: gstart[first_of_stage[st]]
    gaps[bar_gap[20] - 11].post += [f"s_load_dwordx2 s[64:65], s[0:1], {ARG['wo']}", f"s_load_dwordx2 s[66:67], s[0:1], {ARG['wd']}",
                                    f"s_load_dwordx2 s[{S_OUT}:{S_OUT+1}], s[0:1], {ARG['out']}"]
    g_ = gaps[sg(8) + 1]
    g_.post += [WaitFor(vm=("GX",)), f"v_subrev_u32 v74, s{S_XCC}, v74", f"v_xor_b32 v75, s{S_EP2}, v75", "v_min_u32 v75, 1, v75", "v_lshl_or_b32 v74, v75, 8, v74", "v_cmp_le_u32 vcc, 8, v74", "s_nop 1",
                "s_cmp_lg_u64 vcc, 0", f"s_cselect_b32 s{S_MIX}, 1, {1 if 'forcemix' in ABL else 0}"]
    f5 = first_of_stage[5]
    q = []; mins = []
    for seg in range(4):
        e_ = q_epi(seg); q += e_; mins += [gstart[f5 + 2 * seg + 2] + 3] * len(e_)
    left = fill_valu(gaps[:sg(9) - 3], gstart[f5 + 2] + 3, q, mins=mins); assert not left, len(left)
    for seg, lim_ in ((0, sg(6) - 3), (1, sg(6) + 9)):
        cv_ = [x for x in q_epi(seg) if isinstance(x, str)]
        lastg = max(gi for gi, g in enumerate(gaps) for x in g.valu if x in cv_ and gi < sg(9))
        assert lastg < lim_, (seg, lastg, lim_)
    for st0 in (6, 9, 12, 15):
        end = sg(st0 + 6) - 3 if st0 + 6 < NST else len(gaps)
        left = fill_valu(gaps[:end], sg(st0 + 3) + 3, ffn_epi(st0)); assert not left, (st0, len(left))
    left = fill_valu(gaps, sg(19), [f"v_xor_b32 v{V_KA}, 128, v{V_KA+2}", f"v_xor_b32 v{V_KA+1}, 128, v{V_KA+3}"]); assert not left
    if not XL_: issue(x_loads(3, 6))
    p.items.append(WaitFor(vm=("X0",)))
    p("s_barrier")
    for t, tag in a_reads(0) + a_reads(1): p(t, tag)
    ep_wait("b")
    p(f"s_add_u32 s{S_XCC}, s{S_XCC}, s{S_EP}")
    p.items.append(WaitFor(lg=("A0",)))
    stamp(p, 1)
    if 'finepro' in ABL:
        gaps[sg(1) - 1].post += stamp_ops(7); gaps[sg(2) - 1].post += stamp_ops(8); gaps[sg(3) - 1].post += stamp_ops(9)
    elif 'fine1' in ABL:
        for st in range(6, 21): gaps[sg(st) - 1].post += stamp_ops(st - 4)
    else:
        gaps[sg(6) - 1].post += stamp_ops(2); gaps[sg(12) - 1].post += stamp_ops(3)
    emit_gaps(p, gaps)
    if 'fine1' in ABL:
        stamp(p, 17); globals()['ABL'] += ',finepro'
    if 'finepro' not in ABL: stamp(p, 4)

    Sreg = lambda par, kt, qt: V_S + (1 - par) * 64 + (kt * 4 + qt) * 4
    Preg = lambda par, kb, qt: (V_P0 + par * 16 + qt * 4) if kb == 0 else (V_P1 + qt * 4)
    Kf = lambda kt, ks: A_KF + (kt % 2) * 16 + ks * 4
    Vf = lambda dt, kb: A_VF + (dt % 4) * 8 + kb * 4
    def k_reads(slot, kt):
        return [(f"ds_read_b128 a[{Kf(kt,ks)}:{Kf(kt,ks)+3}], v{V_KA+ks} offset:{slot*16384 + kt*4096}", f"KF{kt%2}") for ks in range(4)]
    def v_reads(slot, dt):
        return [(f"ds_read_b64_tr_b16 a[{Vf(dt,kb)+2*t}:{Vf(dt,kb)+2*t+1}], v{V_VA+dt} offset:{slot*16384 + kb*8192 + t*4096}", f"VF{dt%4}") for kb in range(2) for t in range(2)]
    def qk_list(par, zero=False):
        out = []
        for kt in range(4):
            seen = set()
            for qt, ks in order2(4, 4, OQK[0], OQK[1] == "1" and kt % 2):
                s = Sreg(par, kt, qt)
                C = f"v[{s}:{s+3}]" if qt in seen else ("0" if zero else f"v[{V_NM+4*qt}:{V_NM+4*qt+3}]"); seen.add(qt)
                qf = A_Q + (qt * 4 + ks) * 4
                out.append(f"v_mfma_f32_16x16x32_bf16 v[{s}:{s+3}], a[{Kf(kt,ks)}:{Kf(kt,ks)+3}], a[{qf}:{qf+3}], {C}")
        return out
    def pv_mfma(par, dt, qt, kb):
        o = A_O + (dt * 4 + qt) * 4; pr = Preg(par, kb, qt)
        return f"v_mfma_f32_16x16x32_bf16 a[{o}:{o+3}], a[{Vf(dt,kb)}:{Vf(dt,kb)+3}], v[{pr}:{pr+3}], a[{o}:{o+3}]"
    def l_mfma(par, qt, kb):
        pr = Preg(par, kb, qt)
        return f"v_mfma_f32_16x16x32_bf16 v[{V_LD}:{V_LD+3}], v[{V_ONE}:{V_ONE+3}], v[{pr}:{pr+3}], " + ("0" if kb == 0 else f"v[{V_LD}:{V_LD+3}]")
    def elem(par, tau):
        kb = tau // 32; r = tau % 32; qt = 2 * (r // 16) + ((r % 4) >> 1); j = 2 * ((r % 16) // 4) + (r & 1)
        return Sreg(par, 2 * kb + (j >> 2), qt) + (j & 3), kb, qt, j
    def op_exp(par, tau): return f"v_exp_f32 v{V_E + tau % 8}, v{elem(par, tau)[0]}"
    def op_add(par, tau):
        s, kb, qt, j = elem(par, tau); assert qt % 2 == 1
        src = V_LS + (1 - par) * 4 + qt if (kb == 0 and j == 0) else V_LS + par * 4 + qt
        return f"v_add_f32 v{V_LS + par*4 + qt}, v{src}, v{V_E + tau % 8}"
    def op_ladd(par, qt): return f"v_add_f32 v{V_LS + par*4 + qt}, v{V_LS + (1-par)*4 + qt}, v{V_LD}"
    def op_cvt(par, tau):
        s, kb, qt, j = elem(par, tau); assert tau % 2 == 1
        return f"v_cvt_pk_bf16_f32 v{Preg(par, kb, qt) + j//2}, v{V_E + (tau-1) % 8}, v{V_E + tau % 8}"
    def rowmax(p, par, qt, dst):
        regs = [Sreg(par, kt, qt) + r for kt in range(4) for r in range(4)]
        p(f"v_max3_f32 v{dst}, v{regs[0]}, v{regs[1]}, v{regs[2]}")
        for i in range(3, 15, 2): p(f"v_max3_f32 v{dst}, v{dst}, v{regs[i]}, v{regs[i+1]}")
        p(f"v_max_f32 v{dst}, v{dst}, v{regs[15]}")
    def xlane_ops(op, dsts, t1):
        o = []
        for sw in ("v_permlane32_swap_b32", "v_permlane16_swap_b32"):
            for q, d in enumerate(dsts): o.append(f"v_mov_b32 v{t1+q}, v{d}")
            for q, d in enumerate(dsts): o.append(f"{sw} v{d}, v{t1+q}")
            for q, d in enumerate(dsts): o.append(f"{op} v{d}, v{d}, v{t1+q}")
        return o

    p.items.append(WaitFor(vm=(f"K{KS(0)}",), lg0=True)); p("s_barrier")
    for t, tag in k_reads(KS(0), 0) + k_reads(KS(0), 1): p(t, tag)
    g0 = [Gap(m) for m in qk_list(0, zero=True)]
    for n, r in enumerate(k_reads(KS(0), 2)): g0[16 + 2 * n].mem.append(r)
    for n, r in enumerate(k_reads(KS(0), 3)): g0[32 + 2 * n].mem.append(r)
    g0[31].sh.append(WaitFor(lg=("KF0",))); g0[47].sh.append(WaitFor(lg=("KF1",)))
    place_mem(g0, kv_dma("K", KS(3), None, 3 * 16384) + kv_dma("V", VS(2), None, 2 * 16384), 0, 40)
    full = ffn_epi(18); per = len(full) // 4
    npre = 24
    if 'finea' in ABL: stamp(p, 0)
    emit_ops(p, full[:npre])
    left = fill_valu(g0, 0, full[npre:2 * per])
    left += ffn_epi(18, pk=True, mts=(2, 3))
    p.items.append(WaitFor(lg=("KF0", "KF1")))
    sal = [f"s_mov_b32 s{S_OUT+2}, {XN_BYTES}",
           f"s_and_b32 s{S_T0}, s{S_J}, 7", f"s_lshl_b32 s{S_T1}, s{S_RB}, 3", f"s_add_u32 s{S_T0}, s{S_T0}, s{S_T1}",
           f"s_lshl_b32 s{S_T0}, s{S_T0}, 2", f"s_add_u32 s{S_T0}, s{S_T0}, s{S_WAVE}", f"s_lshr_b32 s{S_KOFF}, s{S_J}, 3",
           f"s_sub_u32 s{S_T1}, s{S_T0}, 120", f"s_cmp_lt_u32 s{S_T0}, 120",
           f"s_cselect_b32 s{S_RE}, s{S_T0}, s{S_T1}", f"s_movk_i32 s{S_RNW}, 136", f"s_cselect_b32 s{S_RNW}, 120, s{S_RNW}",
           f"s_cselect_b32 s{S_WG}, s64, s66", f"s_cselect_b32 s{S_WG+1}, s65, s67",
           f"s_mov_b32 s{S_WG+2}, {1152*1152}", f"s_cselect_b32 s{S_WG+2}, {1024*1152}, s{S_WG+2}", f"s_mov_b32 s{S_WU+2}, s{S_WG+2}",
           f"s_mov_b32 s{S_T0}, {WPD_OFF}", f"s_cselect_b32 s{S_T0}, {WPO_OFF}, s{S_T0}",
           f"s_mul_i32 s{S_T1}, s{S_KOFF}, s{S_WG+2}",
           f"s_add_u32 s{S_WG}, s{S_WG}, s{S_T1}", f"s_addc_u32 s{S_WG+1}, s{S_WG+1}, 0",
           f"s_add_u32 s{S_T0}, s{S_T0}, s{S_T1}", f"s_add_u32 s{S_WU}, s70, s{S_T0}", f"s_addc_u32 s{S_WU+1}, s71, 0",
           f"s_sub_u32 s{S_RE}, s{S_RE}, s{S_RNW}",
           f"s_mov_b32 s{S_KOFF}, {4*16384}", f"s_mov_b32 s{S_VOFF}, {3*16384}", f"s_mov_b32 s{S_CNT}, 7",
           f"s_lshl_b32 s{S_BQ}, s{S_WAVE}, 11", f"s_add_u32 s{S_BQ}, s{S_BQ}, {128*1024}"]
    fr_ = [g for g in g0[41:] if not g.sh]
    k_ = sal.index(f"s_cmp_lt_u32 s{S_T0}, 120")
    for t, g in zip(sal[:k_], fr_): g.sh.append(t)
    emit_gaps(p, g0)
    emit_ops(p, left)
    for t in sal[k_:]: p(t)
    for q in range(4): p(f"v_mov_b32 v{V_LS+4+q}, 0")
    for q in range(4): p(f"v_mov_b32 v{V_ONE+q}, 0x3f803f80")
    p.items.append(WaitFor(vm=(f"K{KS(1)}", f"V{VS(0)}"))); p("s_barrier")
    for t, tag in k_reads(KS(1), 0) + k_reads(KS(1), 1): p(t, tag)
    p(f"v_lshrrev_b32 v{V_PT+1}, 4, v{V_L16}")
    p(f"v_lshrrev_b32 v{V_RPG}, 2, v{V_PT+1}"); p(f"v_and_b32 v{V_PT}, 3, v{V_PT+1}")
    p(f"v_lshlrev_b32 v{V_RPL}, 6, v{V_RPG}"); p(f"v_lshl_add_u32 v{V_RPL}, v{V_PT}, 3, v{V_RPL}"); p(f"v_add_u32 v{V_RPL}, s{S_BQ}, v{V_RPL}")
    p(f"v_mul_u32_u24 v{V_RPG}, 1152, v{V_RPG}"); p(f"v_lshl_add_u32 v{V_RPG}, v{V_PT}, 4, v{V_RPG}")
    p(f"s_and_b32 s{S_T1}, s{S_J}, 24"); p(f"s_lshl_b32 s{S_T1}, s{S_T1}, 6"); p(f"v_and_b32 v{V_PT}, 7, v{V_PT+1}")
    p(f"v_lshrrev_b32 v{V_PA}, 3, v{V_PT+1}"); p(f"v_lshlrev_b32 v{V_PA}, 11, v{V_PA}"); p(f"v_lshl_add_u32 v{V_PA}, v{V_PT}, 3, v{V_PA}")
    p(f"v_add_u32 v{V_PA}, s{S_T1}, v{V_PA}")
    p(f"v_mov_b32 v{V_SV+1}, s{S_EP2}")
    zm = [f"v_mfma_f32_32x32x16_bf16 a[{A_O+16*i}:{A_O+16*i+15}], v[{V_LS+4}:{V_LS+7}], v[{V_LS+4}:{V_LS+7}], 0" for i in range(8)]
    for qt in range(4):
        p(zm[qt]); rowmax(p, 0, qt, V_R + qt)
    for n, t in enumerate(xlane_ops("v_max_f32", [V_R + q for q in range(4)], V_R + 4)):
        if n % 8 == 0: p(zm[4 + n // 8])
        p(t)
    p(zm[7])
    for qt in range(4):
        for r in range(4): p(f"v_sub_f32 v{V_NM+4*qt+r}, {f2u(-BIAS) if BIAS else 0}, v{V_R+qt}")
    for kt in range(4):
        for qt in range(4):
            for r in (0, 2):
                s_ = Sreg(0, kt, qt) + r
                p(f"v_pk_add_f32 v[{s_}:{s_+1}], v[{s_}:{s_+1}], v[{V_NM+4*qt}:{V_NM+4*qt+1}]")
    for tau in range(36):
        p(op_exp(0, tau))
        if tau % 4 == 0 and tau: p(op_add(0, tau - 1)); p(op_cvt(0, tau - 1))
        if tau % 4 == 2: p(op_cvt(0, tau - 1))
        if tau % 4 == 3: p(op_add(0, tau - 1))
    p.items.append(WaitFor(lg=("KF0",)))
    p(op_add(0, 35))
    if 'finepro' not in ABL: stamp(p, 5); stamp_rt(p, 15)

    rare_sites = []
    class Tile: pass
    def used(g): return len(g.mem) + sum(slots_of(v) for v in g.valu)
    def att_tile(it, last_block=False, first_mfmas=None):
        par = it % 2
        final = last_block and it == 3
        T = Tile(); G = []; Q = []; PV = []; LG = []
        mf = first_mfmas or qk_list(1 - par)
        for i, m in enumerate(mf):
            g = Gap(m); G.append(g); Q.append(g)
            if i in (19, 23, 51, 55):
                g = Gap(l_mfma(par, 0 if i < 32 else 2, 0 if i in (19, 51) else 1)); G.append(g); LG.append(g)
        for dt in range(8):
            od = order2(4, 2, OPV[0], OPV[1] == "1" and dt % 2 == 0)
            if OPV[0] == "k": od = [(q_, 1 - k_) for q_, k_ in od]
            for qt, kb in od:
                g = Gap(pv_mfma(par, dt, qt, kb)); G.append(g); PV.append(g)
                if dt == 7 and qt == 0 and kb == 1: assert len(PV) <= 59
        T.G, T.Q, T.PV, T.LG = G, Q, PV, LG
        idx = {id(g): i for i, g in enumerate(G)}
        T.idx = lambda g: idx[id(g)]
        br = Q[-1]
        for b in range(64):
            E, N = (Q[2*b], Q[2*b+1]) if b < 32 else (PV[2*b-64], PV[2*b-63])
            sp, tau = (par, 36 + b) if b < 28 else (1 - par, b - 28)
            if tau % 4 == 0:
                if not (final and b > 28): N.valu.append(op_cvt(sp, tau - 1) if b != 28 else op_cvt(par, 63))
            if final and b >= 28: continue
            E.valu.append(op_exp(sp, tau))
            if tau % 4 == 1: N.valu.append(op_cvt(sp, tau))
            if tau % 4 >= 2: (br if b in (30, 31) else N).valu.append(op_add(sp, tau))
        L = V_LS + par * 4
        site = f"{'z' if last_block else 'l'}{it}"; rare_sites.append((site, "Z" if final else str(par)))
        Q[29].valu.append(op_ladd(par, 0))
        Q[57].valu.append(f"v_max3_f32 v{V_CK}, v{L}, v{L+1}, v{L+3}")
        Q[59].valu.append(op_ladd(par, 2))
        Q[61].valu += [f"v_max_f32 v{V_CK}, v{V_CK}, v{L+2}", f"v_cmp_lt_f32 vcc, s{S_THR}, v{V_CK}"]
        br.sh += [f"s_cbranch_vccnz L_rare_stub{site}", Label(f"L_rare_ret{site}")]
        PV[1].sh.append("s_barrier"); T.wv = []
        T.reserved = {id(PV[0]), id(PV[1])}
        if 'barE' in ABL and not final:
            PV[3].valu = PV[1].valu + PV[3].valu; PV[1].valu = []; T.reserved.add(id(PV[3]))
        kslot1, kslot2, vslot = KS(it + 1), KS(it + 2), VS(it)
        if not final:
            Q[15].sh.append(WaitFor(lg=("KF1",))); Q[31].sh.append(WaitFor(lg=("KF0",))); Q[47].sh.append(WaitFor(lg=("KF1",)))
        Q[-2].sh.append(WaitFor(lg=("VF0", "VF1", "VF2", "VF3")))
        for dt in range(4, 8): PV[8 * dt - 1].sh.append(WaitFor(lg=(f"VF{dt%4}",)))
        T.cur = 0; T.lastdma = -1
        def put(op, lo=None, sal=(), cap=2):
            g = max(T.cur, T.idx(lo) if lo is not None else 0)
            while True:
                assert g < len(G), op
                ok = not G[g].mem and used(G[g]) < cap and id(G[g]) not in T.reserved
                if ok and sal:
                    fr = [h for h in range(max(T.lastdma + (0 if len(sal) == 2 else 1), g - 6, 0), g) if not G[h].sh and id(G[h]) not in T.reserved]
                    ok = len(fr) >= len(sal)
                if ok: break
                g += 1
            if sal:
                for h, s_ in zip(fr[-len(sal):], sal): G[h].sh.append(s_)
                T.lastdma = g
            G[g].mem.append(op); T.cur = g + 1
            return g
        T.put = put
        def solo(g, sal, op, nxt=None):
            gi = T.idx(g)
            assert not g.mem
            if g.valu:
                assert not nxt.mem; nxt.valu = g.valu + nxt.valu; g.valu = []; T.reserved.add(id(nxt))
            fr = [h for h in range(gi - 3, gi) if not G[h].sh]
            assert len(fr) >= len(sal), (gi, sal)
            for h, s_ in zip(fr[-len(sal):], sal): G[h].sh.append(s_)
            g.mem.append(op); T.lastdma = max(T.lastdma, gi)
        T.solo = solo
        T.endsal = []
        if not final:
            if not (last_block and it >= 2):
                sal_, op = kv_dma("V", VS(it + 2), S_VOFF, -16384)[3]; solo(LG[0], sal_, op)
            if not last_block:
                dk = kv_dma("K", KS(it), S_KOFF, 0)
                solo(LG[1], *dk[0]); solo(Q[41], *dk[1], nxt=Q[43]); solo(LG[2], *dk[2]); solo(LG[3], *dk[3])
                T.endsal.append(f"s_add_u32 s{S_KOFF}, s{S_KOFF}, 16384")
            for r in v_reads(vslot, 0) + v_reads(vslot, 1): put(r)
            for r in k_reads(kslot1, 2): put(r, Q[16])
            v23 = v_reads(vslot, 2) + v_reads(vslot, 3)
            for r in v23[:3]: put(r)
            for r in k_reads(kslot1, 3): put(r, Q[32])
            for r in v23[3:]: put(r)
            assert T.cur <= T.idx(Q[55]), (it, T.cur)
        if not (last_block and it >= 1):
            dv = kv_dma("V", VS(it + 3), S_VOFF, 0)
            solo(PV[5], *dv[0], nxt=PV[7]); solo(PV[57], *dv[1], nxt=PV[59]); solo(PV[61], *dv[2], nxt=PV[63])
        T.cur = T.idx(PV[2])
        T.pv_v = [(r, PV[8 * (dt - 4) + 8]) for dt in range(4, 8) for r in v_reads(vslot, dt)]
        if not (last_block and it >= 2):
            for r, lo in T.pv_v: put(r, lo)
            for r in k_reads(kslot2, 0) + k_reads(kslot2, 1): put(r)
            T.wv.append(f"K{kslot2}")
            T.endsal += [WaitFor(lg=("KF0",)), f"s_add_u32 s{S_VOFF}, s{S_VOFF}, 16384"]
        if not last_block and it == 0:
            sl = [f"s_add_u32 s{S_RE}, s{S_RE}, s{S_RNW}", f"s_mul_i32 s{S_RS}, s{S_RE}, 3641", f"s_lshr_b32 s{S_RS}, s{S_RS}, 16",
                  f"s_mul_i32 s{S_RS}, s{S_RS}, {36864-1152}", f"s_lshl_b32 s{S_RD}, s{S_RE}, 6", f"s_add_u32 s{S_RS}, s{S_RS}, s{S_RD}",
                  f"s_lshl_b32 s{S_RD}, s{S_RE}, 11"]
            for n, s_ in enumerate(sl): Q[2 * n].sh.append(s_)
            Q[58].sh.append(f"s_mov_b32 m0, s{S_BQ}")
            Q[59].mem.append((f"buffer_load_dwordx4 v{V_RPG}, s[{S_WG}:{S_WG+3}], s{S_RS} offen lds", "RD"))
            Q[60].sh.append(f"s_add_u32 s{S_RS}, s{S_RS}, {16*1152-1024}")
            PV[3].mem.append((f"buffer_load_dwordx4 v{V_RPG}, s[{S_WG}:{S_WG+3}], s{S_RS} offen offset:1024 lds", "RD"))
        if not last_block and it == 2:
            PV[3].mem.append((f"ds_read_b64_tr_b16 v[{V_RPS}:{V_RPS+1}], v{V_RPL} offset:0", "RL"))
            PV[7].mem.append((f"ds_read_b64_tr_b16 v[{V_RPS+2}:{V_RPS+3}], v{V_RPL} offset:1024", "RL"))
        if not last_block and it == 3:
            Q[55].mem.append((f"ds_read_b64_tr_b16 v[{V_RPS+4}:{V_RPS+5}], v{V_RPL} offset:32", "RL"))
            Q[57].mem.append((f"ds_read_b64_tr_b16 v[{V_RPS+6}:{V_RPS+7}], v{V_RPL} offset:1056", "RL"))
        if not final: T.wv.append(f"V{VS(it+1)}")
        if not last_block:
            if it == 2: T.wv.append("RD")
            if it == 1:
                T.wv.append("RST")
                PV[10].sh.append(f"s_cmp_le_u32 s{S_CNT}, 2"); PV[11].sh.append(f"s_cselect_b32 s{S_SIG}, 2, 1")
                PV[12].sh.append(f"s_add_u32 s{S_SIG}, s{S_SIG}, s{S_XCC}"); PV[13].valu.append(f"v_mov_b32 v{V_SV}, s{S_SIG}")
                PV[16].sh.append(f"s_cmp_lg_u32 s{S_MIX}, 0"); PV[17].sh += ["s_cbranch_scc1 L_stub_w2", Label("L_ret_w2")]
                PV[20].mem.append((sig_store, None))
            if it == 3:
                PV[3].mem.append((f"buffer_store_dwordx4 v[{V_RPS}:{V_RPS+3}], v{V_L16}, s[{S_WU}:{S_WU+3}], s{S_RD} offen sc1", "RST"))
                PV[12].sh.append(WaitFor(lg=("RL",)))
                PV[14].mem.append((f"buffer_store_dwordx4 v[{V_RPS+4}:{V_RPS+7}], v{V_L16}, s[{S_WU}:{S_WU+3}], s{S_RD} offen offset:1024 sc1", "RST"))
        return T
    def finish_tile(T):
        if T.wv: T.PV[0].sh.append(WaitFor(vm=tuple(T.wv)))
        for s_ in T.endsal:
            if isinstance(s_, WaitFor):
                g = [g for g in T.PV[57:] if not g.sh][0]; g.sh.append(s_)
            else:
                c = [g for g in T.G[T.lastdma:] if not g.sh]
                (c[0].sh if c else T.G[-1].post).append(s_)
        ov = sum(max(0, used(g) - 2) + max(0, len([x for x in g.sh if not isinstance(x, Label)]) - 1) for g in T.G)
        print("tile overflow slots:", ov, "gaps", len(T.G))

    body = Prog(); p = body
    p.label("L_att_loop", 6)
    for it in range(4):
        T = att_tile(it)
        if it == 3: T.PV[40].sh.append(f"s_sub_u32 s{S_CNT}, s{S_CNT}, 1")
        finish_tile(T)
        if it == 3: T.G[-1].post += [f"s_cmp_lg_u32 s{S_CNT}, 0", "s_cbranch_scc1 L_att_loop"]
        for g in T.G:
            if 'Lnodma' in ABL: g.mem = [m for m in g.mem if not m[0].startswith("buffer")]
            if 'Lnobar' in ABL: g.sh = [x for x in g.sh if x != "s_barrier"]
            if 'Lnolds' in ABL: g.mem = [m for m in g.mem if not m[0].startswith("ds_")]
            if 'Lnotr' in ABL: g.mem = [m for m in g.mem if not m[0].startswith("ds_read_b64")]
            if 'Lnobr' in ABL: g.sh = [x for x in g.sh if not (isinstance(x, str) and x.startswith("s_cbranch"))]
            if 'Lnovalu' in ABL: g.valu = [x for x in g.valu if x.startswith(("v_exp", "v_add_u32"))]
            if 'Lnoexp' in ABL: g.valu = [x for x in g.valu if not x.startswith("v_exp")]
            if 'Lnowait' in ABL: g.sh = [x for x in g.sh if not (isinstance(x, WaitFor) and x.lg)]
        emit_gaps(p, T.G)

    tail = Prog(); p = tail
    p(f"s_getpc_b64 s[{S_WG}:{S_WG+1}]")
    p.label("L_pc1")
    p(f"s_and_b32 s{S_WG+1}, s{S_WG+1}, 0xffff"); p(f"s_mov_b32 s{S_WG+2}, L_code_end-L_pc1")
    p(f"s_lshr_b32 s{S_T0}, s2, 3"); p(f"s_lshl_b32 s{S_T0}, s{S_T0}, 2"); p(f"s_add_u32 s{S_T0}, s{S_T0}, s{S_WAVE}"); p(f"s_lshl_b32 s{S_T0}, s{S_T0}, 10")
    p(f"buffer_load_dwordx4 v[{V_RPS}:{V_RPS+3}], v{V_L16}, s[{S_WG}:{S_WG+3}], s{S_T0} offen", "CODE")
    p(f"v_lshrrev_b32 v{V_LANE}, 4, v{V_L16}")
    if 'finepro' not in ABL: stamp(p, 6)
    NP3 = 17
    Breg = lambda s, ks, mt: ((s % 3) * 4 + ks) * 8 + mt * 4
    def p3_w(s):
        off = (WPD_OFF + s * 4 * 36864) if s < 9 else (WPO_OFF + (s - 9) * 4 * 36864)
        base = S_PW if s < 9 else S_PW2
        ops = []
        for i in range(9):
            sal = []
            if i % 4 == 0:
                tm = tmp()
                m0 = f"s_add_u32 m0, s{S_W0B}, {i*1024}" if s == 0 else f"s_add_u32 m0, s{S_W9K}, {P3_SLOT[(s-1)%3] + i*1024}"
                sal = [f"s_add_u32 s{tm}, s{base}, {off + i*1024}", m0]
            ops.append((sal, (f"buffer_load_dwordx4 v{V_L16}, s[{S_WS}:{S_WS+3}], s{tm} offen offset:{(i%4)*1024}{LSC} lds", f"PW{s}")))
        return annotate(ops)
    def p3_b(s):
        off = (H_OFF + s * 524288) if s < 9 else (O_OFF + (s - 9) * 524288)
        base = S_PB0 if s < 9 else S_PB1
        ops = []
        for mt in range(2):
            for ks in range(4):
                r = Breg(s, ks, mt)
                ops.append(([f"s_add_u32 s{S_T2}, s{base}, {off + mt*4096}"] if ks == 0 else [],
                            (f"buffer_load_dwordx4 a[{r}:{r+3}], v{V_L16}, s[{S_WS}:{S_WS+3}], s{S_T2} offen offset:{ks*1024}{LSC}", f"PB{s}")))
        return annotate(ops)
    setup3 = [f"s_lshr_b32 s{S_KOFF}, s{S_J}, 3", f"s_and_b32 s{S_RE}, s{S_J}, 3", f"s_mul_i32 s{S_W9K}, s{S_WAVE}, 9216",
              f"s_mul_i32 s{S_PW2}, s{S_WAVE}, 36864", f"s_mul_i32 s{S_RNW}, s{S_RE}, 9216", f"s_add_u32 s{S_PW2}, s{S_PW2}, s{S_RNW}",
              f"s_mul_i32 s{S_PW}, s{S_KOFF}, {1152*1152}", f"s_add_u32 s{S_PW}, s{S_PW}, s{S_PW2}",
              f"s_mul_i32 s{S_RNW}, s{S_KOFF}, {1024*1152}", f"s_add_u32 s{S_PW2}, s{S_PW2}, s{S_RNW}",
              f"s_lshl_b32 s{S_PST}, s{S_RB}, 3", f"s_and_b32 s{S_RNW}, s{S_J}, 7", f"s_add_u32 s{S_PST}, s{S_PST}, s{S_RNW}",
              f"s_lshr_b32 s{S_FX0}, s{S_PST}, 2",
              f"s_lshl_b32 s{S_PB1}, s{S_FX0}, 2", f"s_add_u32 s{S_PB1}, s{S_PB1}, s{S_WAVE}", f"s_lshl_b32 s{S_PB1}, s{S_PB1}, 13",
              f"s_mul_i32 s{S_PB0}, s{S_KOFF}, {9*524288}", f"s_add_u32 s{S_PB0}, s{S_PB0}, s{S_PB1}",
              f"s_lshl_b32 s{S_RNW}, s{S_KOFF}, 22", f"s_add_u32 s{S_PB1}, s{S_PB1}, s{S_RNW}",
              f"s_mul_i32 s{S_PST}, s{S_PST}, {16*9216}",
              f"s_mul_i32 s{S_FL}, s{S_KOFF}, 9216", f"s_add_u32 s{S_FL}, s{S_FL}, s{S_PST}",
              f"s_mul_i32 s{S_CNT}, s{S_KOFF}, {4*9216}", f"s_add_u32 s{S_PST}, s{S_PST}, s{S_CNT}", f"s_add_u32 s{S_PST}, s{S_PST}, s{S_W9K}",
              f"s_lshl_b32 s{S_FX0}, s{S_FX0}, 2", f"s_add_u32 s{S_FX0}, s{S_FX0}, s{S_KOFF}", f"s_mul_i32 s{S_FX0}, s{S_FX0}, {32*1152}",
              f"s_mul_i32 s{S_CNT}, s{S_RE}, 288", f"s_add_u32 s{S_FX0}, s{S_FX0}, s{S_CNT}", f"s_min_u32 s{S_FX1}, s{S_WAVE}, 1", f"s_lshl_b32 s{S_FX1}, s{S_FX1}, 30",
              f"s_add_u32 s{S_CNT}, s{S_KOFF}, 1", f"s_and_b32 s{S_CNT}, s{S_CNT}, 3", f"s_mul_i32 s{S_FR}, s{S_CNT}, {4*9216}", f"s_add_u32 s{S_FR}, s{S_FR}, s{S_FL}",
              f"s_add_u32 s{S_CNT}, s{S_KOFF}, 2", f"s_and_b32 s{S_CNT}, s{S_CNT}, 3", f"s_mul_i32 s{S_FR+1}, s{S_CNT}, {4*9216}", f"s_add_u32 s{S_FR+1}, s{S_FR+1}, s{S_FL}",
              f"s_add_u32 s{S_CNT}, s{S_KOFF}, 3", f"s_and_b32 s{S_CNT}, s{S_CNT}, 3", f"s_mul_i32 s{S_FR+2}, s{S_CNT}, {4*9216}", f"s_add_u32 s{S_FR+2}, s{S_FR+2}, s{S_FL}",
              f"s_add_u32 s{S_CNT}, s{S_WAVE}, 1", f"s_lshr_b32 s{S_CNT}, s{S_CNT}, 2", f"s_mul_i32 s{S_CNT}, s{S_CNT}, {80*1024+27648}",
              f"s_add_u32 s{S_W0B}, s{S_W9K}, {128*1024}", f"s_sub_u32 s{S_W0B}, s{S_W0B}, s{S_CNT}"]
    pg = []
    for s in range(NP3):
        if os.environ.get("P3MAJ", "nt") == "nt": order = [(kp if nt % 2 == 0 else 1 - kp, nt) for nt in range(9) for kp in range(2)]
        elif s in (8, 16): order = [(kp, nt) for nt in range(9) for kp in range(2)]
        else: order = [(kp, nt) for kp in range(2) for nt in range(9)]
        for kp, nt in order: pg.append((s, kp, nt))
    def p3_reads(gi):
        s, kp, nt = pg[gi]; base = P3_AR[gi % 4]
        out = []
        for q in range(2):
            ks = 2 * kp + q
            if s == 0: va, o = (V_PWA[2], 12 * 1024 + (ks * 9 + nt) * 1024) if ks < 3 else (V_PWA[0], 48 * 1024 + nt * 1024)
            else: va, o = V_PWA[(s - 1) % 3], (ks * 9 + nt) * 1024
            out.append((f"ds_read_b128 v[{base+4*q}:{base+4*q+3}], v{va} offset:{o}", f"PA{gi%4}"))
        return out
    pm = []; seen3 = set()
    for gi, (s, kp, nt) in enumerate(pg):
        seen = set()
        for mt, q in order2(2, 2, OP3[0], OP3[1] == "1" and gi % 2):
            if True:
                a = (AD if s < 9 else AS)(nt, mt); b = Breg(s, 2 * kp + q, mt); ar = P3_AR[gi % 4] + 4 * q
                C = "0" if (s in (0, 9) and (s, nt, mt) not in seen3) else f"v[{a}:{a+3}]"; seen3.add((s, nt, mt))
                pm.append(f"v_mfma_f32_16x16x32_bf16 v[{a}:{a+3}], v[{ar}:{ar+3}], a[{b}:{b+3}], {C}")
    TL = [att_tile(it, last_block=True, first_mfmas=(pm[:72] if it == 3 else None)) for it in range(4)]
    T28, T29, T30, T31 = TL
    T28.cur = T28.idx(T28.Q[50]); T28.put(poll_load("PL"))
    cv, cs = poll_check(2, "p2")
    T28.PV[40].sh.append(WaitFor(vm=("PL",))); T28.PV[41].sh += cs[:1]; T28.PV[42].post += cv; T28.PV[44].sh += cs[1:]
    free = [g for g in T28.G[:T28.idx(T28.PV[54])] if not g.sh and id(g) not in T28.reserved]
    assert len(free) >= len(setup3), len(free)
    for s_, g in zip(setup3, free): g.sh.append(s_)
    L2T = os.environ.get("L2T", "")
    if L2T:
        V_TH, V_TD = 3, V_SV
        p(f"v_min_u32 v{V_TH}, 15, v{V_LANE}"); p(f"v_lshlrev_b32 v{V_TH}, 7, v{V_TH}")
        for t in [f"s_and_b32 s13, s{S_J}, 7", f"s_lshl_b32 s13, s13, 2", f"s_add_u32 s13, s13, s{S_WAVE}", f"s_lshl_b32 s13, s13, 11",
                  f"s_lshl_b32 s14, s{S_RB}, 16", f"s_add_u32 s13, s13, s14", f"s_lshr_b32 s14, s{S_J}, 3", f"s_mul_i32 s15, s14, {9*524288}", f"s_add_u32 s13, s13, s15",
                  f"s_lshr_b32 s15, s2, 3", f"s_lshl_b32 s15, s15, 2", f"s_add_u32 s15, s15, s{S_WAVE}", f"s_lshl_b32 s15, s15, 11",
                  f"s_mul_i32 s14, s14, {1152*1152}", f"s_add_u32 s14, s14, s15"]: p(t)
        tl = []
        for x in L2T.split(","):
            if x[0] == "h": tl.append((13, H_OFF + int(x[1:]) * 524288))
            else: tl.append((14, WPD_OFF + int(x[1:]) * 262144))
        slots_ = [(T, g) for T in (T28, T29, T30) for g in (T.Q[8], T.Q[40], T.PV[10], T.PV[42])]
        for (T, g0_), (base, off) in zip(slots_, tl):
            T.cur = 0; ld_ = T.lastdma; T.lastdma = T.idx(g0_) - 4
            T.put((f"buffer_load_dword v{V_TD}, v{V_TH}, s[{S_WS}:{S_WS+3}], s77 offen sc1", "TCH"), g0_, sal=[f"s_add_u32 s77, s{base}, {off}"], cap=3)
            T.lastdma = ld_
    for n in range(4): T28.Q[45 + 2 * n].valu.append(f"v_mov_b32 v{V_RPS+4+n}, -1")
    ploc = [(T28, T28.PV[20]), (T28, T28.PV[50]), (T29, T29.Q[8]), (T29, T29.Q[36]), (T29, T29.PV[16]), (T29, T29.PV[40]), (T30, T30.Q[4]), (T30, T30.Q[28]), (T30, T30.Q[52])]
    for nt, (T, g_) in enumerate(ploc):
        ld_ = T.lastdma; T.cur = 0; T.lastdma = T.idx(g_) - 4
        T.put((f"buffer_store_dwordx4 v[{V_RPS+4}:{V_RPS+7}], v{V_L16}, s[{S_WS}:{S_WS+3}], s{S_SIG} offen sc1", "DST"), g_,
              sal=[f"s_add_u32 s{S_SIG}, s{S_PST}, {PART_OFF + PSTRIDE + nt*1024}"], cap=3)
        T.lastdma = ld_
    assert T28.idx(free[len(setup3) - 1]) < T28.idx(T28.PV[14])
    T29.cur = T29.idx(T29.Q[50]); T29.lastdma = max(T29.lastdma, T29.idx(T29.Q[50]))
    for sal_, op in p3_w(0): T29.put(op, sal=sal_); T29.lastdma = T29.cur - 1
    T30.wv.append("PW0")
    mix = p3_b(0) + p3_w(1)
    T30.Q[49].valu.append(f"v_add_u32 v{V_PWA[1]}, {P3_SLOT[1]}, v{V_L16}"); T30.Q[51].valu.append(f"v_add_u32 v{V_PWA[2]}, {P3_SLOT[2]}, v{V_L16}")
    T30.cur = T30.idx(T30.PV[2])
    for r, lo in T30.pv_v: T30.put(r, lo)
    T30.cur = T30.idx(T30.PV[52])
    for r in p3_reads(0) + p3_reads(1) + p3_reads(2): T30.put(r)
    T30.cur = T30.idx(T30.PV[2]); T30.lastdma = T30.cur
    for n, (sal_, op) in enumerate(mix):
        T30.put(op, T30.PV[2 + 3 * n], sal=sal_, cap=3); T30.lastdma = T30.cur - 1
    T30.G[-1].post.append(WaitFor(lg=("PA0",), vm=("PB0",)))
    T31.wv.append("PW1")
    Q = T31.Q
    for gi in range(1, 18): Q[4 * gi - 1].sh.insert(0, WaitFor(lg=(f"PA{gi%4}",)))
    for gi in range(3, 18):
        for n, r in enumerate(p3_reads(gi)): Q[4 * (gi - 3) + 1 + 2 * n].mem.append(r)
    T31.cur = 0
    vr = [r for dt in range(4) for r in v_reads(VS(3), dt)]
    for n, r in enumerate(vr): T31.put(r, Q[4 * n], cap=3)
    T31.cur = 0; T31.lastdma = 0
    for n, (sal_, op) in enumerate(p3_b(1) + p3_b(2)):
        T31.put(op, Q[4 * n + 2], sal=sal_, cap=3); T31.lastdma = T31.cur - 1
    T31.cur = T31.idx(T31.PV[2])
    for r, lo in T31.pv_v: T31.put(r, lo); T31.cur += 1
    T31.cur = T31.idx(T31.PV[50])
    for r in p3_reads(18) + p3_reads(19) + p3_reads(20): T31.put(r); T31.cur += 1
    T31.cur = T31.idx(T31.PV[2]); T31.lastdma = T31.cur
    EARLY3 = os.environ.get("EARLY3", "")
    for sal_, op in p3_w(2) + (p3_w(3) if "w" in EARLY3 else []) + (p3_b(3) if "b" in EARLY3 else []):
        T31.put(op, sal=sal_); T31.lastdma = T31.cur - 1
    T31.PV[63].sh.append(WaitFor(lg=(f"PA{18%4}",), vm=("PB1",)))
    P = [None] * 72 + [Gap(m) for m in pm[72:]]
    for gi in range(21, len(pg)):
        i = gi % 18
        rd = p3_reads(gi)
        if i == 0: g0_ = 4 * (gi - 2); pos = (g0_, g0_ + 1)
        elif i == 1: g0_ = 4 * (gi - 3); pos = (g0_ + 2, g0_ + 3)
        else: g0_ = 4 * (gi - 3); pos = (g0_, g0_ + 2)
        for g_, r in zip(pos, rd): P[g_].mem.append(r)
    barw = {}
    for gi in range(19, len(pg)):
        s = pg[gi][0]; g = P[4 * gi - 1]
        if gi % 18 == 16 and s + 1 < NP3:
            barw[s] = WaitFor(vm=[f"PW{s+1}", f"PB{s+1}"], lg0=True)
            P[4 * gi - 2].sh.append(barw[s]); g.sh.append("s_barrier")
        else: g.sh.append(WaitFor(lg=(f"PA{gi%4}",)))
    def after_barrier(s): return 72 * s + 64
    OSIG = int(os.environ.get("OSIG", "4")); DSIG = int(os.environ.get("DSIG", "13")); OCAP = int(os.environ.get("OCAP", "3"))
    barw[OSIG].vm = tuple(barw[OSIG].vm) + ("OST",)
    P[after_barrier(OSIG) - 6].valu.append(sig_val(3)); P[after_barrier(OSIG) + 5].mem.append((sig_store, None))
    P[after_barrier(OSIG) + 1].sh.append(f"s_cmp_lg_u32 s{S_MIX}, 0"); P[after_barrier(OSIG) + 2].sh += ["s_cbranch_scc1 L_stub_w3", Label("L_ret_w3")]
    barw[DSIG].vm = tuple(barw[DSIG].vm) + ("DST",)
    P[after_barrier(DSIG) - 6].valu.append(sig_val(4)); P[after_barrier(DSIG) + 5].mem.append((sig_store, None))
    P[72*5+1].sh.append(f"s_lshl_b32 s{S_CNT}, s{S_RB}, 11"); P[72*5+2].sh.append(f"s_lshl_b32 s{S_RE}, s{S_KOFF}, 9"); P[72*5+4].sh.append(f"s_add_u32 s{S_RE}, s{S_RE}, s{S_CNT}")
    P[72*5+5].valu += [f"v_and_b32 v{V_PA}, 7, v{V_LANE}", f"v_lshl_add_u32 v{V_PA}, v{V_PA}, 3, s{S_RE}"]
    P[72*6+69].mem.append(poll_load("PL"))
    P[72*7+28].sh.append(WaitFor(vm=("PL",)))
    cv, cs = poll_check(3, "p3")
    P[72*7+29].valu += cv; P[72*7+29].sh += cs[:1]; P[72*7+30].post += cs[1:]
    PQ = DSIG + 1
    P[72*PQ+49].mem.append(poll_load("PL"))
    P[72*(PQ+1)+12].sh.append(WaitFor(vm=("PL",)))
    cv, cs = poll_check(4, "p4")
    P[72*(PQ+1)+13].valu += cv; P[72*(PQ+1)+13].sh += cs[:1]; P[72*(PQ+1)+13].post += cs[1:]
    HINT = int(os.environ.get("HINT", "1"))
    P[72*16 + HINT - 4].valu.append(sig_val(5)); P[72*16 + HINT].mem.append((sig_store, None))
    FD, GG, FXR, TT = 160, 208, 56, 16
    def fin_loads(kind, dst, tag):
        ops = []
        for m in range(3):
            for sp in range(3):
                tm = tmp()
                ops.append(([f"s_add_u32 s{tm}, s{S_FR+sp}, {PART_OFF + kind*PSTRIDE}"],
                            (f"buffer_load_dwordx4 v[{dst+(m*4+sp)*4}:{dst+(m*4+sp)*4+3}], v{V_FL+m}, s[{S_WS}:{S_WS+3}], s{tm} offen sc1", tag)))
        return annotate(ops)
    own_reads = lambda kind, dst, tag: [(f"ds_read_b128 v[{dst+(m*4+3)*4}:{dst+(m*4+3)*4+3}], v{V_OWR} offset:{kind*9216 + m*4096}", tag) for m in range(3)]
    xq = []
    for m in range(3):
        r = V_XO + m
        xq += [f"v_lshl_add_u32 v{r}, s{S_WAVE}, 6, v{V_LANE}"] + ([f"v_add_u32 v{r}, {256*m}, v{r}"] if m else [])
        xq += [f"v_mul_u32_u24 v71, 3641, v{r}", f"v_lshrrev_b32 v71, 16, v71", f"v_mul_u32_u24 v71, {1152-288}, v71", f"v_lshl_add_u32 v{r}, v{r}, 4, v71"]
        if m == 2: xq += [f"v_add_u32 v{r}, s{S_FX1}, v{r}"]
        xq.append(("MEM", [], (f"buffer_load_dwordx4 v[{FXR+4*m}:{FXR+4*m+3}], v{r}, s[{S_XI}:{S_XI+3}], s{S_FX0} offen", "FX")))
    for s in range(1, NP3):
        ops = []
        if s + 2 < NP3:
            w, b = p3_w(s + 2), p3_b(s + 2)
            if s == 7:
                place_mem(P, w, 72 * s, 72 * s + 28); place_mem(P, b, 72 * s + 30, 72 * s + 63); continue
            if s == 1:
                if "w" in EARLY3: w = []
                if "b" in EARLY3: b = []
            ops = w[:4] + b[:4] + w[4:8] + b[4:] + w[8:]
        if s == PQ + 1:
            assert s == 15
            place_mem(P, fin_loads(0, FD, "FD") + [([], r) for r in own_reads(0, FD, "FO")], 72 * s + 14, 72 * s + 63); continue
        if ops: place_mem(P, ops, 72 * s - int(os.environ.get('P3E', '0')), 72 * s + int(os.environ.get('P3W', '63')))
    allg = T31.PV + P[72:]
    OT = 96
    def o_item(n, qt, s):
        T = OT + (n % 4) * 8; D = OT + 32 + (n % 4) * 4
        q = []
        for h in range(2):
            o = A_O + ((2 * s + h) * 4 + qt) * 4
            for r in range(4): q.append(f"v_accvgpr_read_b32 v{T+4*h+r}, a{o+r}")
        for i in range(8): q.append(f"v_mul_f32 v{T+i}, v{T+i}, v{V_LS+4+qt}")
        for i in range(4): q.append(f"v_cvt_pk_bf16_f32 v{D+i}, v{T+2*i}, v{T+2*i+1}")
        q.append(("MEM", [f"s_add_u32 s{S_SIG}, s{S_OBASE}, {O_OFF + qt*4096}"], (f"buffer_store_dwordx4 v[{D}:{D+3}], v{V_L16}, s[{S_WS}:{S_WS+3}], s{S_SIG} offen offset:{s*1024}{SCO}", "OST")))
        return q
    pre = xlane_ops("v_add_f32", [V_LS + 5, V_LS + 7], OT + 48) + [f"v_rcp_f32 v{V_LS+4+qt}, v{V_LS+4+qt}" for qt in range(4)]
    n = 0; lim = 64 + after_barrier(OSIG - 1) - 72 + 30
    pre += xq
    q = list(pre); mins = [2] * len(pre)
    for s in range(4):
        for qt in range(4):
            it_ = o_item(n, qt, s); n += 1
            q += it_; mins += [16 * (s + 1) + 4] * len(it_)
    left = fill_valu(allg[:lim], 2, q, mins=mins, cap=OCAP); assert not left, len(left)
    fs = [f"v_add_u32 v{V_FL}, s{S_W1K}, v{V_L16}", f"v_add_u32 v{V_FL+1}, 4096, v{V_FL}", f"v_add_u32 v{V_FL+2}, s{S_VOFF}, v{V_FL}",
          f"v_and_b32 v{V_YW}, 15, v{V_LANE}", f"v_mul_u32_u24 v{V_YW}, 288, v{V_YW}", f"v_lshrrev_b32 v{V_YW+1}, 4, v{V_LANE}",
          f"v_lshl_add_u32 v{V_YW}, v{V_YW+1}, 3, v{V_YW}", f"v_lshl_add_u32 v{V_YW}, s{S_WAVE}, 5, v{V_YW}",
          f"v_lshrrev_b32 v{V_YW+1}, 16, s{S_FX1}", f"v_add_u32 v{V_YW+1}, v{V_YW+1}, v{V_YW}"]
    sal6 = [f"s_lshl_b32 s{S_FL}, s{S_RB}, 3", f"s_and_b32 s{S_T2+32}, s{S_J}, 7", f"s_add_u32 s{S_FL}, s{S_FL}, s{S_T2+32}", f"s_lshl_b32 s{S_FL}, s{S_FL}, 9",
            f"s_add_u32 s{S_FL}, s{S_FL}, {F5_OFF}",
            f"s_lshl_b32 s{S_W0B}, s{S_WAVE}, 7", f"s_add_u32 s{S_W0B}, s{S_W0B}, s{S_FL}", f"s_lshl_b32 s{S_W0B+1}, s{S_KOFF}, 3", f"s_add_u32 s{S_W0B}, s{S_W0B}, s{S_W0B+1}",
            f"s_lshl_b32 s{S_W0B+1}, s{S_KOFF}, 7", f"s_add_u32 s{S_FL}, s{S_FL}, s{S_W0B+1}",
            f"s_add_u32 s{S_W0B+1}, s{S_KOFF}, 1",
            [f"s_cmp_eq_u32 s{S_WAVE}, s{S_KOFF}", f"s_cselect_b32 s{S_W0B+2}, {1 << 30}, 0", f"s_cselect_b32 s{S_W0B+3}, 0, {18432}"],
            f"s_add_u32 s{S_PST}, s{S_PST}, s{S_W0B+2}", f"s_add_u32 s{S_W0B+3}, s{S_W0B+3}, {OWN_LDS}",
            [f"s_cmp_eq_u32 s{S_WAVE}, 0", f"s_cselect_b32 s{S_VOFF}, 8192, {1 << 30}"]]
    g_ = 72 * 6
    for x in sal6:
        while P[g_].sh: g_ += 1
        P[g_].sh += x if isinstance(x, list) else [x]
        g_ += 1
    assert g_ < 72 * 6 + 60
    fs += [f"v_add_u32 v{V_OWN}, s{S_W0B+3}, v{V_L16}", f"v_add_u32 v{V_OWR}, {OWN_LDS}, v{V_FL}"]
    left = fill_valu(P[:72 * 8], 72 * 6 + 60, fs); assert not left
    fs2 = [f"v_mov_b32 v{V_SA}, s{S_W0B}", f"v_min_u32 v{V_PA}, 2, v{V_LANE}", f"v_add_u32 v{V_PA}, s{S_W0B+1}, v{V_PA}", f"v_and_b32 v{V_PA}, 3, v{V_PA}",
           f"v_lshl_add_u32 v{V_PA}, v{V_PA}, 3, s{S_FL}"]
    left = fill_valu(P[:72 * 9], 72 * 8, fs2); assert not left
    def part_item(A, nt, kind, tag):
        a = A(nt, 0)
        q = [f"v_cvt_pk_bf16_f32 v{a+i}, v{a+2*i}, v{a+2*i+1}" for i in range(4)]
        q.append(("MEM", [f"s_add_u32 s{S_SIG}, s{S_PST}, {PART_OFF + kind*PSTRIDE + nt*1024}"], (f"buffer_store_dwordx4 v[{a}:{a+3}], v{V_L16}, s[{S_WS}:{S_WS+3}], s{S_SIG} offen sc1", tag)))
        q.append(("MEM", [], (f"ds_write_b128 v{V_OWN}, v[{a}:{a+3}] offset:{kind*9216 + nt*1024}", None)))
        return q
    for nt in range(9):
        left = fill_valu(P[:72 * DSIG], 72 * 8 + 12 + ((72 * (DSIG - 8) - 30) * nt) // 8, part_item(AD, nt, 0, "DST")); assert not left
    sleft = []
    for nt in range(9):
        sleft += fill_valu(P, 72 * 16 + 8 * (nt + 1) + 4, part_item(AS, nt, 1, "SST"))
    gq = []
    def unpack_sum(src, dst, pk=False):
        q = []
        for i in range(4):
            q += [f"v_lshlrev_b32 v{dst+2*i}, 16, v{src+i}", f"v_and_b32 v{dst+2*i+1}, s{S_THR}, v{src+i}"]
        for sp in range(1, 4):
            T = TT + 8 * (sp % 2)
            for i in range(4):
                q += [f"v_lshlrev_b32 v{T+2*i}, 16, v{src+4*sp+i}", f"v_and_b32 v{T+2*i+1}, s{S_THR}, v{src+4*sp+i}"]
            if pk:
                for i in range(0, 8, 2): q.append(f"v_pk_add_f32 v[{dst+i}:{dst+i+1}], v[{dst+i}:{dst+i+1}], v[{T+i}:{T+i+1}]")
            else:
                for i in range(8): q.append(f"v_add_f32 v{dst+i}, v{dst+i}, v{T+i}")
        return q
    P[72*13+1].post.append(f"s_mov_b32 s{S_THR}, 0xffff0000")
    for m in range(3):
        D = GG + 8 * m; T = FD + 16 * m
        gq += unpack_sum(FD + 16 * m, D, pk=True)
        gq += [f"v_mul_f32 v{T+i}, {f2u(-LOG2E)}, v{D+i}" for i in range(8)]
        gq += [f"v_exp_f32 v{T+i}, v{T+i}" for i in range(8)]
        gq += [f"v_add_f32 v{T+i}, 1.0, v{T+i}" for i in range(8)]
        gq += [f"v_rcp_f32 v{T+i}, v{T+i}" for i in range(8)]
        gq += [f"v_pk_mul_f32 v[{D+i}:{D+i+1}], v[{D+i}:{D+i+1}], v[{T+i}:{T+i+1}]" for i in range(0, 8, 2)]
    gleft = gq
    print("phase3 leftovers: s-part", len(sleft), "gate", len(gleft))
    if 'fineprol' in ABL: stamp(p, 1)
    for n_, T in enumerate(TL):
        finish_tile(T)
        if 'fineprol' in ABL:
            T.Q[-1].post += stamp_ops(9 + 2 * n_); T.G[-1].post += stamp_ops(10 + 2 * n_)
        emit_gaps(p, T.G)
    if 'finepro' not in ABL:
        stamp(p, 7); stamp_rt(p, 16)
        for s, k in ((3, 8), (6, 9), (9, 10), (13, 11)): P[72 * s - 1].post += stamp_ops(k)
    if 'finep3' in ABL:
        stamp(p, 0)
        for s in range(1, 17): P[72 * (s + 1) - 1].post = [x for x in P[72 * (s + 1) - 1].post if not (isinstance(x, str) and ("s76" in x or "s[76" in x or x == "s_waitcnt lgkmcnt(0)"))] + stamp_ops(s)
    emit_gaps(p, P[72:])
    if 'finep' not in ABL: stamp(p, 12); stamp_rt(p, 17)
    emit_ops(p, sleft)
    XU = 32
    FS = 96
    def s_loads():
        for sal_, op in fin_loads(1, FS, "FS"):
            for s_ in sal_: p(s_)
            p(op[0], op[1])
    p("s_waitcnt lgkmcnt(0)")
    s_loads()
    p.items.append(WaitFor(vm=("FD",)))
    p("s_barrier")
    for t, tag in own_reads(1, FS, "FO"): p(t, tag)
    emit_ops(p, gleft)
    for i in range(12):
        p(f"v_lshlrev_b32 v{XU+2*i}, 16, v{FXR+i}"); p(f"v_and_b32 v{XU+2*i+1}, s{S_THR}, v{FXR+i}")
    if 'finep' not in ABL: stamp(p, 13)
    p(f"s_mov_b32 s{S_CNT}, 0x40000"); p(f"s_add_u32 s{S_PV}, s{S_EP}, 5")
    p.label("L_dcheck")
    p("s_waitcnt vmcnt(0)")
    q_ = [FS + (m * 4 + sp) * 4 + i for m in range(3) for sp in range(3) for i in range(4)]
    p(f"v_max_u32 v{V_PT}, v{q_[0]}, v{q_[1]}"); p(f"v_max_u32 v{V_PT+1}, v{q_[2]}, v{q_[3]}")
    for i in range(4, 36, 2): p(f"v_max3_u32 v{V_PT+(i//2)%2}, v{V_PT+(i//2)%2}, v{q_[i]}, v{q_[i+1]}")
    p(f"v_max_u32 v{V_PT}, v{V_PT}, v{V_PT+1}")
    p(f"v_cmp_eq_u32 vcc, -1, v{V_PT}")
    p("s_cbranch_vccz L_dready")
    p(f"s_cmp_eq_u32 s{S_CNT}, 0x40000"); p("s_cbranch_scc0 L_dagain")
    p(f"s_call_b64 s[{S_RET}:{S_RET+1}], L_spin0")
    p.label("L_dagain")
    s_loads()
    p(f"s_sub_u32 s{S_CNT}, s{S_CNT}, 1"); p(f"s_cmp_lg_u32 s{S_CNT}, 0"); p("s_cbranch_scc1 L_dcheck")
    p("s_waitcnt vmcnt(0)")
    p.label("L_dready")
    if 'finep' not in ABL: stamp(p, 14)
    p("s_waitcnt lgkmcnt(0)")
    for m in range(3):
        D = FD + 8 * m
        for t in unpack_sum(FS + 16 * m, D, pk=True): p(t)
        for i in range(0, 8, 2): p(f"v_pk_mul_f32 v[{D+i}:{D+i+1}], v[{D+i}:{D+i+1}], v[{GG+8*m+i}:{GG+8*m+i+1}]")
        for i in range(4): p(f"v_cvt_pk_bf16_f32 v{D+i}, v{D+2*i}, v{D+2*i+1}")
        for mt in range(2): p(f"ds_write_b64 v{V_YW + (1 if m == 2 else 0)}, v[{D+2*mt}:{D+2*mt+1}] offset:{m*128 + mt*4608}")
    p("s_waitcnt lgkmcnt(0)"); p("s_barrier")
    for m in range(3): p(f"ds_read_b128 v[{128+4*m}:{131+4*m}], v{V_FL} offset:{m*4096}")
    for m in range(3):
        p(f"s_waitcnt lgkmcnt({2-m})")
        D = 96 + 8 * m; T = XU + 8 * m
        for i in range(4):
            p(f"v_lshlrev_b32 v{D+2*i}, 16, v{128+4*m+i}"); p(f"v_and_b32 v{D+2*i+1}, s{S_THR}, v{128+4*m+i}")
        for i in range(0, 8, 2): p(f"v_pk_add_f32 v[{D+i}:{D+i+1}], v[{D+i}:{D+i+1}], v[{T+i}:{T+i+1}]")
        for i in range(4): p(f"v_cvt_pk_bf16_f32 v{D+i}, v{D+2*i}, v{D+2*i+1}")
        p(f"buffer_store_dwordx4 v[{D}:{D+3}], v{V_XO+m}, s[{S_OUT}:{S_OUT+3}], s{S_FX0} offen")
    p(f"s_lshl_b32 s{S_T0}, s2, 12"); p("v_mov_b32 v4, 0"); p("v_mov_b32 v5, 0")
    p(f"buffer_store_dwordx2 v[4:5], v4, s[{S_DBG}:{S_DBG+3}], s{S_T0} offen sc1")
    if STAMP: p("s_waitcnt vmcnt(0)")
    stamp(p, 19); stamp_rt(p, 21)
    if 'dbgout' in ABL:
        p(f"s_cmp_eq_u32 s2, 250"); p(f"s_cselect_b32 s76, 36, 0x1000"); p("s_cmp_eq_u32 s2, 1"); p("s_cselect_b32 s76, 8, s76")
        p(f"s_cmp_eq_u32 s{S_WAVE}, 0"); p("s_cselect_b32 s76, s76, 0x1000"); p("v_mov_b32 v1, s76")
        p(f"s_lshr_b32 s77, s{S_EP}, 8")
        for n, k in enumerate((100, 95, 96, 97, 101)):
            p(f"s_sub_u32 s76, s{k}, s77"); p("s_and_b32 s76, s76, 0xffffff"); p("v_mov_b32 v2, s76")
            p(f"buffer_store_dword v2, v1, s[{S_DBG}:{S_DBG+3}], 0 offen offset:{4*n}")
        for n, (a_, b_) in enumerate(((81, 80), (99, 80))):
            p(f"s_sub_u32 s76, s{a_}, s{b_}"); p("v_mov_b32 v2, s76")
            p(f"buffer_store_dword v2, v1, s[{S_DBG}:{S_DBG+3}], 0 offen offset:{20+4*n}")
    else:
        stamp_dump(p, 70, S_WAVE, 1)
    p.label("L_done"); p("s_endpgm")

    rare = Prog(); p = rare
    for site, var in rare_sites:
        p.label(f"L_rare_stub{site}")
        p(f"s_call_b64 s[{S_RET}:{S_RET+1}], L_rare{var}")
        p(f"s_branch L_rare_ret{site}")
    for name in stubs:
        p.label(f"L_stub_{name}")
        p(f"s_call_b64 s[{S_RET}:{S_RET+1}], L_spin0")
        p(f"s_branch L_ret_{name}")
    for name in ("w2", "w3"):
        p.label(f"L_stub_{name}")
        p("buffer_wbl2 sc1"); p("s_waitcnt vmcnt(0)")
        p(f"s_branch L_ret_{name}")
    p.label("L_spin0")
    p(f"s_mov_b32 s{S_SPIN}, {'0x40' if 'Lno' in ABL else '0x40000'}")
    p.label("L_spin1")
    p(poll_load(None)[0])
    p(f"s_sub_u32 s76, s{S_EP}, s{S_PV}"); p("s_add_u32 s76, s76, 8")
    p("s_waitcnt vmcnt(0)")
    for t in flag_test(V_PT): p(t)
    p(f"v_cmp_le_u32 vcc, s76, v{V_PT}")
    p("s_cbranch_vccz L_spin2")
    p(f"s_sub_u32 s{S_SPIN}, s{S_SPIN}, 1"); p("s_sleep 1"); p(f"s_cmp_lg_u32 s{S_SPIN}, 0"); p("s_cbranch_scc1 L_spin1")
    p.label("L_spin2")
    p(f"s_setpc_b64 s[{S_RET}:{S_RET+1}]")
    rare_items = fix_hazards(rare.items)[0]
    for var in ("0", "1", "Z"):
        par = 1 if var == "Z" else int(var)
        rp = Prog(); p = rp
        p.label(f"L_rare{var}")
        p("s_nop 15")
        Lold = V_LS + (1 - par) * 4
        for qt in range(4):
            rowmax(p, par, qt, V_R + qt)
            p(f"v_log_f32 v{V_R+4}, v{Lold+qt}")
            if BIAS:
                p(f"v_max_f32 v{V_R+qt}, v{V_R+qt}, v{V_R+4}"); p(f"v_add_f32 v{V_R+qt}, {f2u(BIAS)}, v{V_R+qt}"); p(f"v_max_f32 v{V_R+qt}, 0, v{V_R+qt}")
            else: p(f"v_max3_f32 v{V_R+qt}, v{V_R+qt}, v{V_R+4}, 0")
        for t in xlane_ops("v_max_f32", [V_R + q for q in range(4)], V_R + 4): p(t)
        for qt in range(4):
            p(f"v_sub_f32 v{V_R+4+qt}, 0, v{V_R+qt}"); p(f"v_exp_f32 v{V_R+4+qt}, v{V_R+4+qt}")
        for qt in range(4):
            p(f"v_mul_f32 v{Lold+qt}, v{Lold+qt}, v{V_R+4+qt}")
            if var != "Z":
                for r in range(4): p(f"v_sub_f32 v{V_NM+4*qt+r}, v{V_NM+4*qt+r}, v{V_R+qt}")
            for pp in ((par,) if var == "Z" else (0, 1)):
                for kt in range(4):
                    for r in range(4): p(f"v_sub_f32 v{Sreg(pp,kt,qt)+r}, v{Sreg(pp,kt,qt)+r}, v{V_R+qt}")
            for dt in range(8):
                o = A_O + (dt * 4 + qt) * 4
                for r in range(4): p(f"v_accvgpr_read_b32 v{V_E+r}, a{o+r}")
                for r in range(4): p(f"v_mul_f32 v{V_E+r}, v{V_E+r}, v{V_R+4+qt}")
                for r in range(4): p(f"v_accvgpr_write_b32 a{o+r}, v{V_E+r}")
        for tau in range(64):
            p(op_exp(par, tau))
            if tau % 4 >= 2: p(op_add(par, tau))
            if tau % 2 == 1: p(op_cvt(par, tau))
        for qt in (0, 2):
            p(l_mfma(par, qt, 0)); p(l_mfma(par, qt, 1)); p(op_ladd(par, qt))
        if var != "Z":
            for tau in range(4): p(op_exp(1 - par, tau))
            p(op_cvt(1 - par, 1))
        p("s_nop 3")
        p(f"s_setpc_b64 s[{S_RET}:{S_RET+1}]")
        rare_items += fix_hazards(rp.items)[0]

    resolve_waits(pro.items + body.items + body.items + tail.items)
    pi = lower_waits(pro.items); bi = lower_waits(body.items); ti = lower_waits(tail.items)
    pi, a1 = fix_hazards(pi, verbose=False, name="pro")
    bi2, a2 = fix_hazards(bi, prev=bi, verbose=True, name="body")
    bi3, a3 = fix_hazards(bi2, prev=pi, verbose=True, name="body-entry")
    ti, a4 = fix_hazards(ti, prev=bi3, verbose=True, name="tail")
    wc = WaitChecker(); wc.run(pi + bi3 + bi3 + ti)
    for e in wc.errors[:10]: print("WAITCHECK", e)
    assert check_needs(pi + bi3 + bi3 + ti) == 0
    for it in pi + bi3 + ti:
        if isinstance(it, Ins): it.text = it.text.split(' ; need[')[0]
    allit = pi + bi3 + ti
    if not HOP: return allit + rare_items
    import subprocess
    REV = int(os.environ.get("PREV", "1")); PMAX = int(os.environ.get("PMAX", "16"))
    def with_pads(pos):
        out = []; k_ = 0; N = len(pos)
        for n, it in enumerate(allit):
            out.append(it)
            if n in pos:
                me = (N - 1 - k_) if REV else k_
                out += [Label(f"L_pad{me}"), Ins("s_cbranch_execz " + (f"L_pad{me+3}" if me + 3 < N else "L_padend"), "PAD")]; k_ += 1
        return out + rare_items
    def addrs(items):
        txt = '.amdgcn_target "amdgcn-amd-amdhsa--gfx950"\n.text\n'
        for n, it in enumerate(items):
            txt += render([it])
            if isinstance(it, Ins) and it.tag != "PAD": txt += f"L_m{id(it)}:\n"
        txt += "L_code_end:\n"
        open("pads.s", "w").write(txt)
        subprocess.run(["clang", "-x", "assembler", "-target", "amdgcn-amd-amdhsa", "-mcpu=gfx950", "-c", "pads.s", "-o", "pads.o"], check=True)
        o = subprocess.run(["llvm-objdump", "-t", "pads.o"], capture_output=True, text=True).stdout
        return {l.split()[-1]: int(l.split()[0], 16) for l in o.splitlines() if ".text" in l and l.split()[-1].startswith("L_")}
    first = [n for n, it in enumerate(allit) if isinstance(it, Ins) and it.kind == "mfma"][0]
    cand = [n for n in range(first, len(allit) - 1) if isinstance(allit[n], Ins) and allit[n].kind != "ctl" and isinstance(allit[n + 1], Ins)]
    pos = set(cand[:3])
    for rnd_ in range(8):
        ad = addrs(with_pads(pos))
        pages = {}
        for n in cand:
            a_ = ad[f"L_m{id(allit[n])}"]
            if a_ % 4096 < 52: pages.setdefault(a_ // 4096, []).append(n)
        new_ = []
        for pg_, ns in sorted(pages.items()):
            keep = [n for n in ns if n in pos]
            mf_ = [n for n in ns if allit[n].kind == "mfma" and allit[n + 1].kind not in ("salu", "wait", "ctl")] or [n for n in ns if allit[n].kind == "mfma"]
            new_.append(keep[0] if keep else (mf_ or ns)[0])
        new_ = set(new_[:PMAX])
        if new_ == pos: break
        pos = new_
    ad = addrs(with_pads(pos))
    print("pads at:", " ".join(hex(ad[f"L_pad{k}"]) for k in range(len(pos))), "end", hex(ad["L_done"]), "spin", hex(ad["L_spin0"]))
    return with_pads(pos)

if __name__ == "__main__":
    import sys
    HEADER = open("cdna_kernels/" + NAME + ".s.ref").read().split("; Override")[0]
    items = gen_mega()
    k = NAME + "_kernel"
    s = HEADER + f"; @launch grid=(256,1,1) block=(256,1,1) lds={LDS_BYTES}\n"
    s += '.amdgcn_target "amdgcn-amd-amdhsa--gfx950"\n' + kernel_text(k, items, 512, 256)
    s += "L_code_end:\n    s_endpgm\n" + '.section .rodata,"a"\n.p2align 6\n' + kd_text(k, 512, 256)
    open(sys.argv[1], "w").write(s)
```

```python
from common import *
import math
LDS_BYTES = 160 * 1024
LOG2E = 1.4426950408889634
QSCALE = LOG2E / math.sqrt(128.0)
GC1 = -2.0 * math.sqrt(2.0 / math.pi) * LOG2E
GC2 = GC1 * 0.044715
CUT = int(os.environ.get("CUT", "24"))
BIAS = float(126 - CUT) if CUT else 0.0
THRESH = 2.0 ** (int(os.environ.get("THR", "64")) - BIAS)
ABL = os.environ.get('ABL', '')
NTW = "" if "nontw" in ABL else " nt"
NTQ = "" if "nontq" in ABL else " nt"
NTT = '' if 'nontt' in ABL else ' nt'
SNAKE = 'nosnake' not in ABL
sn = lambda rng, odd: (list(rng)[::-1] if (SNAKE and odd % 2) else list(rng))
NTX = " nt" if "ntx" in ABL else ""
NTKV = " nt" if 'ntkv' in ABL else ""
WS_BYTES = 128 << 20
WPO_OFF = WP_OFF
WPD_OFF = WP_OFF + 4096 * 1152
FLAG_OFF = (100 << 20) if 'farflag' in ABL else (5 << 19)
SCH = ' sc1' if 'sch' in ABL else ''
SCO = ' sc1' if 'sco' in ABL else ''
LSC = '' if 'nolsc' in ABL else ' sc1'
P3NT = ' nt' if 'p3nt' in ABL else ''
PSTRIDE = 64 * 4 * 4 * 9216

S_HF = 4
S_WG, S_WU, S_WQ, S_K, S_V, S_WS, S_DBG, S_XI = 8, 12, 16, 20, 24, 28, 32, 36
S_WAVE, S_RB, S_J = 40, 41, 42
S_RE = 43
S_T0, S_T1, S_T2 = 44, 45, 46
S_KOFF, S_VOFF = 47, 48
S_W1K = 49
S_RET = 50
S_CNT = 52
S_W3K = 53
S_BF, S_BH, S_BQ = 54, 55, 56
S_RS, S_RD = 57, 58
S_RNW = 59
S_HHALF = 60
S_THR = 61
S_OBASE = 62
S_XB = 63
S_PTR = 64
S_W6K = 3
S_PV = 79
S_SIG = 78
S_SPIN = 75
S_EP = 74
S_FO = 73
S_MIX = 72
S_XCC = 69
S_EP2 = 68
S_PW, S_PW2, S_PB0, S_PB1 = 54, 55, 56, 57
S_W9K = 53
S_PST = 58
S_FL = 59
S_FX0, S_FX1 = 60, 63
S_OUT = 16

V_SA = 0
V_L16 = 1
V_WF, V_WQ = 2, 3
V_RA = 4
V_RH = 8
V_QP = 10
V_C1, V_C2 = 12, 13
V_KD, V_VD = 14, 15
V_AF = 16
V_T = 52
V_HO = 68
V_KA = 76
V_TA = 76
V_VA = 80
V_RQ = 88
V_ACC = 96
V_X = 224
WSLOT = [128 * 1024, 80 * 1024, 40 * 1024, 104 * 1024]
def wbase(slot):
    b = WSLOT[slot]
    return (0, b - 40 * 1024) if b < 104 * 1024 else (1, b - 104 * 1024)
def xreg(ks, mt):
    f = ks * 4 + mt
    return f"a[{4*f}:{4*f+3}]" if f < 64 else f"v[{V_X+4*(f-64)}:{V_X+4*(f-64)+3}]"

A_Q, A_KF, A_VF, A_O = 0, 64, 96, 128
V_S = 96
V_P0 = 224
V_P1 = 16
V_NM = 32
V_LS = 48
V_E = 56
V_CK = 9
V_ONE = 10
V_R = 64
V_LD = 72
V_RPS = 88
V_RPG, V_RPL = 2, 3
V_PT = 4
V_SV = 6
V_PA = 8
V_LANE = 2
KS = lambda T: (T + 3) % 4
VS = lambda T: (T + 1) % 4
P3_SLOT = [0, 80 * 1024, 116 * 1024]
AD = lambda nt, mt: 160 + (nt * 2 + mt) * 4
AS = lambda nt, mt: (96 + (nt * 2 + mt) * 4) if nt < 8 else (240 + mt * 4)
P3_AR = [32, 40, 88, 232]
V_PWA = [1, 76, 77]
V_XO = 68
V_YW = 78
V_FL = 80
S_FR = 64
V_OWN = 84
V_OWR = 85
OWN_LDS = 40 * 1024
FX_OFF = 16384
F5_OFF = 32768
S_W0B = 12

from k12 import Gap, emit_gaps, slots_of, fill_valu

def emit_ops(p, ops):
    for op in ops:
        if isinstance(op, tuple):
            for t in op[1]: p(t)
            p(op[2][0], op[2][1])
        else: p(op)

def annotate(ops):
    out = []; cur = []
    for sal, (txt, tag) in ops:
        if sal: cur = list(sal)
        out.append((sal, (txt + " ; need[" + "|".join(cur) + "]", tag)))
    return out

def check_needs(items):
    last = {}; bad = 0
    for it in items:
        if not isinstance(it, Ins): continue
        if "; need[" in it.text:
            for t in it.text.split("; need[")[1].rstrip("]").split("|"):
                if not t: continue
                d = Ins(t).wr[0]
                if last.get(d) != t:
                    bad += 1; print("NEEDCHECK:", it.text, "<- last writer", last.get(d))
        if it.kind == "salu":
            for r in it.wr: last[r] = it.text
    return bad

def order2(nouter, ninner, mode, flip):
    os_ = list(range(nouter))[::-1] if flip else list(range(nouter))
    out = []
    if mode == "c":
        for n, o in enumerate(os_): out += [(o, i) for i in (range(ninner) if n % 2 == 0 else range(ninner - 1, -1, -1))]
    elif mode == "k":
        for i in range(ninner): out += [(o, i) for o in (os_ if i % 2 == 0 else os_[::-1])]
    else:
        for h in range(0, ninner, 2):
            seq = os_ if (h // 2) % 2 == 0 else os_[::-1]
            for n, o in enumerate(seq): out += [(o, h), (o, h + 1)] if n % 2 == 0 else [(o, h + 1), (o, h)]
    return out
OQK, OPV, OP1, OP3 = (os.environ.get(k, d) for k, d in (("OQK", "c1"), ("OPV", "c1"), ("OP1", "c1"), ("OP3", "c1")))

def gen_mega():
    pro = Prog(); p = pro
    stubs = []
    def poll_check(val, name):
        stubs.append(name)
        return (flag_test(V_PT) + [f"v_cmp_le_u32 vcc, {8-val}, v{V_PT}"],
                [f"s_add_u32 s{S_PV}, s{S_EP}, {val}", f"s_cbranch_vccnz L_stub_{name}", Label(f"L_ret_{name}")])
    def flag_test(r):
        return [f"v_and_b32 v{r}, 0xffffff87, v{r}", f"v_xor_b32 v{r+1}, s{S_EP2}, v{r+1}", f"v_subrev_u32 v{r}, s{S_PV}, v{r}",
                f"v_min_u32 v{r+1}, 1, v{r+1}", f"v_lshl_or_b32 v{r}, v{r+1}, 8, v{r}"]
    poll_load = lambda tag: (f"buffer_load_dwordx2 v[{V_PT}:{V_PT+1}], v{V_PA}, s[{S_WS}:{S_WS+3}], s{S_FO} offen sc1", tag)
    sig_store = f"buffer_store_dwordx2 v[{V_SV}:{V_SV+1}], v{V_SA}, s[{S_WS}:{S_WS+3}], s{S_FO} offen sc1"
    sig_val = lambda val: f"v_add_u32_e64 v{V_SV}, s{S_XCC}, {val}"

    p("s_cmp_ge_u32 s2, 256"); p("s_cbranch_scc1 L_done")
    stamp_rt(p, 20); stamp(p, 0)
    LX = 96
    p(f"s_load_dwordx2 s[{S_XI}:{S_XI+1}], s[0:1], {ARG['x']}")
    p(f"s_load_dwordx4 s[68:71], s[0:1], {ARG['dbg']}")
    p(f"s_getpc_b64 s[{S_K}:{S_K+1}]")
    p.label("L_pc0")
    p(f"s_and_b32 s{S_K+1}, s{S_K+1}, 0xffff"); p(f"s_mov_b32 s{S_K+2}, L_code_end-L_pc0"); p(f"s_mov_b32 s{S_K+3}, 0x20000")
    p(f"s_lshr_b32 s{S_T1}, s2, 3"); p(f"s_lshl_b32 s{S_T0}, s{S_T1}, 12"); p("v_lshlrev_b32 v16, 4, v0")
    CL = os.environ.get("CL", "0")
    if CL == "0": p(f"buffer_load_dwordx4 v[160:163], v16, s[{S_K}:{S_K+3}], s{S_T0} offen", "CODE")
    else: p(f"s_mov_b32 s{S_T2}, s{S_T0}")
    p(f"s_and_b32 s{S_CNT}, s2, 7"); p(f"s_lshl_b32 s{S_CNT}, s{S_CNT}, 5"); p(f"s_or_b32 s{S_CNT}, s{S_CNT}, s{S_T1}")
    p("v_lshrrev_b32 v18, 5, v0"); p("v_and_b32 v19, 31, v0"); p(f"s_mul_i32 s{S_T0}, s{S_CNT}, 9216")
    p("v_mul_u32_u24 v20, 1152, v18"); p("v_lshl_add_u32 v20, v19, 4, v20")
    p(f"s_mov_b32 s{S_XI+2}, {XN_BYTES}"); p(f"s_mov_b32 s{S_XI+3}, 0x20000")
    p("s_waitcnt lgkmcnt(0)")
    for m in range(3):
        p(f"buffer_load_dwordx4 v[{LX+4*m}:{LX+4*m+3}], v20, s[{S_XI}:{S_XI+3}], s{S_T0} offen offset:{m*384}{NTX}", "LX")
    if CL != "0": p(f"buffer_load_dwordx4 v[160:163], v16, s[{S_K}:{S_K+3}], s{S_T2} offen", "CODE")
    if CL == "2":
        p("v_lshrrev_b32 v21, 6, v0"); p("s_nop 0"); p(f"v_readfirstlane_b32 s{S_WAVE}, v21")
        p("s_mov_b64 exec, 0")
        for w in range(3):
            p(f"s_cmp_eq_u32 s{S_WAVE}, {w}"); p(f"s_cbranch_scc1 L_ppad{w}")
        p("s_branch L_ppad3")
        p.label("L_ppadend")
        p("s_mov_b64 exec, -1")
    def ppad(k):
        if CL == "2":
            p.label(f"L_ppad{k}"); p("s_cbranch_execz L_ppadend")
    p(f"s_load_dwordx2 s[{S_WQ}:{S_WQ+1}], s[0:1], {ARG['wq']}")
    p(f"s_load_dwordx4 s[72:75], s[0:1], {ARG['wg']}")
    p(f"s_load_dwordx4 s[64:67], s[0:1], {ARG['k']}")
    p("s_memrealtime s[76:77]")
    p("v_lshrrev_b32 v16, 6, v0"); p("v_and_b32 v17, 63, v0"); p("v_cmp_gt_u32 vcc, 24, v19")
    p(f"v_readfirstlane_b32 s{S_WAVE}, v16")
    srd(p, S_DBG, 68, 256); srd(p, S_WS, 70, WS_BYTES)
    if 'tlb' in ABL:
        p("v_min_u32 v37, 41, v17"); p("v_lshlrev_b32 v37, 21, v37"); p("v_mov_b32 v38, 128")
        p(f"buffer_load_dword v165, v37, s[{S_WS}:{S_WS+3}], 0 offen", "TCH")
        p(f"buffer_load_dword v166, v38, s[{S_DBG}:{S_DBG+3}], 0 offen", "TCH")
    p(f"s_mov_b64 s[{S_RET}:{S_RET+1}], vcc")
    p(f"s_and_b32 s{S_T0}, s2, 7")
    p(f"s_and_b32 s{S_RB}, s{S_T1}, 3"); p(f"s_lshr_b32 s{S_T1}, s{S_T1}, 2")
    p(f"s_and_b32 s{S_T2}, s{S_T0}, 1"); p(f"s_lshl_b32 s{S_T2}, s{S_T2}, 2"); p(f"s_add_u32 s{S_RB}, s{S_RB}, s{S_T2}")
    p(f"s_lshr_b32 s{S_T0}, s{S_T0}, 1"); p(f"s_lshl_b32 s{S_J}, s{S_T0}, 3"); p(f"s_add_u32 s{S_J}, s{S_J}, s{S_T1}")
    p(f"s_mov_b32 s{S_WQ+2}, {576*8192}"); p(f"s_mov_b32 s{S_WQ+3}, 0x20000")
    p(f"v_lshlrev_b32 v{V_L16}, 4, v17"); p("v_mov_b32 v71, 0")
    p("s_waitcnt lgkmcnt(0)")
    p(f"s_lshl_b32 s{S_T1}, s2, 2"); p(f"s_add_u32 s{S_T1}, s{S_T1}, s{S_WAVE}"); p(f"s_cmp_lg_u32 s{S_T1}, 1"); p("s_cbranch_scc1 L_noleader")
    p("s_lshl_b64 s[76:77], s[76:77], 8"); p("s_or_b32 s76, s76, 128"); p("v_mov_b32 v30, s76"); p("v_mov_b32 v31, s77")
    p.raw(f"    buffer_store_dwordx2 v[30:31], v71, s[{S_DBG}:{S_DBG+3}], 0 offen sc1")
    p.label("L_noleader")
    p("v_lshrrev_b32 v20, 4, v17"); p("v_and_b32 v22, 15, v17")
    p("v_lshlrev_b32 v23, 2, v20"); p("v_xor_b32 v23, v23, v22"); p("v_lshlrev_b32 v24, 13, v20"); p(f"v_lshl_add_u32 v{V_WQ}, v23, 4, v24")
    p(f"s_mul_i32 s{S_W6K}, s{S_WAVE}, 6144")
    p(f"s_mul_i32 s{S_BQ}, s{S_WAVE}, {24*8192}"); p(f"s_lshl_b32 s{S_T0}, s{S_J}, 8"); p(f"s_add_u32 s{S_BQ}, s{S_BQ}, s{S_T0}")

    stages = [("q", 0, sub, 0) for sub in range(6)] + [("h", 0, sub, 0) for sub in range(3)]
    for t in range(4): stages += [("f", t, sub, (t + 1) % 2) for sub in range(3)]
    NST = len(stages)
    tmpsel = [0]
    def tmp():
        tmpsel[0] ^= 1
        return (S_T0, S_T1)[tmpsel[0]]
    def w_dma(st):
        kind, t, sub, buf = stages[st]; slot = st % 4
        ops = []
        if kind == "q":
            for i in range(6):
                tm = tmp()
                sal = [f"s_add_u32 s{tm}, s{S_BQ}, {(sub * 96 + 4 * i) * 8192}", f"s_add_u32 m0, s{S_W6K}, {WSLOT[slot] + i*1024}"]
                ops.append((sal, (f"buffer_load_dwordx4 v{V_WQ}, s[{S_WQ}:{S_WQ+3}], s{tm} offen{NTQ} lds", f"W{st}")))
            return annotate(ops)
        for reg in range(2):
            for i in range(3):
                base, srdn = (S_BH if kind == "h" else S_BF), (S_WG, S_WU)[reg]
                imm = (sub * 192 + 16 * i) * 9216 + t * 64
                tm = tmp()
                sal = [f"s_add_u32 s{tm}, s{base}, {imm}", f"s_add_u32 m0, s{S_W3K}, {WSLOT[slot] + reg*12288 + i*1024}"]
                ops.append((sal, (f"buffer_load_dwordx4 v{V_WF}, s[{srdn}:{srdn+3}], s{tm} offen{NTW} lds", f"W{st}")))
        return annotate(ops)
    def x_loads(k0, k1):
        ops = []
        for ks in range(k0, k1):
            for mt in range(4):
                ops.append(([f"s_add_u32 s{S_RD}, s{S_XB}, {ks*4096}"] if mt == 0 else [],
                            (f"buffer_load_dwordx4 {xreg(ks, mt)}, v{V_L16}, s[{S_WS}:{S_WS+3}], s{S_RD} offen offset:{mt*1024} sc1", f"X{ks//3}")))
        return annotate(ops)
    def kv_dma(which, tile_slot, soff, add):
        ops = []
        for t in range(4):
            tm = tmp()
            base = (0 if which == "K" else 65536) + tile_slot * 16384 + t * 4096
            srdn = S_K if which == "K" else S_V
            if soff is None: sal = [f"s_mov_b32 s{tm}, {add + t*4096}"]
            else: sal = [f"s_add_u32 s{tm}, s{soff}, {add + t*4096}"]
            sal.append(f"s_add_u32 m0, s{S_W1K}, {base}")
            ops.append((sal, (f"buffer_load_dwordx4 v{V_KD if which == 'K' else V_VD}, s[{srdn}:{srdn+3}], s{tm} offen{NTKV} lds", f"{which}{tile_slot}")))
        return annotate(ops)
    def issue(ops):
        for sal, op in ops:
            for s in reversed(sal): p(s)
            p(op[0], op[1])
    PV_ = os.environ.get('PROV', 'D')
    srd(p, S_WG, 72, 576 * 9216); srd(p, S_WU, 74, 576 * 9216)
    def w3(st):
        for i in range(8):
            tm = tmp()
            p(f"s_add_u32 m0, s{S_RNW}, {WSLOT[st % 4] + i*1024}"); p(f"s_add_u32 s{tm}, s{S_RE}, {(st * 96 + 4 * i) * 8192}")
            p(f"buffer_load_dwordx4 v{V_WQ}, s[{S_WQ}:{S_WQ+3}], s{tm} offen{NTQ} lds", f"W{st}")
    if 'latebad' in ABL:
        srd(p, S_V, 72, 0); p("v_mov_b32 v36, 0"); p(f"s_mov_b32 s{S_RS}, 0")
    p(f"s_cmp_eq_u32 s{S_WAVE}, 0"); p("s_cbranch_scc1 L_w0a")
    p(f"s_sub_u32 s{S_T2}, s{S_WAVE}, 1"); p(f"s_lshl_b32 s{S_RNW}, s{S_T2}, 13"); p(f"s_lshl_b32 s{S_RE}, s{S_T2}, 18"); p(f"s_add_u32 s{S_RE}, s{S_RE}, s{S_T0}")
    w3(0)
    p(f"s_lshr_b32 s{S_T0}, s2, 3"); p(f"s_mul_i32 s{S_T0}, s{S_T0}, 3"); p(f"s_add_u32 s{S_T0}, s{S_T0}, s{S_T2}")
    p(f"s_and_b32 s{S_T1}, s{S_T0}, 1"); p(f"s_cmp_eq_u32 s{S_T1}, 0")
    p(f"s_cselect_b32 s{S_V}, s{S_WG}, s{S_WU}"); p(f"s_cselect_b32 s{S_V+1}, s{S_WG+1}, s{S_WU+1}"); p(f"s_mov_b32 s{S_V+2}, {576*9216}"); p(f"s_mov_b32 s{S_V+3}, 0x20000")
    p(f"s_lshr_b32 s{S_T0}, s{S_T0}, 1"); p(f"s_mul_i32 s{S_RS}, s{S_T0}, {12*9216}")
    p(f"s_lshr_b32 s{S_T2}, s{S_J}, 3"); p(f"s_mul_i32 s{S_T2}, s{S_T2}, 2304"); p(f"s_add_u32 s{S_RS}, s{S_RS}, s{S_T2}")
    p(f"s_sub_u32 s{S_T1}, 384, s{S_V}"); p(f"s_sub_u32 s{S_T1}, s{S_T1}, s{S_T2}"); p(f"s_and_b32 s{S_T1}, s{S_T1}, 1023"); p(f"s_add_u32 s{S_RS}, s{S_RS}, s{S_T1}")
    p("v_min_u32 v36, 35, v17"); p("v_mul_u32_u24 v27, 43, v36"); p("v_lshrrev_b32 v27, 7, v27")
    p(f"v_mul_u32_u24 v27, {9216 - 3072}, v27"); p("v_lshl_add_u32 v36, v36, 10, v27")
    if 'latebad' not in ABL: p(f"buffer_load_dword v164, v36, s[{S_V}:{S_V+3}], s{S_RS} offen", "TCH")
    p.label("L_w0a")
    ppad(0)
    p("v_lshrrev_b32 v26, 3, v17"); p("v_and_b32 v27, 3, v26"); p("v_lshrrev_b32 v26, 2, v26"); p("v_and_b32 v28, 7, v17")
    p("v_lshl_add_u32 v27, v27, 4, v28"); p("v_lshlrev_b32 v27, 4, v27"); p("v_lshl_add_u32 v26, v26, 12, v27")
    p(f"s_lshr_b32 s{S_T0}, s{S_CNT}, 3"); p(f"s_mul_i32 s{S_RD}, s{S_T0}, 73728")
    p(f"s_and_b32 s{S_T1}, s{S_CNT}, 6"); p(f"s_lshl_b32 s{S_T1}, s{S_T1}, 9"); p(f"s_add_u32 s{S_RD}, s{S_RD}, s{S_T1}")
    p(f"s_and_b32 s{S_T1}, s{S_CNT}, 1"); p(f"s_lshl_b32 s{S_T1}, s{S_T1}, 7"); p(f"s_add_u32 s{S_RD}, s{S_RD}, s{S_T1}")
    p(f"s_mov_b32 s{S_FO}, {FLAG_OFF}")
    p(f"s_getreg_b32 s{S_XCC}, hwreg(HW_REG_XCC_ID, 0, 4)"); p(f"s_lshl_b32 s{S_XCC}, s{S_XCC}, 3")
    p(f"s_lshl_b32 s{S_T0}, s{S_T0}, 9"); p(f"s_and_b32 s{S_T1}, s{S_CNT}, 7"); p(f"s_lshl_b32 s{S_T1}, s{S_T1}, 3"); p(f"s_add_u32 s{S_T0}, s{S_T0}, s{S_T1}"); p(f"s_add_u32 s{S_T0}, s{S_T0}, {FX_OFF}")
    p(f"v_mov_b32 v31, s{S_T0}")
    p(f"s_lshl_b32 s{S_T0}, s{S_RB}, 11"); p(f"s_and_b32 s{S_T1}, s{S_J}, 24"); p(f"s_lshl_b32 s{S_T1}, s{S_T1}, 6"); p(f"s_add_u32 s{S_T1}, s{S_T1}, s{S_T0}")
    p(f"v_lshl_add_u32 v{V_TA}, v28, 3, s{S_T1}")
    p(f"s_and_b32 s{S_T2}, s{S_J}, 7"); p(f"s_lshl_b32 s{S_T2}, s{S_T2}, 3"); p(f"s_add_u32 s{S_T1}, s{S_T1}, s{S_T2}")
    p(f"v_writelane_b32 v31, s{S_T1}, 1")
    p(f"s_cmp_eq_u32 s{S_WAVE}, 0"); p(f"s_cselect_b32 s{S_T1}, s{S_T1}, {1 << 30}"); p(f"v_mov_b32 v{V_SA}, s{S_T1}")
    p(f"s_add_u32 s{S_T0}, s{S_T0}, {FX_OFF}"); p(f"v_lshl_add_u32 v30, v28, 3, s{S_T0}"); p("v_and_b32 v27, 24, v17"); p("v_lshl_add_u32 v30, v27, 6, v30")
    p(f"s_lshl_b32 s{S_T0}, s{S_RB}, 2"); p(f"s_add_u32 s{S_T0}, s{S_T0}, s{S_WAVE}")
    p(f"s_mul_i32 s{S_XB}, s{S_T0}, 73728"); p(f"s_lshl_b32 s{S_OBASE}, s{S_T0}, 14")
    if 'finepro' in ABL: stamp(p, 2)
    F = 112
    pr = lambda r: f"v[{r}:{r+1}]"
    p(f"s_mov_b32 s{S_T2}, 0xffff0000")
    for i in range(4): p(f"v_mov_b32 v{140+i}, 0")
    p("v_lshlrev_b32 v25, 7, v19"); p("v_lshl_add_u32 v25, v18, 4, v25")
    p(f"s_cmp_eq_u32 s{S_WAVE}, 0"); p("s_cbranch_scc0 L_w0b")
    nt_ = (2 if 'tlb' in ABL else 0) + (1 if CL != '0' else 0)
    p.raw(f"    s_waitcnt vmcnt({nt_})")
    p.label("L_w0b")
    p(f"s_waitcnt vmcnt({9 + nt_})")
    p(f"buffer_load_dwordx2 v[72:73], v71, s[{S_DBG}:{S_DBG+3}], 0 offen sc1", "EP")
    if 'finepro' in ABL: stamp(p, 3)
    for i in range(12):
        p(f"v_lshlrev_b32 v{F+2*i}, 16, v{LX+i}"); p(f"v_and_b32 v{F+2*i+1}, s{S_T2}, v{LX+i}")
    for i in range(6): p(f"v_pk_add_f32 {pr(144+2*i)}, {pr(F+4*i)}, {pr(F+4*i+2)}")
    for i in range(3): p(f"v_pk_add_f32 {pr(144+4*i)}, {pr(144+4*i)}, {pr(146+4*i)}")
    p(f"v_pk_add_f32 {pr(144)}, {pr(144)}, {pr(148)}")
    p(f"s_mov_b64 exec, s[{S_RET}:{S_RET+1}]")
    p(f"v_pk_add_f32 {pr(140)}, {pr(144)}, {pr(152)}")
    p("s_mov_b64 exec, -1")
    def reduce32(r, t):
        p(f"v_add_f32 v{r}, v{r}, v{r+1}")
        for mod in ("quad_perm:[1,0,3,2]", "quad_perm:[2,3,0,1]", "row_half_mirror", "row_mirror"):
            p(f"v_add_f32_dpp v{r}, v{r}, v{r} {mod} row_mask:0xf bank_mask:0xf")
        p(f"v_mov_b32 v{t}, v{r}"); p(f"v_permlane16_swap_b32 v{r}, v{t}"); p(f"v_add_f32 v{r}, v{r}, v{t}")
    ppad(1)
    reduce32(140, 141)
    p(f"v_mul_f32 v140, {f2u(-1.0/576)}, v140")
    for i in range(12): p(f"v_pk_add_f32 {pr(168+2*i)}, {pr(F+2*i)}, {pr(140)} op_sel_hi:[1,0]")
    p(f"v_cvt_pk_bf16_f32 v140, v140, v140")
    for i in range(2): p(f"v_pk_mul_f32 {pr(144+2*i)}, {pr(168+2*i)}, {pr(168+2*i)}")
    p(f"v_and_b32 v140, s{S_T2}, v140")
    for i in range(2, 12): p(f"v_pk_fma_f32 {pr(144+2*(i%2))}, {pr(168+2*i)}, {pr(168+2*i)}, {pr(144+2*(i%2))}")
    p(f"s_mov_b64 exec, s[{S_RET}:{S_RET+1}]")
    p(f"v_pk_add_f32 {pr(142)}, {pr(144)}, {pr(146)}")
    p("s_mov_b64 exec, -1")
    red = Prog(); p_ = p; p = red
    reduce32(142, 143)
    p(f"v_mul_f32 v142, {f2u(1.0/576)}, v142")
    def rnd(r):
        p(f"v_cvt_pk_bf16_f32 v{r}, v{r}, v{r}"); p(f"v_and_b32 v{r}, s{S_T2}, v{r}")
    rnd(142)
    p(f"v_add_f32 v142, {f2u(1e-5)}, v142"); rnd(142)
    p("v_sqrt_f32 v142, v142"); rnd(142)
    p("v_rcp_f32 v143, v142"); p("v_fma_f32 v144, -v142, v143, 1.0"); p("v_fma_f32 v142, v144, v143, v143")
    p = p_
    oth = [f"v_pk_add_f32 {pr(F+2*i)}, {pr(F+2*i)}, {pr(140)} op_sel_hi:[1,0]" for i in range(12)]
    oth += [f"v_cvt_pk_bf16_f32 v{F+2*i+1}, v{F+2*i}, v{F+2*i+1}" for i in range(12)]
    for i in range(12): oth += [f"v_lshlrev_b32 v{F+2*i}, 16, v{F+2*i+1}", f"v_and_b32 v{F+2*i+1}, s{S_T2}, v{F+2*i+1}"]
    for it in red.items:
        p.items.append(it)
        for t in oth[:2]: p(t)
        oth = oth[2:]
    for t in oth: p(t)
    ppad(2)
    for i in range(12): p(f"v_pk_mul_f32 {pr(F+2*i)}, {pr(F+2*i)}, {pr(142)} op_sel_hi:[1,0]")
    for i in range(12): p(f"v_cvt_pk_bf16_f32 v{LX+i}, v{F+2*i}, v{F+2*i+1}")
    p(f"s_mov_b64 exec, s[{S_RET}:{S_RET+1}]")
    for m in range(3): p(f"ds_write_b128 v25, v[{LX+4*m}:{LX+4*m+3}] offset:{m*24*128}")
    p("s_mov_b64 exec, -1")
    p("s_waitcnt lgkmcnt(0)"); p("s_barrier")
    p(f"s_cmp_lg_u32 s{S_WAVE}, 0"); p("s_cbranch_scc1 L_noxs")
    for m in range(9): p(f"ds_read_b128 v[{LX+4*m}:{LX+4*m+3}], v{V_L16} offset:{m*1024}")
    for m in range(9):
        p(f"s_waitcnt lgkmcnt({8-m})")
        p(f"buffer_store_dwordx4 v[{LX+4*m}:{LX+4*m+3}], v26, s[{S_WS}:{S_WS+3}], s{S_RD} offen sc1", "XS")
        if m < 8: p(f"s_add_u32 s{S_RD}, s{S_RD}, 8192")
    def ep_wait(sfx):
        p(f"s_mov_b32 s{S_SPIN}, 0x40000")
        p.label(f"L_eppoll{sfx}")
        p(f"v_readfirstlane_b32 s{S_EP}, v72"); p(f"v_readfirstlane_b32 s{S_EP2}, v73")
        p(f"s_cmp_lg_u32 s{S_EP}, 0"); p(f"s_cbranch_scc1 L_epok{sfx}")
        p.raw(f"    buffer_load_dwordx2 v[72:73], v71, s[{S_DBG}:{S_DBG+3}], 0 offen sc1")
        p.raw("    s_waitcnt vmcnt(0)")
        p(f"s_sub_u32 s{S_SPIN}, s{S_SPIN}, 1"); p(f"s_cmp_lg_u32 s{S_SPIN}, 0"); p(f"s_cbranch_scc1 L_eppoll{sfx}")
        p.label(f"L_epok{sfx}")
    ppad(3)
    if 'finepro' in ABL: stamp(p, 4)
    p("s_waitcnt vmcnt(0)")
    ep_wait("a")
    p(f"s_add_u32 s{S_T0}, s{S_XCC}, s{S_EP}"); p(f"s_add_u32 s{S_PV}, s{S_EP}, 1")
    p(f"v_add_u32_e64 v32, s{S_T0}, 1"); p("v_mov_b32 v33, v73")
    p(f"buffer_store_dwordx2 v[32:33], v31, s[{S_WS}:{S_WS+3}], s{S_FO} offen sc1")
    if 'wdelay' in ABL: p("s_barrier")
    if 'finepro' in ABL: stamp(p, 5)
    p("s_branch L_xready")
    p.label("L_noxs")
    if 'finepro' in ABL: stamp(p, 4)
    if 'wdelay' in ABL: p("s_barrier")
    w3(1)
    if PV_ == 'D': w3(2)
    HOP = 'nohop' not in ABL
    if HOP:
        p("s_mov_b64 exec, 0")
        p(f"s_cmp_eq_u32 s{S_WAVE}, 1"); p("s_cbranch_scc1 L_pad0")
        p(f"s_cmp_eq_u32 s{S_WAVE}, 2"); p("s_cbranch_scc1 L_pad1")
        p("s_branch L_pad2")
        p.label("L_padend")
        p("s_mov_b64 exec, -1")
    if 'finepro' in ABL: stamp(p, 5)
    if HOP: p("s_branch L_xready")
    p.label("L_xready", 12 if HOP else None)
    p("v_lshrrev_b32 v18, 2, v17"); p("v_and_b32 v19, 3, v17"); p("v_and_b32 v21, 3, v18")
    p(f"s_lshl_b32 s{S_W1K}, s{S_WAVE}, 10")
    p("v_lshl_add_u32 v23, v20, 3, v21"); p("v_lshlrev_b32 v24, 8, v23"); p("v_lshl_add_u32 v24, v19, 4, v24"); p(f"v_add_u32 v24, {40*1024}, v24")
    for sg_ in range(4):
        p(f"v_xor_b32 v25, {sg_}, v21"); p(f"v_lshl_add_u32 v{V_RQ+sg_}, v25, 6, v24"); p(f"v_add_u32 v{V_RQ+4+sg_}, {64*1024}, v{V_RQ+sg_}")
    p("v_lshlrev_b32 v23, 6, v23")
    p("v_and_b32 v24, 1, v20"); p("v_lshlrev_b32 v24, 5, v24")
    p("v_lshl_add_u32 v25, v19, 3, v23")
    p(f"v_add_u32 v{V_RA}, v25, v24"); p(f"v_add_u32 v{V_RA}, {40*1024}, v{V_RA}")
    p(f"v_xor_b32 v{V_RA+1}, 32, v{V_RA}")
    p(f"v_add_u32 v{V_RA+2}, {64*1024}, v{V_RA}"); p(f"v_add_u32 v{V_RA+3}, {64*1024}, v{V_RA+1}")
    p(f"s_and_b32 s{S_T2}, s{S_J}, 1"); p(f"s_lshl_b32 s{S_T0}, s{S_T2}, 5")
    p(f"v_xor_b32 v{V_RH}, s{S_T0}, v{V_RA}"); p(f"v_add_u32 v{V_RH+1}, {64*1024}, v{V_RH}")
    p("v_lshrrev_b32 v23, 5, v17"); p("v_lshlrev_b32 v23, 1, v23"); p("v_xor_b32 v23, v23, v19")
    p(f"v_mul_u32_u24 v24, 9216, v18"); p(f"v_lshl_add_u32 v{V_WF}, v23, 4, v24")
    p(f"v_mov_b32 v{V_C1}, {f2u(GC1)}"); p(f"v_mov_b32 v{V_C2}, {f2u(GC2)}")
    p(f"s_mul_i32 s{S_W3K}, s{S_WAVE}, 3072")
    p(f"s_mul_i32 s{S_BH}, s{S_WAVE}, {48*9216}")
    p(f"s_mul_i32 s{S_RS}, s{S_J}, 288"); p(f"s_add_u32 s{S_RS}, s{S_RS}, s{S_T0}")
    p(f"s_add_u32 s{S_BF}, s{S_BH}, s{S_RS}")
    p(f"s_lshr_b32 s{S_T0}, s{S_J}, 1"); p(f"s_lshl_b32 s{S_T0}, s{S_T0}, 19")
    for d, b in ((S_K, 64), (S_V, 66)):
        p(f"s_add_u32 s{d}, s{b}, s{S_T0}"); p(f"s_addc_u32 s{d+1}, s{b+1}, 0"); p(f"s_mov_b32 s{d+2}, 524288"); p(f"s_mov_b32 s{d+3}, 0x20000")
    p(f"s_lshr_b32 s{S_T0}, s{S_J}, 1"); p(f"s_mul_i32 s{S_KOFF}, s{S_T0}, 576"); p(f"s_add_u32 s{S_KOFF}, s{S_KOFF}, 256")
    p(f"s_add_u32 s{S_BH}, s{S_BH}, s{S_KOFF}")
    def hoff(dst, colreg, add):
        p(f"s_lshr_b32 s{S_T0}, s{colreg}, 6"); p(f"s_add_u32 s{S_T0}, s{S_T0}, {add}")
        p(f"s_lshr_b32 s{S_T1}, s{S_T0}, 2"); p(f"s_lshl_b32 s{S_T1}, s{S_T1}, 19")
        p(f"s_and_b32 s{S_T0}, s{S_T0}, 3"); p(f"s_lshl_b32 s{S_T0}, s{S_T0}, 10")
        p(f"s_add_u32 s{dst}, s{S_T0}, s{S_T1}"); p(f"s_add_u32 s{dst}, s{dst}, s{S_OBASE}")
    hoff(S_HHALF, S_KOFF, 0); p(f"s_lshl_b32 s{S_T0}, s{S_T2}, 3"); p(f"s_add_u32 s{S_HHALF}, s{S_HHALF}, s{S_T0}")
    for t in range(4): hoff(S_HF + t, S_RS, t)
    p(f"s_lshl_b32 s{S_T0}, s{S_J}, 19"); p(f"s_add_u32 s{S_OBASE}, s{S_OBASE}, s{S_T0}")
    p(f"s_mov_b32 s{S_THR}, {f2u(THRESH)}")
    p(f"s_lshl_b32 s{S_T0}, s{S_WAVE}, 2"); p(f"v_add_u32 v23, s{S_T0}, v20")
    p(f"v_xor_b32 v24, v22, v23"); p(f"v_lshlrev_b32 v24, 4, v24"); p(f"v_lshl_add_u32 v{V_KD}, v23, 8, v24")
    p(f"v_and_b32 v24, 7, v23"); p(f"v_lshlrev_b32 v24, 1, v24"); p(f"v_xor_b32 v24, v22, v24"); p(f"v_lshlrev_b32 v24, 4, v24"); p(f"v_lshl_add_u32 v{V_VD}, v23, 8, v24")
    for ks in range(2, 4):
        p(f"v_add_u32 v23, {4*ks}, v20"); p("v_xor_b32 v23, v23, v22"); p("v_lshlrev_b32 v23, 4, v23"); p(f"v_lshl_add_u32 v{V_KA+ks}, v22, 8, v23")
    p("v_and_b32 v24, 7, v18"); p("v_lshlrev_b32 v25, 8, v18"); p("v_lshl_add_u32 v25, v19, 3, v25"); p("v_add_u32 v25, 0x10000, v25")
    for dt in range(8):
        p(f"v_xor_b32 v23, {dt}, v24"); p(f"v_lshl_add_u32 v{V_VA+dt}, v23, 5, v25")
    p(f"s_lshl_b32 s{S_T0}, s{S_WAVE}, 14"); p(f"s_cmp_eq_u32 s{S_WAVE}, 2"); p(f"s_cselect_b32 s{S_T0}, 0x10000, s{S_T0}")
    p(f"s_add_u32 s{S_T1}, s{S_T0}, 8192"); p(f"s_cmp_eq_u32 s{S_WAVE}, 3"); p(f"s_cselect_b32 s{S_T0}, 0x8000, s{S_T0}"); p(f"s_cselect_b32 s{S_T1}, {152*1024}, s{S_T1}")
    p(f"v_add_u32 v{V_QP}, s{S_T0}, v{V_L16}"); p(f"v_add_u32 v{V_QP+1}, s{S_T1}, v{V_L16}")
    p(f"s_cmp_lg_u32 s{S_WAVE}, 0"); p("s_cbranch_scc1 L_xgo")
    p(f"s_mov_b32 s{S_SPIN}, 0x40000")
    p.label("L_xpoll")
    p.raw(f"    buffer_load_dwordx2 v[34:35], v30, s[{S_WS}:{S_WS+3}], s{S_FO} offen sc1")
    p.raw("    s_waitcnt vmcnt(0)")
    for t in flag_test(34): p(t)
    p("v_cmp_le_u32 vcc, 7, v34")
    p("s_cbranch_vccz L_xgo")
    p(f"s_sub_u32 s{S_SPIN}, s{S_SPIN}, 1"); p(f"s_cmp_lg_u32 s{S_SPIN}, 0"); p("s_cbranch_scc1 L_xpoll")
    p.label("L_xgo")
    p("s_barrier")
    if 'finepro' in ABL: stamp(p, 6)
    issue(x_loads(0, 3))

    groups = []
    for st in range(NST):
        kind, t, sub, buf = stages[st]
        if kind == "q":
            for nt in range(8): groups.append((st, nt, 0))
        else:
            nts = [0, 2] if kind == "h" else [0, 1, 2, 3]
            if os.environ.get("P1MAJ", "nt") == "nt":
                for n_, nt in enumerate(nts):
                    for c0 in ((0, 3) if n_ % 2 == 0 else (3, 0)): groups.append((st, nt, c0))
            else:
                for c0 in (0, 3):
                    for nt in nts: groups.append((st, nt, c0))
    def a_reads(gi):
        st, nt, c0 = groups[gi]; kind, t, sub, buf = stages[st]
        hb, off = wbase(st % 4)
        out = []
        for c in range(3):
            for tt in range(2):
                d = V_AF + (gi % 3) * 12 + c * 4 + 2 * tt
                if kind == "q":
                    addr = V_RQ + 4 * hb + (nt >> 1); o = off + c * 8192 + tt * 1024 + 8 * (nt & 1)
                else:
                    addr = (V_RA + 2 * hb + (nt & 1)) if kind == "f" else (V_RH + hb)
                    o = off + (nt >> 1) * 12288 + (c0 + c) * 2048 + tt * 256
                out.append((f"ds_read_b64_tr_b16 v[{d}:{d+1}], v{addr} offset:{o}", f"A{gi%3}"))
        return out
    acc = lambda buf, nt, mt: V_ACC + buf * 64 + (nt * 4 + mt) * 4
    gaps = []; gstart = []; seen1 = set()
    for gi, (st, nt, c0) in enumerate(groups):
        gstart.append(len(gaps))
        kind, t, sub, buf = stages[st]
        seen = set()
        for mt, c in order2(4, 3, OP1[0], OP1[1] == "1" and gi % 2):
            if True:
                a = acc(buf, nt, mt); af = V_AF + (gi % 3) * 12 + c * 4
                ks = (sub * 3 if kind == "q" else sub * 6 + c0) + c
                C = "0" if (sub == 0 and (st, nt, mt) not in seen1) else f"v[{a}:{a+3}]"; seen1.add((st, nt, mt))
                gaps.append(Gap(f"v_mfma_f32_16x16x32_bf16 v[{a}:{a+3}], v[{af}:{af+3}], {xreg(ks, mt)}, {C}"))
    NG = len(groups)
    first_of_stage = {}
    for gi, (st, nt, c0) in enumerate(groups): first_of_stage.setdefault(st, gi)
    bar_gap = {}
    for gi in range(2, NG):
        st = groups[gi][0]; f = first_of_stage[st]
        rd = a_reads(gi)
        if gi == f:
            g0 = gstart[gi - 1]; bar_gap[st] = g0 - 1
            for n, r in enumerate(rd): gaps[g0 + n].mem.append(r)
        elif gi == f + 1:
            g0 = gstart[gi - 2]
            for n, r in enumerate(rd): gaps[g0 + 6 + n].mem.append(r)
        else:
            g0 = gstart[gi - 2]
            for n, r in enumerate(rd): gaps[g0 + 2 * n].mem.append(r)
    for gi in range(1, NG):
        g = gaps[gstart[gi] - 1]
        st, nt, c0 = groups[gi]
        vm = []
        if st < 6 and nt == 0: vm.append(f"X{st}")
        nxt = groups[gi + 1][0] if gi + 1 < NG else None
        if nxt is not None and nxt != st:
            g.sh.append(WaitFor(vm=vm + [f"W{nxt}"], lg0=True)); g.sh.append("s_barrier")
        else:
            g.sh.append(WaitFor(lg=(f"A{gi%3}",), vm=vm))
    def place_mem(gaps, ops, g0, g1, dense=False, want=0):
        pitch = max(1.0, (g1 - g0 - 8) / len(ops)) if not dense else 1.0
        last = g0
        for n, (sal, op) in enumerate(ops):
            g = max(last + 1 + len(sal), int(g0 + 2 + n * pitch))
            while True:
                assert g < g1, (g0, g1, n, len(ops))
                ok = (len(gaps[g].mem) <= 1 if dense else len(gaps[g].mem) == want) and all(len(gaps[g - len(sal) + i].sh) == 0 for i in range(len(sal)))
                if ok: break
                g += 1
            for i, s in enumerate(sal): gaps[g - len(sal) + i].sh.append(s)
            gaps[g].mem.append(op); last = g
    for st in range(NST):
        g0 = gstart[first_of_stage[st]]
        g1 = bar_gap[st + 1] if st + 1 < NST else len(gaps)
        ops = []
        XL_ = os.environ.get('XL', '0') == '1'
        if st == 0: ops = (x_loads(3, 9) if XL_ else x_loads(6, 9) + w_dma(3))
        elif st == 1: ops = (w_dma(3) if XL_ else []) + x_loads(9, 12) + w_dma(4)
        elif st == 2: ops = x_loads(12, 15) + w_dma(5)
        elif st == 3: ops = x_loads(15, 18) + w_dma(6)
        elif st + 3 < NST: ops = w_dma(st + 3)
        if st == 4: ops = [([], (f"buffer_load_dwordx2 v[74:75], v{V_TA}, s[{S_WS}:{S_WS+3}], s{S_FO} offen sc1", "GX"))] + ops
        if st == 18: ops += kv_dma("V", VS(0), None, 0)
        if st == 19: ops += kv_dma("K", KS(0), None, 0)
        if st == 20: ops += kv_dma("K", KS(1), None, 16384) + kv_dma("V", VS(1), None, 16384) + kv_dma("K", KS(2), None, 32768)
        if ops: place_mem(gaps, ops, g0 - (2 if st == 0 else 0), (g0 + 66 if (st == 0 and XL_) else g1) if st < 20 else g0 + 60)
        if st == 19:
            cand = [g for g in range(g0 + 3, g1 - 2) if not gaps[g].mem][::2]
            assert len(cand) >= 16
            for f, g in enumerate(cand[:16]):
                gaps[g].mem.append((f"ds_read_b128 a[{A_Q+4*f}:{A_Q+4*f+3}], v{V_QP + f//8} offset:{(f%8)*1024}", "QR"))
    def ffn_epi(st0, pk=False, mts=(0, 1, 2, 3)):
        kind, t, sub, buf = stages[st0]
        q = []
        for mt in mts:
            if kind == "f": el = [(acc(buf, n, mt) + r, acc(buf, 2 + n, mt) + r) for n in range(2) for r in range(4)]
            else: el = [(acc(buf, 0, mt) + r, acc(buf, 2, mt) + r) for r in range(4)]
            T = V_T + 8 * (mt % 2)
            if pk:
                pr = lambda r: f"v[{r}:{r+1}]"
                ev = list(enumerate(el))[::2]
                for e, (g, u) in ev: q.append(f"v_pk_mul_f32 {pr(T+e)}, {pr(g)}, {pr(g)}")
                for e, (g, u) in ev: q.append(f"v_pk_fma_f32 {pr(T+e)}, {pr(T+e)}, {pr(V_C1)}, {pr(V_C1)} op_sel:[0,1,0] op_sel_hi:[1,1,0]")
                for e, (g, u) in ev: q.append(f"v_pk_mul_f32 {pr(T+e)}, {pr(T+e)}, {pr(g)}")
                for e, (g, u) in enumerate(el): q.append(f"v_exp_f32 v{T+e}, v{T+e}")
                for e, (g, u) in ev: q.append(f"v_pk_mul_f32 {pr(g)}, {pr(g)}, {pr(u)}")
                for e, (g, u) in ev: q.append(f"v_pk_add_f32 {pr(T+e)}, {pr(T+e)}, 1.0 op_sel_hi:[1,0]")
                for e, (g, u) in enumerate(el): q.append(f"v_rcp_f32 v{T+e}, v{T+e}")
                for e, (g, u) in ev: q.append(f"v_pk_mul_f32 {pr(g)}, {pr(g)}, {pr(T+e)}")
            else:
                for e, (g, u) in enumerate(el): q.append(f"v_mul_f32 v{T+e}, v{g}, v{g}")
                for e, (g, u) in enumerate(el): q.append(f"v_fma_f32 v{T+e}, v{T+e}, v{V_C2}, v{V_C1}")
                for e, (g, u) in enumerate(el): q.append(f"v_mul_f32 v{T+e}, v{T+e}, v{g}")
                for e, (g, u) in enumerate(el):
                    q.append(f"v_exp_f32 v{T+e}, v{T+e}"); q.append(f"v_mul_f32 v{g}, v{g}, v{u}")
                for e, (g, u) in enumerate(el): q.append(f"v_add_f32 v{T+e}, 1.0, v{T+e}")
                for e, (g, u) in enumerate(el): q.append(f"v_rcp_f32 v{T+e}, v{T+e}")
                for e, (g, u) in enumerate(el): q.append(f"v_mul_f32 v{g}, v{g}, v{T+e}")
            o = V_HO + 4 * (mt % 2)
            for i in range(len(el) // 2): q.append(f"v_cvt_pk_bf16_f32 v{o+i}, v{el[2*i][0]}, v{el[2*i+1][0]}")
            if kind == "f":
                q.append(("MEM", [f"s_add_u32 s{S_T2}, s{S_HF+t}, {H_OFF + mt*4096}"], (f"buffer_store_dwordx4 v[{o}:{o+3}], v{V_L16}, s[{S_WS}:{S_WS+3}], s{S_T2} offen{SCH}", None)))
            else:
                q.append(("MEM", [f"s_add_u32 s{S_T2}, s{S_HHALF}, {H_OFF + mt*4096}"], (f"buffer_store_dwordx2 v[{o}:{o+1}], v{V_L16}, s[{S_WS}:{S_WS+3}], s{S_T2} offen{SCH}", None)))
        return q
    def q_epi(seg):
        q = []
        for mt in range(4):
            rs = [acc(0, 2 * seg, mt) + r for r in range(4)] + [acc(0, 2 * seg + 1, mt) + r for r in range(4)]
            o = V_T + 4 * ((seg * 4 + mt) % 4)
            for r in rs: q.append(f"v_mul_f32 v{r}, {f2u(QSCALE)}, v{r}")
            for i in range(4): q.append(f"v_cvt_pk_bf16_f32 v{o+i}, v{rs[2*i]}, v{rs[2*i+1]}")
            f = mt * 4 + seg
            q.append(("MEM", [], (f"ds_write_b128 v{V_QP + f//8}, v[{o}:{o+3}] offset:{(f%8)*1024}", None)))
        return q
    sg = lambda st: gstart[first_of_stage[st]]
    gaps[bar_gap[20] - 11].post += [f"s_load_dwordx2 s[64:65], s[0:1], {ARG['wo']}", f"s_load_dwordx2 s[66:67], s[0:1], {ARG['wd']}",
                                    f"s_load_dwordx2 s[{S_OUT}:{S_OUT+1}], s[0:1], {ARG['out']}"]
    g_ = gaps[sg(8) + 1]
    g_.post += [WaitFor(vm=("GX",)), f"v_subrev_u32 v74, s{S_XCC}, v74", f"v_xor_b32 v75, s{S_EP2}, v75", "v_min_u32 v75, 1, v75", "v_lshl_or_b32 v74, v75, 8, v74", "v_cmp_le_u32 vcc, 8, v74", "s_nop 1",
                "s_cmp_lg_u64 vcc, 0", f"s_cselect_b32 s{S_MIX}, 1, {1 if 'forcemix' in ABL else 0}"]
    f5 = first_of_stage[5]
    q = []; mins = []
    for seg in range(4):
        e_ = q_epi(seg); q += e_; mins += [gstart[f5 + 2 * seg + 2] + 3] * len(e_)
    left = fill_valu(gaps[:sg(9) - 3], gstart[f5 + 2] + 3, q, mins=mins); assert not left, len(left)
    for seg, lim_ in ((0, sg(6) - 3), (1, sg(6) + 9)):
        cv_ = [x for x in q_epi(seg) if isinstance(x, str)]
        lastg = max(gi for gi, g in enumerate(gaps) for x in g.valu if x in cv_ and gi < sg(9))
        assert lastg < lim_, (seg, lastg, lim_)
    for st0 in (6, 9, 12, 15):
        end = sg(st0 + 6) - 3 if st0 + 6 < NST else len(gaps)
        left = fill_valu(gaps[:end], sg(st0 + 3) + 3, ffn_epi(st0)); assert not left, (st0, len(left))
    left = fill_valu(gaps, sg(19), [f"v_xor_b32 v{V_KA}, 128, v{V_KA+2}", f"v_xor_b32 v{V_KA+1}, 128, v{V_KA+3}"]); assert not left
    if not XL_: issue(x_loads(3, 6))
    p.items.append(WaitFor(vm=("X0",)))
    p("s_barrier")
    for t, tag in a_reads(0) + a_reads(1): p(t, tag)
    ep_wait("b")
    p(f"s_add_u32 s{S_XCC}, s{S_XCC}, s{S_EP}")
    p.items.append(WaitFor(lg=("A0",)))
    stamp(p, 1)
    if 'finepro' in ABL:
        gaps[sg(1) - 1].post += stamp_ops(7); gaps[sg(2) - 1].post += stamp_ops(8); gaps[sg(3) - 1].post += stamp_ops(9)
    elif 'fine1' in ABL:
        for st in range(6, 21): gaps[sg(st) - 1].post += stamp_ops(st - 4)
    else:
        gaps[sg(6) - 1].post += stamp_ops(2); gaps[sg(12) - 1].post += stamp_ops(3)
    emit_gaps(p, gaps)
    if 'fine1' in ABL:
        stamp(p, 17); globals()['ABL'] += ',finepro'
    if 'finepro' not in ABL: stamp(p, 4)

    Sreg = lambda par, kt, qt: V_S + (1 - par) * 64 + (kt * 4 + qt) * 4
    Preg = lambda par, kb, qt: (V_P0 + par * 16 + qt * 4) if kb == 0 else (V_P1 + qt * 4)
    Kf = lambda kt, ks: A_KF + (kt % 2) * 16 + ks * 4
    Vf = lambda dt, kb: A_VF + (dt % 4) * 8 + kb * 4
    def k_reads(slot, kt):
        return [(f"ds_read_b128 a[{Kf(kt,ks)}:{Kf(kt,ks)+3}], v{V_KA+ks} offset:{slot*16384 + kt*4096}", f"KF{kt%2}") for ks in range(4)]
    def v_reads(slot, dt):
        return [(f"ds_read_b64_tr_b16 a[{Vf(dt,kb)+2*t}:{Vf(dt,kb)+2*t+1}], v{V_VA+dt} offset:{slot*16384 + kb*8192 + t*4096}", f"VF{dt%4}") for kb in range(2) for t in range(2)]
    def qk_list(par, zero=False):
        out = []
        for kt in range(4):
            seen = set()
            for qt, ks in order2(4, 4, OQK[0], OQK[1] == "1" and kt % 2):
                s = Sreg(par, kt, qt)
                C = f"v[{s}:{s+3}]" if qt in seen else ("0" if zero else f"v[{V_NM+4*qt}:{V_NM+4*qt+3}]"); seen.add(qt)
                qf = A_Q + (qt * 4 + ks) * 4
                out.append(f"v_mfma_f32_16x16x32_bf16 v[{s}:{s+3}], a[{Kf(kt,ks)}:{Kf(kt,ks)+3}], a[{qf}:{qf+3}], {C}")
        return out
    def pv_mfma(par, dt, qt, kb):
        o = A_O + (dt * 4 + qt) * 4; pr = Preg(par, kb, qt)
        return f"v_mfma_f32_16x16x32_bf16 a[{o}:{o+3}], a[{Vf(dt,kb)}:{Vf(dt,kb)+3}], v[{pr}:{pr+3}], a[{o}:{o+3}]"
    def l_mfma(par, qt, kb):
        pr = Preg(par, kb, qt)
        return f"v_mfma_f32_16x16x32_bf16 v[{V_LD}:{V_LD+3}], v[{V_ONE}:{V_ONE+3}], v[{pr}:{pr+3}], " + ("0" if kb == 0 else f"v[{V_LD}:{V_LD+3}]")
    def elem(par, tau):
        kb = tau // 32; r = tau % 32; qt = 2 * (r // 16) + ((r % 4) >> 1); j = 2 * ((r % 16) // 4) + (r & 1)
        return Sreg(par, 2 * kb + (j >> 2), qt) + (j & 3), kb, qt, j
    def op_exp(par, tau): return f"v_exp_f32 v{V_E + tau % 8}, v{elem(par, tau)[0]}"
    def op_add(par, tau):
        s, kb, qt, j = elem(par, tau); assert qt % 2 == 1
        src = V_LS + (1 - par) * 4 + qt if (kb == 0 and j == 0) else V_LS + par * 4 + qt
        return f"v_add_f32 v{V_LS + par*4 + qt}, v{src}, v{V_E + tau % 8}"
    def op_ladd(par, qt): return f"v_add_f32 v{V_LS + par*4 + qt}, v{V_LS + (1-par)*4 + qt}, v{V_LD}"
    def op_cvt(par, tau):
        s, kb, qt, j = elem(par, tau); assert tau % 2 == 1
        return f"v_cvt_pk_bf16_f32 v{Preg(par, kb, qt) + j//2}, v{V_E + (tau-1) % 8}, v{V_E + tau % 8}"
    def rowmax(p, par, qt, dst):
        regs = [Sreg(par, kt, qt) + r for kt in range(4) for r in range(4)]
        p(f"v_max3_f32 v{dst}, v{regs[0]}, v{regs[1]}, v{regs[2]}")
        for i in range(3, 15, 2): p(f"v_max3_f32 v{dst}, v{dst}, v{regs[i]}, v{regs[i+1]}")
        p(f"v_max_f32 v{dst}, v{dst}, v{regs[15]}")
    def xlane_ops(op, dsts, t1):
        o = []
        for sw in ("v_permlane32_swap_b32", "v_permlane16_swap_b32"):
            for q, d in enumerate(dsts): o.append(f"v_mov_b32 v{t1+q}, v{d}")
            for q, d in enumerate(dsts): o.append(f"{sw} v{d}, v{t1+q}")
            for q, d in enumerate(dsts): o.append(f"{op} v{d}, v{d}, v{t1+q}")
        return o

    p.items.append(WaitFor(vm=(f"K{KS(0)}",), lg0=True)); p("s_barrier")
    for t, tag in k_reads(KS(0), 0) + k_reads(KS(0), 1): p(t, tag)
    g0 = [Gap(m) for m in qk_list(0, zero=True)]
    for n, r in enumerate(k_reads(KS(0), 2)): g0[16 + 2 * n].mem.append(r)
    for n, r in enumerate(k_reads(KS(0), 3)): g0[32 + 2 * n].mem.append(r)
    g0[31].sh.append(WaitFor(lg=("KF0",))); g0[47].sh.append(WaitFor(lg=("KF1",)))
    place_mem(g0, kv_dma("K", KS(3), None, 3 * 16384) + kv_dma("V", VS(2), None, 2 * 16384), 0, 40)
    full = ffn_epi(18); per = len(full) // 4
    npre = 24
    if 'finea' in ABL: stamp(p, 0)
    emit_ops(p, full[:npre])
    left = fill_valu(g0, 0, full[npre:2 * per])
    left += ffn_epi(18, pk=True, mts=(2, 3))
    p.items.append(WaitFor(lg=("KF0", "KF1")))
    sal = [f"s_mov_b32 s{S_OUT+2}, {XN_BYTES}",
           f"s_and_b32 s{S_T0}, s{S_J}, 7", f"s_lshl_b32 s{S_T1}, s{S_RB}, 3", f"s_add_u32 s{S_T0}, s{S_T0}, s{S_T1}",
           f"s_lshl_b32 s{S_T0}, s{S_T0}, 2", f"s_add_u32 s{S_T0}, s{S_T0}, s{S_WAVE}", f"s_lshr_b32 s{S_KOFF}, s{S_J}, 3",
           f"s_sub_u32 s{S_T1}, s{S_T0}, 120", f"s_cmp_lt_u32 s{S_T0}, 120",
           f"s_cselect_b32 s{S_RE}, s{S_T0}, s{S_T1}", f"s_movk_i32 s{S_RNW}, 136", f"s_cselect_b32 s{S_RNW}, 120, s{S_RNW}",
           f"s_cselect_b32 s{S_WG}, s64, s66", f"s_cselect_b32 s{S_WG+1}, s65, s67",
           f"s_mov_b32 s{S_WG+2}, {1152*1152}", f"s_cselect_b32 s{S_WG+2}, {1024*1152}, s{S_WG+2}", f"s_mov_b32 s{S_WU+2}, s{S_WG+2}",
           f"s_mov_b32 s{S_T0}, {WPD_OFF}", f"s_cselect_b32 s{S_T0}, {WPO_OFF}, s{S_T0}",
           f"s_mul_i32 s{S_T1}, s{S_KOFF}, s{S_WG+2}",
           f"s_add_u32 s{S_WG}, s{S_WG}, s{S_T1}", f"s_addc_u32 s{S_WG+1}, s{S_WG+1}, 0",
           f"s_add_u32 s{S_T0}, s{S_T0}, s{S_T1}", f"s_add_u32 s{S_WU}, s70, s{S_T0}", f"s_addc_u32 s{S_WU+1}, s71, 0",
           f"s_sub_u32 s{S_RE}, s{S_RE}, s{S_RNW}",
           f"s_mov_b32 s{S_KOFF}, {4*16384}", f"s_mov_b32 s{S_VOFF}, {3*16384}", f"s_mov_b32 s{S_CNT}, 7",
           f"s_lshl_b32 s{S_BQ}, s{S_WAVE}, 11", f"s_add_u32 s{S_BQ}, s{S_BQ}, {128*1024}"]
    fr_ = [g for g in g0[41:] if not g.sh]
    k_ = sal.index(f"s_cmp_lt_u32 s{S_T0}, 120")
    for t, g in zip(sal[:k_], fr_): g.sh.append(t)
    emit_gaps(p, g0)
    emit_ops(p, left)
    for t in sal[k_:]: p(t)
    for q in range(4): p(f"v_mov_b32 v{V_LS+4+q}, 0")
    if 'fullone' in ABL:
        for q in range(4): p(f"v_mov_b32 v{V_ONE+q}, 0x3f803f80")
    else:
        p(f"v_and_b32 v{V_ONE}, 48, v{V_L16}"); p(f"v_min_u32 v{V_ONE}, 1, v{V_ONE}"); p(f"v_add_u32 v{V_ONE}, -1, v{V_ONE}"); p(f"v_and_b32 v{V_ONE}, 0x3f803f80, v{V_ONE}")
        for q in range(1, 4): p(f"v_mov_b32 v{V_ONE+q}, v{V_ONE}")
    p.items.append(WaitFor(vm=(f"K{KS(1)}", f"V{VS(0)}"))); p("s_barrier")
    for t, tag in k_reads(KS(1), 0) + k_reads(KS(1), 1): p(t, tag)
    p(f"v_lshrrev_b32 v{V_PT+1}, 4, v{V_L16}")
    p(f"v_lshrrev_b32 v{V_RPG}, 2, v{V_PT+1}"); p(f"v_and_b32 v{V_PT}, 3, v{V_PT+1}")
    p(f"v_lshlrev_b32 v{V_RPL}, 6, v{V_RPG}"); p(f"v_lshl_add_u32 v{V_RPL}, v{V_PT}, 3, v{V_RPL}"); p(f"v_add_u32 v{V_RPL}, s{S_BQ}, v{V_RPL}")
    p(f"v_mul_u32_u24 v{V_RPG}, 1152, v{V_RPG}"); p(f"v_lshl_add_u32 v{V_RPG}, v{V_PT}, 4, v{V_RPG}")
    p(f"s_and_b32 s{S_T1}, s{S_J}, 24"); p(f"s_lshl_b32 s{S_T1}, s{S_T1}, 6"); p(f"v_and_b32 v{V_PT}, 7, v{V_PT+1}")
    p(f"v_lshrrev_b32 v{V_PA}, 3, v{V_PT+1}"); p(f"v_lshlrev_b32 v{V_PA}, 11, v{V_PA}"); p(f"v_lshl_add_u32 v{V_PA}, v{V_PT}, 3, v{V_PA}")
    p(f"v_add_u32 v{V_PA}, s{S_T1}, v{V_PA}")
    p(f"v_mov_b32 v{V_SV+1}, s{S_EP2}")
    zm = [f"v_mfma_f32_32x32x16_bf16 a[{A_O+16*i}:{A_O+16*i+15}], v[{V_LS+4}:{V_LS+7}], v[{V_LS+4}:{V_LS+7}], 0" for i in range(8)]
    for qt in range(4):
        p(zm[qt]); rowmax(p, 0, qt, V_R + qt)
    for n, t in enumerate(xlane_ops("v_max_f32", [V_R + q for q in range(4)], V_R + 4)):
        if n % 8 == 0: p(zm[4 + n // 8])
        p(t)
    p(zm[7])
    for qt in range(4):
        for r in range(4): p(f"v_sub_f32 v{V_NM+4*qt+r}, {f2u(-BIAS) if BIAS else 0}, v{V_R+qt}")
    for kt in range(4):
        for qt in range(4):
            for r in (0, 2):
                s_ = Sreg(0, kt, qt) + r
                p(f"v_pk_add_f32 v[{s_}:{s_+1}], v[{s_}:{s_+1}], v[{V_NM+4*qt}:{V_NM+4*qt+1}]")
    for tau in range(36):
        p(op_exp(0, tau))
        if tau % 4 == 0 and tau: p(op_add(0, tau - 1)); p(op_cvt(0, tau - 1))
        if tau % 4 == 2: p(op_cvt(0, tau - 1))
        if tau % 4 == 3: p(op_add(0, tau - 1))
    p.items.append(WaitFor(lg=("KF0",)))
    p(op_add(0, 35))
    if 'finepro' not in ABL: stamp(p, 5); stamp_rt(p, 15)

    rare_sites = []
    class Tile: pass
    def used(g): return len(g.mem) + sum(slots_of(v) for v in g.valu)
    def att_tile(it, last_block=False, first_mfmas=None):
        par = it % 2
        final = last_block and it == 3
        T = Tile(); G = []; Q = []; PV = []; LG = []
        mf = first_mfmas or qk_list(1 - par)
        for i, m in enumerate(mf):
            g = Gap(m); G.append(g); Q.append(g)
            if i in (19, 23, 51, 55):
                g = Gap(l_mfma(par, 0 if i < 32 else 2, 0 if i in (19, 51) else 1)); G.append(g); LG.append(g)
        for dt in range(8):
            od = order2(4, 2, OPV[0], OPV[1] == "1" and dt % 2 == 0)
            if OPV[0] == "k": od = [(q_, 1 - k_) for q_, k_ in od]
            for qt, kb in od:
                g = Gap(pv_mfma(par, dt, qt, kb)); G.append(g); PV.append(g)
                if dt == 7 and qt == 0 and kb == 1: assert len(PV) <= 59
        T.G, T.Q, T.PV, T.LG = G, Q, PV, LG
        idx = {id(g): i for i, g in enumerate(G)}
        T.idx = lambda g: idx[id(g)]
        br = Q[-1]
        for b in range(64):
            E, N = (Q[2*b], Q[2*b+1]) if b < 32 else (PV[2*b-64], PV[2*b-63])
            sp, tau = (par, 36 + b) if b < 28 else (1 - par, b - 28)
            if tau % 4 == 0:
                if not (final and b > 28): N.valu.append(op_cvt(sp, tau - 1) if b != 28 else op_cvt(par, 63))
            if final and b >= 28: continue
            E.valu.append(op_exp(sp, tau))
            if tau % 4 == 1: N.valu.append(op_cvt(sp, tau))
            if tau % 4 >= 2: (br if b in (30, 31) else N).valu.append(op_add(sp, tau))
        L = V_LS + par * 4
        site = f"{'z' if last_block else 'l'}{it}"; rare_sites.append((site, "Z" if final else str(par)))
        Q[29].valu.append(op_ladd(par, 0))
        Q[57].valu.append(f"v_max3_f32 v{V_CK}, v{L}, v{L+1}, v{L+3}")
        Q[59].valu.append(op_ladd(par, 2))
        Q[61].valu += [f"v_max_f32 v{V_CK}, v{V_CK}, v{L+2}", f"v_cmp_lt_f32 vcc, s{S_THR}, v{V_CK}"]
        br.sh += [f"s_cbranch_vccnz L_rare_stub{site}", Label(f"L_rare_ret{site}")]
        PV[1].sh.append("s_barrier"); T.wv = []
        T.reserved = {id(PV[0]), id(PV[1])}
        if 'barE' in ABL and not final:
            PV[3].valu = PV[1].valu + PV[3].valu; PV[1].valu = []; T.reserved.add(id(PV[3]))
        kslot1, kslot2, vslot = KS(it + 1), KS(it + 2), VS(it)
        if not final:
            Q[15].sh.append(WaitFor(lg=("KF1",))); Q[31].sh.append(WaitFor(lg=("KF0",))); Q[47].sh.append(WaitFor(lg=("KF1",)))
        Q[-2].sh.append(WaitFor(lg=("VF0", "VF1", "VF2", "VF3")))
        for dt in range(4, 8): PV[8 * dt - 1].sh.append(WaitFor(lg=(f"VF{dt%4}",)))
        T.cur = 0; T.lastdma = -1
        def put(op, lo=None, sal=(), cap=2):
            g = max(T.cur, T.idx(lo) if lo is not None else 0)
            while True:
                assert g < len(G), op
                ok = not G[g].mem and used(G[g]) < cap and id(G[g]) not in T.reserved
                if ok and sal:
                    fr = [h for h in range(max(T.lastdma + (0 if len(sal) == 2 else 1), g - 6, 0), g) if not G[h].sh and id(G[h]) not in T.reserved]
                    ok = len(fr) >= len(sal)
                if ok: break
                g += 1
            if sal:
                for h, s_ in zip(fr[-len(sal):], sal): G[h].sh.append(s_)
                T.lastdma = g
            G[g].mem.append(op); T.cur = g + 1
            return g
        T.put = put
        def solo(g, sal, op, nxt=None):
            gi = T.idx(g)
            assert not g.mem
            if g.valu:
                assert not nxt.mem; nxt.valu = g.valu + nxt.valu; g.valu = []; T.reserved.add(id(nxt))
            fr = [h for h in range(gi - 3, gi) if not G[h].sh]
            assert len(fr) >= len(sal), (gi, sal)
            for h, s_ in zip(fr[-len(sal):], sal): G[h].sh.append(s_)
            g.mem.append(op); T.lastdma = max(T.lastdma, gi)
        T.solo = solo
        T.endsal = []
        if not final:
            if not (last_block and it >= 2):
                sal_, op = kv_dma("V", VS(it + 2), S_VOFF, -16384)[3]; solo(LG[0], sal_, op)
            if not last_block:
                dk = kv_dma("K", KS(it), S_KOFF, 0)
                solo(LG[1], *dk[0]); solo(Q[41], *dk[1], nxt=Q[43]); solo(LG[2], *dk[2]); solo(LG[3], *dk[3])
                T.endsal.append(f"s_add_u32 s{S_KOFF}, s{S_KOFF}, 16384")
            for r in v_reads(vslot, 0) + v_reads(vslot, 1): put(r)
            for r in k_reads(kslot1, 2): put(r, Q[16])
            v23 = v_reads(vslot, 2) + v_reads(vslot, 3)
            for r in v23[:3]: put(r)
            for r in k_reads(kslot1, 3): put(r, Q[32])
            for r in v23[3:]: put(r)
            assert T.cur <= T.idx(Q[55]), (it, T.cur)
        if not (last_block and it >= 1):
            dv = kv_dma("V", VS(it + 3), S_VOFF, 0)
            solo(PV[5], *dv[0], nxt=PV[7]); solo(PV[57], *dv[1], nxt=PV[59]); solo(PV[61], *dv[2], nxt=PV[63])
        T.cur = T.idx(PV[2])
        T.pv_v = [(r, PV[8 * (dt - 4) + 8]) for dt in range(4, 8) for r in v_reads(vslot, dt)]
        if not (last_block and it >= 2):
            for r, lo in T.pv_v: put(r, lo)
            for r in k_reads(kslot2, 0) + k_reads(kslot2, 1): put(r)
            T.wv.append(f"K{kslot2}")
            T.endsal += [WaitFor(lg=("KF0",)), f"s_add_u32 s{S_VOFF}, s{S_VOFF}, 16384"]
        if not last_block and it == 0:
            sl = [f"s_add_u32 s{S_RE}, s{S_RE}, s{S_RNW}", f"s_mul_i32 s{S_RS}, s{S_RE}, 3641", f"s_lshr_b32 s{S_RS}, s{S_RS}, 16",
                  f"s_mul_i32 s{S_RS}, s{S_RS}, {36864-1152}", f"s_lshl_b32 s{S_RD}, s{S_RE}, 6", f"s_add_u32 s{S_RS}, s{S_RS}, s{S_RD}",
                  f"s_lshl_b32 s{S_RD}, s{S_RE}, 11"]
            for n, s_ in enumerate(sl): Q[2 * n].sh.append(s_)
            Q[58].sh.append(f"s_mov_b32 m0, s{S_BQ}")
            Q[59].mem.append((f"buffer_load_dwordx4 v{V_RPG}, s[{S_WG}:{S_WG+3}], s{S_RS} offen lds", "RD"))
            Q[60].sh.append(f"s_add_u32 s{S_RS}, s{S_RS}, {16*1152-1024}")
            PV[3].mem.append((f"buffer_load_dwordx4 v{V_RPG}, s[{S_WG}:{S_WG+3}], s{S_RS} offen offset:1024 lds", "RD"))
        if not last_block and it == 2:
            PV[3].mem.append((f"ds_read_b64_tr_b16 v[{V_RPS}:{V_RPS+1}], v{V_RPL} offset:0", "RL"))
            PV[7].mem.append((f"ds_read_b64_tr_b16 v[{V_RPS+2}:{V_RPS+3}], v{V_RPL} offset:1024", "RL"))
        if not last_block and it == 3:
            Q[55].mem.append((f"ds_read_b64_tr_b16 v[{V_RPS+4}:{V_RPS+5}], v{V_RPL} offset:32", "RL"))
            Q[57].mem.append((f"ds_read_b64_tr_b16 v[{V_RPS+6}:{V_RPS+7}], v{V_RPL} offset:1056", "RL"))
        if not final: T.wv.append(f"V{VS(it+1)}")
        if not last_block:
            if it == 2: T.wv.append("RD")
            if it == 1:
                T.wv.append("RST")
                PV[10].sh.append(f"s_cmp_le_u32 s{S_CNT}, 2"); PV[11].sh.append(f"s_cselect_b32 s{S_SIG}, 2, 1")
                PV[12].sh.append(f"s_add_u32 s{S_SIG}, s{S_SIG}, s{S_XCC}"); PV[13].valu.append(f"v_mov_b32 v{V_SV}, s{S_SIG}")
                PV[16].sh.append(f"s_cmp_lg_u32 s{S_MIX}, 0"); PV[17].sh += ["s_cbranch_scc1 L_stub_w2", Label("L_ret_w2")]
                PV[20].mem.append((sig_store, None))
            if it == 3:
                PV[3].mem.append((f"buffer_store_dwordx4 v[{V_RPS}:{V_RPS+3}], v{V_L16}, s[{S_WU}:{S_WU+3}], s{S_RD} offen sc1", "RST"))
                PV[12].sh.append(WaitFor(lg=("RL",)))
                PV[14].mem.append((f"buffer_store_dwordx4 v[{V_RPS+4}:{V_RPS+7}], v{V_L16}, s[{S_WU}:{S_WU+3}], s{S_RD} offen offset:1024 sc1", "RST"))
        return T
    def finish_tile(T):
        if T.wv: T.PV[0].sh.append(WaitFor(vm=tuple(T.wv)))
        for s_ in T.endsal:
            if isinstance(s_, WaitFor):
                g = [g for g in T.PV[57:] if not g.sh][0]; g.sh.append(s_)
            else:
                c = [g for g in T.G[T.lastdma:] if not g.sh]
                (c[0].sh if c else T.G[-1].post).append(s_)
        ov = sum(max(0, used(g) - 2) + max(0, len([x for x in g.sh if not isinstance(x, Label)]) - 1) for g in T.G)
        print("tile overflow slots:", ov, "gaps", len(T.G))

    body = Prog(); p = body
    p.label("L_att_loop", 6)
    for it in range(4):
        T = att_tile(it)
        if it == 3: T.PV[40].sh.append(f"s_sub_u32 s{S_CNT}, s{S_CNT}, 1")
        finish_tile(T)
        if it == 3: T.G[-1].post += [f"s_cmp_lg_u32 s{S_CNT}, 0", "s_cbranch_scc1 L_att_loop"]
        for g in T.G:
            if 'Lnodma' in ABL: g.mem = [m for m in g.mem if not m[0].startswith("buffer")]
            if 'Lnobar' in ABL: g.sh = [x for x in g.sh if x != "s_barrier"]
            if 'Lnolds' in ABL: g.mem = [m for m in g.mem if not m[0].startswith("ds_")]
            if 'Lnotr' in ABL: g.mem = [m for m in g.mem if not m[0].startswith("ds_read_b64")]
            if 'Lnobr' in ABL: g.sh = [x for x in g.sh if not (isinstance(x, str) and x.startswith("s_cbranch"))]
            if 'Lnovalu' in ABL: g.valu = [x for x in g.valu if x.startswith(("v_exp", "v_add_u32"))]
            if 'Lnoexp' in ABL: g.valu = [x for x in g.valu if not x.startswith("v_exp")]
            if 'Lnowait' in ABL: g.sh = [x for x in g.sh if not (isinstance(x, WaitFor) and x.lg)]
        emit_gaps(p, T.G)

    tail = Prog(); p = tail
    p(f"s_getpc_b64 s[{S_WG}:{S_WG+1}]")
    p.label("L_pc1")
    p(f"s_and_b32 s{S_WG+1}, s{S_WG+1}, 0xffff"); p(f"s_mov_b32 s{S_WG+2}, L_code_end-L_pc1")
    p(f"s_lshr_b32 s{S_T0}, s2, 3"); p(f"s_lshl_b32 s{S_T0}, s{S_T0}, 2"); p(f"s_add_u32 s{S_T0}, s{S_T0}, s{S_WAVE}"); p(f"s_lshl_b32 s{S_T0}, s{S_T0}, 10")
    p(f"buffer_load_dwordx4 v[{V_RPS}:{V_RPS+3}], v{V_L16}, s[{S_WG}:{S_WG+3}], s{S_T0} offen", "CODE")
    p(f"v_lshrrev_b32 v{V_LANE}, 4, v{V_L16}")
    if 'finepro' not in ABL: stamp(p, 6)
    NP3 = 17
    Breg = lambda s, ks, mt: ((s % 3) * 4 + ks) * 8 + mt * 4
    def p3_w(s):
        off = (WPD_OFF + s * 4 * 36864) if s < 9 else (WPO_OFF + (s - 9) * 4 * 36864)
        base = S_PW if s < 9 else S_PW2
        ops = []
        for i in range(9):
            sal = []
            if i % 4 == 0:
                tm = tmp()
                m0 = f"s_add_u32 m0, s{S_W0B}, {i*1024}" if s == 0 else f"s_add_u32 m0, s{S_W9K}, {P3_SLOT[(s-1)%3] + i*1024}"
                sal = [f"s_add_u32 s{tm}, s{base}, {off + i*1024}", m0]
            ops.append((sal, (f"buffer_load_dwordx4 v{V_L16}, s[{S_WS}:{S_WS+3}], s{tm} offen offset:{(i%4)*1024}{LSC} lds", f"PW{s}")))
        return annotate(ops)
    def p3_b(s):
        off = (H_OFF + s * 524288) if s < 9 else (O_OFF + (s - 9) * 524288)
        base = S_PB0 if s < 9 else S_PB1
        ops = []
        for mt in range(2):
            for ks in range(4):
                r = Breg(s, ks, mt)
                ops.append(([f"s_add_u32 s{S_T2}, s{base}, {off + mt*4096}"] if ks == 0 else [],
                            (f"buffer_load_dwordx4 a[{r}:{r+3}], v{V_L16}, s[{S_WS}:{S_WS+3}], s{S_T2} offen offset:{ks*1024}{LSC}", f"PB{s}")))
        return annotate(ops)
    setup3 = [f"s_lshr_b32 s{S_KOFF}, s{S_J}, 3", f"s_and_b32 s{S_RE}, s{S_J}, 3", f"s_mul_i32 s{S_W9K}, s{S_WAVE}, 9216",
              f"s_mul_i32 s{S_PW2}, s{S_WAVE}, 36864", f"s_mul_i32 s{S_RNW}, s{S_RE}, 9216", f"s_add_u32 s{S_PW2}, s{S_PW2}, s{S_RNW}",
              f"s_mul_i32 s{S_PW}, s{S_KOFF}, {1152*1152}", f"s_add_u32 s{S_PW}, s{S_PW}, s{S_PW2}",
              f"s_mul_i32 s{S_RNW}, s{S_KOFF}, {1024*1152}", f"s_add_u32 s{S_PW2}, s{S_PW2}, s{S_RNW}",
              f"s_lshl_b32 s{S_PST}, s{S_RB}, 3", f"s_and_b32 s{S_RNW}, s{S_J}, 7", f"s_add_u32 s{S_PST}, s{S_PST}, s{S_RNW}",
              f"s_lshr_b32 s{S_FX0}, s{S_PST}, 2",
              f"s_lshl_b32 s{S_PB1}, s{S_FX0}, 2", f"s_add_u32 s{S_PB1}, s{S_PB1}, s{S_WAVE}", f"s_lshl_b32 s{S_PB1}, s{S_PB1}, 13",
              f"s_mul_i32 s{S_PB0}, s{S_KOFF}, {9*524288}", f"s_add_u32 s{S_PB0}, s{S_PB0}, s{S_PB1}",
              f"s_lshl_b32 s{S_RNW}, s{S_KOFF}, 22", f"s_add_u32 s{S_PB1}, s{S_PB1}, s{S_RNW}",
              f"s_mul_i32 s{S_PST}, s{S_PST}, {16*9216}",
              f"s_mul_i32 s{S_FL}, s{S_KOFF}, 9216", f"s_add_u32 s{S_FL}, s{S_FL}, s{S_PST}",
              f"s_mul_i32 s{S_CNT}, s{S_KOFF}, {4*9216}", f"s_add_u32 s{S_PST}, s{S_PST}, s{S_CNT}", f"s_add_u32 s{S_PST}, s{S_PST}, s{S_W9K}",
              f"s_lshl_b32 s{S_FX0}, s{S_FX0}, 2", f"s_add_u32 s{S_FX0}, s{S_FX0}, s{S_KOFF}", f"s_mul_i32 s{S_FX0}, s{S_FX0}, {32*1152}",
              f"s_mul_i32 s{S_CNT}, s{S_RE}, 288", f"s_add_u32 s{S_FX0}, s{S_FX0}, s{S_CNT}", f"s_min_u32 s{S_FX1}, s{S_WAVE}, 1", f"s_lshl_b32 s{S_FX1}, s{S_FX1}, 30",
              f"s_add_u32 s{S_CNT}, s{S_KOFF}, 1", f"s_and_b32 s{S_CNT}, s{S_CNT}, 3", f"s_mul_i32 s{S_FR}, s{S_CNT}, {4*9216}", f"s_add_u32 s{S_FR}, s{S_FR}, s{S_FL}",
              f"s_add_u32 s{S_CNT}, s{S_KOFF}, 2", f"s_and_b32 s{S_CNT}, s{S_CNT}, 3", f"s_mul_i32 s{S_FR+1}, s{S_CNT}, {4*9216}", f"s_add_u32 s{S_FR+1}, s{S_FR+1}, s{S_FL}",
              f"s_add_u32 s{S_CNT}, s{S_KOFF}, 3", f"s_and_b32 s{S_CNT}, s{S_CNT}, 3", f"s_mul_i32 s{S_FR+2}, s{S_CNT}, {4*9216}", f"s_add_u32 s{S_FR+2}, s{S_FR+2}, s{S_FL}",
              f"s_add_u32 s{S_CNT}, s{S_WAVE}, 1", f"s_lshr_b32 s{S_CNT}, s{S_CNT}, 2", f"s_mul_i32 s{S_CNT}, s{S_CNT}, {80*1024+27648}",
              f"s_add_u32 s{S_W0B}, s{S_W9K}, {128*1024}", f"s_sub_u32 s{S_W0B}, s{S_W0B}, s{S_CNT}"]
    pg = []
    for s in range(NP3):
        if os.environ.get("P3MAJ", "nt") == "nt": order = [(kp if nt % 2 == 0 else 1 - kp, nt) for nt in range(9) for kp in range(2)]
        elif s in (8, 16): order = [(kp, nt) for nt in range(9) for kp in range(2)]
        else: order = [(kp, nt) for kp in range(2) for nt in range(9)]
        for kp, nt in order: pg.append((s, kp, nt))
    def p3_reads(gi):
        s, kp, nt = pg[gi]; base = P3_AR[gi % 4]
        out = []
        for q in range(2):
            ks = 2 * kp + q
            if s == 0: va, o = (V_PWA[2], 12 * 1024 + (ks * 9 + nt) * 1024) if ks < 3 else (V_PWA[0], 48 * 1024 + nt * 1024)
            else: va, o = V_PWA[(s - 1) % 3], (ks * 9 + nt) * 1024
            out.append((f"ds_read_b128 v[{base+4*q}:{base+4*q+3}], v{va} offset:{o}", f"PA{gi%4}"))
        return out
    pm = []; seen3 = set()
    for gi, (s, kp, nt) in enumerate(pg):
        seen = set()
        for mt, q in order2(2, 2, OP3[0], OP3[1] == "1" and gi % 2):
            if True:
                a = (AD if s < 9 else AS)(nt, mt); b = Breg(s, 2 * kp + q, mt); ar = P3_AR[gi % 4] + 4 * q
                C = "0" if (s in (0, 9) and (s, nt, mt) not in seen3) else f"v[{a}:{a+3}]"; seen3.add((s, nt, mt))
                pm.append(f"v_mfma_f32_16x16x32_bf16 v[{a}:{a+3}], v[{ar}:{ar+3}], a[{b}:{b+3}], {C}")
    TL = [att_tile(it, last_block=True, first_mfmas=(pm[:72] if it == 3 else None)) for it in range(4)]
    T28, T29, T30, T31 = TL
    T28.cur = T28.idx(T28.Q[50]); T28.put(poll_load("PL"))
    cv, cs = poll_check(2, "p2")
    T28.PV[40].sh.append(WaitFor(vm=("PL",))); T28.PV[41].sh += cs[:1]; T28.PV[42].post += cv; T28.PV[44].sh += cs[1:]
    free = [g for g in T28.G[:T28.idx(T28.PV[54])] if not g.sh and id(g) not in T28.reserved]
    assert len(free) >= len(setup3), len(free)
    for s_, g in zip(setup3, free): g.sh.append(s_)
    L2T = os.environ.get("L2T", "")
    if L2T:
        V_TH, V_TD = 3, V_SV
        p(f"v_min_u32 v{V_TH}, 15, v{V_LANE}"); p(f"v_lshlrev_b32 v{V_TH}, 7, v{V_TH}")
        for t in [f"s_and_b32 s13, s{S_J}, 7", f"s_lshl_b32 s13, s13, 2", f"s_add_u32 s13, s13, s{S_WAVE}", f"s_lshl_b32 s13, s13, 11",
                  f"s_lshl_b32 s14, s{S_RB}, 16", f"s_add_u32 s13, s13, s14", f"s_lshr_b32 s14, s{S_J}, 3", f"s_mul_i32 s15, s14, {9*524288}", f"s_add_u32 s13, s13, s15",
                  f"s_lshr_b32 s15, s2, 3", f"s_lshl_b32 s15, s15, 2", f"s_add_u32 s15, s15, s{S_WAVE}", f"s_lshl_b32 s15, s15, 11",
                  f"s_mul_i32 s14, s14, {1152*1152}", f"s_add_u32 s14, s14, s15"]: p(t)
        tl = []
        for x in L2T.split(","):
            if x[0] == "h": tl.append((13, H_OFF + int(x[1:]) * 524288))
            else: tl.append((14, WPD_OFF + int(x[1:]) * 262144))
        slots_ = [(T, g) for T in (T28, T29, T30) for g in (T.Q[8], T.Q[40], T.PV[10], T.PV[42])]
        for (T, g0_), (base, off) in zip(slots_, tl):
            T.cur = 0; ld_ = T.lastdma; T.lastdma = T.idx(g0_) - 4
            T.put((f"buffer_load_dword v{V_TD}, v{V_TH}, s[{S_WS}:{S_WS+3}], s77 offen sc1", "TCH"), g0_, sal=[f"s_add_u32 s77, s{base}, {off}"], cap=3)
            T.lastdma = ld_
    for n in range(4): T28.Q[45 + 2 * n].valu.append(f"v_mov_b32 v{V_RPS+4+n}, -1")
    ploc = [(T28, T28.PV[20]), (T28, T28.PV[50]), (T29, T29.Q[8]), (T29, T29.Q[36]), (T29, T29.PV[16]), (T29, T29.PV[40]), (T30, T30.Q[4]), (T30, T30.Q[28]), (T30, T30.Q[52])]
    for nt, (T, g_) in enumerate(ploc):
        ld_ = T.lastdma; T.cur = 0; T.lastdma = T.idx(g_) - 4
        T.put((f"buffer_store_dwordx4 v[{V_RPS+4}:{V_RPS+7}], v{V_L16}, s[{S_WS}:{S_WS+3}], s{S_SIG} offen sc1", "DST"), g_,
              sal=[f"s_add_u32 s{S_SIG}, s{S_PST}, {PART_OFF + PSTRIDE + nt*1024}"], cap=3)
        T.lastdma = ld_
    assert T28.idx(free[len(setup3) - 1]) < T28.idx(T28.PV[14])
    T29.cur = T29.idx(T29.Q[50]); T29.lastdma = max(T29.lastdma, T29.idx(T29.Q[50]))
    for sal_, op in p3_w(0): T29.put(op, sal=sal_); T29.lastdma = T29.cur - 1
    T30.wv.append("PW0")
    mix = p3_b(0) + p3_w(1)
    T30.Q[49].valu.append(f"v_add_u32 v{V_PWA[1]}, {P3_SLOT[1]}, v{V_L16}"); T30.Q[51].valu.append(f"v_add_u32 v{V_PWA[2]}, {P3_SLOT[2]}, v{V_L16}")
    T30.cur = T30.idx(T30.PV[2])
    for r, lo in T30.pv_v: T30.put(r, lo)
    T30.cur = T30.idx(T30.PV[52])
    for r in p3_reads(0) + p3_reads(1) + p3_reads(2): T30.put(r)
    T30.cur = T30.idx(T30.PV[2]); T30.lastdma = T30.cur
    for n, (sal_, op) in enumerate(mix):
        T30.put(op, T30.PV[2 + 3 * n], sal=sal_, cap=3); T30.lastdma = T30.cur - 1
    T30.G[-1].post.append(WaitFor(lg=("PA0",), vm=("PB0",)))
    T31.wv.append("PW1")
    Q = T31.Q
    for gi in range(1, 18): Q[4 * gi - 1].sh.insert(0, WaitFor(lg=(f"PA{gi%4}",)))
    for gi in range(3, 18):
        for n, r in enumerate(p3_reads(gi)): Q[4 * (gi - 3) + 1 + 2 * n].mem.append(r)
    T31.cur = 0
    vr = [r for dt in range(4) for r in v_reads(VS(3), dt)]
    for n, r in enumerate(vr): T31.put(r, Q[4 * n], cap=3)
    T31.cur = 0; T31.lastdma = 0
    for n, (sal_, op) in enumerate(p3_b(1) + p3_b(2)):
        T31.put(op, Q[4 * n + 2], sal=sal_, cap=3); T31.lastdma = T31.cur - 1
    T31.cur = T31.idx(T31.PV[2])
    for r, lo in T31.pv_v: T31.put(r, lo); T31.cur += 1
    T31.cur = T31.idx(T31.PV[50])
    for r in p3_reads(18) + p3_reads(19) + p3_reads(20): T31.put(r); T31.cur += 1
    T31.cur = T31.idx(T31.PV[2]); T31.lastdma = T31.cur
    EARLY3 = os.environ.get("EARLY3", "")
    for sal_, op in p3_w(2) + (p3_w(3) if "w" in EARLY3 else []) + (p3_b(3) if "b" in EARLY3 else []):
        T31.put(op, sal=sal_); T31.lastdma = T31.cur - 1
    T31.PV[63].sh.append(WaitFor(lg=(f"PA{18%4}",), vm=("PB1",)))
    P = [None] * 72 + [Gap(m) for m in pm[72:]]
    for gi in range(21, len(pg)):
        i = gi % 18
        rd = p3_reads(gi)
        if i == 0: g0_ = 4 * (gi - 2); pos = (g0_, g0_ + 1)
        elif i == 1: g0_ = 4 * (gi - 3); pos = (g0_ + 2, g0_ + 3)
        else: g0_ = 4 * (gi - 3); pos = (g0_, g0_ + 2)
        for g_, r in zip(pos, rd): P[g_].mem.append(r)
    barw = {}
    for gi in range(19, len(pg)):
        s = pg[gi][0]; g = P[4 * gi - 1]
        if gi % 18 == 16 and s + 1 < NP3:
            barw[s] = WaitFor(vm=[f"PW{s+1}", f"PB{s+1}"], lg0=True)
            P[4 * gi - 2].sh.append(barw[s]); g.sh.append("s_barrier")
        else: g.sh.append(WaitFor(lg=(f"PA{gi%4}",)))
    def after_barrier(s): return 72 * s + 64
    OSIG = int(os.environ.get("OSIG", "4")); DSIG = int(os.environ.get("DSIG", "13")); OCAP = int(os.environ.get("OCAP", "3"))
    barw[OSIG].vm = tuple(barw[OSIG].vm) + ("OST",)
    P[after_barrier(OSIG) - 6].valu.append(sig_val(3)); P[after_barrier(OSIG) + 5].mem.append((sig_store, None))
    P[after_barrier(OSIG) + 1].sh.append(f"s_cmp_lg_u32 s{S_MIX}, 0"); P[after_barrier(OSIG) + 2].sh += ["s_cbranch_scc1 L_stub_w3", Label("L_ret_w3")]
    barw[DSIG].vm = tuple(barw[DSIG].vm) + ("DST",)
    P[after_barrier(DSIG) - 6].valu.append(sig_val(4)); P[after_barrier(DSIG) + 5].mem.append((sig_store, None))
    P[72*5+1].sh.append(f"s_lshl_b32 s{S_CNT}, s{S_RB}, 11"); P[72*5+2].sh.append(f"s_lshl_b32 s{S_RE}, s{S_KOFF}, 9"); P[72*5+4].sh.append(f"s_add_u32 s{S_RE}, s{S_RE}, s{S_CNT}")
    P[72*5+5].valu += [f"v_and_b32 v{V_PA}, 7, v{V_LANE}", f"v_lshl_add_u32 v{V_PA}, v{V_PA}, 3, s{S_RE}"]
    P[72*6+69].mem.append(poll_load("PL"))
    P[72*7+28].sh.append(WaitFor(vm=("PL",)))
    cv, cs = poll_check(3, "p3")
    P[72*7+29].valu += cv; P[72*7+29].sh += cs[:1]; P[72*7+30].post += cs[1:]
    PQ = DSIG + 1
    P[72*PQ+49].mem.append(poll_load("PL"))
    P[72*(PQ+1)+12].sh.append(WaitFor(vm=("PL",)))
    cv, cs = poll_check(4, "p4")
    P[72*(PQ+1)+13].valu += cv; P[72*(PQ+1)+13].sh += cs[:1]; P[72*(PQ+1)+13].post += cs[1:]
    HINT = int(os.environ.get("HINT", "1"))
    P[72*16 + HINT - 4].valu.append(sig_val(5)); P[72*16 + HINT].mem.append((sig_store, None))
    FD, GG, FXR, TT = 160, 208, 56, 16
    def fin_loads(kind, dst, tag):
        ops = []
        for m in range(3):
            for sp in range(3):
                tm = tmp()
                ops.append(([f"s_add_u32 s{tm}, s{S_FR+sp}, {PART_OFF + kind*PSTRIDE}"],
                            (f"buffer_load_dwordx4 v[{dst+(m*4+sp)*4}:{dst+(m*4+sp)*4+3}], v{V_FL+m}, s[{S_WS}:{S_WS+3}], s{tm} offen sc1", tag)))
        return annotate(ops)
    own_reads = lambda kind, dst, tag: [(f"ds_read_b128 v[{dst+(m*4+3)*4}:{dst+(m*4+3)*4+3}], v{V_OWR} offset:{kind*9216 + m*4096}", tag) for m in range(3)]
    xq = []
    for m in range(3):
        r = V_XO + m
        xq += [f"v_lshl_add_u32 v{r}, s{S_WAVE}, 6, v{V_LANE}"] + ([f"v_add_u32 v{r}, {256*m}, v{r}"] if m else [])
        xq += [f"v_mul_u32_u24 v71, 3641, v{r}", f"v_lshrrev_b32 v71, 16, v71", f"v_mul_u32_u24 v71, {1152-288}, v71", f"v_lshl_add_u32 v{r}, v{r}, 4, v71"]
        if m == 2: xq += [f"v_add_u32 v{r}, s{S_FX1}, v{r}"]
        xq.append(("MEM", [], (f"buffer_load_dwordx4 v[{FXR+4*m}:{FXR+4*m+3}], v{r}, s[{S_XI}:{S_XI+3}], s{S_FX0} offen", "FX")))
    for s in range(1, NP3):
        ops = []
        if s + 2 < NP3:
            w, b = p3_w(s + 2), p3_b(s + 2)
            if s == 7:
                place_mem(P, w, 72 * s, 72 * s + 28); place_mem(P, b, 72 * s + 30, 72 * s + 63); continue
            if s == 1:
                if "w" in EARLY3: w = []
                if "b" in EARLY3: b = []
            ops = w[:4] + b[:4] + w[4:8] + b[4:] + w[8:]
        if s == PQ + 1:
            assert s == 15
            place_mem(P, fin_loads(0, FD, "FD") + [([], r) for r in own_reads(0, FD, "FO")], 72 * s + 14, 72 * s + 63); continue
        if ops: place_mem(P, ops, 72 * s - int(os.environ.get('P3E', '0')), 72 * s + int(os.environ.get('P3W', '63')))
    allg = T31.PV + P[72:]
    OT = 96
    def o_item(n, qt, s):
        T = OT + (n % 4) * 8; D = OT + 32 + (n % 4) * 4
        q = []
        for h in range(2):
            o = A_O + ((2 * s + h) * 4 + qt) * 4
            for r in range(4): q.append(f"v_accvgpr_read_b32 v{T+4*h+r}, a{o+r}")
        for i in range(8): q.append(f"v_mul_f32 v{T+i}, v{T+i}, v{V_LS+4+qt}")
        for i in range(4): q.append(f"v_cvt_pk_bf16_f32 v{D+i}, v{T+2*i}, v{T+2*i+1}")
        q.append(("MEM", [f"s_add_u32 s{S_SIG}, s{S_OBASE}, {O_OFF + qt*4096}"], (f"buffer_store_dwordx4 v[{D}:{D+3}], v{V_L16}, s[{S_WS}:{S_WS+3}], s{S_SIG} offen offset:{s*1024}{SCO}", "OST")))
        return q
    pre = xlane_ops("v_add_f32", [V_LS + 5, V_LS + 7], OT + 48) + [f"v_rcp_f32 v{V_LS+4+qt}, v{V_LS+4+qt}" for qt in range(4)]
    n = 0; lim = 64 + after_barrier(OSIG - 1) - 72 + 30
    pre += xq
    q = list(pre); mins = [2] * len(pre)
    for s in range(4):
        for qt in range(4):
            it_ = o_item(n, qt, s); n += 1
            q += it_; mins += [16 * (s + 1) + 4] * len(it_)
    left = fill_valu(allg[:lim], 2, q, mins=mins, cap=OCAP); assert not left, len(left)
    fs = [f"v_add_u32 v{V_FL}, s{S_W1K}, v{V_L16}", f"v_add_u32 v{V_FL+1}, 4096, v{V_FL}", f"v_add_u32 v{V_FL+2}, s{S_VOFF}, v{V_FL}",
          f"v_and_b32 v{V_YW}, 15, v{V_LANE}", f"v_mul_u32_u24 v{V_YW}, 288, v{V_YW}", f"v_lshrrev_b32 v{V_YW+1}, 4, v{V_LANE}",
          f"v_lshl_add_u32 v{V_YW}, v{V_YW+1}, 3, v{V_YW}", f"v_lshl_add_u32 v{V_YW}, s{S_WAVE}, 5, v{V_YW}",
          f"v_lshrrev_b32 v{V_YW+1}, 16, s{S_FX1}", f"v_add_u32 v{V_YW+1}, v{V_YW+1}, v{V_YW}"]
    sal6 = [f"s_lshl_b32 s{S_FL}, s{S_RB}, 3", f"s_and_b32 s{S_T2+32}, s{S_J}, 7", f"s_add_u32 s{S_FL}, s{S_FL}, s{S_T2+32}", f"s_lshl_b32 s{S_FL}, s{S_FL}, 9",
            f"s_add_u32 s{S_FL}, s{S_FL}, {F5_OFF}",
            f"s_lshl_b32 s{S_W0B}, s{S_WAVE}, 7", f"s_add_u32 s{S_W0B}, s{S_W0B}, s{S_FL}", f"s_lshl_b32 s{S_W0B+1}, s{S_KOFF}, 3", f"s_add_u32 s{S_W0B}, s{S_W0B}, s{S_W0B+1}",
            f"s_lshl_b32 s{S_W0B+1}, s{S_KOFF}, 7", f"s_add_u32 s{S_FL}, s{S_FL}, s{S_W0B+1}",
            f"s_add_u32 s{S_W0B+1}, s{S_KOFF}, 1",
            [f"s_cmp_eq_u32 s{S_WAVE}, s{S_KOFF}", f"s_cselect_b32 s{S_W0B+2}, {1 << 30}, 0", f"s_cselect_b32 s{S_W0B+3}, 0, {18432}"],
            f"s_add_u32 s{S_PST}, s{S_PST}, s{S_W0B+2}", f"s_add_u32 s{S_W0B+3}, s{S_W0B+3}, {OWN_LDS}",
            [f"s_cmp_eq_u32 s{S_WAVE}, 0", f"s_cselect_b32 s{S_VOFF}, 8192, {1 << 30}"]]
    g_ = 72 * 6
    for x in sal6:
        while P[g_].sh: g_ += 1
        P[g_].sh += x if isinstance(x, list) else [x]
        g_ += 1
    assert g_ < 72 * 6 + 60
    fs += [f"v_add_u32 v{V_OWN}, s{S_W0B+3}, v{V_L16}", f"v_add_u32 v{V_OWR}, {OWN_LDS}, v{V_FL}"]
    left = fill_valu(P[:72 * 8], 72 * 6 + 60, fs); assert not left
    fs2 = [f"v_mov_b32 v{V_SA}, s{S_W0B}", f"v_min_u32 v{V_PA}, 2, v{V_LANE}", f"v_add_u32 v{V_PA}, s{S_W0B+1}, v{V_PA}", f"v_and_b32 v{V_PA}, 3, v{V_PA}",
           f"v_lshl_add_u32 v{V_PA}, v{V_PA}, 3, s{S_FL}"]
    left = fill_valu(P[:72 * 9], 72 * 8, fs2); assert not left
    def part_item(A, nt, kind, tag):
        a = A(nt, 0)
        q = [f"v_cvt_pk_bf16_f32 v{a+i}, v{a+2*i}, v{a+2*i+1}" for i in range(4)]
        q.append(("MEM", [f"s_add_u32 s{S_SIG}, s{S_PST}, {PART_OFF + kind*PSTRIDE + nt*1024}"], (f"buffer_store_dwordx4 v[{a}:{a+3}], v{V_L16}, s[{S_WS}:{S_WS+3}], s{S_SIG} offen sc1", tag)))
        q.append(("MEM", [], (f"ds_write_b128 v{V_OWN}, v[{a}:{a+3}] offset:{kind*9216 + nt*1024}", None)))
        return q
    for nt in range(9):
        left = fill_valu(P[:72 * DSIG], 72 * 8 + 12 + ((72 * (DSIG - 8) - 30) * nt) // 8, part_item(AD, nt, 0, "DST")); assert not left
    sleft = []
    for nt in range(9):
        sleft += fill_valu(P, 72 * 16 + 8 * (nt + 1) + 4, part_item(AS, nt, 1, "SST"))
    gq = []
    def unpack_sum(src, dst, pk=False):
        q = []
        for i in range(4):
            q += [f"v_lshlrev_b32 v{dst+2*i}, 16, v{src+i}", f"v_and_b32 v{dst+2*i+1}, s{S_THR}, v{src+i}"]
        for sp in range(1, 4):
            T = TT + 8 * (sp % 2)
            for i in range(4):
                q += [f"v_lshlrev_b32 v{T+2*i}, 16, v{src+4*sp+i}", f"v_and_b32 v{T+2*i+1}, s{S_THR}, v{src+4*sp+i}"]
            if pk:
                for i in range(0, 8, 2): q.append(f"v_pk_add_f32 v[{dst+i}:{dst+i+1}], v[{dst+i}:{dst+i+1}], v[{T+i}:{T+i+1}]")
            else:
                for i in range(8): q.append(f"v_add_f32 v{dst+i}, v{dst+i}, v{T+i}")
        return q
    P[72*13+1].post.append(f"s_mov_b32 s{S_THR}, 0xffff0000")
    for m in range(3):
        D = GG + 8 * m; T = FD + 16 * m
        gq += unpack_sum(FD + 16 * m, D, pk=True)
        gq += [f"v_mul_f32 v{T+i}, {f2u(-LOG2E)}, v{D+i}" for i in range(8)]
        gq += [f"v_exp_f32 v{T+i}, v{T+i}" for i in range(8)]
        gq += [f"v_add_f32 v{T+i}, 1.0, v{T+i}" for i in range(8)]
        gq += [f"v_rcp_f32 v{T+i}, v{T+i}" for i in range(8)]
        gq += [f"v_pk_mul_f32 v[{D+i}:{D+i+1}], v[{D+i}:{D+i+1}], v[{T+i}:{T+i+1}]" for i in range(0, 8, 2)]
    gleft = gq
    print("phase3 leftovers: s-part", len(sleft), "gate", len(gleft))
    if 'fineprol' in ABL: stamp(p, 1)
    for n_, T in enumerate(TL):
        finish_tile(T)
        if 'fineprol' in ABL:
            T.Q[-1].post += stamp_ops(9 + 2 * n_); T.G[-1].post += stamp_ops(10 + 2 * n_)
        emit_gaps(p, T.G)
    if 'finepro' not in ABL:
        stamp(p, 7); stamp_rt(p, 16)
        for s, k in ((3, 8), (6, 9), (9, 10), (13, 11)): P[72 * s - 1].post += stamp_ops(k)
    if 'finep3' in ABL:
        stamp(p, 0)
        for s in range(1, 17): P[72 * (s + 1) - 1].post = [x for x in P[72 * (s + 1) - 1].post if not (isinstance(x, str) and ("s76" in x or "s[76" in x or x == "s_waitcnt lgkmcnt(0)"))] + stamp_ops(s)
    emit_gaps(p, P[72:])
    if 'finep' not in ABL: stamp(p, 12); stamp_rt(p, 17)
    emit_ops(p, sleft)
    XU = 32
    FS = 96
    def s_loads():
        for sal_, op in fin_loads(1, FS, "FS"):
            for s_ in sal_: p(s_)
            p(op[0], op[1])
    p("s_waitcnt lgkmcnt(0)")
    s_loads()
    p.items.append(WaitFor(vm=("FD",)))
    p("s_barrier")
    for t, tag in own_reads(1, FS, "FO"): p(t, tag)
    emit_ops(p, gleft)
    for i in range(12):
        p(f"v_lshlrev_b32 v{XU+2*i}, 16, v{FXR+i}"); p(f"v_and_b32 v{XU+2*i+1}, s{S_THR}, v{FXR+i}")
    if 'finep' not in ABL: stamp(p, 13)
    p(f"s_mov_b32 s{S_CNT}, 0x40000"); p(f"s_add_u32 s{S_PV}, s{S_EP}, 5")
    p.label("L_dcheck")
    p("s_waitcnt vmcnt(0)")
    q_ = [FS + (m * 4 + sp) * 4 + i for m in range(3) for sp in range(3) for i in range(4)]
    p(f"v_max_u32 v{V_PT}, v{q_[0]}, v{q_[1]}"); p(f"v_max_u32 v{V_PT+1}, v{q_[2]}, v{q_[3]}")
    for i in range(4, 36, 2): p(f"v_max3_u32 v{V_PT+(i//2)%2}, v{V_PT+(i//2)%2}, v{q_[i]}, v{q_[i+1]}")
    p(f"v_max_u32 v{V_PT}, v{V_PT}, v{V_PT+1}")
    p(f"v_cmp_eq_u32 vcc, -1, v{V_PT}")
    p("s_cbranch_vccz L_dready")
    p(f"s_cmp_eq_u32 s{S_CNT}, 0x40000"); p("s_cbranch_scc0 L_dagain")
    p(f"s_call_b64 s[{S_RET}:{S_RET+1}], L_spin0")
    p.label("L_dagain")
    s_loads()
    p(f"s_sub_u32 s{S_CNT}, s{S_CNT}, 1"); p(f"s_cmp_lg_u32 s{S_CNT}, 0"); p("s_cbranch_scc1 L_dcheck")
    p("s_waitcnt vmcnt(0)")
    p.label("L_dready")
    if 'finep' not in ABL: stamp(p, 14)
    p("s_waitcnt lgkmcnt(0)")
    for m in range(3):
        D = FD + 8 * m
        for t in unpack_sum(FS + 16 * m, D, pk=True): p(t)
        for i in range(0, 8, 2): p(f"v_pk_mul_f32 v[{D+i}:{D+i+1}], v[{D+i}:{D+i+1}], v[{GG+8*m+i}:{GG+8*m+i+1}]")
        for i in range(4): p(f"v_cvt_pk_bf16_f32 v{D+i}, v{D+2*i}, v{D+2*i+1}")
        for mt in range(2): p(f"ds_write_b64 v{V_YW + (1 if m == 2 else 0)}, v[{D+2*mt}:{D+2*mt+1}] offset:{m*128 + mt*4608}")
    p("s_waitcnt lgkmcnt(0)"); p("s_barrier")
    for m in range(3): p(f"ds_read_b128 v[{128+4*m}:{131+4*m}], v{V_FL} offset:{m*4096}")
    for m in range(3):
        p(f"s_waitcnt lgkmcnt({2-m})")
        D = 96 + 8 * m; T = XU + 8 * m
        for i in range(4):
            p(f"v_lshlrev_b32 v{D+2*i}, 16, v{128+4*m+i}"); p(f"v_and_b32 v{D+2*i+1}, s{S_THR}, v{128+4*m+i}")
        for i in range(0, 8, 2): p(f"v_pk_add_f32 v[{D+i}:{D+i+1}], v[{D+i}:{D+i+1}], v[{T+i}:{T+i+1}]")
        for i in range(4): p(f"v_cvt_pk_bf16_f32 v{D+i}, v{D+2*i}, v{D+2*i+1}")
        p(f"buffer_store_dwordx4 v[{D}:{D+3}], v{V_XO+m}, s[{S_OUT}:{S_OUT+3}], s{S_FX0} offen")
    p(f"s_lshl_b32 s{S_T0}, s2, 12"); p("v_mov_b32 v4, 0"); p("v_mov_b32 v5, 0")
    p(f"buffer_store_dwordx2 v[4:5], v4, s[{S_DBG}:{S_DBG+3}], s{S_T0} offen sc1")
    if STAMP: p("s_waitcnt vmcnt(0)")
    stamp(p, 19); stamp_rt(p, 21)
    if 'dbgout' in ABL:
        p(f"s_cmp_eq_u32 s2, 250"); p(f"s_cselect_b32 s76, 36, 0x1000"); p("s_cmp_eq_u32 s2, 1"); p("s_cselect_b32 s76, 8, s76")
        p(f"s_cmp_eq_u32 s{S_WAVE}, 0"); p("s_cselect_b32 s76, s76, 0x1000"); p("v_mov_b32 v1, s76")
        p(f"s_lshr_b32 s77, s{S_EP}, 8")
        for n, k in enumerate((100, 95, 96, 97, 101)):
            p(f"s_sub_u32 s76, s{k}, s77"); p("s_and_b32 s76, s76, 0xffffff"); p("v_mov_b32 v2, s76")
            p(f"buffer_store_dword v2, v1, s[{S_DBG}:{S_DBG+3}], 0 offen offset:{4*n}")
        for n, (a_, b_) in enumerate(((81, 80), (99, 80))):
            p(f"s_sub_u32 s76, s{a_}, s{b_}"); p("v_mov_b32 v2, s76")
            p(f"buffer_store_dword v2, v1, s[{S_DBG}:{S_DBG+3}], 0 offen offset:{20+4*n}")
    else:
        stamp_dump(p, 70, S_WAVE, 1)
    p.label("L_done"); p("s_endpgm")

    rare = Prog(); p = rare
    for site, var in rare_sites:
        p.label(f"L_rare_stub{site}")
        p(f"s_call_b64 s[{S_RET}:{S_RET+1}], L_rare{var}")
        p(f"s_branch L_rare_ret{site}")
    for name in stubs:
        p.label(f"L_stub_{name}")
        p(f"s_call_b64 s[{S_RET}:{S_RET+1}], L_spin0")
        p(f"s_branch L_ret_{name}")
    for name in ("w2", "w3"):
        p.label(f"L_stub_{name}")
        p("buffer_wbl2 sc1"); p("s_waitcnt vmcnt(0)")
        p(f"s_branch L_ret_{name}")
    p.label("L_spin0")
    p(f"s_mov_b32 s{S_SPIN}, {'0x40' if 'Lno' in ABL else '0x40000'}")
    p.label("L_spin1")
    p(poll_load(None)[0])
    p(f"s_sub_u32 s76, s{S_EP}, s{S_PV}"); p("s_add_u32 s76, s76, 8")
    p("s_waitcnt vmcnt(0)")
    for t in flag_test(V_PT): p(t)
    p(f"v_cmp_le_u32 vcc, s76, v{V_PT}")
    p("s_cbranch_vccz L_spin2")
    p(f"s_sub_u32 s{S_SPIN}, s{S_SPIN}, 1"); p("s_sleep 1"); p(f"s_cmp_lg_u32 s{S_SPIN}, 0"); p("s_cbranch_scc1 L_spin1")
    p.label("L_spin2")
    p(f"s_setpc_b64 s[{S_RET}:{S_RET+1}]")
    rare_items = fix_hazards(rare.items)[0]
    for var in ("0", "1", "Z"):
        par = 1 if var == "Z" else int(var)
        rp = Prog(); p = rp
        p.label(f"L_rare{var}")
        p("s_nop 15")
        Lold = V_LS + (1 - par) * 4
        for qt in range(4):
            rowmax(p, par, qt, V_R + qt)
            p(f"v_log_f32 v{V_R+4}, v{Lold+qt}")
            if BIAS:
                p(f"v_max_f32 v{V_R+qt}, v{V_R+qt}, v{V_R+4}"); p(f"v_add_f32 v{V_R+qt}, {f2u(BIAS)}, v{V_R+qt}"); p(f"v_max_f32 v{V_R+qt}, 0, v{V_R+qt}")
            else: p(f"v_max3_f32 v{V_R+qt}, v{V_R+qt}, v{V_R+4}, 0")
        for t in xlane_ops("v_max_f32", [V_R + q for q in range(4)], V_R + 4): p(t)
        for qt in range(4):
            p(f"v_sub_f32 v{V_R+4+qt}, 0, v{V_R+qt}"); p(f"v_exp_f32 v{V_R+4+qt}, v{V_R+4+qt}")
        for qt in range(4):
            p(f"v_mul_f32 v{Lold+qt}, v{Lold+qt}, v{V_R+4+qt}")
            if var != "Z":
                for r in range(4): p(f"v_sub_f32 v{V_NM+4*qt+r}, v{V_NM+4*qt+r}, v{V_R+qt}")
            for pp in ((par,) if var == "Z" else (0, 1)):
                for kt in range(4):
                    for r in range(4): p(f"v_sub_f32 v{Sreg(pp,kt,qt)+r}, v{Sreg(pp,kt,qt)+r}, v{V_R+qt}")
            for dt in range(8):
                o = A_O + (dt * 4 + qt) * 4
                for r in range(4): p(f"v_accvgpr_read_b32 v{V_E+r}, a{o+r}")
                for r in range(4): p(f"v_mul_f32 v{V_E+r}, v{V_E+r}, v{V_R+4+qt}")
                for r in range(4): p(f"v_accvgpr_write_b32 a{o+r}, v{V_E+r}")
        for tau in range(64):
            p(op_exp(par, tau))
            if tau % 4 >= 2: p(op_add(par, tau))
            if tau % 2 == 1: p(op_cvt(par, tau))
        for qt in (0, 2):
            p(l_mfma(par, qt, 0)); p(l_mfma(par, qt, 1)); p(op_ladd(par, qt))
        if var != "Z":
            for tau in range(4): p(op_exp(1 - par, tau))
            p(op_cvt(1 - par, 1))
        p("s_nop 3")
        p(f"s_setpc_b64 s[{S_RET}:{S_RET+1}]")
        rare_items += fix_hazards(rp.items)[0]

    resolve_waits(pro.items + body.items + body.items + tail.items)
    pi = lower_waits(pro.items); bi = lower_waits(body.items); ti = lower_waits(tail.items)
    pi, a1 = fix_hazards(pi, verbose=False, name="pro")
    bi2, a2 = fix_hazards(bi, prev=bi, verbose=True, name="body")
    bi3, a3 = fix_hazards(bi2, prev=pi, verbose=True, name="body-entry")
    ti, a4 = fix_hazards(ti, prev=bi3, verbose=True, name="tail")
    wc = WaitChecker(); wc.run(pi + bi3 + bi3 + ti)
    for e in wc.errors[:10]: print("WAITCHECK", e)
    assert check_needs(pi + bi3 + bi3 + ti) == 0
    for it in pi + bi3 + ti:
        if isinstance(it, Ins): it.text = it.text.split(' ; need[')[0]
    allit = pi + bi3 + ti
    if not HOP: return allit + rare_items
    import subprocess
    REV = int(os.environ.get("PREV", "1")); PMAX = int(os.environ.get("PMAX", "16"))
    def with_pads(pos):
        out = []; k_ = 0; N = len(pos)
        for n, it in enumerate(allit):
            out.append(it)
            if n in pos:
                me = (N - 1 - k_) if REV else k_
                out += [Label(f"L_pad{me}"), Ins("s_cbranch_execz " + (f"L_pad{me+3}" if me + 3 < N else "L_padend"), "PAD")]; k_ += 1
        return out + rare_items
    def addrs(items):
        txt = '.amdgcn_target "amdgcn-amd-amdhsa--gfx950"\n.text\n'
        for n, it in enumerate(items):
            txt += render([it])
            if isinstance(it, Ins) and it.tag != "PAD": txt += f"L_m{id(it)}:\n"
        txt += "L_code_end:\n"
        open("pads.s", "w").write(txt)
        subprocess.run(["clang", "-x", "assembler", "-target", "amdgcn-amd-amdhsa", "-mcpu=gfx950", "-c", "pads.s", "-o", "pads.o"], check=True)
        o = subprocess.run(["llvm-objdump", "-t", "pads.o"], capture_output=True, text=True).stdout
        return {l.split()[-1]: int(l.split()[0], 16) for l in o.splitlines() if ".text" in l and l.split()[-1].startswith("L_")}
    first = [n for n, it in enumerate(allit) if isinstance(it, Ins) and it.kind == "mfma"][0]
    cand = [n for n in range(first, len(allit) - 1) if isinstance(allit[n], Ins) and allit[n].kind != "ctl" and isinstance(allit[n + 1], Ins)]
    pos = set(cand[:3])
    for rnd_ in range(8):
        ad = addrs(with_pads(pos))
        pages = {}
        for n in cand:
            a_ = ad[f"L_m{id(allit[n])}"]
            if a_ % 4096 < 52: pages.setdefault(a_ // 4096, []).append(n)
        new_ = []
        for pg_, ns in sorted(pages.items()):
            keep = [n for n in ns if n in pos]
            mf_ = [n for n in ns if allit[n].kind == "mfma" and allit[n + 1].kind not in ("salu", "wait", "ctl")] or [n for n in ns if allit[n].kind == "mfma"]
            new_.append(keep[0] if keep else (mf_ or ns)[0])
        new_ = set(new_[:PMAX])
        if new_ == pos: break
        pos = new_
    ad = addrs(with_pads(pos))
    print("pads at:", " ".join(hex(ad[f"L_pad{k}"]) for k in range(len(pos))), "end", hex(ad["L_done"]), "spin", hex(ad["L_spin0"]))
    return with_pads(pos)

if __name__ == "__main__":
    import sys
    HEADER = open("cdna_kernels/" + NAME + ".s.ref").read().split("; Override")[0]
    items = gen_mega()
    k = NAME + "_kernel"
    s = HEADER + f"; @launch grid=(256,1,1) block=(256,1,1) lds={LDS_BYTES}\n"
    s += '.amdgcn_target "amdgcn-amd-amdhsa--gfx950"\n' + kernel_text(k, items, 512, 256)
    s += "L_code_end:\n    s_endpgm\n" + '.section .rodata,"a"\n.p2align 6\n' + kd_text(k, 512, 256)
    open(sys.argv[1], "w").write(s)
```
